```python
import torch

def _softmax(x, axis=-1):
    return torch.softmax(x, dim=axis)
def _gelu(x):
    return torch.nn.functional.gelu(x, approximate="tanh")
def _silu(x):
    return torch.nn.functional.silu(x)
def _sigmoid(x):
    return torch.sigmoid(x)
def _layernorm(x, axis=-1, eps=1e-5):
    m = x.mean(dim=axis, keepdim=True)
    v = x.var(dim=axis, keepdim=True, unbiased=False)
    return (x - m) / torch.sqrt(v + eps)
def _scatter_add(tgt, idx, src, axis=0):
    return tgt.clone().index_add_(axis, idx, src)
def _segment_sum(src, seg, n):
    out = torch.zeros((n,) + src.shape[1:], dtype=src.dtype)
    return out.index_add_(0, seg, src)
def _pad(x, pw):
    flat = tuple(v for pair in reversed(pw) for v in pair)
    return torch.nn.functional.pad(x, flat)

kernel_name = 'gated_mix__softmax_full_mha__sliding_local_dilated__prompt'

def setup_inputs():

    _w = (lambda a: (lambda t: t.to(torch.bfloat16) if t.is_floating_point() else t)(torch.as_tensor(a)))
    def _A_setup():
        B, S, D = 1, 2048, 1024
        return {
            "x": _w((lambda *s: torch.randn(*s, dtype=torch.bfloat16) * 0.05)(B, S, D)),
            "wqkv": _w((lambda *s: torch.randn(*s, dtype=torch.bfloat16) * 0.8)(D, 3 * D)),
            "wo": _w((lambda *s: torch.randn(*s, dtype=torch.bfloat16) * 0.1)(D, D)),
        }
    _A_in = _A_setup()

    def _B_setup():
        B, S, D = 1, 2048, 1024
        return {
            "x": _w((lambda *s: torch.randn(*s, dtype=torch.bfloat16) * 0.05)(B, S, D)),
            "wqkv": _w((lambda *s: torch.randn(*s, dtype=torch.bfloat16) * 0.8)(D, 3 * D)),
            "wo": _w((lambda *s: torch.randn(*s, dtype=torch.bfloat16) * 0.05)(D, D)),
        }
    _B_in = _B_setup()

    return {
        "A_x": _A_in["x"],
        "A_wqkv": _A_in["wqkv"],
        "A_wo": _A_in["wo"],
        "B_x": _B_in["x"],
        "B_wqkv": _B_in["wqkv"],
        "B_wo": _B_in["wo"],
        "gate_w": _w((lambda *s: torch.randn(*s, dtype=torch.bfloat16) * 0.05)(1024) * 16.0),
    }

def reference(A_x, A_wqkv, A_wo, B_x, B_wqkv, B_wo, gate_w):
    def _A_ref(x, wqkv, wo):
        B, S, D = x.shape
        H = 32; Dh = D // H
        qkv = (lambda x, *d: x.permute(*d))((x @ wqkv).reshape(B, S, 3, H, Dh), 2, 0, 3, 1, 4)
        q, k, v = qkv[0], qkv[1], qkv[2]
        scale = Dh ** -0.5
        scores = torch.einsum("bhqd,bhkd->bhqk", q, k) * scale
        p = _softmax(scores, axis=-1)
        o = torch.einsum("bhqk,bhkd->bhqd", p, v)
        return (lambda x, *d: x.permute(*d))(o, 0, 2, 1, 3).reshape(B, S, D) @ wo

    def _B_ref(x, wqkv, wo):
        B, S, D = x.shape
        H = 32; Dh = D // H
        W, dil = 8, 2
        qkv = (lambda x, *d: x.permute(*d))((x @ wqkv).reshape(B, S, 3, H, Dh), 2, 0, 3, 1, 4)
        q, k, v = qkv[0], qkv[1], qkv[2]
        scale = Dh ** -0.5
        pos = torch.arange(S)
        off = torch.arange(W) * dil
        idx = pos[:, None] - off[None, :]
        mask = idx >= 0
        idx_c = torch.where(mask, idx, 0).reshape(-1)
        kg = k[:, :, idx_c, :].reshape(B, H, S, W, Dh)
        vg = v[:, :, idx_c, :].reshape(B, H, S, W, Dh)
        logits = torch.einsum("bhsd,bhswd->bhsw", q, kg) * scale
        logits = torch.where(mask[None, None, :, :], logits, -1e9)
        attn = _softmax(logits, axis=-1)
        o = torch.einsum("bhsw,bhswd->bhsd", attn, vg)
        return (lambda x, *d: x.permute(*d))(o, 0, 2, 1, 3).reshape(B, S, D) @ wo

    x = A_x
    g = _sigmoid((x * gate_w).sum(-1, keepdims=True))
    a = _A_ref(x, A_wqkv, A_wo)
    b = _B_ref(x, B_wqkv, B_wo)
    return g * a + (1 - g) * b
```

```python
class Asm:
    def __init__(self):
        self.lines = []
    def __call__(self, s):
        for l in s.split("\n"):
            l = l.rstrip()
            if l.strip():
                self.lines.append(l if l.endswith(":") or l.startswith(".") else "    " + l.strip())
    def c(self, s):
        self.lines.append("    ; " + s)
    def text(self):
        return "\n".join(self.lines) + "\n"

def vr(b, n=1):
    return f"v{b}" if n == 1 else f"v[{b}:{b+n-1}]"
def ar(b, n=1):
    return f"a{b}" if n == 1 else f"a[{b}:{b+n-1}]"
def sr(b, n=1):
    return f"s{b}" if n == 1 else f"s[{b}:{b+n-1}]"

def interleave(a, mains, sides):
    for i, m in enumerate(mains):
        a(m)
        for s in sides.get(i, []):
            a(s)
```

```python
import re
TRANS = ("v_exp_f32", "v_log_f32", "v_rcp_f32", "v_rsq_f32", "v_sqrt_f32", "v_sin_f32", "v_cos_f32")
def regs(tok):
    tok = tok.strip()
    tok = tok.lstrip("-").replace("abs(", "").replace(")", "").replace("|", "")
    m = re.fullmatch(r"([vas])\[(\d+):(\d+)\]", tok)
    if m: return {(m.group(1), i) for i in range(int(m.group(2)), int(m.group(3)) + 1)}
    m = re.fullmatch(r"([vas])(\d+)", tok)
    if m: return {(m.group(1), int(m.group(2)))}
    if tok == "vcc": return {("s", "vcc")}
    if tok == "m0": return {("s", "m0")}
    if tok in ("exec", "exec_lo", "exec_hi"): return {("s", "exec")}
    return set()
class I:
    def __init__(self, text, idx):
        self.text = text; self.idx = idx
        t = text.split(";")[0].strip()
        parts = t.split(None, 1)
        self.op = parts[0]
        ops = []
        if len(parts) > 1:
            ops = [o.strip() for o in parts[1].split(",")]
            last = ops[-1].split()
            self.mods = " ".join(last[1:])
            ops[-1] = last[0] if last else ""
        else:
            self.mods = ""
        self.ops = ops
        op = self.op
        self.mfma = op.startswith("v_mfma") or op.startswith("v_smfmac")
        self.valu = op.startswith("v_") and not self.mfma
        self.vmem = op.startswith("buffer_") or op.startswith("global_")
        self.ds = op.startswith("ds_")
        self.salu = op.startswith("s_")
        self.w = set(); self.r = set()
        R = [regs(o) for o in ops]
        if self.mfma:
            self.w = R[0]; self.A = R[1]; self.B = R[2]
            if op.startswith("v_smfmac"):
                self.C = R[0]; self.r = R[0] | R[1] | R[2] | R[3]
            else:
                self.C = R[3]; self.r = R[1] | R[2] | R[3]
            self.passes = 8 if "32x32" in op else 4
        elif self.valu:
            if op.startswith("v_cmp"):
                self.w = R[0]; self.r = set().union(*R[1:])
            elif op.startswith("v_permlane") and "swap" in op:
                self.w = R[0] | R[1]; self.r = R[0] | R[1]
            elif op in ("v_add_co_u32", "v_sub_co_u32", "v_addc_co_u32"):
                self.w = R[0] | R[1]; self.r = set().union(*R[2:])
            else:
                self.w = R[0]; self.r = set().union(*R[1:]) if len(R) > 1 else set()
                if op.startswith("v_fmac") or op.startswith("v_dot2c") or op.startswith("v_writelane") or "_dpp" in op: self.r |= R[0]
        elif self.vmem:
            lds = " lds" in (" " + self.mods) or "load_lds" in op
            if "store" in op or "atomic" in op:
                self.r = set().union(*R)
                self.sdata = R[0] if op.startswith("buffer_") else R[1]
            elif lds:
                self.r = set().union(*R) | {("s", "m0")}
            else:
                self.w = R[0]; self.r = set().union(*R[1:])
            self.lds = lds
        elif self.ds:
            if "write" in op: self.r = set().union(*R)
            else:
                self.w = R[0]; self.r = set().union(*R[1:])
        elif self.salu:
            if op.startswith("s_cmp") or op.startswith("s_cbranch") or op in ("s_branch", "s_waitcnt", "s_nop", "s_barrier", "s_endpgm", "s_setprio", "s_sleep"):
                self.r = set().union(*R) if R else set()
            else:
                self.w = R[0] if R else set(); self.r = set().union(*R[1:]) if len(R) > 1 else set()
        self.states = int(ops[0]) + 1 if op == "s_nop" else 1
        self.dpp = "row_" in self.mods or "quad_perm" in self.mods

def need(p, c):
    n = 0
    V = lambda S: {x for x in S if x[0] in "va"}
    S_ = lambda S: {x for x in S if x[0] == "s"}
    if p.valu:
        pw = V(p.w)
        if c.mfma and pw & c.r: n = max(n, 2)
        if p.op in TRANS and c.valu and c.op not in TRANS and pw & c.r: n = max(n, 1)
        if c.op.startswith("v_permlane") and pw & c.r: n = max(n, 2)
        if c.op.startswith(("v_readlane", "v_readfirstlane")) and pw & c.r: n = max(n, 1)
        if c.valu and c.dpp and pw & c.r: n = max(n, 2)
        if p.op.startswith("v_dot") and (c.valu or c.vmem or c.ds) and c.op != p.op and pw & (c.r | c.w): n = max(n, 3)
        sw = S_(p.w)
        if sw:
            if c.valu and sw & c.r: n = max(n, 4 if c.op.startswith(("v_readlane", "v_writelane")) else 2)
            if c.vmem and sw & c.r: n = max(n, 5)
            if ("s", "exec") in sw and c.mfma: n = max(n, 4)
    if p.mfma:
        big = p.passes == 8
        if (c.valu or c.vmem or c.ds) and p.w & (c.r | c.w): n = max(n, 12 if big else 8)
        if c.mfma:
            if p.w & (c.A | c.B): n = max(n, 12 if big else 8)
            if p.w & c.C and not (p.w == c.C and p.passes == c.passes): n = max(n, 10 if big else 6)
            if p.w & c.w and not (p.w == c.w and p.passes == c.passes) : n = max(n, 10 if big else 6)
        if c.valu and p.C & c.w: n = max(n, 7 if big else 3)
    if p.salu and ("s", "m0") in p.w and c.vmem and getattr(c, "lds", False): n = max(n, 1)
    if p.salu and ("s", "m0") in p.w and c.op.startswith(("v_writelane","v_readlane")) and ("s","m0") in c.r: n = max(n, 0)
    if p.vmem and hasattr(p, "sdata") and len(p.sdata) >= 3 and c.w & p.sdata: n = max(n, 2 if c.valu else 1)
    return n

def check(text, verbose=True):
    ins = []; labels = {}
    for ln in text.split("\n"):
        t = ln.split(";")[0].strip()
        if not t or t.startswith("."): continue
        if t.endswith(":"):
            labels[t[:-1]] = len(ins); continue
        ins.append(I(t, len(ins)))
    probs = []
    def scan(seq):
        for j in range(len(seq)):
            d = 0
            for i in range(j - 1, max(-1, j - 22), -1):
                n = need(seq[i], seq[j])
                if n > d:
                    probs.append((seq[i].idx, seq[j].idx, n, d, seq[i].text, seq[j].text))
                d += seq[i].states
                if d >= 20: break
    scan(ins)
    for k, x in enumerate(ins):
        if x.op.startswith("s_cbranch") or x.op == "s_branch":
            tgt = labels.get(x.ops[0])
            if tgt is None: continue
            seq = ins[max(0, k - 22):k + 1] + ins[tgt:tgt + 22]
            scan(seq)
    seen = set(); out = []
    for p in probs:
        if p[:2] in seen: continue
        seen.add(p[:2]); out.append(p)
    if verbose:
        for p in out: print(f"HAZARD need {p[2]} have {p[3]}: [{p[0]}] {p[4]}  ->  [{p[1]}] {p[5]}")
    return out
if __name__ == "__main__":
    import sys
    r = check(open(sys.argv[1]).read())
    print(len(r), "hazards")
```

```python
from asmlib import *

HOOKS = {}
X_BASE = 0
X_SLOT = 16384
W_BASE = 49152
W_SLOT = 24576
ACC0 = 64
def acc(blk, rt): return ACC0 + (blk*2 + rt)*16
def fX(s, rt): return s*32 + rt*4
def fW(s, blk): return s*32 + 8 + blk*4

vLANE = 1
vXr = [2,3,4,5]; vXa = [6,7,8,9]; vWr = [10,11]; vWg = [12,13,14]; vXg = [15,16,17,18]
vT = [19,20,21,22,23,24,25,26]
sX, sWA, sWB, sWS = 4, 8, 12, 16
sW, sHP, sT, sRH, sHH = 20, 21, 22, 23, 24
sWoff, sXoff = 25, 26
sA, sB, sC = 27, 28, 29
sXw = [30,31,32,33]
sWv = 34
sCNT = 35
sTMP = [36,37,38,39]
sPF = 40
sPFoff, sPFstr, sPFlim = 44, 45, 46
vPF = 27; vPFd = 28

vSTAMP = 30
sSTAMPI = 68
def stamp(a, opts):
    if not opts.get("stamp"): return
    a("s_memtime s[66:67]")
    a("s_waitcnt lgkmcnt(0)")
    a(f"s_mov_b32 m0, s{sSTAMPI}")
    a(f"v_writelane_b32 v{vSTAMP}, s66, m0")
    a(f"s_add_u32 s{sSTAMPI}, s{sSTAMPI}, 1")

def srd(a, s, lo, hi, nbytes):
    a(f"s_mov_b32 s{s}, s{lo}")
    a(f"s_and_b32 s{s+1}, s{hi}, 0xffff")
    a(f"s_mov_b32 s{s+2}, {nbytes}")
    a(f"s_mov_b32 s{s+3}, 0x20000")

def emit_setup(a, opts):
    a("s_cmp_ge_u32 s2, 256")
    a("s_cbranch_scc1 L_END")
    if opts.get("stamp"):
        a(f"s_mov_b32 s{sSTAMPI}, 0")
        stamp(a, opts)
    a("s_load_dwordx4 s[48:51], s[0:1], 0")
    a("s_load_dwordx2 s[52:53], s[0:1], 32")
    a("s_load_dwordx2 s[54:55], s[0:1], 72")
    if "setup2" in HOOKS: HOOKS["setup2"](a, opts)
    a(f"v_and_b32 v{vLANE}, 63, v0")
    a(f"v_lshrrev_b32 v{vT[0]}, 6, v0")
    a("s_and_b32 s3, s2, 7")
    a(f"v_readfirstlane_b32 s{sW}, v{vT[0]}")
    a("s_lshr_b32 s36, s2, 3")
    if opts.get("map", 0) == 0:
        a("s_and_b32 s37, s3, 3")
        a("s_lshl_b32 s37, s37, 2")
        a("s_and_b32 s38, s36, 3")
        a(f"s_add_u32 s{sHP}, s37, s38")
        a("s_lshr_b32 s37, s3, 2")
        a("s_lshl_b32 s37, s37, 3")
        a("s_lshr_b32 s38, s36, 2")
        a(f"s_add_u32 s{sT}, s37, s38")
    else:
        a("s_lshl_b32 s37, s3, 1")
        a("s_and_b32 s38, s36, 1")
        a(f"s_add_u32 s{sHP}, s37, s38")
        a(f"s_lshr_b32 s{sT}, s36, 1")
    a(f"s_and_b32 s{sRH}, s{sW}, 1")
    a(f"s_lshr_b32 s{sHH}, s{sW}, 1")
    r, c, t0, t1 = vT[0], vT[1], vT[2], vT[3]
    a(f"v_lshrrev_b32 v{r}, 3, v{vLANE}")
    a(f"v_and_b32 v{c}, 7, v{vLANE}")
    a(f"v_lshlrev_b32 v{t0}, 1, v{r}")
    a(f"v_and_b32 v{t0}, 4, v{t0}")
    a(f"v_xor_b32 v{t0}, v{t0}, v{c}")
    a(f"v_lshlrev_b32 v{t0}, 4, v{t0}")
    a(f"v_mul_u32_u24 v{t1}, 6144, v{r}")
    a(f"v_add_u32 v{t0}, v{t0}, v{t1}")
    a(f"s_mul_i32 s36, s{sW}, {8*6144}")
    a(f"s_lshl_b32 s37, s{sHP}, 7")
    a("s_add_u32 s36, s36, s37")
    a(f"v_add_u32 v{vWg[0]}, s36, v{t0}")
    a(f"v_add_u32 v{vWg[1]}, 2048, v{vWg[0]}")
    a(f"v_add_u32 v{vWg[2]}, 4096, v{vWg[0]}")
    a(f"v_lshrrev_b32 v{t0}, 1, v{r}")
    a(f"v_xor_b32 v{t0}, v{t0}, v{c}")
    a(f"v_lshlrev_b32 v{t0}, 4, v{t0}")
    a(f"v_lshlrev_b32 v{t1}, 11, v{r}")
    a(f"v_add_u32 v{t0}, v{t0}, v{t1}")
    a(f"s_lshl_b32 s36, s{sT}, 7")
    a(f"s_lshl_b32 s37, s{sW}, 5")
    a("s_add_u32 s36, s36, s37")
    a("s_lshl_b32 s36, s36, 11")
    a(f"v_add_u32 v{vXg[0]}, s36, v{t0}")
    a(f"v_xor_b32 v{vXg[1]}, 64, v{vXg[0]}")
    a(f"v_add_u32 v{vXg[1]}, {8*2048}, v{vXg[1]}")
    a(f"v_add_u32 v{vXg[2]}, {16*2048}, v{vXg[0]}")
    a(f"v_add_u32 v{vXg[3]}, {16*2048}, v{vXg[1]}")
    a(f"s_lshl_b32 s{sWv}, s{sW}, 10")
    a(f"s_lshl_b32 s{sXw[0]}, s{sW}, 12")
    for p in range(1, 4):
        a(f"s_add_u32 s{sXw[p]}, s{sXw[0]}, {p*1024}")
    a("s_waitcnt lgkmcnt(0)")
    stamp(a, opts)
    srd(a, sX, 48, 49, 2048*1024*2)
    srd(a, sWA, 50, 51, 1024*3072*2)
    srd(a, sWB, 52, 53, 1024*3072*2)
    srd(a, sWS, 54, 55, 0x10000000)
    if "early" in HOOKS: HOOKS["early"](a, opts)

def dmaW(blk, slot):
    br, sec = blk // 3, blk % 3
    s = sWA if br == 0 else sWB
    return (f"s_add_u32 m0, s{sWv}, {W_BASE + slot*W_SLOT + blk*4096}",
            f"buffer_load_dwordx4 v{vWg[sec]}, s[{s}:{s+3}], s{sWoff} offen lds")
def dmaX(p, slotreg):
    return (f"s_add_u32 m0, s{slotreg}, s{sXw[p]}",
            f"buffer_load_dwordx4 v{vXg[p]}, s[{sX}:{sX+3}], s{sXoff} offen lds")

def pf_instrs():
    return [f"buffer_load_dword v{vPFd}, v{vPF}, s[{sPF}:{sPF+3}], s{sPFoff} offen",
            f"s_add_u32 s{sPFoff}, s{sPFoff}, s{sPFstr}",
            f"s_min_u32 s{sPFoff}, s{sPFoff}, s{sPFlim}"]

def emit_pf_setup(a, opts):
    t0, t1, t2 = vT[0], vT[1], vT[2]
    a("s_and_b32 s36, s2, 7")
    a("s_lshr_b32 s37, s2, 3")
    a("s_and_b32 s38, s36, 3")
    a("s_lshl_b32 s38, s38, 5")
    a("s_add_u32 s38, s38, s37")
    a("s_lshl_b32 s38, s38, 3")
    a("s_lshr_b32 s39, s36, 2")
    a("s_lshl_b32 s47, s39, 10")
    a("s_add_u32 s38, s38, s47")
    a(f"v_add_u32 v{t0}, s38, v{vLANE}")
    a(f"v_lshlrev_b32 v{t0}, 11, v{t0}")
    a("s_lshl_b32 s39, s39, 5")
    a("s_add_u32 s39, s39, s37")
    a("s_mul_i32 s39, s39, 6144")
    a("s_and_b32 s38, s36, 3")
    a("s_lshl_b32 s38, s38, 9")
    a("s_add_u32 s39, s39, s38")
    a(f"v_lshrrev_b32 v{t1}, 2, v{vLANE}")
    a(f"v_lshlrev_b32 v{t1}, 11, v{t1}")
    a(f"v_and_b32 v{t2}, 3, v{vLANE}")
    a(f"v_lshlrev_b32 v{t2}, 7, v{t2}")
    a(f"v_add3_u32 v{t1}, v{t1}, v{t2}, s39")
    a(f"s_mov_b32 s{sPFstr}, 128")
    a(f"s_mov_b32 s{sPFlim}, {15*128}")
    a(f"s_cmp_eq_u32 s{sW}, 0")
    a(f"s_cselect_b32 s{sPFstr}, s{sPFstr}, {64*6144}")
    a(f"s_cselect_b32 s{sPFlim}, s{sPFlim}, {16*64*6144}")
    a(f"s_cselect_b32 s38, 8, 12")
    a(f"s_cselect_b64 s[56:57], -1, 0")
    a(f"v_cndmask_b32 v{vPF}, v{t1}, v{t0}, s[56:57]")
    a(f"s_cselect_b32 s{sPF}, s{sX}, s{sWA}")
    a(f"s_cselect_b32 s{sPF+1}, s{sX+1}, s{sWA+1}")
    a(f"s_cselect_b32 s{sPF+2}, s{sX+2}, s{sWA+2}")
    a(f"s_mov_b32 s{sPF+3}, 0x20000")
    a(f"s_cmp_eq_u32 s{sW}, 2")
    a(f"s_cselect_b32 s{sPF}, s{sWB}, s{sPF}")
    a(f"s_cselect_b32 s{sPF+1}, s{sWB+1}, s{sPF+1}")
    a(f"s_cmp_eq_u32 s{sW}, 3")
    a(f"s_cselect_b32 s38, 0, s38")
    a(f"s_lshl_b32 s{sPFoff}, s{sPFstr}, 1")
    a(f"v_cmp_gt_u32 vcc, s38, v{vLANE}")
    a(f"v_mov_b32 v{t2}, 0x80000000")
    a("s_nop 0")
    a(f"v_cndmask_b32 v{vPF}, v{t2}, v{vPF}, vcc")

def emit_prologue(a, opts):
    a(f"s_mov_b32 s{sWoff}, 0")
    a(f"s_mov_b32 s{sXoff}, 0")
    a(f"s_mov_b32 s{sA}, {X_BASE}")
    a(f"s_mov_b32 s{sB}, {X_BASE + X_SLOT}")
    a(f"s_mov_b32 s{sC}, {X_BASE + 2*X_SLOT}")
    def pair(p):
        a(p[0]); a("s_nop 0"); a(p[1])
    for p in range(4): pair(dmaX(p, sA))
    for b in range(6): pair(dmaW(b, 0))
    a(f"s_add_u32 s{sWoff}, s{sWoff}, 196608")
    a(f"s_add_u32 s{sXoff}, s{sXoff}, 128")
    for u, xp in ((1, (0, 1)), (2, (2, 3))):
        for b in range(3): pair(dmaW(b, u))
        pair(dmaX(xp[0], sB))
        for b in range(3, 6): pair(dmaW(b, u))
        pair(dmaX(xp[1], sB))
        a(f"s_add_u32 s{sWoff}, s{sWoff}, 196608")
    a(f"s_add_u32 s{sXoff}, s{sXoff}, 128")
    for b in range(3): pair(dmaW(b, 3))
    pair(dmaX(0, sC))
    npf = 0
    if opts.get("pf"):
        emit_pf_setup(a, opts)
        npf = opts.get("pf0", 3)
        for i in range(npf):
            for ins in pf_instrs(): a(ins)
    stamp(a, opts)
    m, h, t0, t1 = vT[0], vT[1], vT[2], vT[3]
    a(f"v_and_b32 v{m}, 31, v{vLANE}")
    a(f"v_lshrrev_b32 v{h}, 5, v{vLANE}")
    a(f"v_lshrrev_b32 v{t0}, 1, v{m}")
    a(f"v_and_b32 v{t0}, 7, v{t0}")
    a(f"v_xor_b32 v{t0}, v{t0}, v{h}")
    a(f"v_lshlrev_b32 v{t0}, 4, v{t0}")
    a(f"v_lshlrev_b32 v{t1}, 7, v{m}")
    a(f"v_add_u32 v{t0}, v{t0}, v{t1}")
    a(f"s_lshl_b32 s36, s{sRH}, 13")
    a(f"v_add_u32 v{vXr[0]}, s36, v{t0}")
    for kk in range(1, 4):
        a(f"v_xor_b32 v{vXr[kk]}, {kk*32}, v{vXr[0]}")
    for kk in range(4):
        a(f"v_add_u32 v{vXa[kk]}, {X_BASE}, v{vXr[kk]}")
    i_, row = vT[0], vT[4]
    a(f"v_and_b32 v{i_}, 15, v{vLANE}")
    a(f"v_lshrrev_b32 v{t0}, 2, v{i_}")
    a(f"v_lshlrev_b32 v{t1}, 3, v{h}")
    a(f"v_add_u32 v{vT[7]}, v{t0}, v{t1}")
    row = vT[7]
    a(f"v_lshrrev_b32 v{t0}, 1, v{row}")
    a(f"v_and_b32 v{t0}, 1, v{t0}")
    a(f"v_xor_b32 v{t0}, s{sHH}, v{t0}")
    a(f"v_lshlrev_b32 v{t0}, 6, v{t0}")
    a(f"v_lshlrev_b32 v{t1}, 7, v{row}")
    a(f"v_add_u32 v{t0}, v{t0}, v{t1}")
    a(f"v_and_b32 v{t1}, 16, v{vLANE}")
    a(f"v_lshlrev_b32 v{t1}, 1, v{t1}")
    a(f"v_add_u32 v{t0}, v{t0}, v{t1}")
    a(f"v_and_b32 v{t1}, 3, v{i_}")
    a(f"v_lshlrev_b32 v{t1}, 3, v{t1}")
    a(f"v_add_u32 v{t0}, v{t0}, v{t1}")
    a(f"v_add_u32 v{vWr[0]}, {W_BASE}, v{t0}")
    a(f"v_add_u32 v{vWr[1]}, {W_BASE + 2*W_SLOT}, v{t0}")
    for r in range(120 if "gate" in HOOKS else ACC0, 256):
        a(f"v_mov_b32 v{r}, 0")
    if "masks" in HOOKS: HOOKS["masks"](a)
    stamp(a, opts)
    a(f"s_waitcnt vmcnt({20 + npf})")
    if "gate" in HOOKS: HOOKS["gate"](a, opts)
    a("s_barrier")
    stamp(a, opts)
    for s in frag_reads(0, 0, 0, 0): a(s)
    a(f"v_add_u32 v{vXa[0]}, s{sB}, v{vXr[0]}")
    a("s_waitcnt lgkmcnt(0)")

def frag_reads(fs, kk, wslot, k16):
    out = []
    for rt in range(2):
        out.append(f"ds_read_b128 {ar(fX(fs, rt), 4)}, v{vXa[kk]} offset:{rt*4096}")
    for blk in range(6):
        off = (wslot % 2)*W_SLOT + blk*4096 + k16*2048
        out.append(f"ds_read_b64_tr_b16 {ar(fW(fs, blk), 2)}, v{vWr[wslot//2]} offset:{off}")
        out.append(f"ds_read_b64_tr_b16 {ar(fW(fs, blk)+2, 2)}, v{vWr[wslot//2]} offset:{off+512}")
    return out

def mfmas(fs):
    out = []
    for blk in range(6):
        for rt in range(2):
            d = vr(acc(blk, rt), 16)
            w, x = ar(fW(fs, blk), 4), ar(fX(fs, rt), 4)
            if blk % 3 == 2:
                out.append(f"v_mfma_f32_32x32x16_bf16 {d}, {x}, {w}, {d}")
            else:
                out.append(f"v_mfma_f32_32x32x16_bf16 {d}, {w}, {x}, {d}")
    return out

READ_GAPS = [0,0,1,1,2,2,3,3,4,5,6,7,8,9]
DMA_GAPS = [(1,2),(4,5),(7,8),(9,10)]

def half(a, fs, reads, dmas, extra):
    sides = {}
    for g, r in zip(READ_GAPS, reads):
        sides.setdefault(g, []).append(r)
    for (g0, g1), d in zip(DMA_GAPS, dmas):
        sides.setdefault(g0, []).append(d[0])
        sides.setdefault(g1, []).insert(0, d[1])
    for g, e in extra:
        sides.setdefault(g, []).append(e)
    interleave(a, mfmas(fs), sides)

def emit_step(a, u4, tail_dma, head_dma, vm, last=False, pf=False):
    odd = u4 & 1
    kk = 2*odd + 1
    reads = frag_reads(1, kk, u4, 1)
    dm = []
    ex = [(3, f"v_add_u32 v{vXa[kk]}, s{sB}, v{vXr[kk]}")]
    if tail_dma:
        sl = (u4 - 1) % 4
        dm = [dmaW(b, sl) for b in (3, 4, 5)] + [dmaX(3 if odd else 1, sC)]
        ex.append((11, f"s_add_u32 s{sWoff}, s{sWoff}, 196608"))
        if odd:
            ex.append((11, f"s_add_u32 s{sXoff}, s{sXoff}, 128"))
    if pf:
        p = pf_instrs()
        ex += [(11, p[0]), (11, p[1]), (11, p[2])]
    if odd:
        ex += [(10, f"s_mov_b32 s36, s{sA}"), (10, f"s_mov_b32 s{sA}, s{sB}"), (11, f"s_mov_b32 s{sB}, s{sC}"), (11, f"s_mov_b32 s{sC}, s36")]
    half(a, 0, reads, dm, ex)
    if vm is not None:
        a(f"s_waitcnt vmcnt({vm}) lgkmcnt(0)")
        a("s_barrier")
    else:
        a("s_waitcnt lgkmcnt(0)")
    kk = (2*odd + 2) % 4
    reads = [] if last else frag_reads(0, kk, (u4 + 1) % 4, 0)
    ex = [] if last else [(3, f"v_add_u32 v{vXa[kk]}, s{sB}, v{vXr[kk]}")]
    dm = []
    if head_dma:
        dm = [dmaW(b, u4) for b in (0, 1, 2)] + [dmaX(0 if odd else 2, sC)]
    return reads, dm, ex

def emit_gemm1(a, opts):
    a(f"s_mov_b32 s{sCNT}, 7")
    a(".p2align 6")
    a("L_G1:")
    for u4 in range(4):
        reads, dm, ex = emit_step(a, u4, True, True, 19 if opts.get('pf') else 16, pf=opts.get('pf'))
        if u4 == 3:
            ex += [(9, f"s_sub_u32 s{sCNT}, s{sCNT}, 1"), (11, f"s_cmp_lg_u32 s{sCNT}, 0")]
        half(a, 1, reads, dm, ex)
        a("s_waitcnt lgkmcnt(0)")
    if opts.get("stamp"):
        a("s_cselect_b32 s69, 1, 0")
        stamp(a, opts)
        a("s_cmp_lg_u32 s69, 0")
    a("s_cbranch_scc1 L_G1")
    for u4, vm in zip(range(4), (18, 9, 0, None) if opts.get('pf') else (16, 8, 0, None)):
        reads, dm, ex = emit_step(a, u4, u4 == 0, False, vm, last=(u4 == 3))
        half(a, 1, reads, dm, ex)
        if u4 != 3:
            a("s_waitcnt lgkmcnt(0)")
```

```python
import sys
from asmlib import *
import p1
from p1 import *

KNAME = "gated_mix__softmax_full_mha__sliding_local_dilated__prompt_kernel"
KV_OFF   = 0
OA_OFF   = 8 << 20
OB_OFF   = 12 << 20
HALO_OFF = 16 << 20
G_OFF    = 20 << 20
FLAG_OFF = 21 << 20
STAMP_OFF = 0x8000000
OOB = 0x80000000
CSCALE = 0x3E8293EE
import struct, math
def f2u(x): return struct.unpack("<I", struct.pack("<f", x))[0]
CSCALE = f2u(math.log2(math.e) / math.sqrt(32.0))
NEGBIG = f2u(-1e30)
LOG2E = f2u(math.log2(math.e))

sNONCE, sCS = 60, 61
sPWoA, sPWoB, sPG, sPOut, sPDbg = 70, 72, 74, 76, 78
sKVsrc = 80
sKVdst = 81
sKVrd  = 82
sPASS  = 83
sKVbase = 84
sKVt   = 85
sOst   = 86
sSpin  = 87
sT4, sC4 = 88, 89
sOoff, sWooff = 90, 91
sObase = 92
QA = [64, 80]; KA = [96, 112]; VA = [128, 144]; QB = [160, 176]; KB = [192, 208]; VB = [224, 240]
vMc = 32
vL16 = 29
vKVa = 28
vKVn = 27
NM = [96, 112]; S = [128, 144]; P = [72, 88]
LT_SC, LT_SP, LT_O = 176, 208, 240
LT_P = 168
HK = 200; HV = 232
aK, aV = 0, [8, 16]
aO = [32, 48]; aL = [64, 68]; aONE = 72
NSLOT = 3

def mf32(d, A, B, C): return f"v_mfma_f32_32x32x16_bf16 {d}, {A}, {B}, {C}"
def mf16(d, A, B, C): return f"v_mfma_f32_16x16x32_bf16 {d}, {A}, {B}, {C}"

def emit_setup2(a, opts):
    a(f"s_load_dwordx2 s[{sPWoA}:{sPWoA+1}], s[0:1], 16")
    a(f"s_load_dwordx4 s[{sPWoB}:{sPWoB+3}], s[0:1], 40")
    a(f"s_load_dwordx4 s[{sPOut}:{sPOut+3}], s[0:1], 56")

def emit_early_loads(a, opts):
    t0, t1 = vT[0], vT[1]
    a(f"v_lshlrev_b32 v{vL16}, 4, v{vLANE}")
    a(f"s_or_b32 s36, s2, s{sW}")
    a("s_cmp_lg_u32 s36, 0")
    a("s_cbranch_scc1 L_NONONCE")
    a(f"s_mov_b32 s36, {FLAG_OFF}")
    for j in range(6):
        a(f"buffer_load_dwordx4 {vr(96+4*j, 4)}, v{vL16}, s[{sWS}:{sWS+3}], s36 offen sc1")
        a("s_add_u32 s36, s36, 1024")
    a("L_NONONCE:")
    a(f"s_lshl_b32 s36, s{sT}, 7")
    a(f"s_lshl_b32 s37, s{sHP}, 3")
    a("s_add_u32 s36, s36, s37")
    a(f"s_lshl_b32 s37, s{sW}, 1")
    a("s_add_u32 s36, s36, s37")
    a(f"v_lshrrev_b32 v{t0}, 5, v{vLANE}")
    a(f"v_add_u32 v31, s36, v{t0}")
    a(f"v_and_b32 v{t1}, 31, v{vLANE}")
    a(f"v_lshlrev_b32 v{t1}, 4, v{t1}")
    a(f"v_lshl_add_u32 v{t0}, v31, 11, v{t1}")
    srd(a, 56, sPG, sPG+1, 2048)
    for j in range(4):
        a(f"buffer_load_dwordx4 {vr(64+4*j, 4)}, v{t0}, s[{sX}:{sX+3}], 0 offen offset:{512*j}")
    for j in range(4):
        a(f"buffer_load_dwordx4 {vr(80+4*j, 4)}, v{t1}, s[56:59], 0 offen offset:{512*j}")

def emit_masks(a):
    q, b, t = vT[0], vT[1], vT[2]
    a(f"v_and_b32 v{q}, 31, v{vLANE}")
    a(f"v_lshrrev_b32 v{b}, 5, v{vLANE}")
    a(f"v_lshlrev_b32 v{b}, 2, v{b}")
    a(f"v_sub_u32 v{b}, v{q}, v{b}")
    a(f"s_mov_b32 s36, {NEGBIG}")
    for i in range(24):
        if i < 16: r, add = i, 0
        else: r, add = i - 8, 32
        d = vMc + i
        kv = 8*(r >> 2) + (r & 3)
        a(f"v_add_u32 v{d}, {add - kv}, v{b}")
        a(f"v_and_b32 v{d}, 0xfffffff1, v{d}")
        a(f"v_min_u32 v{d}, 1, v{d}")
        a(f"v_sub_u32 v{d}, 0, v{d}")
        a(f"v_and_b32 v{d}, s36, v{d}")
    a(f"v_lshrrev_b32 v{q}, 2, v{vLANE}")
    a(f"v_lshrrev_b32 v{t}, 4, v{vLANE}")
    a(f"v_xor_b32 v{q}, v{q}, v{t}")
    a(f"v_and_b32 v{q}, 1, v{q}")
    a(f"v_add_u32 v{q}, -1, v{q}")
    a(f"v_and_b32 v{q}, 0x3f803f80, v{q}")
    for i in range(4):
        a(f"v_accvgpr_write_b32 a{aONE+i}, v{q}")

def emit_gate_nonce(a, opts):
    z, t = vT[0], vT[1]
    a(f"v_mov_b32 v{z}, 0")
    for i in range(16):
        a(f"v_dot2_f32_bf16 v{z}, v{64+i}, v{80+i}, v{z}")
    a("s_nop 2")
    for sh in (8, 4, 2, 1):
        a(f"v_add_f32_dpp v{z}, v{z}, v{z} row_ror:{sh} row_mask:0xf bank_mask:0xf")
        a("s_nop 1")
    a(f"ds_swizzle_b32 v{t}, v{z} offset:0x401F")
    a("s_waitcnt lgkmcnt(0)")
    a(f"v_add_f32 v{z}, v{z}, v{t}")
    a(f"v_mul_f32 v{z}, {f2u(-math.log2(math.e))}, v{z}")
    a(f"v_exp_f32 v{z}, v{z}")
    a("s_nop 0")
    a(f"v_add_f32 v{z}, 1.0, v{z}")
    a(f"v_rcp_f32 v{z}, v{z}")
    a(f"v_and_b32 v{t}, 31, v{vLANE}")
    a(f"v_cmp_eq_u32 vcc, 0, v{t}")
    a(f"v_lshlrev_b32 v31, 2, v31")
    a(f"v_mov_b32 v{t}, {OOB}")
    a(f"v_cndmask_b32 v31, v{t}, v31, vcc")
    a(f"s_mov_b32 s36, {G_OFF}")
    a(f"buffer_store_dword v{z}, v31, s[{sWS}:{sWS+3}], s36 offen sc1")
    a(f"s_or_b32 s36, s2, s{sW}")
    a("s_cmp_lg_u32 s36, 0")
    a("s_cbranch_scc1 L_NONONCE2")
    for i in range(24):
        a(f"v_and_b32 v{96+i}, 0x7fffffff, v{96+i}")
    for i in range(1, 24):
        a(f"v_max_u32 v96, v96, v{96+i}")
    a("s_nop 1")
    for sh in (8, 4, 2, 1):
        a(f"v_max_u32_dpp v96, v96, v96 row_ror:{sh} row_mask:0xf bank_mask:0xf")
        a("s_nop 1")
    a("v_readlane_b32 s36, v96, 0")
    a("v_readlane_b32 s37, v96, 16")
    a("v_readlane_b32 s38, v96, 32")
    a("v_readlane_b32 s39, v96, 48")
    a("s_nop 3")
    a("s_max_u32 s36, s36, s37")
    a("s_max_u32 s38, s38, s39")
    a("s_max_u32 s36, s36, s38")
    a("s_add_u32 s36, s36, 1")
    a("v_mov_b32 v96, s36")
    a("v_mov_b32 v97, 0")
    a(f"global_store_dword v97, v96, s[{sPDbg}:{sPDbg+1}] sc1")
    a("L_NONONCE2:")
    for r in range(64, 120):
        a(f"v_mov_b32 v{r}, 0")

def pack(a, base, out=None):
    out = base if out is None else out
    for j in range(8):
        a(f"v_cvt_pk_bf16_f32 v{out+j}, v{base+2*j}, v{base+2*j+1}")

def scale(a, base):
    for j in range(8):
        a(f"v_pk_mul_f32 {vr(base+2*j, 2)}, {vr(base+2*j, 2)}, s[62:63]")

def local_tile(a, Q, Kc, Vc, Kp, Vp1, SC, SP, O, PC, PP, tmp, store_off_imm):
    m, t = tmp, tmp + 1
    a(mf32(vr(SC, 16), vr(Kc, 4), vr(Q, 4), vr(vMc, 16)))
    a(mf32(vr(SP, 16), vr(Kp, 4), vr(Q, 4), vr(vMc + 8, 16)))
    a(mf32(vr(SC, 16), vr(Kc+4, 4), vr(Q+4, 4), vr(SC, 16)))
    a(mf32(vr(SP, 16), vr(Kp+4, 4), vr(Q+4, 4), vr(SP, 16)))
    a("s_nop 10")
    vals = [SC + i for i in range(16)] + [SP + 8 + i for i in range(8)]
    a(f"v_max3_f32 v{m}, v{vals[0]}, v{vals[1]}, v{vals[2]}")
    for i in range(3, 23, 2):
        a(f"v_max3_f32 v{m}, v{m}, v{vals[i]}, v{vals[i+1]}")
    a(f"v_max_f32 v{m}, v{m}, v{vals[23]}")
    a(f"v_mov_b32 v{t}, v{m}")
    a("s_nop 1")
    a(f"v_permlane32_swap_b32 v{m}, v{t}")
    a(f"v_max_f32 v{m}, v{m}, v{t}")
    a(f"v_mul_f32 v{m}, s{sCS}, v{m}")
    for v in vals:
        a(f"v_fma_f32 v{v}, v{v}, s{sCS}, -v{m}")
    for v in vals:
        a(f"v_exp_f32 v{v}, v{v}")
    for j in range(8):
        a(f"v_cvt_pk_bf16_f32 v{PC+j}, v{SC+2*j}, v{SC+2*j+1}")
    for j in range(4):
        a(f"v_cvt_pk_bf16_f32 v{PP+j}, v{SP+8+2*j}, v{SP+9+2*j}")
    a("s_nop 1")
    L = SP
    a(mf16(vr(L, 4), ar(aONE, 4), vr(PC, 4), 0))
    a(mf16(vr(L, 4), ar(aONE, 4), vr(PC+4, 4), vr(L, 4)))
    a(mf16(vr(L, 4), ar(aONE, 4), vr(PP, 4), vr(L, 4)))
    a(mf32(vr(O, 16), vr(Vc, 4), vr(PC, 4), 0))
    a(mf32(vr(O, 16), vr(Vc+4, 4), vr(PC+4, 4), vr(O, 16)))
    a(mf32(vr(O, 16), vr(Vp1, 4), vr(PP, 4), vr(O, 16)))
    a("s_nop 4")
    a(f"v_rcp_f32 v{m}, v{L}")
    a("s_nop 5")
    for i in range(16):
        a(f"v_mul_f32 v{O+i}, v{O+i}, v{m}")
    pack(a, O)
    a(f"s_add_u32 s36, s{sOst}, {OB_OFF + store_off_imm}")
    a(f"buffer_store_dwordx4 {vr(O, 4)}, v{vL16}, s[{sWS}:{sWS+3}], s36 offen sc1")
    a(f"buffer_store_dwordx4 {vr(O+4, 4)}, v{vL16}, s[{sWS}:{sWS+3}], s36 offen offset:1024 sc1")

def poll(a, name, off_sgpr_expr, opts):
    a(off_sgpr_expr)
    a(f"v_and_b32 v19, 15, v{vLANE}")
    a("v_lshlrev_b32 v19, 2, v19")
    a(f"s_mov_b32 s{sSpin}, 0")
    a(f"{name}:")
    a(f"buffer_load_dword v20, v19, s[{sWS}:{sWS+3}], s36 offen sc1")
    a(f"s_add_u32 s{sSpin}, s{sSpin}, 1")
    a("s_waitcnt vmcnt(0)")
    a(f"v_cmp_ne_u32 vcc, s{sNONCE}, v20")
    a(f"s_cmp_lt_u32 s{sSpin}, 0x40000")
    a(f"s_cbranch_scc0 {name}_X")
    a("s_nop 2")
    a(f"s_cbranch_vccnz {name}")
    a(f"{name}_X:")

def set_flag(a, off_expr_lines, name):
    a(f"s_cmp_lg_u32 s{sW}, 0")
    a(f"s_cbranch_scc1 {name}")
    for l in off_expr_lines: a(l)
    a(f"v_mov_b32 v19, s{sNONCE}")
    a(f"v_mov_b32 v20, 0")
    a("s_mov_b64 exec, 1")
    a(f"buffer_store_dword v19, v20, s[{sWS}:{sWS+3}], s36 offen sc1")
    a("s_mov_b64 exec, -1")
    a(f"{name}:")

def emit_e1(a, opts):
    a("s_barrier")
    a("v_mov_b32 v19, 0")
    a(f"global_load_dword v21, v19, s[{sPDbg}:{sPDbg+1}] sc1")
    a(f"s_mov_b32 s{sCS}, {CSCALE}")
    a(f"s_mov_b32 s62, {CSCALE}")
    a(f"s_mov_b32 s63, {CSCALE}")
    a(f"s_lshl_b32 s36, s{sHP}, 19")
    a(f"s_lshl_b32 s37, s{sW}, 13")
    a(f"s_add_u32 s{sKVbase}, s36, s37")
    a(f"s_lshl_b32 s38, s{sT}, 15")
    a(f"s_lshl_b32 s39, s{sHH}, 14")
    a(f"s_lshl_b32 s47, s{sRH}, 13")
    a("s_add_u32 s39, s39, s47")
    a("s_add_u32 s36, s36, s38")
    a("s_add_u32 s36, s36, s39")
    a(f"v_add_u32 v22, s39, v{vL16}")
    a(f"s_lshl_b32 s47, s{sHH}, 14")
    a(f"v_add_u32 v{vKVn}, s47, v{vL16}")
    a(f"s_lshl_b32 s37, s{sT}, 2")
    a(f"s_lshl_b32 s38, s{sRH}, 1")
    a("s_add_u32 s37, s37, s38")
    a("s_lshl_b32 s37, s37, 5")
    a(f"s_lshl_b32 s38, s{sHP}, 1")
    a(f"s_add_u32 s38, s38, s{sHH}")
    a("s_add_u32 s37, s37, s38")
    a(f"s_lshl_b32 s{sOst}, s37, 11")
    a("s_lshl_b32 s38, s38, 5")
    a(f"s_lshl_b32 s37, s{sT}, 1")
    a(f"s_add_u32 s37, s37, s{sRH}")
    a("s_add_u32 s38, s38, s37")
    a("s_lshl_b32 s38, s38, 12")
    a(f"s_add_u32 s93, s38, {HALO_OFF}")
    a("s_mov_b32 s94, s37")
    for rt in range(2):
        for (blk, f0) in ((KA[rt], 0), (VA[rt], 2)):
            pack(a, blk)
            for f in range(2):
                off = rt*4096 + (f0 + f)*1024
                if off < 4096:
                    a(f"buffer_store_dwordx4 {vr(blk+4*f, 4)}, v{vL16}, s[{sWS}:{sWS+3}], s36 offen offset:{off} sc1")
                else:
                    if off == 4096: a("s_add_u32 s36, s36, 4096")
                    a(f"buffer_store_dwordx4 {vr(blk+4*f, 4)}, v{vL16}, s[{sWS}:{sWS+3}], s36 offen offset:{off-4096} sc1")
                a(f"ds_write_b128 v22, {vr(blk+4*f, 4)} offset:{off}")
    pack(a, KB[1]); pack(a, VB[1])
    a(f"buffer_store_dwordx4 {vr(KB[1], 4)}, v{vL16}, s[{sWS}:{sWS+3}], s93 offen sc1")
    a(f"buffer_store_dwordx4 {vr(KB[1]+4, 4)}, v{vL16}, s[{sWS}:{sWS+3}], s93 offen offset:1024 sc1")
    a(f"buffer_store_dwordx4 {vr(VB[1]+4, 4)}, v{vL16}, s[{sWS}:{sWS+3}], s93 offen offset:2048 sc1")
    pack(a, QB[1]); pack(a, KB[0]); pack(a, VB[0]); pack(a, QB[0])
    local_tile(a, QB[1], KB[1], VB[1], KB[0], VB[0]+4, 96, 112, 128, 144, 152, 156, 65536)
    for q in QA:
        scale(a, q); pack(a, q)
    a("s_waitcnt vmcnt(0) lgkmcnt(0)")
    a(f"v_readfirstlane_b32 s{sNONCE}, v21")
    a(f"s_mov_b32 s{sSpin}, 0")
    a("L_NONCE:")
    a(f"s_cmp_lg_u32 s{sNONCE}, 0")
    a("s_cbranch_scc1 L_NONCE_OK")
    a(f"global_load_dword v21, v19, s[{sPDbg}:{sPDbg+1}] sc1")
    a(f"s_add_u32 s{sSpin}, s{sSpin}, 1")
    a("s_waitcnt vmcnt(0)")
    a(f"v_readfirstlane_b32 s{sNONCE}, v21")
    a(f"s_cmp_lt_u32 s{sSpin}, 0x40000")
    a("s_cbranch_scc1 L_NONCE")
    a("L_NONCE_OK:")
    a("s_barrier")
    set_flag(a, [f"s_lshl_b32 s36, s{sHP}, 7", f"s_lshl_b32 s37, s{sT}, 2", "s_add_u32 s36, s36, s37", f"s_add_u32 s36, s36, {FLAG_OFF}"], "L_F1")
    a(f"s_mov_b32 s{sPASS}, 0")

def kv_dma(group):
    out = [f"s_add_u32 m0, s{sKVdst}, {group*4096}",
           f"s_add_u32 s36, s{sKVsrc}, {group*4096}"]
    for p in range(4):
        out.append(f"buffer_load_dwordx4 v{vL16}, s[{sWS}:{sWS+3}], s36 offen offset:{p*1024} sc1 lds")
    return out
def kv_advance():
    return [f"s_add_u32 s{sKVt}, s{sKVt}, 32768",
            f"s_and_b32 s{sKVt}, s{sKVt}, 0x7ffff",
            f"s_add_u32 s{sKVsrc}, s{sKVbase}, s{sKVt}",
            f"s_add_u32 s{sKVdst}, s{sKVdst}, 32768",
            f"s_cmp_ge_u32 s{sKVdst}, {NSLOT*32768}",
            f"s_cselect_b32 s37, {NSLOT*32768}, 0",
            f"s_sub_u32 s{sKVdst}, s{sKVdst}, s37"]

def H(a, q, vpar, qk=True, pv=True, pv_first=False, slots=None):
    slots = slots or {}
    o = 1 - q
    e = [f"v_exp_f32 v{S[q]+i}, v{S[q]+i}" for i in range(16)]
    c = [f"v_cvt_pk_bf16_f32 v{P[q]+j}, v{S[q]+2*j}, v{S[q]+2*j+1}" for j in range(8)]
    So, Oo, Lo = vr(S[o], 16), ar(aO[o], 16), ar(aL[o], 4)
    M = [mf32(So, ar(aK, 4), vr(QA[o], 4), vr(NM[o], 16)) if qk else None,
         mf32(So, ar(aK+4, 4), vr(QA[o]+4, 4), So) if qk else None,
         mf32(Oo, ar(aV[vpar], 4), vr(P[o], 4), 0 if pv_first else Oo) if pv else None,
         mf32(Oo, ar(aV[vpar]+4, 4), vr(P[o]+4, 4), Oo) if pv else None,
         mf16(Lo, ar(aONE, 4), vr(P[o], 4), 0 if pv_first else Lo) if pv else None,
         mf16(Lo, ar(aONE, 4), vr(P[o]+4, 4), Lo) if pv else None]
    V = [[e[0], e[1], e[2]], [e[3], c[0], c[1], e[4]], [e[5], e[6], e[7]], [c[2], c[3], e[8], e[9]],
         [e[10], e[11], c[4], c[5]], [e[12], e[13], e[14], e[15], c[6], c[7]]]
    if not pv:
        V[3] = ["s_nop 0"] + V[3]
    for i in range(6):
        if M[i]: a(M[i])
        for s in slots.get(i, []): a(s)
        for s in V[i]: a(s)

def rdK(off): return [f"ds_read_b128 {ar(aK, 4)}, v{vKVa} offset:{off}", f"ds_read_b128 {ar(aK+4, 4)}, v{vKVa} offset:{off+1024}"]
def rdV(par, off): return [f"ds_read_b128 {ar(aV[par], 4)}, v{vKVa} offset:{off+2048}", f"ds_read_b128 {ar(aV[par]+4, 4)}, v{vKVa} offset:{off+3072}"]

def tile(a, n4, nxt, first=False, last=False, extra_a=None, extra_b=None):
    sa = {}; sb = {}
    if nxt is not None:
        k = rdK(nxt); v = rdV((n4 + 1) & 1, nxt)
        sa[1] = [k[0]]; sa[2] = [k[1]]; sa[5] = ["s_waitcnt lgkmcnt(0)"]
        sb[0] = [v[0]]; sb[1] = [v[1]]
    for g, l in (extra_a or {}).items(): sa.setdefault(g, []).extend(l)
    for g, l in (extra_b or {}).items(): sb.setdefault(g, []).extend(l)
    H(a, 0, (n4 - 1) & 1, qk=True, pv=not first, pv_first=(first == "second"), slots=sa) if False else None
    H(a, 0, (n4 - 1) & 1, qk=True, pv=(first != 1), pv_first=(first == 2), slots=sa)
    H(a, 1, n4 & 1, qk=not last, pv=True, pv_first=(first == 1), slots=sb)

def rowmax(a, s, m, t):
    a(f"v_max3_f32 v{m}, v{s}, v{s+1}, v{s+2}")
    for i in range(3, 15, 2):
        a(f"v_max3_f32 v{m}, v{m}, v{s+i}, v{s+i+1}")
    a(f"v_max_f32 v{m}, v{m}, v{s+15}")

def emit_attn(a, opts):
    a("L_ATT0:")
    a(f"v_mov_b32 v{vKVa}, v{vKVn}")
    for s in rdK(0) + rdV(0, 0): a(s)
    a(f"s_lshl_b32 s{sKVt}, s{sT}, 15")
    a(f"s_lshl_b32 s{sKVdst}, s{sW}, 13")
    for s in kv_advance(): a(s)
    a(f"s_mov_b32 s{sKVrd}, 0")
    a("s_waitcnt lgkmcnt(0)")
    a(f"s_cmp_lg_u32 s{sPASS}, 0")
    a("s_cbranch_scc1 L_ATT1")
    for q in range(2):
        a(mf32(vr(S[q], 16), ar(aK, 4), vr(QA[q], 4), 0))
    for q in range(2):
        a(mf32(vr(S[q], 16), ar(aK+4, 4), vr(QA[q]+4, 4), vr(S[q], 16)))
    a("s_nop 10")
    for q in range(2):
        rowmax(a, S[q], 19 + q, 0)
    for q in range(2):
        a(f"v_mov_b32 v{21+q}, v{19+q}")
    a("s_nop 0")
    for q in range(2):
        a(f"v_permlane32_swap_b32 v{19+q}, v{21+q}")
    for q in range(2):
        a(f"v_max_f32 v{19+q}, v{19+q}, v{21+q}")
    for q in range(2):
        for i in range(16):
            a(f"v_sub_f32 v{NM[q]+i}, 0, v{19+q}")
    a("L_ATT1:")
    a("s_nop 1")
    a(mf32(vr(S[0], 16), ar(aK, 4), vr(QA[0], 4), vr(NM[0], 16)))
    a(mf32(vr(S[0], 16), ar(aK+4, 4), vr(QA[0]+4, 4), vr(S[0], 16)))
    a("s_nop 10")
    stamp(a, opts)
    tile(a, 0, 4096, first=1)
    tile(a, 1, 8192, first=2)
    tile(a, 2, 12288)
    stamp(a, opts)
    a(f"s_cmp_lg_u32 s{sPASS}, 0")
    a("s_cbranch_scc1 L_ATT2")
    poll(a, "L_P1", f"s_lshl_b32 s36, s{sHP}, 7\ns_add_u32 s36, s36, {FLAG_OFF}", opts)
    a("L_ATT2:")
    stamp(a, opts)
    a(f"s_cmp_lg_u32 s{sPASS}, 0")
    a("s_cbranch_scc1 L_ATT2b")
    a("s_sub_u32 s38, s93, 4096")
    a("s_cmp_eq_u32 s94, 0")
    a(f"s_cselect_b32 s38, {OOB}, s38")
    a(f"buffer_load_dwordx4 {vr(HK, 4)}, v{vL16}, s[{sWS}:{sWS+3}], s38 offen sc1")
    a(f"buffer_load_dwordx4 {vr(HK+4, 4)}, v{vL16}, s[{sWS}:{sWS+3}], s38 offen offset:1024 sc1")
    a(f"buffer_load_dwordx4 {vr(HV, 4)}, v{vL16}, s[{sWS}:{sWS+3}], s38 offen offset:2048 sc1")
    a("L_ATT2b:")
    for ch in range(NSLOT - 1):
        for g in range(2):
            d = kv_dma(g)
            for s in d: a(s)
        for s in kv_advance(): a(s)
    a(f"s_cmp_lg_u32 s{sPASS}, 0")
    a("s_cbranch_scc1 L_ATT3")
    a("s_cmp_eq_u32 s94, 0")
    a("s_cbranch_scc0 L_MASKOK")
    for i in range(8):
        a(f"v_mov_b32 v{vMc+16+i}, {NEGBIG}")
    a("L_MASKOK:")
    a(f"s_waitcnt vmcnt({8*(NSLOT-1)})")
    local_tile(a, QB[0], KB[0], VB[0], HK, HV, LT_SC, LT_SP, LT_O, LT_P, 236, 23, 0)
    a("L_ATT3:")
    stamp(a, opts)
    a(f"s_mov_b32 s{sCNT}, 15")
    a(f"s_waitcnt vmcnt({8*(NSLOT-2)}) lgkmcnt(0)") if False else None
    a("s_waitcnt vmcnt(0) lgkmcnt(0)") if opts.get("simple_first_wait", 1) else None
    a("s_barrier")
    a(f"s_cmp_lg_u32 s{sPASS}, 0")
    a("s_cbranch_scc1 L_F2")
    set_flag(a, [f"s_lshl_b32 s36, s{sT}, 7", f"s_lshl_b32 s37, s{sHP}, 2", "s_add_u32 s36, s36, s37", f"s_add_u32 s36, s36, {FLAG_OFF + 2048}"], "L_F2")
    stamp(a, opts)
    a(".p2align 6")
    a("L_ATTL:")
    rdadv = [f"s_add_u32 s{sKVrd}, s{sKVrd}, 32768", f"s_cmp_ge_u32 s{sKVrd}, {NSLOT*32768}", f"s_cselect_b32 s37, {NSLOT*32768}, 0", f"s_sub_u32 s{sKVrd}, s{sKVrd}, s37"]
    for s in rdadv: a(s)
    a(f"v_add_u32 v{vKVa}, s{sKVrd}, v{vKVn}")
    d0, d1, adv = kv_dma(0), kv_dma(1), kv_advance()
    tile(a, 3, 0, extra_a={0: d0[0:2], 3: [d0[2]], 4: [d0[3]]}, extra_b={2: [d0[4]], 3: [d0[5]], 4: d1[0:2], 5: [d1[2]]})
    tile(a, 0, 4096, extra_a={0: [d1[3]], 3: [d1[4]], 4: [d1[5]]}, extra_b={2: adv[0:2], 3: adv[2:4], 4: adv[4:6], 5: adv[6:7]})
    tile(a, 1, 8192)
    tile(a, 2, 12288, extra_b={3: [f"s_sub_u32 s{sCNT}, s{sCNT}, 1"], 4: [f"s_cmp_lg_u32 s{sCNT}, 0"],
                               5: [f"s_waitcnt vmcnt({8*(NSLOT-2)}) lgkmcnt(0)", "s_barrier"]})
    a("s_cbranch_scc1 L_ATTL")
    tile(a, 3, None, last=True)
    a("s_nop 1")
    a(mf32(ar(aO[1], 16), ar(aV[1], 4), vr(P[1], 4), ar(aO[1], 16)))
    a(mf32(ar(aO[1], 16), ar(aV[1]+4, 4), vr(P[1]+4, 4), ar(aO[1], 16)))
    a(mf16(ar(aL[1], 4), ar(aONE, 4), vr(P[1], 4), ar(aL[1], 4)))
    a(mf16(ar(aL[1], 4), ar(aONE, 4), vr(P[1]+4, 4), ar(aL[1], 4)))
    stamp(a, opts)
    a("s_nop 15")
    for q in range(2):
        a(f"v_accvgpr_read_b32 v{19+q}, a{aL[q]}")
    a(f"s_cmp_lg_u32 s{sPASS}, 0")
    a("s_cbranch_scc1 L_ATT_FIN")
    a(f"s_mov_b32 s36, {f2u(2.0**40)}")
    a("v_cmp_nle_f32 vcc, v19, s36") if False else None
    a("v_cmp_nge_f32 s[38:39], s36, v19")
    a("v_cmp_nge_f32 vcc, s36, v20")
    a("s_nop 3")
    a("s_or_b64 vcc, vcc, s[38:39]")
    if opts.get("force_fallback"):
        a("s_mov_b64 vcc, -1")
    a("s_cmp_lg_u64 vcc, 0")
    a("s_cselect_b32 s36, 1, 0")
    a("v_mov_b32 v21, s36")
    a(f"s_lshl_b32 s37, s{sW}, 2")
    a(f"s_add_u32 s37, s37, {LDS_MISC}")
    a("v_mov_b32 v22, s37")
    a("ds_write_b32 v22, v21")
    a(f"v_mov_b32 v22, {LDS_MISC}")
    a("s_waitcnt vmcnt(0) lgkmcnt(0)")
    a("s_barrier")
    a("ds_read_b128 v[24:27], v22") if False else None
    a("ds_read_b64 v[24:25], v22")
    a("ds_read_b64 v[22:23], v22 offset:8")
    a("s_waitcnt lgkmcnt(0)")
    a("v_or_b32 v24, v24, v25")
    a("v_or3_b32 v24, v24, v22, v23")
    a("s_nop 0")
    a("v_readfirstlane_b32 s36, v24")
    a("s_nop 3")
    a("s_cmp_eq_u32 s36, 0")
    a("s_cbranch_scc1 L_ATT_FIN")
    a(f"s_mov_b32 s{sPASS}, 1")
    a(f"v_mov_b32 v19, {NEGBIG}")
    a(f"v_mov_b32 v20, {NEGBIG}")
    a(f"s_lshl_b32 s38, s{sHP}, 19")
    a(f"s_lshl_b32 s39, s{sHH}, 14")
    a("s_add_u32 s38, s38, s39")
    a("s_mov_b32 s39, 0")
    a("L_FB:")
    a("s_and_b32 s36, s39, 3")
    a("s_lshl_b32 s36, s36, 12")
    a("s_lshr_b32 s37, s39, 2")
    a("s_lshl_b32 s37, s37, 15")
    a("s_add_u32 s36, s36, s37")
    a("s_add_u32 s36, s36, s38")
    a(f"buffer_load_dwordx4 {ar(aK, 4)}, v{vL16}, s[{sWS}:{sWS+3}], s36 offen sc1")
    a(f"buffer_load_dwordx4 {ar(aK+4, 4)}, v{vL16}, s[{sWS}:{sWS+3}], s36 offen offset:1024 sc1")
    a("s_waitcnt vmcnt(0)")
    for q in range(2):
        a(mf32(vr(S[q], 16), ar(aK, 4), vr(QA[q], 4), 0))
    for q in range(2):
        a(mf32(vr(S[q], 16), ar(aK+4, 4), vr(QA[q]+4, 4), vr(S[q], 16)))
    a("s_nop 11")
    for q in range(2):
        for i in range(0, 16, 2):
            a(f"v_max3_f32 v{19+q}, v{19+q}, v{S[q]+i}, v{S[q]+i+1}")
    a("s_add_u32 s39, s39, 1")
    a("s_cmp_lt_u32 s39, 64")
    a("s_cbranch_scc1 L_FB")
    for q in range(2):
        a(f"v_mov_b32 v{21+q}, v{19+q}")
    a("s_nop 0")
    for q in range(2):
        a(f"v_permlane32_swap_b32 v{19+q}, v{21+q}")
    for q in range(2):
        a(f"v_max_f32 v{19+q}, v{19+q}, v{21+q}")
    for q in range(2):
        for i in range(16):
            a(f"v_sub_f32 v{NM[q]+i}, 0, v{19+q}")
    a(f"s_lshl_b32 s{sKVt}, s{sT}, 15")
    a(f"s_add_u32 s{sKVsrc}, s{sKVbase}, s{sKVt}")
    a(f"s_lshl_b32 s{sKVdst}, s{sW}, 13")
    for g in range(2):
        for s in kv_dma(g): a(s)
    a("s_waitcnt vmcnt(0)")
    a("s_barrier")
    a("s_branch L_ATT0")
    a("L_ATT_FIN:")
    for q in range(2):
        a(f"v_rcp_f32 v{19+q}, v{19+q}")
    for q in range(2):
        for i in range(16):
            a(f"v_accvgpr_read_b32 v{S[q]+i}, a{aO[q]+i}")
        for i in range(16):
            a(f"v_mul_f32 v{S[q]+i}, v{S[q]+i}, v{19+q}")
        pack(a, S[q])
        a(f"s_add_u32 s36, s{sOst}, {OA_OFF + q*65536}")
        a(f"buffer_store_dwordx4 {vr(S[q], 4)}, v{vL16}, s[{sWS}:{sWS+3}], s36 offen sc1")
        a(f"buffer_store_dwordx4 {vr(S[q]+4, 4)}, v{vL16}, s[{sWS}:{sWS+3}], s36 offen offset:1024 sc1")

LDS_MISC = 147456

sWoA, sWoB, sOutD = 4, 8, 12
vWo_g = 2; vWo_r = [3, 4]; vG = 5
ACC4 = [[64, 80], [96, 112]]
def fW4(s, i, ct): return 128 + s*32 + i*8 + ct*4
def aO4(buf, i): return buf*64 + i*4

def p4_oload(buf, j):
    out = [f"buffer_load_dwordx4 {ar(aO4(buf, j), 4)}, v{vL16}, s[{sWS}:{sWS+3}], s95 offen offset:{(j&1)*1024} sc1"]
    if j & 1:
        out += [f"s_add_u32 s{sOoff}, s{sOoff}, 2048", f"s_and_b32 s{sOoff}, s{sOoff}, 0xffff", f"s_add_u32 s95, s{sObase}, s{sOoff}"]
    return out
def p4_wdma(srd_, slot, i):
    return [f"s_add_u32 m0, s{sWv}, {slot*32768 + i*4096}",
            f"buffer_load_dwordx4 v{vWo_g}, s[{srd_}:{srd_+3}], s{sWooff} offen lds",
            f"s_add_u32 s{sWooff}, s{sWooff}, 65536", f"s_and_b32 s{sWooff}, s{sWooff}, 0x1fffff"]
def p4_reads(fs, slot, grp):
    out = []
    for i in range(4):
        k16 = grp*4 + i
        for ct in range(2):
            off = (slot % 2)*32768 + k16*2048
            out.append(f"ds_read_b64_tr_b16 {vr(fW4(fs, i, ct), 2)}, v{vWo_r[slot//2] if False else (3 + 2*(slot//2) + ct)} offset:{off}")
            out.append(f"ds_read_b64_tr_b16 {vr(fW4(fs, i, ct)+2, 2)}, v{3 + 2*(slot//2) + ct} offset:{off+1024}")
    return out

def emit_p4(a, opts):
    a("s_waitcnt vmcnt(0)")
    a("s_barrier")
    set_flag(a, [f"s_lshl_b32 s36, s{sT}, 7", f"s_lshl_b32 s37, s{sHP}, 2", "s_add_u32 s36, s36, s37", f"s_add_u32 s36, s36, {FLAG_OFF + 4096}"], "L_F3")
    stamp(a, opts)
    srd(a, sWoA, sPWoA, sPWoA+1, 1024*1024*2)
    srd(a, sWoB, sPWoB, sPWoB+1, 1024*1024*2)
    srd(a, sOutD, sPOut, sPOut+1, 2048*1024*2)
    a("s_and_b32 s36, s2, 7")
    a("s_lshr_b32 s37, s2, 3")
    a(f"s_and_b32 s{sC4}, s37, 15")
    a("s_lshr_b32 s37, s37, 4")
    a("s_lshl_b32 s36, s36, 1")
    a(f"s_add_u32 s{sT4}, s36, s37")
    r, c, t0, t1 = 19, 20, 21, 22
    a(f"v_lshrrev_b32 v{r}, 3, v{vLANE}")
    a(f"v_and_b32 v{c}, 7, v{vLANE}")
    a(f"v_lshlrev_b32 v{t0}, 1, v{r}")
    a(f"v_and_b32 v{t0}, 4, v{t0}")
    a(f"v_xor_b32 v{t0}, v{t0}, v{c}")
    a(f"v_lshlrev_b32 v{t0}, 4, v{t0}")
    a(f"v_lshl_add_u32 v{t0}, v{r}, 11, v{t0}")
    a(f"s_lshl_b32 s36, s{sW}, 14")
    a(f"s_lshl_b32 s37, s{sC4}, 7")
    a("s_add_u32 s36, s36, s37")
    a(f"v_add_u32 v{vWo_g}, s36, v{t0}")
    a(f"v_and_b32 v{r}, 15, v{vLANE}")
    a(f"v_lshrrev_b32 v{t0}, 2, v{r}")
    a(f"v_lshrrev_b32 v{t1}, 5, v{vLANE}")
    a(f"v_lshl_add_u32 v{c}, v{t1}, 2, v{t0}")
    a(f"v_lshrrev_b32 v{t0}, 1, v{c}")
    a(f"v_and_b32 v{t0}, 1, v{t0}")
    a(f"v_lshlrev_b32 v{t0}, 6, v{t0}")
    a(f"v_lshl_add_u32 v{t0}, v{c}, 7, v{t0}")
    a(f"v_and_b32 v{t1}, 16, v{vLANE}")
    a(f"v_lshl_add_u32 v{t0}, v{t1}, 1, v{t0}")
    a(f"v_and_b32 v{t1}, 3, v{r}")
    a(f"v_lshl_add_u32 v3, v{t1}, 3, v{t0}")
    a("v_xor_b32 v4, 64, v3")
    a("v_add_u32 v5, 65536, v3")
    a("v_add_u32 v6, 65536, v4")
    a(f"s_lshl_b32 s36, s{sT4}, 2")
    a(f"s_add_u32 s36, s36, s{sW}")
    a("s_lshl_b32 s96, s36, 16")
    a(f"s_add_u32 s{sObase}, s96, {OB_OFF}")
    a(f"s_lshl_b32 s{sOoff}, s{sC4}, 12")
    a(f"s_lshl_b32 s{sWooff}, s{sC4}, 17")
    a(f"s_add_u32 s95, s{sObase}, s{sOoff}")
    for i in range(8):
        d = p4_wdma(sWoB, 0, i)
        a(d[0]); a(d[2]) if False else a("s_nop 0"); a(d[1]); a(d[2]); a(d[3])
    poll(a, "L_P2", f"s_lshl_b32 s36, s{sT4}, 7\ns_add_u32 s36, s36, {FLAG_OFF + 2048}", opts)
    a(f"v_and_b32 v19, 31, v{vLANE}")
    a("v_lshlrev_b32 v19, 2, v19")
    a(f"s_lshl_b32 s36, s{sT4}, 9")
    a(f"s_lshl_b32 s37, s{sW}, 7")
    a("s_add_u32 s36, s36, s37")
    a(f"s_add_u32 s36, s36, {G_OFF}")
    a(f"buffer_load_dword v7, v19, s[{sWS}:{sWS+3}], s36 offen sc1")
    for j in range(16):
        for s in p4_oload(0, j): a(s)
    for i in range(8):
        d = p4_wdma(sWoB, 1, i)
        a(d[0]); a("s_nop 0"); a(d[1]); a(d[2]); a(d[3])
    a("s_waitcnt vmcnt(8)")
    a("s_barrier")
    for s in p4_reads(0, 0, 0): a(s)
    a("s_waitcnt lgkmcnt(0)")
    stamp(a, opts)
    for g in range(8):
        br = g // 4
        buf = g & 1
        slot = g % 4
        if g == 3:
            poll(a, "L_P3", f"s_lshl_b32 s36, s{sT4}, 7\ns_add_u32 s36, s36, {FLAG_OFF + 4096}", opts)
            a(f"s_add_u32 s{sObase}, s96, {OA_OFF}")
            a(f"s_add_u32 s95, s{sObase}, s{sOoff}")
            stamp(a, opts)
        oload = [p4_oload(1 - buf, j) for j in range(16)] if g < 7 else []
        wd = [p4_wdma(sWoB if g + 2 < 4 else sWoA, (g + 2) % 4, i) for i in range(8)] if g < 6 else []
        for grp in range(4):
            fs = grp & 1
            mains = []
            for i in range(4):
                for ct in range(2):
                    d = vr(ACC4[br][ct], 16)
                    first = (g % 4 == 0 and grp == 0 and i == 0)
                    mains.append(mf32(d, vr(fW4(fs, i, ct), 4), ar(aO4(buf, grp*4 + i), 4), 0 if first else d))
            sides = {}
            if grp < 3: rd = p4_reads(1 - fs, slot, grp + 1)
            elif g < 7: rd = p4_reads(1 - fs, (slot + 1) % 4, 0)
            else: rd = []
            for k, s in enumerate(rd):
                sides.setdefault(min(k // 3, 5), []).append(s)
            if grp < 2 and oload:
                for k in range(8):
                    sides.setdefault(k, []).extend(oload[grp*8 + k])
            if grp == 2 and wd:
                a(wd[0][0])
                for k in range(8):
                    l = [wd[k][1], wd[k][2], wd[k][3]]
                    if k < 7: l.append(wd[k+1][0])
                    sides.setdefault(k, []).extend(l)
            interleave(a, mains, sides)
            if grp == 2 and g < 7:
                a(f"s_waitcnt vmcnt({8 if wd else 0}) lgkmcnt(0)")
                a("s_barrier")
            else:
                a("s_waitcnt lgkmcnt(0)")
    stamp(a, opts)
    a("v_sub_f32 v8, 1.0, v7")
    a(f"v_and_b32 v19, 31, v{vLANE}")
    a(f"v_lshrrev_b32 v20, 5, v{vLANE}")
    a("v_lshlrev_b32 v20, 4, v20")
    a("v_lshl_add_u32 v19, v19, 11, v20")
    a(f"s_lshl_b32 s36, s{sT4}, 18")
    a(f"s_lshl_b32 s37, s{sW}, 16")
    a("s_add_u32 s36, s36, s37")
    a(f"s_lshl_b32 s37, s{sC4}, 7")
    a("s_add_u32 s36, s36, s37")
    a("s_nop 4")
    for ct in range(2):
        B_, A_ = ACC4[0][ct], ACC4[1][ct]
        for i in range(16):
            a(f"v_mul_f32 v{B_+i}, v{B_+i}, v8")
        for i in range(16):
            a(f"v_fma_f32 v{B_+i}, v{A_+i}, v7, v{B_+i}")
        pack(a, B_)
        a("s_nop 1")
        for k in (0, 2):
            a(f"v_permlane32_swap_b32 v{B_+2*k}, v{B_+2*k+2}")
            a(f"v_permlane32_swap_b32 v{B_+2*k+1}, v{B_+2*k+3}")
        for k in (0, 2):
            a(f"buffer_store_dwordx4 {vr(B_+2*k, 4)}, v19, s[{sOutD}:{sOutD+3}], s36 offen offset:{ct*64 + k*16}")

def gen(opts):
    a = Asm()
    p1.HOOKS = dict(setup2=emit_setup2, early=emit_early_loads, masks=emit_masks, gate=emit_gate_nonce)
    emit_setup(a, opts)
    emit_prologue(a, opts)
    emit_gemm1(a, opts)
    stamp(a, opts)
    emit_e1(a, opts)
    stamp(a, opts)
    emit_attn(a, opts)
    emit_p4(a, opts)
    if opts.get("stamp"):
        stamp(a, opts)
        a(f"s_lshl_b32 s36, s2, 2")
        a(f"s_add_u32 s36, s36, s{sW}")
        a("s_lshl_b32 s36, s36, 8")
        a(f"s_add_u32 s36, s36, {STAMP_OFF}")
        a(f"v_lshlrev_b32 v2, 2, v{vLANE}")
        a(f"buffer_store_dword v{vSTAMP}, v2, s[{sWS}:{sWS+3}], s36 offen")
    head = f"""; gated mix of full MHA and dilated sliding-window attention: one fused persistent kernel
; @launch grid=(256,1,1) block=(256,1,1) lds=163840
.amdgcn_target "amdgcn-amd-amdhsa--gfx950"
.text
.globl {KNAME}
.p2align 8
.type {KNAME},@function
{KNAME}:
"""
    tail = f"""L_END:
    s_endpgm
.section .rodata,"a"
.p2align 6
.amdhsa_kernel {KNAME}
  .amdhsa_next_free_vgpr 512
  .amdhsa_next_free_sgpr 102
  .amdhsa_accum_offset 256
  .amdhsa_group_segment_fixed_size 0
  .amdhsa_kernarg_size 80
  .amdhsa_user_sgpr_count 2
  .amdhsa_user_sgpr_kernarg_segment_ptr 1
  .amdhsa_system_sgpr_workgroup_id_x 1
.end_amdhsa_kernel
"""
    return head + a.text() + tail

if __name__ == "__main__":
    import hazard
    opts = dict(pf=1, pf0=3)
    for kv in sys.argv[2:]:
        k, v = kv.split("="); opts[k] = int(v)
    t = gen(opts)
    open(sys.argv[1], "w").write(t)
    print(len(hazard.check(t)), "hazards")
```

```python
import sys, struct, math
from asmlib import *

KNAME = "gated_mix__softmax_full_mha__sliding_local_dilated__prompt_kernel"
def f2u(x): return struct.unpack("<I", struct.pack("<f", x))[0]
KV_OFF   = 0
OA_OFF   = 8 << 20
OB_OFF   = 12 << 20
HALO_OFF = 16 << 20
G_OFF    = 20 << 20
FLAG_OFF = 21 << 20
F_KV, F_H, F_OB, F_OA = FLAG_OFF, FLAG_OFF + 4096, FLAG_OFF + 8192, FLAG_OFF + 12288
STAMP_OFF = 0x8000000
OOB = 0x80000000
CSCALE = f2u(math.log2(math.e) / math.sqrt(32.0))
NEGBIG = f2u(-1e30)
X_SLOT = 16384; W_BASE = 49152; W_SLOT = 24576
KV_LDS = [98304, 131072]
sX, sWA, sWB, sWS = 4, 8, 12, 16
sW, sHP, sT, sRH, sHH = 20, 21, 22, 23, 24
sWoff, sXoff = 25, 26
sXw, sWv = 30, 34
sPF, sPFoff, sPFstr, sPFlim = 40, 44, 45, 46
sNONCE, sCS = 60, 61
sSTAMPI = 68
sPWoA, sPWoB, sPG, sPOut, sPDbg = 70, 72, 74, 76, 78
sKVsrc, sKVbase, sKVt, sKVdst = 80, 81, 82, 27
sPASS, sOst, sSpin = 83, 86, 87
sT4, sC4, sOoff, sWooff, sObase = 88, 89, 90, 91, 92
sHalo, sSeq, sO, sOrow, sHead = 93, 94, 95, 96, 97
sWoA, sWoB, sOutD = 4, 8, 12
sCode = 48
vLANE = 1
vXr = [2, 3, 4, 5]; vWr = [10, 11]; vWg = [12, 13, 14]; vXg = [15, 16, 17, 18]
vT = [19, 20, 21, 22, 23, 24, 25, 26]
vPF, vPFd, vL16, vSTAMP, vF0 = 27, 28, 29, 30, 31
vMc = 32
ACC0 = 64
def acc(blk, rt): return ACC0 + (blk*2 + rt)*16
QA = [64, 80]; KA = [96, 112]; VA = [128, 144]; QB = [160, 176]; KB = [192, 208]; VB = [224, 240]
NM = [96, 112]; S = [128, 144]; P = [72, 88]
vKV = [6, 7]
vWo_g = 2; vWo_r = [8, 9, 10, 11, 12, 13]
vGate, vGrow = 14, 15
HK = 200; HV = 232
def fX(s, rt): return s*32 + rt*4
def fW(s, blk): return s*32 + 8 + blk*4
aK, aV = 0, [8, 16]
aO = [32, 48]; aL = [64, 68]; aONE = 72
aGATE = 76
def oreg(i): return ar(76 + 4*i, 4) if i < 45 else vr(160 + 4*(i - 45), 4)
ACC4 = [[64, 80], [96, 112]]

def mf32(d, A, B, C): return f"v_mfma_f32_32x32x16_bf16 {d}, {A}, {B}, {C}"
def mf16(d, A, B, C): return f"v_mfma_f32_16x16x32_bf16 {d}, {A}, {B}, {C}"
WS = f"s[{sWS}:{sWS+3}]"

class G(Asm):
    def __init__(self, opts):
        super().__init__()
        self.opts = opts
        self.vm = []
        self.nstamp = 0
        self.names = []
    def emit(self, x):
        if callable(x): x = x()
        if x is None: return
        if isinstance(x, tuple):
            self(x[0]); self.vm.append(x[1])
        else:
            assert not (x.lstrip().startswith(("buffer_", "global_"))), x
            self(x)
    def vmn(self, tags):
        idx = [i for i, t in enumerate(self.vm) if t in tags]
        assert idx, tags
        n = len(self.vm) - 1 - max(idx)
        return min(n, 63)
    def wait(self, tags, lgkm=False):
        return lambda: f"s_waitcnt vmcnt({self.vmn(tags)})" + (" lgkmcnt(0)" if lgkm else "")
    def stamp(self, name):
        if not self.opts.get("stamp"): return
        self.names.append(name)
        a = self
        a("s_memtime s[66:67]")
        a("s_memrealtime s[64:65]")
        a("s_waitcnt lgkmcnt(0)")
        a(f"v_writelane_b32 v{vSTAMP}, s66, {self.nstamp}")
        a(f"v_writelane_b32 v{vSTAMP}, s64, {self.nstamp + 32}")
        self.nstamp += 1
        assert self.nstamp <= 32
    def inter(self, mains, sides):
        for i, m in enumerate(mains):
            if m is not None: self.emit(m)
            for s in sides.get(i, []): self.emit(s)

def srd(a, s, lo, hi, nbytes):
    a(f"s_mov_b32 s{s}, s{lo}")
    a(f"s_and_b32 s{s+1}, s{hi}, 0xffff")
    a(f"s_mov_b32 s{s+2}, {nbytes}")
    a(f"s_mov_b32 s{s+3}, 0x20000")

def pf_round(a):
    return [(f"buffer_load_dword v{vPFd}, v{vPF}, s[{sPF}:{sPF+3}], s{sPFoff} offen", "pf"),
            f"s_add_u32 s{sPFoff}, s{sPFoff}, s{sPFstr}"]

class P1:
    def __init__(self, a):
        self.a = a; self.woff = None; self.xoff = None
    def dma(self, piece):
        kind, j, p = piece
        pre = []
        if kind == "W":
            if self.woff != j:
                pre.append(f"s_mov_b32 s{sWoff}, {j*196608}"); self.woff = j
            s = sWA if p < 3 else sWB
            pre.append(f"s_add_u32 m0, s{sWv}, {W_BASE + (j % 4)*W_SLOT + p*4096}")
            return pre, (f"buffer_load_dwordx4 v{vWg[p % 3]}, s[{s}:{s+3}], s{sWoff} offen lds", f"W{j}")
        if self.xoff != j:
            pre.append(f"s_mov_b32 s{sXoff}, {j*128}"); self.xoff = j
        pre.append(f"s_add_u32 m0, s{sXw}, {(j % 3)*X_SLOT + p*1024}")
        return pre, (f"buffer_load_dwordx4 v{vXg[p]}, s[{sX}:{sX+3}], s{sXoff} offen lds", f"X{j}")

def frag_reads(fs, u, k16):
    kk = 2*(u & 1) + k16
    out = [f"ds_read_b128 {ar(fX(fs, rt), 4)}, v{vXr[kk]} offset:{((u >> 1) % 3)*X_SLOT + rt*4096}" for rt in range(2)]
    ws = u % 4
    for blk in range(6):
        off = (ws % 2)*W_SLOT + blk*4096 + k16*2048
        out.append(f"ds_read_b64_tr_b16 {ar(fW(fs, blk), 2)}, v{vWr[ws//2]} offset:{off}")
        out.append(f"ds_read_b64_tr_b16 {ar(fW(fs, blk)+2, 2)}, v{vWr[ws//2]} offset:{off+512}")
    return out

def g1_mfma(fs, blk, rt):
    d = vr(acc(blk, rt), 16)
    w, x = ar(fW(fs, blk), 4), ar(fX(fs, rt), 4)
    return mf32(d, x, w, d) if blk % 3 == 2 else mf32(d, w, x, d)

def setup(a):
    o = a.opts
    a("L_START:")
    a("s_cmp_ge_u32 s2, 256")
    a("s_cbranch_scc1 L_END")
    a.stamp("start")
    a("s_load_dwordx4 s[48:51], s[0:1], 0")
    a("s_load_dwordx2 s[52:53], s[0:1], 32")
    a("s_load_dwordx2 s[54:55], s[0:1], 72")
    a(f"s_load_dwordx2 s[{sPWoA}:{sPWoA+1}], s[0:1], 16")
    a(f"s_load_dwordx4 s[{sPWoB}:{sPWoB+3}], s[0:1], 40")
    a(f"s_load_dwordx4 s[{sPOut}:{sPOut+3}], s[0:1], 56")
    a(f"v_and_b32 v{vLANE}, 63, v0")
    a(f"v_lshrrev_b32 v{vT[0]}, 6, v0")
    a("s_and_b32 s3, s2, 7")
    a(f"v_readfirstlane_b32 s{sW}, v{vT[0]}")
    a("s_lshr_b32 s35, s2, 3")
    a("s_and_b32 s37, s3, 3")
    a("s_lshl_b32 s36, s37, 2")
    a("s_and_b32 s38, s35, 3")
    a(f"s_add_u32 s{sHP}, s36, s38")
    a("s_lshr_b32 s39, s3, 2")
    a("s_lshl_b32 s36, s39, 3")
    a("s_lshr_b32 s38, s35, 2")
    a(f"s_add_u32 s{sT}, s36, s38")
    a(f"s_and_b32 s{sRH}, s{sW}, 1")
    a(f"s_lshr_b32 s{sHH}, s{sW}, 1")
    t0, t1, t2 = vT[0], vT[1], vT[2]
    if o.get("pfx"):
        a("s_lshl_b32 s38, s35, 5")
    else:
        a("s_lshl_b32 s38, s37, 5")
        a("s_add_u32 s38, s38, s35")
        a("s_lshl_b32 s38, s38, 3")
    a("s_lshl_b32 s47, s39, 10")
    a("s_add_u32 s38, s38, s47")
    a(f"v_add_u32 v{t0}, s38, v{vLANE}")
    a(f"v_lshlrev_b32 v{t0}, 11, v{t0}")
    if o.get("pfmode", 1) == 0:
        a("s_lshl_b32 s39, s39, 5")
        a("s_add_u32 s39, s39, s35")
        a("s_mul_i32 s39, s39, 6144")
        a("s_lshl_b32 s38, s37, 9")
        a("s_add_u32 s39, s39, s38")
        a(f"v_lshrrev_b32 v{t1}, 2, v{vLANE}")
        a(f"v_lshlrev_b32 v{t1}, 11, v{t1}")
        a(f"v_and_b32 v{t2}, 3, v{vLANE}")
        a(f"v_lshlrev_b32 v{t2}, 7, v{t2}")
        a(f"v_add3_u32 v{t1}, v{t1}, v{t2}, s39")
    elif o.get("pfmode", 1) == 2:
        a("s_mul_i32 s39, s35, 12288")
        a("s_lshl_b32 s38, s37, 9")
        a("s_add_u32 s39, s39, s38")
        a(f"v_lshrrev_b32 v{t1}, 2, v{vLANE}")
        a(f"v_lshlrev_b32 v{t1}, 11, v{t1}")
        a(f"v_and_b32 v{t2}, 3, v{vLANE}")
        a(f"v_lshlrev_b32 v{t2}, 7, v{t2}")
        a(f"v_add3_u32 v{t1}, v{t1}, v{t2}, s39")
    else:
        a("s_mul_i32 s39, s2, 1536")
        a(f"v_lshlrev_b32 v{t1}, 7, v{vLANE}")
        a(f"v_add_u32 v{t1}, s39, v{t1}")
    a(f"s_mul_i32 s47, s35, {o.get('codelines', 20)}")
    a(f"v_add_u32 v{t2}, s47, v{vLANE}")
    a(f"v_lshlrev_b32 v{vT[7]}, 7, v{t2}")
    a(f"s_mov_b32 s{sPFstr}, 128")
    a(f"s_cmp_eq_u32 s{sW}, 0")
    a(f"s_cselect_b32 s{sPFstr}, s{sPFstr}, {64*6144}")
    a(f"s_cselect_b32 s38, {32 if o.get('pfx') else 8}, {24 if o.get('pfmode', 1) == 2 else 12}")
    a("s_cselect_b64 s[56:57], -1, 0")
    a(f"v_cndmask_b32 v{vPF}, v{t1}, v{t0}, s[56:57]")
    a(f"s_cmp_eq_u32 s{sW}, 3")
    a("s_cselect_b64 s[56:57], -1, 0")
    a(f"v_cndmask_b32 v{vPF}, v{vPF}, v{vT[7]}, s[56:57]")
    a(f"s_cselect_b32 s38, {o.get('codelines', 20)}, s38")
    a(f"s_cselect_b32 s{sPFstr}, 0x4000000, s{sPFstr}")
    a(f"v_cmp_gt_u32 vcc, s38, v{vLANE}")
    a(f"v_mov_b32 v{t2}, {OOB}")
    a(f"s_mov_b32 s{sPFoff}, 0")
    a(f"v_cndmask_b32 v{vPF}, v{t2}, v{vPF}, vcc")
    a(f"v_cmp_gt_u32 vcc, {o.get('codelines', 20)}, v{vLANE}")
    a("s_getpc_b64 s[58:59]")
    a("L_PC:")
    a("s_sub_u32 s58, s58, L_PC - L_START")
    a(f"v_cndmask_b32 v{vT[7]}, v{t2}, v{vT[7]}, vcc")
    a("s_subb_u32 s59, s59, 0")
    r, c, t0, t1 = vT[0], vT[1], vT[2], vT[3]
    a(f"v_lshrrev_b32 v{r}, 3, v{vLANE}")
    a(f"v_and_b32 v{c}, 7, v{vLANE}")
    a(f"v_lshlrev_b32 v{t0}, 1, v{r}")
    a(f"v_and_b32 v{t0}, 4, v{t0}")
    a(f"v_xor_b32 v{t0}, v{t0}, v{c}")
    a(f"v_lshlrev_b32 v{t0}, 4, v{t0}")
    a(f"v_mul_u32_u24 v{t1}, 6144, v{r}")
    a(f"v_add_u32 v{t0}, v{t0}, v{t1}")
    a(f"s_mul_i32 s36, s{sW}, {8*6144}")
    a(f"s_lshl_b32 s37, s{sHP}, 7")
    a("s_add_u32 s36, s36, s37")
    a(f"v_add_u32 v{vWg[0]}, s36, v{t0}")
    a(f"v_add_u32 v{vWg[1]}, 2048, v{vWg[0]}")
    a(f"v_add_u32 v{vWg[2]}, 4096, v{vWg[0]}")
    a(f"v_lshrrev_b32 v{t0}, 1, v{r}")
    a(f"v_xor_b32 v{t0}, v{t0}, v{c}")
    a(f"v_lshlrev_b32 v{t0}, 4, v{t0}")
    a(f"v_lshlrev_b32 v{t1}, 11, v{r}")
    a(f"v_add_u32 v{t0}, v{t0}, v{t1}")
    a(f"s_lshl_b32 s36, s{sT}, 7")
    a(f"s_lshl_b32 s37, s{sW}, 5")
    a("s_add_u32 s36, s36, s37")
    a("s_lshl_b32 s36, s36, 11")
    a(f"v_add_u32 v{vXg[0]}, s36, v{t0}")
    a(f"v_xor_b32 v{vXg[1]}, 64, v{vXg[0]}")
    a(f"v_add_u32 v{vXg[1]}, {8*2048}, v{vXg[1]}")
    a(f"v_add_u32 v{vXg[2]}, {16*2048}, v{vXg[0]}")
    a(f"v_add_u32 v{vXg[3]}, {16*2048}, v{vXg[1]}")
    a(f"s_lshl_b32 s{sWv}, s{sW}, 10")
    a(f"s_lshl_b32 s{sXw}, s{sW}, 12")
    a("s_waitcnt lgkmcnt(0)")
    a.stamp("karg")
    a(f"s_mov_b32 s{sPF+2}, {1024*3072*2}")
    a(f"s_cmp_eq_u32 s{sW}, 0")
    a(f"s_cselect_b32 s{sPF}, s48, s50")
    a(f"s_cselect_b32 s{sPF+1}, s49, s51")
    a(f"s_cselect_b32 s{sPF+2}, {2048*1024*2}, s{sPF+2}")
    a(f"s_cmp_eq_u32 s{sW}, 2")
    a(f"s_cselect_b32 s{sPF}, s52, s{sPF}")
    a(f"s_cselect_b32 s{sPF+1}, s53, s{sPF+1}")
    a(f"s_cmp_eq_u32 s{sW}, 3")
    a(f"s_cselect_b32 s{sPF}, s58, s{sPF}")
    a(f"s_cselect_b32 s{sPF+1}, s59, s{sPF+1}")
    a(f"s_cselect_b32 s{sPF+2}, L_END - L_START, s{sPF+2}")
    a(f"s_and_b32 s{sPF+1}, s{sPF+1}, 0xffff")
    a(f"s_mov_b32 s{sPF+3}, 0x20000")
    for i in range(o.get("pf0", 2)):
        for s in pf_round(a): a.emit(s)
    srd(a, sX, 48, 49, 2048*1024*2)
    srd(a, sWA, 50, 51, 1024*3072*2)
    srd(a, sWB, 52, 53, 1024*3072*2)

def fillers_prologue(a):
    L = []
    f = L.append
    f("s_mov_b32 s16, s54"); f("s_and_b32 s17, s55, 0xffff"); f("s_mov_b32 s18, 0x10000000"); f("s_mov_b32 s19, 0x20000")
    f(f"s_mov_b32 s{sCode}, s58"); f(f"s_and_b32 s{sCode+1}, s59, 0xffff"); f(f"s_mov_b32 s{sCode+2}, L_END - L_START"); f(f"s_mov_b32 s{sCode+3}, 0x20000")
    m, h, t0, t1, row = vT[0], vT[1], vT[2], vT[3], vT[4]
    f(f"v_and_b32 v{m}, 31, v{vLANE}")
    f(f"v_lshrrev_b32 v{h}, 5, v{vLANE}")
    f(f"v_lshrrev_b32 v{t0}, 1, v{m}")
    f(f"v_and_b32 v{t0}, 7, v{t0}")
    f(f"v_xor_b32 v{t0}, v{t0}, v{h}")
    f(f"v_lshlrev_b32 v{t0}, 4, v{t0}")
    f(f"v_lshlrev_b32 v{t1}, 7, v{m}")
    f(f"v_add_u32 v{t0}, v{t0}, v{t1}")
    f(f"s_lshl_b32 s36, s{sRH}, 13")
    f(f"v_add_u32 v{vXr[0]}, s36, v{t0}")
    for kk in range(1, 4):
        f(f"v_xor_b32 v{vXr[kk]}, {kk*32}, v{vXr[0]}")
    f(f"v_and_b32 v{m}, 15, v{vLANE}")
    f(f"v_lshrrev_b32 v{t0}, 2, v{m}")
    f(f"v_lshlrev_b32 v{t1}, 3, v{h}")
    f(f"v_add_u32 v{row}, v{t0}, v{t1}")
    f(f"v_lshrrev_b32 v{t0}, 1, v{row}")
    f(f"v_and_b32 v{t0}, 1, v{t0}")
    f(f"v_xor_b32 v{t0}, s{sHH}, v{t0}")
    f(f"v_lshlrev_b32 v{t0}, 6, v{t0}")
    f(f"v_lshlrev_b32 v{t1}, 7, v{row}")
    f(f"v_add_u32 v{t0}, v{t0}, v{t1}")
    f(f"v_and_b32 v{t1}, 16, v{vLANE}")
    f(f"v_lshlrev_b32 v{t1}, 1, v{t1}")
    f(f"v_add_u32 v{t0}, v{t0}, v{t1}")
    f(f"v_and_b32 v{t1}, 3, v{m}")
    f(f"v_lshlrev_b32 v{t1}, 3, v{t1}")
    f(f"v_add_u32 v{t0}, v{t0}, v{t1}")
    f(f"v_add_u32 v{vWr[0]}, {W_BASE}, v{t0}")
    f(f"v_add_u32 v{vWr[1]}, {W_BASE + 2*W_SLOT}, v{t0}")
    for r in range(ACC0, 256):
        f(f"v_mov_b32 v{r}, 0")
    return L

def fillers_late(a):
    L = []
    f = L.append
    q, b, t = vT[0], vT[1], vT[2]
    f(f"v_lshlrev_b32 v{vL16}, 4, v{vLANE}")
    f(f"v_and_b32 v{q}, 31, v{vLANE}")
    f(f"v_lshrrev_b32 v{b}, 5, v{vLANE}")
    f(f"v_lshlrev_b32 v{b}, 2, v{b}")
    f(f"v_sub_u32 v{b}, v{q}, v{b}")
    f(f"s_mov_b32 s36, {NEGBIG}")
    for i in range(24):
        r, add = (i, 0) if i < 16 else (i - 8, 32)
        d = vMc + i
        kv = 8*(r >> 2) + (r & 3)
        f(f"v_add_u32 v{d}, {add - kv}, v{b}")
        f(f"v_and_b32 v{d}, 0xfffffff1, v{d}")
        f(f"v_min_u32 v{d}, 1, v{d}")
        f(f"v_sub_u32 v{d}, 0, v{d}")
        f(f"v_and_b32 v{d}, s36, v{d}")
    f(f"v_lshrrev_b32 v{q}, 2, v{vLANE}")
    f(f"v_lshrrev_b32 v{t}, 4, v{vLANE}")
    f(f"v_xor_b32 v{q}, v{q}, v{t}")
    f(f"v_and_b32 v{q}, 1, v{q}")
    f(f"v_add_u32 v{q}, -1, v{q}")
    f(f"v_and_b32 v{q}, 0x3f803f80, v{q}")
    for i in range(4):
        f(f"v_accvgpr_write_b32 a{aONE+i}, v{q}")
    f(f"v_min_u32 v{vF0}, 1, v{vLANE}")
    f(f"v_lshlrev_b32 v{vF0}, 31, v{vF0}")
    f(f"s_mov_b32 s{sCS}, {CSCALE}"); f(f"s_mov_b32 s62, {CSCALE}"); f(f"s_mov_b32 s63, {CSCALE}")
    f(f"s_lshl_b32 s36, s{sHP}, 19")
    f(f"s_lshl_b32 s37, s{sW}, 13")
    f(f"s_lshl_b32 s38, s{sHH}, 14")
    f(f"s_lshl_b32 s39, s{sRH}, 13")
    f(f"s_add_u32 s{sKVdst}, s38, s39")
    f(f"s_add_u32 s{sKVbase}, s36, s{sKVdst}")
    f(f"s_lshl_b32 s{sKVt}, s{sT}, 15")
    f(f"s_add_u32 s{sKVsrc}, s{sKVbase}, s{sKVt}")
    f(f"s_add_u32 s36, s38, {KV_LDS[0]}")
    f(f"v_add_u32 v{vKV[0]}, s36, v{vL16}")
    f(f"v_add_u32 v{vKV[1]}, 32768, v{vKV[0]}")
    f(f"s_lshl_b32 s{sHead}, s{sHP}, 1")
    f(f"s_add_u32 s{sHead}, s{sHead}, s{sHH}")
    f(f"s_lshl_b32 s{sSeq}, s{sT}, 1")
    f(f"s_add_u32 s{sSeq}, s{sSeq}, s{sRH}")
    f(f"s_lshl_b32 s37, s{sSeq}, 6")
    f(f"s_add_u32 s37, s37, s{sHead}")
    f(f"s_lshl_b32 s{sOst}, s37, 11")
    f(f"s_lshl_b32 s38, s{sHead}, 5")
    f(f"s_add_u32 s38, s38, s{sSeq}")
    f(f"s_lshl_b32 s28, s38, 2")
    f(f"s_lshl_b32 s38, s38, 12")
    f(f"s_add_u32 s{sHalo}, s38, {HALO_OFF}")
    f(f"s_mov_b32 s{sPASS}, 0")
    return L

READ_GAPS = [0,0,1,1,2,2,3,3,4,5,6,7,8,9]
def gemm1(a):
    o = a.opts
    p1 = P1(a)
    W = lambda j, ps: [("W", j, p) for p in ps]
    X = lambda v, ps: [("X", v, p) for p in ps]
    pro = X(0, range(4)) + W(0, range(6)) + W(1, range(6))
    sched = {(0,0): X(1, range(4)) + W(2, [0,1]), (0,1): W(2, [2,3,4,5]) + W(3, [0,1]),
             (1,0): W(3, [2,3,4,5]) + W(4, [0,1]), (1,1): X(2, range(4)) + W(4, [2,3]),
             (2,0): W(4, [4,5]) + W(5, [0,1,2,3]), (2,1): W(5, [4,5]) + X(3, range(4)),
             (3,0): W(6, range(6))}
    for u in range(3, 28):
        v, p0 = ((u + 5)//2, 0) if u & 1 else ((u + 4)//2, 2)
        sched[(u, 1)] = W(u + 4, [0,1,2]) + (X(v, [p0]) if v < 16 else [])
        sched[(u + 1, 0)] = W(u + 4, [3,4,5]) + (X(v, [p0 + 1]) if v < 16 else [])
    for (u, hf), ps in sched.items():
        done = u - 1 if hf == 0 else u
        for k, j, p in ps:
            if k == "W": assert j < 4 or done >= j - 4, (u, hf, k, j)
            else: assert j < 3 or done >= 2*(j - 3) + 1, (u, hf, k, j)
    npf0 = o.get("pf0", 2)
    pfs = {}
    r = npf0
    for u in range(0, 32):
        while r < 16 and u >= max(0, 2*r - o.get("pfd", 8)) and pfs.get(u, 0) < 1:
            pfs[u] = pfs.get(u, 0) + 1; r += 1
    fil = fillers_prologue(a)
    per = (len(fil) + len(pro) - 1)//len(pro)
    for i, pc in enumerate(pro):
        pre, d = p1.dma(pc)
        for s in pre: a(s)
        chunk = fil[i*per:(i+1)*per]
        a(chunk[0] if chunk else "s_nop 0")
        a.emit(d)
        for s in chunk[1:]: a(s)
    a(f"s_or_b32 s36, s2, s{sW}")
    a("s_cmp_lg_u32 s36, 0")
    a("s_cbranch_scc1 L_NONONCE")
    a("s_memrealtime s[36:37]")
    a("v_mov_b32 v20, 0")
    a("s_waitcnt lgkmcnt(0)")
    a("s_or_b32 s36, s36, 1")
    a("v_mov_b32 v19, s36")
    a(f"global_store_dword v20, v19, s[{sPDbg}:{sPDbg+1}] sc1")
    a("L_NONONCE:")
    a.stamp("issued")
    a.emit(a.wait(["X0", "W0"]))
    a("s_barrier")
    a.stamp("first")
    for s in frag_reads(0, 0, 0): a(s)
    a("s_waitcnt lgkmcnt(0)")
    late = fillers_late(a)
    order = [(b, rt) for b in range(6) for rt in range(2)]
    for u in range(32):
        for hf in range(2):
            last = (u == 31 and hf == 1)
            reads = [] if last else (frag_reads(1, u, 1) if hf == 0 else frag_reads(0, u + 1, 0))
            sides = {}
            for g, rd in zip(READ_GAPS, reads): sides.setdefault(g, []).append(rd)
            ps = sched.get((u, hf), [])
            gaps = {4: [(1,2),(4,5),(7,8),(9,10)], 6: [(0,1),(2,3),(4,5),(6,7),(8,9),(10,11)]}
            gp = gaps[6] if len(ps) > 4 else gaps[4]
            for (g0, g1), pc in zip(gp, ps):
                pre, d = p1.dma(pc)
                sides.setdefault(g0, []).extend(pre)
                sides.setdefault(g1, []).insert(0, d)
            if hf == 0 and pfs.get(u):
                sides.setdefault(11, []).extend(pf_round(a))
            if u >= 6 and late and not last:
                for g in (5, 6, 8, 10):
                    for k in range(2):
                        if late: sides.setdefault(g, []).append(late.pop(0))
            if u == 28 and hf == 1:
                sides.setdefault(5, []).append((f"buffer_load_dword v{vPFd}, v{vT[7]}, s[{sCode}:{sCode+3}], 0 offen", "cpf"))
            if u == 30 and hf == 1:
                sides.setdefault(5, []).append("v_mov_b32 v19, 0")
                sides.setdefault(7, []).append((f"global_load_dword v21, v19, s[{sPDbg}:{sPDbg+1}] sc1", "nonce"))
            od = order
            if last: od = [(4,1),(5,1),(1,0),(2,0),(1,1),(2,1),(3,1),(4,0),(5,0),(3,0),(0,0),(0,1)]
            a.inter([g1_mfma(hf, b, rt) for b, rt in od], sides)
            if hf == 0:
                if u < 31:
                    need = [f"W{u+1}"] + ([f"X{(u+1)//2}"] if (u + 1) % 2 == 0 else [])
                    a.emit(a.wait(need, lgkm=True))
                else:
                    a("s_waitcnt lgkmcnt(0)")
                a("s_barrier")
            elif not last:
                a("s_waitcnt lgkmcnt(0)")
        if u % 8 == 7: a.stamp(f"g{u}")
    assert not late

def pack(a, base):
    for j in range(8):
        a(f"v_cvt_pk_bf16_f32 v{base+j}, v{base+2*j}, v{base+2*j+1}")

def local_tile(a, Q, Kc, Vc, Kp, Vp1, SC, SP, O, PC, PP, tmp, off, tag):
    m, t = tmp, tmp + 1
    a(mf32(vr(SC, 16), vr(Kc, 4), vr(Q, 4), vr(vMc, 16)))
    a(mf32(vr(SC, 16), vr(Kc+4, 4), vr(Q+4, 4), vr(SC, 16)))
    a(mf32(vr(SP, 16), vr(Kp, 4), vr(Q, 4), vr(vMc + 8, 16)))
    a(mf32(vr(SP, 16), vr(Kp+4, 4), vr(Q+4, 4), vr(SP, 16)))
    a("s_nop 9")
    vals = [SC + i for i in range(16)] + [SP + 8 + i for i in range(8)]
    a(f"v_max3_f32 v{m}, v{vals[0]}, v{vals[1]}, v{vals[2]}")
    for i in range(3, 23, 2):
        a(f"v_max3_f32 v{m}, v{m}, v{vals[i]}, v{vals[i+1]}")
    a(f"v_max_f32 v{m}, v{m}, v{vals[23]}")
    a(f"v_mov_b32 v{t}, v{m}")
    a("s_nop 1")
    a(f"v_permlane32_swap_b32 v{m}, v{t}")
    a(f"v_max_f32 v{m}, v{m}, v{t}")
    a(f"v_mul_f32 v{m}, s{sCS}, v{m}")
    for v in vals:
        a(f"v_fma_f32 v{v}, v{v}, s{sCS}, -v{m}")
    L = SP
    for i in range(10): a(f"v_exp_f32 v{vals[i]}, v{vals[i]}")
    for j in range(4): a(f"v_cvt_pk_bf16_f32 v{PC+j}, v{SC+2*j}, v{SC+2*j+1}")
    for i in range(10, 13): a(f"v_exp_f32 v{vals[i]}, v{vals[i]}")
    a(mf32(vr(O, 16), vr(Vc, 4), vr(PC, 4), 0))
    for i in range(13, 18): a(f"v_exp_f32 v{vals[i]}, v{vals[i]}")
    a(mf16(vr(L, 4), ar(aONE, 4), vr(PC, 4), 0))
    for j in range(4, 8): a(f"v_cvt_pk_bf16_f32 v{PC+j}, v{SC+2*j}, v{SC+2*j+1}")
    for i in range(18, 20): a(f"v_exp_f32 v{vals[i]}, v{vals[i]}")
    a(mf32(vr(O, 16), vr(Vc+4, 4), vr(PC+4, 4), vr(O, 16)))
    for i in range(20, 24): a(f"v_exp_f32 v{vals[i]}, v{vals[i]}")
    a(mf16(vr(L, 4), ar(aONE, 4), vr(PC+4, 4), vr(L, 4)))
    for j in range(4): a(f"v_cvt_pk_bf16_f32 v{PP+j}, v{SP+8+2*j}, v{SP+9+2*j}")
    a("s_nop 1")
    a(mf16(vr(L, 4), ar(aONE, 4), vr(PP, 4), vr(L, 4)))
    a(mf32(vr(O, 16), vr(Vp1, 4), vr(PP, 4), vr(O, 16)))
    a(f"s_add_u32 s36, s{sOst}, {OB_OFF + off}")
    a("s_nop 5")
    a(f"v_rcp_f32 v{m}, v{L}")
    a("s_nop 3")
    for i in range(16):
        a(f"v_mul_f32 v{O+i}, v{O+i}, v{m}")
    pack(a, O)
    a.emit((f"buffer_store_dwordx4 {vr(O, 4)}, v{vL16}, {WS}, s36 offen sc1", tag))
    a.emit((f"buffer_store_dwordx4 {vr(O+4, 4)}, v{vL16}, {WS}, s36 offen offset:1024 sc1", tag))

def flag_store(sreg, vtmp, tag):
    return [f"v_mov_b32 v{vtmp}, s{sNONCE}", (f"buffer_store_dword v{vtmp}, v{vF0}, {WS}, s{sreg} offen sc1", tag)]

def poll_check(a, name, vdst, vaddr, sreg, tag):
    a.emit(a.wait([tag]))
    a(f"v_cmp_ne_u32 vcc, s{sNONCE}, v{vdst}")
    a("s_nop 4")
    a(f"s_cbranch_vccnz {name}_S")
    a(f"{name}_R:")
    a.tail.append(f"""{name}_S:
    s_mov_b32 s{sSpin}, 0
{name}_L:
    buffer_load_dword v{vdst}, v{vaddr}, {WS}, s{sreg} offen sc1
    s_add_u32 s{sSpin}, s{sSpin}, 1
    s_waitcnt vmcnt(0)
    v_cmp_ne_u32 vcc, s{sNONCE}, v{vdst}
    s_cmp_lt_u32 s{sSpin}, 0x40000
    s_cbranch_scc0 {name}_R
    s_nop 2
    s_cbranch_vccnz {name}_L
    s_branch {name}_R""")

def e1(a):
    o = a.opts
    a(f"s_add_u32 s36, s{sKVdst}, {KV_LDS[0]}")
    a(f"v_add_u32 v22, s36, v{vL16}")
    a("s_nop 1")
    pack(a, KB[1]); pack(a, VB[1])
    a.emit((f"buffer_store_dwordx4 {vr(KB[1], 4)}, v{vL16}, {WS}, s{sHalo} offen sc1", "halo"))
    a.emit((f"buffer_store_dwordx4 {vr(KB[1]+4, 4)}, v{vL16}, {WS}, s{sHalo} offen offset:1024 sc1", "halo"))
    a.emit((f"buffer_store_dwordx4 {vr(VB[1]+4, 4)}, v{vL16}, {WS}, s{sHalo} offen offset:2048 sc1", "halo"))
    a(f"s_add_u32 s37, s{sKVsrc}, 4096")
    for rt in range(2):
        for (blk, f0) in ((KA[rt], 0), (VA[rt], 2)):
            pack(a, blk)
            for f in range(2):
                off = (f0 + f)*1024
                a.emit((f"buffer_store_dwordx4 {vr(blk+4*f, 4)}, v{vL16}, {WS}, s{sKVsrc if rt == 0 else 37} offen offset:{off} sc1", "kv"))
                a(f"ds_write_b128 v22, {vr(blk+4*f, 4)} offset:{rt*4096 + off}")
    a(f"s_lshl_b32 s36, s{sSeq}, 6")
    a(f"s_lshl_b32 s37, s{sHead}, 1")
    a("s_add_u32 s36, s36, s37")
    a(f"v_lshrrev_b32 v23, 5, v{vLANE}")
    a(f"v_add_u32 v{vGrow}, s36, v23")
    a(f"v_and_b32 v24, 31, v{vLANE}")
    a("v_lshlrev_b32 v24, 4, v24")
    a(f"v_lshl_add_u32 v23, v{vGrow}, 11, v24")
    srd(a, 56, sPG, sPG+1, 2048)
    for j in range(4):
        a.emit((f"buffer_load_dwordx4 {ar(aGATE+4*j, 4)}, v23, s[{sX}:{sX+3}], 0 offen offset:{512*j}", "gate"))
    for j in range(4):
        a.emit((f"buffer_load_dwordx4 {ar(aGATE+16+4*j, 4)}, v24, s[56:59], 0 offen offset:{512*j}", "gate"))
    pack(a, QB[1]); pack(a, KB[0]); pack(a, VB[0]); pack(a, QB[0])
    for q in QA:
        for j in range(8):
            a(f"v_pk_mul_f32 {vr(q+2*j, 2)}, {vr(q+2*j, 2)}, s[62:63]")
        pack(a, q)
    a.stamp("e1pack")
    a.emit(a.wait(["halo", "nonce"]))
    a(f"v_readfirstlane_b32 s{sNONCE}, v21")
    a(f"s_add_u32 s36, s28, {F_H}")
    a("s_nop 2")
    a(f"s_cmp_eq_u32 s{sNONCE}, 0")
    a("s_cbranch_scc1 L_NONCE_S")
    a("L_NONCE_R:")
    a.tail.append(f"""L_NONCE_S:
    s_mov_b32 s{sSpin}, 0
L_NONCE_L:
    global_load_dword v21, v19, s[{sPDbg}:{sPDbg+1}] sc1
    s_add_u32 s{sSpin}, s{sSpin}, 1
    s_waitcnt vmcnt(0)
    v_readfirstlane_b32 s{sNONCE}, v21
    s_cmp_lt_u32 s{sSpin}, 0x40000
    s_cbranch_scc0 L_NONCE_R
    s_nop 2
    s_cmp_eq_u32 s{sNONCE}, 0
    s_cbranch_scc1 L_NONCE_L
    s_branch L_NONCE_R""")
    for s in flag_store(36, 20, "fH"): a.emit(s)
    a.stamp("fH")
    local_tile(a, QB[1], KB[1], VB[1], KB[0], VB[0]+4, 96, 112, 128, 144, 152, 156, 65536, "ob1")
    a("s_waitcnt lgkmcnt(0)")
    a("s_barrier")
    a.stamp("loc1")

def kv_dma(slot, group, tag):
    out = [f"s_add_u32 m0, s{sKVdst}, {KV_LDS[slot] + group*4096}",
           f"s_add_u32 s36, s{sKVsrc}, {group*4096}"]
    for p in range(4):
        out.append((f"buffer_load_dwordx4 v{vL16}, {WS}, s36 offen offset:{p*1024} sc1 lds", tag))
    return out
def kv_advance():
    return [f"s_add_u32 s{sKVt}, s{sKVt}, 32768", f"s_and_b32 s{sKVt}, s{sKVt}, 0x7ffff", f"s_add_u32 s{sKVsrc}, s{sKVbase}, s{sKVt}"]

def H(a, q, vpar, qk=True, pv=True, pv_first=False, slots=None):
    slots = slots or {}
    o = 1 - q
    e = [f"v_exp_f32 v{S[q]+i}, v{S[q]+i}" for i in range(16)]
    c = [f"v_cvt_pk_bf16_f32 v{P[q]+j}, v{S[q]+2*j}, v{S[q]+2*j+1}" for j in range(8)]
    So, Oo, Lo = vr(S[o], 16), ar(aO[o], 16), ar(aL[o], 4)
    M = [mf32(So, ar(aK, 4), vr(QA[o], 4), vr(NM[o], 16)) if qk else None,
         mf32(So, ar(aK+4, 4), vr(QA[o]+4, 4), So) if qk else None,
         mf32(Oo, ar(aV[vpar], 4), vr(P[o], 4), 0 if pv_first else Oo) if pv else None,
         mf32(Oo, ar(aV[vpar]+4, 4), vr(P[o]+4, 4), Oo) if pv else None,
         mf16(Lo, ar(aONE, 4), vr(P[o], 4), 0 if pv_first else Lo) if pv else None,
         mf16(Lo, ar(aONE, 4), vr(P[o]+4, 4), Lo) if pv else None]
    V = [[e[0], e[1], e[2]], [e[3], c[0], c[1], e[4]], [e[5], e[6], e[7]], [c[2], c[3], e[8], e[9]],
         [e[10], e[11], c[4], c[5]], [e[12], e[13], e[14], e[15], c[6], c[7]]]
    if not pv: V[3] = ["s_nop 0"] + V[3]
    for i in range(6):
        if M[i]: a(M[i])
        for s in slots.get(i, []): a.emit(s)
        for s in V[i]: a(s)

def rdK(slot, off): return [f"ds_read_b128 {ar(aK, 4)}, v{vKV[slot]} offset:{off}", f"ds_read_b128 {ar(aK+4, 4)}, v{vKV[slot]} offset:{off+1024}"]
def rdV(par, slot, off): return [f"ds_read_b128 {ar(aV[par], 4)}, v{vKV[slot]} offset:{off+2048}", f"ds_read_b128 {ar(aV[par]+4, 4)}, v{vKV[slot]} offset:{off+3072}"]

FREE_A = [0, 3, 4]; FREE_B = [2, 3, 4, 5]
def tile(a, n, side=None, end_b=None):
    sa = {}; sb = {}
    if n < 63:
        m = n + 1
        k = rdK((m >> 2) & 1, (m & 3)*4096); v = rdV(m & 1, (m >> 2) & 1, (m & 3)*4096)
        sa[1] = [k[0]]; sa[2] = [k[1]]; sa[5] = ["s_waitcnt lgkmcnt(0)"]
        sb[0] = [v[0]]; sb[1] = [v[1]]
    if side is not None:
        for g in FREE_A:
            if side: sa.setdefault(g, []).extend(side.pop(0))
        for g in (FREE_B if end_b is None else FREE_B[:-1]):
            if side: sb.setdefault(g, []).extend(side.pop(0))
    if end_b: sb.setdefault(5, []).extend(end_b)
    H(a, 0, (n - 1) & 1, pv=(n != 0), pv_first=(n == 1), slots=sa)
    H(a, 1, n & 1, qk=(n < 63), pv_first=(n == 0), slots=sb)

def neg_max(a):
    for q in range(2): a(f"v_mov_b32 v{21+q}, v{19+q}")
    a("s_nop 0")
    for q in range(2): a(f"v_permlane32_swap_b32 v{19+q}, v{21+q}")
    for q in range(2): a(f"v_max_f32 v{19+q}, v{19+q}, v{21+q}")
    for q in range(2):
        for i in range(16): a(f"v_sub_f32 v{NM[q]+i}, 0, v{19+q}")

def gate_compute(a):
    z, t = 23, 24
    for i in range(16):
        a(f"v_accvgpr_read_b32 v{56+(i%4)}, a{aGATE+i}")
        a(f"v_accvgpr_read_b32 v{60+(i%4)}, a{aGATE+16+i}")
        a(f"v_dot2_f32_bf16 v{z}, v{56+(i%4)}, v{60+(i%4)}, {0 if i == 0 else 'v%d' % z}")
    a("s_nop 2")
    for sh in (8, 4, 2, 1):
        a(f"v_add_f32_dpp v{z}, v{z}, v{z} row_ror:{sh} row_mask:0xf bank_mask:0xf")
        a("s_nop 1")
    a(f"v_mov_b32 v{t}, v{z}")
    a("s_nop 1")
    a(f"v_permlane16_swap_b32 v{z}, v{t}")
    a(f"v_add_f32 v{z}, v{z}, v{t}")
    a(f"v_mul_f32 v{z}, {f2u(-math.log2(math.e))}, v{z}")
    a(f"v_exp_f32 v{z}, v{z}")
    a(f"v_and_b32 v{t}, 31, v{vLANE}")
    a(f"v_add_f32 v{z}, 1.0, v{z}")
    a(f"v_rcp_f32 v{z}, v{z}")
    a(f"v_min_u32 v{t}, 1, v{t}")
    a(f"v_lshlrev_b32 v{t}, 31, v{t}")
    a(f"v_lshl_or_b32 v{t}, v{vGrow}, 2, v{t}")
    a(f"s_mov_b32 s36, {G_OFF}")
    a.emit((f"buffer_store_dword v{z}, v{t}, {WS}, s36 offen sc1", "g"))

def p4_setup(a):
    srd(a, sWoA, sPWoA, sPWoA+1, 1024*1024*2)
    srd(a, sWoB, sPWoB, sPWoB+1, 1024*1024*2)
    srd(a, sOutD, sPOut, sPOut+1, 2048*1024*2)
    a("s_and_b32 s36, s2, 7")
    a("s_lshr_b32 s37, s2, 3")
    a(f"s_and_b32 s{sC4}, s37, 15")
    a("s_lshr_b32 s37, s37, 4")
    a("s_lshl_b32 s36, s36, 1")
    a(f"s_add_u32 s{sT4}, s36, s37")
    r, c, t0, t1 = 56, 57, 58, 59
    a(f"v_lshrrev_b32 v{r}, 3, v{vLANE}")
    a(f"v_and_b32 v{c}, 7, v{vLANE}")
    a(f"v_lshlrev_b32 v{t0}, 1, v{r}")
    a(f"v_and_b32 v{t0}, 4, v{t0}")
    a(f"v_xor_b32 v{t0}, v{t0}, v{c}")
    a(f"v_lshlrev_b32 v{t0}, 4, v{t0}")
    a(f"v_lshl_add_u32 v{t0}, v{r}, 11, v{t0}")
    a(f"s_lshl_b32 s36, s{sW}, 14")
    a(f"s_lshl_b32 s37, s{sC4}, 7")
    a("s_add_u32 s36, s36, s37")
    a(f"v_add_u32 v{vWo_g}, s36, v{t0}")
    a(f"v_and_b32 v{r}, 15, v{vLANE}")
    a(f"v_lshrrev_b32 v{t0}, 2, v{r}")
    a(f"v_lshrrev_b32 v{t1}, 5, v{vLANE}")
    a(f"v_lshl_add_u32 v{c}, v{t1}, 2, v{t0}")
    a(f"v_lshrrev_b32 v{t0}, 1, v{c}")
    a(f"v_and_b32 v{t0}, 1, v{t0}")
    a(f"v_lshlrev_b32 v{t0}, 6, v{t0}")
    a(f"v_lshl_add_u32 v{t0}, v{c}, 7, v{t0}")
    a(f"v_and_b32 v{t1}, 16, v{vLANE}")
    a(f"v_lshl_add_u32 v{t0}, v{t1}, 1, v{t0}")
    a(f"v_and_b32 v{t1}, 3, v{r}")
    a(f"v_lshl_add_u32 v{vWo_r[0]}, v{t1}, 3, v{t0}")
    a(f"v_xor_b32 v{vWo_r[1]}, 64, v{vWo_r[0]}")
    for b in (1, 2):
        for ct in range(2):
            a(f"v_add_u32 v{vWo_r[2*b+ct]}, {b*65536}, v{vWo_r[ct]}")
    a(f"s_lshl_b32 s36, s{sT4}, 2")
    a(f"s_add_u32 s36, s36, s{sW}")
    a(f"s_lshl_b32 s{sOrow}, s36, 16")
    a(f"s_lshr_b32 s36, s36, 1")
    a(f"s_lshl_b32 s29, s36, 7")
    a(f"s_lshl_b32 s{sOoff}, s{sC4}, 12")
    a(f"s_lshl_b32 s{sWooff}, s{sC4}, 17")
    a(f"v_and_b32 v16, 31, v{vLANE}")
    a("v_lshlrev_b32 v16, 2, v16")
    a(f"v_and_b32 v17, 15, v{vLANE}")
    a("v_lshlrev_b32 v17, 2, v17")

def wob_dma(i, tag):
    return [[f"s_mov_b32 s39, {i*65536}"], [f"s_add_u32 m0, s{sWv}, {i*4096}"],
            [(f"buffer_load_dwordx4 v{vWo_g}, s[{sWoB}:{sWoB+3}], s39 offen lds", tag)]]

def attention(a):
    o = a.opts
    a("L_ATT0:")
    for s in rdK(0, 0) + rdV(0, 0, 0): a(s)
    a(f"s_lshl_b32 s{sKVt}, s{sT}, 15")
    for s in kv_advance(): a(s)
    a(f"s_cmp_lg_u32 s{sPASS}, 0")
    a("s_waitcnt lgkmcnt(0)")
    a("s_cbranch_scc1 L_ATT1")
    for q in range(2): a(mf32(vr(S[q], 16), ar(aK, 4), vr(QA[q], 4), 0))
    for q in range(2): a(mf32(vr(S[q], 16), ar(aK+4, 4), vr(QA[q]+4, 4), vr(S[q], 16)))
    a("s_nop 10")
    for q in range(2):
        s, m = S[q], 19 + q
        a(f"v_max3_f32 v{m}, v{s}, v{s+1}, v{s+2}")
        for i in range(3, 15, 2): a(f"v_max3_f32 v{m}, v{m}, v{s+i}, v{s+i+1}")
        a(f"v_max_f32 v{m}, v{m}, v{s+15}")
    neg_max(a)
    a("L_ATT1:")
    a("s_nop 1")
    a(mf32(vr(S[0], 16), ar(aK, 4), vr(QA[0], 4), vr(NM[0], 16)))
    a(mf32(vr(S[0], 16), ar(aK+4, 4), vr(QA[0]+4, 4), vr(S[0], 16)))
    a(f"s_lshl_b32 s38, s{sHP}, 2")
    a(f"s_add_u32 s38, s38, s{sW}")
    a(f"s_lshl_b32 s38, s38, 6")
    a(f"s_add_u32 s31, s38, {F_KV}")
    a(f"s_lshl_b32 s38, s{sT}, 2")
    a(f"s_add_u32 s32, s31, s38")
    a(f"s_add_u32 s33, s28, {F_H - 4}")
    a(f"s_cmp_eq_u32 s{sSeq}, 0")
    a(f"s_cselect_b32 s38, 4, 0")
    a(f"s_add_u32 s33, s33, s38")
    a("v_mov_b32 v18, 0")
    a.stamp("att0")
    tile(a, 0); tile(a, 1)
    a.stamp("t01")
    a(f"s_cmp_lg_u32 s{sPASS}, 0")
    a("s_cbranch_scc1 L_A2")
    a.emit(a.wait(["kv"]))
    for s in flag_store(32, 20, "fKV"): a.emit(s)
    a.emit((f"buffer_load_dword v21, v18, {WS}, s33 offen sc1", "pH"))
    a("L_A2:")
    a.stamp("fKV")
    tile(a, 2)
    a(f"s_cmp_lg_u32 s{sPASS}, 0")
    a("s_cbranch_scc1 L_A3")
    poll_check(a, "L_PH", 21, 18, 33, "pH")
    a.stamp("pH")
    a(f"s_sub_u32 s38, s{sHalo}, 4096")
    a(f"s_cmp_eq_u32 s{sSeq}, 0")
    a(f"s_cselect_b32 s38, {OOB}, s38")
    a.emit((f"buffer_load_dwordx4 {vr(HK, 4)}, v{vL16}, {WS}, s38 offen sc1", "hl"))
    a.emit((f"buffer_load_dwordx4 {vr(HK+4, 4)}, v{vL16}, {WS}, s38 offen offset:1024 sc1", "hl"))
    a.emit((f"buffer_load_dwordx4 {vr(HV, 4)}, v{vL16}, {WS}, s38 offen offset:2048 sc1", "hl"))
    a("s_cbranch_scc0 L_MASKOK")
    for i in range(8): a(f"v_mov_b32 v{vMc+16+i}, {NEGBIG}")
    a("L_MASKOK:")
    p4_setup(a)
    a.emit((f"buffer_load_dword v21, v17, {WS}, s31 offen sc1", "pKV"))
    gate_compute(a)
    poll_check(a, "L_PKV", 21, 17, 31, "pKV")
    a("L_A3:")
    a.stamp("pKV")
    for g in range(2):
        for s in kv_dma(1, g, "c1"): a.emit(s)
    for s in kv_advance(): a(s)
    a(f"s_cmp_lg_u32 s{sPASS}, 0")
    a("s_cbranch_scc1 L_A4")
    a.emit(a.wait(["hl"]))
    local_tile(a, QB[0], KB[0], VB[0], HK, HV, 176, 208, 240, 168, 236, 23, 0, "ob0")
    a("s_branch L_A5")
    a("L_A4:")
    a("s_waitcnt vmcnt(0)")
    a("L_A5:")
    a.stamp("loc0")
    a.emit(a.wait(["c1"], lgkm=True))
    a("s_barrier")
    a.stamp("c1")
    wob = [i for i in range(24)]
    obl = [i for i in range(64)]
    if o.get('noside'): wob = wob[:1]; obl = obl[:1]
    ob_start = o.get("ob_start", 5)
    for c in range(15):
        side = []
        if c + 2 <= 15:
            d0, d1 = kv_dma(c % 2, 0, f"c{c+2}"), kv_dma(c % 2, 1, f"c{c+2}")
            side += [d0[0:1], d0[1:2]] + [[x] for x in d0[2:]] + [d1[0:1], d1[1:2]] + [[x] for x in d1[2:]] + [[x] for x in kv_advance()]
        if c == 1:
            side += [[f"s_lshl_b32 s38, s{sSeq}, 7"], [f"s_lshl_b32 s39, s{sHead}, 2"], ["s_add_u32 s38, s38, s39"],
                     [f"s_add_u32 s35, s38, {F_OB}"], flag_store(35, 20, "fOB")]
        if c == ob_start - 2:
            side += [[f"s_add_u32 s47, s29, {F_OB}"], [(f"buffer_load_dword v21, v16, {WS}, s47 offen sc1", "pOB")]]
        if c == o.get("cpf2", 11):
            side += [[(f"buffer_load_dword v{vPFd}, v{vT[7]}, s[{sCode}:{sCode+3}], 0 offen", "cpf")]]
        nslots = 4*7 - 1
        if c >= ob_start:
            k = min(len(obl), o.get("ob_per", 8))
            for _ in range(k):
                i = obl.pop(0)
                if i % 4 == 0: side.append([f"s_add_u32 s{sO}, s{sOrow}, {OB_OFF + i*1024}"])
                side.append([(f"buffer_load_dwordx4 {oreg(i)}, v{vL16}, {WS}, s{sO} offen offset:{(i % 4)*1024} sc1", "obl")])
        while wob and len(side) + 3 <= nslots:
            side += wob_dma(wob.pop(0), "wob")
        while len(side) > nslots:
            for k in range(len(side) - 1):
                if all(isinstance(x, str) and x.startswith("s_") and "m0" not in x for x in side[k]):
                    side[k+1] = side[k] + side[k+1]; side.pop(k); break
            else:
                raise Exception("slots")
        if c == ob_start - 1:
            poll_check(a, "L_POB", 21, 16, 47, "pOB")
        tile(a, 4*c + 3, side); tile(a, 4*c + 4, side); tile(a, 4*c + 5, side)
        tile(a, 4*c + 6, side, end_b=[a.wait([f"c{c+2}"], lgkm=True) if c + 2 <= 15 else "s_waitcnt lgkmcnt(0)", "s_barrier"])
        assert not side
        if c in (4, 9): a.stamp(f"c{c}")
    assert not wob and not obl, (wob, obl)
    tile(a, 63)
    a("s_nop 1")
    a(mf32(ar(aO[1], 16), ar(aV[1], 4), vr(P[1], 4), ar(aO[1], 16)))
    a(mf16(ar(aL[1], 4), ar(aONE, 4), vr(P[1], 4), ar(aL[1], 4)))
    a(mf32(ar(aO[1], 16), ar(aV[1]+4, 4), vr(P[1]+4, 4), ar(aO[1], 16)))
    a(mf16(ar(aL[1], 4), ar(aONE, 4), vr(P[1]+4, 4), ar(aL[1], 4)))
    a.stamp("attend")
    a(f"v_accvgpr_read_b32 v19, a{aL[0]}")
    for i in range(16): a(f"v_accvgpr_read_b32 v{S[0]+i}, a{aO[0]+i}")
    a(f"v_accvgpr_read_b32 v20, a{aL[1]}")
    a(f"s_mov_b32 s36, {f2u(2.0**40)}")
    a("v_rcp_f32 v23, v19")
    a("v_rcp_f32 v24, v20")
    a("v_cmp_nge_f32 s[38:39], s36, v19")
    a("v_cmp_nge_f32 vcc, s36, v20")
    for i in range(16): a(f"v_accvgpr_read_b32 v{S[1]+i}, a{aO[1]+i}")
    a("s_or_b64 vcc, vcc, s[38:39]")
    if o.get("force_fallback"): a("s_mov_b64 vcc, -1")
    a("s_cmp_lg_u64 vcc, 0")
    a("s_cselect_b32 s36, 1, 0")
    a(f"s_andn2_b32 s36, s36, s{sPASS}")
    a("v_mov_b32 v21, s36")
    a(f"s_lshl_b32 s37, s{sW}, 2")
    a(f"s_add_u32 s37, s37, {KV_LDS[1]}")
    a("v_mov_b32 v22, s37")
    a("ds_write_b32 v22, v21")
    for q in range(2):
        for i in range(16): a(f"v_mul_f32 v{S[q]+i}, v{S[q]+i}, v{23+q}")
        pack(a, S[q])
    a(f"v_mov_b32 v22, {KV_LDS[1]}")
    a("s_waitcnt lgkmcnt(0)")
    a("s_barrier")
    a("ds_read_b128 v[20:23], v22")
    a(f"s_add_u32 s36, s{sOst}, {OA_OFF}")
    a(f"s_add_u32 s37, s{sOst}, {OA_OFF + 65536}")
    a("s_waitcnt lgkmcnt(0)")
    a("v_or_b32 v20, v20, v21")
    a("v_or3_b32 v20, v20, v22, v23")
    a("s_nop 0")
    a("v_readfirstlane_b32 s38, v20")
    a("s_nop 3")
    a("s_cmp_lg_u32 s38, 0")
    a("s_cbranch_scc1 L_FALLBACK")
    for q in range(2):
        a.emit((f"buffer_store_dwordx4 {vr(S[q], 4)}, v{vL16}, {WS}, s{36+q} offen sc1", "oa"))
        a.emit((f"buffer_store_dwordx4 {vr(S[q]+4, 4)}, v{vL16}, {WS}, s{36+q} offen offset:1024 sc1", "oa"))
    b = Asm()
    b("L_FALLBACK:")
    b(f"s_mov_b32 s{sPASS}, 1")
    b(f"v_mov_b32 v19, {NEGBIG}")
    b(f"v_mov_b32 v20, {NEGBIG}")
    b(f"s_lshl_b32 s38, s{sHP}, 19")
    b(f"s_lshl_b32 s39, s{sHH}, 14")
    b("s_add_u32 s38, s38, s39")
    b("s_mov_b32 s39, 0")
    b("L_FB:")
    b("s_and_b32 s36, s39, 3")
    b("s_lshl_b32 s36, s36, 12")
    b("s_lshr_b32 s37, s39, 2")
    b("s_lshl_b32 s37, s37, 15")
    b("s_add_u32 s36, s36, s37")
    b("s_add_u32 s36, s36, s38")
    b(f"buffer_load_dwordx4 {ar(aK, 4)}, v{vL16}, {WS}, s36 offen sc1")
    b(f"buffer_load_dwordx4 {ar(aK+4, 4)}, v{vL16}, {WS}, s36 offen offset:1024 sc1")
    b("s_waitcnt vmcnt(0)")
    for q in range(2): b(mf32(vr(S[q], 16), ar(aK, 4), vr(QA[q], 4), 0))
    for q in range(2): b(mf32(vr(S[q], 16), ar(aK+4, 4), vr(QA[q]+4, 4), vr(S[q], 16)))
    b("s_nop 11")
    for q in range(2):
        for i in range(0, 16, 2): b(f"v_max3_f32 v{19+q}, v{19+q}, v{S[q]+i}, v{S[q]+i+1}")
    b("s_add_u32 s39, s39, 1")
    b("s_cmp_lt_u32 s39, 64")
    b("s_cbranch_scc1 L_FB")
    neg_max(b)
    b(f"s_lshl_b32 s{sKVt}, s{sT}, 15")
    b(f"s_add_u32 s{sKVsrc}, s{sKVbase}, s{sKVt}")
    b("s_barrier")
    for g in range(2):
        for s in kv_dma(0, g, ""): b(s[0] if isinstance(s, tuple) else s)
    b("s_waitcnt vmcnt(0)")
    b("s_barrier")
    b("s_branch L_ATT0")
    a.tail.append(b.text())

def fW4(fs, i, ct): return fs*32 + i*8 + ct*4
def p4_lds(g):
    return g*32768 if g < 4 else [131072, 0, 32768, 65536][g - 4]
def p4_reads(fs, g, grp):
    out = []
    base = p4_lds(g)
    for i in range(4):
        for ct in range(2):
            off = base % 65536 + (grp*4 + i)*2048
            v = vWo_r[2*(base // 65536) + ct]
            out.append(f"ds_read_b64_tr_b16 {ar(fW4(fs, i, ct), 2)}, v{v} offset:{off}")
            out.append(f"ds_read_b64_tr_b16 {ar(fW4(fs, i, ct)+2, 2)}, v{v} offset:{off+1024}")
    return out
def woa_dma(g, i):
    return [[f"s_add_u32 m0, s{sWv}, {p4_lds(g) + i*4096}"],
            [(f"buffer_load_dwordx4 v{vWo_g}, s[{sWoA}:{sWoA+3}], s{sWooff} offen lds", f"wo{g}"),
             f"s_add_u32 s{sWooff}, s{sWooff}, 65536", f"s_and_b32 s{sWooff}, s{sWooff}, 0x1fffff"]]
def oa_load(i):
    out = [(f"buffer_load_dwordx4 {oreg(i)}, v{vL16}, {WS}, s{sO} offen offset:{(i % 4)*1024} sc1", f"oa{i}")]
    if i % 4 == 3:
        out += [f"s_add_u32 s{sOoff}, s{sOoff}, 4096", f"s_and_b32 s{sOoff}, s{sOoff}, 0xffff", f"s_add_u32 s{sO}, s{sObase}, s{sOoff}"]
    return out

def phase4(a):
    o = a.opts
    a(f"s_add_u32 s{sObase}, s{sOrow}, {OA_OFF}")
    a(f"s_add_u32 s{sO}, s{sObase}, s{sOoff}")
    a(f"s_lshl_b32 s38, s{sSeq}, 7")
    a(f"s_lshl_b32 s39, s{sHead}, 2")
    a("s_add_u32 s38, s38, s39")
    a(f"s_add_u32 s35, s38, {F_OA}")
    a(f"s_add_u32 s47, s29, {F_OA}")
    a(f"s_lshl_b32 s36, s{sT4}, 9")
    a(f"s_lshl_b32 s37, s{sW}, 7")
    a("s_add_u32 s36, s36, s37")
    a(f"s_add_u32 s36, s36, {G_OFF}")
    a.emit((f"buffer_load_dword v{vGate}, v16, {WS}, s36 offen sc1", "gl"))
    a.emit(a.wait(["wob", "obl"]))
    a("s_barrier")
    for s in p4_reads(0, 0, 0): a(s)
    a("s_waitcnt lgkmcnt(0)")
    a.stamp("p4start")
    flag_at = o.get("oaflag_gap", 8)
    poll_at = o.get("oapoll_gap", 40)
    chk_at = o.get("oachk_gap", 56)
    oa_every = o.get("oa_every", 2)
    side = {}
    def put(k, l): side.setdefault(k, []).extend(l)
    put(flag_at, [a.wait(["oa"])]); put(flag_at + 1, flag_store(35, 20, "fOA"))
    k = flag_at + 2
    for i in range(24, 32):
        d = wob_dma(i, "wo3")
        put(k, d[0] + d[1]); put(k + 1, d[2]); k += 2
    kA = {4: k, 5: 32 + 26, 6: 64 + 26, 7: 96 + 26}
    kA = {4: k, 5: max(k + 16, 26), 6: 58, 7: 90}
    for g in range(4, 8):
        k = kA[g]
        for i in range(8):
            d = woa_dma(g, i)
            put(k, d[0]); put(k + 1, d[1]); k += 2
    put(poll_at, [(f"buffer_load_dword v21, v16, {WS}, s47 offen sc1", "pOA")])
    k = chk_at + 1
    for i in range(64):
        k = max(k, 2*i + 2)
        put(k, oa_load(i)); k += oa_every
    idx = 0
    for g in range(8):
        br = g // 4
        for grp in range(4):
            fs = grp & 1
            rd = p4_reads(1 - fs, g, grp + 1) if grp < 3 else (p4_reads(1 - fs, g + 1, 0) if g < 7 else [])
            for j in range(8):
                i, ct = j // 2, j % 2
                k16 = (g % 4)*16 + grp*4 + i
                if br == 1 and ct == 0:
                    n = a.vmn([f"oa{k16}"])
                    a(f"s_waitcnt vmcnt({n})")
                d = vr(ACC4[br][ct], 16)
                a(mf32(d, ar(fW4(fs, i, ct), 4), oreg(k16), 0 if k16 == 0 else d))
                for s in rd[3*j:3*j+3] if j < 5 else (rd[15:] if j == 5 else []): a(s)
                for s in side.pop(idx, []): a.emit(s)
                if idx == chk_at:
                    poll_check(a, "L_POA", 21, 16, 47, "pOA")
                    a.stamp("pOA")
                idx += 1
            if grp == 2 and g < 7:
                nxt = f"wo{g+1}"
                a.emit(a.wait([nxt], lgkm=True) if nxt in a.vm else "s_waitcnt lgkmcnt(0)")
                a("s_barrier")
            elif rd:
                a("s_waitcnt lgkmcnt(0)")
        if g == 3: a.stamp("p4B")
    assert not side, side.keys()
    a.stamp("p4A")
    a(f"v_sub_f32 v8, 1.0, v{vGate}")
    a(f"v_and_b32 v19, 31, v{vLANE}")
    a(f"v_lshrrev_b32 v20, 5, v{vLANE}")
    a("v_lshlrev_b32 v20, 4, v20")
    a("v_lshl_add_u32 v19, v19, 11, v20")
    a(f"s_lshl_b32 s36, s{sT4}, 18")
    a(f"s_lshl_b32 s37, s{sW}, 16")
    a("s_add_u32 s36, s36, s37")
    a(f"s_lshl_b32 s37, s{sC4}, 7")
    a("s_add_u32 s36, s36, s37")
    for ct in range(2):
        for i in range(16): a(f"v_mul_f32 v{ACC4[0][ct]+i}, v{ACC4[0][ct]+i}, v8")
    for ct in range(2):
        B_, A_ = ACC4[0][ct], ACC4[1][ct]
        for i in range(16): a(f"v_fma_f32 v{B_+i}, v{A_+i}, v{vGate}, v{B_+i}")
        pack(a, B_)
        a("s_nop 1")
        for k in (0, 2):
            a(f"v_permlane32_swap_b32 v{B_+2*k}, v{B_+2*k+2}")
            a(f"v_permlane32_swap_b32 v{B_+2*k+1}, v{B_+2*k+3}")
        for k in (0, 2):
            a.emit((f"buffer_store_dwordx4 {vr(B_+2*k, 4)}, v19, s[{sOutD}:{sOutD+3}], s36 offen offset:{ct*64 + k*16}", "out"))

def gen(opts):
    a = G(opts); a.tail = []
    setup(a); gemm1(a); e1(a); attention(a); phase4(a)
    if opts.get("stamp"):
        a.stamp("end")
        a("s_lshl_b32 s36, s2, 2")
        a(f"s_add_u32 s36, s36, s{sW}")
        a("s_lshl_b32 s36, s36, 8")
        a(f"s_add_u32 s36, s36, {STAMP_OFF}")
        a(f"v_lshlrev_b32 v2, 2, v{vLANE}")
        a(f"buffer_store_dword v{vSTAMP}, v2, {WS}, s36 offen")
    a("s_endpgm")
    for t in a.tail: a(t)
    head = f"""; gated mix of full MHA and dilated sliding-window attention: one fused kernel, 256 co-resident workgroups
; @launch grid=(256,1,1) block=(256,1,1) lds=163840
.amdgcn_target "amdgcn-amd-amdhsa--gfx950"
.text
.globl {KNAME}
.p2align 8
.type {KNAME},@function
{KNAME}:
"""
    tail = f"""L_END:
    s_endpgm
.section .rodata,"a"
.p2align 6
.amdhsa_kernel {KNAME}
  .amdhsa_next_free_vgpr 512
  .amdhsa_next_free_sgpr 102
  .amdhsa_accum_offset 256
  .amdhsa_group_segment_fixed_size 0
  .amdhsa_kernarg_size 80
  .amdhsa_user_sgpr_count 2
  .amdhsa_user_sgpr_kernarg_segment_ptr 1
  .amdhsa_system_sgpr_workgroup_id_x 1
.end_amdhsa_kernel
"""
    gen.names = a.names
    return head + a.text() + tail

if __name__ == "__main__":
    import hazard
    opts = {}
    for kv in sys.argv[2:]:
        k, v = kv.split("="); opts[k] = int(v)
    t = gen(opts)
    open(sys.argv[1], "w").write(t)
    print(len(hazard.check(t)), "hazards", gen.names)
```

```python
import sys, struct, math
from asmlib import *

KNAME = "gated_mix__softmax_full_mha__sliding_local_dilated__prompt_kernel"
def f2u(x): return struct.unpack("<I", struct.pack("<f", x))[0]
KV_OFF   = 0
OA_OFF   = 8 << 20
OB_OFF   = 12 << 20
HALO_OFF = 16 << 20
G_OFF    = 20 << 20
FLAG_OFF = 21 << 20
F_KV, F_H, F_OB, F_OA = FLAG_OFF, FLAG_OFF + 4096, FLAG_OFF + 8192, FLAG_OFF + 12288
STAMP_OFF = 0x8000000
OOB = 0x80000000
CSCALE = f2u(math.log2(math.e) / math.sqrt(32.0))
NEGBIG = f2u(-1e30)
X_SLOT = 16384; W_BASE = 49152; W_SLOT = 24576
KV_LDS = [98304, 131072]
sX, sWA, sWB, sWS = 4, 8, 12, 16
sW, sHP, sT, sRH, sHH = 20, 21, 22, 23, 24
sWoff, sXoff = 25, 26
sXw, sWv = 30, 34
sPF, sPFoff, sPFstr, sPFlim = 40, 44, 45, 46
sNONCE, sCS = 60, 61
sSTAMPI = 68
sPWoA, sPWoB, sPG, sPOut, sPDbg = 70, 72, 74, 76, 78
sKVsrc, sKVbase, sKVt, sKVdst = 80, 81, 82, 27
sPASS, sOst, sSpin = 83, 86, 87
sT4, sC4, sOoff, sWooff, sObase = 88, 89, 90, 91, 92
sHalo, sSeq, sO, sOrow, sHead = 93, 94, 95, 96, 97
sWoA, sWoB, sOutD = 4, 8, 12
sCode = 48
vLANE = 1
vXr = [2, 3, 4, 5]; vWr = [10, 11]; vWg = [12, 13, 14]; vXg = [15, 16, 17, 18]
vT = [19, 20, 21, 22, 23, 24, 25, 26]
vPF, vPFd, vL16, vSTAMP, vF0 = 27, 28, 29, 30, 31
vMc = 32
ACC0 = 64
def acc(blk, rt): return ACC0 + (blk*2 + rt)*16
QA = [64, 80]; KA = [96, 112]; VA = [128, 144]; QB = [160, 176]; KB = [192, 208]; VB = [224, 240]
NM = [96, 112]; S = [128, 144]; P = [72, 88]
vKV = [6, 7]
vWo_g = 2; vWo_r = [8, 9, 10, 11, 12, 13]
vGate, vGrow = 14, 15
HK = 200; HV = 232
def fX(s, rt): return s*32 + rt*4
def fW(s, blk): return s*32 + 8 + blk*4
aK, aV = 0, [8, 16]
aO = [32, 48]; aL = [64, 68]; aONE = 72
aGATE = 76
def oreg(i): return ar(76 + 4*i, 4) if i < 45 else vr(160 + 4*(i - 45), 4)
ACC4 = [[64, 80], [96, 112]]

def mf32(d, A, B, C): return f"v_mfma_f32_32x32x16_bf16 {d}, {A}, {B}, {C}"
def mf16(d, A, B, C): return f"v_mfma_f32_16x16x32_bf16 {d}, {A}, {B}, {C}"
WS = f"s[{sWS}:{sWS+3}]"

class G(Asm):
    def __init__(self, opts):
        super().__init__()
        self.opts = opts
        self.vm = []
        self.nstamp = 0
        self.names = []
    def emit(self, x):
        if callable(x): x = x()
        if x is None: return
        if isinstance(x, tuple):
            self(x[0]); self.vm.append(x[1])
        else:
            assert not (x.lstrip().startswith(("buffer_", "global_"))), x
            self(x)
    def vmn(self, tags):
        idx = [i for i, t in enumerate(self.vm) if t in tags]
        assert idx, tags
        n = len(self.vm) - 1 - max(idx)
        return min(n, 63)
    def wait(self, tags, lgkm=False):
        return lambda: f"s_waitcnt vmcnt({self.vmn(tags)})" + (" lgkmcnt(0)" if lgkm else "")
    def stamp(self, name):
        if not self.opts.get("stamp"): return
        self.names.append(name)
        a = self
        a("s_memtime s[66:67]")
        a("s_memrealtime s[64:65]")
        a("s_waitcnt lgkmcnt(0)")
        a(f"v_writelane_b32 v{vSTAMP}, s66, {self.nstamp}")
        a(f"v_writelane_b32 v{vSTAMP}, s64, {self.nstamp + 32}")
        self.nstamp += 1
        assert self.nstamp <= 32
    def inter(self, mains, sides):
        for i, m in enumerate(mains):
            if m is not None: self.emit(m)
            for s in sides.get(i, []): self.emit(s)

def srd(a, s, lo, hi, nbytes):
    a(f"s_mov_b32 s{s}, s{lo}")
    a(f"s_and_b32 s{s+1}, s{hi}, 0xffff")
    a(f"s_mov_b32 s{s+2}, {nbytes}")
    a(f"s_mov_b32 s{s+3}, 0x20000")

def pf_round(a):
    return [(f"buffer_load_dword v{vPFd}, v{vPF}, s[{sPF}:{sPF+3}], s{sPFoff} offen", "pf"),
            f"s_add_u32 s{sPFoff}, s{sPFoff}, s{sPFstr}"]

class P1:
    def __init__(self, a):
        self.a = a; self.woff = None; self.xoff = None
    def dma(self, piece):
        kind, j, p = piece
        pre = []
        if kind == "W":
            if self.woff != j:
                pre.append(f"s_mov_b32 s{sWoff}, {j*196608}"); self.woff = j
            s = sWA if p < 3 else sWB
            pre.append(f"s_add_u32 m0, s{sWv}, {W_BASE + (j % 4)*W_SLOT + p*4096}")
            return pre, (f"buffer_load_dwordx4 v{vWg[p % 3]}, s[{s}:{s+3}], s{sWoff} offen lds", f"W{j}")
        if self.xoff != j:
            pre.append(f"s_mov_b32 s{sXoff}, {j*128}"); self.xoff = j
        pre.append(f"s_add_u32 m0, s{sXw}, {(j % 3)*X_SLOT + p*1024}")
        return pre, (f"buffer_load_dwordx4 v{vXg[p]}, s[{sX}:{sX+3}], s{sXoff} offen lds", f"X{j}")

def frag_reads(fs, u, k16):
    kk = 2*(u & 1) + k16
    out = [f"ds_read_b128 {ar(fX(fs, rt), 4)}, v{vXr[kk]} offset:{((u >> 1) % 3)*X_SLOT + rt*4096}" for rt in range(2)]
    ws = u % 4
    for blk in range(6):
        off = (ws % 2)*W_SLOT + blk*4096 + k16*2048
        out.append(f"ds_read_b64_tr_b16 {ar(fW(fs, blk), 2)}, v{vWr[ws//2]} offset:{off}")
        out.append(f"ds_read_b64_tr_b16 {ar(fW(fs, blk)+2, 2)}, v{vWr[ws//2]} offset:{off+512}")
    return out

def g1_mfma(fs, blk, rt):
    d = vr(acc(blk, rt), 16)
    w, x = ar(fW(fs, blk), 4), ar(fX(fs, rt), 4)
    return mf32(d, x, w, d) if blk % 3 == 2 else mf32(d, w, x, d)

def setup(a):
    o = a.opts
    a("L_START:")
    a("s_cmp_ge_u32 s2, 256")
    a("s_cbranch_scc1 L_END")
    a.stamp("start")
    a("s_load_dwordx4 s[48:51], s[0:1], 0")
    a("s_load_dwordx2 s[52:53], s[0:1], 32")
    a("s_load_dwordx2 s[54:55], s[0:1], 72")
    a(f"s_load_dwordx2 s[{sPWoA}:{sPWoA+1}], s[0:1], 16")
    a(f"s_load_dwordx4 s[{sPWoB}:{sPWoB+3}], s[0:1], 40")
    a(f"s_load_dwordx4 s[{sPOut}:{sPOut+3}], s[0:1], 56")
    a(f"v_and_b32 v{vLANE}, 63, v0")
    a(f"v_lshrrev_b32 v{vT[0]}, 6, v0")
    a("s_and_b32 s3, s2, 7")
    a(f"v_readfirstlane_b32 s{sW}, v{vT[0]}")
    a("s_lshr_b32 s35, s2, 3")
    a("s_and_b32 s37, s3, 3")
    a("s_lshl_b32 s36, s37, 2")
    a("s_and_b32 s38, s35, 3")
    a(f"s_add_u32 s{sHP}, s36, s38")
    a("s_lshr_b32 s39, s3, 2")
    a("s_lshl_b32 s36, s39, 3")
    a("s_lshr_b32 s38, s35, 2")
    a(f"s_add_u32 s{sT}, s36, s38")
    a(f"s_and_b32 s{sRH}, s{sW}, 1")
    a(f"s_lshr_b32 s{sHH}, s{sW}, 1")
    t0, t1, t2 = vT[0], vT[1], vT[2]
    if o.get("pfx"):
        a("s_lshl_b32 s38, s35, 5")
    else:
        a("s_lshl_b32 s38, s37, 5")
        a("s_add_u32 s38, s38, s35")
        a("s_lshl_b32 s38, s38, 3")
    a("s_lshl_b32 s47, s39, 10")
    a("s_add_u32 s38, s38, s47")
    a(f"v_add_u32 v{t0}, s38, v{vLANE}")
    a(f"v_lshlrev_b32 v{t0}, 11, v{t0}")
    if o.get("pfmode", 1) == 0:
        a("s_lshl_b32 s39, s39, 5")
        a("s_add_u32 s39, s39, s35")
        a("s_mul_i32 s39, s39, 6144")
        a("s_lshl_b32 s38, s37, 9")
        a("s_add_u32 s39, s39, s38")
        a(f"v_lshrrev_b32 v{t1}, 2, v{vLANE}")
        a(f"v_lshlrev_b32 v{t1}, 11, v{t1}")
        a(f"v_and_b32 v{t2}, 3, v{vLANE}")
        a(f"v_lshlrev_b32 v{t2}, 7, v{t2}")
        a(f"v_add3_u32 v{t1}, v{t1}, v{t2}, s39")
    elif o.get("pfmode", 1) == 2:
        a("s_mul_i32 s39, s35, 12288")
        a("s_lshl_b32 s38, s37, 9")
        a("s_add_u32 s39, s39, s38")
        a(f"v_lshrrev_b32 v{t1}, 2, v{vLANE}")
        a(f"v_lshlrev_b32 v{t1}, 11, v{t1}")
        a(f"v_and_b32 v{t2}, 3, v{vLANE}")
        a(f"v_lshlrev_b32 v{t2}, 7, v{t2}")
        a(f"v_add3_u32 v{t1}, v{t1}, v{t2}, s39")
    else:
        a("s_mul_i32 s39, s2, 1536")
        a(f"v_lshlrev_b32 v{t1}, 7, v{vLANE}")
        a(f"v_add_u32 v{t1}, s39, v{t1}")
    a(f"s_mul_i32 s47, s35, {o.get('codelines', 20)}")
    a(f"v_add_u32 v{t2}, s47, v{vLANE}")
    a(f"v_lshlrev_b32 v{vT[7]}, 7, v{t2}")
    a(f"s_mov_b32 s{sPFstr}, 128")
    a(f"s_cmp_eq_u32 s{sW}, 0")
    a(f"s_cselect_b32 s{sPFstr}, s{sPFstr}, {64*6144}")
    a(f"s_cselect_b32 s38, {32 if o.get('pfx') else 8}, {24 if o.get('pfmode', 1) == 2 else 12}")
    a("s_cselect_b64 s[56:57], -1, 0")
    a(f"v_cndmask_b32 v{vPF}, v{t1}, v{t0}, s[56:57]")
    a(f"s_cmp_eq_u32 s{sW}, 3")
    a("s_cselect_b64 s[56:57], -1, 0")
    a(f"v_cndmask_b32 v{vPF}, v{vPF}, v{vT[7]}, s[56:57]")
    a(f"s_cselect_b32 s38, {o.get('codelines', 20)}, s38")
    a(f"s_cselect_b32 s{sPFstr}, 0x4000000, s{sPFstr}")
    a(f"v_cmp_gt_u32 vcc, s38, v{vLANE}")
    a(f"v_mov_b32 v{t2}, {OOB}")
    a(f"s_mov_b32 s{sPFoff}, 0")
    a(f"v_cndmask_b32 v{vPF}, v{t2}, v{vPF}, vcc")
    a(f"v_cmp_gt_u32 vcc, {o.get('codelines', 20)}, v{vLANE}")
    a("s_getpc_b64 s[58:59]")
    a("L_PC:")
    a("s_sub_u32 s58, s58, L_PC - L_START")
    a(f"v_cndmask_b32 v{vT[7]}, v{t2}, v{vT[7]}, vcc")
    a("s_subb_u32 s59, s59, 0")
    r, c, t0, t1 = vT[0], vT[1], vT[2], vT[3]
    a(f"v_lshrrev_b32 v{r}, 3, v{vLANE}")
    a(f"v_and_b32 v{c}, 7, v{vLANE}")
    a(f"v_lshlrev_b32 v{t0}, 1, v{r}")
    a(f"v_and_b32 v{t0}, 4, v{t0}")
    a(f"v_xor_b32 v{t0}, v{t0}, v{c}")
    a(f"v_lshlrev_b32 v{t0}, 4, v{t0}")
    a(f"v_mul_u32_u24 v{t1}, 6144, v{r}")
    a(f"v_add_u32 v{t0}, v{t0}, v{t1}")
    a(f"s_mul_i32 s36, s{sW}, {8*6144}")
    a(f"s_lshl_b32 s37, s{sHP}, 7")
    a("s_add_u32 s36, s36, s37")
    a(f"v_add_u32 v{vWg[0]}, s36, v{t0}")
    a(f"v_add_u32 v{vWg[1]}, 2048, v{vWg[0]}")
    a(f"v_add_u32 v{vWg[2]}, 4096, v{vWg[0]}")
    a(f"v_lshrrev_b32 v{t0}, 1, v{r}")
    a(f"v_xor_b32 v{t0}, v{t0}, v{c}")
    a(f"v_lshlrev_b32 v{t0}, 4, v{t0}")
    a(f"v_lshlrev_b32 v{t1}, 11, v{r}")
    a(f"v_add_u32 v{t0}, v{t0}, v{t1}")
    a(f"s_lshl_b32 s36, s{sT}, 7")
    a(f"s_lshl_b32 s37, s{sW}, 5")
    a("s_add_u32 s36, s36, s37")
    a("s_lshl_b32 s36, s36, 11")
    a(f"v_add_u32 v{vXg[0]}, s36, v{t0}")
    a(f"v_xor_b32 v{vXg[1]}, 64, v{vXg[0]}")
    a(f"v_add_u32 v{vXg[1]}, {8*2048}, v{vXg[1]}")
    a(f"v_add_u32 v{vXg[2]}, {16*2048}, v{vXg[0]}")
    a(f"v_add_u32 v{vXg[3]}, {16*2048}, v{vXg[1]}")
    a(f"s_lshl_b32 s{sWv}, s{sW}, 10")
    a(f"s_lshl_b32 s{sXw}, s{sW}, 12")
    a("s_waitcnt lgkmcnt(0)")
    a.stamp("karg")
    a(f"s_mov_b32 s{sPF+2}, {1024*3072*2}")
    a(f"s_cmp_eq_u32 s{sW}, 0")
    a(f"s_cselect_b32 s{sPF}, s48, s50")
    a(f"s_cselect_b32 s{sPF+1}, s49, s51")
    a(f"s_cselect_b32 s{sPF+2}, {2048*1024*2}, s{sPF+2}")
    a(f"s_cmp_eq_u32 s{sW}, 2")
    a(f"s_cselect_b32 s{sPF}, s52, s{sPF}")
    a(f"s_cselect_b32 s{sPF+1}, s53, s{sPF+1}")
    a(f"s_cmp_eq_u32 s{sW}, 3")
    a(f"s_cselect_b32 s{sPF}, s58, s{sPF}")
    a(f"s_cselect_b32 s{sPF+1}, s59, s{sPF+1}")
    a(f"s_cselect_b32 s{sPF+2}, L_END - L_START, s{sPF+2}")
    a(f"s_and_b32 s{sPF+1}, s{sPF+1}, 0xffff")
    a(f"s_mov_b32 s{sPF+3}, 0x20000")
    for i in range(o.get("pf0", 2)):
        for s in pf_round(a): a.emit(s)
    srd(a, sX, 48, 49, 2048*1024*2)
    srd(a, sWA, 50, 51, 1024*3072*2)
    srd(a, sWB, 52, 53, 1024*3072*2)

def fillers_prologue(a):
    L = []
    f = L.append
    f("s_mov_b32 s16, s54"); f("s_and_b32 s17, s55, 0xffff"); f("s_mov_b32 s18, 0x10000000"); f("s_mov_b32 s19, 0x20000")
    f(f"s_mov_b32 s{sCode}, s58"); f(f"s_and_b32 s{sCode+1}, s59, 0xffff"); f(f"s_mov_b32 s{sCode+2}, L_END - L_START"); f(f"s_mov_b32 s{sCode+3}, 0x20000")
    m, h, t0, t1, row = vT[0], vT[1], vT[2], vT[3], vT[4]
    f(f"v_and_b32 v{m}, 31, v{vLANE}")
    f(f"v_lshrrev_b32 v{h}, 5, v{vLANE}")
    f(f"v_lshrrev_b32 v{t0}, 1, v{m}")
    f(f"v_and_b32 v{t0}, 7, v{t0}")
    f(f"v_xor_b32 v{t0}, v{t0}, v{h}")
    f(f"v_lshlrev_b32 v{t0}, 4, v{t0}")
    f(f"v_lshlrev_b32 v{t1}, 7, v{m}")
    f(f"v_add_u32 v{t0}, v{t0}, v{t1}")
    f(f"s_lshl_b32 s36, s{sRH}, 13")
    f(f"v_add_u32 v{vXr[0]}, s36, v{t0}")
    for kk in range(1, 4):
        f(f"v_xor_b32 v{vXr[kk]}, {kk*32}, v{vXr[0]}")
    f(f"v_and_b32 v{m}, 15, v{vLANE}")
    f(f"v_lshrrev_b32 v{t0}, 2, v{m}")
    f(f"v_lshlrev_b32 v{t1}, 3, v{h}")
    f(f"v_add_u32 v{row}, v{t0}, v{t1}")
    f(f"v_lshrrev_b32 v{t0}, 1, v{row}")
    f(f"v_and_b32 v{t0}, 1, v{t0}")
    f(f"v_xor_b32 v{t0}, s{sHH}, v{t0}")
    f(f"v_lshlrev_b32 v{t0}, 6, v{t0}")
    f(f"v_lshlrev_b32 v{t1}, 7, v{row}")
    f(f"v_add_u32 v{t0}, v{t0}, v{t1}")
    f(f"v_and_b32 v{t1}, 16, v{vLANE}")
    f(f"v_lshlrev_b32 v{t1}, 1, v{t1}")
    f(f"v_add_u32 v{t0}, v{t0}, v{t1}")
    f(f"v_and_b32 v{t1}, 3, v{m}")
    f(f"v_lshlrev_b32 v{t1}, 3, v{t1}")
    f(f"v_add_u32 v{t0}, v{t0}, v{t1}")
    f(f"v_add_u32 v{vWr[0]}, {W_BASE}, v{t0}")
    f(f"v_add_u32 v{vWr[1]}, {W_BASE + 2*W_SLOT}, v{t0}")
    for r in range(ACC0, 256):
        f(f"v_mov_b32 v{r}, 0")
    return L

def fillers_late(a):
    L = []
    f = L.append
    q, b, t = vT[0], vT[1], vT[2]
    f(f"v_lshlrev_b32 v{vL16}, 4, v{vLANE}")
    f(f"v_and_b32 v{q}, 31, v{vLANE}")
    f(f"v_lshrrev_b32 v{b}, 5, v{vLANE}")
    f(f"v_lshlrev_b32 v{b}, 2, v{b}")
    f(f"v_sub_u32 v{b}, v{q}, v{b}")
    f(f"s_mov_b32 s36, {NEGBIG}")
    for i in range(24):
        r, add = (i, 0) if i < 16 else (i - 8, 32)
        d = vMc + i
        kv = 8*(r >> 2) + (r & 3)
        f(f"v_add_u32 v{d}, {add - kv}, v{b}")
        f(f"v_and_b32 v{d}, 0xfffffff1, v{d}")
        f(f"v_min_u32 v{d}, 1, v{d}")
        f(f"v_sub_u32 v{d}, 0, v{d}")
        f(f"v_and_b32 v{d}, s36, v{d}")
    f(f"v_lshrrev_b32 v{q}, 2, v{vLANE}")
    f(f"v_lshrrev_b32 v{t}, 4, v{vLANE}")
    f(f"v_xor_b32 v{q}, v{q}, v{t}")
    f(f"v_and_b32 v{q}, 1, v{q}")
    f(f"v_add_u32 v{q}, -1, v{q}")
    f(f"v_and_b32 v{q}, 0x3f803f80, v{q}")
    for i in range(4):
        f(f"v_accvgpr_write_b32 a{aONE+i}, v{q}")
    f(f"v_min_u32 v{vF0}, 1, v{vLANE}")
    f(f"v_lshlrev_b32 v{vF0}, 31, v{vF0}")
    f(f"s_mov_b32 s{sCS}, {CSCALE}"); f(f"s_mov_b32 s62, {CSCALE}"); f(f"s_mov_b32 s63, {CSCALE}")
    f(f"s_lshl_b32 s36, s{sHP}, 19")
    f(f"s_lshl_b32 s37, s{sW}, 13")
    f(f"s_lshl_b32 s38, s{sHH}, 14")
    f(f"s_lshl_b32 s39, s{sRH}, 13")
    f(f"s_add_u32 s{sKVdst}, s38, s39")
    f(f"s_add_u32 s{sKVbase}, s36, s{sKVdst}")
    f(f"s_lshl_b32 s{sKVt}, s{sT}, 15")
    f(f"s_add_u32 s{sKVsrc}, s{sKVbase}, s{sKVt}")
    f(f"s_add_u32 s36, s38, {KV_LDS[0]}")
    f(f"v_add_u32 v{vKV[0]}, s36, v{vL16}")
    f(f"v_add_u32 v{vKV[1]}, 32768, v{vKV[0]}")
    f(f"s_lshl_b32 s{sHead}, s{sHP}, 1")
    f(f"s_add_u32 s{sHead}, s{sHead}, s{sHH}")
    f(f"s_lshl_b32 s{sSeq}, s{sT}, 1")
    f(f"s_add_u32 s{sSeq}, s{sSeq}, s{sRH}")
    f(f"s_lshl_b32 s37, s{sSeq}, 6")
    f(f"s_add_u32 s37, s37, s{sHead}")
    f(f"s_lshl_b32 s{sOst}, s37, 11")
    f(f"s_lshl_b32 s38, s{sHead}, 5")
    f(f"s_add_u32 s38, s38, s{sSeq}")
    f(f"s_lshl_b32 s28, s38, 2")
    f(f"s_lshl_b32 s38, s38, 12")
    f(f"s_add_u32 s{sHalo}, s38, {HALO_OFF}")
    f(f"s_mov_b32 s{sPASS}, 0")
    return L

READ_GAPS = [0,0,1,1,2,2,3,3,4,5,6,7,8,9]
def gemm1(a):
    o = a.opts
    p1 = P1(a)
    W = lambda j, ps: [("W", j, p) for p in ps]
    X = lambda v, ps: [("X", v, p) for p in ps]
    pro = X(0, range(4)) + W(0, range(6)) + W(1, range(6))
    sched = {(0,0): X(1, range(4)) + W(2, [0,1]), (0,1): W(2, [2,3,4,5]) + W(3, [0,1]),
             (1,0): W(3, [2,3,4,5]) + W(4, [0,1]), (1,1): X(2, range(4)) + W(4, [2,3]),
             (2,0): W(4, [4,5]) + W(5, [0,1,2,3]), (2,1): W(5, [4,5]) + X(3, range(4)),
             (3,0): W(6, range(6))}
    for u in range(3, 28):
        v, p0 = ((u + 5)//2, 0) if u & 1 else ((u + 4)//2, 2)
        sched[(u, 1)] = W(u + 4, [0,1,2]) + (X(v, [p0]) if v < 16 else [])
        sched[(u + 1, 0)] = W(u + 4, [3,4,5]) + (X(v, [p0 + 1]) if v < 16 else [])
    for (u, hf), ps in sched.items():
        done = u - 1 if hf == 0 else u
        for k, j, p in ps:
            if k == "W": assert j < 4 or done >= j - 4, (u, hf, k, j)
            else: assert j < 3 or done >= 2*(j - 3) + 1, (u, hf, k, j)
    npf0 = o.get("pf0", 2)
    pfs = {}
    r = npf0
    for u in range(0, 32):
        while r < 16 and u >= max(0, 2*r - o.get("pfd", 8)) and pfs.get(u, 0) < 1:
            pfs[u] = pfs.get(u, 0) + 1; r += 1
    fil = fillers_prologue(a)
    per = (len(fil) + len(pro) - 1)//len(pro)
    for i, pc in enumerate(pro):
        pre, d = p1.dma(pc)
        for s in pre: a(s)
        chunk = fil[i*per:(i+1)*per]
        a(chunk[0] if chunk else "s_nop 0")
        a.emit(d)
        for s in chunk[1:]: a(s)
    a(f"s_or_b32 s36, s2, s{sW}")
    a("s_cmp_lg_u32 s36, 0")
    a("s_cbranch_scc1 L_NONONCE")
    a("s_memrealtime s[36:37]")
    a("v_mov_b32 v20, 0")
    a("s_waitcnt lgkmcnt(0)")
    a("s_or_b32 s36, s36, 1")
    a("v_mov_b32 v19, s36")
    a(f"global_store_dword v20, v19, s[{sPDbg}:{sPDbg+1}] sc1")
    a("L_NONONCE:")
    a.stamp("issued")
    a.emit(a.wait(["X0", "W0"]))
    a("s_barrier")
    a.stamp("first")
    for s in frag_reads(0, 0, 0): a(s)
    a("s_waitcnt lgkmcnt(0)")
    late = fillers_late(a)
    order = [(b, rt) for b in range(6) for rt in range(2)]
    for u in range(32):
        for hf in range(2):
            last = (u == 31 and hf == 1)
            reads = [] if last else (frag_reads(1, u, 1) if hf == 0 else frag_reads(0, u + 1, 0))
            sides = {}
            for g, rd in zip(READ_GAPS, reads): sides.setdefault(g, []).append(rd)
            ps = sched.get((u, hf), [])
            gaps = {4: [(1,2),(4,5),(7,8),(9,10)], 6: [(0,1),(2,3),(4,5),(6,7),(8,9),(10,11)]}
            gp = gaps[6] if len(ps) > 4 else gaps[4]
            for (g0, g1), pc in zip(gp, ps):
                pre, d = p1.dma(pc)
                sides.setdefault(g0, []).extend(pre)
                sides.setdefault(g1, []).insert(0, d)
            if hf == 0 and pfs.get(u):
                sides.setdefault(11, []).extend(pf_round(a))
            if u >= 6 and late and not last:
                for g in (5, 6, 8, 10):
                    for k in range(2):
                        if late: sides.setdefault(g, []).append(late.pop(0))
            if u == 28 and hf == 1:
                sides.setdefault(5, []).append((f"buffer_load_dword v{vPFd}, v{vT[7]}, s[{sCode}:{sCode+3}], 0 offen", "cpf"))
            if u == 30 and hf == 1:
                sides.setdefault(5, []).append("v_mov_b32 v19, 0")
                sides.setdefault(7, []).append((f"global_load_dword v21, v19, s[{sPDbg}:{sPDbg+1}] sc1", "nonce"))
            od = order
            if last: od = [(4,1),(5,1),(1,0),(2,0),(1,1),(2,1),(3,1),(4,0),(5,0),(3,0),(0,0),(0,1)]
            a.inter([g1_mfma(hf, b, rt) for b, rt in od], sides)
            if hf == 0:
                if u < 31:
                    need = [f"W{u+1}"] + ([f"X{(u+1)//2}"] if (u + 1) % 2 == 0 else [])
                    a.emit(a.wait(need, lgkm=True))
                else:
                    a("s_waitcnt lgkmcnt(0)")
                a("s_barrier")
            elif not last:
                a("s_waitcnt lgkmcnt(0)")
        if u % 8 == 7: a.stamp(f"g{u}")
    assert not late

def pack(a, base):
    for j in range(8):
        a(f"v_cvt_pk_bf16_f32 v{base+j}, v{base+2*j}, v{base+2*j+1}")

def local_tile(a, Q, Kc, Vc, Kp, Vp1, SC, SP, O, PC, PP, tmp, off, tag):
    m, t = tmp, tmp + 1
    a(mf32(vr(SC, 16), vr(Kc, 4), vr(Q, 4), vr(vMc, 16)))
    a(mf32(vr(SC, 16), vr(Kc+4, 4), vr(Q+4, 4), vr(SC, 16)))
    a(mf32(vr(SP, 16), vr(Kp, 4), vr(Q, 4), vr(vMc + 8, 16)))
    a(mf32(vr(SP, 16), vr(Kp+4, 4), vr(Q+4, 4), vr(SP, 16)))
    a("s_nop 9")
    vals = [SC + i for i in range(16)] + [SP + 8 + i for i in range(8)]
    a(f"v_max3_f32 v{m}, v{vals[0]}, v{vals[1]}, v{vals[2]}")
    for i in range(3, 23, 2):
        a(f"v_max3_f32 v{m}, v{m}, v{vals[i]}, v{vals[i+1]}")
    a(f"v_max_f32 v{m}, v{m}, v{vals[23]}")
    a(f"v_mov_b32 v{t}, v{m}")
    a("s_nop 1")
    a(f"v_permlane32_swap_b32 v{m}, v{t}")
    a(f"v_max_f32 v{m}, v{m}, v{t}")
    a(f"v_mul_f32 v{m}, s{sCS}, v{m}")
    for v in vals:
        a(f"v_fma_f32 v{v}, v{v}, s{sCS}, -v{m}")
    L = SP
    for i in range(10): a(f"v_exp_f32 v{vals[i]}, v{vals[i]}")
    for j in range(4): a(f"v_cvt_pk_bf16_f32 v{PC+j}, v{SC+2*j}, v{SC+2*j+1}")
    for i in range(10, 13): a(f"v_exp_f32 v{vals[i]}, v{vals[i]}")
    a(mf32(vr(O, 16), vr(Vc, 4), vr(PC, 4), 0))
    for i in range(13, 18): a(f"v_exp_f32 v{vals[i]}, v{vals[i]}")
    a(mf16(vr(L, 4), ar(aONE, 4), vr(PC, 4), 0))
    for j in range(4, 8): a(f"v_cvt_pk_bf16_f32 v{PC+j}, v{SC+2*j}, v{SC+2*j+1}")
    for i in range(18, 20): a(f"v_exp_f32 v{vals[i]}, v{vals[i]}")
    a(mf32(vr(O, 16), vr(Vc+4, 4), vr(PC+4, 4), vr(O, 16)))
    for i in range(20, 24): a(f"v_exp_f32 v{vals[i]}, v{vals[i]}")
    a(mf16(vr(L, 4), ar(aONE, 4), vr(PC+4, 4), vr(L, 4)))
    for j in range(4): a(f"v_cvt_pk_bf16_f32 v{PP+j}, v{SP+8+2*j}, v{SP+9+2*j}")
    a("s_nop 1")
    a(mf16(vr(L, 4), ar(aONE, 4), vr(PP, 4), vr(L, 4)))
    a(mf32(vr(O, 16), vr(Vp1, 4), vr(PP, 4), vr(O, 16)))
    a(f"s_add_u32 s36, s{sOst}, {OB_OFF + off}")
    a("s_nop 5")
    a(f"v_rcp_f32 v{m}, v{L}")
    a("s_nop 3")
    for i in range(16):
        a(f"v_mul_f32 v{O+i}, v{O+i}, v{m}")
    pack(a, O)
    a.emit((f"buffer_store_dwordx4 {vr(O, 4)}, v{vL16}, {WS}, s36 offen sc1", tag))
    a.emit((f"buffer_store_dwordx4 {vr(O+4, 4)}, v{vL16}, {WS}, s36 offen offset:1024 sc1", tag))

def flag_store(sreg, vtmp, tag):
    return [f"v_mov_b32 v{vtmp}, s{sNONCE}", (f"buffer_store_dword v{vtmp}, v{vF0}, {WS}, s{sreg} offen sc1", tag)]

def poll_check(a, name, vdst, vaddr, sreg, tag):
    a.emit(a.wait([tag]))
    a(f"v_cmp_ne_u32 vcc, s{sNONCE}, v{vdst}")
    a("s_nop 4")
    a(f"s_cbranch_vccnz {name}_S")
    a(f"{name}_R:")
    a.tail.append(f"""{name}_S:
    s_mov_b32 s{sSpin}, 0
{name}_L:
    buffer_load_dword v{vdst}, v{vaddr}, {WS}, s{sreg} offen sc1
    s_add_u32 s{sSpin}, s{sSpin}, 1
    s_waitcnt vmcnt(0)
    v_cmp_ne_u32 vcc, s{sNONCE}, v{vdst}
    s_cmp_lt_u32 s{sSpin}, 0x40000
    s_cbranch_scc0 {name}_R
    s_nop 2
    s_cbranch_vccnz {name}_L
    s_branch {name}_R""")

def e1(a):
    o = a.opts
    a(f"s_add_u32 s36, s{sKVdst}, {KV_LDS[0]}")
    a(f"v_add_u32 v22, s36, v{vL16}")
    a("s_nop 1")
    pack(a, KB[1]); pack(a, VB[1])
    a.emit((f"buffer_store_dwordx4 {vr(KB[1], 4)}, v{vL16}, {WS}, s{sHalo} offen sc1", "halo"))
    a.emit((f"buffer_store_dwordx4 {vr(KB[1]+4, 4)}, v{vL16}, {WS}, s{sHalo} offen offset:1024 sc1", "halo"))
    a.emit((f"buffer_store_dwordx4 {vr(VB[1]+4, 4)}, v{vL16}, {WS}, s{sHalo} offen offset:2048 sc1", "halo"))
    a(f"s_add_u32 s37, s{sKVsrc}, 4096")
    for rt in range(2):
        for (blk, f0) in ((KA[rt], 0), (VA[rt], 2)):
            pack(a, blk)
            for f in range(2):
                off = (f0 + f)*1024
                a.emit((f"buffer_store_dwordx4 {vr(blk+4*f, 4)}, v{vL16}, {WS}, s{sKVsrc if rt == 0 else 37} offen offset:{off} sc1", "kv"))
                a(f"ds_write_b128 v22, {vr(blk+4*f, 4)} offset:{rt*4096 + off}")
    a(f"s_lshl_b32 s36, s{sSeq}, 6")
    a(f"s_lshl_b32 s37, s{sHead}, 1")
    a("s_add_u32 s36, s36, s37")
    a(f"v_lshrrev_b32 v23, 5, v{vLANE}")
    a(f"v_add_u32 v{vGrow}, s36, v23")
    a(f"v_and_b32 v24, 31, v{vLANE}")
    a("v_lshlrev_b32 v24, 4, v24")
    a(f"v_lshl_add_u32 v23, v{vGrow}, 11, v24")
    srd(a, 56, sPG, sPG+1, 2048)
    for j in range(4):
        a.emit((f"buffer_load_dwordx4 {ar(aGATE+4*j, 4)}, v23, s[{sX}:{sX+3}], 0 offen offset:{512*j}", "gate"))
    for j in range(4):
        a.emit((f"buffer_load_dwordx4 {ar(aGATE+16+4*j, 4)}, v24, s[56:59], 0 offen offset:{512*j}", "gate"))
    pack(a, QB[1]); pack(a, KB[0]); pack(a, VB[0]); pack(a, QB[0])
    for q in QA:
        for j in range(8):
            a(f"v_pk_mul_f32 {vr(q+2*j, 2)}, {vr(q+2*j, 2)}, s[62:63]")
        pack(a, q)
    a.stamp("e1pack")
    a.emit(a.wait(["halo", "nonce"]))
    a(f"v_readfirstlane_b32 s{sNONCE}, v21")
    a(f"s_add_u32 s36, s28, {F_H}")
    a("s_nop 2")
    a(f"s_cmp_eq_u32 s{sNONCE}, 0")
    a("s_cbranch_scc1 L_NONCE_S")
    a("L_NONCE_R:")
    a.tail.append(f"""L_NONCE_S:
    s_mov_b32 s{sSpin}, 0
L_NONCE_L:
    global_load_dword v21, v19, s[{sPDbg}:{sPDbg+1}] sc1
    s_add_u32 s{sSpin}, s{sSpin}, 1
    s_waitcnt vmcnt(0)
    v_readfirstlane_b32 s{sNONCE}, v21
    s_cmp_lt_u32 s{sSpin}, 0x40000
    s_cbranch_scc0 L_NONCE_R
    s_nop 2
    s_cmp_eq_u32 s{sNONCE}, 0
    s_cbranch_scc1 L_NONCE_L
    s_branch L_NONCE_R""")
    for s in flag_store(36, 20, "fH"): a.emit(s)
    a.stamp("fH")
    local_tile(a, QB[1], KB[1], VB[1], KB[0], VB[0]+4, 96, 112, 128, 144, 152, 156, 65536, "ob1")
    a("s_waitcnt lgkmcnt(0)")
    a("s_barrier")
    a.stamp("loc1")

def kv_dma(slot, group, tag):
    out = [f"s_add_u32 m0, s{sKVdst}, {KV_LDS[slot] + group*4096}",
           f"s_add_u32 s36, s{sKVsrc}, {group*4096}"]
    for p in range(4):
        out.append((f"buffer_load_dwordx4 v{vL16}, {WS}, s36 offen offset:{p*1024} sc1 lds", tag))
    return out
def kv_advance():
    return [f"s_add_u32 s{sKVt}, s{sKVt}, 32768", f"s_and_b32 s{sKVt}, s{sKVt}, 0x7ffff", f"s_add_u32 s{sKVsrc}, s{sKVbase}, s{sKVt}"]

def H(a, q, vpar, qk=True, pv=True, pv_first=False, slots=None):
    slots = slots or {}
    o = 1 - q
    e = [f"v_exp_f32 v{S[q]+i}, v{S[q]+i}" for i in range(16)]
    c = [f"v_cvt_pk_bf16_f32 v{P[q]+j}, v{S[q]+2*j}, v{S[q]+2*j+1}" for j in range(8)]
    So, Oo, Lo = vr(S[o], 16), ar(aO[o], 16), ar(aL[o], 4)
    M = [mf32(So, ar(aK, 4), vr(QA[o], 4), vr(NM[o], 16)) if qk else None,
         mf32(So, ar(aK+4, 4), vr(QA[o]+4, 4), So) if qk else None,
         mf32(Oo, ar(aV[vpar], 4), vr(P[o], 4), 0 if pv_first else Oo) if pv else None,
         mf32(Oo, ar(aV[vpar]+4, 4), vr(P[o]+4, 4), Oo) if pv else None,
         mf16(Lo, ar(aONE, 4), vr(P[o], 4), 0 if pv_first else Lo) if pv else None,
         mf16(Lo, ar(aONE, 4), vr(P[o]+4, 4), Lo) if pv else None]
    V = [[e[0], e[1], e[2]], [e[3], c[0], c[1], e[4]], [e[5], e[6], e[7]], [c[2], c[3], e[8], e[9]],
         [e[10], e[11], c[4], c[5]], [e[12], e[13], e[14], e[15], c[6], c[7]]]
    if not pv: V[3] = ["s_nop 0"] + V[3]
    for i in range(6):
        if M[i]: a(M[i])
        for s in slots.get(i, []): a.emit(s)
        for s in V[i]: a(s)

def rdK(slot, off): return [f"ds_read_b128 {ar(aK, 4)}, v{vKV[slot]} offset:{off}", f"ds_read_b128 {ar(aK+4, 4)}, v{vKV[slot]} offset:{off+1024}"]
def rdV(par, slot, off): return [f"ds_read_b128 {ar(aV[par], 4)}, v{vKV[slot]} offset:{off+2048}", f"ds_read_b128 {ar(aV[par]+4, 4)}, v{vKV[slot]} offset:{off+3072}"]

FREE_A = [0, 3, 4]; FREE_B = [2, 3, 4, 5]
def tile(a, n, side=None, end_b=None):
    sa = {}; sb = {}
    if n < 63:
        m = n + 1
        k = rdK((m >> 2) & 1, (m & 3)*4096); v = rdV(m & 1, (m >> 2) & 1, (m & 3)*4096)
        sa[1] = [k[0]]; sa[2] = [k[1]]; sa[5] = ["s_waitcnt lgkmcnt(0)"]
        sb[0] = [v[0]]; sb[1] = [v[1]]
    if side is not None:
        for g in FREE_A:
            if side: sa.setdefault(g, []).extend(side.pop(0))
        for g in (FREE_B if end_b is None else FREE_B[:-1]):
            if side: sb.setdefault(g, []).extend(side.pop(0))
    if end_b: sb.setdefault(5, []).extend(end_b)
    H(a, 0, (n - 1) & 1, pv=(n != 0), pv_first=(n == 1), slots=sa)
    H(a, 1, n & 1, qk=(n < 63), pv_first=(n == 0), slots=sb)

def neg_max(a):
    for q in range(2): a(f"v_mov_b32 v{21+q}, v{19+q}")
    a("s_nop 0")
    for q in range(2): a(f"v_permlane32_swap_b32 v{19+q}, v{21+q}")
    for q in range(2): a(f"v_max_f32 v{19+q}, v{19+q}, v{21+q}")
    for q in range(2):
        for i in range(16): a(f"v_sub_f32 v{NM[q]+i}, 0, v{19+q}")

def gate_compute(a):
    z, t = 23, 24
    for i in range(16):
        a(f"v_accvgpr_read_b32 v{56+(i%4)}, a{aGATE+i}")
        a(f"v_accvgpr_read_b32 v{60+(i%4)}, a{aGATE+16+i}")
        a(f"v_dot2_f32_bf16 v{z}, v{56+(i%4)}, v{60+(i%4)}, {0 if i == 0 else 'v%d' % z}")
    a("s_nop 2")
    for sh in (8, 4, 2, 1):
        a(f"v_add_f32_dpp v{z}, v{z}, v{z} row_ror:{sh} row_mask:0xf bank_mask:0xf")
        a("s_nop 1")
    a(f"v_mov_b32 v{t}, v{z}")
    a("s_nop 1")
    a(f"v_permlane16_swap_b32 v{z}, v{t}")
    a(f"v_add_f32 v{z}, v{z}, v{t}")
    a(f"v_mul_f32 v{z}, {f2u(-math.log2(math.e))}, v{z}")
    a(f"v_exp_f32 v{z}, v{z}")
    a(f"v_and_b32 v{t}, 31, v{vLANE}")
    a(f"v_add_f32 v{z}, 1.0, v{z}")
    a(f"v_rcp_f32 v{z}, v{z}")
    a(f"v_min_u32 v{t}, 1, v{t}")
    a(f"v_lshlrev_b32 v{t}, 31, v{t}")
    a(f"v_lshl_or_b32 v{t}, v{vGrow}, 2, v{t}")
    a(f"s_mov_b32 s36, {G_OFF}")
    a.emit((f"buffer_store_dword v{z}, v{t}, {WS}, s36 offen sc1", "g"))

def p4_setup(a):
    srd(a, sWoA, sPWoA, sPWoA+1, 1024*1024*2)
    srd(a, sWoB, sPWoB, sPWoB+1, 1024*1024*2)
    srd(a, sOutD, sPOut, sPOut+1, 2048*1024*2)
    a("s_and_b32 s36, s2, 7")
    a("s_lshr_b32 s37, s2, 3")
    a(f"s_and_b32 s{sC4}, s37, 15")
    a("s_lshr_b32 s37, s37, 4")
    a("s_lshl_b32 s36, s36, 1")
    a(f"s_add_u32 s{sT4}, s36, s37")
    r, c, t0, t1 = 56, 57, 58, 59
    a(f"v_lshrrev_b32 v{r}, 3, v{vLANE}")
    a(f"v_and_b32 v{c}, 7, v{vLANE}")
    a(f"v_lshlrev_b32 v{t0}, 1, v{r}")
    a(f"v_and_b32 v{t0}, 4, v{t0}")
    a(f"v_xor_b32 v{t0}, v{t0}, v{c}")
    a(f"v_lshlrev_b32 v{t0}, 4, v{t0}")
    a(f"v_lshl_add_u32 v{t0}, v{r}, 11, v{t0}")
    a(f"s_lshl_b32 s36, s{sW}, 14")
    a(f"s_lshl_b32 s37, s{sC4}, 7")
    a("s_add_u32 s36, s36, s37")
    a(f"v_add_u32 v{vWo_g}, s36, v{t0}")
    a(f"v_and_b32 v{r}, 15, v{vLANE}")
    a(f"v_lshrrev_b32 v{t0}, 2, v{r}")
    a(f"v_lshrrev_b32 v{t1}, 5, v{vLANE}")
    a(f"v_lshl_add_u32 v{c}, v{t1}, 2, v{t0}")
    a(f"v_lshrrev_b32 v{t0}, 1, v{c}")
    a(f"v_and_b32 v{t0}, 1, v{t0}")
    a(f"v_lshlrev_b32 v{t0}, 6, v{t0}")
    a(f"v_lshl_add_u32 v{t0}, v{c}, 7, v{t0}")
    a(f"v_and_b32 v{t1}, 16, v{vLANE}")
    a(f"v_lshl_add_u32 v{t0}, v{t1}, 1, v{t0}")
    a(f"v_and_b32 v{t1}, 3, v{r}")
    a(f"v_lshl_add_u32 v{vWo_r[0]}, v{t1}, 3, v{t0}")
    a(f"v_xor_b32 v{vWo_r[1]}, 64, v{vWo_r[0]}")
    for b in (1, 2):
        for ct in range(2):
            a(f"v_add_u32 v{vWo_r[2*b+ct]}, {b*65536}, v{vWo_r[ct]}")
    a(f"s_lshl_b32 s36, s{sT4}, 2")
    a(f"s_add_u32 s36, s36, s{sW}")
    a(f"s_lshl_b32 s{sOrow}, s36, 16")
    a(f"s_lshr_b32 s36, s36, 1")
    a(f"s_lshl_b32 s29, s36, 7")
    a(f"s_lshl_b32 s{sOoff}, s{sC4}, 12")
    a(f"s_lshl_b32 s{sWooff}, s{sC4}, 17")
    a(f"v_and_b32 v16, 31, v{vLANE}")
    a("v_lshlrev_b32 v16, 2, v16")
    a(f"v_and_b32 v17, 15, v{vLANE}")
    a("v_lshlrev_b32 v17, 2, v17")

def wob_dma(i, tag):
    return [[f"s_mov_b32 s39, {i*65536}"], [f"s_add_u32 m0, s{sWv}, {i*4096}"],
            [(f"buffer_load_dwordx4 v{vWo_g}, s[{sWoB}:{sWoB+3}], s39 offen lds", tag)]]

def attention(a):
    o = a.opts
    a("L_ATT0:")
    for s in rdK(0, 0) + rdV(0, 0, 0): a(s)
    a(f"s_lshl_b32 s{sKVt}, s{sT}, 15")
    for s in kv_advance(): a(s)
    a(f"s_cmp_lg_u32 s{sPASS}, 0")
    a("s_waitcnt lgkmcnt(0)")
    a("s_cbranch_scc1 L_ATT1")
    for q in range(2): a(mf32(vr(S[q], 16), ar(aK, 4), vr(QA[q], 4), 0))
    for q in range(2): a(mf32(vr(S[q], 16), ar(aK+4, 4), vr(QA[q]+4, 4), vr(S[q], 16)))
    a("s_nop 10")
    for q in range(2):
        s, m = S[q], 19 + q
        a(f"v_max3_f32 v{m}, v{s}, v{s+1}, v{s+2}")
        for i in range(3, 15, 2): a(f"v_max3_f32 v{m}, v{m}, v{s+i}, v{s+i+1}")
        a(f"v_max_f32 v{m}, v{m}, v{s+15}")
    neg_max(a)
    a("L_ATT1:")
    a("s_nop 1")
    a(mf32(vr(S[0], 16), ar(aK, 4), vr(QA[0], 4), vr(NM[0], 16)))
    a(mf32(vr(S[0], 16), ar(aK+4, 4), vr(QA[0]+4, 4), vr(S[0], 16)))
    a(f"s_lshl_b32 s38, s{sHP}, 2")
    a(f"s_add_u32 s38, s38, s{sW}")
    a(f"s_lshl_b32 s38, s38, 6")
    a(f"s_add_u32 s31, s38, {F_KV}")
    a(f"s_lshl_b32 s38, s{sT}, 2")
    a(f"s_add_u32 s32, s31, s38")
    a(f"s_add_u32 s33, s28, {F_H - 4}")
    a(f"s_cmp_eq_u32 s{sSeq}, 0")
    a(f"s_cselect_b32 s38, 4, 0")
    a(f"s_add_u32 s33, s33, s38")
    a("v_mov_b32 v18, 0")
    a.stamp("att0")
    tile(a, 0); tile(a, 1)
    a.stamp("t01")
    a(f"s_cmp_lg_u32 s{sPASS}, 0")
    a("s_cbranch_scc1 L_A2")
    a.emit(a.wait(["kv"]))
    for s in flag_store(32, 20, "fKV"): a.emit(s)
    a.emit((f"buffer_load_dword v21, v18, {WS}, s33 offen sc1", "pH"))
    a("L_A2:")
    a.stamp("fKV")
    tile(a, 2)
    a(f"s_cmp_lg_u32 s{sPASS}, 0")
    a("s_cbranch_scc1 L_A3")
    poll_check(a, "L_PH", 21, 18, 33, "pH")
    a.stamp("pH")
    a(f"s_sub_u32 s38, s{sHalo}, 4096")
    a(f"s_cmp_eq_u32 s{sSeq}, 0")
    a(f"s_cselect_b32 s38, {OOB}, s38")
    a.emit((f"buffer_load_dwordx4 {vr(HK, 4)}, v{vL16}, {WS}, s38 offen sc1", "hl"))
    a.emit((f"buffer_load_dwordx4 {vr(HK+4, 4)}, v{vL16}, {WS}, s38 offen offset:1024 sc1", "hl"))
    a.emit((f"buffer_load_dwordx4 {vr(HV, 4)}, v{vL16}, {WS}, s38 offen offset:2048 sc1", "hl"))
    a("s_cbranch_scc0 L_MASKOK")
    for i in range(8): a(f"v_mov_b32 v{vMc+16+i}, {NEGBIG}")
    a("L_MASKOK:")
    p4_setup(a)
    a.emit((f"buffer_load_dword v21, v17, {WS}, s31 offen sc1", "pKV"))
    gate_compute(a)
    poll_check(a, "L_PKV", 21, 17, 31, "pKV")
    a("L_A3:")
    a.stamp("pKV")
    for g in range(2):
        for s in kv_dma(1, g, "c1"): a.emit(s)
    for s in kv_advance(): a(s)
    a(f"s_cmp_lg_u32 s{sPASS}, 0")
    a("s_cbranch_scc1 L_A4")
    a.emit(a.wait(["hl"]))
    local_tile(a, QB[0], KB[0], VB[0], HK, HV, 176, 208, 240, 168, 236, 23, 0, "ob0")
    a("s_branch L_A5")
    a("L_A4:")
    a("s_waitcnt vmcnt(0)")
    a("L_A5:")
    a.stamp("loc0")
    a.emit(a.wait(["c1"], lgkm=True))
    a("s_barrier")
    a.stamp("c1")
    wob = [i for i in range(24)]
    obl = [i for i in range(64)]
    if o.get('noside'): wob = wob[:1]; obl = obl[:1]
    ob_start = o.get("ob_start", 5)
    for c in range(15):
        side = []
        if c + 2 <= 15:
            d0, d1 = kv_dma(c % 2, 0, f"c{c+2}"), kv_dma(c % 2, 1, f"c{c+2}")
            side += [d0[0:1], d0[1:2]] + [[x] for x in d0[2:]] + [d1[0:1], d1[1:2]] + [[x] for x in d1[2:]] + [[x] for x in kv_advance()]
        if c == 1:
            side += [[f"s_lshl_b32 s38, s{sSeq}, 7"], [f"s_lshl_b32 s39, s{sHead}, 2"], ["s_add_u32 s38, s38, s39"],
                     [f"s_add_u32 s35, s38, {F_OB}"], flag_store(35, 20, "fOB")]
        if c == ob_start - 2:
            side += [[f"s_add_u32 s47, s29, {F_OB}"], [(f"buffer_load_dword v21, v16, {WS}, s47 offen sc1", "pOB")]]
        if c == o.get("cpf2", 11):
            side += [[(f"buffer_load_dword v{vPFd}, v{vT[7]}, s[{sCode}:{sCode+3}], 0 offen", "cpf")]]
        nslots = 4*7 - 1
        if c >= ob_start:
            k = min(len(obl), o.get("ob_per", 8))
            for _ in range(k):
                i = obl.pop(0)
                if i % 4 == 0: side.append([f"s_add_u32 s{sO}, s{sOrow}, {OB_OFF + i*1024}"])
                side.append([(f"buffer_load_dwordx4 {oreg(i)}, v{vL16}, {WS}, s{sO} offen offset:{(i % 4)*1024} sc1", "obl")])
        while wob and len(side) + 3 <= nslots:
            side += wob_dma(wob.pop(0), "wob")
        while len(side) > nslots:
            for k in range(len(side) - 1):
                if all(isinstance(x, str) and x.startswith("s_") and "m0" not in x for x in side[k]):
                    side[k+1] = side[k] + side[k+1]; side.pop(k); break
            else:
                raise Exception("slots")
        if c == ob_start - 1:
            poll_check(a, "L_POB", 21, 16, 47, "pOB")
        tile(a, 4*c + 3, side); tile(a, 4*c + 4, side); tile(a, 4*c + 5, side)
        tile(a, 4*c + 6, side, end_b=[a.wait([f"c{c+2}"], lgkm=True) if c + 2 <= 15 else "s_waitcnt lgkmcnt(0)", "s_barrier"])
        assert not side
        if c in (4, 9): a.stamp(f"c{c}")
    assert not wob and not obl, (wob, obl)
    tile(a, 63)
    a("s_nop 1")
    a(mf32(ar(aO[1], 16), ar(aV[1], 4), vr(P[1], 4), ar(aO[1], 16)))
    a(mf16(ar(aL[1], 4), ar(aONE, 4), vr(P[1], 4), ar(aL[1], 4)))
    a(mf32(ar(aO[1], 16), ar(aV[1]+4, 4), vr(P[1]+4, 4), ar(aO[1], 16)))
    a(mf16(ar(aL[1], 4), ar(aONE, 4), vr(P[1]+4, 4), ar(aL[1], 4)))
    a.stamp("attend")
    a(f"v_accvgpr_read_b32 v19, a{aL[0]}")
    for i in range(16): a(f"v_accvgpr_read_b32 v{S[0]+i}, a{aO[0]+i}")
    a(f"v_accvgpr_read_b32 v20, a{aL[1]}")
    a(f"s_mov_b32 s36, {f2u(2.0**40)}")
    a("v_rcp_f32 v23, v19")
    a("v_rcp_f32 v24, v20")
    a("v_cmp_nge_f32 s[38:39], s36, v19")
    a("v_cmp_nge_f32 vcc, s36, v20")
    for i in range(16): a(f"v_accvgpr_read_b32 v{S[1]+i}, a{aO[1]+i}")
    a("s_or_b64 vcc, vcc, s[38:39]")
    if o.get("force_fallback"): a("s_mov_b64 vcc, -1")
    a("s_cmp_lg_u64 vcc, 0")
    a("s_cselect_b32 s36, 1, 0")
    a(f"s_andn2_b32 s36, s36, s{sPASS}")
    a("v_mov_b32 v21, s36")
    a(f"s_lshl_b32 s37, s{sW}, 2")
    a(f"s_add_u32 s37, s37, {KV_LDS[1]}")
    a("v_mov_b32 v22, s37")
    a("ds_write_b32 v22, v21")
    for q in range(2):
        for i in range(16): a(f"v_mul_f32 v{S[q]+i}, v{S[q]+i}, v{23+q}")
        pack(a, S[q])
    a(f"v_mov_b32 v22, {KV_LDS[1]}")
    a("s_waitcnt lgkmcnt(0)")
    a("s_barrier")
    a("ds_read_b128 v[20:23], v22")
    a(f"s_add_u32 s36, s{sOst}, {OA_OFF}")
    a(f"s_add_u32 s37, s{sOst}, {OA_OFF + 65536}")
    a("s_waitcnt lgkmcnt(0)")
    a("v_or_b32 v20, v20, v21")
    a("v_or3_b32 v20, v20, v22, v23")
    a("s_nop 0")
    a("v_readfirstlane_b32 s38, v20")
    a("s_nop 3")
    a("s_cmp_lg_u32 s38, 0")
    a("s_cbranch_scc1 L_FALLBACK")
    for q in range(2):
        a.emit((f"buffer_store_dwordx4 {vr(S[q], 4)}, v{vL16}, {WS}, s{36+q} offen sc1", "oa"))
        a.emit((f"buffer_store_dwordx4 {vr(S[q]+4, 4)}, v{vL16}, {WS}, s{36+q} offen offset:1024 sc1", "oa"))
    b = Asm()
    b("L_FALLBACK:")
    b(f"s_mov_b32 s{sPASS}, 1")
    b(f"v_mov_b32 v19, {NEGBIG}")
    b(f"v_mov_b32 v20, {NEGBIG}")
    b(f"s_lshl_b32 s38, s{sHP}, 19")
    b(f"s_lshl_b32 s39, s{sHH}, 14")
    b("s_add_u32 s38, s38, s39")
    b("s_mov_b32 s39, 0")
    b("L_FB:")
    b("s_and_b32 s36, s39, 3")
    b("s_lshl_b32 s36, s36, 12")
    b("s_lshr_b32 s37, s39, 2")
    b("s_lshl_b32 s37, s37, 15")
    b("s_add_u32 s36, s36, s37")
    b("s_add_u32 s36, s36, s38")
    b(f"buffer_load_dwordx4 {ar(aK, 4)}, v{vL16}, {WS}, s36 offen sc1")
    b(f"buffer_load_dwordx4 {ar(aK+4, 4)}, v{vL16}, {WS}, s36 offen offset:1024 sc1")
    b("s_waitcnt vmcnt(0)")
    for q in range(2): b(mf32(vr(S[q], 16), ar(aK, 4), vr(QA[q], 4), 0))
    for q in range(2): b(mf32(vr(S[q], 16), ar(aK+4, 4), vr(QA[q]+4, 4), vr(S[q], 16)))
    b("s_nop 11")
    for q in range(2):
        for i in range(0, 16, 2): b(f"v_max3_f32 v{19+q}, v{19+q}, v{S[q]+i}, v{S[q]+i+1}")
    b("s_add_u32 s39, s39, 1")
    b("s_cmp_lt_u32 s39, 64")
    b("s_cbranch_scc1 L_FB")
    neg_max(b)
    b(f"s_lshl_b32 s{sKVt}, s{sT}, 15")
    b(f"s_add_u32 s{sKVsrc}, s{sKVbase}, s{sKVt}")
    b("s_barrier")
    for g in range(2):
        for s in kv_dma(0, g, ""): b(s[0] if isinstance(s, tuple) else s)
    b("s_waitcnt vmcnt(0)")
    b("s_barrier")
    b("s_branch L_ATT0")
    a.tail.append(b.text())

def fW4(fs, i, ct): return fs*32 + i*8 + ct*4
def p4_lds(g):
    return g*32768 if g < 4 else [131072, 0, 32768, 65536][g - 4]
def p4_reads(fs, g, grp):
    out = []
    base = p4_lds(g)
    for i in range(4):
        for ct in range(2):
            off = base % 65536 + (grp*4 + i)*2048
            v = vWo_r[2*(base // 65536) + ct]
            out.append(f"ds_read_b64_tr_b16 {ar(fW4(fs, i, ct), 2)}, v{v} offset:{off}")
            out.append(f"ds_read_b64_tr_b16 {ar(fW4(fs, i, ct)+2, 2)}, v{v} offset:{off+1024}")
    return out
def woa_dma(g, i):
    return [[f"s_add_u32 m0, s{sWv}, {p4_lds(g) + i*4096}"],
            [(f"buffer_load_dwordx4 v{vWo_g}, s[{sWoA}:{sWoA+3}], s{sWooff} offen lds", f"wo{g}"),
             f"s_add_u32 s{sWooff}, s{sWooff}, 65536", f"s_and_b32 s{sWooff}, s{sWooff}, 0x1fffff"]]
def oa_load(i):
    out = [(f"buffer_load_dwordx4 {oreg(i)}, v{vL16}, {WS}, s{sO} offen offset:{(i % 4)*1024} sc1", f"oa{i}")]
    if i % 4 == 3:
        out += [f"s_add_u32 s{sOoff}, s{sOoff}, 4096", f"s_and_b32 s{sOoff}, s{sOoff}, 0xffff", f"s_add_u32 s{sO}, s{sObase}, s{sOoff}"]
    return out

def phase4(a):
    o = a.opts
    a(f"s_add_u32 s{sObase}, s{sOrow}, {OA_OFF}")
    a(f"s_add_u32 s{sO}, s{sObase}, s{sOoff}")
    a(f"s_lshl_b32 s38, s{sSeq}, 7")
    a(f"s_lshl_b32 s39, s{sHead}, 2")
    a("s_add_u32 s38, s38, s39")
    a(f"s_add_u32 s35, s38, {F_OA}")
    a(f"s_add_u32 s47, s29, {F_OA}")
    a(f"s_lshl_b32 s36, s{sT4}, 9")
    a(f"s_lshl_b32 s37, s{sW}, 7")
    a("s_add_u32 s36, s36, s37")
    a(f"s_add_u32 s36, s36, {G_OFF}")
    a.emit((f"buffer_load_dword v{vGate}, v16, {WS}, s36 offen sc1", "gl"))
    a.emit(a.wait(["wob", "obl"]))
    a("s_barrier")
    for s in p4_reads(0, 0, 0): a(s)
    a("s_waitcnt lgkmcnt(0)")
    a.stamp("p4start")
    flag_at = o.get("oaflag_gap", 8)
    poll_at = o.get("oapoll_gap", 40)
    chk_at = o.get("oachk_gap", 56)
    oa_every = o.get("oa_every", 2)
    side = {}
    def put(k, l): side.setdefault(k, []).extend(l)
    put(flag_at, [a.wait(["oa"])]); put(flag_at + 1, flag_store(35, 20, "fOA"))
    k = flag_at + 2
    for i in range(24, 32):
        d = wob_dma(i, "wo3")
        put(k, d[0] + d[1]); put(k + 1, d[2]); k += 2
    kA = {4: k, 5: 32 + 26, 6: 64 + 26, 7: 96 + 26}
    kA = {4: k, 5: max(k + 16, 26), 6: 58, 7: 90}
    for g in range(4, 8):
        k = kA[g]
        for i in range(8):
            d = woa_dma(g, i)
            put(k, d[0]); put(k + 1, d[1]); k += 2
    put(poll_at, [(f"buffer_load_dword v21, v16, {WS}, s47 offen sc1", "pOA")])
    k = chk_at + 1
    for i in range(64):
        k = max(k, 2*i + 2)
        put(k, oa_load(i)); k += oa_every
    idx = 0
    for g in range(8):
        br = g // 4
        for grp in range(4):
            fs = grp & 1
            rd = p4_reads(1 - fs, g, grp + 1) if grp < 3 else (p4_reads(1 - fs, g + 1, 0) if g < 7 else [])
            for j in range(8):
                i, ct = j // 2, j % 2
                k16 = (g % 4)*16 + grp*4 + i
                if br == 1 and ct == 0:
                    n = a.vmn([f"oa{k16}"])
                    a(f"s_waitcnt vmcnt({n})")
                d = vr(ACC4[br][ct], 16)
                a(mf32(d, ar(fW4(fs, i, ct), 4), oreg(k16), 0 if k16 == 0 else d))
                for s in rd[3*j:3*j+3] if j < 5 else (rd[15:] if j == 5 else []): a(s)
                for s in side.pop(idx, []): a.emit(s)
                if idx == chk_at:
                    poll_check(a, "L_POA", 21, 16, 47, "pOA")
                    a.stamp("pOA")
                idx += 1
            if grp == 2 and g < 7:
                nxt = f"wo{g+1}"
                a.emit(a.wait([nxt], lgkm=True) if nxt in a.vm else "s_waitcnt lgkmcnt(0)")
                a("s_barrier")
            elif rd:
                a("s_waitcnt lgkmcnt(0)")
        if g == 3: a.stamp("p4B")
    assert not side, side.keys()
    a.stamp("p4A")
    a(f"v_sub_f32 v8, 1.0, v{vGate}")
    a(f"v_and_b32 v19, 31, v{vLANE}")
    a(f"v_lshrrev_b32 v20, 5, v{vLANE}")
    a("v_lshlrev_b32 v20, 4, v20")
    a("v_lshl_add_u32 v19, v19, 11, v20")
    a(f"s_lshl_b32 s36, s{sT4}, 18")
    a(f"s_lshl_b32 s37, s{sW}, 16")
    a("s_add_u32 s36, s36, s37")
    a(f"s_lshl_b32 s37, s{sC4}, 7")
    a("s_add_u32 s36, s36, s37")
    for ct in range(2):
        for i in range(16): a(f"v_mul_f32 v{ACC4[0][ct]+i}, v{ACC4[0][ct]+i}, v8")
    for ct in range(2):
        B_, A_ = ACC4[0][ct], ACC4[1][ct]
        for i in range(16): a(f"v_fma_f32 v{B_+i}, v{A_+i}, v{vGate}, v{B_+i}")
        pack(a, B_)
        a("s_nop 1")
        for k in (0, 2):
            a(f"v_permlane32_swap_b32 v{B_+2*k}, v{B_+2*k+2}")
            a(f"v_permlane32_swap_b32 v{B_+2*k+1}, v{B_+2*k+3}")
        for k in (0, 2):
            a.emit((f"buffer_store_dwordx4 {vr(B_+2*k, 4)}, v19, s[{sOutD}:{sOutD+3}], s36 offen offset:{ct*64 + k*16}", "out"))

def gen(opts):
    a = G(opts); a.tail = []
    setup(a); gemm1(a); e1(a); attention(a); phase4(a)
    if opts.get("dbgstamp"):
        a.stamp("end")
        sel = ["karg", "first", "g7", "g15", "g23", "g31", "loc1", "pKV", "c1", "c9", "attend", "pOA", "p4B", "p4A", "end"]
        a(f"s_cmp_lg_u32 s2, {opts['dbgstamp']-1}")
        a("s_cbranch_scc1 L_DBGX")
        a(f"s_cmp_lg_u32 s{sW}, 0")
        a("s_cbranch_scc1 L_DBGX")
        a(f"v_readlane_b32 s36, v{vSTAMP}, 32")
        for i, nm in enumerate(sel):
            a(f"v_readlane_b32 s37, v{vSTAMP}, {32 + a.names.index(nm)}")
            a("s_nop 3")
            a("s_sub_u32 s37, s37, s36")
            a("v_mov_b32 v2, s37")
            a("v_mov_b32 v3, 0")
            a(f"global_store_dword v3, v2, s[{sPDbg}:{sPDbg+1}] offset:{4*(i+1)}")
        a("L_DBGX:")
    elif opts.get("stamp"):
        a.stamp("end")
        a("s_lshl_b32 s36, s2, 2")
        a(f"s_add_u32 s36, s36, s{sW}")
        a("s_lshl_b32 s36, s36, 8")
        a(f"s_add_u32 s36, s36, {STAMP_OFF}")
        a(f"v_lshlrev_b32 v2, 2, v{vLANE}")
        a(f"buffer_store_dword v{vSTAMP}, v2, {WS}, s36 offen")
    a("s_endpgm")
    for t in a.tail: a(t)
    head = f"""; gated mix of full MHA and dilated sliding-window attention: one fused kernel, 256 co-resident workgroups
; @launch grid=(256,1,1) block=(256,1,1) lds=163840
.amdgcn_target "amdgcn-amd-amdhsa--gfx950"
.text
.globl {KNAME}
.p2align 8
.type {KNAME},@function
{KNAME}:
"""
    tail = f"""L_END:
    s_endpgm
.section .rodata,"a"
.p2align 6
.amdhsa_kernel {KNAME}
  .amdhsa_next_free_vgpr 512
  .amdhsa_next_free_sgpr 102
  .amdhsa_accum_offset 256
  .amdhsa_group_segment_fixed_size 0
  .amdhsa_kernarg_size 80
  .amdhsa_user_sgpr_count 2
  .amdhsa_user_sgpr_kernarg_segment_ptr 1
  .amdhsa_system_sgpr_workgroup_id_x 1
.end_amdhsa_kernel
"""
    gen.names = a.names
    return head + a.text() + tail

if __name__ == "__main__":
    import hazard
    opts = {}
    for kv in sys.argv[2:]:
        k, v = kv.split("="); opts[k] = int(v)
    t = gen(opts)
    open(sys.argv[1], "w").write(t)
    print(len(hazard.check(t)), "hazards", gen.names)
```

```python
import sys, struct, math
from asmlib import *

KNAME = "gated_mix__softmax_full_mha__sliding_local_dilated__prompt_kernel"
def f2u(x): return struct.unpack("<I", struct.pack("<f", x))[0]
KV_OFF   = 0
OA_OFF   = 8 << 20
OB_OFF   = 12 << 20
HALO_OFF = 16 << 20
G_OFF    = 20 << 20
FLAG_OFF = 21 << 20
F_KV, F_H, F_OB, F_OA = FLAG_OFF, FLAG_OFF + 4096, FLAG_OFF + 8192, FLAG_OFF + 12288
STAMP_OFF = 0x8000000
OOB = 0x80000000
CSCALE = f2u(math.log2(math.e) / math.sqrt(32.0))
NEGBIG = f2u(-1e30)
X_SLOT = 16384; W_BASE = 49152; W_SLOT = 24576
KV_LDS = [98304, 131072]
sX, sWA, sWB, sWS = 4, 8, 12, 16
sW, sHP, sT, sRH, sHH = 20, 21, 22, 23, 24
sWoff, sXoff = 25, 26
sXw, sWv = 30, 34
sPF, sPFoff, sPFstr, sPFlim = 40, 44, 45, 46
sNONCE, sCS = 60, 61
sSTAMPI = 68
sPWoA, sPWoB, sPG, sPOut, sPDbg = 70, 72, 74, 76, 78
sKVsrc, sKVbase, sKVt, sKVdst = 80, 81, 82, 27
sPASS, sOst, sSpin = 83, 86, 87
sT4, sC4, sOoff, sWooff, sObase = 88, 89, 90, 91, 92
sHalo, sSeq, sO, sOrow, sHead = 93, 94, 95, 96, 97
sWoA, sWoB, sOutD = 4, 8, 12
sCode = 48
vLANE = 1
vXr = [2, 3, 4, 5]; vWr = [10, 11]; vWg = [12, 13, 14]; vXg = [15, 16, 17, 18]
vT = [19, 20, 21, 22, 23, 24, 25, 26]
vPF, vPFd, vL16, vSTAMP, vF0 = 27, 28, 29, 30, 31
vMc = 32
ACC0 = 64
def acc(blk, rt): return ACC0 + (blk*2 + rt)*16
QA = [64, 80]; KA = [96, 112]; VA = [128, 144]; QB = [160, 176]; KB = [192, 208]; VB = [224, 240]
NM = [128, 144]; S = [176, 240]; P = [72, 88]
vKV = [6, 7]
vWo_g = 2; vWo_r = [3, 4, 10, 11, 12, 13]
vGate, vGrow = 14, 8
HK = 200; HV = 232
def fX(s, rt): return s*32 + rt*4
def fW(s, blk): return s*32 + 8 + blk*4
aK, aV = 0, [8, 16]
aO = [32, 48]; aL = [64, 68]; aONE = 72
aGATE = 76
OV = list(range(96, 128, 4)) + list(range(160, 176, 4)) + list(range(192, 240, 4))
def oreg(i): return ar(76 + 4*i, 4) if i < 45 else vr(OV[i - 45], 4)
ACC4 = [[64, 80], [128, 144]]
pKA = [96, 112]; pVA = [104, 120]; pQB = [160, 168]; pKB = [192, 208]; pVB = [224, 216]

def mf32(d, A, B, C): return f"v_mfma_f32_32x32x16_bf16 {d}, {A}, {B}, {C}"
def mf16(d, A, B, C): return f"v_mfma_f32_16x16x32_bf16 {d}, {A}, {B}, {C}"
WS = f"s[{sWS}:{sWS+3}]"

class G(Asm):
    def __init__(self, opts):
        super().__init__()
        self.opts = opts
        self.vm = []
        self.nstamp = 0
        self.names = []
    def emit(self, x):
        if callable(x): x = x()
        if x is None: return
        if isinstance(x, tuple):
            self(x[0]); self.vm.append(x[1])
        else:
            assert not (x.lstrip().startswith(("buffer_", "global_"))), x
            self(x)
    def vmn(self, tags):
        idx = [i for i, t in enumerate(self.vm) if t in tags]
        assert idx, tags
        n = len(self.vm) - 1 - max(idx)
        return min(n, 63)
    def wait(self, tags, lgkm=False):
        return lambda: f"s_waitcnt vmcnt({self.vmn(tags)})" + (" lgkmcnt(0)" if lgkm else "")
    def stamp(self, name):
        if not self.opts.get("stamp"): return
        self.names.append(name)
        a = self
        a("s_memtime s[66:67]")
        a("s_memrealtime s[64:65]")
        a("s_waitcnt lgkmcnt(0)")
        a(f"v_writelane_b32 v{vSTAMP}, s66, {self.nstamp}")
        a(f"v_writelane_b32 v{vSTAMP}, s64, {self.nstamp + 32}")
        self.nstamp += 1
        assert self.nstamp <= 32
    def inter(self, mains, sides):
        for i, m in enumerate(mains):
            if m is not None: self.emit(m)
            for s in sides.get(i, []): self.emit(s)

def srd(a, s, lo, hi, nbytes):
    a(f"s_mov_b32 s{s}, s{lo}")
    a(f"s_and_b32 s{s+1}, s{hi}, 0xffff")
    a(f"s_mov_b32 s{s+2}, {nbytes}")
    a(f"s_mov_b32 s{s+3}, 0x20000")

def pf_round(a):
    return [(f"buffer_load_dword v{vPFd}, v{vPF}, s[{sPF}:{sPF+3}], s{sPFoff} offen", "pf"),
            f"s_add_u32 s{sPFoff}, s{sPFoff}, s{sPFstr}"]

class P1:
    def __init__(self, a):
        self.a = a; self.woff = None; self.xoff = None
    def dma(self, piece):
        kind, j, p = piece
        pre = []
        if kind == "W":
            if self.woff != j:
                pre.append(f"s_mov_b32 s{sWoff}, {j*196608}"); self.woff = j
            s = sWA if p < 3 else sWB
            pre.append(f"s_add_u32 m0, s{sWv}, {W_BASE + (j % 4)*W_SLOT + p*4096}")
            return pre, (f"buffer_load_dwordx4 v{vWg[p % 3]}, s[{s}:{s+3}], s{sWoff} offen lds", f"W{j}")
        if self.xoff != j:
            pre.append(f"s_mov_b32 s{sXoff}, {j*128}"); self.xoff = j
        pre.append(f"s_add_u32 m0, s{sXw}, {(j % 3)*X_SLOT + p*1024}")
        return pre, (f"buffer_load_dwordx4 v{vXg[p]}, s[{sX}:{sX+3}], s{sXoff} offen lds", f"X{j}")

def frag_reads(fs, u, k16):
    kk = 2*(u & 1) + k16
    out = [f"ds_read_b128 {ar(fX(fs, rt), 4)}, v{vXr[kk]} offset:{((u >> 1) % 3)*X_SLOT + rt*4096}" for rt in range(2)]
    ws = u % 4
    for blk in range(6):
        off = (ws % 2)*W_SLOT + blk*4096 + k16*2048
        out.append(f"ds_read_b64_tr_b16 {ar(fW(fs, blk), 2)}, v{vWr[ws//2]} offset:{off}")
        out.append(f"ds_read_b64_tr_b16 {ar(fW(fs, blk)+2, 2)}, v{vWr[ws//2]} offset:{off+512}")
    return out

def g1_mfma(fs, blk, rt):
    d = vr(acc(blk, rt), 16)
    w, x = ar(fW(fs, blk), 4), ar(fX(fs, rt), 4)
    return mf32(d, x, w, d) if blk % 3 == 2 else mf32(d, w, x, d)

def setup(a):
    o = a.opts
    a("L_START:")
    a("s_cmp_ge_u32 s2, 256")
    a("s_cbranch_scc1 L_END")
    a.stamp("start")
    a("s_load_dwordx4 s[48:51], s[0:1], 0")
    a("s_load_dwordx2 s[52:53], s[0:1], 32")
    a("s_load_dwordx2 s[54:55], s[0:1], 72")
    a(f"s_load_dwordx2 s[{sPWoA}:{sPWoA+1}], s[0:1], 16")
    a(f"s_load_dwordx4 s[{sPWoB}:{sPWoB+3}], s[0:1], 40")
    a(f"s_load_dwordx4 s[{sPOut}:{sPOut+3}], s[0:1], 56")
    a(f"v_and_b32 v{vLANE}, 63, v0")
    a(f"v_lshrrev_b32 v{vT[0]}, 6, v0")
    a("s_and_b32 s3, s2, 7")
    a(f"v_readfirstlane_b32 s{sW}, v{vT[0]}")
    a("s_lshr_b32 s35, s2, 3")
    a("s_and_b32 s37, s3, 3")
    a("s_lshl_b32 s36, s37, 2")
    a("s_and_b32 s38, s35, 3")
    a(f"s_add_u32 s{sHP}, s36, s38")
    a("s_lshr_b32 s39, s3, 2")
    a("s_lshl_b32 s36, s39, 3")
    a("s_lshr_b32 s38, s35, 2")
    a(f"s_add_u32 s{sT}, s36, s38")
    a(f"s_and_b32 s{sRH}, s{sW}, 1")
    a(f"s_lshr_b32 s{sHH}, s{sW}, 1")
    t0, t1, t2 = vT[0], vT[1], vT[2]
    if o.get("pfx"):
        a("s_lshl_b32 s38, s35, 5")
    else:
        a("s_lshl_b32 s38, s37, 5")
        a("s_add_u32 s38, s38, s35")
        a("s_lshl_b32 s38, s38, 3")
    a("s_lshl_b32 s47, s39, 10")
    a("s_add_u32 s38, s38, s47")
    a(f"v_add_u32 v{t0}, s38, v{vLANE}")
    a(f"v_lshlrev_b32 v{t0}, 11, v{t0}")
    if o.get("pfmode", 1) == 0:
        a("s_lshl_b32 s39, s39, 5")
        a("s_add_u32 s39, s39, s35")
        a("s_mul_i32 s39, s39, 6144")
        a("s_lshl_b32 s38, s37, 9")
        a("s_add_u32 s39, s39, s38")
        a(f"v_lshrrev_b32 v{t1}, 2, v{vLANE}")
        a(f"v_lshlrev_b32 v{t1}, 11, v{t1}")
        a(f"v_and_b32 v{t2}, 3, v{vLANE}")
        a(f"v_lshlrev_b32 v{t2}, 7, v{t2}")
        a(f"v_add3_u32 v{t1}, v{t1}, v{t2}, s39")
    elif o.get("pfmode", 1) == 2:
        a("s_mul_i32 s39, s35, 12288")
        a("s_lshl_b32 s38, s37, 9")
        a("s_add_u32 s39, s39, s38")
        a(f"v_lshrrev_b32 v{t1}, 2, v{vLANE}")
        a(f"v_lshlrev_b32 v{t1}, 11, v{t1}")
        a(f"v_and_b32 v{t2}, 3, v{vLANE}")
        a(f"v_lshlrev_b32 v{t2}, 7, v{t2}")
        a(f"v_add3_u32 v{t1}, v{t1}, v{t2}, s39")
    else:
        a("s_mul_i32 s39, s2, 1536")
        a(f"v_lshlrev_b32 v{t1}, 7, v{vLANE}")
        a(f"v_add_u32 v{t1}, s39, v{t1}")
    a(f"s_mul_i32 s47, s35, {o.get('codelines', 20)}")
    a(f"v_add_u32 v{t2}, s47, v{vLANE}")
    a(f"v_lshlrev_b32 v{vT[7]}, 7, v{t2}")
    a(f"s_mov_b32 s{sPFstr}, 128")
    a(f"s_cmp_eq_u32 s{sW}, 0")
    a(f"s_cselect_b32 s{sPFstr}, s{sPFstr}, {64*6144}")
    a(f"s_cselect_b32 s38, {32 if o.get('pfx') else 8}, {24 if o.get('pfmode', 1) == 2 else 12}")
    a("s_cselect_b64 s[56:57], -1, 0")
    a(f"v_cndmask_b32 v{vPF}, v{t1}, v{t0}, s[56:57]")
    a(f"s_cmp_eq_u32 s{sW}, 3")
    a("s_cselect_b64 s[56:57], -1, 0")
    a(f"v_cndmask_b32 v{vPF}, v{vPF}, v{vT[7]}, s[56:57]")
    a(f"s_cselect_b32 s38, {o.get('codelines', 20)}, s38")
    a(f"s_cselect_b32 s{sPFstr}, 0x4000000, s{sPFstr}")
    a(f"v_cmp_gt_u32 vcc, s38, v{vLANE}")
    a(f"v_mov_b32 v{t2}, {OOB}")
    a(f"s_mov_b32 s{sPFoff}, 0")
    a(f"v_cndmask_b32 v{vPF}, v{t2}, v{vPF}, vcc")
    a(f"v_cmp_gt_u32 vcc, {o.get('codelines', 20)}, v{vLANE}")
    a("s_getpc_b64 s[58:59]")
    a("L_PC:")
    a("s_sub_u32 s58, s58, L_PC - L_START")
    a(f"v_cndmask_b32 v{vT[7]}, v{t2}, v{vT[7]}, vcc")
    a("s_subb_u32 s59, s59, 0")
    r, c, t0, t1 = vT[0], vT[1], vT[2], vT[3]
    a(f"v_lshrrev_b32 v{r}, 3, v{vLANE}")
    a(f"v_and_b32 v{c}, 7, v{vLANE}")
    a(f"v_lshlrev_b32 v{t0}, 1, v{r}")
    a(f"v_and_b32 v{t0}, 4, v{t0}")
    a(f"v_xor_b32 v{t0}, v{t0}, v{c}")
    a(f"v_lshlrev_b32 v{t0}, 4, v{t0}")
    a(f"v_mul_u32_u24 v{t1}, 6144, v{r}")
    a(f"v_add_u32 v{t0}, v{t0}, v{t1}")
    a(f"s_mul_i32 s36, s{sW}, {8*6144}")
    a(f"s_lshl_b32 s37, s{sHP}, 7")
    a("s_add_u32 s36, s36, s37")
    a(f"v_add_u32 v{vWg[0]}, s36, v{t0}")
    a(f"v_add_u32 v{vWg[1]}, 2048, v{vWg[0]}")
    a(f"v_add_u32 v{vWg[2]}, 4096, v{vWg[0]}")
    a(f"v_lshrrev_b32 v{t0}, 1, v{r}")
    a(f"v_xor_b32 v{t0}, v{t0}, v{c}")
    a(f"v_lshlrev_b32 v{t0}, 4, v{t0}")
    a(f"v_lshlrev_b32 v{t1}, 11, v{r}")
    a(f"v_add_u32 v{t0}, v{t0}, v{t1}")
    a(f"s_lshl_b32 s36, s{sT}, 7")
    a(f"s_lshl_b32 s37, s{sW}, 5")
    a("s_add_u32 s36, s36, s37")
    a("s_lshl_b32 s36, s36, 11")
    a(f"v_add_u32 v{vXg[0]}, s36, v{t0}")
    a(f"v_xor_b32 v{vXg[1]}, 64, v{vXg[0]}")
    a(f"v_add_u32 v{vXg[1]}, {8*2048}, v{vXg[1]}")
    a(f"v_add_u32 v{vXg[2]}, {16*2048}, v{vXg[0]}")
    a(f"v_add_u32 v{vXg[3]}, {16*2048}, v{vXg[1]}")
    a(f"s_lshl_b32 s{sWv}, s{sW}, 10")
    a(f"s_lshl_b32 s{sXw}, s{sW}, 12")
    a("s_waitcnt lgkmcnt(0)")
    a.stamp("karg")
    a(f"s_mov_b32 s{sPF+2}, {1024*3072*2}")
    a(f"s_cmp_eq_u32 s{sW}, 0")
    a(f"s_cselect_b32 s{sPF}, s48, s50")
    a(f"s_cselect_b32 s{sPF+1}, s49, s51")
    a(f"s_cselect_b32 s{sPF+2}, {2048*1024*2}, s{sPF+2}")
    a(f"s_cmp_eq_u32 s{sW}, 2")
    a(f"s_cselect_b32 s{sPF}, s52, s{sPF}")
    a(f"s_cselect_b32 s{sPF+1}, s53, s{sPF+1}")
    a(f"s_cmp_eq_u32 s{sW}, 3")
    a(f"s_cselect_b32 s{sPF}, s58, s{sPF}")
    a(f"s_cselect_b32 s{sPF+1}, s59, s{sPF+1}")
    a(f"s_cselect_b32 s{sPF+2}, L_END - L_START, s{sPF+2}")
    a(f"s_and_b32 s{sPF+1}, s{sPF+1}, 0xffff")
    a(f"s_mov_b32 s{sPF+3}, 0x20000")
    for i in range(o.get("pf0", 2)):
        for s in pf_round(a): a.emit(s)
    srd(a, sX, 48, 49, 2048*1024*2)
    srd(a, sWA, 50, 51, 1024*3072*2)
    srd(a, sWB, 52, 53, 1024*3072*2)

def fillers_prologue(a):
    L = []
    f = L.append
    f("s_mov_b32 s16, s54"); f("s_and_b32 s17, s55, 0xffff"); f("s_mov_b32 s18, 0x10000000"); f("s_mov_b32 s19, 0x20000")
    f(f"s_mov_b32 s{sCode}, s58"); f(f"s_and_b32 s{sCode+1}, s59, 0xffff"); f(f"s_mov_b32 s{sCode+2}, L_END - L_START"); f(f"s_mov_b32 s{sCode+3}, 0x20000")
    m, h, t0, t1, row = vT[0], vT[1], vT[2], vT[3], vT[4]
    f(f"v_and_b32 v{m}, 31, v{vLANE}")
    f(f"v_lshrrev_b32 v{h}, 5, v{vLANE}")
    f(f"v_lshrrev_b32 v{t0}, 1, v{m}")
    f(f"v_and_b32 v{t0}, 7, v{t0}")
    f(f"v_xor_b32 v{t0}, v{t0}, v{h}")
    f(f"v_lshlrev_b32 v{t0}, 4, v{t0}")
    f(f"v_lshlrev_b32 v{t1}, 7, v{m}")
    f(f"v_add_u32 v{t0}, v{t0}, v{t1}")
    f(f"s_lshl_b32 s36, s{sRH}, 13")
    f(f"v_add_u32 v{vXr[0]}, s36, v{t0}")
    for kk in range(1, 4):
        f(f"v_xor_b32 v{vXr[kk]}, {kk*32}, v{vXr[0]}")
    f(f"v_and_b32 v{m}, 15, v{vLANE}")
    f(f"v_lshrrev_b32 v{t0}, 2, v{m}")
    f(f"v_lshlrev_b32 v{t1}, 3, v{h}")
    f(f"v_add_u32 v{row}, v{t0}, v{t1}")
    f(f"v_lshrrev_b32 v{t0}, 1, v{row}")
    f(f"v_and_b32 v{t0}, 1, v{t0}")
    f(f"v_xor_b32 v{t0}, s{sHH}, v{t0}")
    f(f"v_lshlrev_b32 v{t0}, 6, v{t0}")
    f(f"v_lshlrev_b32 v{t1}, 7, v{row}")
    f(f"v_add_u32 v{t0}, v{t0}, v{t1}")
    f(f"v_and_b32 v{t1}, 16, v{vLANE}")
    f(f"v_lshlrev_b32 v{t1}, 1, v{t1}")
    f(f"v_add_u32 v{t0}, v{t0}, v{t1}")
    f(f"v_and_b32 v{t1}, 3, v{m}")
    f(f"v_lshlrev_b32 v{t1}, 3, v{t1}")
    f(f"v_add_u32 v{t0}, v{t0}, v{t1}")
    f(f"v_add_u32 v{vWr[0]}, {W_BASE}, v{t0}")
    f(f"v_add_u32 v{vWr[1]}, {W_BASE + 2*W_SLOT}, v{t0}")
    for r in range(ACC0, 256):
        f(f"v_mov_b32 v{r}, 0")
    return L

def fillers_late(a):
    L = []
    f = L.append
    q, b, t = vT[0], vT[1], vT[2]
    f(f"v_lshlrev_b32 v{vL16}, 4, v{vLANE}")
    f(f"v_and_b32 v{q}, 31, v{vLANE}")
    f(f"v_lshrrev_b32 v{b}, 5, v{vLANE}")
    f(f"v_lshlrev_b32 v{b}, 2, v{b}")
    f(f"v_sub_u32 v{b}, v{q}, v{b}")
    f(f"s_mov_b32 s36, {NEGBIG}")
    for i in range(24):
        r, add = (i, 0) if i < 16 else (i - 8, 32)
        d = vMc + i
        kv = 8*(r >> 2) + (r & 3)
        f(f"v_add_u32 v{d}, {add - kv}, v{b}")
        f(f"v_and_b32 v{d}, 0xfffffff1, v{d}")
        f(f"v_min_u32 v{d}, 1, v{d}")
        f(f"v_sub_u32 v{d}, 0, v{d}")
        f(f"v_and_b32 v{d}, s36, v{d}")
    f(f"v_lshrrev_b32 v{q}, 2, v{vLANE}")
    f(f"v_lshrrev_b32 v{t}, 4, v{vLANE}")
    f(f"v_xor_b32 v{q}, v{q}, v{t}")
    f(f"v_and_b32 v{q}, 1, v{q}")
    f(f"v_add_u32 v{q}, -1, v{q}")
    f(f"v_and_b32 v{q}, 0x3f803f80, v{q}")
    for i in range(4):
        f(f"v_accvgpr_write_b32 a{aONE+i}, v{q}")
    f(f"v_min_u32 v{vF0}, 1, v{vLANE}")
    f(f"v_lshlrev_b32 v{vF0}, 31, v{vF0}")
    f(f"s_mov_b32 s{sCS}, {CSCALE}"); f(f"s_mov_b32 s62, {CSCALE}"); f(f"s_mov_b32 s63, {CSCALE}")
    f(f"s_lshl_b32 s36, s{sHP}, 19")
    f(f"s_lshl_b32 s37, s{sW}, 13")
    f(f"s_lshl_b32 s38, s{sHH}, 14")
    f(f"s_lshl_b32 s39, s{sRH}, 13")
    f(f"s_add_u32 s{sKVdst}, s38, s39")
    f(f"s_add_u32 s{sKVbase}, s36, s{sKVdst}")
    f(f"s_lshl_b32 s{sKVt}, s{sT}, 15")
    f(f"s_add_u32 s{sKVsrc}, s{sKVbase}, s{sKVt}")
    f(f"s_add_u32 s36, s38, {KV_LDS[0]}")
    f(f"v_add_u32 v{vKV[0]}, s36, v{vL16}")
    f(f"v_add_u32 v{vKV[1]}, 32768, v{vKV[0]}")
    f(f"s_lshl_b32 s{sHead}, s{sHP}, 1")
    f(f"s_add_u32 s{sHead}, s{sHead}, s{sHH}")
    f(f"s_lshl_b32 s{sSeq}, s{sT}, 1")
    f(f"s_add_u32 s{sSeq}, s{sSeq}, s{sRH}")
    f(f"s_lshl_b32 s37, s{sSeq}, 6")
    f(f"s_add_u32 s37, s37, s{sHead}")
    f(f"s_lshl_b32 s{sOst}, s37, 11")
    f(f"s_lshl_b32 s38, s{sHead}, 5")
    f(f"s_add_u32 s38, s38, s{sSeq}")
    f(f"s_lshl_b32 s28, s38, 2")
    f(f"s_lshl_b32 s38, s38, 12")
    f(f"s_add_u32 s{sHalo}, s38, {HALO_OFF}")
    f(f"s_mov_b32 s{sPASS}, 0")
    f(f"s_add_u32 s{sKVp}, s54, s{sKVbase}\ns_addc_u32 s{sKVp+1}, s55, 0")
    f(f"s_cmp_lt_u32 s{sW}, 2\ns_cselect_b32 s{sPFW}, s{sPWoA}, s{sPWoB}\ns_cselect_b32 s{sPFW+1}, s{sPWoA+1}, s{sPWoB+1}")
    f(f"s_lshl_b32 s36, s2, 1"); f(f"s_add_u32 s36, s36, s{sRH}"); f("s_lshl_b32 s36, s36, 12")
    f(f"v_and_b32 v24, 7, v{vLANE}"); f("v_lshlrev_b32 v24, 7, v24"); f("v_add_u32 v23, s36, v24")
    f(f"v_and_b32 v24, 15, v{vLANE}"); f("v_lshlrev_b32 v24, 7, v24")
    f("s_lshr_b32 s36, s2, 3"); f("s_lshl_b32 s36, s36, 2"); f(f"s_add_u32 s36, s36, s{sW}"); f("s_lshl_b32 s36, s36, 14")
    f("v_add_u32 v0, s36, v24")
    f(f"s_lshl_b32 s36, s{sSeq}, 6")
    f(f"s_lshl_b32 s37, s{sHead}, 1")
    f("s_add_u32 s36, s36, s37")
    f(f"v_lshrrev_b32 v9, 5, v{vLANE}")
    f(f"v_add_u32 v{vGrow}, s36, v9")
    f(f"v_and_b32 v25, 31, v{vLANE}")
    f("v_lshlrev_b32 v25, 4, v25")
    f(f"v_lshl_add_u32 v9, v{vGrow}, 11, v25")
    f(f"s_mov_b32 s56, s{sPG}"); f(f"s_and_b32 s57, s{sPG+1}, 0xffff"); f("s_mov_b32 s58, 2048"); f("s_mov_b32 s59, 0x20000")
    f(f"s_lshl_b32 s38, s{sHP}, 2"); f(f"s_add_u32 s38, s38, s{sW}"); f("s_lshl_b32 s38, s38, 6")
    f(f"s_add_u32 s31, s38, {F_KV}"); f(f"s_lshl_b32 s38, s{sT}, 2"); f("s_add_u32 s32, s31, s38")
    f(f"s_add_u32 s33, s28, {F_H - 4}"); f(f"s_cmp_eq_u32 s{sSeq}, 0\ns_cselect_b32 s38, 4, 0"); f("s_add_u32 s33, s33, s38")
    return L

READ_GAPS = [0,0,1,1,2,2,3,3,4,5,6,7,8,9]
def gemm1(a):
    o = a.opts
    p1 = P1(a)
    W = lambda j, ps: [("W", j, p) for p in ps]
    X = lambda v, ps: [("X", v, p) for p in ps]
    pro = X(0, range(4)) + W(0, range(6)) + W(1, range(6))
    sched = {(0,0): X(1, range(4)) + W(2, [0,1]), (0,1): W(2, [2,3,4,5]) + W(3, [0,1]),
             (1,0): W(3, [2,3,4,5]) + W(4, [0,1]), (1,1): X(2, range(4)) + W(4, [2,3]),
             (2,0): W(4, [4,5]) + W(5, [0,1,2,3]), (2,1): W(5, [4,5]) + X(3, range(4)),
             (3,0): W(6, range(6))}
    for u in range(3, 28):
        v, p0 = ((u + 5)//2, 0) if u & 1 else ((u + 4)//2, 2)
        sched[(u, 1)] = W(u + 4, [0,1,2]) + (X(v, [p0]) if v < 16 else [])
        sched[(u + 1, 0)] = W(u + 4, [3,4,5]) + (X(v, [p0 + 1]) if v < 16 else [])
    for (u, hf), ps in sched.items():
        done = u - 1 if hf == 0 else u
        for k, j, p in ps:
            if k == "W": assert j < 4 or done >= j - 4, (u, hf, k, j)
            else: assert j < 3 or done >= 2*(j - 3) + 1, (u, hf, k, j)
    npf0 = o.get("pf0", 2)
    pfs = {}
    r = npf0
    for u in range(0, 32):
        while r < 16 and u >= max(0, 2*r - o.get("pfd", 8)) and pfs.get(u, 0) < 1:
            pfs[u] = pfs.get(u, 0) + 1; r += 1
    fil = fillers_prologue(a)
    per = (len(fil) + len(pro) - 1)//len(pro)
    for i, pc in enumerate(pro):
        pre, d = p1.dma(pc)
        for s in pre: a(s)
        chunk = fil[i*per:(i+1)*per]
        a(chunk[0] if chunk else "s_nop 0")
        a.emit(d)
        for s in chunk[1:]: a(s)
    a(f"s_or_b32 s36, s2, s{sW}")
    a("s_cmp_lg_u32 s36, 0")
    a("s_cbranch_scc1 L_NONONCE")
    a("s_memrealtime s[36:37]")
    a("v_mov_b32 v20, 0")
    a("s_waitcnt lgkmcnt(0)")
    a("s_or_b32 s36, s36, 1")
    a("v_mov_b32 v19, s36")
    a(f"global_store_dword v20, v19, s[{sPDbg}:{sPDbg+1}] sc1")
    a("L_NONONCE:")
    a.stamp("issued")
    a.emit(a.wait(["X0", "W0"]))
    a("s_barrier")
    a.stamp("first")
    for s in frag_reads(0, 0, 0): a(s)
    a("s_waitcnt lgkmcnt(0)")
    late = fillers_late(a)
    order = [(b, rt) for b in range(6) for rt in range(2)]
    for u in range(32):
        for hf in range(2):
            last = (u == 31 and hf == 1)
            reads = [] if last else (frag_reads(1, u, 1) if hf == 0 else frag_reads(0, u + 1, 0))
            sides = {}
            for g, rd in zip(READ_GAPS, reads): sides.setdefault(g, []).append(rd)
            ps = sched.get((u, hf), [])
            gaps = {4: [(1,2),(4,5),(7,8),(9,10)], 6: [(0,1),(2,3),(4,5),(6,7),(8,9),(10,11)]}
            gp = gaps[6] if len(ps) > 4 else gaps[4]
            for (g0, g1), pc in zip(gp, ps):
                pre, d = p1.dma(pc)
                sides.setdefault(g0, []).extend(pre)
                sides.setdefault(g1, []).insert(0, d)
            if hf == 0 and pfs.get(u):
                sides.setdefault(11, []).extend(pf_round(a))
            if u >= 6 and late and not last:
                for g in (5, 6, 8, 10):
                    for k in range(2):
                        if late: sides.setdefault(g, []).append(late.pop(0))
            if u == 28 and hf == 1:
                sides.setdefault(5, []).append((f"buffer_load_dword v{vPFd}, v{vT[7]}, s[{sCode}:{sCode+3}], 0 offen", "cpf"))
            w0 = o.get("wopf_step", 99)
            if u in (w0, w0 + 2, w0 + 4, w0 + 6) and hf == 0:
                sides.setdefault(11, []).append((f"global_load_dword v{vPFd}, v23, s[{sPFW}:{sPFW+1}] offset:{(u - w0)//2*1024}", "wopf"))
            if u == 30 and hf == 1:
                sides.setdefault(5, []).append("v_mov_b32 v19, 0")
                sides.setdefault(7, []).append((f"global_load_dword v21, v19, s[{sPDbg}:{sPDbg+1}] sc1", "nonce"))
            od = order
            if last: od = [(4,1),(5,1),(1,0),(2,0),(1,1),(2,1),(3,1),(4,0),(5,0),(3,0),(0,0),(0,1)]
            a.inter([g1_mfma(hf, b, rt) for b, rt in od], sides)
            if hf == 0:
                if u < 31:
                    need = [f"W{u+1}"] + ([f"X{(u+1)//2}"] if (u + 1) % 2 == 0 else [])
                    a.emit(a.wait(need, lgkm=True))
                else:
                    a("s_waitcnt lgkmcnt(0)")
                a("s_barrier")
            elif not last:
                a("s_waitcnt lgkmcnt(0)")
        if u % 8 == 7: a.stamp(f"g{u}")
    assert not late

def packl(base, out=None):
    out = base if out is None else out
    return [f"v_cvt_pk_bf16_f32 v{out+j}, v{base+2*j}, v{base+2*j+1}" for j in range(8)]
def pack(a, base, out=None):
    for s in packl(base, out): a(s)
class L(list):
    def __call__(self, s): self.append(s)
    def emit(self, s): self.append(s)
def weave(a, work, extra, first, every):
    nxt = first
    for i, w in enumerate(work):
        while extra and i >= nxt:
            for s in extra.pop(0): a.emit(s)
            nxt += every
        a.emit(w)

def local_tile(a, Q, Kc, Vc, Kp, Vp1, SC, SP, O, PC, PP, tmp, off, tag):
    m, t = tmp, tmp + 1
    a(mf32(vr(SC, 16), vr(Kc, 4), vr(Q, 4), vr(vMc, 16)))
    a(mf32(vr(SC, 16), vr(Kc+4, 4), vr(Q+4, 4), vr(SC, 16)))
    a(mf32(vr(SP, 16), vr(Kp, 4), vr(Q, 4), vr(vMc + 8, 16)))
    a(mf32(vr(SP, 16), vr(Kp+4, 4), vr(Q+4, 4), vr(SP, 16)))
    a("s_nop 9")
    vals = [SC + i for i in range(16)] + [SP + 8 + i for i in range(8)]
    a(f"v_max3_f32 v{m}, v{vals[0]}, v{vals[1]}, v{vals[2]}")
    for i in range(3, 23, 2):
        a(f"v_max3_f32 v{m}, v{m}, v{vals[i]}, v{vals[i+1]}")
    a(f"v_max_f32 v{m}, v{m}, v{vals[23]}")
    a(f"v_mov_b32 v{t}, v{m}")
    a("s_nop 1")
    a(f"v_permlane32_swap_b32 v{m}, v{t}")
    a(f"v_max_f32 v{m}, v{m}, v{t}")
    a(f"v_mul_f32 v{m}, s{sCS}, v{m}")
    for v in vals:
        a(f"v_fma_f32 v{v}, v{v}, s{sCS}, -v{m}")
    L = SP
    for i in range(10): a(f"v_exp_f32 v{vals[i]}, v{vals[i]}")
    for j in range(4): a(f"v_cvt_pk_bf16_f32 v{PC+j}, v{SC+2*j}, v{SC+2*j+1}")
    for i in range(10, 13): a(f"v_exp_f32 v{vals[i]}, v{vals[i]}")
    a(mf32(vr(O, 16), vr(Vc, 4), vr(PC, 4), 0))
    for i in range(13, 18): a(f"v_exp_f32 v{vals[i]}, v{vals[i]}")
    a(mf16(vr(L, 4), ar(aONE, 4), vr(PC, 4), 0))
    for j in range(4, 8): a(f"v_cvt_pk_bf16_f32 v{PC+j}, v{SC+2*j}, v{SC+2*j+1}")
    for i in range(18, 20): a(f"v_exp_f32 v{vals[i]}, v{vals[i]}")
    a(mf32(vr(O, 16), vr(Vc+4, 4), vr(PC+4, 4), vr(O, 16)))
    for i in range(20, 24): a(f"v_exp_f32 v{vals[i]}, v{vals[i]}")
    a(mf16(vr(L, 4), ar(aONE, 4), vr(PC+4, 4), vr(L, 4)))
    for j in range(4): a(f"v_cvt_pk_bf16_f32 v{PP+j}, v{SP+8+2*j}, v{SP+9+2*j}")
    a("s_nop 1")
    a(mf16(vr(L, 4), ar(aONE, 4), vr(PP, 4), vr(L, 4)))
    a(mf32(vr(O, 16), vr(Vp1, 4), vr(PP, 4), vr(O, 16)))
    a(f"s_add_u32 s36, s{sOst}, {OB_OFF + off}")
    a("s_nop 5")
    a(f"v_rcp_f32 v{m}, v{L}")
    a("s_nop 3")
    for i in range(16):
        a(f"v_mul_f32 v{O+i}, v{O+i}, v{m}")
    pack(a, O)
    a.emit((f"buffer_store_dwordx4 {vr(O, 4)}, v{vL16}, {WS}, s36 offen sc1", tag))
    a.emit((f"buffer_store_dwordx4 {vr(O+4, 4)}, v{vL16}, {WS}, s36 offen offset:1024 sc1", tag))

def flag_store(sreg, vtmp, tag):
    return [f"v_mov_b32 v{vtmp}, s{sNONCE}", (f"buffer_store_dword v{vtmp}, v{vF0}, {WS}, s{sreg} offen sc1", tag)]

def poll_check(a, name, vdst, vaddr, sreg, tag, mask=-1):
    a.emit(a.wait([tag]))
    a(f"v_cmp_ne_u32 vcc, s{sNONCE}, v{vdst}")
    a("s_nop 3")
    a(f"s_and_b32 s{sSpin}, vcc_lo, {mask}")
    a(f"s_cbranch_scc1 {name}_S")
    a(f"{name}_R:")
    a.tail.append(f"""{name}_S:
    s_mov_b32 s{sSpin}, 0
{name}_L:
    buffer_load_dword v{vdst}, v{vaddr}, {WS}, s{sreg} offen sc1
    s_add_u32 s{sSpin}, s{sSpin}, 1
    s_waitcnt vmcnt(0)
    v_cmp_ne_u32 vcc, s{sNONCE}, v{vdst}
    s_cmp_lt_u32 s{sSpin}, 0x40000
    s_cbranch_scc0 {name}_R
    s_nop 2
    s_and_b32 vcc_hi, vcc_lo, {mask}
    s_cbranch_scc1 {name}_L
    s_branch {name}_R""")

def e1(a):
    o = a.opts
    a(f"s_add_u32 s36, s{sKVdst}, {KV_LDS[0]}")
    a(f"v_add_u32 v22, s36, v{vL16}")
    a(f"v_add_u32 v{vL16b}, 4096, v{vL16}")
    a(f"s_add_u32 s25, s{sKVsrc}, 4096")
    a(f"s_mov_b32 s26, s{sKVsrc}")
    pack(a, KB[1], pKB[1]); pack(a, VB[1], pVB[1])
    st = []
    halo = [[(f"buffer_store_dwordx4 {vr(pKB[1], 4)}, v{vL16}, {WS}, s{sHalo} offen sc1", "halo")],
            [(f"buffer_store_dwordx4 {vr(pKB[1]+4, 4)}, v{vL16}, {WS}, s{sHalo} offen offset:1024 sc1", "halo")],
            [(f"buffer_store_dwordx4 {vr(pVB[1]+4, 4)}, v{vL16}, {WS}, s{sHalo} offen offset:2048 sc1", "halo")]]
    kv = []; dsw = []
    for rt in range(2):
        for (blk, f0) in ((pKA[rt], 0), (pVA[rt], 2)):
            for f in range(2):
                off = (f0 + f)*1024
                kv.append([(f"buffer_store_dwordx4 {vr(blk+4*f, 4)}, v{vL16}, {WS}, s{26 if rt == 0 else 25} offen offset:{off} sc1", "kv")])
                dsw.append([f"ds_write_b128 v22, {vr(blk+4*f, 4)} offset:{rt*4096 + off}"])
    for g in halo:
        for s in g: a.emit(s)
    w = packl(KA[0], pKA[0]) + packl(VA[0], pVA[0]) + packl(KA[1], pKA[1]) + packl(VA[1], pVA[1])
    weave(a, w, [kv.pop(0)], 10, 100)
    w = packl(QB[0], pQB[0]) + packl(QB[1], pQB[1]) + packl(KB[0], pKB[0]) + packl(VB[0], pVB[0])
    for q in QA:
        w += [f"v_pk_mul_f32 {vr(q+2*j, 2)}, {vr(q+2*j, 2)}, s[62:63]" for j in range(8)] + packl(q)
    weave(a, w, dsw, 0, 8)
    for s in kv.pop(0): a.emit(s)
    a.stamp("e1pack")
    lt = L()
    local_tile(lt, pQB[1], pKB[1], pVB[1], pKB[0], pVB[0]+4, 128, 144, 176, 240, 248, 252, 65536, "ob1")
    a.ob1 = lt[-2:]; lt = lt[:-2]
    weave(a, lt, [kv.pop(0), kv.pop(0)], o.get("st_a", 30), o.get("st_b", 60))
    a("s_mov_b32 s35, s36")
    a.ob1 = [(x[0].replace(", s36 ", ", s35 "), x[1]) for x in a.ob1]
    a.kv_left = kv
    a.stamp("loc1")
    a.emit(a.wait(["halo", "nonce"], lgkm=True))
    a(f"v_readfirstlane_b32 s{sNONCE}, v21")
    a(f"s_add_u32 s36, s28, {F_H}")
    a("s_barrier")
    a(f"s_cmp_eq_u32 s{sNONCE}, 0")
    a("s_cbranch_scc1 L_NONCE_S")
    a("L_NONCE_R:")
    a.tail.append(f"""L_NONCE_S:
    s_mov_b32 s{sSpin}, 0
L_NONCE_L:
    global_load_dword v21, v19, s[{sPDbg}:{sPDbg+1}] sc1
    s_add_u32 s{sSpin}, s{sSpin}, 1
    s_waitcnt vmcnt(0)
    v_readfirstlane_b32 s{sNONCE}, v21
    s_cmp_lt_u32 s{sSpin}, 0x40000
    s_cbranch_scc0 L_NONCE_R
    s_nop 2
    s_cmp_eq_u32 s{sNONCE}, 0
    s_cbranch_scc1 L_NONCE_L
    s_branch L_NONCE_R""")
    for s in flag_store(36, 20, "fH"): a.emit(s)
    for i in range(8): a(f"v_mov_b32 v{56+i}, v{176+i}")
    a.ob1 = [(a.ob1[0][0].replace("v[176:179]", "v[56:59]"), "ob1"), (a.ob1[1][0].replace("v[180:183]", "v[60:63]"), "ob1")]
    a.stamp("fH")

sKVp, sKVg, sOg, sPFW = 84, 98, 100, 52
vL16b = 5
def kv_dma(slot, group, tag):
    out = [f"s_add_u32 m0, s{sKVdst}, {KV_LDS[slot] + group*4096}"]
    for p in range(4):
        out.append((f"global_load_lds_dwordx4 v{vL16b if group else vL16}, s[{sKVg}:{sKVg+1}] offset:{p*1024} sc1", tag))
    return out
def kv_advance():
    return [f"s_add_u32 s{sKVt}, s{sKVt}, 32768", f"s_and_b32 s{sKVt}, s{sKVt}, 0x7ffff",
            f"s_add_u32 s{sKVg}, s{sKVp}, s{sKVt}", f"s_addc_u32 s{sKVg+1}, s{sKVp+1}, 0"]

def H(a, q, vpar, qk=True, pv=True, pv_first=False, slots=None):
    slots = slots or {}
    o = 1 - q
    e = [f"v_exp_f32 v{S[q]+i}, v{S[q]+i}" for i in range(16)]
    c = [f"v_cvt_pk_bf16_f32 v{P[q]+j}, v{S[q]+2*j}, v{S[q]+2*j+1}" for j in range(8)]
    So, Oo, Lo = vr(S[o], 16), ar(aO[o], 16), ar(aL[o], 4)
    M = [mf32(So, ar(aK, 4), vr(QA[o], 4), vr(NM[o], 16)) if qk else None,
         mf32(So, ar(aK+4, 4), vr(QA[o]+4, 4), So) if qk else None,
         mf32(Oo, ar(aV[vpar], 4), vr(P[o], 4), 0 if pv_first else Oo) if pv else None,
         mf32(Oo, ar(aV[vpar]+4, 4), vr(P[o]+4, 4), Oo) if pv else None,
         mf16(Lo, ar(aONE, 4), vr(P[o], 4), 0 if pv_first else Lo) if pv else None,
         mf16(Lo, ar(aONE, 4), vr(P[o]+4, 4), Lo) if pv else None]
    V = [[e[0], e[1], e[2]], [e[3], c[0], c[1], e[4]], [e[5], e[6], e[7]], [c[2], c[3], e[8], e[9]],
         [e[10], e[11], c[4], c[5]], [e[12], e[13], e[14], e[15], c[6], c[7]]]
    if not pv: V[3] = ["s_nop 0"] + V[3]
    for i in range(6):
        if M[i]: a(M[i])
        for s in slots.get(i, []): a.emit(s)
        for s in V[i]: a(s)

def rdK(slot, off): return [f"ds_read_b128 {ar(aK, 4)}, v{vKV[slot]} offset:{off}", f"ds_read_b128 {ar(aK+4, 4)}, v{vKV[slot]} offset:{off+1024}"]
def rdV(par, slot, off): return [f"ds_read_b128 {ar(aV[par], 4)}, v{vKV[slot]} offset:{off+2048}", f"ds_read_b128 {ar(aV[par]+4, 4)}, v{vKV[slot]} offset:{off+3072}"]

FREE_A = [0, 3, 4]; FREE_B = [2, 3, 4, 5]
TORD = [0, 2, 1, 3]
def tile(a, n, side=None, end_b=None):
    sa = {}; sb = {}
    if n < 63:
        m = n + 1
        k = rdK((m >> 2) & 1, TORD[m & 3]*4096); v = rdV(m & 1, (m >> 2) & 1, TORD[m & 3]*4096)
        sa[1] = [k[0]]; sa[2] = [k[1]]; sa[5] = ["s_waitcnt lgkmcnt(0)"]
        sb[0] = [v[0]]; sb[1] = [v[1]]
    if side is not None:
        for g in FREE_A:
            if side: sa.setdefault(g, []).extend(side.pop(0))
        for g in (FREE_B if end_b is None else FREE_B[:-1]):
            if side: sb.setdefault(g, []).extend(side.pop(0))
    if end_b: sb.setdefault(5, []).extend(end_b)
    H(a, 0, (n - 1) & 1, pv=(n != 0), pv_first=(n == 1), slots=sa)
    H(a, 1, n & 1, qk=(n < 63), pv_first=(n == 0), slots=sb)

def neg_max(a):
    for q in range(2): a(f"v_mov_b32 v{21+q}, v{19+q}")
    a("s_nop 0")
    for q in range(2): a(f"v_permlane32_swap_b32 v{19+q}, v{21+q}")
    for q in range(2): a(f"v_max_f32 v{19+q}, v{19+q}, v{21+q}")
    for q in range(2):
        for i in range(16): a(f"v_sub_f32 v{NM[q]+i}, 0, v{19+q}")

def gate_compute(a):
    z, t = 23, 24
    for i in range(16):
        a(f"v_accvgpr_read_b32 v{96+(i%4)}, a{aGATE+i}")
        a(f"v_accvgpr_read_b32 v{100+(i%4)}, a{aGATE+16+i}")
        a(f"v_dot2_f32_bf16 v{z}, v{96+(i%4)}, v{100+(i%4)}, {0 if i == 0 else 'v%d' % z}")
    a("s_nop 2")
    for sh in (8, 4, 2, 1):
        a(f"v_add_f32_dpp v{z}, v{z}, v{z} row_ror:{sh} row_mask:0xf bank_mask:0xf")
        a("s_nop 1")
    a(f"v_mov_b32 v{t}, v{z}")
    a("s_nop 1")
    a(f"v_permlane16_swap_b32 v{z}, v{t}")
    a(f"v_add_f32 v{z}, v{z}, v{t}")
    a(f"v_mul_f32 v{z}, {f2u(-math.log2(math.e))}, v{z}")
    a(f"v_exp_f32 v{z}, v{z}")
    a(f"v_and_b32 v{t}, 31, v{vLANE}")
    a(f"v_add_f32 v{z}, 1.0, v{z}")
    a(f"v_rcp_f32 v{z}, v{z}")
    a(f"v_min_u32 v{t}, 1, v{t}")
    a(f"v_lshlrev_b32 v{t}, 31, v{t}")
    a(f"v_lshl_or_b32 v{t}, v{vGrow}, 2, v{t}")
    a(f"s_mov_b32 s36, {G_OFF}")
    a.emit((f"buffer_store_dword v{z}, v{t}, {WS}, s36 offen sc1", "g"))

def p4_setup(a):
    srd(a, sWoA, sPWoA, sPWoA+1, 1024*1024*2)
    srd(a, sWoB, sPWoB, sPWoB+1, 1024*1024*2)
    srd(a, sOutD, sPOut, sPOut+1, 2048*1024*2)
    a("s_and_b32 s36, s2, 7")
    a("s_lshr_b32 s37, s2, 3")
    a(f"s_and_b32 s{sC4}, s37, 15")
    a("s_lshr_b32 s37, s37, 4")
    a("s_lshl_b32 s36, s36, 1")
    a(f"s_add_u32 s{sT4}, s36, s37")
    r, c, t0, t1 = 104, 105, 106, 107
    a(f"v_lshrrev_b32 v{r}, 3, v{vLANE}")
    a(f"v_and_b32 v{c}, 7, v{vLANE}")
    a(f"v_lshlrev_b32 v{t0}, 1, v{r}")
    a(f"v_and_b32 v{t0}, 4, v{t0}")
    a(f"v_xor_b32 v{t0}, v{t0}, v{c}")
    a(f"v_lshlrev_b32 v{t0}, 4, v{t0}")
    a(f"v_lshl_add_u32 v{t0}, v{r}, 11, v{t0}")
    a(f"s_lshl_b32 s36, s{sW}, 14")
    a(f"s_lshl_b32 s37, s{sC4}, 7")
    a("s_add_u32 s36, s36, s37")
    a(f"v_add_u32 v{vWo_g}, s36, v{t0}")
    a(f"v_and_b32 v{r}, 15, v{vLANE}")
    a(f"v_lshrrev_b32 v{t0}, 2, v{r}")
    a(f"v_lshrrev_b32 v{t1}, 5, v{vLANE}")
    a(f"v_lshl_add_u32 v{c}, v{t1}, 2, v{t0}")
    a(f"v_lshrrev_b32 v{t0}, 1, v{c}")
    a(f"v_and_b32 v{t0}, 1, v{t0}")
    a(f"v_lshlrev_b32 v{t0}, 6, v{t0}")
    a(f"v_lshl_add_u32 v{t0}, v{c}, 7, v{t0}")
    a(f"v_and_b32 v{t1}, 16, v{vLANE}")
    a(f"v_lshl_add_u32 v{t0}, v{t1}, 1, v{t0}")
    a(f"v_and_b32 v{t1}, 3, v{r}")
    a(f"v_lshl_add_u32 v{vWo_r[0]}, v{t1}, 3, v{t0}")
    a(f"v_xor_b32 v{vWo_r[1]}, 64, v{vWo_r[0]}")
    for b in (1, 2):
        for ct in range(2):
            a(f"v_add_u32 v{vWo_r[2*b+ct]}, {b*65536}, v{vWo_r[ct]}")
    a(f"s_lshl_b32 s36, s{sT4}, 2")
    a(f"s_add_u32 s36, s36, s{sW}")
    a(f"s_lshl_b32 s{sOrow}, s36, 16")
    a(f"s_lshr_b32 s36, s36, 1")
    a(f"s_lshl_b32 s29, s36, 7")
    a(f"s_lshl_b32 s{sOoff}, s{sC4}, 12")
    a(f"s_lshl_b32 s{sWooff}, s{sC4}, 17")
    a(f"v_and_b32 v16, 31, v{vLANE}")
    a("v_lshlrev_b32 v16, 2, v16")
    a(f"s_add_u32 s36, s{sT}, 1")
    a(f"v_add_u32 v17, s36, v{vLANE}")
    a("v_and_b32 v17, 15, v17")
    a("v_lshlrev_b32 v17, 2, v17")
    a(f"s_add_u32 s36, s{sOrow}, {OB_OFF}")
    a(f"s_add_u32 s{sOg}, s54, s36")
    a(f"s_addc_u32 s{sOg+1}, s55, 0")

def wob_dma(i, tag):
    return [[f"s_mov_b32 s39, {i*65536}"], [f"s_add_u32 m0, s{sWv}, {i*4096}"],
            [(f"buffer_load_dwordx4 v{vWo_g}, s[{sWoB}:{sWoB+3}], s39 offen lds", tag)]]

def attention(a):
    o = a.opts
    a("L_ATT0:")
    for s in rdK(0, 0) + rdV(0, 0, 0): a(s)
    a(f"s_lshl_b32 s{sKVt}, s{sT}, 15")
    for s in kv_advance(): a(s)
    a(f"s_cmp_lg_u32 s{sPASS}, 0")
    a("s_waitcnt lgkmcnt(0)")
    a("s_cbranch_scc1 L_ATT1")
    for q in range(2): a(mf32(vr(S[q], 16), ar(aK, 4), vr(QA[q], 4), 0))
    for q in range(2): a(mf32(vr(S[q], 16), ar(aK+4, 4), vr(QA[q]+4, 4), vr(S[q], 16)))
    kv = a.kv_left
    for s in kv.pop(0): a.emit(s)
    a("s_nop 9")
    for q in range(2):
        s, m = S[q], 19 + q
        a(f"v_max3_f32 v{m}, v{s}, v{s+1}, v{s+2}")
        for i in range(3, 15, 2): a(f"v_max3_f32 v{m}, v{m}, v{s+i}, v{s+i+1}")
        a(f"v_max_f32 v{m}, v{m}, v{s+15}")
    neg_max(a)
    a("L_ATT1:")
    a("s_nop 1")
    a(mf32(vr(S[0], 16), ar(aK, 4), vr(QA[0], 4), vr(NM[0], 16)))
    a(mf32(vr(S[0], 16), ar(aK+4, 4), vr(QA[0]+4, 4), vr(S[0], 16)))
    a("v_mov_b32 v18, 0")
    a("s_nop 9")
    a.stamp("att0")
    gl = [[(f"buffer_load_dwordx4 {ar(aGATE+4*j, 4)}, v9, s[{sX}:{sX+3}], 0 offen offset:{512*j}", "gate")] for j in range(4)]
    gl += [[(f"buffer_load_dwordx4 {ar(aGATE+16+4*j, 4)}, v25, s[56:59], 0 offen offset:{512*j}", "gate")] for j in range(4)]
    pH = [(f"buffer_load_dword v21, v18, {WS}, s33 offen sc1", "pH")]
    tile(a, 0, [kv.pop(0), [], [], kv.pop(0), [], [], kv.pop(0)])
    tile(a, 1, [pH, gl[0], gl[1], gl[2], gl[3], gl[4], gl[5]])
    a.stamp("t01")
    if o.get("fkv_early", 1):
        fs_ = flag_store(32, 20, "fKV")
        tile(a, 2, [gl[6], gl[7], [a.wait(["kv"])] + fs_])
        a.stamp("t2")
    else:
        tile(a, 2, [gl[6], gl[7]])
        a.stamp("t2")
    a(f"s_cmp_lg_u32 s{sPASS}, 0")
    a("s_cbranch_scc1 L_A3")
    if not o.get("fkv_early", 1):
        a.emit(a.wait(["kv"]))
        for s in flag_store(32, 20, "fKV"): a.emit(s)
    a.emit(a.wait(["kv", "gate"]))
    a.stamp("fKV")
    poll_check(a, "L_PH", 21, 18, 33, "pH")
    a(f"s_sub_u32 s38, s{sHalo}, 4096")
    a(f"s_cmp_eq_u32 s{sSeq}, 0")
    a(f"s_cselect_b32 s38, {OOB}, s38")
    a.emit((f"buffer_load_dwordx4 {vr(HK, 4)}, v{vL16}, {WS}, s38 offen sc1", "hl"))
    a.emit((f"buffer_load_dwordx4 {vr(HK+4, 4)}, v{vL16}, {WS}, s38 offen offset:1024 sc1", "hl"))
    a.emit((f"buffer_load_dwordx4 {vr(HV, 4)}, v{vL16}, {WS}, s38 offen offset:2048 sc1", "hl"))
    a("s_cbranch_scc0 L_MASKOK")
    for i in range(8): a(f"v_mov_b32 v{vMc+16+i}, {NEGBIG}")
    a("L_MASKOK:")
    a.stamp("pH")
    for s in a.ob1: a.emit(s)
    gate_compute(a)
    p4_setup(a)
    a.emit((f"buffer_load_dword v21, v17, {WS}, s31 offen sc1", "pKV"))
    a.stamp("fill")
    poll_check(a, "L_PKV", 21, 17, 31, "pKV", mask=o.get("kvmask", 1))
    a("L_A3:")
    a.stamp("pKV")
    for g in range(2):
        for k_, s in enumerate(kv_dma(1, g, f"c1{'ab'[g]}")):
            a.emit(s)
            if k_ == 0: a("s_nop 0")
        if g == 0: a.emit((f"buffer_load_dword v21, v17, {WS}, s31 offen sc1", "pKV2"))
    for s in kv_advance(): a(s)
    a(f"s_cmp_lg_u32 s{sPASS}, 0")
    a("s_cbranch_scc1 L_A4")
    a.emit(a.wait(["hl"]))
    local_tile(a, pQB[0], pKB[0], pVB[0], HK, HV, 96, 112, 208, 168, 236, 23, 0, "ob0")
    a("s_branch L_A5")
    a("L_A4:")
    a("s_waitcnt vmcnt(0)")
    a("L_A5:")
    a.stamp("loc0")
    a.emit(a.wait(["c1a"], lgkm=True))
    a("s_barrier")
    a.pkv2 = True
    a.stamp("c1")
    wob = [i for i in range(24)]
    obl = [i for i in range(64)]
    if o.get('noside'): wob = wob[:1]; obl = obl[:1]
    ob_start = o.get("ob_start", 5)
    obase = False
    for c in range(15):
        V = []; A = []
        side = []
        if c + 2 <= 15:
            d0, d1 = kv_dma(c % 2, 0, f"c{c+2}"), kv_dma(c % 2, 1, f"c{c+2}")
            kvs = [[x] for x in d0] + [[x] for x in d1] + [[x] for x in kv_advance()]
        else:
            kvs = []
        oth = []
        if c == 0:
            oth += [[(f"buffer_load_dword v21, v17, {WS}, s31 offen sc1", "pKV3")]]
        if c == 1:
            oth += [[f"s_lshl_b32 s38, s{sSeq}, 7"], [f"s_lshl_b32 s39, s{sHead}, 2"], ["s_add_u32 s38, s38, s39"],
                    [f"s_add_u32 s35, s38, {F_OB}"], flag_store(35, 20, "fOB")]
        if c == ob_start - 2:
            oth += [[f"s_add_u32 s47, s29, {F_OB}"], [(f"buffer_load_dword v21, v16, {WS}, s47 offen sc1", "pOB")]]
        if c == o.get("cpf2", 11) or (o.get("cpfn") and c % o["cpfn"] == 2):
            oth += [[(f"buffer_load_dword v{vPFd}, v{vT[7]}, s[{sCode}:{sCode+3}], 0 offen", "cpf")]]
        nslots = 4*7 - 1 - (c == 0)
        if c >= ob_start:
            for _ in range(min(len(obl), o.get("ob_per", 8))):
                i = obl.pop(0)
                oth.append([(f"global_load_dwordx4 {oreg(i)}, v{vL16b if (i & 4) else vL16}, s[{sOg}:{sOg+1}] offset:{(i % 4)*1024} sc1", "obl")])
                if i % 8 == 7:
                    oth += [[f"s_add_u32 s{sOg}, s{sOg}, 8192"], [f"s_addc_u32 s{sOg+1}, s{sOg+1}, 0"]]
        wl = o.get("wol2", 6)
        if wl <= c < wl + 8:
            oth.append([(f"global_load_dword v{vPFd}, v0, s[{sPWoA}:{sPWoA+1}] offset:{((c - wl) & 1)*2048}", "wopf")] + (["v_add_u32 v0, 4096, v0"] if (c - wl) & 1 else []))
        while wob and len(kvs) + len(oth) + 3 <= nslots:
            oth += wob_dma(wob.pop(0), "wob")
        side = kvs + oth
        while len(side) > nslots:
            for k in range(len(side) - 1):
                if all(isinstance(x, str) and x.startswith("s_") and "m0" not in x for x in side[k]):
                    side[k+1] = side[k] + side[k+1]; side.pop(k); break
            else:
                raise Exception("slots")
        n = len(side)
        if n < nslots and o.get("spread", 1):
            sp = [[] for _ in range(nslots)]
            for k, g in enumerate(side): sp[k*nslots//n] = g
            side = sp
        if c == 0:
            poll_check(a, "L_PKV2", 21, 17, 31, "pKV2", mask=2)
        if c == 1:
            poll_check(a, "L_PKV3", 21, 17, 31, "pKV3", mask=0xffff)
        if c == ob_start - 1:
            poll_check(a, "L_POB", 21, 16, 47, "pOB")
        tile(a, 4*c + 3, side)
        tile(a, 4*c + 4, side, end_b=[a.wait(["c1b"]), "s_barrier"] if c == 0 else None)
        tile(a, 4*c + 5, side)
        tile(a, 4*c + 6, side, end_b=[a.wait([f"c{c+2}"], lgkm=True) if c + 2 <= 15 else "s_waitcnt lgkmcnt(0)", "s_barrier"])
        assert not side
        if c in (4, 9): a.stamp(f"c{c}")
    assert not wob and not obl, (wob, obl)
    tile(a, 63)
    a("s_nop 1")
    a(mf32(ar(aO[1], 16), ar(aV[1], 4), vr(P[1], 4), ar(aO[1], 16)))
    a(mf16(ar(aL[1], 4), ar(aONE, 4), vr(P[1], 4), ar(aL[1], 4)))
    a(mf32(ar(aO[1], 16), ar(aV[1]+4, 4), vr(P[1]+4, 4), ar(aO[1], 16)))
    a(mf16(ar(aL[1], 4), ar(aONE, 4), vr(P[1]+4, 4), ar(aL[1], 4)))
    a.stamp("attend")
    a(f"s_add_u32 s36, s{sOst}, {OA_OFF}")
    a(f"s_add_u32 s37, s{sOst}, {OA_OFF + 65536}")
    a(f"v_accvgpr_read_b32 v19, a{aL[0]}")
    for i in range(16): a(f"v_accvgpr_read_b32 v{S[0]+i}, a{aO[0]+i}")
    a("v_rcp_f32 v23, v19")
    a(f"v_accvgpr_read_b32 v20, a{aL[1]}")
    for i in range(16): a(f"v_mul_f32 v{S[0]+i}, v{S[0]+i}, v23")
    pack(a, S[0])
    a("v_rcp_f32 v24, v20")
    a.emit((f"buffer_store_dwordx4 {vr(S[0], 4)}, v{vL16}, {WS}, s36 offen sc1", "oa"))
    a.emit((f"buffer_store_dwordx4 {vr(S[0]+4, 4)}, v{vL16}, {WS}, s36 offen offset:1024 sc1", "oa"))
    for i in range(16): a(f"v_accvgpr_read_b32 v{S[1]+i}, a{aO[1]+i}")
    for i in range(16): a(f"v_mul_f32 v{S[1]+i}, v{S[1]+i}, v24")
    pack(a, S[1])
    a(f"s_mov_b32 s36, {f2u(2.0**40)}")
    a.emit((f"buffer_store_dwordx4 {vr(S[1], 4)}, v{vL16}, {WS}, s37 offen sc1", "oa"))
    a.emit((f"buffer_store_dwordx4 {vr(S[1]+4, 4)}, v{vL16}, {WS}, s37 offen offset:1024 sc1", "oa"))
    a("v_cmp_nge_f32 s[38:39], s36, v19")
    a("v_cmp_nge_f32 vcc, s36, v20")
    a(f"s_lshl_b32 s37, s{sW}, 2")
    a(f"s_add_u32 s37, s37, {KV_LDS[1]}")
    a("v_mov_b32 v22, s37")
    a("s_nop 1")
    a("s_or_b64 vcc, vcc, s[38:39]")
    if o.get("force_fallback"): a("s_mov_b64 vcc, -1")
    a("s_cmp_lg_u64 vcc, 0")
    a("s_cselect_b32 s36, 1, 0")
    a(f"s_andn2_b32 s36, s36, s{sPASS}")
    a("v_mov_b32 v21, s36")
    a("ds_write_b32 v22, v21")
    a(f"v_mov_b32 v22, {KV_LDS[1]}")
    a.emit(a.wait(["wob", "obl"], lgkm=True))
    a("s_barrier")
    a("ds_read_b128 v[20:23], v22")
    for s in p4_reads(0, 0, 0): a(s)
    a("s_waitcnt lgkmcnt(0)")
    a("v_or_b32 v20, v20, v21")
    a("v_or3_b32 v20, v20, v22, v23")
    a("s_nop 0")
    a("v_readfirstlane_b32 s38, v20")
    a("s_nop 3")
    a("s_cmp_lg_u32 s38, 0")
    a("s_cbranch_scc1 L_FALLBACK")
    b = Asm()
    b("L_FALLBACK:")
    b(f"s_mov_b32 s{sPASS}, 1")
    b(f"s_mov_b32 s25, {OOB}")
    b(f"s_mov_b32 s26, {OOB}")
    b(f"v_mov_b32 v19, {NEGBIG}")
    b(f"v_mov_b32 v20, {NEGBIG}")
    b(f"s_lshl_b32 s38, s{sHP}, 19")
    b(f"s_lshl_b32 s39, s{sHH}, 14")
    b("s_add_u32 s38, s38, s39")
    b("s_mov_b32 s39, 0")
    b("L_FB:")
    b("s_and_b32 s36, s39, 3")
    b("s_lshl_b32 s36, s36, 12")
    b("s_lshr_b32 s37, s39, 2")
    b("s_lshl_b32 s37, s37, 15")
    b("s_add_u32 s36, s36, s37")
    b("s_add_u32 s36, s36, s38")
    b(f"buffer_load_dwordx4 {ar(aK, 4)}, v{vL16}, {WS}, s36 offen sc1")
    b(f"buffer_load_dwordx4 {ar(aK+4, 4)}, v{vL16}, {WS}, s36 offen offset:1024 sc1")
    b("s_waitcnt vmcnt(0)")
    for q in range(2): b(mf32(vr(S[q], 16), ar(aK, 4), vr(QA[q], 4), 0))
    for q in range(2): b(mf32(vr(S[q], 16), ar(aK+4, 4), vr(QA[q]+4, 4), vr(S[q], 16)))
    b("s_nop 11")
    for q in range(2):
        for i in range(0, 16, 2): b(f"v_max3_f32 v{19+q}, v{19+q}, v{S[q]+i}, v{S[q]+i+1}")
    b("s_add_u32 s39, s39, 1")
    b("s_cmp_lt_u32 s39, 64")
    b("s_cbranch_scc1 L_FB")
    neg_max(b)
    b(f"s_lshl_b32 s{sKVt}, s{sT}, 15")
    b(f"s_add_u32 s{sKVg}, s{sKVp}, s{sKVt}")
    b(f"s_addc_u32 s{sKVg+1}, s{sKVp+1}, 0")
    b(f"s_add_u32 s36, s{sOrow}, {OB_OFF}")
    b(f"s_add_u32 s{sOg}, s54, s36")
    b(f"s_addc_u32 s{sOg+1}, s55, 0")
    b("v_add_u32 v0, -16384, v0")
    b("s_barrier")
    for g in range(2):
        for k_, s in enumerate(kv_dma(0, g, "")):
            b(s[0] if isinstance(s, tuple) else s)
            if k_ == 0: b("s_nop 0")
    b("s_waitcnt vmcnt(0)")
    b("s_barrier")
    b("s_branch L_ATT0")
    a.tail.append(b.text())

def fW4(fs, i, ct): return fs*32 + i*8 + ct*4
def p4_lds(g):
    return g*32768 if g < 4 else [131072, 0, 32768, 65536][g - 4]
def p4_reads(fs, g, grp):
    out = []
    base = p4_lds(g)
    for i in range(4):
        for ct in range(2):
            off = base % 65536 + (grp*4 + i)*2048
            v = vWo_r[2*(base // 65536) + ct]
            out.append(f"ds_read_b64_tr_b16 {ar(fW4(fs, i, ct), 2)}, v{v} offset:{off}")
            out.append(f"ds_read_b64_tr_b16 {ar(fW4(fs, i, ct)+2, 2)}, v{v} offset:{off+1024}")
    return out
def woa_dma(g, i):
    return [[f"s_add_u32 m0, s{sWv}, {p4_lds(g) + i*4096}"],
            [(f"buffer_load_dwordx4 v{vWo_g}, s[{sWoA}:{sWoA+3}], s{sWooff} offen lds", f"wo{g}"),
             f"s_add_u32 s{sWooff}, s{sWooff}, 65536", f"s_and_b32 s{sWooff}, s{sWooff}, 0x1fffff"]]
def oa_load(i):
    out = [(f"buffer_load_dwordx4 {oreg(i)}, v{vL16}, {WS}, s{sO} offen offset:{(i % 4)*1024} sc1", f"oa{i}")]
    if i % 4 == 3:
        out += [f"s_add_u32 s{sOoff}, s{sOoff}, 4096", f"s_and_b32 s{sOoff}, s{sOoff}, 0xffff", f"s_add_u32 s{sO}, s{sObase}, s{sOoff}"]
    return out

def phase4(a):
    o = a.opts
    a(f"s_add_u32 s{sObase}, s{sOrow}, {OA_OFF}")
    a(f"s_add_u32 s{sO}, s{sObase}, s{sOoff}")
    a(f"s_lshl_b32 s38, s{sSeq}, 7")
    a(f"s_lshl_b32 s39, s{sHead}, 2")
    a("s_add_u32 s38, s38, s39")
    a(f"s_add_u32 s35, s38, {F_OA}")
    a(f"s_add_u32 s47, s29, {F_OA}")
    a(f"s_lshl_b32 s36, s{sT4}, 9")
    a(f"s_lshl_b32 s37, s{sW}, 7")
    a("s_add_u32 s36, s36, s37")
    a(f"s_add_u32 s36, s36, {G_OFF}")
    a.stamp("p4start")
    flag_at = o.get("oaflag_gap", 10)
    poll_at = o.get("oapoll_gap", 80)
    chk_at = o.get("oachk_gap", 92)
    side = {}
    def put(k, l): side.setdefault(k, []).extend(l)
    put(0, [(f"buffer_load_dword v{vGate}, v16, {WS}, s36 offen sc1", "gl")])
    put(flag_at, [a.wait(["oa"])]); put(flag_at + 1, flag_store(35, 20, "fOA"))
    put(poll_at, [(f"buffer_load_dword v21, v16, {WS}, s47 offen sc1", "pOA")])
    lat = o.get("p4lat", 20)
    jobs = [[26 if False else flag_at + 2, 32*2 + 23 - lat, "wb", i] for i in range(24, 32)]
    for g in range(4, 8):
        e = {4: 26, 5: 26, 6: 56, 7: 88}[g]
        jobs += [[e, 32*(g - 1) + 23 - lat, "wa", (g, i)] for i in range(8)]
    jobs += [[max(chk_at + 1, 2*i + 2), 128 + 2*i - lat, "oa", i] for i in range(64)]
    gap = o.get("p4gap", 2.0)
    t = float(flag_at + 2)
    quiet = range(poll_at - o.get("p4quiet", 4), poll_at + 1)
    while jobs:
        k = int(t)
        av = [j for j in jobs if j[0] <= k]
        if not av or k in quiet:
            t = k + 1; continue
        j = min(av, key=lambda j: j[1])
        jobs.remove(j)
        if j[2] == "wb":
            d = wob_dma(j[3], "wo3"); put(k - 1, d[0] + d[1]); put(k, d[2])
        elif j[2] == "wa":
            d = woa_dma(*j[3]); put(k - 1, d[0]); put(k, d[1])
        else:
            put(k, oa_load(j[3]))
        if k > j[1]: print("p4 late", j, k)
        t += gap
    idx = 0
    for g in range(8):
        br = g // 4
        for grp in range(4):
            fs = grp & 1
            rd = p4_reads(1 - fs, g, grp + 1) if grp < 3 else (p4_reads(1 - fs, g + 1, 0) if g < 7 else [])
            for j in range(8):
                i, ct = j // 2, j % 2
                k16 = (g % 4)*16 + grp*4 + i
                if br == 1 and ct == 0:
                    n = a.vmn([f"oa{k16}"])
                    a(f"s_waitcnt vmcnt({n})")
                d = vr(ACC4[br][ct], 16)
                a(mf32(d, ar(fW4(fs, i, ct), 4), oreg(k16), 0 if k16 == 0 else d))
                for s in rd[3*j:3*j+3] if j < 5 else (rd[15:] if j == 5 else []): a(s)
                for s in side.pop(idx, []): a.emit(s)
                if idx == flag_at + 1: a.stamp("fOA")
                if idx == chk_at:
                    poll_check(a, "L_POA", 21, 16, 47, "pOA")
                    a.stamp("pOA")
                idx += 1
            if grp == 2 and g < 7:
                nxt = f"wo{g+1}"
                a.emit(a.wait([nxt], lgkm=True) if nxt in a.vm else "s_waitcnt lgkmcnt(0)")
                a("s_barrier")
            elif rd:
                a("s_waitcnt lgkmcnt(0)")
        if g == 3: a.stamp("p4B")
    assert not side, side.keys()
    a.stamp("p4A")
    a(f"v_sub_f32 v8, 1.0, v{vGate}")
    a(f"v_and_b32 v19, 31, v{vLANE}")
    a(f"v_lshrrev_b32 v20, 5, v{vLANE}")
    a("v_lshlrev_b32 v20, 4, v20")
    a("v_lshl_add_u32 v19, v19, 11, v20")
    a(f"s_lshl_b32 s36, s{sT4}, 18")
    a(f"s_lshl_b32 s37, s{sW}, 16")
    a("s_add_u32 s36, s36, s37")
    a(f"s_lshl_b32 s37, s{sC4}, 7")
    a("s_add_u32 s36, s36, s37")
    for ct in range(2):
        for i in range(16): a(f"v_mul_f32 v{ACC4[0][ct]+i}, v{ACC4[0][ct]+i}, v8")
    for ct in range(2):
        B_, A_ = ACC4[0][ct], ACC4[1][ct]
        for i in range(16): a(f"v_fma_f32 v{B_+i}, v{A_+i}, v{vGate}, v{B_+i}")
        pack(a, B_)
        a("s_nop 1")
        for k in (0, 2):
            a(f"v_permlane32_swap_b32 v{B_+2*k}, v{B_+2*k+2}")
            a(f"v_permlane32_swap_b32 v{B_+2*k+1}, v{B_+2*k+3}")
        for k in (0, 2):
            a.emit((f"buffer_store_dwordx4 {vr(B_+2*k, 4)}, v19, s[{sOutD}:{sOutD+3}], s36 offen offset:{ct*64 + k*16}", "out"))

def gen(opts):
    a = G(opts); a.tail = []
    setup(a); gemm1(a); e1(a); attention(a); phase4(a)
    if opts.get("dbgstamp"):
        a.stamp("end")
        sel = ["karg", "first", "g7", "g15", "g23", "g31", "loc1", "pKV", "c1", "c9", "attend", "pOA", "p4B", "p4A", "end"]
        a(f"s_cmp_lg_u32 s2, {opts['dbgstamp']-1}")
        a("s_cbranch_scc1 L_DBGX")
        a(f"s_cmp_lg_u32 s{sW}, 0")
        a("s_cbranch_scc1 L_DBGX")
        a(f"v_readlane_b32 s36, v{vSTAMP}, 32")
        for i, nm in enumerate(sel):
            a(f"v_readlane_b32 s37, v{vSTAMP}, {32 + a.names.index(nm)}")
            a("s_nop 3")
            a("s_sub_u32 s37, s37, s36")
            a("v_mov_b32 v2, s37")
            a("v_mov_b32 v3, 0")
            a(f"global_store_dword v3, v2, s[{sPDbg}:{sPDbg+1}] offset:{4*(i+1)}")
        a("L_DBGX:")
    elif opts.get("stamp"):
        a.stamp("end")
        a("s_lshl_b32 s36, s2, 2")
        a(f"s_add_u32 s36, s36, s{sW}")
        a("s_lshl_b32 s36, s36, 8")
        a(f"s_add_u32 s36, s36, {STAMP_OFF}")
        a(f"v_lshlrev_b32 v2, 2, v{vLANE}")
        a(f"buffer_store_dword v{vSTAMP}, v2, {WS}, s36 offen")
    a("s_endpgm")
    for t in a.tail: a(t)
    head = f"""; gated mix of full MHA and dilated sliding-window attention: one fused kernel, 256 co-resident workgroups
; @launch grid=(256,1,1) block=(256,1,1) lds=163840
.amdgcn_target "amdgcn-amd-amdhsa--gfx950"
.text
.globl {KNAME}
.p2align 8
.type {KNAME},@function
{KNAME}:
"""
    tail = f"""L_END:
    s_endpgm
.section .rodata,"a"
.p2align 6
.amdhsa_kernel {KNAME}
  .amdhsa_next_free_vgpr 512
  .amdhsa_next_free_sgpr 102
  .amdhsa_accum_offset 256
  .amdhsa_group_segment_fixed_size 0
  .amdhsa_kernarg_size 80
  .amdhsa_user_sgpr_count 2
  .amdhsa_user_sgpr_kernarg_segment_ptr 1
  .amdhsa_system_sgpr_workgroup_id_x 1
.end_amdhsa_kernel
"""
    gen.names = a.names
    return head + a.text() + tail

if __name__ == "__main__":
    import hazard
    opts = {}
    for kv in sys.argv[2:]:
        k, v = kv.split("="); opts[k] = int(v)
    t = gen(opts)
    open(sys.argv[1], "w").write(t)
    print(len(hazard.check(t)), "hazards", gen.names)
```

```python
import sys, struct, math
from asmlib import *

KNAME = "gated_mix__softmax_full_mha__sliding_local_dilated__prompt_kernel"
def f2u(x): return struct.unpack("<I", struct.pack("<f", x))[0]
KV_OFF   = 0
OA_OFF   = 8 << 20
OB_OFF   = 12 << 20
HALO_OFF = 16 << 20
G_OFF    = 20 << 20
FLAG_OFF = 21 << 20
F_KV, F_H, F_OB, F_OA = FLAG_OFF, FLAG_OFF + 4096, FLAG_OFF + 8192, FLAG_OFF + 12288
STAMP_OFF = 0x8000000
OOB = 0x80000000
CSCALE = f2u(math.log2(math.e) / math.sqrt(32.0))
NEGBIG = f2u(-1e30)
X_SLOT = 16384; W_BASE = 49152; W_SLOT = 24576
KV_LDS = [98304, 131072]
sX, sWA, sWB, sWS = 4, 8, 12, 16
sW, sHP, sT, sRH, sHH = 20, 21, 22, 23, 24
sWoff, sXoff = 25, 26
sXw, sWv = 30, 34
sPF, sPFoff, sPFstr, sPFlim = 40, 44, 45, 46
sNONCE, sCS = 60, 61
sSTAMPI = 68
sPWoA, sPWoB, sPG, sPOut, sPDbg = 70, 72, 74, 76, 78
sKVsrc, sKVbase, sKVt, sKVdst = 80, 81, 82, 27
sPASS, sOst, sSpin = 83, 86, 87
sT4, sC4, sOoff, sWooff, sObase = 88, 89, 90, 91, 92
sHalo, sSeq, sO, sOrow, sHead = 93, 94, 95, 96, 97
sWoA, sWoB, sOutD = 4, 8, 12
sCode = 48
vLANE = 1
vXr = [2, 3, 4, 5]; vWr = [10, 11]; vWg = [12, 13, 14]; vXg = [15, 16, 17, 18]
vT = [19, 20, 21, 22, 23, 24, 25, 26]
vPF, vPFd, vL16, vSTAMP, vF0 = 27, 28, 29, 30, 31
vMc = 32
ACC0 = 64
def acc(blk, rt): return ACC0 + (blk*2 + rt)*16
QA = [64, 80]; KA = [96, 112]; VA = [128, 144]; QB = [160, 176]; KB = [192, 208]; VB = [224, 240]
NM = [128, 144]; S = [176, 240]; P = [72, 88]
vKV = [6, 7]
vWo_g = 2; vWo_r = [3, 4, 10, 11, 12, 13]
vGate, vGrow = 14, 8
HK = 200; HV = 232
def fX(s, rt): return s*32 + rt*4
def fW(s, blk): return s*32 + 8 + blk*4
aK, aV = 0, [8, 16]
aO = [32, 48]; aL = [64, 68]; aONE = 72
aGATE = 76
OV = list(range(96, 128, 4)) + list(range(160, 176, 4)) + list(range(192, 240, 4))
def oreg(i): return ar(76 + 4*i, 4) if i < 45 else vr(OV[i - 45], 4)
ACC4 = [[64, 80], [128, 144]]
pKA = [96, 112]; pVA = [104, 120]; pQB = [160, 168]; pKB = [192, 208]; pVB = [224, 216]

def mf32(d, A, B, C): return f"v_mfma_f32_32x32x16_bf16 {d}, {A}, {B}, {C}"
def mf16(d, A, B, C): return f"v_mfma_f32_16x16x32_bf16 {d}, {A}, {B}, {C}"
WS = f"s[{sWS}:{sWS+3}]"

class G(Asm):
    def __init__(self, opts):
        super().__init__()
        self.opts = opts
        self.vm = []
        self.nstamp = 0
        self.names = []
    def emit(self, x):
        if callable(x): x = x()
        if x is None: return
        if isinstance(x, tuple):
            self(x[0]); self.vm.append(x[1])
        else:
            assert not (x.lstrip().startswith(("buffer_", "global_"))), x
            self(x)
    def vmn(self, tags):
        idx = [i for i, t in enumerate(self.vm) if t in tags]
        assert idx, tags
        n = len(self.vm) - 1 - max(idx)
        return min(n, 63)
    def wait(self, tags, lgkm=False):
        return lambda: f"s_waitcnt vmcnt({self.vmn(tags)})" + (" lgkmcnt(0)" if lgkm else "")
    def stamp(self, name):
        if not self.opts.get("stamp"): return
        self.names.append(name)
        a = self
        a("s_memtime s[66:67]")
        a("s_memrealtime s[64:65]")
        a("s_waitcnt lgkmcnt(0)")
        a(f"v_writelane_b32 v{vSTAMP}, s66, {self.nstamp}")
        a(f"v_writelane_b32 v{vSTAMP}, s64, {self.nstamp + 32}")
        self.nstamp += 1
        assert self.nstamp <= 32
    def inter(self, mains, sides):
        for i, m in enumerate(mains):
            if m is not None: self.emit(m)
            for s in sides.get(i, []): self.emit(s)

def srd(a, s, lo, hi, nbytes):
    a(f"s_mov_b32 s{s}, s{lo}")
    a(f"s_and_b32 s{s+1}, s{hi}, 0xffff")
    a(f"s_mov_b32 s{s+2}, {nbytes}")
    a(f"s_mov_b32 s{s+3}, 0x20000")

def pf_round(a):
    return [(f"buffer_load_dword v{vPFd}, v{vPF}, s[{sPF}:{sPF+3}], s{sPFoff} offen", "pf"),
            f"s_add_u32 s{sPFoff}, s{sPFoff}, s{sPFstr}"]

class P1:
    def __init__(self, a):
        self.a = a; self.woff = None; self.xoff = None
    def dma(self, piece):
        kind, j, p = piece
        pre = []
        if kind == "W":
            if self.woff != j:
                pre.append(f"s_mov_b32 s{sWoff}, {j*196608}"); self.woff = j
            s = sWA if p < 3 else sWB
            pre.append(f"s_add_u32 m0, s{sWv}, {W_BASE + (j % 4)*W_SLOT + p*4096}")
            return pre, (f"buffer_load_dwordx4 v{vWg[p % 3]}, s[{s}:{s+3}], s{sWoff} offen lds", f"W{j}")
        if self.xoff != j:
            pre.append(f"s_mov_b32 s{sXoff}, {j*128}"); self.xoff = j
        pre.append(f"s_add_u32 m0, s{sXw}, {(j % 3)*X_SLOT + p*1024}")
        return pre, (f"buffer_load_dwordx4 v{vXg[p]}, s[{sX}:{sX+3}], s{sXoff} offen lds", f"X{j}")

def frag_reads(fs, u, k16):
    kk = 2*(u & 1) + k16
    out = [f"ds_read_b128 {ar(fX(fs, rt), 4)}, v{vXr[kk]} offset:{((u >> 1) % 3)*X_SLOT + rt*4096}" for rt in range(2)]
    ws = u % 4
    for blk in range(6):
        off = (ws % 2)*W_SLOT + blk*4096 + k16*2048
        out.append(f"ds_read_b64_tr_b16 {ar(fW(fs, blk), 2)}, v{vWr[ws//2]} offset:{off}")
        out.append(f"ds_read_b64_tr_b16 {ar(fW(fs, blk)+2, 2)}, v{vWr[ws//2]} offset:{off+512}")
    return out

def g1_mfma(fs, blk, rt):
    d = vr(acc(blk, rt), 16)
    w, x = ar(fW(fs, blk), 4), ar(fX(fs, rt), 4)
    return mf32(d, x, w, d) if blk % 3 == 2 else mf32(d, w, x, d)

def setup(a):
    o = a.opts
    a("L_START:")
    a("s_cmp_ge_u32 s2, 256")
    a("s_cbranch_scc1 L_END")
    a.stamp("start")
    a("s_load_dwordx4 s[48:51], s[0:1], 0")
    a("s_load_dwordx2 s[52:53], s[0:1], 32")
    a("s_load_dwordx2 s[54:55], s[0:1], 72")
    a(f"s_load_dwordx2 s[{sPWoA}:{sPWoA+1}], s[0:1], 16")
    a(f"s_load_dwordx4 s[{sPWoB}:{sPWoB+3}], s[0:1], 40")
    a(f"s_load_dwordx4 s[{sPOut}:{sPOut+3}], s[0:1], 56")
    a(f"v_and_b32 v{vLANE}, 63, v0")
    a(f"v_lshrrev_b32 v{vT[0]}, 6, v0")
    a("s_and_b32 s3, s2, 7")
    a(f"v_readfirstlane_b32 s{sW}, v{vT[0]}")
    a("s_lshr_b32 s35, s2, 3")
    a("s_and_b32 s37, s3, 3")
    a("s_lshl_b32 s36, s37, 2")
    a("s_and_b32 s38, s35, 3")
    a(f"s_add_u32 s{sHP}, s36, s38")
    a("s_lshr_b32 s39, s3, 2")
    a("s_lshl_b32 s36, s39, 3")
    a("s_lshr_b32 s38, s35, 2")
    a(f"s_add_u32 s{sT}, s36, s38")
    a(f"s_and_b32 s{sRH}, s{sW}, 1")
    a(f"s_lshr_b32 s{sHH}, s{sW}, 1")
    t0, t1, t2 = vT[0], vT[1], vT[2]
    if o.get("pfx"):
        a("s_lshl_b32 s38, s35, 5")
    else:
        a("s_lshl_b32 s38, s37, 5")
        a("s_add_u32 s38, s38, s35")
        a("s_lshl_b32 s38, s38, 3")
    a("s_lshl_b32 s47, s39, 10")
    a("s_add_u32 s38, s38, s47")
    a(f"v_add_u32 v{t0}, s38, v{vLANE}")
    a(f"v_lshlrev_b32 v{t0}, 11, v{t0}")
    if o.get("pfmode", 1) == 0:
        a("s_lshl_b32 s39, s39, 5")
        a("s_add_u32 s39, s39, s35")
        a("s_mul_i32 s39, s39, 6144")
        a("s_lshl_b32 s38, s37, 9")
        a("s_add_u32 s39, s39, s38")
        a(f"v_lshrrev_b32 v{t1}, 2, v{vLANE}")
        a(f"v_lshlrev_b32 v{t1}, 11, v{t1}")
        a(f"v_and_b32 v{t2}, 3, v{vLANE}")
        a(f"v_lshlrev_b32 v{t2}, 7, v{t2}")
        a(f"v_add3_u32 v{t1}, v{t1}, v{t2}, s39")
    elif o.get("pfmode", 1) == 2:
        a("s_mul_i32 s39, s35, 12288")
        a("s_lshl_b32 s38, s37, 9")
        a("s_add_u32 s39, s39, s38")
        a(f"v_lshrrev_b32 v{t1}, 2, v{vLANE}")
        a(f"v_lshlrev_b32 v{t1}, 11, v{t1}")
        a(f"v_and_b32 v{t2}, 3, v{vLANE}")
        a(f"v_lshlrev_b32 v{t2}, 7, v{t2}")
        a(f"v_add3_u32 v{t1}, v{t1}, v{t2}, s39")
    else:
        a("s_mul_i32 s39, s2, 1536")
        a(f"v_lshlrev_b32 v{t1}, 7, v{vLANE}")
        a(f"v_add_u32 v{t1}, s39, v{t1}")
    a(f"s_mul_i32 s47, s35, {o.get('codelines', 20)}")
    a(f"v_add_u32 v{t2}, s47, v{vLANE}")
    a(f"v_lshlrev_b32 v{vT[7]}, 7, v{t2}")
    a(f"s_mov_b32 s{sPFstr}, 128")
    a(f"s_cmp_eq_u32 s{sW}, 0")
    a(f"s_cselect_b32 s{sPFstr}, s{sPFstr}, {64*6144}")
    a(f"s_cselect_b32 s38, {32 if o.get('pfx') else 8}, {24 if o.get('pfmode', 1) == 2 else 12}")
    a("s_cselect_b64 s[56:57], -1, 0")
    a(f"v_cndmask_b32 v{vPF}, v{t1}, v{t0}, s[56:57]")
    a(f"s_cmp_eq_u32 s{sW}, 3")
    a("s_cselect_b64 s[56:57], -1, 0")
    a(f"v_cndmask_b32 v{vPF}, v{vPF}, v{vT[7]}, s[56:57]")
    a(f"s_cselect_b32 s38, {o.get('codelines', 20)}, s38")
    a(f"s_cselect_b32 s{sPFstr}, 0x4000000, s{sPFstr}")
    a(f"v_cmp_gt_u32 vcc, s38, v{vLANE}")
    a(f"v_mov_b32 v{t2}, {OOB}")
    a(f"s_mov_b32 s{sPFoff}, 0")
    a(f"v_cndmask_b32 v{vPF}, v{t2}, v{vPF}, vcc")
    a(f"v_cmp_gt_u32 vcc, {o.get('codelines', 20)}, v{vLANE}")
    a("s_getpc_b64 s[58:59]")
    a("L_PC:")
    a("s_sub_u32 s58, s58, L_PC - L_START")
    a(f"v_cndmask_b32 v{vT[7]}, v{t2}, v{vT[7]}, vcc")
    a("s_subb_u32 s59, s59, 0")
    r, c, t0, t1 = vT[0], vT[1], vT[2], vT[3]
    a(f"v_lshrrev_b32 v{r}, 3, v{vLANE}")
    a(f"v_and_b32 v{c}, 7, v{vLANE}")
    a(f"v_lshlrev_b32 v{t0}, 1, v{r}")
    a(f"v_and_b32 v{t0}, 4, v{t0}")
    a(f"v_xor_b32 v{t0}, v{t0}, v{c}")
    a(f"v_lshlrev_b32 v{t0}, 4, v{t0}")
    a(f"v_mul_u32_u24 v{t1}, 6144, v{r}")
    a(f"v_add_u32 v{t0}, v{t0}, v{t1}")
    a(f"s_mul_i32 s36, s{sW}, {8*6144}")
    a(f"s_lshl_b32 s37, s{sHP}, 7")
    a("s_add_u32 s36, s36, s37")
    a(f"v_add_u32 v{vWg[0]}, s36, v{t0}")
    a(f"v_add_u32 v{vWg[1]}, 2048, v{vWg[0]}")
    a(f"v_add_u32 v{vWg[2]}, 4096, v{vWg[0]}")
    a(f"v_lshrrev_b32 v{t0}, 1, v{r}")
    a(f"v_xor_b32 v{t0}, v{t0}, v{c}")
    a(f"v_lshlrev_b32 v{t0}, 4, v{t0}")
    a(f"v_lshlrev_b32 v{t1}, 11, v{r}")
    a(f"v_add_u32 v{t0}, v{t0}, v{t1}")
    a(f"s_lshl_b32 s36, s{sT}, 7")
    a(f"s_lshl_b32 s37, s{sW}, 5")
    a("s_add_u32 s36, s36, s37")
    a("s_lshl_b32 s36, s36, 11")
    a(f"v_add_u32 v{vXg[0]}, s36, v{t0}")
    a(f"v_xor_b32 v{vXg[1]}, 64, v{vXg[0]}")
    a(f"v_add_u32 v{vXg[1]}, {8*2048}, v{vXg[1]}")
    a(f"v_add_u32 v{vXg[2]}, {16*2048}, v{vXg[0]}")
    a(f"v_add_u32 v{vXg[3]}, {16*2048}, v{vXg[1]}")
    a(f"s_lshl_b32 s{sWv}, s{sW}, 10")
    a(f"s_lshl_b32 s{sXw}, s{sW}, 12")
    a("s_waitcnt lgkmcnt(0)")
    a.stamp("karg")
    a(f"s_mov_b32 s{sPF+2}, {1024*3072*2}")
    a(f"s_cmp_eq_u32 s{sW}, 0")
    a(f"s_cselect_b32 s{sPF}, s48, s50")
    a(f"s_cselect_b32 s{sPF+1}, s49, s51")
    a(f"s_cselect_b32 s{sPF+2}, {2048*1024*2}, s{sPF+2}")
    a(f"s_cmp_eq_u32 s{sW}, 2")
    a(f"s_cselect_b32 s{sPF}, s52, s{sPF}")
    a(f"s_cselect_b32 s{sPF+1}, s53, s{sPF+1}")
    a(f"s_cmp_eq_u32 s{sW}, 3")
    a(f"s_cselect_b32 s{sPF}, s58, s{sPF}")
    a(f"s_cselect_b32 s{sPF+1}, s59, s{sPF+1}")
    a(f"s_cselect_b32 s{sPF+2}, L_END - L_START, s{sPF+2}")
    a(f"s_and_b32 s{sPF+1}, s{sPF+1}, 0xffff")
    a(f"s_mov_b32 s{sPF+3}, 0x20000")
    for i in range(o.get("pf0", 2)):
        for s in pf_round(a): a.emit(s)
    srd(a, sX, 48, 49, 2048*1024*2)
    srd(a, sWA, 50, 51, 1024*3072*2)
    srd(a, sWB, 52, 53, 1024*3072*2)

def fillers_prologue(a):
    L = []
    f = L.append
    f("s_mov_b32 s16, s54"); f("s_and_b32 s17, s55, 0xffff"); f("s_mov_b32 s18, 0x10000000"); f("s_mov_b32 s19, 0x20000")
    f(f"s_mov_b32 s{sCode}, s58"); f(f"s_and_b32 s{sCode+1}, s59, 0xffff"); f(f"s_mov_b32 s{sCode+2}, L_END - L_START"); f(f"s_mov_b32 s{sCode+3}, 0x20000")
    m, h, t0, t1, row = vT[0], vT[1], vT[2], vT[3], vT[4]
    f(f"v_and_b32 v{m}, 31, v{vLANE}")
    f(f"v_lshrrev_b32 v{h}, 5, v{vLANE}")
    f(f"v_lshrrev_b32 v{t0}, 1, v{m}")
    f(f"v_and_b32 v{t0}, 7, v{t0}")
    f(f"v_xor_b32 v{t0}, v{t0}, v{h}")
    f(f"v_lshlrev_b32 v{t0}, 4, v{t0}")
    f(f"v_lshlrev_b32 v{t1}, 7, v{m}")
    f(f"v_add_u32 v{t0}, v{t0}, v{t1}")
    f(f"s_lshl_b32 s36, s{sRH}, 13")
    f(f"v_add_u32 v{vXr[0]}, s36, v{t0}")
    for kk in range(1, 4):
        f(f"v_xor_b32 v{vXr[kk]}, {kk*32}, v{vXr[0]}")
    f(f"v_and_b32 v{m}, 15, v{vLANE}")
    f(f"v_lshrrev_b32 v{t0}, 2, v{m}")
    f(f"v_lshlrev_b32 v{t1}, 3, v{h}")
    f(f"v_add_u32 v{row}, v{t0}, v{t1}")
    f(f"v_lshrrev_b32 v{t0}, 1, v{row}")
    f(f"v_and_b32 v{t0}, 1, v{t0}")
    f(f"v_xor_b32 v{t0}, s{sHH}, v{t0}")
    f(f"v_lshlrev_b32 v{t0}, 6, v{t0}")
    f(f"v_lshlrev_b32 v{t1}, 7, v{row}")
    f(f"v_add_u32 v{t0}, v{t0}, v{t1}")
    f(f"v_and_b32 v{t1}, 16, v{vLANE}")
    f(f"v_lshlrev_b32 v{t1}, 1, v{t1}")
    f(f"v_add_u32 v{t0}, v{t0}, v{t1}")
    f(f"v_and_b32 v{t1}, 3, v{m}")
    f(f"v_lshlrev_b32 v{t1}, 3, v{t1}")
    f(f"v_add_u32 v{t0}, v{t0}, v{t1}")
    f(f"v_add_u32 v{vWr[0]}, {W_BASE}, v{t0}")
    f(f"v_add_u32 v{vWr[1]}, {W_BASE + 2*W_SLOT}, v{t0}")
    for r in range(ACC0, 256):
        f(f"v_mov_b32 v{r}, 0")
    return L

def fillers_late(a):
    L = []
    f = L.append
    q, b, t = vT[0], vT[1], vT[2]
    f(f"v_lshlrev_b32 v{vL16}, 4, v{vLANE}")
    f(f"v_and_b32 v{q}, 31, v{vLANE}")
    f(f"v_lshrrev_b32 v{b}, 5, v{vLANE}")
    f(f"v_lshlrev_b32 v{b}, 2, v{b}")
    f(f"v_sub_u32 v{b}, v{q}, v{b}")
    f(f"s_mov_b32 s36, {NEGBIG}")
    for i in range(24):
        r, add = (i, 0) if i < 16 else (i - 8, 32)
        d = vMc + i
        kv = 8*(r >> 2) + (r & 3)
        f(f"v_add_u32 v{d}, {add - kv}, v{b}")
        f(f"v_and_b32 v{d}, 0xfffffff1, v{d}")
        f(f"v_min_u32 v{d}, 1, v{d}")
        f(f"v_sub_u32 v{d}, 0, v{d}")
        f(f"v_and_b32 v{d}, s36, v{d}")
    f(f"v_lshrrev_b32 v{q}, 2, v{vLANE}")
    f(f"v_lshrrev_b32 v{t}, 4, v{vLANE}")
    f(f"v_xor_b32 v{q}, v{q}, v{t}")
    f(f"v_and_b32 v{q}, 1, v{q}")
    f(f"v_add_u32 v{q}, -1, v{q}")
    f(f"v_and_b32 v{q}, 0x3f803f80, v{q}")
    for i in range(4):
        f(f"v_accvgpr_write_b32 a{aONE+i}, v{q}")
    f(f"v_min_u32 v{vF0}, 1, v{vLANE}")
    f(f"v_lshlrev_b32 v{vF0}, 31, v{vF0}")
    f(f"s_mov_b32 s{sCS}, {CSCALE}"); f(f"s_mov_b32 s62, {CSCALE}"); f(f"s_mov_b32 s63, {CSCALE}")
    f(f"s_lshl_b32 s36, s{sHP}, 19")
    f(f"s_lshl_b32 s37, s{sW}, 13")
    f(f"s_lshl_b32 s38, s{sHH}, 14")
    f(f"s_lshl_b32 s39, s{sRH}, 13")
    f(f"s_add_u32 s{sKVdst}, s38, s39")
    f(f"s_add_u32 s{sKVbase}, s36, s{sKVdst}")
    f(f"s_lshl_b32 s{sKVt}, s{sT}, 15")
    f(f"s_add_u32 s{sKVsrc}, s{sKVbase}, s{sKVt}")
    f(f"s_add_u32 s36, s38, {KV_LDS[0]}")
    f(f"v_add_u32 v{vKV[0]}, s36, v{vL16}")
    f(f"v_add_u32 v{vKV[1]}, 32768, v{vKV[0]}")
    f(f"s_lshl_b32 s{sHead}, s{sHP}, 1")
    f(f"s_add_u32 s{sHead}, s{sHead}, s{sHH}")
    f(f"s_lshl_b32 s{sSeq}, s{sT}, 1")
    f(f"s_add_u32 s{sSeq}, s{sSeq}, s{sRH}")
    f(f"s_lshl_b32 s37, s{sSeq}, 6")
    f(f"s_add_u32 s37, s37, s{sHead}")
    f(f"s_lshl_b32 s{sOst}, s37, 11")
    f(f"s_lshl_b32 s38, s{sHead}, 5")
    f(f"s_add_u32 s38, s38, s{sSeq}")
    f(f"s_lshl_b32 s28, s38, 2")
    f(f"s_lshl_b32 s38, s38, 12")
    f(f"s_add_u32 s{sHalo}, s38, {HALO_OFF}")
    f(f"s_mov_b32 s{sPASS}, 0")
    f(f"s_add_u32 s{sKVp}, s54, s{sKVbase}\ns_addc_u32 s{sKVp+1}, s55, 0")
    f(f"s_cmp_lt_u32 s{sW}, 2\ns_cselect_b32 s{sPFW}, s{sPWoA}, s{sPWoB}\ns_cselect_b32 s{sPFW+1}, s{sPWoA+1}, s{sPWoB+1}")
    f(f"s_lshl_b32 s36, s2, 1"); f(f"s_add_u32 s36, s36, s{sRH}"); f("s_lshl_b32 s36, s36, 12")
    f(f"v_and_b32 v24, 7, v{vLANE}"); f("v_lshlrev_b32 v24, 7, v24"); f("v_add_u32 v23, s36, v24")
    f(f"v_and_b32 v24, 15, v{vLANE}"); f("v_lshlrev_b32 v24, 7, v24")
    f("s_lshr_b32 s36, s2, 3"); f("s_lshl_b32 s36, s36, 2"); f(f"s_add_u32 s36, s36, s{sW}"); f("s_lshl_b32 s36, s36, 14")
    f("v_add_u32 v0, s36, v24")
    f(f"s_lshl_b32 s36, s{sSeq}, 6")
    f(f"s_lshl_b32 s37, s{sHead}, 1")
    f("s_add_u32 s36, s36, s37")
    f(f"v_lshrrev_b32 v9, 5, v{vLANE}")
    f(f"v_add_u32 v{vGrow}, s36, v9")
    f(f"v_and_b32 v25, 31, v{vLANE}")
    f("v_lshlrev_b32 v25, 4, v25")
    f(f"v_lshl_add_u32 v9, v{vGrow}, 11, v25")
    f(f"s_mov_b32 s56, s{sPG}"); f(f"s_and_b32 s57, s{sPG+1}, 0xffff"); f("s_mov_b32 s58, 2048"); f("s_mov_b32 s59, 0x20000")
    f(f"s_lshl_b32 s38, s{sHP}, 2"); f(f"s_add_u32 s38, s38, s{sW}"); f("s_lshl_b32 s38, s38, 6")
    f(f"s_add_u32 s31, s38, {F_KV}"); f(f"s_lshl_b32 s38, s{sT}, 2"); f("s_add_u32 s32, s31, s38")
    f(f"s_add_u32 s33, s28, {F_H - 4}"); f(f"s_cmp_eq_u32 s{sSeq}, 0\ns_cselect_b32 s38, 4, 0"); f("s_add_u32 s33, s33, s38")
    return L

READ_GAPS = [0,0,1,1,2,2,3,3,4,5,6,7,8,9]
def gemm1(a):
    o = a.opts
    p1 = P1(a)
    W = lambda j, ps: [("W", j, p) for p in ps]
    X = lambda v, ps: [("X", v, p) for p in ps]
    pro = X(0, range(4)) + W(0, range(6)) + W(1, range(6))
    sched = {(0,0): X(1, range(4)) + W(2, [0,1]), (0,1): W(2, [2,3,4,5]) + W(3, [0,1]),
             (1,0): W(3, [2,3,4,5]) + W(4, [0,1]), (1,1): X(2, range(4)) + W(4, [2,3]),
             (2,0): W(4, [4,5]) + W(5, [0,1,2,3]), (2,1): W(5, [4,5]) + X(3, range(4)),
             (3,0): W(6, range(6))}
    for u in range(3, 28):
        v, p0 = ((u + 5)//2, 0) if u & 1 else ((u + 4)//2, 2)
        sched[(u, 1)] = W(u + 4, [0,1,2]) + (X(v, [p0]) if v < 16 else [])
        sched[(u + 1, 0)] = W(u + 4, [3,4,5]) + (X(v, [p0 + 1]) if v < 16 else [])
    for (u, hf), ps in sched.items():
        done = u - 1 if hf == 0 else u
        for k, j, p in ps:
            if k == "W": assert j < 4 or done >= j - 4, (u, hf, k, j)
            else: assert j < 3 or done >= 2*(j - 3) + 1, (u, hf, k, j)
    npf0 = o.get("pf0", 2)
    pfs = {}
    r = npf0
    for u in range(0, 32):
        while r < 16 and u >= max(0, 2*r - o.get("pfd", 8)) and pfs.get(u, 0) < 1:
            pfs[u] = pfs.get(u, 0) + 1; r += 1
    fil = fillers_prologue(a)
    per = (len(fil) + len(pro) - 1)//len(pro)
    for i, pc in enumerate(pro):
        pre, d = p1.dma(pc)
        for s in pre: a(s)
        chunk = fil[i*per:(i+1)*per]
        a(chunk[0] if chunk else "s_nop 0")
        a.emit(d)
        for s in chunk[1:]: a(s)
    a(f"s_or_b32 s36, s2, s{sW}")
    a("s_cmp_lg_u32 s36, 0")
    a("s_cbranch_scc1 L_NONONCE")
    a("s_memrealtime s[36:37]")
    a("v_mov_b32 v20, 0")
    a("s_waitcnt lgkmcnt(0)")
    a("s_or_b32 s36, s36, 1")
    a("v_mov_b32 v19, s36")
    a(f"global_store_dword v20, v19, s[{sPDbg}:{sPDbg+1}] sc1")
    a("L_NONONCE:")
    a.stamp("issued")
    a.emit(a.wait(["X0", "W0"]))
    a("s_barrier")
    a.stamp("first")
    for s in frag_reads(0, 0, 0): a(s)
    a("s_waitcnt lgkmcnt(0)")
    late = fillers_late(a)
    order = [(b, rt) for b in range(6) for rt in range(2)]
    for u in range(32):
        for hf in range(2):
            last = (u == 31 and hf == 1)
            reads = [] if last else (frag_reads(1, u, 1) if hf == 0 else frag_reads(0, u + 1, 0))
            sides = {}
            for g, rd in zip(READ_GAPS, reads): sides.setdefault(g, []).append(rd)
            ps = sched.get((u, hf), [])
            gaps = {4: [(1,2),(4,5),(7,8),(9,10)], 6: [(0,1),(2,3),(4,5),(6,7),(8,9),(10,11)]}
            gp = gaps[6] if len(ps) > 4 else gaps[4]
            for (g0, g1), pc in zip(gp, ps):
                pre, d = p1.dma(pc)
                sides.setdefault(g0, []).extend(pre)
                sides.setdefault(g1, []).insert(0, d)
            if hf == 0 and pfs.get(u):
                sides.setdefault(11, []).extend(pf_round(a))
            if u >= 6 and late and not last:
                for g in (5, 6, 8, 10):
                    for k in range(2):
                        if late: sides.setdefault(g, []).append(late.pop(0))
            if u == 28 and hf == 1:
                sides.setdefault(5, []).append((f"buffer_load_dword v{vPFd}, v{vT[7]}, s[{sCode}:{sCode+3}], 0 offen", "cpf"))
            w0 = o.get("wopf_step", 99)
            if u in (w0, w0 + 2, w0 + 4, w0 + 6) and hf == 0:
                sides.setdefault(11, []).append((f"global_load_dword v{vPFd}, v23, s[{sPFW}:{sPFW+1}] offset:{(u - w0)//2*1024}", "wopf"))
            if u == 30 and hf == 1:
                sides.setdefault(5, []).append("v_mov_b32 v19, 0")
                sides.setdefault(7, []).append((f"global_load_dword v21, v19, s[{sPDbg}:{sPDbg+1}] sc1", "nonce"))
            od = order
            if last: od = [(4,1),(5,1),(1,0),(2,0),(1,1),(2,1),(3,1),(4,0),(5,0),(3,0),(0,0),(0,1)]
            a.inter([g1_mfma(hf, b, rt) for b, rt in od], sides)
            if hf == 0:
                if u < 31:
                    need = [f"W{u+1}"] + ([f"X{(u+1)//2}"] if (u + 1) % 2 == 0 else [])
                    a.emit(a.wait(need, lgkm=True))
                else:
                    a("s_waitcnt lgkmcnt(0)")
                a("s_barrier")
            elif not last:
                a("s_waitcnt lgkmcnt(0)")
        if u % 8 == 7: a.stamp(f"g{u}")
    assert not late

def packl(base, out=None):
    out = base if out is None else out
    return [f"v_cvt_pk_bf16_f32 v{out+j}, v{base+2*j}, v{base+2*j+1}" for j in range(8)]
def pack(a, base, out=None):
    for s in packl(base, out): a(s)
class L(list):
    def __call__(self, s): self.append(s)
    def emit(self, s): self.append(s)
def weave(a, work, extra, first, every):
    nxt = first
    for i, w in enumerate(work):
        while extra and i >= nxt:
            for s in extra.pop(0): a.emit(s)
            nxt += every
        a.emit(w)

def local_tile(a, Q, Kc, Vc, Kp, Vp1, SC, SP, O, PC, PP, tmp, off, tag):
    m, t = tmp, tmp + 1
    a(mf32(vr(SC, 16), vr(Kc, 4), vr(Q, 4), vr(vMc, 16)))
    a(mf32(vr(SC, 16), vr(Kc+4, 4), vr(Q+4, 4), vr(SC, 16)))
    a(mf32(vr(SP, 16), vr(Kp, 4), vr(Q, 4), vr(vMc + 8, 16)))
    a(mf32(vr(SP, 16), vr(Kp+4, 4), vr(Q+4, 4), vr(SP, 16)))
    a("s_nop 9")
    vals = [SC + i for i in range(16)] + [SP + 8 + i for i in range(8)]
    a(f"v_max3_f32 v{m}, v{vals[0]}, v{vals[1]}, v{vals[2]}")
    for i in range(3, 23, 2):
        a(f"v_max3_f32 v{m}, v{m}, v{vals[i]}, v{vals[i+1]}")
    a(f"v_max_f32 v{m}, v{m}, v{vals[23]}")
    a(f"v_mov_b32 v{t}, v{m}")
    a("s_nop 1")
    a(f"v_permlane32_swap_b32 v{m}, v{t}")
    a(f"v_max_f32 v{m}, v{m}, v{t}")
    a(f"v_mul_f32 v{m}, s{sCS}, v{m}")
    for v in vals:
        a(f"v_fma_f32 v{v}, v{v}, s{sCS}, -v{m}")
    L = SP
    for i in range(10): a(f"v_exp_f32 v{vals[i]}, v{vals[i]}")
    for j in range(4): a(f"v_cvt_pk_bf16_f32 v{PC+j}, v{SC+2*j}, v{SC+2*j+1}")
    for i in range(10, 13): a(f"v_exp_f32 v{vals[i]}, v{vals[i]}")
    a(mf32(vr(O, 16), vr(Vc, 4), vr(PC, 4), 0))
    for i in range(13, 18): a(f"v_exp_f32 v{vals[i]}, v{vals[i]}")
    a(mf16(vr(L, 4), ar(aONE, 4), vr(PC, 4), 0))
    for j in range(4, 8): a(f"v_cvt_pk_bf16_f32 v{PC+j}, v{SC+2*j}, v{SC+2*j+1}")
    for i in range(18, 20): a(f"v_exp_f32 v{vals[i]}, v{vals[i]}")
    a(mf32(vr(O, 16), vr(Vc+4, 4), vr(PC+4, 4), vr(O, 16)))
    for i in range(20, 24): a(f"v_exp_f32 v{vals[i]}, v{vals[i]}")
    a(mf16(vr(L, 4), ar(aONE, 4), vr(PC+4, 4), vr(L, 4)))
    for j in range(4): a(f"v_cvt_pk_bf16_f32 v{PP+j}, v{SP+8+2*j}, v{SP+9+2*j}")
    a("s_nop 1")
    a(mf16(vr(L, 4), ar(aONE, 4), vr(PP, 4), vr(L, 4)))
    a(mf32(vr(O, 16), vr(Vp1, 4), vr(PP, 4), vr(O, 16)))
    a(f"s_add_u32 s36, s{sOst}, {OB_OFF + off}")
    a("s_nop 5")
    a(f"v_rcp_f32 v{m}, v{L}")
    a("s_nop 3")
    for i in range(16):
        a(f"v_mul_f32 v{O+i}, v{O+i}, v{m}")
    pack(a, O)
    a.emit((f"buffer_store_dwordx4 {vr(O, 4)}, v{vL16}, {WS}, s36 offen sc1", tag))
    a.emit((f"buffer_store_dwordx4 {vr(O+4, 4)}, v{vL16}, {WS}, s36 offen offset:1024 sc1", tag))

def flag_store(sreg, vtmp, tag):
    return [f"v_mov_b32 v{vtmp}, s{sNONCE}", (f"buffer_store_dword v{vtmp}, v{vF0}, {WS}, s{sreg} offen sc1", tag)]

def poll_check(a, name, vdst, vaddr, sreg, tag, mask=-1):
    a.emit(a.wait([tag]))
    a(f"v_cmp_ne_u32 vcc, s{sNONCE}, v{vdst}")
    a("s_nop 3")
    a(f"s_and_b32 s{sSpin}, vcc_lo, {mask}")
    a(f"s_cbranch_scc1 {name}_S")
    a(f"{name}_R:")
    a.tail.append(f"""{name}_S:
    s_mov_b32 s{sSpin}, 0
{name}_L:
    buffer_load_dword v{vdst}, v{vaddr}, {WS}, s{sreg} offen sc1
    s_add_u32 s{sSpin}, s{sSpin}, 1
    s_waitcnt vmcnt(0)
    v_cmp_ne_u32 vcc, s{sNONCE}, v{vdst}
    s_cmp_lt_u32 s{sSpin}, 0x40000
    s_cbranch_scc0 {name}_R
    s_nop 2
    s_and_b32 vcc_hi, vcc_lo, {mask}
    s_cbranch_scc1 {name}_L
    s_branch {name}_R""")

def e1(a):
    o = a.opts
    a(f"s_add_u32 s36, s{sKVdst}, {KV_LDS[0]}")
    a(f"v_add_u32 v22, s36, v{vL16}")
    a(f"v_add_u32 v{vL16b}, 4096, v{vL16}")
    a(f"s_add_u32 s25, s{sKVsrc}, 4096")
    a(f"s_mov_b32 s26, s{sKVsrc}")
    pack(a, KB[1], pKB[1]); pack(a, VB[1], pVB[1])
    st = []
    halo = [[(f"buffer_store_dwordx4 {vr(pKB[1], 4)}, v{vL16}, {WS}, s{sHalo} offen sc1", "halo")],
            [(f"buffer_store_dwordx4 {vr(pKB[1]+4, 4)}, v{vL16}, {WS}, s{sHalo} offen offset:1024 sc1", "halo")],
            [(f"buffer_store_dwordx4 {vr(pVB[1]+4, 4)}, v{vL16}, {WS}, s{sHalo} offen offset:2048 sc1", "halo")]]
    kv = []; dsw = []
    for rt in range(2):
        for (blk, f0) in ((pKA[rt], 0), (pVA[rt], 2)):
            for f in range(2):
                off = (f0 + f)*1024
                kv.append([(f"buffer_store_dwordx4 {vr(blk+4*f, 4)}, v{vL16}, {WS}, s{26 if rt == 0 else 25} offen offset:{off} sc1", "kv")])
                dsw.append([f"ds_write_b128 v22, {vr(blk+4*f, 4)} offset:{rt*4096 + off}"])
    for g in halo:
        for s in g: a.emit(s)
    w = packl(KA[0], pKA[0]) + packl(VA[0], pVA[0]) + packl(KA[1], pKA[1]) + packl(VA[1], pVA[1])
    weave(a, w, [kv.pop(0)], 10, 100)
    w = packl(QB[0], pQB[0]) + packl(QB[1], pQB[1]) + packl(KB[0], pKB[0]) + packl(VB[0], pVB[0])
    for q in QA:
        w += [f"v_pk_mul_f32 {vr(q+2*j, 2)}, {vr(q+2*j, 2)}, s[62:63]" for j in range(8)] + packl(q)
    weave(a, w, dsw, 0, 8)
    for s in kv.pop(0): a.emit(s)
    a.stamp("e1pack")
    lt = L()
    local_tile(lt, pQB[1], pKB[1], pVB[1], pKB[0], pVB[0]+4, 128, 144, 176, 240, 248, 252, 65536, "ob1")
    a.ob1 = lt[-2:]; lt = lt[:-2]
    weave(a, lt, [kv.pop(0), kv.pop(0)], o.get("st_a", 30), o.get("st_b", 60))
    a("s_mov_b32 s35, s36")
    a.ob1 = [(x[0].replace(", s36 ", ", s35 "), x[1]) for x in a.ob1]
    a.kv_left = kv
    a.stamp("loc1")
    a.emit(a.wait(["halo", "nonce"], lgkm=True))
    a(f"v_readfirstlane_b32 s{sNONCE}, v21")
    a(f"s_add_u32 s36, s28, {F_H}")
    a("s_barrier")
    a(f"s_cmp_eq_u32 s{sNONCE}, 0")
    a("s_cbranch_scc1 L_NONCE_S")
    a("L_NONCE_R:")
    a.tail.append(f"""L_NONCE_S:
    s_mov_b32 s{sSpin}, 0
L_NONCE_L:
    global_load_dword v21, v19, s[{sPDbg}:{sPDbg+1}] sc1
    s_add_u32 s{sSpin}, s{sSpin}, 1
    s_waitcnt vmcnt(0)
    v_readfirstlane_b32 s{sNONCE}, v21
    s_cmp_lt_u32 s{sSpin}, 0x40000
    s_cbranch_scc0 L_NONCE_R
    s_nop 2
    s_cmp_eq_u32 s{sNONCE}, 0
    s_cbranch_scc1 L_NONCE_L
    s_branch L_NONCE_R""")
    for s in flag_store(36, 20, "fH"): a.emit(s)
    for i in range(8): a(f"v_mov_b32 v{56+i}, v{176+i}")
    a.ob1 = [(a.ob1[0][0].replace("v[176:179]", "v[56:59]"), "ob1"), (a.ob1[1][0].replace("v[180:183]", "v[60:63]"), "ob1")]
    a.stamp("fH")

sKVp, sKVg, sOg, sPFW = 84, 98, 100, 52
vL16b = 5
def kv_dma(slot, group, tag):
    out = [f"s_add_u32 m0, s{sKVdst}, {KV_LDS[slot] + group*4096}"]
    for p in range(4):
        out.append((f"global_load_lds_dwordx4 v{vL16b if group else vL16}, s[{sKVg}:{sKVg+1}] offset:{p*1024} sc1", tag))
    return out
def kv_advance():
    return [f"s_add_u32 s{sKVt}, s{sKVt}, 32768", f"s_and_b32 s{sKVt}, s{sKVt}, 0x7ffff",
            f"s_add_u32 s{sKVg}, s{sKVp}, s{sKVt}", f"s_addc_u32 s{sKVg+1}, s{sKVp+1}, 0"]

def H(a, q, vpar, qk=True, pv=True, pv_first=False, slots=None):
    slots = slots or {}
    o = 1 - q
    e = [f"v_exp_f32 v{S[q]+i}, v{S[q]+i}" for i in range(16)]
    c = [f"v_cvt_pk_bf16_f32 v{P[q]+j}, v{S[q]+2*j}, v{S[q]+2*j+1}" for j in range(8)]
    So, Oo, Lo = vr(S[o], 16), ar(aO[o], 16), ar(aL[o], 4)
    M = [mf32(So, ar(aK, 4), vr(QA[o], 4), vr(NM[o], 16)) if qk else None,
         mf32(So, ar(aK+4, 4), vr(QA[o]+4, 4), So) if qk else None,
         mf32(Oo, ar(aV[vpar], 4), vr(P[o], 4), 0 if pv_first else Oo) if pv else None,
         mf32(Oo, ar(aV[vpar]+4, 4), vr(P[o]+4, 4), Oo) if pv else None,
         mf16(Lo, ar(aONE, 4), vr(P[o], 4), 0 if pv_first else Lo) if pv else None,
         mf16(Lo, ar(aONE, 4), vr(P[o]+4, 4), Lo) if pv else None]
    V = [[e[0], e[1], e[2]], [e[3], c[0], c[1], e[4]], [e[5], e[6], e[7]], [c[2], c[3], e[8], e[9]],
         [e[10], e[11], c[4], c[5]], [e[12], e[13], e[14], e[15], c[6], c[7]]]
    if not pv: V[3] = ["s_nop 0"] + V[3]
    for i in range(6):
        if M[i]: a(M[i])
        for s in slots.get(i, []): a.emit(s)
        for s in V[i]: a(s)

def rdK(slot, off): return [f"ds_read_b128 {ar(aK, 4)}, v{vKV[slot]} offset:{off}", f"ds_read_b128 {ar(aK+4, 4)}, v{vKV[slot]} offset:{off+1024}"]
def rdV(par, slot, off): return [f"ds_read_b128 {ar(aV[par], 4)}, v{vKV[slot]} offset:{off+2048}", f"ds_read_b128 {ar(aV[par]+4, 4)}, v{vKV[slot]} offset:{off+3072}"]

FREE_A = [0, 3, 4]; FREE_B = [2, 3, 4, 5]
TORD = [0, 2, 1, 3]
def tile(a, n, side=None, end_b=None):
    sa = {}; sb = {}
    if n < 63:
        m = n + 1
        k = rdK((m >> 2) & 1, TORD[m & 3]*4096); v = rdV(m & 1, (m >> 2) & 1, TORD[m & 3]*4096)
        sa[1] = [k[0]]; sa[2] = [k[1]]; sa[5] = ["s_waitcnt lgkmcnt(0)"]
        sb[0] = [v[0]]; sb[1] = [v[1]]
    if side is not None:
        for g in FREE_A:
            if side: sa.setdefault(g, []).extend(side.pop(0))
        for g in (FREE_B if end_b is None else FREE_B[:-1]):
            if side: sb.setdefault(g, []).extend(side.pop(0))
    if end_b: sb.setdefault(5, []).extend(end_b)
    H(a, 0, (n - 1) & 1, pv=(n != 0), pv_first=(n == 1), slots=sa)
    H(a, 1, n & 1, qk=(n < 63), pv_first=(n == 0), slots=sb)

def neg_max(a):
    for q in range(2): a(f"v_mov_b32 v{21+q}, v{19+q}")
    a("s_nop 0")
    for q in range(2): a(f"v_permlane32_swap_b32 v{19+q}, v{21+q}")
    for q in range(2): a(f"v_max_f32 v{19+q}, v{19+q}, v{21+q}")
    for q in range(2):
        for i in range(16): a(f"v_sub_f32 v{NM[q]+i}, 0, v{19+q}")

def gate_compute(a):
    z, t = 23, 24
    for i in range(16):
        a(f"v_accvgpr_read_b32 v{96+(i%4)}, a{aGATE+i}")
        a(f"v_accvgpr_read_b32 v{100+(i%4)}, a{aGATE+16+i}")
        a(f"v_dot2_f32_bf16 v{z}, v{96+(i%4)}, v{100+(i%4)}, {0 if i == 0 else 'v%d' % z}")
    a("s_nop 2")
    for sh in (8, 4, 2, 1):
        a(f"v_add_f32_dpp v{z}, v{z}, v{z} row_ror:{sh} row_mask:0xf bank_mask:0xf")
        a("s_nop 1")
    a(f"v_mov_b32 v{t}, v{z}")
    a("s_nop 1")
    a(f"v_permlane16_swap_b32 v{z}, v{t}")
    a(f"v_add_f32 v{z}, v{z}, v{t}")
    a(f"v_mul_f32 v{z}, {f2u(-math.log2(math.e))}, v{z}")
    a(f"v_exp_f32 v{z}, v{z}")
    a(f"v_and_b32 v{t}, 31, v{vLANE}")
    a(f"v_add_f32 v{z}, 1.0, v{z}")
    a(f"v_rcp_f32 v{z}, v{z}")
    a(f"v_min_u32 v{t}, 1, v{t}")
    a(f"v_lshlrev_b32 v{t}, 31, v{t}")
    a(f"v_lshl_or_b32 v{t}, v{vGrow}, 2, v{t}")
    a(f"s_mov_b32 s36, {G_OFF}")
    a.emit((f"buffer_store_dword v{z}, v{t}, {WS}, s36 offen sc1", "g"))

def p4_setup(a):
    srd(a, sWoA, sPWoA, sPWoA+1, 1024*1024*2)
    srd(a, sWoB, sPWoB, sPWoB+1, 1024*1024*2)
    srd(a, sOutD, sPOut, sPOut+1, 2048*1024*2)
    a("s_and_b32 s36, s2, 7")
    a("s_lshr_b32 s37, s2, 3")
    a(f"s_and_b32 s{sC4}, s37, 15")
    a("s_lshr_b32 s37, s37, 4")
    a("s_lshl_b32 s36, s36, 1")
    a(f"s_add_u32 s{sT4}, s36, s37")
    r, c, t0, t1 = 104, 105, 106, 107
    a(f"v_lshrrev_b32 v{r}, 3, v{vLANE}")
    a(f"v_and_b32 v{c}, 7, v{vLANE}")
    a(f"v_lshlrev_b32 v{t0}, 1, v{r}")
    a(f"v_and_b32 v{t0}, 4, v{t0}")
    a(f"v_xor_b32 v{t0}, v{t0}, v{c}")
    a(f"v_lshlrev_b32 v{t0}, 4, v{t0}")
    a(f"v_lshl_add_u32 v{t0}, v{r}, 11, v{t0}")
    a(f"s_lshl_b32 s36, s{sW}, 14")
    a(f"s_lshl_b32 s37, s{sC4}, 7")
    a("s_add_u32 s36, s36, s37")
    a(f"v_add_u32 v{vWo_g}, s36, v{t0}")
    a(f"v_and_b32 v{r}, 15, v{vLANE}")
    a(f"v_lshrrev_b32 v{t0}, 2, v{r}")
    a(f"v_lshrrev_b32 v{t1}, 5, v{vLANE}")
    a(f"v_lshl_add_u32 v{c}, v{t1}, 2, v{t0}")
    a(f"v_lshrrev_b32 v{t0}, 1, v{c}")
    a(f"v_and_b32 v{t0}, 1, v{t0}")
    a(f"v_lshlrev_b32 v{t0}, 6, v{t0}")
    a(f"v_lshl_add_u32 v{t0}, v{c}, 7, v{t0}")
    a(f"v_and_b32 v{t1}, 16, v{vLANE}")
    a(f"v_lshl_add_u32 v{t0}, v{t1}, 1, v{t0}")
    a(f"v_and_b32 v{t1}, 3, v{r}")
    a(f"v_lshl_add_u32 v{vWo_r[0]}, v{t1}, 3, v{t0}")
    a(f"v_xor_b32 v{vWo_r[1]}, 64, v{vWo_r[0]}")
    for b in (1, 2):
        for ct in range(2):
            a(f"v_add_u32 v{vWo_r[2*b+ct]}, {b*65536}, v{vWo_r[ct]}")
    a(f"s_lshl_b32 s36, s{sT4}, 2")
    a(f"s_add_u32 s36, s36, s{sW}")
    a(f"s_lshl_b32 s{sOrow}, s36, 16")
    a(f"s_lshr_b32 s36, s36, 1")
    a(f"s_lshl_b32 s29, s36, 7")
    a(f"s_lshl_b32 s{sOoff}, s{sC4}, 12")
    a(f"s_lshl_b32 s{sWooff}, s{sC4}, 17")
    a(f"v_and_b32 v16, 31, v{vLANE}")
    a("v_lshlrev_b32 v16, 2, v16")
    a(f"s_add_u32 s36, s{sT}, 1")
    a(f"v_add_u32 v17, s36, v{vLANE}")
    a("v_and_b32 v17, 15, v17")
    a("v_lshlrev_b32 v17, 2, v17")
    a(f"s_add_u32 s36, s{sOrow}, {OB_OFF}")
    a(f"s_add_u32 s{sOg}, s54, s36")
    a(f"s_addc_u32 s{sOg+1}, s55, 0")

def wob_dma(i, tag):
    return [[f"s_mov_b32 s39, {i*65536}"], [f"s_add_u32 m0, s{sWv}, {i*4096}"],
            [(f"buffer_load_dwordx4 v{vWo_g}, s[{sWoB}:{sWoB+3}], s39 offen lds", tag)]]

def attention(a):
    o = a.opts
    a("L_ATT0:")
    for s in rdK(0, 0) + rdV(0, 0, 0): a(s)
    a(f"s_lshl_b32 s{sKVt}, s{sT}, 15")
    for s in kv_advance(): a(s)
    a(f"s_cmp_lg_u32 s{sPASS}, 0")
    a("s_waitcnt lgkmcnt(0)")
    a("s_cbranch_scc1 L_ATT1")
    for q in range(2): a(mf32(vr(S[q], 16), ar(aK, 4), vr(QA[q], 4), 0))
    for q in range(2): a(mf32(vr(S[q], 16), ar(aK+4, 4), vr(QA[q]+4, 4), vr(S[q], 16)))
    kv = a.kv_left
    for s in kv.pop(0): a.emit(s)
    a("s_nop 9")
    for q in range(2):
        s, m = S[q], 19 + q
        a(f"v_max3_f32 v{m}, v{s}, v{s+1}, v{s+2}")
        for i in range(3, 15, 2): a(f"v_max3_f32 v{m}, v{m}, v{s+i}, v{s+i+1}")
        a(f"v_max_f32 v{m}, v{m}, v{s+15}")
    neg_max(a)
    a("L_ATT1:")
    a("s_nop 1")
    a(mf32(vr(S[0], 16), ar(aK, 4), vr(QA[0], 4), vr(NM[0], 16)))
    a(mf32(vr(S[0], 16), ar(aK+4, 4), vr(QA[0]+4, 4), vr(S[0], 16)))
    a("v_mov_b32 v18, 0")
    a("s_nop 9")
    a.stamp("att0")
    gl = [[(f"buffer_load_dwordx4 {ar(aGATE+4*j, 4)}, v9, s[{sX}:{sX+3}], 0 offen offset:{512*j}", "gate")] for j in range(4)]
    gl += [[(f"buffer_load_dwordx4 {ar(aGATE+16+4*j, 4)}, v25, s[56:59], 0 offen offset:{512*j}", "gate")] for j in range(4)]
    pH = [(f"buffer_load_dword v21, v18, {WS}, s33 offen sc1", "pH")]
    tile(a, 0, [kv.pop(0), [], [], kv.pop(0), [], [], kv.pop(0)])
    tile(a, 1, [pH, gl[0], gl[1], gl[2], gl[3], gl[4], gl[5]])
    a.stamp("t01")
    if o.get("fkv_early", 1):
        fs_ = flag_store(32, 20, "fKV")
        tile(a, 2, [gl[6], gl[7], [a.wait(["kv"])] + fs_])
        a.stamp("t2")
    else:
        tile(a, 2, [gl[6], gl[7]])
        a.stamp("t2")
    a(f"s_cmp_lg_u32 s{sPASS}, 0")
    a("s_cbranch_scc1 L_A3")
    if not o.get("fkv_early", 1):
        a.emit(a.wait(["kv"]))
        for s in flag_store(32, 20, "fKV"): a.emit(s)
    a.emit(a.wait(["kv", "gate"]))
    a.stamp("fKV")
    poll_check(a, "L_PH", 21, 18, 33, "pH")
    a(f"s_sub_u32 s38, s{sHalo}, 4096")
    a(f"s_cmp_eq_u32 s{sSeq}, 0")
    a(f"s_cselect_b32 s38, {OOB}, s38")
    a.emit((f"buffer_load_dwordx4 {vr(HK, 4)}, v{vL16}, {WS}, s38 offen sc1", "hl"))
    a.emit((f"buffer_load_dwordx4 {vr(HK+4, 4)}, v{vL16}, {WS}, s38 offen offset:1024 sc1", "hl"))
    a.emit((f"buffer_load_dwordx4 {vr(HV, 4)}, v{vL16}, {WS}, s38 offen offset:2048 sc1", "hl"))
    a("s_cbranch_scc0 L_MASKOK")
    for i in range(8): a(f"v_mov_b32 v{vMc+16+i}, {NEGBIG}")
    a("L_MASKOK:")
    a.stamp("pH")
    for s in a.ob1: a.emit(s)
    gate_compute(a)
    p4_setup(a)
    a.emit((f"buffer_load_dword v21, v17, {WS}, s31 offen sc1", "pKV"))
    a.stamp("fill")
    poll_check(a, "L_PKV", 21, 17, 31, "pKV", mask=o.get("kvmask", 1))
    a("L_A3:")
    a.stamp("pKV")
    for g in range(2):
        for k_, s in enumerate(kv_dma(1, g, f"c1{'ab'[g]}")):
            a.emit(s)
            if k_ == 0: a("s_nop 0")
        if g == 0: a.emit((f"buffer_load_dword v21, v17, {WS}, s31 offen sc1", "pKV2"))
    for s in kv_advance(): a(s)
    a(f"s_cmp_lg_u32 s{sPASS}, 0")
    a("s_cbranch_scc1 L_A4")
    a.emit(a.wait(["hl"]))
    local_tile(a, pQB[0], pKB[0], pVB[0], HK, HV, 96, 112, 208, 168, 236, 23, 0, "ob0")
    a("s_branch L_A5")
    a("L_A4:")
    a("s_waitcnt vmcnt(0)")
    a("L_A5:")
    a.stamp("loc0")
    a.emit(a.wait(["c1a"], lgkm=True))
    a("s_barrier")
    a.pkv2 = True
    a.stamp("c1")
    wob = [i for i in range(24)]
    obl = [i for i in range(64)]
    if o.get('noside'): wob = wob[:1]; obl = obl[:1]
    ob_start = o.get("ob_start", 5)
    obase = False
    for c in range(15):
        V = []; A = []
        side = []
        if c + 2 <= 15:
            d0, d1 = kv_dma(c % 2, 0, f"c{c+2}"), kv_dma(c % 2, 1, f"c{c+2}")
            kvs = [[x] for x in d0] + [[x] for x in d1] + [[x] for x in kv_advance()]
        else:
            kvs = []
        oth = []
        if c == 0:
            oth += [[(f"buffer_load_dword v21, v17, {WS}, s31 offen sc1", "pKV3")]]
        if c == 1:
            oth += [[f"s_lshl_b32 s38, s{sSeq}, 7"], [f"s_lshl_b32 s39, s{sHead}, 2"], ["s_add_u32 s38, s38, s39"],
                    [f"s_add_u32 s35, s38, {F_OB}"], flag_store(35, 20, "fOB")]
        if c == ob_start - 2:
            oth += [[f"s_add_u32 s47, s29, {F_OB}"], [(f"buffer_load_dword v21, v16, {WS}, s47 offen sc1", "pOB")]]
        if c == o.get("cpf2", 11) or (o.get("cpfn") and c % o["cpfn"] == 2):
            oth += [[(f"buffer_load_dword v{vPFd}, v{vT[7]}, s[{sCode}:{sCode+3}], 0 offen", "cpf")]]
        nslots = 4*7 - 1 - (c == 0)
        if c >= ob_start:
            for _ in range(min(len(obl), o.get("ob_per", 8))):
                i = obl.pop(0)
                oth.append([(f"global_load_dwordx4 {oreg(i)}, v{vL16b if (i & 4) else vL16}, s[{sOg}:{sOg+1}] offset:{(i % 4)*1024} sc1", "obl")])
                if i % 8 == 7:
                    oth += [[f"s_add_u32 s{sOg}, s{sOg}, 8192"], [f"s_addc_u32 s{sOg+1}, s{sOg+1}, 0"]]
        wl = o.get("wol2", 6)
        if wl <= c < wl + 8:
            oth.append([(f"global_load_dword v{vPFd}, v0, s[{sPWoA}:{sPWoA+1}] offset:{((c - wl) & 1)*2048}", "wopf")] + (["v_add_u32 v0, 4096, v0"] if (c - wl) & 1 else []))
        while wob and len(kvs) + len(oth) + 3 <= nslots:
            oth += wob_dma(wob.pop(0), "wob")
        side = kvs + oth
        while len(side) > nslots:
            for k in range(len(side) - 1):
                if all(isinstance(x, str) and x.startswith("s_") and "m0" not in x for x in side[k]):
                    side[k+1] = side[k] + side[k+1]; side.pop(k); break
            else:
                raise Exception("slots")
        n = len(side)
        if n < nslots and o.get("spread", 1):
            sp = [[] for _ in range(nslots)]
            for k, g in enumerate(side): sp[k*nslots//n] = g
            side = sp
        if c == 0:
            poll_check(a, "L_PKV2", 21, 17, 31, "pKV2", mask=2)
        if c == 1:
            poll_check(a, "L_PKV3", 21, 17, 31, "pKV3", mask=0xffff)
        if c == ob_start - 1:
            poll_check(a, "L_POB", 21, 16, 47, "pOB")
        tile(a, 4*c + 3, side)
        tile(a, 4*c + 4, side, end_b=[a.wait(["c1b"]), "s_barrier"] if c == 0 else None)
        tile(a, 4*c + 5, side)
        tile(a, 4*c + 6, side, end_b=[a.wait([f"c{c+2}"], lgkm=True) if c + 2 <= 15 else "s_waitcnt lgkmcnt(0)", "s_barrier"])
        assert not side
        if c in (4, 9): a.stamp(f"c{c}")
    assert not wob and not obl, (wob, obl)
    tile(a, 63)
    a("s_nop 1")
    a(mf32(ar(aO[1], 16), ar(aV[1], 4), vr(P[1], 4), ar(aO[1], 16)))
    a(mf16(ar(aL[1], 4), ar(aONE, 4), vr(P[1], 4), ar(aL[1], 4)))
    a(mf32(ar(aO[1], 16), ar(aV[1]+4, 4), vr(P[1]+4, 4), ar(aO[1], 16)))
    a(mf16(ar(aL[1], 4), ar(aONE, 4), vr(P[1]+4, 4), ar(aL[1], 4)))
    a.stamp("attend")
    a(f"s_add_u32 s36, s{sOst}, {OA_OFF}")
    a(f"s_add_u32 s37, s{sOst}, {OA_OFF + 65536}")
    a(f"v_accvgpr_read_b32 v19, a{aL[0]}")
    for i in range(16): a(f"v_accvgpr_read_b32 v{S[0]+i}, a{aO[0]+i}")
    a("v_rcp_f32 v23, v19")
    a(f"v_accvgpr_read_b32 v20, a{aL[1]}")
    for i in range(16): a(f"v_mul_f32 v{S[0]+i}, v{S[0]+i}, v23")
    pack(a, S[0])
    a("v_rcp_f32 v24, v20")
    a.emit((f"buffer_store_dwordx4 {vr(S[0], 4)}, v{vL16}, {WS}, s36 offen sc1", "oa"))
    a.emit((f"buffer_store_dwordx4 {vr(S[0]+4, 4)}, v{vL16}, {WS}, s36 offen offset:1024 sc1", "oa"))
    for i in range(16): a(f"v_accvgpr_read_b32 v{S[1]+i}, a{aO[1]+i}")
    for i in range(16): a(f"v_mul_f32 v{S[1]+i}, v{S[1]+i}, v24")
    pack(a, S[1])
    a(f"s_mov_b32 s36, {f2u(2.0**40)}")
    a.emit((f"buffer_store_dwordx4 {vr(S[1], 4)}, v{vL16}, {WS}, s37 offen sc1", "oa"))
    a.emit((f"buffer_store_dwordx4 {vr(S[1]+4, 4)}, v{vL16}, {WS}, s37 offen offset:1024 sc1", "oa"))
    a("v_cmp_nge_f32 s[38:39], s36, v19")
    a("v_cmp_nge_f32 vcc, s36, v20")
    a(f"s_lshl_b32 s37, s{sW}, 2")
    a(f"s_add_u32 s37, s37, {KV_LDS[1]}")
    a("v_mov_b32 v22, s37")
    a("s_nop 1")
    a("s_or_b64 vcc, vcc, s[38:39]")
    if o.get("force_fallback"): a("s_mov_b64 vcc, -1")
    a("s_cmp_lg_u64 vcc, 0")
    a("s_cselect_b32 s36, 1, 0")
    a(f"s_andn2_b32 s36, s36, s{sPASS}")
    a("v_mov_b32 v21, s36")
    a("ds_write_b32 v22, v21")
    a(f"v_mov_b32 v22, {KV_LDS[1]}")
    a.emit(a.wait(["wob", "obl"], lgkm=True))
    a("s_barrier")
    a("ds_read_b128 v[20:23], v22")
    for s in p4_reads(0, 0, 0): a(s)
    a("s_waitcnt lgkmcnt(0)")
    a("v_or_b32 v20, v20, v21")
    a("v_or3_b32 v20, v20, v22, v23")
    a("s_nop 0")
    a("v_readfirstlane_b32 s38, v20")
    a("s_nop 3")
    a("s_cmp_lg_u32 s38, 0")
    a("s_cbranch_scc1 L_FALLBACK")
    b = Asm()
    b("L_FALLBACK:")
    b(f"s_mov_b32 s{sPASS}, 1")
    b(f"s_mov_b32 s25, {OOB}")
    b(f"s_mov_b32 s26, {OOB}")
    b(f"v_mov_b32 v19, {NEGBIG}")
    b(f"v_mov_b32 v20, {NEGBIG}")
    b(f"s_lshl_b32 s38, s{sHP}, 19")
    b(f"s_lshl_b32 s39, s{sHH}, 14")
    b("s_add_u32 s38, s38, s39")
    b("s_mov_b32 s39, 0")
    b("L_FB:")
    b("s_and_b32 s36, s39, 3")
    b("s_lshl_b32 s36, s36, 12")
    b("s_lshr_b32 s37, s39, 2")
    b("s_lshl_b32 s37, s37, 15")
    b("s_add_u32 s36, s36, s37")
    b("s_add_u32 s36, s36, s38")
    b(f"buffer_load_dwordx4 {ar(aK, 4)}, v{vL16}, {WS}, s36 offen sc1")
    b(f"buffer_load_dwordx4 {ar(aK+4, 4)}, v{vL16}, {WS}, s36 offen offset:1024 sc1")
    b("s_waitcnt vmcnt(0)")
    for q in range(2): b(mf32(vr(S[q], 16), ar(aK, 4), vr(QA[q], 4), 0))
    for q in range(2): b(mf32(vr(S[q], 16), ar(aK+4, 4), vr(QA[q]+4, 4), vr(S[q], 16)))
    b("s_nop 11")
    for q in range(2):
        for i in range(0, 16, 2): b(f"v_max3_f32 v{19+q}, v{19+q}, v{S[q]+i}, v{S[q]+i+1}")
    b("s_add_u32 s39, s39, 1")
    b("s_cmp_lt_u32 s39, 64")
    b("s_cbranch_scc1 L_FB")
    neg_max(b)
    b(f"s_lshl_b32 s{sKVt}, s{sT}, 15")
    b(f"s_add_u32 s{sKVg}, s{sKVp}, s{sKVt}")
    b(f"s_addc_u32 s{sKVg+1}, s{sKVp+1}, 0")
    b(f"s_add_u32 s36, s{sOrow}, {OB_OFF}")
    b(f"s_add_u32 s{sOg}, s54, s36")
    b(f"s_addc_u32 s{sOg+1}, s55, 0")
    b("v_add_u32 v0, -16384, v0")
    b("s_barrier")
    for g in range(2):
        for k_, s in enumerate(kv_dma(0, g, "")):
            b(s[0] if isinstance(s, tuple) else s)
            if k_ == 0: b("s_nop 0")
    b("s_waitcnt vmcnt(0)")
    b("s_barrier")
    b("s_branch L_ATT0")
    a.tail.append(b.text())

def fW4(fs, i, ct): return fs*32 + i*8 + ct*4
def p4_lds(g):
    return g*32768 if g < 4 else [131072, 0, 32768, 65536][g - 4]
def p4_reads(fs, g, grp):
    out = []
    base = p4_lds(g)
    for i in range(4):
        for ct in range(2):
            off = base % 65536 + (grp*4 + i)*2048
            v = vWo_r[2*(base // 65536) + ct]
            out.append(f"ds_read_b64_tr_b16 {ar(fW4(fs, i, ct), 2)}, v{v} offset:{off}")
            out.append(f"ds_read_b64_tr_b16 {ar(fW4(fs, i, ct)+2, 2)}, v{v} offset:{off+1024}")
    return out
def woa_dma(g, i):
    return [[f"s_add_u32 m0, s{sWv}, {p4_lds(g) + i*4096}"],
            [(f"buffer_load_dwordx4 v{vWo_g}, s[{sWoA}:{sWoA+3}], s{sWooff} offen lds", f"wo{g}"),
             f"s_add_u32 s{sWooff}, s{sWooff}, 65536", f"s_and_b32 s{sWooff}, s{sWooff}, 0x1fffff"]]
def oa_load(i):
    out = [(f"buffer_load_dwordx4 {oreg(i)}, v{vL16}, {WS}, s{sO} offen offset:{(i % 4)*1024} sc1", f"oa{i}")]
    if i % 4 == 3:
        out += [f"s_add_u32 s{sOoff}, s{sOoff}, 4096", f"s_and_b32 s{sOoff}, s{sOoff}, 0xffff", f"s_add_u32 s{sO}, s{sObase}, s{sOoff}"]
    return out

def phase4(a):
    o = a.opts
    a(f"s_add_u32 s{sObase}, s{sOrow}, {OA_OFF}")
    a(f"s_add_u32 s{sO}, s{sObase}, s{sOoff}")
    a(f"s_lshl_b32 s38, s{sSeq}, 7")
    a(f"s_lshl_b32 s39, s{sHead}, 2")
    a("s_add_u32 s38, s38, s39")
    a(f"s_add_u32 s35, s38, {F_OA}")
    a(f"s_add_u32 s47, s29, {F_OA}")
    a(f"s_lshl_b32 s36, s{sT4}, 9")
    a(f"s_lshl_b32 s37, s{sW}, 7")
    a("s_add_u32 s36, s36, s37")
    a(f"s_add_u32 s36, s36, {G_OFF}")
    a.stamp("p4start")
    flag_at = o.get("oaflag_gap", 10)
    poll_at = o.get("oapoll_gap", 80)
    chk_at = o.get("oachk_gap", 92)
    side = {}
    def put(k, l): side.setdefault(k, []).extend(l)
    put(0, [(f"buffer_load_dword v{vGate}, v16, {WS}, s36 offen sc1", "gl")])
    put(flag_at, [a.wait(["oa"])]); put(flag_at + 1, flag_store(35, 20, "fOA"))
    put(poll_at, [(f"buffer_load_dword v21, v16, {WS}, s47 offen sc1", "pOA")])
    lat = o.get("p4lat", 20)
    jobs = [[26 if False else flag_at + 2, 32*2 + 23 - lat, "wb", i] for i in range(24, 32)]
    for g in range(4, 8):
        e = {4: 26, 5: 26, 6: 56, 7: 88}[g]
        jobs += [[e, 32*(g - 1) + 23 - lat, "wa", (g, i)] for i in range(8)]
    jobs += [[max(chk_at + 1, 2*i + 2), 128 + 2*i - lat, "oa", i] for i in range(64)]
    gap = o.get("p4gap", 2.0)
    t = float(flag_at + 2)
    quiet = range(poll_at - o.get("p4quiet", 4), poll_at + 1)
    while jobs:
        k = int(t)
        av = [j for j in jobs if j[0] <= k]
        if not av or k in quiet:
            t = k + 1; continue
        j = min(av, key=lambda j: j[1])
        jobs.remove(j)
        if j[2] == "wb":
            d = wob_dma(j[3], "wo3"); put(k - 1, d[0] + d[1]); put(k, d[2])
        elif j[2] == "wa":
            d = woa_dma(*j[3]); put(k - 1, d[0]); put(k, d[1])
        else:
            put(k, oa_load(j[3]))
        if k > j[1]: print("p4 late", j, k)
        t += gap
    idx = 0
    for g in range(8):
        br = g // 4
        for grp in range(4):
            fs = grp & 1
            rd = p4_reads(1 - fs, g, grp + 1) if grp < 3 else (p4_reads(1 - fs, g + 1, 0) if g < 7 else [])
            for j in range(8):
                i, ct = j // 2, j % 2
                k16 = (g % 4)*16 + grp*4 + i
                if br == 1 and ct == 0:
                    n = a.vmn([f"oa{k16}"])
                    a(f"s_waitcnt vmcnt({n})")
                d = vr(ACC4[br][ct], 16)
                a(mf32(d, ar(fW4(fs, i, ct), 4), oreg(k16), 0 if k16 == 0 else d))
                for s in rd[3*j:3*j+3] if j < 5 else (rd[15:] if j == 5 else []): a(s)
                for s in side.pop(idx, []): a.emit(s)
                if idx == flag_at + 1: a.stamp("fOA")
                if idx == chk_at:
                    poll_check(a, "L_POA", 21, 16, 47, "pOA")
                    a.stamp("pOA")
                idx += 1
            if grp == 2 and g < 7:
                nxt = f"wo{g+1}"
                a.emit(a.wait([nxt], lgkm=True) if nxt in a.vm else "s_waitcnt lgkmcnt(0)")
                a("s_barrier")
            elif rd:
                a("s_waitcnt lgkmcnt(0)")
        if g == 3: a.stamp("p4B")
    assert not side, side.keys()
    a.stamp("p4A")
    a(f"v_sub_f32 v8, 1.0, v{vGate}")
    a(f"v_and_b32 v19, 31, v{vLANE}")
    a(f"v_lshrrev_b32 v20, 5, v{vLANE}")
    a("v_lshlrev_b32 v20, 4, v20")
    a("v_lshl_add_u32 v19, v19, 11, v20")
    a(f"s_lshl_b32 s36, s{sT4}, 18")
    a(f"s_lshl_b32 s37, s{sW}, 16")
    a("s_add_u32 s36, s36, s37")
    a(f"s_lshl_b32 s37, s{sC4}, 7")
    a("s_add_u32 s36, s36, s37")
    for ct in range(2):
        for i in range(16): a(f"v_mul_f32 v{ACC4[0][ct]+i}, v{ACC4[0][ct]+i}, v8")
    for ct in range(2):
        B_, A_ = ACC4[0][ct], ACC4[1][ct]
        for i in range(16): a(f"v_fma_f32 v{B_+i}, v{A_+i}, v{vGate}, v{B_+i}")
        pack(a, B_)
        a("s_nop 1")
        for k in (0, 2):
            a(f"v_permlane32_swap_b32 v{B_+2*k}, v{B_+2*k+2}")
            a(f"v_permlane32_swap_b32 v{B_+2*k+1}, v{B_+2*k+3}")
        for k in (0, 2):
            a.emit((f"buffer_store_dwordx4 {vr(B_+2*k, 4)}, v19, s[{sOutD}:{sOutD+3}], s36 offen offset:{ct*64 + k*16}", "out"))

def gen(opts):
    a = G(opts); a.tail = []
    setup(a); gemm1(a); e1(a); attention(a); phase4(a)
    if opts.get("diag") is not None:
        a.stamp("end")
        a("s_nop 1")
        a(f"v_readlane_b32 s36, v{vSTAMP}, {32 + opts['diag']}")
        a("s_nop 3")
        a("s_add_u32 s36, s36, 10000")
        a("L_DIAG:")
        a("s_memrealtime s[38:39]")
        a("s_waitcnt lgkmcnt(0)")
        a("s_sub_u32 s38, s38, s36")
        a("s_cmp_lt_i32 s38, 0")
        a("s_cbranch_scc1 L_DIAG")
    elif opts.get("dbgstamp"):
        a.stamp("end")
        sel = ["karg", "first", "g7", "g15", "g23", "g31", "loc1", "pKV", "c1", "c9", "attend", "pOA", "p4B", "p4A", "end"]
        a(f"s_cmp_lg_u32 s2, {opts['dbgstamp']-1}")
        a("s_cbranch_scc1 L_DBGX")
        a(f"s_cmp_lg_u32 s{sW}, 0")
        a("s_cbranch_scc1 L_DBGX")
        a(f"v_readlane_b32 s36, v{vSTAMP}, 32")
        for i, nm in enumerate(sel):
            a(f"v_readlane_b32 s37, v{vSTAMP}, {32 + a.names.index(nm)}")
            a("s_nop 3")
            a("s_sub_u32 s37, s37, s36")
            a("v_mov_b32 v2, s37")
            a("v_mov_b32 v3, 0")
            a(f"global_store_dword v3, v2, s[{sPDbg}:{sPDbg+1}] offset:{4*(i+1)}")
        a("L_DBGX:")
    elif opts.get("stamp"):
        a.stamp("end")
        a("s_lshl_b32 s36, s2, 2")
        a(f"s_add_u32 s36, s36, s{sW}")
        a("s_lshl_b32 s36, s36, 8")
        a(f"s_add_u32 s36, s36, {STAMP_OFF}")
        a(f"v_lshlrev_b32 v2, 2, v{vLANE}")
        a(f"buffer_store_dword v{vSTAMP}, v2, {WS}, s36 offen")
    a("s_endpgm")
    for t in a.tail: a(t)
    head = f"""; gated mix of full MHA and dilated sliding-window attention: one fused kernel, 256 co-resident workgroups
; @launch grid=(256,1,1) block=(256,1,1) lds=163840
.amdgcn_target "amdgcn-amd-amdhsa--gfx950"
.text
.globl {KNAME}
.p2align 8
.type {KNAME},@function
{KNAME}:
"""
    tail = f"""L_END:
    s_endpgm
.section .rodata,"a"
.p2align 6
.amdhsa_kernel {KNAME}
  .amdhsa_next_free_vgpr 512
  .amdhsa_next_free_sgpr 102
  .amdhsa_accum_offset 256
  .amdhsa_group_segment_fixed_size 0
  .amdhsa_kernarg_size 80
  .amdhsa_user_sgpr_count 2
  .amdhsa_user_sgpr_kernarg_segment_ptr 1
  .amdhsa_system_sgpr_workgroup_id_x 1
.end_amdhsa_kernel
"""
    gen.names = a.names
    return head + a.text() + tail

if __name__ == "__main__":
    import hazard
    opts = {}
    for kv in sys.argv[2:]:
        k, v = kv.split("="); opts[k] = int(v)
    t = gen(opts)
    open(sys.argv[1], "w").write(t)
    print(len(hazard.check(t)), "hazards", gen.names)
```

```python
import sys, struct, math
from asmlib import *

KNAME = "gated_mix__softmax_full_mha__sliding_local_dilated__prompt_kernel"
def f2u(x): return struct.unpack("<I", struct.pack("<f", x))[0]
KV_OFF   = 0
OA_OFF   = 8 << 20
OB_OFF   = 12 << 20
HALO_OFF = 16 << 20
G_OFF    = 20 << 20
FLAG_OFF = 21 << 20
F_KV, F_H, F_OB, F_OA = FLAG_OFF, FLAG_OFF + 4096, FLAG_OFF + 8192, FLAG_OFF + 12288
STAMP_OFF = 0x8000000
OOB = 0x80000000
CSCALE = f2u(math.log2(math.e) / math.sqrt(32.0))
NEGBIG = f2u(-1e30)
X_SLOT = 16384; W_BASE = 49152; W_SLOT = 24576
KV_LDS = [98304, 131072]
sX, sWA, sWB, sWS = 4, 8, 12, 16
sW, sHP, sT, sRH, sHH = 20, 21, 22, 23, 24
sWoff, sXoff = 25, 26
sXw, sWv = 30, 34
sPF, sPFoff, sPFstr, sPFlim = 40, 44, 45, 46
sNONCE, sCS = 60, 61
sSTAMPI = 68
sPWoA, sPWoB, sPG, sPOut, sPDbg = 70, 72, 74, 76, 78
sKVsrc, sKVbase, sKVt, sKVdst = 80, 81, 82, 27
sPASS, sOst, sSpin = 83, 86, 87
sT4, sC4, sOoff, sWooff, sObase = 88, 89, 90, 91, 92
sHalo, sSeq, sO, sOrow, sHead = 93, 94, 95, 96, 97
sWoA, sWoB, sOutD = 4, 8, 12
sCode = 48
vLANE = 1
vXr = [2, 3, 4, 5]; vWr = [10, 11]; vWg = [12, 13, 14]; vXg = [15, 16, 17, 18]
vT = [19, 20, 21, 22, 23, 24, 25, 26]
vPF, vPFd, vL16, vSTAMP, vF0 = 27, 28, 29, 30, 31
vMc = 32
ACC0 = 64
def acc(blk, rt): return ACC0 + (blk*2 + rt)*16
QA = [64, 80]; KA = [96, 112]; VA = [128, 144]; QB = [160, 176]; KB = [192, 208]; VB = [224, 240]
NM = [128, 144]; S = [176, 240]; P = [72, 88]
vKV = [6, 7]
vWo_g = 2; vWo_r = [3, 4, 10, 11, 12, 13]
vGate, vGrow = 14, 8
HK = 200; HV = 232
def fX(s, rt): return s*32 + rt*4
def fW(s, blk): return s*32 + 8 + blk*4
aK, aV = 0, [8, 16]
aO = [32, 48]; aL = [64, 68]; aONE = 72
aGATE = 76
OV = list(range(96, 128, 4)) + list(range(160, 176, 4)) + list(range(192, 240, 4))
def oreg(i): return ar(76 + 4*i, 4) if i < 45 else vr(OV[i - 45], 4)
ACC4 = [[64, 80], [128, 144]]
pKA = [96, 112]; pVA = [104, 120]; pQB = [160, 168]; pKB = [192, 208]; pVB = [224, 216]

def mf32(d, A, B, C): return f"v_mfma_f32_32x32x16_bf16 {d}, {A}, {B}, {C}"
def mf16(d, A, B, C): return f"v_mfma_f32_16x16x32_bf16 {d}, {A}, {B}, {C}"
WS = f"s[{sWS}:{sWS+3}]"

class G(Asm):
    def __init__(self, opts):
        super().__init__()
        self.opts = opts
        self.vm = []
        self.nstamp = 0
        self.names = []
    def emit(self, x):
        if callable(x): x = x()
        if x is None: return
        if isinstance(x, tuple):
            self(x[0]); self.vm.append(x[1])
        else:
            assert not (x.lstrip().startswith(("buffer_", "global_"))), x
            self(x)
    def vmn(self, tags):
        idx = [i for i, t in enumerate(self.vm) if t in tags]
        assert idx, tags
        n = len(self.vm) - 1 - max(idx)
        return min(n, 63)
    def wait(self, tags, lgkm=False):
        return lambda: f"s_waitcnt vmcnt({self.vmn(tags)})" + (" lgkmcnt(0)" if lgkm else "")
    def stamp(self, name):
        if not self.opts.get("stamp"): return
        self.names.append(name)
        a = self
        a("s_memtime s[66:67]")
        a("s_memrealtime s[64:65]")
        a("s_waitcnt lgkmcnt(0)")
        a(f"v_writelane_b32 v{vSTAMP}, s66, {self.nstamp}")
        a(f"v_writelane_b32 v{vSTAMP}, s64, {self.nstamp + 32}")
        self.nstamp += 1
        assert self.nstamp <= 32
    def inter(self, mains, sides):
        for i, m in enumerate(mains):
            if m is not None: self.emit(m)
            for s in sides.get(i, []): self.emit(s)

def srd(a, s, lo, hi, nbytes):
    a(f"s_mov_b32 s{s}, s{lo}")
    a(f"s_and_b32 s{s+1}, s{hi}, 0xffff")
    a(f"s_mov_b32 s{s+2}, {nbytes}")
    a(f"s_mov_b32 s{s+3}, 0x20000")

def pf_round(a):
    return [(f"buffer_load_dword v{vPFd}, v{vPF}, s[{sPF}:{sPF+3}], s{sPFoff} offen", "pf"),
            f"s_add_u32 s{sPFoff}, s{sPFoff}, s{sPFstr}"]

class P1:
    def __init__(self, a):
        self.a = a; self.woff = None; self.xoff = None
    def dma(self, piece):
        kind, j, p = piece
        pre = []
        if kind == "W":
            if self.woff != j:
                pre.append(f"s_mov_b32 s{sWoff}, {j*196608}"); self.woff = j
            s = sWA if p < 3 else sWB
            pre.append(f"s_add_u32 m0, s{sWv}, {W_BASE + (j % 4)*W_SLOT + p*4096}")
            return pre, (f"buffer_load_dwordx4 v{vWg[p % 3]}, s[{s}:{s+3}], s{sWoff} offen lds", f"W{j}")
        if self.xoff != j:
            pre.append(f"s_mov_b32 s{sXoff}, {j*128}"); self.xoff = j
        pre.append(f"s_add_u32 m0, s{sXw}, {(j % 3)*X_SLOT + p*1024}")
        return pre, (f"buffer_load_dwordx4 v{vXg[p]}, s[{sX}:{sX+3}], s{sXoff} offen lds", f"X{j}")

def frag_reads(fs, u, k16):
    kk = 2*(u & 1) + k16
    out = [f"ds_read_b128 {ar(fX(fs, rt), 4)}, v{vXr[kk]} offset:{((u >> 1) % 3)*X_SLOT + rt*4096}" for rt in range(2)]
    ws = u % 4
    for blk in range(6):
        off = (ws % 2)*W_SLOT + blk*4096 + k16*2048
        out.append(f"ds_read_b64_tr_b16 {ar(fW(fs, blk), 2)}, v{vWr[ws//2]} offset:{off}")
        out.append(f"ds_read_b64_tr_b16 {ar(fW(fs, blk)+2, 2)}, v{vWr[ws//2]} offset:{off+512}")
    return out

def g1_mfma(fs, blk, rt):
    d = vr(acc(blk, rt), 16)
    w, x = ar(fW(fs, blk), 4), ar(fX(fs, rt), 4)
    return mf32(d, x, w, d) if blk % 3 == 2 else mf32(d, w, x, d)

def setup(a):
    o = a.opts
    a("L_START:")
    a("s_cmp_ge_u32 s2, 256")
    a("s_cbranch_scc1 L_END")
    a.stamp("start")
    a("s_load_dwordx4 s[48:51], s[0:1], 0")
    a("s_load_dwordx2 s[52:53], s[0:1], 32")
    a("s_load_dwordx2 s[54:55], s[0:1], 72")
    a(f"s_load_dwordx2 s[{sPWoA}:{sPWoA+1}], s[0:1], 16")
    a(f"s_load_dwordx4 s[{sPWoB}:{sPWoB+3}], s[0:1], 40")
    a(f"s_load_dwordx4 s[{sPOut}:{sPOut+3}], s[0:1], 56")
    a(f"v_and_b32 v{vLANE}, 63, v0")
    a(f"v_lshrrev_b32 v{vT[0]}, 6, v0")
    a("s_and_b32 s3, s2, 7")
    a(f"v_readfirstlane_b32 s{sW}, v{vT[0]}")
    a("s_lshr_b32 s35, s2, 3")
    a("s_and_b32 s37, s3, 3")
    a("s_lshl_b32 s36, s37, 2")
    a("s_and_b32 s38, s35, 3")
    a(f"s_add_u32 s{sHP}, s36, s38")
    a("s_lshr_b32 s39, s3, 2")
    a("s_lshl_b32 s36, s39, 3")
    a("s_lshr_b32 s38, s35, 2")
    a(f"s_add_u32 s{sT}, s36, s38")
    a(f"s_and_b32 s{sRH}, s{sW}, 1")
    a(f"s_lshr_b32 s{sHH}, s{sW}, 1")
    t0, t1, t2 = vT[0], vT[1], vT[2]
    if o.get("pfx"):
        a("s_lshl_b32 s38, s35, 5")
    else:
        a("s_lshl_b32 s38, s37, 5")
        a("s_add_u32 s38, s38, s35")
        a("s_lshl_b32 s38, s38, 3")
    a("s_lshl_b32 s47, s39, 10")
    a("s_add_u32 s38, s38, s47")
    a(f"v_add_u32 v{t0}, s38, v{vLANE}")
    a(f"v_lshlrev_b32 v{t0}, 11, v{t0}")
    if o.get("pfmode", 0) == 0:
        a("s_lshl_b32 s39, s39, 5")
        a("s_add_u32 s39, s39, s35")
        a("s_mul_i32 s39, s39, 6144")
        a("s_lshl_b32 s38, s37, 9")
        a("s_add_u32 s39, s39, s38")
        a(f"v_lshrrev_b32 v{t1}, 2, v{vLANE}")
        a(f"v_lshlrev_b32 v{t1}, 11, v{t1}")
        a(f"v_and_b32 v{t2}, 3, v{vLANE}")
        a(f"v_lshlrev_b32 v{t2}, 7, v{t2}")
        a(f"v_add3_u32 v{t1}, v{t1}, v{t2}, s39")
    elif o.get("pfmode", 0) == 2:
        a("s_mul_i32 s39, s35, 12288")
        a("s_lshl_b32 s38, s37, 9")
        a("s_add_u32 s39, s39, s38")
        a(f"v_lshrrev_b32 v{t1}, 2, v{vLANE}")
        a(f"v_lshlrev_b32 v{t1}, 11, v{t1}")
        a(f"v_and_b32 v{t2}, 3, v{vLANE}")
        a(f"v_lshlrev_b32 v{t2}, 7, v{t2}")
        a(f"v_add3_u32 v{t1}, v{t1}, v{t2}, s39")
    else:
        a("s_mul_i32 s39, s2, 1536")
        a(f"v_lshlrev_b32 v{t1}, 7, v{vLANE}")
        a(f"v_add_u32 v{t1}, s39, v{t1}")
    a(f"s_mul_i32 s47, s35, {o.get('codelines', 20)}")
    a(f"v_add_u32 v{t2}, s47, v{vLANE}")
    a(f"v_lshlrev_b32 v{vT[7]}, 7, v{t2}")
    a(f"s_mov_b32 s{sPFstr}, 128")
    a(f"s_cmp_eq_u32 s{sW}, 0")
    a(f"s_cselect_b32 s{sPFstr}, s{sPFstr}, {64*6144}")
    a(f"s_cselect_b32 s38, {32 if o.get('pfx') else 8}, {24 if o.get('pfmode', 0) == 2 else 12}")
    a("s_cselect_b64 s[56:57], -1, 0")
    a(f"v_cndmask_b32 v{vPF}, v{t1}, v{t0}, s[56:57]")
    a(f"s_cmp_eq_u32 s{sW}, 3")
    a("s_cselect_b64 s[56:57], -1, 0")
    a(f"v_cndmask_b32 v{vPF}, v{vPF}, v{vT[7]}, s[56:57]")
    a(f"s_cselect_b32 s38, {o.get('codelines', 20)}, s38")
    a(f"s_cselect_b32 s{sPFstr}, 0x4000000, s{sPFstr}")
    a(f"v_cmp_gt_u32 vcc, s38, v{vLANE}")
    a(f"v_mov_b32 v{t2}, {OOB}")
    a(f"s_mov_b32 s{sPFoff}, 0")
    a(f"v_cndmask_b32 v{vPF}, v{t2}, v{vPF}, vcc")
    a(f"v_cmp_gt_u32 vcc, {o.get('codelines', 20)}, v{vLANE}")
    a("s_getpc_b64 s[58:59]")
    a("L_PC:")
    a("s_sub_u32 s58, s58, L_PC - L_START")
    a(f"v_cndmask_b32 v{vT[7]}, v{t2}, v{vT[7]}, vcc")
    a("s_subb_u32 s59, s59, 0")
    r, c, t0, t1 = vT[0], vT[1], vT[2], vT[3]
    a(f"v_lshrrev_b32 v{r}, 3, v{vLANE}")
    a(f"v_and_b32 v{c}, 7, v{vLANE}")
    a(f"v_lshlrev_b32 v{t0}, 1, v{r}")
    a(f"v_and_b32 v{t0}, 4, v{t0}")
    a(f"v_xor_b32 v{t0}, v{t0}, v{c}")
    a(f"v_lshlrev_b32 v{t0}, 4, v{t0}")
    a(f"v_mul_u32_u24 v{t1}, 6144, v{r}")
    a(f"v_add_u32 v{t0}, v{t0}, v{t1}")
    a(f"s_mul_i32 s36, s{sW}, {8*6144}")
    a(f"s_lshl_b32 s37, s{sHP}, 7")
    a("s_add_u32 s36, s36, s37")
    a(f"v_add_u32 v{vWg[0]}, s36, v{t0}")
    a(f"v_add_u32 v{vWg[1]}, 2048, v{vWg[0]}")
    a(f"v_add_u32 v{vWg[2]}, 4096, v{vWg[0]}")
    a(f"v_lshrrev_b32 v{t0}, 1, v{r}")
    a(f"v_xor_b32 v{t0}, v{t0}, v{c}")
    a(f"v_lshlrev_b32 v{t0}, 4, v{t0}")
    a(f"v_lshlrev_b32 v{t1}, 11, v{r}")
    a(f"v_add_u32 v{t0}, v{t0}, v{t1}")
    a(f"s_lshl_b32 s36, s{sT}, 7")
    a(f"s_lshl_b32 s37, s{sW}, 5")
    a("s_add_u32 s36, s36, s37")
    a("s_lshl_b32 s36, s36, 11")
    a(f"v_add_u32 v{vXg[0]}, s36, v{t0}")
    a(f"v_xor_b32 v{vXg[1]}, 64, v{vXg[0]}")
    a(f"v_add_u32 v{vXg[1]}, {8*2048}, v{vXg[1]}")
    a(f"v_add_u32 v{vXg[2]}, {16*2048}, v{vXg[0]}")
    a(f"v_add_u32 v{vXg[3]}, {16*2048}, v{vXg[1]}")
    a(f"s_lshl_b32 s{sWv}, s{sW}, 10")
    a(f"s_lshl_b32 s{sXw}, s{sW}, 12")
    a("s_waitcnt lgkmcnt(0)")
    a.stamp("karg")
    a(f"s_mov_b32 s{sPF+2}, {1024*3072*2}")
    a(f"s_cmp_eq_u32 s{sW}, 0")
    a(f"s_cselect_b32 s{sPF}, s48, s50")
    a(f"s_cselect_b32 s{sPF+1}, s49, s51")
    a(f"s_cselect_b32 s{sPF+2}, {2048*1024*2}, s{sPF+2}")
    a(f"s_cmp_eq_u32 s{sW}, 2")
    a(f"s_cselect_b32 s{sPF}, s52, s{sPF}")
    a(f"s_cselect_b32 s{sPF+1}, s53, s{sPF+1}")
    a(f"s_cmp_eq_u32 s{sW}, 3")
    a(f"s_cselect_b32 s{sPF}, s58, s{sPF}")
    a(f"s_cselect_b32 s{sPF+1}, s59, s{sPF+1}")
    a(f"s_cselect_b32 s{sPF+2}, L_END - L_START, s{sPF+2}")
    a(f"s_and_b32 s{sPF+1}, s{sPF+1}, 0xffff")
    a(f"s_mov_b32 s{sPF+3}, 0x20000")
    for i in range(o.get("pf0", 2)):
        for s in pf_round(a): a.emit(s)
    srd(a, sX, 48, 49, 2048*1024*2)
    srd(a, sWA, 50, 51, 1024*3072*2)
    srd(a, sWB, 52, 53, 1024*3072*2)

def fillers_prologue(a):
    L = []
    f = L.append
    f("s_mov_b32 s16, s54"); f("s_and_b32 s17, s55, 0xffff"); f("s_mov_b32 s18, 0x10000000"); f("s_mov_b32 s19, 0x20000")
    f(f"s_mov_b32 s{sCode}, s58"); f(f"s_and_b32 s{sCode+1}, s59, 0xffff"); f(f"s_mov_b32 s{sCode+2}, L_END - L_START"); f(f"s_mov_b32 s{sCode+3}, 0x20000")
    m, h, t0, t1, row = vT[0], vT[1], vT[2], vT[3], vT[4]
    f(f"v_and_b32 v{m}, 31, v{vLANE}")
    f(f"v_lshrrev_b32 v{h}, 5, v{vLANE}")
    f(f"v_lshrrev_b32 v{t0}, 1, v{m}")
    f(f"v_and_b32 v{t0}, 7, v{t0}")
    f(f"v_xor_b32 v{t0}, v{t0}, v{h}")
    f(f"v_lshlrev_b32 v{t0}, 4, v{t0}")
    f(f"v_lshlrev_b32 v{t1}, 7, v{m}")
    f(f"v_add_u32 v{t0}, v{t0}, v{t1}")
    f(f"s_lshl_b32 s36, s{sRH}, 13")
    f(f"v_add_u32 v{vXr[0]}, s36, v{t0}")
    for kk in range(1, 4):
        f(f"v_xor_b32 v{vXr[kk]}, {kk*32}, v{vXr[0]}")
    f(f"v_and_b32 v{m}, 15, v{vLANE}")
    f(f"v_lshrrev_b32 v{t0}, 2, v{m}")
    f(f"v_lshlrev_b32 v{t1}, 3, v{h}")
    f(f"v_add_u32 v{row}, v{t0}, v{t1}")
    f(f"v_lshrrev_b32 v{t0}, 1, v{row}")
    f(f"v_and_b32 v{t0}, 1, v{t0}")
    f(f"v_xor_b32 v{t0}, s{sHH}, v{t0}")
    f(f"v_lshlrev_b32 v{t0}, 6, v{t0}")
    f(f"v_lshlrev_b32 v{t1}, 7, v{row}")
    f(f"v_add_u32 v{t0}, v{t0}, v{t1}")
    f(f"v_and_b32 v{t1}, 16, v{vLANE}")
    f(f"v_lshlrev_b32 v{t1}, 1, v{t1}")
    f(f"v_add_u32 v{t0}, v{t0}, v{t1}")
    f(f"v_and_b32 v{t1}, 3, v{m}")
    f(f"v_lshlrev_b32 v{t1}, 3, v{t1}")
    f(f"v_add_u32 v{t0}, v{t0}, v{t1}")
    f(f"v_add_u32 v{vWr[0]}, {W_BASE}, v{t0}")
    f(f"v_add_u32 v{vWr[1]}, {W_BASE + 2*W_SLOT}, v{t0}")
    for r in range(ACC0, 256):
        f(f"v_mov_b32 v{r}, 0")
    return L

def fillers_late(a):
    L = []
    f = L.append
    q, b, t = vT[0], vT[1], vT[2]
    f(f"v_lshlrev_b32 v{vL16}, 4, v{vLANE}")
    f(f"v_and_b32 v{q}, 31, v{vLANE}")
    f(f"v_lshrrev_b32 v{b}, 5, v{vLANE}")
    f(f"v_lshlrev_b32 v{b}, 2, v{b}")
    f(f"v_sub_u32 v{b}, v{q}, v{b}")
    f(f"s_mov_b32 s36, {NEGBIG}")
    for i in range(24):
        r, add = (i, 0) if i < 16 else (i - 8, 32)
        d = vMc + i
        kv = 8*(r >> 2) + (r & 3)
        f(f"v_add_u32 v{d}, {add - kv}, v{b}")
        f(f"v_and_b32 v{d}, 0xfffffff1, v{d}")
        f(f"v_min_u32 v{d}, 1, v{d}")
        f(f"v_sub_u32 v{d}, 0, v{d}")
        f(f"v_and_b32 v{d}, s36, v{d}")
    f(f"v_lshrrev_b32 v{q}, 2, v{vLANE}")
    f(f"v_lshrrev_b32 v{t}, 4, v{vLANE}")
    f(f"v_xor_b32 v{q}, v{q}, v{t}")
    f(f"v_and_b32 v{q}, 1, v{q}")
    f(f"v_add_u32 v{q}, -1, v{q}")
    f(f"v_and_b32 v{q}, 0x3f803f80, v{q}")
    for i in range(4):
        f(f"v_accvgpr_write_b32 a{aONE+i}, v{q}")
    f(f"v_min_u32 v{vF0}, 1, v{vLANE}")
    f(f"v_lshlrev_b32 v{vF0}, 31, v{vF0}")
    f(f"s_mov_b32 s{sCS}, {CSCALE}"); f(f"s_mov_b32 s62, {CSCALE}"); f(f"s_mov_b32 s63, {CSCALE}")
    f(f"s_lshl_b32 s36, s{sHP}, 19")
    f(f"s_lshl_b32 s37, s{sW}, 13")
    f(f"s_lshl_b32 s38, s{sHH}, 14")
    f(f"s_lshl_b32 s39, s{sRH}, 13")
    f(f"s_add_u32 s{sKVdst}, s38, s39")
    f(f"s_add_u32 s{sKVbase}, s36, s{sKVdst}")
    f(f"s_lshl_b32 s{sKVt}, s{sT}, 15")
    f(f"s_add_u32 s{sKVsrc}, s{sKVbase}, s{sKVt}")
    f(f"s_add_u32 s36, s38, {KV_LDS[0]}")
    f(f"v_add_u32 v{vKV[0]}, s36, v{vL16}")
    f(f"v_add_u32 v{vKV[1]}, 32768, v{vKV[0]}")
    f(f"s_lshl_b32 s{sHead}, s{sHP}, 1")
    f(f"s_add_u32 s{sHead}, s{sHead}, s{sHH}")
    f(f"s_lshl_b32 s{sSeq}, s{sT}, 1")
    f(f"s_add_u32 s{sSeq}, s{sSeq}, s{sRH}")
    f(f"s_lshl_b32 s37, s{sSeq}, 6")
    f(f"s_add_u32 s37, s37, s{sHead}")
    f(f"s_lshl_b32 s{sOst}, s37, 11")
    f(f"s_lshl_b32 s38, s{sHead}, 5")
    f(f"s_add_u32 s38, s38, s{sSeq}")
    f(f"s_lshl_b32 s28, s38, 2")
    f(f"s_lshl_b32 s38, s38, 12")
    f(f"s_add_u32 s{sHalo}, s38, {HALO_OFF}")
    f(f"s_mov_b32 s{sPASS}, 0")
    f(f"s_add_u32 s{sKVp}, s54, s{sKVbase}\ns_addc_u32 s{sKVp+1}, s55, 0")
    f(f"s_cmp_lt_u32 s{sW}, 2\ns_cselect_b32 s{sPFW}, s{sPWoA}, s{sPWoB}\ns_cselect_b32 s{sPFW+1}, s{sPWoA+1}, s{sPWoB+1}")
    f(f"s_lshl_b32 s36, s2, 1"); f(f"s_add_u32 s36, s36, s{sRH}"); f("s_lshl_b32 s36, s36, 12")
    f(f"v_and_b32 v24, 7, v{vLANE}"); f("v_lshlrev_b32 v24, 7, v24"); f("v_add_u32 v23, s36, v24")
    f(f"v_and_b32 v24, 15, v{vLANE}"); f("v_lshlrev_b32 v24, 7, v24")
    f("s_lshr_b32 s36, s2, 3"); f("s_lshl_b32 s36, s36, 2"); f(f"s_add_u32 s36, s36, s{sW}"); f("s_lshl_b32 s36, s36, 14")
    f("v_add_u32 v0, s36, v24")
    f(f"s_lshl_b32 s36, s{sSeq}, 6")
    f(f"s_lshl_b32 s37, s{sHead}, 1")
    f("s_add_u32 s36, s36, s37")
    f(f"v_lshrrev_b32 v9, 5, v{vLANE}")
    f(f"v_add_u32 v{vGrow}, s36, v9")
    f(f"v_and_b32 v25, 31, v{vLANE}")
    f("v_lshlrev_b32 v25, 4, v25")
    f(f"v_lshl_add_u32 v9, v{vGrow}, 11, v25")
    f(f"s_mov_b32 s56, s{sPG}"); f(f"s_and_b32 s57, s{sPG+1}, 0xffff"); f("s_mov_b32 s58, 2048"); f("s_mov_b32 s59, 0x20000")
    f(f"s_lshl_b32 s38, s{sHP}, 2"); f(f"s_add_u32 s38, s38, s{sW}"); f("s_lshl_b32 s38, s38, 6")
    f(f"s_add_u32 s31, s38, {F_KV}"); f(f"s_lshl_b32 s38, s{sT}, 2"); f("s_add_u32 s32, s31, s38")
    f(f"s_add_u32 s33, s28, {F_H - 4}"); f(f"s_cmp_eq_u32 s{sSeq}, 0\ns_cselect_b32 s38, 4, 0"); f("s_add_u32 s33, s33, s38")
    return L

READ_GAPS = [0,0,1,1,2,2,3,3,4,5,6,7,8,9]
def gemm1(a):
    o = a.opts
    p1 = P1(a)
    W = lambda j, ps: [("W", j, p) for p in ps]
    X = lambda v, ps: [("X", v, p) for p in ps]
    pro = X(0, range(4)) + W(0, range(6)) + W(1, range(6))
    sched = {(0,0): X(1, range(4)) + W(2, [0,1]), (0,1): W(2, [2,3,4,5]) + W(3, [0,1]),
             (1,0): W(3, [2,3,4,5]) + W(4, [0,1]), (1,1): X(2, range(4)) + W(4, [2,3]),
             (2,0): W(4, [4,5]) + W(5, [0,1,2,3]), (2,1): W(5, [4,5]) + X(3, range(4)),
             (3,0): W(6, range(6))}
    for u in range(3, 28):
        v, p0 = ((u + 5)//2, 0) if u & 1 else ((u + 4)//2, 2)
        sched[(u, 1)] = W(u + 4, [0,1,2]) + (X(v, [p0]) if v < 16 else [])
        sched[(u + 1, 0)] = W(u + 4, [3,4,5]) + (X(v, [p0 + 1]) if v < 16 else [])
    for (u, hf), ps in sched.items():
        done = u - 1 if hf == 0 else u
        for k, j, p in ps:
            if k == "W": assert j < 4 or done >= j - 4, (u, hf, k, j)
            else: assert j < 3 or done >= 2*(j - 3) + 1, (u, hf, k, j)
    npf0 = o.get("pf0", 2)
    pfs = {}
    r = npf0
    for u in range(0, 32):
        while r < 16 and u >= max(0, 2*r - o.get("pfd", 8)) and pfs.get(u, 0) < 1:
            pfs[u] = pfs.get(u, 0) + 1; r += 1
    fil = fillers_prologue(a)
    per = (len(fil) + len(pro) - 1)//len(pro)
    for i, pc in enumerate(pro):
        pre, d = p1.dma(pc)
        for s in pre: a(s)
        chunk = fil[i*per:(i+1)*per]
        a(chunk[0] if chunk else "s_nop 0")
        a.emit(d)
        for s in chunk[1:]: a(s)
    a(f"s_or_b32 s36, s2, s{sW}")
    a("s_cmp_lg_u32 s36, 0")
    a("s_cbranch_scc1 L_NONONCE")
    a("s_memrealtime s[36:37]")
    a("v_mov_b32 v20, 0")
    a("s_waitcnt lgkmcnt(0)")
    a("s_or_b32 s36, s36, 1")
    a("v_mov_b32 v19, s36")
    a(f"global_store_dword v20, v19, s[{sPDbg}:{sPDbg+1}] sc1")
    a("L_NONONCE:")
    a.stamp("issued")
    a.emit(a.wait(["X0", "W0"]))
    a("s_barrier")
    a.stamp("first")
    for s in frag_reads(0, 0, 0): a(s)
    a("s_waitcnt lgkmcnt(0)")
    late = fillers_late(a)
    order = [(b, rt) for b in range(6) for rt in range(2)]
    for u in range(32):
        for hf in range(2):
            last = (u == 31 and hf == 1)
            reads = [] if last else (frag_reads(1, u, 1) if hf == 0 else frag_reads(0, u + 1, 0))
            sides = {}
            for g, rd in zip(READ_GAPS, reads): sides.setdefault(g, []).append(rd)
            ps = sched.get((u, hf), [])
            gaps = {4: [(1,2),(4,5),(7,8),(9,10)], 6: [(0,1),(2,3),(4,5),(6,7),(8,9),(10,11)]}
            gp = gaps[6] if len(ps) > 4 else gaps[4]
            for (g0, g1), pc in zip(gp, ps):
                pre, d = p1.dma(pc)
                sides.setdefault(g0, []).extend(pre)
                sides.setdefault(g1, []).insert(0, d)
            if hf == 0 and pfs.get(u):
                sides.setdefault(11, []).extend(pf_round(a))
            if u >= 6 and late and not last:
                for g in (5, 6, 8, 10):
                    for k in range(2):
                        if late: sides.setdefault(g, []).append(late.pop(0))
            if u == 28 and hf == 1:
                sides.setdefault(5, []).append((f"buffer_load_dword v{vPFd}, v{vT[7]}, s[{sCode}:{sCode+3}], 0 offen", "cpf"))
            w0 = o.get("wopf_step", 99)
            if u in (w0, w0 + 2, w0 + 4, w0 + 6) and hf == 0:
                sides.setdefault(11, []).append((f"global_load_dword v{vPFd}, v23, s[{sPFW}:{sPFW+1}] offset:{(u - w0)//2*1024}", "wopf"))
            if u == 30 and hf == 1:
                sides.setdefault(5, []).append("v_mov_b32 v19, 0")
                sides.setdefault(7, []).append((f"global_load_dword v21, v19, s[{sPDbg}:{sPDbg+1}] sc1", "nonce"))
            od = order
            if last: od = [(4,1),(5,1),(1,0),(2,0),(1,1),(2,1),(3,1),(4,0),(5,0),(3,0),(0,0),(0,1)]
            a.inter([g1_mfma(hf, b, rt) for b, rt in od], sides)
            if hf == 0:
                if u < 31:
                    need = [f"W{u+1}"] + ([f"X{(u+1)//2}"] if (u + 1) % 2 == 0 else [])
                    a.emit(a.wait(need, lgkm=True))
                else:
                    a("s_waitcnt lgkmcnt(0)")
                a("s_barrier")
            elif not last:
                a("s_waitcnt lgkmcnt(0)")
        if u % 8 == 7: a.stamp(f"g{u}")
    assert not late

def packl(base, out=None):
    out = base if out is None else out
    return [f"v_cvt_pk_bf16_f32 v{out+j}, v{base+2*j}, v{base+2*j+1}" for j in range(8)]
def pack(a, base, out=None):
    for s in packl(base, out): a(s)
class L(list):
    def __call__(self, s): self.append(s)
    def emit(self, s): self.append(s)
def weave(a, work, extra, first, every):
    nxt = first
    for i, w in enumerate(work):
        while extra and i >= nxt:
            for s in extra.pop(0): a.emit(s)
            nxt += every
        a.emit(w)

def local_tile(a, Q, Kc, Vc, Kp, Vp1, SC, SP, O, PC, PP, tmp, off, tag):
    m, t = tmp, tmp + 1
    a(mf32(vr(SC, 16), vr(Kc, 4), vr(Q, 4), vr(vMc, 16)))
    a(mf32(vr(SC, 16), vr(Kc+4, 4), vr(Q+4, 4), vr(SC, 16)))
    a(mf32(vr(SP, 16), vr(Kp, 4), vr(Q, 4), vr(vMc + 8, 16)))
    a(mf32(vr(SP, 16), vr(Kp+4, 4), vr(Q+4, 4), vr(SP, 16)))
    a("s_nop 9")
    vals = [SC + i for i in range(16)] + [SP + 8 + i for i in range(8)]
    a(f"v_max3_f32 v{m}, v{vals[0]}, v{vals[1]}, v{vals[2]}")
    for i in range(3, 23, 2):
        a(f"v_max3_f32 v{m}, v{m}, v{vals[i]}, v{vals[i+1]}")
    a(f"v_max_f32 v{m}, v{m}, v{vals[23]}")
    a(f"v_mov_b32 v{t}, v{m}")
    a("s_nop 1")
    a(f"v_permlane32_swap_b32 v{m}, v{t}")
    a(f"v_max_f32 v{m}, v{m}, v{t}")
    a(f"v_mul_f32 v{m}, s{sCS}, v{m}")
    for v in vals:
        a(f"v_fma_f32 v{v}, v{v}, s{sCS}, -v{m}")
    L = SP
    for i in range(10): a(f"v_exp_f32 v{vals[i]}, v{vals[i]}")
    for j in range(4): a(f"v_cvt_pk_bf16_f32 v{PC+j}, v{SC+2*j}, v{SC+2*j+1}")
    for i in range(10, 13): a(f"v_exp_f32 v{vals[i]}, v{vals[i]}")
    a(mf32(vr(O, 16), vr(Vc, 4), vr(PC, 4), 0))
    for i in range(13, 18): a(f"v_exp_f32 v{vals[i]}, v{vals[i]}")
    a(mf16(vr(L, 4), ar(aONE, 4), vr(PC, 4), 0))
    for j in range(4, 8): a(f"v_cvt_pk_bf16_f32 v{PC+j}, v{SC+2*j}, v{SC+2*j+1}")
    for i in range(18, 20): a(f"v_exp_f32 v{vals[i]}, v{vals[i]}")
    a(mf32(vr(O, 16), vr(Vc+4, 4), vr(PC+4, 4), vr(O, 16)))
    for i in range(20, 24): a(f"v_exp_f32 v{vals[i]}, v{vals[i]}")
    a(mf16(vr(L, 4), ar(aONE, 4), vr(PC+4, 4), vr(L, 4)))
    for j in range(4): a(f"v_cvt_pk_bf16_f32 v{PP+j}, v{SP+8+2*j}, v{SP+9+2*j}")
    a("s_nop 1")
    a(mf16(vr(L, 4), ar(aONE, 4), vr(PP, 4), vr(L, 4)))
    a(mf32(vr(O, 16), vr(Vp1, 4), vr(PP, 4), vr(O, 16)))
    a(f"s_add_u32 s36, s{sOst}, {OB_OFF + off}")
    a("s_nop 5")
    a(f"v_rcp_f32 v{m}, v{L}")
    a("s_nop 3")
    for i in range(16):
        a(f"v_mul_f32 v{O+i}, v{O+i}, v{m}")
    pack(a, O)
    a.emit((f"buffer_store_dwordx4 {vr(O, 4)}, v{vL16}, {WS}, s36 offen sc1", tag))
    a.emit((f"buffer_store_dwordx4 {vr(O+4, 4)}, v{vL16}, {WS}, s36 offen offset:1024 sc1", tag))

def flag_store(sreg, vtmp, tag):
    return [f"v_mov_b32 v{vtmp}, s{sNONCE}", (f"buffer_store_dword v{vtmp}, v{vF0}, {WS}, s{sreg} offen sc1", tag)]

def poll_check(a, name, vdst, vaddr, sreg, tag, mask=-1):
    a.emit(a.wait([tag]))
    a(f"v_cmp_ne_u32 vcc, s{sNONCE}, v{vdst}")
    a("s_nop 3")
    a(f"s_and_b32 s{sSpin}, vcc_lo, {mask}")
    a(f"s_cbranch_scc1 {name}_S")
    a(f"{name}_R:")
    a.tail.append(f"""{name}_S:
    s_mov_b32 s{sSpin}, 0
{name}_L:
    buffer_load_dword v{vdst}, v{vaddr}, {WS}, s{sreg} offen sc1
    s_add_u32 s{sSpin}, s{sSpin}, 1
    s_waitcnt vmcnt(0)
    v_cmp_ne_u32 vcc, s{sNONCE}, v{vdst}
    s_cmp_lt_u32 s{sSpin}, 0x40000
    s_cbranch_scc0 {name}_R
    s_nop 2
    s_and_b32 vcc_hi, vcc_lo, {mask}
    s_cbranch_scc1 {name}_L
    s_branch {name}_R""")

def e1(a):
    o = a.opts
    a(f"s_add_u32 s36, s{sKVdst}, {KV_LDS[0]}")
    a(f"v_add_u32 v22, s36, v{vL16}")
    a(f"v_add_u32 v{vL16b}, 4096, v{vL16}")
    a(f"s_add_u32 s25, s{sKVsrc}, 4096")
    a(f"s_mov_b32 s26, s{sKVsrc}")
    pack(a, KB[1], pKB[1]); pack(a, VB[1], pVB[1])
    st = []
    halo = [[(f"buffer_store_dwordx4 {vr(pKB[1], 4)}, v{vL16}, {WS}, s{sHalo} offen sc1", "halo")],
            [(f"buffer_store_dwordx4 {vr(pKB[1]+4, 4)}, v{vL16}, {WS}, s{sHalo} offen offset:1024 sc1", "halo")],
            [(f"buffer_store_dwordx4 {vr(pVB[1]+4, 4)}, v{vL16}, {WS}, s{sHalo} offen offset:2048 sc1", "halo")]]
    kv = []; dsw = []
    for rt in range(2):
        for (blk, f0) in ((pKA[rt], 0), (pVA[rt], 2)):
            for f in range(2):
                off = (f0 + f)*1024
                kv.append([(f"buffer_store_dwordx4 {vr(blk+4*f, 4)}, v{vL16}, {WS}, s{26 if rt == 0 else 25} offen offset:{off} sc1", "kv")])
                dsw.append([f"ds_write_b128 v22, {vr(blk+4*f, 4)} offset:{rt*4096 + off}"])
    for g in halo:
        for s in g: a.emit(s)
    w = packl(KA[0], pKA[0]) + packl(VA[0], pVA[0]) + packl(KA[1], pKA[1]) + packl(VA[1], pVA[1])
    weave(a, w, [kv.pop(0)], 10, 100)
    w = packl(QB[0], pQB[0]) + packl(QB[1], pQB[1]) + packl(KB[0], pKB[0]) + packl(VB[0], pVB[0])
    for q in QA:
        w += [f"v_pk_mul_f32 {vr(q+2*j, 2)}, {vr(q+2*j, 2)}, s[62:63]" for j in range(8)] + packl(q)
    weave(a, w, dsw, 0, 8)
    for s in kv.pop(0): a.emit(s)
    a.stamp("e1pack")
    lt = L()
    local_tile(lt, pQB[1], pKB[1], pVB[1], pKB[0], pVB[0]+4, 128, 144, 176, 240, 248, 252, 65536, "ob1")
    a.ob1 = lt[-2:]; lt = lt[:-2]
    weave(a, lt, [kv.pop(0), kv.pop(0)], o.get("st_a", 30), o.get("st_b", 60))
    a("s_mov_b32 s35, s36")
    a.ob1 = [(x[0].replace(", s36 ", ", s35 "), x[1]) for x in a.ob1]
    a.kv_left = kv
    a.stamp("loc1")
    a.emit(a.wait(["halo", "nonce"], lgkm=True))
    a(f"v_readfirstlane_b32 s{sNONCE}, v21")
    a(f"s_add_u32 s36, s28, {F_H}")
    a("s_barrier")
    a(f"s_cmp_eq_u32 s{sNONCE}, 0")
    a("s_cbranch_scc1 L_NONCE_S")
    a("L_NONCE_R:")
    a.tail.append(f"""L_NONCE_S:
    s_mov_b32 s{sSpin}, 0
L_NONCE_L:
    global_load_dword v21, v19, s[{sPDbg}:{sPDbg+1}] sc1
    s_add_u32 s{sSpin}, s{sSpin}, 1
    s_waitcnt vmcnt(0)
    v_readfirstlane_b32 s{sNONCE}, v21
    s_cmp_lt_u32 s{sSpin}, 0x40000
    s_cbranch_scc0 L_NONCE_R
    s_nop 2
    s_cmp_eq_u32 s{sNONCE}, 0
    s_cbranch_scc1 L_NONCE_L
    s_branch L_NONCE_R""")
    for s in flag_store(36, 20, "fH"): a.emit(s)
    for i in range(8): a(f"v_mov_b32 v{56+i}, v{176+i}")
    a.ob1 = [(a.ob1[0][0].replace("v[176:179]", "v[56:59]"), "ob1"), (a.ob1[1][0].replace("v[180:183]", "v[60:63]"), "ob1")]
    a.stamp("fH")

sKVp, sKVg, sOg, sPFW = 84, 98, 100, 52
vL16b = 5
def kv_dma(slot, group, tag):
    out = [f"s_add_u32 m0, s{sKVdst}, {KV_LDS[slot] + group*4096}"]
    for p in range(4):
        out.append((f"global_load_lds_dwordx4 v{vL16b if group else vL16}, s[{sKVg}:{sKVg+1}] offset:{p*1024} sc1", tag))
    return out
def kv_advance():
    return [f"s_add_u32 s{sKVt}, s{sKVt}, 32768", f"s_and_b32 s{sKVt}, s{sKVt}, 0x7ffff",
            f"s_add_u32 s{sKVg}, s{sKVp}, s{sKVt}", f"s_addc_u32 s{sKVg+1}, s{sKVp+1}, 0"]

def H(a, q, vpar, qk=True, pv=True, pv_first=False, slots=None):
    slots = slots or {}
    o = 1 - q
    e = [f"v_exp_f32 v{S[q]+i}, v{S[q]+i}" for i in range(16)]
    c = [f"v_cvt_pk_bf16_f32 v{P[q]+j}, v{S[q]+2*j}, v{S[q]+2*j+1}" for j in range(8)]
    So, Oo, Lo = vr(S[o], 16), ar(aO[o], 16), ar(aL[o], 4)
    M = [mf32(So, ar(aK, 4), vr(QA[o], 4), vr(NM[o], 16)) if qk else None,
         mf32(So, ar(aK+4, 4), vr(QA[o]+4, 4), So) if qk else None,
         mf32(Oo, ar(aV[vpar], 4), vr(P[o], 4), 0 if pv_first else Oo) if pv else None,
         mf32(Oo, ar(aV[vpar]+4, 4), vr(P[o]+4, 4), Oo) if pv else None,
         mf16(Lo, ar(aONE, 4), vr(P[o], 4), 0 if pv_first else Lo) if pv else None,
         mf16(Lo, ar(aONE, 4), vr(P[o]+4, 4), Lo) if pv else None]
    V = [[e[0], e[1], e[2]], [e[3], c[0], c[1], e[4]], [e[5], e[6], e[7]], [c[2], c[3], e[8], e[9]],
         [e[10], e[11], c[4], c[5]], [e[12], e[13], e[14], e[15], c[6], c[7]]]
    if not pv: V[3] = ["s_nop 0"] + V[3]
    for i in range(6):
        if M[i]: a(M[i])
        for s in slots.get(i, []): a.emit(s)
        for s in V[i]: a(s)

def rdK(slot, off): return [f"ds_read_b128 {ar(aK, 4)}, v{vKV[slot]} offset:{off}", f"ds_read_b128 {ar(aK+4, 4)}, v{vKV[slot]} offset:{off+1024}"]
def rdV(par, slot, off): return [f"ds_read_b128 {ar(aV[par], 4)}, v{vKV[slot]} offset:{off+2048}", f"ds_read_b128 {ar(aV[par]+4, 4)}, v{vKV[slot]} offset:{off+3072}"]

FREE_A = [0, 3, 4]; FREE_B = [2, 3, 4, 5]
TORD = [0, 2, 1, 3]
def tile(a, n, side=None, end_b=None):
    sa = {}; sb = {}
    if n < 63:
        m = n + 1
        k = rdK((m >> 2) & 1, TORD[m & 3]*4096); v = rdV(m & 1, (m >> 2) & 1, TORD[m & 3]*4096)
        sa[1] = [k[0]]; sa[2] = [k[1]]; sa[5] = ["s_waitcnt lgkmcnt(0)"]
        sb[0] = [v[0]]; sb[1] = [v[1]]
    if side is not None:
        for g in FREE_A:
            if side: sa.setdefault(g, []).extend(side.pop(0))
        for g in (FREE_B if end_b is None else FREE_B[:-1]):
            if side: sb.setdefault(g, []).extend(side.pop(0))
    if end_b: sb.setdefault(5, []).extend(end_b)
    H(a, 0, (n - 1) & 1, pv=(n != 0), pv_first=(n == 1), slots=sa)
    H(a, 1, n & 1, qk=(n < 63), pv_first=(n == 0), slots=sb)

def neg_max(a):
    for q in range(2): a(f"v_mov_b32 v{21+q}, v{19+q}")
    a("s_nop 0")
    for q in range(2): a(f"v_permlane32_swap_b32 v{19+q}, v{21+q}")
    for q in range(2): a(f"v_max_f32 v{19+q}, v{19+q}, v{21+q}")
    for q in range(2):
        for i in range(16): a(f"v_sub_f32 v{NM[q]+i}, 0, v{19+q}")

def gate_compute(a):
    z, t = 23, 24
    for i in range(16):
        a(f"v_accvgpr_read_b32 v{96+(i%4)}, a{aGATE+i}")
        a(f"v_accvgpr_read_b32 v{100+(i%4)}, a{aGATE+16+i}")
        a(f"v_dot2_f32_bf16 v{z}, v{96+(i%4)}, v{100+(i%4)}, {0 if i == 0 else 'v%d' % z}")
    a("s_nop 2")
    for sh in (8, 4, 2, 1):
        a(f"v_add_f32_dpp v{z}, v{z}, v{z} row_ror:{sh} row_mask:0xf bank_mask:0xf")
        a("s_nop 1")
    a(f"v_mov_b32 v{t}, v{z}")
    a("s_nop 1")
    a(f"v_permlane16_swap_b32 v{z}, v{t}")
    a(f"v_add_f32 v{z}, v{z}, v{t}")
    a(f"v_mul_f32 v{z}, {f2u(-math.log2(math.e))}, v{z}")
    a(f"v_exp_f32 v{z}, v{z}")
    a(f"v_and_b32 v{t}, 31, v{vLANE}")
    a(f"v_add_f32 v{z}, 1.0, v{z}")
    a(f"v_rcp_f32 v{z}, v{z}")
    a(f"v_min_u32 v{t}, 1, v{t}")
    a(f"v_lshlrev_b32 v{t}, 31, v{t}")
    a(f"v_lshl_or_b32 v{t}, v{vGrow}, 2, v{t}")
    a(f"s_mov_b32 s36, {G_OFF}")
    a.emit((f"buffer_store_dword v{z}, v{t}, {WS}, s36 offen sc1", "g"))

def p4_setup(a):
    srd(a, sWoA, sPWoA, sPWoA+1, 1024*1024*2)
    srd(a, sWoB, sPWoB, sPWoB+1, 1024*1024*2)
    srd(a, sOutD, sPOut, sPOut+1, 2048*1024*2)
    a("s_and_b32 s36, s2, 7")
    a("s_lshr_b32 s37, s2, 3")
    a(f"s_and_b32 s{sC4}, s37, 15")
    a("s_lshr_b32 s37, s37, 4")
    a("s_lshl_b32 s36, s36, 1")
    a(f"s_add_u32 s{sT4}, s36, s37")
    r, c, t0, t1 = 104, 105, 106, 107
    a(f"v_lshrrev_b32 v{r}, 3, v{vLANE}")
    a(f"v_and_b32 v{c}, 7, v{vLANE}")
    a(f"v_lshlrev_b32 v{t0}, 1, v{r}")
    a(f"v_and_b32 v{t0}, 4, v{t0}")
    a(f"v_xor_b32 v{t0}, v{t0}, v{c}")
    a(f"v_lshlrev_b32 v{t0}, 4, v{t0}")
    a(f"v_lshl_add_u32 v{t0}, v{r}, 11, v{t0}")
    a(f"s_lshl_b32 s36, s{sW}, 14")
    a(f"s_lshl_b32 s37, s{sC4}, 7")
    a("s_add_u32 s36, s36, s37")
    a(f"v_add_u32 v{vWo_g}, s36, v{t0}")
    a(f"v_and_b32 v{r}, 15, v{vLANE}")
    a(f"v_lshrrev_b32 v{t0}, 2, v{r}")
    a(f"v_lshrrev_b32 v{t1}, 5, v{vLANE}")
    a(f"v_lshl_add_u32 v{c}, v{t1}, 2, v{t0}")
    a(f"v_lshrrev_b32 v{t0}, 1, v{c}")
    a(f"v_and_b32 v{t0}, 1, v{t0}")
    a(f"v_lshlrev_b32 v{t0}, 6, v{t0}")
    a(f"v_lshl_add_u32 v{t0}, v{c}, 7, v{t0}")
    a(f"v_and_b32 v{t1}, 16, v{vLANE}")
    a(f"v_lshl_add_u32 v{t0}, v{t1}, 1, v{t0}")
    a(f"v_and_b32 v{t1}, 3, v{r}")
    a(f"v_lshl_add_u32 v{vWo_r[0]}, v{t1}, 3, v{t0}")
    a(f"v_xor_b32 v{vWo_r[1]}, 64, v{vWo_r[0]}")
    for b in (1, 2):
        for ct in range(2):
            a(f"v_add_u32 v{vWo_r[2*b+ct]}, {b*65536}, v{vWo_r[ct]}")
    a(f"s_lshl_b32 s36, s{sT4}, 2")
    a(f"s_add_u32 s36, s36, s{sW}")
    a(f"s_lshl_b32 s{sOrow}, s36, 16")
    a(f"s_lshr_b32 s36, s36, 1")
    a(f"s_lshl_b32 s29, s36, 7")
    a(f"s_lshl_b32 s{sOoff}, s{sC4}, 12")
    a(f"s_lshl_b32 s{sWooff}, s{sC4}, 17")
    a(f"v_and_b32 v16, 31, v{vLANE}")
    a("v_lshlrev_b32 v16, 2, v16")
    a(f"s_add_u32 s36, s{sT}, 1")
    a(f"v_add_u32 v17, s36, v{vLANE}")
    a("v_and_b32 v17, 15, v17")
    a("v_lshlrev_b32 v17, 2, v17")
    a(f"s_add_u32 s36, s{sOrow}, {OB_OFF}")
    a(f"s_add_u32 s{sOg}, s54, s36")
    a(f"s_addc_u32 s{sOg+1}, s55, 0")

def wob_dma(i, tag):
    return [[f"s_mov_b32 s39, {i*65536}"], [f"s_add_u32 m0, s{sWv}, {i*4096}"],
            [(f"buffer_load_dwordx4 v{vWo_g}, s[{sWoB}:{sWoB+3}], s39 offen lds", tag)]]

def attention(a):
    o = a.opts
    a("L_ATT0:")
    for s in rdK(0, 0) + rdV(0, 0, 0): a(s)
    a(f"s_lshl_b32 s{sKVt}, s{sT}, 15")
    for s in kv_advance(): a(s)
    a(f"s_cmp_lg_u32 s{sPASS}, 0")
    a("s_waitcnt lgkmcnt(0)")
    a("s_cbranch_scc1 L_ATT1")
    for q in range(2): a(mf32(vr(S[q], 16), ar(aK, 4), vr(QA[q], 4), 0))
    for q in range(2): a(mf32(vr(S[q], 16), ar(aK+4, 4), vr(QA[q]+4, 4), vr(S[q], 16)))
    kv = a.kv_left
    for s in kv.pop(0): a.emit(s)
    a("s_nop 9")
    for q in range(2):
        s, m = S[q], 19 + q
        a(f"v_max3_f32 v{m}, v{s}, v{s+1}, v{s+2}")
        for i in range(3, 15, 2): a(f"v_max3_f32 v{m}, v{m}, v{s+i}, v{s+i+1}")
        a(f"v_max_f32 v{m}, v{m}, v{s+15}")
    neg_max(a)
    a("L_ATT1:")
    a("s_nop 1")
    a(mf32(vr(S[0], 16), ar(aK, 4), vr(QA[0], 4), vr(NM[0], 16)))
    a(mf32(vr(S[0], 16), ar(aK+4, 4), vr(QA[0]+4, 4), vr(S[0], 16)))
    a("v_mov_b32 v18, 0")
    a("s_nop 9")
    a.stamp("att0")
    gl = [[(f"buffer_load_dwordx4 {ar(aGATE+4*j, 4)}, v9, s[{sX}:{sX+3}], 0 offen offset:{512*j}", "gate")] for j in range(4)]
    gl += [[(f"buffer_load_dwordx4 {ar(aGATE+16+4*j, 4)}, v25, s[56:59], 0 offen offset:{512*j}", "gate")] for j in range(4)]
    pH = [(f"buffer_load_dword v21, v18, {WS}, s33 offen sc1", "pH")]
    tile(a, 0, [kv.pop(0), [], [], kv.pop(0), [], [], kv.pop(0)])
    tile(a, 1, [pH, gl[0], gl[1], gl[2], gl[3], gl[4], gl[5]])
    a.stamp("t01")
    if o.get("fkv_early", 1):
        fs_ = flag_store(32, 20, "fKV")
        tile(a, 2, [gl[6], gl[7], [a.wait(["kv"])] + fs_])
        a.stamp("t2")
    else:
        tile(a, 2, [gl[6], gl[7]])
        a.stamp("t2")
    a(f"s_cmp_lg_u32 s{sPASS}, 0")
    a("s_cbranch_scc1 L_A3")
    if not o.get("fkv_early", 1):
        a.emit(a.wait(["kv"]))
        for s in flag_store(32, 20, "fKV"): a.emit(s)
    a.emit(a.wait(["kv", "gate"]))
    a.stamp("fKV")
    poll_check(a, "L_PH", 21, 18, 33, "pH")
    a(f"s_sub_u32 s38, s{sHalo}, 4096")
    a(f"s_cmp_eq_u32 s{sSeq}, 0")
    a(f"s_cselect_b32 s38, {OOB}, s38")
    a.emit((f"buffer_load_dwordx4 {vr(HK, 4)}, v{vL16}, {WS}, s38 offen sc1", "hl"))
    a.emit((f"buffer_load_dwordx4 {vr(HK+4, 4)}, v{vL16}, {WS}, s38 offen offset:1024 sc1", "hl"))
    a.emit((f"buffer_load_dwordx4 {vr(HV, 4)}, v{vL16}, {WS}, s38 offen offset:2048 sc1", "hl"))
    a("s_cbranch_scc0 L_MASKOK")
    for i in range(8): a(f"v_mov_b32 v{vMc+16+i}, {NEGBIG}")
    a("L_MASKOK:")
    a.stamp("pH")
    for s in a.ob1: a.emit(s)
    gate_compute(a)
    p4_setup(a)
    a.emit((f"buffer_load_dword v21, v17, {WS}, s31 offen sc1", "pKV"))
    a.stamp("fill")
    poll_check(a, "L_PKV", 21, 17, 31, "pKV", mask=o.get("kvmask", 1))
    a("L_A3:")
    a.stamp("pKV")
    for g in range(2):
        for k_, s in enumerate(kv_dma(1, g, f"c1{'ab'[g]}")):
            a.emit(s)
            if k_ == 0: a("s_nop 0")
        if g == 0: a.emit((f"buffer_load_dword v21, v17, {WS}, s31 offen sc1", "pKV2"))
    for s in kv_advance(): a(s)
    a(f"s_cmp_lg_u32 s{sPASS}, 0")
    a("s_cbranch_scc1 L_A4")
    a.emit(a.wait(["hl"]))
    local_tile(a, pQB[0], pKB[0], pVB[0], HK, HV, 96, 112, 208, 168, 236, 23, 0, "ob0")
    a("s_branch L_A5")
    a("L_A4:")
    a("s_waitcnt vmcnt(0)")
    a("L_A5:")
    a.stamp("loc0")
    a.emit(a.wait(["c1a"], lgkm=True))
    a("s_barrier")
    a.pkv2 = True
    a.stamp("c1")
    wob = [i for i in range(24)]
    obl = [i for i in range(64)]
    if o.get('noside'): wob = wob[:1]; obl = obl[:1]
    ob_start = o.get("ob_start", 5)
    obase = False
    for c in range(15):
        V = []; A = []
        side = []
        if c + 2 <= 15:
            d0, d1 = kv_dma(c % 2, 0, f"c{c+2}"), kv_dma(c % 2, 1, f"c{c+2}")
            kvs = [[x] for x in d0] + [[x] for x in d1] + [[x] for x in kv_advance()]
        else:
            kvs = []
        oth = []
        if c == 0:
            oth += [[(f"buffer_load_dword v21, v17, {WS}, s31 offen sc1", "pKV3")]]
        if c == 1:
            oth += [[f"s_lshl_b32 s38, s{sSeq}, 7"], [f"s_lshl_b32 s39, s{sHead}, 2"], ["s_add_u32 s38, s38, s39"],
                    [f"s_add_u32 s35, s38, {F_OB}"], flag_store(35, 20, "fOB")]
        if c == ob_start - 2:
            oth += [[f"s_add_u32 s47, s29, {F_OB}"], [(f"buffer_load_dword v21, v16, {WS}, s47 offen sc1", "pOB")]]
        if c == o.get("cpf2", 11) or (o.get("cpfn") and c % o["cpfn"] == 2):
            oth += [[(f"buffer_load_dword v{vPFd}, v{vT[7]}, s[{sCode}:{sCode+3}], 0 offen", "cpf")]]
        nslots = 4*7 - 1 - (c == 0)
        if c >= ob_start:
            for _ in range(min(len(obl), o.get("ob_per", 8))):
                i = obl.pop(0)
                oth.append([(f"global_load_dwordx4 {oreg(i)}, v{vL16b if (i & 4) else vL16}, s[{sOg}:{sOg+1}] offset:{(i % 4)*1024} sc1", "obl")])
                if i % 8 == 7:
                    oth += [[f"s_add_u32 s{sOg}, s{sOg}, 8192"], [f"s_addc_u32 s{sOg+1}, s{sOg+1}, 0"]]
        wl = o.get("wol2", 6)
        if wl <= c < wl + 8:
            oth.append([(f"global_load_dword v{vPFd}, v0, s[{sPWoA}:{sPWoA+1}] offset:{((c - wl) & 1)*2048}", "wopf")] + (["v_add_u32 v0, 4096, v0"] if (c - wl) & 1 else []))
        while wob and len(kvs) + len(oth) + 3 <= nslots:
            oth += wob_dma(wob.pop(0), "wob")
        side = kvs + oth
        while len(side) > nslots:
            for k in range(len(side) - 1):
                if all(isinstance(x, str) and x.startswith("s_") and "m0" not in x for x in side[k]):
                    side[k+1] = side[k] + side[k+1]; side.pop(k); break
            else:
                raise Exception("slots")
        n = len(side)
        if n < nslots and o.get("spread", 1):
            sp = [[] for _ in range(nslots)]
            for k, g in enumerate(side): sp[k*nslots//n] = g
            side = sp
        if c == 0:
            poll_check(a, "L_PKV2", 21, 17, 31, "pKV2", mask=2)
        if c == 1:
            poll_check(a, "L_PKV3", 21, 17, 31, "pKV3", mask=0xffff)
        if c == ob_start - 1:
            poll_check(a, "L_POB", 21, 16, 47, "pOB")
        tile(a, 4*c + 3, side)
        tile(a, 4*c + 4, side, end_b=[a.wait(["c1b"]), "s_barrier"] if c == 0 else None)
        tile(a, 4*c + 5, side)
        tile(a, 4*c + 6, side, end_b=[a.wait([f"c{c+2}"], lgkm=True) if c + 2 <= 15 else "s_waitcnt lgkmcnt(0)", "s_barrier"])
        assert not side
        if c in (4, 9): a.stamp(f"c{c}")
    assert not wob and not obl, (wob, obl)
    tile(a, 63)
    a("s_nop 1")
    a(mf32(ar(aO[1], 16), ar(aV[1], 4), vr(P[1], 4), ar(aO[1], 16)))
    a(mf16(ar(aL[1], 4), ar(aONE, 4), vr(P[1], 4), ar(aL[1], 4)))
    a(mf32(ar(aO[1], 16), ar(aV[1]+4, 4), vr(P[1]+4, 4), ar(aO[1], 16)))
    a(mf16(ar(aL[1], 4), ar(aONE, 4), vr(P[1]+4, 4), ar(aL[1], 4)))
    a.stamp("attend")
    a(f"s_add_u32 s36, s{sOst}, {OA_OFF}")
    a(f"s_add_u32 s37, s{sOst}, {OA_OFF + 65536}")
    a(f"v_accvgpr_read_b32 v19, a{aL[0]}")
    for i in range(16): a(f"v_accvgpr_read_b32 v{S[0]+i}, a{aO[0]+i}")
    a("v_rcp_f32 v23, v19")
    a(f"v_accvgpr_read_b32 v20, a{aL[1]}")
    for i in range(16): a(f"v_mul_f32 v{S[0]+i}, v{S[0]+i}, v23")
    pack(a, S[0])
    a("v_rcp_f32 v24, v20")
    a.emit((f"buffer_store_dwordx4 {vr(S[0], 4)}, v{vL16}, {WS}, s36 offen sc1", "oa"))
    a.emit((f"buffer_store_dwordx4 {vr(S[0]+4, 4)}, v{vL16}, {WS}, s36 offen offset:1024 sc1", "oa"))
    for i in range(16): a(f"v_accvgpr_read_b32 v{S[1]+i}, a{aO[1]+i}")
    for i in range(16): a(f"v_mul_f32 v{S[1]+i}, v{S[1]+i}, v24")
    pack(a, S[1])
    a(f"s_mov_b32 s36, {f2u(2.0**40)}")
    a.emit((f"buffer_store_dwordx4 {vr(S[1], 4)}, v{vL16}, {WS}, s37 offen sc1", "oa"))
    a.emit((f"buffer_store_dwordx4 {vr(S[1]+4, 4)}, v{vL16}, {WS}, s37 offen offset:1024 sc1", "oa"))
    a("v_cmp_nge_f32 s[38:39], s36, v19")
    a("v_cmp_nge_f32 vcc, s36, v20")
    a(f"s_lshl_b32 s37, s{sW}, 2")
    a(f"s_add_u32 s37, s37, {KV_LDS[1]}")
    a("v_mov_b32 v22, s37")
    a("s_nop 1")
    a("s_or_b64 vcc, vcc, s[38:39]")
    if o.get("force_fallback"): a("s_mov_b64 vcc, -1")
    a("s_cmp_lg_u64 vcc, 0")
    a("s_cselect_b32 s36, 1, 0")
    a(f"s_andn2_b32 s36, s36, s{sPASS}")
    a("v_mov_b32 v21, s36")
    a("ds_write_b32 v22, v21")
    a(f"v_mov_b32 v22, {KV_LDS[1]}")
    a.emit(a.wait(["wob", "obl"], lgkm=True))
    a("s_barrier")
    a("ds_read_b128 v[20:23], v22")
    for s in p4_reads(0, 0, 0): a(s)
    a("s_waitcnt lgkmcnt(0)")
    a("v_or_b32 v20, v20, v21")
    a("v_or3_b32 v20, v20, v22, v23")
    a("s_nop 0")
    a("v_readfirstlane_b32 s38, v20")
    a("s_nop 3")
    a("s_cmp_lg_u32 s38, 0")
    a("s_cbranch_scc1 L_FALLBACK")
    b = Asm()
    b("L_FALLBACK:")
    b(f"s_mov_b32 s{sPASS}, 1")
    b(f"s_mov_b32 s25, {OOB}")
    b(f"s_mov_b32 s26, {OOB}")
    b(f"v_mov_b32 v19, {NEGBIG}")
    b(f"v_mov_b32 v20, {NEGBIG}")
    b(f"s_lshl_b32 s38, s{sHP}, 19")
    b(f"s_lshl_b32 s39, s{sHH}, 14")
    b("s_add_u32 s38, s38, s39")
    b("s_mov_b32 s39, 0")
    b("L_FB:")
    b("s_and_b32 s36, s39, 3")
    b("s_lshl_b32 s36, s36, 12")
    b("s_lshr_b32 s37, s39, 2")
    b("s_lshl_b32 s37, s37, 15")
    b("s_add_u32 s36, s36, s37")
    b("s_add_u32 s36, s36, s38")
    b(f"buffer_load_dwordx4 {ar(aK, 4)}, v{vL16}, {WS}, s36 offen sc1")
    b(f"buffer_load_dwordx4 {ar(aK+4, 4)}, v{vL16}, {WS}, s36 offen offset:1024 sc1")
    b("s_waitcnt vmcnt(0)")
    for q in range(2): b(mf32(vr(S[q], 16), ar(aK, 4), vr(QA[q], 4), 0))
    for q in range(2): b(mf32(vr(S[q], 16), ar(aK+4, 4), vr(QA[q]+4, 4), vr(S[q], 16)))
    b("s_nop 11")
    for q in range(2):
        for i in range(0, 16, 2): b(f"v_max3_f32 v{19+q}, v{19+q}, v{S[q]+i}, v{S[q]+i+1}")
    b("s_add_u32 s39, s39, 1")
    b("s_cmp_lt_u32 s39, 64")
    b("s_cbranch_scc1 L_FB")
    neg_max(b)
    b(f"s_lshl_b32 s{sKVt}, s{sT}, 15")
    b(f"s_add_u32 s{sKVg}, s{sKVp}, s{sKVt}")
    b(f"s_addc_u32 s{sKVg+1}, s{sKVp+1}, 0")
    b(f"s_add_u32 s36, s{sOrow}, {OB_OFF}")
    b(f"s_add_u32 s{sOg}, s54, s36")
    b(f"s_addc_u32 s{sOg+1}, s55, 0")
    b("v_add_u32 v0, -16384, v0")
    b("s_barrier")
    for g in range(2):
        for k_, s in enumerate(kv_dma(0, g, "")):
            b(s[0] if isinstance(s, tuple) else s)
            if k_ == 0: b("s_nop 0")
    b("s_waitcnt vmcnt(0)")
    b("s_barrier")
    b("s_branch L_ATT0")
    a.tail.append(b.text())

def fW4(fs, i, ct): return fs*32 + i*8 + ct*4
def p4_lds(g):
    return g*32768 if g < 4 else [131072, 0, 32768, 65536][g - 4]
def p4_reads(fs, g, grp):
    out = []
    base = p4_lds(g)
    for i in range(4):
        for ct in range(2):
            off = base % 65536 + (grp*4 + i)*2048
            v = vWo_r[2*(base // 65536) + ct]
            out.append(f"ds_read_b64_tr_b16 {ar(fW4(fs, i, ct), 2)}, v{v} offset:{off}")
            out.append(f"ds_read_b64_tr_b16 {ar(fW4(fs, i, ct)+2, 2)}, v{v} offset:{off+1024}")
    return out
def woa_dma(g, i):
    return [[f"s_add_u32 m0, s{sWv}, {p4_lds(g) + i*4096}"],
            [(f"buffer_load_dwordx4 v{vWo_g}, s[{sWoA}:{sWoA+3}], s{sWooff} offen lds", f"wo{g}"),
             f"s_add_u32 s{sWooff}, s{sWooff}, 65536", f"s_and_b32 s{sWooff}, s{sWooff}, 0x1fffff"]]
def oa_load(i):
    out = [(f"buffer_load_dwordx4 {oreg(i)}, v{vL16}, {WS}, s{sO} offen offset:{(i % 4)*1024} sc1", f"oa{i}")]
    if i % 4 == 3:
        out += [f"s_add_u32 s{sOoff}, s{sOoff}, 4096", f"s_and_b32 s{sOoff}, s{sOoff}, 0xffff", f"s_add_u32 s{sO}, s{sObase}, s{sOoff}"]
    return out

def phase4(a):
    o = a.opts
    a(f"s_add_u32 s{sObase}, s{sOrow}, {OA_OFF}")
    a(f"s_add_u32 s{sO}, s{sObase}, s{sOoff}")
    a(f"s_lshl_b32 s38, s{sSeq}, 7")
    a(f"s_lshl_b32 s39, s{sHead}, 2")
    a("s_add_u32 s38, s38, s39")
    a(f"s_add_u32 s35, s38, {F_OA}")
    a(f"s_add_u32 s47, s29, {F_OA}")
    a(f"s_lshl_b32 s36, s{sT4}, 9")
    a(f"s_lshl_b32 s37, s{sW}, 7")
    a("s_add_u32 s36, s36, s37")
    a(f"s_add_u32 s36, s36, {G_OFF}")
    a.stamp("p4start")
    flag_at = o.get("oaflag_gap", 10)
    poll_at = o.get("oapoll_gap", 80)
    chk_at = o.get("oachk_gap", 92)
    side = {}
    def put(k, l): side.setdefault(k, []).extend(l)
    put(0, [(f"buffer_load_dword v{vGate}, v16, {WS}, s36 offen sc1", "gl")])
    put(flag_at, [a.wait(["oa"])]); put(flag_at + 1, flag_store(35, 20, "fOA"))
    put(poll_at, [(f"buffer_load_dword v21, v16, {WS}, s47 offen sc1", "pOA")])
    lat = o.get("p4lat", 20)
    jobs = [[26 if False else flag_at + 2, 32*2 + 23 - lat, "wb", i] for i in range(24, 32)]
    for g in range(4, 8):
        e = {4: 26, 5: 26, 6: 56, 7: 88}[g]
        jobs += [[e, 32*(g - 1) + 23 - lat, "wa", (g, i)] for i in range(8)]
    jobs += [[max(chk_at + 1, 2*i + 2), 128 + 2*i - lat, "oa", i] for i in range(64)]
    gap = o.get("p4gap", 2.0)
    t = float(flag_at + 2)
    quiet = range(poll_at - o.get("p4quiet", 4), poll_at + 1)
    while jobs:
        k = int(t)
        av = [j for j in jobs if j[0] <= k]
        if not av or k in quiet:
            t = k + 1; continue
        j = min(av, key=lambda j: j[1])
        jobs.remove(j)
        if j[2] == "wb":
            d = wob_dma(j[3], "wo3"); put(k - 1, d[0] + d[1]); put(k, d[2])
        elif j[2] == "wa":
            d = woa_dma(*j[3]); put(k - 1, d[0]); put(k, d[1])
        else:
            put(k, oa_load(j[3]))
        if k > j[1]: print("p4 late", j, k)
        t += gap
    idx = 0
    for g in range(8):
        br = g // 4
        for grp in range(4):
            fs = grp & 1
            rd = p4_reads(1 - fs, g, grp + 1) if grp < 3 else (p4_reads(1 - fs, g + 1, 0) if g < 7 else [])
            for j in range(8):
                i, ct = j // 2, j % 2
                k16 = (g % 4)*16 + grp*4 + i
                if br == 1 and ct == 0:
                    n = a.vmn([f"oa{k16}"])
                    a(f"s_waitcnt vmcnt({n})")
                d = vr(ACC4[br][ct], 16)
                a(mf32(d, ar(fW4(fs, i, ct), 4), oreg(k16), 0 if k16 == 0 else d))
                for s in rd[3*j:3*j+3] if j < 5 else (rd[15:] if j == 5 else []): a(s)
                for s in side.pop(idx, []): a.emit(s)
                if idx == flag_at + 1: a.stamp("fOA")
                if idx == chk_at:
                    poll_check(a, "L_POA", 21, 16, 47, "pOA")
                    a.stamp("pOA")
                idx += 1
            if grp == 2 and g < 7:
                nxt = f"wo{g+1}"
                a.emit(a.wait([nxt], lgkm=True) if nxt in a.vm else "s_waitcnt lgkmcnt(0)")
                a("s_barrier")
            elif rd:
                a("s_waitcnt lgkmcnt(0)")
        if g == 3: a.stamp("p4B")
    assert not side, side.keys()
    a.stamp("p4A")
    a(f"v_sub_f32 v8, 1.0, v{vGate}")
    a(f"v_and_b32 v19, 31, v{vLANE}")
    a(f"v_lshrrev_b32 v20, 5, v{vLANE}")
    a("v_lshlrev_b32 v20, 4, v20")
    a("v_lshl_add_u32 v19, v19, 11, v20")
    a(f"s_lshl_b32 s36, s{sT4}, 18")
    a(f"s_lshl_b32 s37, s{sW}, 16")
    a("s_add_u32 s36, s36, s37")
    a(f"s_lshl_b32 s37, s{sC4}, 7")
    a("s_add_u32 s36, s36, s37")
    for ct in range(2):
        for i in range(16): a(f"v_mul_f32 v{ACC4[0][ct]+i}, v{ACC4[0][ct]+i}, v8")
    for ct in range(2):
        B_, A_ = ACC4[0][ct], ACC4[1][ct]
        for i in range(16): a(f"v_fma_f32 v{B_+i}, v{A_+i}, v{vGate}, v{B_+i}")
        pack(a, B_)
        a("s_nop 1")
        for k in (0, 2):
            a(f"v_permlane32_swap_b32 v{B_+2*k}, v{B_+2*k+2}")
            a(f"v_permlane32_swap_b32 v{B_+2*k+1}, v{B_+2*k+3}")
        for k in (0, 2):
            a.emit((f"buffer_store_dwordx4 {vr(B_+2*k, 4)}, v19, s[{sOutD}:{sOutD+3}], s36 offen offset:{ct*64 + k*16} {['', 'sc1', 'nt', 'sc0 sc1', 'sc1 nt'][o.get('outflag', 0)]}", "out"))

def gen(opts):
    a = G(opts); a.tail = []
    setup(a); gemm1(a); e1(a); attention(a); phase4(a)
    if opts.get("diag") is not None:
        a.stamp("end")
        a("s_nop 1")
        a(f"v_readlane_b32 s36, v{vSTAMP}, {32 + opts['diag']}")
        a("s_nop 3")
        a("s_add_u32 s36, s36, 10000")
        if opts.get("diagwg") is not None:
            a(f"s_cmp_lg_u32 s2, {opts['diagwg']}")
            a("s_cbranch_scc1 L_END")
        a("L_DIAG:")
        a("s_memrealtime s[38:39]")
        a("s_waitcnt lgkmcnt(0)")
        a("s_sub_u32 s38, s38, s36")
        a("s_cmp_lt_i32 s38, 0")
        a("s_cbranch_scc1 L_DIAG")
    elif opts.get("dbgstamp"):
        a.stamp("end")
        sel = ["karg", "first", "g7", "g15", "g23", "g31", "loc1", "pKV", "c1", "c9", "attend", "pOA", "p4B", "p4A", "end"]
        a(f"s_cmp_lg_u32 s2, {opts['dbgstamp']-1}")
        a("s_cbranch_scc1 L_DBGX")
        a(f"s_cmp_lg_u32 s{sW}, 0")
        a("s_cbranch_scc1 L_DBGX")
        a(f"v_readlane_b32 s36, v{vSTAMP}, 32")
        for i, nm in enumerate(sel):
            a(f"v_readlane_b32 s37, v{vSTAMP}, {32 + a.names.index(nm)}")
            a("s_nop 3")
            a("s_sub_u32 s37, s37, s36")
            a("v_mov_b32 v2, s37")
            a("v_mov_b32 v3, 0")
            a(f"global_store_dword v3, v2, s[{sPDbg}:{sPDbg+1}] offset:{4*(i+1)}")
        a("L_DBGX:")
    elif opts.get("stamp"):
        a.stamp("end")
        a("s_lshl_b32 s36, s2, 2")
        a(f"s_add_u32 s36, s36, s{sW}")
        a("s_lshl_b32 s36, s36, 8")
        a(f"s_add_u32 s36, s36, {STAMP_OFF}")
        a(f"v_lshlrev_b32 v2, 2, v{vLANE}")
        a(f"buffer_store_dword v{vSTAMP}, v2, {WS}, s36 offen")
    a("s_endpgm")
    for t in a.tail: a(t)
    head = f"""; gated mix of full MHA and dilated sliding-window attention: one fused kernel, 256 co-resident workgroups
; @launch grid=(256,1,1) block=(256,1,1) lds=163840
.amdgcn_target "amdgcn-amd-amdhsa--gfx950"
.text
.globl {KNAME}
.p2align 8
.type {KNAME},@function
{KNAME}:
"""
    tail = f"""L_END:
    s_endpgm
.section .rodata,"a"
.p2align 6
.amdhsa_kernel {KNAME}
  .amdhsa_next_free_vgpr 512
  .amdhsa_next_free_sgpr 102
  .amdhsa_accum_offset 256
  .amdhsa_group_segment_fixed_size 0
  .amdhsa_kernarg_size 80
  .amdhsa_user_sgpr_count 2
  .amdhsa_user_sgpr_kernarg_segment_ptr 1
  .amdhsa_system_sgpr_workgroup_id_x 1
.end_amdhsa_kernel
"""
    gen.names = a.names
    return head + a.text() + tail

if __name__ == "__main__":
    import hazard
    opts = {}
    for kv in sys.argv[2:]:
        k, v = kv.split("="); opts[k] = int(v)
    t = gen(opts)
    open(sys.argv[1], "w").write(t)
    print(len(hazard.check(t)), "hazards", gen.names)
```

```python
import sys, struct, math
from asmlib import *

KNAME = "gated_mix__softmax_full_mha__sliding_local_dilated__prompt_kernel"
def f2u(x): return struct.unpack("<I", struct.pack("<f", x))[0]
KV_OFF   = 0
OA_OFF   = 8 << 20
OB_OFF   = 12 << 20
HALO_OFF = 16 << 20
G_OFF    = 20 << 20
FLAG_OFF = 21 << 20
F_KV, F_H, F_OB, F_OA = FLAG_OFF, FLAG_OFF + 4096, FLAG_OFF + 8192, FLAG_OFF + 12288
STAMP_OFF = 0x8000000
OOB = 0x80000000
CSCALE = f2u(math.log2(math.e) / math.sqrt(32.0))
NEGBIG = f2u(-1e30)
X_SLOT = 16384; W_BASE = 49152; W_SLOT = 24576
KV_LDS = [98304, 131072]
sX, sWA, sWB, sWS = 4, 8, 12, 16
sW, sHP, sT, sRH, sHH = 20, 21, 22, 23, 24
sWoff, sXoff = 25, 26
sXw, sWv = 30, 34
sPF, sPFoff, sPFstr, sPFlim = 40, 44, 45, 46
sNONCE, sCS = 60, 61
sSTAMPI = 68
sPWoA, sPWoB, sPG, sPOut, sPDbg = 70, 72, 74, 76, 78
sKVsrc, sKVbase, sKVt, sKVdst = 80, 81, 82, 27
sPASS, sOst, sSpin = 83, 86, 87
sT4, sC4, sOoff, sWooff, sObase = 88, 89, 90, 91, 92
sHalo, sSeq, sO, sOrow, sHead = 93, 94, 95, 96, 97
sWoA, sWoB, sOutD = 4, 8, 12
sCode = 48
vLANE = 1
vXr = [2, 3, 4, 5]; vWr = [10, 11]; vWg = [12, 13, 14]; vXg = [15, 16, 17, 18]
vT = [19, 20, 21, 22, 23, 24, 25, 26]
vPF, vPFd, vL16, vSTAMP, vF0 = 27, 28, 29, 30, 31
vMc = 32
ACC0 = 64
def acc(blk, rt): return ACC0 + (blk*2 + rt)*16
QA = [64, 80]; KA = [96, 112]; VA = [128, 144]; QB = [160, 176]; KB = [192, 208]; VB = [224, 240]
NM = [128, 144]; S = [176, 240]; P = [72, 88]
vKV = [6, 7]
vWo_g = 2; vWo_r = [3, 4, 10, 11, 12, 13]
vGate, vGrow = 14, 8
HK = 200; HV = 232
def fX(s, rt): return s*32 + rt*4
def fW(s, blk): return s*32 + 8 + blk*4
aK, aV = 0, [8, 16]
aO = [32, 48]; aL = [64, 68]; aONE = 72
aGATE = 76
OV = list(range(96, 128, 4)) + list(range(160, 176, 4)) + list(range(192, 240, 4))
def oreg(i): return ar(76 + 4*i, 4) if i < 45 else vr(OV[i - 45], 4)
ACC4 = [[64, 80], [128, 144]]
pKA = [96, 112]; pVA = [104, 120]; pQB = [160, 168]; pKB = [192, 208]; pVB = [224, 216]

def mf32(d, A, B, C): return f"v_mfma_f32_32x32x16_bf16 {d}, {A}, {B}, {C}"
def mf16(d, A, B, C): return f"v_mfma_f32_16x16x32_bf16 {d}, {A}, {B}, {C}"
WS = f"s[{sWS}:{sWS+3}]"

class G(Asm):
    def __init__(self, opts):
        super().__init__()
        self.opts = opts
        self.vm = []
        self.nstamp = 0
        self.names = []
    def emit(self, x):
        if callable(x): x = x()
        if x is None: return
        if isinstance(x, tuple):
            self(x[0]); self.vm.append(x[1])
        else:
            assert not (x.lstrip().startswith(("buffer_", "global_"))), x
            self(x)
    def vmn(self, tags):
        idx = [i for i, t in enumerate(self.vm) if t in tags]
        assert idx, tags
        n = len(self.vm) - 1 - max(idx)
        return min(n, 63)
    def wait(self, tags, lgkm=False):
        return lambda: f"s_waitcnt vmcnt({self.vmn(tags)})" + (" lgkmcnt(0)" if lgkm else "")
    def stamp(self, name):
        if not self.opts.get("stamp"): return
        self.names.append(name)
        a = self
        a("s_memtime s[66:67]")
        a("s_memrealtime s[64:65]")
        a("s_waitcnt lgkmcnt(0)")
        a(f"v_writelane_b32 v{vSTAMP}, s66, {self.nstamp}")
        a(f"v_writelane_b32 v{vSTAMP}, s64, {self.nstamp + 32}")
        self.nstamp += 1
        assert self.nstamp <= 32
    def inter(self, mains, sides):
        for i, m in enumerate(mains):
            if m is not None: self.emit(m)
            for s in sides.get(i, []): self.emit(s)

def srd(a, s, lo, hi, nbytes):
    a(f"s_mov_b32 s{s}, s{lo}")
    a(f"s_and_b32 s{s+1}, s{hi}, 0xffff")
    a(f"s_mov_b32 s{s+2}, {nbytes}")
    a(f"s_mov_b32 s{s+3}, 0x20000")

def pf_round(a):
    return [(f"buffer_load_dword v{vPFd}, v{vPF}, s[{sPF}:{sPF+3}], s{sPFoff} offen", "pf"),
            f"s_add_u32 s{sPFoff}, s{sPFoff}, s{sPFstr}"]

class P1:
    def __init__(self, a):
        self.a = a; self.woff = None; self.xoff = None
    def dma(self, piece):
        kind, j, p = piece
        pre = []
        if kind == "W":
            if self.woff != j:
                pre.append(f"s_mov_b32 s{sWoff}, {j*196608}"); self.woff = j
            s = sWA if p < 3 else sWB
            pre.append(f"s_add_u32 m0, s{sWv}, {W_BASE + (j % 4)*W_SLOT + p*4096}")
            return pre, (f"buffer_load_dwordx4 v{vWg[p % 3]}, s[{s}:{s+3}], s{sWoff} offen lds", f"W{j}")
        if self.xoff != j:
            pre.append(f"s_mov_b32 s{sXoff}, {j*128}"); self.xoff = j
        pre.append(f"s_add_u32 m0, s{sXw}, {(j % 3)*X_SLOT + p*1024}")
        return pre, (f"buffer_load_dwordx4 v{vXg[p]}, s[{sX}:{sX+3}], s{sXoff} offen lds", f"X{j}")

def frag_reads(fs, u, k16):
    kk = 2*(u & 1) + k16
    out = [f"ds_read_b128 {ar(fX(fs, rt), 4)}, v{vXr[kk]} offset:{((u >> 1) % 3)*X_SLOT + rt*4096}" for rt in range(2)]
    ws = u % 4
    for blk in range(6):
        off = (ws % 2)*W_SLOT + blk*4096 + k16*2048
        out.append(f"ds_read_b64_tr_b16 {ar(fW(fs, blk), 2)}, v{vWr[ws//2]} offset:{off}")
        out.append(f"ds_read_b64_tr_b16 {ar(fW(fs, blk)+2, 2)}, v{vWr[ws//2]} offset:{off+512}")
    return out

def g1_mfma(fs, blk, rt):
    d = vr(acc(blk, rt), 16)
    w, x = ar(fW(fs, blk), 4), ar(fX(fs, rt), 4)
    return mf32(d, x, w, d) if blk % 3 == 2 else mf32(d, w, x, d)

def setup(a):
    o = a.opts
    a("L_START:")
    a("s_cmp_ge_u32 s2, 256")
    a("s_cbranch_scc1 L_END")
    a.stamp("start")
    a("s_load_dwordx4 s[48:51], s[0:1], 0")
    a("s_load_dwordx2 s[52:53], s[0:1], 32")
    a("s_load_dwordx2 s[54:55], s[0:1], 72")
    a(f"s_load_dwordx2 s[{sPWoA}:{sPWoA+1}], s[0:1], 16")
    a(f"s_load_dwordx4 s[{sPWoB}:{sPWoB+3}], s[0:1], 40")
    a(f"s_load_dwordx4 s[{sPOut}:{sPOut+3}], s[0:1], 56")
    a(f"v_and_b32 v{vLANE}, 63, v0")
    a(f"v_lshrrev_b32 v{vT[0]}, 6, v0")
    a("s_and_b32 s3, s2, 7")
    a(f"v_readfirstlane_b32 s{sW}, v{vT[0]}")
    a("s_lshr_b32 s35, s2, 3")
    a("s_and_b32 s37, s3, 3")
    a("s_lshl_b32 s36, s37, 2")
    a("s_and_b32 s38, s35, 3")
    a(f"s_add_u32 s{sHP}, s36, s38")
    a("s_lshr_b32 s39, s3, 2")
    a("s_lshl_b32 s36, s39, 3")
    a("s_lshr_b32 s38, s35, 2")
    a(f"s_add_u32 s{sT}, s36, s38")
    a(f"s_and_b32 s{sRH}, s{sW}, 1")
    a(f"s_lshr_b32 s{sHH}, s{sW}, 1")
    t0, t1, t2 = vT[0], vT[1], vT[2]
    if o.get("pfx"):
        a("s_lshl_b32 s38, s35, 5")
    else:
        a("s_lshl_b32 s38, s37, 5")
        a("s_add_u32 s38, s38, s35")
        a("s_lshl_b32 s38, s38, 3")
    a("s_lshl_b32 s47, s39, 10")
    a("s_add_u32 s38, s38, s47")
    a(f"v_add_u32 v{t0}, s38, v{vLANE}")
    a(f"v_lshlrev_b32 v{t0}, 11, v{t0}")
    if o.get("pfmode", 0) == 0:
        a("s_lshl_b32 s39, s39, 5")
        a("s_add_u32 s39, s39, s35")
        a("s_mul_i32 s39, s39, 6144")
        a("s_lshl_b32 s38, s37, 9")
        a("s_add_u32 s39, s39, s38")
        a(f"v_lshrrev_b32 v{t1}, 2, v{vLANE}")
        a(f"v_lshlrev_b32 v{t1}, 11, v{t1}")
        a(f"v_and_b32 v{t2}, 3, v{vLANE}")
        a(f"v_lshlrev_b32 v{t2}, 7, v{t2}")
        a(f"v_add3_u32 v{t1}, v{t1}, v{t2}, s39")
    elif o.get("pfmode", 0) == 2:
        a("s_mul_i32 s39, s35, 12288")
        a("s_lshl_b32 s38, s37, 9")
        a("s_add_u32 s39, s39, s38")
        a(f"v_lshrrev_b32 v{t1}, 2, v{vLANE}")
        a(f"v_lshlrev_b32 v{t1}, 11, v{t1}")
        a(f"v_and_b32 v{t2}, 3, v{vLANE}")
        a(f"v_lshlrev_b32 v{t2}, 7, v{t2}")
        a(f"v_add3_u32 v{t1}, v{t1}, v{t2}, s39")
    else:
        a("s_mul_i32 s39, s2, 1536")
        a(f"v_lshlrev_b32 v{t1}, 7, v{vLANE}")
        a(f"v_add_u32 v{t1}, s39, v{t1}")
    a(f"s_mul_i32 s47, s35, {o.get('codelines', 20)}")
    a(f"v_add_u32 v{t2}, s47, v{vLANE}")
    a(f"v_lshlrev_b32 v{vT[7]}, 7, v{t2}")
    a(f"s_mov_b32 s{sPFstr}, 128")
    a(f"s_cmp_eq_u32 s{sW}, 0")
    a(f"s_cselect_b32 s{sPFstr}, s{sPFstr}, {64*6144}")
    a(f"s_cselect_b32 s38, {32 if o.get('pfx') else 8}, {24 if o.get('pfmode', 0) == 2 else 12}")
    a("s_cselect_b64 s[56:57], -1, 0")
    a(f"v_cndmask_b32 v{vPF}, v{t1}, v{t0}, s[56:57]")
    a(f"s_cmp_eq_u32 s{sW}, 3")
    a("s_cselect_b64 s[56:57], -1, 0")
    a(f"v_cndmask_b32 v{vPF}, v{vPF}, v{vT[7]}, s[56:57]")
    a(f"s_cselect_b32 s38, {o.get('codelines', 20)}, s38")
    a(f"s_cselect_b32 s{sPFstr}, 0x4000000, s{sPFstr}")
    a(f"v_cmp_gt_u32 vcc, s38, v{vLANE}")
    a(f"v_mov_b32 v{t2}, {OOB}")
    a(f"s_mov_b32 s{sPFoff}, 0")
    a(f"v_cndmask_b32 v{vPF}, v{t2}, v{vPF}, vcc")
    a(f"v_cmp_gt_u32 vcc, {o.get('codelines', 20)}, v{vLANE}")
    a("s_getpc_b64 s[58:59]")
    a("L_PC:")
    a("s_sub_u32 s58, s58, L_PC - L_START")
    a(f"v_cndmask_b32 v{vT[7]}, v{t2}, v{vT[7]}, vcc")
    a("s_subb_u32 s59, s59, 0")
    r, c, t0, t1 = vT[0], vT[1], vT[2], vT[3]
    a(f"v_lshrrev_b32 v{r}, 3, v{vLANE}")
    a(f"v_and_b32 v{c}, 7, v{vLANE}")
    a(f"v_lshlrev_b32 v{t0}, 1, v{r}")
    a(f"v_and_b32 v{t0}, 4, v{t0}")
    a(f"v_xor_b32 v{t0}, v{t0}, v{c}")
    a(f"v_lshlrev_b32 v{t0}, 4, v{t0}")
    a(f"v_mul_u32_u24 v{t1}, 6144, v{r}")
    a(f"v_add_u32 v{t0}, v{t0}, v{t1}")
    a(f"s_mul_i32 s36, s{sW}, {8*6144}")
    a(f"s_lshl_b32 s37, s{sHP}, 7")
    a("s_add_u32 s36, s36, s37")
    a(f"v_add_u32 v{vWg[0]}, s36, v{t0}")
    a(f"v_add_u32 v{vWg[1]}, 2048, v{vWg[0]}")
    a(f"v_add_u32 v{vWg[2]}, 4096, v{vWg[0]}")
    a(f"v_lshrrev_b32 v{t0}, 1, v{r}")
    a(f"v_xor_b32 v{t0}, v{t0}, v{c}")
    a(f"v_lshlrev_b32 v{t0}, 4, v{t0}")
    a(f"v_lshlrev_b32 v{t1}, 11, v{r}")
    a(f"v_add_u32 v{t0}, v{t0}, v{t1}")
    a(f"s_lshl_b32 s36, s{sT}, 7")
    a(f"s_lshl_b32 s37, s{sW}, 5")
    a("s_add_u32 s36, s36, s37")
    a("s_lshl_b32 s36, s36, 11")
    a(f"v_add_u32 v{vXg[0]}, s36, v{t0}")
    a(f"v_xor_b32 v{vXg[1]}, 64, v{vXg[0]}")
    a(f"v_add_u32 v{vXg[1]}, {8*2048}, v{vXg[1]}")
    a(f"v_add_u32 v{vXg[2]}, {16*2048}, v{vXg[0]}")
    a(f"v_add_u32 v{vXg[3]}, {16*2048}, v{vXg[1]}")
    a(f"s_lshl_b32 s{sWv}, s{sW}, 10")
    a(f"s_lshl_b32 s{sXw}, s{sW}, 12")
    a("s_waitcnt lgkmcnt(0)")
    a.stamp("karg")
    a(f"s_mov_b32 s{sPF+2}, {1024*3072*2}")
    a(f"s_cmp_eq_u32 s{sW}, 0")
    a(f"s_cselect_b32 s{sPF}, s48, s50")
    a(f"s_cselect_b32 s{sPF+1}, s49, s51")
    a(f"s_cselect_b32 s{sPF+2}, {2048*1024*2}, s{sPF+2}")
    a(f"s_cmp_eq_u32 s{sW}, 2")
    a(f"s_cselect_b32 s{sPF}, s52, s{sPF}")
    a(f"s_cselect_b32 s{sPF+1}, s53, s{sPF+1}")
    a(f"s_cmp_eq_u32 s{sW}, 3")
    a(f"s_cselect_b32 s{sPF}, s58, s{sPF}")
    a(f"s_cselect_b32 s{sPF+1}, s59, s{sPF+1}")
    a(f"s_cselect_b32 s{sPF+2}, L_END - L_START, s{sPF+2}")
    a(f"s_and_b32 s{sPF+1}, s{sPF+1}, 0xffff")
    a(f"s_mov_b32 s{sPF+3}, 0x20000")
    for i in range(o.get("pf0", 2)):
        for s in pf_round(a): a.emit(s)
    srd(a, sX, 48, 49, 2048*1024*2)
    srd(a, sWA, 50, 51, 1024*3072*2)
    srd(a, sWB, 52, 53, 1024*3072*2)

def fillers_prologue(a):
    L = []
    f = L.append
    f("s_mov_b32 s16, s54"); f("s_and_b32 s17, s55, 0xffff"); f("s_mov_b32 s18, 0x10000000"); f("s_mov_b32 s19, 0x20000")
    f(f"s_mov_b32 s{sCode}, s58"); f(f"s_and_b32 s{sCode+1}, s59, 0xffff"); f(f"s_mov_b32 s{sCode+2}, L_END - L_START"); f(f"s_mov_b32 s{sCode+3}, 0x20000")
    m, h, t0, t1, row = vT[0], vT[1], vT[2], vT[3], vT[4]
    f(f"v_and_b32 v{m}, 31, v{vLANE}")
    f(f"v_lshrrev_b32 v{h}, 5, v{vLANE}")
    f(f"v_lshrrev_b32 v{t0}, 1, v{m}")
    f(f"v_and_b32 v{t0}, 7, v{t0}")
    f(f"v_xor_b32 v{t0}, v{t0}, v{h}")
    f(f"v_lshlrev_b32 v{t0}, 4, v{t0}")
    f(f"v_lshlrev_b32 v{t1}, 7, v{m}")
    f(f"v_add_u32 v{t0}, v{t0}, v{t1}")
    f(f"s_lshl_b32 s36, s{sRH}, 13")
    f(f"v_add_u32 v{vXr[0]}, s36, v{t0}")
    for kk in range(1, 4):
        f(f"v_xor_b32 v{vXr[kk]}, {kk*32}, v{vXr[0]}")
    f(f"v_and_b32 v{m}, 15, v{vLANE}")
    f(f"v_lshrrev_b32 v{t0}, 2, v{m}")
    f(f"v_lshlrev_b32 v{t1}, 3, v{h}")
    f(f"v_add_u32 v{row}, v{t0}, v{t1}")
    f(f"v_lshrrev_b32 v{t0}, 1, v{row}")
    f(f"v_and_b32 v{t0}, 1, v{t0}")
    f(f"v_xor_b32 v{t0}, s{sHH}, v{t0}")
    f(f"v_lshlrev_b32 v{t0}, 6, v{t0}")
    f(f"v_lshlrev_b32 v{t1}, 7, v{row}")
    f(f"v_add_u32 v{t0}, v{t0}, v{t1}")
    f(f"v_and_b32 v{t1}, 16, v{vLANE}")
    f(f"v_lshlrev_b32 v{t1}, 1, v{t1}")
    f(f"v_add_u32 v{t0}, v{t0}, v{t1}")
    f(f"v_and_b32 v{t1}, 3, v{m}")
    f(f"v_lshlrev_b32 v{t1}, 3, v{t1}")
    f(f"v_add_u32 v{t0}, v{t0}, v{t1}")
    f(f"v_add_u32 v{vWr[0]}, {W_BASE}, v{t0}")
    f(f"v_add_u32 v{vWr[1]}, {W_BASE + 2*W_SLOT}, v{t0}")
    for r in range(ACC0, 256):
        f(f"v_mov_b32 v{r}, 0")
    return L

def fillers_late(a):
    L = []
    f = L.append
    q, b, t = vT[0], vT[1], vT[2]
    f(f"v_lshlrev_b32 v{vL16}, 4, v{vLANE}")
    f(f"v_and_b32 v{q}, 31, v{vLANE}")
    f(f"v_lshrrev_b32 v{b}, 5, v{vLANE}")
    f(f"v_lshlrev_b32 v{b}, 2, v{b}")
    f(f"v_sub_u32 v{b}, v{q}, v{b}")
    f(f"s_mov_b32 s36, {NEGBIG}")
    for i in range(24):
        r, add = (i, 0) if i < 16 else (i - 8, 32)
        d = vMc + i
        kv = 8*(r >> 2) + (r & 3)
        f(f"v_add_u32 v{d}, {add - kv}, v{b}")
        f(f"v_and_b32 v{d}, 0xfffffff1, v{d}")
        f(f"v_min_u32 v{d}, 1, v{d}")
        f(f"v_sub_u32 v{d}, 0, v{d}")
        f(f"v_and_b32 v{d}, s36, v{d}")
    f(f"v_lshrrev_b32 v{q}, 2, v{vLANE}")
    f(f"v_lshrrev_b32 v{t}, 4, v{vLANE}")
    f(f"v_xor_b32 v{q}, v{q}, v{t}")
    f(f"v_and_b32 v{q}, 1, v{q}")
    f(f"v_add_u32 v{q}, -1, v{q}")
    f(f"v_and_b32 v{q}, 0x3f803f80, v{q}")
    for i in range(4):
        f(f"v_accvgpr_write_b32 a{aONE+i}, v{q}")
    f(f"v_min_u32 v{vF0}, 1, v{vLANE}")
    f(f"v_lshlrev_b32 v{vF0}, 31, v{vF0}")
    f(f"s_mov_b32 s{sCS}, {CSCALE}"); f(f"s_mov_b32 s62, {CSCALE}"); f(f"s_mov_b32 s63, {CSCALE}")
    f(f"s_lshl_b32 s36, s{sHP}, 19")
    f(f"s_lshl_b32 s37, s{sW}, 13")
    f(f"s_lshl_b32 s38, s{sHH}, 14")
    f(f"s_lshl_b32 s39, s{sRH}, 13")
    f(f"s_add_u32 s{sKVdst}, s38, s39")
    f(f"s_add_u32 s{sKVbase}, s36, s{sKVdst}")
    f(f"s_lshl_b32 s{sKVt}, s{sT}, 15")
    f(f"s_add_u32 s{sKVsrc}, s{sKVbase}, s{sKVt}")
    f(f"s_and_b32 s{sKVt}, s{sT}, 7"); f(f"s_and_b32 s{sKVb}, s{sT}, 8")
    f(f"s_add_u32 s36, s38, {KV_LDS[0]}")
    f(f"v_add_u32 v{vKV[0]}, s36, v{vL16}")
    f(f"v_add_u32 v{vKV[1]}, 32768, v{vKV[0]}")
    f(f"s_lshl_b32 s{sHead}, s{sHP}, 1")
    f(f"s_add_u32 s{sHead}, s{sHead}, s{sHH}")
    f(f"s_lshl_b32 s{sSeq}, s{sT}, 1")
    f(f"s_add_u32 s{sSeq}, s{sSeq}, s{sRH}")
    f(f"s_lshl_b32 s37, s{sSeq}, 6")
    f(f"s_add_u32 s37, s37, s{sHead}")
    f(f"s_lshl_b32 s{sOst}, s37, 11")
    f(f"s_lshl_b32 s38, s{sHead}, 5")
    f(f"s_add_u32 s38, s38, s{sSeq}")
    f(f"s_lshl_b32 s28, s38, 2")
    f(f"s_lshl_b32 s38, s38, 12")
    f(f"s_add_u32 s{sHalo}, s38, {HALO_OFF}")
    f(f"s_mov_b32 s{sPASS}, 0")
    f(f"s_add_u32 s{sKVp}, s54, s{sKVbase}\ns_addc_u32 s{sKVp+1}, s55, 0")
    f(f"s_cmp_lt_u32 s{sW}, 2\ns_cselect_b32 s{sPFW}, s{sPWoA}, s{sPWoB}\ns_cselect_b32 s{sPFW+1}, s{sPWoA+1}, s{sPWoB+1}")
    f(f"s_lshl_b32 s36, s2, 1"); f(f"s_add_u32 s36, s36, s{sRH}"); f("s_lshl_b32 s36, s36, 12")
    f(f"v_and_b32 v24, 7, v{vLANE}"); f("v_lshlrev_b32 v24, 7, v24"); f("v_add_u32 v23, s36, v24")
    f(f"v_and_b32 v24, 15, v{vLANE}"); f("v_lshlrev_b32 v24, 7, v24")
    f("s_lshr_b32 s36, s2, 3"); f("s_lshl_b32 s36, s36, 2"); f(f"s_add_u32 s36, s36, s{sW}"); f("s_lshl_b32 s36, s36, 14")
    f("v_add_u32 v0, s36, v24")
    f(f"s_lshl_b32 s36, s{sSeq}, 6")
    f(f"s_lshl_b32 s37, s{sHead}, 1")
    f("s_add_u32 s36, s36, s37")
    f(f"v_lshrrev_b32 v9, 5, v{vLANE}")
    f(f"v_add_u32 v{vGrow}, s36, v9")
    f(f"v_and_b32 v25, 31, v{vLANE}")
    f("v_lshlrev_b32 v25, 4, v25")
    f(f"v_lshl_add_u32 v9, v{vGrow}, 11, v25")
    f(f"s_mov_b32 s56, s{sPG}"); f(f"s_and_b32 s57, s{sPG+1}, 0xffff"); f("s_mov_b32 s58, 2048"); f("s_mov_b32 s59, 0x20000")
    f(f"s_lshl_b32 s38, s{sHP}, 2"); f(f"s_add_u32 s38, s38, s{sW}"); f("s_lshl_b32 s38, s38, 6")
    f(f"s_add_u32 s31, s38, {F_KV}"); f(f"s_lshl_b32 s38, s{sT}, 2"); f("s_add_u32 s32, s31, s38")
    f(f"s_add_u32 s33, s28, {F_H - 4}"); f(f"s_cmp_eq_u32 s{sSeq}, 0\ns_cselect_b32 s38, 4, 0"); f("s_add_u32 s33, s33, s38")
    return L

READ_GAPS = [0,0,1,1,2,2,3,3,4,5,6,7,8,9]
def gemm1(a):
    o = a.opts
    p1 = P1(a)
    W = lambda j, ps: [("W", j, p) for p in ps]
    X = lambda v, ps: [("X", v, p) for p in ps]
    pro = X(0, range(4)) + W(0, range(6)) + W(1, range(6))
    sched = {(0,0): X(1, range(4)) + W(2, [0,1]), (0,1): W(2, [2,3,4,5]) + W(3, [0,1]),
             (1,0): W(3, [2,3,4,5]) + W(4, [0,1]), (1,1): X(2, range(4)) + W(4, [2,3]),
             (2,0): W(4, [4,5]) + W(5, [0,1,2,3]), (2,1): W(5, [4,5]) + X(3, range(4)),
             (3,0): W(6, range(6))}
    for u in range(3, 28):
        v, p0 = ((u + 5)//2, 0) if u & 1 else ((u + 4)//2, 2)
        sched[(u, 1)] = W(u + 4, [0,1,2]) + (X(v, [p0]) if v < 16 else [])
        sched[(u + 1, 0)] = W(u + 4, [3,4,5]) + (X(v, [p0 + 1]) if v < 16 else [])
    for (u, hf), ps in sched.items():
        done = u - 1 if hf == 0 else u
        for k, j, p in ps:
            if k == "W": assert j < 4 or done >= j - 4, (u, hf, k, j)
            else: assert j < 3 or done >= 2*(j - 3) + 1, (u, hf, k, j)
    npf0 = o.get("pf0", 2)
    pfs = {}
    r = npf0
    for u in range(0, 32):
        while r < 16 and u >= max(0, 2*r - o.get("pfd", 8)) and pfs.get(u, 0) < 1:
            pfs[u] = pfs.get(u, 0) + 1; r += 1
    fil = fillers_prologue(a)
    per = (len(fil) + len(pro) - 1)//len(pro)
    for i, pc in enumerate(pro):
        pre, d = p1.dma(pc)
        for s in pre: a(s)
        chunk = fil[i*per:(i+1)*per]
        a(chunk[0] if chunk else "s_nop 0")
        a.emit(d)
        for s in chunk[1:]: a(s)
    a(f"s_or_b32 s36, s2, s{sW}")
    a("s_cmp_lg_u32 s36, 0")
    a("s_cbranch_scc1 L_NONONCE")
    a("s_memrealtime s[36:37]")
    a("v_mov_b32 v20, 0")
    a("s_waitcnt lgkmcnt(0)")
    a("s_or_b32 s36, s36, 1")
    a("v_mov_b32 v19, s36")
    a(f"global_store_dword v20, v19, s[{sPDbg}:{sPDbg+1}] sc1")
    a("L_NONONCE:")
    a.stamp("issued")
    a.emit(a.wait(["X0", "W0"]))
    a("s_barrier")
    a.stamp("first")
    for s in frag_reads(0, 0, 0): a(s)
    a("s_waitcnt lgkmcnt(0)")
    late = fillers_late(a)
    order = [(b, rt) for b in range(6) for rt in range(2)]
    for u in range(32):
        for hf in range(2):
            last = (u == 31 and hf == 1)
            reads = [] if last else (frag_reads(1, u, 1) if hf == 0 else frag_reads(0, u + 1, 0))
            sides = {}
            for g, rd in zip(READ_GAPS, reads): sides.setdefault(g, []).append(rd)
            ps = sched.get((u, hf), [])
            gaps = {4: [(1,2),(4,5),(7,8),(9,10)], 6: [(0,1),(2,3),(4,5),(6,7),(8,9),(10,11)]}
            gp = gaps[6] if len(ps) > 4 else gaps[4]
            for (g0, g1), pc in zip(gp, ps):
                pre, d = p1.dma(pc)
                sides.setdefault(g0, []).extend(pre)
                sides.setdefault(g1, []).insert(0, d)
            if hf == 0 and pfs.get(u):
                sides.setdefault(11, []).extend(pf_round(a))
            if u >= 6 and late and not last:
                for g in (5, 6, 8, 10):
                    for k in range(2):
                        if late: sides.setdefault(g, []).append(late.pop(0))
            if u == 28 and hf == 1:
                sides.setdefault(5, []).append((f"buffer_load_dword v{vPFd}, v{vT[7]}, s[{sCode}:{sCode+3}], 0 offen", "cpf"))
            w0 = o.get("wopf_step", 99)
            if u in (w0, w0 + 2, w0 + 4, w0 + 6) and hf == 0:
                sides.setdefault(11, []).append((f"global_load_dword v{vPFd}, v23, s[{sPFW}:{sPFW+1}] offset:{(u - w0)//2*1024}", "wopf"))
            if u in (28, 29) and hf == 1 or u in (29, 30) and hf == 0:
                j0 = 2*((u - 28)*2 + hf - 1)
                for j, g_ in ((j0, 3), (j0 + 1, 8)):
                    ins = (f"buffer_load_dwordx4 {ar(aGATE+4*j, 4)}, v9, s[{sX}:{sX+3}], 0 offen offset:{512*j}" if j < 4 else
                           f"buffer_load_dwordx4 {ar(aGATE+4*j, 4)}, v25, s[56:59], 0 offen offset:{512*(j-4)}")
                    sides.setdefault(g_, []).append((ins, "gate"))
            if u == 30 and hf == 1:
                sides.setdefault(5, []).append("v_mov_b32 v19, 0")
                sides.setdefault(7, []).append((f"global_load_dword v21, v19, s[{sPDbg}:{sPDbg+1}] sc1", "nonce"))
            od = order
            if last:
                od = [(4,1),(5,1),(1,0),(2,0),(1,1),(2,1),(3,1),(4,0),(5,0),(3,0),(0,0),(0,1)]
                e1_head(a, sides)
            a.inter([g1_mfma(hf, b, rt) for b, rt in od], sides)
            if hf == 0:
                if u < 31:
                    need = [f"W{u+1}"] + ([f"X{(u+1)//2}"] if (u + 1) % 2 == 0 else [])
                    a.emit(a.wait(need, lgkm=True))
                else:
                    a("s_waitcnt lgkmcnt(0)")
                a("s_barrier")
            elif not last:
                a("s_waitcnt lgkmcnt(0)")
        if u % 8 == 7: a.stamp(f"g{u}")
    assert not late

def packl(base, out=None):
    out = base if out is None else out
    return [f"v_cvt_pk_bf16_f32 v{out+j}, v{base+2*j}, v{base+2*j+1}" for j in range(8)]
def pack(a, base, out=None):
    for s in packl(base, out): a(s)
class L(list):
    def __call__(self, s): self.append(s)
    def emit(self, s): self.append(s)
def weave(a, work, extra, first, every):
    nxt = first
    for i, w in enumerate(work):
        while extra and i >= nxt:
            for s in extra.pop(0): a.emit(s)
            nxt += every
        a.emit(w)

def padfill(a, fill, n):
    k = 0
    for f in fill:
        a.emit(f); k += len(f.split("\n")) if isinstance(f, str) else 1
    if k < n: a(f"s_nop {n - k - 1}")

def local_tile(a, Q, Kc, Vc, Kp, Vp1, SC, SP, O, PC, PP, tmp, off, tag, fill1=(), fill2=()):
    m, t = tmp, tmp + 1
    a(mf32(vr(SC, 16), vr(Kc, 4), vr(Q, 4), vr(vMc, 16)))
    a(mf32(vr(SC, 16), vr(Kc+4, 4), vr(Q+4, 4), vr(SC, 16)))
    a(mf32(vr(SP, 16), vr(Kp, 4), vr(Q, 4), vr(vMc + 8, 16)))
    a(mf32(vr(SP, 16), vr(Kp+4, 4), vr(Q+4, 4), vr(SP, 16)))
    padfill(a, fill1, 10)
    vals = [SC + i for i in range(16)] + [SP + 8 + i for i in range(8)]
    a(f"v_max3_f32 v{m}, v{vals[0]}, v{vals[1]}, v{vals[2]}")
    for i in range(3, 23, 2):
        a(f"v_max3_f32 v{m}, v{m}, v{vals[i]}, v{vals[i+1]}")
    a(f"v_max_f32 v{m}, v{m}, v{vals[23]}")
    a(f"v_mov_b32 v{t}, v{m}")
    a("s_nop 1")
    a(f"v_permlane32_swap_b32 v{m}, v{t}")
    a(f"v_max_f32 v{m}, v{m}, v{t}")
    a(f"v_mul_f32 v{m}, s{sCS}, v{m}")
    for v in vals:
        a(f"v_fma_f32 v{v}, v{v}, s{sCS}, -v{m}")
    L = SP
    for i in range(10): a(f"v_exp_f32 v{vals[i]}, v{vals[i]}")
    for j in range(4): a(f"v_cvt_pk_bf16_f32 v{PC+j}, v{SC+2*j}, v{SC+2*j+1}")
    for i in range(10, 13): a(f"v_exp_f32 v{vals[i]}, v{vals[i]}")
    a(mf32(vr(O, 16), vr(Vc, 4), vr(PC, 4), 0))
    for i in range(13, 18): a(f"v_exp_f32 v{vals[i]}, v{vals[i]}")
    a(mf16(vr(L, 4), ar(aONE, 4), vr(PC, 4), 0))
    for j in range(4, 8): a(f"v_cvt_pk_bf16_f32 v{PC+j}, v{SC+2*j}, v{SC+2*j+1}")
    for i in range(18, 20): a(f"v_exp_f32 v{vals[i]}, v{vals[i]}")
    a(mf32(vr(O, 16), vr(Vc+4, 4), vr(PC+4, 4), vr(O, 16)))
    for i in range(20, 24): a(f"v_exp_f32 v{vals[i]}, v{vals[i]}")
    a(mf16(vr(L, 4), ar(aONE, 4), vr(PC+4, 4), vr(L, 4)))
    for j in range(4): a(f"v_cvt_pk_bf16_f32 v{PP+j}, v{SP+8+2*j}, v{SP+9+2*j}")
    a("s_nop 1")
    a(mf16(vr(L, 4), ar(aONE, 4), vr(PP, 4), vr(L, 4)))
    a(mf32(vr(O, 16), vr(Vp1, 4), vr(PP, 4), vr(O, 16)))
    padfill(a, fill2, 7)
    a(f"v_rcp_f32 v{m}, v{L}")
    a(f"s_add_u32 s35, s{sOst}, {OB_OFF + off}")
    a("s_nop 2")
    for i in range(16):
        a(f"v_mul_f32 v{O+i}, v{O+i}, v{m}")
    return [(f"buffer_store_dwordx4 {{0}}, v{vL16}, {WS}, s35 offen sc1", tag),
            (f"buffer_store_dwordx4 {{0}}, v{vL16}, {WS}, s35 offen offset:1024 sc1", tag)]

def flag_store(sreg, vtmp, tag):
    return [f"v_mov_b32 v{vtmp}, s{sNONCE}", (f"buffer_store_dword v{vtmp}, v{vF0}, {WS}, s{sreg} offen sc1", tag)]

def poll_check(a, name, vdst, vaddr, sreg, tag, mask=-1):
    a.emit(a.wait([tag]))
    a(f"v_cmp_ne_u32 vcc, s{sNONCE}, v{vdst}")
    a("s_nop 3")
    a(f"s_and_b32 s{sSpin}, vcc_lo, {mask}")
    a(f"s_cbranch_scc1 {name}_S")
    a(f"{name}_R:")
    a.tail.append(f"""{name}_S:
    s_mov_b32 s{sSpin}, 0
{name}_L:
    buffer_load_dword v{vdst}, v{vaddr}, {WS}, s{sreg} offen sc1
    s_add_u32 s{sSpin}, s{sSpin}, 1
    s_waitcnt vmcnt(0)
    v_cmp_ne_u32 vcc, s{sNONCE}, v{vdst}
    s_cmp_lt_u32 s{sSpin}, 0x40000
    s_cbranch_scc0 {name}_R
    s_nop 2
    s_and_b32 vcc_hi, vcc_lo, {mask}
    s_cbranch_scc1 {name}_L
    s_branch {name}_R""")

def e1_head(a, sides):
    a.halo = [(f"buffer_store_dwordx4 {vr(pKB[1], 4)}, v{vL16}, {WS}, s{sHalo} offen sc1", "halo"),
              (f"buffer_store_dwordx4 {vr(pKB[1]+4, 4)}, v{vL16}, {WS}, s{sHalo} offen offset:1024 sc1", "halo"),
              (f"buffer_store_dwordx4 {vr(pVB[1]+4, 4)}, v{vL16}, {WS}, s{sHalo} offen offset:2048 sc1", "halo")]
    a.kv = []; a.dsw = []
    for rt in range(2):
        for (blk, f0) in ((pKA[rt], 0), (pVA[rt], 2)):
            for f in range(2):
                off = (f0 + f)*1024
                a.kv.append([(f"buffer_store_dwordx4 {vr(blk+4*f, 4)}, v{vL16}, {WS}, s{26 if rt == 0 else 25} offen offset:{off} sc1", "kv")])
                a.dsw.append([f"ds_write_b128 v22, {vr(blk+4*f, 4)} offset:{rt*4096 + off}"])
    sides[0] = [f"s_add_u32 s36, s{sKVdst}, {KV_LDS[0]}", f"v_add_u32 v22, s36, v{vL16}", f"v_add_u32 v{vL16b}, 4096, v{vL16}",
                f"s_add_u32 s25, s{sKVsrc}, 4096", f"s_mov_b32 s26, s{sKVsrc}"]
    sides[1] = ["s_nop 3"]; sides[2] = ["s_nop 3"]
    w = packl(KB[1], pKB[1])[:4] + [a.halo[0]] + packl(KB[1], pKB[1])[4:] + [a.halo[1]] + packl(VB[1], pVB[1]) + [a.halo[2]] \
        + packl(KA[0], pKA[0]) + a.kv.pop(0) + packl(VA[0], pVA[0]) + packl(KA[1], pKA[1])
    for g in range(3, 12):
        sides[g] = w[:5]; w = w[5:]
    a.e1rest = w

def e1(a):
    o = a.opts
    kv = a.kv
    w = a.e1rest + packl(VA[1], pVA[1]) + packl(QB[0], pQB[0]) + packl(QB[1], pQB[1]) + packl(KB[0], pKB[0]) + packl(VB[0], pVB[0])
    weave(a, w, a.dsw[:6], 2, 6)
    for g in a.dsw[6:]:
        for s in g: a(s)
    for s in kv.pop(0): a.emit(s)
    a.stamp("e1pack")
    qa = []
    for q in QA:
        qa += [f"v_pk_mul_f32 {vr(q+2*j, 2)}, {vr(q+2*j, 2)}, s[62:63]" for j in range(8)] + packl(q)
    lt = L()
    st = local_tile(lt, pQB[1], pKB[1], pVB[1], pKB[0], pVB[0]+4, 128, 144, 176, 240, 248, 252, 65536, "ob1", fill1=qa[:22], fill2=qa[22:])
    lt += packl(176, 56)
    a.ob1 = [(st[0][0].format("v[56:59]"), "ob1"), (st[1][0].format("v[60:63]"), "ob1")]
    weave(a, lt, [kv.pop(0), kv.pop(0)], o.get("st_a", 45), o.get("st_b", 60))
    a.kv_left = kv
    a.stamp("loc1")
    a.emit(a.wait(["halo", "nonce"], lgkm=True))
    a(f"v_readfirstlane_b32 s{sNONCE}, v21")
    a(f"s_add_u32 s36, s28, {F_H}")
    a("s_barrier")
    a(f"s_cmp_eq_u32 s{sNONCE}, 0")
    a("s_cbranch_scc1 L_NONCE_S")
    a("L_NONCE_R:")
    a.tail.append(f"""L_NONCE_S:
    s_mov_b32 s{sSpin}, 0
L_NONCE_L:
    global_load_dword v21, v19, s[{sPDbg}:{sPDbg+1}] sc1
    s_add_u32 s{sSpin}, s{sSpin}, 1
    s_waitcnt vmcnt(0)
    v_readfirstlane_b32 s{sNONCE}, v21
    s_cmp_lt_u32 s{sSpin}, 0x40000
    s_cbranch_scc0 L_NONCE_R
    s_nop 2
    s_cmp_eq_u32 s{sNONCE}, 0
    s_cbranch_scc1 L_NONCE_L
    s_branch L_NONCE_R""")
    for s in flag_store(36, 20, "fH"): a.emit(s)
    a.stamp("fH")

sKVp, sKVg, sOg, sPFW = 84, 98, 100, 52
vL16b = 5
def kv_dma(slot, group, tag):
    out = [f"s_add_u32 m0, s{sKVdst}, {KV_LDS[slot] + group*4096}"]
    for p in range(4):
        out.append((f"global_load_lds_dwordx4 v{vL16b if group else vL16}, s[{sKVg}:{sKVg+1}] offset:{p*1024} sc1", tag))
    return out
sKVb, sKVd = 3, 34
def kv_advance(c):
    if c <= 7:
        return [f"s_cmp_le_u32 s{sKVt}, {c-1}", f"s_addc_u32 s36, s{sKVb}, {c-1}", "s_lshl_b32 s36, s36, 15",
                f"s_add_u32 s{sKVg}, s{sKVp}, s36", f"s_addc_u32 s{sKVg+1}, s{sKVp+1}, 0"]
    return [f"s_add_u32 s36, s{sKVb}, {c}", "s_and_b32 s36, s36, 15", "s_lshl_b32 s36, s36, 15",
            f"s_add_u32 s{sKVg}, s{sKVp}, s36", f"s_addc_u32 s{sKVg+1}, s{sKVp+1}, 0"]

def H(a, q, vpar, qk=True, pv=True, pv_first=False, slots=None):
    slots = slots or {}
    o = 1 - q
    e = [f"v_exp_f32 v{S[q]+i}, v{S[q]+i}" for i in range(16)]
    c = [f"v_cvt_pk_bf16_f32 v{P[q]+j}, v{S[q]+2*j}, v{S[q]+2*j+1}" for j in range(8)]
    So, Oo, Lo = vr(S[o], 16), ar(aO[o], 16), ar(aL[o], 4)
    M = [mf32(So, ar(aK, 4), vr(QA[o], 4), vr(NM[o], 16)) if qk else None,
         mf32(So, ar(aK+4, 4), vr(QA[o]+4, 4), So) if qk else None,
         mf32(Oo, ar(aV[vpar], 4), vr(P[o], 4), 0 if pv_first else Oo) if pv else None,
         mf32(Oo, ar(aV[vpar]+4, 4), vr(P[o]+4, 4), Oo) if pv else None,
         mf16(Lo, ar(aONE, 4), vr(P[o], 4), 0 if pv_first else Lo) if pv else None,
         mf16(Lo, ar(aONE, 4), vr(P[o]+4, 4), Lo) if pv else None]
    V = [[e[0], e[1], e[2]], [e[3], c[0], c[1], e[4]], [e[5], e[6], e[7]], [c[2], c[3], e[8], e[9]],
         [e[10], e[11], c[4], c[5]], [e[12], e[13], e[14], e[15], c[6], c[7]]]
    if not pv: V[3] = ["s_nop 0"] + V[3]
    for i in range(6):
        if M[i]: a(M[i])
        for s in slots.get(i, []): a.emit(s)
        for s in V[i]: a(s)

def rdK(slot, off): return [f"ds_read_b128 {ar(aK, 4)}, v{vKV[slot]} offset:{off}", f"ds_read_b128 {ar(aK+4, 4)}, v{vKV[slot]} offset:{off+1024}"]
def rdV(par, slot, off): return [f"ds_read_b128 {ar(aV[par], 4)}, v{vKV[slot]} offset:{off+2048}", f"ds_read_b128 {ar(aV[par]+4, 4)}, v{vKV[slot]} offset:{off+3072}"]

FREE_A = [0, 3, 4]; FREE_B = [2, 3, 4, 5]
TORD = [0, 2, 1, 3]
def tile(a, n, side=None, end_b=None):
    sa = {}; sb = {}
    if n < 63:
        m = n + 1
        k = rdK((m >> 2) & 1, TORD[m & 3]*4096); v = rdV(m & 1, (m >> 2) & 1, TORD[m & 3]*4096)
        sa[1] = [k[0]]; sa[2] = [k[1]]; sa[5] = ["s_waitcnt lgkmcnt(0)"]
        sb[0] = [v[0]]; sb[1] = [v[1]]
    if side is not None:
        for g in FREE_A:
            if side: sa.setdefault(g, []).extend(side.pop(0))
        for g in (FREE_B if end_b is None else FREE_B[:-1]):
            if side: sb.setdefault(g, []).extend(side.pop(0))
    if end_b: sb.setdefault(5, []).extend(end_b)
    H(a, 0, (n - 1) & 1, pv=(n != 0), pv_first=(n == 1), slots=sa)
    H(a, 1, n & 1, qk=(n < 63), pv_first=(n == 0), slots=sb)

def neg_max(a):
    for q in range(2): a(f"v_mov_b32 v{21+q}, v{19+q}")
    a("s_nop 0")
    for q in range(2): a(f"v_permlane32_swap_b32 v{19+q}, v{21+q}")
    for q in range(2): a(f"v_max_f32 v{19+q}, v{19+q}, v{21+q}")
    for q in range(2):
        for i in range(16): a(f"v_sub_f32 v{NM[q]+i}, 0, v{19+q}")

def gate_compute(a):
    z, t = 23, 24
    for i in range(16):
        a(f"v_accvgpr_read_b32 v{96+(i%4)}, a{aGATE+i}")
        a(f"v_accvgpr_read_b32 v{100+(i%4)}, a{aGATE+16+i}")
        a(f"v_dot2_f32_bf16 v{z}, v{96+(i%4)}, v{100+(i%4)}, {0 if i == 0 else 'v%d' % z}")
    a("s_nop 2")
    for sh in (8, 4, 2, 1):
        a(f"v_add_f32_dpp v{z}, v{z}, v{z} row_ror:{sh} row_mask:0xf bank_mask:0xf")
        a("s_nop 1")
    a(f"v_mov_b32 v{t}, v{z}")
    a("s_nop 1")
    a(f"v_permlane16_swap_b32 v{z}, v{t}")
    a(f"v_add_f32 v{z}, v{z}, v{t}")
    a(f"v_mul_f32 v{z}, {f2u(-math.log2(math.e))}, v{z}")
    a(f"v_exp_f32 v{z}, v{z}")
    a(f"v_and_b32 v{t}, 31, v{vLANE}")
    a(f"v_add_f32 v{z}, 1.0, v{z}")
    a(f"v_rcp_f32 v{z}, v{z}")
    a(f"v_min_u32 v{t}, 1, v{t}")
    a(f"v_lshlrev_b32 v{t}, 31, v{t}")
    a(f"v_lshl_or_b32 v{t}, v{vGrow}, 2, v{t}")
    a(f"s_mov_b32 s36, {G_OFF}")
    a.emit((f"buffer_store_dword v{z}, v{t}, {WS}, s36 offen sc1", "g"))

def p4_setup(a):
    srd(a, sWoA, sPWoA, sPWoA+1, 1024*1024*2)
    srd(a, sWoB, sPWoB, sPWoB+1, 1024*1024*2)
    srd(a, sOutD, sPOut, sPOut+1, 2048*1024*2)
    a("s_and_b32 s36, s2, 7")
    a("s_lshr_b32 s37, s2, 3")
    a(f"s_and_b32 s{sC4}, s37, 15")
    a("s_lshr_b32 s37, s37, 4")
    a("s_lshl_b32 s36, s36, 1")
    a(f"s_add_u32 s{sT4}, s36, s37")
    r, c, t0, t1 = 200, 201, 202, 203
    a(f"v_lshrrev_b32 v{r}, 3, v{vLANE}")
    a(f"v_and_b32 v{c}, 7, v{vLANE}")
    a(f"v_lshlrev_b32 v{t0}, 1, v{r}")
    a(f"v_and_b32 v{t0}, 4, v{t0}")
    a(f"v_xor_b32 v{t0}, v{t0}, v{c}")
    a(f"v_lshlrev_b32 v{t0}, 4, v{t0}")
    a(f"v_lshl_add_u32 v{t0}, v{r}, 11, v{t0}")
    a(f"s_lshl_b32 s36, s{sW}, 14")
    a(f"s_lshl_b32 s37, s{sC4}, 7")
    a("s_add_u32 s36, s36, s37")
    a(f"v_add_u32 v{vWo_g}, s36, v{t0}")
    a(f"v_and_b32 v{r}, 15, v{vLANE}")
    a(f"v_lshrrev_b32 v{t0}, 2, v{r}")
    a(f"v_lshrrev_b32 v{t1}, 5, v{vLANE}")
    a(f"v_lshl_add_u32 v{c}, v{t1}, 2, v{t0}")
    a(f"v_lshrrev_b32 v{t0}, 1, v{c}")
    a(f"v_and_b32 v{t0}, 1, v{t0}")
    a(f"v_lshlrev_b32 v{t0}, 6, v{t0}")
    a(f"v_lshl_add_u32 v{t0}, v{c}, 7, v{t0}")
    a(f"v_and_b32 v{t1}, 16, v{vLANE}")
    a(f"v_lshl_add_u32 v{t0}, v{t1}, 1, v{t0}")
    a(f"v_and_b32 v{t1}, 3, v{r}")
    a(f"v_lshl_add_u32 v{vWo_r[0]}, v{t1}, 3, v{t0}")
    a(f"v_xor_b32 v{vWo_r[1]}, 64, v{vWo_r[0]}")
    for b in (1, 2):
        for ct in range(2):
            a(f"v_add_u32 v{vWo_r[2*b+ct]}, {b*65536}, v{vWo_r[ct]}")
    a(f"s_lshl_b32 s36, s{sT4}, 2")
    a(f"s_add_u32 s36, s36, s{sW}")
    a(f"s_lshl_b32 s{sOrow}, s36, 16")
    a(f"s_lshr_b32 s36, s36, 1")
    a(f"s_lshl_b32 s29, s36, 7")
    a(f"s_lshl_b32 s{sOoff}, s{sC4}, 12")
    a(f"s_lshl_b32 s{sWooff}, s{sC4}, 17")
    a(f"v_and_b32 v16, 31, v{vLANE}")
    a("v_lshlrev_b32 v16, 2, v16")
    a(f"v_and_b32 v17, 15, v{vLANE}")
    a(f"v_cmp_le_u32 vcc, s{sKVt}, v17")
    a(f"v_add_u32 v17, s{sKVb}, v17")
    a("s_nop 0")
    a("v_addc_co_u32 v17, vcc, 0, v17, vcc")
    a("v_and_b32 v17, 15, v17")
    a("v_lshlrev_b32 v17, 2, v17")
    a(f"s_add_u32 s36, s{sOrow}, {OB_OFF}")
    a(f"s_add_u32 s{sOg}, s54, s36")
    a(f"s_addc_u32 s{sOg+1}, s55, 0")

def wob_dma(i, tag):
    return [[f"s_mov_b32 s39, {i*65536}"], [f"s_add_u32 m0, s{sWv}, {i*4096}"],
            [(f"buffer_load_dwordx4 v{vWo_g}, s[{sWoB}:{sWoB+3}], s39 offen lds", tag)]]

def attention(a):
    o = a.opts
    a("L_ATT0:")
    for s in rdK(0, 0) + rdV(0, 0, 0): a(s)
    for s in kv_advance(1): a(s)
    a(f"s_cmp_lg_u32 s{sPASS}, 0")
    a("s_cbranch_scc1 L_ATT1")
    ps = L(); p4_setup(ps)
    ps_s = [x for x in ps if x.startswith("s_") and "s4," not in x.split()[1] and not any(x.split()[1].startswith(f"s{i},") for i in (4, 5, 6, 7))]
    ps_x = []
    rest = [x for x in ps if x not in ps_x]
    n1 = 22
    for s in rest[:n1]: a(s)
    a("s_waitcnt lgkmcnt(0)")
    for q in range(2): a(mf32(vr(S[q], 16), ar(aK, 4), vr(QA[q], 4), 0))
    for q in range(2): a(mf32(vr(S[q], 16), ar(aK+4, 4), vr(QA[q]+4, 4), vr(S[q], 16)))
    kv = a.kv_left
    for s in kv.pop(0): a.emit(s)
    padfill(a, rest[n1:n1+26], 10)
    for q in range(2):
        s, m = S[q], 19 + q
        a(f"v_max3_f32 v{m}, v{s}, v{s+1}, v{s+2}")
        for i in range(3, 15, 2): a(f"v_max3_f32 v{m}, v{m}, v{s+i}, v{s+i+1}")
        a(f"v_max_f32 v{m}, v{m}, v{s+15}")
    for q in range(2): a(f"v_mov_b32 v{21+q}, v{19+q}")
    a("s_nop 0")
    for q in range(2): a(f"v_permlane32_swap_b32 v{19+q}, v{21+q}")
    for q in range(2): a(f"v_max_f32 v{19+q}, v{19+q}, v{21+q}")
    for i in range(16): a(f"v_sub_f32 v{NM[0]+i}, 0, v19")
    for s in rest[n1+26:n1+28]: a(s)
    a(mf32(vr(S[0], 16), ar(aK, 4), vr(QA[0], 4), vr(NM[0], 16)))
    a(mf32(vr(S[0], 16), ar(aK+4, 4), vr(QA[0]+4, 4), vr(S[0], 16)))
    for i in range(16): a(f"v_sub_f32 v{NM[1]+i}, 0, v20")
    for s in rest[n1+28:]: a(s)
    a("v_mov_b32 v18, 0")
    a("s_branch L_ATT2")
    a("L_ATT1:")
    a("s_waitcnt lgkmcnt(0)")
    a(mf32(vr(S[0], 16), ar(aK, 4), vr(QA[0], 4), vr(NM[0], 16)))
    a(mf32(vr(S[0], 16), ar(aK+4, 4), vr(QA[0]+4, 4), vr(S[0], 16)))
    a("s_nop 11")
    a("L_ATT2:")
    a.stamp("att0")
    pH = [(f"buffer_load_dword v21, v18, {WS}, s33 offen sc1", "pH")]
    tile(a, 0, [kv.pop(0), [], [], [], [], kv.pop(0), []])
    tile(a, 1, [[], [], [], kv.pop(0), pH])
    a.stamp("t01")
    tile(a, 2)
    a.stamp("t2")
    a(f"s_cmp_lg_u32 s{sPASS}, 0")
    a("s_cbranch_scc1 L_A3")
    a.emit(a.wait(["kv"]))
    for s in flag_store(32, 20, "fKV"): a.emit(s)
    a.stamp("fKV")
    poll_check(a, "L_PH", 21, 18, 33, "pH")
    a(f"s_sub_u32 s38, s{sHalo}, 4096")
    a(f"s_cmp_eq_u32 s{sSeq}, 0")
    a(f"s_cselect_b32 s38, {OOB}, s38")
    a.emit((f"buffer_load_dwordx4 {vr(HK, 4)}, v{vL16}, {WS}, s38 offen sc1", "hl"))
    a.emit((f"buffer_load_dwordx4 {vr(HK+4, 4)}, v{vL16}, {WS}, s38 offen offset:1024 sc1", "hl"))
    a.emit((f"buffer_load_dwordx4 {vr(HV, 4)}, v{vL16}, {WS}, s38 offen offset:2048 sc1", "hl"))
    if o.get("ownpf", 0):
        a(f"v_lshlrev_b32 v22, 7, v{vLANE}")
        a.emit((f"buffer_load_dword v{vPFd}, v22, {WS}, s26 offen sc1", "ownpf"))
    a("s_cbranch_scc0 L_MASKOK")
    for i in range(8): a(f"v_mov_b32 v{vMc+16+i}, {NEGBIG}")
    a("L_MASKOK:")
    for s in a.ob1: a.emit(s)
    a.stamp("pH")
    gate_compute(a)
    a.stamp("fill")
    pk = (f"buffer_load_dword v21, v17, {WS}, s31 offen sc1", "pKV")
    order = o.get("e1order", 0)
    def loc0(extra):
        a.emit(a.wait(["hl"]))
        lt = L()
        st = local_tile(lt, pQB[0], pKB[0], pVB[0], HK, HV, 96, 112, 208, 168, 236, 23, 0, "ob0")
        lt += packl(208)
        weave(a, lt, extra, o.get("pk_at", 60), 1000)
        a.ob0 = [(st[0][0].format("v[208:211]"), "ob0"), (st[1][0].format("v[212:215]"), "ob0")]
    if order == 0:
        loc0([[pk]])
        a.stamp("loc0")
    else:
        a.emit(pk)
    poll_check(a, "L_PKV", 21, 17, 31, "pKV", mask=o.get("kvmask", 1))
    a("L_A3:")
    a.stamp("pKV")
    for g in range(2):
        for k_, s in enumerate(kv_dma(1, g, f"c1{'ab'[g]}")):
            a.emit(s)
            if k_ == 0: a("s_nop 0")
        if g == 0: a.emit((f"buffer_load_dword v21, v17, {WS}, s31 offen sc1", "pKV2"))
    for s in kv_advance(2): a(s)
    a(f"s_cmp_lg_u32 s{sPASS}, 0")
    a("s_cbranch_scc1 L_A4")
    if order == 1:
        loc0([])
        a.stamp("loc0")
    for s in a.ob0: a.emit(s)
    a("s_branch L_A5")
    a("L_A4:")
    a("s_waitcnt vmcnt(0)")
    a("L_A5:")
    a.emit(a.wait(["c1a"], lgkm=True))
    a("s_barrier")
    a.pkv2 = True
    a.stamp("c1")
    wob = [i for i in range(24)]
    obl = [i for i in range(64)]
    if o.get('noside'): wob = wob[:1]; obl = obl[:1]
    ob_start = o.get("ob_start", 5)
    obase = False
    for c in range(15):
        V = []; A = []
        side = []
        if c + 2 <= 15:
            d0, d1 = kv_dma(c % 2, 0, f"c{c+2}"), kv_dma(c % 2, 1, f"c{c+2}")
            kvs = [[x] for x in d0] + [[x] for x in d1] + ([[x] for x in kv_advance(c + 3)] if c + 3 <= 15 else [])
        else:
            kvs = []
        oth = []
        if c == 0:
            oth += [[(f"buffer_load_dword v21, v17, {WS}, s31 offen sc1", "pKV3")]]
        if c == 1:
            oth += [[f"s_lshl_b32 s38, s{sSeq}, 7"], [f"s_lshl_b32 s39, s{sHead}, 2"], ["s_add_u32 s38, s38, s39"],
                    [f"s_add_u32 s35, s38, {F_OB}"], flag_store(35, 20, "fOB")]
        if c == ob_start - 2:
            oth += [[f"s_add_u32 s47, s29, {F_OB}"], [(f"buffer_load_dword v21, v16, {WS}, s47 offen sc1", "pOB")]]
        if c == o.get("cpf2", 11) or (o.get("cpfn") and c % o["cpfn"] == 2):
            oth += [[(f"buffer_load_dword v{vPFd}, v{vT[7]}, s[{sCode}:{sCode+3}], 0 offen", "cpf")]]
        nslots = 4*7 - 1 - (c == 0)
        if c >= ob_start:
            for _ in range(min(len(obl), o.get("ob_per", 8))):
                i = obl.pop(0)
                oth.append([(f"global_load_dwordx4 {oreg(i)}, v{vL16b if (i & 4) else vL16}, s[{sOg}:{sOg+1}] offset:{(i % 4)*1024} sc1", "obl")])
                if i % 8 == 7:
                    oth += [[f"s_add_u32 s{sOg}, s{sOg}, 8192"], [f"s_addc_u32 s{sOg+1}, s{sOg+1}, 0"]]
        wl = o.get("wol2", 6)
        if wl <= c < wl + 8:
            oth.append([(f"global_load_dword v{vPFd}, v0, s[{sPWoA}:{sPWoA+1}] offset:{((c - wl) & 1)*2048}", "wopf")] + (["v_add_u32 v0, 4096, v0"] if (c - wl) & 1 else []))
        while wob and len(kvs) + len(oth) + 3 <= nslots:
            oth += wob_dma(wob.pop(0), "wob")
        side = kvs + oth
        while len(side) > nslots:
            for k in range(len(side) - 1):
                if all(isinstance(x, str) and x.startswith("s_") and "m0" not in x for x in side[k]):
                    side[k+1] = side[k] + side[k+1]; side.pop(k); break
            else:
                raise Exception("slots")
        n = len(side)
        if n < nslots and o.get("spread", 1):
            sp = [[] for _ in range(nslots)]
            for k, g in enumerate(side): sp[k*nslots//n] = g
            side = sp
        if c == 0:
            poll_check(a, "L_PKV2", 21, 17, 31, "pKV2", mask=2)
        if c == 1:
            poll_check(a, "L_PKV3", 21, 17, 31, "pKV3", mask=0xffff)
        if c == ob_start - 1:
            poll_check(a, "L_POB", 21, 16, 47, "pOB")
        tile(a, 4*c + 3, side)
        tile(a, 4*c + 4, side, end_b=[a.wait(["c1b"]), "s_barrier"] if c == 0 else None)
        tile(a, 4*c + 5, side)
        tile(a, 4*c + 6, side, end_b=[a.wait([f"c{c+2}"], lgkm=True) if c + 2 <= 15 else "s_waitcnt lgkmcnt(0)", "s_barrier"])
        assert not side
        if c in (4, 9): a.stamp(f"c{c}")
    assert not wob and not obl, (wob, obl)
    tile(a, 63)
    a("s_nop 1")
    a(mf32(ar(aO[1], 16), ar(aV[1], 4), vr(P[1], 4), ar(aO[1], 16)))
    a(mf16(ar(aL[1], 4), ar(aONE, 4), vr(P[1], 4), ar(aL[1], 4)))
    a(mf32(ar(aO[1], 16), ar(aV[1]+4, 4), vr(P[1]+4, 4), ar(aO[1], 16)))
    a(mf16(ar(aL[1], 4), ar(aONE, 4), vr(P[1]+4, 4), ar(aL[1], 4)))
    a.stamp("attend")
    a(f"s_add_u32 s36, s{sOst}, {OA_OFF}")
    a(f"s_add_u32 s37, s{sOst}, {OA_OFF + 65536}")
    a(f"v_accvgpr_read_b32 v19, a{aL[0]}")
    for i in range(16): a(f"v_accvgpr_read_b32 v{S[0]+i}, a{aO[0]+i}")
    a("v_rcp_f32 v23, v19")
    a(f"v_accvgpr_read_b32 v20, a{aL[1]}")
    for i in range(16): a(f"v_mul_f32 v{S[0]+i}, v{S[0]+i}, v23")
    pack(a, S[0])
    a("v_rcp_f32 v24, v20")
    a.emit((f"buffer_store_dwordx4 {vr(S[0], 4)}, v{vL16}, {WS}, s36 offen sc1", "oa"))
    a.emit((f"buffer_store_dwordx4 {vr(S[0]+4, 4)}, v{vL16}, {WS}, s36 offen offset:1024 sc1", "oa"))
    for i in range(16): a(f"v_accvgpr_read_b32 v{S[1]+i}, a{aO[1]+i}")
    for i in range(16): a(f"v_mul_f32 v{S[1]+i}, v{S[1]+i}, v24")
    pack(a, S[1])
    a(f"s_mov_b32 s36, {f2u(2.0**40)}")
    a.emit((f"buffer_store_dwordx4 {vr(S[1], 4)}, v{vL16}, {WS}, s37 offen sc1", "oa"))
    a.emit((f"buffer_store_dwordx4 {vr(S[1]+4, 4)}, v{vL16}, {WS}, s37 offen offset:1024 sc1", "oa"))
    a("v_cmp_nge_f32 s[38:39], s36, v19")
    a("v_cmp_nge_f32 vcc, s36, v20")
    a(f"s_lshl_b32 s37, s{sW}, 2")
    a(f"s_add_u32 s37, s37, {KV_LDS[1]}")
    a("v_mov_b32 v22, s37")
    a("s_nop 1")
    a("s_or_b64 vcc, vcc, s[38:39]")
    if o.get("force_fallback"): a("s_mov_b64 vcc, -1")
    a("s_cmp_lg_u64 vcc, 0")
    a("s_cselect_b32 s36, 1, 0")
    a(f"s_andn2_b32 s36, s36, s{sPASS}")
    a("v_mov_b32 v21, s36")
    a("ds_write_b32 v22, v21")
    a(f"v_mov_b32 v22, {KV_LDS[1]}")
    a.emit(a.wait(["wob", "obl"], lgkm=True))
    a("s_barrier")
    a("ds_read_b128 v[20:23], v22")
    for s in p4_reads(0, 0, 0): a(s)
    a("s_waitcnt lgkmcnt(0)")
    a("v_or_b32 v20, v20, v21")
    a("v_or3_b32 v20, v20, v22, v23")
    a("s_nop 0")
    a("v_readfirstlane_b32 s38, v20")
    a("s_nop 3")
    a("s_cmp_lg_u32 s38, 0")
    a("s_cbranch_scc1 L_FALLBACK")
    b = Asm()
    b("L_FALLBACK:")
    b(f"s_mov_b32 s{sPASS}, 1")
    b(f"s_mov_b32 s25, {OOB}")
    b(f"s_mov_b32 s26, {OOB}")
    b(f"v_mov_b32 v19, {NEGBIG}")
    b(f"v_mov_b32 v20, {NEGBIG}")
    b(f"s_lshl_b32 s38, s{sHP}, 19")
    b(f"s_lshl_b32 s39, s{sHH}, 14")
    b("s_add_u32 s38, s38, s39")
    b("s_mov_b32 s39, 0")
    b("L_FB:")
    b("s_and_b32 s36, s39, 3")
    b("s_lshl_b32 s36, s36, 12")
    b("s_lshr_b32 s37, s39, 2")
    b("s_lshl_b32 s37, s37, 15")
    b("s_add_u32 s36, s36, s37")
    b("s_add_u32 s36, s36, s38")
    b(f"buffer_load_dwordx4 {ar(aK, 4)}, v{vL16}, {WS}, s36 offen sc1")
    b(f"buffer_load_dwordx4 {ar(aK+4, 4)}, v{vL16}, {WS}, s36 offen offset:1024 sc1")
    b("s_waitcnt vmcnt(0)")
    for q in range(2): b(mf32(vr(S[q], 16), ar(aK, 4), vr(QA[q], 4), 0))
    for q in range(2): b(mf32(vr(S[q], 16), ar(aK+4, 4), vr(QA[q]+4, 4), vr(S[q], 16)))
    b("s_nop 11")
    for q in range(2):
        for i in range(0, 16, 2): b(f"v_max3_f32 v{19+q}, v{19+q}, v{S[q]+i}, v{S[q]+i+1}")
    b("s_add_u32 s39, s39, 1")
    b("s_cmp_lt_u32 s39, 64")
    b("s_cbranch_scc1 L_FB")
    neg_max(b)
    b(f"s_lshl_b32 s36, s{sT}, 15")
    b(f"s_add_u32 s{sKVg}, s{sKVp}, s36")
    b(f"s_addc_u32 s{sKVg+1}, s{sKVp+1}, 0")
    b(f"s_add_u32 s36, s{sOrow}, {OB_OFF}")
    b(f"s_add_u32 s{sOg}, s54, s36")
    b(f"s_addc_u32 s{sOg+1}, s55, 0")
    b("v_add_u32 v0, -16384, v0")
    b("s_barrier")
    for g in range(2):
        for k_, s in enumerate(kv_dma(0, g, "")):
            b(s[0] if isinstance(s, tuple) else s)
            if k_ == 0: b("s_nop 0")
    b("s_waitcnt vmcnt(0)")
    b("s_barrier")
    b("s_branch L_ATT0")
    a.tail.append(b.text())

def fW4(fs, i, ct): return fs*32 + i*8 + ct*4
def p4_lds(g):
    return g*32768 if g < 4 else [131072, 0, 32768, 65536][g - 4]
def p4_reads(fs, g, grp):
    out = []
    base = p4_lds(g)
    for i in range(4):
        for ct in range(2):
            off = base % 65536 + (grp*4 + i)*2048
            v = vWo_r[2*(base // 65536) + ct]
            out.append(f"ds_read_b64_tr_b16 {ar(fW4(fs, i, ct), 2)}, v{v} offset:{off}")
            out.append(f"ds_read_b64_tr_b16 {ar(fW4(fs, i, ct)+2, 2)}, v{v} offset:{off+1024}")
    return out
def woa_dma(g, i):
    return [[f"s_add_u32 m0, s{sWv}, {p4_lds(g) + i*4096}"],
            [(f"buffer_load_dwordx4 v{vWo_g}, s[{sWoA}:{sWoA+3}], s{sWooff} offen lds", f"wo{g}"),
             f"s_add_u32 s{sWooff}, s{sWooff}, 65536", f"s_and_b32 s{sWooff}, s{sWooff}, 0x1fffff"]]
def oa_load(i):
    out = [(f"buffer_load_dwordx4 {oreg(i)}, v{vL16}, {WS}, s{sO} offen offset:{(i % 4)*1024} sc1", f"oa{i}")]
    if i % 4 == 3:
        out += [f"s_add_u32 s{sOoff}, s{sOoff}, 4096", f"s_and_b32 s{sOoff}, s{sOoff}, 0xffff", f"s_add_u32 s{sO}, s{sObase}, s{sOoff}"]
    return out

def phase4(a):
    o = a.opts
    a(f"s_add_u32 s{sObase}, s{sOrow}, {OA_OFF}")
    a(f"s_add_u32 s{sO}, s{sObase}, s{sOoff}")
    a(f"s_lshl_b32 s38, s{sSeq}, 7")
    a(f"s_lshl_b32 s39, s{sHead}, 2")
    a("s_add_u32 s38, s38, s39")
    a(f"s_add_u32 s35, s38, {F_OA}")
    a(f"s_add_u32 s47, s29, {F_OA}")
    a(f"s_lshl_b32 s36, s{sT4}, 9")
    a(f"s_lshl_b32 s37, s{sW}, 7")
    a("s_add_u32 s36, s36, s37")
    a(f"s_add_u32 s36, s36, {G_OFF}")
    a.stamp("p4start")
    flag_at = o.get("oaflag_gap", 10)
    poll_at = o.get("oapoll_gap", 80)
    chk_at = o.get("oachk_gap", 92)
    side = {}
    def put(k, l): side.setdefault(k, []).extend(l)
    put(0, [(f"buffer_load_dword v{vGate}, v16, {WS}, s36 offen sc1", "gl")])
    put(flag_at, [a.wait(["oa"])]); put(flag_at + 1, flag_store(35, 20, "fOA"))
    put(poll_at, [(f"buffer_load_dword v21, v16, {WS}, s47 offen sc1", "pOA")])
    lat = o.get("p4lat", 20)
    jobs = [[26 if False else flag_at + 2, 32*2 + 23 - lat, "wb", i] for i in range(24, 32)]
    for g in range(4, 8):
        e = {4: 26, 5: 26, 6: 56, 7: 88}[g]
        jobs += [[e, 32*(g - 1) + 23 - lat, "wa", (g, i)] for i in range(8)]
    jobs += [[max(chk_at + 1, 2*i + 2), 128 + 2*i - lat, "oa", i] for i in range(64)]
    gap = o.get("p4gap", 2.0)
    t = float(flag_at + 2)
    quiet = range(poll_at - o.get("p4quiet", 4), poll_at + 1)
    while jobs:
        k = int(t)
        av = [j for j in jobs if j[0] <= k]
        if not av or k in quiet:
            t = k + 1; continue
        j = min(av, key=lambda j: j[1])
        jobs.remove(j)
        if j[2] == "wb":
            d = wob_dma(j[3], "wo3"); put(k - 1, d[0] + d[1]); put(k, d[2])
        elif j[2] == "wa":
            d = woa_dma(*j[3]); put(k - 1, d[0]); put(k, d[1])
        else:
            put(k, oa_load(j[3]))
        if k > j[1]: print("p4 late", j, k)
        t += gap
    idx = 0
    for g in range(8):
        br = g // 4
        for grp in range(4):
            fs = grp & 1
            rd = p4_reads(1 - fs, g, grp + 1) if grp < 3 else (p4_reads(1 - fs, g + 1, 0) if g < 7 else [])
            for j in range(8):
                i, ct = j // 2, j % 2
                k16 = (g % 4)*16 + grp*4 + i
                if br == 1 and ct == 0:
                    n = a.vmn([f"oa{k16}"])
                    a(f"s_waitcnt vmcnt({n})")
                d = vr(ACC4[br][ct], 16)
                a(mf32(d, ar(fW4(fs, i, ct), 4), oreg(k16), 0 if k16 == 0 else d))
                for s in rd[3*j:3*j+3] if j < 5 else (rd[15:] if j == 5 else []): a(s)
                for s in side.pop(idx, []): a.emit(s)
                if idx == flag_at + 1: a.stamp("fOA")
                if idx == chk_at:
                    poll_check(a, "L_POA", 21, 16, 47, "pOA")
                    a.stamp("pOA")
                idx += 1
            if grp == 2 and g < 7:
                nxt = f"wo{g+1}"
                a.emit(a.wait([nxt], lgkm=True) if nxt in a.vm else "s_waitcnt lgkmcnt(0)")
                a("s_barrier")
            elif rd:
                a("s_waitcnt lgkmcnt(0)")
        if g == 3: a.stamp("p4B")
    assert not side, side.keys()
    a.stamp("p4A")
    a(f"v_sub_f32 v8, 1.0, v{vGate}")
    a(f"v_and_b32 v19, 31, v{vLANE}")
    a(f"v_lshrrev_b32 v20, 5, v{vLANE}")
    a("v_lshlrev_b32 v20, 4, v20")
    a("v_lshl_add_u32 v19, v19, 11, v20")
    a(f"s_lshl_b32 s36, s{sT4}, 18")
    a(f"s_lshl_b32 s37, s{sW}, 16")
    a("s_add_u32 s36, s36, s37")
    a(f"s_lshl_b32 s37, s{sC4}, 7")
    a("s_add_u32 s36, s36, s37")
    for ct in range(2):
        for i in range(16): a(f"v_mul_f32 v{ACC4[0][ct]+i}, v{ACC4[0][ct]+i}, v8")
    for ct in range(2):
        B_, A_ = ACC4[0][ct], ACC4[1][ct]
        for i in range(16): a(f"v_fma_f32 v{B_+i}, v{A_+i}, v{vGate}, v{B_+i}")
        pack(a, B_)
        a("s_nop 1")
        for k in (0, 2):
            a(f"v_permlane32_swap_b32 v{B_+2*k}, v{B_+2*k+2}")
            a(f"v_permlane32_swap_b32 v{B_+2*k+1}, v{B_+2*k+3}")
        for k in (0, 2):
            a.emit((f"buffer_store_dwordx4 {vr(B_+2*k, 4)}, v19, s[{sOutD}:{sOutD+3}], s36 offen offset:{ct*64 + k*16} {['', 'sc1', 'nt', 'sc0 sc1', 'sc1 nt'][o.get('outflag', 2)]}", "out"))

def gen(opts):
    a = G(opts); a.tail = []
    setup(a); gemm1(a); e1(a); attention(a); phase4(a)
    if opts.get("diag") is not None:
        a.stamp("end")
        a("s_nop 1")
        a(f"v_readlane_b32 s36, v{vSTAMP}, {32 + opts['diag']}")
        a("s_nop 3")
        a("s_add_u32 s36, s36, 10000")
        if opts.get("diagwg") is not None:
            a(f"s_cmp_lg_u32 s2, {opts['diagwg']}")
            a("s_cbranch_scc1 L_END")
        a("L_DIAG:")
        a("s_memrealtime s[38:39]")
        a("s_waitcnt lgkmcnt(0)")
        a("s_sub_u32 s38, s38, s36")
        a("s_cmp_lt_i32 s38, 0")
        a("s_cbranch_scc1 L_DIAG")
    elif opts.get("dbgstamp"):
        a.stamp("end")
        sel = ["karg", "first", "g7", "g15", "g23", "g31", "loc1", "pKV", "c1", "c9", "attend", "pOA", "p4B", "p4A", "end"]
        a(f"s_cmp_lg_u32 s2, {opts['dbgstamp']-1}")
        a("s_cbranch_scc1 L_DBGX")
        a(f"s_cmp_lg_u32 s{sW}, 0")
        a("s_cbranch_scc1 L_DBGX")
        a(f"v_readlane_b32 s36, v{vSTAMP}, 32")
        for i, nm in enumerate(sel):
            a(f"v_readlane_b32 s37, v{vSTAMP}, {32 + a.names.index(nm)}")
            a("s_nop 3")
            a("s_sub_u32 s37, s37, s36")
            a("v_mov_b32 v2, s37")
            a("v_mov_b32 v3, 0")
            a(f"global_store_dword v3, v2, s[{sPDbg}:{sPDbg+1}] offset:{4*(i+1)}")
        a("L_DBGX:")
    elif opts.get("stamp"):
        a.stamp("end")
        a("s_lshl_b32 s36, s2, 2")
        a(f"s_add_u32 s36, s36, s{sW}")
        a("s_lshl_b32 s36, s36, 8")
        a(f"s_add_u32 s36, s36, {STAMP_OFF}")
        a(f"v_lshlrev_b32 v2, 2, v{vLANE}")
        a(f"buffer_store_dword v{vSTAMP}, v2, {WS}, s36 offen")
    a("s_endpgm")
    for t in a.tail: a(t)
    head = f"""; gated mix of full MHA and dilated sliding-window attention: one fused kernel, 256 co-resident workgroups
; @launch grid=(256,1,1) block=(256,1,1) lds=163840
.amdgcn_target "amdgcn-amd-amdhsa--gfx950"
.text
.globl {KNAME}
.p2align 8
.type {KNAME},@function
{KNAME}:
"""
    tail = f"""L_END:
    s_endpgm
.section .rodata,"a"
.p2align 6
.amdhsa_kernel {KNAME}
  .amdhsa_next_free_vgpr 512
  .amdhsa_next_free_sgpr 102
  .amdhsa_accum_offset 256
  .amdhsa_group_segment_fixed_size 0
  .amdhsa_kernarg_size 80
  .amdhsa_user_sgpr_count 2
  .amdhsa_user_sgpr_kernarg_segment_ptr 1
  .amdhsa_system_sgpr_workgroup_id_x 1
.end_amdhsa_kernel
"""
    gen.names = a.names
    return head + a.text() + tail

if __name__ == "__main__":
    import hazard
    opts = {}
    for kv in sys.argv[2:]:
        k, v = kv.split("="); opts[k] = int(v)
    t = gen(opts)
    open(sys.argv[1], "w").write(t)
    print(len(hazard.check(t)), "hazards", gen.names)
```

```python
import sys, struct, math
from asmlib import *

KNAME = "gated_mix__softmax_full_mha__sliding_local_dilated__prompt_kernel"
def f2u(x): return struct.unpack("<I", struct.pack("<f", x))[0]
KV_OFF   = 0
OA_OFF   = 8 << 20
OB_OFF   = 12 << 20
HALO_OFF = 16 << 20
G_OFF    = 20 << 20
FLAG_OFF = 21 << 20
F_KV, F_H, F_OB, F_OA = FLAG_OFF, FLAG_OFF + 4096, FLAG_OFF + 8192, FLAG_OFF + 12288
STAMP_OFF = 0x8000000
OOB = 0x80000000
CSCALE = f2u(math.log2(math.e) / math.sqrt(32.0))
NEGBIG = f2u(-1e30)
X_SLOT = 16384; W_BASE = 49152; W_SLOT = 24576
KV_LDS = [98304, 131072]
XCH = 163840 - 16
sX, sWA, sWB, sWS = 4, 8, 12, 16
sW, sHP, sT, sRH, sHH = 20, 21, 22, 23, 24
sWoff, sXoff = 25, 26
sXw, sWv = 30, 34
sPF, sPFoff, sPFstr, sPFlim = 40, 44, 45, 46
sNONCE, sCS = 60, 61
sSTAMPI = 68
sPWoA, sPWoB, sPG, sPOut, sPDbg = 70, 72, 74, 76, 78
sKVsrc, sKVbase, sKVt, sKVdst = 80, 81, 82, 27
sPASS, sOst, sSpin = 83, 86, 87
sT4, sC4, sOoff, sWooff, sObase = 88, 89, 90, 91, 92
sHalo, sSeq, sO, sOrow, sHead = 93, 94, 95, 96, 97
sWoA, sWoB, sOutD = 4, 8, 12
sCode = 48
vLANE = 1
vXr = [2, 3, 4, 5]; vWr = [10, 11]; vWg = [12, 13, 14]; vXg = [15, 16, 17, 18]
vT = [19, 20, 21, 22, 23, 24, 25, 26]
vPF, vPFd, vL16, vSTAMP, vF0 = 27, 28, 29, 30, 31
vMc = 32
ACC0 = 64
def acc(blk, rt): return ACC0 + (blk*2 + rt)*16
QA = [64, 80]; KA = [96, 112]; VA = [128, 144]; QB = [160, 176]; KB = [192, 208]; VB = [224, 240]
NM = [128, 144]; S = [176, 240]; P = [72, 88]
vKV = [6, 7]
vWo_g = 2; vWo_r = [3, 4, 10, 11, 12, 13]
vGate, vGrow = 14, 8
HK = 200; HV = 232
def fX(s, rt): return s*32 + rt*4
def fW(s, blk): return s*32 + 8 + blk*4
aK, aV = 0, [8, 16]
aO = [32, 48]; aL = [64, 68]; aONE = 72
aGATE = 76
OV = list(range(96, 128, 4)) + list(range(160, 176, 4)) + list(range(192, 240, 4))
def oreg(i): return ar(76 + 4*i, 4) if i < 45 else vr(OV[i - 45], 4)
ACC4 = [[128, 144], [64, 80]]
pKA = [96, 112]; pVA = [104, 120]; pQB = [160, 168]; pKB = [192, 208]; pVB = [224, 216]

def mf32(d, A, B, C): return f"v_mfma_f32_32x32x16_bf16 {d}, {A}, {B}, {C}"
def mf16(d, A, B, C): return f"v_mfma_f32_16x16x32_bf16 {d}, {A}, {B}, {C}"
WS = f"s[{sWS}:{sWS+3}]"

class G(Asm):
    def __init__(self, opts):
        super().__init__()
        self.opts = opts
        self.vm = []
        self.nstamp = 0
        self.names = []
    def emit(self, x):
        if callable(x): x = x()
        if x is None: return
        if isinstance(x, tuple):
            self(x[0]); self.vm.append(x[1])
        else:
            assert not (x.lstrip().startswith(("buffer_", "global_"))), x
            self(x)
    def vmn(self, tags):
        idx = [i for i, t in enumerate(self.vm) if t in tags]
        assert idx, tags
        n = len(self.vm) - 1 - max(idx)
        return min(n, 63)
    def wait(self, tags, lgkm=False):
        return lambda: f"s_waitcnt vmcnt({self.vmn(tags)})" + (" lgkmcnt(0)" if lgkm else "")
    def stamp(self, name):
        if not self.opts.get("stamp"): return
        self.names.append(name)
        a = self
        a("s_memtime s[66:67]")
        a("s_memrealtime s[64:65]")
        a("s_waitcnt lgkmcnt(0)")
        a(f"v_writelane_b32 v{vSTAMP}, s66, {self.nstamp}")
        a(f"v_writelane_b32 v{vSTAMP}, s64, {self.nstamp + 32}")
        self.nstamp += 1
        assert self.nstamp <= 32
    def inter(self, mains, sides):
        for i, m in enumerate(mains):
            if m is not None: self.emit(m)
            for s in sides.get(i, []): self.emit(s)

def srd(a, s, lo, hi, nbytes):
    a(f"s_mov_b32 s{s}, s{lo}")
    a(f"s_and_b32 s{s+1}, s{hi}, 0xffff")
    a(f"s_mov_b32 s{s+2}, {nbytes}")
    a(f"s_mov_b32 s{s+3}, 0x20000")

def pf_round(a):
    return [(f"buffer_load_dword v{vPFd}, v{vPF}, s[{sPF}:{sPF+3}], s{sPFoff} offen{' nt' if a.opts.get('pfnt') else ''}", "pf"),
            f"s_add_u32 s{sPFoff}, s{sPFoff}, s{sPFstr}"]

class P1:
    def __init__(self, a):
        self.a = a; self.woff = None; self.xoff = None
    def dma(self, piece):
        kind, j, p = piece
        pre = []
        if kind == "W":
            if self.woff != j:
                pre.append(f"s_mov_b32 s{sWoff}, {j*196608}"); self.woff = j
            s = sWA if p < 3 else sWB
            pre.append(f"s_add_u32 m0, s{sWv}, {W_BASE + (j % 4)*W_SLOT + p*4096}")
            return pre, (f"buffer_load_dwordx4 v{vWg[p % 3]}, s[{s}:{s+3}], s{sWoff} offen{' nt' if self.a.opts.get('dmant') else ''} lds", f"W{j}")
        if self.xoff != j:
            pre.append(f"s_mov_b32 s{sXoff}, {j*128}"); self.xoff = j
        pre.append(f"s_add_u32 m0, s{sXw}, {(j % 3)*X_SLOT + p*1024}")
        return pre, (f"buffer_load_dwordx4 v{vXg[p]}, s[{sX}:{sX+3}], s{sXoff} offen{' nt' if self.a.opts.get('dmant') else ''} lds", f"X{j}")

def frag_reads(fs, u, k16):
    kk = 2*(u & 1) + k16
    out = [f"ds_read_b128 {ar(fX(fs, rt), 4)}, v{vXr[kk]} offset:{((u >> 1) % 3)*X_SLOT + rt*4096}" for rt in range(2)]
    ws = u % 4
    for blk in range(6):
        off = (ws % 2)*W_SLOT + blk*4096 + k16*2048
        out.append(f"ds_read_b64_tr_b16 {ar(fW(fs, blk), 2)}, v{vWr[ws//2]} offset:{off}")
        out.append(f"ds_read_b64_tr_b16 {ar(fW(fs, blk)+2, 2)}, v{vWr[ws//2]} offset:{off+512}")
    return out

def g1_mfma(fs, blk, rt):
    d = vr(acc(blk, rt), 16)
    w, x = ar(fW(fs, blk), 4), ar(fX(fs, rt), 4)
    return mf32(d, x, w, d) if blk % 3 == 2 else mf32(d, w, x, d)

def setup(a):
    o = a.opts
    a("L_START:")
    a("s_cmp_ge_u32 s2, 256")
    a("s_cbranch_scc1 L_END")
    a.stamp("start")
    a("s_load_dwordx4 s[48:51], s[0:1], 0")
    a("s_load_dwordx2 s[52:53], s[0:1], 32")
    a("s_load_dwordx2 s[54:55], s[0:1], 72")
    a(f"s_load_dwordx2 s[{sPWoA}:{sPWoA+1}], s[0:1], 16")
    a(f"s_load_dwordx4 s[{sPWoB}:{sPWoB+3}], s[0:1], 40")
    a(f"s_load_dwordx4 s[{sPOut}:{sPOut+3}], s[0:1], 56")
    a(f"v_and_b32 v{vLANE}, 63, v0")
    a(f"v_lshrrev_b32 v{vT[0]}, 6, v0")
    a("s_and_b32 s3, s2, 7")
    a(f"v_readfirstlane_b32 s{sW}, v{vT[0]}")
    a("s_lshr_b32 s35, s2, 3")
    a("s_and_b32 s37, s3, 3")
    a("s_lshl_b32 s36, s37, 2")
    a("s_and_b32 s38, s35, 3")
    a(f"s_add_u32 s{sHP}, s36, s38")
    a("s_lshr_b32 s39, s3, 2")
    a("s_lshl_b32 s36, s39, 3")
    a("s_lshr_b32 s38, s35, 2")
    a(f"s_add_u32 s{sT}, s36, s38")
    a(f"s_and_b32 s{sRH}, s{sW}, 1")
    a(f"s_lshr_b32 s{sHH}, s{sW}, 1")
    t0, t1, t2 = vT[0], vT[1], vT[2]
    if o.get("pfx"):
        a("s_lshl_b32 s38, s35, 5")
    else:
        a("s_lshl_b32 s38, s37, 5")
        a("s_add_u32 s38, s38, s35")
        a("s_lshl_b32 s38, s38, 3")
    a("s_lshl_b32 s47, s39, 10")
    a("s_add_u32 s38, s38, s47")
    a(f"v_add_u32 v{t0}, s38, v{vLANE}")
    a(f"v_lshlrev_b32 v{t0}, 11, v{t0}")
    if o.get("pfmode", 0) == 0:
        a("s_lshl_b32 s39, s39, 5")
        a("s_add_u32 s39, s39, s35")
        a("s_mul_i32 s39, s39, 6144")
        a("s_lshl_b32 s38, s37, 9")
        a("s_add_u32 s39, s39, s38")
        a(f"v_lshrrev_b32 v{t1}, 2, v{vLANE}")
        a(f"v_lshlrev_b32 v{t1}, 11, v{t1}")
        a(f"v_and_b32 v{t2}, 3, v{vLANE}")
        a(f"v_lshlrev_b32 v{t2}, 7, v{t2}")
        a(f"v_add3_u32 v{t1}, v{t1}, v{t2}, s39")
        if o.get("pf3", 1):
            a("s_lshr_b32 s47, s3, 2")
            a("s_xor_b32 s47, s47, 1")
            a("s_lshl_b32 s47, s47, 5")
            a("s_add_u32 s47, s47, s35")
            a("s_mul_i32 s47, s47, 6144")
            a("s_add_u32 s47, s47, s38")
            a(f"s_add_u32 s47, s47, {384 - 12*2048}")
            a(f"v_lshlrev_b32 v{t2}, 11, v{vLANE}")
            a(f"v_add_u32 v{t2}, s47, v{t2}")
            a(f"v_cmp_lt_u32 vcc, 11, v{vLANE}")
            a("s_nop 1")
            a(f"v_cndmask_b32 v{t1}, v{t1}, v{t2}, vcc")
    elif o.get("pfmode", 0) == 2:
        a("s_mul_i32 s39, s35, 12288")
        a("s_lshl_b32 s38, s37, 9")
        a("s_add_u32 s39, s39, s38")
        a(f"v_lshrrev_b32 v{t1}, 2, v{vLANE}")
        a(f"v_lshlrev_b32 v{t1}, 11, v{t1}")
        a(f"v_and_b32 v{t2}, 3, v{vLANE}")
        a(f"v_lshlrev_b32 v{t2}, 7, v{t2}")
        a(f"v_add3_u32 v{t1}, v{t1}, v{t2}, s39")
    else:
        a("s_mul_i32 s39, s2, 1536")
        a(f"v_lshlrev_b32 v{t1}, 7, v{vLANE}")
        a(f"v_add_u32 v{t1}, s39, v{t1}")
    a(f"s_mul_i32 s47, s35, {o.get('codelines', 20)}")
    a(f"v_add_u32 v{t2}, s47, v{vLANE}")
    a(f"v_lshlrev_b32 v{vT[7]}, 7, v{t2}")
    a(f"s_mov_b32 s{sPFstr}, 128")
    a(f"s_cmp_eq_u32 s{sW}, 0")
    a(f"s_cselect_b32 s{sPFstr}, s{sPFstr}, {64*6144}")
    a(f"s_cselect_b32 s38, {32 if o.get('pfx') else 8}, {24 if o.get('pfmode', 0) == 2 else (15 if o.get('pf3', 1) else 12)}")
    a("s_cselect_b64 s[56:57], -1, 0")
    a(f"v_cndmask_b32 v{vPF}, v{t1}, v{t0}, s[56:57]")
    a(f"s_cmp_eq_u32 s{sW}, 3")
    a("s_cselect_b64 s[56:57], -1, 0")
    a(f"v_cndmask_b32 v{vPF}, v{vPF}, v{vT[7]}, s[56:57]")
    a(f"s_cselect_b32 s38, {o.get('codelines', 20)}, s38")
    a(f"s_cselect_b32 s{sPFstr}, 0x4000000, s{sPFstr}")
    a(f"v_cmp_gt_u32 vcc, s38, v{vLANE}")
    a(f"v_mov_b32 v{t2}, {OOB}")
    a(f"s_mov_b32 s{sPFoff}, 0")
    a(f"v_cndmask_b32 v{vPF}, v{t2}, v{vPF}, vcc")
    a(f"v_cmp_gt_u32 vcc, {o.get('codelines', 20)}, v{vLANE}")
    a("s_getpc_b64 s[58:59]")
    a("L_PC:")
    a("s_sub_u32 s58, s58, L_PC - L_START")
    a(f"v_cndmask_b32 v{vT[7]}, v{t2}, v{vT[7]}, vcc")
    a("s_subb_u32 s59, s59, 0")
    r, c, t0, t1 = vT[0], vT[1], vT[2], vT[3]
    a(f"v_lshrrev_b32 v{r}, 3, v{vLANE}")
    a(f"v_and_b32 v{c}, 7, v{vLANE}")
    a(f"v_lshlrev_b32 v{t0}, 1, v{r}")
    a(f"v_and_b32 v{t0}, 4, v{t0}")
    a(f"v_xor_b32 v{t0}, v{t0}, v{c}")
    a(f"v_lshlrev_b32 v{t0}, 4, v{t0}")
    a(f"v_mul_u32_u24 v{t1}, 6144, v{r}")
    a(f"v_add_u32 v{t0}, v{t0}, v{t1}")
    a(f"s_mul_i32 s36, s{sW}, {8*6144}")
    a(f"s_lshl_b32 s37, s{sHP}, 7")
    a("s_add_u32 s36, s36, s37")
    a(f"v_add_u32 v{vWg[0]}, s36, v{t0}")
    a(f"v_add_u32 v{vWg[1]}, 2048, v{vWg[0]}")
    a(f"v_add_u32 v{vWg[2]}, 4096, v{vWg[0]}")
    a(f"v_lshrrev_b32 v{t0}, 1, v{r}")
    a(f"v_xor_b32 v{t0}, v{t0}, v{c}")
    a(f"v_lshlrev_b32 v{t0}, 4, v{t0}")
    a(f"v_lshlrev_b32 v{t1}, 11, v{r}")
    a(f"v_add_u32 v{t0}, v{t0}, v{t1}")
    a(f"s_lshl_b32 s36, s{sT}, 7")
    a(f"s_lshl_b32 s37, s{sW}, 5")
    a("s_add_u32 s36, s36, s37")
    a("s_lshl_b32 s36, s36, 11")
    a(f"v_add_u32 v{vXg[0]}, s36, v{t0}")
    a(f"v_xor_b32 v{vXg[1]}, 64, v{vXg[0]}")
    a(f"v_add_u32 v{vXg[1]}, {8*2048}, v{vXg[1]}")
    a(f"v_add_u32 v{vXg[2]}, {16*2048}, v{vXg[0]}")
    a(f"v_add_u32 v{vXg[3]}, {16*2048}, v{vXg[1]}")
    a(f"s_lshl_b32 s{sWv}, s{sW}, 10")
    a(f"s_lshl_b32 s{sXw}, s{sW}, 12")
    a("s_waitcnt lgkmcnt(0)")
    a.stamp("karg")
    a(f"s_mov_b32 s{sPF+2}, {1024*3072*2}")
    a(f"s_cmp_eq_u32 s{sW}, 0")
    a(f"s_cselect_b32 s{sPF}, s48, s50")
    a(f"s_cselect_b32 s{sPF+1}, s49, s51")
    a(f"s_cselect_b32 s{sPF+2}, {2048*1024*2}, s{sPF+2}")
    a(f"s_cmp_eq_u32 s{sW}, 2")
    a(f"s_cselect_b32 s{sPF}, s52, s{sPF}")
    a(f"s_cselect_b32 s{sPF+1}, s53, s{sPF+1}")
    a(f"s_cmp_eq_u32 s{sW}, 3")
    a(f"s_cselect_b32 s{sPF}, s58, s{sPF}")
    a(f"s_cselect_b32 s{sPF+1}, s59, s{sPF+1}")
    a(f"s_cselect_b32 s{sPF+2}, L_END - L_START, s{sPF+2}")
    a(f"s_and_b32 s{sPF+1}, s{sPF+1}, 0xffff")
    a(f"s_mov_b32 s{sPF+3}, 0x20000")
    for i in range(o.get("pf0", 2)):
        for s in pf_round(a): a.emit(s)
    srd(a, sX, 48, 49, 2048*1024*2)
    srd(a, sWA, 50, 51, 1024*3072*2)
    srd(a, sWB, 52, 53, 1024*3072*2)

def fillers_prologue(a):
    L = []
    f = L.append
    f("s_mov_b32 s16, s54"); f("s_and_b32 s17, s55, 0xffff"); f("s_mov_b32 s18, 0x10000000"); f("s_mov_b32 s19, 0x20000")
    f(f"s_mov_b32 s{sCode}, s58"); f(f"s_and_b32 s{sCode+1}, s59, 0xffff"); f(f"s_mov_b32 s{sCode+2}, L_END - L_START"); f(f"s_mov_b32 s{sCode+3}, 0x20000")
    m, h, t0, t1, row = vT[0], vT[1], vT[2], vT[3], vT[4]
    f(f"v_and_b32 v{m}, 31, v{vLANE}")
    f(f"v_lshrrev_b32 v{h}, 5, v{vLANE}")
    f(f"v_lshrrev_b32 v{t0}, 1, v{m}")
    f(f"v_and_b32 v{t0}, 7, v{t0}")
    f(f"v_xor_b32 v{t0}, v{t0}, v{h}")
    f(f"v_lshlrev_b32 v{t0}, 4, v{t0}")
    f(f"v_lshlrev_b32 v{t1}, 7, v{m}")
    f(f"v_add_u32 v{t0}, v{t0}, v{t1}")
    f(f"s_lshl_b32 s36, s{sRH}, 13")
    f(f"v_add_u32 v{vXr[0]}, s36, v{t0}")
    for kk in range(1, 4):
        f(f"v_xor_b32 v{vXr[kk]}, {kk*32}, v{vXr[0]}")
    f(f"v_and_b32 v{m}, 15, v{vLANE}")
    f(f"v_lshrrev_b32 v{t0}, 2, v{m}")
    f(f"v_lshlrev_b32 v{t1}, 3, v{h}")
    f(f"v_add_u32 v{row}, v{t0}, v{t1}")
    f(f"v_lshrrev_b32 v{t0}, 1, v{row}")
    f(f"v_and_b32 v{t0}, 1, v{t0}")
    f(f"v_xor_b32 v{t0}, s{sHH}, v{t0}")
    f(f"v_lshlrev_b32 v{t0}, 6, v{t0}")
    f(f"v_lshlrev_b32 v{t1}, 7, v{row}")
    f(f"v_add_u32 v{t0}, v{t0}, v{t1}")
    f(f"v_and_b32 v{t1}, 16, v{vLANE}")
    f(f"v_lshlrev_b32 v{t1}, 1, v{t1}")
    f(f"v_add_u32 v{t0}, v{t0}, v{t1}")
    f(f"v_and_b32 v{t1}, 3, v{m}")
    f(f"v_lshlrev_b32 v{t1}, 3, v{t1}")
    f(f"v_add_u32 v{t0}, v{t0}, v{t1}")
    f(f"v_add_u32 v{vWr[0]}, {W_BASE}, v{t0}")
    f(f"v_add_u32 v{vWr[1]}, {W_BASE + 2*W_SLOT}, v{t0}")
    for r in range(ACC0, 256):
        f(f"v_mov_b32 v{r}, 0")
    return L

def fillers_late(a):
    L = []
    f = L.append
    q, b, t = vT[0], vT[1], vT[2]
    f(f"v_lshlrev_b32 v{vL16}, 4, v{vLANE}")
    f(f"v_and_b32 v{q}, 31, v{vLANE}")
    f(f"v_lshrrev_b32 v{b}, 5, v{vLANE}")
    f(f"v_lshlrev_b32 v{b}, 2, v{b}")
    f(f"v_sub_u32 v{b}, v{q}, v{b}")
    f(f"s_mov_b32 s36, {NEGBIG}")
    for i in range(24):
        r, add = (i, 0) if i < 16 else (i - 8, 32)
        d = vMc + i
        kv = 8*(r >> 2) + (r & 3)
        f(f"v_add_u32 v{d}, {add - kv}, v{b}")
        f(f"v_and_b32 v{d}, 0xfffffff1, v{d}")
        f(f"v_min_u32 v{d}, 1, v{d}")
        f(f"v_sub_u32 v{d}, 0, v{d}")
        f(f"v_and_b32 v{d}, s36, v{d}")
    f(f"v_lshrrev_b32 v{q}, 2, v{vLANE}")
    f(f"v_lshrrev_b32 v{t}, 4, v{vLANE}")
    f(f"v_xor_b32 v{q}, v{q}, v{t}")
    f(f"v_and_b32 v{q}, 1, v{q}")
    f(f"v_add_u32 v{q}, -1, v{q}")
    f(f"v_and_b32 v{q}, 0x3f803f80, v{q}")
    for i in range(4):
        f(f"v_accvgpr_write_b32 a{aONE+i}, v{q}")
    f(f"v_min_u32 v{vF0}, 1, v{vLANE}")
    f(f"v_lshlrev_b32 v{vF0}, 31, v{vF0}")
    f(f"s_mov_b32 s{sCS}, {CSCALE}"); f(f"s_mov_b32 s62, {CSCALE}"); f(f"s_mov_b32 s63, {CSCALE}")
    f(f"s_lshl_b32 s36, s{sHP}, 19")
    f(f"s_lshl_b32 s37, s{sW}, 13")
    f(f"s_lshl_b32 s38, s{sHH}, 14")
    f(f"s_lshl_b32 s39, s{sRH}, 13")
    f(f"s_add_u32 s{sKVdst}, s38, s39")
    f(f"s_add_u32 s{sKVbase}, s36, s{sKVdst}")
    f(f"s_lshl_b32 s{sKVt}, s{sT}, 15")
    f(f"s_add_u32 s{sKVsrc}, s{sKVbase}, s{sKVt}")
    f(f"s_and_b32 s{sKVt}, s{sT}, 7"); f(f"s_and_b32 s{sKVb}, s{sT}, 8")
    f(f"s_add_u32 s36, s38, {KV_LDS[0]}")
    f(f"v_add_u32 v{vKV[0]}, s36, v{vL16}")
    f(f"v_add_u32 v{vKV[1]}, 32768, v{vKV[0]}")
    f(f"s_lshl_b32 s{sHead}, s{sHP}, 1")
    f(f"s_add_u32 s{sHead}, s{sHead}, s{sHH}")
    f(f"s_lshl_b32 s{sSeq}, s{sT}, 1")
    f(f"s_add_u32 s{sSeq}, s{sSeq}, s{sRH}")
    f(f"s_lshl_b32 s37, s{sSeq}, 6")
    f(f"s_add_u32 s37, s37, s{sHead}")
    f(f"s_lshl_b32 s{sOst}, s37, 11")
    f(f"s_lshl_b32 s38, s{sHead}, 5")
    f(f"s_add_u32 s38, s38, s{sSeq}")
    f(f"s_lshl_b32 s28, s38, 2")
    f(f"s_lshl_b32 s38, s38, 12")
    f(f"s_add_u32 s{sHalo}, s38, {HALO_OFF}")
    f(f"s_mov_b32 s{sPASS}, 0")
    f(f"s_add_u32 s{sKVp}, s54, s{sKVbase}\ns_addc_u32 s{sKVp+1}, s55, 0")
    f(f"s_cmp_lt_u32 s{sW}, 2\ns_cselect_b32 s{sPFW}, s{sPWoA}, s{sPWoB}\ns_cselect_b32 s{sPFW+1}, s{sPWoA+1}, s{sPWoB+1}")
    f(f"s_lshl_b32 s36, s2, 1"); f(f"s_add_u32 s36, s36, s{sRH}"); f("s_lshl_b32 s36, s36, 12")
    f(f"v_and_b32 v24, 7, v{vLANE}"); f("v_lshlrev_b32 v24, 7, v24"); f("v_add_u32 v23, s36, v24")
    f(f"v_and_b32 v24, 15, v{vLANE}"); f("v_lshlrev_b32 v24, 7, v24")
    f("s_lshr_b32 s36, s2, 3"); f("s_lshl_b32 s36, s36, 2"); f(f"s_add_u32 s36, s36, s{sW}"); f("s_lshl_b32 s36, s36, 14")
    f("v_add_u32 v0, s36, v24")
    f(f"s_lshl_b32 s36, s{sSeq}, 6")
    f(f"s_lshl_b32 s37, s{sHead}, 1")
    f("s_add_u32 s36, s36, s37")
    f(f"v_lshrrev_b32 v9, 5, v{vLANE}")
    f(f"v_add_u32 v{vGrow}, s36, v9")
    f(f"v_and_b32 v25, 31, v{vLANE}")
    f("v_lshlrev_b32 v25, 4, v25")
    f(f"v_lshl_add_u32 v9, v{vGrow}, 11, v25")
    f(f"s_mov_b32 s56, s{sPG}"); f(f"s_and_b32 s57, s{sPG+1}, 0xffff"); f("s_mov_b32 s58, 2048"); f("s_mov_b32 s59, 0x20000")
    f(f"s_lshl_b32 s38, s{sHP}, 2"); f(f"s_add_u32 s38, s38, s{sW}"); f("s_lshl_b32 s38, s38, 6")
    f(f"s_add_u32 s31, s38, {F_KV}"); f(f"s_lshl_b32 s38, s{sT}, 2"); f("s_add_u32 s32, s31, s38")
    f(f"s_add_u32 s33, s28, {F_H - 4}"); f(f"s_cmp_eq_u32 s{sSeq}, 0\ns_cselect_b32 s38, 4, 0"); f("s_add_u32 s33, s33, s38")
    return L

READ_GAPS = [0,0,1,1,2,2,3,3,4,5,6,7,8,9]
def gemm1(a):
    o = a.opts
    p1 = P1(a)
    W = lambda j, ps: [("W", j, p) for p in ps]
    X = lambda v, ps: [("X", v, p) for p in ps]
    pro = X(0, range(4)) + W(0, range(6)) + W(1, range(6))
    sched = {(0,0): X(1, range(4)) + W(2, [0,1]), (0,1): W(2, [2,3,4,5]) + W(3, [0,1]),
             (1,0): W(3, [2,3,4,5]) + W(4, [0,1]), (1,1): X(2, range(4)) + W(4, [2,3]),
             (2,0): W(4, [4,5]) + W(5, [0,1,2,3]), (2,1): W(5, [4,5]) + X(3, range(4)),
             (3,0): W(6, range(6))}
    for u in range(3, 28):
        v, p0 = ((u + 5)//2, 0) if u & 1 else ((u + 4)//2, 2)
        sched[(u, 1)] = W(u + 4, [0,1,2]) + (X(v, [p0]) if v < 16 else [])
        sched[(u + 1, 0)] = W(u + 4, [3,4,5]) + (X(v, [p0 + 1]) if v < 16 else [])
    for (u, hf), ps in sched.items():
        done = u - 1 if hf == 0 else u
        for k, j, p in ps:
            if k == "W": assert j < 4 or done >= j - 4, (u, hf, k, j)
            else: assert j < 3 or done >= 2*(j - 3) + 1, (u, hf, k, j)
    npf0 = o.get("pf0", 2)
    pfs = {}
    r = npf0
    for u in range(0, 32):
        while r < 16 and u >= max(0, 2*r - o.get("pfd", 7)) and pfs.get(u, 0) < 1:
            pfs[u] = pfs.get(u, 0) + 1; r += 1
    fil = fillers_prologue(a)
    per = (len(fil) + len(pro) - 1)//len(pro)
    for i, pc in enumerate(pro):
        pre, d = p1.dma(pc)
        for s in pre: a(s)
        chunk = fil[i*per:(i+1)*per]
        a(chunk[0] if chunk else "s_nop 0")
        a.emit(d)
        for s in chunk[1:]: a(s)
    a(f"s_or_b32 s36, s2, s{sW}")
    a("s_cmp_lg_u32 s36, 0")
    a("s_cbranch_scc1 L_NONONCE")
    a("s_memrealtime s[36:37]")
    a("v_mov_b32 v20, 0")
    a("s_waitcnt lgkmcnt(0)")
    a("s_or_b32 s36, s36, 1")
    a("v_mov_b32 v19, s36")
    a(f"global_store_dword v20, v19, s[{sPDbg}:{sPDbg+1}] sc1")
    a("L_NONONCE:")
    a.stamp("issued")
    a.emit(a.wait(["X0", "W0"]))
    a("s_barrier")
    a.stamp("first")
    for s in frag_reads(0, 0, 0): a(s)
    a("s_waitcnt lgkmcnt(0)")
    late = fillers_late(a)
    order = [(b, rt) for b in range(6) for rt in range(2)]
    for u in range(32):
        for hf in range(2):
            last = (u == 31 and hf == 1)
            reads = [] if last else (frag_reads(1, u, 1) if hf == 0 else frag_reads(0, u + 1, 0))
            sides = {}
            for g, rd in zip(READ_GAPS, reads): sides.setdefault(g, []).append(rd)
            ps = sched.get((u, hf), [])
            gaps = {4: [(1,2),(4,5),(7,8),(9,10)], 6: [(0,1),(2,3),(4,5),(6,7),(8,9),(10,11)]}
            gp = gaps[6] if len(ps) > 4 else gaps[4]
            for (g0, g1), pc in zip(gp, ps):
                pre, d = p1.dma(pc)
                sides.setdefault(g0, []).extend(pre)
                sides.setdefault(g1, []).insert(0, d)
            if hf == 0 and pfs.get(u):
                sides.setdefault(11, []).extend(pf_round(a))
            if u >= 6 and late and not last:
                for g in (5, 6, 8, 10):
                    for k in range(2):
                        if late: sides.setdefault(g, []).append(late.pop(0))
            if u == 28 and hf == 1:
                sides.setdefault(5, []).append((f"buffer_load_dword v{vPFd}, v{vT[7]}, s[{sCode}:{sCode+3}], 0 offen", "cpf"))
            w0 = o.get("wopf_step", 99)
            if u in (w0, w0 + 2, w0 + 4, w0 + 6) and hf == 0:
                sides.setdefault(11, []).append((f"global_load_dword v{vPFd}, v23, s[{sPFW}:{sPFW+1}] offset:{(u - w0)//2*1024}", "wopf"))
            if u in (28, 29) and hf == 1 or u in (29, 30) and hf == 0:
                j0 = 2*((u - 28)*2 + hf - 1)
                for j, g_ in ((j0, 3), (j0 + 1, 8)):
                    ins = (f"buffer_load_dwordx4 {ar(aGATE+4*j, 4)}, v9, s[{sX}:{sX+3}], 0 offen offset:{512*j}" if j < 4 else
                           f"buffer_load_dwordx4 {ar(aGATE+4*j, 4)}, v25, s[56:59], 0 offen offset:{512*(j-4)}")
                    sides.setdefault(g_, []).append((ins, "gate"))
            if u == 30 and hf == 1:
                sides.setdefault(5, []).append("v_mov_b32 v19, 0")
                sides.setdefault(7, []).append((f"global_load_dword v21, v19, s[{sPDbg}:{sPDbg+1}] sc1", "nonce"))
            od = order
            if last:
                od = [(4,1),(5,1),(1,0),(2,0),(1,1),(2,1),(3,1),(4,0),(5,0),(3,0),(0,0),(0,1)]
                e1_head(a, sides)
            a.inter([g1_mfma(hf, b, rt) for b, rt in od], sides)
            if hf == 0:
                if u < 31:
                    need = [f"W{u+1}"] + ([f"X{(u+1)//2}"] if (u + 1) % 2 == 0 else [])
                    a.emit(a.wait(need, lgkm=True))
                else:
                    a("s_waitcnt lgkmcnt(0)")
                a("s_barrier")
            elif not last:
                a("s_waitcnt lgkmcnt(0)")
        if u % 8 == 7: a.stamp(f"g{u}")
    assert not late

def packl(base, out=None):
    out = base if out is None else out
    return [f"v_cvt_pk_bf16_f32 v{out+j}, v{base+2*j}, v{base+2*j+1}" for j in range(8)]
def pack(a, base, out=None):
    for s in packl(base, out): a(s)
class L(list):
    def __call__(self, s): self.append(s)
    def emit(self, s): self.append(s)
def weave(a, work, extra, first, every):
    nxt = first
    for i, w in enumerate(work):
        while extra and i >= nxt:
            for s in extra.pop(0): a.emit(s)
            nxt += every
        a.emit(w)

def padfill(a, fill, n):
    k = 0
    for f in fill:
        a.emit(f); k += len(f.split("\n")) if isinstance(f, str) else 1
    if k < n: a(f"s_nop {n - k - 1}")

def local_tile(a, Q, Kc, Vc, Kp, Vp1, SC, SP, O, PC, PP, tmp, off, tag, fill1=(), fill2=()):
    m, t = tmp, tmp + 1
    a(mf32(vr(SC, 16), vr(Kc, 4), vr(Q, 4), vr(vMc, 16)))
    a(mf32(vr(SC, 16), vr(Kc+4, 4), vr(Q+4, 4), vr(SC, 16)))
    a(mf32(vr(SP, 16), vr(Kp, 4), vr(Q, 4), vr(vMc + 8, 16)))
    a(mf32(vr(SP, 16), vr(Kp+4, 4), vr(Q+4, 4), vr(SP, 16)))
    padfill(a, fill1, 10)
    vals = [SC + i for i in range(16)] + [SP + 8 + i for i in range(8)]
    a(f"v_max3_f32 v{m}, v{vals[0]}, v{vals[1]}, v{vals[2]}")
    for i in range(3, 23, 2):
        a(f"v_max3_f32 v{m}, v{m}, v{vals[i]}, v{vals[i+1]}")
    a(f"v_max_f32 v{m}, v{m}, v{vals[23]}")
    a(f"v_mov_b32 v{t}, v{m}")
    a("s_nop 1")
    a(f"v_permlane32_swap_b32 v{m}, v{t}")
    a(f"v_max_f32 v{m}, v{m}, v{t}")
    a(f"v_mul_f32 v{m}, s{sCS}, v{m}")
    for v in vals:
        a(f"v_fma_f32 v{v}, v{v}, s{sCS}, -v{m}")
    L = SP
    for i in range(10): a(f"v_exp_f32 v{vals[i]}, v{vals[i]}")
    for j in range(4): a(f"v_cvt_pk_bf16_f32 v{PC+j}, v{SC+2*j}, v{SC+2*j+1}")
    for i in range(10, 13): a(f"v_exp_f32 v{vals[i]}, v{vals[i]}")
    a(mf32(vr(O, 16), vr(Vc, 4), vr(PC, 4), 0))
    for i in range(13, 18): a(f"v_exp_f32 v{vals[i]}, v{vals[i]}")
    a(mf16(vr(L, 4), ar(aONE, 4), vr(PC, 4), 0))
    for j in range(4, 8): a(f"v_cvt_pk_bf16_f32 v{PC+j}, v{SC+2*j}, v{SC+2*j+1}")
    for i in range(18, 20): a(f"v_exp_f32 v{vals[i]}, v{vals[i]}")
    a(mf32(vr(O, 16), vr(Vc+4, 4), vr(PC+4, 4), vr(O, 16)))
    for i in range(20, 24): a(f"v_exp_f32 v{vals[i]}, v{vals[i]}")
    a(mf16(vr(L, 4), ar(aONE, 4), vr(PC+4, 4), vr(L, 4)))
    for j in range(4): a(f"v_cvt_pk_bf16_f32 v{PP+j}, v{SP+8+2*j}, v{SP+9+2*j}")
    a("s_nop 1")
    a(mf16(vr(L, 4), ar(aONE, 4), vr(PP, 4), vr(L, 4)))
    a(mf32(vr(O, 16), vr(Vp1, 4), vr(PP, 4), vr(O, 16)))
    padfill(a, fill2, 7)
    a(f"v_rcp_f32 v{m}, v{L}")
    a(f"s_add_u32 s35, s{sOst}, {OB_OFF + off}")
    a("s_nop 2")
    for i in range(16):
        a(f"v_mul_f32 v{O+i}, v{O+i}, v{m}")
    return [(f"buffer_store_dwordx4 {{0}}, v{vL16}, {WS}, s35 offen sc1", tag),
            (f"buffer_store_dwordx4 {{0}}, v{vL16}, {WS}, s35 offen offset:1024 sc1", tag)]

def flag_store(sreg, vtmp, tag):
    return [f"v_mov_b32 v{vtmp}, s{sNONCE}", (f"buffer_store_dword v{vtmp}, v{vF0}, {WS}, s{sreg} offen sc1", tag)]

def poll_check(a, name, vdst, vaddr, sreg, tag, mask=-1):
    a.emit(a.wait([tag]))
    a(f"v_cmp_ne_u32 vcc, s{sNONCE}, v{vdst}")
    a("s_nop 3")
    a(f"s_and_b32 s{sSpin}, vcc_lo, {mask}")
    a(f"s_cbranch_scc1 {name}_S")
    a(f"{name}_R:")
    a.tail.append(f"""{name}_S:
    s_mov_b32 s{sSpin}, 0
{name}_L:
    buffer_load_dword v{vdst}, v{vaddr}, {WS}, s{sreg} offen sc1
    s_add_u32 s{sSpin}, s{sSpin}, 1
    s_waitcnt vmcnt(0)
    v_cmp_ne_u32 vcc, s{sNONCE}, v{vdst}
    s_cmp_lt_u32 s{sSpin}, 0x40000
    s_cbranch_scc0 {name}_R
    s_nop 2
    s_and_b32 vcc_hi, vcc_lo, {mask}
    s_cbranch_scc1 {name}_L
    s_branch {name}_R""")

def e1_head(a, sides):
    a.halo = [(f"buffer_store_dwordx4 {vr(pKB[1], 4)}, v{vL16}, {WS}, s{sHalo} offen sc1", "halo"),
              (f"buffer_store_dwordx4 {vr(pKB[1]+4, 4)}, v{vL16}, {WS}, s{sHalo} offen offset:1024 sc1", "halo"),
              (f"buffer_store_dwordx4 {vr(pVB[1]+4, 4)}, v{vL16}, {WS}, s{sHalo} offen offset:2048 sc1", "halo")]
    a.kv = []; a.dsw = []
    for rt in range(2):
        for (blk, f0) in ((pKA[rt], 0), (pVA[rt], 2)):
            for f in range(2):
                off = (f0 + f)*1024
                a.kv.append([(f"buffer_store_dwordx4 {vr(blk+4*f, 4)}, v{vL16}, {WS}, s{26 if rt == 0 else 25} offen offset:{off} sc1", "kv")])
                a.dsw.append([f"ds_write_b128 v22, {vr(blk+4*f, 4)} offset:{rt*4096 + off}"])
    sides[0] = [f"s_add_u32 s36, s{sKVdst}, {KV_LDS[0]}", f"v_add_u32 v22, s36, v{vL16}", f"v_add_u32 v{vL16b}, 4096, v{vL16}",
                f"s_add_u32 s25, s{sKVsrc}, 4096", f"s_mov_b32 s26, s{sKVsrc}"]
    sides[1] = ["s_nop 3"]; sides[2] = ["s_nop 3"]
    w = packl(KB[1], pKB[1])[:4] + [a.halo[0]] + packl(KB[1], pKB[1])[4:] + [a.halo[1]] + packl(VB[1], pVB[1]) + [a.halo[2]] \
        + packl(KA[0], pKA[0]) + a.kv.pop(0) + packl(VA[0], pVA[0]) + packl(KA[1], pKA[1])
    for g in range(3, 12):
        sides[g] = w[:5]; w = w[5:]
    a.e1rest = w

def e1(a):
    o = a.opts
    kv = a.kv
    w = a.e1rest + packl(VA[1], pVA[1]) + packl(QB[0], pQB[0]) + packl(QB[1], pQB[1]) + packl(KB[0], pKB[0]) + packl(VB[0], pVB[0])
    weave(a, w, a.dsw[:6], 2, 6)
    for g in a.dsw[6:]:
        for s in g: a(s)
    for s in kv.pop(0): a.emit(s)
    a.stamp("e1pack")
    qa = []
    for q in QA:
        qa += [f"v_pk_mul_f32 {vr(q+2*j, 2)}, {vr(q+2*j, 2)}, s[62:63]" for j in range(8)] + packl(q)
    lt = L()
    st = local_tile(lt, pQB[1], pKB[1], pVB[1], pKB[0], pVB[0]+4, 128, 144, 176, 240, 248, 252, 65536, "ob1", fill1=qa[:22], fill2=qa[22:])
    lt += packl(176, 56)
    a.ob1 = [(st[0][0].format("v[56:59]"), "ob1"), (st[1][0].format("v[60:63]"), "ob1")]
    weave(a, lt, [kv.pop(0), kv.pop(0)], o.get("st_a", 45), o.get("st_b", 60))
    a.kv_left = kv
    a.stamp("loc1")
    a.emit(a.wait(["halo", "nonce"], lgkm=True))
    a(f"v_readfirstlane_b32 s{sNONCE}, v21")
    a(f"s_add_u32 s36, s28, {F_H}")
    a("s_barrier")
    a(f"s_cmp_eq_u32 s{sNONCE}, 0")
    a("s_cbranch_scc1 L_NONCE_S")
    a("L_NONCE_R:")
    a.tail.append(f"""L_NONCE_S:
    s_mov_b32 s{sSpin}, 0
L_NONCE_L:
    global_load_dword v21, v19, s[{sPDbg}:{sPDbg+1}] sc1
    s_add_u32 s{sSpin}, s{sSpin}, 1
    s_waitcnt vmcnt(0)
    v_readfirstlane_b32 s{sNONCE}, v21
    s_cmp_lt_u32 s{sSpin}, 0x40000
    s_cbranch_scc0 L_NONCE_R
    s_nop 2
    s_cmp_eq_u32 s{sNONCE}, 0
    s_cbranch_scc1 L_NONCE_L
    s_branch L_NONCE_R""")
    for s in flag_store(36, 20, "fH"): a.emit(s)
    a.stamp("fH")

sKVp, sKVg, sOg, sPFW = 84, 98, 100, 52
vL16b = 5
def kv_dma(slot, group, tag):
    out = [f"s_add_u32 m0, s{sKVdst}, {KV_LDS[slot] + group*4096}"]
    for p in range(4):
        out.append((f"global_load_lds_dwordx4 v{vL16b if group else vL16}, s[{sKVg}:{sKVg+1}] offset:{p*1024} sc1", tag))
    return out
sKVb, sKVd = 3, 34
def kv_advance(c):
    if c <= 7:
        return [f"s_cmp_le_u32 s{sKVt}, {c-1}", f"s_addc_u32 s36, s{sKVb}, {c-1}", "s_lshl_b32 s36, s36, 15",
                f"s_add_u32 s{sKVg}, s{sKVp}, s36", f"s_addc_u32 s{sKVg+1}, s{sKVp+1}, 0"]
    return [f"s_add_u32 s36, s{sKVb}, {c}", "s_and_b32 s36, s36, 15", "s_lshl_b32 s36, s36, 15",
            f"s_add_u32 s{sKVg}, s{sKVp}, s36", f"s_addc_u32 s{sKVg+1}, s{sKVp+1}, 0"]

def H(a, q, vpar, qk=True, pv=True, pv_first=False, slots=None):
    slots = slots or {}
    o = 1 - q
    e = [f"v_exp_f32 v{S[q]+i}, v{S[q]+i}" for i in range(16)]
    c = [f"v_cvt_pk_bf16_f32 v{P[q]+j}, v{S[q]+2*j}, v{S[q]+2*j+1}" for j in range(8)]
    So, Oo, Lo = vr(S[o], 16), ar(aO[o], 16), ar(aL[o], 4)
    M = [mf32(So, ar(aK, 4), vr(QA[o], 4), vr(NM[o], 16)) if qk else None,
         mf32(So, ar(aK+4, 4), vr(QA[o]+4, 4), So) if qk else None,
         mf32(Oo, ar(aV[vpar], 4), vr(P[o], 4), 0 if pv_first else Oo) if pv else None,
         mf32(Oo, ar(aV[vpar]+4, 4), vr(P[o]+4, 4), Oo) if pv else None,
         mf16(Lo, ar(aONE, 4), vr(P[o], 4), 0 if pv_first else Lo) if pv else None,
         mf16(Lo, ar(aONE, 4), vr(P[o]+4, 4), Lo) if pv else None]
    V = [[e[0], e[1], e[2]], [e[3], c[0], c[1], e[4]], [e[5], e[6], e[7]], [c[2], c[3], e[8], e[9]],
         [e[10], e[11], c[4], c[5]], [e[12], e[13], e[14], e[15], c[6], c[7]]]
    if not pv: V[3] = ["s_nop 0"] + V[3]
    for i in range(6):
        if M[i]: a(M[i])
        for s in slots.get(i, []): a.emit(s)
        for s in V[i]: a(s)

def rdK(slot, off): return [f"ds_read_b128 {ar(aK, 4)}, v{vKV[slot]} offset:{off}", f"ds_read_b128 {ar(aK+4, 4)}, v{vKV[slot]} offset:{off+1024}"]
def rdV(par, slot, off): return [f"ds_read_b128 {ar(aV[par], 4)}, v{vKV[slot]} offset:{off+2048}", f"ds_read_b128 {ar(aV[par]+4, 4)}, v{vKV[slot]} offset:{off+3072}"]

FREE_A = [0, 3, 4]; FREE_B = [2, 3, 4, 5]
TORD = [0, 2, 1, 3]
def tile(a, n, side=None, end_b=None):
    sa = {}; sb = {}
    if n < 63:
        m = n + 1
        k = rdK((m >> 2) & 1, TORD[m & 3]*4096); v = rdV(m & 1, (m >> 2) & 1, TORD[m & 3]*4096)
        sa[1] = [k[0]]; sa[2] = [k[1]]; sa[5] = ["s_waitcnt lgkmcnt(0)"]
        sb[0] = [v[0]]; sb[1] = [v[1]]
    if side is not None:
        for g in FREE_A:
            if side: sa.setdefault(g, []).extend(side.pop(0))
        for g in (FREE_B if end_b is None else FREE_B[:-1]):
            if side: sb.setdefault(g, []).extend(side.pop(0))
    if end_b: sb.setdefault(5, []).extend(end_b)
    H(a, 0, (n - 1) & 1, pv=(n != 0), pv_first=(n == 1), slots=sa)
    H(a, 1, n & 1, qk=(n < 63), pv_first=(n == 0), slots=sb)

def neg_max(a):
    for q in range(2): a(f"v_mov_b32 v{21+q}, v{19+q}")
    a("s_nop 0")
    for q in range(2): a(f"v_permlane32_swap_b32 v{19+q}, v{21+q}")
    for q in range(2): a(f"v_max_f32 v{19+q}, v{19+q}, v{21+q}")
    for q in range(2):
        for i in range(16): a(f"v_sub_f32 v{NM[q]+i}, 0, v{19+q}")

def gate_compute(a):
    z, t = 23, 24
    for i in range(16):
        a(f"v_accvgpr_read_b32 v{96+(i%4)}, a{aGATE+i}")
        a(f"v_accvgpr_read_b32 v{100+(i%4)}, a{aGATE+16+i}")
        a(f"v_dot2_f32_bf16 v{z}, v{96+(i%4)}, v{100+(i%4)}, {0 if i == 0 else 'v%d' % z}")
    a("s_nop 2")
    for sh in (8, 4, 2, 1):
        a(f"v_add_f32_dpp v{z}, v{z}, v{z} row_ror:{sh} row_mask:0xf bank_mask:0xf")
        a("s_nop 1")
    a(f"v_mov_b32 v{t}, v{z}")
    a("s_nop 1")
    a(f"v_permlane16_swap_b32 v{z}, v{t}")
    a(f"v_add_f32 v{z}, v{z}, v{t}")
    a(f"v_mul_f32 v{z}, {f2u(-math.log2(math.e))}, v{z}")
    a(f"v_exp_f32 v{z}, v{z}")
    a(f"v_and_b32 v{t}, 31, v{vLANE}")
    a(f"v_add_f32 v{z}, 1.0, v{z}")
    a(f"v_rcp_f32 v{z}, v{z}")
    a(f"v_min_u32 v{t}, 1, v{t}")
    a(f"v_lshlrev_b32 v{t}, 31, v{t}")
    a(f"v_lshl_or_b32 v{t}, v{vGrow}, 2, v{t}")
    a(f"s_mov_b32 s36, {G_OFF}")
    a.emit((f"buffer_store_dword v{z}, v{t}, {WS}, s36 offen sc1", "g"))

def p4_setup(a):
    srd(a, sWoA, sPWoA, sPWoA+1, 1024*1024*2)
    srd(a, sWoB, sPWoB, sPWoB+1, 1024*1024*2)
    srd(a, sOutD, sPOut, sPOut+1, 2048*1024*2)
    a("s_and_b32 s36, s2, 7")
    a("s_lshr_b32 s37, s2, 3")
    a(f"s_and_b32 s{sC4}, s37, 15")
    a("s_lshr_b32 s37, s37, 4")
    a("s_lshl_b32 s36, s36, 1")
    a(f"s_add_u32 s{sT4}, s36, s37")
    r, c, t0, t1 = 200, 201, 202, 203
    a(f"v_lshrrev_b32 v{r}, 3, v{vLANE}")
    a(f"v_and_b32 v{c}, 7, v{vLANE}")
    a(f"v_lshlrev_b32 v{t0}, 1, v{r}")
    a(f"v_and_b32 v{t0}, 4, v{t0}")
    a(f"v_xor_b32 v{t0}, v{t0}, v{c}")
    a(f"v_lshlrev_b32 v{t0}, 4, v{t0}")
    a(f"v_lshl_add_u32 v{t0}, v{r}, 11, v{t0}")
    a(f"s_lshl_b32 s36, s{sW}, 14")
    a(f"s_lshl_b32 s37, s{sC4}, 7")
    a("s_add_u32 s36, s36, s37")
    a(f"v_add_u32 v{vWo_g}, s36, v{t0}")
    a(f"v_and_b32 v{r}, 15, v{vLANE}")
    a(f"v_lshrrev_b32 v{t0}, 2, v{r}")
    a(f"v_lshrrev_b32 v{t1}, 5, v{vLANE}")
    a(f"v_lshl_add_u32 v{c}, v{t1}, 2, v{t0}")
    a(f"v_lshrrev_b32 v{t0}, 1, v{c}")
    a(f"v_and_b32 v{t0}, 1, v{t0}")
    a(f"v_lshlrev_b32 v{t0}, 6, v{t0}")
    a(f"v_lshl_add_u32 v{t0}, v{c}, 7, v{t0}")
    a(f"v_and_b32 v{t1}, 16, v{vLANE}")
    a(f"v_lshl_add_u32 v{t0}, v{t1}, 1, v{t0}")
    a(f"v_and_b32 v{t1}, 3, v{r}")
    a(f"v_lshl_add_u32 v{vWo_r[0]}, v{t1}, 3, v{t0}")
    a(f"v_xor_b32 v{vWo_r[1]}, 64, v{vWo_r[0]}")
    for b in (1, 2):
        for ct in range(2):
            a(f"v_add_u32 v{vWo_r[2*b+ct]}, {b*65536}, v{vWo_r[ct]}")
    a(f"s_lshl_b32 s36, s{sT4}, 2")
    a(f"s_add_u32 s36, s36, s{sW}")
    a(f"s_lshl_b32 s{sOrow}, s36, 16")
    a(f"s_lshr_b32 s36, s36, 1")
    a(f"s_lshl_b32 s29, s36, 7")
    a(f"s_lshl_b32 s{sOoff}, s{sC4}, 12")
    a(f"s_lshl_b32 s{sWooff}, s{sC4}, 17")
    a(f"v_and_b32 v16, 31, v{vLANE}")
    a("v_lshlrev_b32 v16, 2, v16")
    a(f"v_and_b32 v17, 15, v{vLANE}")
    a(f"v_cmp_le_u32 vcc, s{sKVt}, v17")
    a(f"v_add_u32 v17, s{sKVb}, v17")
    a("s_nop 0")
    a("v_addc_co_u32 v17, vcc, 0, v17, vcc")
    a("v_and_b32 v17, 15, v17")
    a("v_lshlrev_b32 v17, 2, v17")
    a("s_lshr_b32 s36, s2, 3")
    a("s_lshl_b32 s36, s36, 2")
    a(f"s_add_u32 s36, s36, s{sW}")
    a("s_lshl_b32 s36, s36, 12")
    a(f"s_add_u32 s36, s36, {24*65536}")
    a(f"v_and_b32 v15, 15, v{vLANE}")
    a("v_lshlrev_b32 v15, 7, v15")
    a("v_add_u32 v15, s36, v15")
    a(f"s_add_u32 s36, s{sOrow}, {OB_OFF}")
    a(f"s_add_u32 s{sOg}, s54, s36")
    a(f"s_addc_u32 s{sOg+1}, s55, 0")

def wob_dma(i, tag):
    return [[f"s_mov_b32 s39, {i*65536}"], [f"s_add_u32 m0, s{sWv}, {i*4096}"],
            [(f"buffer_load_dwordx4 v{vWo_g}, s[{sWoB}:{sWoB+3}], s39 offen lds", tag)]]

def attention(a):
    o = a.opts
    a("L_ATT0:")
    for s in rdK(0, 0) + rdV(0, 0, 0): a(s)
    for s in kv_advance(1): a(s)
    a(f"s_cmp_lg_u32 s{sPASS}, 0")
    a("s_cbranch_scc1 L_ATT1")
    ps = L(); p4_setup(ps)
    ps_s = [x for x in ps if x.startswith("s_") and "s4," not in x.split()[1] and not any(x.split()[1].startswith(f"s{i},") for i in (4, 5, 6, 7))]
    ps_x = []
    rest = [x for x in ps if x not in ps_x]
    n1 = 22
    for s in rest[:n1]: a(s)
    a("s_waitcnt lgkmcnt(0)")
    for q in range(2): a(mf32(vr(S[q], 16), ar(aK, 4), vr(QA[q], 4), 0))
    for q in range(2): a(mf32(vr(S[q], 16), ar(aK+4, 4), vr(QA[q]+4, 4), vr(S[q], 16)))
    kv = a.kv_left
    for s in kv.pop(0): a.emit(s)
    padfill(a, rest[n1:n1+26], 10)
    for q in range(2):
        s, m = S[q], 19 + q
        a(f"v_max3_f32 v{m}, v{s}, v{s+1}, v{s+2}")
        for i in range(3, 15, 2): a(f"v_max3_f32 v{m}, v{m}, v{s+i}, v{s+i+1}")
        a(f"v_max_f32 v{m}, v{m}, v{s+15}")
    for q in range(2): a(f"v_mov_b32 v{21+q}, v{19+q}")
    a("s_nop 0")
    for q in range(2): a(f"v_permlane32_swap_b32 v{19+q}, v{21+q}")
    for q in range(2): a(f"v_max_f32 v{19+q}, v{19+q}, v{21+q}")
    for i in range(16): a(f"v_sub_f32 v{NM[0]+i}, 0, v19")
    for s in rest[n1+26:n1+28]: a(s)
    a(mf32(vr(S[0], 16), ar(aK, 4), vr(QA[0], 4), vr(NM[0], 16)))
    a(mf32(vr(S[0], 16), ar(aK+4, 4), vr(QA[0]+4, 4), vr(S[0], 16)))
    for i in range(16): a(f"v_sub_f32 v{NM[1]+i}, 0, v20")
    for s in rest[n1+28:]: a(s)
    a("v_mov_b32 v18, 0")
    a("s_branch L_ATT2")
    a("L_ATT1:")
    a("s_waitcnt lgkmcnt(0)")
    a(mf32(vr(S[0], 16), ar(aK, 4), vr(QA[0], 4), vr(NM[0], 16)))
    a(mf32(vr(S[0], 16), ar(aK+4, 4), vr(QA[0]+4, 4), vr(S[0], 16)))
    a("s_nop 11")
    a("L_ATT2:")
    a.stamp("att0")
    pH = [(f"buffer_load_dword v21, v18, {WS}, s33 offen sc1", "pH")]
    tile(a, 0, [kv.pop(0), [], [], [], [], kv.pop(0), []])
    tile(a, 1, [[], [], [], kv.pop(0), pH])
    a.stamp("t01")
    tile(a, 2)
    a.stamp("t2")
    a(f"s_cmp_lg_u32 s{sPASS}, 0")
    a("s_cbranch_scc1 L_A3")
    a.emit(a.wait(["kv"]))
    for s in flag_store(32, 20, "fKV"): a.emit(s)
    a.stamp("fKV")
    poll_check(a, "L_PH", 21, 18, 33, "pH")
    a(f"s_sub_u32 s38, s{sHalo}, 4096")
    a(f"s_cmp_eq_u32 s{sSeq}, 0")
    a(f"s_cselect_b32 s38, {OOB}, s38")
    a.emit((f"buffer_load_dwordx4 {vr(HK, 4)}, v{vL16}, {WS}, s38 offen sc1", "hl"))
    a.emit((f"buffer_load_dwordx4 {vr(HK+4, 4)}, v{vL16}, {WS}, s38 offen offset:1024 sc1", "hl"))
    a.emit((f"buffer_load_dwordx4 {vr(HV, 4)}, v{vL16}, {WS}, s38 offen offset:2048 sc1", "hl"))
    if o.get("ownpf", 0):
        a(f"v_lshlrev_b32 v22, 7, v{vLANE}")
        a.emit((f"buffer_load_dword v{vPFd}, v22, {WS}, s26 offen sc1", "ownpf"))
    a("s_cbranch_scc0 L_MASKOK")
    for i in range(8): a(f"v_mov_b32 v{vMc+16+i}, {NEGBIG}")
    a("L_MASKOK:")
    for s in a.ob1: a.emit(s)
    a.stamp("pH")
    gate_compute(a)
    a.stamp("fill")
    pk = (f"buffer_load_dword v21, v17, {WS}, s31 offen sc1", "pKV")
    order = o.get("e1order", 0)
    def loc0(extra):
        a.emit(a.wait(["hl"]))
        lt = L()
        st = local_tile(lt, pQB[0], pKB[0], pVB[0], HK, HV, 96, 112, 208, 168, 236, 23, 0, "ob0")
        lt += packl(208)
        weave(a, lt, extra, o.get("pk_at", 60), 1000)
        a.ob0 = [(st[0][0].format("v[208:211]"), "ob0"), (st[1][0].format("v[212:215]"), "ob0")]
    if order == 0:
        loc0([[pk]])
        a.stamp("loc0")
    else:
        a.emit(pk)
    poll_check(a, "L_PKV", 21, 17, 31, "pKV", mask=o.get("kvmask", 1))
    a("L_A3:")
    a.stamp("pKV")
    for g in range(2):
        for k_, s in enumerate(kv_dma(1, g, f"c1{'ab'[g]}")):
            a.emit(s)
            if k_ == 0: a("s_nop 0")
        if g == 0: a.emit((f"buffer_load_dword v21, v17, {WS}, s31 offen sc1", "pKV2"))
    for s in kv_advance(2): a(s)
    a(f"s_cmp_lg_u32 s{sPASS}, 0")
    a("s_cbranch_scc1 L_A4")
    if order == 1:
        loc0([])
        a.stamp("loc0")
    for s in a.ob0: a.emit(s)
    a("s_branch L_A5")
    a("L_A4:")
    a("s_waitcnt vmcnt(0)")
    a("L_A5:")
    a.emit(a.wait(["c1a"], lgkm=True))
    a("s_barrier")
    a.pkv2 = True
    a.stamp("c1")
    wob = [i for i in range(24)]
    obl = [i for i in range(64)]
    if o.get('noside'): wob = wob[:1]; obl = obl[:1]
    ob_start = o.get("ob_start", 5)
    obase = False
    for c in range(15):
        V = []; A = []
        side = []
        if c + 2 <= 15:
            d0, d1 = kv_dma(c % 2, 0, f"c{c+2}"), kv_dma(c % 2, 1, f"c{c+2}")
            kvs = [[x] for x in d0] + [[x] for x in d1] + ([[x] for x in kv_advance(c + 3)] if c + 3 <= 15 else [])
        else:
            kvs = []
        oth = []
        if c == 0:
            oth += [[(f"buffer_load_dword v21, v17, {WS}, s31 offen sc1", "pKV3")]]
        if c == 1:
            oth += [[f"s_lshl_b32 s38, s{sSeq}, 7"], [f"s_lshl_b32 s39, s{sHead}, 2"], ["s_add_u32 s38, s38, s39"],
                    [f"s_add_u32 s35, s38, {F_OB}"], flag_store(35, 20, "fOB")]
        if c == ob_start - 2:
            oth += [[f"s_add_u32 s47, s29, {F_OB}"], [(f"buffer_load_dword v21, v16, {WS}, s47 offen sc1", "pOB")]]
        if c == o.get("cpf2", 11) or (o.get("cpfn") and c % o["cpfn"] == 2):
            oth += [[(f"buffer_load_dword v{vPFd}, v{vT[7]}, s[{sCode}:{sCode+3}], 0 offen", "cpf")]]
        nslots = 4*7 - 1 - (c == 0)
        if c >= ob_start:
            for _ in range(min(len(obl), o.get("ob_per", 8))):
                i = obl.pop(0)
                oth.append([(f"global_load_dwordx4 {oreg(i)}, v{vL16b if (i & 4) else vL16}, s[{sOg}:{sOg+1}] offset:{(i % 4)*1024} sc1", "obl")])
                if i % 8 == 7:
                    oth += [[f"s_add_u32 s{sOg}, s{sOg}, 8192"], [f"s_addc_u32 s{sOg+1}, s{sOg+1}, 0"]]
        wl = o.get("wol2", 6)
        if wl <= c < wl + 8:
            oth.append([(f"global_load_dword v{vPFd}, v0, s[{sPWoA}:{sPWoA+1}] offset:{((c - wl) & 1)*2048}", "wopf")] + (["v_add_u32 v0, 4096, v0"] if (c - wl) & 1 else []))
        if c in (13, 14) and o.get("wbl2", 1):
            oth.append([(f"global_load_dword v{vPFd}, v15, s[{sPWoB}:{sPWoB+1}] offset:{(c - 13)*2048}", "wopf")])
        while wob and len(kvs) + len(oth) + 3 <= nslots:
            i_ = wob.pop(0)
            oth += wob_dma(i_, f"wo{i_//8}")
        side = kvs + oth
        while len(side) > nslots:
            for k in range(len(side) - 1):
                if all(isinstance(x, str) and x.startswith("s_") and "m0" not in x for x in side[k]):
                    side[k+1] = side[k] + side[k+1]; side.pop(k); break
            else:
                raise Exception("slots")
        n = len(side)
        if n < nslots and o.get("spread", 1):
            sp = [[] for _ in range(nslots)]
            for k, g in enumerate(side): sp[k*nslots//n] = g
            side = sp
        if c == 0:
            poll_check(a, "L_PKV2", 21, 17, 31, "pKV2", mask=2)
        if c == 1:
            poll_check(a, "L_PKV3", 21, 17, 31, "pKV3", mask=0xffff)
        if c == ob_start - 1:
            poll_check(a, "L_POB", 21, 16, 47, "pOB")
        tile(a, 4*c + 3, side)
        tile(a, 4*c + 4, side, end_b=[a.wait(["c1b"]), "s_barrier"] if c == 0 else None)
        tile(a, 4*c + 5, side)
        tile(a, 4*c + 6, side, end_b=[a.wait([f"c{c+2}"], lgkm=True) if c + 2 <= 15 else a.wait(["wo0", "obl"], lgkm=True), "s_barrier"])
        assert not side
        if c in (4, 9): a.stamp(f"c{c}")
    assert not wob and not obl, (wob, obl)
    r0 = p4_reads(0, 0, 0)
    tile(a, 63, [r0[0:2], r0[2:4], r0[4:6], r0[6:8], r0[8:10], r0[10:13], r0[13:16]])
    a(f"s_add_u32 s36, s{sOst}, {OA_OFF}")
    a(f"s_add_u32 s37, s{sOst}, {OA_OFF + 65536}")
    a(mf32(ar(aO[1], 16), ar(aV[1], 4), vr(P[1], 4), ar(aO[1], 16)))
    a(mf16(ar(aL[1], 4), ar(aONE, 4), vr(P[1], 4), ar(aL[1], 4)))
    a(mf32(ar(aO[1], 16), ar(aV[1]+4, 4), vr(P[1]+4, 4), ar(aO[1], 16)))
    a(mf16(ar(aL[1], 4), ar(aONE, 4), vr(P[1]+4, 4), ar(aL[1], 4)))
    a.stamp("attend")
    F = L()
    F(f"v_accvgpr_read_b32 v19, a{aL[0]}")
    for i in range(16): F(f"v_accvgpr_read_b32 v{S[0]+i}, a{aO[0]+i}")
    F("v_rcp_f32 v23, v19")
    F(f"v_accvgpr_read_b32 v20, a{aL[1]}")
    for i in range(16): F(f"v_mul_f32 v{S[0]+i}, v{S[0]+i}, v23")
    F += packl(S[0])
    F("v_rcp_f32 v24, v20")
    F((f"buffer_store_dwordx4 {vr(S[0], 4)}, v{vL16}, {WS}, s36 offen sc1", "oa"))
    F((f"buffer_store_dwordx4 {vr(S[0]+4, 4)}, v{vL16}, {WS}, s36 offen offset:1024 sc1", "oa"))
    for i in range(16): F(f"v_accvgpr_read_b32 v{S[1]+i}, a{aO[1]+i}")
    for i in range(16): F(f"v_mul_f32 v{S[1]+i}, v{S[1]+i}, v24")
    F += packl(S[1])
    F(f"s_mov_b32 s36, {f2u(2.0**64)}")
    F((f"buffer_store_dwordx4 {vr(S[1], 4)}, v{vL16}, {WS}, s37 offen sc1", "oa"))
    F((f"buffer_store_dwordx4 {vr(S[1]+4, 4)}, v{vL16}, {WS}, s37 offen offset:1024 sc1", "oa"))
    F("v_mov_b32 v21, 0")
    for q in range(2):
        for j in range(8): F(f"v_dot2_f32_bf16 v{19+q}, v{S[q]+j}, v21, v{19+q}")
    F("s_nop 2")
    F("v_cmp_nge_f32 s[64:65], s36, v19" if not o.get("stamp") else "v_cmp_nge_f32 s[56:57], s36, v19")
    F("v_cmp_nge_f32 vcc, s36, v20")
    F(f"s_lshl_b32 s37, s{sW}, 2")
    F(f"s_add_u32 s37, s37, {XCH}")
    F("v_mov_b32 v22, s37")
    F("s_nop 1")
    F("s_or_b64 vcc, vcc, s[64:65]" if not o.get("stamp") else "s_or_b64 vcc, vcc, s[56:57]")
    if o.get("force_fallback"): F("s_mov_b64 vcc, -1")
    F(f"s_cmp_lg_u64 vcc, 0\ns_cselect_b32 s36, 1, 0\ns_andn2_b32 s36, s36, s{sPASS}")
    F("v_mov_b32 v21, s36")
    F("ds_write_b32 v22, v21")
    F(f"v_mov_b32 v22, {XCH}")
    a.fin = F
    b = Asm()
    b("L_FALLBACK:")
    b(f"s_mov_b32 s{sPASS}, 1")
    b(f"s_mov_b32 s25, {OOB}")
    b(f"s_mov_b32 s26, {OOB}")
    b(f"v_mov_b32 v19, {NEGBIG}")
    b(f"v_mov_b32 v20, {NEGBIG}")
    b(f"s_lshl_b32 s38, s{sHP}, 19")
    b(f"s_lshl_b32 s39, s{sHH}, 14")
    b("s_add_u32 s38, s38, s39")
    b("s_mov_b32 s39, 0")
    b("L_FB:")
    b("s_and_b32 s36, s39, 3")
    b("s_lshl_b32 s36, s36, 12")
    b("s_lshr_b32 s37, s39, 2")
    b("s_lshl_b32 s37, s37, 15")
    b("s_add_u32 s36, s36, s37")
    b("s_add_u32 s36, s36, s38")
    b(f"buffer_load_dwordx4 {ar(aK, 4)}, v{vL16}, {WS}, s36 offen sc1")
    b(f"buffer_load_dwordx4 {ar(aK+4, 4)}, v{vL16}, {WS}, s36 offen offset:1024 sc1")
    b("s_waitcnt vmcnt(0)")
    for q in range(2): b(mf32(vr(S[q], 16), ar(aK, 4), vr(QA[q], 4), 0))
    for q in range(2): b(mf32(vr(S[q], 16), ar(aK+4, 4), vr(QA[q]+4, 4), vr(S[q], 16)))
    b("s_nop 11")
    for q in range(2):
        for i in range(0, 16, 2): b(f"v_max3_f32 v{19+q}, v{19+q}, v{S[q]+i}, v{S[q]+i+1}")
    b("s_add_u32 s39, s39, 1")
    b("s_cmp_lt_u32 s39, 64")
    b("s_cbranch_scc1 L_FB")
    neg_max(b)
    b(f"s_lshl_b32 s36, s{sT}, 15")
    b(f"s_add_u32 s{sKVg}, s{sKVp}, s36")
    b(f"s_addc_u32 s{sKVg+1}, s{sKVp+1}, 0")
    b(f"s_add_u32 s36, s{sOrow}, {OB_OFF}")
    b(f"s_add_u32 s{sOg}, s54, s36")
    b(f"s_addc_u32 s{sOg+1}, s55, 0")
    b("v_add_u32 v0, -16384, v0")
    b("s_barrier")
    for g in range(2):
        for k_, s in enumerate(kv_dma(0, g, "")):
            b(s[0] if isinstance(s, tuple) else s)
            if k_ == 0: b("s_nop 0")
    b("s_waitcnt vmcnt(0)")
    b("s_barrier")
    b("s_branch L_ATT0")
    a.tail.append(b.text())

def fW4(fs, i, ct, n=4, d=0): return vr(32 + i*8 + ct*4 + d, n) if fs == 0 else ar(i*8 + ct*4 + d, n)
def p4_lds(g):
    return g*32768 if g < 4 else [131072, 0, 32768, 65536][g - 4]
def p4_reads(fs, g, grp):
    out = []
    base = p4_lds(g)
    for i in range(4):
        for ct in range(2):
            off = base % 65536 + (grp*4 + i)*2048
            v = vWo_r[2*(base // 65536) + ct]
            out.append(f"ds_read_b64_tr_b16 {fW4(fs, i, ct, 2)}, v{v} offset:{off}")
            out.append(f"ds_read_b64_tr_b16 {fW4(fs, i, ct, 2, 2)}, v{v} offset:{off+1024}")
    return out
def woa_dma(g, i):
    pos = (g - 4)*8 + i
    return [[f"s_add_u32 s39, s{sWooff}, {pos*65536}", "s_and_b32 s39, s39, 0x1fffff", f"s_add_u32 m0, s{sWv}, {p4_lds(g) + i*4096}"],
            [(f"buffer_load_dwordx4 v{vWo_g}, s[{sWoA}:{sWoA+3}], s39 offen lds", f"wo{g}")]]
def oa_load(i):
    out = [(f"buffer_load_dwordx4 {oreg(i)}, v{vL16}, {WS}, s{sO} offen offset:{(i % 4)*1024} sc1", f"oa{i}")]
    if i % 4 == 3:
        out += [f"s_add_u32 s{sOoff}, s{sOoff}, 4096", f"s_and_b32 s{sOoff}, s{sOoff}, 0xffff", f"s_add_u32 s{sO}, s{sObase}, s{sOoff}"]
    return out

def phase4(a):
    o = a.opts
    flag_at = o.get("oaflag_gap", 40)
    poll_at = o.get("oapoll_gap", 84)
    chk_at = o.get("oachk_gap", 96)
    side = {}
    def put(k, l): side.setdefault(k, []).extend(l)
    F = list(a.fin)
    k = 0
    while F:
        n_ = 6 if len(F) > 5*(24 - k) - 5 else 5
        put(k, F[:n_]); F = F[n_:]; k += 1
    assert k <= 24, k
    pre = [f"s_add_u32 s{sObase}, s{sOrow}, {OA_OFF}", f"s_add_u32 s{sO}, s{sObase}, s{sOoff}", f"s_lshl_b32 s38, s{sSeq}, 7",
           f"s_lshl_b32 s47, s{sHead}, 2", "s_add_u32 s38, s38, s47", f"s_add_u32 s35, s38, {F_OA}", f"s_add_u32 s47, s29, {F_OA}",
           f"s_lshl_b32 s36, s{sT4}, 9", f"s_lshl_b32 s37, s{sW}, 7", "s_add_u32 s36, s36, s37", f"s_add_u32 s36, s36, {G_OFF}",
           (f"buffer_load_dword v{vGate}, v16, {WS}, s36 offen sc1", "gl")]
    put(24, ["ds_read_b128 v[20:23], v22"])
    for i, x in enumerate(pre): put(25 + i//2, [x])
    put(32, ["v_or_b32 v20, v20, v21", "v_or3_b32 v20, v20, v22, v23"])
    put(33, ["v_readfirstlane_b32 s38, v20"])
    put(35, ["s_cmp_lg_u32 s38, 0\ns_cbranch_scc1 L_FALLBACK"])
    assert flag_at > 35
    put(flag_at, [a.wait(["oa"])]); put(flag_at + 1, flag_store(35, 20, "fOA"))
    put(poll_at, [(f"buffer_load_dword v21, v16, {WS}, s47 offen sc1", "pOA")])
    put(130, [f"v_sub_f32 v8, 1.0, v{vGate}", f"v_and_b32 v19, 31, v{vLANE}", f"v_lshrrev_b32 v20, 5, v{vLANE}"])
    put(131, ["v_lshlrev_b32 v20, 4, v20", "v_lshl_add_u32 v19, v19, 11, v20"])
    for i in range(32): put(134 + i//2, [f"v_mul_f32 v{ACC4[0][i//16] + i%16}, v{ACC4[0][i//16] + i%16}, v8"])
    put(250, [f"s_lshl_b32 s36, s{sT4}, 18", f"s_lshl_b32 s37, s{sW}, 16"]); put(251, ["s_add_u32 s36, s36, s37", f"s_lshl_b32 s37, s{sC4}, 7"]); put(252, ["s_add_u32 s36, s36, s37"])
    a("s_waitcnt lgkmcnt(0)")
    lat = o.get("p4lat", 20)
    jobs = [[o.get("wb_at", 26), 32*2 + 23 - lat, "wb", i] for i in range(24, 32)]
    for g in range(4, 8):
        e = {4: 0, 5: 26, 6: 57, 7: 89}[g]
        jobs += [[57 if (g, i) == (4, 7) else e, 32*(g - 1) + 23 - lat, "wa", (g, i)] for i in range(8)]
    jobs += [[max(chk_at + 1, 2*i + 2), 128 + 2*i - lat, "oa", i] for i in range(64)]
    gap = o.get("p4gap", 2.0)
    t = float(o.get('wb_at', 26))
    quiet = range(poll_at - o.get("p4quiet", 4), poll_at + 1)
    while jobs:
        k = int(t)
        av = [j for j in jobs if j[0] <= k]
        if not av or k in quiet:
            t = k + 1; continue
        j = min(av, key=lambda j: j[1])
        jobs.remove(j)
        if j[2] == "wb":
            d = wob_dma(j[3], "wo3"); put(k - 1, d[0] + d[1]); put(k, d[2])
        elif j[2] == "wa":
            d = woa_dma(*j[3]); put(k - 1, d[0]); put(k, d[1])
        else:
            put(k, oa_load(j[3]))
        if k > j[1] + 8: print("p4 late", j, k)
        t += gap
    idx = 0
    for g in range(8):
        br = g // 4
        for grp in range(4):
            fs = grp & 1
            rd = p4_reads(1 - fs, g, grp + 1) if grp < 3 else (p4_reads(1 - fs, g + 1, 0) if g < 7 else [])
            for j in range(8):
                i, ct = j // 2, j % 2
                k16 = (g % 4)*16 + grp*4 + i
                if br == 1 and ct == 0:
                    n = a.vmn([f"oa{k16}"])
                    a(f"s_waitcnt vmcnt({n})")
                d = vr(ACC4[br][ct], 16)
                a(mf32(d, fW4(fs, i, ct), oreg(k16), 0 if k16 == 0 else d))
                for s in rd[3*j:3*j+3] if j < 5 else (rd[15:] if j == 5 else []): a(s)
                for s in side.pop(idx, []): a.emit(s)
                if idx == flag_at + 1: a.stamp("fOA")
                if idx == chk_at:
                    poll_check(a, "L_POA", 21, 16, 47, "pOA")
                    a.stamp("pOA")
                idx += 1
            if grp == 2 and g < 7:
                nxt = f"wo{g+1}"
                a.emit(a.wait([nxt], lgkm=True) if nxt in a.vm else "s_waitcnt lgkmcnt(0)")
                a("s_barrier")
            elif rd:
                a("s_waitcnt lgkmcnt(0)")
        if g == 3: a.stamp("p4B")
    assert not side, side.keys()
    a.stamp("p4A")
    a("s_nop 10")
    for ct in range(2):
        B_, A_ = ACC4[0][ct], ACC4[1][ct]
        for i in range(16): a(f"v_fma_f32 v{B_+i}, v{A_+i}, v{vGate}, v{B_+i}")
        pack(a, B_)
        a("s_nop 1")
        for k in (0, 2):
            a(f"v_permlane32_swap_b32 v{B_+2*k}, v{B_+2*k+2}")
            a(f"v_permlane32_swap_b32 v{B_+2*k+1}, v{B_+2*k+3}")
        for k in (0, 2):
            a.emit((f"buffer_store_dwordx4 {vr(B_+2*k, 4)}, v19, s[{sOutD}:{sOutD+3}], s36 offen offset:{ct*64 + k*16} {['', 'sc1', 'nt', 'sc0 sc1', 'sc1 nt'][o.get('outflag', 2)]}", "out"))

def gen(opts):
    a = G(opts); a.tail = []
    setup(a); gemm1(a); e1(a); attention(a); phase4(a)
    if opts.get("diag") is not None:
        a.stamp("end")
        a("s_nop 1")
        a(f"v_readlane_b32 s36, v{vSTAMP}, {32 + opts['diag']}")
        a("s_nop 3")
        a("s_add_u32 s36, s36, 10000")
        if opts.get("diagwg") is not None:
            a(f"s_cmp_lg_u32 s2, {opts['diagwg']}")
            a("s_cbranch_scc1 L_END")
        a("L_DIAG:")
        a("s_memrealtime s[38:39]")
        a("s_waitcnt lgkmcnt(0)")
        a("s_sub_u32 s38, s38, s36")
        a("s_cmp_lt_i32 s38, 0")
        a("s_cbranch_scc1 L_DIAG")
    elif opts.get("dbgstamp"):
        a.stamp("end")
        sel = ["karg", "first", "g7", "g15", "g23", "g31", "loc1", "pKV", "c1", "c9", "attend", "pOA", "p4B", "p4A", "end"]
        a(f"s_cmp_lg_u32 s2, {opts['dbgstamp']-1}")
        a("s_cbranch_scc1 L_DBGX")
        a(f"s_cmp_lg_u32 s{sW}, 0")
        a("s_cbranch_scc1 L_DBGX")
        a(f"v_readlane_b32 s36, v{vSTAMP}, 32")
        for i, nm in enumerate(sel):
            a(f"v_readlane_b32 s37, v{vSTAMP}, {32 + a.names.index(nm)}")
            a("s_nop 3")
            a("s_sub_u32 s37, s37, s36")
            a("v_mov_b32 v2, s37")
            a("v_mov_b32 v3, 0")
            a(f"global_store_dword v3, v2, s[{sPDbg}:{sPDbg+1}] offset:{4*(i+1)}")
        a("L_DBGX:")
    elif opts.get("stamp"):
        a.stamp("end")
        a("s_lshl_b32 s36, s2, 2")
        a(f"s_add_u32 s36, s36, s{sW}")
        a("s_lshl_b32 s36, s36, 8")
        a(f"s_add_u32 s36, s36, {STAMP_OFF}")
        a(f"v_lshlrev_b32 v2, 2, v{vLANE}")
        a(f"buffer_store_dword v{vSTAMP}, v2, {WS}, s36 offen")
    a("s_endpgm")
    for t in a.tail: a(t)
    head = f"""; gated mix of full MHA and dilated sliding-window attention: one fused kernel, 256 co-resident workgroups
; @launch grid=(256,1,1) block=(256,1,1) lds=163840
.amdgcn_target "amdgcn-amd-amdhsa--gfx950"
.text
.globl {KNAME}
.p2align 8
.type {KNAME},@function
{KNAME}:
"""
    tail = f"""L_END:
    s_endpgm
.section .rodata,"a"
.p2align 6
.amdhsa_kernel {KNAME}
  .amdhsa_next_free_vgpr 512
  .amdhsa_next_free_sgpr 102
  .amdhsa_accum_offset 256
  .amdhsa_group_segment_fixed_size 0
  .amdhsa_kernarg_size 80
  .amdhsa_user_sgpr_count 2
  .amdhsa_user_sgpr_kernarg_segment_ptr 1
  .amdhsa_system_sgpr_workgroup_id_x 1
.end_amdhsa_kernel
"""
    gen.names = a.names
    return head + a.text() + tail

if __name__ == "__main__":
    import hazard
    opts = {}
    for kv in sys.argv[2:]:
        k, v = kv.split("="); opts[k] = int(v)
    t = gen(opts)
    open(sys.argv[1], "w").write(t)
    print(len(hazard.check(t)), "hazards", gen.names)
```

```python
import sys, struct, math
from asmlib import *

KNAME = "gated_mix__softmax_full_mha__sliding_local_dilated__prompt_kernel"
def f2u(x): return struct.unpack("<I", struct.pack("<f", x))[0]
KV_OFF   = 0
OA_OFF   = 8 << 20
OB_OFF   = 12 << 20
HALO_OFF = 16 << 20
G_OFF    = 20 << 20
FLAG_OFF = 21 << 20
F_KV, F_H, F_OB, F_OA = FLAG_OFF, FLAG_OFF + 4096, FLAG_OFF + 8192, FLAG_OFF + 12288
STAMP_OFF = 0x8000000
OOB = 0x80000000
CSCALE = f2u(math.log2(math.e) / math.sqrt(32.0))
NEGBIG = f2u(-1e30)
X_SLOT = 16384; W_BASE = 49152; W_SLOT = 24576
KV_LDS = [98304, 131072]
sX, sWA, sWB, sWS = 4, 8, 12, 16
sW, sHP, sT, sRH, sHH = 20, 21, 22, 23, 24
sWoff, sXoff = 25, 26
sXw, sWv = 30, 34
sPF, sPFoff, sPFstr, sPFlim = 40, 44, 45, 46
sNONCE, sCS = 60, 61
sSTAMPI = 68
sPWoA, sPWoB, sPG, sPOut, sPDbg = 70, 72, 74, 76, 78
sKVsrc, sKVbase, sKVt, sKVdst = 80, 81, 82, 27
sPASS, sOst, sSpin = 83, 86, 87
sT4, sC4, sOoff, sWooff, sObase = 88, 89, 90, 91, 92
sHalo, sSeq, sO, sOrow, sHead = 93, 94, 95, 96, 97
sWoA, sWoB, sOutD = 4, 8, 12
sCode = 48
vLANE = 1
vXr = [2, 3, 4, 5]; vWr = [10, 11]; vWg = [12, 13, 14]; vXg = [15, 16, 17, 18]
vT = [19, 20, 21, 22, 23, 24, 25, 26]
vPF, vPFd, vL16, vSTAMP, vF0 = 27, 28, 29, 30, 31
vMc = 32
ACC0 = 64
def acc(blk, rt): return ACC0 + (blk*2 + rt)*16
QA = [64, 80]; KA = [96, 112]; VA = [128, 144]; QB = [160, 176]; KB = [192, 208]; VB = [224, 240]
NM = [128, 144]; S = [176, 240]; P = [72, 88]
vKV = [6, 7]
vWo_g = 2; vWo_r = [3, 4, 10, 11, 12, 13]
vGate, vGrow = 14, 8
HK = 200; HV = 232
def fX(s, rt): return s*32 + rt*4
def fW(s, blk): return s*32 + 8 + blk*4
aK, aV = 0, [8, 16]
aO = [32, 48]; aL = [64, 68]; aONE = 72
aGATE = 76
OV = list(range(96, 128, 4)) + list(range(160, 176, 4)) + list(range(192, 240, 4))
def oreg(i): return ar(76 + 4*i, 4) if i < 45 else vr(OV[i - 45], 4)
ACC4 = [[64, 80], [128, 144]]
pKA = [96, 112]; pVA = [104, 120]; pQB = [160, 168]; pKB = [192, 208]; pVB = [224, 216]

def mf32(d, A, B, C): return f"v_mfma_f32_32x32x16_bf16 {d}, {A}, {B}, {C}"
def mf16(d, A, B, C): return f"v_mfma_f32_16x16x32_bf16 {d}, {A}, {B}, {C}"
WS = f"s[{sWS}:{sWS+3}]"

class G(Asm):
    def __init__(self, opts):
        super().__init__()
        self.opts = opts
        self.vm = []
        self.nstamp = 0
        self.names = []
    def emit(self, x):
        if callable(x): x = x()
        if x is None: return
        if isinstance(x, tuple):
            self(x[0]); self.vm.append(x[1])
        else:
            assert not (x.lstrip().startswith(("buffer_", "global_"))), x
            self(x)
    def vmn(self, tags):
        idx = [i for i, t in enumerate(self.vm) if t in tags]
        assert idx, tags
        n = len(self.vm) - 1 - max(idx)
        return min(n, 63)
    def wait(self, tags, lgkm=False):
        return lambda: f"s_waitcnt vmcnt({self.vmn(tags)})" + (" lgkmcnt(0)" if lgkm else "")
    def stamp(self, name):
        if not self.opts.get("stamp"): return
        self.names.append(name)
        a = self
        a("s_memtime s[66:67]")
        a("s_memrealtime s[64:65]")
        a("s_waitcnt lgkmcnt(0)")
        a(f"v_writelane_b32 v{vSTAMP}, s66, {self.nstamp}")
        a(f"v_writelane_b32 v{vSTAMP}, s64, {self.nstamp + 32}")
        self.nstamp += 1
        assert self.nstamp <= 32
    def inter(self, mains, sides):
        for i, m in enumerate(mains):
            if m is not None: self.emit(m)
            for s in sides.get(i, []): self.emit(s)

def srd(a, s, lo, hi, nbytes):
    a(f"s_mov_b32 s{s}, s{lo}")
    a(f"s_and_b32 s{s+1}, s{hi}, 0xffff")
    a(f"s_mov_b32 s{s+2}, {nbytes}")
    a(f"s_mov_b32 s{s+3}, 0x20000")

def pf_round(a):
    return [(f"buffer_load_dword v{vPFd}, v{vPF}, s[{sPF}:{sPF+3}], s{sPFoff} offen{' nt' if a.opts.get('pfnt') else ''}", "pf"),
            f"s_add_u32 s{sPFoff}, s{sPFoff}, s{sPFstr}"]

class P1:
    def __init__(self, a):
        self.a = a; self.woff = None; self.xoff = None
    def dma(self, piece):
        kind, j, p = piece
        pre = []
        if kind == "W":
            if self.woff != j:
                pre.append(f"s_mov_b32 s{sWoff}, {j*196608}"); self.woff = j
            s = sWA if p < 3 else sWB
            pre.append(f"s_add_u32 m0, s{sWv}, {W_BASE + (j % 4)*W_SLOT + p*4096}")
            return pre, (f"buffer_load_dwordx4 v{vWg[p % 3]}, s[{s}:{s+3}], s{sWoff} offen{' nt' if self.a.opts.get('dmant') else ''} lds", f"W{j}")
        if self.xoff != j:
            pre.append(f"s_mov_b32 s{sXoff}, {j*128}"); self.xoff = j
        pre.append(f"s_add_u32 m0, s{sXw}, {(j % 3)*X_SLOT + p*1024}")
        return pre, (f"buffer_load_dwordx4 v{vXg[p]}, s[{sX}:{sX+3}], s{sXoff} offen{' nt' if self.a.opts.get('dmant') else ''} lds", f"X{j}")

def frag_reads(fs, u, k16):
    kk = 2*(u & 1) + k16
    out = [f"ds_read_b128 {ar(fX(fs, rt), 4)}, v{vXr[kk]} offset:{((u >> 1) % 3)*X_SLOT + rt*4096}" for rt in range(2)]
    ws = u % 4
    for blk in range(6):
        off = (ws % 2)*W_SLOT + blk*4096 + k16*2048
        out.append(f"ds_read_b64_tr_b16 {ar(fW(fs, blk), 2)}, v{vWr[ws//2]} offset:{off}")
        out.append(f"ds_read_b64_tr_b16 {ar(fW(fs, blk)+2, 2)}, v{vWr[ws//2]} offset:{off+512}")
    return out

def g1_mfma(fs, blk, rt):
    d = vr(acc(blk, rt), 16)
    w, x = ar(fW(fs, blk), 4), ar(fX(fs, rt), 4)
    return mf32(d, x, w, d) if blk % 3 == 2 else mf32(d, w, x, d)

def setup(a):
    o = a.opts
    a("L_START:")
    a("s_cmp_ge_u32 s2, 256")
    a("s_cbranch_scc1 L_END")
    a.stamp("start")
    a("s_load_dwordx4 s[48:51], s[0:1], 0")
    a("s_load_dwordx2 s[52:53], s[0:1], 32")
    a("s_load_dwordx2 s[54:55], s[0:1], 72")
    a(f"s_load_dwordx2 s[{sPWoA}:{sPWoA+1}], s[0:1], 16")
    a(f"s_load_dwordx4 s[{sPWoB}:{sPWoB+3}], s[0:1], 40")
    a(f"s_load_dwordx4 s[{sPOut}:{sPOut+3}], s[0:1], 56")
    a(f"v_and_b32 v{vLANE}, 63, v0")
    a(f"v_lshrrev_b32 v{vT[0]}, 6, v0")
    a("s_and_b32 s3, s2, 7")
    a(f"v_readfirstlane_b32 s{sW}, v{vT[0]}")
    a("s_lshr_b32 s35, s2, 3")
    a("s_and_b32 s37, s3, 3")
    a("s_lshl_b32 s36, s37, 2")
    a("s_and_b32 s38, s35, 3")
    a(f"s_add_u32 s{sHP}, s36, s38")
    a("s_lshr_b32 s39, s3, 2")
    a("s_lshl_b32 s36, s39, 3")
    a("s_lshr_b32 s38, s35, 2")
    a(f"s_add_u32 s{sT}, s36, s38")
    a(f"s_and_b32 s{sRH}, s{sW}, 1")
    a(f"s_lshr_b32 s{sHH}, s{sW}, 1")
    t0, t1, t2 = vT[0], vT[1], vT[2]
    if o.get("pfx"):
        a("s_lshl_b32 s38, s35, 5")
    else:
        a("s_lshl_b32 s38, s37, 5")
        a("s_add_u32 s38, s38, s35")
        a("s_lshl_b32 s38, s38, 3")
    a("s_lshl_b32 s47, s39, 10")
    a("s_add_u32 s38, s38, s47")
    a(f"v_add_u32 v{t0}, s38, v{vLANE}")
    a(f"v_lshlrev_b32 v{t0}, 11, v{t0}")
    if o.get("pfmode", 0) == 0:
        a("s_lshl_b32 s39, s39, 5")
        a("s_add_u32 s39, s39, s35")
        a("s_mul_i32 s39, s39, 6144")
        a("s_lshl_b32 s38, s37, 9")
        a("s_add_u32 s39, s39, s38")
        a(f"v_lshrrev_b32 v{t1}, 2, v{vLANE}")
        a(f"v_lshlrev_b32 v{t1}, 11, v{t1}")
        a(f"v_and_b32 v{t2}, 3, v{vLANE}")
        a(f"v_lshlrev_b32 v{t2}, 7, v{t2}")
        a(f"v_add3_u32 v{t1}, v{t1}, v{t2}, s39")
        if o.get("pf3"):
            a("s_lshr_b32 s47, s3, 2")
            a("s_xor_b32 s47, s47, 1")
            a("s_lshl_b32 s47, s47, 5")
            a("s_add_u32 s47, s47, s35")
            a("s_mul_i32 s47, s47, 6144")
            a("s_add_u32 s47, s47, s38")
            a(f"s_add_u32 s47, s47, {384 - 12*2048}")
            a(f"v_lshlrev_b32 v{t2}, 11, v{vLANE}")
            a(f"v_add_u32 v{t2}, s47, v{t2}")
            a(f"v_cmp_lt_u32 vcc, 11, v{vLANE}")
            a("s_nop 1")
            a(f"v_cndmask_b32 v{t1}, v{t1}, v{t2}, vcc")
    elif o.get("pfmode", 0) == 2:
        a("s_mul_i32 s39, s35, 12288")
        a("s_lshl_b32 s38, s37, 9")
        a("s_add_u32 s39, s39, s38")
        a(f"v_lshrrev_b32 v{t1}, 2, v{vLANE}")
        a(f"v_lshlrev_b32 v{t1}, 11, v{t1}")
        a(f"v_and_b32 v{t2}, 3, v{vLANE}")
        a(f"v_lshlrev_b32 v{t2}, 7, v{t2}")
        a(f"v_add3_u32 v{t1}, v{t1}, v{t2}, s39")
    else:
        a("s_mul_i32 s39, s2, 1536")
        a(f"v_lshlrev_b32 v{t1}, 7, v{vLANE}")
        a(f"v_add_u32 v{t1}, s39, v{t1}")
    a(f"s_mul_i32 s47, s35, {o.get('codelines', 20)}")
    a(f"v_add_u32 v{t2}, s47, v{vLANE}")
    a(f"v_lshlrev_b32 v{vT[7]}, 7, v{t2}")
    a(f"s_mov_b32 s{sPFstr}, 128")
    a(f"s_cmp_eq_u32 s{sW}, 0")
    a(f"s_cselect_b32 s{sPFstr}, s{sPFstr}, {64*6144}")
    a(f"s_cselect_b32 s38, {32 if o.get('pfx') else 8}, {24 if o.get('pfmode', 0) == 2 else (15 if o.get('pf3') else 12)}")
    a("s_cselect_b64 s[56:57], -1, 0")
    a(f"v_cndmask_b32 v{vPF}, v{t1}, v{t0}, s[56:57]")
    a(f"s_cmp_eq_u32 s{sW}, 3")
    a("s_cselect_b64 s[56:57], -1, 0")
    a(f"v_cndmask_b32 v{vPF}, v{vPF}, v{vT[7]}, s[56:57]")
    a(f"s_cselect_b32 s38, {o.get('codelines', 20)}, s38")
    a(f"s_cselect_b32 s{sPFstr}, 0x4000000, s{sPFstr}")
    a(f"v_cmp_gt_u32 vcc, s38, v{vLANE}")
    a(f"v_mov_b32 v{t2}, {OOB}")
    a(f"s_mov_b32 s{sPFoff}, 0")
    a(f"v_cndmask_b32 v{vPF}, v{t2}, v{vPF}, vcc")
    a(f"v_cmp_gt_u32 vcc, {o.get('codelines', 20)}, v{vLANE}")
    a("s_getpc_b64 s[58:59]")
    a("L_PC:")
    a("s_sub_u32 s58, s58, L_PC - L_START")
    a(f"v_cndmask_b32 v{vT[7]}, v{t2}, v{vT[7]}, vcc")
    a("s_subb_u32 s59, s59, 0")
    r, c, t0, t1 = vT[0], vT[1], vT[2], vT[3]
    a(f"v_lshrrev_b32 v{r}, 3, v{vLANE}")
    a(f"v_and_b32 v{c}, 7, v{vLANE}")
    a(f"v_lshlrev_b32 v{t0}, 1, v{r}")
    a(f"v_and_b32 v{t0}, 4, v{t0}")
    a(f"v_xor_b32 v{t0}, v{t0}, v{c}")
    a(f"v_lshlrev_b32 v{t0}, 4, v{t0}")
    a(f"v_mul_u32_u24 v{t1}, 6144, v{r}")
    a(f"v_add_u32 v{t0}, v{t0}, v{t1}")
    a(f"s_mul_i32 s36, s{sW}, {8*6144}")
    a(f"s_lshl_b32 s37, s{sHP}, 7")
    a("s_add_u32 s36, s36, s37")
    a(f"v_add_u32 v{vWg[0]}, s36, v{t0}")
    a(f"v_add_u32 v{vWg[1]}, 2048, v{vWg[0]}")
    a(f"v_add_u32 v{vWg[2]}, 4096, v{vWg[0]}")
    a(f"v_lshrrev_b32 v{t0}, 1, v{r}")
    a(f"v_xor_b32 v{t0}, v{t0}, v{c}")
    a(f"v_lshlrev_b32 v{t0}, 4, v{t0}")
    a(f"v_lshlrev_b32 v{t1}, 11, v{r}")
    a(f"v_add_u32 v{t0}, v{t0}, v{t1}")
    a(f"s_lshl_b32 s36, s{sT}, 7")
    a(f"s_lshl_b32 s37, s{sW}, 5")
    a("s_add_u32 s36, s36, s37")
    a("s_lshl_b32 s36, s36, 11")
    a(f"v_add_u32 v{vXg[0]}, s36, v{t0}")
    a(f"v_xor_b32 v{vXg[1]}, 64, v{vXg[0]}")
    a(f"v_add_u32 v{vXg[1]}, {8*2048}, v{vXg[1]}")
    a(f"v_add_u32 v{vXg[2]}, {16*2048}, v{vXg[0]}")
    a(f"v_add_u32 v{vXg[3]}, {16*2048}, v{vXg[1]}")
    a(f"s_lshl_b32 s{sWv}, s{sW}, 10")
    a(f"s_lshl_b32 s{sXw}, s{sW}, 12")
    a("s_waitcnt lgkmcnt(0)")
    a.stamp("karg")
    a(f"s_mov_b32 s{sPF+2}, {1024*3072*2}")
    a(f"s_cmp_eq_u32 s{sW}, 0")
    a(f"s_cselect_b32 s{sPF}, s48, s50")
    a(f"s_cselect_b32 s{sPF+1}, s49, s51")
    a(f"s_cselect_b32 s{sPF+2}, {2048*1024*2}, s{sPF+2}")
    a(f"s_cmp_eq_u32 s{sW}, 2")
    a(f"s_cselect_b32 s{sPF}, s52, s{sPF}")
    a(f"s_cselect_b32 s{sPF+1}, s53, s{sPF+1}")
    a(f"s_cmp_eq_u32 s{sW}, 3")
    a(f"s_cselect_b32 s{sPF}, s58, s{sPF}")
    a(f"s_cselect_b32 s{sPF+1}, s59, s{sPF+1}")
    a(f"s_cselect_b32 s{sPF+2}, L_END - L_START, s{sPF+2}")
    a(f"s_and_b32 s{sPF+1}, s{sPF+1}, 0xffff")
    a(f"s_mov_b32 s{sPF+3}, 0x20000")
    for i in range(o.get("pf0", 2)):
        for s in pf_round(a): a.emit(s)
    srd(a, sX, 48, 49, 2048*1024*2)
    srd(a, sWA, 50, 51, 1024*3072*2)
    srd(a, sWB, 52, 53, 1024*3072*2)

def fillers_prologue(a):
    L = []
    f = L.append
    f("s_mov_b32 s16, s54"); f("s_and_b32 s17, s55, 0xffff"); f("s_mov_b32 s18, 0x10000000"); f("s_mov_b32 s19, 0x20000")
    f(f"s_mov_b32 s{sCode}, s58"); f(f"s_and_b32 s{sCode+1}, s59, 0xffff"); f(f"s_mov_b32 s{sCode+2}, L_END - L_START"); f(f"s_mov_b32 s{sCode+3}, 0x20000")
    m, h, t0, t1, row = vT[0], vT[1], vT[2], vT[3], vT[4]
    f(f"v_and_b32 v{m}, 31, v{vLANE}")
    f(f"v_lshrrev_b32 v{h}, 5, v{vLANE}")
    f(f"v_lshrrev_b32 v{t0}, 1, v{m}")
    f(f"v_and_b32 v{t0}, 7, v{t0}")
    f(f"v_xor_b32 v{t0}, v{t0}, v{h}")
    f(f"v_lshlrev_b32 v{t0}, 4, v{t0}")
    f(f"v_lshlrev_b32 v{t1}, 7, v{m}")
    f(f"v_add_u32 v{t0}, v{t0}, v{t1}")
    f(f"s_lshl_b32 s36, s{sRH}, 13")
    f(f"v_add_u32 v{vXr[0]}, s36, v{t0}")
    for kk in range(1, 4):
        f(f"v_xor_b32 v{vXr[kk]}, {kk*32}, v{vXr[0]}")
    f(f"v_and_b32 v{m}, 15, v{vLANE}")
    f(f"v_lshrrev_b32 v{t0}, 2, v{m}")
    f(f"v_lshlrev_b32 v{t1}, 3, v{h}")
    f(f"v_add_u32 v{row}, v{t0}, v{t1}")
    f(f"v_lshrrev_b32 v{t0}, 1, v{row}")
    f(f"v_and_b32 v{t0}, 1, v{t0}")
    f(f"v_xor_b32 v{t0}, s{sHH}, v{t0}")
    f(f"v_lshlrev_b32 v{t0}, 6, v{t0}")
    f(f"v_lshlrev_b32 v{t1}, 7, v{row}")
    f(f"v_add_u32 v{t0}, v{t0}, v{t1}")
    f(f"v_and_b32 v{t1}, 16, v{vLANE}")
    f(f"v_lshlrev_b32 v{t1}, 1, v{t1}")
    f(f"v_add_u32 v{t0}, v{t0}, v{t1}")
    f(f"v_and_b32 v{t1}, 3, v{m}")
    f(f"v_lshlrev_b32 v{t1}, 3, v{t1}")
    f(f"v_add_u32 v{t0}, v{t0}, v{t1}")
    f(f"v_add_u32 v{vWr[0]}, {W_BASE}, v{t0}")
    f(f"v_add_u32 v{vWr[1]}, {W_BASE + 2*W_SLOT}, v{t0}")
    for r in range(ACC0, 256):
        f(f"v_mov_b32 v{r}, 0")
    return L

def fillers_late(a):
    L = []
    f = L.append
    q, b, t = vT[0], vT[1], vT[2]
    f(f"v_lshlrev_b32 v{vL16}, 4, v{vLANE}")
    f(f"v_and_b32 v{q}, 31, v{vLANE}")
    f(f"v_lshrrev_b32 v{b}, 5, v{vLANE}")
    f(f"v_lshlrev_b32 v{b}, 2, v{b}")
    f(f"v_sub_u32 v{b}, v{q}, v{b}")
    f(f"s_mov_b32 s36, {NEGBIG}")
    for i in range(24):
        r, add = (i, 0) if i < 16 else (i - 8, 32)
        d = vMc + i
        kv = 8*(r >> 2) + (r & 3)
        f(f"v_add_u32 v{d}, {add - kv}, v{b}")
        f(f"v_and_b32 v{d}, 0xfffffff1, v{d}")
        f(f"v_min_u32 v{d}, 1, v{d}")
        f(f"v_sub_u32 v{d}, 0, v{d}")
        f(f"v_and_b32 v{d}, s36, v{d}")
    f(f"v_lshrrev_b32 v{q}, 2, v{vLANE}")
    f(f"v_lshrrev_b32 v{t}, 4, v{vLANE}")
    f(f"v_xor_b32 v{q}, v{q}, v{t}")
    f(f"v_and_b32 v{q}, 1, v{q}")
    f(f"v_add_u32 v{q}, -1, v{q}")
    f(f"v_and_b32 v{q}, 0x3f803f80, v{q}")
    for i in range(4):
        f(f"v_accvgpr_write_b32 a{aONE+i}, v{q}")
    f(f"v_min_u32 v{vF0}, 1, v{vLANE}")
    f(f"v_lshlrev_b32 v{vF0}, 31, v{vF0}")
    f(f"s_mov_b32 s{sCS}, {CSCALE}"); f(f"s_mov_b32 s62, {CSCALE}"); f(f"s_mov_b32 s63, {CSCALE}")
    f(f"s_lshl_b32 s36, s{sHP}, 19")
    f(f"s_lshl_b32 s37, s{sW}, 13")
    f(f"s_lshl_b32 s38, s{sHH}, 14")
    f(f"s_lshl_b32 s39, s{sRH}, 13")
    f(f"s_add_u32 s{sKVdst}, s38, s39")
    f(f"s_add_u32 s{sKVbase}, s36, s{sKVdst}")
    f(f"s_lshl_b32 s{sKVt}, s{sT}, 15")
    f(f"s_add_u32 s{sKVsrc}, s{sKVbase}, s{sKVt}")
    f(f"s_and_b32 s{sKVt}, s{sT}, 7"); f(f"s_and_b32 s{sKVb}, s{sT}, 8")
    f(f"s_add_u32 s36, s38, {KV_LDS[0]}")
    f(f"v_add_u32 v{vKV[0]}, s36, v{vL16}")
    f(f"v_add_u32 v{vKV[1]}, 32768, v{vKV[0]}")
    f(f"s_lshl_b32 s{sHead}, s{sHP}, 1")
    f(f"s_add_u32 s{sHead}, s{sHead}, s{sHH}")
    f(f"s_lshl_b32 s{sSeq}, s{sT}, 1")
    f(f"s_add_u32 s{sSeq}, s{sSeq}, s{sRH}")
    f(f"s_lshl_b32 s37, s{sSeq}, 6")
    f(f"s_add_u32 s37, s37, s{sHead}")
    f(f"s_lshl_b32 s{sOst}, s37, 11")
    f(f"s_lshl_b32 s38, s{sHead}, 5")
    f(f"s_add_u32 s38, s38, s{sSeq}")
    f(f"s_lshl_b32 s28, s38, 2")
    f(f"s_lshl_b32 s38, s38, 12")
    f(f"s_add_u32 s{sHalo}, s38, {HALO_OFF}")
    f(f"s_mov_b32 s{sPASS}, 0")
    f(f"s_add_u32 s{sKVp}, s54, s{sKVbase}\ns_addc_u32 s{sKVp+1}, s55, 0")
    f(f"s_cmp_lt_u32 s{sW}, 2\ns_cselect_b32 s{sPFW}, s{sPWoA}, s{sPWoB}\ns_cselect_b32 s{sPFW+1}, s{sPWoA+1}, s{sPWoB+1}")
    f(f"s_lshl_b32 s36, s2, 1"); f(f"s_add_u32 s36, s36, s{sRH}"); f("s_lshl_b32 s36, s36, 12")
    f(f"v_and_b32 v24, 7, v{vLANE}"); f("v_lshlrev_b32 v24, 7, v24"); f("v_add_u32 v23, s36, v24")
    f(f"v_and_b32 v24, 15, v{vLANE}"); f("v_lshlrev_b32 v24, 7, v24")
    f("s_lshr_b32 s36, s2, 3"); f("s_lshl_b32 s36, s36, 2"); f(f"s_add_u32 s36, s36, s{sW}"); f("s_lshl_b32 s36, s36, 14")
    f("v_add_u32 v0, s36, v24")
    f(f"s_lshl_b32 s36, s{sSeq}, 6")
    f(f"s_lshl_b32 s37, s{sHead}, 1")
    f("s_add_u32 s36, s36, s37")
    f(f"v_lshrrev_b32 v9, 5, v{vLANE}")
    f(f"v_add_u32 v{vGrow}, s36, v9")
    f(f"v_and_b32 v25, 31, v{vLANE}")
    f("v_lshlrev_b32 v25, 4, v25")
    f(f"v_lshl_add_u32 v9, v{vGrow}, 11, v25")
    f(f"s_mov_b32 s56, s{sPG}"); f(f"s_and_b32 s57, s{sPG+1}, 0xffff"); f("s_mov_b32 s58, 2048"); f("s_mov_b32 s59, 0x20000")
    f(f"s_lshl_b32 s38, s{sHP}, 2"); f(f"s_add_u32 s38, s38, s{sW}"); f("s_lshl_b32 s38, s38, 6")
    f(f"s_add_u32 s31, s38, {F_KV}"); f(f"s_lshl_b32 s38, s{sT}, 2"); f("s_add_u32 s32, s31, s38")
    f(f"s_add_u32 s33, s28, {F_H - 4}"); f(f"s_cmp_eq_u32 s{sSeq}, 0\ns_cselect_b32 s38, 4, 0"); f("s_add_u32 s33, s33, s38")
    return L

READ_GAPS = [0,0,1,1,2,2,3,3,4,5,6,7,8,9]
def gemm1(a):
    o = a.opts
    p1 = P1(a)
    W = lambda j, ps: [("W", j, p) for p in ps]
    X = lambda v, ps: [("X", v, p) for p in ps]
    pro = X(0, range(4)) + W(0, range(6)) + W(1, range(6))
    sched = {(0,0): X(1, range(4)) + W(2, [0,1]), (0,1): W(2, [2,3,4,5]) + W(3, [0,1]),
             (1,0): W(3, [2,3,4,5]) + W(4, [0,1]), (1,1): X(2, range(4)) + W(4, [2,3]),
             (2,0): W(4, [4,5]) + W(5, [0,1,2,3]), (2,1): W(5, [4,5]) + X(3, range(4)),
             (3,0): W(6, range(6))}
    for u in range(3, 28):
        v, p0 = ((u + 5)//2, 0) if u & 1 else ((u + 4)//2, 2)
        sched[(u, 1)] = W(u + 4, [0,1,2]) + (X(v, [p0]) if v < 16 else [])
        sched[(u + 1, 0)] = W(u + 4, [3,4,5]) + (X(v, [p0 + 1]) if v < 16 else [])
    for (u, hf), ps in sched.items():
        done = u - 1 if hf == 0 else u
        for k, j, p in ps:
            if k == "W": assert j < 4 or done >= j - 4, (u, hf, k, j)
            else: assert j < 3 or done >= 2*(j - 3) + 1, (u, hf, k, j)
    npf0 = o.get("pf0", 2)
    pfs = {}
    r = npf0
    for u in range(0, 32):
        while r < 16 and u >= max(0, 2*r - o.get("pfd", 8)) and pfs.get(u, 0) < 1:
            pfs[u] = pfs.get(u, 0) + 1; r += 1
    fil = fillers_prologue(a)
    per = (len(fil) + len(pro) - 1)//len(pro)
    for i, pc in enumerate(pro):
        pre, d = p1.dma(pc)
        for s in pre: a(s)
        chunk = fil[i*per:(i+1)*per]
        a(chunk[0] if chunk else "s_nop 0")
        a.emit(d)
        for s in chunk[1:]: a(s)
    a(f"s_or_b32 s36, s2, s{sW}")
    a("s_cmp_lg_u32 s36, 0")
    a("s_cbranch_scc1 L_NONONCE")
    a("s_memrealtime s[36:37]")
    a("v_mov_b32 v20, 0")
    a("s_waitcnt lgkmcnt(0)")
    a("s_or_b32 s36, s36, 1")
    a("v_mov_b32 v19, s36")
    a(f"global_store_dword v20, v19, s[{sPDbg}:{sPDbg+1}] sc1")
    a("L_NONONCE:")
    a.stamp("issued")
    a.emit(a.wait(["X0", "W0"]))
    a("s_barrier")
    a.stamp("first")
    for s in frag_reads(0, 0, 0): a(s)
    a("s_waitcnt lgkmcnt(0)")
    late = fillers_late(a)
    order = [(b, rt) for b in range(6) for rt in range(2)]
    for u in range(32):
        for hf in range(2):
            last = (u == 31 and hf == 1)
            reads = [] if last else (frag_reads(1, u, 1) if hf == 0 else frag_reads(0, u + 1, 0))
            sides = {}
            for g, rd in zip(READ_GAPS, reads): sides.setdefault(g, []).append(rd)
            ps = sched.get((u, hf), [])
            gaps = {4: [(1,2),(4,5),(7,8),(9,10)], 6: [(0,1),(2,3),(4,5),(6,7),(8,9),(10,11)]}
            gp = gaps[6] if len(ps) > 4 else gaps[4]
            for (g0, g1), pc in zip(gp, ps):
                pre, d = p1.dma(pc)
                sides.setdefault(g0, []).extend(pre)
                sides.setdefault(g1, []).insert(0, d)
            if hf == 0 and pfs.get(u):
                sides.setdefault(11, []).extend(pf_round(a))
            if u >= 6 and late and not last:
                for g in (5, 6, 8, 10):
                    for k in range(2):
                        if late: sides.setdefault(g, []).append(late.pop(0))
            if u == 28 and hf == 1:
                sides.setdefault(5, []).append((f"buffer_load_dword v{vPFd}, v{vT[7]}, s[{sCode}:{sCode+3}], 0 offen", "cpf"))
            w0 = o.get("wopf_step", 99)
            if u in (w0, w0 + 2, w0 + 4, w0 + 6) and hf == 0:
                sides.setdefault(11, []).append((f"global_load_dword v{vPFd}, v23, s[{sPFW}:{sPFW+1}] offset:{(u - w0)//2*1024}", "wopf"))
            if u in (28, 29) and hf == 1 or u in (29, 30) and hf == 0:
                j0 = 2*((u - 28)*2 + hf - 1)
                for j, g_ in ((j0, 3), (j0 + 1, 8)):
                    ins = (f"buffer_load_dwordx4 {ar(aGATE+4*j, 4)}, v9, s[{sX}:{sX+3}], 0 offen offset:{512*j}" if j < 4 else
                           f"buffer_load_dwordx4 {ar(aGATE+4*j, 4)}, v25, s[56:59], 0 offen offset:{512*(j-4)}")
                    sides.setdefault(g_, []).append((ins, "gate"))
            if u == 30 and hf == 1:
                sides.setdefault(5, []).append("v_mov_b32 v19, 0")
                sides.setdefault(7, []).append((f"global_load_dword v21, v19, s[{sPDbg}:{sPDbg+1}] sc1", "nonce"))
            od = order
            if last:
                od = [(4,1),(5,1),(1,0),(2,0),(1,1),(2,1),(3,1),(4,0),(5,0),(3,0),(0,0),(0,1)]
                e1_head(a, sides)
            a.inter([g1_mfma(hf, b, rt) for b, rt in od], sides)
            if hf == 0:
                if u < 31:
                    need = [f"W{u+1}"] + ([f"X{(u+1)//2}"] if (u + 1) % 2 == 0 else [])
                    a.emit(a.wait(need, lgkm=True))
                else:
                    a("s_waitcnt lgkmcnt(0)")
                a("s_barrier")
            elif not last:
                a("s_waitcnt lgkmcnt(0)")
        if u % 8 == 7: a.stamp(f"g{u}")
    assert not late

def packl(base, out=None):
    out = base if out is None else out
    return [f"v_cvt_pk_bf16_f32 v{out+j}, v{base+2*j}, v{base+2*j+1}" for j in range(8)]
def pack(a, base, out=None):
    for s in packl(base, out): a(s)
class L(list):
    def __call__(self, s): self.append(s)
    def emit(self, s): self.append(s)
def weave(a, work, extra, first, every):
    nxt = first
    for i, w in enumerate(work):
        while extra and i >= nxt:
            for s in extra.pop(0): a.emit(s)
            nxt += every
        a.emit(w)

def padfill(a, fill, n):
    k = 0
    for f in fill:
        a.emit(f); k += len(f.split("\n")) if isinstance(f, str) else 1
    if k < n: a(f"s_nop {n - k - 1}")

def local_tile(a, Q, Kc, Vc, Kp, Vp1, SC, SP, O, PC, PP, tmp, off, tag, fill1=(), fill2=()):
    m, t = tmp, tmp + 1
    a(mf32(vr(SC, 16), vr(Kc, 4), vr(Q, 4), vr(vMc, 16)))
    a(mf32(vr(SC, 16), vr(Kc+4, 4), vr(Q+4, 4), vr(SC, 16)))
    a(mf32(vr(SP, 16), vr(Kp, 4), vr(Q, 4), vr(vMc + 8, 16)))
    a(mf32(vr(SP, 16), vr(Kp+4, 4), vr(Q+4, 4), vr(SP, 16)))
    padfill(a, fill1, 10)
    vals = [SC + i for i in range(16)] + [SP + 8 + i for i in range(8)]
    a(f"v_max3_f32 v{m}, v{vals[0]}, v{vals[1]}, v{vals[2]}")
    for i in range(3, 23, 2):
        a(f"v_max3_f32 v{m}, v{m}, v{vals[i]}, v{vals[i+1]}")
    a(f"v_max_f32 v{m}, v{m}, v{vals[23]}")
    a(f"v_mov_b32 v{t}, v{m}")
    a("s_nop 1")
    a(f"v_permlane32_swap_b32 v{m}, v{t}")
    a(f"v_max_f32 v{m}, v{m}, v{t}")
    a(f"v_mul_f32 v{m}, s{sCS}, v{m}")
    for v in vals:
        a(f"v_fma_f32 v{v}, v{v}, s{sCS}, -v{m}")
    L = SP
    for i in range(10): a(f"v_exp_f32 v{vals[i]}, v{vals[i]}")
    for j in range(4): a(f"v_cvt_pk_bf16_f32 v{PC+j}, v{SC+2*j}, v{SC+2*j+1}")
    for i in range(10, 13): a(f"v_exp_f32 v{vals[i]}, v{vals[i]}")
    a(mf32(vr(O, 16), vr(Vc, 4), vr(PC, 4), 0))
    for i in range(13, 18): a(f"v_exp_f32 v{vals[i]}, v{vals[i]}")
    a(mf16(vr(L, 4), ar(aONE, 4), vr(PC, 4), 0))
    for j in range(4, 8): a(f"v_cvt_pk_bf16_f32 v{PC+j}, v{SC+2*j}, v{SC+2*j+1}")
    for i in range(18, 20): a(f"v_exp_f32 v{vals[i]}, v{vals[i]}")
    a(mf32(vr(O, 16), vr(Vc+4, 4), vr(PC+4, 4), vr(O, 16)))
    for i in range(20, 24): a(f"v_exp_f32 v{vals[i]}, v{vals[i]}")
    a(mf16(vr(L, 4), ar(aONE, 4), vr(PC+4, 4), vr(L, 4)))
    for j in range(4): a(f"v_cvt_pk_bf16_f32 v{PP+j}, v{SP+8+2*j}, v{SP+9+2*j}")
    a("s_nop 1")
    a(mf16(vr(L, 4), ar(aONE, 4), vr(PP, 4), vr(L, 4)))
    a(mf32(vr(O, 16), vr(Vp1, 4), vr(PP, 4), vr(O, 16)))
    padfill(a, fill2, 7)
    a(f"v_rcp_f32 v{m}, v{L}")
    a(f"s_add_u32 s35, s{sOst}, {OB_OFF + off}")
    a("s_nop 2")
    for i in range(16):
        a(f"v_mul_f32 v{O+i}, v{O+i}, v{m}")
    return [(f"buffer_store_dwordx4 {{0}}, v{vL16}, {WS}, s35 offen sc1", tag),
            (f"buffer_store_dwordx4 {{0}}, v{vL16}, {WS}, s35 offen offset:1024 sc1", tag)]

def flag_store(sreg, vtmp, tag):
    return [f"v_mov_b32 v{vtmp}, s{sNONCE}", (f"buffer_store_dword v{vtmp}, v{vF0}, {WS}, s{sreg} offen sc1", tag)]

def poll_check(a, name, vdst, vaddr, sreg, tag, mask=-1):
    a.emit(a.wait([tag]))
    a(f"v_cmp_ne_u32 vcc, s{sNONCE}, v{vdst}")
    a("s_nop 3")
    a(f"s_and_b32 s{sSpin}, vcc_lo, {mask}")
    a(f"s_cbranch_scc1 {name}_S")
    a(f"{name}_R:")
    a.tail.append(f"""{name}_S:
    s_mov_b32 s{sSpin}, 0
{name}_L:
    buffer_load_dword v{vdst}, v{vaddr}, {WS}, s{sreg} offen sc1
    s_add_u32 s{sSpin}, s{sSpin}, 1
    s_waitcnt vmcnt(0)
    v_cmp_ne_u32 vcc, s{sNONCE}, v{vdst}
    s_cmp_lt_u32 s{sSpin}, 0x40000
    s_cbranch_scc0 {name}_R
    s_nop 2
    s_and_b32 vcc_hi, vcc_lo, {mask}
    s_cbranch_scc1 {name}_L
    s_branch {name}_R""")

def e1_head(a, sides):
    a.halo = [(f"buffer_store_dwordx4 {vr(pKB[1], 4)}, v{vL16}, {WS}, s{sHalo} offen sc1", "halo"),
              (f"buffer_store_dwordx4 {vr(pKB[1]+4, 4)}, v{vL16}, {WS}, s{sHalo} offen offset:1024 sc1", "halo"),
              (f"buffer_store_dwordx4 {vr(pVB[1]+4, 4)}, v{vL16}, {WS}, s{sHalo} offen offset:2048 sc1", "halo")]
    a.kv = []; a.dsw = []
    for rt in range(2):
        for (blk, f0) in ((pKA[rt], 0), (pVA[rt], 2)):
            for f in range(2):
                off = (f0 + f)*1024
                a.kv.append([(f"buffer_store_dwordx4 {vr(blk+4*f, 4)}, v{vL16}, {WS}, s{26 if rt == 0 else 25} offen offset:{off} sc1", "kv")])
                a.dsw.append([f"ds_write_b128 v22, {vr(blk+4*f, 4)} offset:{rt*4096 + off}"])
    sides[0] = [f"s_add_u32 s36, s{sKVdst}, {KV_LDS[0]}", f"v_add_u32 v22, s36, v{vL16}", f"v_add_u32 v{vL16b}, 4096, v{vL16}",
                f"s_add_u32 s25, s{sKVsrc}, 4096", f"s_mov_b32 s26, s{sKVsrc}"]
    sides[1] = ["s_nop 3"]; sides[2] = ["s_nop 3"]
    w = packl(KB[1], pKB[1])[:4] + [a.halo[0]] + packl(KB[1], pKB[1])[4:] + [a.halo[1]] + packl(VB[1], pVB[1]) + [a.halo[2]] \
        + packl(KA[0], pKA[0]) + a.kv.pop(0) + packl(VA[0], pVA[0]) + packl(KA[1], pKA[1])
    for g in range(3, 12):
        sides[g] = w[:5]; w = w[5:]
    a.e1rest = w

def e1(a):
    o = a.opts
    kv = a.kv
    w = a.e1rest + packl(VA[1], pVA[1]) + packl(QB[0], pQB[0]) + packl(QB[1], pQB[1]) + packl(KB[0], pKB[0]) + packl(VB[0], pVB[0])
    weave(a, w, a.dsw[:6], 2, 6)
    for g in a.dsw[6:]:
        for s in g: a(s)
    for s in kv.pop(0): a.emit(s)
    a.stamp("e1pack")
    qa = []
    for q in QA:
        qa += [f"v_pk_mul_f32 {vr(q+2*j, 2)}, {vr(q+2*j, 2)}, s[62:63]" for j in range(8)] + packl(q)
    lt = L()
    st = local_tile(lt, pQB[1], pKB[1], pVB[1], pKB[0], pVB[0]+4, 128, 144, 176, 240, 248, 252, 65536, "ob1", fill1=qa[:22], fill2=qa[22:])
    lt += packl(176, 56)
    a.ob1 = [(st[0][0].format("v[56:59]"), "ob1"), (st[1][0].format("v[60:63]"), "ob1")]
    weave(a, lt, [kv.pop(0), kv.pop(0)], o.get("st_a", 45), o.get("st_b", 60))
    a.kv_left = kv
    a.stamp("loc1")
    a.emit(a.wait(["halo", "nonce"], lgkm=True))
    a(f"v_readfirstlane_b32 s{sNONCE}, v21")
    a(f"s_add_u32 s36, s28, {F_H}")
    a("s_barrier")
    a(f"s_cmp_eq_u32 s{sNONCE}, 0")
    a("s_cbranch_scc1 L_NONCE_S")
    a("L_NONCE_R:")
    a.tail.append(f"""L_NONCE_S:
    s_mov_b32 s{sSpin}, 0
L_NONCE_L:
    global_load_dword v21, v19, s[{sPDbg}:{sPDbg+1}] sc1
    s_add_u32 s{sSpin}, s{sSpin}, 1
    s_waitcnt vmcnt(0)
    v_readfirstlane_b32 s{sNONCE}, v21
    s_cmp_lt_u32 s{sSpin}, 0x40000
    s_cbranch_scc0 L_NONCE_R
    s_nop 2
    s_cmp_eq_u32 s{sNONCE}, 0
    s_cbranch_scc1 L_NONCE_L
    s_branch L_NONCE_R""")
    for s in flag_store(36, 20, "fH"): a.emit(s)
    a.stamp("fH")

sKVp, sKVg, sOg, sPFW = 84, 98, 100, 52
vL16b = 5
def kv_dma(slot, group, tag):
    out = [f"s_add_u32 m0, s{sKVdst}, {KV_LDS[slot] + group*4096}"]
    for p in range(4):
        out.append((f"global_load_lds_dwordx4 v{vL16b if group else vL16}, s[{sKVg}:{sKVg+1}] offset:{p*1024} sc1", tag))
    return out
sKVb, sKVd = 3, 34
def kv_advance(c):
    if c <= 7:
        return [f"s_cmp_le_u32 s{sKVt}, {c-1}", f"s_addc_u32 s36, s{sKVb}, {c-1}", "s_lshl_b32 s36, s36, 15",
                f"s_add_u32 s{sKVg}, s{sKVp}, s36", f"s_addc_u32 s{sKVg+1}, s{sKVp+1}, 0"]
    return [f"s_add_u32 s36, s{sKVb}, {c}", "s_and_b32 s36, s36, 15", "s_lshl_b32 s36, s36, 15",
            f"s_add_u32 s{sKVg}, s{sKVp}, s36", f"s_addc_u32 s{sKVg+1}, s{sKVp+1}, 0"]

def H(a, q, vpar, qk=True, pv=True, pv_first=False, slots=None):
    slots = slots or {}
    o = 1 - q
    e = [f"v_exp_f32 v{S[q]+i}, v{S[q]+i}" for i in range(16)]
    c = [f"v_cvt_pk_bf16_f32 v{P[q]+j}, v{S[q]+2*j}, v{S[q]+2*j+1}" for j in range(8)]
    So, Oo, Lo = vr(S[o], 16), ar(aO[o], 16), ar(aL[o], 4)
    M = [mf32(So, ar(aK, 4), vr(QA[o], 4), vr(NM[o], 16)) if qk else None,
         mf32(So, ar(aK+4, 4), vr(QA[o]+4, 4), So) if qk else None,
         mf32(Oo, ar(aV[vpar], 4), vr(P[o], 4), 0 if pv_first else Oo) if pv else None,
         mf32(Oo, ar(aV[vpar]+4, 4), vr(P[o]+4, 4), Oo) if pv else None,
         mf16(Lo, ar(aONE, 4), vr(P[o], 4), 0 if pv_first else Lo) if pv else None,
         mf16(Lo, ar(aONE, 4), vr(P[o]+4, 4), Lo) if pv else None]
    V = [[e[0], e[1], e[2]], [e[3], c[0], c[1], e[4]], [e[5], e[6], e[7]], [c[2], c[3], e[8], e[9]],
         [e[10], e[11], c[4], c[5]], [e[12], e[13], e[14], e[15], c[6], c[7]]]
    if not pv: V[3] = ["s_nop 0"] + V[3]
    for i in range(6):
        if M[i]: a(M[i])
        for s in slots.get(i, []): a.emit(s)
        for s in V[i]: a(s)

def rdK(slot, off): return [f"ds_read_b128 {ar(aK, 4)}, v{vKV[slot]} offset:{off}", f"ds_read_b128 {ar(aK+4, 4)}, v{vKV[slot]} offset:{off+1024}"]
def rdV(par, slot, off): return [f"ds_read_b128 {ar(aV[par], 4)}, v{vKV[slot]} offset:{off+2048}", f"ds_read_b128 {ar(aV[par]+4, 4)}, v{vKV[slot]} offset:{off+3072}"]

FREE_A = [0, 3, 4]; FREE_B = [2, 3, 4, 5]
TORD = [0, 2, 1, 3]
def tile(a, n, side=None, end_b=None):
    sa = {}; sb = {}
    if n < 63:
        m = n + 1
        k = rdK((m >> 2) & 1, TORD[m & 3]*4096); v = rdV(m & 1, (m >> 2) & 1, TORD[m & 3]*4096)
        sa[1] = [k[0]]; sa[2] = [k[1]]; sa[5] = ["s_waitcnt lgkmcnt(0)"]
        sb[0] = [v[0]]; sb[1] = [v[1]]
    if side is not None:
        for g in FREE_A:
            if side: sa.setdefault(g, []).extend(side.pop(0))
        for g in (FREE_B if end_b is None else FREE_B[:-1]):
            if side: sb.setdefault(g, []).extend(side.pop(0))
    if end_b: sb.setdefault(5, []).extend(end_b)
    H(a, 0, (n - 1) & 1, pv=(n != 0), pv_first=(n == 1), slots=sa)
    H(a, 1, n & 1, qk=(n < 63), pv_first=(n == 0), slots=sb)

def neg_max(a):
    for q in range(2): a(f"v_mov_b32 v{21+q}, v{19+q}")
    a("s_nop 0")
    for q in range(2): a(f"v_permlane32_swap_b32 v{19+q}, v{21+q}")
    for q in range(2): a(f"v_max_f32 v{19+q}, v{19+q}, v{21+q}")
    for q in range(2):
        for i in range(16): a(f"v_sub_f32 v{NM[q]+i}, 0, v{19+q}")

def gate_compute(a):
    z, t = 23, 24
    for i in range(16):
        a(f"v_accvgpr_read_b32 v{96+(i%4)}, a{aGATE+i}")
        a(f"v_accvgpr_read_b32 v{100+(i%4)}, a{aGATE+16+i}")
        a(f"v_dot2_f32_bf16 v{z}, v{96+(i%4)}, v{100+(i%4)}, {0 if i == 0 else 'v%d' % z}")
    a("s_nop 2")
    for sh in (8, 4, 2, 1):
        a(f"v_add_f32_dpp v{z}, v{z}, v{z} row_ror:{sh} row_mask:0xf bank_mask:0xf")
        a("s_nop 1")
    a(f"v_mov_b32 v{t}, v{z}")
    a("s_nop 1")
    a(f"v_permlane16_swap_b32 v{z}, v{t}")
    a(f"v_add_f32 v{z}, v{z}, v{t}")
    a(f"v_mul_f32 v{z}, {f2u(-math.log2(math.e))}, v{z}")
    a(f"v_exp_f32 v{z}, v{z}")
    a(f"v_and_b32 v{t}, 31, v{vLANE}")
    a(f"v_add_f32 v{z}, 1.0, v{z}")
    a(f"v_rcp_f32 v{z}, v{z}")
    a(f"v_min_u32 v{t}, 1, v{t}")
    a(f"v_lshlrev_b32 v{t}, 31, v{t}")
    a(f"v_lshl_or_b32 v{t}, v{vGrow}, 2, v{t}")
    a(f"s_mov_b32 s36, {G_OFF}")
    a.emit((f"buffer_store_dword v{z}, v{t}, {WS}, s36 offen sc1", "g"))

def p4_setup(a):
    srd(a, sWoA, sPWoA, sPWoA+1, 1024*1024*2)
    srd(a, sWoB, sPWoB, sPWoB+1, 1024*1024*2)
    srd(a, sOutD, sPOut, sPOut+1, 2048*1024*2)
    a("s_and_b32 s36, s2, 7")
    a("s_lshr_b32 s37, s2, 3")
    a(f"s_and_b32 s{sC4}, s37, 15")
    a("s_lshr_b32 s37, s37, 4")
    a("s_lshl_b32 s36, s36, 1")
    a(f"s_add_u32 s{sT4}, s36, s37")
    r, c, t0, t1 = 200, 201, 202, 203
    a(f"v_lshrrev_b32 v{r}, 3, v{vLANE}")
    a(f"v_and_b32 v{c}, 7, v{vLANE}")
    a(f"v_lshlrev_b32 v{t0}, 1, v{r}")
    a(f"v_and_b32 v{t0}, 4, v{t0}")
    a(f"v_xor_b32 v{t0}, v{t0}, v{c}")
    a(f"v_lshlrev_b32 v{t0}, 4, v{t0}")
    a(f"v_lshl_add_u32 v{t0}, v{r}, 11, v{t0}")
    a(f"s_lshl_b32 s36, s{sW}, 14")
    a(f"s_lshl_b32 s37, s{sC4}, 7")
    a("s_add_u32 s36, s36, s37")
    a(f"v_add_u32 v{vWo_g}, s36, v{t0}")
    a(f"v_and_b32 v{r}, 15, v{vLANE}")
    a(f"v_lshrrev_b32 v{t0}, 2, v{r}")
    a(f"v_lshrrev_b32 v{t1}, 5, v{vLANE}")
    a(f"v_lshl_add_u32 v{c}, v{t1}, 2, v{t0}")
    a(f"v_lshrrev_b32 v{t0}, 1, v{c}")
    a(f"v_and_b32 v{t0}, 1, v{t0}")
    a(f"v_lshlrev_b32 v{t0}, 6, v{t0}")
    a(f"v_lshl_add_u32 v{t0}, v{c}, 7, v{t0}")
    a(f"v_and_b32 v{t1}, 16, v{vLANE}")
    a(f"v_lshl_add_u32 v{t0}, v{t1}, 1, v{t0}")
    a(f"v_and_b32 v{t1}, 3, v{r}")
    a(f"v_lshl_add_u32 v{vWo_r[0]}, v{t1}, 3, v{t0}")
    a(f"v_xor_b32 v{vWo_r[1]}, 64, v{vWo_r[0]}")
    for b in (1, 2):
        for ct in range(2):
            a(f"v_add_u32 v{vWo_r[2*b+ct]}, {b*65536}, v{vWo_r[ct]}")
    a(f"s_lshl_b32 s36, s{sT4}, 2")
    a(f"s_add_u32 s36, s36, s{sW}")
    a(f"s_lshl_b32 s{sOrow}, s36, 16")
    a(f"s_lshr_b32 s36, s36, 1")
    a(f"s_lshl_b32 s29, s36, 7")
    a(f"s_lshl_b32 s{sOoff}, s{sC4}, 12")
    a(f"s_lshl_b32 s{sWooff}, s{sC4}, 17")
    a(f"v_and_b32 v16, 31, v{vLANE}")
    a("v_lshlrev_b32 v16, 2, v16")
    a(f"v_and_b32 v17, 15, v{vLANE}")
    a(f"v_cmp_le_u32 vcc, s{sKVt}, v17")
    a(f"v_add_u32 v17, s{sKVb}, v17")
    a("s_nop 0")
    a("v_addc_co_u32 v17, vcc, 0, v17, vcc")
    a("v_and_b32 v17, 15, v17")
    a("v_lshlrev_b32 v17, 2, v17")
    a(f"s_add_u32 s36, s{sOrow}, {OB_OFF}")
    a(f"s_add_u32 s{sOg}, s54, s36")
    a(f"s_addc_u32 s{sOg+1}, s55, 0")

def wob_dma(i, tag):
    return [[f"s_mov_b32 s39, {i*65536}"], [f"s_add_u32 m0, s{sWv}, {i*4096}"],
            [(f"buffer_load_dwordx4 v{vWo_g}, s[{sWoB}:{sWoB+3}], s39 offen lds", tag)]]

def attention(a):
    o = a.opts
    a("L_ATT0:")
    for s in rdK(0, 0) + rdV(0, 0, 0): a(s)
    for s in kv_advance(1): a(s)
    a(f"s_cmp_lg_u32 s{sPASS}, 0")
    a("s_cbranch_scc1 L_ATT1")
    ps = L(); p4_setup(ps)
    ps_s = [x for x in ps if x.startswith("s_") and "s4," not in x.split()[1] and not any(x.split()[1].startswith(f"s{i},") for i in (4, 5, 6, 7))]
    ps_x = []
    rest = [x for x in ps if x not in ps_x]
    n1 = 22
    for s in rest[:n1]: a(s)
    a("s_waitcnt lgkmcnt(0)")
    for q in range(2): a(mf32(vr(S[q], 16), ar(aK, 4), vr(QA[q], 4), 0))
    for q in range(2): a(mf32(vr(S[q], 16), ar(aK+4, 4), vr(QA[q]+4, 4), vr(S[q], 16)))
    kv = a.kv_left
    for s in kv.pop(0): a.emit(s)
    padfill(a, rest[n1:n1+26], 10)
    for q in range(2):
        s, m = S[q], 19 + q
        a(f"v_max3_f32 v{m}, v{s}, v{s+1}, v{s+2}")
        for i in range(3, 15, 2): a(f"v_max3_f32 v{m}, v{m}, v{s+i}, v{s+i+1}")
        a(f"v_max_f32 v{m}, v{m}, v{s+15}")
    for q in range(2): a(f"v_mov_b32 v{21+q}, v{19+q}")
    a("s_nop 0")
    for q in range(2): a(f"v_permlane32_swap_b32 v{19+q}, v{21+q}")
    for q in range(2): a(f"v_max_f32 v{19+q}, v{19+q}, v{21+q}")
    for i in range(16): a(f"v_sub_f32 v{NM[0]+i}, 0, v19")
    for s in rest[n1+26:n1+28]: a(s)
    a(mf32(vr(S[0], 16), ar(aK, 4), vr(QA[0], 4), vr(NM[0], 16)))
    a(mf32(vr(S[0], 16), ar(aK+4, 4), vr(QA[0]+4, 4), vr(S[0], 16)))
    for i in range(16): a(f"v_sub_f32 v{NM[1]+i}, 0, v20")
    for s in rest[n1+28:]: a(s)
    a("v_mov_b32 v18, 0")
    a("s_branch L_ATT2")
    a("L_ATT1:")
    a("s_waitcnt lgkmcnt(0)")
    a(mf32(vr(S[0], 16), ar(aK, 4), vr(QA[0], 4), vr(NM[0], 16)))
    a(mf32(vr(S[0], 16), ar(aK+4, 4), vr(QA[0]+4, 4), vr(S[0], 16)))
    a("s_nop 11")
    a("L_ATT2:")
    a.stamp("att0")
    pH = [(f"buffer_load_dword v21, v18, {WS}, s33 offen sc1", "pH")]
    tile(a, 0, [kv.pop(0), [], [], [], [], kv.pop(0), []])
    tile(a, 1, [[], [], [], kv.pop(0), pH])
    a.stamp("t01")
    tile(a, 2)
    a.stamp("t2")
    a(f"s_cmp_lg_u32 s{sPASS}, 0")
    a("s_cbranch_scc1 L_A3")
    a.emit(a.wait(["kv"]))
    for s in flag_store(32, 20, "fKV"): a.emit(s)
    a.stamp("fKV")
    poll_check(a, "L_PH", 21, 18, 33, "pH")
    a(f"s_sub_u32 s38, s{sHalo}, 4096")
    a(f"s_cmp_eq_u32 s{sSeq}, 0")
    a(f"s_cselect_b32 s38, {OOB}, s38")
    a.emit((f"buffer_load_dwordx4 {vr(HK, 4)}, v{vL16}, {WS}, s38 offen sc1", "hl"))
    a.emit((f"buffer_load_dwordx4 {vr(HK+4, 4)}, v{vL16}, {WS}, s38 offen offset:1024 sc1", "hl"))
    a.emit((f"buffer_load_dwordx4 {vr(HV, 4)}, v{vL16}, {WS}, s38 offen offset:2048 sc1", "hl"))
    if o.get("ownpf", 0):
        a(f"v_lshlrev_b32 v22, 7, v{vLANE}")
        a.emit((f"buffer_load_dword v{vPFd}, v22, {WS}, s26 offen sc1", "ownpf"))
    a("s_cbranch_scc0 L_MASKOK")
    for i in range(8): a(f"v_mov_b32 v{vMc+16+i}, {NEGBIG}")
    a("L_MASKOK:")
    for s in a.ob1: a.emit(s)
    a.stamp("pH")
    gate_compute(a)
    a.stamp("fill")
    pk = (f"buffer_load_dword v21, v17, {WS}, s31 offen sc1", "pKV")
    order = o.get("e1order", 0)
    def loc0(extra):
        a.emit(a.wait(["hl"]))
        lt = L()
        st = local_tile(lt, pQB[0], pKB[0], pVB[0], HK, HV, 96, 112, 208, 168, 236, 23, 0, "ob0")
        lt += packl(208)
        weave(a, lt, extra, o.get("pk_at", 60), 1000)
        a.ob0 = [(st[0][0].format("v[208:211]"), "ob0"), (st[1][0].format("v[212:215]"), "ob0")]
    if order == 0:
        loc0([[pk]])
        a.stamp("loc0")
    else:
        a.emit(pk)
    poll_check(a, "L_PKV", 21, 17, 31, "pKV", mask=o.get("kvmask", 1))
    a("L_A3:")
    a.stamp("pKV")
    for g in range(2):
        for k_, s in enumerate(kv_dma(1, g, f"c1{'ab'[g]}")):
            a.emit(s)
            if k_ == 0: a("s_nop 0")
        if g == 0: a.emit((f"buffer_load_dword v21, v17, {WS}, s31 offen sc1", "pKV2"))
    for s in kv_advance(2): a(s)
    a(f"s_cmp_lg_u32 s{sPASS}, 0")
    a("s_cbranch_scc1 L_A4")
    if order == 1:
        loc0([])
        a.stamp("loc0")
    for s in a.ob0: a.emit(s)
    a("s_branch L_A5")
    a("L_A4:")
    a("s_waitcnt vmcnt(0)")
    a("L_A5:")
    a.emit(a.wait(["c1a"], lgkm=True))
    a("s_barrier")
    a.pkv2 = True
    a.stamp("c1")
    wob = [i for i in range(24)]
    obl = [i for i in range(64)]
    if o.get('noside'): wob = wob[:1]; obl = obl[:1]
    ob_start = o.get("ob_start", 5)
    obase = False
    for c in range(15):
        V = []; A = []
        side = []
        if c + 2 <= 15:
            d0, d1 = kv_dma(c % 2, 0, f"c{c+2}"), kv_dma(c % 2, 1, f"c{c+2}")
            kvs = [[x] for x in d0] + [[x] for x in d1] + ([[x] for x in kv_advance(c + 3)] if c + 3 <= 15 else [])
        else:
            kvs = []
        oth = []
        if c == 0:
            oth += [[(f"buffer_load_dword v21, v17, {WS}, s31 offen sc1", "pKV3")]]
        if c == 1:
            oth += [[f"s_lshl_b32 s38, s{sSeq}, 7"], [f"s_lshl_b32 s39, s{sHead}, 2"], ["s_add_u32 s38, s38, s39"],
                    [f"s_add_u32 s35, s38, {F_OB}"], flag_store(35, 20, "fOB")]
        if c == ob_start - 2:
            oth += [[f"s_add_u32 s47, s29, {F_OB}"], [(f"buffer_load_dword v21, v16, {WS}, s47 offen sc1", "pOB")]]
        if c == o.get("cpf2", 11) or (o.get("cpfn") and c % o["cpfn"] == 2):
            oth += [[(f"buffer_load_dword v{vPFd}, v{vT[7]}, s[{sCode}:{sCode+3}], 0 offen", "cpf")]]
        nslots = 4*7 - 1 - (c == 0)
        if c >= ob_start:
            for _ in range(min(len(obl), o.get("ob_per", 8))):
                i = obl.pop(0)
                oth.append([(f"global_load_dwordx4 {oreg(i)}, v{vL16b if (i & 4) else vL16}, s[{sOg}:{sOg+1}] offset:{(i % 4)*1024} sc1", "obl")])
                if i % 8 == 7:
                    oth += [[f"s_add_u32 s{sOg}, s{sOg}, 8192"], [f"s_addc_u32 s{sOg+1}, s{sOg+1}, 0"]]
        wl = o.get("wol2", 6)
        if wl <= c < wl + 8:
            oth.append([(f"global_load_dword v{vPFd}, v0, s[{sPWoA}:{sPWoA+1}] offset:{((c - wl) & 1)*2048}", "wopf")] + (["v_add_u32 v0, 4096, v0"] if (c - wl) & 1 else []))
        while wob and len(kvs) + len(oth) + 3 <= nslots:
            oth += wob_dma(wob.pop(0), "wob")
        side = kvs + oth
        while len(side) > nslots:
            for k in range(len(side) - 1):
                if all(isinstance(x, str) and x.startswith("s_") and "m0" not in x for x in side[k]):
                    side[k+1] = side[k] + side[k+1]; side.pop(k); break
            else:
                raise Exception("slots")
        n = len(side)
        if n < nslots and o.get("spread", 1):
            sp = [[] for _ in range(nslots)]
            for k, g in enumerate(side): sp[k*nslots//n] = g
            side = sp
        if c == 0:
            poll_check(a, "L_PKV2", 21, 17, 31, "pKV2", mask=2)
        if c == 1:
            poll_check(a, "L_PKV3", 21, 17, 31, "pKV3", mask=0xffff)
        if c == ob_start - 1:
            poll_check(a, "L_POB", 21, 16, 47, "pOB")
        tile(a, 4*c + 3, side)
        tile(a, 4*c + 4, side, end_b=[a.wait(["c1b"]), "s_barrier"] if c == 0 else None)
        tile(a, 4*c + 5, side)
        tile(a, 4*c + 6, side, end_b=[a.wait([f"c{c+2}"], lgkm=True) if c + 2 <= 15 else "s_waitcnt lgkmcnt(0)", "s_barrier"])
        assert not side
        if c in (4, 9): a.stamp(f"c{c}")
    assert not wob and not obl, (wob, obl)
    tile(a, 63)
    a("s_nop 1")
    a(mf32(ar(aO[1], 16), ar(aV[1], 4), vr(P[1], 4), ar(aO[1], 16)))
    a(mf16(ar(aL[1], 4), ar(aONE, 4), vr(P[1], 4), ar(aL[1], 4)))
    a(mf32(ar(aO[1], 16), ar(aV[1]+4, 4), vr(P[1]+4, 4), ar(aO[1], 16)))
    a(mf16(ar(aL[1], 4), ar(aONE, 4), vr(P[1]+4, 4), ar(aL[1], 4)))
    a.stamp("attend")
    a(f"s_add_u32 s36, s{sOst}, {OA_OFF}")
    a(f"s_add_u32 s37, s{sOst}, {OA_OFF + 65536}")
    a(f"v_accvgpr_read_b32 v19, a{aL[0]}")
    for i in range(16): a(f"v_accvgpr_read_b32 v{S[0]+i}, a{aO[0]+i}")
    a("v_rcp_f32 v23, v19")
    a(f"v_accvgpr_read_b32 v20, a{aL[1]}")
    for i in range(16): a(f"v_mul_f32 v{S[0]+i}, v{S[0]+i}, v23")
    pack(a, S[0])
    a("v_rcp_f32 v24, v20")
    a.emit((f"buffer_store_dwordx4 {vr(S[0], 4)}, v{vL16}, {WS}, s36 offen sc1", "oa"))
    a.emit((f"buffer_store_dwordx4 {vr(S[0]+4, 4)}, v{vL16}, {WS}, s36 offen offset:1024 sc1", "oa"))
    for i in range(16): a(f"v_accvgpr_read_b32 v{S[1]+i}, a{aO[1]+i}")
    for i in range(16): a(f"v_mul_f32 v{S[1]+i}, v{S[1]+i}, v24")
    pack(a, S[1])
    a(f"s_mov_b32 s36, {f2u(2.0**40)}")
    a.emit((f"buffer_store_dwordx4 {vr(S[1], 4)}, v{vL16}, {WS}, s37 offen sc1", "oa"))
    a.emit((f"buffer_store_dwordx4 {vr(S[1]+4, 4)}, v{vL16}, {WS}, s37 offen offset:1024 sc1", "oa"))
    a("v_cmp_nge_f32 s[38:39], s36, v19")
    a("v_cmp_nge_f32 vcc, s36, v20")
    a(f"s_lshl_b32 s37, s{sW}, 2")
    a(f"s_add_u32 s37, s37, {KV_LDS[1]}")
    a("v_mov_b32 v22, s37")
    a("s_nop 1")
    a("s_or_b64 vcc, vcc, s[38:39]")
    if o.get("force_fallback"): a("s_mov_b64 vcc, -1")
    a("s_cmp_lg_u64 vcc, 0")
    a("s_cselect_b32 s36, 1, 0")
    a(f"s_andn2_b32 s36, s36, s{sPASS}")
    a("v_mov_b32 v21, s36")
    a("ds_write_b32 v22, v21")
    a(f"v_mov_b32 v22, {KV_LDS[1]}")
    a.emit(a.wait(["wob", "obl"], lgkm=True))
    a("s_barrier")
    a("ds_read_b128 v[20:23], v22")
    for s in p4_reads(0, 0, 0): a(s)
    a("s_waitcnt lgkmcnt(0)")
    a("v_or_b32 v20, v20, v21")
    a("v_or3_b32 v20, v20, v22, v23")
    a("s_nop 0")
    a("v_readfirstlane_b32 s38, v20")
    a("s_nop 3")
    a("s_cmp_lg_u32 s38, 0")
    a("s_cbranch_scc1 L_FALLBACK")
    b = Asm()
    b("L_FALLBACK:")
    b(f"s_mov_b32 s{sPASS}, 1")
    b(f"s_mov_b32 s25, {OOB}")
    b(f"s_mov_b32 s26, {OOB}")
    b(f"v_mov_b32 v19, {NEGBIG}")
    b(f"v_mov_b32 v20, {NEGBIG}")
    b(f"s_lshl_b32 s38, s{sHP}, 19")
    b(f"s_lshl_b32 s39, s{sHH}, 14")
    b("s_add_u32 s38, s38, s39")
    b("s_mov_b32 s39, 0")
    b("L_FB:")
    b("s_and_b32 s36, s39, 3")
    b("s_lshl_b32 s36, s36, 12")
    b("s_lshr_b32 s37, s39, 2")
    b("s_lshl_b32 s37, s37, 15")
    b("s_add_u32 s36, s36, s37")
    b("s_add_u32 s36, s36, s38")
    b(f"buffer_load_dwordx4 {ar(aK, 4)}, v{vL16}, {WS}, s36 offen sc1")
    b(f"buffer_load_dwordx4 {ar(aK+4, 4)}, v{vL16}, {WS}, s36 offen offset:1024 sc1")
    b("s_waitcnt vmcnt(0)")
    for q in range(2): b(mf32(vr(S[q], 16), ar(aK, 4), vr(QA[q], 4), 0))
    for q in range(2): b(mf32(vr(S[q], 16), ar(aK+4, 4), vr(QA[q]+4, 4), vr(S[q], 16)))
    b("s_nop 11")
    for q in range(2):
        for i in range(0, 16, 2): b(f"v_max3_f32 v{19+q}, v{19+q}, v{S[q]+i}, v{S[q]+i+1}")
    b("s_add_u32 s39, s39, 1")
    b("s_cmp_lt_u32 s39, 64")
    b("s_cbranch_scc1 L_FB")
    neg_max(b)
    b(f"s_lshl_b32 s36, s{sT}, 15")
    b(f"s_add_u32 s{sKVg}, s{sKVp}, s36")
    b(f"s_addc_u32 s{sKVg+1}, s{sKVp+1}, 0")
    b(f"s_add_u32 s36, s{sOrow}, {OB_OFF}")
    b(f"s_add_u32 s{sOg}, s54, s36")
    b(f"s_addc_u32 s{sOg+1}, s55, 0")
    b("v_add_u32 v0, -16384, v0")
    b("s_barrier")
    for g in range(2):
        for k_, s in enumerate(kv_dma(0, g, "")):
            b(s[0] if isinstance(s, tuple) else s)
            if k_ == 0: b("s_nop 0")
    b("s_waitcnt vmcnt(0)")
    b("s_barrier")
    b("s_branch L_ATT0")
    a.tail.append(b.text())

def fW4(fs, i, ct): return fs*32 + i*8 + ct*4
def p4_lds(g):
    return g*32768 if g < 4 else [131072, 0, 32768, 65536][g - 4]
def p4_reads(fs, g, grp):
    out = []
    base = p4_lds(g)
    for i in range(4):
        for ct in range(2):
            off = base % 65536 + (grp*4 + i)*2048
            v = vWo_r[2*(base // 65536) + ct]
            out.append(f"ds_read_b64_tr_b16 {ar(fW4(fs, i, ct), 2)}, v{v} offset:{off}")
            out.append(f"ds_read_b64_tr_b16 {ar(fW4(fs, i, ct)+2, 2)}, v{v} offset:{off+1024}")
    return out
def woa_dma(g, i):
    return [[f"s_add_u32 m0, s{sWv}, {p4_lds(g) + i*4096}"],
            [(f"buffer_load_dwordx4 v{vWo_g}, s[{sWoA}:{sWoA+3}], s{sWooff} offen lds", f"wo{g}"),
             f"s_add_u32 s{sWooff}, s{sWooff}, 65536", f"s_and_b32 s{sWooff}, s{sWooff}, 0x1fffff"]]
def oa_load(i):
    out = [(f"buffer_load_dwordx4 {oreg(i)}, v{vL16}, {WS}, s{sO} offen offset:{(i % 4)*1024} sc1", f"oa{i}")]
    if i % 4 == 3:
        out += [f"s_add_u32 s{sOoff}, s{sOoff}, 4096", f"s_and_b32 s{sOoff}, s{sOoff}, 0xffff", f"s_add_u32 s{sO}, s{sObase}, s{sOoff}"]
    return out

def phase4(a):
    o = a.opts
    a(f"s_add_u32 s{sObase}, s{sOrow}, {OA_OFF}")
    a(f"s_add_u32 s{sO}, s{sObase}, s{sOoff}")
    a(f"s_lshl_b32 s38, s{sSeq}, 7")
    a(f"s_lshl_b32 s39, s{sHead}, 2")
    a("s_add_u32 s38, s38, s39")
    a(f"s_add_u32 s35, s38, {F_OA}")
    a(f"s_add_u32 s47, s29, {F_OA}")
    a(f"s_lshl_b32 s36, s{sT4}, 9")
    a(f"s_lshl_b32 s37, s{sW}, 7")
    a("s_add_u32 s36, s36, s37")
    a(f"s_add_u32 s36, s36, {G_OFF}")
    a.stamp("p4start")
    flag_at = o.get("oaflag_gap", 10)
    poll_at = o.get("oapoll_gap", 80)
    chk_at = o.get("oachk_gap", 92)
    side = {}
    def put(k, l): side.setdefault(k, []).extend(l)
    put(0, [(f"buffer_load_dword v{vGate}, v16, {WS}, s36 offen sc1", "gl")])
    put(flag_at, [a.wait(["oa"])]); put(flag_at + 1, flag_store(35, 20, "fOA"))
    put(poll_at, [(f"buffer_load_dword v21, v16, {WS}, s47 offen sc1", "pOA")])
    lat = o.get("p4lat", 20)
    jobs = [[26 if False else flag_at + 2, 32*2 + 23 - lat, "wb", i] for i in range(24, 32)]
    for g in range(4, 8):
        e = {4: 26, 5: 26, 6: 56, 7: 88}[g]
        jobs += [[e, 32*(g - 1) + 23 - lat, "wa", (g, i)] for i in range(8)]
    jobs += [[max(chk_at + 1, 2*i + 2), 128 + 2*i - lat, "oa", i] for i in range(64)]
    gap = o.get("p4gap", 2.0)
    t = float(flag_at + 2)
    quiet = range(poll_at - o.get("p4quiet", 4), poll_at + 1)
    while jobs:
        k = int(t)
        av = [j for j in jobs if j[0] <= k]
        if not av or k in quiet:
            t = k + 1; continue
        j = min(av, key=lambda j: j[1])
        jobs.remove(j)
        if j[2] == "wb":
            d = wob_dma(j[3], "wo3"); put(k - 1, d[0] + d[1]); put(k, d[2])
        elif j[2] == "wa":
            d = woa_dma(*j[3]); put(k - 1, d[0]); put(k, d[1])
        else:
            put(k, oa_load(j[3]))
        if k > j[1]: print("p4 late", j, k)
        t += gap
    idx = 0
    for g in range(8):
        br = g // 4
        for grp in range(4):
            fs = grp & 1
            rd = p4_reads(1 - fs, g, grp + 1) if grp < 3 else (p4_reads(1 - fs, g + 1, 0) if g < 7 else [])
            for j in range(8):
                i, ct = j // 2, j % 2
                k16 = (g % 4)*16 + grp*4 + i
                if br == 1 and ct == 0:
                    n = a.vmn([f"oa{k16}"])
                    a(f"s_waitcnt vmcnt({n})")
                d = vr(ACC4[br][ct], 16)
                a(mf32(d, ar(fW4(fs, i, ct), 4), oreg(k16), 0 if k16 == 0 else d))
                for s in rd[3*j:3*j+3] if j < 5 else (rd[15:] if j == 5 else []): a(s)
                for s in side.pop(idx, []): a.emit(s)
                if idx == flag_at + 1: a.stamp("fOA")
                if idx == chk_at:
                    poll_check(a, "L_POA", 21, 16, 47, "pOA")
                    a.stamp("pOA")
                idx += 1
            if grp == 2 and g < 7:
                nxt = f"wo{g+1}"
                a.emit(a.wait([nxt], lgkm=True) if nxt in a.vm else "s_waitcnt lgkmcnt(0)")
                a("s_barrier")
            elif rd:
                a("s_waitcnt lgkmcnt(0)")
        if g == 3: a.stamp("p4B")
    assert not side, side.keys()
    a.stamp("p4A")
    a(f"v_sub_f32 v8, 1.0, v{vGate}")
    a(f"v_and_b32 v19, 31, v{vLANE}")
    a(f"v_lshrrev_b32 v20, 5, v{vLANE}")
    a("v_lshlrev_b32 v20, 4, v20")
    a("v_lshl_add_u32 v19, v19, 11, v20")
    a(f"s_lshl_b32 s36, s{sT4}, 18")
    a(f"s_lshl_b32 s37, s{sW}, 16")
    a("s_add_u32 s36, s36, s37")
    a(f"s_lshl_b32 s37, s{sC4}, 7")
    a("s_add_u32 s36, s36, s37")
    for ct in range(2):
        for i in range(16): a(f"v_mul_f32 v{ACC4[0][ct]+i}, v{ACC4[0][ct]+i}, v8")
    for ct in range(2):
        B_, A_ = ACC4[0][ct], ACC4[1][ct]
        for i in range(16): a(f"v_fma_f32 v{B_+i}, v{A_+i}, v{vGate}, v{B_+i}")
        pack(a, B_)
        a("s_nop 1")
        for k in (0, 2):
            a(f"v_permlane32_swap_b32 v{B_+2*k}, v{B_+2*k+2}")
            a(f"v_permlane32_swap_b32 v{B_+2*k+1}, v{B_+2*k+3}")
        for k in (0, 2):
            a.emit((f"buffer_store_dwordx4 {vr(B_+2*k, 4)}, v19, s[{sOutD}:{sOutD+3}], s36 offen offset:{ct*64 + k*16} {['', 'sc1', 'nt', 'sc0 sc1', 'sc1 nt'][o.get('outflag', 2)]}", "out"))

def gen(opts):
    a = G(opts); a.tail = []
    setup(a); gemm1(a); e1(a); attention(a); phase4(a)
    if opts.get("diag") is not None:
        a.stamp("end")
        a("s_nop 1")
        a(f"v_readlane_b32 s36, v{vSTAMP}, {32 + opts['diag']}")
        a("s_nop 3")
        a("s_add_u32 s36, s36, 10000")
        if opts.get("diagwg") is not None:
            a(f"s_cmp_lg_u32 s2, {opts['diagwg']}")
            a("s_cbranch_scc1 L_END")
        a("L_DIAG:")
        a("s_memrealtime s[38:39]")
        a("s_waitcnt lgkmcnt(0)")
        a("s_sub_u32 s38, s38, s36")
        a("s_cmp_lt_i32 s38, 0")
        a("s_cbranch_scc1 L_DIAG")
    elif opts.get("dbgstamp"):
        a.stamp("end")
        sel = ["karg", "first", "g7", "g15", "g23", "g31", "loc1", "pKV", "c1", "c9", "attend", "pOA", "p4B", "p4A", "end"]
        a(f"s_cmp_lg_u32 s2, {opts['dbgstamp']-1}")
        a("s_cbranch_scc1 L_DBGX")
        a(f"s_cmp_lg_u32 s{sW}, 0")
        a("s_cbranch_scc1 L_DBGX")
        a(f"v_readlane_b32 s36, v{vSTAMP}, 32")
        for i, nm in enumerate(sel):
            a(f"v_readlane_b32 s37, v{vSTAMP}, {32 + a.names.index(nm)}")
            a("s_nop 3")
            a("s_sub_u32 s37, s37, s36")
            a("v_mov_b32 v2, s37")
            a("v_mov_b32 v3, 0")
            a(f"global_store_dword v3, v2, s[{sPDbg}:{sPDbg+1}] offset:{4*(i+1)}")
        a("L_DBGX:")
    elif opts.get("stamp"):
        a.stamp("end")
        a("s_lshl_b32 s36, s2, 2")
        a(f"s_add_u32 s36, s36, s{sW}")
        a("s_lshl_b32 s36, s36, 8")
        a(f"s_add_u32 s36, s36, {STAMP_OFF}")
        a(f"v_lshlrev_b32 v2, 2, v{vLANE}")
        a(f"buffer_store_dword v{vSTAMP}, v2, {WS}, s36 offen")
    a("s_endpgm")
    for t in a.tail: a(t)
    head = f"""; gated mix of full MHA and dilated sliding-window attention: one fused kernel, 256 co-resident workgroups
; @launch grid=(256,1,1) block=(256,1,1) lds=163840
.amdgcn_target "amdgcn-amd-amdhsa--gfx950"
.text
.globl {KNAME}
.p2align 8
.type {KNAME},@function
{KNAME}:
"""
    tail = f"""L_END:
    s_endpgm
.section .rodata,"a"
.p2align 6
.amdhsa_kernel {KNAME}
  .amdhsa_next_free_vgpr 512
  .amdhsa_next_free_sgpr 102
  .amdhsa_accum_offset 256
  .amdhsa_group_segment_fixed_size 0
  .amdhsa_kernarg_size 80
  .amdhsa_user_sgpr_count 2
  .amdhsa_user_sgpr_kernarg_segment_ptr 1
  .amdhsa_system_sgpr_workgroup_id_x 1
.end_amdhsa_kernel
"""
    gen.names = a.names
    return head + a.text() + tail

if __name__ == "__main__":
    import hazard
    opts = {}
    for kv in sys.argv[2:]:
        k, v = kv.split("="); opts[k] = int(v)
    t = gen(opts)
    open(sys.argv[1], "w").write(t)
    print(len(hazard.check(t)), "hazards", gen.names)
```

```python
import sys, struct, math
from asmlib import *

KNAME = "gated_mix__softmax_full_mha__sliding_local_dilated__prompt_kernel"
def f2u(x): return struct.unpack("<I", struct.pack("<f", x))[0]
KV_OFF   = 0
OA_OFF   = 8 << 20
OB_OFF   = 12 << 20
HALO_OFF = 16 << 20
G_OFF    = 20 << 20
FLAG_OFF = 21 << 20
F_KV, F_H, F_OB, F_OA = FLAG_OFF, FLAG_OFF + 4096, FLAG_OFF + 8192, FLAG_OFF + 12288
STAMP_OFF = 0x8000000
OOB = 0x80000000
CSCALE = f2u(math.log2(math.e) / math.sqrt(32.0))
NEGBIG = f2u(-1e30)
X_SLOT = 16384; W_BASE = 49152; W_SLOT = 24576
KV_LDS = [98304, 131072]
XCH = 163840 - 16
sX, sWA, sWB, sWS = 4, 8, 12, 16
sW, sHP, sT, sRH, sHH = 20, 21, 22, 23, 24
sWoff, sXoff = 25, 26
sXw, sWv = 30, 34
sPF, sPFoff, sPFstr, sPFlim = 40, 44, 45, 46
sNONCE, sCS = 60, 61
sSTAMPI = 68
sPWoA, sPWoB, sPG, sPOut, sPDbg = 70, 72, 74, 76, 78
sKVsrc, sKVbase, sKVt, sKVdst = 80, 81, 82, 27
sPASS, sOst, sSpin = 83, 86, 87
sT4, sC4, sOoff, sWooff, sObase = 88, 89, 90, 91, 92
sHalo, sSeq, sO, sOrow, sHead = 93, 94, 95, 96, 97
sWoA, sWoB, sOutD = 4, 8, 12
sCode = 48
vLANE = 1
vXr = [2, 3, 4, 5]; vWr = [10, 11]; vWg = [12, 13, 14]; vXg = [15, 16, 17, 18]
vT = [19, 20, 21, 22, 23, 24, 25, 26]
vPF, vPFd, vL16, vSTAMP, vF0 = 27, 28, 29, 30, 31
vMc = 32
ACC0 = 64
def acc(blk, rt): return ACC0 + (blk*2 + rt)*16
QA = [64, 80]; KA = [96, 112]; VA = [128, 144]; QB = [160, 176]; KB = [192, 208]; VB = [224, 240]
NM = [128, 144]; S = [176, 240]; P = [72, 88]
vKV = [6, 7]
vWo_g = 2; vWo_r = [3, 4, 10, 11, 12, 13]
vGate, vGrow = 14, 8
HK = 200; HV = 232
def fX(s, rt): return s*32 + rt*4
def fW(s, blk): return s*32 + 8 + blk*4
aK, aV = 0, [8, 16]
aO = [32, 48]; aL = [64, 68]; aONE = 72
aGATE = 76
aSEL = 24; vIDX = 9
OV = list(range(96, 128, 4)) + list(range(160, 176, 4)) + list(range(192, 240, 4))
def oreg(i): return ar(76 + 4*i, 4) if i < 45 else vr(OV[i - 45], 4)
ACC4 = [[128, 144], [64, 80]]
pKA = [96, 112]; pVA = [104, 120]; pQB = [160, 168]; pKB = [192, 208]; pVB = [224, 216]

def mf32(d, A, B, C): return f"v_mfma_f32_32x32x16_bf16 {d}, {A}, {B}, {C}"
def mf16(d, A, B, C): return f"v_mfma_f32_16x16x32_bf16 {d}, {A}, {B}, {C}"
WS = f"s[{sWS}:{sWS+3}]"

class G(Asm):
    def __init__(self, opts):
        super().__init__()
        self.opts = opts
        self.vm = []
        self.nstamp = 0
        self.names = []
    def emit(self, x):
        if callable(x): x = x()
        if x is None: return
        if isinstance(x, tuple):
            self(x[0]); self.vm.append(x[1])
        else:
            assert not (x.lstrip().startswith(("buffer_", "global_"))), x
            self(x)
    def vmn(self, tags):
        idx = [i for i, t in enumerate(self.vm) if t in tags]
        assert idx, tags
        n = len(self.vm) - 1 - max(idx)
        return min(n, 63)
    def wait(self, tags, lgkm=False):
        return lambda: f"s_waitcnt vmcnt({self.vmn(tags)})" + (" lgkmcnt(0)" if lgkm else "")
    def stamp(self, name):
        if not self.opts.get("stamp"): return
        self.names.append(name)
        a = self
        a("s_memtime s[66:67]")
        a("s_memrealtime s[64:65]")
        a("s_waitcnt lgkmcnt(0)")
        a(f"v_writelane_b32 v{vSTAMP}, s66, {self.nstamp}")
        a(f"v_writelane_b32 v{vSTAMP}, s64, {self.nstamp + 32}")
        self.nstamp += 1
        assert self.nstamp <= 32
    def inter(self, mains, sides):
        for i, m in enumerate(mains):
            if m is not None: self.emit(m)
            for s in sides.get(i, []): self.emit(s)

def srd(a, s, lo, hi, nbytes):
    a(f"s_mov_b32 s{s}, s{lo}")
    a(f"s_and_b32 s{s+1}, s{hi}, 0xffff")
    a(f"s_mov_b32 s{s+2}, {nbytes}")
    a(f"s_mov_b32 s{s+3}, 0x20000")

def pf_round(a):
    return [(f"buffer_load_dword v{vPFd}, v{vPF}, s[{sPF}:{sPF+3}], s{sPFoff} offen{' nt' if a.opts.get('pfnt') else ''}", "pf"),
            f"s_add_u32 s{sPFoff}, s{sPFoff}, s{sPFstr}"]

class P1:
    def __init__(self, a):
        self.a = a; self.woff = None; self.xoff = None
    def dma(self, piece):
        kind, j, p = piece
        pre = []
        if kind == "W":
            if self.woff != j:
                pre.append(f"s_mov_b32 s{sWoff}, {j*196608}"); self.woff = j
            s = sWA if p < 3 else sWB
            pre.append(f"s_add_u32 m0, s{sWv}, {W_BASE + (j % 4)*W_SLOT + p*4096}")
            return pre, (f"buffer_load_dwordx4 v{vWg[p % 3]}, s[{s}:{s+3}], s{sWoff} offen{' nt' if self.a.opts.get('dmant') else ''} lds", f"W{j}")
        if self.xoff != j:
            pre.append(f"s_mov_b32 s{sXoff}, {j*128}"); self.xoff = j
        pre.append(f"s_add_u32 m0, s{sXw}, {(j % 3)*X_SLOT + p*1024}")
        return pre, (f"buffer_load_dwordx4 v{vXg[p]}, s[{sX}:{sX+3}], s{sXoff} offen{' nt' if self.a.opts.get('dmant') else ''} lds", f"X{j}")

def frag_reads(fs, u, k16):
    kk = 2*(u & 1) + k16
    out = [f"ds_read_b128 {ar(fX(fs, rt), 4)}, v{vXr[kk]} offset:{((u >> 1) % 3)*X_SLOT + rt*4096}" for rt in range(2)]
    ws = u % 4
    for blk in range(6):
        off = (ws % 2)*W_SLOT + blk*4096 + k16*2048
        out.append(f"ds_read_b64_tr_b16 {ar(fW(fs, blk), 2)}, v{vWr[ws//2]} offset:{off}")
        out.append(f"ds_read_b64_tr_b16 {ar(fW(fs, blk)+2, 2)}, v{vWr[ws//2]} offset:{off+512}")
    return out

def g1_mfma(fs, blk, rt):
    d = vr(acc(blk, rt), 16)
    w, x = ar(fW(fs, blk), 4), ar(fX(fs, rt), 4)
    return mf32(d, x, w, d) if blk % 3 == 2 else mf32(d, w, x, d)

def setup(a):
    o = a.opts
    a("L_START:")
    a("s_cmp_ge_u32 s2, 256")
    a("s_cbranch_scc1 L_END")
    a.stamp("start")
    a("s_load_dwordx4 s[48:51], s[0:1], 0")
    a("s_load_dwordx2 s[52:53], s[0:1], 32")
    a("s_load_dwordx2 s[54:55], s[0:1], 72")
    a(f"s_load_dwordx2 s[{sPWoA}:{sPWoA+1}], s[0:1], 16")
    a(f"s_load_dwordx4 s[{sPWoB}:{sPWoB+3}], s[0:1], 40")
    a(f"s_load_dwordx4 s[{sPOut}:{sPOut+3}], s[0:1], 56")
    a(f"v_and_b32 v{vLANE}, 63, v0")
    a(f"v_lshrrev_b32 v{vT[0]}, 6, v0")
    a("s_and_b32 s3, s2, 7")
    a(f"v_readfirstlane_b32 s{sW}, v{vT[0]}")
    a("s_lshr_b32 s35, s2, 3")
    a("s_and_b32 s37, s3, 3")
    a("s_lshl_b32 s36, s37, 2")
    a("s_and_b32 s38, s35, 3")
    a(f"s_add_u32 s{sHP}, s36, s38")
    a("s_lshr_b32 s39, s3, 2")
    a("s_lshl_b32 s36, s39, 3")
    a("s_lshr_b32 s38, s35, 2")
    a(f"s_add_u32 s{sT}, s36, s38")
    a(f"s_and_b32 s{sRH}, s{sW}, 1")
    a(f"s_lshr_b32 s{sHH}, s{sW}, 1")
    t0, t1, t2 = vT[0], vT[1], vT[2]
    if o.get("pfx"):
        a("s_lshl_b32 s38, s35, 5")
    else:
        a("s_lshl_b32 s38, s37, 5")
        a("s_add_u32 s38, s38, s35")
        a("s_lshl_b32 s38, s38, 3")
    a("s_lshl_b32 s47, s39, 10")
    a("s_add_u32 s38, s38, s47")
    a(f"v_add_u32 v{t0}, s38, v{vLANE}")
    a(f"v_lshlrev_b32 v{t0}, 11, v{t0}")
    if o.get("pfmode", 0) == 0:
        a("s_lshl_b32 s39, s39, 5")
        a("s_add_u32 s39, s39, s35")
        a("s_mul_i32 s39, s39, 6144")
        a("s_lshl_b32 s38, s37, 9")
        a("s_add_u32 s39, s39, s38")
        a(f"v_lshrrev_b32 v{t1}, 2, v{vLANE}")
        a(f"v_lshlrev_b32 v{t1}, 11, v{t1}")
        a(f"v_and_b32 v{t2}, 3, v{vLANE}")
        a(f"v_lshlrev_b32 v{t2}, 7, v{t2}")
        a(f"v_add3_u32 v{t1}, v{t1}, v{t2}, s39")
        if o.get("pf3", 1):
            a("s_lshr_b32 s47, s3, 2")
            a("s_xor_b32 s47, s47, 1")
            a("s_lshl_b32 s47, s47, 5")
            a("s_add_u32 s47, s47, s35")
            a("s_mul_i32 s47, s47, 6144")
            a("s_add_u32 s47, s47, s38")
            a(f"s_add_u32 s47, s47, {384 - 12*2048}")
            a(f"v_lshlrev_b32 v{t2}, 11, v{vLANE}")
            a(f"v_add_u32 v{t2}, s47, v{t2}")
            a(f"v_cmp_lt_u32 vcc, 11, v{vLANE}")
            a("s_nop 1")
            a(f"v_cndmask_b32 v{t1}, v{t1}, v{t2}, vcc")
    elif o.get("pfmode", 0) == 2:
        a("s_mul_i32 s39, s35, 12288")
        a("s_lshl_b32 s38, s37, 9")
        a("s_add_u32 s39, s39, s38")
        a(f"v_lshrrev_b32 v{t1}, 2, v{vLANE}")
        a(f"v_lshlrev_b32 v{t1}, 11, v{t1}")
        a(f"v_and_b32 v{t2}, 3, v{vLANE}")
        a(f"v_lshlrev_b32 v{t2}, 7, v{t2}")
        a(f"v_add3_u32 v{t1}, v{t1}, v{t2}, s39")
    else:
        a("s_mul_i32 s39, s2, 1536")
        a(f"v_lshlrev_b32 v{t1}, 7, v{vLANE}")
        a(f"v_add_u32 v{t1}, s39, v{t1}")
    a(f"s_mul_i32 s47, s35, {o.get('codelines', 20)}")
    a(f"v_add_u32 v{t2}, s47, v{vLANE}")
    a(f"v_lshlrev_b32 v{vT[7]}, 7, v{t2}")
    a(f"s_mov_b32 s{sPFstr}, 128")
    a(f"s_cmp_eq_u32 s{sW}, 0")
    a(f"s_cselect_b32 s{sPFstr}, s{sPFstr}, {64*6144}")
    a(f"s_cselect_b32 s38, {32 if o.get('pfx') else 8}, {24 if o.get('pfmode', 0) == 2 else (15 if o.get('pf3', 1) else 12)}")
    a("s_cselect_b64 s[56:57], -1, 0")
    a(f"v_cndmask_b32 v{vPF}, v{t1}, v{t0}, s[56:57]")
    a(f"s_cmp_eq_u32 s{sW}, 3")
    a("s_cselect_b64 s[56:57], -1, 0")
    a(f"v_cndmask_b32 v{vPF}, v{vPF}, v{vT[7]}, s[56:57]")
    a(f"s_cselect_b32 s38, {o.get('codelines', 20)}, s38")
    a(f"s_cselect_b32 s{sPFstr}, 0x4000000, s{sPFstr}")
    a(f"v_cmp_gt_u32 vcc, s38, v{vLANE}")
    a(f"v_mov_b32 v{t2}, {OOB}")
    a(f"s_mov_b32 s{sPFoff}, 0")
    a(f"v_cndmask_b32 v{vPF}, v{t2}, v{vPF}, vcc")
    a(f"v_cmp_gt_u32 vcc, {o.get('codelines', 20)}, v{vLANE}")
    a("s_getpc_b64 s[58:59]")
    a("L_PC:")
    a("s_sub_u32 s58, s58, L_PC - L_START")
    a(f"v_cndmask_b32 v{vT[7]}, v{t2}, v{vT[7]}, vcc")
    a("s_subb_u32 s59, s59, 0")
    r, c, t0, t1 = vT[0], vT[1], vT[2], vT[3]
    a(f"v_lshrrev_b32 v{r}, 3, v{vLANE}")
    a(f"v_and_b32 v{c}, 7, v{vLANE}")
    a(f"v_lshlrev_b32 v{t0}, 1, v{r}")
    a(f"v_and_b32 v{t0}, 4, v{t0}")
    a(f"v_xor_b32 v{t0}, v{t0}, v{c}")
    a(f"v_lshlrev_b32 v{t0}, 4, v{t0}")
    a(f"v_mul_u32_u24 v{t1}, 6144, v{r}")
    a(f"v_add_u32 v{t0}, v{t0}, v{t1}")
    a(f"s_mul_i32 s36, s{sW}, {8*6144}")
    a(f"s_lshl_b32 s37, s{sHP}, 7")
    a("s_add_u32 s36, s36, s37")
    a(f"v_add_u32 v{vWg[0]}, s36, v{t0}")
    a(f"v_add_u32 v{vWg[1]}, 2048, v{vWg[0]}")
    a(f"v_add_u32 v{vWg[2]}, 4096, v{vWg[0]}")
    a(f"v_lshrrev_b32 v{t0}, 1, v{r}")
    a(f"v_xor_b32 v{t0}, v{t0}, v{c}")
    a(f"v_lshlrev_b32 v{t0}, 4, v{t0}")
    a(f"v_lshlrev_b32 v{t1}, 11, v{r}")
    a(f"v_add_u32 v{t0}, v{t0}, v{t1}")
    a(f"s_lshl_b32 s36, s{sT}, 7")
    a(f"s_lshl_b32 s37, s{sW}, 5")
    a("s_add_u32 s36, s36, s37")
    a("s_lshl_b32 s36, s36, 11")
    a(f"v_add_u32 v{vXg[0]}, s36, v{t0}")
    a(f"v_xor_b32 v{vXg[1]}, 64, v{vXg[0]}")
    a(f"v_add_u32 v{vXg[1]}, {8*2048}, v{vXg[1]}")
    a(f"v_add_u32 v{vXg[2]}, {16*2048}, v{vXg[0]}")
    a(f"v_add_u32 v{vXg[3]}, {16*2048}, v{vXg[1]}")
    a(f"s_lshl_b32 s{sWv}, s{sW}, 10")
    a(f"s_lshl_b32 s{sXw}, s{sW}, 12")
    a("s_waitcnt lgkmcnt(0)")
    a.stamp("karg")
    a(f"s_mov_b32 s{sPF+2}, {1024*3072*2}")
    a(f"s_cmp_eq_u32 s{sW}, 0")
    a(f"s_cselect_b32 s{sPF}, s48, s50")
    a(f"s_cselect_b32 s{sPF+1}, s49, s51")
    a(f"s_cselect_b32 s{sPF+2}, {2048*1024*2}, s{sPF+2}")
    a(f"s_cmp_eq_u32 s{sW}, 2")
    a(f"s_cselect_b32 s{sPF}, s52, s{sPF}")
    a(f"s_cselect_b32 s{sPF+1}, s53, s{sPF+1}")
    a(f"s_cmp_eq_u32 s{sW}, 3")
    a(f"s_cselect_b32 s{sPF}, s58, s{sPF}")
    a(f"s_cselect_b32 s{sPF+1}, s59, s{sPF+1}")
    a(f"s_cselect_b32 s{sPF+2}, L_END - L_START, s{sPF+2}")
    a(f"s_and_b32 s{sPF+1}, s{sPF+1}, 0xffff")
    a(f"s_mov_b32 s{sPF+3}, 0x20000")
    for i in range(o.get("pf0", 2)):
        for s in pf_round(a): a.emit(s)
    srd(a, sX, 48, 49, 2048*1024*2)
    srd(a, sWA, 50, 51, 1024*3072*2)
    srd(a, sWB, 52, 53, 1024*3072*2)

def fillers_prologue(a):
    L = []
    f = L.append
    f("s_mov_b32 s16, s54"); f("s_and_b32 s17, s55, 0xffff"); f("s_mov_b32 s18, 0x10000000"); f("s_mov_b32 s19, 0x20000")
    f(f"s_mov_b32 s{sCode}, s58"); f(f"s_and_b32 s{sCode+1}, s59, 0xffff"); f(f"s_mov_b32 s{sCode+2}, L_END - L_START"); f(f"s_mov_b32 s{sCode+3}, 0x20000")
    m, h, t0, t1, row = vT[0], vT[1], vT[2], vT[3], vT[4]
    f(f"v_and_b32 v{m}, 31, v{vLANE}")
    f(f"v_lshrrev_b32 v{h}, 5, v{vLANE}")
    f(f"v_lshrrev_b32 v{t0}, 1, v{m}")
    f(f"v_and_b32 v{t0}, 7, v{t0}")
    f(f"v_xor_b32 v{t0}, v{t0}, v{h}")
    f(f"v_lshlrev_b32 v{t0}, 4, v{t0}")
    f(f"v_lshlrev_b32 v{t1}, 7, v{m}")
    f(f"v_add_u32 v{t0}, v{t0}, v{t1}")
    f(f"s_lshl_b32 s36, s{sRH}, 13")
    f(f"v_add_u32 v{vXr[0]}, s36, v{t0}")
    for kk in range(1, 4):
        f(f"v_xor_b32 v{vXr[kk]}, {kk*32}, v{vXr[0]}")
    f(f"v_and_b32 v{m}, 15, v{vLANE}")
    f(f"v_lshrrev_b32 v{t0}, 2, v{m}")
    f(f"v_lshlrev_b32 v{t1}, 3, v{h}")
    f(f"v_add_u32 v{row}, v{t0}, v{t1}")
    f(f"v_lshrrev_b32 v{t0}, 1, v{row}")
    f(f"v_and_b32 v{t0}, 1, v{t0}")
    f(f"v_xor_b32 v{t0}, s{sHH}, v{t0}")
    f(f"v_lshlrev_b32 v{t0}, 6, v{t0}")
    f(f"v_lshlrev_b32 v{t1}, 7, v{row}")
    f(f"v_add_u32 v{t0}, v{t0}, v{t1}")
    f(f"v_and_b32 v{t1}, 16, v{vLANE}")
    f(f"v_lshlrev_b32 v{t1}, 1, v{t1}")
    f(f"v_add_u32 v{t0}, v{t0}, v{t1}")
    f(f"v_and_b32 v{t1}, 3, v{m}")
    f(f"v_lshlrev_b32 v{t1}, 3, v{t1}")
    f(f"v_add_u32 v{t0}, v{t0}, v{t1}")
    f(f"v_add_u32 v{vWr[0]}, {W_BASE}, v{t0}")
    f(f"v_add_u32 v{vWr[1]}, {W_BASE + 2*W_SLOT}, v{t0}")
    for r in range(ACC0, 256):
        f(f"v_mov_b32 v{r}, 0")
    return L

def fillers_late(a):
    L = []
    f = L.append
    q, b, t = vT[0], vT[1], vT[2]
    f(f"v_lshlrev_b32 v{vL16}, 4, v{vLANE}")
    f(f"v_and_b32 v{q}, 31, v{vLANE}")
    f(f"v_lshrrev_b32 v{b}, 5, v{vLANE}")
    f(f"v_lshlrev_b32 v{b}, 2, v{b}")
    f(f"v_sub_u32 v{b}, v{q}, v{b}")
    f(f"s_mov_b32 s36, {NEGBIG}")
    for i in range(24):
        r, add = (i, 0) if i < 16 else (i - 8, 32)
        d = vMc + i
        kv = 8*(r >> 2) + (r & 3)
        f(f"v_add_u32 v{d}, {add - kv}, v{b}")
        f(f"v_and_b32 v{d}, 0xfffffff1, v{d}")
        f(f"v_min_u32 v{d}, 1, v{d}")
        f(f"v_sub_u32 v{d}, 0, v{d}")
        f(f"v_and_b32 v{d}, s36, v{d}")
    f(f"v_lshrrev_b32 v{q}, 2, v{vLANE}")
    f(f"v_lshrrev_b32 v{t}, 4, v{vLANE}")
    f(f"v_xor_b32 v{q}, v{q}, v{t}")
    f(f"v_and_b32 v{q}, 1, v{q}")
    f(f"v_add_u32 v{q}, -1, v{q}")
    f(f"v_and_b32 v{q}, 0x3f803f80, v{q}")
    for i in range(4):
        f(f"v_accvgpr_write_b32 a{aONE+i}, v{q}")
    f(f"v_min_u32 v{vF0}, 1, v{vLANE}")
    f(f"v_lshlrev_b32 v{vF0}, 31, v{vF0}")
    f(f"s_mov_b32 s{sCS}, {CSCALE}"); f(f"s_mov_b32 s62, {CSCALE}"); f(f"s_mov_b32 s63, {CSCALE}")
    f(f"s_lshl_b32 s36, s{sHP}, 19")
    f(f"s_lshl_b32 s37, s{sW}, 13")
    f(f"s_lshl_b32 s38, s{sHH}, 14")
    f(f"s_lshl_b32 s39, s{sRH}, 13")
    f(f"s_add_u32 s{sKVdst}, s38, s39")
    f(f"s_add_u32 s{sKVbase}, s36, s{sKVdst}")
    f(f"s_lshl_b32 s{sKVt}, s{sT}, 15")
    f(f"s_add_u32 s{sKVsrc}, s{sKVbase}, s{sKVt}")
    f(f"s_and_b32 s{sKVt}, s{sT}, 7"); f(f"s_and_b32 s{sKVb}, s{sT}, 8")
    f(f"s_add_u32 s36, s38, {KV_LDS[0]}")
    f(f"v_add_u32 v{vKV[0]}, s36, v{vL16}")
    f(f"v_add_u32 v{vKV[1]}, 32768, v{vKV[0]}")
    f(f"s_lshl_b32 s{sHead}, s{sHP}, 1")
    f(f"s_add_u32 s{sHead}, s{sHead}, s{sHH}")
    f(f"s_lshl_b32 s{sSeq}, s{sT}, 1")
    f(f"s_add_u32 s{sSeq}, s{sSeq}, s{sRH}")
    f(f"s_lshl_b32 s37, s{sSeq}, 6")
    f(f"s_add_u32 s37, s37, s{sHead}")
    f(f"s_lshl_b32 s{sOst}, s37, 11")
    f(f"s_lshl_b32 s38, s{sHead}, 5")
    f(f"s_add_u32 s38, s38, s{sSeq}")
    f(f"s_lshl_b32 s28, s38, 2")
    f(f"s_lshl_b32 s38, s38, 12")
    f(f"s_add_u32 s{sHalo}, s38, {HALO_OFF}")
    f(f"s_mov_b32 s{sPASS}, 0")
    f(f"s_add_u32 s{sKVp}, s54, s{sKVbase}\ns_addc_u32 s{sKVp+1}, s55, 0")
    f(f"s_cmp_lt_u32 s{sW}, 2\ns_cselect_b32 s{sPFW}, s{sPWoA}, s{sPWoB}\ns_cselect_b32 s{sPFW+1}, s{sPWoA+1}, s{sPWoB+1}")
    f(f"s_lshl_b32 s36, s2, 1"); f(f"s_add_u32 s36, s36, s{sRH}"); f("s_lshl_b32 s36, s36, 12")
    f(f"v_and_b32 v24, 7, v{vLANE}"); f("v_lshlrev_b32 v24, 7, v24"); f("v_add_u32 v23, s36, v24")
    f(f"v_and_b32 v24, 15, v{vLANE}"); f("v_lshlrev_b32 v24, 7, v24")
    f("s_lshr_b32 s36, s2, 3"); f("s_lshl_b32 s36, s36, 2"); f(f"s_add_u32 s36, s36, s{sW}"); f("s_lshl_b32 s36, s36, 14")
    f("v_add_u32 v0, s36, v24")
    f(f"s_lshl_b32 s36, s{sSeq}, 6")
    f(f"s_lshl_b32 s37, s{sHead}, 1")
    f("s_add_u32 s36, s36, s37")
    f(f"v_lshrrev_b32 v9, 5, v{vLANE}")
    f(f"v_add_u32 v{vGrow}, s36, v9")
    f(f"v_and_b32 v25, 31, v{vLANE}")
    f("v_lshlrev_b32 v25, 4, v25")
    f(f"v_lshl_add_u32 v9, v{vGrow}, 11, v25")
    f(f"s_mov_b32 s56, s{sPG}"); f(f"s_and_b32 s57, s{sPG+1}, 0xffff"); f("s_mov_b32 s58, 2048"); f("s_mov_b32 s59, 0x20000")
    f(f"s_lshl_b32 s38, s{sHP}, 2"); f(f"s_add_u32 s38, s38, s{sW}"); f("s_lshl_b32 s38, s38, 6")
    f(f"s_add_u32 s31, s38, {F_KV}"); f(f"s_lshl_b32 s38, s{sT}, 2"); f("s_add_u32 s32, s31, s38")
    f(f"s_add_u32 s33, s28, {F_H - 4}"); f(f"s_cmp_eq_u32 s{sSeq}, 0\ns_cselect_b32 s38, 4, 0"); f("s_add_u32 s33, s33, s38")
    return L

READ_GAPS = [0,0,1,1,2,2,3,3,4,5,6,7,8,9]
def gemm1(a):
    o = a.opts
    p1 = P1(a)
    W = lambda j, ps: [("W", j, p) for p in ps]
    X = lambda v, ps: [("X", v, p) for p in ps]
    pro = X(0, range(4)) + W(0, range(6)) + W(1, range(6))
    sched = {(0,0): X(1, range(4)) + W(2, [0,1]), (0,1): W(2, [2,3,4,5]) + W(3, [0,1]),
             (1,0): W(3, [2,3,4,5]) + W(4, [0,1]), (1,1): X(2, range(4)) + W(4, [2,3]),
             (2,0): W(4, [4,5]) + W(5, [0,1,2,3]), (2,1): W(5, [4,5]) + X(3, range(4)),
             (3,0): W(6, range(6))}
    for u in range(3, 28):
        v, p0 = ((u + 5)//2, 0) if u & 1 else ((u + 4)//2, 2)
        sched[(u, 1)] = W(u + 4, [0,1,2]) + (X(v, [p0]) if v < 16 else [])
        sched[(u + 1, 0)] = W(u + 4, [3,4,5]) + (X(v, [p0 + 1]) if v < 16 else [])
    for (u, hf), ps in sched.items():
        done = u - 1 if hf == 0 else u
        for k, j, p in ps:
            if k == "W": assert j < 4 or done >= j - 4, (u, hf, k, j)
            else: assert j < 3 or done >= 2*(j - 3) + 1, (u, hf, k, j)
    npf0 = o.get("pf0", 2)
    pfs = {}
    r = npf0
    for u in range(0, 32):
        while r < 16 and u >= max(0, 2*r - o.get("pfd", 7)) and pfs.get(u, 0) < 1:
            pfs[u] = pfs.get(u, 0) + 1; r += 1
    fil = fillers_prologue(a)
    per = (len(fil) + len(pro) - 1)//len(pro)
    for i, pc in enumerate(pro):
        pre, d = p1.dma(pc)
        for s in pre: a(s)
        chunk = fil[i*per:(i+1)*per]
        a(chunk[0] if chunk else "s_nop 0")
        a.emit(d)
        for s in chunk[1:]: a(s)
    a(f"s_or_b32 s36, s2, s{sW}")
    a("s_cmp_lg_u32 s36, 0")
    a("s_cbranch_scc1 L_NONONCE")
    a("s_memrealtime s[36:37]")
    a("v_mov_b32 v20, 0")
    a("s_waitcnt lgkmcnt(0)")
    a("s_or_b32 s36, s36, 1")
    a("v_mov_b32 v19, s36")
    a(f"global_store_dword v20, v19, s[{sPDbg}:{sPDbg+1}] sc1")
    a("L_NONONCE:")
    a.stamp("issued")
    a.emit(a.wait(["X0", "W0"]))
    a("s_barrier")
    a.stamp("first")
    for s in frag_reads(0, 0, 0): a(s)
    a("s_waitcnt lgkmcnt(0)")
    late = fillers_late(a)
    order = [(b, rt) for b in range(6) for rt in range(2)]
    for u in range(32):
        for hf in range(2):
            last = (u == 31 and hf == 1)
            reads = [] if last else (frag_reads(1, u, 1) if hf == 0 else frag_reads(0, u + 1, 0))
            sides = {}
            for g, rd in zip(READ_GAPS, reads): sides.setdefault(g, []).append(rd)
            ps = sched.get((u, hf), [])
            gaps = {4: [(1,2),(4,5),(7,8),(9,10)], 6: [(0,1),(2,3),(4,5),(6,7),(8,9),(10,11)]}
            gp = gaps[6] if len(ps) > 4 else gaps[4]
            for (g0, g1), pc in zip(gp, ps):
                pre, d = p1.dma(pc)
                sides.setdefault(g0, []).extend(pre)
                sides.setdefault(g1, []).insert(0, d)
            if hf == 0 and pfs.get(u):
                sides.setdefault(11, []).extend(pf_round(a))
            if u >= 6 and late and not last:
                for g in (5, 6, 8, 10):
                    for k in range(2):
                        if late: sides.setdefault(g, []).append(late.pop(0))
            if u == 28 and hf == 1:
                sides.setdefault(5, []).append((f"buffer_load_dword v{vPFd}, v{vT[7]}, s[{sCode}:{sCode+3}], 0 offen", "cpf"))
            w0 = o.get("wopf_step", 99)
            if u in (w0, w0 + 2, w0 + 4, w0 + 6) and hf == 0:
                sides.setdefault(11, []).append((f"global_load_dword v{vPFd}, v23, s[{sPFW}:{sPFW+1}] offset:{(u - w0)//2*1024}", "wopf"))
            if u in (28, 29) and hf == 1 or u in (29, 30) and hf == 0:
                j0 = 2*((u - 28)*2 + hf - 1)
                for j, g_ in ((j0, 3), (j0 + 1, 8)):
                    ins = (f"buffer_load_dwordx4 {ar(aGATE+4*j, 4)}, v9, s[{sX}:{sX+3}], 0 offen offset:{512*j}" if j < 4 else
                           f"buffer_load_dwordx4 {ar(aGATE+4*j, 4)}, v25, s[56:59], 0 offen offset:{512*(j-4)}")
                    sides.setdefault(g_, []).append((ins, "gate"))
            if u == 30 and hf == 1:
                sides.setdefault(5, []).append("v_mov_b32 v19, 0")
                sides.setdefault(7, []).append((f"global_load_dword v21, v19, s[{sPDbg}:{sPDbg+1}] sc1", "nonce"))
            od = order
            if last:
                od = [(4,1),(5,1),(1,0),(2,0),(1,1),(2,1),(3,1),(4,0),(5,0),(3,0),(0,0),(0,1)]
                e1_head(a, sides)
            a.inter([g1_mfma(hf, b, rt) for b, rt in od], sides)
            if hf == 0:
                if u < 31:
                    need = [f"W{u+1}"] + ([f"X{(u+1)//2}"] if (u + 1) % 2 == 0 else [])
                    a.emit(a.wait(need, lgkm=True))
                else:
                    a("s_waitcnt lgkmcnt(0)")
                a("s_barrier")
            elif not last:
                a("s_waitcnt lgkmcnt(0)")
        if u % 8 == 7: a.stamp(f"g{u}")
    assert not late

def packl(base, out=None):
    out = base if out is None else out
    return [f"v_cvt_pk_bf16_f32 v{out+j}, v{base+2*j}, v{base+2*j+1}" for j in range(8)]
def pack(a, base, out=None):
    for s in packl(base, out): a(s)
class L(list):
    def __call__(self, s): self.append(s)
    def emit(self, s): self.append(s)
def weave(a, work, extra, first, every):
    nxt = first
    for i, w in enumerate(work):
        while extra and i >= nxt:
            for s in extra.pop(0): a.emit(s)
            nxt += every
        a.emit(w)

def padfill(a, fill, n):
    k = 0
    for f in fill:
        a.emit(f); k += len(f.split("\n")) if isinstance(f, str) else 1
    if k < n: a(f"s_nop {n - k - 1}")

def local_tile(a, Q, Kc, Vc, Kp, Vp1, SC, SP, O, PC, PP, tmp, off, tag, fill1=(), fill2=()):
    m, t = tmp, tmp + 1
    a(mf32(vr(SC, 16), vr(Kc, 4), vr(Q, 4), vr(vMc, 16)))
    a(mf32(vr(SC, 16), vr(Kc+4, 4), vr(Q+4, 4), vr(SC, 16)))
    a(mf32(vr(SP, 16), vr(Kp, 4), vr(Q, 4), vr(vMc + 8, 16)))
    a(mf32(vr(SP, 16), vr(Kp+4, 4), vr(Q+4, 4), vr(SP, 16)))
    padfill(a, fill1, 10)
    vals = [SC + i for i in range(16)] + [SP + 8 + i for i in range(8)]
    a(f"v_max3_f32 v{m}, v{vals[0]}, v{vals[1]}, v{vals[2]}")
    for i in range(3, 23, 2):
        a(f"v_max3_f32 v{m}, v{m}, v{vals[i]}, v{vals[i+1]}")
    a(f"v_max_f32 v{m}, v{m}, v{vals[23]}")
    a(f"v_mov_b32 v{t}, v{m}")
    a("s_nop 1")
    a(f"v_permlane32_swap_b32 v{m}, v{t}")
    a(f"v_max_f32 v{m}, v{m}, v{t}")
    a(f"v_mul_f32 v{m}, s{sCS}, v{m}")
    for v in vals:
        a(f"v_fma_f32 v{v}, v{v}, s{sCS}, -v{m}")
    L = SP
    for i in range(10): a(f"v_exp_f32 v{vals[i]}, v{vals[i]}")
    for j in range(4): a(f"v_cvt_pk_bf16_f32 v{PC+j}, v{SC+2*j}, v{SC+2*j+1}")
    for i in range(10, 13): a(f"v_exp_f32 v{vals[i]}, v{vals[i]}")
    a(mf32(vr(O, 16), vr(Vc, 4), vr(PC, 4), 0))
    for i in range(13, 18): a(f"v_exp_f32 v{vals[i]}, v{vals[i]}")
    a(mf16(vr(L, 4), ar(aONE, 4), vr(PC, 4), 0))
    for j in range(4, 8): a(f"v_cvt_pk_bf16_f32 v{PC+j}, v{SC+2*j}, v{SC+2*j+1}")
    for i in range(18, 20): a(f"v_exp_f32 v{vals[i]}, v{vals[i]}")
    a(mf32(vr(O, 16), vr(Vc+4, 4), vr(PC+4, 4), vr(O, 16)))
    for i in range(20, 24): a(f"v_exp_f32 v{vals[i]}, v{vals[i]}")
    a(mf16(vr(L, 4), ar(aONE, 4), vr(PC+4, 4), vr(L, 4)))
    for j in range(4): a(f"v_cvt_pk_bf16_f32 v{PP+j}, v{SP+8+2*j}, v{SP+9+2*j}")
    a("s_nop 1")
    a(mf16(vr(L, 4), ar(aONE, 4), vr(PP, 4), vr(L, 4)))
    a(mf32(vr(O, 16), vr(Vp1, 4), vr(PP, 4), vr(O, 16)))
    padfill(a, fill2, 7)
    a(f"v_rcp_f32 v{m}, v{L}")
    a(f"s_add_u32 s35, s{sOst}, {OB_OFF + off}")
    a("s_nop 2")
    for i in range(16):
        a(f"v_mul_f32 v{O+i}, v{O+i}, v{m}")
    return [(f"buffer_store_dwordx4 {{0}}, v{vL16}, {WS}, s35 offen sc1", tag),
            (f"buffer_store_dwordx4 {{0}}, v{vL16}, {WS}, s35 offen offset:1024 sc1", tag)]

def flag_store(sreg, vtmp, tag):
    return [f"v_mov_b32 v{vtmp}, s{sNONCE}", (f"buffer_store_dword v{vtmp}, v{vF0}, {WS}, s{sreg} offen sc1", tag)]

def poll_check(a, name, vdst, vaddr, sreg, tag, mask=-1):
    a.emit(a.wait([tag]))
    a(f"v_cmp_ne_u32 vcc, s{sNONCE}, v{vdst}")
    a("s_nop 3")
    a(f"s_and_b32 s{sSpin}, vcc_lo, {mask}")
    a(f"s_cbranch_scc1 {name}_S")
    a(f"{name}_R:")
    a.tail.append(f"""{name}_S:
    s_mov_b32 s{sSpin}, 0
{name}_L:
    buffer_load_dword v{vdst}, v{vaddr}, {WS}, s{sreg} offen sc1
    s_add_u32 s{sSpin}, s{sSpin}, 1
    s_waitcnt vmcnt(0)
    v_cmp_ne_u32 vcc, s{sNONCE}, v{vdst}
    s_cmp_lt_u32 s{sSpin}, 0x40000
    s_cbranch_scc0 {name}_R
    s_nop 2
    s_and_b32 vcc_hi, vcc_lo, {mask}
    s_cbranch_scc1 {name}_L
    s_branch {name}_R""")

def e1_head(a, sides):
    a.halo = [(f"buffer_store_dwordx4 {vr(pKB[1], 4)}, v{vL16}, {WS}, s{sHalo} offen sc1", "halo"),
              (f"buffer_store_dwordx4 {vr(pKB[1]+4, 4)}, v{vL16}, {WS}, s{sHalo} offen offset:1024 sc1", "halo"),
              (f"buffer_store_dwordx4 {vr(pVB[1]+4, 4)}, v{vL16}, {WS}, s{sHalo} offen offset:2048 sc1", "halo")]
    a.kv = []; a.dsw = []
    for rt in range(2):
        for (blk, f0) in ((pKA[rt], 0), (pVA[rt], 2)):
            for f in range(2):
                off = (f0 + f)*1024
                a.kv.append([(f"buffer_store_dwordx4 {vr(blk+4*f, 4)}, v{vL16}, {WS}, s{26 if rt == 0 else 25} offen offset:{off} sc1", "kv")])
                a.dsw.append([f"ds_write_b128 v22, {vr(blk+4*f, 4)} offset:{rt*4096 + off}"])
    sides[0] = [f"s_add_u32 s36, s{sKVdst}, {KV_LDS[0]}", f"v_add_u32 v22, s36, v{vL16}", f"v_add_u32 v{vL16b}, 4096, v{vL16}",
                f"s_add_u32 s25, s{sKVsrc}, 4096", f"s_mov_b32 s26, s{sKVsrc}"]
    sides[1] = ["s_nop 3"]; sides[2] = ["s_nop 3"]
    w = packl(KB[1], pKB[1])[:4] + [a.halo[0]] + packl(KB[1], pKB[1])[4:] + [a.halo[1]] + packl(VB[1], pVB[1]) + [a.halo[2]] \
        + packl(KA[0], pKA[0]) + a.kv.pop(0) + packl(VA[0], pVA[0]) + packl(KA[1], pKA[1])
    for g in range(3, 12):
        sides[g] = w[:5]; w = w[5:]
    a.e1rest = w

def e1(a):
    o = a.opts
    kv = a.kv
    w = a.e1rest + sel_init(23, 24) + packl(VA[1], pVA[1]) + packl(QB[0], pQB[0]) + packl(QB[1], pQB[1]) + packl(KB[0], pKB[0]) + packl(VB[0], pVB[0])
    weave(a, w, a.dsw[:6], 2, 6)
    for g in a.dsw[6:]:
        for s in g: a(s)
    for s in kv.pop(0): a.emit(s)
    a.stamp("e1pack")
    qa = []
    for q in QA:
        qa += [f"v_pk_mul_f32 {vr(q+2*j, 2)}, {vr(q+2*j, 2)}, s[62:63]" for j in range(8)] + packl(q)
    lt = L()
    st = local_tile(lt, pQB[1], pKB[1], pVB[1], pKB[0], pVB[0]+4, 128, 144, 176, 240, 248, 252, 65536, "ob1", fill1=qa[:22], fill2=qa[22:])
    lt += packl(176, 56)
    a.ob1 = [(st[0][0].format("v[56:59]"), "ob1"), (st[1][0].format("v[60:63]"), "ob1")]
    weave(a, lt, [kv.pop(0), kv.pop(0)], o.get("st_a", 45), o.get("st_b", 60))
    a.kv_left = kv
    a.stamp("loc1")
    a.emit(a.wait(["halo", "nonce"], lgkm=True))
    a(f"v_readfirstlane_b32 s{sNONCE}, v21")
    a(f"s_add_u32 s36, s28, {F_H}")
    a("s_barrier")
    a(f"s_cmp_eq_u32 s{sNONCE}, 0")
    a("s_cbranch_scc1 L_NONCE_S")
    a("L_NONCE_R:")
    a.tail.append(f"""L_NONCE_S:
    s_mov_b32 s{sSpin}, 0
L_NONCE_L:
    global_load_dword v21, v19, s[{sPDbg}:{sPDbg+1}] sc1
    s_add_u32 s{sSpin}, s{sSpin}, 1
    s_waitcnt vmcnt(0)
    v_readfirstlane_b32 s{sNONCE}, v21
    s_cmp_lt_u32 s{sSpin}, 0x40000
    s_cbranch_scc0 L_NONCE_R
    s_nop 2
    s_cmp_eq_u32 s{sNONCE}, 0
    s_cbranch_scc1 L_NONCE_L
    s_branch L_NONCE_R""")
    for s in flag_store(36, 20, "fH"): a.emit(s)
    a.stamp("fH")

sKVp, sKVg, sOg, sPFW = 84, 98, 100, 52
vL16b = 5
def kv_dma(slot, group, tag):
    out = [f"s_add_u32 m0, s{sKVdst}, {KV_LDS[slot] + group*4096}"]
    for p in range(4):
        out.append((f"global_load_lds_dwordx4 v{vL16b if group else vL16}, s[{sKVg}:{sKVg+1}] offset:{p*1024} sc1", tag))
    return out
sKVb, sKVd = 3, 34
def kv_advance(c):
    if c <= 7:
        return [f"s_cmp_le_u32 s{sKVt}, {c-1}", f"s_addc_u32 s36, s{sKVb}, {c-1}", "s_lshl_b32 s36, s36, 15",
                f"s_add_u32 s{sKVg}, s{sKVp}, s36", f"s_addc_u32 s{sKVg+1}, s{sKVp+1}, 0"]
    return [f"s_add_u32 s36, s{sKVb}, {c}", "s_and_b32 s36, s36, 15", "s_lshl_b32 s36, s36, 15",
            f"s_add_u32 s{sKVg}, s{sKVp}, s36", f"s_addc_u32 s{sKVg+1}, s{sKVp+1}, 0"]

def sel_init(t0, t1):
    return [f"v_lshrrev_b32 v{t0}, 1, v{vLANE}", f"v_and_b32 v{t0}, 3, v{t0}", f"v_min_u32 v{t1}, 1, v{t0}", f"v_add_u32 v{t1}, -1, v{t1}",
            f"v_and_b32 v{t1}, 0x3f803f80, v{t1}", f"v_accvgpr_write_b32 a{aSEL}, v{t1}", f"v_accvgpr_write_b32 a{aSEL+1}, v{t1}",
            f"v_xor_b32 v{t0}, 2, v{t0}", f"v_min_u32 v{t1}, 1, v{t0}", f"v_add_u32 v{t1}, -1, v{t1}",
            f"v_and_b32 v{t1}, 0x3f803f80, v{t1}", f"v_accvgpr_write_b32 a{aSEL+2}, v{t1}", f"v_accvgpr_write_b32 a{aSEL+3}, v{t1}",
            f"v_and_b32 v{vIDX}, 1, v{vLANE}", f"v_mul_u32_u24 v{vIDX}, 0xaaaa, v{vIDX}", f"v_add_u32 v{vIDX}, 0x4444, v{vIDX}"]
def smf(q): return f"v_smfmac_f32_16x16x64_bf16 {ar(aL[q], 4)}, {ar(aSEL, 4)}, {vr(P[q], 8)}, v{vIDX}"

def H(a, q, vpar, qk=True, pv=True, pv_first=False, slots=None):
    slots = slots or {}
    o = 1 - q
    e = [f"v_exp_f32 v{S[q]+i}, v{S[q]+i}" for i in range(16)]
    c = [f"v_cvt_pk_bf16_f32 v{P[q]+j}, v{S[q]+2*j}, v{S[q]+2*j+1}" for j in range(8)]
    So, Oo = vr(S[o], 16), ar(aO[o], 16)
    M = [mf32(So, ar(aK, 4), vr(QA[o], 4), vr(NM[o], 16)) if qk else None,
         mf32(So, ar(aK+4, 4), vr(QA[o]+4, 4), So) if qk else None,
         mf32(Oo, ar(aV[vpar], 4), vr(P[o], 4), 0 if pv_first else Oo) if pv else None,
         mf32(Oo, ar(aV[vpar]+4, 4), vr(P[o]+4, 4), Oo) if pv else None,
         smf(o) if pv else None, None]
    V = [[e[0], e[1], e[2]], [e[3], c[0], c[1], e[4]], [e[5], e[6], e[7]], [c[2], c[3], e[8], e[9], e[10], e[11], c[4], c[5]],
         [], [e[12], e[13], e[14], e[15], c[6], c[7]]]
    if not pv: V[3] = ["s_nop 0"] + V[3]
    for i in range(6):
        if M[i]: a(M[i])
        for s in slots.get(i, []): a.emit(s)
        for s in V[i]: a(s)

def rdK(slot, off): return [f"ds_read_b128 {ar(aK, 4)}, v{vKV[slot]} offset:{off}", f"ds_read_b128 {ar(aK+4, 4)}, v{vKV[slot]} offset:{off+1024}"]
def rdV(par, slot, off): return [f"ds_read_b128 {ar(aV[par], 4)}, v{vKV[slot]} offset:{off+2048}", f"ds_read_b128 {ar(aV[par]+4, 4)}, v{vKV[slot]} offset:{off+3072}"]

FREE_A = [0, 3, 4]; FREE_B = [2, 3, 4, 5]
TORD = [0, 2, 1, 3]
def tile(a, n, side=None, end_b=None):
    sa = {}; sb = {}
    if n < 63:
        m = n + 1
        k = rdK((m >> 2) & 1, TORD[m & 3]*4096); v = rdV(m & 1, (m >> 2) & 1, TORD[m & 3]*4096)
        sa[1] = [k[0]]; sa[2] = [k[1]]; sa[5] = ["s_waitcnt lgkmcnt(0)"]
        sb[0] = [v[0]]; sb[1] = [v[1]]
    if side is not None:
        for g in FREE_A:
            if side: sa.setdefault(g, []).extend(side.pop(0))
        for g in (FREE_B if end_b is None else FREE_B[:-1]):
            if side: sb.setdefault(g, []).extend(side.pop(0))
        if sb.get(4) and sb.get(5) and isinstance(sb[4][-1], str) and " m0," in sb[4][-1] and isinstance(sb[5][0], tuple):
            if not sb.get(3): sb[3] = sb.pop(4)
            elif len(sb[3]) == 1 and isinstance(sb[3][0], str) and " m0," not in sb[3][0] and not sb[3][0].startswith(("s_cmp", "s_addc", "s_add_u32 s9", "s_add_u32 s10")):
                sb[3], sb[4] = sb[4], sb[3]
            else: sb[4] = sb[4] + ["s_nop 0"]
    if end_b: sb.setdefault(5, []).extend(end_b)
    H(a, 0, (n - 1) & 1, pv=(n != 0), pv_first=(n == 1), slots=sa)
    H(a, 1, n & 1, qk=(n < 63), pv_first=(n == 0), slots=sb)

def neg_max(a):
    for q in range(2): a(f"v_mov_b32 v{21+q}, v{19+q}")
    a("s_nop 0")
    for q in range(2): a(f"v_permlane32_swap_b32 v{19+q}, v{21+q}")
    for q in range(2): a(f"v_max_f32 v{19+q}, v{19+q}, v{21+q}")
    for q in range(2):
        for i in range(16): a(f"v_sub_f32 v{NM[q]+i}, 0, v{19+q}")

def gate_compute(a):
    z, t = 23, 24
    for i in range(16):
        a(f"v_accvgpr_read_b32 v{96+(i%4)}, a{aGATE+i}")
        a(f"v_accvgpr_read_b32 v{100+(i%4)}, a{aGATE+16+i}")
        a(f"v_dot2_f32_bf16 v{z}, v{96+(i%4)}, v{100+(i%4)}, {0 if i == 0 else 'v%d' % z}")
    a("s_nop 2")
    for sh in (8, 4, 2, 1):
        a(f"v_add_f32_dpp v{z}, v{z}, v{z} row_ror:{sh} row_mask:0xf bank_mask:0xf")
        a("s_nop 1")
    a(f"v_mov_b32 v{t}, v{z}")
    a("s_nop 1")
    a(f"v_permlane16_swap_b32 v{z}, v{t}")
    a(f"v_add_f32 v{z}, v{z}, v{t}")
    a(f"v_mul_f32 v{z}, {f2u(-math.log2(math.e))}, v{z}")
    a(f"v_exp_f32 v{z}, v{z}")
    a(f"v_and_b32 v{t}, 31, v{vLANE}")
    a(f"v_add_f32 v{z}, 1.0, v{z}")
    a(f"v_rcp_f32 v{z}, v{z}")
    a(f"v_min_u32 v{t}, 1, v{t}")
    a(f"v_lshlrev_b32 v{t}, 31, v{t}")
    a(f"v_lshl_or_b32 v{t}, v{vGrow}, 2, v{t}")
    a(f"s_mov_b32 s36, {G_OFF}")
    a.emit((f"buffer_store_dword v{z}, v{t}, {WS}, s36 offen sc1", "g"))

def p4_setup(a):
    srd(a, sWoA, sPWoA, sPWoA+1, 1024*1024*2)
    srd(a, sWoB, sPWoB, sPWoB+1, 1024*1024*2)
    srd(a, sOutD, sPOut, sPOut+1, 2048*1024*2)
    a("s_and_b32 s36, s2, 7")
    a("s_lshr_b32 s37, s2, 3")
    a(f"s_and_b32 s{sC4}, s37, 15")
    a("s_lshr_b32 s37, s37, 4")
    a("s_lshl_b32 s36, s36, 1")
    a(f"s_add_u32 s{sT4}, s36, s37")
    r, c, t0, t1 = 200, 201, 202, 203
    a(f"v_lshrrev_b32 v{r}, 3, v{vLANE}")
    a(f"v_and_b32 v{c}, 7, v{vLANE}")
    a(f"v_lshlrev_b32 v{t0}, 1, v{r}")
    a(f"v_and_b32 v{t0}, 4, v{t0}")
    a(f"v_xor_b32 v{t0}, v{t0}, v{c}")
    a(f"v_lshlrev_b32 v{t0}, 4, v{t0}")
    a(f"v_lshl_add_u32 v{t0}, v{r}, 11, v{t0}")
    a(f"s_lshl_b32 s36, s{sW}, 14")
    a(f"s_lshl_b32 s37, s{sC4}, 7")
    a("s_add_u32 s36, s36, s37")
    a(f"v_add_u32 v{vWo_g}, s36, v{t0}")
    a(f"v_and_b32 v{r}, 15, v{vLANE}")
    a(f"v_lshrrev_b32 v{t0}, 2, v{r}")
    a(f"v_lshrrev_b32 v{t1}, 5, v{vLANE}")
    a(f"v_lshl_add_u32 v{c}, v{t1}, 2, v{t0}")
    a(f"v_lshrrev_b32 v{t0}, 1, v{c}")
    a(f"v_and_b32 v{t0}, 1, v{t0}")
    a(f"v_lshlrev_b32 v{t0}, 6, v{t0}")
    a(f"v_lshl_add_u32 v{t0}, v{c}, 7, v{t0}")
    a(f"v_and_b32 v{t1}, 16, v{vLANE}")
    a(f"v_lshl_add_u32 v{t0}, v{t1}, 1, v{t0}")
    a(f"v_and_b32 v{t1}, 3, v{r}")
    a(f"v_lshl_add_u32 v{vWo_r[0]}, v{t1}, 3, v{t0}")
    a(f"v_xor_b32 v{vWo_r[1]}, 64, v{vWo_r[0]}")
    for b in (1, 2):
        for ct in range(2):
            a(f"v_add_u32 v{vWo_r[2*b+ct]}, {b*65536}, v{vWo_r[ct]}")
    a(f"s_lshl_b32 s36, s{sT4}, 2")
    a(f"s_add_u32 s36, s36, s{sW}")
    a(f"s_lshl_b32 s{sOrow}, s36, 16")
    a(f"s_lshr_b32 s36, s36, 1")
    a(f"s_lshl_b32 s29, s36, 7")
    a(f"s_lshl_b32 s{sOoff}, s{sC4}, 12")
    a(f"s_lshl_b32 s{sWooff}, s{sC4}, 17")
    a(f"v_and_b32 v16, 31, v{vLANE}")
    a("v_lshlrev_b32 v16, 2, v16")
    a(f"v_and_b32 v17, 15, v{vLANE}")
    a(f"v_cmp_le_u32 vcc, s{sKVt}, v17")
    a(f"v_add_u32 v17, s{sKVb}, v17")
    a("s_nop 0")
    a("v_addc_co_u32 v17, vcc, 0, v17, vcc")
    a("v_and_b32 v17, 15, v17")
    a("v_lshlrev_b32 v17, 2, v17")
    a("s_lshr_b32 s36, s2, 3")
    a("s_lshl_b32 s36, s36, 2")
    a(f"s_add_u32 s36, s36, s{sW}")
    a("s_lshl_b32 s36, s36, 12")
    a(f"s_add_u32 s36, s36, {24*65536}")
    a(f"v_and_b32 v15, 15, v{vLANE}")
    a("v_lshlrev_b32 v15, 7, v15")
    a("v_add_u32 v15, s36, v15")
    a(f"s_add_u32 s36, s{sOrow}, {OB_OFF}")
    a(f"s_add_u32 s{sOg}, s54, s36")
    a(f"s_addc_u32 s{sOg+1}, s55, 0")

def wob_dma(i, tag):
    return [[f"s_mov_b32 s39, {i*65536}"], [f"s_add_u32 m0, s{sWv}, {i*4096}"],
            [(f"buffer_load_dwordx4 v{vWo_g}, s[{sWoB}:{sWoB+3}], s39 offen lds", tag)]]

def attention(a):
    o = a.opts
    a("L_ATT0:")
    for s in rdK(0, 0) + rdV(0, 0, 0): a(s)
    for s in kv_advance(1): a(s)
    for q in range(2):
        for i in range(4): a(f"v_accvgpr_write_b32 a{aL[q]+i}, 0")
    a(f"s_cmp_lg_u32 s{sPASS}, 0")
    a("s_cbranch_scc1 L_ATT1")
    ps = L(); p4_setup(ps)
    ps_s = [x for x in ps if x.startswith("s_") and "s4," not in x.split()[1] and not any(x.split()[1].startswith(f"s{i},") for i in (4, 5, 6, 7))]
    ps_x = []
    rest = [x for x in ps if x not in ps_x]
    n1 = 22
    for s in rest[:n1]: a(s)
    a("s_waitcnt lgkmcnt(0)")
    for q in range(2): a(mf32(vr(S[q], 16), ar(aK, 4), vr(QA[q], 4), 0))
    for q in range(2): a(mf32(vr(S[q], 16), ar(aK+4, 4), vr(QA[q]+4, 4), vr(S[q], 16)))
    kv = a.kv_left
    for s in kv.pop(0): a.emit(s)
    padfill(a, rest[n1:n1+26], 10)
    for q in range(2):
        s, m = S[q], 19 + q
        a(f"v_max3_f32 v{m}, v{s}, v{s+1}, v{s+2}")
        for i in range(3, 15, 2): a(f"v_max3_f32 v{m}, v{m}, v{s+i}, v{s+i+1}")
        a(f"v_max_f32 v{m}, v{m}, v{s+15}")
    for q in range(2): a(f"v_mov_b32 v{21+q}, v{19+q}")
    a("s_nop 0")
    for q in range(2): a(f"v_permlane32_swap_b32 v{19+q}, v{21+q}")
    for q in range(2): a(f"v_max_f32 v{19+q}, v{19+q}, v{21+q}")
    for i in range(16): a(f"v_sub_f32 v{NM[0]+i}, 0, v19")
    for s in rest[n1+26:n1+28]: a(s)
    a(mf32(vr(S[0], 16), ar(aK, 4), vr(QA[0], 4), vr(NM[0], 16)))
    a(mf32(vr(S[0], 16), ar(aK+4, 4), vr(QA[0]+4, 4), vr(S[0], 16)))
    for i in range(16): a(f"v_sub_f32 v{NM[1]+i}, 0, v20")
    for s in rest[n1+28:]: a(s)
    a("v_mov_b32 v18, 0")
    a("s_branch L_ATT2")
    a("L_ATT1:")
    a("s_waitcnt lgkmcnt(0)")
    a(mf32(vr(S[0], 16), ar(aK, 4), vr(QA[0], 4), vr(NM[0], 16)))
    a(mf32(vr(S[0], 16), ar(aK+4, 4), vr(QA[0]+4, 4), vr(S[0], 16)))
    a("s_nop 11")
    a("L_ATT2:")
    a.stamp("att0")
    pH = [(f"buffer_load_dword v21, v18, {WS}, s33 offen sc1", "pH")]
    tile(a, 0, [kv.pop(0), [], [], [], [], kv.pop(0), []])
    tile(a, 1, [[], [], [], kv.pop(0), pH])
    a.stamp("t01")
    tile(a, 2)
    a.stamp("t2")
    a(f"s_cmp_lg_u32 s{sPASS}, 0")
    a("s_cbranch_scc1 L_A3")
    a.emit(a.wait(["kv"]))
    for s in flag_store(32, 20, "fKV"): a.emit(s)
    a.stamp("fKV")
    poll_check(a, "L_PH", 21, 18, 33, "pH")
    a(f"s_sub_u32 s38, s{sHalo}, 4096")
    a(f"s_cmp_eq_u32 s{sSeq}, 0")
    a(f"s_cselect_b32 s38, {OOB}, s38")
    a.emit((f"buffer_load_dwordx4 {vr(HK, 4)}, v{vL16}, {WS}, s38 offen sc1", "hl"))
    a.emit((f"buffer_load_dwordx4 {vr(HK+4, 4)}, v{vL16}, {WS}, s38 offen offset:1024 sc1", "hl"))
    a.emit((f"buffer_load_dwordx4 {vr(HV, 4)}, v{vL16}, {WS}, s38 offen offset:2048 sc1", "hl"))
    if o.get("ownpf", 0):
        a(f"v_lshlrev_b32 v22, 7, v{vLANE}")
        a.emit((f"buffer_load_dword v{vPFd}, v22, {WS}, s26 offen sc1", "ownpf"))
    a("s_cbranch_scc0 L_MASKOK")
    for i in range(8): a(f"v_mov_b32 v{vMc+16+i}, {NEGBIG}")
    a("L_MASKOK:")
    for s in a.ob1: a.emit(s)
    a.stamp("pH")
    gate_compute(a)
    a.stamp("fill")
    pk = (f"buffer_load_dword v21, v17, {WS}, s31 offen sc1", "pKV")
    order = o.get("e1order", 0)
    def loc0(extra):
        a.emit(a.wait(["hl"]))
        lt = L()
        st = local_tile(lt, pQB[0], pKB[0], pVB[0], HK, HV, 96, 112, 208, 168, 236, 23, 0, "ob0")
        lt += packl(208)
        weave(a, lt, extra, o.get("pk_at", 60), 1000)
        a.ob0 = [(st[0][0].format("v[208:211]"), "ob0"), (st[1][0].format("v[212:215]"), "ob0")]
    if order == 0:
        loc0([[pk]])
        a.stamp("loc0")
    else:
        a.emit(pk)
    poll_check(a, "L_PKV", 21, 17, 31, "pKV", mask=o.get("kvmask", 1))
    a("L_A3:")
    a.stamp("pKV")
    for g in range(2):
        for k_, s in enumerate(kv_dma(1, g, f"c1{'ab'[g]}")):
            a.emit(s)
            if k_ == 0: a("s_nop 0")
        if g == 0: a.emit((f"buffer_load_dword v21, v17, {WS}, s31 offen sc1", "pKV2"))
    for s in kv_advance(2): a(s)
    a(f"s_cmp_lg_u32 s{sPASS}, 0")
    a("s_cbranch_scc1 L_A4")
    if order == 1:
        loc0([])
        a.stamp("loc0")
    for s in a.ob0: a.emit(s)
    a("s_branch L_A5")
    a("L_A4:")
    a("s_waitcnt vmcnt(0)")
    a("L_A5:")
    a.emit(a.wait(["c1a"], lgkm=True))
    a("s_barrier")
    a.pkv2 = True
    a.stamp("c1")
    wob = [i for i in range(24)]
    obl = [i for i in range(64)]
    if o.get('noside'): wob = wob[:1]; obl = obl[:1]
    ob_start = o.get("ob_start", 5)
    obase = False
    for c in range(15):
        V = []; A = []
        side = []
        if c + 2 <= 15:
            d0, d1 = kv_dma(c % 2, 0, f"c{c+2}"), kv_dma(c % 2, 1, f"c{c+2}")
            kvs = [[x] for x in d0] + [[x] for x in d1] + ([[x] for x in kv_advance(c + 3)] if c + 3 <= 15 else [])
        else:
            kvs = []
        oth = []
        if c == 0:
            oth += [[(f"buffer_load_dword v21, v17, {WS}, s31 offen sc1", "pKV3")]]
        if c == 1:
            oth += [[f"s_lshl_b32 s38, s{sSeq}, 7"], [f"s_lshl_b32 s39, s{sHead}, 2"], ["s_add_u32 s38, s38, s39"],
                    [f"s_add_u32 s35, s38, {F_OB}"], flag_store(35, 20, "fOB")]
        if c == ob_start - 2:
            oth += [[f"s_add_u32 s47, s29, {F_OB}"], [(f"buffer_load_dword v21, v16, {WS}, s47 offen sc1", "pOB")]]
        if c == o.get("cpf2", 11) or (o.get("cpfn") and c % o["cpfn"] == 2):
            oth += [[(f"buffer_load_dword v{vPFd}, v{vT[7]}, s[{sCode}:{sCode+3}], 0 offen", "cpf")]]
        nslots = 4*7 - 1 - (c == 0)
        if c >= ob_start:
            for _ in range(min(len(obl), o.get("ob_per", 8))):
                i = obl.pop(0)
                oth.append([(f"global_load_dwordx4 {oreg(i)}, v{vL16b if (i & 4) else vL16}, s[{sOg}:{sOg+1}] offset:{(i % 4)*1024} sc1", "obl")])
                if i % 8 == 7:
                    oth += [[f"s_add_u32 s{sOg}, s{sOg}, 8192"], [f"s_addc_u32 s{sOg+1}, s{sOg+1}, 0"]]
        wl = o.get("wol2", 6)
        if wl <= c < wl + 8:
            oth.append([(f"global_load_dword v{vPFd}, v0, s[{sPWoA}:{sPWoA+1}] offset:{((c - wl) & 1)*2048}", "wopf")] + (["v_add_u32 v0, 4096, v0"] if (c - wl) & 1 else []))
        if c in (13, 14) and o.get("wbl2", 1):
            oth.append([(f"global_load_dword v{vPFd}, v15, s[{sPWoB}:{sPWoB+1}] offset:{(c - 13)*2048}", "wopf")])
        while wob and len(kvs) + len(oth) + 3 <= nslots:
            i_ = wob.pop(0)
            oth += wob_dma(i_, f"wo{i_//8}")
        side = kvs + oth
        while len(side) > nslots:
            for k in range(len(side) - 1):
                if all(isinstance(x, str) and x.startswith("s_") and "m0" not in x for x in side[k]):
                    side[k+1] = side[k] + side[k+1]; side.pop(k); break
            else:
                raise Exception("slots")
        n = len(side)
        nv = sum(isinstance(x, tuple) for g in side for x in g)
        if n < nslots and nv >= o.get("spread", 14):
            sp = [[] for _ in range(nslots)]
            for k, g in enumerate(side): sp[k*nslots//n] = g
            side = sp
        if c == 0:
            poll_check(a, "L_PKV2", 21, 17, 31, "pKV2", mask=2)
        if c == 1:
            poll_check(a, "L_PKV3", 21, 17, 31, "pKV3", mask=0xffff)
        if c == ob_start - 1:
            poll_check(a, "L_POB", 21, 16, 47, "pOB")
        tile(a, 4*c + 3, side)
        tile(a, 4*c + 4, side, end_b=[a.wait(["c1b"]), "s_barrier"] if c == 0 else None)
        tile(a, 4*c + 5, side)
        tile(a, 4*c + 6, side, end_b=[a.wait([f"c{c+2}"], lgkm=True) if c + 2 <= 15 else a.wait(["wo0", "obl"], lgkm=True), "s_barrier"])
        assert not side
        if c in (4, 9): a.stamp(f"c{c}")
    assert not wob and not obl, (wob, obl)
    r0 = p4_reads(0, 0, 0)
    tile(a, 63, [r0[0:2], r0[2:4], r0[4:6], r0[6:8], r0[8:10], r0[10:13], r0[13:16]])
    a(f"s_add_u32 s36, s{sOst}, {OA_OFF}")
    a(f"s_add_u32 s37, s{sOst}, {OA_OFF + 65536}")
    a(mf32(ar(aO[1], 16), ar(aV[1], 4), vr(P[1], 4), ar(aO[1], 16)))
    a(smf(1))
    a(mf32(ar(aO[1], 16), ar(aV[1]+4, 4), vr(P[1]+4, 4), ar(aO[1], 16)))
    a.stamp("attend")
    F = L()
    F(f"v_accvgpr_read_b32 v19, a{aL[0]}")
    F(f"v_accvgpr_read_b32 v21, a{aL[0]+1}")
    for i in range(16): F(f"v_accvgpr_read_b32 v{S[0]+i}, a{aO[0]+i}")
    F("v_add_f32 v19, v19, v21")
    F(f"v_accvgpr_read_b32 v20, a{aL[1]}")
    F("v_rcp_f32 v23, v19")
    F(f"v_accvgpr_read_b32 v21, a{aL[1]+1}")
    F("v_add_f32 v20, v20, v21")
    for i in range(16): F(f"v_mul_f32 v{S[0]+i}, v{S[0]+i}, v23")
    F += packl(S[0])
    F("v_rcp_f32 v24, v20")
    F((f"buffer_store_dwordx4 {vr(S[0], 4)}, v{vL16}, {WS}, s36 offen sc1", "oa"))
    F((f"buffer_store_dwordx4 {vr(S[0]+4, 4)}, v{vL16}, {WS}, s36 offen offset:1024 sc1", "oa"))
    for i in range(16): F(f"v_accvgpr_read_b32 v{S[1]+i}, a{aO[1]+i}")
    for i in range(16): F(f"v_mul_f32 v{S[1]+i}, v{S[1]+i}, v24")
    F += packl(S[1])
    F(f"s_mov_b32 s36, {f2u(2.0**64)}")
    F((f"buffer_store_dwordx4 {vr(S[1], 4)}, v{vL16}, {WS}, s37 offen sc1", "oa"))
    F((f"buffer_store_dwordx4 {vr(S[1]+4, 4)}, v{vL16}, {WS}, s37 offen offset:1024 sc1", "oa"))
    F("v_mov_b32 v21, 0")
    for q in range(2):
        for j in range(8): F(f"v_dot2_f32_bf16 v{19+q}, v{S[q]+j}, v21, v{19+q}")
    F("s_nop 2")
    F("v_cmp_nge_f32 s[64:65], s36, v19" if not o.get("stamp") else "v_cmp_nge_f32 s[56:57], s36, v19")
    F("v_cmp_nge_f32 vcc, s36, v20")
    F(f"s_lshl_b32 s37, s{sW}, 2")
    F(f"s_add_u32 s37, s37, {XCH}")
    F("v_mov_b32 v22, s37")
    F("s_nop 1")
    F("s_or_b64 vcc, vcc, s[64:65]" if not o.get("stamp") else "s_or_b64 vcc, vcc, s[56:57]")
    if o.get("force_fallback"): F("s_mov_b64 vcc, -1")
    F(f"s_cmp_lg_u64 vcc, 0\ns_cselect_b32 s36, 1, 0\ns_andn2_b32 s36, s36, s{sPASS}")
    F("v_mov_b32 v21, s36")
    F("ds_write_b32 v22, v21")
    F(f"v_mov_b32 v22, {XCH}")
    a.fin = F
    b = Asm()
    b("L_FALLBACK:")
    b(f"s_mov_b32 s{sPASS}, 1")
    b(f"s_mov_b32 s25, {OOB}")
    b(f"s_mov_b32 s26, {OOB}")
    b(f"v_mov_b32 v19, {NEGBIG}")
    b(f"v_mov_b32 v20, {NEGBIG}")
    b(f"s_lshl_b32 s38, s{sHP}, 19")
    b(f"s_lshl_b32 s39, s{sHH}, 14")
    b("s_add_u32 s38, s38, s39")
    b("s_mov_b32 s39, 0")
    b("L_FB:")
    b("s_and_b32 s36, s39, 3")
    b("s_lshl_b32 s36, s36, 12")
    b("s_lshr_b32 s37, s39, 2")
    b("s_lshl_b32 s37, s37, 15")
    b("s_add_u32 s36, s36, s37")
    b("s_add_u32 s36, s36, s38")
    b(f"buffer_load_dwordx4 {ar(aK, 4)}, v{vL16}, {WS}, s36 offen sc1")
    b(f"buffer_load_dwordx4 {ar(aK+4, 4)}, v{vL16}, {WS}, s36 offen offset:1024 sc1")
    b("s_waitcnt vmcnt(0)")
    for q in range(2): b(mf32(vr(S[q], 16), ar(aK, 4), vr(QA[q], 4), 0))
    for q in range(2): b(mf32(vr(S[q], 16), ar(aK+4, 4), vr(QA[q]+4, 4), vr(S[q], 16)))
    b("s_nop 11")
    for q in range(2):
        for i in range(0, 16, 2): b(f"v_max3_f32 v{19+q}, v{19+q}, v{S[q]+i}, v{S[q]+i+1}")
    b("s_add_u32 s39, s39, 1")
    b("s_cmp_lt_u32 s39, 64")
    b("s_cbranch_scc1 L_FB")
    neg_max(b)
    for s in sel_init(23, 24): b(s)
    b(f"s_lshl_b32 s36, s{sT}, 15")
    b(f"s_add_u32 s{sKVg}, s{sKVp}, s36")
    b(f"s_addc_u32 s{sKVg+1}, s{sKVp+1}, 0")
    b(f"s_add_u32 s36, s{sOrow}, {OB_OFF}")
    b(f"s_add_u32 s{sOg}, s54, s36")
    b(f"s_addc_u32 s{sOg+1}, s55, 0")
    b("v_add_u32 v0, -16384, v0")
    b("s_barrier")
    for g in range(2):
        for k_, s in enumerate(kv_dma(0, g, "")):
            b(s[0] if isinstance(s, tuple) else s)
            if k_ == 0: b("s_nop 0")
    b("s_waitcnt vmcnt(0)")
    b("s_barrier")
    b("s_branch L_ATT0")
    a.tail.append(b.text())

def fW4(fs, i, ct, n=4, d=0): return vr(32 + i*8 + ct*4 + d, n) if fs == 0 else ar(i*8 + ct*4 + d, n)
def p4_lds(g):
    return g*32768 if g < 4 else [131072, 0, 32768, 65536][g - 4]
def p4_reads(fs, g, grp):
    out = []
    base = p4_lds(g)
    for i in range(4):
        for ct in range(2):
            off = base % 65536 + (grp*4 + i)*2048
            v = vWo_r[2*(base // 65536) + ct]
            out.append(f"ds_read_b64_tr_b16 {fW4(fs, i, ct, 2)}, v{v} offset:{off}")
            out.append(f"ds_read_b64_tr_b16 {fW4(fs, i, ct, 2, 2)}, v{v} offset:{off+1024}")
    return out
def woa_dma(g, i):
    pos = (g - 4)*8 + i
    return [[f"s_add_u32 s39, s{sWooff}, {pos*65536}", "s_and_b32 s39, s39, 0x1fffff", f"s_add_u32 m0, s{sWv}, {p4_lds(g) + i*4096}"],
            [(f"buffer_load_dwordx4 v{vWo_g}, s[{sWoA}:{sWoA+3}], s39 offen lds", f"wo{g}")]]
def oa_load(i):
    out = [(f"buffer_load_dwordx4 {oreg(i)}, v{vL16}, {WS}, s{sO} offen offset:{(i % 4)*1024} sc1", f"oa{i}")]
    if i % 4 == 3:
        out += [f"s_add_u32 s{sOoff}, s{sOoff}, 4096", f"s_and_b32 s{sOoff}, s{sOoff}, 0xffff", f"s_add_u32 s{sO}, s{sObase}, s{sOoff}"]
    return out

def phase4(a):
    o = a.opts
    flag_at = o.get("oaflag_gap", 40)
    poll_at = o.get("oapoll_gap", 84)
    chk_at = o.get("oachk_gap", 96)
    side = {}
    def put(k, l): side.setdefault(k, []).extend(l)
    F = list(a.fin)
    k = 0
    while F:
        n_ = 6 if len(F) > 5*(24 - k) - 5 else 5
        put(k, F[:n_]); F = F[n_:]; k += 1
    assert k <= 24, k
    pre = [f"s_add_u32 s{sObase}, s{sOrow}, {OA_OFF}", f"s_add_u32 s{sO}, s{sObase}, s{sOoff}", f"s_lshl_b32 s38, s{sSeq}, 7",
           f"s_lshl_b32 s47, s{sHead}, 2", "s_add_u32 s38, s38, s47", f"s_add_u32 s35, s38, {F_OA}", f"s_add_u32 s47, s29, {F_OA}",
           f"s_lshl_b32 s36, s{sT4}, 9", f"s_lshl_b32 s37, s{sW}, 7", "s_add_u32 s36, s36, s37", f"s_add_u32 s36, s36, {G_OFF}",
           (f"buffer_load_dword v{vGate}, v16, {WS}, s36 offen sc1", "gl")]
    put(24, ["ds_read_b128 v[20:23], v22"])
    for i, x in enumerate(pre): put(25 + i//2, [x])
    put(32, ["v_or_b32 v20, v20, v21", "v_or3_b32 v20, v20, v22, v23"])
    put(33, ["v_readfirstlane_b32 s38, v20"])
    put(35, ["s_cmp_lg_u32 s38, 0\ns_cbranch_scc1 L_FALLBACK"])
    assert flag_at > 35
    put(flag_at, [a.wait(["oa"])]); put(flag_at + 1, flag_store(35, 20, "fOA"))
    put(poll_at, [(f"buffer_load_dword v21, v16, {WS}, s47 offen sc1", "pOA")])
    put(130, [f"v_sub_f32 v8, 1.0, v{vGate}", f"v_and_b32 v19, 31, v{vLANE}", f"v_lshrrev_b32 v20, 5, v{vLANE}"])
    put(131, ["v_lshlrev_b32 v20, 4, v20", "v_lshl_add_u32 v19, v19, 11, v20"])
    for i in range(32): put(134 + i//2, [f"v_mul_f32 v{ACC4[0][i//16] + i%16}, v{ACC4[0][i//16] + i%16}, v8"])
    put(250, [f"s_lshl_b32 s36, s{sT4}, 18", f"s_lshl_b32 s37, s{sW}, 16"]); put(251, ["s_add_u32 s36, s36, s37", f"s_lshl_b32 s37, s{sC4}, 7"]); put(252, ["s_add_u32 s36, s36, s37"])
    a("s_waitcnt lgkmcnt(0)")
    lat = o.get("p4lat", 20)
    jobs = [[o.get("wb_at", 26), 32*2 + 23 - lat, "wb", i] for i in range(24, 32)]
    for g in range(4, 8):
        e = {4: 0, 5: 26, 6: 57, 7: 89}[g]
        jobs += [[57 if (g, i) == (4, 7) else e, 32*(g - 1) + 23 - lat, "wa", (g, i)] for i in range(8)]
    jobs += [[max(chk_at + 1, 2*i + 2), 128 + 2*i - lat, "oa", i] for i in range(64)]
    gap = o.get("p4gap", 2.0)
    t = float(o.get('wb_at', 26))
    quiet = range(poll_at - o.get("p4quiet", 4), poll_at + 1)
    while jobs:
        k = int(t)
        av = [j for j in jobs if j[0] <= k]
        if not av or k in quiet:
            t = k + 1; continue
        j = min(av, key=lambda j: j[1])
        jobs.remove(j)
        if j[2] == "wb":
            d = wob_dma(j[3], "wo3"); put(k - 1, d[0] + d[1]); put(k, d[2])
        elif j[2] == "wa":
            d = woa_dma(*j[3]); put(k - 1, d[0]); put(k, d[1])
        else:
            put(k, oa_load(j[3]))
        if k > j[1] + 8: print("p4 late", j, k)
        t += gap
    idx = 0
    for g in range(8):
        br = g // 4
        for grp in range(4):
            fs = grp & 1
            rd = p4_reads(1 - fs, g, grp + 1) if grp < 3 else (p4_reads(1 - fs, g + 1, 0) if g < 7 else [])
            for j in range(8):
                i, ct = j // 2, j % 2
                k16 = (g % 4)*16 + grp*4 + i
                if br == 1 and ct == 0:
                    n = a.vmn([f"oa{k16}"])
                    a(f"s_waitcnt vmcnt({n})")
                d = vr(ACC4[br][ct], 16)
                a(mf32(d, fW4(fs, i, ct), oreg(k16), 0 if k16 == 0 else d))
                for s in rd[3*j:3*j+3] if j < 5 else (rd[15:] if j == 5 else []): a(s)
                for s in side.pop(idx, []): a.emit(s)
                if idx == flag_at + 1: a.stamp("fOA")
                if idx == chk_at:
                    poll_check(a, "L_POA", 21, 16, 47, "pOA")
                    a.stamp("pOA")
                idx += 1
            if grp == 2 and g < 7:
                nxt = f"wo{g+1}"
                a.emit(a.wait([nxt], lgkm=True) if nxt in a.vm else "s_waitcnt lgkmcnt(0)")
                a("s_barrier")
            elif rd:
                a("s_waitcnt lgkmcnt(0)")
        if g == 3: a.stamp("p4B")
    assert not side, side.keys()
    a.stamp("p4A")
    a("s_nop 10")
    for ct in range(2):
        B_, A_ = ACC4[0][ct], ACC4[1][ct]
        for i in range(16): a(f"v_fma_f32 v{B_+i}, v{A_+i}, v{vGate}, v{B_+i}")
        pack(a, B_)
        a("s_nop 1")
        for k in (0, 2):
            a(f"v_permlane32_swap_b32 v{B_+2*k}, v{B_+2*k+2}")
            a(f"v_permlane32_swap_b32 v{B_+2*k+1}, v{B_+2*k+3}")
        for k in (0, 2):
            a.emit((f"buffer_store_dwordx4 {vr(B_+2*k, 4)}, v19, s[{sOutD}:{sOutD+3}], s36 offen offset:{ct*64 + k*16} {['', 'sc1', 'nt', 'sc0 sc1', 'sc1 nt'][o.get('outflag', 2)]}", "out"))

def gen(opts):
    a = G(opts); a.tail = []
    setup(a); gemm1(a); e1(a); attention(a); phase4(a)
    if opts.get("diag") is not None:
        a.stamp("end")
        a("s_nop 1")
        a(f"v_readlane_b32 s36, v{vSTAMP}, {32 + opts['diag']}")
        a("s_nop 3")
        a("s_add_u32 s36, s36, 10000")
        if opts.get("diagwg") is not None:
            a(f"s_cmp_lg_u32 s2, {opts['diagwg']}")
            a("s_cbranch_scc1 L_END")
        a("L_DIAG:")
        a("s_memrealtime s[38:39]")
        a("s_waitcnt lgkmcnt(0)")
        a("s_sub_u32 s38, s38, s36")
        a("s_cmp_lt_i32 s38, 0")
        a("s_cbranch_scc1 L_DIAG")
    elif opts.get("dbgstamp"):
        a.stamp("end")
        sel = ["karg", "first", "g7", "g15", "g23", "g31", "loc1", "pKV", "c1", "c9", "attend", "pOA", "p4B", "p4A", "end"]
        a(f"s_cmp_lg_u32 s2, {opts['dbgstamp']-1}")
        a("s_cbranch_scc1 L_DBGX")
        a(f"s_cmp_lg_u32 s{sW}, 0")
        a("s_cbranch_scc1 L_DBGX")
        a(f"v_readlane_b32 s36, v{vSTAMP}, 32")
        for i, nm in enumerate(sel):
            a(f"v_readlane_b32 s37, v{vSTAMP}, {32 + a.names.index(nm)}")
            a("s_nop 3")
            a("s_sub_u32 s37, s37, s36")
            a("v_mov_b32 v2, s37")
            a("v_mov_b32 v3, 0")
            a(f"global_store_dword v3, v2, s[{sPDbg}:{sPDbg+1}] offset:{4*(i+1)}")
        a("L_DBGX:")
    elif opts.get("stamp"):
        a.stamp("end")
        a("s_lshl_b32 s36, s2, 2")
        a(f"s_add_u32 s36, s36, s{sW}")
        a("s_lshl_b32 s36, s36, 8")
        a(f"s_add_u32 s36, s36, {STAMP_OFF}")
        a(f"v_lshlrev_b32 v2, 2, v{vLANE}")
        a(f"buffer_store_dword v{vSTAMP}, v2, {WS}, s36 offen")
    a("s_endpgm")
    for t in a.tail: a(t)
    head = f"""; gated mix of full MHA and dilated sliding-window attention: one fused kernel, 256 co-resident workgroups
; @launch grid=(256,1,1) block=(256,1,1) lds=163840
.amdgcn_target "amdgcn-amd-amdhsa--gfx950"
.text
.globl {KNAME}
.p2align 8
.type {KNAME},@function
{KNAME}:
"""
    tail = f"""L_END:
    s_endpgm
.section .rodata,"a"
.p2align 6
.amdhsa_kernel {KNAME}
  .amdhsa_next_free_vgpr 512
  .amdhsa_next_free_sgpr 102
  .amdhsa_accum_offset 256
  .amdhsa_group_segment_fixed_size 0
  .amdhsa_kernarg_size 80
  .amdhsa_user_sgpr_count 2
  .amdhsa_user_sgpr_kernarg_segment_ptr 1
  .amdhsa_system_sgpr_workgroup_id_x 1
.end_amdhsa_kernel
"""
    gen.names = a.names
    return head + a.text() + tail

if __name__ == "__main__":
    import hazard
    opts = {}
    for kv in sys.argv[2:]:
        k, v = kv.split("="); opts[k] = int(v)
    t = gen(opts)
    open(sys.argv[1], "w").write(t)
    print(len(hazard.check(t)), "hazards", gen.names)
```

```python
import sys, struct, math
from asmlib import *

KNAME = "gated_mix__softmax_full_mha__sliding_local_dilated__prompt_kernel"
def f2u(x): return struct.unpack("<I", struct.pack("<f", x))[0]
KV_OFF   = 0
OA_OFF   = 8 << 20
OB_OFF   = 12 << 20
HALO_OFF = 16 << 20
G_OFF    = 20 << 20
FLAG_OFF = 21 << 20
F_KV, F_H, F_OB, F_OA = FLAG_OFF, FLAG_OFF + 4096, FLAG_OFF + 8192, FLAG_OFF + 12288
STAMP_OFF = 0x8000000
OOB = 0x80000000
CSCALE = f2u(math.log2(math.e) / math.sqrt(32.0))
NEGBIG = f2u(-1e30)
X_SLOT = 16384; W_BASE = 49152; W_SLOT = 24576
KV_LDS = [98304, 131072]
XCH = 163840 - 16
sX, sWA, sWB, sWS = 4, 8, 12, 16
sW, sHP, sT, sRH, sHH = 20, 21, 22, 23, 24
sWoff, sXoff = 25, 26
sXw, sWv = 30, 34
sPF, sPFoff, sPFstr, sPFlim = 40, 44, 45, 46
sNONCE, sCS = 60, 61
sSTAMPI = 68
sPWoA, sPWoB, sPG, sPOut, sPDbg = 70, 72, 74, 76, 78
sKVsrc, sKVbase, sKVt, sKVdst = 80, 81, 82, 27
sPASS, sOst, sSpin = 83, 86, 87
sT4, sC4, sOoff, sWooff, sObase = 88, 89, 90, 91, 92
sHalo, sSeq, sO, sOrow, sHead = 93, 94, 95, 96, 97
sWoA, sWoB, sOutD = 4, 8, 12
sCode = 48
vLANE = 1
vXr = [2, 3, 4, 5]; vWr = [10, 11]; vWg = [12, 13, 14]; vXg = [15, 16, 17, 18]
vT = [19, 20, 21, 22, 23, 24, 25, 26]
vPF, vPFd, vL16, vSTAMP, vF0 = 27, 28, 29, 30, 31
vMc = 32
ACC0 = 64
def acc(blk, rt): return ACC0 + (blk*2 + rt)*16
QA = [64, 80]; KA = [96, 112]; VA = [128, 144]; QB = [160, 176]; KB = [192, 208]; VB = [224, 240]
NM = [128, 144]; S = [176, 240]; P = [72, 88]
vKV = [6, 7]
vWo_g = 2; vWo_r = [3, 4, 10, 11, 12, 13]
vGate, vGrow = 14, 8
HK = 200; HV = 232
def fX(s, rt): return s*32 + rt*4
def fW(s, blk): return s*32 + 8 + blk*4
aK, aV = 0, [8, 16]
aO = [32, 48]; aL = [64, 68]; aONE = 72
aGATE = 76
aSEL = 24; vIDX = 9
OV = list(range(96, 128, 4)) + list(range(160, 176, 4)) + list(range(192, 240, 4))
def oreg(i): return ar(76 + 4*i, 4) if i < 45 else vr(OV[i - 45], 4)
ACC4 = [[128, 144], [64, 80]]
pKA = [96, 112]; pVA = [104, 120]; pQB = [160, 168]; pKB = [192, 208]; pVB = [224, 216]

def mf32(d, A, B, C): return f"v_mfma_f32_32x32x16_bf16 {d}, {A}, {B}, {C}"
def mf16(d, A, B, C): return f"v_mfma_f32_16x16x32_bf16 {d}, {A}, {B}, {C}"
WS = f"s[{sWS}:{sWS+3}]"

class G(Asm):
    def __init__(self, opts):
        super().__init__()
        self.opts = opts
        self.vm = []
        self.nstamp = 0
        self.names = []
    def emit(self, x):
        if callable(x): x = x()
        if x is None: return
        if isinstance(x, tuple):
            self(x[0]); self.vm.append(x[1])
        else:
            assert not (x.lstrip().startswith(("buffer_", "global_"))), x
            self(x)
    def vmn(self, tags):
        idx = [i for i, t in enumerate(self.vm) if t in tags]
        assert idx, tags
        n = len(self.vm) - 1 - max(idx)
        return min(n, 63)
    def wait(self, tags, lgkm=False):
        return lambda: f"s_waitcnt vmcnt({self.vmn(tags)})" + (" lgkmcnt(0)" if lgkm else "")
    def stamp(self, name):
        if not self.opts.get("stamp"): return
        if self.opts["stamp"] == 2 and name not in ("start", "g31", "c1", "attend", "end", "gP", "c4"): return
        self.names.append(name)
        a = self
        a("s_memtime s[66:67]")
        a("s_memrealtime s[64:65]")
        a("s_waitcnt lgkmcnt(0)")
        a(f"v_writelane_b32 v{vSTAMP}, s66, {self.nstamp}")
        a(f"v_writelane_b32 v{vSTAMP}, s64, {self.nstamp + 32}")
        self.nstamp += 1
        assert self.nstamp <= 32
    def inter(self, mains, sides):
        for i, m in enumerate(mains):
            if m is not None: self.emit(m)
            for s in sides.get(i, []): self.emit(s)

def srd(a, s, lo, hi, nbytes):
    a(f"s_mov_b32 s{s}, s{lo}")
    a(f"s_and_b32 s{s+1}, s{hi}, 0xffff")
    a(f"s_mov_b32 s{s+2}, {nbytes}")
    a(f"s_mov_b32 s{s+3}, 0x20000")

def pf_round(a):
    return [(f"buffer_load_dword v{vPFd}, v{vPF}, s[{sPF}:{sPF+3}], s{sPFoff} offen{' nt' if a.opts.get('pfnt') else ''}", "pf"),
            f"s_add_u32 s{sPFoff}, s{sPFoff}, s{sPFstr}"]

class P1:
    def __init__(self, a):
        self.a = a; self.woff = None; self.xoff = None
    def dma(self, piece):
        kind, j, p = piece
        pre = []
        if kind == "W":
            if self.woff != j:
                pre.append(f"s_mov_b32 s{sWoff}, {j*196608}"); self.woff = j
            s = sWA if p < 3 else sWB
            pre.append(f"s_add_u32 m0, s{sWv}, {W_BASE + (j % 4)*W_SLOT + p*4096}")
            return pre, (f"buffer_load_dwordx4 v{vWg[p % 3]}, s[{s}:{s+3}], s{sWoff} offen{' nt' if self.a.opts.get('dmant') else ''} lds", f"W{j}")
        if self.xoff != j:
            pre.append(f"s_mov_b32 s{sXoff}, {j*128}"); self.xoff = j
        pre.append(f"s_add_u32 m0, s{sXw}, {(j % 3)*X_SLOT + p*1024}")
        return pre, (f"buffer_load_dwordx4 v{vXg[p]}, s[{sX}:{sX+3}], s{sXoff} offen{' nt' if self.a.opts.get('dmant') else ''} lds", f"X{j}")

def frag_reads(fs, u, k16):
    kk = 2*(u & 1) + k16
    out = [f"ds_read_b128 {ar(fX(fs, rt), 4)}, v{vXr[kk]} offset:{((u >> 1) % 3)*X_SLOT + rt*4096}" for rt in range(2)]
    ws = u % 4
    for blk in range(6):
        off = (ws % 2)*W_SLOT + blk*4096 + k16*2048
        out.append(f"ds_read_b64_tr_b16 {ar(fW(fs, blk), 2)}, v{vWr[ws//2]} offset:{off}")
        out.append(f"ds_read_b64_tr_b16 {ar(fW(fs, blk)+2, 2)}, v{vWr[ws//2]} offset:{off+512}")
    return out

def g1_mfma(fs, blk, rt):
    d = vr(acc(blk, rt), 16)
    w, x = ar(fW(fs, blk), 4), ar(fX(fs, rt), 4)
    return mf32(d, x, w, d) if blk % 3 == 2 else mf32(d, w, x, d)

def setup(a):
    o = a.opts
    a("L_START:")
    a("s_cmp_ge_u32 s2, 256")
    a("s_cbranch_scc1 L_END")
    a.stamp("start")
    a("s_load_dwordx4 s[48:51], s[0:1], 0")
    a("s_load_dwordx2 s[52:53], s[0:1], 32")
    a("s_load_dwordx2 s[54:55], s[0:1], 72")
    a(f"s_load_dwordx2 s[{sPWoA}:{sPWoA+1}], s[0:1], 16")
    a(f"s_load_dwordx4 s[{sPWoB}:{sPWoB+3}], s[0:1], 40")
    a(f"s_load_dwordx4 s[{sPOut}:{sPOut+3}], s[0:1], 56")
    if o.get("cpf0", 1):
        n = o.get('codelines', 20)
        a("s_getpc_b64 s[56:57]")
        a("L_PC0:")
        a("s_lshr_b32 s35, s2, 3")
        a(f"s_mul_i32 s35, s35, {n}")
        a(f"v_min_u32 v2, {n-1}, v0")
        a("v_add_u32 v2, s35, v2")
        a("v_lshlrev_b32 v2, 7, v2")
        a("v_min_u32 v2, L_END - L_PC0, v2")
        a.emit((f"global_load_dword v{vPFd}, v2, s[56:57]", "cpf"))
    a(f"v_and_b32 v{vLANE}, 63, v0")
    a(f"v_lshrrev_b32 v{vT[0]}, 6, v0")
    a("s_and_b32 s3, s2, 7")
    a(f"v_readfirstlane_b32 s{sW}, v{vT[0]}")
    a("s_lshr_b32 s35, s2, 3")
    a("s_and_b32 s37, s3, 3")
    a("s_lshl_b32 s36, s37, 2")
    a("s_and_b32 s38, s35, 3")
    a(f"s_add_u32 s{sHP}, s36, s38")
    a("s_lshr_b32 s39, s3, 2")
    a("s_lshl_b32 s36, s39, 3")
    a("s_lshr_b32 s38, s35, 2")
    a(f"s_add_u32 s{sT}, s36, s38")
    a(f"s_and_b32 s{sRH}, s{sW}, 1")
    a(f"s_lshr_b32 s{sHH}, s{sW}, 1")
    t0, t1, t2 = vT[0], vT[1], vT[2]
    if o.get("pfx"):
        a("s_lshl_b32 s38, s35, 5")
    else:
        a("s_lshl_b32 s38, s37, 5")
        a("s_add_u32 s38, s38, s35")
        a("s_lshl_b32 s38, s38, 3")
    a("s_lshl_b32 s47, s39, 10")
    a("s_add_u32 s38, s38, s47")
    a(f"v_add_u32 v{t0}, s38, v{vLANE}")
    a(f"v_lshlrev_b32 v{t0}, 11, v{t0}")
    if o.get("pfmode", 0) == 0:
        a("s_lshl_b32 s39, s39, 5")
        a("s_add_u32 s39, s39, s35")
        a("s_mul_i32 s39, s39, 6144")
        a("s_lshl_b32 s38, s37, 9")
        a("s_add_u32 s39, s39, s38")
        a(f"v_lshrrev_b32 v{t1}, 2, v{vLANE}")
        a(f"v_lshlrev_b32 v{t1}, 11, v{t1}")
        a(f"v_and_b32 v{t2}, 3, v{vLANE}")
        a(f"v_lshlrev_b32 v{t2}, 7, v{t2}")
        a(f"v_add3_u32 v{t1}, v{t1}, v{t2}, s39")
        if o.get("pf3", 1):
            a("s_lshr_b32 s47, s3, 2")
            a("s_xor_b32 s47, s47, 1")
            a("s_lshl_b32 s47, s47, 5")
            a("s_add_u32 s47, s47, s35")
            a("s_mul_i32 s47, s47, 6144")
            a("s_add_u32 s47, s47, s38")
            a(f"s_add_u32 s47, s47, {384 - 12*2048}")
            a(f"v_lshlrev_b32 v{t2}, 11, v{vLANE}")
            a(f"v_add_u32 v{t2}, s47, v{t2}")
            a(f"v_cmp_lt_u32 vcc, 11, v{vLANE}")
            a("s_nop 1")
            a(f"v_cndmask_b32 v{t1}, v{t1}, v{t2}, vcc")
    elif o.get("pfmode", 0) == 2:
        a("s_mul_i32 s39, s35, 12288")
        a("s_lshl_b32 s38, s37, 9")
        a("s_add_u32 s39, s39, s38")
        a(f"v_lshrrev_b32 v{t1}, 2, v{vLANE}")
        a(f"v_lshlrev_b32 v{t1}, 11, v{t1}")
        a(f"v_and_b32 v{t2}, 3, v{vLANE}")
        a(f"v_lshlrev_b32 v{t2}, 7, v{t2}")
        a(f"v_add3_u32 v{t1}, v{t1}, v{t2}, s39")
    else:
        a("s_mul_i32 s39, s2, 1536")
        a(f"v_lshlrev_b32 v{t1}, 7, v{vLANE}")
        a(f"v_add_u32 v{t1}, s39, v{t1}")
    a(f"s_mul_i32 s47, s35, {o.get('codelines', 20)}")
    a(f"v_add_u32 v{t2}, s47, v{vLANE}")
    a(f"v_lshlrev_b32 v{vT[7]}, 7, v{t2}")
    a(f"s_mov_b32 s{sPFstr}, 128")
    a(f"s_cmp_eq_u32 s{sW}, 0")
    a(f"s_cselect_b32 s{sPFstr}, s{sPFstr}, {64*6144}")
    a(f"s_cselect_b32 s38, {32 if o.get('pfx') else 8}, {24 if o.get('pfmode', 0) == 2 else (15 if o.get('pf3', 1) else 12)}")
    a("s_cselect_b64 s[56:57], -1, 0")
    a(f"v_cndmask_b32 v{vPF}, v{t1}, v{t0}, s[56:57]")
    a(f"s_cmp_eq_u32 s{sW}, 3")
    a("s_cselect_b64 s[56:57], -1, 0")
    a(f"v_cndmask_b32 v{vPF}, v{vPF}, v{vT[7]}, s[56:57]")
    a(f"s_cselect_b32 s38, {o.get('codelines', 20)}, s38")
    a(f"s_cselect_b32 s{sPFstr}, 0x4000000, s{sPFstr}")
    a(f"v_cmp_gt_u32 vcc, s38, v{vLANE}")
    a(f"v_mov_b32 v{t2}, {OOB}")
    a(f"s_mov_b32 s{sPFoff}, 0")
    a(f"v_cndmask_b32 v{vPF}, v{t2}, v{vPF}, vcc")
    a(f"v_cmp_gt_u32 vcc, {o.get('codelines', 20)}, v{vLANE}")
    a("s_getpc_b64 s[58:59]")
    a("L_PC:")
    a("s_sub_u32 s58, s58, L_PC - L_START")
    a(f"v_cndmask_b32 v{vT[7]}, v{t2}, v{vT[7]}, vcc")
    a("s_subb_u32 s59, s59, 0")
    r, c, t0, t1 = vT[0], vT[1], vT[2], vT[3]
    a(f"v_lshrrev_b32 v{r}, 3, v{vLANE}")
    a(f"v_and_b32 v{c}, 7, v{vLANE}")
    a(f"v_lshlrev_b32 v{t0}, 1, v{r}")
    a(f"v_and_b32 v{t0}, 4, v{t0}")
    a(f"v_xor_b32 v{t0}, v{t0}, v{c}")
    a(f"v_lshlrev_b32 v{t0}, 4, v{t0}")
    a(f"v_mul_u32_u24 v{t1}, 6144, v{r}")
    a(f"v_add_u32 v{t0}, v{t0}, v{t1}")
    a(f"s_mul_i32 s36, s{sW}, {8*6144}")
    a(f"s_lshl_b32 s37, s{sHP}, 7")
    a("s_add_u32 s36, s36, s37")
    a(f"v_add_u32 v{vWg[0]}, s36, v{t0}")
    a(f"v_add_u32 v{vWg[1]}, 2048, v{vWg[0]}")
    a(f"v_add_u32 v{vWg[2]}, 4096, v{vWg[0]}")
    a(f"v_lshrrev_b32 v{t0}, 1, v{r}")
    a(f"v_xor_b32 v{t0}, v{t0}, v{c}")
    a(f"v_lshlrev_b32 v{t0}, 4, v{t0}")
    a(f"v_lshlrev_b32 v{t1}, 11, v{r}")
    a(f"v_add_u32 v{t0}, v{t0}, v{t1}")
    a(f"s_lshl_b32 s36, s{sT}, 7")
    a(f"s_lshl_b32 s37, s{sW}, 5")
    a("s_add_u32 s36, s36, s37")
    a("s_lshl_b32 s36, s36, 11")
    a(f"v_add_u32 v{vXg[0]}, s36, v{t0}")
    a(f"v_xor_b32 v{vXg[1]}, 64, v{vXg[0]}")
    a(f"v_add_u32 v{vXg[1]}, {8*2048}, v{vXg[1]}")
    a(f"v_add_u32 v{vXg[2]}, {16*2048}, v{vXg[0]}")
    a(f"v_add_u32 v{vXg[3]}, {16*2048}, v{vXg[1]}")
    a(f"s_lshl_b32 s{sWv}, s{sW}, 10")
    a(f"s_lshl_b32 s{sXw}, s{sW}, 12")
    a("s_waitcnt lgkmcnt(0)")
    a.stamp("karg")
    a(f"s_mov_b32 s{sPF+2}, {1024*3072*2}")
    a(f"s_cmp_eq_u32 s{sW}, 0")
    a(f"s_cselect_b32 s{sPF}, s48, s50")
    a(f"s_cselect_b32 s{sPF+1}, s49, s51")
    a(f"s_cselect_b32 s{sPF+2}, {2048*1024*2}, s{sPF+2}")
    a(f"s_cmp_eq_u32 s{sW}, 2")
    a(f"s_cselect_b32 s{sPF}, s52, s{sPF}")
    a(f"s_cselect_b32 s{sPF+1}, s53, s{sPF+1}")
    a(f"s_cmp_eq_u32 s{sW}, 3")
    a(f"s_cselect_b32 s{sPF}, s58, s{sPF}")
    a(f"s_cselect_b32 s{sPF+1}, s59, s{sPF+1}")
    a(f"s_cselect_b32 s{sPF+2}, L_END - L_START, s{sPF+2}")
    a(f"s_and_b32 s{sPF+1}, s{sPF+1}, 0xffff")
    a(f"s_mov_b32 s{sPF+3}, 0x20000")
    for i in range(o.get("pf0", 2)):
        for s in pf_round(a): a.emit(s)
    srd(a, sX, 48, 49, 2048*1024*2)
    srd(a, sWA, 50, 51, 1024*3072*2)
    srd(a, sWB, 52, 53, 1024*3072*2)

def fillers_prologue(a):
    L = []
    f = L.append
    f("s_mov_b32 s16, s54"); f("s_and_b32 s17, s55, 0xffff"); f("s_mov_b32 s18, 0x10000000"); f("s_mov_b32 s19, 0x20000")
    f(f"s_mov_b32 s{sCode}, s58"); f(f"s_and_b32 s{sCode+1}, s59, 0xffff"); f(f"s_mov_b32 s{sCode+2}, L_END - L_START"); f(f"s_mov_b32 s{sCode+3}, 0x20000")
    m, h, t0, t1, row = vT[0], vT[1], vT[2], vT[3], vT[4]
    f(f"v_and_b32 v{m}, 31, v{vLANE}")
    f(f"v_lshrrev_b32 v{h}, 5, v{vLANE}")
    f(f"v_lshrrev_b32 v{t0}, 1, v{m}")
    f(f"v_and_b32 v{t0}, 7, v{t0}")
    f(f"v_xor_b32 v{t0}, v{t0}, v{h}")
    f(f"v_lshlrev_b32 v{t0}, 4, v{t0}")
    f(f"v_lshlrev_b32 v{t1}, 7, v{m}")
    f(f"v_add_u32 v{t0}, v{t0}, v{t1}")
    f(f"s_lshl_b32 s36, s{sRH}, 13")
    f(f"v_add_u32 v{vXr[0]}, s36, v{t0}")
    for kk in range(1, 4):
        f(f"v_xor_b32 v{vXr[kk]}, {kk*32}, v{vXr[0]}")
    f(f"v_and_b32 v{m}, 15, v{vLANE}")
    f(f"v_lshrrev_b32 v{t0}, 2, v{m}")
    f(f"v_lshlrev_b32 v{t1}, 3, v{h}")
    f(f"v_add_u32 v{row}, v{t0}, v{t1}")
    f(f"v_lshrrev_b32 v{t0}, 1, v{row}")
    f(f"v_and_b32 v{t0}, 1, v{t0}")
    f(f"v_xor_b32 v{t0}, s{sHH}, v{t0}")
    f(f"v_lshlrev_b32 v{t0}, 6, v{t0}")
    f(f"v_lshlrev_b32 v{t1}, 7, v{row}")
    f(f"v_add_u32 v{t0}, v{t0}, v{t1}")
    f(f"v_and_b32 v{t1}, 16, v{vLANE}")
    f(f"v_lshlrev_b32 v{t1}, 1, v{t1}")
    f(f"v_add_u32 v{t0}, v{t0}, v{t1}")
    f(f"v_and_b32 v{t1}, 3, v{m}")
    f(f"v_lshlrev_b32 v{t1}, 3, v{t1}")
    f(f"v_add_u32 v{t0}, v{t0}, v{t1}")
    f(f"v_add_u32 v{vWr[0]}, {W_BASE}, v{t0}")
    f(f"v_add_u32 v{vWr[1]}, {W_BASE + 2*W_SLOT}, v{t0}")
    for r in range(ACC0, 256):
        f(f"v_mov_b32 v{r}, 0")
    return L

def fillers_late(a):
    L = []
    f = L.append
    q, b, t = vT[0], vT[1], vT[2]
    f(f"v_lshlrev_b32 v{vL16}, 4, v{vLANE}")
    f(f"v_and_b32 v{q}, 31, v{vLANE}")
    f(f"v_lshrrev_b32 v{b}, 5, v{vLANE}")
    f(f"v_lshlrev_b32 v{b}, 2, v{b}")
    f(f"v_sub_u32 v{b}, v{q}, v{b}")
    f(f"s_mov_b32 s36, {NEGBIG}")
    for i in range(24):
        r, add = (i, 0) if i < 16 else (i - 8, 32)
        d = vMc + i
        kv = 8*(r >> 2) + (r & 3)
        f(f"v_add_u32 v{d}, {add - kv}, v{b}")
        f(f"v_and_b32 v{d}, 0xfffffff1, v{d}")
        f(f"v_min_u32 v{d}, 1, v{d}")
        f(f"v_sub_u32 v{d}, 0, v{d}")
        f(f"v_and_b32 v{d}, s36, v{d}")
    f(f"v_lshrrev_b32 v{q}, 2, v{vLANE}")
    f(f"v_lshrrev_b32 v{t}, 4, v{vLANE}")
    f(f"v_xor_b32 v{q}, v{q}, v{t}")
    f(f"v_and_b32 v{q}, 1, v{q}")
    f(f"v_add_u32 v{q}, -1, v{q}")
    f(f"v_and_b32 v{q}, 0x3f803f80, v{q}")
    for i in range(4):
        f(f"v_accvgpr_write_b32 a{aONE+i}, v{q}")
    f(f"v_min_u32 v{vF0}, 1, v{vLANE}")
    f(f"v_lshlrev_b32 v{vF0}, 31, v{vF0}")
    f(f"s_mov_b32 s{sCS}, {CSCALE}"); f(f"s_mov_b32 s62, {CSCALE}"); f(f"s_mov_b32 s63, {CSCALE}")
    f(f"s_lshl_b32 s36, s{sHP}, 19")
    f(f"s_lshl_b32 s37, s{sW}, 13")
    f(f"s_lshl_b32 s38, s{sHH}, 14")
    f(f"s_lshl_b32 s39, s{sRH}, 13")
    f(f"s_add_u32 s{sKVdst}, s38, s39")
    f(f"s_add_u32 s{sKVbase}, s36, s{sKVdst}")
    f(f"s_lshl_b32 s{sKVt}, s{sT}, 15")
    f(f"s_add_u32 s{sKVsrc}, s{sKVbase}, s{sKVt}")
    f(f"s_and_b32 s{sKVt}, s{sT}, 7"); f(f"s_and_b32 s{sKVb}, s{sT}, 8")
    f(f"s_add_u32 s36, s38, {KV_LDS[0]}")
    f(f"v_add_u32 v{vKV[0]}, s36, v{vL16}")
    f(f"v_add_u32 v{vKV[1]}, 32768, v{vKV[0]}")
    f(f"s_lshl_b32 s{sHead}, s{sHP}, 1")
    f(f"s_add_u32 s{sHead}, s{sHead}, s{sHH}")
    f(f"s_lshl_b32 s{sSeq}, s{sT}, 1")
    f(f"s_add_u32 s{sSeq}, s{sSeq}, s{sRH}")
    f(f"s_lshl_b32 s37, s{sSeq}, 6")
    f(f"s_add_u32 s37, s37, s{sHead}")
    f(f"s_lshl_b32 s{sOst}, s37, 11")
    f(f"s_lshl_b32 s38, s{sHead}, 5")
    f(f"s_add_u32 s38, s38, s{sSeq}")
    f(f"s_lshl_b32 s28, s38, 2")
    f(f"s_lshl_b32 s38, s38, 12")
    f(f"s_add_u32 s{sHalo}, s38, {HALO_OFF}")
    f(f"s_mov_b32 s{sPASS}, 0")
    f(f"s_add_u32 s{sKVp}, s54, s{sKVbase}\ns_addc_u32 s{sKVp+1}, s55, 0")
    f(f"s_cmp_lt_u32 s{sW}, 2\ns_cselect_b32 s{sPFW}, s{sPWoA}, s{sPWoB}\ns_cselect_b32 s{sPFW+1}, s{sPWoA+1}, s{sPWoB+1}")
    f(f"s_lshl_b32 s36, s2, 1"); f(f"s_add_u32 s36, s36, s{sRH}"); f("s_lshl_b32 s36, s36, 12")
    f(f"v_and_b32 v24, 7, v{vLANE}"); f("v_lshlrev_b32 v24, 7, v24"); f("v_add_u32 v23, s36, v24")
    f(f"v_and_b32 v24, 15, v{vLANE}"); f("v_lshlrev_b32 v24, 7, v24")
    f("s_lshr_b32 s36, s2, 3"); f("s_lshl_b32 s36, s36, 2"); f(f"s_add_u32 s36, s36, s{sW}"); f("s_lshl_b32 s36, s36, 14")
    f("v_add_u32 v0, s36, v24")
    f(f"s_lshl_b32 s36, s{sSeq}, 6")
    f(f"s_lshl_b32 s37, s{sHead}, 1")
    f("s_add_u32 s36, s36, s37")
    f(f"v_lshrrev_b32 v9, 5, v{vLANE}")
    f(f"v_add_u32 v{vGrow}, s36, v9")
    f(f"v_and_b32 v25, 31, v{vLANE}")
    f("v_lshlrev_b32 v25, 4, v25")
    f(f"v_lshl_add_u32 v9, v{vGrow}, 11, v25")
    f(f"s_mov_b32 s56, s{sPG}"); f(f"s_and_b32 s57, s{sPG+1}, 0xffff"); f("s_mov_b32 s58, 2048"); f("s_mov_b32 s59, 0x20000")
    f(f"s_lshl_b32 s38, s{sHP}, 2"); f(f"s_add_u32 s38, s38, s{sW}"); f("s_lshl_b32 s38, s38, 6")
    f(f"s_add_u32 s31, s38, {F_KV}"); f(f"s_lshl_b32 s38, s{sT}, 2"); f("s_add_u32 s32, s31, s38")
    f(f"s_add_u32 s33, s28, {F_H - 4}"); f(f"s_cmp_eq_u32 s{sSeq}, 0\ns_cselect_b32 s38, 4, 0"); f("s_add_u32 s33, s33, s38")
    return L

READ_GAPS = [0,0,1,1,2,2,3,3,4,5,6,7,8,9]
def gemm1(a):
    o = a.opts
    p1 = P1(a)
    W = lambda j, ps: [("W", j, p) for p in ps]
    X = lambda v, ps: [("X", v, p) for p in ps]
    pro = X(0, range(4)) + W(0, range(6)) + W(1, range(6))
    sched = {(0,0): X(1, range(4)) + W(2, [0,1]), (0,1): W(2, [2,3,4,5]) + W(3, [0,1]),
             (1,0): W(3, [2,3,4,5]) + W(4, [0,1]), (1,1): X(2, range(4)) + W(4, [2,3]),
             (2,0): W(4, [4,5]) + W(5, [0,1,2,3]), (2,1): W(5, [4,5]) + X(3, range(4)),
             (3,0): W(6, range(6))}
    for u in range(3, 28):
        v, p0 = ((u + 5)//2, 0) if u & 1 else ((u + 4)//2, 2)
        sched[(u, 1)] = W(u + 4, [0,1,2]) + (X(v, [p0]) if v < 16 else [])
        sched[(u + 1, 0)] = W(u + 4, [3,4,5]) + (X(v, [p0 + 1]) if v < 16 else [])
    U0 = o.get("u0", 28)
    if U0 == 28:
        sched[(27, 1)] = W(31, range(6)); del sched[(28, 0)]
    for (u, hf), ps in sched.items():
        done = u - 1 if hf == 0 else u
        for k, j, p in ps:
            if k == "W": assert j < 4 or done >= j - 4, (u, hf, k, j)
            else: assert j < 3 or done >= 2*(j - 3) + 1, (u, hf, k, j)
    npf0 = o.get("pf0", 2)
    pfs = {}
    r = npf0
    for u in range(0, 32):
        while r < 16 and u >= max(0, 2*r - o.get("pfd", 7)) and pfs.get(u, 0) < 1:
            pfs[u] = pfs.get(u, 0) + 1; r += 1
    fil = fillers_prologue(a)
    per = (len(fil) + len(pro) - 1)//len(pro)
    for i, pc in enumerate(pro):
        pre, d = p1.dma(pc)
        for s in pre: a(s)
        chunk = fil[i*per:(i+1)*per]
        a(chunk[0] if chunk else "s_nop 0")
        a.emit(d)
        for s in chunk[1:]: a(s)
    a(f"s_or_b32 s36, s2, s{sW}")
    a("s_cmp_lg_u32 s36, 0")
    a("s_cbranch_scc1 L_NONONCE")
    a("s_memrealtime s[36:37]")
    a("v_mov_b32 v20, 0")
    a("s_waitcnt lgkmcnt(0)")
    a("s_or_b32 s36, s36, 1")
    a("v_mov_b32 v19, s36")
    a(f"global_store_dword v20, v19, s[{sPDbg}:{sPDbg+1}] sc1")
    a("L_NONONCE:")
    a.stamp("issued")
    a.emit(a.wait(["X0", "W0"]))
    a("s_barrier")
    a.stamp("first")
    for s in frag_reads(0, 0, 0): a(s)
    a("s_waitcnt lgkmcnt(0)")
    late = fillers_late(a)
    order = [(b, rt) for b in range(6) for rt in range(2)]
    def p_reads(fs, u):
        out = []
        for k16 in range(2):
            r = frag_reads(0, u, k16)
            b = fs*32 + k16*16
            out += [r[0].replace(ar(fX(0, 0), 4), ar(b, 4)), r[1].replace(ar(fX(0, 1), 4), ar(b + 4, 4))]
            for i, blk in enumerate((1, 2)):
                out += [r[2 + 2*blk].replace(ar(fW(0, blk), 2), ar(b + 8 + 4*i, 2)), r[3 + 2*blk].replace(ar(fW(0, blk) + 2, 2), ar(b + 10 + 4*i, 2))]
        return out
    RB = (0, 3, 4, 5)
    def r_reads(fs, u, k16):
        r = frag_reads(0, u, k16)
        b = fs*32
        out = [r[0].replace(ar(fX(0, 0), 4), ar(b, 4)), r[1].replace(ar(fX(0, 1), 4), ar(b + 4, 4))]
        for i, blk in enumerate(RB):
            out += [r[2 + 2*blk].replace(ar(fW(0, blk), 2), ar(b + 8 + 4*i, 2)), r[3 + 2*blk].replace(ar(fW(0, blk) + 2, 2), ar(b + 10 + 4*i, 2))]
        return out
    def mm(blk, rt, x, w):
        d = vr(acc(blk, rt), 16)
        return mf32(d, ar(x, 4), ar(w, 4), d) if blk % 3 == 2 else mf32(d, ar(w, 4), ar(x, 4), d)
    def need(u): return [f"W{u}"] + ([f"X{u//2}"] if u % 2 == 0 else [])
    for u in range(U0):
        for hf in range(2):
            reads = frag_reads(1, u, 1) if hf == 0 else (frag_reads(0, u + 1, 0) if u + 1 < U0 else p_reads(0, U0))
            sides = {}
            for g, rd in zip(READ_GAPS, reads): sides.setdefault(g, []).append(rd)
            ps = sched.get((u, hf), [])
            gaps = {4: [(1,2),(4,5),(7,8),(9,10)], 6: [(0,1),(2,3),(4,5),(6,7),(8,9),(10,11)]}
            gp = gaps[6] if len(ps) > 4 else gaps[4]
            for (g0, g1), pc in zip(gp, ps):
                pre, d = p1.dma(pc)
                sides.setdefault(g0, []).extend(pre)
                sides.setdefault(g1, []).insert(0, d)
            if hf == 0 and pfs.get(u):
                sides.setdefault(11, []).extend(pf_round(a))
            if u >= 6 and late:
                for g in (5, 6, 8, 10):
                    for k in range(2):
                        if late: sides.setdefault(g, []).append(late.pop(0))
            a.inter([g1_mfma(hf, b, rt) for b, rt in order], sides)
            if hf == 0:
                a.emit(a.wait(need(u + 1), lgkm=True))
                a("s_barrier")
            elif u + 1 < U0:
                a("s_waitcnt lgkmcnt(0)")
        if u % 8 == 7: a.stamp(f"g{u}")
    misc = []
    for j in range(8):
        misc.append((f"buffer_load_dwordx4 {ar(aGATE+4*j, 4)}, v9, s[{sX}:{sX+3}], 0 offen offset:{512*j}" if j < 4 else
                     f"buffer_load_dwordx4 {ar(aGATE+4*j, 4)}, v25, s[56:59], 0 offen offset:{512*(j-4)}", "gate"))
    misc = [(f"global_load_dword v21, v19, s[{sPDbg}:{sPDbg+1}] sc1", "nonce"),
            (f"buffer_load_dword v{vPFd}, v{vT[7]}, s[{sCode}:{sCode+3}], 0 offen", "cpf")] + misc
    fs = 0
    for u in range(U0, 32):
        if u < 31:
            a.emit(a.wait(need(u + 1), lgkm=True)); a("s_barrier")
        else:
            a("s_waitcnt lgkmcnt(0)")
        reads = p_reads(1 - fs, u + 1) if u < 31 else r_reads(1 - fs, U0, 0)
        sides = {}
        for i, rd in enumerate(reads): sides.setdefault(i // 2, []).append(rd)
        if u == U0:
            sides.setdefault(0, []).append("v_mov_b32 v19, 0")
            sides.setdefault(5, []).extend([f"s_add_u32 s25, s{sKVsrc}, 4096", f"s_mov_b32 s26, s{sKVsrc}"])
        for g in ((5, 6, 7) if U0 == 28 else (4, 5, 6, 7)):
            if misc: sides.setdefault(g, []).append(misc.pop(0))
        b = fs*32
        a.inter([mm(blk, rt, b + k16*16 + rt*4, b + k16*16 + 8 + 4*(blk - 1)) for k16 in range(2) for rt in range(2) for blk in (1, 2)], sides)
        fs ^= 1
    assert not misc
    a.stamp("gP")
    e1_lists(a)
    mode = o.get("rmode", 1)
    if mode == 0:
        kvw = packl(KA[0], pKA[0]) + a.kv.pop(0) + a.kv.pop(0) + packl(VA[0], pVA[0]) + a.kv.pop(0) + a.kv.pop(0) + packl(KA[1], pKA[1]) + packl(VA[1], pVA[1])
        st_units = {28: [3, 4, 6, 7], 29: [3, 4, 5]}[U0]
    elif mode == 1:
        kvw = packl(KA[0], pKA[0]) + a.kv.pop(0) + packl(VA[0], pVA[0]) + packl(KA[1], pKA[1]) + packl(VA[1], pVA[1])
        st_units = {28: [1, 2, 3, 4, 5, 6, 7], 29: [1, 2, 3, 4, 5]}[U0]
    elif mode == 2:
        kvw = packl(KA[0], pKA[0]) + a.kv.pop(0) + a.kv.pop(0) + packl(VA[0], pVA[0]) + packl(KA[1], pKA[1]) + packl(VA[1], pVA[1])
        st_units = {28: [1, 2, 4, 5, 7], 29: [1, 2, 4, 5]}[U0]
    elif mode == 3:
        kvw = packl(KA[0], pKA[0]) + packl(VA[0], pVA[0]) + packl(KA[1], pKA[1]) + packl(VA[1], pVA[1])
        st_units = []
    units = [(u, k) for u in range(U0, 32) for k in range(2)]
    for n, (u, k16) in enumerate(units):
        last = n == len(units) - 1
        a("s_waitcnt lgkmcnt(0)")
        if last: a("s_barrier")
        reads = [] if last else r_reads(1 - fs, *units[n + 1])
        sides = {}
        for i, rd in enumerate(reads): sides.setdefault(i // 2, []).append(rd)
        od = [(0,0),(0,1),(3,0),(3,1),(4,0),(4,1),(5,0),(5,1)]
        if last:
            od = [(4,1),(5,1),(3,1),(4,0),(5,0),(3,0),(0,0),(0,1)]
            e1_head(a, sides)
        else:
            for g in range(2 if n == 0 else 0, 8):
                for _ in range(2 if g < 5 else 4):
                    if kvw: sides.setdefault(g, []).append(kvw.pop(0))
        if n in st_units: sides.setdefault(1 if last else 6, []).extend(a.kv.pop(0))
        b = fs*32
        a.inter([mm(blk, rt, b + rt*4, b + 8 + 4*RB.index(blk)) for blk, rt in od], sides)
        fs ^= 1
    assert not kvw
    a.stamp("g31")
    assert not late

def packl(base, out=None):
    out = base if out is None else out
    return [f"v_cvt_pk_bf16_f32 v{out+j}, v{base+2*j}, v{base+2*j+1}" for j in range(8)]
def pack(a, base, out=None):
    for s in packl(base, out): a(s)
class L(list):
    def __call__(self, s): self.append(s)
    def emit(self, s): self.append(s)
def weave(a, work, extra, first, every):
    nxt = first
    for i, w in enumerate(work):
        while extra and i >= nxt:
            for s in extra.pop(0): a.emit(s)
            nxt += every
        a.emit(w)

def padfill(a, fill, n):
    k = 0
    for f in fill:
        a.emit(f); k += len(f.split("\n")) if isinstance(f, str) else 1
    if k < n: a(f"s_nop {n - k - 1}")

def local_tile(a, Q, Kc, Vc, Kp, Vp1, SC, SP, O, PC, PP, tmp, off, tag, fill1=(), fill2=()):
    m, t = tmp, tmp + 1
    a(mf32(vr(SC, 16), vr(Kc, 4), vr(Q, 4), vr(vMc, 16)))
    a(mf32(vr(SC, 16), vr(Kc+4, 4), vr(Q+4, 4), vr(SC, 16)))
    a(mf32(vr(SP, 16), vr(Kp, 4), vr(Q, 4), vr(vMc + 8, 16)))
    a(mf32(vr(SP, 16), vr(Kp+4, 4), vr(Q+4, 4), vr(SP, 16)))
    padfill(a, fill1, 10)
    vals = [SC + i for i in range(16)] + [SP + 8 + i for i in range(8)]
    a(f"v_max3_f32 v{m}, v{vals[0]}, v{vals[1]}, v{vals[2]}")
    for i in range(3, 23, 2):
        a(f"v_max3_f32 v{m}, v{m}, v{vals[i]}, v{vals[i+1]}")
    a(f"v_max_f32 v{m}, v{m}, v{vals[23]}")
    a(f"v_mov_b32 v{t}, v{m}")
    a("s_nop 1")
    a(f"v_permlane32_swap_b32 v{m}, v{t}")
    a(f"v_max_f32 v{m}, v{m}, v{t}")
    a(f"v_mul_f32 v{m}, s{sCS}, v{m}")
    for v in vals:
        a(f"v_fma_f32 v{v}, v{v}, s{sCS}, -v{m}")
    L = SP
    for i in range(10): a(f"v_exp_f32 v{vals[i]}, v{vals[i]}")
    for j in range(4): a(f"v_cvt_pk_bf16_f32 v{PC+j}, v{SC+2*j}, v{SC+2*j+1}")
    for i in range(10, 13): a(f"v_exp_f32 v{vals[i]}, v{vals[i]}")
    a(mf32(vr(O, 16), vr(Vc, 4), vr(PC, 4), 0))
    for i in range(13, 18): a(f"v_exp_f32 v{vals[i]}, v{vals[i]}")
    a(mf16(vr(L, 4), ar(aONE, 4), vr(PC, 4), 0))
    for j in range(4, 8): a(f"v_cvt_pk_bf16_f32 v{PC+j}, v{SC+2*j}, v{SC+2*j+1}")
    for i in range(18, 20): a(f"v_exp_f32 v{vals[i]}, v{vals[i]}")
    a(mf32(vr(O, 16), vr(Vc+4, 4), vr(PC+4, 4), vr(O, 16)))
    for i in range(20, 24): a(f"v_exp_f32 v{vals[i]}, v{vals[i]}")
    a(mf16(vr(L, 4), ar(aONE, 4), vr(PC+4, 4), vr(L, 4)))
    for j in range(4): a(f"v_cvt_pk_bf16_f32 v{PP+j}, v{SP+8+2*j}, v{SP+9+2*j}")
    a("s_nop 1")
    a(mf16(vr(L, 4), ar(aONE, 4), vr(PP, 4), vr(L, 4)))
    a(mf32(vr(O, 16), vr(Vp1, 4), vr(PP, 4), vr(O, 16)))
    padfill(a, fill2, 7)
    a(f"v_rcp_f32 v{m}, v{L}")
    a(f"s_add_u32 s35, s{sOst}, {OB_OFF + off}")
    a("s_nop 2")
    for i in range(16):
        a(f"v_mul_f32 v{O+i}, v{O+i}, v{m}")
    return [(f"buffer_store_dwordx4 {{0}}, v{vL16}, {WS}, s35 offen sc1", tag),
            (f"buffer_store_dwordx4 {{0}}, v{vL16}, {WS}, s35 offen offset:1024 sc1", tag)]

def flag_store(sreg, vtmp, tag):
    return [f"v_mov_b32 v{vtmp}, s{sNONCE}", (f"buffer_store_dword v{vtmp}, v{vF0}, {WS}, s{sreg} offen sc1", tag)]

def poll_check(a, name, vdst, vaddr, sreg, tag, mask=-1):
    a.emit(a.wait([tag]))
    a(f"v_cmp_ne_u32 vcc, s{sNONCE}, v{vdst}")
    a(f"s_and_b32 s{sSpin}, vcc_lo, {mask}")
    a(f"s_cbranch_scc1 {name}_S")
    a(f"{name}_R:")
    a.tail.append(f"""{name}_S:
    s_mov_b32 s{sSpin}, 0
{name}_L:
    buffer_load_dword v{vdst}, v{vaddr}, {WS}, s{sreg} offen sc1
    s_add_u32 s{sSpin}, s{sSpin}, 1
    s_waitcnt vmcnt(0)
    v_cmp_ne_u32 vcc, s{sNONCE}, v{vdst}
    s_cmp_lt_u32 s{sSpin}, 0x40000
    s_cbranch_scc0 {name}_R
    s_nop 2
    s_and_b32 vcc_hi, vcc_lo, {mask}
    s_cbranch_scc1 {name}_L
    s_branch {name}_R""")

def e1_lists(a):
    a.halo = [[(f"buffer_store_dwordx4 {vr(pKB[1], 4)}, v{vL16}, {WS}, s{sHalo} offen sc1", "halo")],
              [(f"buffer_store_dwordx4 {vr(pKB[1]+4, 4)}, v{vL16}, {WS}, s{sHalo} offen offset:1024 sc1", "halo")],
              [(f"buffer_store_dwordx4 {vr(pVB[1]+4, 4)}, v{vL16}, {WS}, s{sHalo} offen offset:2048 sc1", "halo")]]
    a.kv = []; a.dsw = []
    for rt in range(2):
        for (blk, f0) in ((pKA[rt], 0), (pVA[rt], 2)):
            for f in range(2):
                off = (f0 + f)*1024
                a.kv.append([(f"buffer_store_dwordx4 {vr(blk+4*f, 4)}, v{vL16}, {WS}, s{26 if rt == 0 else 25} offen offset:{off} sc1", "kv")])
                a.dsw.append([f"ds_write_b128 v22, {vr(blk+4*f, 4)} offset:{rt*4096 + off}"])

def e1_head(a, sides):
    si = sel_init(23, 24)
    sides[0] = [f"s_add_u32 s36, s{sKVdst}, {KV_LDS[0]}", f"v_add_u32 v22, s36, v{vL16}", f"v_add_u32 v{vL16b}, 4096, v{vL16}"] + si[:3]
    sides[1] = a.dsw.pop(0) + si[3:7]
    sides[2] = a.dsw.pop(0) + si[7:11]
    w = packl(KB[1], pKB[1]) + packl(VB[1], pVB[1]) + packl(QB[1], 240)
    for g in range(3, 8):
        sides[g] = a.dsw.pop(0) + w[:4]; w = w[4:]
    w += si[11:]
    a.e1rest = w

def e1(a):
    o = a.opts
    pend = a.kv + a.halo
    a.emit(a.wait(["nonce"]))
    a(f"v_readfirstlane_b32 s{sNONCE}, v21")
    w = a.e1rest + packl(KB[0], pKB[0]) + packl(VB[0], pVB[0]) + packl(QB[0], pQB[0])
    weave(a, w, a.dsw, 2, 8)
    a(f"s_cmp_eq_u32 s{sNONCE}, 0")
    a("s_cbranch_scc1 L_NONCE_S")
    a("L_NONCE_R:")
    a.tail.append(f"""L_NONCE_S:
    s_mov_b32 s{sSpin}, 0
L_NONCE_L:
    global_load_dword v21, v19, s[{sPDbg}:{sPDbg+1}] sc1
    s_add_u32 s{sSpin}, s{sSpin}, 1
    s_waitcnt vmcnt(0)
    v_readfirstlane_b32 s{sNONCE}, v21
    s_cmp_lt_u32 s{sSpin}, 0x40000
    s_cbranch_scc0 L_NONCE_R
    s_nop 2
    s_cmp_eq_u32 s{sNONCE}, 0
    s_cbranch_scc1 L_NONCE_L
    s_branch L_NONCE_R""")
    for s in pend.pop(0): a.emit(s)
    a.stamp("e1pack")
    qa = []
    for q in QA:
        qa += [f"v_pk_mul_f32 {vr(q+2*j, 2)}, {vr(q+2*j, 2)}, s[62:63]" for j in range(8)] + packl(q)
    lt = L()
    st = local_tile(lt, 240, pKB[1], pVB[1], pKB[0], pVB[0]+4, 128, 144, 176, 168, 248, 252, 65536, "ob1", fill1=qa[:22], fill2=qa[22:])
    lt += packl(176, 56)
    a.ob1 = [(st[0][0].format("v[56:59]"), "ob1"), (st[1][0].format("v[60:63]"), "ob1")]
    weave(a, lt, pend, o.get("st_a", 40), o.get("st_b", 50))
    for g in pend:
        for s in g: a.emit(s)
    a.stamp("loc1")
    a.emit(a.wait(["kv"], lgkm=True))
    for s in flag_store(32, 20, "fKV"): a.emit(s)
    a("s_barrier")
    a.stamp("fKV")

sKVp, sKVg, sOg, sPFW = 84, 98, 100, 52
vL16b = 5
def kv_dma(slot, group, tag):
    out = [f"s_add_u32 m0, s{sKVdst}, {KV_LDS[slot] + group*4096}"]
    for p in range(4):
        out.append((f"global_load_lds_dwordx4 v{vL16b if group else vL16}, s[{sKVg}:{sKVg+1}] offset:{p*1024} sc1", tag))
    return out
sKVb, sKVd = 3, 34
def kv_advance(c):
    if c <= 7:
        return [f"s_cmp_le_u32 s{sKVt}, {c-1}", f"s_addc_u32 s36, s{sKVb}, {c-1}", "s_lshl_b32 s36, s36, 15",
                f"s_add_u32 s{sKVg}, s{sKVp}, s36", f"s_addc_u32 s{sKVg+1}, s{sKVp+1}, 0"]
    return [f"s_add_u32 s36, s{sKVb}, {c}", "s_and_b32 s36, s36, 15", "s_lshl_b32 s36, s36, 15",
            f"s_add_u32 s{sKVg}, s{sKVp}, s36", f"s_addc_u32 s{sKVg+1}, s{sKVp+1}, 0"]

def sel_init(t0, t1):
    return [f"v_lshrrev_b32 v{t0}, 1, v{vLANE}", f"v_and_b32 v{t0}, 3, v{t0}", f"v_min_u32 v{t1}, 1, v{t0}", f"v_add_u32 v{t1}, -1, v{t1}",
            f"v_and_b32 v{t1}, 0x3f803f80, v{t1}", f"v_accvgpr_write_b32 a{aSEL}, v{t1}", f"v_accvgpr_write_b32 a{aSEL+1}, v{t1}",
            f"v_xor_b32 v{t0}, 2, v{t0}", f"v_min_u32 v{t1}, 1, v{t0}", f"v_add_u32 v{t1}, -1, v{t1}",
            f"v_and_b32 v{t1}, 0x3f803f80, v{t1}", f"v_accvgpr_write_b32 a{aSEL+2}, v{t1}", f"v_accvgpr_write_b32 a{aSEL+3}, v{t1}",
            f"v_and_b32 v{vIDX}, 1, v{vLANE}", f"v_mul_u32_u24 v{vIDX}, 0xaaaa, v{vIDX}", f"v_add_u32 v{vIDX}, 0x4444, v{vIDX}"]
def smf(q): return f"v_smfmac_f32_16x16x64_bf16 {ar(aL[q], 4)}, {ar(aSEL, 4)}, {vr(P[q], 8)}, v{vIDX}"

def H(a, q, vpar, qk=True, pv=True, pv_first=False, slots=None):
    slots = slots or {}
    o = 1 - q
    e = [f"v_exp_f32 v{S[q]+i}, v{S[q]+i}" for i in range(16)]
    c = [f"v_cvt_pk_bf16_f32 v{P[q]+j}, v{S[q]+2*j}, v{S[q]+2*j+1}" for j in range(8)]
    So, Oo = vr(S[o], 16), ar(aO[o], 16)
    M = [mf32(So, ar(aK, 4), vr(QA[o], 4), vr(NM[o], 16)) if qk else None,
         mf32(So, ar(aK+4, 4), vr(QA[o]+4, 4), So) if qk else None,
         mf32(Oo, ar(aV[vpar], 4), vr(P[o], 4), 0 if pv_first else Oo) if pv else None,
         mf32(Oo, ar(aV[vpar]+4, 4), vr(P[o]+4, 4), Oo) if pv else None,
         smf(o) if pv else None, None]
    V = [[e[0], e[1], e[2]], [e[3], c[0], c[1], e[4]], [e[5], e[6], e[7]], [c[2], c[3], e[8], e[9], e[10], e[11], c[4], c[5]],
         [], [e[12], e[13], e[14], e[15], c[6], c[7]]]
    if not pv: V[3] = ["s_nop 0"] + V[3]
    for i in range(6):
        if M[i]: a(M[i])
        for s in slots.get(i, []): a.emit(s)
        for s in V[i]: a(s)

def rdK(slot, off): return [f"ds_read_b128 {ar(aK, 4)}, v{vKV[slot]} offset:{off}", f"ds_read_b128 {ar(aK+4, 4)}, v{vKV[slot]} offset:{off+1024}"]
def rdV(par, slot, off): return [f"ds_read_b128 {ar(aV[par], 4)}, v{vKV[slot]} offset:{off+2048}", f"ds_read_b128 {ar(aV[par]+4, 4)}, v{vKV[slot]} offset:{off+3072}"]

FREE_A = [0, 3, 4]; FREE_B = [2, 3, 4, 5]
TORD = [0, 2, 1, 3]
def tile(a, n, side=None, end_b=None):
    sa = {}; sb = {}
    if n < 63:
        m = n + 1
        k = rdK((m >> 2) & 1, TORD[m & 3]*4096); v = rdV(m & 1, (m >> 2) & 1, TORD[m & 3]*4096)
        sa[1] = [k[0]]; sa[2] = [k[1]]; sa[5] = ["s_waitcnt lgkmcnt(0)"]
        sb[0] = [v[0]]; sb[1] = [v[1]]
    if side is not None:
        for g in FREE_A:
            if side: sa.setdefault(g, []).extend(side.pop(0))
        for g in (FREE_B if end_b is None else FREE_B[:-1]):
            if side: sb.setdefault(g, []).extend(side.pop(0))
        if sb.get(4) and sb.get(5) and isinstance(sb[4][-1], str) and " m0," in sb[4][-1] and isinstance(sb[5][0], tuple):
            if not sb.get(3): sb[3] = sb.pop(4)
            elif len(sb[3]) == 1 and isinstance(sb[3][0], str) and " m0," not in sb[3][0] and not sb[3][0].startswith(("s_cmp", "s_addc", "s_add_u32 s9", "s_add_u32 s10")):
                sb[3], sb[4] = sb[4], sb[3]
            else: sb[4] = sb[4] + ["s_nop 0"]
    if end_b: sb.setdefault(5, []).extend(end_b)
    H(a, 0, (n - 1) & 1, pv=(n != 0), pv_first=(n == 1), slots=sa)
    H(a, 1, n & 1, qk=(n < 63), pv_first=(n == 0), slots=sb)

def neg_max(a):
    for q in range(2): a(f"v_mov_b32 v{21+q}, v{19+q}")
    a("s_nop 0")
    for q in range(2): a(f"v_permlane32_swap_b32 v{19+q}, v{21+q}")
    for q in range(2): a(f"v_max_f32 v{19+q}, v{19+q}, v{21+q}")
    for q in range(2):
        for i in range(16): a(f"v_sub_f32 v{NM[q]+i}, 0, v{19+q}")

def gate_compute(a):
    z, t = 23, 24
    for i in range(16):
        a(f"v_accvgpr_read_b32 v{96+(i%4)}, a{aGATE+i}")
        a(f"v_accvgpr_read_b32 v{100+(i%4)}, a{aGATE+16+i}")
        a(f"v_dot2_f32_bf16 v{z}, v{96+(i%4)}, v{100+(i%4)}, {0 if i == 0 else 'v%d' % z}")
    a("s_nop 2")
    for sh in (8, 4, 2, 1):
        a(f"v_add_f32_dpp v{z}, v{z}, v{z} row_ror:{sh} row_mask:0xf bank_mask:0xf")
        a("s_nop 1")
    a(f"v_mov_b32 v{t}, v{z}")
    a("s_nop 1")
    a(f"v_permlane16_swap_b32 v{z}, v{t}")
    a(f"v_add_f32 v{z}, v{z}, v{t}")
    a(f"v_mul_f32 v{z}, {f2u(-math.log2(math.e))}, v{z}")
    a(f"v_exp_f32 v{z}, v{z}")
    a(f"v_and_b32 v{t}, 31, v{vLANE}")
    a(f"v_add_f32 v{z}, 1.0, v{z}")
    a(f"v_rcp_f32 v{z}, v{z}")
    a(f"v_min_u32 v{t}, 1, v{t}")
    a(f"v_lshlrev_b32 v{t}, 31, v{t}")
    a(f"v_lshl_or_b32 v{t}, v{vGrow}, 2, v{t}")
    a(f"s_mov_b32 s36, {G_OFF}")
    a.emit((f"buffer_store_dword v{z}, v{t}, {WS}, s36 offen sc1", "g"))

def p4_setup(a):
    srd(a, sWoA, sPWoA, sPWoA+1, 1024*1024*2)
    srd(a, sWoB, sPWoB, sPWoB+1, 1024*1024*2)
    srd(a, sOutD, sPOut, sPOut+1, 2048*1024*2)
    a("s_and_b32 s36, s2, 7")
    a("s_lshr_b32 s37, s2, 3")
    a(f"s_and_b32 s{sC4}, s37, 15")
    a("s_lshr_b32 s37, s37, 4")
    a("s_lshl_b32 s36, s36, 1")
    a(f"s_add_u32 s{sT4}, s36, s37")
    r, c, t0, t1 = 200, 201, 202, 203
    a(f"v_lshrrev_b32 v{r}, 3, v{vLANE}")
    a(f"v_and_b32 v{c}, 7, v{vLANE}")
    a(f"v_lshlrev_b32 v{t0}, 1, v{r}")
    a(f"v_and_b32 v{t0}, 4, v{t0}")
    a(f"v_xor_b32 v{t0}, v{t0}, v{c}")
    a(f"v_lshlrev_b32 v{t0}, 4, v{t0}")
    a(f"v_lshl_add_u32 v{t0}, v{r}, 11, v{t0}")
    a(f"s_lshl_b32 s36, s{sW}, 14")
    a(f"s_lshl_b32 s37, s{sC4}, 7")
    a("s_add_u32 s36, s36, s37")
    a(f"v_add_u32 v{vWo_g}, s36, v{t0}")
    a(f"v_and_b32 v{r}, 15, v{vLANE}")
    a(f"v_lshrrev_b32 v{t0}, 2, v{r}")
    a(f"v_lshrrev_b32 v{t1}, 5, v{vLANE}")
    a(f"v_lshl_add_u32 v{c}, v{t1}, 2, v{t0}")
    a(f"v_lshrrev_b32 v{t0}, 1, v{c}")
    a(f"v_and_b32 v{t0}, 1, v{t0}")
    a(f"v_lshlrev_b32 v{t0}, 6, v{t0}")
    a(f"v_lshl_add_u32 v{t0}, v{c}, 7, v{t0}")
    a(f"v_and_b32 v{t1}, 16, v{vLANE}")
    a(f"v_lshl_add_u32 v{t0}, v{t1}, 1, v{t0}")
    a(f"v_and_b32 v{t1}, 3, v{r}")
    a(f"v_lshl_add_u32 v{vWo_r[0]}, v{t1}, 3, v{t0}")
    a(f"v_xor_b32 v{vWo_r[1]}, 64, v{vWo_r[0]}")
    for b in (1, 2):
        for ct in range(2):
            a(f"v_add_u32 v{vWo_r[2*b+ct]}, {b*65536}, v{vWo_r[ct]}")
    a(f"s_lshl_b32 s36, s{sT4}, 2")
    a(f"s_add_u32 s36, s36, s{sW}")
    a(f"s_lshl_b32 s{sOrow}, s36, 16")
    a(f"s_lshr_b32 s36, s36, 1")
    a(f"s_lshl_b32 s29, s36, 7")
    a(f"s_lshl_b32 s{sOoff}, s{sC4}, 12")
    a(f"s_lshl_b32 s{sWooff}, s{sC4}, 17")
    a(f"v_and_b32 v16, 31, v{vLANE}")
    a("v_lshlrev_b32 v16, 2, v16")
    a(f"v_and_b32 v17, 15, v{vLANE}")
    a(f"v_cmp_le_u32 vcc, s{sKVt}, v17")
    a(f"v_add_u32 v17, s{sKVb}, v17")
    a("s_nop 0")
    a("v_addc_co_u32 v17, vcc, 0, v17, vcc")
    a("v_and_b32 v17, 15, v17")
    a("v_lshlrev_b32 v17, 2, v17")
    a("s_lshr_b32 s36, s2, 3")
    a("s_lshl_b32 s36, s36, 2")
    a(f"s_add_u32 s36, s36, s{sW}")
    a("s_lshl_b32 s36, s36, 12")
    a(f"s_add_u32 s36, s36, {24*65536}")
    a(f"v_and_b32 v15, 15, v{vLANE}")
    a("v_lshlrev_b32 v15, 7, v15")
    a("v_add_u32 v15, s36, v15")
    a(f"s_add_u32 s36, s{sOrow}, {OB_OFF}")
    a(f"s_add_u32 s{sOg}, s54, s36")
    a(f"s_addc_u32 s{sOg+1}, s55, 0")

def wob_dma(i, tag):
    return [[f"s_mov_b32 s39, {i*65536}"], [f"s_add_u32 m0, s{sWv}, {i*4096}"],
            [(f"buffer_load_dwordx4 v{vWo_g}, s[{sWoB}:{sWoB+3}], s39 offen lds", tag)]]

def attention(a):
    o = a.opts
    a("L_ATT0:")
    for s in rdK(0, 0) + rdV(0, 0, 0): a(s)
    for s in kv_advance(1): a(s)
    for q in range(2):
        for i in range(4): a(f"v_accvgpr_write_b32 a{aL[q]+i}, 0")
    a(f"s_cmp_lg_u32 s{sPASS}, 0")
    a("s_cbranch_scc1 L_ATT1")
    ps = L(); p4_setup(ps)
    ps_s = [x for x in ps if x.startswith("s_") and "s4," not in x.split()[1] and not any(x.split()[1].startswith(f"s{i},") for i in (4, 5, 6, 7))]
    ps_x = []
    rest = [x for x in ps if x not in ps_x]
    n1 = 22
    for s in rest[:n1]: a(s)
    a("s_waitcnt lgkmcnt(0)")
    for q in range(2): a(mf32(vr(S[q], 16), ar(aK, 4), vr(QA[q], 4), 0))
    for q in range(2): a(mf32(vr(S[q], 16), ar(aK+4, 4), vr(QA[q]+4, 4), vr(S[q], 16)))
    padfill(a, rest[n1:n1+26], 11)
    for q in range(2):
        s, m = S[q], 19 + q
        a(f"v_max3_f32 v{m}, v{s}, v{s+1}, v{s+2}")
        for i in range(3, 15, 2): a(f"v_max3_f32 v{m}, v{m}, v{s+i}, v{s+i+1}")
        a(f"v_max_f32 v{m}, v{m}, v{s+15}")
    for q in range(2): a(f"v_mov_b32 v{21+q}, v{19+q}")
    a("s_nop 0")
    for q in range(2): a(f"v_permlane32_swap_b32 v{19+q}, v{21+q}")
    for q in range(2): a(f"v_max_f32 v{19+q}, v{19+q}, v{21+q}")
    for i in range(16): a(f"v_sub_f32 v{NM[0]+i}, 0, v19")
    for s in rest[n1+26:n1+28]: a(s)
    a(mf32(vr(S[0], 16), ar(aK, 4), vr(QA[0], 4), vr(NM[0], 16)))
    a(mf32(vr(S[0], 16), ar(aK+4, 4), vr(QA[0]+4, 4), vr(S[0], 16)))
    for i in range(16): a(f"v_sub_f32 v{NM[1]+i}, 0, v20")
    for s in rest[n1+28:]: a(s)
    a("v_mov_b32 v18, 0")
    a(f"s_add_u32 s36, s28, {F_H}")
    a.emit(a.wait(["halo"]))
    for s in flag_store(36, 20, "fH"): a.emit(s)
    a("s_branch L_ATT2")
    a("L_ATT1:")
    a("s_waitcnt lgkmcnt(0)")
    a(mf32(vr(S[0], 16), ar(aK, 4), vr(QA[0], 4), vr(NM[0], 16)))
    a(mf32(vr(S[0], 16), ar(aK+4, 4), vr(QA[0]+4, 4), vr(S[0], 16)))
    a("s_nop 11")
    a("L_ATT2:")
    a.stamp("att0")
    pk = [(f"buffer_load_dword v21, v17, {WS}, s31 offen sc1", "pKV")]
    ks = o.get("pk_slot", 2)
    def c1_start():
        poll_check(a, "L_PKV", 21, 17, 31, "pKV", mask=1)
        a.stamp("pKV")
        for g in range(2):
            for k_, s in enumerate(kv_dma(1, g, f"c1{'ab'[g]}")):
                a.emit(s)
                if k_ == 0: a("s_nop 0")
            if g == 0: a.emit((f"buffer_load_dword v21, v17, {WS}, s31 offen sc1", "pKV2"))
        for s in kv_advance(2): a(s)
    sl = [[] for _ in range(21)]; sl[ks] = pk
    tile(a, 0, sl[0:7]); tile(a, 1, sl[7:14])
    a.stamp("t01")
    if ks < 14: c1_start()
    tile(a, 2, sl[14:21])
    a.stamp("t2")
    if ks >= 14: c1_start()
    a(f"s_cmp_lg_u32 s{sPASS}, 0")
    a("s_cbranch_scc1 L_A4")
    gate_compute(a)
    a("s_branch L_A5")
    a("L_A4:")
    a("s_waitcnt vmcnt(0)")
    a("L_A5:")
    a.emit(a.wait(["c1a"], lgkm=True))
    a("s_barrier")
    a.pkv2 = True
    a.stamp("c1")
    wob = [i for i in range(24)]
    obl = [i for i in range(64)]
    if o.get('noside'): wob = wob[:1]; obl = obl[:1]
    ob_start = o.get("ob_start", 7)
    obase = False
    for c in range(15):
        V = []; A = []
        side = []
        if c + 2 <= 15:
            d0, d1 = kv_dma(c % 2, 0, f"c{c+2}"), kv_dma(c % 2, 1, f"c{c+2}")
            kvs = [[x] for x in d0] + [[x] for x in d1] + ([[x] for x in kv_advance(c + 3)] if c + 3 <= 15 else [])
        else:
            kvs = []
        oth = []
        if c == 0:
            oth += [[(f"buffer_load_dword v21, v17, {WS}, s31 offen sc1", "pKV3")], [], [], [(f"buffer_load_dword v22, v18, {WS}, s33 offen sc1", "pH")]]
        if c == 3:
            oth += [[f"s_lshl_b32 s38, s{sSeq}, 7"], [f"s_lshl_b32 s39, s{sHead}, 2"], ["s_add_u32 s38, s38, s39"],
                    [f"s_add_u32 s35, s38, {F_OB}"], flag_store(35, 20, "fOB")]
        if c == ob_start - 2:
            oth += [[f"s_add_u32 s47, s29, {F_OB}"], [(f"buffer_load_dword v21, v16, {WS}, s47 offen sc1", "pOB")]]
        if c == o.get("cpf2", 11) or (o.get("cpfn") and c % o["cpfn"] == 2):
            oth += [[(f"buffer_load_dword v{vPFd}, v{vT[7]}, s[{sCode}:{sCode+3}], 0 offen", "cpf")]]
        nslots = 4*7 - 1 - (c == 0)
        if c >= ob_start:
            for _ in range(min(len(obl), o.get("ob_per", 10))):
                i = obl.pop(0)
                oth.append([(f"global_load_dwordx4 {oreg(i)}, v{vL16b if (i & 4) else vL16}, s[{sOg}:{sOg+1}] offset:{(i % 4)*1024} sc1", "obl")])
                if i % 8 == 7:
                    oth += [[f"s_add_u32 s{sOg}, s{sOg}, 8192"], [f"s_addc_u32 s{sOg+1}, s{sOg+1}, 0"]]
        wl = o.get("wol2", 6)
        if wl <= c < wl + 8:
            oth.append([(f"global_load_dword v{vPFd}, v0, s[{sPWoA}:{sPWoA+1}] offset:{((c - wl) & 1)*2048}", "wopf")] + (["v_add_u32 v0, 4096, v0"] if (c - wl) & 1 else []))
        wb0 = 11 if o.get("wbtail", 1) else 13
        if c in (wb0, wb0 + 1) and o.get("wbl2", 1):
            oth.append([(f"global_load_dword v{vPFd}, v15, s[{sPWoB}:{sPWoB+1}] offset:{(c - wb0)*2048}", "wopf")])
        if c == 14 and o.get("wbtail", 1): wob += list(range(24, 32))
        while wob and (len(kvs) + len(oth) + 3 <= nslots or c == 14):
            i_ = wob.pop(0)
            oth += wob_dma(i_, f"wo{i_//8}")
        side = kvs + oth
        while len(side) > nslots:
            for k in range(len(side) - 1):
                if all(isinstance(x, str) and x.startswith("s_") and "m0" not in x for x in side[k]):
                    side[k+1] = side[k] + side[k+1]; side.pop(k); break
            else:
                raise Exception("slots")
        n = len(side)
        nv = sum(isinstance(x, tuple) for g in side for x in g)
        if n < nslots and nv >= o.get("spread", 1):
            sp = [[] for _ in range(nslots)]
            for k, g in enumerate(side): sp[k*nslots//n] = g
            side = sp
        if c == 0:
            poll_check(a, "L_PKV2", 21, 17, 31, "pKV2", mask=2)
        if c == 1:
            poll_check(a, "L_PKV3", 21, 17, 31, "pKV3", mask=0xffff)
            poll_check(a, "L_PH", 22, 18, 33, "pH")
            a(f"s_sub_u32 s38, s{sHalo}, 4096")
            a(f"s_cmp_eq_u32 s{sSeq}, 0")
            a(f"s_cselect_b32 s38, {OOB}, s38")
            a.emit((f"buffer_load_dwordx4 {vr(HK, 4)}, v{vL16}, {WS}, s38 offen sc1", "hl"))
            a.emit((f"buffer_load_dwordx4 {vr(HK+4, 4)}, v{vL16}, {WS}, s38 offen offset:1024 sc1", "hl"))
            a.emit((f"buffer_load_dwordx4 {vr(HV, 4)}, v{vL16}, {WS}, s38 offen offset:2048 sc1", "hl"))
        if c == 2:
            a(f"s_cmp_lg_u32 s{sPASS}, 0")
            a("s_cbranch_scc1 L_LOC0X")
            a(f"s_cmp_eq_u32 s{sSeq}, 0")
            a("s_cbranch_scc0 L_MASKOK")
            for i in range(8): a(f"v_mov_b32 v{vMc+16+i}, {NEGBIG}")
            a("L_MASKOK:")
            for s in a.ob1: a.emit(s)
            st = local_tile(a, pQB[0], pKB[0], pVB[0], HK, HV, 96, 112, 208, 168, 236, 23, 0, "ob0")
            pack(a, 208)
            a.emit((st[0][0].format("v[208:211]"), "ob0")); a.emit((st[1][0].format("v[212:215]"), "ob0"))
            a("L_LOC0X:")
            a.stamp("loc0")
        if c == ob_start - 1:
            poll_check(a, "L_POB", 21, 16, 47, "pOB")
        tile(a, 4*c + 3, side)
        tile(a, 4*c + 4, side, end_b=[a.wait(["c1b"]), "s_barrier"] if c == 0 else None)
        tile(a, 4*c + 5, side)
        tile(a, 4*c + 6, side, end_b=[a.wait([f"c{c+2}"], lgkm=True) if c + 2 <= 15 else a.wait(["wo0", "obl"], lgkm=True), "s_barrier"])
        assert not side
        if c in (4, 9): a.stamp(f"c{c}")
        if c == 7:
            for _ in range(o.get("idle_att", 0)): a("s_nop 15")
    assert not wob and not obl, (wob, obl)
    r0 = p4_reads(0) + p4_reads(1)
    tile(a, 63, [r0[0:2], r0[2:4], r0[4:6], r0[6:8], r0[8:10], r0[10:13], r0[13:16]])
    a(f"s_add_u32 s36, s{sOst}, {OA_OFF}")
    a(f"s_add_u32 s37, s{sOst}, {OA_OFF + 65536}")
    a(mf32(ar(aO[1], 16), ar(aV[1], 4), vr(P[1], 4), ar(aO[1], 16)))
    a(smf(1))
    a(mf32(ar(aO[1], 16), ar(aV[1]+4, 4), vr(P[1]+4, 4), ar(aO[1], 16)))
    a.stamp("attend")
    F = L()
    F(f"v_accvgpr_read_b32 v19, a{aL[0]}")
    F(f"v_accvgpr_read_b32 v21, a{aL[0]+1}")
    for i in range(16): F(f"v_accvgpr_read_b32 v{S[0]+i}, a{aO[0]+i}")
    F("v_add_f32 v19, v19, v21")
    F(f"v_accvgpr_read_b32 v20, a{aL[1]}")
    F("v_rcp_f32 v23, v19")
    F(f"v_accvgpr_read_b32 v21, a{aL[1]+1}")
    F("v_add_f32 v20, v20, v21")
    for i in range(16): F(f"v_mul_f32 v{S[0]+i}, v{S[0]+i}, v23")
    F += packl(S[0])
    F("v_rcp_f32 v24, v20")
    F((f"buffer_store_dwordx4 {vr(S[0], 4)}, v{vL16}, {WS}, s36 offen sc1", "oa"))
    F((f"buffer_store_dwordx4 {vr(S[0]+4, 4)}, v{vL16}, {WS}, s36 offen offset:1024 sc1", "oa"))
    for i in range(16): F(f"v_accvgpr_read_b32 v{S[1]+i}, a{aO[1]+i}")
    for i in range(16): F(f"v_mul_f32 v{S[1]+i}, v{S[1]+i}, v24")
    F += packl(S[1])
    F(f"s_mov_b32 s36, {f2u(2.0**64)}")
    F((f"buffer_store_dwordx4 {vr(S[1], 4)}, v{vL16}, {WS}, s37 offen sc1", "oa"))
    F((f"buffer_store_dwordx4 {vr(S[1]+4, 4)}, v{vL16}, {WS}, s37 offen offset:1024 sc1", "oa"))
    F("v_mov_b32 v21, 0")
    for q in range(2):
        for j in range(8): F(f"v_dot2_f32_bf16 v{19+q}, v{S[q]+j}, v21, v{19+q}")
    F("s_nop 2")
    F("v_cmp_nge_f32 s[64:65], s36, v19" if not o.get("stamp") else "v_cmp_nge_f32 s[56:57], s36, v19")
    F("v_cmp_nge_f32 vcc, s36, v20")
    F(f"s_lshl_b32 s37, s{sW}, 2")
    F(f"s_add_u32 s37, s37, {XCH}")
    F("v_mov_b32 v22, s37")
    F("s_nop 1")
    F("s_or_b64 vcc, vcc, s[64:65]" if not o.get("stamp") else "s_or_b64 vcc, vcc, s[56:57]")
    if o.get("force_fallback"): F("s_mov_b64 vcc, -1")
    F(f"s_cmp_lg_u64 vcc, 0\ns_cselect_b32 s36, 1, 0\ns_andn2_b32 s36, s36, s{sPASS}")
    F("v_mov_b32 v21, s36")
    F("ds_write_b32 v22, v21")
    F(f"v_mov_b32 v22, {XCH}")
    a.fin = F
    b = Asm()
    b("L_FALLBACK:")
    b(f"s_mov_b32 s{sPASS}, 1")
    b(f"s_mov_b32 s25, {OOB}")
    b(f"s_mov_b32 s26, {OOB}")
    b(f"v_mov_b32 v19, {NEGBIG}")
    b(f"v_mov_b32 v20, {NEGBIG}")
    b(f"s_lshl_b32 s38, s{sHP}, 19")
    b(f"s_lshl_b32 s39, s{sHH}, 14")
    b("s_add_u32 s38, s38, s39")
    b("s_mov_b32 s39, 0")
    b("L_FB:")
    b("s_and_b32 s36, s39, 3")
    b("s_lshl_b32 s36, s36, 12")
    b("s_lshr_b32 s37, s39, 2")
    b("s_lshl_b32 s37, s37, 15")
    b("s_add_u32 s36, s36, s37")
    b("s_add_u32 s36, s36, s38")
    b(f"buffer_load_dwordx4 {ar(aK, 4)}, v{vL16}, {WS}, s36 offen sc1")
    b(f"buffer_load_dwordx4 {ar(aK+4, 4)}, v{vL16}, {WS}, s36 offen offset:1024 sc1")
    b("s_waitcnt vmcnt(0)")
    for q in range(2): b(mf32(vr(S[q], 16), ar(aK, 4), vr(QA[q], 4), 0))
    for q in range(2): b(mf32(vr(S[q], 16), ar(aK+4, 4), vr(QA[q]+4, 4), vr(S[q], 16)))
    b("s_nop 11")
    for q in range(2):
        for i in range(0, 16, 2): b(f"v_max3_f32 v{19+q}, v{19+q}, v{S[q]+i}, v{S[q]+i+1}")
    b("s_add_u32 s39, s39, 1")
    b("s_cmp_lt_u32 s39, 64")
    b("s_cbranch_scc1 L_FB")
    neg_max(b)
    for s in sel_init(23, 24): b(s)
    b(f"s_lshl_b32 s36, s{sT}, 15")
    b(f"s_add_u32 s{sKVg}, s{sKVp}, s36")
    b(f"s_addc_u32 s{sKVg+1}, s{sKVp+1}, 0")
    b(f"s_add_u32 s36, s{sOrow}, {OB_OFF}")
    b(f"s_add_u32 s{sOg}, s54, s36")
    b(f"s_addc_u32 s{sOg+1}, s55, 0")
    b("v_add_u32 v0, -16384, v0")
    b("s_barrier")
    for g in range(2):
        for k_, s in enumerate(kv_dma(0, g, "")):
            b(s[0] if isinstance(s, tuple) else s)
            if k_ == 0: b("s_nop 0")
    b("s_waitcnt vmcnt(0)")
    b("s_barrier")
    b("s_branch L_ATT0")
    a.tail.append(b.text())

def fW4(G, i, ct, n=4, d=0):
    fs = G % 3
    return vr(32 + fs*16 + i*8 + ct*4 + d, n) if fs < 2 else ar(i*8 + ct*4 + d, n)
def p4_lds(g):
    return g*32768 if g < 4 else [131072, 0, 32768, 65536][g - 4]
def p4_reads(G):
    out = []
    base = p4_lds(G // 8)
    for i in range(2):
        for ct in range(2):
            off = base % 65536 + ((G % 8)*2 + i)*2048
            v = vWo_r[2*(base // 65536) + ct]
            out.append(f"ds_read_b64_tr_b16 {fW4(G, i, ct, 2)}, v{v} offset:{off}")
            out.append(f"ds_read_b64_tr_b16 {fW4(G, i, ct, 2, 2)}, v{v} offset:{off+1024}")
    return out
def woa_dma(g, i):
    pos = (g - 4)*8 + i
    return [[f"s_add_u32 s39, s{sWooff}, {pos*65536}", "s_and_b32 s39, s39, 0x1fffff", f"s_add_u32 m0, s{sWv}, {p4_lds(g) + i*4096}"],
            [(f"buffer_load_dwordx4 v{vWo_g}, s[{sWoA}:{sWoA+3}], s39 offen lds", f"wo{g}")]]
def oa_load(i):
    out = [(f"buffer_load_dwordx4 {oreg(i)}, v{vL16}, {WS}, s{sO} offen offset:{(i % 4)*1024} sc1", f"oa{i}")]
    if i % 4 == 3:
        out += [f"s_add_u32 s{sOoff}, s{sOoff}, 4096", f"s_and_b32 s{sOoff}, s{sOoff}, 0xffff", f"s_add_u32 s{sO}, s{sObase}, s{sOoff}"]
    return out

def phase4(a):
    o = a.opts
    flag_at = o.get("oaflag_gap", 40)
    poll_at = o.get("oapoll_gap", 84)
    chk_at = o.get("oachk_gap", 96)
    side = {}
    def put(k, l): side.setdefault(k, []).extend(l)
    F = list(a.fin)
    k = 0
    while F:
        n_ = 6 if len(F) > 5*(23 - k) - 5 else 5
        put(k, F[:n_]); F = F[n_:]; k += 1
    assert k <= 23, k
    pre = [f"s_add_u32 s{sObase}, s{sOrow}, {OA_OFF}", f"s_add_u32 s{sO}, s{sObase}, s{sOoff}", f"s_lshl_b32 s38, s{sSeq}, 7",
           f"s_lshl_b32 s47, s{sHead}, 2", "s_add_u32 s38, s38, s47", f"s_add_u32 s35, s38, {F_OA}", f"s_add_u32 s47, s29, {F_OA}",
           f"s_lshl_b32 s36, s{sT4}, 9", f"s_lshl_b32 s37, s{sW}, 7", "s_add_u32 s36, s36, s37", f"s_add_u32 s36, s36, {G_OFF}",
           (f"buffer_load_dword v{vGate}, v16, {WS}, s36 offen sc1", "gl")]
    put(24, ["ds_read_b128 v[20:23], v22"])
    for i, x in enumerate(pre): put(25 + i//2, [x])
    put(32, ["v_or_b32 v20, v20, v21", "v_or3_b32 v20, v20, v22, v23"])
    put(33, ["v_readfirstlane_b32 s38, v20"])
    put(35, ["s_cmp_lg_u32 s38, 0\ns_cbranch_scc1 L_FALLBACK"])
    assert flag_at > 35
    put(flag_at, [a.wait(["oa"])]); put(flag_at + 1, flag_store(35, 20, "fOA"))
    put(poll_at, [(f"buffer_load_dword v21, v16, {WS}, s47 offen sc1", "pOA")])
    put(130, [f"v_sub_f32 v8, 1.0, v{vGate}", f"v_and_b32 v19, 31, v{vLANE}", f"v_lshrrev_b32 v20, 5, v{vLANE}"])
    put(131, ["v_lshlrev_b32 v20, 4, v20", "v_lshl_add_u32 v19, v19, 11, v20"])
    for i in range(32): put(134 + i//2, [f"v_mul_f32 v{ACC4[0][i//16] + i%16}, v{ACC4[0][i//16] + i%16}, v8"])
    put(250, [f"s_lshl_b32 s36, s{sT4}, 18", f"s_lshl_b32 s37, s{sW}, 16"]); put(251, ["s_add_u32 s36, s36, s37", f"s_lshl_b32 s37, s{sC4}, 7"]); put(252, ["s_add_u32 s36, s36, s37"])
    a("s_waitcnt lgkmcnt(0)")
    lat = o.get("p4lat", 20)
    jobs = [] if o.get("wbtail", 1) else [[26, 32*2 + 23 - lat, "wb", i] for i in range(24, 32)]
    for g in range(4, 8):
        e = {4: 0, 5: 26, 6: 57, 7: 89}[g]
        jobs += [[{4: 57, 5: 57, 6: 89, 7: 121}[g] if i == 7 else e, 32*(g - 1) + 23 - lat, "wa", (g, i)] for i in range(8)]
    jobs += [[max(chk_at + 1, 2*i + 2), 128 + 4*(i//2) - lat, "oa", i] for i in range(64)]
    gap = o.get("p4gap", 2.0)
    t = float(o.get('wb_at', 19))
    quiet = range(poll_at - o.get("p4quiet", 4), poll_at + 1)
    while jobs:
        k = int(t)
        av = [j for j in jobs if j[0] <= k]
        if not av or k in quiet:
            t = k + 1; continue
        j = min(av, key=lambda j: j[1])
        jobs.remove(j)
        if j[2] == "wb":
            d = wob_dma(j[3], "wo3"); put(k - 1, d[0] + d[1]); put(k, d[2])
        elif j[2] == "wa":
            d = woa_dma(*j[3]); put(k - 1, d[0]); put(k, d[1])
        else:
            put(k, oa_load(j[3]))
        if k > j[1] + 8: print("p4 late", j, k)
        t += gap
    ds = []
    def lg(tags):
        k_ = max([i for i, t_ in enumerate(ds) if t_ in tags], default=-1)
        return min(len(ds) - 1 - k_, 15)
    for G in range(64):
        br = G // 32
        rd = p4_reads(G + 2) if G + 2 < 64 else []
        for j in range(4):
            idx = 4*G + j
            i, ct = j // 2, j % 2
            k16 = (G % 32)*2 + i
            d = vr(ACC4[br][ct], 16)
            a(mf32(d, fW4(G, i, ct), oreg(k16), 0 if k16 == 0 else d))
            sd = side.pop(idx, [])
            for s in [x for x in sd if isinstance(x, str) and x.startswith("ds_read")]:
                a(s); ds.append("xr")
            for s in rd[2*j:2*j+2]:
                a(s); ds.append(G + 2)
            for s in sd:
                if isinstance(s, str) and s.startswith("ds_read"): continue
                a.emit(s)
                if isinstance(s, str) and s.startswith("ds_write"): ds.append("xw")
            if idx == flag_at + 1: a.stamp("fOA")
            if idx == chk_at:
                poll_check(a, "L_POA", 21, 16, 47, "pOA")
                a.stamp("pOA")
        if G == 63: break
        w = ""
        need = []
        if G + 1 >= 32: need.append(f"oa{((G + 1) % 32)*2 + 1}")
        bar = G % 8 == 5 and G // 8 < 7
        if bar and f"wo{G//8 + 1}" in a.vm: need.append(f"wo{G//8 + 1}")
        if need: w += f" vmcnt({a.vmn(need)})"
        if G + 1 >= 2: w += f" lgkmcnt({lg([G + 1, 'xw'])})"
        if w: a("s_waitcnt" + w)
        if bar: a("s_barrier")
        if G == 31: a.stamp("p4B")
    assert not side, side.keys()
    a.stamp("p4A")
    a("s_nop 10")
    for ct in range(2):
        B_, A_ = ACC4[0][ct], ACC4[1][ct]
        for i in range(16): a(f"v_fma_f32 v{B_+i}, v{A_+i}, v{vGate}, v{B_+i}")
        pack(a, B_)
        a("s_nop 1")
        for k in (0, 2):
            a(f"v_permlane32_swap_b32 v{B_+2*k}, v{B_+2*k+2}")
            a(f"v_permlane32_swap_b32 v{B_+2*k+1}, v{B_+2*k+3}")
        for k in (0, 2):
            a.emit((f"buffer_store_dwordx4 {vr(B_+2*k, 4)}, v19, s[{sOutD}:{sOutD+3}], s36 offen offset:{ct*64 + k*16} {['', 'sc1', 'nt', 'sc0 sc1', 'sc1 nt'][o.get('outflag', 2)]}", "out"))

def gen(opts):
    a = G(opts); a.tail = []
    setup(a); gemm1(a); e1(a); attention(a); phase4(a)
    if opts.get("diag") is not None:
        a.stamp("end")
        a("s_nop 1")
        a(f"v_readlane_b32 s36, v{vSTAMP}, {32 + opts['diag']}")
        a("s_nop 3")
        a("s_add_u32 s36, s36, 10000")
        if opts.get("diagwg") is not None:
            a(f"s_cmp_lg_u32 s2, {opts['diagwg']}")
            a("s_cbranch_scc1 L_END")
        a("L_DIAG:")
        a("s_memrealtime s[38:39]")
        a("s_waitcnt lgkmcnt(0)")
        a("s_sub_u32 s38, s38, s36")
        a("s_cmp_lt_i32 s38, 0")
        a("s_cbranch_scc1 L_DIAG")
    elif opts.get("dbgstamp"):
        a.stamp("end")
        sel = ["karg", "first", "g7", "g15", "g23", "g31", "loc1", "pKV", "c1", "c9", "attend", "pOA", "p4B", "p4A", "end"]
        a(f"s_cmp_lg_u32 s2, {opts['dbgstamp']-1}")
        a("s_cbranch_scc1 L_DBGX")
        a(f"s_cmp_lg_u32 s{sW}, 0")
        a("s_cbranch_scc1 L_DBGX")
        a(f"v_readlane_b32 s36, v{vSTAMP}, 32")
        for i, nm in enumerate(sel):
            a(f"v_readlane_b32 s37, v{vSTAMP}, {32 + a.names.index(nm)}")
            a("s_nop 3")
            a("s_sub_u32 s37, s37, s36")
            a("v_mov_b32 v2, s37")
            a("v_mov_b32 v3, 0")
            a(f"global_store_dword v3, v2, s[{sPDbg}:{sPDbg+1}] offset:{4*(i+1)}")
        a("L_DBGX:")
    elif opts.get("stamp"):
        a.stamp("end")
        a("s_lshl_b32 s36, s2, 2")
        a(f"s_add_u32 s36, s36, s{sW}")
        a("s_lshl_b32 s36, s36, 8")
        a(f"s_add_u32 s36, s36, {STAMP_OFF}")
        a(f"v_lshlrev_b32 v2, 2, v{vLANE}")
        a(f"buffer_store_dword v{vSTAMP}, v2, {WS}, s36 offen")
    a("s_endpgm")
    for t in a.tail: a(t)
    head = f"""; gated mix of full MHA and dilated sliding-window attention: one fused kernel, 256 co-resident workgroups
; @launch grid=(256,1,1) block=(256,1,1) lds=163840
.amdgcn_target "amdgcn-amd-amdhsa--gfx950"
.text
.globl {KNAME}
.p2align 8
.type {KNAME},@function
{KNAME}:
"""
    tail = f"""L_END:
    s_endpgm
.section .rodata,"a"
.p2align 6
.amdhsa_kernel {KNAME}
  .amdhsa_next_free_vgpr 512
  .amdhsa_next_free_sgpr 102
  .amdhsa_accum_offset 256
  .amdhsa_group_segment_fixed_size 0
  .amdhsa_kernarg_size 80
  .amdhsa_user_sgpr_count 2
  .amdhsa_user_sgpr_kernarg_segment_ptr 1
  .amdhsa_system_sgpr_workgroup_id_x 1
.end_amdhsa_kernel
"""
    gen.names = a.names
    return head + a.text() + tail

if __name__ == "__main__":
    import hazard
    opts = {}
    for kv in sys.argv[2:]:
        k, v = kv.split("="); opts[k] = int(v)
    t = gen(opts)
    open(sys.argv[1], "w").write(t)
    print(len(hazard.check(t)), "hazards", gen.names)
```

```python
import sys, struct, math
from asmlib import *

KNAME = "gated_mix__softmax_full_mha__sliding_local_dilated__prompt_kernel"
def f2u(x): return struct.unpack("<I", struct.pack("<f", x))[0]
KV_OFF   = 0
OA_OFF   = 8 << 20
OB_OFF   = 12 << 20
HALO_OFF = 16 << 20
G_OFF    = 20 << 20
FLAG_OFF = 21 << 20
F_KV, F_H, F_OB, F_OA = FLAG_OFF, FLAG_OFF + 4096, FLAG_OFF + 8192, FLAG_OFF + 12288
STAMP_OFF = 0x8000000
OOB = 0x80000000
CSCALE = f2u(math.log2(math.e) / math.sqrt(32.0))
NEGBIG = f2u(-1e30)
X_SLOT = 16384; W_BASE = 49152; W_SLOT = 24576
KV_LDS = [98304, 131072]
XCH = 163840 - 16
sX, sWA, sWB, sWS = 4, 8, 12, 16
sW, sHP, sT, sRH, sHH = 20, 21, 22, 23, 24
sWoff, sXoff = 25, 26
sXw, sWv = 30, 34
sPF, sPFoff, sPFstr, sPFlim = 40, 44, 45, 46
sNONCE, sCS = 60, 61
sSTAMPI = 68
sPWoA, sPWoB, sPG, sPOut, sPDbg = 70, 72, 74, 76, 78
sKVsrc, sKVbase, sKVt, sKVdst = 80, 81, 82, 27
sPASS, sOst, sSpin = 83, 86, 87
sT4, sC4, sOoff, sWooff, sObase = 88, 89, 90, 91, 92
sHalo, sSeq, sO, sOrow, sHead = 93, 94, 95, 96, 97
sWoA, sWoB, sOutD = 4, 8, 12
sCode = 48
vLANE = 1
vXr = [2, 3]; vWr = [[4, 5], [10, 11]]; vWg = [12, 13, 14]; vXg = [15, 16, 17, 18]
vT = [19, 20, 21, 22, 23, 24, 25, 26]
vPF, vPFd, vL16, vSTAMP, vF0 = 27, 28, 29, 30, 31
vMc = 32
ACC0 = 64
def acc(blk, rt): return ACC0 + (blk*2 + rt)*16
QA = [64, 80]; KA = [96, 112]; VA = [128, 144]; QB = [160, 176]; KB = [192, 208]; VB = [224, 240]
NM = [128, 144]; S = [176, 240]; P = [72, 88]
vKV = [6, 7]
vWo_g = 2; vWo_r = [3, 4, 10, 11, 12, 13]
vGate, vGrow = 14, 8
HK = 200; HV = 232
def fX(s, rt): return s*32 + rt*4
def fW(s, blk): return s*32 + 8 + blk*4
aK, aV = 0, [8, 16]
aO = [32, 48]; aL = [64, 68]; aONE = 112
aGATE = 80
aX = [0, 16]; aW = [32, 56]; vKS, vKL = 56, 57
aSEL = 72; vIDX = 9
OV = list(range(96, 128, 4)) + list(range(160, 176, 4)) + list(range(192, 240, 4))
def oreg(i): return ar(76 + 4*i, 4) if i < 45 else vr(OV[i - 45], 4)
ACC4 = [[128, 144], [64, 80]]
pKA = [96, 112]; pVA = [104, 120]; pQB = [160, 168]; pKB = [192, 208]; pVB = [224, 216]

def mf32(d, A, B, C): return f"v_mfma_f32_32x32x16_bf16 {d}, {A}, {B}, {C}"
def mf16(d, A, B, C): return f"v_mfma_f32_16x16x32_bf16 {d}, {A}, {B}, {C}"
WS = f"s[{sWS}:{sWS+3}]"

class G(Asm):
    def __init__(self, opts):
        super().__init__()
        self.opts = opts
        self.vm = []
        self.nstamp = 0
        self.names = []
    def emit(self, x):
        if callable(x): x = x()
        if x is None: return
        if isinstance(x, tuple):
            self(x[0]); self.vm.append(x[1])
        else:
            assert not (x.lstrip().startswith(("buffer_", "global_"))), x
            self(x)
    def vmn(self, tags):
        idx = [i for i, t in enumerate(self.vm) if t in tags]
        assert idx, tags
        n = len(self.vm) - 1 - max(idx)
        return min(n, 63)
    def wait(self, tags, lgkm=False):
        return lambda: f"s_waitcnt vmcnt({self.vmn(tags)})" + (" lgkmcnt(0)" if lgkm else "")
    def stamp(self, name):
        if not self.opts.get("stamp"): return
        if self.opts["stamp"] == 2 and name not in ("start", "g31", "c1", "attend", "end", "gP", "c4"): return
        self.names.append(name)
        a = self
        a("s_memtime s[66:67]")
        a("s_memrealtime s[64:65]")
        a("s_waitcnt lgkmcnt(0)")
        a(f"v_writelane_b32 v{vSTAMP}, s66, {self.nstamp}")
        a(f"v_writelane_b32 v{vSTAMP}, s64, {self.nstamp + 32}")
        self.nstamp += 1
        assert self.nstamp <= 32
    def inter(self, mains, sides):
        for i, m in enumerate(mains):
            if m is not None: self.emit(m)
            for s in sides.get(i, []): self.emit(s)

def srd(a, s, lo, hi, nbytes):
    a(f"s_mov_b32 s{s}, s{lo}")
    a(f"s_and_b32 s{s+1}, s{hi}, 0xffff")
    a(f"s_mov_b32 s{s+2}, {nbytes}")
    a(f"s_mov_b32 s{s+3}, 0x20000")

def pf_round(a):
    return [(f"buffer_load_dword v{vPFd}, v{vPF}, s[{sPF}:{sPF+3}], s{sPFoff} offen{' nt' if a.opts.get('pfnt') else ''}", "pf"),
            f"s_add_u32 s{sPFoff}, s{sPFoff}, s{sPFstr}"]

class P1:
    def __init__(self, a):
        self.a = a; self.wnext = [0]*6; self.xnext = [0]*4
    def dma(self, piece):
        kind, j, p = piece
        if kind == "W":
            assert self.wnext[p] == j and (p < 3 or self.wnext[p - 3] == j + 1) and (p >= 3 or self.wnext[p + 3] == j)
            self.wnext[p] += 1
            s = sWA if p < 3 else sWB
            return ([f"s_add_u32 m0, s{sWv}, {W_BASE + (j % 4)*W_SLOT + p*4096}"],
                    (f"global_load_lds_dwordx4 v{vWg[p % 3]}, s[{s}:{s+1}]", f"W{j}"),
                    [f"v_add_u32 v{vWg[p % 3]}, 196608, v{vWg[p % 3]}"] if p >= 3 and j < 31 else [])
        assert self.xnext[p] == j
        self.xnext[p] += 1
        return ([f"s_add_u32 m0, s{sXw}, {(j % 3)*X_SLOT + p*1024}"],
                (f"global_load_lds_dwordx4 v{vXg[p]}, s[{sX}:{sX+1}]", f"X{j}"),
                [f"v_add_u32 v{vXg[p]}, 128, v{vXg[p]}"] if j < 15 else [])

def x_reads(xs, u):
    return [f"ds_read_b128 {ar(aX[xs] + mt*4, 4)}, v{vXr[u & 1]} offset:{((u >> 1) % 3)*X_SLOT + mt*2048}" for mt in range(4)]
def w_reads(ws_, u, blks):
    out = []
    sl = u % 4
    for i, blk in enumerate(blks):
        for nt in range(2):
            off = (sl % 2)*W_SLOT + blk*4096
            r = aW[ws_] + (i*2 + nt)*4
            out.append(f"ds_read_b64_tr_b16 {ar(r, 2)}, v{vWr[sl//2][nt]} offset:{off}")
            out.append(f"ds_read_b64_tr_b16 {ar(r + 2, 2)}, v{vWr[sl//2][nt]} offset:{off+512}")
    return out
def g1_mfmas(xs, ws_, blks, mts=(0, 1, 2, 3), mt_outer=False):
    out = {}
    for i, blk in enumerate(blks):
        for nt in range(2):
            for mt in mts:
                w, x = ar(aW[ws_] + (i*2 + nt)*4, 4), ar(aX[xs] + mt*4, 4)
                if blk % 3 == 2:
                    d = vr(acc(blk, mt >> 1) + ((mt & 1)*2 + nt)*4, 4); out[(i, nt, mt)] = mf16(d, x, w, d)
                else:
                    d = vr(acc(blk, mt >> 1) + (nt*2 + (mt & 1))*4, 4); out[(i, nt, mt)] = mf16(d, w, x, d)
    return out

def setup(a):
    o = a.opts
    a("L_START:")
    a("s_cmp_ge_u32 s2, 256")
    a("s_cbranch_scc1 L_END")
    a.stamp("start")
    a("s_load_dwordx4 s[48:51], s[0:1], 0")
    a("s_load_dwordx2 s[52:53], s[0:1], 32")
    a("s_load_dwordx2 s[54:55], s[0:1], 72")
    a(f"s_load_dwordx2 s[{sPWoA}:{sPWoA+1}], s[0:1], 16")
    a(f"s_load_dwordx4 s[{sPWoB}:{sPWoB+3}], s[0:1], 40")
    a(f"s_load_dwordx4 s[{sPOut}:{sPOut+3}], s[0:1], 56")
    if o.get("cpf0", 1):
        n = o.get('codelines', 20)
        a("s_getpc_b64 s[56:57]")
        a("L_PC0:")
        a("s_lshr_b32 s35, s2, 3")
        a(f"s_mul_i32 s35, s35, {n}")
        a(f"v_min_u32 v2, {n-1}, v0")
        a("v_add_u32 v2, s35, v2")
        a("v_lshlrev_b32 v2, 7, v2")
        a("v_min_u32 v2, L_END - L_PC0, v2")
        a.emit((f"global_load_dword v{vPFd}, v2, s[56:57]", "cpf"))
    a(f"v_and_b32 v{vLANE}, 63, v0")
    a(f"v_lshrrev_b32 v{vT[0]}, 6, v0")
    a("s_and_b32 s3, s2, 7")
    a(f"v_readfirstlane_b32 s{sW}, v{vT[0]}")
    a("s_lshr_b32 s35, s2, 3")
    a("s_and_b32 s37, s3, 3")
    a("s_lshl_b32 s36, s37, 2")
    a("s_and_b32 s38, s35, 3")
    a(f"s_add_u32 s{sHP}, s36, s38")
    a("s_lshr_b32 s39, s3, 2")
    a("s_lshl_b32 s36, s39, 3")
    a("s_lshr_b32 s38, s35, 2")
    a(f"s_add_u32 s{sT}, s36, s38")
    a(f"s_and_b32 s{sRH}, s{sW}, 1")
    a(f"s_lshr_b32 s{sHH}, s{sW}, 1")
    t0, t1, t2 = vT[0], vT[1], vT[2]
    if o.get("pfx"):
        a("s_lshl_b32 s38, s35, 5")
    else:
        a("s_lshl_b32 s38, s37, 5")
        a("s_add_u32 s38, s38, s35")
        a("s_lshl_b32 s38, s38, 3")
    a("s_lshl_b32 s47, s39, 10")
    a("s_add_u32 s38, s38, s47")
    a(f"v_add_u32 v{t0}, s38, v{vLANE}")
    a(f"v_lshlrev_b32 v{t0}, 11, v{t0}")
    if o.get("pfmode", 0) == 0:
        a("s_lshl_b32 s39, s39, 5")
        a("s_add_u32 s39, s39, s35")
        a("s_mul_i32 s39, s39, 6144")
        a("s_lshl_b32 s38, s37, 9")
        a("s_add_u32 s39, s39, s38")
        a(f"v_lshrrev_b32 v{t1}, 2, v{vLANE}")
        a(f"v_lshlrev_b32 v{t1}, 11, v{t1}")
        a(f"v_and_b32 v{t2}, 3, v{vLANE}")
        a(f"v_lshlrev_b32 v{t2}, 7, v{t2}")
        a(f"v_add3_u32 v{t1}, v{t1}, v{t2}, s39")
        if o.get("pf3", 1):
            a("s_lshr_b32 s47, s3, 2")
            a("s_xor_b32 s47, s47, 1")
            a("s_lshl_b32 s47, s47, 5")
            a("s_add_u32 s47, s47, s35")
            a("s_mul_i32 s47, s47, 6144")
            a("s_add_u32 s47, s47, s38")
            a(f"s_add_u32 s47, s47, {384 - 12*2048}")
            a(f"v_lshlrev_b32 v{t2}, 11, v{vLANE}")
            a(f"v_add_u32 v{t2}, s47, v{t2}")
            a(f"v_cmp_lt_u32 vcc, 11, v{vLANE}")
            a("s_nop 1")
            a(f"v_cndmask_b32 v{t1}, v{t1}, v{t2}, vcc")
    elif o.get("pfmode", 0) == 2:
        a("s_mul_i32 s39, s35, 12288")
        a("s_lshl_b32 s38, s37, 9")
        a("s_add_u32 s39, s39, s38")
        a(f"v_lshrrev_b32 v{t1}, 2, v{vLANE}")
        a(f"v_lshlrev_b32 v{t1}, 11, v{t1}")
        a(f"v_and_b32 v{t2}, 3, v{vLANE}")
        a(f"v_lshlrev_b32 v{t2}, 7, v{t2}")
        a(f"v_add3_u32 v{t1}, v{t1}, v{t2}, s39")
    else:
        a("s_mul_i32 s39, s2, 1536")
        a(f"v_lshlrev_b32 v{t1}, 7, v{vLANE}")
        a(f"v_add_u32 v{t1}, s39, v{t1}")
    a(f"s_mul_i32 s47, s35, {o.get('codelines', 20)}")
    a(f"v_add_u32 v{t2}, s47, v{vLANE}")
    a(f"v_lshlrev_b32 v{vT[7]}, 7, v{t2}")
    a(f"s_mov_b32 s{sPFstr}, 128")
    a(f"s_cmp_eq_u32 s{sW}, 0")
    a(f"s_cselect_b32 s{sPFstr}, s{sPFstr}, {64*6144}")
    a(f"s_cselect_b32 s38, {32 if o.get('pfx') else 8}, {24 if o.get('pfmode', 0) == 2 else (15 if o.get('pf3', 1) else 12)}")
    a("s_cselect_b64 s[56:57], -1, 0")
    a(f"v_cndmask_b32 v{vPF}, v{t1}, v{t0}, s[56:57]")
    a(f"s_cmp_eq_u32 s{sW}, 3")
    a("s_cselect_b64 s[56:57], -1, 0")
    a(f"v_cndmask_b32 v{vPF}, v{vPF}, v{vT[7]}, s[56:57]")
    a(f"s_cselect_b32 s38, {o.get('codelines', 20)}, s38")
    a(f"s_cselect_b32 s{sPFstr}, 0x4000000, s{sPFstr}")
    a(f"v_cmp_gt_u32 vcc, s38, v{vLANE}")
    a(f"v_mov_b32 v{t2}, {OOB}")
    a(f"s_mov_b32 s{sPFoff}, 0")
    a(f"v_cndmask_b32 v{vPF}, v{t2}, v{vPF}, vcc")
    a(f"v_cmp_gt_u32 vcc, {o.get('codelines', 20)}, v{vLANE}")
    a("s_getpc_b64 s[58:59]")
    a("L_PC:")
    a("s_sub_u32 s58, s58, L_PC - L_START")
    a(f"v_cndmask_b32 v{vT[7]}, v{t2}, v{vT[7]}, vcc")
    a("s_subb_u32 s59, s59, 0")
    r, c, t0, t1 = vT[0], vT[1], vT[2], vT[3]
    a(f"v_lshrrev_b32 v{r}, 3, v{vLANE}")
    a(f"v_and_b32 v{c}, 7, v{vLANE}")
    a(f"v_and_b32 v{t0}, 2, v{r}")
    a(f"s_lshl_b32 s36, s{sRH}, 2")
    a(f"v_xor_b32 v{t0}, v{t0}, v{c}")
    a(f"v_xor_b32 v{t0}, s36, v{t0}")
    a(f"v_lshlrev_b32 v{t0}, 4, v{t0}")
    a(f"v_mul_u32_u24 v{t1}, 6144, v{r}")
    a(f"v_add_u32 v{t0}, v{t0}, v{t1}")
    a(f"s_mul_i32 s36, s{sW}, {8*6144}")
    a(f"s_lshl_b32 s37, s{sHP}, 7")
    a("s_add_u32 s36, s36, s37")
    a(f"v_add_u32 v{vWg[0]}, s36, v{t0}")
    a(f"v_add_u32 v{vWg[1]}, 2048, v{vWg[0]}")
    a(f"v_add_u32 v{vWg[2]}, 4096, v{vWg[0]}")
    a(f"v_lshrrev_b32 v{t0}, 1, v{r}")
    a(f"v_xor_b32 v{t0}, v{t0}, v{c}")
    a(f"v_lshlrev_b32 v{t0}, 4, v{t0}")
    a(f"v_lshlrev_b32 v{t1}, 11, v{r}")
    a(f"v_add_u32 v{t0}, v{t0}, v{t1}")
    a(f"s_lshl_b32 s36, s{sT}, 7")
    a(f"s_lshl_b32 s37, s{sW}, 5")
    a("s_add_u32 s36, s36, s37")
    a("s_lshl_b32 s36, s36, 11")
    a(f"v_add_u32 v{vXg[0]}, s36, v{t0}")
    a(f"v_xor_b32 v{vXg[1]}, 64, v{vXg[0]}")
    a(f"v_add_u32 v{vXg[1]}, {8*2048}, v{vXg[1]}")
    a(f"v_add_u32 v{vXg[2]}, {16*2048}, v{vXg[0]}")
    a(f"v_add_u32 v{vXg[3]}, {16*2048}, v{vXg[1]}")
    a(f"s_lshl_b32 s{sWv}, s{sW}, 10")
    a(f"s_lshl_b32 s{sXw}, s{sW}, 12")
    a("s_waitcnt lgkmcnt(0)")
    a.stamp("karg")
    a(f"s_mov_b32 s{sPF+2}, {1024*3072*2}")
    a(f"s_cmp_eq_u32 s{sW}, 0")
    a(f"s_cselect_b32 s{sPF}, s48, s50")
    a(f"s_cselect_b32 s{sPF+1}, s49, s51")
    a(f"s_cselect_b32 s{sPF+2}, {2048*1024*2}, s{sPF+2}")
    a(f"s_cmp_eq_u32 s{sW}, 2")
    a(f"s_cselect_b32 s{sPF}, s52, s{sPF}")
    a(f"s_cselect_b32 s{sPF+1}, s53, s{sPF+1}")
    a(f"s_cmp_eq_u32 s{sW}, 3")
    a(f"s_cselect_b32 s{sPF}, s58, s{sPF}")
    a(f"s_cselect_b32 s{sPF+1}, s59, s{sPF+1}")
    a(f"s_cselect_b32 s{sPF+2}, L_END - L_START, s{sPF+2}")
    a(f"s_and_b32 s{sPF+1}, s{sPF+1}, 0xffff")
    a(f"s_mov_b32 s{sPF+3}, 0x20000")
    for i in range(o.get("pf0", 2)):
        for s in pf_round(a): a.emit(s)
    srd(a, sX, 48, 49, 2048*1024*2)
    srd(a, sWA, 50, 51, 1024*3072*2)
    srd(a, sWB, 52, 53, 1024*3072*2)

def fillers_prologue(a):
    L = []
    f = L.append
    f("s_mov_b32 s16, s54"); f("s_and_b32 s17, s55, 0xffff"); f("s_mov_b32 s18, 0x10000000"); f("s_mov_b32 s19, 0x20000")
    f(f"s_mov_b32 s{sCode}, s58"); f(f"s_and_b32 s{sCode+1}, s59, 0xffff"); f(f"s_mov_b32 s{sCode+2}, L_END - L_START"); f(f"s_mov_b32 s{sCode+3}, 0x20000")
    m, g_, t0, t1, row = vT[0], vT[1], vT[2], vT[3], vT[4]
    f(f"v_and_b32 v{m}, 15, v{vLANE}")
    f(f"v_lshrrev_b32 v{g_}, 4, v{vLANE}")
    f(f"v_lshrrev_b32 v{t0}, 1, v{m}")
    f(f"v_xor_b32 v{t0}, v{t0}, v{g_}")
    f(f"v_lshlrev_b32 v{t0}, 4, v{t0}")
    f(f"v_lshl_add_u32 v{t0}, v{m}, 7, v{t0}")
    f(f"s_lshl_b32 s36, s{sRH}, 13")
    f(f"v_add_u32 v{vXr[0]}, s36, v{t0}")
    f(f"v_xor_b32 v{vXr[1]}, 64, v{vXr[0]}")
    f(f"v_lshrrev_b32 v{t0}, 2, v{m}")
    f(f"v_lshl_add_u32 v{row}, v{g_}, 3, v{t0}")
    f(f"v_lshrrev_b32 v{t0}, 3, v{m}")
    f(f"v_and_b32 v{t1}, 1, v{g_}")
    f(f"v_lshl_or_b32 v{t0}, v{t1}, 1, v{t0}")
    f(f"s_lshl_b32 s36, s{sHH}, 1")
    f(f"v_xor_b32 v{t0}, s36, v{t0}")
    f(f"v_lshlrev_b32 v{t0}, 5, v{t0}")
    f(f"v_lshl_add_u32 v{t0}, v{row}, 7, v{t0}")
    f(f"v_and_b32 v{t1}, 3, v{m}")
    f(f"v_lshl_add_u32 v{t0}, v{t1}, 3, v{t0}")
    f(f"v_add_u32 v{vWr[0][0]}, {W_BASE}, v{t0}")
    f(f"v_xor_b32 v{vWr[0][1]}, 32, v{vWr[0][0]}")
    f(f"v_add_u32 v{vWr[1][0]}, {2*W_SLOT}, v{vWr[0][0]}")
    f(f"v_add_u32 v{vWr[1][1]}, {2*W_SLOT}, v{vWr[0][1]}")
    for r in range(ACC0, 256):
        f(f"v_mov_b32 v{r}, 0")
    return L

def fillers_late(a):
    L = []
    f = L.append
    q, b, t = vT[0], vT[1], vT[2]
    f(f"v_lshlrev_b32 v{vL16}, 4, v{vLANE}")
    f(f"v_and_b32 v{q}, 31, v{vLANE}")
    f(f"v_lshrrev_b32 v{b}, 5, v{vLANE}")
    f(f"v_lshlrev_b32 v{b}, 2, v{b}")
    f(f"v_sub_u32 v{b}, v{q}, v{b}")
    f(f"v_add_u32 v{b}, 18, v{b}")
    f("v_mov_b32 v58, 0x5555"); f("v_mov_b32 v59, 0")
    f(f"v_lshlrev_b64 v[58:59], v{b}, v[58:59]")
    f("v_not_b32 v58, v58"); f("v_not_b32 v59, v59")
    f(f"s_mov_b32 s36, {NEGBIG}")
    for i in range(24):
        r, src = (i, 59) if i < 16 else (i - 8, 58)
        f(f"v_bfe_i32 v{vMc + i}, v{src}, {8*(r >> 2) + (r & 3)}, 1")
        f(f"v_and_b32 v{vMc + i}, s36, v{vMc + i}")
    f(f"v_lshrrev_b32 v{q}, 2, v{vLANE}")
    f(f"v_lshrrev_b32 v{t}, 4, v{vLANE}")
    f(f"v_xor_b32 v{q}, v{q}, v{t}")
    f(f"v_and_b32 v{q}, 1, v{q}")
    f(f"v_add_u32 v{q}, -1, v{q}")
    f(f"v_and_b32 v{q}, 0x3f803f80, v{q}")
    for i in range(4):
        f(f"v_accvgpr_write_b32 a{aONE+i}, v{q}")
    f(f"v_lshrrev_b32 v{q}, 1, v{vLANE}"); f(f"v_xor_b32 v{q}, v{q}, v{vLANE}"); f(f"v_and_b32 v{q}, 4, v{q}")
    f(f"v_lshl_or_b32 v{q}, v{q}, 1, v{q}"); f(f"v_xor_b32 v{q}, v{q}, v{vLANE}"); f(f"v_lshlrev_b32 v{vKS}, 4, v{q}")
    f(f"v_min_u32 v{vF0}, 1, v{vLANE}")
    f(f"v_lshlrev_b32 v{vF0}, 31, v{vF0}")
    f(f"s_mov_b32 s{sCS}, {CSCALE}"); f(f"s_mov_b32 s62, {CSCALE}"); f(f"s_mov_b32 s63, {CSCALE}")
    f(f"s_lshl_b32 s36, s{sHP}, 19")
    f(f"s_lshl_b32 s37, s{sW}, 13")
    f(f"s_lshl_b32 s38, s{sHH}, 14")
    f(f"s_lshl_b32 s39, s{sRH}, 13")
    f(f"s_add_u32 s{sKVdst}, s38, s39")
    f(f"s_add_u32 s{sKVbase}, s36, s{sKVdst}")
    f(f"s_lshl_b32 s{sKVt}, s{sT}, 15")
    f(f"s_add_u32 s{sKVsrc}, s{sKVbase}, s{sKVt}")
    f(f"s_and_b32 s{sKVt}, s{sT}, 7"); f(f"s_and_b32 s{sKVb}, s{sT}, 8")
    f(f"s_add_u32 s36, s38, {KV_LDS[0]}")
    f(f"v_add_u32 v{vKV[0]}, s36, v{vL16}")
    f(f"v_add_u32 v{vKV[1]}, 32768, v{vKV[0]}")
    f(f"s_lshl_b32 s{sHead}, s{sHP}, 1")
    f(f"s_add_u32 s{sHead}, s{sHead}, s{sHH}")
    f(f"s_lshl_b32 s{sSeq}, s{sT}, 1")
    f(f"s_add_u32 s{sSeq}, s{sSeq}, s{sRH}")
    f(f"s_lshl_b32 s37, s{sSeq}, 6")
    f(f"s_add_u32 s37, s37, s{sHead}")
    f(f"s_lshl_b32 s{sOst}, s37, 11")
    f(f"s_lshl_b32 s38, s{sHead}, 5")
    f(f"s_add_u32 s38, s38, s{sSeq}")
    f(f"s_lshl_b32 s28, s38, 2")
    f(f"s_lshl_b32 s38, s38, 12")
    f(f"s_add_u32 s{sHalo}, s38, {HALO_OFF}")
    f(f"s_mov_b32 s{sPASS}, 0")
    f(f"s_add_u32 s{sKVp}, s54, s{sKVbase}\ns_addc_u32 s{sKVp+1}, s55, 0")
    f(f"s_cmp_lt_u32 s{sW}, 2\ns_cselect_b32 s{sPFW}, s{sPWoA}, s{sPWoB}\ns_cselect_b32 s{sPFW+1}, s{sPWoA+1}, s{sPWoB+1}")
    f(f"s_lshl_b32 s36, s2, 1"); f(f"s_add_u32 s36, s36, s{sRH}"); f("s_lshl_b32 s36, s36, 12")
    f(f"v_and_b32 v24, 7, v{vLANE}"); f("v_lshlrev_b32 v24, 7, v24"); f("v_add_u32 v23, s36, v24")
    f(f"v_and_b32 v24, 15, v{vLANE}"); f("v_lshlrev_b32 v24, 7, v24")
    f("s_lshr_b32 s36, s2, 3"); f("s_lshl_b32 s36, s36, 2"); f(f"s_add_u32 s36, s36, s{sW}"); f("s_lshl_b32 s36, s36, 14")
    f("v_add_u32 v0, s36, v24")
    f(f"s_lshl_b32 s36, s{sSeq}, 6")
    f(f"s_lshl_b32 s37, s{sHead}, 1")
    f("s_add_u32 s36, s36, s37")
    f(f"v_lshrrev_b32 v9, 5, v{vLANE}")
    f(f"v_add_u32 v{vGrow}, s36, v9")
    f(f"v_and_b32 v25, 31, v{vLANE}")
    f("v_lshlrev_b32 v25, 4, v25")
    f(f"v_lshl_add_u32 v9, v{vGrow}, 11, v25")
    f(f"s_mov_b32 s56, s{sPG}"); f(f"s_and_b32 s57, s{sPG+1}, 0xffff"); f("s_mov_b32 s58, 2048"); f("s_mov_b32 s59, 0x20000")
    f(f"s_lshl_b32 s38, s{sHP}, 2"); f(f"s_add_u32 s38, s38, s{sW}"); f("s_lshl_b32 s38, s38, 6")
    f(f"s_add_u32 s31, s38, {F_KV}"); f(f"s_lshl_b32 s38, s{sT}, 2"); f("s_add_u32 s32, s31, s38")
    f(f"s_add_u32 s33, s28, {F_H - 4}"); f(f"s_cmp_eq_u32 s{sSeq}, 0\ns_cselect_b32 s38, 4, 0"); f("s_add_u32 s33, s33, s38")
    return L

def gemm1(a):
    o = a.opts
    p1 = P1(a)
    W = lambda j, ps: [("W", j, p) for p in ps]
    X = lambda v, ps: [("X", v, p) for p in ps]
    pro = X(0, range(4)) + W(0, range(6)) + W(1, range(6))
    sched = {(0,0): X(1, range(4)) + W(2, [0,1]), (0,1): W(2, [2,3,4,5]) + W(3, [0,1]),
             (1,0): W(3, [2,3,4,5]) + W(4, [0,1]), (1,1): X(2, range(4)) + W(4, [2,3]),
             (2,0): W(4, [4,5]) + W(5, [0,1,2,3]), (2,1): W(5, [4,5]) + X(3, range(4)),
             (3,0): W(6, range(6))}
    for u in range(3, 28):
        v, p0 = ((u + 5)//2, 0) if u & 1 else ((u + 4)//2, 2)
        sched[(u, 1)] = W(u + 4, [0,1,2]) + (X(v, [p0]) if v < 16 else [])
        sched[(u + 1, 0)] = W(u + 4, [3,4,5]) + (X(v, [p0 + 1]) if v < 16 else [])
    U0 = o.get("u0", 28)
    if U0 == 28:
        sched[(27, 1)] = W(31, range(6)); del sched[(28, 0)]
    for (u, hf), ps in sched.items():
        done = u - 1 if hf == 0 else u
        for k, j, p in ps:
            if k == "W": assert j < 4 or done >= j - 4, (u, hf, k, j)
            else: assert j < 3 or done >= 2*(j - 3) + 1, (u, hf, k, j)
    npf0 = o.get("pf0", 2)
    pfs = {}
    r = npf0
    for u in range(0, 32):
        while r < 16 and u >= max(0, 2*r - o.get("pfd", 7)) and pfs.get(u, 0) < 1:
            pfs[u] = pfs.get(u, 0) + 1; r += 1
    fil = fillers_prologue(a)
    per = (len(fil) + len(pro) - 1)//len(pro)
    for i, pc in enumerate(pro):
        pre, d, post = p1.dma(pc)
        for s in pre: a(s)
        chunk = fil[i*per:(i+1)*per]
        a(chunk[0] if chunk else "s_nop 0")
        a.emit(d)
        for s in post + chunk[1:]: a(s)
    a(f"s_or_b32 s36, s2, s{sW}")
    a("s_cmp_lg_u32 s36, 0")
    a("s_cbranch_scc1 L_NONONCE")
    a("s_memrealtime s[36:37]")
    a("v_mov_b32 v20, 0")
    a("s_waitcnt lgkmcnt(0)")
    a("s_or_b32 s36, s36, 1")
    a("v_mov_b32 v19, s36")
    a(f"global_store_dword v20, v19, s[{sPDbg}:{sPDbg+1}] sc1")
    a("L_NONONCE:")
    a.stamp("issued")
    a.emit(a.wait(["X0", "W0"]))
    a("s_barrier")
    a.stamp("first")
    for s in x_reads(0, 0) + w_reads(0, 0, (0, 1, 2)): a(s)
    a("s_waitcnt lgkmcnt(0)")
    late = fillers_late(a)
    def need(u): return [f"W{u}"] + ([f"X{u//2}"] if u % 2 == 0 else [])
    def seq(M, keys=None): return [M[k] for k in (keys or sorted(M))]
    for u in range(U0):
        for hf in range(2):
            if hf == 0: reads = w_reads(1, u, (3, 4, 5))
            else: reads = x_reads((u + 1) & 1, u + 1) + w_reads(0, u + 1, (0, 1, 2) if u + 1 < U0 else (1, 2))
            sides = {}
            for g, rd in enumerate(reads): sides.setdefault(g, []).append(rd)
            ps = sched.get((u, hf), [])
            D = ([[13, 16, 19, 22], [12, 14, 16, 18, 20, 22]] if hf == 0 else [[17, 19, 21, 23], [13, 15, 17, 19, 21, 23]])[len(ps) > 4]
            for g, pc in zip(D, ps):
                pre, d, post = p1.dma(pc)
                sides.setdefault(g - 1, []).extend(pre)
                sides.setdefault(g, []).insert(0, d)
                sides[g].extend(post)
            if hf == 0 and pfs.get(u):
                sides.setdefault(23, []).extend(pf_round(a))
            if u >= 4 and late:
                for g in range(24):
                    cur = sides.get(g, [])
                    if any(isinstance(x, tuple) or x.startswith("ds_") for x in cur): continue
                    room = o.get("lateper", 2) - (1 if cur else 0)
                    while late and room > 0:
                        x = late.pop(0); sides.setdefault(g, []).append(x); room -= len(x.split("\n"))
            a.inter(seq(g1_mfmas(u & 1, hf, (0, 1, 2) if hf == 0 else (3, 4, 5))), sides)
            if hf == 0:
                a.emit(a.wait(need(u + 1), lgkm=True))
                a("s_barrier")
            elif u + 1 < U0:
                a("s_waitcnt lgkmcnt(0)")
        if u % 8 == 7: a.stamp(f"g{u}")
    misc = []
    for j in range(8):
        misc.append((f"buffer_load_dwordx4 {ar(aGATE+4*j, 4)}, v9, s[{sX}:{sX+3}], 0 offen offset:{512*j}" if j < 4 else
                     f"buffer_load_dwordx4 {ar(aGATE+4*j, 4)}, v25, s[56:59], 0 offen offset:{512*(j-4)}", "gate"))
    misc = [(f"global_load_dword v21, v19, s[{sPDbg}:{sPDbg+1}] sc1", "nonce"),
            (f"buffer_load_dword v{vPFd}, v{vT[7]}, s[{sCode}:{sCode+3}], 0 offen", "cpf")] + misc
    xs, ws_ = U0 & 1, 0
    units = [(u, b) for u in range(U0, 31) for b in ((0, 3), (4, 5))] + [(31, (4, 5)), (31, (3, 0))]
    bfirst = o.get("bfirst", 1)
    if bfirst: units = [(u, (4, 5)) for u in range(U0, 32)] + [(u, (3, 0)) for u in range(U0, 32)]
    for u in range(U0, 32):
        if u < 31:
            a.emit(a.wait(need(u + 1), lgkm=True)); a("s_barrier")
        else:
            a("s_waitcnt lgkmcnt(0)")
        reads = x_reads(1 - xs, u + 1) + w_reads(1 - ws_, u + 1, (1, 2)) if u < 31 else x_reads(1 - xs, U0) + w_reads(1 - ws_, *units[0])
        sides = {}
        for i, rd in enumerate(reads): sides.setdefault(i, []).append(rd)
        if u == U0:
            sides.setdefault(0, []).append("v_mov_b32 v19, 0")
            sides.setdefault(1, []).append(f"s_add_u32 s25, s{sKVsrc}, 4096"); sides.setdefault(2, []).append(f"s_mov_b32 s26, s{sKVsrc}")
        for g in ((12, 13, 15) if U0 == 28 else (12, 13, 14, 15)):
            if misc: sides.setdefault(g, []).append(misc.pop(0))
        M = g1_mfmas(xs, ws_, (1, 2))
        a.inter(seq(M, [(i, nt, mt) for rt in range(2) for i in range(2) for nt in range(2) for mt in (2*rt, 2*rt + 1)]), sides)
        xs ^= 1; ws_ ^= 1
    assert not misc
    a.stamp("gP")
    e1_lists(a)
    kvw = pk16(KA[0], pKA[0]) + a.kv.pop(0) + pk16(VA[0], pVA[0]) + pk16(KA[1], pKA[1]) + pk16(VA[1], pVA[1])
    st_units = {28: [1, 2, 3, 4, 5, 6, 7], 29: [1, 2, 3, 4, 5]}[U0]
    for n, (u, blks) in enumerate(units):
        last = n == len(units) - 1
        a("s_waitcnt lgkmcnt(0)")
        if last: a("s_barrier")
        reads = []
        newx = False
        if not last:
            un, bn = units[n + 1]
            newx = un != u
            reads = (x_reads(1 - xs, un) if newx else []) + w_reads(1 - ws_, un, bn)
        sides = {}
        for i, rd in enumerate(reads): sides.setdefault(i, []).append(rd)
        M = g1_mfmas(xs, ws_, blks)
        keys = None
        if bfirst and n == len(units)//2:
            assert not kvw
            kvw = pk16(KB[1], pKB[1]) + pk16(VB[1], pVB[1], True) + pk16(KB[0], pKB[0]) + pk16(VB[0], pVB[0], True)
        if n >= len(units) - 2 or (bfirst and n == len(units)//2 - 1):
            keys = [(i, nt, mt) for rt in (1, 0) for i in range(2) for nt in range(2) for mt in (2*rt, 2*rt + 1)]
            if last: keys = [(i, nt, mt) for i in range(2) for rt in (1, 0) for nt in range(2) for mt in (2*rt, 2*rt + 1)]
        if last:
            e1_head(a, sides, kvw if bfirst else None); kvw = []
        else:
            for g in range(4 if n == 0 else 0, 16):
                budget = 1 if g < len(reads) else 2
                while kvw and budget > 0:
                    x = kvw.pop(0)
                    sides.setdefault(g, []).append(x)
                    budget -= 2 if (isinstance(x, tuple) or "permlane" in x) else 1
        if n in st_units:
            st_ = a.kv.pop(0)
            lo = int(st_[0][0].split("v[")[1].split(":")[0])
            assert not any(isinstance(x, str) and any(f"v{lo+i}," in x.split(None, 1)[1].split(", v")[0] + "," or x.endswith(f" v{lo+i}") and "permlane" in x for i in range(4)) for x in kvw), (n, lo)
            sides.setdefault(1 if last else 15, []).extend(st_)
        a.inter(seq(M, keys), sides)
        ws_ ^= 1
        if newx: xs ^= 1
    assert not kvw
    a.stamp("g31")
    assert not late

def packl(base, out=None):
    out = base if out is None else out
    return [f"v_cvt_pk_bf16_f32 v{out+j}, v{base+2*j}, v{base+2*j+1}" for j in range(8)]
def pk16(base, out=None, vb=False):
    out = base if out is None else out
    l = packl(base, out) + [f"v_permlane16_swap_b32 v{out+i}, v{out+i+2}" for i in (0, 1, 4, 5)]
    if vb: l += [f"v_permlane32_swap_b32 v{out+i}, v{out+i+2}" for i in (0, 1, 4, 5)]
    return l
def pack(a, base, out=None):
    for s in packl(base, out): a(s)
class L(list):
    def __call__(self, s): self.append(s)
    def emit(self, s): self.append(s)
def weave(a, work, extra, first, every):
    nxt = first
    for i, w in enumerate(work):
        while extra and i >= nxt:
            for s in extra.pop(0): a.emit(s)
            nxt += every
        a.emit(w)

def padfill(a, fill, n):
    k = 0
    for f in fill:
        a.emit(f); k += len(f.split("\n")) if isinstance(f, str) else 1
    if k < n: a(f"s_nop {n - k - 1}")

def local_tile(a, Q, Kc, Vc, Kp, Vp1, SC, SP, O, PC, PP, tmp, off, tag, fill1=(), fill2=()):
    m, t = tmp, tmp + 1
    a(mf32(vr(SC, 16), vr(Kc, 4), vr(Q, 4), vr(vMc, 16)))
    a(mf32(vr(SC, 16), vr(Kc+4, 4), vr(Q+4, 4), vr(SC, 16)))
    a(mf32(vr(SP, 16), vr(Kp, 4), vr(Q, 4), vr(vMc + 8, 16)))
    a(mf32(vr(SP, 16), vr(Kp+4, 4), vr(Q+4, 4), vr(SP, 16)))
    padfill(a, fill1, 10)
    vals = [SC + i for i in range(16)] + [SP + 8 + i for i in range(8)]
    a(f"v_max3_f32 v{m}, v{vals[0]}, v{vals[1]}, v{vals[2]}")
    for i in range(3, 23, 2):
        a(f"v_max3_f32 v{m}, v{m}, v{vals[i]}, v{vals[i+1]}")
    a(f"v_max_f32 v{m}, v{m}, v{vals[23]}")
    a(f"v_mov_b32 v{t}, v{m}")
    a("s_nop 1")
    a(f"v_permlane32_swap_b32 v{m}, v{t}")
    a(f"v_max_f32 v{m}, v{m}, v{t}")
    a(f"v_mul_f32 v{m}, s{sCS}, v{m}")
    for v in vals:
        a(f"v_fma_f32 v{v}, v{v}, s{sCS}, -v{m}")
    L = SP
    for i in range(10): a(f"v_exp_f32 v{vals[i]}, v{vals[i]}")
    for j in range(4): a(f"v_cvt_pk_bf16_f32 v{PC+j}, v{SC+2*j}, v{SC+2*j+1}")
    for i in range(10, 13): a(f"v_exp_f32 v{vals[i]}, v{vals[i]}")
    a(mf32(vr(O, 16), vr(Vc, 4), vr(PC, 4), 0))
    for i in range(13, 18): a(f"v_exp_f32 v{vals[i]}, v{vals[i]}")
    a(mf16(vr(L, 4), ar(aONE, 4), vr(PC, 4), 0))
    for j in range(4, 8): a(f"v_cvt_pk_bf16_f32 v{PC+j}, v{SC+2*j}, v{SC+2*j+1}")
    for i in range(18, 20): a(f"v_exp_f32 v{vals[i]}, v{vals[i]}")
    a(mf32(vr(O, 16), vr(Vc+4, 4), vr(PC+4, 4), vr(O, 16)))
    for i in range(20, 24): a(f"v_exp_f32 v{vals[i]}, v{vals[i]}")
    a(mf16(vr(L, 4), ar(aONE, 4), vr(PC+4, 4), vr(L, 4)))
    for j in range(4): a(f"v_cvt_pk_bf16_f32 v{PP+j}, v{SP+8+2*j}, v{SP+9+2*j}")
    a("s_nop 1")
    a(mf16(vr(L, 4), ar(aONE, 4), vr(PP, 4), vr(L, 4)))
    a(mf32(vr(O, 16), vr(Vp1, 4), vr(PP, 4), vr(O, 16)))
    padfill(a, fill2, 7)
    a(f"v_rcp_f32 v{m}, v{L}")
    a(f"s_add_u32 s35, s{sOst}, {OB_OFF + off}")
    a("s_nop 2")
    for i in range(16):
        a(f"v_mul_f32 v{O+i}, v{O+i}, v{m}")
    return [(f"buffer_store_dwordx4 {{0}}, v{vL16}, {WS}, s35 offen sc1", tag),
            (f"buffer_store_dwordx4 {{0}}, v{vL16}, {WS}, s35 offen offset:1024 sc1", tag)]

def flag_store(sreg, vtmp, tag):
    return [f"v_mov_b32 v{vtmp}, s{sNONCE}", (f"buffer_store_dword v{vtmp}, v{vF0}, {WS}, s{sreg} offen sc1", tag)]

def poll_check(a, name, vdst, vaddr, sreg, tag, mask=-1):
    a.emit(a.wait([tag]))
    a(f"v_cmp_ne_u32 vcc, s{sNONCE}, v{vdst}")
    a(f"s_and_b32 s{sSpin}, vcc_lo, {mask}")
    a(f"s_cbranch_scc1 {name}_S")
    a(f"{name}_R:")
    a.tail.append(f"""{name}_S:
    s_mov_b32 s{sSpin}, 0
{name}_L:
    buffer_load_dword v{vdst}, v{vaddr}, {WS}, s{sreg} offen sc1
    s_add_u32 s{sSpin}, s{sSpin}, 1
    s_waitcnt vmcnt(0)
    v_cmp_ne_u32 vcc, s{sNONCE}, v{vdst}
    s_cmp_lt_u32 s{sSpin}, 0x40000
    s_cbranch_scc0 {name}_R
    s_nop 2
    s_and_b32 vcc_hi, vcc_lo, {mask}
    s_cbranch_scc1 {name}_L
    s_branch {name}_R""")

def e1_lists(a):
    a.halo = [[(f"buffer_store_dwordx4 {vr(pKB[1], 4)}, v{vL16}, {WS}, s{sHalo} offen sc1", "halo")],
              [(f"buffer_store_dwordx4 {vr(pKB[1]+4, 4)}, v{vL16}, {WS}, s{sHalo} offen offset:1024 sc1", "halo")],
              [(f"buffer_store_dwordx4 {vr(pVB[1]+4, 4)}, v{vL16}, {WS}, s{sHalo} offen offset:2048 sc1", "halo")]]
    a.kv = []; a.dsw = []
    for rt in range(2):
        for (blk, f0) in ((pKA[rt], 0), (pVA[rt], 2)):
            for f in range(2):
                off = (f0 + f)*1024
                a.kv.append([(f"buffer_store_dwordx4 {vr(blk+4*f, 4)}, v{vL16 if f0 else vKS}, {WS}, s{26 if rt == 0 else 25} offen offset:{off} sc1", "kv")])
                a.dsw.append([f"ds_write_b128 v{22 if f0 else vKL}, {vr(blk+4*f, 4)} offset:{rt*4096 + off}"])

def e1_head(a, sides, left):
    w = [f"s_add_u32 s36, s{sKVdst}, {KV_LDS[0]}", f"v_add_u32 v22, s36, v{vL16}", f"v_add_u32 v{vKL}, s36, v{vKS}", f"v_add_u32 v{vL16b}, 4096, v{vL16}"]
    if left is None: w += pk16(KB[1], pKB[1]) + pk16(VB[1], pVB[1], True) + pk16(KB[0], pKB[0]) + pk16(VB[0], pVB[0], True)
    else: w += left + sel_init(23, 24)[:5] + sel_init(23, 24)[13:]
    a.selrest = sel_init(23, 24) if left is None else sel_init(23, 24)[5:13]
    for g in range(16):
        budget = 2
        if g % 2 == 1 and g > 1:
            sides.setdefault(g, []).extend(a.dsw.pop(0)); budget = 0
        while w and budget > 0:
            x = w.pop(0)
            sides.setdefault(g, []).append(x)
            budget -= 2 if "permlane" in x else (0 if x.startswith("s_") else 1)
    a.e1rest = w

def e1(a):
    o = a.opts
    pend = a.kv + a.halo
    a.emit(a.wait(["nonce"]))
    a(f"v_readfirstlane_b32 s{sNONCE}, v21")
    w = a.e1rest + pk16(QB[1], 240) + a.selrest + pk16(QB[0], pQB[0])
    weave(a, w, a.dsw, 2, 8)
    a(f"s_cmp_eq_u32 s{sNONCE}, 0")
    a("s_cbranch_scc1 L_NONCE_S")
    a("L_NONCE_R:")
    a.tail.append(f"""L_NONCE_S:
    s_mov_b32 s{sSpin}, 0
L_NONCE_L:
    global_load_dword v21, v19, s[{sPDbg}:{sPDbg+1}] sc1
    s_add_u32 s{sSpin}, s{sSpin}, 1
    s_waitcnt vmcnt(0)
    v_readfirstlane_b32 s{sNONCE}, v21
    s_cmp_lt_u32 s{sSpin}, 0x40000
    s_cbranch_scc0 L_NONCE_R
    s_nop 2
    s_cmp_eq_u32 s{sNONCE}, 0
    s_cbranch_scc1 L_NONCE_L
    s_branch L_NONCE_R""")
    for s in pend.pop(0): a.emit(s)
    a.stamp("e1pack")
    qa = []
    for q in QA:
        qa += [f"v_pk_mul_f32 {vr(q+2*j, 2)}, {vr(q+2*j, 2)}, s[62:63]" for j in range(8)] + pk16(q)
    lt = L()
    st = local_tile(lt, 240, pKB[1], pVB[1], pKB[0], pVB[0]+4, 128, 144, 176, 168, 248, 252, 65536, "ob1", fill1=qa[:26], fill2=qa[26:])
    lt += packl(176, 56)
    a.ob1 = [(st[0][0].format("v[56:59]"), "ob1"), (st[1][0].format("v[60:63]"), "ob1")]
    weave(a, lt, pend, o.get("st_a", 40), o.get("st_b", 50))
    for g in pend:
        for s in g: a.emit(s)
    a.stamp("loc1")
    a.emit(a.wait(["kv"], lgkm=True))
    for s in flag_store(32, 20, "fKV"): a.emit(s)
    a("s_barrier")
    a.stamp("fKV")

sKVp, sKVg, sOg, sPFW = 84, 98, 100, 52
vL16b = 5
def kv_dma(slot, group, tag):
    out = [f"s_add_u32 m0, s{sKVdst}, {KV_LDS[slot] + group*4096}"]
    for p in range(4):
        out.append((f"global_load_lds_dwordx4 v{vL16b if group else vL16}, s[{sKVg}:{sKVg+1}] offset:{p*1024} sc1", tag))
    return out
sKVb, sKVd = 3, 34
def kv_advance(c):
    if c <= 7:
        return [f"s_cmp_le_u32 s{sKVt}, {c-1}", f"s_addc_u32 s36, s{sKVb}, {c-1}", "s_lshl_b32 s36, s36, 15",
                f"s_add_u32 s{sKVg}, s{sKVp}, s36", f"s_addc_u32 s{sKVg+1}, s{sKVp+1}, 0"]
    return [f"s_add_u32 s36, s{sKVb}, {c}", "s_and_b32 s36, s36, 15", "s_lshl_b32 s36, s36, 15",
            f"s_add_u32 s{sKVg}, s{sKVp}, s36", f"s_addc_u32 s{sKVg+1}, s{sKVp+1}, 0"]

def sel_init(t0, t1):
    return [f"v_lshrrev_b32 v{t0}, 1, v{vLANE}", f"v_and_b32 v{t0}, 3, v{t0}", f"v_min_u32 v{t1}, 1, v{t0}", f"v_add_u32 v{t1}, -1, v{t1}",
            f"v_and_b32 v{t1}, 0x3f803f80, v{t1}", f"v_accvgpr_write_b32 a{aSEL}, v{t1}", f"v_accvgpr_write_b32 a{aSEL+1}, v{t1}",
            f"v_xor_b32 v{t0}, 2, v{t0}", f"v_min_u32 v{t1}, 1, v{t0}", f"v_add_u32 v{t1}, -1, v{t1}",
            f"v_and_b32 v{t1}, 0x3f803f80, v{t1}", f"v_accvgpr_write_b32 a{aSEL+2}, v{t1}", f"v_accvgpr_write_b32 a{aSEL+3}, v{t1}",
            f"v_and_b32 v{vIDX}, 1, v{vLANE}", f"v_mul_u32_u24 v{vIDX}, 0xaaaa, v{vIDX}", f"v_add_u32 v{vIDX}, 0x4444, v{vIDX}"]
def smf(q): return f"v_smfmac_f32_16x16x64_bf16 {ar(aL[q], 4)}, {ar(aSEL, 4)}, {vr(P[q], 8)}, v{vIDX}"

def H(a, q, vpar, qk=True, pv=True, pv_first=False, slots=None):
    slots = slots or {}
    o = 1 - q
    e = [f"v_exp_f32 v{S[q]+i}, v{S[q]+i}" for i in range(16)]
    c = [f"v_cvt_pk_bf16_f32 v{P[q]+j}, v{S[q]+2*j}, v{S[q]+2*j+1}" for j in range(8)]
    So, Oo = vr(S[o], 16), ar(aO[o], 16)
    M = [mf32(So, ar(aK, 4), vr(QA[o], 4), vr(NM[o], 16)) if qk else None,
         mf32(So, ar(aK+4, 4), vr(QA[o]+4, 4), So) if qk else None,
         mf32(Oo, ar(aV[vpar], 4), vr(P[o], 4), 0 if pv_first else Oo) if pv else None,
         mf32(Oo, ar(aV[vpar]+4, 4), vr(P[o]+4, 4), Oo) if pv else None,
         smf(o) if pv else None, None]
    V = [[e[0], e[1], e[2]], [e[3], c[0], c[1], e[4]], [e[5], e[6], e[7]], [c[2], c[3], e[8], e[9], e[10], e[11], c[4], c[5]],
         [], [e[12], e[13], e[14], e[15], c[6], c[7]]]
    if not pv: V[3] = ["s_nop 0"] + V[3]
    for i in range(6):
        if M[i]: a(M[i])
        for s in slots.get(i, []): a.emit(s)
        for s in V[i]: a(s)

def rdK(slot, off): return [f"ds_read_b128 {ar(aK, 4)}, v{vKV[slot]} offset:{off}", f"ds_read_b128 {ar(aK+4, 4)}, v{vKV[slot]} offset:{off+1024}"]
def rdV(par, slot, off): return [f"ds_read_b128 {ar(aV[par], 4)}, v{vKV[slot]} offset:{off+2048}", f"ds_read_b128 {ar(aV[par]+4, 4)}, v{vKV[slot]} offset:{off+3072}"]

FREE_A = [0, 3, 4]; FREE_B = [2, 3, 4, 5]
TORD = [0, 2, 1, 3]
def tile(a, n, side=None, end_b=None):
    sa = {}; sb = {}
    if n < 63:
        m = n + 1
        k = rdK((m >> 2) & 1, TORD[m & 3]*4096); v = rdV(m & 1, (m >> 2) & 1, TORD[m & 3]*4096)
        sa[1] = [k[0]]; sa[2] = [k[1]]; sa[5] = ["s_waitcnt lgkmcnt(0)"]
        sb[0] = [v[0]]; sb[1] = [v[1]]
    if side is not None:
        for g in FREE_A:
            if side: sa.setdefault(g, []).extend(side.pop(0))
        for g in (FREE_B if end_b is None else FREE_B[:-1]):
            if side: sb.setdefault(g, []).extend(side.pop(0))
        if sb.get(4) and sb.get(5) and isinstance(sb[4][-1], str) and " m0," in sb[4][-1] and isinstance(sb[5][0], tuple):
            if not sb.get(3): sb[3] = sb.pop(4)
            elif len(sb[3]) == 1 and isinstance(sb[3][0], str) and " m0," not in sb[3][0] and not sb[3][0].startswith(("s_cmp", "s_addc", "s_add_u32 s9", "s_add_u32 s10")):
                sb[3], sb[4] = sb[4], sb[3]
            else: sb[4] = sb[4] + ["s_nop 0"]
    if end_b: sb.setdefault(5, []).extend(end_b)
    H(a, 0, (n - 1) & 1, pv=(n != 0), pv_first=(n == 1), slots=sa)
    H(a, 1, n & 1, qk=(n < 63), pv_first=(n == 0), slots=sb)

def neg_max(a):
    for q in range(2): a(f"v_mov_b32 v{21+q}, v{19+q}")
    a("s_nop 0")
    for q in range(2): a(f"v_permlane32_swap_b32 v{19+q}, v{21+q}")
    for q in range(2): a(f"v_max_f32 v{19+q}, v{19+q}, v{21+q}")
    for q in range(2):
        for i in range(16): a(f"v_sub_f32 v{NM[q]+i}, 0, v{19+q}")

def gate_compute(a):
    z, t = 23, 24
    for i in range(16):
        a(f"v_accvgpr_read_b32 v{96+(i%4)}, a{aGATE+i}")
        a(f"v_accvgpr_read_b32 v{100+(i%4)}, a{aGATE+16+i}")
        a(f"v_dot2_f32_bf16 v{z}, v{96+(i%4)}, v{100+(i%4)}, {0 if i == 0 else 'v%d' % z}")
    a("s_nop 2")
    for sh in (8, 4, 2, 1):
        a(f"v_add_f32_dpp v{z}, v{z}, v{z} row_ror:{sh} row_mask:0xf bank_mask:0xf")
        a("s_nop 1")
    a(f"v_mov_b32 v{t}, v{z}")
    a("s_nop 1")
    a(f"v_permlane16_swap_b32 v{z}, v{t}")
    a(f"v_add_f32 v{z}, v{z}, v{t}")
    a(f"v_mul_f32 v{z}, {f2u(-math.log2(math.e))}, v{z}")
    a(f"v_exp_f32 v{z}, v{z}")
    a(f"v_and_b32 v{t}, 31, v{vLANE}")
    a(f"v_add_f32 v{z}, 1.0, v{z}")
    a(f"v_rcp_f32 v{z}, v{z}")
    a(f"v_min_u32 v{t}, 1, v{t}")
    a(f"v_lshlrev_b32 v{t}, 31, v{t}")
    a(f"v_lshl_or_b32 v{t}, v{vGrow}, 2, v{t}")
    a(f"s_mov_b32 s36, {G_OFF}")
    a.emit((f"buffer_store_dword v{z}, v{t}, {WS}, s36 offen sc1", "g"))

def p4_setup(a):
    srd(a, sWoA, sPWoA, sPWoA+1, 1024*1024*2)
    srd(a, sWoB, sPWoB, sPWoB+1, 1024*1024*2)
    srd(a, sOutD, sPOut, sPOut+1, 2048*1024*2)
    a("s_and_b32 s36, s2, 7")
    a("s_lshr_b32 s37, s2, 3")
    a(f"s_and_b32 s{sC4}, s37, 15")
    a("s_lshr_b32 s37, s37, 4")
    a("s_lshl_b32 s36, s36, 1")
    a(f"s_add_u32 s{sT4}, s36, s37")
    r, c, t0, t1 = 200, 201, 202, 203
    a(f"v_lshrrev_b32 v{r}, 3, v{vLANE}")
    a(f"v_and_b32 v{c}, 7, v{vLANE}")
    a(f"v_lshlrev_b32 v{t0}, 1, v{r}")
    a(f"v_and_b32 v{t0}, 4, v{t0}")
    a(f"v_xor_b32 v{t0}, v{t0}, v{c}")
    a(f"v_lshlrev_b32 v{t0}, 4, v{t0}")
    a(f"v_lshl_add_u32 v{t0}, v{r}, 11, v{t0}")
    a(f"s_lshl_b32 s36, s{sW}, 14")
    a(f"s_lshl_b32 s37, s{sC4}, 7")
    a("s_add_u32 s36, s36, s37")
    a(f"v_add_u32 v{vWo_g}, s36, v{t0}")
    a(f"v_and_b32 v{r}, 15, v{vLANE}")
    a(f"v_lshrrev_b32 v{t0}, 2, v{r}")
    a(f"v_lshrrev_b32 v{t1}, 5, v{vLANE}")
    a(f"v_lshl_add_u32 v{c}, v{t1}, 2, v{t0}")
    a(f"v_lshrrev_b32 v{t0}, 1, v{c}")
    a(f"v_and_b32 v{t0}, 1, v{t0}")
    a(f"v_lshlrev_b32 v{t0}, 6, v{t0}")
    a(f"v_lshl_add_u32 v{t0}, v{c}, 7, v{t0}")
    a(f"v_and_b32 v{t1}, 16, v{vLANE}")
    a(f"v_lshl_add_u32 v{t0}, v{t1}, 1, v{t0}")
    a(f"v_and_b32 v{t1}, 3, v{r}")
    a(f"v_lshl_add_u32 v{vWo_r[0]}, v{t1}, 3, v{t0}")
    a(f"v_xor_b32 v{vWo_r[1]}, 64, v{vWo_r[0]}")
    for b in (1, 2):
        for ct in range(2):
            a(f"v_add_u32 v{vWo_r[2*b+ct]}, {b*65536}, v{vWo_r[ct]}")
    a(f"s_lshl_b32 s36, s{sT4}, 2")
    a(f"s_add_u32 s36, s36, s{sW}")
    a(f"s_lshl_b32 s{sOrow}, s36, 16")
    a(f"s_lshr_b32 s36, s36, 1")
    a(f"s_lshl_b32 s29, s36, 7")
    a(f"s_lshl_b32 s{sOoff}, s{sC4}, 12")
    a(f"s_lshl_b32 s{sWooff}, s{sC4}, 17")
    a(f"v_and_b32 v16, 31, v{vLANE}")
    a("v_lshlrev_b32 v16, 2, v16")
    a(f"v_and_b32 v17, 15, v{vLANE}")
    a(f"v_cmp_le_u32 vcc, s{sKVt}, v17")
    a(f"v_add_u32 v17, s{sKVb}, v17")
    a("s_nop 0")
    a("v_addc_co_u32 v17, vcc, 0, v17, vcc")
    a("v_and_b32 v17, 15, v17")
    a("v_lshlrev_b32 v17, 2, v17")
    a("s_lshr_b32 s36, s2, 3")
    a("s_lshl_b32 s36, s36, 2")
    a(f"s_add_u32 s36, s36, s{sW}")
    a("s_lshl_b32 s36, s36, 12")
    a(f"s_add_u32 s36, s36, {24*65536}")
    a(f"v_and_b32 v15, 15, v{vLANE}")
    a("v_lshlrev_b32 v15, 7, v15")
    a("v_add_u32 v15, s36, v15")
    a(f"s_add_u32 s36, s{sOrow}, {OB_OFF}")
    a(f"s_add_u32 s{sOg}, s54, s36")
    a(f"s_addc_u32 s{sOg+1}, s55, 0")

def wob_dma(i, tag):
    return [[f"s_mov_b32 s39, {i*65536}"], [f"s_add_u32 m0, s{sWv}, {i*4096}"],
            [(f"buffer_load_dwordx4 v{vWo_g}, s[{sWoB}:{sWoB+3}], s39 offen lds", tag)]]

def attention(a):
    o = a.opts
    a("L_ATT0:")
    for s in rdK(0, 0) + rdV(0, 0, 0): a(s)
    for s in kv_advance(1): a(s)
    for q in range(2):
        for i in range(4): a(f"v_accvgpr_write_b32 a{aL[q]+i}, 0")
    a(f"s_cmp_lg_u32 s{sPASS}, 0")
    a("s_cbranch_scc1 L_ATT1")
    ps = L(); p4_setup(ps)
    ps_s = [x for x in ps if x.startswith("s_") and "s4," not in x.split()[1] and not any(x.split()[1].startswith(f"s{i},") for i in (4, 5, 6, 7))]
    ps_x = []
    rest = [x for x in ps if x not in ps_x]
    n1 = 22
    for s in rest[:n1]: a(s)
    a("s_waitcnt lgkmcnt(0)")
    for q in range(2): a(mf32(vr(S[q], 16), ar(aK, 4), vr(QA[q], 4), 0))
    for q in range(2): a(mf32(vr(S[q], 16), ar(aK+4, 4), vr(QA[q]+4, 4), vr(S[q], 16)))
    padfill(a, rest[n1:n1+26], 11)
    for q in range(2):
        s, m = S[q], 19 + q
        a(f"v_max3_f32 v{m}, v{s}, v{s+1}, v{s+2}")
        for i in range(3, 15, 2): a(f"v_max3_f32 v{m}, v{m}, v{s+i}, v{s+i+1}")
        a(f"v_max_f32 v{m}, v{m}, v{s+15}")
    for q in range(2): a(f"v_mov_b32 v{21+q}, v{19+q}")
    a("s_nop 0")
    for q in range(2): a(f"v_permlane32_swap_b32 v{19+q}, v{21+q}")
    for q in range(2): a(f"v_max_f32 v{19+q}, v{19+q}, v{21+q}")
    for i in range(16): a(f"v_sub_f32 v{NM[0]+i}, 0, v19")
    for s in rest[n1+26:n1+28]: a(s)
    a(mf32(vr(S[0], 16), ar(aK, 4), vr(QA[0], 4), vr(NM[0], 16)))
    a(mf32(vr(S[0], 16), ar(aK+4, 4), vr(QA[0]+4, 4), vr(S[0], 16)))
    for i in range(16): a(f"v_sub_f32 v{NM[1]+i}, 0, v20")
    for s in rest[n1+28:]: a(s)
    a("v_mov_b32 v18, 0")
    a(f"s_add_u32 s36, s28, {F_H}")
    a.emit(a.wait(["halo"]))
    for s in flag_store(36, 20, "fH"): a.emit(s)
    a("s_branch L_ATT2")
    a("L_ATT1:")
    a("s_waitcnt lgkmcnt(0)")
    a(mf32(vr(S[0], 16), ar(aK, 4), vr(QA[0], 4), vr(NM[0], 16)))
    a(mf32(vr(S[0], 16), ar(aK+4, 4), vr(QA[0]+4, 4), vr(S[0], 16)))
    a("s_nop 11")
    a("L_ATT2:")
    a.stamp("att0")
    pk = [(f"buffer_load_dword v21, v17, {WS}, s31 offen sc1", "pKV")]
    ks = o.get("pk_slot", 2)
    def c1_start():
        poll_check(a, "L_PKV", 21, 17, 31, "pKV", mask=1)
        a.stamp("pKV")
        for g in range(2):
            for k_, s in enumerate(kv_dma(1, g, f"c1{'ab'[g]}")):
                a.emit(s)
                if k_ == 0: a("s_nop 0")
            if g == 0: a.emit((f"buffer_load_dword v21, v17, {WS}, s31 offen sc1", "pKV2"))
        for s in kv_advance(2): a(s)
    sl = [[] for _ in range(21)]; sl[ks] = pk
    tile(a, 0, sl[0:7]); tile(a, 1, sl[7:14])
    a.stamp("t01")
    if ks < 14: c1_start()
    tile(a, 2, sl[14:21])
    a.stamp("t2")
    if ks >= 14: c1_start()
    a(f"s_cmp_lg_u32 s{sPASS}, 0")
    a("s_cbranch_scc1 L_A4")
    gate_compute(a)
    a("s_branch L_A5")
    a("L_A4:")
    a("s_waitcnt vmcnt(0)")
    a("L_A5:")
    a.emit(a.wait(["c1a"], lgkm=True))
    a("s_barrier")
    a.pkv2 = True
    a.stamp("c1")
    wob = [i for i in range(24)]
    obl = [i for i in range(64)]
    if o.get('noside'): wob = wob[:1]; obl = obl[:1]
    ob_start = o.get("ob_start", 7)
    obase = False
    for c in range(15):
        V = []; A = []
        side = []
        if c + 2 <= 15:
            d0, d1 = kv_dma(c % 2, 0, f"c{c+2}"), kv_dma(c % 2, 1, f"c{c+2}")
            kvs = [[x] for x in d0] + [[x] for x in d1] + ([[x] for x in kv_advance(c + 3)] if c + 3 <= 15 else [])
        else:
            kvs = []
        oth = []
        if c == 0:
            oth += [[(f"buffer_load_dword v21, v17, {WS}, s31 offen sc1", "pKV3")], [], [], [(f"buffer_load_dword v22, v18, {WS}, s33 offen sc1", "pH")]]
        if c == 3:
            oth += [[f"s_lshl_b32 s38, s{sSeq}, 7"], [f"s_lshl_b32 s39, s{sHead}, 2"], ["s_add_u32 s38, s38, s39"],
                    [f"s_add_u32 s35, s38, {F_OB}"], flag_store(35, 20, "fOB")]
        if c == ob_start - 2:
            oth += [[f"s_add_u32 s47, s29, {F_OB}"], [(f"buffer_load_dword v21, v16, {WS}, s47 offen sc1", "pOB")]]
        if c == o.get("cpf2", 11) or (o.get("cpfn") and c % o["cpfn"] == 2):
            oth += [[(f"buffer_load_dword v{vPFd}, v{vT[7]}, s[{sCode}:{sCode+3}], 0 offen", "cpf")]]
        nslots = 4*7 - 1 - (c == 0)
        if c >= ob_start:
            for _ in range(min(len(obl), o.get("ob_per", 10))):
                i = obl.pop(0)
                oth.append([(f"global_load_dwordx4 {oreg(i)}, v{vL16b if (i & 4) else vL16}, s[{sOg}:{sOg+1}] offset:{(i % 4)*1024} sc1", "obl")])
                if i % 8 == 7:
                    oth += [[f"s_add_u32 s{sOg}, s{sOg}, 8192"], [f"s_addc_u32 s{sOg+1}, s{sOg+1}, 0"]]
        wl = o.get("wol2", 6)
        if wl <= c < wl + 8:
            oth.append([(f"global_load_dword v{vPFd}, v0, s[{sPWoA}:{sPWoA+1}] offset:{((c - wl) & 1)*2048}", "wopf")] + (["v_add_u32 v0, 4096, v0"] if (c - wl) & 1 else []))
        wb0 = 11 if o.get("wbtail", 1) else 13
        if c in (wb0, wb0 + 1) and o.get("wbl2", 1):
            oth.append([(f"global_load_dword v{vPFd}, v15, s[{sPWoB}:{sPWoB+1}] offset:{(c - wb0)*2048}", "wopf")])
        if c == 14 and o.get("wbtail", 1): wob += list(range(24, 32))
        while wob and (len(kvs) + len(oth) + 3 <= nslots or c == 14):
            i_ = wob.pop(0)
            oth += wob_dma(i_, f"wo{i_//8}")
        side = kvs + oth
        while len(side) > nslots:
            for k in range(len(side) - 1):
                if all(isinstance(x, str) and x.startswith("s_") and "m0" not in x for x in side[k]):
                    side[k+1] = side[k] + side[k+1]; side.pop(k); break
            else:
                raise Exception("slots")
        n = len(side)
        nv = sum(isinstance(x, tuple) for g in side for x in g)
        if n < nslots and nv >= o.get("spread", 1):
            sp = [[] for _ in range(nslots)]
            for k, g in enumerate(side): sp[k*nslots//n] = g
            side = sp
        if c == 0:
            poll_check(a, "L_PKV2", 21, 17, 31, "pKV2", mask=2)
        if c == 1:
            poll_check(a, "L_PKV3", 21, 17, 31, "pKV3", mask=0xffff)
            poll_check(a, "L_PH", 22, 18, 33, "pH")
            a(f"s_sub_u32 s38, s{sHalo}, 4096")
            a(f"s_cmp_eq_u32 s{sSeq}, 0")
            a(f"s_cselect_b32 s38, {OOB}, s38")
            a.emit((f"buffer_load_dwordx4 {vr(HK, 4)}, v{vL16}, {WS}, s38 offen sc1", "hl"))
            a.emit((f"buffer_load_dwordx4 {vr(HK+4, 4)}, v{vL16}, {WS}, s38 offen offset:1024 sc1", "hl"))
            a.emit((f"buffer_load_dwordx4 {vr(HV, 4)}, v{vL16}, {WS}, s38 offen offset:2048 sc1", "hl"))
        if c == 2:
            a(f"s_cmp_lg_u32 s{sPASS}, 0")
            a("s_cbranch_scc1 L_LOC0X")
            a(f"s_cmp_eq_u32 s{sSeq}, 0")
            a("s_cbranch_scc0 L_MASKOK")
            for i in range(8): a(f"v_mov_b32 v{vMc+16+i}, {NEGBIG}")
            a("L_MASKOK:")
            for s in a.ob1: a.emit(s)
            st = local_tile(a, pQB[0], pKB[0], pVB[0], HK, HV, 96, 112, 208, 168, 236, 23, 0, "ob0")
            pack(a, 208)
            a.emit((st[0][0].format("v[208:211]"), "ob0")); a.emit((st[1][0].format("v[212:215]"), "ob0"))
            a("L_LOC0X:")
            a.stamp("loc0")
        if c == ob_start - 1:
            poll_check(a, "L_POB", 21, 16, 47, "pOB")
        tile(a, 4*c + 3, side)
        tile(a, 4*c + 4, side, end_b=[a.wait(["c1b"]), "s_barrier"] if c == 0 else None)
        tile(a, 4*c + 5, side)
        tile(a, 4*c + 6, side, end_b=[a.wait([f"c{c+2}"], lgkm=True) if c + 2 <= 15 else a.wait(["wo0", "obl"], lgkm=True), "s_barrier"])
        assert not side
        if c in (4, 9): a.stamp(f"c{c}")
        if c == 7:
            for _ in range(o.get("idle_att", 0)): a("s_nop 15")
    assert not wob and not obl, (wob, obl)
    r0 = p4_reads(0) + p4_reads(1)
    tile(a, 63, [r0[0:2], r0[2:4], r0[4:6], r0[6:8], r0[8:10], r0[10:13], r0[13:16]])
    a(f"s_add_u32 s36, s{sOst}, {OA_OFF}")
    a(f"s_add_u32 s37, s{sOst}, {OA_OFF + 65536}")
    a(mf32(ar(aO[1], 16), ar(aV[1], 4), vr(P[1], 4), ar(aO[1], 16)))
    a(smf(1))
    a(mf32(ar(aO[1], 16), ar(aV[1]+4, 4), vr(P[1]+4, 4), ar(aO[1], 16)))
    a.stamp("attend")
    F = L()
    F(f"v_accvgpr_read_b32 v19, a{aL[0]}")
    F(f"v_accvgpr_read_b32 v21, a{aL[0]+1}")
    for i in range(16): F(f"v_accvgpr_read_b32 v{S[0]+i}, a{aO[0]+i}")
    F("v_add_f32 v19, v19, v21")
    F(f"v_accvgpr_read_b32 v20, a{aL[1]}")
    F("v_rcp_f32 v23, v19")
    F(f"v_accvgpr_read_b32 v21, a{aL[1]+1}")
    F("v_add_f32 v20, v20, v21")
    for i in range(16): F(f"v_mul_f32 v{S[0]+i}, v{S[0]+i}, v23")
    F += packl(S[0])
    F("v_rcp_f32 v24, v20")
    F((f"buffer_store_dwordx4 {vr(S[0], 4)}, v{vL16}, {WS}, s36 offen sc1", "oa"))
    F((f"buffer_store_dwordx4 {vr(S[0]+4, 4)}, v{vL16}, {WS}, s36 offen offset:1024 sc1", "oa"))
    for i in range(16): F(f"v_accvgpr_read_b32 v{S[1]+i}, a{aO[1]+i}")
    for i in range(16): F(f"v_mul_f32 v{S[1]+i}, v{S[1]+i}, v24")
    F += packl(S[1])
    F(f"s_mov_b32 s36, {f2u(2.0**64)}")
    F((f"buffer_store_dwordx4 {vr(S[1], 4)}, v{vL16}, {WS}, s37 offen sc1", "oa"))
    F((f"buffer_store_dwordx4 {vr(S[1]+4, 4)}, v{vL16}, {WS}, s37 offen offset:1024 sc1", "oa"))
    F("v_mov_b32 v21, 0")
    for q in range(2):
        for j in range(8): F(f"v_dot2_f32_bf16 v{19+q}, v{S[q]+j}, v21, v{19+q}")
    F("s_nop 2")
    F("v_cmp_nge_f32 s[64:65], s36, v19" if not o.get("stamp") else "v_cmp_nge_f32 s[56:57], s36, v19")
    F("v_cmp_nge_f32 vcc, s36, v20")
    F(f"s_lshl_b32 s37, s{sW}, 2")
    F(f"s_add_u32 s37, s37, {XCH}")
    F("v_mov_b32 v22, s37")
    F("s_nop 1")
    F("s_or_b64 vcc, vcc, s[64:65]" if not o.get("stamp") else "s_or_b64 vcc, vcc, s[56:57]")
    if o.get("force_fallback"): F("s_mov_b64 vcc, -1")
    F(f"s_cmp_lg_u64 vcc, 0\ns_cselect_b32 s36, 1, 0\ns_andn2_b32 s36, s36, s{sPASS}")
    F("v_mov_b32 v21, s36")
    F("ds_write_b32 v22, v21")
    F(f"v_mov_b32 v22, {XCH}")
    a.fin = F
    b = Asm()
    b("L_FALLBACK:")
    b(f"s_mov_b32 s{sPASS}, 1")
    b(f"s_mov_b32 s25, {OOB}")
    b(f"s_mov_b32 s26, {OOB}")
    b(f"v_mov_b32 v19, {NEGBIG}")
    b(f"v_mov_b32 v20, {NEGBIG}")
    b(f"s_lshl_b32 s38, s{sHP}, 19")
    b(f"s_lshl_b32 s39, s{sHH}, 14")
    b("s_add_u32 s38, s38, s39")
    b("s_mov_b32 s39, 0")
    b("L_FB:")
    b("s_and_b32 s36, s39, 3")
    b("s_lshl_b32 s36, s36, 12")
    b("s_lshr_b32 s37, s39, 2")
    b("s_lshl_b32 s37, s37, 15")
    b("s_add_u32 s36, s36, s37")
    b("s_add_u32 s36, s36, s38")
    b(f"buffer_load_dwordx4 {ar(aK, 4)}, v{vL16}, {WS}, s36 offen sc1")
    b(f"buffer_load_dwordx4 {ar(aK+4, 4)}, v{vL16}, {WS}, s36 offen offset:1024 sc1")
    b("s_waitcnt vmcnt(0)")
    for q in range(2): b(mf32(vr(S[q], 16), ar(aK, 4), vr(QA[q], 4), 0))
    for q in range(2): b(mf32(vr(S[q], 16), ar(aK+4, 4), vr(QA[q]+4, 4), vr(S[q], 16)))
    b("s_nop 11")
    for q in range(2):
        for i in range(0, 16, 2): b(f"v_max3_f32 v{19+q}, v{19+q}, v{S[q]+i}, v{S[q]+i+1}")
    b("s_add_u32 s39, s39, 1")
    b("s_cmp_lt_u32 s39, 64")
    b("s_cbranch_scc1 L_FB")
    neg_max(b)
    for s in sel_init(23, 24): b(s)
    b(f"s_lshl_b32 s36, s{sT}, 15")
    b(f"s_add_u32 s{sKVg}, s{sKVp}, s36")
    b(f"s_addc_u32 s{sKVg+1}, s{sKVp+1}, 0")
    b(f"s_add_u32 s36, s{sOrow}, {OB_OFF}")
    b(f"s_add_u32 s{sOg}, s54, s36")
    b(f"s_addc_u32 s{sOg+1}, s55, 0")
    b("v_add_u32 v0, -16384, v0")
    b("s_barrier")
    for g in range(2):
        for k_, s in enumerate(kv_dma(0, g, "")):
            b(s[0] if isinstance(s, tuple) else s)
            if k_ == 0: b("s_nop 0")
    b("s_waitcnt vmcnt(0)")
    b("s_barrier")
    b("s_branch L_ATT0")
    a.tail.append(b.text())

def fW4(G, i, ct, n=4, d=0):
    fs = G % 3
    return vr(32 + fs*16 + i*8 + ct*4 + d, n) if fs < 2 else ar(i*8 + ct*4 + d, n)
def p4_lds(g):
    return g*32768 if g < 4 else [131072, 0, 32768, 65536][g - 4]
def p4_reads(G):
    out = []
    base = p4_lds(G // 8)
    for i in range(2):
        for ct in range(2):
            off = base % 65536 + ((G % 8)*2 + i)*2048
            v = vWo_r[2*(base // 65536) + ct]
            out.append(f"ds_read_b64_tr_b16 {fW4(G, i, ct, 2)}, v{v} offset:{off}")
            out.append(f"ds_read_b64_tr_b16 {fW4(G, i, ct, 2, 2)}, v{v} offset:{off+1024}")
    return out
def woa_dma(g, i):
    pos = (g - 4)*8 + i
    return [[f"s_add_u32 s39, s{sWooff}, {pos*65536}", "s_and_b32 s39, s39, 0x1fffff", f"s_add_u32 m0, s{sWv}, {p4_lds(g) + i*4096}"],
            [(f"buffer_load_dwordx4 v{vWo_g}, s[{sWoA}:{sWoA+3}], s39 offen lds", f"wo{g}")]]
def oa_load(i):
    out = [(f"buffer_load_dwordx4 {oreg(i)}, v{vL16}, {WS}, s{sO} offen offset:{(i % 4)*1024} sc1", f"oa{i}")]
    if i % 4 == 3:
        out += [f"s_add_u32 s{sOoff}, s{sOoff}, 4096", f"s_and_b32 s{sOoff}, s{sOoff}, 0xffff", f"s_add_u32 s{sO}, s{sObase}, s{sOoff}"]
    return out

def phase4(a):
    o = a.opts
    flag_at = o.get("oaflag_gap", 40)
    poll_at = o.get("oapoll_gap", 84)
    chk_at = o.get("oachk_gap", 96)
    side = {}
    def put(k, l): side.setdefault(k, []).extend(l)
    F = list(a.fin)
    k = 0
    while F:
        n_ = 6 if len(F) > 5*(23 - k) - 5 else 5
        put(k, F[:n_]); F = F[n_:]; k += 1
    assert k <= 23, k
    pre = [f"s_add_u32 s{sObase}, s{sOrow}, {OA_OFF}", f"s_add_u32 s{sO}, s{sObase}, s{sOoff}", f"s_lshl_b32 s38, s{sSeq}, 7",
           f"s_lshl_b32 s47, s{sHead}, 2", "s_add_u32 s38, s38, s47", f"s_add_u32 s35, s38, {F_OA}", f"s_add_u32 s47, s29, {F_OA}",
           f"s_lshl_b32 s36, s{sT4}, 9", f"s_lshl_b32 s37, s{sW}, 7", "s_add_u32 s36, s36, s37", f"s_add_u32 s36, s36, {G_OFF}",
           (f"buffer_load_dword v{vGate}, v16, {WS}, s36 offen sc1", "gl")]
    put(24, ["ds_read_b128 v[20:23], v22"])
    for i, x in enumerate(pre): put(25 + i//2, [x])
    put(32, ["v_or_b32 v20, v20, v21", "v_or3_b32 v20, v20, v22, v23"])
    put(33, ["v_readfirstlane_b32 s38, v20"])
    put(35, ["s_cmp_lg_u32 s38, 0\ns_cbranch_scc1 L_FALLBACK"])
    assert flag_at > 35
    put(flag_at, [a.wait(["oa"])]); put(flag_at + 1, flag_store(35, 20, "fOA"))
    put(poll_at, [(f"buffer_load_dword v21, v16, {WS}, s47 offen sc1", "pOA")])
    put(130, [f"v_sub_f32 v8, 1.0, v{vGate}", f"v_and_b32 v19, 31, v{vLANE}", f"v_lshrrev_b32 v20, 5, v{vLANE}"])
    put(131, ["v_lshlrev_b32 v20, 4, v20", "v_lshl_add_u32 v19, v19, 11, v20"])
    for i in range(32): put(134 + i//2, [f"v_mul_f32 v{ACC4[0][i//16] + i%16}, v{ACC4[0][i//16] + i%16}, v8"])
    put(250, [f"s_lshl_b32 s36, s{sT4}, 18", f"s_lshl_b32 s37, s{sW}, 16"]); put(251, ["s_add_u32 s36, s36, s37", f"s_lshl_b32 s37, s{sC4}, 7"]); put(252, ["s_add_u32 s36, s36, s37"])
    a("s_waitcnt lgkmcnt(0)")
    lat = o.get("p4lat", 20)
    jobs = [] if o.get("wbtail", 1) else [[26, 32*2 + 23 - lat, "wb", i] for i in range(24, 32)]
    for g in range(4, 8):
        e = {4: 0, 5: 26, 6: 57, 7: 89}[g]
        jobs += [[{4: 57, 5: 57, 6: 89, 7: 121}[g] if i == 7 else e, 32*(g - 1) + 23 - lat, "wa", (g, i)] for i in range(8)]
    jobs += [[max(chk_at + 1, 2*i + 2), 128 + 4*(i//2) - lat, "oa", i] for i in range(64)]
    gap = o.get("p4gap", 2.0)
    t = float(o.get('wb_at', 19))
    quiet = range(poll_at - o.get("p4quiet", 4), poll_at + 1)
    while jobs:
        k = int(t)
        av = [j for j in jobs if j[0] <= k]
        if not av or k in quiet:
            t = k + 1; continue
        j = min(av, key=lambda j: j[1])
        jobs.remove(j)
        if j[2] == "wb":
            d = wob_dma(j[3], "wo3"); put(k - 1, d[0] + d[1]); put(k, d[2])
        elif j[2] == "wa":
            d = woa_dma(*j[3]); put(k - 1, d[0]); put(k, d[1])
        else:
            put(k, oa_load(j[3]))
        if k > j[1] + 8: print("p4 late", j, k)
        t += gap
    ds = []
    def lg(tags):
        k_ = max([i for i, t_ in enumerate(ds) if t_ in tags], default=-1)
        return min(len(ds) - 1 - k_, 15)
    for G in range(64):
        br = G // 32
        rd = p4_reads(G + 2) if G + 2 < 64 else []
        for j in range(4):
            idx = 4*G + j
            i, ct = j // 2, j % 2
            k16 = (G % 32)*2 + i
            d = vr(ACC4[br][ct], 16)
            a(mf32(d, fW4(G, i, ct), oreg(k16), 0 if k16 == 0 else d))
            sd = side.pop(idx, [])
            for s in [x for x in sd if isinstance(x, str) and x.startswith("ds_read")]:
                a(s); ds.append("xr")
            for s in rd[2*j:2*j+2]:
                a(s); ds.append(G + 2)
            for s in sd:
                if isinstance(s, str) and s.startswith("ds_read"): continue
                a.emit(s)
                if isinstance(s, str) and s.startswith("ds_write"): ds.append("xw")
            if idx == flag_at + 1: a.stamp("fOA")
            if idx == chk_at:
                poll_check(a, "L_POA", 21, 16, 47, "pOA")
                a.stamp("pOA")
        if G == 63: break
        w = ""
        need = []
        if G + 1 >= 32: need.append(f"oa{((G + 1) % 32)*2 + 1}")
        bar = G % 8 == 5 and G // 8 < 7
        if bar and f"wo{G//8 + 1}" in a.vm: need.append(f"wo{G//8 + 1}")
        if need: w += f" vmcnt({a.vmn(need)})"
        if G + 1 >= 2: w += f" lgkmcnt({lg([G + 1, 'xw'])})"
        if w: a("s_waitcnt" + w)
        if bar: a("s_barrier")
        if G == 31: a.stamp("p4B")
    assert not side, side.keys()
    a.stamp("p4A")
    a("s_nop 10")
    for ct in range(2):
        B_, A_ = ACC4[0][ct], ACC4[1][ct]
        for i in range(16): a(f"v_fma_f32 v{B_+i}, v{A_+i}, v{vGate}, v{B_+i}")
        pack(a, B_)
        a("s_nop 1")
        for k in (0, 2):
            a(f"v_permlane32_swap_b32 v{B_+2*k}, v{B_+2*k+2}")
            a(f"v_permlane32_swap_b32 v{B_+2*k+1}, v{B_+2*k+3}")
        for k in (0, 2):
            a.emit((f"buffer_store_dwordx4 {vr(B_+2*k, 4)}, v19, s[{sOutD}:{sOutD+3}], s36 offen offset:{ct*64 + k*16} {['', 'sc1', 'nt', 'sc0 sc1', 'sc1 nt'][o.get('outflag', 2)]}", "out"))

def gen(opts):
    a = G(opts); a.tail = []
    setup(a); gemm1(a); e1(a); attention(a); phase4(a)
    if opts.get("diag") is not None:
        a.stamp("end")
        a("s_nop 1")
        a(f"v_readlane_b32 s36, v{vSTAMP}, {32 + opts['diag']}")
        a("s_nop 3")
        a("s_add_u32 s36, s36, 10000")
        if opts.get("diagwg") is not None:
            a(f"s_cmp_lg_u32 s2, {opts['diagwg']}")
            a("s_cbranch_scc1 L_END")
        a("L_DIAG:")
        a("s_memrealtime s[38:39]")
        a("s_waitcnt lgkmcnt(0)")
        a("s_sub_u32 s38, s38, s36")
        a("s_cmp_lt_i32 s38, 0")
        a("s_cbranch_scc1 L_DIAG")
    elif opts.get("dbgstamp"):
        a.stamp("end")
        sel = ["karg", "first", "g7", "g15", "g23", "g31", "loc1", "pKV", "c1", "c9", "attend", "pOA", "p4B", "p4A", "end"]
        a(f"s_cmp_lg_u32 s2, {opts['dbgstamp']-1}")
        a("s_cbranch_scc1 L_DBGX")
        a(f"s_cmp_lg_u32 s{sW}, 0")
        a("s_cbranch_scc1 L_DBGX")
        a(f"v_readlane_b32 s36, v{vSTAMP}, 32")
        for i, nm in enumerate(sel):
            a(f"v_readlane_b32 s37, v{vSTAMP}, {32 + a.names.index(nm)}")
            a("s_nop 3")
            a("s_sub_u32 s37, s37, s36")
            a("v_mov_b32 v2, s37")
            a("v_mov_b32 v3, 0")
            a(f"global_store_dword v3, v2, s[{sPDbg}:{sPDbg+1}] offset:{4*(i+1)}")
        a("L_DBGX:")
    elif opts.get("stamp"):
        a.stamp("end")
        a("s_lshl_b32 s36, s2, 2")
        a(f"s_add_u32 s36, s36, s{sW}")
        a("s_lshl_b32 s36, s36, 8")
        a(f"s_add_u32 s36, s36, {STAMP_OFF}")
        a(f"v_lshlrev_b32 v2, 2, v{vLANE}")
        a(f"buffer_store_dword v{vSTAMP}, v2, {WS}, s36 offen")
    a("s_endpgm")
    for t in a.tail: a(t)
    head = f"""; gated mix of full MHA and dilated sliding-window attention: one fused kernel, 256 co-resident workgroups
; @launch grid=(256,1,1) block=(256,1,1) lds=163840
.amdgcn_target "amdgcn-amd-amdhsa--gfx950"
.text
.globl {KNAME}
.p2align 8
.type {KNAME},@function
{KNAME}:
"""
    tail = f"""L_END:
    s_endpgm
.section .rodata,"a"
.p2align 6
.amdhsa_kernel {KNAME}
  .amdhsa_next_free_vgpr 512
  .amdhsa_next_free_sgpr 102
  .amdhsa_accum_offset 256
  .amdhsa_group_segment_fixed_size 0
  .amdhsa_kernarg_size 80
  .amdhsa_user_sgpr_count 2
  .amdhsa_user_sgpr_kernarg_segment_ptr 1
  .amdhsa_system_sgpr_workgroup_id_x 1
.end_amdhsa_kernel
"""
    gen.names = a.names
    return head + a.text() + tail

if __name__ == "__main__":
    import hazard
    opts = {}
    for kv in sys.argv[2:]:
        k, v = kv.split("="); opts[k] = int(v)
    t = gen(opts)
    open(sys.argv[1], "w").write(t)
    print(len(hazard.check(t)), "hazards", gen.names)
```

```python
import sys, struct, math
from asmlib import *

KNAME = "gated_mix__softmax_full_mha__sliding_local_dilated__prompt_kernel"
def f2u(x): return struct.unpack("<I", struct.pack("<f", x))[0]
KV_OFF   = 0
OA_OFF   = 8 << 20
OB_OFF   = 12 << 20
HALO_OFF = 16 << 20
G_OFF    = 20 << 20
FLAG_OFF = 21 << 20
F_KV, F_H, F_OB, F_OA = FLAG_OFF, FLAG_OFF + 4096, FLAG_OFF + 8192, FLAG_OFF + 12288
STAMP_OFF = 0x8000000
OOB = 0x80000000
CSCALE = f2u(math.log2(math.e) / math.sqrt(32.0))
NEGBIG = f2u(-1e30)
X_SLOT = 16384; W_BASE = 49152; W_SLOT = 24576
KV_LDS = [98304, 131072]
XCH = 163840 - 16
sX, sWA, sWB, sWS = 4, 8, 12, 16
sW, sHP, sT, sRH, sHH = 20, 21, 22, 23, 24
sWoff, sXoff = 25, 26
sXw, sWv = 30, 34
sPF, sPFoff, sPFstr, sPFlim = 40, 44, 45, 46
sNONCE, sCS = 60, 61
sSTAMPI = 68
sPWoA, sPWoB, sPG, sPOut, sPDbg = 70, 72, 74, 76, 78
sKVsrc, sKVbase, sKVt, sKVdst = 80, 81, 82, 27
sPASS, sOst, sSpin = 83, 86, 87
sT4, sC4, sOoff, sWooff, sObase = 88, 89, 90, 91, 92
sHalo, sSeq, sO, sOrow, sHead = 93, 94, 95, 96, 97
sWoA, sWoB, sOutD = 4, 8, 12
sCode = 48
vLANE = 1
vXr = [2, 3]; vWr = [[4, 5], [10, 11]]; vWg = [12, 13, 14]; vXg = [15, 16, 17, 18]
vT = [19, 20, 21, 22, 23, 24, 25, 26]
vPF, vPFd, vL16, vSTAMP, vF0 = 27, 28, 29, 30, 31
vMc = 32
ACC0 = 64
def acc(blk, rt): return ACC0 + (blk*2 + rt)*16
QA = [64, 80]; KA = [96, 112]; VA = [128, 144]; QB = [160, 176]; KB = [192, 208]; VB = [224, 240]
NM = [128, 144]; S = [176, 240]; P = [72, 88]
vKV = [6, 7]
vWo_g = 2; vWo_r = [3, 4, 10, 11]; vG2 = [12, 13]; vOM = [14, 8]
vGate, vGrow = 14, 8
HK = 200; HV = 232
def fX(s, rt): return s*32 + rt*4
def fW(s, blk): return s*32 + 8 + blk*4
aK, aV = 0, [8, 16]
aO = [32, 48]; aL = [64, 68]; aONE = 112
aGATE = 80
aX = [0, 16]; aW = [32, 56]; vKS, vKL = 56, 57
aSEL = 72; vIDX = 9
OV = list(range(96, 128, 4)) + list(range(160, 176, 4)) + list(range(192, 240, 4))
def oreg(i): return ar(76 + 4*i, 4) if i < 45 else vr(OV[i - 45], 4)
ACC4 = [[128, 144], [64, 80]]
pKA = [96, 112]; pVA = [104, 120]; pQB = [160, 168]; pKB = [192, 208]; pVB = [224, 216]

def mf32(d, A, B, C): return f"v_mfma_f32_32x32x16_bf16 {d}, {A}, {B}, {C}"
def mf16(d, A, B, C): return f"v_mfma_f32_16x16x32_bf16 {d}, {A}, {B}, {C}"
WS = f"s[{sWS}:{sWS+3}]"

class G(Asm):
    def __init__(self, opts):
        super().__init__()
        self.opts = opts
        self.vm = []
        self.nstamp = 0
        self.names = []
    def emit(self, x):
        if callable(x): x = x()
        if x is None: return
        if isinstance(x, tuple):
            self(x[0]); self.vm.append(x[1])
        else:
            assert not (x.lstrip().startswith(("buffer_", "global_"))), x
            self(x)
    def vmn(self, tags):
        idx = [i for i, t in enumerate(self.vm) if t in tags]
        assert idx, tags
        n = len(self.vm) - 1 - max(idx)
        return min(n, 63)
    def wait(self, tags, lgkm=False):
        return lambda: f"s_waitcnt vmcnt({self.vmn(tags)})" + (" lgkmcnt(0)" if lgkm else "")
    def stamp(self, name):
        if not self.opts.get("stamp"): return
        if self.opts["stamp"] == 2 and name not in ("start", "g31", "c1", "attend", "end", "gP", "c4"): return
        self.names.append(name)
        a = self
        a("s_memtime s[66:67]")
        a("s_memrealtime s[64:65]")
        a("s_waitcnt lgkmcnt(0)")
        a(f"v_writelane_b32 v{vSTAMP}, s66, {self.nstamp}")
        a(f"v_writelane_b32 v{vSTAMP}, s64, {self.nstamp + 32}")
        self.nstamp += 1
        assert self.nstamp <= 32
    def inter(self, mains, sides):
        for i, m in enumerate(mains):
            if m is not None: self.emit(m)
            for s in sides.get(i, []): self.emit(s)

def srd(a, s, lo, hi, nbytes):
    a(f"s_mov_b32 s{s}, s{lo}")
    a(f"s_and_b32 s{s+1}, s{hi}, 0xffff")
    a(f"s_mov_b32 s{s+2}, {nbytes}")
    a(f"s_mov_b32 s{s+3}, 0x20000")

def pf_round(a):
    return [(f"buffer_load_dword v{vPFd}, v{vPF}, s[{sPF}:{sPF+3}], s{sPFoff} offen{' nt' if a.opts.get('pfnt') else ''}", "pf"),
            f"s_add_u32 s{sPFoff}, s{sPFoff}, s{sPFstr}"]

class P1:
    def __init__(self, a):
        self.a = a; self.wnext = [0]*6; self.xnext = [0]*4
    def dma(self, piece):
        kind, j, p = piece
        if kind == "W":
            assert self.wnext[p] == j and (p < 3 or self.wnext[p - 3] == j + 1) and (p >= 3 or self.wnext[p + 3] == j)
            self.wnext[p] += 1
            s = sWA if p < 3 else sWB
            return ([f"s_add_u32 m0, s{sWv}, {W_BASE + (j % 4)*W_SLOT + p*4096}"],
                    (f"global_load_lds_dwordx4 v{vWg[p % 3]}, s[{s}:{s+1}]", f"W{j}"),
                    [f"v_add_u32 v{vWg[p % 3]}, 196608, v{vWg[p % 3]}"] if p >= 3 else [])
        assert self.xnext[p] == j
        self.xnext[p] += 1
        return ([f"s_add_u32 m0, s{sXw}, {(j % 3)*X_SLOT + p*1024}"],
                (f"global_load_lds_dwordx4 v{vXg[p]}, s[{sX}:{sX+1}]", f"X{j}"),
                [f"v_add_u32 v{vXg[p]}, 128, v{vXg[p]}"])

def x_reads(xs, u):
    return [f"ds_read_b128 {ar(aX[xs] + mt*4, 4)}, v{vXr[u & 1]} offset:{((u >> 1) % 3)*X_SLOT + mt*2048}" for mt in range(4)]
def w_reads(ws_, u, blks):
    out = []
    sl = u % 4
    for i, blk in enumerate(blks):
        for nt in range(2):
            off = (sl % 2)*W_SLOT + blk*4096
            r = aW[ws_] + (i*2 + nt)*4
            out.append(f"ds_read_b64_tr_b16 {ar(r, 2)}, v{vWr[sl//2][nt]} offset:{off}")
            out.append(f"ds_read_b64_tr_b16 {ar(r + 2, 2)}, v{vWr[sl//2][nt]} offset:{off+512}")
    return out
def g1_mfmas(xs, ws_, blks, mts=(0, 1, 2, 3), mt_outer=False):
    out = {}
    for i, blk in enumerate(blks):
        for nt in range(2):
            for mt in mts:
                w, x = ar(aW[ws_] + (i*2 + nt)*4, 4), ar(aX[xs] + mt*4, 4)
                if blk % 3 == 2:
                    d = vr(acc(blk, mt >> 1) + ((mt & 1)*2 + nt)*4, 4); out[(i, nt, mt)] = mf16(d, x, w, d)
                else:
                    d = vr(acc(blk, mt >> 1) + (nt*2 + (mt & 1))*4, 4); out[(i, nt, mt)] = mf16(d, w, x, d)
    return out

def setup(a):
    o = a.opts
    a("L_START:")
    a("s_cmp_ge_u32 s2, 256")
    a("s_cbranch_scc1 L_END")
    a.stamp("start")
    a("s_load_dwordx4 s[48:51], s[0:1], 0")
    a("s_load_dwordx2 s[52:53], s[0:1], 32")
    a("s_load_dwordx2 s[54:55], s[0:1], 72")
    a(f"s_load_dwordx2 s[{sPWoA}:{sPWoA+1}], s[0:1], 16")
    a(f"s_load_dwordx4 s[{sPWoB}:{sPWoB+3}], s[0:1], 40")
    a(f"s_load_dwordx4 s[{sPOut}:{sPOut+3}], s[0:1], 56")
    if o.get("cpf0", 1):
        n = o.get('codelines', 20)
        a("s_getpc_b64 s[56:57]")
        a("L_PC0:")
        a("s_lshr_b32 s35, s2, 3")
        a(f"s_mul_i32 s35, s35, {n}")
        a(f"v_min_u32 v2, {n-1}, v0")
        a("v_add_u32 v2, s35, v2")
        a("v_lshlrev_b32 v2, 7, v2")
        a("v_min_u32 v2, L_END - L_PC0, v2")
        a.emit((f"global_load_dword v{vPFd}, v2, s[56:57]", "cpf"))
    a(f"v_and_b32 v{vLANE}, 63, v0")
    a(f"v_lshrrev_b32 v{vT[0]}, 6, v0")
    a("s_and_b32 s3, s2, 7")
    a(f"v_readfirstlane_b32 s{sW}, v{vT[0]}")
    a("s_lshr_b32 s35, s2, 3")
    a("s_and_b32 s37, s3, 3")
    a("s_lshl_b32 s36, s37, 2")
    a("s_and_b32 s38, s35, 3")
    a(f"s_add_u32 s{sHP}, s36, s38")
    a("s_lshr_b32 s39, s3, 2")
    a("s_lshl_b32 s36, s39, 3")
    a("s_lshr_b32 s38, s35, 2")
    a(f"s_add_u32 s{sT}, s36, s38")
    a(f"s_and_b32 s{sRH}, s{sW}, 1")
    a(f"s_lshr_b32 s{sHH}, s{sW}, 1")
    t0, t1, t2 = vT[0], vT[1], vT[2]
    if o.get("pfx"):
        a("s_lshl_b32 s38, s35, 5")
    else:
        a("s_lshl_b32 s38, s37, 5")
        a("s_add_u32 s38, s38, s35")
        a("s_lshl_b32 s38, s38, 3")
    a("s_lshl_b32 s47, s39, 10")
    a("s_add_u32 s38, s38, s47")
    a(f"v_add_u32 v{t0}, s38, v{vLANE}")
    a(f"v_lshlrev_b32 v{t0}, 11, v{t0}")
    if o.get("pfmode", 0) == 0:
        a("s_lshl_b32 s39, s39, 5")
        a("s_add_u32 s39, s39, s35")
        a("s_mul_i32 s39, s39, 6144")
        a("s_lshl_b32 s38, s37, 9")
        a("s_add_u32 s39, s39, s38")
        a(f"v_lshrrev_b32 v{t1}, 2, v{vLANE}")
        a(f"v_lshlrev_b32 v{t1}, 11, v{t1}")
        a(f"v_and_b32 v{t2}, 3, v{vLANE}")
        a(f"v_lshlrev_b32 v{t2}, 7, v{t2}")
        a(f"v_add3_u32 v{t1}, v{t1}, v{t2}, s39")
        if o.get("pf3", 1):
            a("s_lshr_b32 s47, s3, 2")
            a("s_xor_b32 s47, s47, 1")
            a("s_lshl_b32 s47, s47, 5")
            a("s_add_u32 s47, s47, s35")
            a("s_mul_i32 s47, s47, 6144")
            a("s_add_u32 s47, s47, s38")
            a(f"s_add_u32 s47, s47, {384 - 12*2048}")
            a(f"v_lshlrev_b32 v{t2}, 11, v{vLANE}")
            a(f"v_add_u32 v{t2}, s47, v{t2}")
            a(f"v_cmp_lt_u32 vcc, 11, v{vLANE}")
            a("s_nop 1")
            a(f"v_cndmask_b32 v{t1}, v{t1}, v{t2}, vcc")
    elif o.get("pfmode", 0) == 2:
        a("s_mul_i32 s39, s35, 12288")
        a("s_lshl_b32 s38, s37, 9")
        a("s_add_u32 s39, s39, s38")
        a(f"v_lshrrev_b32 v{t1}, 2, v{vLANE}")
        a(f"v_lshlrev_b32 v{t1}, 11, v{t1}")
        a(f"v_and_b32 v{t2}, 3, v{vLANE}")
        a(f"v_lshlrev_b32 v{t2}, 7, v{t2}")
        a(f"v_add3_u32 v{t1}, v{t1}, v{t2}, s39")
    else:
        a("s_mul_i32 s39, s2, 1536")
        a(f"v_lshlrev_b32 v{t1}, 7, v{vLANE}")
        a(f"v_add_u32 v{t1}, s39, v{t1}")
    a(f"s_mul_i32 s47, s35, {o.get('codelines', 20)}")
    a(f"v_add_u32 v{t2}, s47, v{vLANE}")
    a(f"v_lshlrev_b32 v{vT[7]}, 7, v{t2}")
    a(f"s_mov_b32 s{sPFstr}, 128")
    a(f"s_cmp_eq_u32 s{sW}, 0")
    a(f"s_cselect_b32 s{sPFstr}, s{sPFstr}, {64*6144}")
    a(f"s_cselect_b32 s38, {32 if o.get('pfx') else 8}, {24 if o.get('pfmode', 0) == 2 else (15 if o.get('pf3', 1) else 12)}")
    a("s_cselect_b64 s[56:57], -1, 0")
    a(f"v_cndmask_b32 v{vPF}, v{t1}, v{t0}, s[56:57]")
    a(f"s_cmp_eq_u32 s{sW}, 3")
    a("s_cselect_b64 s[56:57], -1, 0")
    a(f"v_cndmask_b32 v{vPF}, v{vPF}, v{vT[7]}, s[56:57]")
    a(f"s_cselect_b32 s38, {o.get('codelines', 20)}, s38")
    a(f"s_cselect_b32 s{sPFstr}, 0x4000000, s{sPFstr}")
    a(f"v_cmp_gt_u32 vcc, s38, v{vLANE}")
    a(f"v_mov_b32 v{t2}, {OOB}")
    a(f"s_mov_b32 s{sPFoff}, 0")
    a(f"v_cndmask_b32 v{vPF}, v{t2}, v{vPF}, vcc")
    a(f"v_cmp_gt_u32 vcc, {o.get('codelines', 20)}, v{vLANE}")
    a("s_getpc_b64 s[58:59]")
    a("L_PC:")
    a("s_sub_u32 s58, s58, L_PC - L_START")
    a(f"v_cndmask_b32 v{vT[7]}, v{t2}, v{vT[7]}, vcc")
    a("s_subb_u32 s59, s59, 0")
    r, c, t0, t1 = vT[0], vT[1], vT[2], vT[3]
    a(f"v_lshrrev_b32 v{r}, 3, v{vLANE}")
    a(f"v_and_b32 v{c}, 7, v{vLANE}")
    a(f"v_and_b32 v{t0}, 2, v{r}")
    a(f"s_lshl_b32 s36, s{sRH}, 2")
    a(f"v_xor_b32 v{t0}, v{t0}, v{c}")
    a(f"v_xor_b32 v{t0}, s36, v{t0}")
    a(f"v_lshlrev_b32 v{t0}, 4, v{t0}")
    a(f"v_mul_u32_u24 v{t1}, 6144, v{r}")
    a(f"v_add_u32 v{t0}, v{t0}, v{t1}")
    a(f"s_mul_i32 s36, s{sW}, {8*6144}")
    a(f"s_lshl_b32 s37, s{sHP}, 7")
    a("s_add_u32 s36, s36, s37")
    a(f"v_add_u32 v{vWg[0]}, s36, v{t0}")
    a(f"v_add_u32 v{vWg[1]}, 2048, v{vWg[0]}")
    a(f"v_add_u32 v{vWg[2]}, 4096, v{vWg[0]}")
    a(f"v_lshrrev_b32 v{t0}, 1, v{r}")
    a(f"v_xor_b32 v{t0}, v{t0}, v{c}")
    a(f"v_lshlrev_b32 v{t0}, 4, v{t0}")
    a(f"v_lshlrev_b32 v{t1}, 11, v{r}")
    a(f"v_add_u32 v{t0}, v{t0}, v{t1}")
    a(f"s_lshl_b32 s36, s{sT}, 7")
    a(f"s_lshl_b32 s37, s{sW}, 5")
    a("s_add_u32 s36, s36, s37")
    a("s_lshl_b32 s36, s36, 11")
    a(f"v_add_u32 v{vXg[0]}, s36, v{t0}")
    a(f"v_xor_b32 v{vXg[1]}, 64, v{vXg[0]}")
    a(f"v_add_u32 v{vXg[1]}, {8*2048}, v{vXg[1]}")
    a(f"v_add_u32 v{vXg[2]}, {16*2048}, v{vXg[0]}")
    a(f"v_add_u32 v{vXg[3]}, {16*2048}, v{vXg[1]}")
    a(f"s_lshl_b32 s{sWv}, s{sW}, 10")
    a(f"s_lshl_b32 s{sXw}, s{sW}, 12")
    a("s_waitcnt lgkmcnt(0)")
    a.stamp("karg")
    a(f"s_mov_b32 s{sPF+2}, {1024*3072*2}")
    a(f"s_cmp_eq_u32 s{sW}, 0")
    a(f"s_cselect_b32 s{sPF}, s48, s50")
    a(f"s_cselect_b32 s{sPF+1}, s49, s51")
    a(f"s_cselect_b32 s{sPF+2}, {2048*1024*2}, s{sPF+2}")
    a(f"s_cmp_eq_u32 s{sW}, 2")
    a(f"s_cselect_b32 s{sPF}, s52, s{sPF}")
    a(f"s_cselect_b32 s{sPF+1}, s53, s{sPF+1}")
    a(f"s_cmp_eq_u32 s{sW}, 3")
    a(f"s_cselect_b32 s{sPF}, s58, s{sPF}")
    a(f"s_cselect_b32 s{sPF+1}, s59, s{sPF+1}")
    a(f"s_cselect_b32 s{sPF+2}, L_END - L_START, s{sPF+2}")
    a(f"s_and_b32 s{sPF+1}, s{sPF+1}, 0xffff")
    a(f"s_mov_b32 s{sPF+3}, 0x20000")
    for i in range(o.get("pf0", 2)):
        for s in pf_round(a): a.emit(s)
    srd(a, sX, 48, 49, 2048*1024*2)
    srd(a, sWA, 50, 51, 1024*3072*2)
    srd(a, sWB, 52, 53, 1024*3072*2)

def fillers_prologue(a):
    L = []
    f = L.append
    f("s_mov_b32 s16, s54"); f("s_and_b32 s17, s55, 0xffff"); f("s_mov_b32 s18, 0x10000000"); f("s_mov_b32 s19, 0x20000")
    f(f"s_mov_b32 s{sCode}, s58"); f(f"s_and_b32 s{sCode+1}, s59, 0xffff"); f(f"s_mov_b32 s{sCode+2}, L_END - L_START"); f(f"s_mov_b32 s{sCode+3}, 0x20000")
    m, g_, t0, t1, row = vT[0], vT[1], vT[2], vT[3], vT[4]
    f(f"v_and_b32 v{m}, 15, v{vLANE}")
    f(f"v_lshrrev_b32 v{g_}, 4, v{vLANE}")
    f(f"v_lshrrev_b32 v{t0}, 1, v{m}")
    f(f"v_xor_b32 v{t0}, v{t0}, v{g_}")
    f(f"v_lshlrev_b32 v{t0}, 4, v{t0}")
    f(f"v_lshl_add_u32 v{t0}, v{m}, 7, v{t0}")
    f(f"s_lshl_b32 s36, s{sRH}, 13")
    f(f"v_add_u32 v{vXr[0]}, s36, v{t0}")
    f(f"v_xor_b32 v{vXr[1]}, 64, v{vXr[0]}")
    f(f"v_lshrrev_b32 v{t0}, 2, v{m}")
    f(f"v_lshl_add_u32 v{row}, v{g_}, 3, v{t0}")
    f(f"v_lshrrev_b32 v{t0}, 3, v{m}")
    f(f"v_and_b32 v{t1}, 1, v{g_}")
    f(f"v_lshl_or_b32 v{t0}, v{t1}, 1, v{t0}")
    f(f"s_lshl_b32 s36, s{sHH}, 1")
    f(f"v_xor_b32 v{t0}, s36, v{t0}")
    f(f"v_lshlrev_b32 v{t0}, 5, v{t0}")
    f(f"v_lshl_add_u32 v{t0}, v{row}, 7, v{t0}")
    f(f"v_and_b32 v{t1}, 3, v{m}")
    f(f"v_lshl_add_u32 v{t0}, v{t1}, 3, v{t0}")
    f(f"v_add_u32 v{vWr[0][0]}, {W_BASE}, v{t0}")
    f(f"v_xor_b32 v{vWr[0][1]}, 32, v{vWr[0][0]}")
    f(f"v_add_u32 v{vWr[1][0]}, {2*W_SLOT}, v{vWr[0][0]}")
    f(f"v_add_u32 v{vWr[1][1]}, {2*W_SLOT}, v{vWr[0][1]}")
    for r in range(ACC0, 256):
        f(f"v_mov_b32 v{r}, 0")
    return L

def fillers_late(a):
    L = []
    f = L.append
    q, b, t = vT[0], vT[1], vT[2]
    f(f"v_lshlrev_b32 v{vL16}, 4, v{vLANE}")
    f(f"v_and_b32 v{q}, 31, v{vLANE}")
    f(f"v_lshrrev_b32 v{b}, 5, v{vLANE}")
    f(f"v_lshlrev_b32 v{b}, 2, v{b}")
    f(f"v_sub_u32 v{b}, v{q}, v{b}")
    f(f"v_add_u32 v{b}, 18, v{b}")
    f("v_mov_b32 v58, 0x5555"); f("v_mov_b32 v59, 0")
    f(f"v_lshlrev_b64 v[58:59], v{b}, v[58:59]")
    f("v_not_b32 v58, v58"); f("v_not_b32 v59, v59")
    f(f"s_mov_b32 s36, {NEGBIG}")
    for i in range(24):
        r, src = (i, 59) if i < 16 else (i - 8, 58)
        f(f"v_bfe_i32 v{vMc + i}, v{src}, {8*(r >> 2) + (r & 3)}, 1")
        f(f"v_and_b32 v{vMc + i}, s36, v{vMc + i}")
    f(f"v_lshrrev_b32 v{q}, 2, v{vLANE}")
    f(f"v_lshrrev_b32 v{t}, 4, v{vLANE}")
    f(f"v_xor_b32 v{q}, v{q}, v{t}")
    f(f"v_and_b32 v{q}, 1, v{q}")
    f(f"v_add_u32 v{q}, -1, v{q}")
    f(f"v_and_b32 v{q}, 0x3f803f80, v{q}")
    for i in range(4):
        f(f"v_accvgpr_write_b32 a{aONE+i}, v{q}")
    f(f"v_lshrrev_b32 v{q}, 1, v{vLANE}"); f(f"v_xor_b32 v{q}, v{q}, v{vLANE}"); f(f"v_and_b32 v{q}, 4, v{q}")
    f(f"v_lshl_or_b32 v{q}, v{q}, 1, v{q}"); f(f"v_xor_b32 v{q}, v{q}, v{vLANE}"); f(f"v_lshlrev_b32 v{vKS}, 4, v{q}")
    f(f"v_min_u32 v{vF0}, 1, v{vLANE}")
    f(f"v_lshlrev_b32 v{vF0}, 31, v{vF0}")
    f(f"s_mov_b32 s{sCS}, {CSCALE}"); f(f"s_mov_b32 s62, {CSCALE}"); f(f"s_mov_b32 s63, {CSCALE}")
    f(f"s_lshl_b32 s36, s{sHP}, 19")
    f(f"s_lshl_b32 s37, s{sW}, 13")
    f(f"s_lshl_b32 s38, s{sHH}, 14")
    f(f"s_lshl_b32 s39, s{sRH}, 13")
    f(f"s_add_u32 s{sKVdst}, s38, s39")
    f(f"s_add_u32 s{sKVbase}, s36, s{sKVdst}")
    f(f"s_lshl_b32 s{sKVt}, s{sT}, 15")
    f(f"s_add_u32 s{sKVsrc}, s{sKVbase}, s{sKVt}")
    f(f"s_and_b32 s{sKVt}, s{sT}, 7"); f(f"s_and_b32 s{sKVb}, s{sT}, 8")
    f(f"s_add_u32 s36, s38, {KV_LDS[0]}")
    f(f"v_add_u32 v{vKV[0]}, s36, v{vL16}")
    f(f"v_add_u32 v{vKV[1]}, 32768, v{vKV[0]}")
    f(f"s_lshl_b32 s{sHead}, s{sHP}, 1")
    f(f"s_add_u32 s{sHead}, s{sHead}, s{sHH}")
    f(f"s_lshl_b32 s{sSeq}, s{sT}, 1")
    f(f"s_add_u32 s{sSeq}, s{sSeq}, s{sRH}")
    f(f"s_lshl_b32 s37, s{sSeq}, 6")
    f(f"s_add_u32 s37, s37, s{sHead}")
    f(f"s_lshl_b32 s{sOst}, s37, 11")
    f(f"s_lshl_b32 s38, s{sHead}, 5")
    f(f"s_add_u32 s38, s38, s{sSeq}")
    f(f"s_lshl_b32 s28, s38, 2")
    f(f"s_lshl_b32 s38, s38, 12")
    f(f"s_add_u32 s{sHalo}, s38, {HALO_OFF}")
    f(f"s_mov_b32 s{sPASS}, 0")
    f(f"s_add_u32 s{sKVp}, s54, s{sKVbase}\ns_addc_u32 s{sKVp+1}, s55, 0")
    f(f"s_cmp_lt_u32 s{sW}, 2\ns_cselect_b32 s{sPFW}, s{sPWoA}, s{sPWoB}\ns_cselect_b32 s{sPFW+1}, s{sPWoA+1}, s{sPWoB+1}")
    f(f"s_lshl_b32 s36, s2, 1"); f(f"s_add_u32 s36, s36, s{sRH}"); f("s_lshl_b32 s36, s36, 12")
    f(f"v_and_b32 v24, 7, v{vLANE}"); f("v_lshlrev_b32 v24, 7, v24"); f("v_add_u32 v23, s36, v24")
    f(f"v_and_b32 v24, 15, v{vLANE}"); f("v_lshlrev_b32 v24, 7, v24")
    f("s_lshr_b32 s36, s2, 3"); f("s_lshl_b32 s36, s36, 2"); f(f"s_add_u32 s36, s36, s{sW}"); f("s_lshl_b32 s36, s36, 14")
    f("v_add_u32 v0, s36, v24")
    f(f"s_lshl_b32 s36, s{sSeq}, 6")
    f(f"s_lshl_b32 s37, s{sHead}, 1")
    f("s_add_u32 s36, s36, s37")
    f(f"v_lshrrev_b32 v9, 5, v{vLANE}")
    f(f"v_add_u32 v{vGrow}, s36, v9")
    f(f"v_and_b32 v25, 31, v{vLANE}")
    f("v_lshlrev_b32 v25, 4, v25")
    f(f"v_lshl_add_u32 v9, v{vGrow}, 11, v25")
    f(f"s_mov_b32 s56, s{sPG}"); f(f"s_and_b32 s57, s{sPG+1}, 0xffff"); f("s_mov_b32 s58, 2048"); f("s_mov_b32 s59, 0x20000")
    f(f"s_lshl_b32 s38, s{sHP}, 2"); f(f"s_add_u32 s38, s38, s{sW}"); f("s_lshl_b32 s38, s38, 6")
    f(f"s_add_u32 s31, s38, {F_KV}"); f(f"s_lshl_b32 s38, s{sT}, 2"); f("s_add_u32 s32, s31, s38")
    f(f"s_add_u32 s33, s28, {F_H - 4}"); f(f"s_cmp_eq_u32 s{sSeq}, 0\ns_cselect_b32 s38, 4, 0"); f("s_add_u32 s33, s33, s38")
    return L

def gemm1(a):
    o = a.opts
    p1 = P1(a)
    W = lambda j, ps: [("W", j, p) for p in ps]
    X = lambda v, ps: [("X", v, p) for p in ps]
    pro = X(0, range(4)) + W(0, range(6)) + W(1, range(6))
    sched = {(0,0): X(1, range(4)) + W(2, [0,1]), (0,1): W(2, [2,3,4,5]) + W(3, [0,1]),
             (1,0): W(3, [2,3,4,5]) + W(4, [0,1]), (1,1): X(2, range(4)) + W(4, [2,3]),
             (2,0): W(4, [4,5]) + W(5, [0,1,2,3]), (2,1): W(5, [4,5]) + X(3, range(4)),
             (3,0): W(6, range(6))}
    for u in range(3, 28):
        v, p0 = ((u + 5)//2, 0) if u & 1 else ((u + 4)//2, 2)
        sched[(u, 1)] = W(u + 4, [0,1,2]) + (X(v, [p0]) if v < 16 else [])
        sched[(u + 1, 0)] = W(u + 4, [3,4,5]) + (X(v, [p0 + 1]) if v < 16 else [])
    U0 = o.get("u0", 28)
    if U0 == 28:
        sched[(27, 1)] = W(31, range(6)); del sched[(28, 0)]
    for (u, hf), ps in sched.items():
        done = u - 1 if hf == 0 else u
        for k, j, p in ps:
            if k == "W": assert j < 4 or done >= j - 4, (u, hf, k, j)
            else: assert j < 3 or done >= 2*(j - 3) + 1, (u, hf, k, j)
    npf0 = o.get("pf0", 2)
    pfs = {}
    r = npf0
    for u in range(0, 32):
        while r < 16 and u >= max(0, 2*r - o.get("pfd", 5)) and pfs.get(u, 0) < 1:
            pfs[u] = pfs.get(u, 0) + 1; r += 1
    fil = fillers_prologue(a)
    late = fillers_late(a)
    if o.get("roll", 1): fil += late; late = []
    per = (len(fil) + len(pro) - 1)//len(pro)
    for i, pc in enumerate(pro):
        pre, d, post = p1.dma(pc)
        for s in pre: a(s)
        chunk = fil[i*per:(i+1)*per]
        a(chunk[0] if chunk else "s_nop 0")
        a.emit(d)
        for s in post + chunk[1:]: a(s)
    a(f"s_or_b32 s36, s2, s{sW}")
    a("s_cmp_lg_u32 s36, 0")
    a("s_cbranch_scc1 L_NONONCE")
    a("s_memrealtime s[36:37]")
    a("v_mov_b32 v20, 0")
    a("s_waitcnt lgkmcnt(0)")
    a("s_or_b32 s36, s36, 1")
    a("v_mov_b32 v19, s36")
    a(f"global_store_dword v20, v19, s[{sPDbg}:{sPDbg+1}] sc1")
    a("L_NONONCE:")
    a.stamp("issued")
    a.emit(a.wait(["X0", "W0"]))
    a("s_barrier")
    a.stamp("first")
    for s in x_reads(0, 0) + w_reads(0, 0, (0, 1, 2)): a(s)
    a("s_waitcnt lgkmcnt(0)")
    def need(u): return [f"W{u}"] + ([f"X{u//2}"] if u % 2 == 0 else [])
    def seq(M, keys=None): return [M[k] for k in (keys or sorted(M))]
    roll = o.get("roll", 1)
    if roll:
        assert U0 == 28 and not late
        for u in (25, 27):
            if pfs.get(u - 12): pfs[u] = 1
        assert all(pfs.get(u, 0) == pfs.get(u + 12, 0) for u in range(4, 16)), pfs
    def half(u, hf):
        if hf == 0: reads = w_reads(1, u, (3, 4, 5))
        else: reads = x_reads((u + 1) & 1, u + 1) + w_reads(0, u + 1, (0, 1, 2) if u + 1 < U0 else (1, 2))
        sides = {}
        for g, rd in enumerate(reads): sides.setdefault(g, []).append(rd)
        ps = sched.get((u, hf), [])
        D = ([[13, 16, 19, 22], [12, 14, 16, 18, 20, 22]] if hf == 0 else [[17, 19, 21, 23], [13, 15, 17, 19, 21, 23]])[len(ps) > 4]
        for g, pc in zip(D, ps):
            pre, d, post = p1.dma(pc)
            sides.setdefault(g - 1, []).extend(pre)
            sides.setdefault(g, []).insert(0, d)
            sides[g].extend(post)
        if hf == 0 and pfs.get(u):
            sides.setdefault(23, []).extend(pf_round(a))
        if u >= 4 and late:
            for g in range(24):
                cur = sides.get(g, [])
                if any(isinstance(x, tuple) or x.startswith("ds_") for x in cur): continue
                room = o.get("lateper", 2) - (1 if cur else 0)
                while late and room > 0:
                    x = late.pop(0); sides.setdefault(g, []).append(x); room -= len(x.split("\n"))
        if roll and (u, hf) in ((15, 0), (27, 0)):
            sides.setdefault(14, []).append("s_sub_u32 s35, s35, 1")
        a.inter(seq(g1_mfmas(u & 1, hf, (0, 1, 2) if hf == 0 else (3, 4, 5))), sides)
        if roll and (u, hf) in ((15, 0), (27, 0)):
            a("s_cmp_lg_u32 s35, 0")
        if hf == 0:
            a.emit(a.wait(need(u + 1), lgkm=True))
            a("s_barrier")
        elif u + 1 < U0:
            a("s_waitcnt lgkmcnt(0)")
        if hf == 1 and u % 8 == 7 and not roll: a.stamp(f"g{u}")
    halves = [(u, hf) for u in range(U0) for hf in range(2)]
    if not roll:
        for h in halves: half(*h)
    else:
        for h in halves[:7]: half(*h)
        a("s_mov_b32 s35, 2")
        n0 = len(a.lines)
        for h in halves[7:31]: half(*h)
        p1_ = a.lines[n0:]; del a.lines[n0:]
        for h in halves[31:55]: half(*h)
        p2_ = a.lines[n0:]; del a.lines[n0:]
        assert len(p1_) == len(p2_)
        if o.get("galign"): a(f".p2align {o['galign']}")
        a("L_G1:")
        import re
        for x, y in zip(p1_, p2_):
            if x != y:
                mx, my = re.fullmatch(r"\s*s_waitcnt vmcnt\((\d+)\) lgkmcnt\(0\)", x), re.fullmatch(r"\s*s_waitcnt vmcnt\((\d+)\) lgkmcnt\(0\)", y)
                assert mx and my, (x, y)
                x = f"s_waitcnt vmcnt({min(int(mx.group(1)), int(my.group(1)))}) lgkmcnt(0)"
            a(x)
        a("s_cbranch_scc1 L_G1")
        half(27, 1)
    misc = []
    for j in range(8):
        misc.append((f"buffer_load_dwordx4 {ar(aGATE+4*j, 4)}, v9, s[{sX}:{sX+3}], 0 offen offset:{512*j}" if j < 4 else
                     f"buffer_load_dwordx4 {ar(aGATE+4*j, 4)}, v25, s[56:59], 0 offen offset:{512*(j-4)}", "gate"))
    misc = [(f"global_load_dword v21, v19, s[{sPDbg}:{sPDbg+1}] sc1", "nonce"),
            (f"buffer_load_dword v{vPFd}, v{vT[7]}, s[{sCode}:{sCode+3}], 0 offen", "cpf")] + misc
    xs, ws_ = U0 & 1, 0
    units = [(u, b) for u in range(U0, 31) for b in ((0, 3), (4, 5))] + [(31, (4, 5)), (31, (3, 0))]
    bfirst = o.get("bfirst", 1)
    if bfirst: units = [(u, (4, 5)) for u in range(U0, 32)] + [(u, (3, 0)) for u in range(U0, 32)]
    for u in range(U0, 32):
        if u < 31:
            a.emit(a.wait(need(u + 1), lgkm=True)); a("s_barrier")
        else:
            a("s_waitcnt lgkmcnt(0)")
        reads = x_reads(1 - xs, u + 1) + w_reads(1 - ws_, u + 1, (1, 2)) if u < 31 else x_reads(1 - xs, U0) + w_reads(1 - ws_, *units[0])
        sides = {}
        for i, rd in enumerate(reads): sides.setdefault(i, []).append(rd)
        if u == U0:
            sides.setdefault(0, []).append("v_mov_b32 v19, 0")
            sides.setdefault(1, []).append(f"s_add_u32 s25, s{sKVsrc}, 4096"); sides.setdefault(2, []).append(f"s_mov_b32 s26, s{sKVsrc}")
        for g in ((12, 13, 15) if U0 == 28 else (12, 13, 14, 15)):
            if misc: sides.setdefault(g, []).append(misc.pop(0))
        M = g1_mfmas(xs, ws_, (1, 2))
        a.inter(seq(M, [(i, nt, mt) for rt in range(2) for i in range(2) for nt in range(2) for mt in (2*rt, 2*rt + 1)]), sides)
        xs ^= 1; ws_ ^= 1
    assert not misc
    a.stamp("gP")
    e1_lists(a)
    kvw = pk16(KA[0], pKA[0]) + a.kv.pop(0) + pk16(VA[0], pVA[0]) + pk16(KA[1], pKA[1]) + pk16(VA[1], pVA[1])
    st_units = {28: [1, 2, 3, 4, 5, 6, 7], 29: [1, 2, 3, 4, 5]}[U0]
    for n, (u, blks) in enumerate(units):
        last = n == len(units) - 1
        a("s_waitcnt lgkmcnt(0)")
        if last: a("s_barrier")
        reads = []
        newx = False
        if not last:
            un, bn = units[n + 1]
            newx = un != u
            reads = (x_reads(1 - xs, un) if newx else []) + w_reads(1 - ws_, un, bn)
        sides = {}
        for i, rd in enumerate(reads): sides.setdefault(i, []).append(rd)
        M = g1_mfmas(xs, ws_, blks)
        keys = None
        if bfirst and n == len(units)//2:
            assert not kvw
            kvw = pk16(KB[1], pKB[1]) + pk16(VB[1], pVB[1], True) + pk16(KB[0], pKB[0]) + pk16(VB[0], pVB[0], True)
        if n >= len(units) - 2 or (bfirst and n == len(units)//2 - 1):
            keys = [(i, nt, mt) for rt in (1, 0) for i in range(2) for nt in range(2) for mt in (2*rt, 2*rt + 1)]
            if last: keys = [(i, nt, mt) for i in range(2) for rt in (1, 0) for nt in range(2) for mt in (2*rt, 2*rt + 1)]
        if last:
            e1_head(a, sides, kvw if bfirst else None); kvw = []
        else:
            for g in range(4 if n == 0 else 0, 16):
                budget = 1 if g < len(reads) else 2
                while kvw and budget > 0:
                    x = kvw.pop(0)
                    sides.setdefault(g, []).append(x)
                    budget -= 2 if (isinstance(x, tuple) or "permlane" in x) else 1
        if n in st_units:
            st_ = a.kv.pop(0)
            lo = int(st_[0][0].split("v[")[1].split(":")[0])
            assert not any(isinstance(x, str) and any(f"v{lo+i}," in x.split(None, 1)[1].split(", v")[0] + "," or x.endswith(f" v{lo+i}") and "permlane" in x for i in range(4)) for x in kvw), (n, lo)
            sides.setdefault(1 if last else 15, []).extend(st_)
        a.inter(seq(M, keys), sides)
        ws_ ^= 1
        if newx: xs ^= 1
    assert not kvw
    a.stamp("g31")
    assert not late

def packl(base, out=None):
    out = base if out is None else out
    return [f"v_cvt_pk_bf16_f32 v{out+j}, v{base+2*j}, v{base+2*j+1}" for j in range(8)]
def pk16(base, out=None, vb=False):
    out = base if out is None else out
    l = packl(base, out) + [f"v_permlane16_swap_b32 v{out+i}, v{out+i+2}" for i in (0, 1, 4, 5)]
    if vb: l += [f"v_permlane32_swap_b32 v{out+i}, v{out+i+2}" for i in (0, 1, 4, 5)]
    return l
def pko(base, out=None):
    out = base if out is None else out
    return packl(base, out) + ["s_nop 0"] + [f"v_permlane16_swap_b32 v{out+j}, v{out+4+j}" for j in range(4)]
def pack(a, base, out=None):
    for s in packl(base, out): a(s)
class L(list):
    def __call__(self, s): self.append(s)
    def emit(self, s): self.append(s)
def weave(a, work, extra, first, every):
    nxt = first
    for i, w in enumerate(work):
        while extra and i >= nxt:
            for s in extra.pop(0): a.emit(s)
            nxt += every
        a.emit(w)

def padfill(a, fill, n):
    k = 0
    for f in fill:
        a.emit(f); k += len(f.split("\n")) if isinstance(f, str) else 1
    if k < n: a(f"s_nop {n - k - 1}")

def local_tile(a, Q, Kc, Vc, Kp, Vp1, SC, SP, O, PC, PP, tmp, off, tag, fill1=(), fill2=()):
    m, t = tmp, tmp + 1
    a(mf32(vr(SC, 16), vr(Kc, 4), vr(Q, 4), vr(vMc, 16)))
    a(mf32(vr(SC, 16), vr(Kc+4, 4), vr(Q+4, 4), vr(SC, 16)))
    a(mf32(vr(SP, 16), vr(Kp, 4), vr(Q, 4), vr(vMc + 8, 16)))
    a(mf32(vr(SP, 16), vr(Kp+4, 4), vr(Q+4, 4), vr(SP, 16)))
    padfill(a, fill1, 10)
    vals = [SC + i for i in range(16)] + [SP + 8 + i for i in range(8)]
    a(f"v_max3_f32 v{m}, v{vals[0]}, v{vals[1]}, v{vals[2]}")
    for i in range(3, 23, 2):
        a(f"v_max3_f32 v{m}, v{m}, v{vals[i]}, v{vals[i+1]}")
    a(f"v_max_f32 v{m}, v{m}, v{vals[23]}")
    a(f"v_mov_b32 v{t}, v{m}")
    a("s_nop 1")
    a(f"v_permlane32_swap_b32 v{m}, v{t}")
    a(f"v_max_f32 v{m}, v{m}, v{t}")
    a(f"v_mul_f32 v{m}, s{sCS}, v{m}")
    for v in vals:
        a(f"v_fma_f32 v{v}, v{v}, s{sCS}, -v{m}")
    L = SP
    for i in range(10): a(f"v_exp_f32 v{vals[i]}, v{vals[i]}")
    for j in range(4): a(f"v_cvt_pk_bf16_f32 v{PC+j}, v{SC+2*j}, v{SC+2*j+1}")
    for i in range(10, 13): a(f"v_exp_f32 v{vals[i]}, v{vals[i]}")
    a(mf32(vr(O, 16), vr(Vc, 4), vr(PC, 4), 0))
    for i in range(13, 18): a(f"v_exp_f32 v{vals[i]}, v{vals[i]}")
    a(mf16(vr(L, 4), ar(aONE, 4), vr(PC, 4), 0))
    for j in range(4, 8): a(f"v_cvt_pk_bf16_f32 v{PC+j}, v{SC+2*j}, v{SC+2*j+1}")
    for i in range(18, 20): a(f"v_exp_f32 v{vals[i]}, v{vals[i]}")
    a(mf32(vr(O, 16), vr(Vc+4, 4), vr(PC+4, 4), vr(O, 16)))
    for i in range(20, 24): a(f"v_exp_f32 v{vals[i]}, v{vals[i]}")
    a(mf16(vr(L, 4), ar(aONE, 4), vr(PC+4, 4), vr(L, 4)))
    for j in range(4): a(f"v_cvt_pk_bf16_f32 v{PP+j}, v{SP+8+2*j}, v{SP+9+2*j}")
    a("s_nop 1")
    a(mf16(vr(L, 4), ar(aONE, 4), vr(PP, 4), vr(L, 4)))
    a(mf32(vr(O, 16), vr(Vp1, 4), vr(PP, 4), vr(O, 16)))
    padfill(a, fill2, 7)
    a(f"v_rcp_f32 v{m}, v{L}")
    a(f"s_add_u32 s35, s{sOst}, {OB_OFF + off}")
    a("s_nop 2")
    for i in range(16):
        a(f"v_mul_f32 v{O+i}, v{O+i}, v{m}")
    return [(f"buffer_store_dwordx4 {{0}}, v{vL16}, {WS}, s35 offen sc1", tag),
            (f"buffer_store_dwordx4 {{0}}, v{vL16}, {WS}, s35 offen offset:1024 sc1", tag)]

def flag_store(sreg, vtmp, tag):
    return [f"v_mov_b32 v{vtmp}, s{sNONCE}", (f"buffer_store_dword v{vtmp}, v{vF0}, {WS}, s{sreg} offen sc1", tag)]

def poll_check(a, name, vdst, vaddr, sreg, tag, mask=-1):
    a.emit(a.wait([tag]))
    a(f"v_cmp_ne_u32 vcc, s{sNONCE}, v{vdst}")
    a(f"s_and_b32 s{sSpin}, vcc_lo, {mask}")
    a(f"s_cbranch_scc1 {name}_S")
    a(f"{name}_R:")
    a.tail.append(f"""{name}_S:
    s_mov_b32 s{sSpin}, 0
{name}_L:
    buffer_load_dword v{vdst}, v{vaddr}, {WS}, s{sreg} offen sc1
    s_add_u32 s{sSpin}, s{sSpin}, 1
    s_waitcnt vmcnt(0)
    v_cmp_ne_u32 vcc, s{sNONCE}, v{vdst}
    s_cmp_lt_u32 s{sSpin}, 0x40000
    s_cbranch_scc0 {name}_R
    s_nop 2
    s_and_b32 vcc_hi, vcc_lo, {mask}
    s_cbranch_scc1 {name}_L
    s_branch {name}_R""")

def e1_lists(a):
    a.halo = [[(f"buffer_store_dwordx4 {vr(pKB[1], 4)}, v{vL16}, {WS}, s{sHalo} offen sc1", "halo")],
              [(f"buffer_store_dwordx4 {vr(pKB[1]+4, 4)}, v{vL16}, {WS}, s{sHalo} offen offset:1024 sc1", "halo")],
              [(f"buffer_store_dwordx4 {vr(pVB[1]+4, 4)}, v{vL16}, {WS}, s{sHalo} offen offset:2048 sc1", "halo")]]
    a.kv = []; a.dsw = []
    for rt in range(2):
        for (blk, f0) in ((pKA[rt], 0), (pVA[rt], 2)):
            for f in range(2):
                off = (f0 + f)*1024
                a.kv.append([(f"buffer_store_dwordx4 {vr(blk+4*f, 4)}, v{vL16 if f0 else vKS}, {WS}, s{26 if rt == 0 else 25} offen offset:{off} sc1", "kv")])
                a.dsw.append([f"ds_write_b128 v{22 if f0 else vKL}, {vr(blk+4*f, 4)} offset:{rt*4096 + off}"])

def e1_head(a, sides, left):
    w = [f"s_add_u32 s36, s{sKVdst}, {KV_LDS[0]}", f"v_add_u32 v22, s36, v{vL16}", f"v_add_u32 v{vKL}, s36, v{vKS}", f"v_add_u32 v{vL16b}, 4096, v{vL16}"]
    if left is None: w += pk16(KB[1], pKB[1]) + pk16(VB[1], pVB[1], True) + pk16(KB[0], pKB[0]) + pk16(VB[0], pVB[0], True)
    else: w += left + sel_init(23, 24)[:5] + sel_init(23, 24)[13:]
    a.selrest = sel_init(23, 24) if left is None else sel_init(23, 24)[5:13]
    for g in range(16):
        budget = 2
        if g % 2 == 1 and g > 1:
            sides.setdefault(g, []).extend(a.dsw.pop(0)); budget = 0
        while w and budget > 0:
            x = w.pop(0)
            sides.setdefault(g, []).append(x)
            budget -= 2 if "permlane" in x else (0 if x.startswith("s_") else 1)
    a.e1rest = w

def e1(a):
    o = a.opts
    pend = a.kv + a.halo
    a.emit(a.wait(["nonce"]))
    a(f"v_readfirstlane_b32 s{sNONCE}, v21")
    w = a.e1rest + pk16(QB[1], 240) + a.selrest + pk16(QB[0], pQB[0])
    weave(a, w, a.dsw, 2, 8)
    a(f"s_cmp_eq_u32 s{sNONCE}, 0")
    a("s_cbranch_scc1 L_NONCE_S")
    a("L_NONCE_R:")
    a.tail.append(f"""L_NONCE_S:
    s_mov_b32 s{sSpin}, 0
L_NONCE_L:
    global_load_dword v21, v19, s[{sPDbg}:{sPDbg+1}] sc1
    s_add_u32 s{sSpin}, s{sSpin}, 1
    s_waitcnt vmcnt(0)
    v_readfirstlane_b32 s{sNONCE}, v21
    s_cmp_lt_u32 s{sSpin}, 0x40000
    s_cbranch_scc0 L_NONCE_R
    s_nop 2
    s_cmp_eq_u32 s{sNONCE}, 0
    s_cbranch_scc1 L_NONCE_L
    s_branch L_NONCE_R""")
    for s in pend.pop(0): a.emit(s)
    a.stamp("e1pack")
    qa = []
    for q in QA:
        qa += [f"v_pk_mul_f32 {vr(q+2*j, 2)}, {vr(q+2*j, 2)}, s[62:63]" for j in range(8)] + pk16(q)
    lt = L()
    st = local_tile(lt, 240, pKB[1], pVB[1], pKB[0], pVB[0]+4, 128, 144, 176, 168, 248, 252, 65536, "ob1", fill1=qa[:26], fill2=qa[26:])
    lt += pko(176, 56)
    a.ob1 = [(st[0][0].format("v[56:59]"), "ob1"), (st[1][0].format("v[60:63]"), "ob1")]
    weave(a, lt, pend, o.get("st_a", 40), o.get("st_b", 50))
    for g in pend:
        for s in g: a.emit(s)
    a.stamp("loc1")
    a.emit(a.wait(["kv"], lgkm=True))
    for s in flag_store(32, 20, "fKV"): a.emit(s)
    a("s_barrier")
    a.stamp("fKV")

sKVp, sKVg, sOg, sPFW = 84, 98, 100, 52
vL16b = 5
def kv_dma(slot, group, tag):
    out = [f"s_add_u32 m0, s{sKVdst}, {KV_LDS[slot] + group*4096}"]
    for p in range(4):
        out.append((f"global_load_lds_dwordx4 v{vL16b if group else vL16}, s[{sKVg}:{sKVg+1}] offset:{p*1024} sc1", tag))
    return out
sKVb, sKVd = 3, 34
def kv_advance(c):
    if c <= 7:
        return [f"s_cmp_le_u32 s{sKVt}, {c-1}", f"s_addc_u32 s36, s{sKVb}, {c-1}", "s_lshl_b32 s36, s36, 15",
                f"s_add_u32 s{sKVg}, s{sKVp}, s36", f"s_addc_u32 s{sKVg+1}, s{sKVp+1}, 0"]
    return [f"s_add_u32 s36, s{sKVb}, {c}", "s_and_b32 s36, s36, 15", "s_lshl_b32 s36, s36, 15",
            f"s_add_u32 s{sKVg}, s{sKVp}, s36", f"s_addc_u32 s{sKVg+1}, s{sKVp+1}, 0"]

def sel_init(t0, t1):
    return [f"v_lshrrev_b32 v{t0}, 1, v{vLANE}", f"v_and_b32 v{t0}, 3, v{t0}", f"v_min_u32 v{t1}, 1, v{t0}", f"v_add_u32 v{t1}, -1, v{t1}",
            f"v_and_b32 v{t1}, 0x3f803f80, v{t1}", f"v_accvgpr_write_b32 a{aSEL}, v{t1}", f"v_accvgpr_write_b32 a{aSEL+1}, v{t1}",
            f"v_xor_b32 v{t0}, 2, v{t0}", f"v_min_u32 v{t1}, 1, v{t0}", f"v_add_u32 v{t1}, -1, v{t1}",
            f"v_and_b32 v{t1}, 0x3f803f80, v{t1}", f"v_accvgpr_write_b32 a{aSEL+2}, v{t1}", f"v_accvgpr_write_b32 a{aSEL+3}, v{t1}",
            f"v_and_b32 v{vIDX}, 1, v{vLANE}", f"v_mul_u32_u24 v{vIDX}, 0xaaaa, v{vIDX}", f"v_add_u32 v{vIDX}, 0x4444, v{vIDX}"]
def smf(q): return f"v_smfmac_f32_16x16x64_bf16 {ar(aL[q], 4)}, {ar(aSEL, 4)}, {vr(P[q], 8)}, v{vIDX}"

def H(a, q, vpar, qk=True, pv=True, pv_first=False, slots=None):
    slots = slots or {}
    o = 1 - q
    e = [f"v_exp_f32 v{S[q]+i}, v{S[q]+i}" for i in range(16)]
    c = [f"v_cvt_pk_bf16_f32 v{P[q]+j}, v{S[q]+2*j}, v{S[q]+2*j+1}" for j in range(8)]
    So, Oo = vr(S[o], 16), ar(aO[o], 16)
    M = [mf32(So, ar(aK, 4), vr(QA[o], 4), vr(NM[o], 16)) if qk else None,
         mf32(So, ar(aK+4, 4), vr(QA[o]+4, 4), So) if qk else None,
         mf32(Oo, ar(aV[vpar], 4), vr(P[o], 4), 0 if pv_first else Oo) if pv else None,
         mf32(Oo, ar(aV[vpar]+4, 4), vr(P[o]+4, 4), Oo) if pv else None,
         smf(o) if pv else None, None]
    V = [[e[0], e[1], e[2]], [e[3], c[0], c[1], e[4]], [e[5], e[6], e[7]], [c[2], c[3], e[8], e[9], e[10], e[11], c[4], c[5]],
         [], [e[12], e[13], e[14], e[15], c[6], c[7]]]
    if not pv: V[3] = ["s_nop 0"] + V[3]
    for i in range(6):
        if M[i]: a(M[i])
        for s in slots.get(i, []): a.emit(s)
        for s in V[i]: a(s)

def rdK(slot, off): return [f"ds_read_b128 {ar(aK, 4)}, v{vKV[slot]} offset:{off}", f"ds_read_b128 {ar(aK+4, 4)}, v{vKV[slot]} offset:{off+1024}"]
def rdV(par, slot, off): return [f"ds_read_b128 {ar(aV[par], 4)}, v{vKV[slot]} offset:{off+2048}", f"ds_read_b128 {ar(aV[par]+4, 4)}, v{vKV[slot]} offset:{off+3072}"]

FREE_A = [0, 3, 4]; FREE_B = [2, 3, 4, 5]
TORD = [0, 2, 1, 3]
def tile(a, n, side=None, end_b=None):
    sa = {}; sb = {}
    if n < 63:
        m = n + 1
        k = rdK((m >> 2) & 1, TORD[m & 3]*4096); v = rdV(m & 1, (m >> 2) & 1, TORD[m & 3]*4096)
        sa[1] = [k[0]]; sa[2] = [k[1]]; sa[5] = ["s_waitcnt lgkmcnt(0)"]
        sb[0] = [v[0]]; sb[1] = [v[1]]
    if side is not None:
        for g in FREE_A:
            if side: sa.setdefault(g, []).extend(side.pop(0))
        for g in (FREE_B if end_b is None else FREE_B[:-1]):
            if side: sb.setdefault(g, []).extend(side.pop(0))
        if sb.get(4) and sb.get(5) and isinstance(sb[4][-1], str) and " m0," in sb[4][-1] and isinstance(sb[5][0], tuple):
            if not sb.get(3): sb[3] = sb.pop(4)
            elif len(sb[3]) == 1 and isinstance(sb[3][0], str) and " m0," not in sb[3][0] and not sb[3][0].startswith(("s_cmp", "s_addc", "s_add_u32 s9", "s_add_u32 s10")):
                sb[3], sb[4] = sb[4], sb[3]
            else: sb[4] = sb[4] + ["s_nop 0"]
    if end_b: sb.setdefault(5, []).extend(end_b)
    H(a, 0, (n - 1) & 1, pv=(n != 0), pv_first=(n == 1), slots=sa)
    H(a, 1, n & 1, qk=(n < 63), pv_first=(n == 0), slots=sb)

def neg_max(a):
    for q in range(2): a(f"v_mov_b32 v{21+q}, v{19+q}")
    a("s_nop 0")
    for q in range(2): a(f"v_permlane32_swap_b32 v{19+q}, v{21+q}")
    for q in range(2): a(f"v_max_f32 v{19+q}, v{19+q}, v{21+q}")
    for q in range(2):
        for i in range(16): a(f"v_sub_f32 v{NM[q]+i}, 0, v{19+q}")

def gate_compute(a):
    z, t = 23, 24
    for i in range(16):
        a(f"v_accvgpr_read_b32 v{96+(i%4)}, a{aGATE+i}")
        a(f"v_accvgpr_read_b32 v{100+(i%4)}, a{aGATE+16+i}")
        a(f"v_dot2_f32_bf16 v{z}, v{96+(i%4)}, v{100+(i%4)}, {0 if i == 0 else 'v%d' % z}")
    a("s_nop 2")
    for sh in (8, 4, 2, 1):
        a(f"v_add_f32_dpp v{z}, v{z}, v{z} row_ror:{sh} row_mask:0xf bank_mask:0xf")
        a("s_nop 1")
    a(f"v_mov_b32 v{t}, v{z}")
    a("s_nop 1")
    a(f"v_permlane16_swap_b32 v{z}, v{t}")
    a(f"v_add_f32 v{z}, v{z}, v{t}")
    a(f"v_mul_f32 v{z}, {f2u(-math.log2(math.e))}, v{z}")
    a(f"v_exp_f32 v{z}, v{z}")
    a(f"v_and_b32 v{t}, 31, v{vLANE}")
    a(f"v_add_f32 v{z}, 1.0, v{z}")
    a(f"v_rcp_f32 v{z}, v{z}")
    a(f"v_min_u32 v{t}, 1, v{t}")
    a(f"v_lshlrev_b32 v{t}, 31, v{t}")
    a(f"v_lshl_or_b32 v{t}, v{vGrow}, 2, v{t}")
    a(f"s_mov_b32 s36, {G_OFF}")
    a.emit((f"buffer_store_dword v{z}, v{t}, {WS}, s36 offen sc1", "g"))

def p4_setup(a):
    srd(a, sWoA, sPWoA, sPWoA+1, 1024*1024*2)
    srd(a, sWoB, sPWoB, sPWoB+1, 1024*1024*2)
    srd(a, sOutD, sPOut, sPOut+1, 2048*1024*2)
    a("s_and_b32 s36, s2, 7")
    a("s_lshr_b32 s37, s2, 3")
    a(f"s_and_b32 s{sC4}, s37, 15")
    a("s_lshr_b32 s37, s37, 4")
    a("s_lshl_b32 s36, s36, 1")
    a(f"s_add_u32 s{sT4}, s36, s37")
    r, c, t0, t1 = 200, 201, 202, 203
    a(f"v_lshrrev_b32 v{r}, 3, v{vLANE}")
    a(f"v_and_b32 v{c}, 7, v{vLANE}")
    a(f"v_and_b32 v{t0}, 2, v{r}")
    a(f"s_lshl_b32 s36, s{sHH}, 2")
    a(f"v_xor_b32 v{t0}, v{t0}, v{c}")
    a(f"v_xor_b32 v{t0}, s36, v{t0}")
    a(f"v_lshlrev_b32 v{t0}, 4, v{t0}")
    a(f"v_lshl_add_u32 v{t0}, v{r}, 11, v{t0}")
    a(f"s_lshl_b32 s36, s{sW}, 14")
    a(f"s_lshl_b32 s37, s{sC4}, 7")
    a("s_add_u32 s36, s36, s37")
    a(f"v_add_u32 v{vWo_g}, s36, v{t0}")
    a(f"v_and_b32 v{r}, 15, v{vLANE}")
    a(f"v_lshrrev_b32 v{t0}, 2, v{r}")
    a(f"v_lshrrev_b32 v{t1}, 5, v{vLANE}")
    a(f"v_lshl_add_u32 v{c}, v{t1}, 2, v{t0}")
    a(f"v_and_b32 v{t1}, 16, v{vLANE}")
    a(f"v_add_u32 v{c}, v{c}, v{t1}")
    a(f"v_lshlrev_b32 v{t1}, 2, v{t1}")
    a(f"v_and_b32 v{t0}, 8, v{r}")
    a(f"v_lshl_add_u32 v{t0}, v{t0}, 2, v{t1}")
    a(f"v_lshl_add_u32 v{t0}, v{c}, 7, v{t0}")
    a(f"v_and_b32 v{t1}, 3, v{r}")
    a(f"v_lshl_add_u32 v{vWo_r[0]}, v{t1}, 3, v{t0}")
    for nt in range(1, 4):
        a(f"v_xor_b32 v{vWo_r[nt]}, {32*nt}, v{vWo_r[0]}")
    a(f"s_lshl_b32 s36, s{sT4}, 2")
    a(f"s_add_u32 s36, s36, s{sW}")
    a(f"s_lshl_b32 s{sOrow}, s36, 16")
    a(f"s_lshr_b32 s36, s36, 1")
    a(f"s_lshl_b32 s29, s36, 7")
    a(f"s_lshr_b32 s36, s{sC4}, 1")
    a(f"s_lshl_b32 s{sOoff}, s36, 13")
    a(f"s_lshl_b32 s{sWooff}, s36, 18")
    a(f"v_and_b32 v16, 31, v{vLANE}")
    a("v_lshlrev_b32 v16, 2, v16")
    a(f"v_and_b32 v17, 15, v{vLANE}")
    a(f"v_cmp_le_u32 vcc, s{sKVt}, v17")
    a(f"v_add_u32 v17, s{sKVb}, v17")
    a("s_nop 0")
    a("v_addc_co_u32 v17, vcc, 0, v17, vcc")
    a("v_and_b32 v17, 15, v17")
    a("v_lshlrev_b32 v17, 2, v17")
    a("s_lshr_b32 s36, s2, 3")
    a("s_lshl_b32 s36, s36, 2")
    a(f"s_add_u32 s36, s36, s{sW}")
    a("s_lshl_b32 s36, s36, 12")
    a(f"s_add_u32 s36, s36, {24*65536}")
    a(f"v_and_b32 v15, 15, v{vLANE}")
    a("v_lshlrev_b32 v15, 7, v15")
    a("v_add_u32 v15, s36, v15")
    a(f"s_add_u32 s36, s{sOrow}, {OB_OFF}")
    a(f"s_add_u32 s{sOg}, s54, s36")
    a(f"s_addc_u32 s{sOg+1}, s55, 0")

def wob_dma(i, tag):
    return [[f"s_mov_b32 s39, {i*65536}"], [f"s_add_u32 m0, s{sWv}, {i*4096}"],
            [(f"buffer_load_dwordx4 v{vWo_g}, s[{sWoB}:{sWoB+3}], s39 offen lds", tag)]]

def attention(a):
    o = a.opts
    a("L_ATT0:")
    for s in rdK(0, 0) + rdV(0, 0, 0): a(s)
    for s in kv_advance(1): a(s)
    for q in range(2):
        for i in range(4): a(f"v_accvgpr_write_b32 a{aL[q]+i}, 0")
    a(f"s_cmp_lg_u32 s{sPASS}, 0")
    a("s_cbranch_scc1 L_ATT1")
    ps = L(); p4_setup(ps)
    ps_s = [x for x in ps if x.startswith("s_") and "s4," not in x.split()[1] and not any(x.split()[1].startswith(f"s{i},") for i in (4, 5, 6, 7))]
    ps_x = []
    rest = [x for x in ps if x not in ps_x]
    n1 = 22
    for s in rest[:n1]: a(s)
    a("s_waitcnt lgkmcnt(0)")
    for q in range(2): a(mf32(vr(S[q], 16), ar(aK, 4), vr(QA[q], 4), 0))
    for q in range(2): a(mf32(vr(S[q], 16), ar(aK+4, 4), vr(QA[q]+4, 4), vr(S[q], 16)))
    padfill(a, rest[n1:n1+26], 11)
    for q in range(2):
        s, m = S[q], 19 + q
        a(f"v_max3_f32 v{m}, v{s}, v{s+1}, v{s+2}")
        for i in range(3, 15, 2): a(f"v_max3_f32 v{m}, v{m}, v{s+i}, v{s+i+1}")
        a(f"v_max_f32 v{m}, v{m}, v{s+15}")
    for q in range(2): a(f"v_mov_b32 v{21+q}, v{19+q}")
    a("s_nop 0")
    for q in range(2): a(f"v_permlane32_swap_b32 v{19+q}, v{21+q}")
    for q in range(2): a(f"v_max_f32 v{19+q}, v{19+q}, v{21+q}")
    for i in range(16): a(f"v_sub_f32 v{NM[0]+i}, 0, v19")
    for s in rest[n1+26:n1+28]: a(s)
    a(mf32(vr(S[0], 16), ar(aK, 4), vr(QA[0], 4), vr(NM[0], 16)))
    a(mf32(vr(S[0], 16), ar(aK+4, 4), vr(QA[0]+4, 4), vr(S[0], 16)))
    for i in range(16): a(f"v_sub_f32 v{NM[1]+i}, 0, v20")
    for s in rest[n1+28:]: a(s)
    a("v_mov_b32 v18, 0")
    a(f"s_add_u32 s36, s28, {F_H}")
    a.emit(a.wait(["halo"]))
    for s in flag_store(36, 20, "fH"): a.emit(s)
    a("s_branch L_ATT2")
    a("L_ATT1:")
    a("s_waitcnt lgkmcnt(0)")
    a(mf32(vr(S[0], 16), ar(aK, 4), vr(QA[0], 4), vr(NM[0], 16)))
    a(mf32(vr(S[0], 16), ar(aK+4, 4), vr(QA[0]+4, 4), vr(S[0], 16)))
    a("s_nop 11")
    a("L_ATT2:")
    a.stamp("att0")
    pk = [(f"buffer_load_dword v21, v17, {WS}, s31 offen sc1", "pKV")]
    ks = o.get("pk_slot", 0)
    def c1_start():
        poll_check(a, "L_PKV", 21, 17, 31, "pKV", mask=1)
        a.stamp("pKV")
        for g in range(2):
            for k_, s in enumerate(kv_dma(1, g, f"c1{'ab'[g]}")):
                a.emit(s)
                if k_ == 0: a("s_nop 0")
            if g == 0: a.emit((f"buffer_load_dword v21, v17, {WS}, s31 offen sc1", "pKV2"))
        for s in kv_advance(2): a(s)
    sl = [[] for _ in range(21)]; sl[ks] = pk
    tile(a, 0, sl[0:7]); tile(a, 1, sl[7:14])
    a.stamp("t01")
    if ks < 14: c1_start()
    tile(a, 2, sl[14:21])
    a.stamp("t2")
    if ks >= 14: c1_start()
    a(f"s_cmp_lg_u32 s{sPASS}, 0")
    a("s_cbranch_scc1 L_A4")
    gate_compute(a)
    a("s_branch L_A5")
    a("L_A4:")
    a("s_waitcnt vmcnt(0)")
    a("L_A5:")
    a.emit(a.wait(["c1a"], lgkm=True))
    a("s_barrier")
    a.pkv2 = True
    a.stamp("c1")
    wob = [i for i in range(24)]
    obl = [i for i in range(64)]
    if o.get('noside'): wob = wob[:1]; obl = obl[:1]
    ob_start = o.get("ob_start", 7)
    obase = False
    for c in range(15):
        V = []; A = []
        side = []
        if c + 2 <= 15:
            d0, d1 = kv_dma(c % 2, 0, f"c{c+2}"), kv_dma(c % 2, 1, f"c{c+2}")
            kvs = [[x] for x in d0] + [[x] for x in d1] + ([[x] for x in kv_advance(c + 3)] if c + 3 <= 15 else [])
        else:
            kvs = []
        oth = []
        if c == 0:
            oth += [[(f"buffer_load_dword v21, v17, {WS}, s31 offen sc1", "pKV3")], [], [], [(f"buffer_load_dword v22, v18, {WS}, s33 offen sc1", "pH")]]
        if c == 3:
            oth += [[f"s_lshl_b32 s38, s{sSeq}, 7"], [f"s_lshl_b32 s39, s{sHead}, 2"], ["s_add_u32 s38, s38, s39"],
                    [f"s_add_u32 s35, s38, {F_OB}"], flag_store(35, 20, "fOB")]
        if c == ob_start - 2:
            oth += [[f"s_add_u32 s47, s29, {F_OB}"], [(f"buffer_load_dword v21, v16, {WS}, s47 offen sc1", "pOB")]]
        if c == o.get("cpf2", 11) or (o.get("cpfn") and c % o["cpfn"] == 2):
            oth += [[(f"buffer_load_dword v{vPFd}, v{vT[7]}, s[{sCode}:{sCode+3}], 0 offen", "cpf")]]
        nslots = 4*7 - 1 - (c == 0)
        if c >= ob_start:
            for _ in range(min(len(obl), o.get("ob_per", 10))):
                i = obl.pop(0)
                oth.append([(f"global_load_dwordx4 {oreg(i)}, v{vL16b if (i & 4) else vL16}, s[{sOg}:{sOg+1}] offset:{(i % 4)*1024} sc1", "obl")])
                if i % 8 == 7:
                    oth += [[f"s_add_u32 s{sOg}, s{sOg}, 8192"], [f"s_addc_u32 s{sOg+1}, s{sOg+1}, 0"]]
        wl = o.get("wol2", 6)
        if wl <= c < wl + 8:
            oth.append([(f"global_load_dword v{vPFd}, v0, s[{sPWoA}:{sPWoA+1}] offset:{((c - wl) & 1)*2048}", "wopf")] + (["v_add_u32 v0, 4096, v0"] if (c - wl) & 1 else []))
        wb0 = 11 if o.get("wbtail", 1) else 13
        if c in (wb0, wb0 + 1) and o.get("wbl2", 1):
            oth.append([(f"global_load_dword v{vPFd}, v15, s[{sPWoB}:{sPWoB+1}] offset:{(c - wb0)*2048}", "wopf")])
        if c == 14 and o.get("wbtail", 1): wob += list(range(24, 32))
        while wob and (len(kvs) + len(oth) + 3 <= nslots or c == 14):
            i_ = wob.pop(0)
            oth += wob_dma(i_, f"wo{i_//8}")
        side = kvs + oth
        while len(side) > nslots:
            for k in range(len(side) - 1):
                if all(isinstance(x, str) and x.startswith("s_") and "m0" not in x for x in side[k]):
                    side[k+1] = side[k] + side[k+1]; side.pop(k); break
            else:
                raise Exception("slots")
        n = len(side)
        nv = sum(isinstance(x, tuple) for g in side for x in g)
        if n < nslots and nv >= o.get("spread", 1):
            sp = [[] for _ in range(nslots)]
            for k, g in enumerate(side): sp[k*nslots//n] = g
            side = sp
        if c == 0:
            poll_check(a, "L_PKV2", 21, 17, 31, "pKV2", mask=2)
        if c == 1:
            poll_check(a, "L_PKV3", 21, 17, 31, "pKV3", mask=0xffff)
            poll_check(a, "L_PH", 22, 18, 33, "pH")
            a(f"s_sub_u32 s38, s{sHalo}, 4096")
            a(f"s_cmp_eq_u32 s{sSeq}, 0")
            a(f"s_cselect_b32 s38, {OOB}, s38")
            a.emit((f"buffer_load_dwordx4 {vr(HK, 4)}, v{vL16}, {WS}, s38 offen sc1", "hl"))
            a.emit((f"buffer_load_dwordx4 {vr(HK+4, 4)}, v{vL16}, {WS}, s38 offen offset:1024 sc1", "hl"))
            a.emit((f"buffer_load_dwordx4 {vr(HV, 4)}, v{vL16}, {WS}, s38 offen offset:2048 sc1", "hl"))
        if c == 2:
            a(f"s_cmp_lg_u32 s{sPASS}, 0")
            a("s_cbranch_scc1 L_LOC0X")
            a(f"s_cmp_eq_u32 s{sSeq}, 0")
            a("s_cbranch_scc0 L_MASKOK")
            for i in range(8): a(f"v_mov_b32 v{vMc+16+i}, {NEGBIG}")
            a("L_MASKOK:")
            for s in a.ob1: a.emit(s)
            st = local_tile(a, pQB[0], pKB[0], pVB[0], HK, HV, 96, 112, 208, 168, 236, 23, 0, "ob0")
            for x in pko(208): a(x)
            a.emit((st[0][0].format("v[208:211]"), "ob0")); a.emit((st[1][0].format("v[212:215]"), "ob0"))
            a("L_LOC0X:")
            a.stamp("loc0")
        if c == ob_start - 1:
            poll_check(a, "L_POB", 21, 16, 47, "pOB")
        tile(a, 4*c + 3, side)
        tile(a, 4*c + 4, side, end_b=[a.wait(["c1b"]), "s_barrier"] if c == 0 else None)
        tile(a, 4*c + 5, side)
        tile(a, 4*c + 6, side, end_b=[a.wait([f"c{c+2}"], lgkm=True) if c + 2 <= 15 else a.wait(["wo0", "obl"], lgkm=True), "s_barrier"])
        assert not side
        if c in (4, 9): a.stamp(f"c{c}")
        if c == 7:
            for _ in range(o.get("idle_att", 0)): a("s_nop 15")
    assert not wob and not obl, (wob, obl)
    r0 = p4_reads(0) + p4_reads(1)
    tile(a, 63, [r0[0:2], r0[2:4], r0[4:6], r0[6:8], r0[8:10], r0[10:13], r0[13:16]])
    a(f"s_add_u32 s36, s{sOst}, {OA_OFF}")
    a(f"s_add_u32 s37, s{sOst}, {OA_OFF + 65536}")
    a(mf32(ar(aO[1], 16), ar(aV[1], 4), vr(P[1], 4), ar(aO[1], 16)))
    a(smf(1))
    a(mf32(ar(aO[1], 16), ar(aV[1]+4, 4), vr(P[1]+4, 4), ar(aO[1], 16)))
    a.stamp("attend")
    F = L()
    F(f"v_accvgpr_read_b32 v19, a{aL[0]}")
    F(f"v_accvgpr_read_b32 v21, a{aL[0]+1}")
    for i in range(16): F(f"v_accvgpr_read_b32 v{S[0]+i}, a{aO[0]+i}")
    F("v_add_f32 v19, v19, v21")
    F(f"v_accvgpr_read_b32 v20, a{aL[1]}")
    F("v_rcp_f32 v23, v19")
    F(f"v_accvgpr_read_b32 v21, a{aL[1]+1}")
    F("v_add_f32 v20, v20, v21")
    for i in range(16): F(f"v_mul_f32 v{S[0]+i}, v{S[0]+i}, v23")
    F += pko(S[0])
    F("v_rcp_f32 v24, v20")
    F((f"buffer_store_dwordx4 {vr(S[0], 4)}, v{vL16}, {WS}, s36 offen sc1", "oa"))
    F((f"buffer_store_dwordx4 {vr(S[0]+4, 4)}, v{vL16}, {WS}, s36 offen offset:1024 sc1", "oa"))
    for i in range(16): F(f"v_accvgpr_read_b32 v{S[1]+i}, a{aO[1]+i}")
    for i in range(16): F(f"v_mul_f32 v{S[1]+i}, v{S[1]+i}, v24")
    F += pko(S[1])
    F(f"s_mov_b32 s36, {f2u(2.0**64)}")
    F((f"buffer_store_dwordx4 {vr(S[1], 4)}, v{vL16}, {WS}, s37 offen sc1", "oa"))
    F((f"buffer_store_dwordx4 {vr(S[1]+4, 4)}, v{vL16}, {WS}, s37 offen offset:1024 sc1", "oa"))
    F("v_mov_b32 v21, 0")
    for q in range(2):
        for j in range(8): F(f"v_dot2_f32_bf16 v{19+q}, v{S[q]+j}, v21, v{19+q}")
    F("s_nop 2")
    F("v_cmp_nge_f32 s[64:65], s36, v19" if not o.get("stamp") else "v_cmp_nge_f32 s[56:57], s36, v19")
    F("v_cmp_nge_f32 vcc, s36, v20")
    F(f"s_lshl_b32 s37, s{sW}, 2")
    F(f"s_add_u32 s37, s37, {XCH}")
    F("v_mov_b32 v22, s37")
    F("s_nop 1")
    F("s_or_b64 vcc, vcc, s[64:65]" if not o.get("stamp") else "s_or_b64 vcc, vcc, s[56:57]")
    if o.get("force_fallback"): F("s_mov_b64 vcc, -1")
    F(f"s_cmp_lg_u64 vcc, 0\ns_cselect_b32 s36, 1, 0\ns_andn2_b32 s36, s36, s{sPASS}")
    F("v_mov_b32 v21, s36")
    F("ds_write_b32 v22, v21")
    F(f"v_mov_b32 v22, {XCH}")
    a.fin = F
    b = Asm()
    b("L_FALLBACK:")
    b(f"s_mov_b32 s{sPASS}, 1")
    b(f"s_mov_b32 s25, {OOB}")
    b(f"s_mov_b32 s26, {OOB}")
    b(f"v_mov_b32 v19, {NEGBIG}")
    b(f"v_mov_b32 v20, {NEGBIG}")
    b(f"s_lshl_b32 s38, s{sHP}, 19")
    b(f"s_lshl_b32 s39, s{sHH}, 14")
    b("s_add_u32 s38, s38, s39")
    b("s_mov_b32 s39, 0")
    b("L_FB:")
    b("s_and_b32 s36, s39, 3")
    b("s_lshl_b32 s36, s36, 12")
    b("s_lshr_b32 s37, s39, 2")
    b("s_lshl_b32 s37, s37, 15")
    b("s_add_u32 s36, s36, s37")
    b("s_add_u32 s36, s36, s38")
    b(f"buffer_load_dwordx4 {ar(aK, 4)}, v{vL16}, {WS}, s36 offen sc1")
    b(f"buffer_load_dwordx4 {ar(aK+4, 4)}, v{vL16}, {WS}, s36 offen offset:1024 sc1")
    b("s_waitcnt vmcnt(0)")
    for q in range(2): b(mf32(vr(S[q], 16), ar(aK, 4), vr(QA[q], 4), 0))
    for q in range(2): b(mf32(vr(S[q], 16), ar(aK+4, 4), vr(QA[q]+4, 4), vr(S[q], 16)))
    b("s_nop 11")
    for q in range(2):
        for i in range(0, 16, 2): b(f"v_max3_f32 v{19+q}, v{19+q}, v{S[q]+i}, v{S[q]+i+1}")
    b("s_add_u32 s39, s39, 1")
    b("s_cmp_lt_u32 s39, 64")
    b("s_cbranch_scc1 L_FB")
    neg_max(b)
    for s in sel_init(23, 24): b(s)
    b(f"s_lshl_b32 s36, s{sT}, 15")
    b(f"s_add_u32 s{sKVg}, s{sKVp}, s36")
    b(f"s_addc_u32 s{sKVg+1}, s{sKVp+1}, 0")
    b(f"s_add_u32 s36, s{sOrow}, {OB_OFF}")
    b(f"s_add_u32 s{sOg}, s54, s36")
    b(f"s_addc_u32 s{sOg+1}, s55, 0")
    b("v_add_u32 v0, -16384, v0")
    b("s_barrier")
    for g in range(2):
        for k_, s in enumerate(kv_dma(0, g, "")):
            b(s[0] if isinstance(s, tuple) else s)
            if k_ == 0: b("s_nop 0")
    b("s_waitcnt vmcnt(0)")
    b("s_barrier")
    b("s_branch L_ATT0")
    a.tail.append(b.text())

def fW4(G, nt, n=4, d=0):
    fs = G % 3
    return vr(32 + fs*16 + nt*4 + d, n) if fs < 2 else ar(nt*4 + d, n)
def p4_lds(g):
    return g*32768 if g < 4 else [131072, 0, 32768, 65536][g - 4]
def p4_reads(G):
    out = []
    base = p4_lds(G // 8)
    for nt in range(4):
        off = base % 65536 + (G % 8)*4096
        out.append(f"ds_read_b64_tr_b16 {fW4(G, nt, 2)}, v{vWo_r[nt]} offset:{off}")
        out.append(f"ds_read_b64_tr_b16 {fW4(G, nt, 2, 2)}, v{vWo_r[nt]} offset:{off+1024}")
    return out
def woa_dma(g, i):
    pos = (g - 4)*8 + i
    return [[f"s_add_u32 s39, s{sWooff}, {pos*65536}", "s_and_b32 s39, s39, 0x1fffff", f"s_add_u32 m0, s{sWv}, {p4_lds(g) + i*4096}"],
            [(f"buffer_load_dwordx4 v{vWo_g}, s[{sWoA}:{sWoA+3}], s39 offen lds", f"wo{g}")]]
def oa_load(i):
    out = [(f"global_load_dwordx4 {oreg(i)}, v{vL16b if (i & 4) else vL16}, s[{sOg}:{sOg+1}] offset:{(i % 4)*1024} sc1", f"oa{i}")]
    return out
def oa_next():
    return [f"s_add_u32 s{sOoff}, s{sOoff}, 8192", f"s_and_b32 s{sOoff}, s{sOoff}, 0xffff",
            f"s_add_u32 s{sOg}, s{sKVg}, s{sOoff}\ns_addc_u32 s{sOg+1}, s{sKVg+1}, 0"]

def phase4(a):
    o = a.opts
    flag_at = o.get("oaflag_gap", 40)
    poll_at = o.get("oapoll_gap", 84)
    chk_at = o.get("oachk_gap", 96)
    side = {}
    def put(k, l): side.setdefault(k, []).extend(l)
    F = list(a.fin)
    k = 0
    while F:
        n_ = 6 if len(F) > 5*(23 - k) - 5 else 5
        put(k, F[:n_]); F = F[n_:]; k += 1
    assert k <= 23, k
    put(37, [f"s_add_u32 s38, s{sOrow}, {OA_OFF}", f"s_add_u32 s{sKVg}, s54, s38\ns_addc_u32 s{sKVg+1}, s55, 0"])
    put(38, [f"s_add_u32 s{sOg}, s{sKVg}, s{sOoff}\ns_addc_u32 s{sOg+1}, s{sKVg+1}, 0"])
    pre = [f"s_lshl_b32 s38, s{sSeq}, 7",
           f"s_lshl_b32 s47, s{sHead}, 2", "s_add_u32 s38, s38, s47", f"s_add_u32 s35, s38, {F_OA}", f"s_add_u32 s47, s29, {F_OA}",
           f"s_lshl_b32 s36, s{sT4}, 9", f"s_lshl_b32 s37, s{sW}, 7", "s_add_u32 s36, s36, s37", f"s_add_u32 s36, s36, {G_OFF}",
           f"v_and_b32 v24, 60, v16",
           (f"buffer_load_dword v{vG2[0]}, v24, {WS}, s36 offen sc1", "gl"), (f"buffer_load_dword v{vG2[1]}, v24, {WS}, s36 offen offset:64 sc1", "gl")]
    put(24, ["ds_read_b128 v[20:23], v22"])
    for i, x in enumerate(pre): put(25 + i//2, [x])
    put(32, ["v_or_b32 v20, v20, v21", "v_or3_b32 v20, v20, v22, v23"])
    put(33, ["v_readfirstlane_b32 s38, v20"])
    put(35, ["s_cmp_lg_u32 s38, 0\ns_cbranch_scc1 L_FALLBACK"])
    assert flag_at > 35
    put(flag_at, [a.wait(["oa"])]); put(flag_at + 1, flag_store(35, 20, "fOA"))
    put(poll_at, [(f"buffer_load_dword v21, v16, {WS}, s47 offen sc1", "pOA")])
    put(130, [f"v_sub_f32 v{vOM[0]}, 1.0, v{vG2[0]}", f"v_sub_f32 v{vOM[1]}, 1.0, v{vG2[1]}"])
    put(131, [f"v_and_b32 v19, 15, v{vLANE}", f"v_lshrrev_b32 v20, 4, v{vLANE}"])
    put(132, ["v_lshlrev_b32 v20, 5, v20", "v_lshl_add_u32 v19, v19, 11, v20"])
    for i in range(32): put(134 + i//2, [f"v_mul_f32 v{ACC4[0][i//16] + i%16}, v{ACC4[0][i//16] + i%16}, v{vOM[i//16]}"])
    put(248, [f"s_lshl_b32 s36, s{sT4}, 18", f"s_lshl_b32 s37, s{sW}, 16"]); put(249, ["s_add_u32 s36, s36, s37", f"s_lshl_b32 s37, s{sC4}, 7"])
    put(250, ["s_add_u32 s36, s36, s37"]); put(251, ["s_add_u32 s37, s36, 32768"])
    a("s_waitcnt lgkmcnt(0)")
    lat = o.get("p4lat", 20)
    jobs = [] if o.get("wbtail", 1) else [[26, 32*2 + 23 - lat, "wb", i] for i in range(24, 32)]
    for g in range(4, 8):
        e = {4: 0, 5: 26, 6: 57, 7: 89}[g]
        jobs += [[{4: 57, 5: 57, 6: 89, 7: 121}[g] if i == 7 else e, 32*(g - 1) + 23 - lat, "wa", (g, i)] for i in range(8)]
    jobs += [[max(chk_at + 1, 2*i + 2), 128 + 4*(i//2) - lat, "oa", i] for i in range(64)]
    gap = o.get("p4gap", 2.0)
    t = float(o.get('wb_at', 19))
    quiet = range(poll_at - o.get("p4quiet", 4), poll_at + 1)
    while jobs:
        k = int(t)
        av = [j for j in jobs if j[0] <= k]
        if not av or k in quiet:
            t = k + 1; continue
        j = min(av, key=lambda j: j[1])
        jobs.remove(j)
        if j[2] == "wb":
            d = wob_dma(j[3], "wo3"); put(k - 1, d[0] + d[1]); put(k, d[2])
        elif j[2] == "wa":
            d = woa_dma(*j[3]); put(k - 1, d[0]); put(k, d[1])
        else:
            put(k, oa_load(j[3]))
            if j[3] % 8 == 7 and j[3] < 63: put(k + 1, oa_next())
        if k > j[1] + 8: print("p4 late", j, k)
        t += gap
    ds = []
    def lg(tags):
        k_ = max([i for i, t_ in enumerate(ds) if t_ in tags], default=-1)
        return min(len(ds) - 1 - k_, 15)
    for G in range(64):
        br = G // 32
        rd = p4_reads(G + 2) if G + 2 < 64 else []
        mv = []
        if G + 3 < 64:
            dlt = (p4_lds((G + 3)//8)//65536 - p4_lds((G + 2)//8)//65536)*65536
            if dlt: mv = [f"v_add_u32 v{vWo_r[nt]}, {dlt}, v{vWo_r[nt]}" for nt in range(4)]
        order = [(nt, mt) for nt in range(4) for mt in range(2)] if G < 63 else [(nt, mt) for mt in range(2) for nt in range(4)]
        for j in range(8):
            idx = 4*G + j//2
            nt, mt = order[j]
            d = vr(ACC4[br][mt] + nt*4, 4)
            a(mf16(d, fW4(G, nt), oreg((G % 32)*2 + mt), 0 if G % 32 == 0 else d))
            sd = side.get(idx, [])
            if j % 2 == 0:
                for s in [x for x in sd if isinstance(x, str) and x.startswith("ds_read")]:
                    a(s); ds.append("xr")
                sd = [x for x in sd if not (isinstance(x, str) and x.startswith("ds_read"))]
                now, side[idx] = sd[:len(sd)//2], sd[len(sd)//2:]
            else:
                now = side.pop(idx, [])
            if rd:
                a(rd[j]); ds.append(G + 2)
                if mv and j % 2 == 1: a(mv[j//2])
            for s in now:
                a.emit(s)
                if isinstance(s, str) and s.startswith("ds_write"): ds.append("xw")
            if j % 2 == 1:
                if idx == flag_at + 1: a.stamp("fOA")
                if idx == chk_at:
                    poll_check(a, "L_POA", 21, 16, 47, "pOA")
                    a.stamp("pOA")
        if G == 63: break
        w = ""
        need = []
        if G + 1 >= 32: need.append(f"oa{((G + 1) % 32)*2 + 1}")
        bar = G % 8 == 5 and G // 8 < 7
        if bar and f"wo{G//8 + 1}" in a.vm: need.append(f"wo{G//8 + 1}")
        if need: w += f" vmcnt({a.vmn(need)})"
        if G + 1 >= 2: w += f" lgkmcnt({lg([G + 1, 'xw'])})"
        if w: a("s_waitcnt" + w)
        if bar: a("s_barrier")
        if G == 31: a.stamp("p4B")
    assert not side, side.keys()
    a.stamp("p4A")
    a("s_nop 2")
    fl = ['', 'sc1', 'nt', 'sc0 sc1', 'sc1 nt'][o.get('outflag', 2)]
    for mt in range(2):
        B_, A_ = ACC4[0][mt], ACC4[1][mt]
        for i in range(16): a(f"v_fma_f32 v{B_+i}, v{A_+i}, v{vG2[mt]}, v{B_+i}")
        pack(a, B_)
        a("s_nop 0")
        for x, y in ((0, 4), (1, 5), (2, 6), (3, 7)): a(f"v_permlane32_swap_b32 v{B_+x}, v{B_+y}")
        a("s_nop 0")
        for x, y in ((0, 2), (1, 3), (4, 6), (5, 7)): a(f"v_permlane16_swap_b32 v{B_+x}, v{B_+y}")
        for k in range(2):
            a.emit((f"buffer_store_dwordx4 {vr(B_+4*k, 4)}, v19, s[{sOutD}:{sOutD+3}], s{36+mt} offen offset:{16*k} {fl}", "out"))

def gen(opts):
    a = G(opts); a.tail = []
    setup(a); gemm1(a); e1(a); attention(a); phase4(a)
    if opts.get("diag") is not None:
        a.stamp("end")
        a("s_nop 1")
        a(f"v_readlane_b32 s36, v{vSTAMP}, {32 + opts['diag']}")
        a("s_nop 3")
        a("s_add_u32 s36, s36, 10000")
        if opts.get("diagwg") is not None:
            a(f"s_cmp_lg_u32 s2, {opts['diagwg']}")
            a("s_cbranch_scc1 L_END")
        a("L_DIAG:")
        a("s_memrealtime s[38:39]")
        a("s_waitcnt lgkmcnt(0)")
        a("s_sub_u32 s38, s38, s36")
        a("s_cmp_lt_i32 s38, 0")
        a("s_cbranch_scc1 L_DIAG")
    elif opts.get("dbgstamp"):
        a.stamp("end")
        sel = ["karg", "first", "g7", "g15", "g23", "g31", "loc1", "pKV", "c1", "c9", "attend", "pOA", "p4B", "p4A", "end"]
        a(f"s_cmp_lg_u32 s2, {opts['dbgstamp']-1}")
        a("s_cbranch_scc1 L_DBGX")
        a(f"s_cmp_lg_u32 s{sW}, 0")
        a("s_cbranch_scc1 L_DBGX")
        a(f"v_readlane_b32 s36, v{vSTAMP}, 32")
        for i, nm in enumerate(sel):
            a(f"v_readlane_b32 s37, v{vSTAMP}, {32 + a.names.index(nm)}")
            a("s_nop 3")
            a("s_sub_u32 s37, s37, s36")
            a("v_mov_b32 v2, s37")
            a("v_mov_b32 v3, 0")
            a(f"global_store_dword v3, v2, s[{sPDbg}:{sPDbg+1}] offset:{4*(i+1)}")
        a("L_DBGX:")
    elif opts.get("stamp"):
        a.stamp("end")
        a("s_lshl_b32 s36, s2, 2")
        a(f"s_add_u32 s36, s36, s{sW}")
        a("s_lshl_b32 s36, s36, 8")
        a(f"s_add_u32 s36, s36, {STAMP_OFF}")
        a(f"v_lshlrev_b32 v2, 2, v{vLANE}")
        a(f"buffer_store_dword v{vSTAMP}, v2, {WS}, s36 offen")
    a("s_endpgm")
    for t in a.tail: a(t)
    head = f"""; gated mix of full MHA and dilated sliding-window attention: one fused kernel, 256 co-resident workgroups
; @launch grid=(256,1,1) block=(256,1,1) lds=163840
.amdgcn_target "amdgcn-amd-amdhsa--gfx950"
.text
.globl {KNAME}
.p2align 8
.type {KNAME},@function
{KNAME}:
"""
    tail = f"""L_END:
    s_endpgm
.section .rodata,"a"
.p2align 6
.amdhsa_kernel {KNAME}
  .amdhsa_next_free_vgpr 512
  .amdhsa_next_free_sgpr 102
  .amdhsa_accum_offset 256
  .amdhsa_group_segment_fixed_size 0
  .amdhsa_kernarg_size 80
  .amdhsa_user_sgpr_count 2
  .amdhsa_user_sgpr_kernarg_segment_ptr 1
  .amdhsa_system_sgpr_workgroup_id_x 1
.end_amdhsa_kernel
"""
    gen.names = a.names
    return head + a.text() + tail

if __name__ == "__main__":
    import hazard
    opts = {}
    for kv in sys.argv[2:]:
        k, v = kv.split("="); opts[k] = int(v)
    t = gen(opts)
    open(sys.argv[1], "w").write(t)
    print(len(hazard.check(t)), "hazards", gen.names)
```

```python
import sys, struct, math
from asmlib import *

KNAME = "gated_mix__softmax_full_mha__sliding_local_dilated__prompt_kernel"
def f2u(x): return struct.unpack("<I", struct.pack("<f", x))[0]
KV_OFF   = 0
OA_OFF   = 8 << 20
OB_OFF   = 12 << 20
HALO_OFF = 16 << 20
G_OFF    = 20 << 20
FLAG_OFF = 21 << 20
F_KV, F_H, F_OB, F_OA = FLAG_OFF, FLAG_OFF + 4096, FLAG_OFF + 8192, FLAG_OFF + 12288
STAMP_OFF = 0x8000000
OOB = 0x80000000
CSCALE = f2u(math.log2(math.e) / math.sqrt(32.0))
NEGBIG = f2u(-1e30)
X_SLOT = 16384; W_BASE = 49152; W_SLOT = 24576
KV_LDS = [98304, 131072]
XCH = 163840 - 16
sX, sWA, sWB, sWS = 4, 8, 12, 16
sW, sHP, sT, sRH, sHH = 20, 21, 22, 23, 24
sWoff, sXoff = 25, 26
sXw, sWv = 30, 34
sPF, sPFoff, sPFstr, sPFlim = 40, 44, 45, 46
sNONCE, sCS = 60, 61
sSTAMPI = 68
sPWoA, sPWoB, sPG, sPOut, sPDbg = 70, 72, 74, 76, 78
sKVsrc, sKVbase, sKVt, sKVdst = 80, 81, 82, 27
sPASS, sOst, sSpin = 83, 86, 87
sT4, sC4, sOoff, sWooff, sObase = 88, 89, 90, 91, 92
sHalo, sSeq, sO, sOrow, sHead = 93, 94, 95, 96, 97
sWoA, sWoB, sOutD = 4, 8, 12
sCode = 48
vLANE = 1
vXr = [2, 3]; vWr = [[4, 5], [10, 11]]; vWg = [12, 13, 14]; vXg = [15, 16, 17, 18]
vT = [19, 20, 21, 22, 23, 24, 25, 26]
vPF, vPFd, vL16, vSTAMP, vF0 = 27, 28, 29, 30, 31
vMc = 32
ACC0 = 64
def acc(blk, rt): return ACC0 + (blk*2 + rt)*16
QA = [64, 80]; KA = [96, 112]; VA = [128, 144]; QB = [160, 176]; KB = [192, 208]; VB = [224, 240]
NM = [128, 144]; S = [176, 240]; P = [72, 88]
vKV = [6, 7]
vWo_g = 2; vWo_r = [3, 4, 10, 11]; vG2 = [12, 13]; vOM = [14, 8]
vGate, vGrow = 14, 8
HK = 200; HV = 232
def fX(s, rt): return s*32 + rt*4
def fW(s, blk): return s*32 + 8 + blk*4
aK, aV = 0, [8, 16]
aO = [32, 48]; aL = [64, 68]; aONE = 112
aGATE = 80
aX = [0, 16]; aW = [32, 56]; vKS, vKL = 56, 57
aSEL = 72; vIDX = 9
OV = list(range(96, 128, 4)) + list(range(160, 176, 4)) + list(range(192, 240, 4))
def oreg(i): return ar(76 + 4*i, 4) if i < 45 else vr(OV[i - 45], 4)
ACC4 = [[128, 144], [64, 80]]
pKA = [96, 112]; pVA = [104, 120]; pQB = [160, 168]; pKB = [192, 208]; pVB = [224, 216]

def mf32(d, A, B, C): return f"v_mfma_f32_32x32x16_bf16 {d}, {A}, {B}, {C}"
def mf16(d, A, B, C): return f"v_mfma_f32_16x16x32_bf16 {d}, {A}, {B}, {C}"
WS = f"s[{sWS}:{sWS+3}]"

class G(Asm):
    def __init__(self, opts):
        super().__init__()
        self.opts = opts
        self.vm = []
        self.nstamp = 0
        self.names = []
    def emit(self, x):
        if callable(x): x = x()
        if x is None: return
        if isinstance(x, tuple):
            self(x[0]); self.vm.append(x[1])
        else:
            assert not (x.lstrip().startswith(("buffer_", "global_"))), x
            self(x)
    def vmn(self, tags):
        idx = [i for i, t in enumerate(self.vm) if t in tags]
        assert idx, tags
        n = len(self.vm) - 1 - max(idx)
        return min(n, 63)
    def wait(self, tags, lgkm=False):
        return lambda: f"s_waitcnt vmcnt({self.vmn(tags)})" + (" lgkmcnt(0)" if lgkm else "")
    def stamp(self, name):
        if not self.opts.get("stamp"): return
        if self.opts["stamp"] == 2 and name not in ("start", "g31", "c1", "attend", "end", "gP", "c4"): return
        self.names.append(name)
        a = self
        a("s_memtime s[66:67]")
        a("s_memrealtime s[64:65]")
        a("s_waitcnt lgkmcnt(0)")
        a(f"v_writelane_b32 v{vSTAMP}, s66, {self.nstamp}")
        a(f"v_writelane_b32 v{vSTAMP}, s64, {self.nstamp + 32}")
        self.nstamp += 1
        assert self.nstamp <= 32
    def inter(self, mains, sides):
        for i, m in enumerate(mains):
            if m is not None: self.emit(m)
            for s in sides.get(i, []): self.emit(s)

def srd(a, s, lo, hi, nbytes):
    a(f"s_mov_b32 s{s}, s{lo}")
    a(f"s_and_b32 s{s+1}, s{hi}, 0xffff")
    a(f"s_mov_b32 s{s+2}, {nbytes}")
    a(f"s_mov_b32 s{s+3}, 0x20000")

def pf_round(a):
    return [(f"buffer_load_dword v{vPFd}, v{vPF}, s[{sPF}:{sPF+3}], s{sPFoff} offen{' nt' if a.opts.get('pfnt') else ''}", "pf"),
            f"s_add_u32 s{sPFoff}, s{sPFoff}, s{sPFstr}"]

class P1:
    def __init__(self, a):
        self.a = a; self.wnext = [0]*6; self.xnext = [0]*4
    def dma(self, piece):
        kind, j, p = piece
        if kind == "W":
            assert self.wnext[p] == j and (p < 3 or self.wnext[p - 3] == j + 1) and (p >= 3 or self.wnext[p + 3] == j)
            self.wnext[p] += 1
            s = sWA if p < 3 else sWB
            return ([f"s_add_u32 m0, s{sWv}, {W_BASE + (j % 4)*W_SLOT + p*4096}"],
                    (f"global_load_lds_dwordx4 v{vWg[p % 3]}, s[{s}:{s+1}] {['', 'sc1', 'sc0', 'sc0 sc1'][self.a.opts.get('dmafl', 0)]}", f"W{j}"),
                    [f"v_add_u32 v{vWg[p % 3]}, 196608, v{vWg[p % 3]}"] if p >= 3 else [])
        assert self.xnext[p] == j
        self.xnext[p] += 1
        return ([f"s_add_u32 m0, s{sXw}, {(j % 3)*X_SLOT + p*1024}"],
                (f"global_load_lds_dwordx4 v{vXg[p]}, s[{sX}:{sX+1}] {['', 'sc1', 'sc0', 'sc0 sc1'][self.a.opts.get('dmafl', 0)]}", f"X{j}"),
                [f"v_add_u32 v{vXg[p]}, 128, v{vXg[p]}"])

def x_reads(xs, u):
    return [f"ds_read_b128 {ar(aX[xs] + mt*4, 4)}, v{vXr[u & 1]} offset:{((u >> 1) % 3)*X_SLOT + mt*2048}" for mt in range(4)]
def w_reads(ws_, u, blks):
    out = []
    sl = u % 4
    for i, blk in enumerate(blks):
        for nt in range(2):
            off = (sl % 2)*W_SLOT + blk*4096
            r = aW[ws_] + (i*2 + nt)*4
            out.append(f"ds_read_b64_tr_b16 {ar(r, 2)}, v{vWr[sl//2][nt]} offset:{off}")
            out.append(f"ds_read_b64_tr_b16 {ar(r + 2, 2)}, v{vWr[sl//2][nt]} offset:{off+512}")
    return out
def g1_mfmas(xs, ws_, blks, mts=(0, 1, 2, 3), mt_outer=False):
    out = {}
    for i, blk in enumerate(blks):
        for nt in range(2):
            for mt in mts:
                w, x = ar(aW[ws_] + (i*2 + nt)*4, 4), ar(aX[xs] + mt*4, 4)
                if blk % 3 == 2:
                    d = vr(acc(blk, mt >> 1) + ((mt & 1)*2 + nt)*4, 4); out[(i, nt, mt)] = mf16(d, x, w, d)
                else:
                    d = vr(acc(blk, mt >> 1) + (nt*2 + (mt & 1))*4, 4); out[(i, nt, mt)] = mf16(d, w, x, d)
    return out

def setup(a):
    o = a.opts
    a("L_START:")
    a("s_cmp_ge_u32 s2, 256")
    a("s_cbranch_scc1 L_END")
    if o.get("xorid"): a(f"s_xor_b32 s2, s2, {o['xorid']}")
    if o.get("mulid"): a(f"s_mul_i32 s2, s2, {o['mulid']}\ns_and_b32 s2, s2, 255")
    a.stamp("start")
    a("s_load_dwordx4 s[48:51], s[0:1], 0")
    a("s_load_dwordx2 s[52:53], s[0:1], 32")
    a("s_load_dwordx2 s[54:55], s[0:1], 72")
    a(f"s_load_dwordx2 s[{sPWoA}:{sPWoA+1}], s[0:1], 16")
    a(f"s_load_dwordx4 s[{sPWoB}:{sPWoB+3}], s[0:1], 40")
    a(f"s_load_dwordx4 s[{sPOut}:{sPOut+3}], s[0:1], 56")
    if o.get("cpf0", 1):
        n = o.get('codelines', 20)
        a("s_getpc_b64 s[56:57]")
        a("L_PC0:")
        a("s_lshr_b32 s35, s2, 3")
        a(f"s_mul_i32 s35, s35, {n}")
        a(f"v_min_u32 v2, {n-1}, v0")
        a("v_add_u32 v2, s35, v2")
        a("v_lshlrev_b32 v2, 7, v2")
        a("v_min_u32 v2, L_END - L_PC0, v2")
        a.emit((f"global_load_dword v{vPFd}, v2, s[56:57]", "cpf"))
    a(f"v_and_b32 v{vLANE}, 63, v0")
    a(f"v_lshrrev_b32 v{vT[0]}, 6, v0")
    a("s_and_b32 s3, s2, 7")
    a(f"v_readfirstlane_b32 s{sW}, v{vT[0]}")
    a("s_lshr_b32 s35, s2, 3")
    a("s_and_b32 s37, s3, 3")
    a("s_lshl_b32 s36, s37, 2")
    a("s_and_b32 s38, s35, 3")
    a(f"s_add_u32 s{sHP}, s36, s38")
    a("s_lshr_b32 s39, s3, 2")
    a("s_lshl_b32 s36, s39, 3")
    a("s_lshr_b32 s38, s35, 2")
    a(f"s_add_u32 s{sT}, s36, s38")
    a(f"s_and_b32 s{sRH}, s{sW}, 1")
    a(f"s_lshr_b32 s{sHH}, s{sW}, 1")
    t0, t1, t2 = vT[0], vT[1], vT[2]
    if o.get("pfx"):
        a("s_lshl_b32 s38, s35, 5")
    else:
        a("s_lshl_b32 s38, s37, 5")
        a("s_add_u32 s38, s38, s35")
        a("s_lshl_b32 s38, s38, 3")
    a("s_lshl_b32 s47, s39, 10")
    a("s_add_u32 s38, s38, s47")
    a(f"v_add_u32 v{t0}, s38, v{vLANE}")
    a(f"v_lshlrev_b32 v{t0}, 11, v{t0}")
    if o.get("pfmode", 0) == 0:
        a("s_lshl_b32 s39, s39, 5")
        a("s_add_u32 s39, s39, s35")
        a("s_mul_i32 s39, s39, 6144")
        a("s_lshl_b32 s38, s37, 9")
        a("s_add_u32 s39, s39, s38")
        a(f"v_lshrrev_b32 v{t1}, 2, v{vLANE}")
        a(f"v_lshlrev_b32 v{t1}, 11, v{t1}")
        a(f"v_and_b32 v{t2}, 3, v{vLANE}")
        a(f"v_lshlrev_b32 v{t2}, 7, v{t2}")
        a(f"v_add3_u32 v{t1}, v{t1}, v{t2}, s39")
        if o.get("pf3", 1):
            a("s_lshr_b32 s47, s3, 2")
            a("s_xor_b32 s47, s47, 1")
            a("s_lshl_b32 s47, s47, 5")
            a("s_add_u32 s47, s47, s35")
            a("s_mul_i32 s47, s47, 6144")
            a("s_add_u32 s47, s47, s38")
            a(f"s_add_u32 s47, s47, {384 - 12*2048}")
            a(f"v_lshlrev_b32 v{t2}, 11, v{vLANE}")
            a(f"v_add_u32 v{t2}, s47, v{t2}")
            a(f"v_cmp_lt_u32 vcc, 11, v{vLANE}")
            a("s_nop 1")
            a(f"v_cndmask_b32 v{t1}, v{t1}, v{t2}, vcc")
    elif o.get("pfmode", 0) == 2:
        a("s_mul_i32 s39, s35, 12288")
        a("s_lshl_b32 s38, s37, 9")
        a("s_add_u32 s39, s39, s38")
        a(f"v_lshrrev_b32 v{t1}, 2, v{vLANE}")
        a(f"v_lshlrev_b32 v{t1}, 11, v{t1}")
        a(f"v_and_b32 v{t2}, 3, v{vLANE}")
        a(f"v_lshlrev_b32 v{t2}, 7, v{t2}")
        a(f"v_add3_u32 v{t1}, v{t1}, v{t2}, s39")
    else:
        a("s_mul_i32 s39, s2, 1536")
        a(f"v_lshlrev_b32 v{t1}, 7, v{vLANE}")
        a(f"v_add_u32 v{t1}, s39, v{t1}")
    a(f"s_mul_i32 s47, s35, {o.get('codelines', 20)}")
    a(f"v_add_u32 v{t2}, s47, v{vLANE}")
    a(f"v_lshlrev_b32 v{vT[7]}, 7, v{t2}")
    a(f"s_mov_b32 s{sPFstr}, 128")
    a(f"s_cmp_eq_u32 s{sW}, 0")
    a(f"s_cselect_b32 s{sPFstr}, s{sPFstr}, {64*6144}")
    a(f"s_cselect_b32 s38, {32 if o.get('pfx') else 8}, {24 if o.get('pfmode', 0) == 2 else (15 if o.get('pf3', 1) else 12)}")
    a("s_cselect_b64 s[56:57], -1, 0")
    a(f"v_cndmask_b32 v{vPF}, v{t1}, v{t0}, s[56:57]")
    a(f"s_cmp_eq_u32 s{sW}, 3")
    a("s_cselect_b64 s[56:57], -1, 0")
    a(f"v_cndmask_b32 v{vPF}, v{vPF}, v{vT[7]}, s[56:57]")
    a(f"s_cselect_b32 s38, {o.get('codelines', 20)}, s38")
    a(f"s_cselect_b32 s{sPFstr}, 0x4000000, s{sPFstr}")
    a(f"v_cmp_gt_u32 vcc, s38, v{vLANE}")
    a(f"v_mov_b32 v{t2}, {OOB}")
    a(f"s_mov_b32 s{sPFoff}, 0")
    a(f"v_cndmask_b32 v{vPF}, v{t2}, v{vPF}, vcc")
    a(f"v_cmp_gt_u32 vcc, {o.get('codelines', 20)}, v{vLANE}")
    a("s_getpc_b64 s[58:59]")
    a("L_PC:")
    a("s_sub_u32 s58, s58, L_PC - L_START")
    a(f"v_cndmask_b32 v{vT[7]}, v{t2}, v{vT[7]}, vcc")
    a("s_subb_u32 s59, s59, 0")
    r, c, t0, t1 = vT[0], vT[1], vT[2], vT[3]
    a(f"v_lshrrev_b32 v{r}, 3, v{vLANE}")
    a(f"v_and_b32 v{c}, 7, v{vLANE}")
    a(f"v_and_b32 v{t0}, 2, v{r}")
    a(f"s_lshl_b32 s36, s{sRH}, 2")
    a(f"v_xor_b32 v{t0}, v{t0}, v{c}")
    a(f"v_xor_b32 v{t0}, s36, v{t0}")
    a(f"v_lshlrev_b32 v{t0}, 4, v{t0}")
    a(f"v_mul_u32_u24 v{t1}, 6144, v{r}")
    a(f"v_add_u32 v{t0}, v{t0}, v{t1}")
    a(f"s_mul_i32 s36, s{sW}, {8*6144}")
    a(f"s_lshl_b32 s37, s{sHP}, 7")
    a("s_add_u32 s36, s36, s37")
    a(f"v_add_u32 v{vWg[0]}, s36, v{t0}")
    a(f"v_add_u32 v{vWg[1]}, 2048, v{vWg[0]}")
    a(f"v_add_u32 v{vWg[2]}, 4096, v{vWg[0]}")
    a(f"v_lshrrev_b32 v{t0}, 1, v{r}")
    a(f"v_xor_b32 v{t0}, v{t0}, v{c}")
    a(f"v_lshlrev_b32 v{t0}, 4, v{t0}")
    a(f"v_lshlrev_b32 v{t1}, 11, v{r}")
    a(f"v_add_u32 v{t0}, v{t0}, v{t1}")
    a(f"s_lshl_b32 s36, s{sT}, 7")
    a(f"s_lshl_b32 s37, s{sW}, 5")
    a("s_add_u32 s36, s36, s37")
    a("s_lshl_b32 s36, s36, 11")
    a(f"v_add_u32 v{vXg[0]}, s36, v{t0}")
    a(f"v_xor_b32 v{vXg[1]}, 64, v{vXg[0]}")
    a(f"v_add_u32 v{vXg[1]}, {8*2048}, v{vXg[1]}")
    a(f"v_add_u32 v{vXg[2]}, {16*2048}, v{vXg[0]}")
    a(f"v_add_u32 v{vXg[3]}, {16*2048}, v{vXg[1]}")
    a(f"s_lshl_b32 s{sWv}, s{sW}, 10")
    a(f"s_lshl_b32 s{sXw}, s{sW}, 12")
    a("s_waitcnt lgkmcnt(0)")
    a.stamp("karg")
    a(f"s_mov_b32 s{sPF+2}, {1024*3072*2}")
    a(f"s_cmp_eq_u32 s{sW}, 0")
    a(f"s_cselect_b32 s{sPF}, s48, s50")
    a(f"s_cselect_b32 s{sPF+1}, s49, s51")
    a(f"s_cselect_b32 s{sPF+2}, {2048*1024*2}, s{sPF+2}")
    a(f"s_cmp_eq_u32 s{sW}, 2")
    a(f"s_cselect_b32 s{sPF}, s52, s{sPF}")
    a(f"s_cselect_b32 s{sPF+1}, s53, s{sPF+1}")
    a(f"s_cmp_eq_u32 s{sW}, 3")
    a(f"s_cselect_b32 s{sPF}, s58, s{sPF}")
    a(f"s_cselect_b32 s{sPF+1}, s59, s{sPF+1}")
    a(f"s_cselect_b32 s{sPF+2}, L_END - L_START, s{sPF+2}")
    a(f"s_and_b32 s{sPF+1}, s{sPF+1}, 0xffff")
    a(f"s_mov_b32 s{sPF+3}, 0x20000")
    for i in range(o.get("pf0", 2)):
        for s in pf_round(a): a.emit(s)
    srd(a, sX, 48, 49, 2048*1024*2)
    srd(a, sWA, 50, 51, 1024*3072*2)
    srd(a, sWB, 52, 53, 1024*3072*2)

def fillers_prologue(a):
    L = []
    f = L.append
    f("s_mov_b32 s16, s54"); f("s_and_b32 s17, s55, 0xffff"); f("s_mov_b32 s18, 0x10000000"); f("s_mov_b32 s19, 0x20000")
    f(f"s_mov_b32 s{sCode}, s58"); f(f"s_and_b32 s{sCode+1}, s59, 0xffff"); f(f"s_mov_b32 s{sCode+2}, L_END - L_START"); f(f"s_mov_b32 s{sCode+3}, 0x20000")
    m, g_, t0, t1, row = vT[0], vT[1], vT[2], vT[3], vT[4]
    f(f"v_and_b32 v{m}, 15, v{vLANE}")
    f(f"v_lshrrev_b32 v{g_}, 4, v{vLANE}")
    f(f"v_lshrrev_b32 v{t0}, 1, v{m}")
    f(f"v_xor_b32 v{t0}, v{t0}, v{g_}")
    f(f"v_lshlrev_b32 v{t0}, 4, v{t0}")
    f(f"v_lshl_add_u32 v{t0}, v{m}, 7, v{t0}")
    f(f"s_lshl_b32 s36, s{sRH}, 13")
    f(f"v_add_u32 v{vXr[0]}, s36, v{t0}")
    f(f"v_xor_b32 v{vXr[1]}, 64, v{vXr[0]}")
    f(f"v_lshrrev_b32 v{t0}, 2, v{m}")
    f(f"v_lshl_add_u32 v{row}, v{g_}, 3, v{t0}")
    f(f"v_lshrrev_b32 v{t0}, 3, v{m}")
    f(f"v_and_b32 v{t1}, 1, v{g_}")
    f(f"v_lshl_or_b32 v{t0}, v{t1}, 1, v{t0}")
    f(f"s_lshl_b32 s36, s{sHH}, 1")
    f(f"v_xor_b32 v{t0}, s36, v{t0}")
    f(f"v_lshlrev_b32 v{t0}, 5, v{t0}")
    f(f"v_lshl_add_u32 v{t0}, v{row}, 7, v{t0}")
    f(f"v_and_b32 v{t1}, 3, v{m}")
    f(f"v_lshl_add_u32 v{t0}, v{t1}, 3, v{t0}")
    f(f"v_add_u32 v{vWr[0][0]}, {W_BASE}, v{t0}")
    f(f"v_xor_b32 v{vWr[0][1]}, 32, v{vWr[0][0]}")
    f(f"v_add_u32 v{vWr[1][0]}, {2*W_SLOT}, v{vWr[0][0]}")
    f(f"v_add_u32 v{vWr[1][1]}, {2*W_SLOT}, v{vWr[0][1]}")
    for r in range(ACC0, 256):
        f(f"v_mov_b32 v{r}, 0")
    return L

def fillers_late(a):
    L = []
    f = L.append
    q, b, t = vT[0], vT[1], vT[2]
    f(f"v_lshlrev_b32 v{vL16}, 4, v{vLANE}")
    f(f"v_and_b32 v{q}, 31, v{vLANE}")
    f(f"v_lshrrev_b32 v{b}, 5, v{vLANE}")
    f(f"v_lshlrev_b32 v{b}, 2, v{b}")
    f(f"v_sub_u32 v{b}, v{q}, v{b}")
    f(f"v_add_u32 v{b}, 18, v{b}")
    f("v_mov_b32 v58, 0x5555"); f("v_mov_b32 v59, 0")
    f(f"v_lshlrev_b64 v[58:59], v{b}, v[58:59]")
    f("v_not_b32 v58, v58"); f("v_not_b32 v59, v59")
    f(f"s_mov_b32 s36, {NEGBIG}")
    for i in range(24):
        r, src = (i, 59) if i < 16 else (i - 8, 58)
        f(f"v_bfe_i32 v{vMc + i}, v{src}, {8*(r >> 2) + (r & 3)}, 1")
        f(f"v_and_b32 v{vMc + i}, s36, v{vMc + i}")
    f(f"v_lshrrev_b32 v{q}, 2, v{vLANE}")
    f(f"v_lshrrev_b32 v{t}, 4, v{vLANE}")
    f(f"v_xor_b32 v{q}, v{q}, v{t}")
    f(f"v_and_b32 v{q}, 1, v{q}")
    f(f"v_add_u32 v{q}, -1, v{q}")
    f(f"v_and_b32 v{q}, 0x3f803f80, v{q}")
    for i in range(4):
        f(f"v_accvgpr_write_b32 a{aONE+i}, v{q}")
    f(f"v_lshrrev_b32 v{q}, 1, v{vLANE}"); f(f"v_xor_b32 v{q}, v{q}, v{vLANE}"); f(f"v_and_b32 v{q}, 4, v{q}")
    f(f"v_lshl_or_b32 v{q}, v{q}, 1, v{q}"); f(f"v_xor_b32 v{q}, v{q}, v{vLANE}"); f(f"v_lshlrev_b32 v{vKS}, 4, v{q}")
    f(f"v_min_u32 v{vF0}, 1, v{vLANE}")
    f(f"v_lshlrev_b32 v{vF0}, 31, v{vF0}")
    f(f"s_mov_b32 s{sCS}, {CSCALE}"); f(f"s_mov_b32 s62, {CSCALE}"); f(f"s_mov_b32 s63, {CSCALE}")
    f(f"s_lshl_b32 s36, s{sHP}, 19")
    f(f"s_lshl_b32 s37, s{sW}, 13")
    f(f"s_lshl_b32 s38, s{sHH}, 14")
    f(f"s_lshl_b32 s39, s{sRH}, 13")
    f(f"s_add_u32 s{sKVdst}, s38, s39")
    f(f"s_add_u32 s{sKVbase}, s36, s{sKVdst}")
    f(f"s_lshl_b32 s{sKVt}, s{sT}, 15")
    f(f"s_add_u32 s{sKVsrc}, s{sKVbase}, s{sKVt}")
    f(f"s_and_b32 s{sKVt}, s{sT}, 7"); f(f"s_and_b32 s{sKVb}, s{sT}, 8")
    f(f"s_add_u32 s36, s38, {KV_LDS[0]}")
    f(f"v_add_u32 v{vKV[0]}, s36, v{vL16}")
    f(f"v_add_u32 v{vKV[1]}, 32768, v{vKV[0]}")
    f(f"s_lshl_b32 s{sHead}, s{sHP}, 1")
    f(f"s_add_u32 s{sHead}, s{sHead}, s{sHH}")
    f(f"s_lshl_b32 s{sSeq}, s{sT}, 1")
    f(f"s_add_u32 s{sSeq}, s{sSeq}, s{sRH}")
    f(f"s_lshl_b32 s37, s{sSeq}, 6")
    f(f"s_add_u32 s37, s37, s{sHead}")
    f(f"s_lshl_b32 s{sOst}, s37, 11")
    f(f"s_lshl_b32 s38, s{sHead}, 5")
    f(f"s_add_u32 s38, s38, s{sSeq}")
    f(f"s_lshl_b32 s28, s38, 2")
    f(f"s_lshl_b32 s38, s38, 12")
    f(f"s_add_u32 s{sHalo}, s38, {HALO_OFF}")
    f(f"s_mov_b32 s{sPASS}, 0")
    f(f"s_add_u32 s{sKVp}, s54, s{sKVbase}\ns_addc_u32 s{sKVp+1}, s55, 0")
    f("s_lshl_b32 s36, s2, 2"); f(f"s_add_u32 s36, s36, s{sW}"); f("s_lshl_b32 s36, s36, 11")
    f(f"v_and_b32 v24, 15, v{vLANE}"); f("v_lshlrev_b32 v24, 7, v24"); f("v_add_u32 v60, s36, v24")
    f("s_lshr_b32 s36, s2, 3"); f("s_lshl_b32 s36, s36, 2"); f(f"s_add_u32 s36, s36, s{sW}"); f("s_lshl_b32 s36, s36, 14")
    f("v_add_u32 v0, s36, v24")
    f(f"s_lshl_b32 s36, s{sSeq}, 6")
    f(f"s_lshl_b32 s37, s{sHead}, 1")
    f("s_add_u32 s36, s36, s37")
    f(f"v_lshrrev_b32 v9, 5, v{vLANE}")
    f(f"v_add_u32 v{vGrow}, s36, v9")
    f(f"v_and_b32 v25, 31, v{vLANE}")
    f("v_lshlrev_b32 v25, 4, v25")
    f(f"v_lshl_add_u32 v9, v{vGrow}, 11, v25")
    f(f"s_mov_b32 s56, s{sPG}"); f(f"s_and_b32 s57, s{sPG+1}, 0xffff"); f("s_mov_b32 s58, 2048"); f("s_mov_b32 s59, 0x20000")
    f(f"s_lshl_b32 s38, s{sHP}, 2"); f(f"s_add_u32 s38, s38, s{sW}"); f("s_lshl_b32 s38, s38, 6")
    f(f"s_add_u32 s31, s38, {F_KV}"); f(f"s_lshl_b32 s38, s{sT}, 2"); f("s_add_u32 s32, s31, s38")
    f(f"s_add_u32 s33, s28, {F_H - 4}"); f(f"s_cmp_eq_u32 s{sSeq}, 0\ns_cselect_b32 s38, 4, 0"); f("s_add_u32 s33, s33, s38")
    return L

def gemm1(a):
    o = a.opts
    p1 = P1(a)
    W = lambda j, ps: [("W", j, p) for p in ps]
    X = lambda v, ps: [("X", v, p) for p in ps]
    pro = X(0, range(4)) + W(0, range(6)) + W(1, range(6))
    sched = {(0,0): X(1, range(4)) + W(2, [0,1]), (0,1): W(2, [2,3,4,5]) + W(3, [0,1]),
             (1,0): W(3, [2,3,4,5]) + W(4, [0,1]), (1,1): X(2, range(4)) + W(4, [2,3]),
             (2,0): W(4, [4,5]) + W(5, [0,1,2,3]), (2,1): W(5, [4,5]) + X(3, range(4)),
             (3,0): W(6, range(6))}
    for u in range(3, 28):
        v, p0 = ((u + 5)//2, 0) if u & 1 else ((u + 4)//2, 2)
        sched[(u, 1)] = W(u + 4, [0,1,2]) + (X(v, [p0]) if v < 16 else [])
        sched[(u + 1, 0)] = W(u + 4, [3,4,5]) + (X(v, [p0 + 1]) if v < 16 else [])
    if o.get("w1late", 0):
        pro = X(0, range(4)) + W(0, range(6))
        sched.update({(0,0): W(1, range(6)), (0,1): X(1, range(4)) + W(2, [0,1]), (1,0): W(2, [2,3,4,5]) + W(3, [0,1]),
                      (1,1): W(3, [2,3,4,5]) + X(2, [0,1]), (2,0): X(2, [2,3]) + W(4, [0,1,2,3]), (2,1): W(4, [4,5]) + W(5, [0,1,2,3]),
                      (3,0): W(5, [4,5]) + X(3, range(4)), (3,1): W(6, range(6)), (4,0): W(7, range(6)),
                      (4,1): W(8, [0,1,2]) + X(4, [0,1,2]), (5,0): W(8, [3,4,5]) + X(4, [3])})
    U0 = o.get("u0", 28)
    if U0 == 28:
        sched[(27, 1)] = W(31, range(6)); del sched[(28, 0)]
    for (u, hf), ps in sched.items():
        done = u - 1 if hf == 0 else u
        for k, j, p in ps:
            if k == "W": assert j < 4 or done >= j - 4, (u, hf, k, j)
            else: assert j < 3 or done >= 2*(j - 3) + 1, (u, hf, k, j)
    npf0 = o.get("pf0", 2)
    pfs = {}
    r = npf0
    for u in range(0, 32):
        while r < 16 and u >= max(0, 2*r - o.get("pfd", 5)) and pfs.get(u, 0) < 1:
            pfs[u] = pfs.get(u, 0) + 1; r += 1
    fil = fillers_prologue(a)
    late = fillers_late(a)
    if o.get("roll", 0): fil += late; late = []
    per = (len(fil) + len(pro) - 1)//len(pro)
    for i, pc in enumerate(pro):
        pre, d, post = p1.dma(pc)
        for s in pre: a(s)
        chunk = fil[i*per:(i+1)*per]
        a(chunk[0] if chunk else "s_nop 0")
        a.emit(d)
        for s in post + chunk[1:]: a(s)
    a(f"s_or_b32 s36, s2, s{sW}")
    a("s_cmp_lg_u32 s36, 0")
    a("s_cbranch_scc1 L_NONONCE")
    a("s_memrealtime s[36:37]")
    a("v_mov_b32 v20, 0")
    a("s_waitcnt lgkmcnt(0)")
    a("s_or_b32 s36, s36, 1")
    a("v_mov_b32 v19, s36")
    a(f"global_store_dword v20, v19, s[{sPDbg}:{sPDbg+1}] sc1")
    a("L_NONONCE:")
    a.stamp("issued")
    a.emit(a.wait(["X0", "W0"]))
    a("s_barrier")
    a.stamp("first")
    for s in x_reads(0, 0) + w_reads(0, 0, (0, 1, 2)): a(s)
    a("s_waitcnt lgkmcnt(0)")
    def need(u): return [f"W{u}"] + ([f"X{u//2}"] if u % 2 == 0 else [])
    def seq(M, keys=None): return [M[k] for k in (keys or sorted(M))]
    roll = o.get("roll", 0)
    if roll:
        assert U0 == 28 and not late
        for u in (25, 27):
            if pfs.get(u - 12): pfs[u] = 1
        assert all(pfs.get(u, 0) == pfs.get(u + 12, 0) for u in range(4, 16)), pfs
    def half(u, hf):
        if hf == 0: reads = w_reads(1, u, (3, 4, 5))
        else: reads = x_reads((u + 1) & 1, u + 1) + w_reads(0, u + 1, (0, 1, 2) if u + 1 < U0 else (1, 2))
        sides = {}
        ps = sched.get((u, hf), [])
        lay = o.get("glay", 1)
        if lay == 0 or len(ps) > 4:
            for g, rd in enumerate(reads): sides.setdefault(g, []).append(rd)
            D = ([[13, 16, 19, 22], [12, 14, 16, 18, 20, 22]] if hf == 0 else [[17, 19, 21, 23], [13, 15, 17, 19, 21, 23]])[len(ps) > 4]
            if (u, hf) == (0, 0) and o.get("w1late", 0): D = [1, 3, 5, 7, 9, 11]
            for g, pc in zip(D, ps):
                pre, d, post = p1.dma(pc)
                sides.setdefault(g - 1, []).extend(pre)
                sides.setdefault(g, []).insert(0, d)
                sides[g].extend(post)
        else:
            D = {1: [2, 8, 14, 20], 2: [4, 10, 16, 22], 3: [3, 9, 15, 21], 4: [5, 11, 17, 23]}[lay]
            free = [g for g in range(24) if g not in D[:len(ps)]]
            for g, rd in zip(free, reads): sides.setdefault(g, []).append(rd)
            for g, pc in zip(D, ps):
                pre, d, post = p1.dma(pc)
                sides.setdefault(g - 1, []).extend(pre)
                sides.setdefault(g, []).insert(0, d)
                sides.setdefault(min(g + 1, 23), []).extend(post)
        if hf == 0 and pfs.get(u):
            sides.setdefault(23, []).extend(pf_round(a))
        if u >= 4 and late:
            for g in range(24):
                cur = sides.get(g, [])
                if any(isinstance(x, tuple) or x.startswith("ds_") for x in cur): continue
                room = o.get("lateper", 2) - (1 if cur else 0)
                while late and room > 0:
                    x = late.pop(0); sides.setdefault(g, []).append(x); room -= len(x.split("\n"))
        if roll and (u, hf) in ((15, 0), (27, 0)):
            sides.setdefault(14, []).append("s_sub_u32 s35, s35, 1")
        a.inter(seq(g1_mfmas(u & 1, hf, (0, 1, 2) if hf == 0 else (3, 4, 5))), sides)
        if roll and (u, hf) in ((15, 0), (27, 0)):
            a("s_cmp_lg_u32 s35, 0")
        if hf == 0:
            a.emit(a.wait(need(u + 1), lgkm=True))
            a("s_barrier")
        elif u + 1 < U0:
            a("s_waitcnt lgkmcnt(0)")
        if hf == 1 and u % 8 == 7 and not roll: a.stamp(f"g{u}")
    halves = [(u, hf) for u in range(U0) for hf in range(2)]
    if not roll:
        for h in halves: half(*h)
    else:
        for h in halves[:7]: half(*h)
        a("s_mov_b32 s35, 2")
        n0 = len(a.lines)
        for h in halves[7:31]: half(*h)
        p1_ = a.lines[n0:]; del a.lines[n0:]
        for h in halves[31:55]: half(*h)
        p2_ = a.lines[n0:]; del a.lines[n0:]
        assert len(p1_) == len(p2_)
        if o.get("galign"): a(f".p2align {o['galign']}")
        a("L_G1:")
        import re
        for x, y in zip(p1_, p2_):
            if x != y:
                mx, my = re.fullmatch(r"\s*s_waitcnt vmcnt\((\d+)\) lgkmcnt\(0\)", x), re.fullmatch(r"\s*s_waitcnt vmcnt\((\d+)\) lgkmcnt\(0\)", y)
                assert mx and my, (x, y)
                x = f"s_waitcnt vmcnt({min(int(mx.group(1)), int(my.group(1)))}) lgkmcnt(0)"
            a(x)
        a("s_cbranch_scc1 L_G1")
        half(27, 1)
    misc = []
    for j in range(8):
        misc.append((f"buffer_load_dwordx4 {ar(aGATE+4*j, 4)}, v9, s[{sX}:{sX+3}], 0 offen offset:{512*j}" if j < 4 else
                     f"buffer_load_dwordx4 {ar(aGATE+4*j, 4)}, v25, s[56:59], 0 offen offset:{512*(j-4)}", "gate"))
    misc = [(f"global_load_dword v21, v19, s[{sPDbg}:{sPDbg+1}] sc1", "nonce"),
            (f"buffer_load_dword v{vPFd}, v{vT[7]}, s[{sCode}:{sCode+3}], 0 offen", "cpf")] + misc
    if o.get("wom", 1): misc.insert(o.get("wompos", 10), (f"global_load_dword v{vPFd}, v60, s[{sPWoB}:{sPWoB+1}]", "wopf"))
    if o.get("wom", 1) > 1: misc.append((f"global_load_dword v{vPFd}, v60, s[{sPWoA}:{sPWoA+1}]", "wopf"))
    xs, ws_ = U0 & 1, 0
    units = [(u, b) for u in range(U0, 31) for b in ((0, 3), (4, 5))] + [(31, (4, 5)), (31, (3, 0))]
    bfirst = o.get("bfirst", 1)
    if bfirst: units = [(u, (4, 5)) for u in range(U0, 32)] + [(u, (3, 0)) for u in range(U0, 32)]
    for u in range(U0, 32):
        if u < 31:
            a.emit(a.wait(need(u + 1), lgkm=True)); a("s_barrier")
        else:
            a("s_waitcnt lgkmcnt(0)")
        reads = x_reads(1 - xs, u + 1) + w_reads(1 - ws_, u + 1, (1, 2)) if u < 31 else x_reads(1 - xs, U0) + w_reads(1 - ws_, *units[0])
        sides = {}
        for i, rd in enumerate(reads): sides.setdefault(i, []).append(rd)
        if u == U0:
            sides.setdefault(0, []).append("v_mov_b32 v19, 0")
            sides.setdefault(1, []).append(f"s_add_u32 s25, s{sKVsrc}, 4096"); sides.setdefault(2, []).append(f"s_mov_b32 s26, s{sKVsrc}")
        for g in ((12, 13, 15) if U0 == 28 else (12, 13, 14, 15)):
            if misc: sides.setdefault(g, []).append(misc.pop(0))
        M = g1_mfmas(xs, ws_, (1, 2))
        a.inter(seq(M, [(i, nt, mt) for rt in range(2) for i in range(2) for nt in range(2) for mt in (2*rt, 2*rt + 1)]), sides)
        xs ^= 1; ws_ ^= 1
    assert not misc
    a.stamp("gP")
    e1_lists(a)
    kvw = pk16(KA[0], pKA[0]) + a.kv.pop(0) + pk16(VA[0], pVA[0]) + pk16(KA[1], pKA[1]) + pk16(VA[1], pVA[1])
    st_units = {28: [1, 2, 3, 4, 5, 6, 7], 29: [1, 2, 3, 4, 5]}[U0]
    for n, (u, blks) in enumerate(units):
        last = n == len(units) - 1
        a("s_waitcnt lgkmcnt(0)")
        if last: a("s_barrier")
        reads = []
        newx = False
        if not last:
            un, bn = units[n + 1]
            newx = un != u
            reads = (x_reads(1 - xs, un) if newx else []) + w_reads(1 - ws_, un, bn)
        sides = {}
        for i, rd in enumerate(reads): sides.setdefault(i, []).append(rd)
        M = g1_mfmas(xs, ws_, blks)
        keys = None
        if bfirst and n == len(units)//2:
            kvw += pk16(KB[1], pKB[1]) + pk16(VB[1], pVB[1], True) + pk16(KB[0], pKB[0]) + pk16(VB[0], pVB[0], True)
        if n >= len(units) - 2 or (bfirst and n == len(units)//2 - 1):
            keys = [(i, nt, mt) for rt in (1, 0) for i in range(2) for nt in range(2) for mt in (2*rt, 2*rt + 1)]
            if last: keys = [(i, nt, mt) for i in range(2) for rt in (1, 0) for nt in range(2) for mt in (2*rt, 2*rt + 1)]
        if last:
            e1_head(a, sides, kvw if bfirst else None); kvw = []
        else:
            for g in range(4 if n == 0 else 0, 16):
                budget = 1 if g < len(reads) else 2
                if n in st_units and g == 15: budget = 0
                while kvw and budget > 0:
                    cost = 2 if (isinstance(kvw[0], tuple) or "permlane" in kvw[0]) else 1
                    if cost > budget and o.get("rstrict", 1): break
                    sides.setdefault(g, []).append(kvw.pop(0))
                    budget -= cost
        if n in st_units:
            st_ = a.kv.pop(0)
            lo = int(st_[0][0].split("v[")[1].split(":")[0])
            assert not any(isinstance(x, str) and any(f"v{lo+i}," in x.split(None, 1)[1].split(", v")[0] + "," or x.endswith(f" v{lo+i}") and "permlane" in x for i in range(4)) for x in kvw), (n, lo)
            sides.setdefault(1 if last else 15, []).extend(st_)
        a.inter(seq(M, keys), sides)
        ws_ ^= 1
        if newx: xs ^= 1
    assert not kvw
    a.stamp("g31")
    assert not late

def packl(base, out=None):
    out = base if out is None else out
    return [f"v_cvt_pk_bf16_f32 v{out+j}, v{base+2*j}, v{base+2*j+1}" for j in range(8)]
def pk16(base, out=None, vb=False):
    out = base if out is None else out
    l = packl(base, out) + [f"v_permlane16_swap_b32 v{out+i}, v{out+i+2}" for i in (0, 1, 4, 5)]
    if vb: l += [f"v_permlane32_swap_b32 v{out+i}, v{out+i+2}" for i in (0, 1, 4, 5)]
    return l
def pko(base, out=None):
    out = base if out is None else out
    return packl(base, out) + ["s_nop 0"] + [f"v_permlane16_swap_b32 v{out+j}, v{out+4+j}" for j in range(4)]
def pack(a, base, out=None):
    for s in packl(base, out): a(s)
class L(list):
    def __call__(self, s): self.append(s)
    def emit(self, s): self.append(s)
def weave(a, work, extra, first, every):
    nxt = first
    for i, w in enumerate(work):
        while extra and i >= nxt:
            for s in extra.pop(0): a.emit(s)
            nxt += every
        a.emit(w)

def padfill(a, fill, n):
    k = 0
    for f in fill:
        a.emit(f); k += len(f.split("\n")) if isinstance(f, str) else 1
    if k < n: a(f"s_nop {n - k - 1}")

def local_tile(a, Q, Kc, Vc, Kp, Vp1, SC, SP, O, PC, PP, tmp, off, tag, fill1=(), fill2=()):
    m, t = tmp, tmp + 1
    a(mf32(vr(SC, 16), vr(Kc, 4), vr(Q, 4), vr(vMc, 16)))
    a(mf32(vr(SC, 16), vr(Kc+4, 4), vr(Q+4, 4), vr(SC, 16)))
    a(mf32(vr(SP, 16), vr(Kp, 4), vr(Q, 4), vr(vMc + 8, 16)))
    a(mf32(vr(SP, 16), vr(Kp+4, 4), vr(Q+4, 4), vr(SP, 16)))
    padfill(a, fill1, 10)
    vals = [SC + i for i in range(16)] + [SP + 8 + i for i in range(8)]
    a(f"v_max3_f32 v{m}, v{vals[0]}, v{vals[1]}, v{vals[2]}")
    for i in range(3, 23, 2):
        a(f"v_max3_f32 v{m}, v{m}, v{vals[i]}, v{vals[i+1]}")
    a(f"v_max_f32 v{m}, v{m}, v{vals[23]}")
    a(f"v_mov_b32 v{t}, v{m}")
    a("s_nop 1")
    a(f"v_permlane32_swap_b32 v{m}, v{t}")
    a(f"v_max_f32 v{m}, v{m}, v{t}")
    a(f"v_mul_f32 v{m}, s{sCS}, v{m}")
    for v in vals:
        a(f"v_fma_f32 v{v}, v{v}, s{sCS}, -v{m}")
    L = SP
    for i in range(10): a(f"v_exp_f32 v{vals[i]}, v{vals[i]}")
    for j in range(4): a(f"v_cvt_pk_bf16_f32 v{PC+j}, v{SC+2*j}, v{SC+2*j+1}")
    for i in range(10, 13): a(f"v_exp_f32 v{vals[i]}, v{vals[i]}")
    a(mf32(vr(O, 16), vr(Vc, 4), vr(PC, 4), 0))
    for i in range(13, 18): a(f"v_exp_f32 v{vals[i]}, v{vals[i]}")
    a(mf16(vr(L, 4), ar(aONE, 4), vr(PC, 4), 0))
    for j in range(4, 8): a(f"v_cvt_pk_bf16_f32 v{PC+j}, v{SC+2*j}, v{SC+2*j+1}")
    for i in range(18, 20): a(f"v_exp_f32 v{vals[i]}, v{vals[i]}")
    a(mf32(vr(O, 16), vr(Vc+4, 4), vr(PC+4, 4), vr(O, 16)))
    for i in range(20, 24): a(f"v_exp_f32 v{vals[i]}, v{vals[i]}")
    a(mf16(vr(L, 4), ar(aONE, 4), vr(PC+4, 4), vr(L, 4)))
    for j in range(4): a(f"v_cvt_pk_bf16_f32 v{PP+j}, v{SP+8+2*j}, v{SP+9+2*j}")
    a("s_nop 1")
    a(mf16(vr(L, 4), ar(aONE, 4), vr(PP, 4), vr(L, 4)))
    a(mf32(vr(O, 16), vr(Vp1, 4), vr(PP, 4), vr(O, 16)))
    padfill(a, fill2, 7)
    a(f"v_rcp_f32 v{m}, v{L}")
    a(f"s_add_u32 s35, s{sOst}, {OB_OFF + off}")
    a("s_nop 2")
    for i in range(16):
        a(f"v_mul_f32 v{O+i}, v{O+i}, v{m}")
    return [(f"buffer_store_dwordx4 {{0}}, v{vL16}, {WS}, s35 offen sc1", tag),
            (f"buffer_store_dwordx4 {{0}}, v{vL16}, {WS}, s35 offen offset:1024 sc1", tag)]

def flag_store(sreg, vtmp, tag):
    return [f"v_mov_b32 v{vtmp}, s{sNONCE}", (f"buffer_store_dword v{vtmp}, v{vF0}, {WS}, s{sreg} offen sc1", tag)]

def poll_check(a, name, vdst, vaddr, sreg, tag, mask=-1):
    a.emit(a.wait([tag]))
    a(f"v_cmp_ne_u32 vcc, s{sNONCE}, v{vdst}")
    a(f"s_and_b32 s{sSpin}, vcc_lo, {mask}")
    a(f"s_cbranch_scc1 {name}_S")
    a(f"{name}_R:")
    a.tail.append(f"""{name}_S:
    s_mov_b32 s{sSpin}, 0
{name}_L:
    buffer_load_dword v{vdst}, v{vaddr}, {WS}, s{sreg} offen sc1
    s_add_u32 s{sSpin}, s{sSpin}, 1
    s_waitcnt vmcnt(0)
    v_cmp_ne_u32 vcc, s{sNONCE}, v{vdst}
    s_cmp_lt_u32 s{sSpin}, 0x40000
    s_cbranch_scc0 {name}_R
    s_nop 2
    s_and_b32 vcc_hi, vcc_lo, {mask}
    s_cbranch_scc1 {name}_L
    s_branch {name}_R""")

def e1_lists(a):
    a.halo = [[(f"buffer_store_dwordx4 {vr(pKB[1], 4)}, v{vL16}, {WS}, s{sHalo} offen sc1", "halo")],
              [(f"buffer_store_dwordx4 {vr(pKB[1]+4, 4)}, v{vL16}, {WS}, s{sHalo} offen offset:1024 sc1", "halo")],
              [(f"buffer_store_dwordx4 {vr(pVB[1]+4, 4)}, v{vL16}, {WS}, s{sHalo} offen offset:2048 sc1", "halo")]]
    a.kv = []; a.dsw = []
    for rt in range(2):
        for (blk, f0) in ((pKA[rt], 0), (pVA[rt], 2)):
            for f in range(2):
                off = (f0 + f)*1024
                a.kv.append([(f"buffer_store_dwordx4 {vr(blk+4*f, 4)}, v{vL16 if f0 else vKS}, {WS}, s{26 if rt == 0 else 25} offen offset:{off} sc1", "kv")])
                a.dsw.append([f"ds_write_b128 v{22 if f0 else vKL}, {vr(blk+4*f, 4)} offset:{rt*4096 + off}"])

def e1_head(a, sides, left):
    w = [f"s_add_u32 s36, s{sKVdst}, {KV_LDS[0]}", f"v_add_u32 v22, s36, v{vL16}", f"v_add_u32 v{vKL}, s36, v{vKS}", f"v_add_u32 v{vL16b}, 4096, v{vL16}"]
    if left is None: w += pk16(KB[1], pKB[1]) + pk16(VB[1], pVB[1], True) + pk16(KB[0], pKB[0]) + pk16(VB[0], pVB[0], True)
    else: w += left + sel_init(23, 24)[:5] + sel_init(23, 24)[13:]
    a.selrest = sel_init(23, 24) if left is None else sel_init(23, 24)[5:13]
    for g in range(16):
        budget = 2
        if g % 2 == 1 and g > 1:
            sides.setdefault(g, []).extend(a.dsw.pop(0)); budget = 0
        while w and budget > 0:
            x = w.pop(0)
            sides.setdefault(g, []).append(x)
            budget -= 2 if "permlane" in x else (0 if x.startswith("s_") else 1)
    a.e1rest = w

def e1(a):
    o = a.opts
    pend = a.kv + a.halo
    a.emit(a.wait(["nonce"]))
    a(f"v_readfirstlane_b32 s{sNONCE}, v21")
    w = a.e1rest + pk16(QB[1], 240) + a.selrest + pk16(QB[0], pQB[0])
    weave(a, w, a.dsw, 2, 8)
    a(f"s_cmp_eq_u32 s{sNONCE}, 0")
    a("s_cbranch_scc1 L_NONCE_S")
    a("L_NONCE_R:")
    a.tail.append(f"""L_NONCE_S:
    s_mov_b32 s{sSpin}, 0
L_NONCE_L:
    global_load_dword v21, v19, s[{sPDbg}:{sPDbg+1}] sc1
    s_add_u32 s{sSpin}, s{sSpin}, 1
    s_waitcnt vmcnt(0)
    v_readfirstlane_b32 s{sNONCE}, v21
    s_cmp_lt_u32 s{sSpin}, 0x40000
    s_cbranch_scc0 L_NONCE_R
    s_nop 2
    s_cmp_eq_u32 s{sNONCE}, 0
    s_cbranch_scc1 L_NONCE_L
    s_branch L_NONCE_R""")
    for s in pend.pop(0): a.emit(s)
    a.stamp("e1pack")
    qa = []
    for q in QA:
        qa += [f"v_pk_mul_f32 {vr(q+2*j, 2)}, {vr(q+2*j, 2)}, s[62:63]" for j in range(8)] + pk16(q)
    lt = L()
    st = local_tile(lt, 240, pKB[1], pVB[1], pKB[0], pVB[0]+4, 128, 144, 176, 168, 248, 252, 65536, "ob1", fill1=qa[:26], fill2=qa[26:])
    lt += pko(176, 56)
    a.ob1 = [(st[0][0].format("v[56:59]"), "ob1"), (st[1][0].format("v[60:63]"), "ob1")]
    weave(a, lt, pend, o.get("st_a", 40), o.get("st_b", 50))
    for g in pend:
        for s in g: a.emit(s)
    a.stamp("loc1")
    a.emit(a.wait(["kv"], lgkm=True))
    for s in flag_store(32, 20, "fKV"): a.emit(s)
    a("s_barrier")
    a.stamp("fKV")

sKVp, sKVg, sOg, sPFW = 84, 98, 100, 52
vL16b = 5
def kv_dma(slot, group, tag):
    out = [f"s_add_u32 m0, s{sKVdst}, {KV_LDS[slot] + group*4096}"]
    for p in range(4):
        out.append((f"global_load_lds_dwordx4 v{vL16b if group else vL16}, s[{sKVg}:{sKVg+1}] offset:{p*1024} sc1", tag))
    return out
sKVb, sKVd = 3, 34
def kv_advance(c):
    if c <= 7:
        return [f"s_cmp_le_u32 s{sKVt}, {c-1}", f"s_addc_u32 s36, s{sKVb}, {c-1}", "s_lshl_b32 s36, s36, 15",
                f"s_add_u32 s{sKVg}, s{sKVp}, s36", f"s_addc_u32 s{sKVg+1}, s{sKVp+1}, 0"]
    return [f"s_add_u32 s36, s{sKVb}, {c}", "s_and_b32 s36, s36, 15", "s_lshl_b32 s36, s36, 15",
            f"s_add_u32 s{sKVg}, s{sKVp}, s36", f"s_addc_u32 s{sKVg+1}, s{sKVp+1}, 0"]

def sel_init(t0, t1):
    return [f"v_lshrrev_b32 v{t0}, 1, v{vLANE}", f"v_and_b32 v{t0}, 3, v{t0}", f"v_min_u32 v{t1}, 1, v{t0}", f"v_add_u32 v{t1}, -1, v{t1}",
            f"v_and_b32 v{t1}, 0x3f803f80, v{t1}", f"v_accvgpr_write_b32 a{aSEL}, v{t1}", f"v_accvgpr_write_b32 a{aSEL+1}, v{t1}",
            f"v_xor_b32 v{t0}, 2, v{t0}", f"v_min_u32 v{t1}, 1, v{t0}", f"v_add_u32 v{t1}, -1, v{t1}",
            f"v_and_b32 v{t1}, 0x3f803f80, v{t1}", f"v_accvgpr_write_b32 a{aSEL+2}, v{t1}", f"v_accvgpr_write_b32 a{aSEL+3}, v{t1}",
            f"v_and_b32 v{vIDX}, 1, v{vLANE}", f"v_mul_u32_u24 v{vIDX}, 0xaaaa, v{vIDX}", f"v_add_u32 v{vIDX}, 0x4444, v{vIDX}"]
def smf(q): return f"v_smfmac_f32_16x16x64_bf16 {ar(aL[q], 4)}, {ar(aSEL, 4)}, {vr(P[q], 8)}, v{vIDX}"

def H(a, q, vpar, qk=True, pv=True, pv_first=False, slots=None):
    slots = slots or {}
    o = 1 - q
    e = [f"v_exp_f32 v{S[q]+i}, v{S[q]+i}" for i in range(16)]
    c = [f"v_cvt_pk_bf16_f32 v{P[q]+j}, v{S[q]+2*j}, v{S[q]+2*j+1}" for j in range(8)]
    So, Oo = vr(S[o], 16), ar(aO[o], 16)
    M = [mf32(So, ar(aK, 4), vr(QA[o], 4), vr(NM[o], 16)) if qk else None,
         mf32(So, ar(aK+4, 4), vr(QA[o]+4, 4), So) if qk else None,
         mf32(Oo, ar(aV[vpar], 4), vr(P[o], 4), 0 if pv_first else Oo) if pv else None,
         mf32(Oo, ar(aV[vpar]+4, 4), vr(P[o]+4, 4), Oo) if pv else None,
         smf(o) if pv else None, None]
    V = [[e[0], e[1], e[2]], [e[3], c[0], c[1], e[4]], [e[5], e[6], e[7]], [c[2], c[3], e[8], e[9], e[10], e[11], c[4], c[5]],
         [], [e[12], e[13], e[14], e[15], c[6], c[7]]]
    if not pv: V[3] = ["s_nop 0"] + V[3]
    for i in range(6):
        if M[i]: a(M[i])
        for s in slots.get(i, []): a.emit(s)
        for s in V[i]: a(s)

def rdK(slot, off): return [f"ds_read_b128 {ar(aK, 4)}, v{vKV[slot]} offset:{off}", f"ds_read_b128 {ar(aK+4, 4)}, v{vKV[slot]} offset:{off+1024}"]
def rdV(par, slot, off): return [f"ds_read_b128 {ar(aV[par], 4)}, v{vKV[slot]} offset:{off+2048}", f"ds_read_b128 {ar(aV[par]+4, 4)}, v{vKV[slot]} offset:{off+3072}"]

FREE_A = [0, 3, 4]; FREE_B = [2, 3, 4, 5]
TORD = [0, 2, 1, 3]
def tile(a, n, side=None, end_b=None):
    sa = {}; sb = {}
    if n < 63:
        m = n + 1
        k = rdK((m >> 2) & 1, TORD[m & 3]*4096); v = rdV(m & 1, (m >> 2) & 1, TORD[m & 3]*4096)
        sa[1] = [k[0]]; sa[2] = [k[1]]; sa[5] = ["s_waitcnt lgkmcnt(0)"]
        sb[0] = [v[0]]; sb[1] = [v[1]]
    if side is not None:
        for g in FREE_A:
            if side: sa.setdefault(g, []).extend(side.pop(0))
        for g in (FREE_B if end_b is None else FREE_B[:-1]):
            if side: sb.setdefault(g, []).extend(side.pop(0))
        if sb.get(4) and sb.get(5) and isinstance(sb[4][-1], str) and " m0," in sb[4][-1] and isinstance(sb[5][0], tuple):
            if not sb.get(3): sb[3] = sb.pop(4)
            elif len(sb[3]) == 1 and isinstance(sb[3][0], str) and " m0," not in sb[3][0] and not sb[3][0].startswith(("s_cmp", "s_addc", "s_add_u32 s9", "s_add_u32 s10")):
                sb[3], sb[4] = sb[4], sb[3]
            else: sb[4] = sb[4] + ["s_nop 0"]
    if end_b: sb.setdefault(5, []).extend(end_b)
    H(a, 0, (n - 1) & 1, pv=(n != 0), pv_first=(n == 1), slots=sa)
    H(a, 1, n & 1, qk=(n < 63), pv_first=(n == 0), slots=sb)

def neg_max(a):
    for q in range(2): a(f"v_mov_b32 v{21+q}, v{19+q}")
    a("s_nop 0")
    for q in range(2): a(f"v_permlane32_swap_b32 v{19+q}, v{21+q}")
    for q in range(2): a(f"v_max_f32 v{19+q}, v{19+q}, v{21+q}")
    for q in range(2):
        for i in range(16): a(f"v_sub_f32 v{NM[q]+i}, 0, v{19+q}")

def gate_compute(a):
    z, t = 23, 24
    for i in range(16):
        a(f"v_accvgpr_read_b32 v{96+(i%4)}, a{aGATE+i}")
        a(f"v_accvgpr_read_b32 v{100+(i%4)}, a{aGATE+16+i}")
        a(f"v_dot2_f32_bf16 v{z}, v{96+(i%4)}, v{100+(i%4)}, {0 if i == 0 else 'v%d' % z}")
    a("s_nop 2")
    for sh in (8, 4, 2, 1):
        a(f"v_add_f32_dpp v{z}, v{z}, v{z} row_ror:{sh} row_mask:0xf bank_mask:0xf")
        a("s_nop 1")
    a(f"v_mov_b32 v{t}, v{z}")
    a("s_nop 1")
    a(f"v_permlane16_swap_b32 v{z}, v{t}")
    a(f"v_add_f32 v{z}, v{z}, v{t}")
    a(f"v_mul_f32 v{z}, {f2u(-math.log2(math.e))}, v{z}")
    a(f"v_exp_f32 v{z}, v{z}")
    a(f"v_and_b32 v{t}, 31, v{vLANE}")
    a(f"v_add_f32 v{z}, 1.0, v{z}")
    a(f"v_rcp_f32 v{z}, v{z}")
    a(f"v_min_u32 v{t}, 1, v{t}")
    a(f"v_lshlrev_b32 v{t}, 31, v{t}")
    a(f"v_lshl_or_b32 v{t}, v{vGrow}, 2, v{t}")
    a(f"s_mov_b32 s36, {G_OFF}")
    a.emit((f"buffer_store_dword v{z}, v{t}, {WS}, s36 offen sc1", "g"))

def p4_setup(a):
    srd(a, sWoA, sPWoA, sPWoA+1, 1024*1024*2)
    srd(a, sWoB, sPWoB, sPWoB+1, 1024*1024*2)
    srd(a, sOutD, sPOut, sPOut+1, 2048*1024*2)
    a("s_and_b32 s36, s2, 7")
    a("s_lshr_b32 s37, s2, 3")
    a(f"s_and_b32 s{sC4}, s37, 15")
    a("s_lshr_b32 s37, s37, 4")
    a("s_lshl_b32 s36, s36, 1")
    a(f"s_add_u32 s{sT4}, s36, s37")
    r, c, t0, t1 = 200, 201, 202, 203
    a(f"v_lshrrev_b32 v{r}, 3, v{vLANE}")
    a(f"v_and_b32 v{c}, 7, v{vLANE}")
    a(f"v_and_b32 v{t0}, 2, v{r}")
    a(f"s_lshl_b32 s36, s{sHH}, 2")
    a(f"v_xor_b32 v{t0}, v{t0}, v{c}")
    a(f"v_xor_b32 v{t0}, s36, v{t0}")
    a(f"v_lshlrev_b32 v{t0}, 4, v{t0}")
    a(f"v_lshl_add_u32 v{t0}, v{r}, 11, v{t0}")
    a(f"s_lshl_b32 s36, s{sW}, 14")
    a(f"s_lshl_b32 s37, s{sC4}, 7")
    a("s_add_u32 s36, s36, s37")
    a(f"v_add_u32 v{vWo_g}, s36, v{t0}")
    a(f"v_and_b32 v{r}, 15, v{vLANE}")
    a(f"v_lshrrev_b32 v{t0}, 2, v{r}")
    a(f"v_lshrrev_b32 v{t1}, 5, v{vLANE}")
    a(f"v_lshl_add_u32 v{c}, v{t1}, 2, v{t0}")
    a(f"v_and_b32 v{t1}, 16, v{vLANE}")
    a(f"v_add_u32 v{c}, v{c}, v{t1}")
    a(f"v_lshlrev_b32 v{t1}, 2, v{t1}")
    a(f"v_and_b32 v{t0}, 8, v{r}")
    a(f"v_lshl_add_u32 v{t0}, v{t0}, 2, v{t1}")
    a(f"v_lshl_add_u32 v{t0}, v{c}, 7, v{t0}")
    a(f"v_and_b32 v{t1}, 3, v{r}")
    a(f"v_lshl_add_u32 v{vWo_r[0]}, v{t1}, 3, v{t0}")
    for nt in range(1, 4):
        a(f"v_xor_b32 v{vWo_r[nt]}, {32*nt}, v{vWo_r[0]}")
    a(f"s_lshl_b32 s36, s{sT4}, 2")
    a(f"s_add_u32 s36, s36, s{sW}")
    a(f"s_lshl_b32 s{sOrow}, s36, 16")
    a(f"s_lshr_b32 s36, s36, 1")
    a(f"s_lshl_b32 s29, s36, 7")
    a(f"s_lshr_b32 s36, s{sC4}, 1")
    a(f"s_lshl_b32 s{sOoff}, s36, 13")
    a(f"s_lshl_b32 s{sWooff}, s36, 18")
    a(f"v_and_b32 v16, 31, v{vLANE}")
    a("v_lshlrev_b32 v16, 2, v16")
    a(f"v_and_b32 v17, 15, v{vLANE}")
    a(f"v_cmp_le_u32 vcc, s{sKVt}, v17")
    a(f"v_add_u32 v17, s{sKVb}, v17")
    a("s_nop 0")
    a("v_addc_co_u32 v17, vcc, 0, v17, vcc")
    a("v_and_b32 v17, 15, v17")
    a("v_lshlrev_b32 v17, 2, v17")
    a("s_lshl_b32 s36, s2, 2")
    a(f"s_add_u32 s36, s36, s{sW}")
    a("s_lshl_b32 s36, s36, 11")
    a(f"v_and_b32 v25, 7, v{vLANE}")
    a("v_lshlrev_b32 v25, 7, v25")
    a("v_add_u32 v25, s36, v25")
    a("s_lshr_b32 s36, s2, 3")
    a("s_lshl_b32 s36, s36, 2")
    a(f"s_add_u32 s36, s36, s{sW}")
    a("s_lshl_b32 s36, s36, 12")
    a(f"s_add_u32 s36, s36, {24*65536}")
    a(f"v_and_b32 v15, 15, v{vLANE}")
    a("v_lshlrev_b32 v15, 7, v15")
    a("v_add_u32 v15, s36, v15")
    a(f"s_add_u32 s36, s{sOrow}, {OB_OFF}")
    a(f"s_add_u32 s{sOg}, s54, s36")
    a(f"s_addc_u32 s{sOg+1}, s55, 0")

def wob_dma(i, tag):
    return [[f"s_mov_b32 s39, {i*65536}"], [f"s_add_u32 m0, s{sWv}, {i*4096}"],
            [(f"buffer_load_dwordx4 v{vWo_g}, s[{sWoB}:{sWoB+3}], s39 offen lds", tag)]]

def attention(a):
    o = a.opts
    a("L_ATT0:")
    for s in rdK(0, 0) + rdV(0, 0, 0): a(s)
    for s in kv_advance(1): a(s)
    for q in range(2):
        for i in range(4): a(f"v_accvgpr_write_b32 a{aL[q]+i}, 0")
    a(f"s_cmp_lg_u32 s{sPASS}, 0")
    a("s_cbranch_scc1 L_ATT1")
    ps = L(); p4_setup(ps)
    ps_s = [x for x in ps if x.startswith("s_") and "s4," not in x.split()[1] and not any(x.split()[1].startswith(f"s{i},") for i in (4, 5, 6, 7))]
    ps_x = []
    rest = [x for x in ps if x not in ps_x]
    n1 = 22
    for s in rest[:n1]: a(s)
    a("s_waitcnt lgkmcnt(0)")
    for q in range(2): a(mf32(vr(S[q], 16), ar(aK, 4), vr(QA[q], 4), 0))
    for q in range(2): a(mf32(vr(S[q], 16), ar(aK+4, 4), vr(QA[q]+4, 4), vr(S[q], 16)))
    padfill(a, rest[n1:n1+26], 11)
    for q in range(2):
        s, m = S[q], 19 + q
        a(f"v_max3_f32 v{m}, v{s}, v{s+1}, v{s+2}")
        for i in range(3, 15, 2): a(f"v_max3_f32 v{m}, v{m}, v{s+i}, v{s+i+1}")
        a(f"v_max_f32 v{m}, v{m}, v{s+15}")
    for q in range(2): a(f"v_mov_b32 v{21+q}, v{19+q}")
    a("s_nop 0")
    for q in range(2): a(f"v_permlane32_swap_b32 v{19+q}, v{21+q}")
    for q in range(2): a(f"v_max_f32 v{19+q}, v{19+q}, v{21+q}")
    for i in range(16): a(f"v_sub_f32 v{NM[0]+i}, 0, v19")
    for s in rest[n1+26:n1+28]: a(s)
    a(mf32(vr(S[0], 16), ar(aK, 4), vr(QA[0], 4), vr(NM[0], 16)))
    a(mf32(vr(S[0], 16), ar(aK+4, 4), vr(QA[0]+4, 4), vr(S[0], 16)))
    for i in range(16): a(f"v_sub_f32 v{NM[1]+i}, 0, v20")
    for s in rest[n1+28:]: a(s)
    a("v_mov_b32 v18, 0")
    a(f"s_add_u32 s36, s28, {F_H}")
    a.emit(a.wait(["halo"]))
    for s in flag_store(36, 20, "fH"): a.emit(s)
    a("s_branch L_ATT2")
    a("L_ATT1:")
    a("s_waitcnt lgkmcnt(0)")
    a(mf32(vr(S[0], 16), ar(aK, 4), vr(QA[0], 4), vr(NM[0], 16)))
    a(mf32(vr(S[0], 16), ar(aK+4, 4), vr(QA[0]+4, 4), vr(S[0], 16)))
    a("s_nop 11")
    a("L_ATT2:")
    a.stamp("att0")
    pk = [(f"buffer_load_dword v21, v17, {WS}, s31 offen sc1", "pKV")]
    ks = o.get("pk_slot", 0)
    sl = [[] for _ in range(14)]; sl[ks] = pk
    tile(a, 0, sl[0:7]); tile(a, 1, sl[7:14])
    a.stamp("t01")
    d0, d1, adv = kv_dma(1, 0, "c1a"), kv_dma(1, 1, "c1b"), kv_advance(2)
    a(d0[0])
    poll_check(a, "L_PKV", 21, 17, 31, "pKV", mask=1)
    a.stamp("pKV")
    a.emit(d0[1]); a.emit(d0[2])
    tile(a, 2, [[d0[3]], [d0[4]], [(f"buffer_load_dword v21, v17, {WS}, s31 offen sc1", "pKV2")], [d1[0]], [d1[1], d1[2]], [d1[3]], [d1[4]]])
    for s in adv: a(s)
    a.stamp("t2")
    a(f"s_cmp_lg_u32 s{sPASS}, 0")
    a("s_cbranch_scc1 L_A4")
    gate_compute(a)
    a("s_branch L_A5")
    a("L_A4:")
    a("s_waitcnt vmcnt(0)")
    a("L_A5:")
    a.emit(a.wait(["c1a"], lgkm=True))
    a("s_barrier")
    a.pkv2 = True
    a.stamp("c1")
    wob = [i for i in range(24)]
    obl = [i for i in range(64)]
    if o.get('noside'): wob = wob[:1]; obl = obl[:1]
    ob_start = o.get("ob_start", 6)
    obase = False
    for c in range(15):
        V = []; A = []
        side = []
        if c + 2 <= 15:
            d0, d1 = kv_dma(c % 2, 0, f"c{c+2}"), kv_dma(c % 2, 1, f"c{c+2}")
            kvs = [[x] for x in d0] + [[x] for x in d1] + ([[x] for x in kv_advance(c + 3)] if c + 3 <= 15 else [])
        else:
            kvs = []
        oth = []
        if c == 0:
            oth += [[(f"buffer_load_dword v21, v17, {WS}, s31 offen sc1", "pKV3")], [], [], [(f"buffer_load_dword v22, v18, {WS}, s33 offen sc1", "pH")]]
        if c == 3:
            oth += [[f"s_lshl_b32 s38, s{sSeq}, 7"], [f"s_lshl_b32 s39, s{sHead}, 2"], ["s_add_u32 s38, s38, s39"],
                    [f"s_add_u32 s35, s38, {F_OB}"], flag_store(35, 20, "fOB")]
        if c == ob_start - 2:
            oth += [[f"s_add_u32 s47, s29, {F_OB}"], [(f"buffer_load_dword v21, v16, {WS}, s47 offen sc1", "pOB")]]
        if c == o.get("cpf2", 11) or (o.get("cpfn") and c % o["cpfn"] == 2):
            oth += [[(f"buffer_load_dword v{vPFd}, v{vT[7]}, s[{sCode}:{sCode+3}], 0 offen", "cpf")]]
        nslots = 4*7 - 1 - (c == 0)
        if c >= ob_start:
            for _ in range(min(len(obl), o.get("ob_per", 8))):
                i = obl.pop(0)
                oth.append([(f"global_load_dwordx4 {oreg(i)}, v{vL16b if (i & 4) else vL16}, s[{sOg}:{sOg+1}] offset:{(i % 4)*1024} sc1", "obl")])
                if i % 8 == 7:
                    oth += [[f"s_add_u32 s{sOg}, s{sOg}, 8192"], [f"s_addc_u32 s{sOg+1}, s{sOg+1}, 0"]]
        wa0, wa1 = o.get("wam0", 1), o.get("wam1", 3)
        if c in (wa0, wa1):
            oth.insert(0, [(f"global_load_dword v{vPFd}, v25, s[{sPWoA}:{sPWoA+1}] offset:{1024*(c == wa1)}", "wopf")])
        wl = o.get("wol2", 6)
        if wl <= c < wl + 8:
            oth.append([(f"global_load_dword v{vPFd}, v0, s[{sPWoA}:{sPWoA+1}] offset:{((c - wl) & 1)*2048}", "wopf")] + (["v_add_u32 v0, 4096, v0"] if (c - wl) & 1 else []))
        wb0 = 11 if o.get("wbtail", 1) else 13
        if c in (wb0, wb0 + 1) and o.get("wbl2", 0):
            oth.append([(f"global_load_dword v{vPFd}, v15, s[{sPWoB}:{sPWoB+1}] offset:{(c - wb0)*2048}", "wopf")])
        if c == 14 and o.get("wbtail", 1): wob += list(range(24, 32))
        while wob and (len(kvs) + len(oth) + 3 <= nslots or c == 14):
            i_ = wob.pop(0)
            oth += wob_dma(i_, f"wo{i_//8}")
        side = kvs + oth
        while len(side) > nslots:
            for k in range(len(side) - 1):
                if all(isinstance(x, str) and x.startswith("s_") and "m0" not in x for x in side[k]):
                    side[k+1] = side[k] + side[k+1]; side.pop(k); break
            else:
                raise Exception("slots")
        n = len(side)
        nv = sum(isinstance(x, tuple) for g in side for x in g)
        if n < nslots and nv >= o.get("spread", 1):
            sp = [[] for _ in range(nslots)]
            for k, g in enumerate(side): sp[k*nslots//n] = g
            side = sp
        if c == 0:
            poll_check(a, "L_PKV2", 21, 17, 31, "pKV2", mask=2)
        if c == 1:
            poll_check(a, "L_PKV3", 21, 17, 31, "pKV3", mask=0xffff)
            poll_check(a, "L_PH", 22, 18, 33, "pH")
            a(f"s_sub_u32 s38, s{sHalo}, 4096")
            a(f"s_cmp_eq_u32 s{sSeq}, 0")
            a(f"s_cselect_b32 s38, {OOB}, s38")
            a.emit((f"buffer_load_dwordx4 {vr(HK, 4)}, v{vL16}, {WS}, s38 offen sc1", "hl"))
            a.emit((f"buffer_load_dwordx4 {vr(HK+4, 4)}, v{vL16}, {WS}, s38 offen offset:1024 sc1", "hl"))
            a.emit((f"buffer_load_dwordx4 {vr(HV, 4)}, v{vL16}, {WS}, s38 offen offset:2048 sc1", "hl"))
        if c == 2:
            a(f"s_cmp_lg_u32 s{sPASS}, 0")
            a("s_cbranch_scc1 L_LOC0X")
            a(f"s_cmp_eq_u32 s{sSeq}, 0")
            a("s_cbranch_scc0 L_MASKOK")
            for i in range(8): a(f"v_mov_b32 v{vMc+16+i}, {NEGBIG}")
            a("L_MASKOK:")
            for s in a.ob1: a.emit(s)
            st = local_tile(a, pQB[0], pKB[0], pVB[0], HK, HV, 96, 112, 208, 168, 236, 23, 0, "ob0")
            for x in pko(208): a(x)
            a.emit((st[0][0].format("v[208:211]"), "ob0")); a.emit((st[1][0].format("v[212:215]"), "ob0"))
            a("L_LOC0X:")
            a.stamp("loc0")
        if c == ob_start - 1:
            poll_check(a, "L_POB", 21, 16, 47, "pOB")
        tile(a, 4*c + 3, side)
        tile(a, 4*c + 4, side, end_b=[a.wait(["c1b"]), "s_barrier"] if c == 0 else None)
        tile(a, 4*c + 5, side)
        tile(a, 4*c + 6, side, end_b=[a.wait([f"c{c+2}"], lgkm=True) if c + 2 <= 15 else a.wait(["wo0", "obl"], lgkm=True), "s_barrier"])
        assert not side
        if c in (4, 9): a.stamp(f"c{c}")
        if c == 7:
            for _ in range(o.get("idle_att", 0)): a("s_nop 15")
    assert not wob and not obl, (wob, obl)
    r0 = p4_reads(0) + p4_reads(1)
    tile(a, 63, [r0[0:2], r0[2:4], r0[4:6], r0[6:8], r0[8:10], r0[10:13], r0[13:16]])
    a(f"s_add_u32 s36, s{sOst}, {OA_OFF}")
    a(f"s_add_u32 s37, s{sOst}, {OA_OFF + 65536}")
    a(mf32(ar(aO[1], 16), ar(aV[1], 4), vr(P[1], 4), ar(aO[1], 16)))
    a(smf(1))
    a(mf32(ar(aO[1], 16), ar(aV[1]+4, 4), vr(P[1]+4, 4), ar(aO[1], 16)))
    a.stamp("attend")
    F = L()
    F(f"v_accvgpr_read_b32 v19, a{aL[0]}")
    F(f"v_accvgpr_read_b32 v21, a{aL[0]+1}")
    for i in range(16): F(f"v_accvgpr_read_b32 v{S[0]+i}, a{aO[0]+i}")
    F("v_add_f32 v19, v19, v21")
    F(f"v_accvgpr_read_b32 v20, a{aL[1]}")
    F("v_rcp_f32 v23, v19")
    F(f"v_accvgpr_read_b32 v21, a{aL[1]+1}")
    F("v_add_f32 v20, v20, v21")
    for i in range(16): F(f"v_mul_f32 v{S[0]+i}, v{S[0]+i}, v23")
    F += pko(S[0])
    F("v_rcp_f32 v24, v20")
    F((f"buffer_store_dwordx4 {vr(S[0], 4)}, v{vL16}, {WS}, s36 offen sc1", "oa"))
    F((f"buffer_store_dwordx4 {vr(S[0]+4, 4)}, v{vL16}, {WS}, s36 offen offset:1024 sc1", "oa"))
    for i in range(16): F(f"v_accvgpr_read_b32 v{S[1]+i}, a{aO[1]+i}")
    for i in range(16): F(f"v_mul_f32 v{S[1]+i}, v{S[1]+i}, v24")
    F += pko(S[1])
    F(f"s_mov_b32 s36, {f2u(2.0**64)}")
    F((f"buffer_store_dwordx4 {vr(S[1], 4)}, v{vL16}, {WS}, s37 offen sc1", "oa"))
    F((f"buffer_store_dwordx4 {vr(S[1]+4, 4)}, v{vL16}, {WS}, s37 offen offset:1024 sc1", "oa"))
    F("v_mov_b32 v21, 0")
    for q in range(2):
        for j in range(8): F(f"v_dot2_f32_bf16 v{19+q}, v{S[q]+j}, v21, v{19+q}")
    F("s_nop 2")
    F("v_cmp_nge_f32 s[64:65], s36, v19" if not o.get("stamp") else "v_cmp_nge_f32 s[56:57], s36, v19")
    F("v_cmp_nge_f32 vcc, s36, v20")
    F(f"s_lshl_b32 s37, s{sW}, 2")
    F(f"s_add_u32 s37, s37, {XCH}")
    F("v_mov_b32 v22, s37")
    F("s_nop 1")
    F("s_or_b64 vcc, vcc, s[64:65]" if not o.get("stamp") else "s_or_b64 vcc, vcc, s[56:57]")
    if o.get("force_fallback"): F("s_mov_b64 vcc, -1")
    F(f"s_cmp_lg_u64 vcc, 0\ns_cselect_b32 s36, 1, 0\ns_andn2_b32 s36, s36, s{sPASS}")
    F("v_mov_b32 v21, s36")
    F("ds_write_b32 v22, v21")
    F(f"v_mov_b32 v22, {XCH}")
    a.fin = F
    b = Asm()
    b("L_FALLBACK:")
    b(f"s_mov_b32 s{sPASS}, 1")
    b(f"s_mov_b32 s25, {OOB}")
    b(f"s_mov_b32 s26, {OOB}")
    b(f"v_mov_b32 v19, {NEGBIG}")
    b(f"v_mov_b32 v20, {NEGBIG}")
    b(f"s_lshl_b32 s38, s{sHP}, 19")
    b(f"s_lshl_b32 s39, s{sHH}, 14")
    b("s_add_u32 s38, s38, s39")
    b("s_mov_b32 s39, 0")
    b("L_FB:")
    b("s_and_b32 s36, s39, 3")
    b("s_lshl_b32 s36, s36, 12")
    b("s_lshr_b32 s37, s39, 2")
    b("s_lshl_b32 s37, s37, 15")
    b("s_add_u32 s36, s36, s37")
    b("s_add_u32 s36, s36, s38")
    b(f"buffer_load_dwordx4 {ar(aK, 4)}, v{vL16}, {WS}, s36 offen sc1")
    b(f"buffer_load_dwordx4 {ar(aK+4, 4)}, v{vL16}, {WS}, s36 offen offset:1024 sc1")
    b("s_waitcnt vmcnt(0)")
    for q in range(2): b(mf32(vr(S[q], 16), ar(aK, 4), vr(QA[q], 4), 0))
    for q in range(2): b(mf32(vr(S[q], 16), ar(aK+4, 4), vr(QA[q]+4, 4), vr(S[q], 16)))
    b("s_nop 11")
    for q in range(2):
        for i in range(0, 16, 2): b(f"v_max3_f32 v{19+q}, v{19+q}, v{S[q]+i}, v{S[q]+i+1}")
    b("s_add_u32 s39, s39, 1")
    b("s_cmp_lt_u32 s39, 64")
    b("s_cbranch_scc1 L_FB")
    neg_max(b)
    for s in sel_init(23, 24): b(s)
    b(f"s_lshl_b32 s36, s{sT}, 15")
    b(f"s_add_u32 s{sKVg}, s{sKVp}, s36")
    b(f"s_addc_u32 s{sKVg+1}, s{sKVp+1}, 0")
    b(f"s_add_u32 s36, s{sOrow}, {OB_OFF}")
    b(f"s_add_u32 s{sOg}, s54, s36")
    b(f"s_addc_u32 s{sOg+1}, s55, 0")
    b("v_add_u32 v0, -16384, v0")
    b("s_barrier")
    for g in range(2):
        for k_, s in enumerate(kv_dma(0, g, "")):
            b(s[0] if isinstance(s, tuple) else s)
            if k_ == 0: b("s_nop 0")
    b("s_waitcnt vmcnt(0)")
    b("s_barrier")
    b("s_branch L_ATT0")
    a.tail.append(b.text())

def fW4(G, nt, n=4, d=0):
    fs = G % 3
    return vr(32 + fs*16 + nt*4 + d, n) if fs < 2 else ar(nt*4 + d, n)
def p4_lds(g):
    return g*32768 if g < 4 else [131072, 0, 32768, 65536][g - 4]
def p4_reads(G):
    out = []
    base = p4_lds(G // 8)
    for nt in range(4):
        off = base % 65536 + (G % 8)*4096
        out.append(f"ds_read_b64_tr_b16 {fW4(G, nt, 2)}, v{vWo_r[nt]} offset:{off}")
        out.append(f"ds_read_b64_tr_b16 {fW4(G, nt, 2, 2)}, v{vWo_r[nt]} offset:{off+1024}")
    return out
def woa_dma(g, i):
    pos = (g - 4)*8 + i
    return [[f"s_add_u32 s39, s{sWooff}, {pos*65536}", "s_and_b32 s39, s39, 0x1fffff", f"s_add_u32 m0, s{sWv}, {p4_lds(g) + i*4096}"],
            [(f"buffer_load_dwordx4 v{vWo_g}, s[{sWoA}:{sWoA+3}], s39 offen lds", f"wo{g}")]]
def oa_load(i):
    out = [(f"global_load_dwordx4 {oreg(i)}, v{vL16b if (i & 4) else vL16}, s[{sOg}:{sOg+1}] offset:{(i % 4)*1024} sc1", f"oa{i}")]
    return out
def oa_next():
    return [f"s_add_u32 s{sOoff}, s{sOoff}, 8192", f"s_and_b32 s{sOoff}, s{sOoff}, 0xffff",
            f"s_add_u32 s{sOg}, s{sKVg}, s{sOoff}\ns_addc_u32 s{sOg+1}, s{sKVg+1}, 0"]

def phase4(a):
    o = a.opts
    flag_at = o.get("oaflag_gap", 40)
    poll_at = o.get("oapoll_gap", 84)
    chk_at = o.get("oachk_gap", 96)
    side = {}
    def put(k, l): side.setdefault(k, []).extend(l)
    F = list(a.fin)
    k = 0
    while F:
        n_ = 6 if len(F) > 5*(23 - k) - 5 else 5
        put(k, F[:n_]); F = F[n_:]; k += 1
    assert k <= 23, k
    put(37, [f"s_add_u32 s38, s{sOrow}, {OA_OFF}", f"s_add_u32 s{sKVg}, s54, s38\ns_addc_u32 s{sKVg+1}, s55, 0"])
    put(38, [f"s_add_u32 s{sOg}, s{sKVg}, s{sOoff}\ns_addc_u32 s{sOg+1}, s{sKVg+1}, 0"])
    pre = [f"s_lshl_b32 s38, s{sSeq}, 7",
           f"s_lshl_b32 s47, s{sHead}, 2", "s_add_u32 s38, s38, s47", f"s_add_u32 s35, s38, {F_OA}", f"s_add_u32 s47, s29, {F_OA}",
           f"s_lshl_b32 s36, s{sT4}, 9", f"s_lshl_b32 s37, s{sW}, 7", "s_add_u32 s36, s36, s37", f"s_add_u32 s36, s36, {G_OFF}",
           f"v_and_b32 v24, 60, v16",
           (f"buffer_load_dword v{vG2[0]}, v24, {WS}, s36 offen sc1", "gl"), (f"buffer_load_dword v{vG2[1]}, v24, {WS}, s36 offen offset:64 sc1", "gl")]
    put(24, ["ds_read_b128 v[20:23], v22"])
    for i, x in enumerate(pre): put(25 + i//2, [x])
    put(32, ["v_or_b32 v20, v20, v21", "v_or3_b32 v20, v20, v22, v23"])
    put(33, ["v_readfirstlane_b32 s38, v20"])
    put(35, ["s_cmp_lg_u32 s38, 0\ns_cbranch_scc1 L_FALLBACK"])
    assert flag_at > 35
    put(flag_at, [a.wait(["oa"])]); put(flag_at + 1, flag_store(35, 20, "fOA"))
    put(poll_at, [(f"buffer_load_dword v21, v16, {WS}, s47 offen sc1", "pOA")])
    put(130, [f"v_sub_f32 v{vOM[0]}, 1.0, v{vG2[0]}", f"v_sub_f32 v{vOM[1]}, 1.0, v{vG2[1]}"])
    put(131, [f"v_and_b32 v19, 15, v{vLANE}", f"v_lshrrev_b32 v20, 4, v{vLANE}"])
    put(132, ["v_lshlrev_b32 v20, 4, v20", "v_lshl_add_u32 v19, v19, 11, v20"])
    for i in range(32): put(134 + i//2, [f"v_mul_f32 v{ACC4[0][i//16] + i%16}, v{ACC4[0][i//16] + i%16}, v{vOM[i//16]}"])
    put(248, [f"s_lshl_b32 s36, s{sT4}, 18", f"s_lshl_b32 s37, s{sW}, 16"]); put(249, ["s_add_u32 s36, s36, s37", f"s_lshl_b32 s37, s{sC4}, 7"])
    put(250, ["s_add_u32 s36, s36, s37"]); put(251, ["s_add_u32 s37, s36, 32768"])
    a("s_waitcnt lgkmcnt(0)")
    lat = o.get("p4lat", 20)
    jobs = [] if o.get("wbtail", 1) else [[26, 32*2 + 23 - lat, "wb", i] for i in range(24, 32)]
    for g in range(4, 8):
        e = {4: 0, 5: 26, 6: 57, 7: 89}[g]
        jobs += [[{4: 57, 5: 57, 6: 89, 7: 121}[g] if i == 7 else e, 32*(g - 1) + 23 - lat, "wa", (g, i)] for i in range(8)]
    jobs += [[max(chk_at + 1, 2*i + 2), 128 + 4*(i//2) - lat, "oa", i] for i in range(64)]
    gap = o.get("p4gap", 2.0)
    t = float(o.get('wb_at', 19))
    quiet = range(poll_at - o.get("p4quiet", 4), poll_at + 1)
    while jobs:
        k = int(t)
        av = [j for j in jobs if j[0] <= k]
        if not av or k in quiet:
            t = k + 1; continue
        j = min(av, key=lambda j: j[1])
        jobs.remove(j)
        if j[2] == "wb":
            d = wob_dma(j[3], "wo3"); put(k - 1, d[0] + d[1]); put(k, d[2])
        elif j[2] == "wa":
            d = woa_dma(*j[3]); put(k - 1, d[0]); put(k, d[1])
        else:
            put(k, oa_load(j[3]))
            if j[3] % 8 == 7 and j[3] < 63: put(k + 1, oa_next())
        if k > j[1] + 8: print("p4 late", j, k)
        t += gap
    ds = []
    def lg(tags):
        k_ = max([i for i, t_ in enumerate(ds) if t_ in tags], default=-1)
        return min(len(ds) - 1 - k_, 15)
    for G in range(64):
        br = G // 32
        rd = p4_reads(G + 2) if G + 2 < 64 else []
        mv = []
        if G + 3 < 64:
            dlt = (p4_lds((G + 3)//8)//65536 - p4_lds((G + 2)//8)//65536)*65536
            if dlt: mv = [f"v_add_u32 v{vWo_r[nt]}, {dlt}, v{vWo_r[nt]}" for nt in range(4)]
        order = [(nt, mt) for nt in range(4) for mt in range(2)]
        if G == 62: break
        for j in range(8):
            idx = 4*G + j//2
            nt, mt = order[j]
            d = vr(ACC4[br][mt] + nt*4, 4)
            a(mf16(d, fW4(G, nt), oreg((G % 32)*2 + mt), 0 if G % 32 == 0 else d))
            sd = side.get(idx, [])
            if j % 2 == 0:
                for s in [x for x in sd if isinstance(x, str) and x.startswith("ds_read")]:
                    a(s); ds.append("xr")
                sd = [x for x in sd if not (isinstance(x, str) and x.startswith("ds_read"))]
                now, side[idx] = sd[:len(sd)//2], sd[len(sd)//2:]
            else:
                now = side.pop(idx, [])
            if rd:
                a(rd[j]); ds.append(G + 2)
                if mv and j % 2 == 1: a(mv[j//2])
            for s in now:
                a.emit(s)
                if isinstance(s, str) and s.startswith("ds_write"): ds.append("xw")
            if j % 2 == 1:
                if idx == flag_at + 1: a.stamp("fOA")
                if idx == chk_at:
                    poll_check(a, "L_POA", 21, 16, 47, "pOA")
                    a.stamp("pOA")
        if G == 63: break
        w = ""
        need = []
        if G == 61: continue
        if G + 1 >= 32: need.append(f"oa{((G + 1) % 32)*2 + 1}")
        bar = G % 8 == 5 and G // 8 < 7
        if bar and f"wo{G//8 + 1}" in a.vm: need.append(f"wo{G//8 + 1}")
        if need: w += f" vmcnt({a.vmn(need)})"
        if G + 1 >= 2: w += f" lgkmcnt({lg([G + 1, 'xw'])})"
        if w: a("s_waitcnt" + w)
        if bar: a("s_barrier")
        if G == 31: a.stamp("p4B")
    def epi(mt):
        B_, A_ = ACC4[0][mt], ACC4[1][mt]
        fl = ['', 'sc1', 'nt', 'sc0 sc1', 'sc1 nt'][o.get('outflag', 2)]
        l = [f"v_fma_f32 v{B_+i}, v{A_+i}, v{vG2[mt]}, v{B_+i}" for i in range(16)] + packl(B_) + ["s_nop 0"]
        l += [f"v_permlane32_swap_b32 v{B_+x}, v{B_+y}" for x, y in ((0, 2), (1, 3), (4, 6), (5, 7))]
        l += [f"v_permlane16_swap_b32 v{B_+x}, v{B_+y}" for x, y in ((0, 2), (1, 3), (4, 6), (5, 7))]
        l += [(f"buffer_store_dwordx4 {vr(B_+4*k, 4)}, v19, s[{sOutD}:{sOutD+3}], s{36+mt} offen offset:{64*k} {fl}", "out") for k in range(2)]
        return l
    rest = [x for k_ in sorted(side) for x in side[k_]]
    a(f"s_waitcnt vmcnt({a.vmn(['oa63'])}) lgkmcnt(0)")
    for G in (62, 63):
        for nt in range(4):
            d = vr(ACC4[1][0] + nt*4, 4)
            a(mf16(d, fW4(G, nt), oreg((G % 32)*2), d))
            if rest: a.emit(rest.pop(0))
    assert not rest
    e0 = epi(0)
    for k_, (G, nt) in enumerate([(G, nt) for G in (62, 63) for nt in range(4)]):
        d = vr(ACC4[1][1] + nt*4, 4)
        a(mf16(d, fW4(G, nt), oreg((G % 32)*2 + 1), d))
        if k_ >= 2:
            a(e0.pop(0)); a(e0.pop(0))
        else:
            a("s_nop 1")
    a.stamp("p4A")
    for x in e0 + epi(1): a.emit(x)

def gen(opts):
    a = G(opts); a.tail = []
    setup(a); gemm1(a); e1(a); attention(a); phase4(a)
    if opts.get("diag") is not None:
        a.stamp("end")
        a("s_nop 1")
        a(f"v_readlane_b32 s36, v{vSTAMP}, {32 + opts['diag']}")
        a("s_nop 3")
        a("s_add_u32 s36, s36, 10000")
        if opts.get("diagwg") is not None:
            a(f"s_cmp_lg_u32 s2, {opts['diagwg']}")
            a("s_cbranch_scc1 L_END")
        a("L_DIAG:")
        a("s_memrealtime s[38:39]")
        a("s_waitcnt lgkmcnt(0)")
        a("s_sub_u32 s38, s38, s36")
        a("s_cmp_lt_i32 s38, 0")
        a("s_cbranch_scc1 L_DIAG")
    elif opts.get("dbgstamp"):
        a.stamp("end")
        sel = ["karg", "first", "g7", "g15", "g23", "g31", "loc1", "pKV", "c1", "c9", "attend", "pOA", "p4B", "p4A", "end"]
        a(f"s_cmp_lg_u32 s2, {opts['dbgstamp']-1}")
        a("s_cbranch_scc1 L_DBGX")
        a(f"s_cmp_lg_u32 s{sW}, 0")
        a("s_cbranch_scc1 L_DBGX")
        a(f"v_readlane_b32 s36, v{vSTAMP}, 32")
        for i, nm in enumerate(sel):
            a(f"v_readlane_b32 s37, v{vSTAMP}, {32 + a.names.index(nm)}")
            a("s_nop 3")
            a("s_sub_u32 s37, s37, s36")
            a("v_mov_b32 v2, s37")
            a("v_mov_b32 v3, 0")
            a(f"global_store_dword v3, v2, s[{sPDbg}:{sPDbg+1}] offset:{4*(i+1)}")
        a("L_DBGX:")
    elif opts.get("stamp"):
        a.stamp("end")
        a("s_lshl_b32 s36, s2, 2")
        a(f"s_add_u32 s36, s36, s{sW}")
        a("s_lshl_b32 s36, s36, 8")
        a(f"s_add_u32 s36, s36, {STAMP_OFF}")
        a(f"v_lshlrev_b32 v2, 2, v{vLANE}")
        a(f"buffer_store_dword v{vSTAMP}, v2, {WS}, s36 offen")
    a("s_endpgm")
    for t in a.tail: a(t)
    head = f"""; gated mix of full MHA and dilated sliding-window attention: one fused kernel, 256 co-resident workgroups
; @launch grid=(256,1,1) block=(256,1,1) lds=163840
.amdgcn_target "amdgcn-amd-amdhsa--gfx950"
.text
.globl {KNAME}
.p2align 8
.type {KNAME},@function
{KNAME}:
"""
    tail = f"""L_END:
    s_endpgm
.section .rodata,"a"
.p2align 6
.amdhsa_kernel {KNAME}
  .amdhsa_next_free_vgpr 512
  .amdhsa_next_free_sgpr 102
  .amdhsa_accum_offset 256
  .amdhsa_group_segment_fixed_size 0
  .amdhsa_kernarg_size 80
  .amdhsa_user_sgpr_count 2
  .amdhsa_user_sgpr_kernarg_segment_ptr 1
  .amdhsa_system_sgpr_workgroup_id_x 1
.end_amdhsa_kernel
"""
    gen.names = a.names
    return head + a.text() + tail

if __name__ == "__main__":
    import hazard
    opts = {}
    for kv in sys.argv[2:]:
        k, v = kv.split("="); opts[k] = int(v)
    t = gen(opts)
    open(sys.argv[1], "w").write(t)
    print(len(hazard.check(t)), "hazards", gen.names)
```

```python
import sys, struct, math
from asmlib import *

KNAME = "gated_mix__softmax_full_mha__sliding_local_dilated__prompt_kernel"
def f2u(x): return struct.unpack("<I", struct.pack("<f", x))[0]
KV_OFF   = 0
OA_OFF   = 8 << 20
OB_OFF   = 12 << 20
HALO_OFF = 16 << 20
G_OFF    = 20 << 20
FLAG_OFF = 21 << 20
F_KV, F_H, F_OB, F_OA = FLAG_OFF, FLAG_OFF + 4096, FLAG_OFF + 8192, FLAG_OFF + 12288
STAMP_OFF = 0x8000000
OOB = 0x80000000
CSCALE = f2u(math.log2(math.e) / math.sqrt(32.0))
NEGBIG = f2u(-1e30)
X_SLOT = 16384; W_BASE = 49152; W_SLOT = 24576
KV_LDS = [98304, 131072]
XCH = 163840 - 16
sX, sWA, sWB, sWS = 4, 8, 12, 16
sW, sHP, sT, sRH, sHH = 20, 21, 22, 23, 24
sWoff, sXoff = 25, 26
sXw, sWv = 30, 34
sPF, sPFoff, sPFstr, sPFlim = 40, 44, 45, 46
sNONCE, sCS = 60, 61
sSTAMPI = 68
sPWoA, sPWoB, sPG, sPOut, sPDbg = 70, 72, 74, 76, 78
sKVsrc, sKVbase, sKVt, sKVdst = 80, 81, 82, 27
sPASS, sOst, sSpin = 83, 86, 87
sT4, sC4, sOoff, sWooff, sObase = 88, 89, 90, 91, 92
sHalo, sSeq, sO, sOrow, sHead = 93, 94, 95, 96, 97
sWoA, sWoB, sOutD = 4, 8, 12
sCode = 48
vLANE = 1
vXr = [2, 3]; vWr = [[4, 5], [10, 11]]; vWg = [12, 13, 14]; vXg = [15, 16, 17, 18]
vT = [19, 20, 21, 22, 23, 24, 25, 26]
vPF, vPFd, vL16, vSTAMP, vF0 = 27, 28, 29, 30, 31
vMc = 32
ACC0 = 64
def acc(blk, rt): return ACC0 + (blk*2 + rt)*16
QA = [64, 80]; KA = [96, 112]; VA = [128, 144]; QB = [160, 176]; KB = [192, 208]; VB = [224, 240]
NM = [128, 144]; S = [176, 240]; P = [72, 88]
vKV = [6, 7]
vWo_g = 2; vWo_r = [3, 4, 10, 11]; vG2 = [12, 13]; vOM = [14, 8]
vGate, vGrow = 14, 8
HK = 200; HV = 232
def fX(s, rt): return s*32 + rt*4
def fW(s, blk): return s*32 + 8 + blk*4
aK, aV = 0, [8, 16]
aO = [32, 48]; aL = [64, 68]; aONE = 112
aGATE = 80
aX = [0, 16]; aW = [32, 56]; vKS, vKL = 56, 57
aSEL = 72; vIDX = 9
OV = list(range(96, 128, 4)) + list(range(160, 176, 4)) + list(range(192, 240, 4))
def oreg(i): return ar(76 + 4*i, 4) if i < 45 else vr(OV[i - 45], 4)
ACC4 = [[128, 144], [64, 80]]
pKA = [96, 112]; pVA = [104, 120]; pQB = [160, 168]; pKB = [192, 208]; pVB = [224, 216]

def mf32(d, A, B, C): return f"v_mfma_f32_32x32x16_bf16 {d}, {A}, {B}, {C}"
def mf16(d, A, B, C): return f"v_mfma_f32_16x16x32_bf16 {d}, {A}, {B}, {C}"
WS = f"s[{sWS}:{sWS+3}]"

class G(Asm):
    def __init__(self, opts):
        super().__init__()
        self.opts = opts
        self.vm = []
        self.nstamp = 0
        self.names = []
    def emit(self, x):
        if callable(x): x = x()
        if x is None: return
        if isinstance(x, tuple):
            self(x[0]); self.vm.append(x[1])
        else:
            assert not (x.lstrip().startswith(("buffer_", "global_"))), x
            self(x)
    def vmn(self, tags):
        idx = [i for i, t in enumerate(self.vm) if t in tags]
        assert idx, tags
        n = len(self.vm) - 1 - max(idx)
        return min(n, 63)
    def wait(self, tags, lgkm=False):
        return lambda: f"s_waitcnt vmcnt({self.vmn(tags)})" + (" lgkmcnt(0)" if lgkm else "")
    def stamp(self, name):
        if not self.opts.get("stamp"): return
        if self.opts["stamp"] == 2 and name not in ("start", "g31", "c1", "attend", "end", "gP", "c4"): return
        self.names.append(name)
        a = self
        a("s_memtime s[66:67]")
        a("s_memrealtime s[64:65]")
        a("s_waitcnt lgkmcnt(0)")
        a(f"v_writelane_b32 v{vSTAMP}, s66, {self.nstamp}")
        a(f"v_writelane_b32 v{vSTAMP}, s64, {self.nstamp + 32}")
        self.nstamp += 1
        assert self.nstamp <= 32
    def inter(self, mains, sides):
        for i, m in enumerate(mains):
            if m is not None: self.emit(m)
            for s in sides.get(i, []): self.emit(s)

def srd(a, s, lo, hi, nbytes):
    a(f"s_mov_b32 s{s}, s{lo}")
    a(f"s_and_b32 s{s+1}, s{hi}, 0xffff")
    a(f"s_mov_b32 s{s+2}, {nbytes}")
    a(f"s_mov_b32 s{s+3}, 0x20000")

def pf_round(a):
    return [(f"buffer_load_dword v{vPFd}, v{vPF}, s[{sPF}:{sPF+3}], s{sPFoff} offen{' nt' if a.opts.get('pfnt') else ''}", "pf"),
            f"s_add_u32 s{sPFoff}, s{sPFoff}, s{sPFstr}"]

class P1:
    def __init__(self, a):
        self.a = a; self.wnext = [0]*6; self.xnext = [0]*4
    def dma(self, piece):
        kind, j, p = piece
        if kind == "W":
            assert self.wnext[p] == j and (p < 3 or self.wnext[p - 3] == j + 1) and (p >= 3 or self.wnext[p + 3] == j)
            self.wnext[p] += 1
            s = sWA if p < 3 else sWB
            return ([f"s_add_u32 m0, s{sWv}, {W_BASE + (j % 4)*W_SLOT + p*4096}"],
                    (f"global_load_lds_dwordx4 v{vWg[p % 3]}, s[{s}:{s+1}] {['', 'sc1', 'sc0', 'sc0 sc1'][self.a.opts.get('dmafl', 0)]}", f"W{j}"),
                    [f"v_add_u32 v{vWg[p % 3]}, 196608, v{vWg[p % 3]}"] if p >= 3 else [])
        assert self.xnext[p] == j
        self.xnext[p] += 1
        return ([f"s_add_u32 m0, s{sXw}, {(j % 3)*X_SLOT + p*1024}"],
                (f"global_load_lds_dwordx4 v{vXg[p]}, s[{sX}:{sX+1}] {['', 'sc1', 'sc0', 'sc0 sc1'][self.a.opts.get('dmafl', 0)]}", f"X{j}"),
                [f"v_add_u32 v{vXg[p]}, 128, v{vXg[p]}"])

def x_reads(xs, u):
    return [f"ds_read_b128 {ar(aX[xs] + mt*4, 4)}, v{vXr[u & 1]} offset:{((u >> 1) % 3)*X_SLOT + mt*2048}" for mt in range(4)]
def w_reads(ws_, u, blks):
    out = []
    sl = u % 4
    for i, blk in enumerate(blks):
        for nt in range(2):
            off = (sl % 2)*W_SLOT + blk*4096
            r = aW[ws_] + (i*2 + nt)*4
            out.append(f"ds_read_b64_tr_b16 {ar(r, 2)}, v{vWr[sl//2][nt]} offset:{off}")
            out.append(f"ds_read_b64_tr_b16 {ar(r + 2, 2)}, v{vWr[sl//2][nt]} offset:{off+512}")
    return out
def g1_mfmas(xs, ws_, blks, mts=(0, 1, 2, 3), mt_outer=False):
    out = {}
    for i, blk in enumerate(blks):
        for nt in range(2):
            for mt in mts:
                w, x = ar(aW[ws_] + (i*2 + nt)*4, 4), ar(aX[xs] + mt*4, 4)
                if blk % 3 == 2:
                    d = vr(acc(blk, mt >> 1) + ((mt & 1)*2 + nt)*4, 4); out[(i, nt, mt)] = mf16(d, x, w, d)
                else:
                    d = vr(acc(blk, mt >> 1) + (nt*2 + (mt & 1))*4, 4); out[(i, nt, mt)] = mf16(d, w, x, d)
    return out

def setup(a):
    o = a.opts
    a("L_START:")
    a("s_cmp_ge_u32 s2, 256")
    a("s_cbranch_scc1 L_END")
    if o.get("xorid"): a(f"s_xor_b32 s2, s2, {o['xorid']}")
    if o.get("mulid"): a(f"s_mul_i32 s2, s2, {o['mulid']}\ns_and_b32 s2, s2, 255")
    a.stamp("start")
    a("s_load_dwordx4 s[48:51], s[0:1], 0")
    a("s_load_dwordx2 s[52:53], s[0:1], 32")
    a("s_load_dwordx2 s[54:55], s[0:1], 72")
    a(f"s_load_dwordx2 s[{sPWoA}:{sPWoA+1}], s[0:1], 16")
    a(f"s_load_dwordx4 s[{sPWoB}:{sPWoB+3}], s[0:1], 40")
    a(f"s_load_dwordx4 s[{sPOut}:{sPOut+3}], s[0:1], 56")
    if o.get("cpf0", 1):
        n = o.get('codelines', 20)
        a("s_getpc_b64 s[56:57]")
        a("L_PC0:")
        a("s_lshr_b32 s35, s2, 3")
        a(f"s_mul_i32 s35, s35, {n}")
        a(f"v_min_u32 v2, {n-1}, v0")
        a("v_add_u32 v2, s35, v2")
        a("v_lshlrev_b32 v2, 7, v2")
        a("v_min_u32 v2, L_END - L_PC0, v2")
        a.emit((f"global_load_dword v{vPFd}, v2, s[56:57]", "cpf"))
    a(f"v_and_b32 v{vLANE}, 63, v0")
    a(f"v_lshrrev_b32 v{vT[0]}, 6, v0")
    a("s_and_b32 s3, s2, 7")
    a(f"v_readfirstlane_b32 s{sW}, v{vT[0]}")
    a("s_lshr_b32 s35, s2, 3")
    a("s_and_b32 s37, s3, 3")
    a("s_lshl_b32 s36, s37, 2")
    a("s_and_b32 s38, s35, 3")
    a(f"s_add_u32 s{sHP}, s36, s38")
    a("s_lshr_b32 s39, s3, 2")
    a("s_lshl_b32 s36, s39, 3")
    a("s_lshr_b32 s38, s35, 2")
    a(f"s_add_u32 s{sT}, s36, s38")
    a(f"s_and_b32 s{sRH}, s{sW}, 1")
    a(f"s_lshr_b32 s{sHH}, s{sW}, 1")
    t0, t1, t2 = vT[0], vT[1], vT[2]
    if o.get("pfx"):
        a("s_lshl_b32 s38, s35, 5")
    else:
        a("s_lshl_b32 s38, s37, 5")
        a("s_add_u32 s38, s38, s35")
        a("s_lshl_b32 s38, s38, 3")
    a("s_lshl_b32 s47, s39, 10")
    a("s_add_u32 s38, s38, s47")
    a(f"v_add_u32 v{t0}, s38, v{vLANE}")
    a(f"v_lshlrev_b32 v{t0}, 11, v{t0}")
    if o.get("pfmode", 0) == 0:
        a("s_lshl_b32 s39, s39, 5")
        a("s_add_u32 s39, s39, s35")
        a("s_mul_i32 s39, s39, 6144")
        a("s_lshl_b32 s38, s37, 9")
        a("s_add_u32 s39, s39, s38")
        a(f"v_lshrrev_b32 v{t1}, 2, v{vLANE}")
        a(f"v_lshlrev_b32 v{t1}, 11, v{t1}")
        a(f"v_and_b32 v{t2}, 3, v{vLANE}")
        a(f"v_lshlrev_b32 v{t2}, 7, v{t2}")
        a(f"v_add3_u32 v{t1}, v{t1}, v{t2}, s39")
        if o.get("pf3", 1):
            a("s_lshr_b32 s47, s3, 2")
            a("s_xor_b32 s47, s47, 1")
            a("s_lshl_b32 s47, s47, 5")
            a("s_add_u32 s47, s47, s35")
            a("s_mul_i32 s47, s47, 6144")
            a("s_add_u32 s47, s47, s38")
            a(f"s_add_u32 s47, s47, {384 - 12*2048}")
            a(f"v_lshlrev_b32 v{t2}, 11, v{vLANE}")
            a(f"v_add_u32 v{t2}, s47, v{t2}")
            a(f"v_cmp_lt_u32 vcc, 11, v{vLANE}")
            a("s_nop 1")
            a(f"v_cndmask_b32 v{t1}, v{t1}, v{t2}, vcc")
    elif o.get("pfmode", 0) == 2:
        a("s_mul_i32 s39, s35, 12288")
        a("s_lshl_b32 s38, s37, 9")
        a("s_add_u32 s39, s39, s38")
        a(f"v_lshrrev_b32 v{t1}, 2, v{vLANE}")
        a(f"v_lshlrev_b32 v{t1}, 11, v{t1}")
        a(f"v_and_b32 v{t2}, 3, v{vLANE}")
        a(f"v_lshlrev_b32 v{t2}, 7, v{t2}")
        a(f"v_add3_u32 v{t1}, v{t1}, v{t2}, s39")
    else:
        a("s_mul_i32 s39, s2, 1536")
        a(f"v_lshlrev_b32 v{t1}, 7, v{vLANE}")
        a(f"v_add_u32 v{t1}, s39, v{t1}")
    a(f"s_mul_i32 s47, s35, {o.get('codelines', 20)}")
    a(f"v_add_u32 v{t2}, s47, v{vLANE}")
    a(f"v_lshlrev_b32 v{vT[7]}, 7, v{t2}")
    a(f"s_mov_b32 s{sPFstr}, 128")
    a(f"s_cmp_eq_u32 s{sW}, 0")
    a(f"s_cselect_b32 s{sPFstr}, s{sPFstr}, {64*6144}")
    a(f"s_cselect_b32 s38, {32 if o.get('pfx') else 8}, {24 if o.get('pfmode', 0) == 2 else (15 if o.get('pf3', 1) else 12)}")
    a("s_cselect_b64 s[56:57], -1, 0")
    a(f"v_cndmask_b32 v{vPF}, v{t1}, v{t0}, s[56:57]")
    a(f"s_cmp_eq_u32 s{sW}, 3")
    a("s_cselect_b64 s[56:57], -1, 0")
    a(f"v_cndmask_b32 v{vPF}, v{vPF}, v{vT[7]}, s[56:57]")
    a(f"s_cselect_b32 s38, {o.get('codelines', 20)}, s38")
    a(f"s_cselect_b32 s{sPFstr}, 0x4000000, s{sPFstr}")
    a(f"v_cmp_gt_u32 vcc, s38, v{vLANE}")
    a(f"v_mov_b32 v{t2}, {OOB}")
    a(f"s_mov_b32 s{sPFoff}, 0")
    a(f"v_cndmask_b32 v{vPF}, v{t2}, v{vPF}, vcc")
    a(f"v_cmp_gt_u32 vcc, {o.get('codelines', 20)}, v{vLANE}")
    a("s_getpc_b64 s[58:59]")
    a("L_PC:")
    a("s_sub_u32 s58, s58, L_PC - L_START")
    a(f"v_cndmask_b32 v{vT[7]}, v{t2}, v{vT[7]}, vcc")
    a("s_subb_u32 s59, s59, 0")
    r, c, t0, t1 = vT[0], vT[1], vT[2], vT[3]
    a(f"v_lshrrev_b32 v{r}, 3, v{vLANE}")
    a(f"v_and_b32 v{c}, 7, v{vLANE}")
    a(f"v_and_b32 v{t0}, 2, v{r}")
    a(f"s_lshl_b32 s36, s{sRH}, 2")
    a(f"v_xor_b32 v{t0}, v{t0}, v{c}")
    a(f"v_xor_b32 v{t0}, s36, v{t0}")
    a(f"v_lshlrev_b32 v{t0}, 4, v{t0}")
    a(f"v_mul_u32_u24 v{t1}, 6144, v{r}")
    a(f"v_add_u32 v{t0}, v{t0}, v{t1}")
    a(f"s_mul_i32 s36, s{sW}, {8*6144}")
    a(f"s_lshl_b32 s37, s{sHP}, 7")
    a("s_add_u32 s36, s36, s37")
    a(f"v_add_u32 v{vWg[0]}, s36, v{t0}")
    a(f"v_add_u32 v{vWg[1]}, 2048, v{vWg[0]}")
    a(f"v_add_u32 v{vWg[2]}, 4096, v{vWg[0]}")
    a(f"v_lshrrev_b32 v{t0}, 1, v{r}")
    a(f"v_xor_b32 v{t0}, v{t0}, v{c}")
    a(f"v_lshlrev_b32 v{t0}, 4, v{t0}")
    a(f"v_lshlrev_b32 v{t1}, 11, v{r}")
    a(f"v_add_u32 v{t0}, v{t0}, v{t1}")
    a(f"s_lshl_b32 s36, s{sT}, 7")
    a(f"s_lshl_b32 s37, s{sW}, 5")
    a("s_add_u32 s36, s36, s37")
    a("s_lshl_b32 s36, s36, 11")
    a(f"v_add_u32 v{vXg[0]}, s36, v{t0}")
    a(f"v_xor_b32 v{vXg[1]}, 64, v{vXg[0]}")
    a(f"v_add_u32 v{vXg[1]}, {8*2048}, v{vXg[1]}")
    a(f"v_add_u32 v{vXg[2]}, {16*2048}, v{vXg[0]}")
    a(f"v_add_u32 v{vXg[3]}, {16*2048}, v{vXg[1]}")
    a(f"s_lshl_b32 s{sWv}, s{sW}, 10")
    a(f"s_lshl_b32 s{sXw}, s{sW}, 12")
    a("s_waitcnt lgkmcnt(0)")
    a.stamp("karg")
    a(f"s_mov_b32 s{sPF+2}, {1024*3072*2}")
    a(f"s_cmp_eq_u32 s{sW}, 0")
    a(f"s_cselect_b32 s{sPF}, s48, s50")
    a(f"s_cselect_b32 s{sPF+1}, s49, s51")
    a(f"s_cselect_b32 s{sPF+2}, {2048*1024*2}, s{sPF+2}")
    a(f"s_cmp_eq_u32 s{sW}, 2")
    a(f"s_cselect_b32 s{sPF}, s52, s{sPF}")
    a(f"s_cselect_b32 s{sPF+1}, s53, s{sPF+1}")
    a(f"s_cmp_eq_u32 s{sW}, 3")
    a(f"s_cselect_b32 s{sPF}, s58, s{sPF}")
    a(f"s_cselect_b32 s{sPF+1}, s59, s{sPF+1}")
    a(f"s_cselect_b32 s{sPF+2}, L_END - L_START, s{sPF+2}")
    a(f"s_and_b32 s{sPF+1}, s{sPF+1}, 0xffff")
    a(f"s_mov_b32 s{sPF+3}, 0x20000")
    for i in range(o.get("pf0", 2)):
        for s in pf_round(a): a.emit(s)
    srd(a, sX, 48, 49, 2048*1024*2)
    srd(a, sWA, 50, 51, 1024*3072*2)
    srd(a, sWB, 52, 53, 1024*3072*2)

def fillers_prologue(a):
    L = []
    f = L.append
    f("s_mov_b32 s16, s54"); f("s_and_b32 s17, s55, 0xffff"); f("s_mov_b32 s18, 0x10000000"); f("s_mov_b32 s19, 0x20000")
    f(f"s_mov_b32 s{sCode}, s58"); f(f"s_and_b32 s{sCode+1}, s59, 0xffff"); f(f"s_mov_b32 s{sCode+2}, L_END - L_START"); f(f"s_mov_b32 s{sCode+3}, 0x20000")
    m, g_, t0, t1, row = vT[0], vT[1], vT[2], vT[3], vT[4]
    f(f"v_and_b32 v{m}, 15, v{vLANE}")
    f(f"v_lshrrev_b32 v{g_}, 4, v{vLANE}")
    f(f"v_lshrrev_b32 v{t0}, 1, v{m}")
    f(f"v_xor_b32 v{t0}, v{t0}, v{g_}")
    f(f"v_lshlrev_b32 v{t0}, 4, v{t0}")
    f(f"v_lshl_add_u32 v{t0}, v{m}, 7, v{t0}")
    f(f"s_lshl_b32 s36, s{sRH}, 13")
    f(f"v_add_u32 v{vXr[0]}, s36, v{t0}")
    f(f"v_xor_b32 v{vXr[1]}, 64, v{vXr[0]}")
    f(f"v_lshrrev_b32 v{t0}, 2, v{m}")
    f(f"v_lshl_add_u32 v{row}, v{g_}, 3, v{t0}")
    f(f"v_lshrrev_b32 v{t0}, 3, v{m}")
    f(f"v_and_b32 v{t1}, 1, v{g_}")
    f(f"v_lshl_or_b32 v{t0}, v{t1}, 1, v{t0}")
    f(f"s_lshl_b32 s36, s{sHH}, 1")
    f(f"v_xor_b32 v{t0}, s36, v{t0}")
    f(f"v_lshlrev_b32 v{t0}, 5, v{t0}")
    f(f"v_lshl_add_u32 v{t0}, v{row}, 7, v{t0}")
    f(f"v_and_b32 v{t1}, 3, v{m}")
    f(f"v_lshl_add_u32 v{t0}, v{t1}, 3, v{t0}")
    f(f"v_add_u32 v{vWr[0][0]}, {W_BASE}, v{t0}")
    f(f"v_xor_b32 v{vWr[0][1]}, 32, v{vWr[0][0]}")
    f(f"v_add_u32 v{vWr[1][0]}, {2*W_SLOT}, v{vWr[0][0]}")
    f(f"v_add_u32 v{vWr[1][1]}, {2*W_SLOT}, v{vWr[0][1]}")
    for r in range(ACC0, 256):
        f(f"v_mov_b32 v{r}, 0")
    return L

def fillers_late(a):
    L = []
    f = L.append
    q, b, t = vT[0], vT[1], vT[2]
    f(f"v_lshlrev_b32 v{vL16}, 4, v{vLANE}")
    f(f"v_and_b32 v{q}, 31, v{vLANE}")
    f(f"v_lshrrev_b32 v{b}, 5, v{vLANE}")
    f(f"v_lshlrev_b32 v{b}, 2, v{b}")
    f(f"v_sub_u32 v{b}, v{q}, v{b}")
    f(f"v_add_u32 v{b}, 18, v{b}")
    f("v_mov_b32 v58, 0x5555"); f("v_mov_b32 v59, 0")
    f(f"v_lshlrev_b64 v[58:59], v{b}, v[58:59]")
    f("v_not_b32 v58, v58"); f("v_not_b32 v59, v59")
    f(f"s_mov_b32 s36, {NEGBIG}")
    for i in range(24):
        r, src = (i, 59) if i < 16 else (i - 8, 58)
        f(f"v_bfe_i32 v{vMc + i}, v{src}, {8*(r >> 2) + (r & 3)}, 1")
        f(f"v_and_b32 v{vMc + i}, s36, v{vMc + i}")
    f(f"v_lshrrev_b32 v{q}, 2, v{vLANE}")
    f(f"v_lshrrev_b32 v{t}, 4, v{vLANE}")
    f(f"v_xor_b32 v{q}, v{q}, v{t}")
    f(f"v_and_b32 v{q}, 1, v{q}")
    f(f"v_add_u32 v{q}, -1, v{q}")
    f(f"v_and_b32 v{q}, 0x3f803f80, v{q}")
    for i in range(4):
        f(f"v_accvgpr_write_b32 a{aONE+i}, v{q}")
    f(f"v_lshrrev_b32 v{q}, 1, v{vLANE}"); f(f"v_xor_b32 v{q}, v{q}, v{vLANE}"); f(f"v_and_b32 v{q}, 4, v{q}")
    f(f"v_lshl_or_b32 v{q}, v{q}, 1, v{q}"); f(f"v_xor_b32 v{q}, v{q}, v{vLANE}"); f(f"v_lshlrev_b32 v{vKS}, 4, v{q}")
    f(f"v_min_u32 v{vF0}, 1, v{vLANE}")
    f(f"v_lshlrev_b32 v{vF0}, 31, v{vF0}")
    f(f"s_mov_b32 s{sCS}, {CSCALE}"); f(f"s_mov_b32 s62, {CSCALE}"); f(f"s_mov_b32 s63, {CSCALE}")
    f(f"s_lshl_b32 s36, s{sHP}, 19")
    f(f"s_lshl_b32 s37, s{sW}, 13")
    f(f"s_lshl_b32 s38, s{sHH}, 14")
    f(f"s_lshl_b32 s39, s{sRH}, 13")
    f(f"s_add_u32 s{sKVdst}, s38, s39")
    f(f"s_add_u32 s{sKVbase}, s36, s{sKVdst}")
    f(f"s_lshl_b32 s{sKVt}, s{sT}, 15")
    f(f"s_add_u32 s{sKVsrc}, s{sKVbase}, s{sKVt}")
    f(f"s_and_b32 s{sKVt}, s{sT}, 7"); f(f"s_and_b32 s{sKVb}, s{sT}, 8")
    f(f"s_add_u32 s36, s38, {KV_LDS[0]}")
    f(f"v_add_u32 v{vKV[0]}, s36, v{vL16}")
    f(f"v_add_u32 v{vKV[1]}, 32768, v{vKV[0]}")
    f(f"s_lshl_b32 s{sHead}, s{sHP}, 1")
    f(f"s_add_u32 s{sHead}, s{sHead}, s{sHH}")
    f(f"s_lshl_b32 s{sSeq}, s{sT}, 1")
    f(f"s_add_u32 s{sSeq}, s{sSeq}, s{sRH}")
    f(f"s_lshl_b32 s37, s{sSeq}, 6")
    f(f"s_add_u32 s37, s37, s{sHead}")
    f(f"s_lshl_b32 s{sOst}, s37, 11")
    f(f"s_lshl_b32 s38, s{sHead}, 5")
    f(f"s_add_u32 s38, s38, s{sSeq}")
    f(f"s_lshl_b32 s28, s38, 2")
    f(f"s_lshl_b32 s38, s38, 12")
    f(f"s_add_u32 s{sHalo}, s38, {HALO_OFF}")
    f(f"s_mov_b32 s{sPASS}, 0")
    f(f"s_add_u32 s{sKVp}, s54, s{sKVbase}\ns_addc_u32 s{sKVp+1}, s55, 0")
    f("s_lshl_b32 s36, s2, 2"); f(f"s_add_u32 s36, s36, s{sW}"); f("s_lshl_b32 s36, s36, 11")
    f(f"v_and_b32 v24, 15, v{vLANE}"); f("v_lshlrev_b32 v24, 7, v24"); f("v_add_u32 v60, s36, v24")
    f("s_lshr_b32 s36, s2, 3"); f("s_lshl_b32 s36, s36, 2"); f(f"s_add_u32 s36, s36, s{sW}"); f("s_lshl_b32 s36, s36, 14")
    f("v_add_u32 v0, s36, v24")
    f(f"s_lshl_b32 s36, s{sSeq}, 6")
    f(f"s_lshl_b32 s37, s{sHead}, 1")
    f("s_add_u32 s36, s36, s37")
    f(f"v_lshrrev_b32 v9, 5, v{vLANE}")
    f(f"v_add_u32 v{vGrow}, s36, v9")
    f(f"v_and_b32 v25, 31, v{vLANE}")
    f("v_lshlrev_b32 v25, 4, v25")
    f(f"v_lshl_add_u32 v9, v{vGrow}, 11, v25")
    f(f"s_mov_b32 s56, s{sPG}"); f(f"s_and_b32 s57, s{sPG+1}, 0xffff"); f("s_mov_b32 s58, 2048"); f("s_mov_b32 s59, 0x20000")
    f(f"s_lshl_b32 s38, s{sHP}, 2"); f(f"s_add_u32 s38, s38, s{sW}"); f("s_lshl_b32 s38, s38, 6")
    f(f"s_add_u32 s31, s38, {F_KV}"); f(f"s_lshl_b32 s38, s{sT}, 2"); f("s_add_u32 s32, s31, s38")
    f(f"s_add_u32 s33, s28, {F_H - 4}"); f(f"s_cmp_eq_u32 s{sSeq}, 0\ns_cselect_b32 s38, 4, 0"); f("s_add_u32 s33, s33, s38")
    return L

def gemm1(a):
    o = a.opts
    p1 = P1(a)
    W = lambda j, ps: [("W", j, p) for p in ps]
    X = lambda v, ps: [("X", v, p) for p in ps]
    pro = X(0, range(4)) + W(0, range(6)) + W(1, range(6))
    sched = {(0,0): X(1, range(4)) + W(2, [0,1]), (0,1): W(2, [2,3,4,5]) + W(3, [0,1]),
             (1,0): W(3, [2,3,4,5]) + W(4, [0,1]), (1,1): X(2, range(4)) + W(4, [2,3]),
             (2,0): W(4, [4,5]) + W(5, [0,1,2,3]), (2,1): W(5, [4,5]) + X(3, range(4)),
             (3,0): W(6, range(6))}
    for u in range(3, 28):
        v, p0 = ((u + 5)//2, 0) if u & 1 else ((u + 4)//2, 2)
        sched[(u, 1)] = W(u + 4, [0,1,2]) + (X(v, [p0]) if v < 16 else [])
        sched[(u + 1, 0)] = W(u + 4, [3,4,5]) + (X(v, [p0 + 1]) if v < 16 else [])
    if o.get("w1late", 0):
        pro = X(0, range(4)) + W(0, range(6))
        sched.update({(0,0): W(1, range(6)), (0,1): X(1, range(4)) + W(2, [0,1]), (1,0): W(2, [2,3,4,5]) + W(3, [0,1]),
                      (1,1): W(3, [2,3,4,5]) + X(2, [0,1]), (2,0): X(2, [2,3]) + W(4, [0,1,2,3]), (2,1): W(4, [4,5]) + W(5, [0,1,2,3]),
                      (3,0): W(5, [4,5]) + X(3, range(4)), (3,1): W(6, range(6)), (4,0): W(7, range(6)),
                      (4,1): W(8, [0,1,2]) + X(4, [0,1,2]), (5,0): W(8, [3,4,5]) + X(4, [3])})
    U0 = o.get("u0", 28)
    if U0 == 28:
        sched[(27, 1)] = W(31, range(6)); del sched[(28, 0)]
    for (u, hf), ps in sched.items():
        done = u - 1 if hf == 0 else u
        for k, j, p in ps:
            if k == "W": assert j < 4 or done >= j - 4, (u, hf, k, j)
            else: assert j < 3 or done >= 2*(j - 3) + 1, (u, hf, k, j)
    npf0 = o.get("pf0", 2)
    pfs = {}
    r = npf0
    for u in range(0, 32):
        while r < 16 and u >= max(0, 2*r - o.get("pfd", 5)) and pfs.get(u, 0) < 1:
            pfs[u] = pfs.get(u, 0) + 1; r += 1
    fil = fillers_prologue(a)
    late = fillers_late(a)
    if o.get("roll", 0): fil += late; late = []
    per = (len(fil) + len(pro) - 1)//len(pro)
    for i, pc in enumerate(pro):
        pre, d, post = p1.dma(pc)
        for s in pre: a(s)
        chunk = fil[i*per:(i+1)*per]
        a(chunk[0] if chunk else "s_nop 0")
        a.emit(d)
        for s in post + chunk[1:]: a(s)
    a(f"s_or_b32 s36, s2, s{sW}")
    a("s_cmp_lg_u32 s36, 0")
    a("s_cbranch_scc1 L_NONONCE")
    a("s_memrealtime s[36:37]")
    a("v_mov_b32 v20, 0")
    a("s_waitcnt lgkmcnt(0)")
    a("s_or_b32 s36, s36, 1")
    a("v_mov_b32 v19, s36")
    a(f"global_store_dword v20, v19, s[{sPDbg}:{sPDbg+1}] sc1")
    a("L_NONONCE:")
    a.stamp("issued")
    a.emit(a.wait(["X0", "W0"]))
    a("s_barrier")
    a.stamp("first")
    for s in x_reads(0, 0) + w_reads(0, 0, (0, 1, 2)): a(s)
    a("s_waitcnt lgkmcnt(0)")
    def need(u): return [f"W{u}"] + ([f"X{u//2}"] if u % 2 == 0 else [])
    def seq(M, keys=None): return [M[k] for k in (keys or sorted(M))]
    roll = o.get("roll", 0)
    if roll:
        assert U0 == 28 and not late
        for u in (25, 27):
            if pfs.get(u - 12): pfs[u] = 1
        assert all(pfs.get(u, 0) == pfs.get(u + 12, 0) for u in range(4, 16)), pfs
    def half(u, hf):
        if hf == 0: reads = w_reads(1, u, (3, 4, 5))
        else: reads = x_reads((u + 1) & 1, u + 1) + w_reads(0, u + 1, (0, 1, 2) if u + 1 < U0 else (1, 2))
        sides = {}
        ps = sched.get((u, hf), [])
        lay = o.get("glay", 1)
        if lay == 0 or len(ps) > 4:
            for g, rd in enumerate(reads): sides.setdefault(g, []).append(rd)
            D = ([[13, 16, 19, 22], [12, 14, 16, 18, 20, 22]] if hf == 0 else [[17, 19, 21, 23], [13, 15, 17, 19, 21, 23]])[len(ps) > 4]
            if (u, hf) == (0, 0) and o.get("w1late", 0): D = [1, 3, 5, 7, 9, 11]
            for g, pc in zip(D, ps):
                pre, d, post = p1.dma(pc)
                sides.setdefault(g - 1, []).extend(pre)
                sides.setdefault(g, []).insert(0, d)
                sides[g].extend(post)
        else:
            D = {1: [2, 8, 14, 20], 2: [4, 10, 16, 22], 3: [3, 9, 15, 21], 4: [5, 11, 17, 23]}[lay]
            free = [g for g in range(24) if g not in D[:len(ps)]]
            for g, rd in zip(free, reads): sides.setdefault(g, []).append(rd)
            for g, pc in zip(D, ps):
                pre, d, post = p1.dma(pc)
                sides.setdefault(g - 1, []).extend(pre)
                sides.setdefault(g, []).insert(0, d)
                sides.setdefault(min(g + 1, 23), []).extend(post)
        if hf == 0 and pfs.get(u):
            sides.setdefault(23, []).extend(pf_round(a))
        if u >= 4 and late:
            for g in range(24):
                cur = sides.get(g, [])
                if any(isinstance(x, tuple) or x.startswith("ds_") for x in cur): continue
                room = o.get("lateper", 2) - (1 if cur else 0)
                while late and room > 0:
                    x = late.pop(0); sides.setdefault(g, []).append(x); room -= len(x.split("\n"))
        if roll and (u, hf) in ((15, 0), (27, 0)):
            sides.setdefault(14, []).append("s_sub_u32 s35, s35, 1")
        a.inter(seq(g1_mfmas(u & 1, hf, (0, 1, 2) if hf == 0 else (3, 4, 5))), sides)
        if roll and (u, hf) in ((15, 0), (27, 0)):
            a("s_cmp_lg_u32 s35, 0")
        if hf == 0:
            a.emit(a.wait(need(u + 1), lgkm=True))
            a("s_barrier")
        elif u + 1 < U0:
            a("s_waitcnt lgkmcnt(0)")
        if hf == 1 and u % 8 == 7 and not roll: a.stamp(f"g{u}")
    halves = [(u, hf) for u in range(U0) for hf in range(2)]
    if not roll:
        for h in halves: half(*h)
    else:
        for h in halves[:7]: half(*h)
        a("s_mov_b32 s35, 2")
        n0 = len(a.lines)
        for h in halves[7:31]: half(*h)
        p1_ = a.lines[n0:]; del a.lines[n0:]
        for h in halves[31:55]: half(*h)
        p2_ = a.lines[n0:]; del a.lines[n0:]
        assert len(p1_) == len(p2_)
        if o.get("galign"): a(f".p2align {o['galign']}")
        a("L_G1:")
        import re
        for x, y in zip(p1_, p2_):
            if x != y:
                mx, my = re.fullmatch(r"\s*s_waitcnt vmcnt\((\d+)\) lgkmcnt\(0\)", x), re.fullmatch(r"\s*s_waitcnt vmcnt\((\d+)\) lgkmcnt\(0\)", y)
                assert mx and my, (x, y)
                x = f"s_waitcnt vmcnt({min(int(mx.group(1)), int(my.group(1)))}) lgkmcnt(0)"
            a(x)
        a("s_cbranch_scc1 L_G1")
        half(27, 1)
    misc = []
    for j in range(8):
        misc.append((f"buffer_load_dwordx4 {ar(aGATE+4*j, 4)}, v9, s[{sX}:{sX+3}], 0 offen offset:{512*j}" if j < 4 else
                     f"buffer_load_dwordx4 {ar(aGATE+4*j, 4)}, v25, s[56:59], 0 offen offset:{512*(j-4)}", "gate"))
    misc = [(f"global_load_dword v21, v19, s[{sPDbg}:{sPDbg+1}] sc1", "nonce"),
            (f"buffer_load_dword v{vPFd}, v{vT[7]}, s[{sCode}:{sCode+3}], 0 offen", "cpf")] + misc
    if o.get("wom", 1): misc.insert(o.get("wompos", 10), (f"global_load_dword v{vPFd}, v60, s[{sPWoB}:{sPWoB+1}]", "wopf"))
    if o.get("wom", 1) > 1: misc.append((f"global_load_dword v{vPFd}, v60, s[{sPWoA}:{sPWoA+1}]", "wopf"))
    xs, ws_ = U0 & 1, 0
    units = [(u, b) for u in range(U0, 31) for b in ((0, 3), (4, 5))] + [(31, (4, 5)), (31, (3, 0))]
    bfirst = o.get("bfirst", 1)
    if bfirst: units = [(u, (4, 5)) for u in range(U0, 32)] + [(u, (3, 0)) for u in range(U0, 32)]
    for u in range(U0, 32):
        if u < 31:
            a.emit(a.wait(need(u + 1), lgkm=True)); a("s_barrier")
        else:
            a("s_waitcnt lgkmcnt(0)")
        reads = x_reads(1 - xs, u + 1) + w_reads(1 - ws_, u + 1, (1, 2)) if u < 31 else x_reads(1 - xs, U0) + w_reads(1 - ws_, *units[0])
        sides = {}
        for i, rd in enumerate(reads): sides.setdefault(i, []).append(rd)
        if u == U0:
            sides.setdefault(0, []).append("v_mov_b32 v19, 0")
            sides.setdefault(1, []).append(f"s_add_u32 s25, s{sKVsrc}, 4096"); sides.setdefault(2, []).append(f"s_mov_b32 s26, s{sKVsrc}")
        for g in ((12, 13, 15) if U0 == 28 else (12, 13, 14, 15)):
            if misc: sides.setdefault(g, []).append(misc.pop(0))
        M = g1_mfmas(xs, ws_, (1, 2))
        a.inter(seq(M, [(i, nt, mt) for rt in range(2) for i in range(2) for nt in range(2) for mt in (2*rt, 2*rt + 1)]), sides)
        xs ^= 1; ws_ ^= 1
    assert not misc
    a.stamp("gP")
    e1_lists(a)
    kvw = pk16(KA[0], pKA[0]) + a.kv.pop(0) + pk16(VA[0], pVA[0]) + pk16(KA[1], pKA[1]) + pk16(VA[1], pVA[1])
    st_units = {28: [1, 2, 3, 4, 5, 6, 7], 29: [1, 2, 3, 4, 5]}[U0]
    for n, (u, blks) in enumerate(units):
        last = n == len(units) - 1
        a("s_waitcnt lgkmcnt(0)")
        if last: a("s_barrier")
        reads = []
        newx = False
        if not last:
            un, bn = units[n + 1]
            newx = un != u
            reads = (x_reads(1 - xs, un) if newx else []) + w_reads(1 - ws_, un, bn)
        sides = {}
        for i, rd in enumerate(reads): sides.setdefault(i, []).append(rd)
        M = g1_mfmas(xs, ws_, blks)
        keys = None
        if bfirst and n == len(units)//2:
            kvw += pk16(KB[1], pKB[1]) + pk16(VB[1], pVB[1], True) + pk16(KB[0], pKB[0]) + pk16(VB[0], pVB[0], True)
        if n >= len(units) - 2 or (bfirst and n == len(units)//2 - 1):
            keys = [(i, nt, mt) for rt in (1, 0) for i in range(2) for nt in range(2) for mt in (2*rt, 2*rt + 1)]
            if last: keys = [(i, nt, mt) for i in range(2) for rt in (1, 0) for nt in range(2) for mt in (2*rt, 2*rt + 1)]
        if last:
            e1_head(a, sides, kvw if bfirst else None); kvw = []
        else:
            for g in range(4 if n == 0 else 0, 16):
                budget = 1 if g < len(reads) else 2
                if n in st_units and g == 15: budget = 0
                while kvw and budget > 0:
                    cost = 2 if (isinstance(kvw[0], tuple) or "permlane" in kvw[0]) else 1
                    if cost > budget and o.get("rstrict", 1): break
                    sides.setdefault(g, []).append(kvw.pop(0))
                    budget -= cost
        if n in st_units:
            st_ = a.kv.pop(0)
            lo = int(st_[0][0].split("v[")[1].split(":")[0])
            assert not any(isinstance(x, str) and any(f"v{lo+i}," in x.split(None, 1)[1].split(", v")[0] + "," or x.endswith(f" v{lo+i}") and "permlane" in x for i in range(4)) for x in kvw), (n, lo)
            sides.setdefault(1 if last else 15, []).extend(st_)
        a.inter(seq(M, keys), sides)
        ws_ ^= 1
        if newx: xs ^= 1
    assert not kvw
    a.stamp("g31")
    assert not late

def packl(base, out=None):
    out = base if out is None else out
    return [f"v_cvt_pk_bf16_f32 v{out+j}, v{base+2*j}, v{base+2*j+1}" for j in range(8)]
def pk16(base, out=None, vb=False):
    out = base if out is None else out
    l = packl(base, out) + [f"v_permlane16_swap_b32 v{out+i}, v{out+i+2}" for i in (0, 1, 4, 5)]
    if vb: l += [f"v_permlane32_swap_b32 v{out+i}, v{out+i+2}" for i in (0, 1, 4, 5)]
    return l
def pko(base, out=None):
    out = base if out is None else out
    return packl(base, out) + ["s_nop 0"] + [f"v_permlane16_swap_b32 v{out+j}, v{out+4+j}" for j in range(4)]
def pack(a, base, out=None):
    for s in packl(base, out): a(s)
class L(list):
    def __call__(self, s): self.append(s)
    def emit(self, s): self.append(s)
def weave(a, work, extra, first, every):
    nxt = first
    for i, w in enumerate(work):
        while extra and i >= nxt:
            for s in extra.pop(0): a.emit(s)
            nxt += every
        a.emit(w)

def padfill(a, fill, n):
    k = 0
    for f in fill:
        a.emit(f); k += len(f.split("\n")) if isinstance(f, str) else 1
    if k < n: a(f"s_nop {n - k - 1}")

def local_tile(a, Q, Kc, Vc, Kp, Vp1, SC, SP, O, PC, PP, tmp, off, tag, fill1=(), fill2=()):
    m, t = tmp, tmp + 1
    a(mf32(vr(SC, 16), vr(Kc, 4), vr(Q, 4), vr(vMc, 16)))
    a(mf32(vr(SC, 16), vr(Kc+4, 4), vr(Q+4, 4), vr(SC, 16)))
    a(mf32(vr(SP, 16), vr(Kp, 4), vr(Q, 4), vr(vMc + 8, 16)))
    a(mf32(vr(SP, 16), vr(Kp+4, 4), vr(Q+4, 4), vr(SP, 16)))
    padfill(a, fill1, 10)
    vals = [SC + i for i in range(16)] + [SP + 8 + i for i in range(8)]
    a(f"v_max3_f32 v{m}, v{vals[0]}, v{vals[1]}, v{vals[2]}")
    for i in range(3, 23, 2):
        a(f"v_max3_f32 v{m}, v{m}, v{vals[i]}, v{vals[i+1]}")
    a(f"v_max_f32 v{m}, v{m}, v{vals[23]}")
    a(f"v_mov_b32 v{t}, v{m}")
    a("s_nop 1")
    a(f"v_permlane32_swap_b32 v{m}, v{t}")
    a(f"v_max_f32 v{m}, v{m}, v{t}")
    a(f"v_mul_f32 v{m}, s{sCS}, v{m}")
    for v in vals:
        a(f"v_fma_f32 v{v}, v{v}, s{sCS}, -v{m}")
    L = SP
    for i in range(10): a(f"v_exp_f32 v{vals[i]}, v{vals[i]}")
    for j in range(4): a(f"v_cvt_pk_bf16_f32 v{PC+j}, v{SC+2*j}, v{SC+2*j+1}")
    for i in range(10, 13): a(f"v_exp_f32 v{vals[i]}, v{vals[i]}")
    a(mf32(vr(O, 16), vr(Vc, 4), vr(PC, 4), 0))
    for i in range(13, 18): a(f"v_exp_f32 v{vals[i]}, v{vals[i]}")
    a(mf16(vr(L, 4), ar(aONE, 4), vr(PC, 4), 0))
    for j in range(4, 8): a(f"v_cvt_pk_bf16_f32 v{PC+j}, v{SC+2*j}, v{SC+2*j+1}")
    for i in range(18, 20): a(f"v_exp_f32 v{vals[i]}, v{vals[i]}")
    a(mf32(vr(O, 16), vr(Vc+4, 4), vr(PC+4, 4), vr(O, 16)))
    for i in range(20, 24): a(f"v_exp_f32 v{vals[i]}, v{vals[i]}")
    a(mf16(vr(L, 4), ar(aONE, 4), vr(PC+4, 4), vr(L, 4)))
    for j in range(4): a(f"v_cvt_pk_bf16_f32 v{PP+j}, v{SP+8+2*j}, v{SP+9+2*j}")
    a("s_nop 1")
    a(mf16(vr(L, 4), ar(aONE, 4), vr(PP, 4), vr(L, 4)))
    a(mf32(vr(O, 16), vr(Vp1, 4), vr(PP, 4), vr(O, 16)))
    padfill(a, fill2, 7)
    a(f"v_rcp_f32 v{m}, v{L}")
    a(f"s_add_u32 s35, s{sOst}, {OB_OFF + off}")
    a("s_nop 2")
    for i in range(16):
        a(f"v_mul_f32 v{O+i}, v{O+i}, v{m}")
    return [(f"buffer_store_dwordx4 {{0}}, v{vL16}, {WS}, s35 offen sc1", tag),
            (f"buffer_store_dwordx4 {{0}}, v{vL16}, {WS}, s35 offen offset:1024 sc1", tag)]

def flag_store(sreg, vtmp, tag):
    return [f"v_mov_b32 v{vtmp}, s{sNONCE}", (f"buffer_store_dword v{vtmp}, v{vF0}, {WS}, s{sreg} offen sc1", tag)]

def poll_check(a, name, vdst, vaddr, sreg, tag, mask=-1):
    a.emit(a.wait([tag]))
    a(f"v_cmp_ne_u32 vcc, s{sNONCE}, v{vdst}")
    a(f"s_and_b32 s{sSpin}, vcc_lo, {mask}")
    a(f"s_cbranch_scc1 {name}_S")
    a(f"{name}_R:")
    a.tail.append(f"""{name}_S:
    s_mov_b32 s{sSpin}, 0
{name}_L:
    buffer_load_dword v{vdst}, v{vaddr}, {WS}, s{sreg} offen sc1
    s_add_u32 s{sSpin}, s{sSpin}, 1
    s_waitcnt vmcnt(0)
    v_cmp_ne_u32 vcc, s{sNONCE}, v{vdst}
    s_cmp_lt_u32 s{sSpin}, 0x40000
    s_cbranch_scc0 {name}_R
    s_nop 2
    s_and_b32 vcc_hi, vcc_lo, {mask}
    s_cbranch_scc1 {name}_L
    s_branch {name}_R""")

def e1_lists(a):
    a.halo = [[(f"buffer_store_dwordx4 {vr(pKB[1], 4)}, v{vL16}, {WS}, s{sHalo} offen sc1", "halo")],
              [(f"buffer_store_dwordx4 {vr(pKB[1]+4, 4)}, v{vL16}, {WS}, s{sHalo} offen offset:1024 sc1", "halo")],
              [(f"buffer_store_dwordx4 {vr(pVB[1]+4, 4)}, v{vL16}, {WS}, s{sHalo} offen offset:2048 sc1", "halo")]]
    a.kv = []; a.dsw = []
    for rt in range(2):
        for (blk, f0) in ((pKA[rt], 0), (pVA[rt], 2)):
            for f in range(2):
                off = (f0 + f)*1024
                a.kv.append([(f"buffer_store_dwordx4 {vr(blk+4*f, 4)}, v{vL16 if f0 else vKS}, {WS}, s{26 if rt == 0 else 25} offen offset:{off} sc1", "kv")])
                a.dsw.append([f"ds_write_b128 v{22 if f0 else vKL}, {vr(blk+4*f, 4)} offset:{rt*4096 + off}"])

def e1_head(a, sides, left):
    w = [f"s_add_u32 s36, s{sKVdst}, {KV_LDS[0]}", f"v_add_u32 v22, s36, v{vL16}", f"v_add_u32 v{vKL}, s36, v{vKS}", f"v_add_u32 v{vL16b}, 4096, v{vL16}"]
    if left is None: w += pk16(KB[1], pKB[1]) + pk16(VB[1], pVB[1], True) + pk16(KB[0], pKB[0]) + pk16(VB[0], pVB[0], True)
    else: w += left + sel_init(23, 24)[:5] + sel_init(23, 24)[13:]
    a.selrest = sel_init(23, 24) if left is None else sel_init(23, 24)[5:13]
    for g in range(16):
        budget = 2
        if g % 2 == 1 and g > 1:
            sides.setdefault(g, []).extend(a.dsw.pop(0)); budget = 0
        while w and budget > 0:
            x = w.pop(0)
            sides.setdefault(g, []).append(x)
            budget -= 2 if "permlane" in x else (0 if x.startswith("s_") else 1)
    a.e1rest = w

def e1(a):
    o = a.opts
    pend = a.kv + a.halo
    a.emit(a.wait(["nonce"]))
    a(f"v_readfirstlane_b32 s{sNONCE}, v21")
    w = a.e1rest + pk16(QB[1], 240) + a.selrest + pk16(QB[0], pQB[0])
    weave(a, w, a.dsw, 2, 8)
    a(f"s_cmp_eq_u32 s{sNONCE}, 0")
    a("s_cbranch_scc1 L_NONCE_S")
    a("L_NONCE_R:")
    a.tail.append(f"""L_NONCE_S:
    s_mov_b32 s{sSpin}, 0
L_NONCE_L:
    global_load_dword v21, v19, s[{sPDbg}:{sPDbg+1}] sc1
    s_add_u32 s{sSpin}, s{sSpin}, 1
    s_waitcnt vmcnt(0)
    v_readfirstlane_b32 s{sNONCE}, v21
    s_cmp_lt_u32 s{sSpin}, 0x40000
    s_cbranch_scc0 L_NONCE_R
    s_nop 2
    s_cmp_eq_u32 s{sNONCE}, 0
    s_cbranch_scc1 L_NONCE_L
    s_branch L_NONCE_R""")
    for s in pend.pop(0): a.emit(s)
    a.stamp("e1pack")
    qa = []
    for q in QA:
        qa += [f"v_pk_mul_f32 {vr(q+2*j, 2)}, {vr(q+2*j, 2)}, s[62:63]" for j in range(8)] + pk16(q)
    lt = L()
    st = local_tile(lt, 240, pKB[1], pVB[1], pKB[0], pVB[0]+4, 128, 144, 176, 168, 248, 252, 65536, "ob1", fill1=qa[:26], fill2=qa[26:])
    lt += pko(176, 56)
    a.ob1 = [(st[0][0].format("v[56:59]"), "ob1"), (st[1][0].format("v[60:63]"), "ob1")]
    weave(a, lt, pend, o.get("st_a", 40), o.get("st_b", 50))
    for g in pend:
        for s in g: a.emit(s)
    a.stamp("loc1")
    a.emit(a.wait(["kv"], lgkm=True))
    for s in flag_store(32, 20, "fKV"): a.emit(s)
    a("s_barrier")
    a.stamp("fKV")

sKVp, sKVg, sOg, sPFW = 84, 98, 100, 52
vL16b = 5
def kv_dma(slot, group, tag):
    out = [f"s_add_u32 m0, s{sKVdst}, {KV_LDS[slot] + group*4096}"]
    for p in range(4):
        out.append((f"global_load_lds_dwordx4 v{vL16b if group else vL16}, s[{sKVg}:{sKVg+1}] offset:{p*1024} sc1", tag))
    return out
sKVb, sKVd = 3, 34
def kv_advance(c):
    if c <= 7:
        return [f"s_cmp_le_u32 s{sKVt}, {c-1}", f"s_addc_u32 s36, s{sKVb}, {c-1}", "s_lshl_b32 s36, s36, 15",
                f"s_add_u32 s{sKVg}, s{sKVp}, s36", f"s_addc_u32 s{sKVg+1}, s{sKVp+1}, 0"]
    return [f"s_add_u32 s36, s{sKVb}, {c}", "s_and_b32 s36, s36, 15", "s_lshl_b32 s36, s36, 15",
            f"s_add_u32 s{sKVg}, s{sKVp}, s36", f"s_addc_u32 s{sKVg+1}, s{sKVp+1}, 0"]

def sel_init(t0, t1):
    return [f"v_lshrrev_b32 v{t0}, 1, v{vLANE}", f"v_and_b32 v{t0}, 3, v{t0}", f"v_min_u32 v{t1}, 1, v{t0}", f"v_add_u32 v{t1}, -1, v{t1}",
            f"v_and_b32 v{t1}, 0x3f803f80, v{t1}", f"v_accvgpr_write_b32 a{aSEL}, v{t1}", f"v_accvgpr_write_b32 a{aSEL+1}, v{t1}",
            f"v_xor_b32 v{t0}, 2, v{t0}", f"v_min_u32 v{t1}, 1, v{t0}", f"v_add_u32 v{t1}, -1, v{t1}",
            f"v_and_b32 v{t1}, 0x3f803f80, v{t1}", f"v_accvgpr_write_b32 a{aSEL+2}, v{t1}", f"v_accvgpr_write_b32 a{aSEL+3}, v{t1}",
            f"v_and_b32 v{vIDX}, 1, v{vLANE}", f"v_mul_u32_u24 v{vIDX}, 0xaaaa, v{vIDX}", f"v_add_u32 v{vIDX}, 0x4444, v{vIDX}"]
def smf(q): return f"v_smfmac_f32_16x16x64_bf16 {ar(aL[q], 4)}, {ar(aSEL, 4)}, {vr(P[q], 8)}, v{vIDX}"

def H(a, q, vpar, qk=True, pv=True, pv_first=False, slots=None):
    slots = slots or {}
    o = 1 - q
    e = [f"v_exp_f32 v{S[q]+i}, v{S[q]+i}" for i in range(16)]
    c = [f"v_cvt_pk_bf16_f32 v{P[q]+j}, v{S[q]+2*j}, v{S[q]+2*j+1}" for j in range(8)]
    So, Oo = vr(S[o], 16), ar(aO[o], 16)
    M = [mf32(So, ar(aK, 4), vr(QA[o], 4), vr(NM[o], 16)) if qk else None,
         mf32(So, ar(aK+4, 4), vr(QA[o]+4, 4), So) if qk else None,
         mf32(Oo, ar(aV[vpar], 4), vr(P[o], 4), 0 if pv_first else Oo) if pv else None,
         mf32(Oo, ar(aV[vpar]+4, 4), vr(P[o]+4, 4), Oo) if pv else None,
         smf(o) if pv else None, None]
    V = [[e[0], e[1], e[2]], [e[3], c[0], c[1], e[4]], [e[5], e[6], e[7]], [c[2], c[3], e[8], e[9], e[10], e[11], c[4], c[5]],
         [], [e[12], e[13], e[14], e[15], c[6], c[7]]]
    if not pv: V[3] = ["s_nop 0"] + V[3]
    for i in range(6):
        if M[i]: a(M[i])
        for s in slots.get(i, []): a.emit(s)
        for s in V[i]: a(s)

def rdK(slot, off): return [f"ds_read_b128 {ar(aK, 4)}, v{vKV[slot]} offset:{off}", f"ds_read_b128 {ar(aK+4, 4)}, v{vKV[slot]} offset:{off+1024}"]
def rdV(par, slot, off): return [f"ds_read_b128 {ar(aV[par], 4)}, v{vKV[slot]} offset:{off+2048}", f"ds_read_b128 {ar(aV[par]+4, 4)}, v{vKV[slot]} offset:{off+3072}"]

FREE_A = [0, 3, 4]; FREE_B = [2, 3, 4, 5]
TORD = [0, 2, 1, 3]
def tile(a, n, side=None, end_b=None):
    sa = {}; sb = {}
    if n < 63:
        m = n + 1
        k = rdK((m >> 2) & 1, TORD[m & 3]*4096); v = rdV(m & 1, (m >> 2) & 1, TORD[m & 3]*4096)
        sa[1] = [k[0]]; sa[2] = [k[1]]; sa[5] = ["s_waitcnt lgkmcnt(0)"]
        sb[0] = [v[0]]; sb[1] = [v[1]]
    if side is not None:
        for g in FREE_A:
            if side: sa.setdefault(g, []).extend(side.pop(0))
        for g in (FREE_B if end_b is None else FREE_B[:-1]):
            if side: sb.setdefault(g, []).extend(side.pop(0))
        if sb.get(4) and sb.get(5) and isinstance(sb[4][-1], str) and " m0," in sb[4][-1] and isinstance(sb[5][0], tuple):
            if not sb.get(3): sb[3] = sb.pop(4)
            elif len(sb[3]) == 1 and isinstance(sb[3][0], str) and " m0," not in sb[3][0] and not sb[3][0].startswith(("s_cmp", "s_addc", "s_add_u32 s9", "s_add_u32 s10")):
                sb[3], sb[4] = sb[4], sb[3]
            else: sb[4] = sb[4] + ["s_nop 0"]
    if end_b: sb.setdefault(5, []).extend(end_b)
    H(a, 0, (n - 1) & 1, pv=(n != 0), pv_first=(n == 1), slots=sa)
    H(a, 1, n & 1, qk=(n < 63), pv_first=(n == 0), slots=sb)

def neg_max(a):
    for q in range(2): a(f"v_mov_b32 v{21+q}, v{19+q}")
    a("s_nop 0")
    for q in range(2): a(f"v_permlane32_swap_b32 v{19+q}, v{21+q}")
    for q in range(2): a(f"v_max_f32 v{19+q}, v{19+q}, v{21+q}")
    for q in range(2):
        for i in range(16): a(f"v_sub_f32 v{NM[q]+i}, 0, v{19+q}")

def gate_compute(a):
    z, t = 23, 24
    for i in range(16):
        a(f"v_accvgpr_read_b32 v{96+(i%4)}, a{aGATE+i}")
        a(f"v_accvgpr_read_b32 v{100+(i%4)}, a{aGATE+16+i}")
        a(f"v_dot2_f32_bf16 v{z}, v{96+(i%4)}, v{100+(i%4)}, {0 if i == 0 else 'v%d' % z}")
    a("s_nop 2")
    for sh in (8, 4, 2, 1):
        a(f"v_add_f32_dpp v{z}, v{z}, v{z} row_ror:{sh} row_mask:0xf bank_mask:0xf")
        a("s_nop 1")
    a(f"v_mov_b32 v{t}, v{z}")
    a("s_nop 1")
    a(f"v_permlane16_swap_b32 v{z}, v{t}")
    a(f"v_add_f32 v{z}, v{z}, v{t}")
    a(f"v_mul_f32 v{z}, {f2u(-math.log2(math.e))}, v{z}")
    a(f"v_exp_f32 v{z}, v{z}")
    a(f"v_and_b32 v{t}, 31, v{vLANE}")
    a(f"v_add_f32 v{z}, 1.0, v{z}")
    a(f"v_rcp_f32 v{z}, v{z}")
    a(f"v_min_u32 v{t}, 1, v{t}")
    a(f"v_lshlrev_b32 v{t}, 31, v{t}")
    a(f"v_lshl_or_b32 v{t}, v{vGrow}, 2, v{t}")
    a(f"s_mov_b32 s36, {G_OFF}")
    a.emit((f"buffer_store_dword v{z}, v{t}, {WS}, s36 offen sc1", "g"))

def p4_setup(a):
    srd(a, sWoA, sPWoA, sPWoA+1, 1024*1024*2)
    srd(a, sWoB, sPWoB, sPWoB+1, 1024*1024*2)
    srd(a, sOutD, sPOut, sPOut+1, 2048*1024*2)
    a("s_and_b32 s36, s2, 7")
    a("s_lshr_b32 s37, s2, 3")
    a(f"s_and_b32 s{sC4}, s37, 15")
    a("s_lshr_b32 s37, s37, 4")
    a("s_lshl_b32 s36, s36, 1")
    a(f"s_add_u32 s{sT4}, s36, s37")
    r, c, t0, t1 = 200, 201, 202, 203
    a(f"v_lshrrev_b32 v{r}, 3, v{vLANE}")
    a(f"v_and_b32 v{c}, 7, v{vLANE}")
    a(f"v_and_b32 v{t0}, 2, v{r}")
    a(f"s_lshl_b32 s36, s{sHH}, 2")
    a(f"v_xor_b32 v{t0}, v{t0}, v{c}")
    a(f"v_xor_b32 v{t0}, s36, v{t0}")
    a(f"v_lshlrev_b32 v{t0}, 4, v{t0}")
    a(f"v_lshl_add_u32 v{t0}, v{r}, 11, v{t0}")
    a(f"s_lshl_b32 s36, s{sW}, 14")
    a(f"s_lshl_b32 s37, s{sC4}, 7")
    a("s_add_u32 s36, s36, s37")
    a(f"v_add_u32 v{vWo_g}, s36, v{t0}")
    a(f"v_and_b32 v{r}, 15, v{vLANE}")
    a(f"v_lshrrev_b32 v{t0}, 2, v{r}")
    a(f"v_lshrrev_b32 v{t1}, 5, v{vLANE}")
    a(f"v_lshl_add_u32 v{c}, v{t1}, 2, v{t0}")
    a(f"v_and_b32 v{t1}, 16, v{vLANE}")
    a(f"v_add_u32 v{c}, v{c}, v{t1}")
    a(f"v_lshlrev_b32 v{t1}, 2, v{t1}")
    a(f"v_and_b32 v{t0}, 8, v{r}")
    a(f"v_lshl_add_u32 v{t0}, v{t0}, 2, v{t1}")
    a(f"v_lshl_add_u32 v{t0}, v{c}, 7, v{t0}")
    a(f"v_and_b32 v{t1}, 3, v{r}")
    a(f"v_lshl_add_u32 v{vWo_r[0]}, v{t1}, 3, v{t0}")
    for nt in range(1, 4):
        a(f"v_xor_b32 v{vWo_r[nt]}, {32*nt}, v{vWo_r[0]}")
    a(f"s_lshl_b32 s36, s{sT4}, 2")
    a(f"s_add_u32 s36, s36, s{sW}")
    a(f"s_lshl_b32 s{sOrow}, s36, 16")
    a(f"s_lshr_b32 s36, s36, 1")
    a(f"s_lshl_b32 s29, s36, 7")
    a(f"s_lshr_b32 s36, s{sC4}, 1")
    a(f"s_lshl_b32 s{sOoff}, s36, 13")
    a(f"s_lshl_b32 s{sWooff}, s36, 18")
    a(f"v_and_b32 v16, 31, v{vLANE}")
    a("v_lshlrev_b32 v16, 2, v16")
    a(f"v_and_b32 v17, 15, v{vLANE}")
    a(f"v_cmp_le_u32 vcc, s{sKVt}, v17")
    a(f"v_add_u32 v17, s{sKVb}, v17")
    a("s_nop 0")
    a("v_addc_co_u32 v17, vcc, 0, v17, vcc")
    a("v_and_b32 v17, 15, v17")
    a("v_lshlrev_b32 v17, 2, v17")
    a("s_lshl_b32 s36, s2, 2")
    a(f"s_add_u32 s36, s36, s{sW}")
    a("s_lshl_b32 s36, s36, 11")
    a(f"v_and_b32 v25, 7, v{vLANE}")
    a("v_lshlrev_b32 v25, 7, v25")
    a("v_add_u32 v25, s36, v25")
    a("s_lshr_b32 s36, s2, 3")
    a("s_lshl_b32 s36, s36, 2")
    a(f"s_add_u32 s36, s36, s{sW}")
    a("s_lshl_b32 s36, s36, 12")
    a(f"s_add_u32 s36, s36, {24*65536}")
    a(f"v_and_b32 v15, 15, v{vLANE}")
    a("v_lshlrev_b32 v15, 7, v15")
    a("v_add_u32 v15, s36, v15")
    a(f"s_add_u32 s36, s{sOrow}, {OB_OFF}")
    a(f"s_add_u32 s{sOg}, s54, s36")
    a(f"s_addc_u32 s{sOg+1}, s55, 0")

def wob_dma(i, tag):
    return [[f"s_mov_b32 s39, {i*65536}"], [f"s_add_u32 m0, s{sWv}, {i*4096}"],
            [(f"buffer_load_dwordx4 v{vWo_g}, s[{sWoB}:{sWoB+3}], s39 offen lds", tag)]]

def attention(a):
    o = a.opts
    a("L_ATT0:")
    for s in rdK(0, 0) + rdV(0, 0, 0): a(s)
    for s in kv_advance(1): a(s)
    for q in range(2):
        for i in range(4): a(f"v_accvgpr_write_b32 a{aL[q]+i}, 0")
    a(f"s_cmp_lg_u32 s{sPASS}, 0")
    a("s_cbranch_scc1 L_ATT1")
    ps = L(); p4_setup(ps)
    ps_s = [x for x in ps if x.startswith("s_") and "s4," not in x.split()[1] and not any(x.split()[1].startswith(f"s{i},") for i in (4, 5, 6, 7))]
    ps_x = []
    rest = [x for x in ps if x not in ps_x]
    n1 = 22
    for s in rest[:n1]: a(s)
    a("s_waitcnt lgkmcnt(0)")
    for q in range(2): a(mf32(vr(S[q], 16), ar(aK, 4), vr(QA[q], 4), 0))
    for q in range(2): a(mf32(vr(S[q], 16), ar(aK+4, 4), vr(QA[q]+4, 4), vr(S[q], 16)))
    padfill(a, rest[n1:n1+26], 11)
    for q in range(2):
        s, m = S[q], 19 + q
        a(f"v_max3_f32 v{m}, v{s}, v{s+1}, v{s+2}")
        for i in range(3, 15, 2): a(f"v_max3_f32 v{m}, v{m}, v{s+i}, v{s+i+1}")
        a(f"v_max_f32 v{m}, v{m}, v{s+15}")
    for q in range(2): a(f"v_mov_b32 v{21+q}, v{19+q}")
    a("s_nop 0")
    for q in range(2): a(f"v_permlane32_swap_b32 v{19+q}, v{21+q}")
    for q in range(2): a(f"v_max_f32 v{19+q}, v{19+q}, v{21+q}")
    for i in range(16): a(f"v_sub_f32 v{NM[0]+i}, 0, v19")
    for s in rest[n1+26:n1+28]: a(s)
    a(mf32(vr(S[0], 16), ar(aK, 4), vr(QA[0], 4), vr(NM[0], 16)))
    a(mf32(vr(S[0], 16), ar(aK+4, 4), vr(QA[0]+4, 4), vr(S[0], 16)))
    for i in range(16): a(f"v_sub_f32 v{NM[1]+i}, 0, v20")
    for s in rest[n1+28:]: a(s)
    a("v_mov_b32 v18, 0")
    a(f"s_add_u32 s36, s28, {F_H}")
    a.emit(a.wait(["halo"]))
    for s in flag_store(36, 20, "fH"): a.emit(s)
    a("s_branch L_ATT2")
    a("L_ATT1:")
    a("s_waitcnt lgkmcnt(0)")
    a(mf32(vr(S[0], 16), ar(aK, 4), vr(QA[0], 4), vr(NM[0], 16)))
    a(mf32(vr(S[0], 16), ar(aK+4, 4), vr(QA[0]+4, 4), vr(S[0], 16)))
    a("s_nop 11")
    a("L_ATT2:")
    a.stamp("att0")
    pk = [(f"buffer_load_dword v21, v17, {WS}, s31 offen sc1", "pKV")]
    ks = o.get("pk_slot", 0)
    sl = [[] for _ in range(14)]; sl[ks] = pk
    tile(a, 0, sl[0:7]); tile(a, 1, sl[7:14])
    a.stamp("t01")
    d0, d1, adv = kv_dma(1, 0, "c1a"), kv_dma(1, 1, "c1b"), kv_advance(2)
    a(d0[0])
    poll_check(a, "L_PKV", 21, 17, 31, "pKV", mask=1)
    a.stamp("pKV")
    a.emit(d0[1]); a.emit(d0[2])
    tile(a, 2, [[d0[3]], [d0[4]], [(f"buffer_load_dword v21, v17, {WS}, s31 offen sc1", "pKV2")], [d1[0]], [d1[1], d1[2]], [d1[3]], [d1[4]]])
    for s in adv: a(s)
    a.stamp("t2")
    a(f"s_cmp_lg_u32 s{sPASS}, 0")
    a("s_cbranch_scc1 L_A4")
    gate_compute(a)
    a("s_branch L_A5")
    a("L_A4:")
    a("s_waitcnt vmcnt(0)")
    a("L_A5:")
    a.emit(a.wait(["c1a"], lgkm=True))
    a("s_barrier")
    a.pkv2 = True
    a.stamp("c1")
    wob = [i for i in range(24)]
    obl = [i for i in range(64)]
    if o.get('noside'): wob = wob[:1]; obl = obl[:1]
    ob_start = o.get("ob_start", 6)
    obase = False
    for c in range(15):
        V = []; A = []
        side = []
        if c + 2 <= 15:
            d0, d1 = kv_dma(c % 2, 0, f"c{c+2}"), kv_dma(c % 2, 1, f"c{c+2}")
            kvs = [[x] for x in d0] + [[x] for x in d1] + ([[x] for x in kv_advance(c + 3)] if c + 3 <= 15 else [])
        else:
            kvs = []
        oth = []
        if c == 0:
            oth += [[(f"buffer_load_dword v21, v17, {WS}, s31 offen sc1", "pKV3")], [], [], [(f"buffer_load_dword v22, v18, {WS}, s33 offen sc1", "pH")]]
        if c == 3:
            oth += [[f"s_lshl_b32 s38, s{sSeq}, 7"], [f"s_lshl_b32 s39, s{sHead}, 2"], ["s_add_u32 s38, s38, s39"],
                    [f"s_add_u32 s35, s38, {F_OB}"], flag_store(35, 20, "fOB")]
        if c == ob_start - 2:
            oth += [[f"s_add_u32 s47, s29, {F_OB}"], [(f"buffer_load_dword v21, v16, {WS}, s47 offen sc1", "pOB")]]
        if c == o.get("cpf2", 11) or (o.get("cpfn") and c % o["cpfn"] == 2):
            oth += [[(f"buffer_load_dword v{vPFd}, v{vT[7]}, s[{sCode}:{sCode+3}], 0 offen", "cpf")]]
        nslots = 4*7 - 1 - (c == 0)
        if c >= ob_start:
            for _ in range(min(len(obl), o.get("ob_per", 8))):
                i = obl.pop(0)
                oth.append([(f"global_load_dwordx4 {oreg(i)}, v{vL16b if (i & 4) else vL16}, s[{sOg}:{sOg+1}] offset:{(i % 4)*1024} sc1", "obl")])
                if i % 8 == 7:
                    oth += [[f"s_add_u32 s{sOg}, s{sOg}, 8192"], [f"s_addc_u32 s{sOg+1}, s{sOg+1}, 0"]]
        wa0, wa1 = o.get("wam0", 1), o.get("wam1", 3)
        if c in (wa0, wa1):
            oth.insert(0, [(f"global_load_dword v{vPFd}, v25, s[{sPWoA}:{sPWoA+1}] offset:{1024*(c == wa1)}", "wopf")])
        wl = o.get("wol2", 6)
        if wl <= c < wl + 8:
            oth.append([(f"global_load_dword v{vPFd}, v0, s[{sPWoA}:{sPWoA+1}] offset:{((c - wl) & 1)*2048}", "wopf")] + (["v_add_u32 v0, 4096, v0"] if (c - wl) & 1 else []))
        wb0 = 11 if o.get("wbtail", 1) else 13
        if c in (wb0, wb0 + 1) and o.get("wbl2", 0):
            oth.append([(f"global_load_dword v{vPFd}, v15, s[{sPWoB}:{sPWoB+1}] offset:{(c - wb0)*2048}", "wopf")])
        if c == 14 and o.get("wbtail", 1): wob += list(range(24, 32))
        while wob and (len(kvs) + len(oth) + 3 <= nslots or c == 14):
            i_ = wob.pop(0)
            oth += wob_dma(i_, f"wo{i_//8}")
        side = kvs + oth
        while len(side) > nslots:
            for k in range(len(side) - 1):
                if all(isinstance(x, str) and x.startswith("s_") and "m0" not in x for x in side[k]):
                    side[k+1] = side[k] + side[k+1]; side.pop(k); break
            else:
                raise Exception("slots")
        n = len(side)
        nv = sum(isinstance(x, tuple) for g in side for x in g)
        if n < nslots and nv >= o.get("spread", 1):
            sp = [[] for _ in range(nslots)]
            for k, g in enumerate(side): sp[k*nslots//n] = g
            side = sp
        if c == 0:
            poll_check(a, "L_PKV2", 21, 17, 31, "pKV2", mask=2)
        if c == 1:
            poll_check(a, "L_PKV3", 21, 17, 31, "pKV3", mask=0xffff)
            poll_check(a, "L_PH", 22, 18, 33, "pH")
            a(f"s_sub_u32 s38, s{sHalo}, 4096")
            a(f"s_cmp_eq_u32 s{sSeq}, 0")
            a(f"s_cselect_b32 s38, {OOB}, s38")
            a.emit((f"buffer_load_dwordx4 {vr(HK, 4)}, v{vL16}, {WS}, s38 offen sc1", "hl"))
            a.emit((f"buffer_load_dwordx4 {vr(HK+4, 4)}, v{vL16}, {WS}, s38 offen offset:1024 sc1", "hl"))
            a.emit((f"buffer_load_dwordx4 {vr(HV, 4)}, v{vL16}, {WS}, s38 offen offset:2048 sc1", "hl"))
        if c == 2:
            a(f"s_cmp_lg_u32 s{sPASS}, 0")
            a("s_cbranch_scc1 L_LOC0X")
            a(f"s_cmp_eq_u32 s{sSeq}, 0")
            a("s_cbranch_scc0 L_MASKOK")
            for i in range(8): a(f"v_mov_b32 v{vMc+16+i}, {NEGBIG}")
            a("L_MASKOK:")
            for s in a.ob1: a.emit(s)
            st = local_tile(a, pQB[0], pKB[0], pVB[0], HK, HV, 96, 112, 208, 168, 236, 23, 0, "ob0")
            for x in pko(208): a(x)
            a.emit((st[0][0].format("v[208:211]"), "ob0")); a.emit((st[1][0].format("v[212:215]"), "ob0"))
            a("L_LOC0X:")
            a.stamp("loc0")
        if c == ob_start - 1:
            poll_check(a, "L_POB", 21, 16, 47, "pOB")
        tile(a, 4*c + 3, side)
        tile(a, 4*c + 4, side, end_b=[a.wait(["c1b"]), "s_barrier"] if c == 0 else None)
        tile(a, 4*c + 5, side)
        tile(a, 4*c + 6, side, end_b=[a.wait([f"c{c+2}"], lgkm=True) if c + 2 <= 15 else a.wait(["wo0", "obl"], lgkm=True), "s_barrier"])
        assert not side
        if c in (4, 9): a.stamp(f"c{c}")
        if c == 7:
            for _ in range(o.get("idle_att", 0)): a("s_nop 15")
    assert not wob and not obl, (wob, obl)
    r0 = p4_reads(0) + p4_reads(1)
    tile(a, 63, [r0[0:2], r0[2:4], r0[4:6], r0[6:8], r0[8:10], r0[10:13], r0[13:16]])
    a(f"s_add_u32 s36, s{sOst}, {OA_OFF}")
    a(f"s_add_u32 s37, s{sOst}, {OA_OFF + 65536}")
    a(mf32(ar(aO[1], 16), ar(aV[1], 4), vr(P[1], 4), ar(aO[1], 16)))
    a(smf(1))
    a(mf32(ar(aO[1], 16), ar(aV[1]+4, 4), vr(P[1]+4, 4), ar(aO[1], 16)))
    a.stamp("attend")
    F = L()
    F(f"v_accvgpr_read_b32 v19, a{aL[0]}")
    F(f"v_accvgpr_read_b32 v21, a{aL[0]+1}")
    for i in range(16): F(f"v_accvgpr_read_b32 v{S[0]+i}, a{aO[0]+i}")
    F("v_add_f32 v19, v19, v21")
    F(f"v_accvgpr_read_b32 v20, a{aL[1]}")
    F("v_rcp_f32 v23, v19")
    F(f"v_accvgpr_read_b32 v21, a{aL[1]+1}")
    F("v_add_f32 v20, v20, v21")
    for i in range(16): F(f"v_mul_f32 v{S[0]+i}, v{S[0]+i}, v23")
    F += pko(S[0])
    F("v_rcp_f32 v24, v20")
    F((f"buffer_store_dwordx4 {vr(S[0], 4)}, v{vL16}, {WS}, s36 offen sc1", "oa"))
    F((f"buffer_store_dwordx4 {vr(S[0]+4, 4)}, v{vL16}, {WS}, s36 offen offset:1024 sc1", "oa"))
    for i in range(16): F(f"v_accvgpr_read_b32 v{S[1]+i}, a{aO[1]+i}")
    for i in range(16): F(f"v_mul_f32 v{S[1]+i}, v{S[1]+i}, v24")
    F += pko(S[1])
    F(f"s_mov_b32 s36, {f2u(2.0**64)}")
    F((f"buffer_store_dwordx4 {vr(S[1], 4)}, v{vL16}, {WS}, s37 offen sc1", "oa"))
    F((f"buffer_store_dwordx4 {vr(S[1]+4, 4)}, v{vL16}, {WS}, s37 offen offset:1024 sc1", "oa"))
    F("v_mov_b32 v21, 0")
    for q in range(2):
        for j in range(8): F(f"v_dot2_f32_bf16 v{19+q}, v{S[q]+j}, v21, v{19+q}")
    F("s_nop 2")
    F("v_cmp_nge_f32 s[64:65], s36, v19" if not o.get("stamp") else "v_cmp_nge_f32 s[56:57], s36, v19")
    F("v_cmp_nge_f32 vcc, s36, v20")
    F(f"s_lshl_b32 s37, s{sW}, 2")
    F(f"s_add_u32 s37, s37, {XCH}")
    F("v_mov_b32 v22, s37")
    F("s_nop 1")
    F("s_or_b64 vcc, vcc, s[64:65]" if not o.get("stamp") else "s_or_b64 vcc, vcc, s[56:57]")
    if o.get("force_fallback"): F("s_mov_b64 vcc, -1")
    F(f"s_cmp_lg_u64 vcc, 0\ns_cselect_b32 s36, 1, 0\ns_andn2_b32 s36, s36, s{sPASS}")
    F("v_mov_b32 v21, s36")
    F("ds_write_b32 v22, v21")
    F(f"v_mov_b32 v22, {XCH}")
    a.fin = F
    b = Asm()
    b("L_FALLBACK:")
    b(f"s_mov_b32 s{sPASS}, 1")
    b(f"s_mov_b32 s25, {OOB}")
    b(f"s_mov_b32 s26, {OOB}")
    b(f"v_mov_b32 v19, {NEGBIG}")
    b(f"v_mov_b32 v20, {NEGBIG}")
    b(f"s_lshl_b32 s38, s{sHP}, 19")
    b(f"s_lshl_b32 s39, s{sHH}, 14")
    b("s_add_u32 s38, s38, s39")
    b("s_mov_b32 s39, 0")
    b("L_FB:")
    b("s_and_b32 s36, s39, 3")
    b("s_lshl_b32 s36, s36, 12")
    b("s_lshr_b32 s37, s39, 2")
    b("s_lshl_b32 s37, s37, 15")
    b("s_add_u32 s36, s36, s37")
    b("s_add_u32 s36, s36, s38")
    b(f"buffer_load_dwordx4 {ar(aK, 4)}, v{vL16}, {WS}, s36 offen sc1")
    b(f"buffer_load_dwordx4 {ar(aK+4, 4)}, v{vL16}, {WS}, s36 offen offset:1024 sc1")
    b("s_waitcnt vmcnt(0)")
    for q in range(2): b(mf32(vr(S[q], 16), ar(aK, 4), vr(QA[q], 4), 0))
    for q in range(2): b(mf32(vr(S[q], 16), ar(aK+4, 4), vr(QA[q]+4, 4), vr(S[q], 16)))
    b("s_nop 11")
    for q in range(2):
        for i in range(0, 16, 2): b(f"v_max3_f32 v{19+q}, v{19+q}, v{S[q]+i}, v{S[q]+i+1}")
    b("s_add_u32 s39, s39, 1")
    b("s_cmp_lt_u32 s39, 64")
    b("s_cbranch_scc1 L_FB")
    neg_max(b)
    for s in sel_init(23, 24): b(s)
    b(f"s_lshl_b32 s36, s{sT}, 15")
    b(f"s_add_u32 s{sKVg}, s{sKVp}, s36")
    b(f"s_addc_u32 s{sKVg+1}, s{sKVp+1}, 0")
    b(f"s_add_u32 s36, s{sOrow}, {OB_OFF}")
    b(f"s_add_u32 s{sOg}, s54, s36")
    b(f"s_addc_u32 s{sOg+1}, s55, 0")
    b("v_add_u32 v0, -16384, v0")
    b("s_barrier")
    for g in range(2):
        for k_, s in enumerate(kv_dma(0, g, "")):
            b(s[0] if isinstance(s, tuple) else s)
            if k_ == 0: b("s_nop 0")
    b("s_waitcnt vmcnt(0)")
    b("s_barrier")
    b("s_branch L_ATT0")
    a.tail.append(b.text())

def fW4(G, nt, n=4, d=0):
    fs = G % 3
    return vr(32 + fs*16 + nt*4 + d, n) if fs < 2 else ar(nt*4 + d, n)
def p4_lds(g):
    return g*32768 if g < 4 else [131072, 0, 32768, 65536][g - 4]
def p4_reads(G):
    out = []
    base = p4_lds(G // 8)
    for nt in range(4):
        off = base % 65536 + (G % 8)*4096
        out.append(f"ds_read_b64_tr_b16 {fW4(G, nt, 2)}, v{vWo_r[nt]} offset:{off}")
        out.append(f"ds_read_b64_tr_b16 {fW4(G, nt, 2, 2)}, v{vWo_r[nt]} offset:{off+1024}")
    return out
def woa_dma(g, i):
    pos = (g - 4)*8 + i
    return [[f"s_add_u32 s39, s{sWooff}, {pos*65536}", "s_and_b32 s39, s39, 0x1fffff", f"s_add_u32 m0, s{sWv}, {p4_lds(g) + i*4096}"],
            [(f"buffer_load_dwordx4 v{vWo_g}, s[{sWoA}:{sWoA+3}], s39 offen lds", f"wo{g}")]]
def oa_load(i):
    out = [(f"global_load_dwordx4 {oreg(i)}, v{vL16b if (i & 4) else vL16}, s[{sOg}:{sOg+1}] offset:{(i % 4)*1024} sc1", f"oa{i}")]
    return out
def oa_next():
    return [f"s_add_u32 s{sOoff}, s{sOoff}, 8192", f"s_and_b32 s{sOoff}, s{sOoff}, 0xffff",
            f"s_add_u32 s{sOg}, s{sKVg}, s{sOoff}\ns_addc_u32 s{sOg+1}, s{sKVg+1}, 0"]

def phase4(a):
    o = a.opts
    flag_at = o.get("oaflag_gap", 40)
    poll_at = o.get("oapoll_gap", 84)
    chk_at = o.get("oachk_gap", 96)
    side = {}
    def put(k, l): side.setdefault(k, []).extend(l)
    F = list(a.fin)
    k = 0
    while F:
        n_ = 6 if len(F) > 5*(23 - k) - 5 else 5
        put(k, F[:n_]); F = F[n_:]; k += 1
    assert k <= 23, k
    put(37, [f"s_add_u32 s38, s{sOrow}, {OA_OFF}", f"s_add_u32 s{sKVg}, s54, s38\ns_addc_u32 s{sKVg+1}, s55, 0"])
    put(38, [f"s_add_u32 s{sOg}, s{sKVg}, s{sOoff}\ns_addc_u32 s{sOg+1}, s{sKVg+1}, 0"])
    pre = [f"s_lshl_b32 s38, s{sSeq}, 7",
           f"s_lshl_b32 s47, s{sHead}, 2", "s_add_u32 s38, s38, s47", f"s_add_u32 s35, s38, {F_OA}", f"s_add_u32 s47, s29, {F_OA}",
           f"s_lshl_b32 s36, s{sT4}, 9", f"s_lshl_b32 s37, s{sW}, 7", "s_add_u32 s36, s36, s37", f"s_add_u32 s36, s36, {G_OFF}",
           f"v_and_b32 v24, 60, v16",
           (f"buffer_load_dword v{vG2[0]}, v24, {WS}, s36 offen sc1", "gl"), (f"buffer_load_dword v{vG2[1]}, v24, {WS}, s36 offen offset:64 sc1", "gl")]
    put(24, ["ds_read_b128 v[20:23], v22"])
    for i, x in enumerate(pre): put(25 + i//2, [x])
    put(32, ["v_or_b32 v20, v20, v21", "v_or3_b32 v20, v20, v22, v23"])
    put(33, ["v_readfirstlane_b32 s38, v20"])
    put(35, ["s_cmp_lg_u32 s38, 0\ns_cbranch_scc1 L_FALLBACK"])
    assert flag_at > 35
    put(flag_at, [a.wait(["oa"])]); put(flag_at + 1, flag_store(35, 20, "fOA"))
    put(poll_at, [(f"buffer_load_dword v21, v16, {WS}, s47 offen sc1", "pOA")])
    put(130, [f"v_sub_f32 v{vOM[0]}, 1.0, v{vG2[0]}", f"v_sub_f32 v{vOM[1]}, 1.0, v{vG2[1]}"])
    put(131, [f"v_and_b32 v19, 15, v{vLANE}", f"v_lshrrev_b32 v20, 4, v{vLANE}"])
    put(132, ["v_lshlrev_b32 v20, 4, v20", "v_lshl_add_u32 v19, v19, 11, v20"])
    if o.get("r128", 1):
        put(133, [f"v_and_b32 v20, 8, v{vLANE}", f"v_mul_u32_u24 v20, {2048 - 8}, v20"])
        put(152, ["v_sub_u32 v19, v19, v20", "v_add_u32 v20, 16384, v19"])
    for i in range(32): put(134 + i//2, [f"v_mul_f32 v{ACC4[0][i//16] + i%16}, v{ACC4[0][i//16] + i%16}, v{vOM[i//16]}"])
    put(248, [f"s_lshl_b32 s36, s{sT4}, 18", f"s_lshl_b32 s37, s{sW}, 16"]); put(249, ["s_add_u32 s36, s36, s37", f"s_lshl_b32 s37, s{sC4}, 7"])
    put(250, ["s_add_u32 s36, s36, s37"]); put(251, ["s_add_u32 s37, s36, 32768"])
    a("s_waitcnt lgkmcnt(0)")
    lat = o.get("p4lat", 20)
    jobs = [] if o.get("wbtail", 1) else [[26, 32*2 + 23 - lat, "wb", i] for i in range(24, 32)]
    for g in range(4, 8):
        e = {4: 0, 5: 26, 6: 57, 7: 89}[g]
        jobs += [[{4: 57, 5: 57, 6: 89, 7: 121}[g] if i == 7 else e, 32*(g - 1) + 23 - lat, "wa", (g, i)] for i in range(8)]
    jobs += [[max(chk_at + 1, 2*i + 2), 128 + 4*(i//2) - lat, "oa", i] for i in range(64)]
    gap = o.get("p4gap", 2.0)
    t = float(o.get('wb_at', 19))
    quiet = range(poll_at - o.get("p4quiet", 4), poll_at + 1)
    while jobs:
        k = int(t)
        av = [j for j in jobs if j[0] <= k]
        if not av or k in quiet:
            t = k + 1; continue
        j = min(av, key=lambda j: j[1])
        jobs.remove(j)
        if j[2] == "wb":
            d = wob_dma(j[3], "wo3"); put(k - 1, d[0] + d[1]); put(k, d[2])
        elif j[2] == "wa":
            d = woa_dma(*j[3]); put(k - 1, d[0]); put(k, d[1])
        else:
            put(k, oa_load(j[3]))
            if j[3] % 8 == 7 and j[3] < 63: put(k + 1, oa_next())
        if k > j[1] + 8: print("p4 late", j, k)
        t += gap
    ds = []
    def lg(tags):
        k_ = max([i for i, t_ in enumerate(ds) if t_ in tags], default=-1)
        return min(len(ds) - 1 - k_, 15)
    for G in range(64):
        br = G // 32
        rd = p4_reads(G + 2) if G + 2 < 64 else []
        mv = []
        if G + 3 < 64:
            dlt = (p4_lds((G + 3)//8)//65536 - p4_lds((G + 2)//8)//65536)*65536
            if dlt: mv = [f"v_add_u32 v{vWo_r[nt]}, {dlt}, v{vWo_r[nt]}" for nt in range(4)]
        order = [(nt, mt) for nt in range(4) for mt in range(2)]
        if G == 62: break
        for j in range(8):
            idx = 4*G + j//2
            nt, mt = order[j]
            d = vr(ACC4[br][mt] + nt*4, 4)
            a(mf16(d, fW4(G, nt), oreg((G % 32)*2 + mt), 0 if G % 32 == 0 else d))
            sd = side.get(idx, [])
            if j % 2 == 0:
                for s in [x for x in sd if isinstance(x, str) and x.startswith("ds_read")]:
                    a(s); ds.append("xr")
                sd = [x for x in sd if not (isinstance(x, str) and x.startswith("ds_read"))]
                now, side[idx] = sd[:len(sd)//2], sd[len(sd)//2:]
            else:
                now = side.pop(idx, [])
            if rd:
                a(rd[j]); ds.append(G + 2)
                if mv and j % 2 == 1: a(mv[j//2])
            for s in now:
                a.emit(s)
                if isinstance(s, str) and s.startswith("ds_write"): ds.append("xw")
            if j % 2 == 1:
                if idx == flag_at + 1: a.stamp("fOA")
                if idx == chk_at:
                    poll_check(a, "L_POA", 21, 16, 47, "pOA")
                    a.stamp("pOA")
        if G == 63: break
        w = ""
        need = []
        if G == 61: continue
        if G + 1 >= 32: need.append(f"oa{((G + 1) % 32)*2 + 1}")
        bar = G % 8 == 5 and G // 8 < 7
        if bar and f"wo{G//8 + 1}" in a.vm: need.append(f"wo{G//8 + 1}")
        if need: w += f" vmcnt({a.vmn(need)})"
        if G + 1 >= 2: w += f" lgkmcnt({lg([G + 1, 'xw'])})"
        if w: a("s_waitcnt" + w)
        if bar: a("s_barrier")
        if G == 31: a.stamp("p4B")
    def epi(mt):
        B_, A_ = ACC4[0][mt], ACC4[1][mt]
        fl = ['', 'sc1', 'nt', 'sc0 sc1', 'sc1 nt'][o.get('outflag', 2)]
        l = [f"v_fma_f32 v{B_+i}, v{A_+i}, v{vG2[mt]}, v{B_+i}" for i in range(16)] + packl(B_) + ["s_nop 0"]
        l += [f"v_permlane32_swap_b32 v{B_+x}, v{B_+y}" for x, y in ((0, 2), (1, 3), (4, 6), (5, 7))]
        l += [f"v_permlane16_swap_b32 v{B_+x}, v{B_+y}" for x, y in ((0, 2), (1, 3), (4, 6), (5, 7))]
        if o.get("r128", 1):
            l += [f"v_mov_b32 v{B_+8+i}, v{B_+i}" for i in range(4)]
            l += [f"v_mov_b32_dpp v{B_+i}, v{B_+4+i} row_ror:8 row_mask:0xf bank_mask:0xc" for i in range(4)]
            l += [f"v_mov_b32_dpp v{B_+4+i}, v{B_+8+i} row_ror:8 row_mask:0xf bank_mask:0x3" for i in range(4)]
            l += [(f"buffer_store_dwordx4 {vr(B_+4*k, 4)}, v{19+k}, s[{sOutD}:{sOutD+3}], s{36+mt} offen {fl}", "out") for k in range(2)]
            return l
        l += [(f"buffer_store_dwordx4 {vr(B_+4*k, 4)}, v19, s[{sOutD}:{sOutD+3}], s{36+mt} offen offset:{64*k} {fl}", "out") for k in range(2)]
        return l
    rest = [x for k_ in sorted(side) for x in side[k_]]
    a(f"s_waitcnt vmcnt({a.vmn(['oa63'])}) lgkmcnt(0)")
    for G in (62, 63):
        for nt in range(4):
            d = vr(ACC4[1][0] + nt*4, 4)
            a(mf16(d, fW4(G, nt), oreg((G % 32)*2), d))
            if rest: a.emit(rest.pop(0))
    assert not rest
    e0 = epi(0)
    for k_, (G, nt) in enumerate([(G, nt) for G in (62, 63) for nt in range(4)]):
        d = vr(ACC4[1][1] + nt*4, 4)
        a(mf16(d, fW4(G, nt), oreg((G % 32)*2 + 1), d))
        if k_ >= 2:
            a(e0.pop(0)); a(e0.pop(0))
        else:
            a("s_nop 1")
    a.stamp("p4A")
    for x in e0 + epi(1): a.emit(x)

def gen(opts):
    a = G(opts); a.tail = []
    setup(a); gemm1(a); e1(a); attention(a); phase4(a)
    if opts.get("diag") is not None:
        a.stamp("end")
        a("s_nop 1")
        a(f"v_readlane_b32 s36, v{vSTAMP}, {32 + opts['diag']}")
        a("s_nop 3")
        a("s_add_u32 s36, s36, 10000")
        if opts.get("diagwg") is not None:
            a(f"s_cmp_lg_u32 s2, {opts['diagwg']}")
            a("s_cbranch_scc1 L_END")
        a("L_DIAG:")
        a("s_memrealtime s[38:39]")
        a("s_waitcnt lgkmcnt(0)")
        a("s_sub_u32 s38, s38, s36")
        a("s_cmp_lt_i32 s38, 0")
        a("s_cbranch_scc1 L_DIAG")
    elif opts.get("dbgstamp"):
        a.stamp("end")
        sel = ["karg", "first", "g7", "g15", "g23", "g31", "loc1", "pKV", "c1", "c9", "attend", "pOA", "p4B", "p4A", "end"]
        a(f"s_cmp_lg_u32 s2, {opts['dbgstamp']-1}")
        a("s_cbranch_scc1 L_DBGX")
        a(f"s_cmp_lg_u32 s{sW}, 0")
        a("s_cbranch_scc1 L_DBGX")
        a(f"v_readlane_b32 s36, v{vSTAMP}, 32")
        for i, nm in enumerate(sel):
            a(f"v_readlane_b32 s37, v{vSTAMP}, {32 + a.names.index(nm)}")
            a("s_nop 3")
            a("s_sub_u32 s37, s37, s36")
            a("v_mov_b32 v2, s37")
            a("v_mov_b32 v3, 0")
            a(f"global_store_dword v3, v2, s[{sPDbg}:{sPDbg+1}] offset:{4*(i+1)}")
        a("L_DBGX:")
    elif opts.get("stamp"):
        a.stamp("end")
        a("s_lshl_b32 s36, s2, 2")
        a(f"s_add_u32 s36, s36, s{sW}")
        a("s_lshl_b32 s36, s36, 8")
        a(f"s_add_u32 s36, s36, {STAMP_OFF}")
        a(f"v_lshlrev_b32 v2, 2, v{vLANE}")
        a(f"buffer_store_dword v{vSTAMP}, v2, {WS}, s36 offen")
    a("s_endpgm")
    for t in a.tail: a(t)
    head = f"""; gated mix of full MHA and dilated sliding-window attention: one fused kernel, 256 co-resident workgroups
; @launch grid=(256,1,1) block=(256,1,1) lds=163840
.amdgcn_target "amdgcn-amd-amdhsa--gfx950"
.text
.globl {KNAME}
.p2align 8
.type {KNAME},@function
{KNAME}:
"""
    tail = f"""L_END:
    s_endpgm
.section .rodata,"a"
.p2align 6
.amdhsa_kernel {KNAME}
  .amdhsa_next_free_vgpr 512
  .amdhsa_next_free_sgpr 102
  .amdhsa_accum_offset 256
  .amdhsa_group_segment_fixed_size 0
  .amdhsa_kernarg_size 80
  .amdhsa_user_sgpr_count 2
  .amdhsa_user_sgpr_kernarg_segment_ptr 1
  .amdhsa_system_sgpr_workgroup_id_x 1
.end_amdhsa_kernel
"""
    gen.names = a.names
    return head + a.text() + tail

if __name__ == "__main__":
    import hazard
    opts = {}
    for kv in sys.argv[2:]:
        k, v = kv.split("="); opts[k] = int(v)
    t = gen(opts)
    open(sys.argv[1], "w").write(t)
    print(len(hazard.check(t)), "hazards", gen.names)
```

```python
import sys, struct, math
from asmlib import *

KNAME = "gated_mix__softmax_full_mha__sliding_local_dilated__prompt_kernel"
def f2u(x): return struct.unpack("<I", struct.pack("<f", x))[0]
KV_OFF   = 0
OA_OFF   = 8 << 20
OB_OFF   = 12 << 20
HALO_OFF = 16 << 20
G_OFF    = 20 << 20
FLAG_OFF = 21 << 20
F_KV, F_H, F_OB, F_OA = FLAG_OFF, FLAG_OFF + 4096, FLAG_OFF + 8192, FLAG_OFF + 12288
STAMP_OFF = 0x8000000
OOB = 0x80000000
CSCALE = f2u(math.log2(math.e) / math.sqrt(32.0))
NEGBIG = f2u(-1e30)
X_SLOT = 16384; W_BASE = 49152; W_SLOT = 24576
KV_LDS = [98304, 131072]
XCH = 163840 - 16
sX, sWA, sWB, sWS = 4, 8, 12, 16
sW, sHP, sT, sRH, sHH = 20, 21, 22, 23, 24
sWoff, sXoff = 25, 26
sXw, sWv = 30, 34
sPF, sPFoff, sPFstr, sPFlim = 40, 44, 45, 46
sNONCE, sCS = 60, 61
sSTAMPI = 68
sPWoA, sPWoB, sPG, sPOut, sPDbg = 70, 72, 74, 76, 78
sKVsrc, sKVbase, sKVt, sKVdst = 80, 81, 82, 27
sPASS, sOst, sSpin = 83, 86, 87
sT4, sC4, sOoff, sWooff, sObase = 88, 89, 90, 91, 92
sHalo, sSeq, sO, sOrow, sHead = 93, 94, 95, 96, 97
sWoA, sWoB, sOutD = 4, 8, 12
sCode = 48
vLANE = 1
vXr = [2, 3]; vWr = [[4, 5], [10, 11]]; vWg = [12, 13, 14]; vXg = [15, 16, 17, 18]
vT = [19, 20, 21, 22, 23, 24, 25, 26]
vPF, vPFd, vL16, vSTAMP, vF0 = 27, 28, 29, 30, 31
vMc = 32
ACC0 = 64
def acc(blk, rt): return ACC0 + (blk*2 + rt)*16
QA = [64, 80]; KA = [96, 112]; VA = [128, 144]; QB = [160, 176]; KB = [192, 208]; VB = [224, 240]
NM = [128, 144]; S = [176, 240]; P = [72, 88]
vKV = [6, 7]
vWo_g = 2; vWo_r = [3, 4, 10, 11]; vG2 = [12, 13]; vOM = [14, 8]
vGate, vGrow = 14, 8
HK = 200; HV = 232
def fX(s, rt): return s*32 + rt*4
def fW(s, blk): return s*32 + 8 + blk*4
aK, aV = 0, [8, 16]
aO = [32, 48]; aL = [64, 68]; aONE = 112
aGATE = 80
aX = [0, 16]; aW = [32, 56]; vKS, vKL = 56, 57
aSEL = 72; vIDX = 9
OV = list(range(96, 128, 4)) + list(range(160, 176, 4)) + list(range(192, 240, 4))
def oreg(i): return ar(76 + 4*i, 4) if i < 45 else vr(OV[i - 45], 4)
ACC4 = [[128, 144], [64, 80]]
pKA = [96, 112]; pVA = [104, 120]; pQB = [160, 168]; pKB = [192, 208]; pVB = [224, 216]

def mf32(d, A, B, C): return f"v_mfma_f32_32x32x16_bf16 {d}, {A}, {B}, {C}"
def mf16(d, A, B, C): return f"v_mfma_f32_16x16x32_bf16 {d}, {A}, {B}, {C}"
WS = f"s[{sWS}:{sWS+3}]"

class G(Asm):
    def __init__(self, opts):
        super().__init__()
        self.opts = opts
        self.vm = []
        self.nstamp = 0
        self.names = []
    def emit(self, x):
        if callable(x): x = x()
        if x is None: return
        if isinstance(x, tuple):
            self(x[0]); self.vm.append(x[1])
        else:
            assert not (x.lstrip().startswith(("buffer_", "global_"))), x
            self(x)
    def vmn(self, tags):
        idx = [i for i, t in enumerate(self.vm) if t in tags]
        assert idx, tags
        n = len(self.vm) - 1 - max(idx)
        return min(n, 63)
    def wait(self, tags, lgkm=False):
        return lambda: f"s_waitcnt vmcnt({self.vmn(tags)})" + (" lgkmcnt(0)" if lgkm else "")
    def stamp(self, name):
        if not self.opts.get("stamp"): return
        if self.opts["stamp"] == 2 and name not in ("start", "g31", "c1", "attend", "end", "gP", "c4"): return
        self.names.append(name)
        a = self
        a("s_memtime s[66:67]")
        a("s_memrealtime s[64:65]")
        a("s_waitcnt lgkmcnt(0)")
        a(f"v_writelane_b32 v{vSTAMP}, s66, {self.nstamp}")
        a(f"v_writelane_b32 v{vSTAMP}, s64, {self.nstamp + 32}")
        self.nstamp += 1
        assert self.nstamp <= 32
    def inter(self, mains, sides):
        for i, m in enumerate(mains):
            if m is not None: self.emit(m)
            for s in sides.get(i, []): self.emit(s)

def srd(a, s, lo, hi, nbytes):
    a(f"s_mov_b32 s{s}, s{lo}")
    a(f"s_and_b32 s{s+1}, s{hi}, 0xffff")
    a(f"s_mov_b32 s{s+2}, {nbytes}")
    a(f"s_mov_b32 s{s+3}, 0x20000")

def pf_round(a):
    return [(f"buffer_load_dword v{vPFd}, v{vPF}, s[{sPF}:{sPF+3}], s{sPFoff} offen{' nt' if a.opts.get('pfnt') else ''}", "pf"),
            f"s_add_u32 s{sPFoff}, s{sPFoff}, s{sPFstr}"]

class P1:
    def __init__(self, a):
        self.a = a; self.wnext = [0]*6; self.xnext = [0]*4
    def dma(self, piece):
        kind, j, p = piece
        if kind == "W":
            assert self.wnext[p] == j and (p < 3 or self.wnext[p - 3] == j + 1) and (p >= 3 or self.wnext[p + 3] == j)
            self.wnext[p] += 1
            s = sWA if p < 3 else sWB
            return ([f"s_add_u32 m0, s{sWv}, {W_BASE + (j % 4)*W_SLOT + p*4096}"],
                    (f"global_load_lds_dwordx4 v{vWg[p % 3]}, s[{s}:{s+1}] {['', 'sc1', 'sc0', 'sc0 sc1'][self.a.opts.get('dmafl', 0)]}", f"W{j}"),
                    [f"v_add_u32 v{vWg[p % 3]}, 196608, v{vWg[p % 3]}"] if p >= 3 else [])
        assert self.xnext[p] == j
        self.xnext[p] += 1
        return ([f"s_add_u32 m0, s{sXw}, {(j % 3)*X_SLOT + p*1024}"],
                (f"global_load_lds_dwordx4 v{vXg[p]}, s[{sX}:{sX+1}] {['', 'sc1', 'sc0', 'sc0 sc1'][self.a.opts.get('dmafl', 0)]}", f"X{j}"),
                [f"v_add_u32 v{vXg[p]}, 128, v{vXg[p]}"])

def x_reads(xs, u):
    return [f"ds_read_b128 {ar(aX[xs] + mt*4, 4)}, v{vXr[u & 1]} offset:{((u >> 1) % 3)*X_SLOT + mt*2048}" for mt in range(4)]
def w_reads(ws_, u, blks):
    out = []
    sl = u % 4
    for i, blk in enumerate(blks):
        for nt in range(2):
            off = (sl % 2)*W_SLOT + blk*4096
            r = aW[ws_] + (i*2 + nt)*4
            out.append(f"ds_read_b64_tr_b16 {ar(r, 2)}, v{vWr[sl//2][nt]} offset:{off}")
            out.append(f"ds_read_b64_tr_b16 {ar(r + 2, 2)}, v{vWr[sl//2][nt]} offset:{off+512}")
    return out
def g1_mfmas(xs, ws_, blks, mts=(0, 1, 2, 3), mt_outer=False):
    out = {}
    for i, blk in enumerate(blks):
        for nt in range(2):
            for mt in mts:
                w, x = ar(aW[ws_] + (i*2 + nt)*4, 4), ar(aX[xs] + mt*4, 4)
                if blk % 3 == 2:
                    d = vr(acc(blk, mt >> 1) + ((mt & 1)*2 + nt)*4, 4); out[(i, nt, mt)] = mf16(d, x, w, d)
                else:
                    d = vr(acc(blk, mt >> 1) + (nt*2 + (mt & 1))*4, 4); out[(i, nt, mt)] = mf16(d, w, x, d)
    return out

def setup(a):
    o = a.opts
    a("L_START:")
    a("s_cmp_ge_u32 s2, 256")
    a("s_cbranch_scc1 L_END")
    if o.get("xorid"): a(f"s_xor_b32 s2, s2, {o['xorid']}")
    if o.get("mulid"): a(f"s_mul_i32 s2, s2, {o['mulid']}\ns_and_b32 s2, s2, 255")
    a.stamp("start")
    a("s_load_dwordx4 s[48:51], s[0:1], 0")
    a("s_load_dwordx2 s[52:53], s[0:1], 32")
    a("s_load_dwordx2 s[54:55], s[0:1], 72")
    a(f"s_load_dwordx2 s[{sPWoA}:{sPWoA+1}], s[0:1], 16")
    a(f"s_load_dwordx4 s[{sPWoB}:{sPWoB+3}], s[0:1], 40")
    a(f"s_load_dwordx4 s[{sPOut}:{sPOut+3}], s[0:1], 56")
    if o.get("cpf0", 1):
        n = o.get('codelines', 20)
        a("s_getpc_b64 s[56:57]")
        a("L_PC0:")
        a("s_lshr_b32 s35, s2, 3")
        a(f"s_mul_i32 s35, s35, {n}")
        a(f"v_min_u32 v2, {n-1}, v0")
        a("v_add_u32 v2, s35, v2")
        a("v_lshlrev_b32 v2, 7, v2")
        a("v_min_u32 v2, L_END - L_PC0, v2")
        a.emit((f"global_load_dword v{vPFd}, v2, s[56:57]", "cpf"))
    a(f"v_and_b32 v{vLANE}, 63, v0")
    a(f"v_lshrrev_b32 v{vT[0]}, 6, v0")
    a("s_and_b32 s3, s2, 7")
    a(f"v_readfirstlane_b32 s{sW}, v{vT[0]}")
    a("s_lshr_b32 s35, s2, 3")
    a("s_and_b32 s37, s3, 3")
    a("s_lshl_b32 s36, s37, 2")
    a("s_and_b32 s38, s35, 3")
    a(f"s_add_u32 s{sHP}, s36, s38")
    a("s_lshr_b32 s39, s3, 2")
    a("s_lshl_b32 s36, s39, 3")
    a("s_lshr_b32 s38, s35, 2")
    a(f"s_add_u32 s{sT}, s36, s38")
    a(f"s_and_b32 s{sRH}, s{sW}, 1")
    a(f"s_lshr_b32 s{sHH}, s{sW}, 1")
    t0, t1, t2 = vT[0], vT[1], vT[2]
    if o.get("pfx"):
        a("s_lshl_b32 s38, s35, 5")
    else:
        a("s_lshl_b32 s38, s37, 5")
        a("s_add_u32 s38, s38, s35")
        a("s_lshl_b32 s38, s38, 3")
    a("s_lshl_b32 s47, s39, 10")
    a("s_add_u32 s38, s38, s47")
    a(f"v_add_u32 v{t0}, s38, v{vLANE}")
    a(f"v_lshlrev_b32 v{t0}, 11, v{t0}")
    if o.get("pfmode", 0) == 0:
        a("s_lshl_b32 s39, s39, 5")
        a("s_add_u32 s39, s39, s35")
        a("s_mul_i32 s39, s39, 6144")
        a("s_lshl_b32 s38, s37, 9")
        a("s_add_u32 s39, s39, s38")
        a(f"v_lshrrev_b32 v{t1}, 2, v{vLANE}")
        a(f"v_lshlrev_b32 v{t1}, 11, v{t1}")
        a(f"v_and_b32 v{t2}, 3, v{vLANE}")
        a(f"v_lshlrev_b32 v{t2}, 7, v{t2}")
        a(f"v_add3_u32 v{t1}, v{t1}, v{t2}, s39")
        if o.get("pf3", 1):
            a("s_lshr_b32 s47, s3, 2")
            a("s_xor_b32 s47, s47, 1")
            a("s_lshl_b32 s47, s47, 5")
            a("s_add_u32 s47, s47, s35")
            a("s_mul_i32 s47, s47, 6144")
            a("s_add_u32 s47, s47, s38")
            a(f"s_add_u32 s47, s47, {384 - 12*2048}")
            a(f"v_lshlrev_b32 v{t2}, 11, v{vLANE}")
            a(f"v_add_u32 v{t2}, s47, v{t2}")
            a(f"v_cmp_lt_u32 vcc, 11, v{vLANE}")
            a("s_nop 1")
            a(f"v_cndmask_b32 v{t1}, v{t1}, v{t2}, vcc")
    elif o.get("pfmode", 0) == 2:
        a("s_mul_i32 s39, s35, 12288")
        a("s_lshl_b32 s38, s37, 9")
        a("s_add_u32 s39, s39, s38")
        a(f"v_lshrrev_b32 v{t1}, 2, v{vLANE}")
        a(f"v_lshlrev_b32 v{t1}, 11, v{t1}")
        a(f"v_and_b32 v{t2}, 3, v{vLANE}")
        a(f"v_lshlrev_b32 v{t2}, 7, v{t2}")
        a(f"v_add3_u32 v{t1}, v{t1}, v{t2}, s39")
    else:
        a("s_mul_i32 s39, s2, 1536")
        a(f"v_lshlrev_b32 v{t1}, 7, v{vLANE}")
        a(f"v_add_u32 v{t1}, s39, v{t1}")
    a(f"s_mul_i32 s47, s35, {o.get('codelines', 20)}")
    a(f"v_add_u32 v{t2}, s47, v{vLANE}")
    a(f"v_lshlrev_b32 v{vT[7]}, 7, v{t2}")
    a(f"s_mov_b32 s{sPFstr}, 128")
    a(f"s_cmp_eq_u32 s{sW}, 0")
    a(f"s_cselect_b32 s{sPFstr}, s{sPFstr}, {64*6144}")
    a(f"s_cselect_b32 s38, {32 if o.get('pfx') else 8}, {24 if o.get('pfmode', 0) == 2 else (15 if o.get('pf3', 1) else 12)}")
    a("s_cselect_b64 s[56:57], -1, 0")
    a(f"v_cndmask_b32 v{vPF}, v{t1}, v{t0}, s[56:57]")
    a(f"s_cmp_eq_u32 s{sW}, 3")
    a("s_cselect_b64 s[56:57], -1, 0")
    a(f"v_cndmask_b32 v{vPF}, v{vPF}, v{vT[7]}, s[56:57]")
    a(f"s_cselect_b32 s38, {o.get('codelines', 20)}, s38")
    a(f"s_cselect_b32 s{sPFstr}, 0x4000000, s{sPFstr}")
    a(f"v_cmp_gt_u32 vcc, s38, v{vLANE}")
    a(f"v_mov_b32 v{t2}, {OOB}")
    a(f"s_mov_b32 s{sPFoff}, 0")
    a(f"v_cndmask_b32 v{vPF}, v{t2}, v{vPF}, vcc")
    a(f"v_cmp_gt_u32 vcc, {o.get('codelines', 20)}, v{vLANE}")
    a("s_getpc_b64 s[58:59]")
    a("L_PC:")
    a("s_sub_u32 s58, s58, L_PC - L_START")
    a(f"v_cndmask_b32 v{vT[7]}, v{t2}, v{vT[7]}, vcc")
    a("s_subb_u32 s59, s59, 0")
    r, c, t0, t1 = vT[0], vT[1], vT[2], vT[3]
    a(f"v_lshrrev_b32 v{r}, 3, v{vLANE}")
    a(f"v_and_b32 v{c}, 7, v{vLANE}")
    a(f"v_and_b32 v{t0}, 2, v{r}")
    a(f"s_lshl_b32 s36, s{sRH}, 2")
    a(f"v_xor_b32 v{t0}, v{t0}, v{c}")
    a(f"v_xor_b32 v{t0}, s36, v{t0}")
    a(f"v_lshlrev_b32 v{t0}, 4, v{t0}")
    a(f"v_mul_u32_u24 v{t1}, 6144, v{r}")
    a(f"v_add_u32 v{t0}, v{t0}, v{t1}")
    a(f"s_mul_i32 s36, s{sW}, {8*6144}")
    a(f"s_lshl_b32 s37, s{sHP}, 7")
    a("s_add_u32 s36, s36, s37")
    a(f"v_add_u32 v{vWg[0]}, s36, v{t0}")
    a(f"v_add_u32 v{vWg[1]}, 2048, v{vWg[0]}")
    a(f"v_add_u32 v{vWg[2]}, 4096, v{vWg[0]}")
    a(f"v_lshrrev_b32 v{t0}, 1, v{r}")
    a(f"v_xor_b32 v{t0}, v{t0}, v{c}")
    a(f"v_lshlrev_b32 v{t0}, 4, v{t0}")
    a(f"v_lshlrev_b32 v{t1}, 11, v{r}")
    a(f"v_add_u32 v{t0}, v{t0}, v{t1}")
    a(f"s_lshl_b32 s36, s{sT}, 7")
    a(f"s_lshl_b32 s37, s{sW}, 5")
    a("s_add_u32 s36, s36, s37")
    a("s_lshl_b32 s36, s36, 11")
    a(f"v_add_u32 v{vXg[0]}, s36, v{t0}")
    a(f"v_xor_b32 v{vXg[1]}, 64, v{vXg[0]}")
    a(f"v_add_u32 v{vXg[1]}, {8*2048}, v{vXg[1]}")
    a(f"v_add_u32 v{vXg[2]}, {16*2048}, v{vXg[0]}")
    a(f"v_add_u32 v{vXg[3]}, {16*2048}, v{vXg[1]}")
    a(f"s_lshl_b32 s{sWv}, s{sW}, 10")
    a(f"s_lshl_b32 s{sXw}, s{sW}, 12")
    a("s_waitcnt lgkmcnt(0)")
    a.stamp("karg")
    a(f"s_mov_b32 s{sPF+2}, {1024*3072*2}")
    a(f"s_cmp_eq_u32 s{sW}, 0")
    a(f"s_cselect_b32 s{sPF}, s48, s50")
    a(f"s_cselect_b32 s{sPF+1}, s49, s51")
    a(f"s_cselect_b32 s{sPF+2}, {2048*1024*2}, s{sPF+2}")
    a(f"s_cmp_eq_u32 s{sW}, 2")
    a(f"s_cselect_b32 s{sPF}, s52, s{sPF}")
    a(f"s_cselect_b32 s{sPF+1}, s53, s{sPF+1}")
    a(f"s_cmp_eq_u32 s{sW}, 3")
    a(f"s_cselect_b32 s{sPF}, s58, s{sPF}")
    a(f"s_cselect_b32 s{sPF+1}, s59, s{sPF+1}")
    a(f"s_cselect_b32 s{sPF+2}, L_END - L_START, s{sPF+2}")
    a(f"s_and_b32 s{sPF+1}, s{sPF+1}, 0xffff")
    a(f"s_mov_b32 s{sPF+3}, 0x20000")
    for i in range(o.get("pf0", 2)):
        for s in pf_round(a): a.emit(s)
    srd(a, sX, 48, 49, 2048*1024*2)
    srd(a, sWA, 50, 51, 1024*3072*2)
    srd(a, sWB, 52, 53, 1024*3072*2)

def fillers_prologue(a):
    L = []
    f = L.append
    f("s_mov_b32 s16, s54"); f("s_and_b32 s17, s55, 0xffff"); f("s_mov_b32 s18, 0x10000000"); f("s_mov_b32 s19, 0x20000")
    f(f"s_mov_b32 s{sCode}, s58"); f(f"s_and_b32 s{sCode+1}, s59, 0xffff"); f(f"s_mov_b32 s{sCode+2}, L_END - L_START"); f(f"s_mov_b32 s{sCode+3}, 0x20000")
    m, g_, t0, t1, row = vT[0], vT[1], vT[2], vT[3], vT[4]
    f(f"v_and_b32 v{m}, 15, v{vLANE}")
    f(f"v_lshrrev_b32 v{g_}, 4, v{vLANE}")
    f(f"v_lshrrev_b32 v{t0}, 1, v{m}")
    f(f"v_xor_b32 v{t0}, v{t0}, v{g_}")
    f(f"v_lshlrev_b32 v{t0}, 4, v{t0}")
    f(f"v_lshl_add_u32 v{t0}, v{m}, 7, v{t0}")
    f(f"s_lshl_b32 s36, s{sRH}, 13")
    f(f"v_add_u32 v{vXr[0]}, s36, v{t0}")
    f(f"v_xor_b32 v{vXr[1]}, 64, v{vXr[0]}")
    f(f"v_lshrrev_b32 v{t0}, 2, v{m}")
    f(f"v_lshl_add_u32 v{row}, v{g_}, 3, v{t0}")
    f(f"v_lshrrev_b32 v{t0}, 3, v{m}")
    f(f"v_and_b32 v{t1}, 1, v{g_}")
    f(f"v_lshl_or_b32 v{t0}, v{t1}, 1, v{t0}")
    f(f"s_lshl_b32 s36, s{sHH}, 1")
    f(f"v_xor_b32 v{t0}, s36, v{t0}")
    f(f"v_lshlrev_b32 v{t0}, 5, v{t0}")
    f(f"v_lshl_add_u32 v{t0}, v{row}, 7, v{t0}")
    f(f"v_and_b32 v{t1}, 3, v{m}")
    f(f"v_lshl_add_u32 v{t0}, v{t1}, 3, v{t0}")
    f(f"v_add_u32 v{vWr[0][0]}, {W_BASE}, v{t0}")
    f(f"v_xor_b32 v{vWr[0][1]}, 32, v{vWr[0][0]}")
    f(f"v_add_u32 v{vWr[1][0]}, {2*W_SLOT}, v{vWr[0][0]}")
    f(f"v_add_u32 v{vWr[1][1]}, {2*W_SLOT}, v{vWr[0][1]}")
    for r in range(ACC0, 256):
        f(f"v_mov_b32 v{r}, 0")
    return L

def fillers_late(a):
    L = []
    f = L.append
    q, b, t = vT[0], vT[1], vT[2]
    f(f"v_lshlrev_b32 v{vL16}, 4, v{vLANE}")
    f(f"v_and_b32 v{q}, 31, v{vLANE}")
    f(f"v_lshrrev_b32 v{b}, 5, v{vLANE}")
    f(f"v_lshlrev_b32 v{b}, 2, v{b}")
    f(f"v_sub_u32 v{b}, v{q}, v{b}")
    f(f"v_add_u32 v{b}, 18, v{b}")
    f("v_mov_b32 v58, 0x5555"); f("v_mov_b32 v59, 0")
    f(f"v_lshlrev_b64 v[58:59], v{b}, v[58:59]")
    f("v_not_b32 v58, v58"); f("v_not_b32 v59, v59")
    f(f"s_mov_b32 s36, {NEGBIG}")
    for i in range(24):
        r, src = (i, 59) if i < 16 else (i - 8, 58)
        f(f"v_bfe_i32 v{vMc + i}, v{src}, {8*(r >> 2) + (r & 3)}, 1")
        f(f"v_and_b32 v{vMc + i}, s36, v{vMc + i}")
    f(f"v_lshrrev_b32 v{q}, 2, v{vLANE}")
    f(f"v_lshrrev_b32 v{t}, 4, v{vLANE}")
    f(f"v_xor_b32 v{q}, v{q}, v{t}")
    f(f"v_and_b32 v{q}, 1, v{q}")
    f(f"v_add_u32 v{q}, -1, v{q}")
    f(f"v_and_b32 v{q}, 0x3f803f80, v{q}")
    for i in range(4):
        f(f"v_accvgpr_write_b32 a{aONE+i}, v{q}")
    f(f"v_lshrrev_b32 v{q}, 1, v{vLANE}"); f(f"v_xor_b32 v{q}, v{q}, v{vLANE}"); f(f"v_and_b32 v{q}, 4, v{q}")
    f(f"v_lshl_or_b32 v{q}, v{q}, 1, v{q}"); f(f"v_xor_b32 v{q}, v{q}, v{vLANE}"); f(f"v_lshlrev_b32 v{vKS}, 4, v{q}")
    f(f"v_min_u32 v{vF0}, 1, v{vLANE}")
    f(f"v_lshlrev_b32 v{vF0}, 31, v{vF0}")
    f(f"s_mov_b32 s{sCS}, {CSCALE}"); f(f"s_mov_b32 s62, {CSCALE}"); f(f"s_mov_b32 s63, {CSCALE}")
    f(f"s_lshl_b32 s36, s{sHP}, 19")
    f(f"s_lshl_b32 s37, s{sW}, 13")
    f(f"s_lshl_b32 s38, s{sHH}, 14")
    f(f"s_lshl_b32 s39, s{sRH}, 13")
    f(f"s_add_u32 s{sKVdst}, s38, s39")
    f(f"s_add_u32 s{sKVbase}, s36, s{sKVdst}")
    f(f"s_lshl_b32 s{sKVt}, s{sT}, 15")
    f(f"s_add_u32 s{sKVsrc}, s{sKVbase}, s{sKVt}")
    f(f"s_and_b32 s{sKVt}, s{sT}, 7"); f(f"s_and_b32 s{sKVb}, s{sT}, 8")
    f(f"s_add_u32 s36, s38, {KV_LDS[0]}")
    f(f"v_add_u32 v{vKV[0]}, s36, v{vL16}")
    f(f"v_add_u32 v{vKV[1]}, 32768, v{vKV[0]}")
    f(f"s_lshl_b32 s{sHead}, s{sHP}, 1")
    f(f"s_add_u32 s{sHead}, s{sHead}, s{sHH}")
    f(f"s_lshl_b32 s{sSeq}, s{sT}, 1")
    f(f"s_add_u32 s{sSeq}, s{sSeq}, s{sRH}")
    f(f"s_lshl_b32 s37, s{sSeq}, 6")
    f(f"s_add_u32 s37, s37, s{sHead}")
    f(f"s_lshl_b32 s{sOst}, s37, 11")
    f(f"s_lshl_b32 s38, s{sHead}, 5")
    f(f"s_add_u32 s38, s38, s{sSeq}")
    f(f"s_lshl_b32 s28, s38, 2")
    f(f"s_lshl_b32 s38, s38, 12")
    f(f"s_add_u32 s{sHalo}, s38, {HALO_OFF}")
    f(f"s_mov_b32 s{sPASS}, 0")
    f(f"s_add_u32 s{sKVp}, s54, s{sKVbase}\ns_addc_u32 s{sKVp+1}, s55, 0")
    f("s_lshl_b32 s36, s2, 2"); f(f"s_add_u32 s36, s36, s{sW}"); f("s_lshl_b32 s36, s36, 11")
    f(f"v_and_b32 v24, 15, v{vLANE}"); f("v_lshlrev_b32 v24, 7, v24"); f("v_add_u32 v60, s36, v24")
    f("s_lshr_b32 s36, s2, 3"); f("s_lshl_b32 s36, s36, 2"); f(f"s_add_u32 s36, s36, s{sW}"); f("s_lshl_b32 s36, s36, 14")
    f("v_add_u32 v0, s36, v24")
    f(f"s_lshl_b32 s36, s{sSeq}, 6")
    f(f"s_lshl_b32 s37, s{sHead}, 1")
    f("s_add_u32 s36, s36, s37")
    f(f"v_lshrrev_b32 v9, 5, v{vLANE}")
    f(f"v_add_u32 v{vGrow}, s36, v9")
    f(f"v_and_b32 v25, 31, v{vLANE}")
    f("v_lshlrev_b32 v25, 4, v25")
    f(f"v_lshl_add_u32 v9, v{vGrow}, 11, v25")
    f(f"s_mov_b32 s56, s{sPG}"); f(f"s_and_b32 s57, s{sPG+1}, 0xffff"); f("s_mov_b32 s58, 2048"); f("s_mov_b32 s59, 0x20000")
    f(f"s_lshl_b32 s38, s{sHP}, 2"); f(f"s_add_u32 s38, s38, s{sW}"); f("s_lshl_b32 s38, s38, 6")
    f(f"s_add_u32 s31, s38, {F_KV}"); f(f"s_lshl_b32 s38, s{sT}, 2"); f("s_add_u32 s32, s31, s38")
    f(f"s_add_u32 s33, s28, {F_H - 4}"); f(f"s_cmp_eq_u32 s{sSeq}, 0\ns_cselect_b32 s38, 4, 0"); f("s_add_u32 s33, s33, s38")
    return L

def gemm1(a):
    o = a.opts
    p1 = P1(a)
    W = lambda j, ps: [("W", j, p) for p in ps]
    X = lambda v, ps: [("X", v, p) for p in ps]
    pro = X(0, range(4)) + W(0, range(6)) + W(1, range(6))
    sched = {(0,0): X(1, range(4)) + W(2, [0,1]), (0,1): W(2, [2,3,4,5]) + W(3, [0,1]),
             (1,0): W(3, [2,3,4,5]) + W(4, [0,1]), (1,1): X(2, range(4)) + W(4, [2,3]),
             (2,0): W(4, [4,5]) + W(5, [0,1,2,3]), (2,1): W(5, [4,5]) + X(3, range(4)),
             (3,0): W(6, range(6))}
    for u in range(3, 28):
        v, p0 = ((u + 5)//2, 0) if u & 1 else ((u + 4)//2, 2)
        sched[(u, 1)] = W(u + 4, [0,1,2]) + (X(v, [p0]) if v < 16 else [])
        sched[(u + 1, 0)] = W(u + 4, [3,4,5]) + (X(v, [p0 + 1]) if v < 16 else [])
    if o.get("w1late", 0):
        pro = X(0, range(4)) + W(0, range(6))
        sched.update({(0,0): W(1, range(6)), (0,1): X(1, range(4)) + W(2, [0,1]), (1,0): W(2, [2,3,4,5]) + W(3, [0,1]),
                      (1,1): W(3, [2,3,4,5]) + X(2, [0,1]), (2,0): X(2, [2,3]) + W(4, [0,1,2,3]), (2,1): W(4, [4,5]) + W(5, [0,1,2,3]),
                      (3,0): W(5, [4,5]) + X(3, range(4)), (3,1): W(6, range(6)), (4,0): W(7, range(6)),
                      (4,1): W(8, [0,1,2]) + X(4, [0,1,2]), (5,0): W(8, [3,4,5]) + X(4, [3])})
    U0 = o.get("u0", 28)
    if U0 == 28:
        sched[(27, 1)] = W(31, range(6)); del sched[(28, 0)]
    for (u, hf), ps in sched.items():
        done = u - 1 if hf == 0 else u
        for k, j, p in ps:
            if k == "W": assert j < 4 or done >= j - 4, (u, hf, k, j)
            else: assert j < 3 or done >= 2*(j - 3) + 1, (u, hf, k, j)
    npf0 = o.get("pf0", 2)
    pfs = {}
    r = npf0
    for u in range(0, 32):
        while r < 16 and u >= max(0, 2*r - o.get("pfd", 5)) and pfs.get(u, 0) < 1:
            pfs[u] = pfs.get(u, 0) + 1; r += 1
    fil = fillers_prologue(a)
    late = fillers_late(a)
    if o.get("roll", 0): fil += late; late = []
    per = (len(fil) + len(pro) - 1)//len(pro)
    for i, pc in enumerate(pro):
        pre, d, post = p1.dma(pc)
        for s in pre: a(s)
        chunk = fil[i*per:(i+1)*per]
        a(chunk[0] if chunk else "s_nop 0")
        a.emit(d)
        for s in post + chunk[1:]: a(s)
    a(f"s_or_b32 s36, s2, s{sW}")
    a("s_cmp_lg_u32 s36, 0")
    a("s_cbranch_scc1 L_NONONCE")
    a("s_memrealtime s[36:37]")
    a("v_mov_b32 v20, 0")
    a("s_waitcnt lgkmcnt(0)")
    a("s_or_b32 s36, s36, 1")
    a("v_mov_b32 v19, s36")
    a(f"global_store_dword v20, v19, s[{sPDbg}:{sPDbg+1}] sc1")
    a("L_NONONCE:")
    a.stamp("issued")
    a.emit(a.wait(["X0", "W0"]))
    a("s_barrier")
    a.stamp("first")
    for s in x_reads(0, 0) + w_reads(0, 0, (0, 1, 2)): a(s)
    a("s_waitcnt lgkmcnt(0)")
    def need(u): return [f"W{u}"] + ([f"X{u//2}"] if u % 2 == 0 else [])
    def seq(M, keys=None): return [M[k] for k in (keys or sorted(M))]
    roll = o.get("roll", 0)
    if roll:
        assert U0 == 28 and not late
        for u in (25, 27):
            if pfs.get(u - 12): pfs[u] = 1
        assert all(pfs.get(u, 0) == pfs.get(u + 12, 0) for u in range(4, 16)), pfs
    def half(u, hf):
        if hf == 0: reads = w_reads(1, u, (3, 4, 5))
        else: reads = x_reads((u + 1) & 1, u + 1) + w_reads(0, u + 1, (0, 1, 2) if u + 1 < U0 else (1, 2))
        sides = {}
        ps = sched.get((u, hf), [])
        lay = o.get("glay", 1)
        if lay == 0 or len(ps) > 4:
            for g, rd in enumerate(reads): sides.setdefault(g, []).append(rd)
            D = ([[13, 16, 19, 22], [12, 14, 16, 18, 20, 22]] if hf == 0 else [[17, 19, 21, 23], [13, 15, 17, 19, 21, 23]])[len(ps) > 4]
            if (u, hf) == (0, 0) and o.get("w1late", 0): D = [1, 3, 5, 7, 9, 11]
            for g, pc in zip(D, ps):
                pre, d, post = p1.dma(pc)
                sides.setdefault(g - 1, []).extend(pre)
                sides.setdefault(g, []).insert(0, d)
                sides[g].extend(post)
        else:
            D = {1: [2, 8, 14, 20], 2: [4, 10, 16, 22], 3: [3, 9, 15, 21], 4: [5, 11, 17, 23]}[lay]
            free = [g for g in range(24) if g not in D[:len(ps)]]
            for g, rd in zip(free, reads): sides.setdefault(g, []).append(rd)
            for g, pc in zip(D, ps):
                pre, d, post = p1.dma(pc)
                sides.setdefault(g - 1, []).extend(pre)
                sides.setdefault(g, []).insert(0, d)
                sides.setdefault(min(g + 1, 23), []).extend(post)
        if hf == 0 and pfs.get(u):
            sides.setdefault(23, []).extend(pf_round(a))
        if u >= 4 and late:
            for g in range(24):
                cur = sides.get(g, [])
                if any(isinstance(x, tuple) or x.startswith("ds_") for x in cur): continue
                room = o.get("lateper", 2) - (1 if cur else 0)
                while late and room > 0:
                    x = late.pop(0); sides.setdefault(g, []).append(x); room -= len(x.split("\n"))
        if roll and (u, hf) in ((15, 0), (27, 0)):
            sides.setdefault(14, []).append("s_sub_u32 s35, s35, 1")
        a.inter(seq(g1_mfmas(u & 1, hf, (0, 1, 2) if hf == 0 else (3, 4, 5))), sides)
        if roll and (u, hf) in ((15, 0), (27, 0)):
            a("s_cmp_lg_u32 s35, 0")
        if hf == 0:
            a.emit(a.wait(need(u + 1), lgkm=True))
            a("s_barrier")
        elif u + 1 < U0:
            a("s_waitcnt lgkmcnt(0)")
        if hf == 1 and u % 8 == 7 and not roll: a.stamp(f"g{u}")
    halves = [(u, hf) for u in range(U0) for hf in range(2)]
    if not roll:
        for h in halves: half(*h)
    else:
        for h in halves[:7]: half(*h)
        a("s_mov_b32 s35, 2")
        n0 = len(a.lines)
        for h in halves[7:31]: half(*h)
        p1_ = a.lines[n0:]; del a.lines[n0:]
        for h in halves[31:55]: half(*h)
        p2_ = a.lines[n0:]; del a.lines[n0:]
        assert len(p1_) == len(p2_)
        if o.get("galign"): a(f".p2align {o['galign']}")
        a("L_G1:")
        import re
        for x, y in zip(p1_, p2_):
            if x != y:
                mx, my = re.fullmatch(r"\s*s_waitcnt vmcnt\((\d+)\) lgkmcnt\(0\)", x), re.fullmatch(r"\s*s_waitcnt vmcnt\((\d+)\) lgkmcnt\(0\)", y)
                assert mx and my, (x, y)
                x = f"s_waitcnt vmcnt({min(int(mx.group(1)), int(my.group(1)))}) lgkmcnt(0)"
            a(x)
        a("s_cbranch_scc1 L_G1")
        half(27, 1)
    misc = []
    for j in range(8):
        misc.append((f"buffer_load_dwordx4 {ar(aGATE+4*j, 4)}, v9, s[{sX}:{sX+3}], 0 offen offset:{512*j}" if j < 4 else
                     f"buffer_load_dwordx4 {ar(aGATE+4*j, 4)}, v25, s[56:59], 0 offen offset:{512*(j-4)}", "gate"))
    misc = [(f"global_load_dword v21, v19, s[{sPDbg}:{sPDbg+1}] sc1", "nonce"),
            (f"buffer_load_dword v{vPFd}, v{vT[7]}, s[{sCode}:{sCode+3}], 0 offen", "cpf")] + misc
    if o.get("wom", 1): misc.insert(o.get("wompos", 10), (f"global_load_dword v{vPFd}, v60, s[{sPWoB}:{sPWoB+1}]", "wopf"))
    if o.get("wom", 1) > 1: misc.append((f"global_load_dword v{vPFd}, v60, s[{sPWoA}:{sPWoA+1}]", "wopf"))
    xs, ws_ = U0 & 1, 0
    units = [(u, b) for u in range(U0, 31) for b in ((0, 3), (4, 5))] + [(31, (4, 5)), (31, (3, 0))]
    bfirst = o.get("bfirst", 1)
    if bfirst: units = [(u, (4, 5)) for u in range(U0, 32)] + [(u, (3, 0)) for u in range(U0, 32)]
    for u in range(U0, 32):
        if u < 31:
            a.emit(a.wait(need(u + 1), lgkm=True)); a("s_barrier")
        else:
            a("s_waitcnt lgkmcnt(0)")
        reads = x_reads(1 - xs, u + 1) + w_reads(1 - ws_, u + 1, (1, 2)) if u < 31 else x_reads(1 - xs, U0) + w_reads(1 - ws_, *units[0])
        sides = {}
        for i, rd in enumerate(reads): sides.setdefault(i, []).append(rd)
        if u == U0:
            sides.setdefault(0, []).append("v_mov_b32 v19, 0")
            sides.setdefault(1, []).append(f"s_add_u32 s25, s{sKVsrc}, 4096"); sides.setdefault(2, []).append(f"s_mov_b32 s26, s{sKVsrc}")
        for g in ((12, 13, 15) if U0 == 28 else (12, 13, 14, 15)):
            if misc: sides.setdefault(g, []).append(misc.pop(0))
        M = g1_mfmas(xs, ws_, (1, 2))
        a.inter(seq(M, [(i, nt, mt) for rt in range(2) for i in range(2) for nt in range(2) for mt in (2*rt, 2*rt + 1)]), sides)
        xs ^= 1; ws_ ^= 1
    assert not misc
    a.stamp("gP")
    e1_lists(a)
    kvw = pk16(KA[0], pKA[0]) + a.kv.pop(0) + pk16(VA[0], pVA[0]) + pk16(KA[1], pKA[1]) + pk16(VA[1], pVA[1])
    st_units = {28: [1, 2, 3, 4, 5, 6, 7], 29: [1, 2, 3, 4, 5]}[U0]
    for n, (u, blks) in enumerate(units):
        last = n == len(units) - 1
        a("s_waitcnt lgkmcnt(0)")
        if last: a("s_barrier")
        reads = []
        newx = False
        if not last:
            un, bn = units[n + 1]
            newx = un != u
            reads = (x_reads(1 - xs, un) if newx else []) + w_reads(1 - ws_, un, bn)
        sides = {}
        for i, rd in enumerate(reads): sides.setdefault(i, []).append(rd)
        M = g1_mfmas(xs, ws_, blks)
        keys = None
        if bfirst and n == len(units)//2:
            kvw += pk16(KB[1], pKB[1]) + pk16(VB[1], pVB[1], True) + pk16(KB[0], pKB[0]) + pk16(VB[0], pVB[0], True)
        if n >= len(units) - 2 or (bfirst and n == len(units)//2 - 1):
            keys = [(i, nt, mt) for rt in (1, 0) for i in range(2) for nt in range(2) for mt in (2*rt, 2*rt + 1)]
            if last: keys = [(i, nt, mt) for i in range(2) for rt in (1, 0) for nt in range(2) for mt in (2*rt, 2*rt + 1)]
        if last:
            e1_head(a, sides, kvw if bfirst else None); kvw = []
        else:
            for g in range(4 if n == 0 else 0, 16):
                budget = 1 if g < len(reads) else 2
                if n in st_units and g == 15: budget = 0
                while kvw and budget > 0:
                    cost = 2 if (isinstance(kvw[0], tuple) or "permlane" in kvw[0]) else 1
                    if cost > budget and o.get("rstrict", 1): break
                    sides.setdefault(g, []).append(kvw.pop(0))
                    budget -= cost
        if n in st_units:
            st_ = a.kv.pop(0)
            lo = int(st_[0][0].split("v[")[1].split(":")[0])
            assert not any(isinstance(x, str) and any(f"v{lo+i}," in x.split(None, 1)[1].split(", v")[0] + "," or x.endswith(f" v{lo+i}") and "permlane" in x for i in range(4)) for x in kvw), (n, lo)
            sides.setdefault(1 if last else 15, []).extend(st_)
        a.inter(seq(M, keys), sides)
        ws_ ^= 1
        if newx: xs ^= 1
    assert not kvw
    a.stamp("g31")
    assert not late

def packl(base, out=None):
    out = base if out is None else out
    return [f"v_cvt_pk_bf16_f32 v{out+j}, v{base+2*j}, v{base+2*j+1}" for j in range(8)]
def pk16(base, out=None, vb=False):
    out = base if out is None else out
    l = packl(base, out) + [f"v_permlane16_swap_b32 v{out+i}, v{out+i+2}" for i in (0, 1, 4, 5)]
    if vb: l += [f"v_permlane32_swap_b32 v{out+i}, v{out+i+2}" for i in (0, 1, 4, 5)]
    return l
def pko(base, out=None):
    out = base if out is None else out
    return packl(base, out) + ["s_nop 0"] + [f"v_permlane16_swap_b32 v{out+j}, v{out+4+j}" for j in range(4)]
def pack(a, base, out=None):
    for s in packl(base, out): a(s)
class L(list):
    def __call__(self, s): self.append(s)
    def emit(self, s): self.append(s)
def weave(a, work, extra, first, every):
    nxt = first
    for i, w in enumerate(work):
        while extra and i >= nxt:
            for s in extra.pop(0): a.emit(s)
            nxt += every
        a.emit(w)

def padfill(a, fill, n):
    k = 0
    for f in fill:
        a.emit(f); k += len(f.split("\n")) if isinstance(f, str) else 1
    if k < n: a(f"s_nop {n - k - 1}")

def local_tile(a, Q, Kc, Vc, Kp, Vp1, SC, SP, O, PC, PP, tmp, off, tag, fill1=(), fill2=()):
    m, t = tmp, tmp + 1
    a(mf32(vr(SC, 16), vr(Kc, 4), vr(Q, 4), vr(vMc, 16)))
    a(mf32(vr(SC, 16), vr(Kc+4, 4), vr(Q+4, 4), vr(SC, 16)))
    a(mf32(vr(SP, 16), vr(Kp, 4), vr(Q, 4), vr(vMc + 8, 16)))
    a(mf32(vr(SP, 16), vr(Kp+4, 4), vr(Q+4, 4), vr(SP, 16)))
    padfill(a, fill1, 10)
    vals = [SC + i for i in range(16)] + [SP + 8 + i for i in range(8)]
    a(f"v_max3_f32 v{m}, v{vals[0]}, v{vals[1]}, v{vals[2]}")
    for i in range(3, 23, 2):
        a(f"v_max3_f32 v{m}, v{m}, v{vals[i]}, v{vals[i+1]}")
    a(f"v_max_f32 v{m}, v{m}, v{vals[23]}")
    a(f"v_mov_b32 v{t}, v{m}")
    a("s_nop 1")
    a(f"v_permlane32_swap_b32 v{m}, v{t}")
    a(f"v_max_f32 v{m}, v{m}, v{t}")
    a(f"v_mul_f32 v{m}, s{sCS}, v{m}")
    for v in vals:
        a(f"v_fma_f32 v{v}, v{v}, s{sCS}, -v{m}")
    L = SP
    for i in range(10): a(f"v_exp_f32 v{vals[i]}, v{vals[i]}")
    for j in range(4): a(f"v_cvt_pk_bf16_f32 v{PC+j}, v{SC+2*j}, v{SC+2*j+1}")
    for i in range(10, 13): a(f"v_exp_f32 v{vals[i]}, v{vals[i]}")
    a(mf32(vr(O, 16), vr(Vc, 4), vr(PC, 4), 0))
    for i in range(13, 18): a(f"v_exp_f32 v{vals[i]}, v{vals[i]}")
    a(mf16(vr(L, 4), ar(aONE, 4), vr(PC, 4), 0))
    for j in range(4, 8): a(f"v_cvt_pk_bf16_f32 v{PC+j}, v{SC+2*j}, v{SC+2*j+1}")
    for i in range(18, 20): a(f"v_exp_f32 v{vals[i]}, v{vals[i]}")
    a(mf32(vr(O, 16), vr(Vc+4, 4), vr(PC+4, 4), vr(O, 16)))
    for i in range(20, 24): a(f"v_exp_f32 v{vals[i]}, v{vals[i]}")
    a(mf16(vr(L, 4), ar(aONE, 4), vr(PC+4, 4), vr(L, 4)))
    for j in range(4): a(f"v_cvt_pk_bf16_f32 v{PP+j}, v{SP+8+2*j}, v{SP+9+2*j}")
    a("s_nop 1")
    a(mf16(vr(L, 4), ar(aONE, 4), vr(PP, 4), vr(L, 4)))
    a(mf32(vr(O, 16), vr(Vp1, 4), vr(PP, 4), vr(O, 16)))
    padfill(a, fill2, 7)
    a(f"v_rcp_f32 v{m}, v{L}")
    a(f"s_add_u32 s35, s{sOst}, {OB_OFF + off}")
    a("s_nop 2")
    for i in range(16):
        a(f"v_mul_f32 v{O+i}, v{O+i}, v{m}")
    return [(f"buffer_store_dwordx4 {{0}}, v{vL16}, {WS}, s35 offen sc1", tag),
            (f"buffer_store_dwordx4 {{0}}, v{vL16}, {WS}, s35 offen offset:1024 sc1", tag)]

def flag_store(sreg, vtmp, tag):
    return [f"v_mov_b32 v{vtmp}, s{sNONCE}", (f"buffer_store_dword v{vtmp}, v{vF0}, {WS}, s{sreg} offen sc1", tag)]

def poll_check(a, name, vdst, vaddr, sreg, tag, mask=-1):
    a.emit(a.wait([tag]))
    a(f"v_cmp_ne_u32 vcc, s{sNONCE}, v{vdst}")
    a(f"s_and_b32 s{sSpin}, vcc_lo, {mask}")
    a(f"s_cbranch_scc1 {name}_S")
    a(f"{name}_R:")
    a.tail.append(f"""{name}_S:
    s_mov_b32 s{sSpin}, 0
{name}_L:
    buffer_load_dword v{vdst}, v{vaddr}, {WS}, s{sreg} offen sc1
    s_add_u32 s{sSpin}, s{sSpin}, 1
    s_waitcnt vmcnt(0)
    v_cmp_ne_u32 vcc, s{sNONCE}, v{vdst}
    s_cmp_lt_u32 s{sSpin}, 0x40000
    s_cbranch_scc0 {name}_R
    s_nop 2
    s_and_b32 vcc_hi, vcc_lo, {mask}
    s_cbranch_scc1 {name}_L
    s_branch {name}_R""")

def e1_lists(a):
    a.halo = [[(f"buffer_store_dwordx4 {vr(pKB[1], 4)}, v{vL16}, {WS}, s{sHalo} offen sc1", "halo")],
              [(f"buffer_store_dwordx4 {vr(pKB[1]+4, 4)}, v{vL16}, {WS}, s{sHalo} offen offset:1024 sc1", "halo")],
              [(f"buffer_store_dwordx4 {vr(pVB[1]+4, 4)}, v{vL16}, {WS}, s{sHalo} offen offset:2048 sc1", "halo")]]
    a.kv = []; a.dsw = []
    for rt in range(2):
        for (blk, f0) in ((pKA[rt], 0), (pVA[rt], 2)):
            for f in range(2):
                off = (f0 + f)*1024
                a.kv.append([(f"buffer_store_dwordx4 {vr(blk+4*f, 4)}, v{vL16 if f0 else vKS}, {WS}, s{26 if rt == 0 else 25} offen offset:{off} sc1", "kv")])
                a.dsw.append([f"ds_write_b128 v{22 if f0 else vKL}, {vr(blk+4*f, 4)} offset:{rt*4096 + off}"])

def e1_head(a, sides, left):
    w = [f"s_add_u32 s36, s{sKVdst}, {KV_LDS[0]}", f"v_add_u32 v22, s36, v{vL16}", f"v_add_u32 v{vKL}, s36, v{vKS}", f"v_add_u32 v{vL16b}, 4096, v{vL16}"]
    if left is None: w += pk16(KB[1], pKB[1]) + pk16(VB[1], pVB[1], True) + pk16(KB[0], pKB[0]) + pk16(VB[0], pVB[0], True)
    else: w += left + sel_init(23, 24)[:5] + sel_init(23, 24)[13:]
    a.selrest = sel_init(23, 24) if left is None else sel_init(23, 24)[5:13]
    for g in range(16):
        budget = 2
        if g % 2 == 1 and g > 1:
            sides.setdefault(g, []).extend(a.dsw.pop(0)); budget = 0
        while w and budget > 0:
            x = w.pop(0)
            sides.setdefault(g, []).append(x)
            budget -= 2 if "permlane" in x else (0 if x.startswith("s_") else 1)
    a.e1rest = w

def e1(a):
    o = a.opts
    pend = a.kv + a.halo
    a.emit(a.wait(["nonce"]))
    a(f"v_readfirstlane_b32 s{sNONCE}, v21")
    w = a.e1rest + pk16(QB[1], 240) + a.selrest + pk16(QB[0], pQB[0])
    weave(a, w, a.dsw, 2, 8)
    a(f"s_cmp_eq_u32 s{sNONCE}, 0")
    a("s_cbranch_scc1 L_NONCE_S")
    a("L_NONCE_R:")
    a.tail.append(f"""L_NONCE_S:
    s_mov_b32 s{sSpin}, 0
L_NONCE_L:
    global_load_dword v21, v19, s[{sPDbg}:{sPDbg+1}] sc1
    s_add_u32 s{sSpin}, s{sSpin}, 1
    s_waitcnt vmcnt(0)
    v_readfirstlane_b32 s{sNONCE}, v21
    s_cmp_lt_u32 s{sSpin}, 0x40000
    s_cbranch_scc0 L_NONCE_R
    s_nop 2
    s_cmp_eq_u32 s{sNONCE}, 0
    s_cbranch_scc1 L_NONCE_L
    s_branch L_NONCE_R""")
    for s in pend.pop(0): a.emit(s)
    a.stamp("e1pack")
    qa = []
    for q in QA:
        qa += [f"v_pk_mul_f32 {vr(q+2*j, 2)}, {vr(q+2*j, 2)}, s[62:63]" for j in range(8)] + pk16(q)
    lt = L()
    st = local_tile(lt, 240, pKB[1], pVB[1], pKB[0], pVB[0]+4, 128, 144, 176, 168, 248, 252, 65536, "ob1", fill1=qa[:26], fill2=qa[26:])
    lt += pko(176, 56)
    a.ob1 = [(st[0][0].format("v[56:59]"), "ob1"), (st[1][0].format("v[60:63]"), "ob1")]
    weave(a, lt, pend, o.get("st_a", 40), o.get("st_b", 50))
    for g in pend:
        for s in g: a.emit(s)
    a.stamp("loc1")
    a.emit(a.wait(["kv"], lgkm=True))
    for s in flag_store(32, 20, "fKV"): a.emit(s)
    a("s_barrier")
    a.stamp("fKV")

sKVp, sKVg, sOg, sPFW = 84, 98, 100, 52
vL16b = 5
def kv_dma(slot, group, tag):
    out = [f"s_add_u32 m0, s{sKVdst}, {KV_LDS[slot] + group*4096}"]
    for p in range(4):
        out.append((f"global_load_lds_dwordx4 v{vL16b if group else vL16}, s[{sKVg}:{sKVg+1}] offset:{p*1024} sc1", tag))
    return out
sKVb, sKVd = 3, 34
def kv_advance(c):
    if c <= 7:
        return [f"s_cmp_le_u32 s{sKVt}, {c-1}", f"s_addc_u32 s36, s{sKVb}, {c-1}", "s_lshl_b32 s36, s36, 15",
                f"s_add_u32 s{sKVg}, s{sKVp}, s36", f"s_addc_u32 s{sKVg+1}, s{sKVp+1}, 0"]
    return [f"s_add_u32 s36, s{sKVb}, {c}", "s_and_b32 s36, s36, 15", "s_lshl_b32 s36, s36, 15",
            f"s_add_u32 s{sKVg}, s{sKVp}, s36", f"s_addc_u32 s{sKVg+1}, s{sKVp+1}, 0"]

def sel_init(t0, t1):
    return [f"v_lshrrev_b32 v{t0}, 1, v{vLANE}", f"v_and_b32 v{t0}, 3, v{t0}", f"v_min_u32 v{t1}, 1, v{t0}", f"v_add_u32 v{t1}, -1, v{t1}",
            f"v_and_b32 v{t1}, 0x3f803f80, v{t1}", f"v_accvgpr_write_b32 a{aSEL}, v{t1}", f"v_accvgpr_write_b32 a{aSEL+1}, v{t1}",
            f"v_xor_b32 v{t0}, 2, v{t0}", f"v_min_u32 v{t1}, 1, v{t0}", f"v_add_u32 v{t1}, -1, v{t1}",
            f"v_and_b32 v{t1}, 0x3f803f80, v{t1}", f"v_accvgpr_write_b32 a{aSEL+2}, v{t1}", f"v_accvgpr_write_b32 a{aSEL+3}, v{t1}",
            f"v_and_b32 v{vIDX}, 1, v{vLANE}", f"v_mul_u32_u24 v{vIDX}, 0xaaaa, v{vIDX}", f"v_add_u32 v{vIDX}, 0x4444, v{vIDX}"]
def smf(q): return f"v_smfmac_f32_16x16x64_bf16 {ar(aL[q], 4)}, {ar(aSEL, 4)}, {vr(P[q], 8)}, v{vIDX}"

def H(a, q, vpar, qk=True, pv=True, pv_first=False, slots=None):
    slots = slots or {}
    o = 1 - q
    e = [f"v_exp_f32 v{S[q]+i}, v{S[q]+i}" for i in range(16)]
    c = [f"v_cvt_pk_bf16_f32 v{P[q]+j}, v{S[q]+2*j}, v{S[q]+2*j+1}" for j in range(8)]
    So, Oo = vr(S[o], 16), ar(aO[o], 16)
    M = [mf32(So, ar(aK, 4), vr(QA[o], 4), vr(NM[o], 16)) if qk else None,
         mf32(So, ar(aK+4, 4), vr(QA[o]+4, 4), So) if qk else None,
         mf32(Oo, ar(aV[vpar], 4), vr(P[o], 4), 0 if pv_first else Oo) if pv else None,
         mf32(Oo, ar(aV[vpar]+4, 4), vr(P[o]+4, 4), Oo) if pv else None,
         smf(o) if pv else None, None]
    V = [[e[0], e[1], e[2]], [e[3], c[0], c[1], e[4]], [e[5], e[6], e[7]], [c[2], c[3], e[8], e[9], e[10], e[11], c[4], c[5]],
         [], [e[12], e[13], e[14], e[15], c[6], c[7]]]
    if not pv: V[3] = ["s_nop 0"] + V[3]
    for i in range(6):
        if M[i]: a(M[i])
        for s in slots.get(i, []): a.emit(s)
        for s in V[i]: a(s)

def rdK(slot, off): return [f"ds_read_b128 {ar(aK, 4)}, v{vKV[slot]} offset:{off}", f"ds_read_b128 {ar(aK+4, 4)}, v{vKV[slot]} offset:{off+1024}"]
def rdV(par, slot, off): return [f"ds_read_b128 {ar(aV[par], 4)}, v{vKV[slot]} offset:{off+2048}", f"ds_read_b128 {ar(aV[par]+4, 4)}, v{vKV[slot]} offset:{off+3072}"]

FREE_A = [0, 3, 4]; FREE_B = [2, 3, 4, 5]
TORD = [0, 2, 1, 3]
def tile(a, n, side=None, end_b=None):
    sa = {}; sb = {}
    if n < 63:
        m = n + 1
        k = rdK((m >> 2) & 1, TORD[m & 3]*4096); v = rdV(m & 1, (m >> 2) & 1, TORD[m & 3]*4096)
        sa[1] = [k[0]]; sa[2] = [k[1]]; sa[5] = ["s_waitcnt lgkmcnt(0)"]
        sb[0] = [v[0]]; sb[1] = [v[1]]
    if side is not None:
        for g in FREE_A:
            if side: sa.setdefault(g, []).extend(side.pop(0))
        for g in (FREE_B if end_b is None else FREE_B[:-1]):
            if side: sb.setdefault(g, []).extend(side.pop(0))
        if sb.get(4) and sb.get(5) and isinstance(sb[4][-1], str) and " m0," in sb[4][-1] and isinstance(sb[5][0], tuple):
            if not sb.get(3): sb[3] = sb.pop(4)
            elif len(sb[3]) == 1 and isinstance(sb[3][0], str) and " m0," not in sb[3][0] and not sb[3][0].startswith(("s_cmp", "s_addc", "s_add_u32 s9", "s_add_u32 s10")):
                sb[3], sb[4] = sb[4], sb[3]
            else: sb[4] = sb[4] + ["s_nop 0"]
    if end_b: sb.setdefault(5, []).extend(end_b)
    H(a, 0, (n - 1) & 1, pv=(n != 0), pv_first=(n == 1), slots=sa)
    H(a, 1, n & 1, qk=(n < 63), pv_first=(n == 0), slots=sb)

def neg_max(a):
    for q in range(2): a(f"v_mov_b32 v{21+q}, v{19+q}")
    a("s_nop 0")
    for q in range(2): a(f"v_permlane32_swap_b32 v{19+q}, v{21+q}")
    for q in range(2): a(f"v_max_f32 v{19+q}, v{19+q}, v{21+q}")
    for q in range(2):
        for i in range(16): a(f"v_sub_f32 v{NM[q]+i}, 0, v{19+q}")

def gate_compute(a):
    z, t = 23, 24
    for i in range(16):
        a(f"v_accvgpr_read_b32 v{96+(i%4)}, a{aGATE+i}")
        a(f"v_accvgpr_read_b32 v{100+(i%4)}, a{aGATE+16+i}")
        a(f"v_dot2_f32_bf16 v{z}, v{96+(i%4)}, v{100+(i%4)}, {0 if i == 0 else 'v%d' % z}")
    a("s_nop 2")
    for sh in (8, 4, 2, 1):
        a(f"v_add_f32_dpp v{z}, v{z}, v{z} row_ror:{sh} row_mask:0xf bank_mask:0xf")
        a("s_nop 1")
    a(f"v_mov_b32 v{t}, v{z}")
    a("s_nop 1")
    a(f"v_permlane16_swap_b32 v{z}, v{t}")
    a(f"v_add_f32 v{z}, v{z}, v{t}")
    a(f"v_mul_f32 v{z}, {f2u(-math.log2(math.e))}, v{z}")
    a(f"v_exp_f32 v{z}, v{z}")
    a(f"v_and_b32 v{t}, 31, v{vLANE}")
    a(f"v_add_f32 v{z}, 1.0, v{z}")
    a(f"v_rcp_f32 v{z}, v{z}")
    a(f"v_min_u32 v{t}, 1, v{t}")
    a(f"v_lshlrev_b32 v{t}, 31, v{t}")
    a(f"v_lshl_or_b32 v{t}, v{vGrow}, 2, v{t}")
    a(f"s_mov_b32 s36, {G_OFF}")
    a.emit((f"buffer_store_dword v{z}, v{t}, {WS}, s36 offen sc1", "g"))

def p4_setup(a):
    srd(a, sWoA, sPWoA, sPWoA+1, 1024*1024*2)
    srd(a, sWoB, sPWoB, sPWoB+1, 1024*1024*2)
    srd(a, sOutD, sPOut, sPOut+1, 2048*1024*2)
    a("s_and_b32 s36, s2, 7")
    a("s_lshr_b32 s37, s2, 3")
    a(f"s_and_b32 s{sC4}, s37, 15")
    a("s_lshr_b32 s37, s37, 4")
    a("s_lshl_b32 s36, s36, 1")
    a(f"s_add_u32 s{sT4}, s36, s37")
    r, c, t0, t1 = 200, 201, 202, 203
    a(f"v_lshrrev_b32 v{r}, 3, v{vLANE}")
    a(f"v_and_b32 v{c}, 7, v{vLANE}")
    a(f"v_and_b32 v{t0}, 2, v{r}")
    a(f"s_lshl_b32 s36, s{sHH}, 2")
    a(f"v_xor_b32 v{t0}, v{t0}, v{c}")
    a(f"v_xor_b32 v{t0}, s36, v{t0}")
    a(f"v_lshlrev_b32 v{t0}, 4, v{t0}")
    a(f"v_lshl_add_u32 v{t0}, v{r}, 11, v{t0}")
    a(f"s_lshl_b32 s36, s{sW}, 14")
    a(f"s_lshl_b32 s37, s{sC4}, 7")
    a("s_add_u32 s36, s36, s37")
    a(f"v_add_u32 v{vWo_g}, s36, v{t0}")
    a(f"v_and_b32 v{r}, 15, v{vLANE}")
    a(f"v_lshrrev_b32 v{t0}, 2, v{r}")
    a(f"v_lshrrev_b32 v{t1}, 5, v{vLANE}")
    a(f"v_lshl_add_u32 v{c}, v{t1}, 2, v{t0}")
    a(f"v_and_b32 v{t1}, 16, v{vLANE}")
    a(f"v_add_u32 v{c}, v{c}, v{t1}")
    a(f"v_lshlrev_b32 v{t1}, 2, v{t1}")
    a(f"v_and_b32 v{t0}, 8, v{r}")
    a(f"v_lshl_add_u32 v{t0}, v{t0}, 2, v{t1}")
    a(f"v_lshl_add_u32 v{t0}, v{c}, 7, v{t0}")
    a(f"v_and_b32 v{t1}, 3, v{r}")
    a(f"v_lshl_add_u32 v{vWo_r[0]}, v{t1}, 3, v{t0}")
    for nt in range(1, 4):
        a(f"v_xor_b32 v{vWo_r[nt]}, {32*nt}, v{vWo_r[0]}")
    a(f"s_lshl_b32 s36, s{sT4}, 2")
    a(f"s_add_u32 s36, s36, s{sW}")
    a(f"s_lshl_b32 s{sOrow}, s36, 16")
    a(f"s_lshr_b32 s36, s36, 1")
    a(f"s_lshl_b32 s29, s36, 7")
    a(f"s_lshr_b32 s36, s{sC4}, 1")
    a(f"s_lshl_b32 s{sOoff}, s36, 13")
    a(f"s_lshl_b32 s{sWooff}, s36, 18")
    a(f"v_and_b32 v16, 31, v{vLANE}")
    a("v_lshlrev_b32 v16, 2, v16")
    a(f"v_and_b32 v17, 15, v{vLANE}")
    a(f"v_cmp_le_u32 vcc, s{sKVt}, v17")
    a(f"v_add_u32 v17, s{sKVb}, v17")
    a("s_nop 0")
    a("v_addc_co_u32 v17, vcc, 0, v17, vcc")
    a("v_and_b32 v17, 15, v17")
    a("v_lshlrev_b32 v17, 2, v17")
    a("s_lshl_b32 s36, s2, 2")
    a(f"s_add_u32 s36, s36, s{sW}")
    a("s_lshl_b32 s36, s36, 11")
    a(f"v_and_b32 v25, 7, v{vLANE}")
    a("v_lshlrev_b32 v25, 7, v25")
    a("v_add_u32 v25, s36, v25")
    a("s_lshr_b32 s36, s2, 3")
    a("s_lshl_b32 s36, s36, 2")
    a(f"s_add_u32 s36, s36, s{sW}")
    a("s_lshl_b32 s36, s36, 12")
    a(f"s_add_u32 s36, s36, {24*65536}")
    a(f"v_and_b32 v15, 15, v{vLANE}")
    a("v_lshlrev_b32 v15, 7, v15")
    a("v_add_u32 v15, s36, v15")
    a(f"s_add_u32 s36, s{sOrow}, {OB_OFF}")
    a(f"s_add_u32 s{sOg}, s54, s36")
    a(f"s_addc_u32 s{sOg+1}, s55, 0")

def wob_dma(i, tag):
    return [[f"s_mov_b32 s39, {i*65536}"], [f"s_add_u32 m0, s{sWv}, {i*4096}"],
            [(f"buffer_load_dwordx4 v{vWo_g}, s[{sWoB}:{sWoB+3}], s39 offen lds", tag)]]

def attention(a):
    o = a.opts
    a("L_ATT0:")
    for s in rdK(0, 0) + rdV(0, 0, 0): a(s)
    for s in kv_advance(1): a(s)
    for q in range(2):
        for i in range(4): a(f"v_accvgpr_write_b32 a{aL[q]+i}, 0")
    a(f"s_cmp_lg_u32 s{sPASS}, 0")
    a("s_cbranch_scc1 L_ATT1")
    ps = L(); p4_setup(ps)
    ps_s = [x for x in ps if x.startswith("s_") and "s4," not in x.split()[1] and not any(x.split()[1].startswith(f"s{i},") for i in (4, 5, 6, 7))]
    ps_x = []
    rest = [x for x in ps if x not in ps_x]
    n1 = 22
    for s in rest[:n1]: a(s)
    a("s_waitcnt lgkmcnt(0)")
    for q in range(2): a(mf32(vr(S[q], 16), ar(aK, 4), vr(QA[q], 4), 0))
    for q in range(2): a(mf32(vr(S[q], 16), ar(aK+4, 4), vr(QA[q]+4, 4), vr(S[q], 16)))
    padfill(a, rest[n1:n1+26], 11)
    for q in range(2):
        s, m = S[q], 19 + q
        a(f"v_max3_f32 v{m}, v{s}, v{s+1}, v{s+2}")
        for i in range(3, 15, 2): a(f"v_max3_f32 v{m}, v{m}, v{s+i}, v{s+i+1}")
        a(f"v_max_f32 v{m}, v{m}, v{s+15}")
    for q in range(2): a(f"v_mov_b32 v{21+q}, v{19+q}")
    a("s_nop 0")
    for q in range(2): a(f"v_permlane32_swap_b32 v{19+q}, v{21+q}")
    for q in range(2): a(f"v_max_f32 v{19+q}, v{19+q}, v{21+q}")
    for i in range(16): a(f"v_sub_f32 v{NM[0]+i}, 0, v19")
    for s in rest[n1+26:n1+28]: a(s)
    a(mf32(vr(S[0], 16), ar(aK, 4), vr(QA[0], 4), vr(NM[0], 16)))
    a(mf32(vr(S[0], 16), ar(aK+4, 4), vr(QA[0]+4, 4), vr(S[0], 16)))
    for i in range(16): a(f"v_sub_f32 v{NM[1]+i}, 0, v20")
    for s in rest[n1+28:]: a(s)
    a("v_mov_b32 v18, 0")
    a(f"s_add_u32 s36, s28, {F_H}")
    a.emit(a.wait(["halo"]))
    for s in flag_store(36, 20, "fH"): a.emit(s)
    a("s_branch L_ATT2")
    a("L_ATT1:")
    a("s_waitcnt lgkmcnt(0)")
    a(mf32(vr(S[0], 16), ar(aK, 4), vr(QA[0], 4), vr(NM[0], 16)))
    a(mf32(vr(S[0], 16), ar(aK+4, 4), vr(QA[0]+4, 4), vr(S[0], 16)))
    a("s_nop 11")
    a("L_ATT2:")
    a.stamp("att0")
    pk = [(f"buffer_load_dword v21, v17, {WS}, s31 offen sc1", "pKV")]
    ks = o.get("pk_slot", 0)
    sl = [[] for _ in range(14)]; sl[ks] = pk
    tile(a, 0, sl[0:7]); tile(a, 1, sl[7:14])
    a.stamp("t01")
    d0, d1, adv = kv_dma(1, 0, "c1a"), kv_dma(1, 1, "c1b"), kv_advance(2)
    a(d0[0])
    poll_check(a, "L_PKV", 21, 17, 31, "pKV", mask=1)
    a.stamp("pKV")
    a.emit(d0[1]); a.emit(d0[2])
    tile(a, 2, [[d0[3]], [d0[4]], [(f"buffer_load_dword v21, v17, {WS}, s31 offen sc1", "pKV2")], [d1[0]], [d1[1], d1[2]], [d1[3]], [d1[4]]])
    for s in adv: a(s)
    a.stamp("t2")
    a(f"s_cmp_lg_u32 s{sPASS}, 0")
    a("s_cbranch_scc1 L_A4")
    gate_compute(a)
    a("s_branch L_A5")
    a("L_A4:")
    a("s_waitcnt vmcnt(0)")
    a("L_A5:")
    a.emit(a.wait(["c1a"], lgkm=True))
    a("s_barrier")
    a.pkv2 = True
    a.stamp("c1")
    wob = [i for i in range(24)]
    obl = [i for i in range(64)]
    if o.get('noside'): wob = wob[:1]; obl = obl[:1]
    ob_start = o.get("ob_start", 6)
    obase = False
    for c in range(15):
        V = []; A = []
        side = []
        if c + 2 <= 15:
            d0, d1 = kv_dma(c % 2, 0, f"c{c+2}"), kv_dma(c % 2, 1, f"c{c+2}")
            kvs = [[x] for x in d0] + [[x] for x in d1] + ([[x] for x in kv_advance(c + 3)] if c + 3 <= 15 else [])
        else:
            kvs = []
        oth = []
        if c == 0:
            oth += [[(f"buffer_load_dword v21, v17, {WS}, s31 offen sc1", "pKV3")], [], [], [(f"buffer_load_dword v22, v18, {WS}, s33 offen sc1", "pH")]]
        if c == 3:
            oth += [[f"s_lshl_b32 s38, s{sSeq}, 7"], [f"s_lshl_b32 s39, s{sHead}, 2"], ["s_add_u32 s38, s38, s39"],
                    [f"s_add_u32 s35, s38, {F_OB}"], flag_store(35, 20, "fOB")]
        if c == ob_start - 2:
            oth += [[f"s_add_u32 s47, s29, {F_OB}"], [(f"buffer_load_dword v21, v16, {WS}, s47 offen sc1", "pOB")]]
        if c == o.get("cpf2", 11) or (o.get("cpfn") and c % o["cpfn"] == 2):
            oth += [[(f"buffer_load_dword v{vPFd}, v{vT[7]}, s[{sCode}:{sCode+3}], 0 offen", "cpf")]]
        nslots = 4*7 - 1 - (c == 0)
        if c >= ob_start:
            for _ in range(min(len(obl), o.get("ob_per", 8))):
                i = obl.pop(0)
                oth.append([(f"global_load_dwordx4 {oreg(i)}, v{vL16b if (i & 4) else vL16}, s[{sOg}:{sOg+1}] offset:{(i % 4)*1024} sc1", "obl")])
                if i % 8 == 7:
                    oth += [[f"s_add_u32 s{sOg}, s{sOg}, 8192"], [f"s_addc_u32 s{sOg+1}, s{sOg+1}, 0"]]
        wa0, wa1 = o.get("wam0", 1), o.get("wam1", 3)
        if c in (wa0, wa1):
            oth.insert(0, [(f"global_load_dword v{vPFd}, v25, s[{sPWoA}:{sPWoA+1}] offset:{1024*(c == wa1)}", "wopf")])
        wl = o.get("wol2", 6)
        if wl <= c < wl + 8:
            oth.append([(f"global_load_dword v{vPFd}, v0, s[{sPWoA}:{sPWoA+1}] offset:{((c - wl) & 1)*2048}", "wopf")] + (["v_add_u32 v0, 4096, v0"] if (c - wl) & 1 else []))
        wb0 = 11 if o.get("wbtail", 1) else 13
        if c in (wb0, wb0 + 1) and o.get("wbl2", 0):
            oth.append([(f"global_load_dword v{vPFd}, v15, s[{sPWoB}:{sPWoB+1}] offset:{(c - wb0)*2048}", "wopf")])
        if c == 14 and o.get("wbtail", 1): wob += list(range(24, 32))
        while wob and (len(kvs) + len(oth) + 3 <= nslots or c == 14):
            i_ = wob.pop(0)
            oth += wob_dma(i_, f"wo{i_//8}")
        side = kvs + oth
        while len(side) > nslots:
            for k in range(len(side) - 1):
                if all(isinstance(x, str) and x.startswith("s_") and "m0" not in x for x in side[k]):
                    side[k+1] = side[k] + side[k+1]; side.pop(k); break
            else:
                raise Exception("slots")
        n = len(side)
        nv = sum(isinstance(x, tuple) for g in side for x in g)
        if n < nslots and nv >= o.get("spread", 1):
            sp = [[] for _ in range(nslots)]
            for k, g in enumerate(side): sp[k*nslots//n] = g
            side = sp
        if c == 0:
            poll_check(a, "L_PKV2", 21, 17, 31, "pKV2", mask=2)
        if c == 1:
            poll_check(a, "L_PKV3", 21, 17, 31, "pKV3", mask=0xffff)
            poll_check(a, "L_PH", 22, 18, 33, "pH")
            a(f"s_sub_u32 s38, s{sHalo}, 4096")
            a(f"s_cmp_eq_u32 s{sSeq}, 0")
            a(f"s_cselect_b32 s38, {OOB}, s38")
            a.emit((f"buffer_load_dwordx4 {vr(HK, 4)}, v{vL16}, {WS}, s38 offen sc1", "hl"))
            a.emit((f"buffer_load_dwordx4 {vr(HK+4, 4)}, v{vL16}, {WS}, s38 offen offset:1024 sc1", "hl"))
            a.emit((f"buffer_load_dwordx4 {vr(HV, 4)}, v{vL16}, {WS}, s38 offen offset:2048 sc1", "hl"))
        if c == 2:
            a(f"s_cmp_lg_u32 s{sPASS}, 0")
            a("s_cbranch_scc1 L_LOC0X")
            a(f"s_cmp_eq_u32 s{sSeq}, 0")
            a("s_cbranch_scc0 L_MASKOK")
            for i in range(8): a(f"v_mov_b32 v{vMc+16+i}, {NEGBIG}")
            a("L_MASKOK:")
            for s in a.ob1: a.emit(s)
            st = local_tile(a, pQB[0], pKB[0], pVB[0], HK, HV, 96, 112, 208, 168, 236, 23, 0, "ob0")
            for x in pko(208): a(x)
            a.emit((st[0][0].format("v[208:211]"), "ob0")); a.emit((st[1][0].format("v[212:215]"), "ob0"))
            a("L_LOC0X:")
            a.stamp("loc0")
        if c == ob_start - 1:
            poll_check(a, "L_POB", 21, 16, 47, "pOB")
        tile(a, 4*c + 3, side)
        tile(a, 4*c + 4, side, end_b=[a.wait(["c1b"]), "s_barrier"] if c == 0 else None)
        tile(a, 4*c + 5, side)
        tile(a, 4*c + 6, side, end_b=[a.wait([f"c{c+2}"], lgkm=True) if c + 2 <= 15 else a.wait(["wo0", "obl"], lgkm=True), "s_barrier"])
        assert not side
        if c in (4, 9): a.stamp(f"c{c}")
        if c == 7:
            for _ in range(o.get("idle_att", 0)): a("s_nop 15")
    assert not wob and not obl, (wob, obl)
    r0 = p4_reads(0) + p4_reads(1)
    tile(a, 63, [r0[0:2], r0[2:4], r0[4:6], r0[6:8], r0[8:10], r0[10:13], r0[13:16]])
    a(f"s_add_u32 s36, s{sOst}, {OA_OFF}")
    a(f"s_add_u32 s37, s{sOst}, {OA_OFF + 65536}")
    a(mf32(ar(aO[1], 16), ar(aV[1], 4), vr(P[1], 4), ar(aO[1], 16)))
    a(smf(1))
    a(mf32(ar(aO[1], 16), ar(aV[1]+4, 4), vr(P[1]+4, 4), ar(aO[1], 16)))
    a.stamp("attend")
    F = L()
    F(f"v_accvgpr_read_b32 v19, a{aL[0]}")
    F(f"v_accvgpr_read_b32 v21, a{aL[0]+1}")
    for i in range(16): F(f"v_accvgpr_read_b32 v{S[0]+i}, a{aO[0]+i}")
    F("v_add_f32 v19, v19, v21")
    F(f"v_accvgpr_read_b32 v20, a{aL[1]}")
    F("v_rcp_f32 v23, v19")
    F(f"v_accvgpr_read_b32 v21, a{aL[1]+1}")
    F("v_add_f32 v20, v20, v21")
    for i in range(16): F(f"v_mul_f32 v{S[0]+i}, v{S[0]+i}, v23")
    F += pko(S[0])
    F("v_rcp_f32 v24, v20")
    F((f"buffer_store_dwordx4 {vr(S[0], 4)}, v{vL16}, {WS}, s36 offen sc1", "oa"))
    F((f"buffer_store_dwordx4 {vr(S[0]+4, 4)}, v{vL16}, {WS}, s36 offen offset:1024 sc1", "oa"))
    for i in range(16): F(f"v_accvgpr_read_b32 v{S[1]+i}, a{aO[1]+i}")
    for i in range(16): F(f"v_mul_f32 v{S[1]+i}, v{S[1]+i}, v24")
    F += pko(S[1])
    F(f"s_mov_b32 s36, {f2u(2.0**64)}")
    F((f"buffer_store_dwordx4 {vr(S[1], 4)}, v{vL16}, {WS}, s37 offen sc1", "oa"))
    F((f"buffer_store_dwordx4 {vr(S[1]+4, 4)}, v{vL16}, {WS}, s37 offen offset:1024 sc1", "oa"))
    F("v_mov_b32 v21, 0")
    for q in range(2):
        for j in range(8): F(f"v_dot2_f32_bf16 v{19+q}, v{S[q]+j}, v21, v{19+q}")
    F("s_nop 2")
    F("v_cmp_nge_f32 s[64:65], s36, v19" if not o.get("stamp") else "v_cmp_nge_f32 s[56:57], s36, v19")
    F("v_cmp_nge_f32 vcc, s36, v20")
    F(f"s_lshl_b32 s37, s{sW}, 2")
    F(f"s_add_u32 s37, s37, {XCH}")
    F("v_mov_b32 v22, s37")
    F("s_nop 1")
    F("s_or_b64 vcc, vcc, s[64:65]" if not o.get("stamp") else "s_or_b64 vcc, vcc, s[56:57]")
    if o.get("force_fallback"): F("s_mov_b64 vcc, -1")
    F(f"s_cmp_lg_u64 vcc, 0\ns_cselect_b32 s36, 1, 0\ns_andn2_b32 s36, s36, s{sPASS}")
    F("v_mov_b32 v21, s36")
    F("ds_write_b32 v22, v21")
    F(f"v_mov_b32 v22, {XCH}")
    a.fin = F
    b = Asm()
    b("L_FALLBACK:")
    b(f"s_mov_b32 s{sPASS}, 1")
    b(f"s_mov_b32 s25, {OOB}")
    b(f"s_mov_b32 s26, {OOB}")
    b(f"v_mov_b32 v19, {NEGBIG}")
    b(f"v_mov_b32 v20, {NEGBIG}")
    b(f"s_lshl_b32 s38, s{sHP}, 19")
    b(f"s_lshl_b32 s39, s{sHH}, 14")
    b("s_add_u32 s38, s38, s39")
    b("s_mov_b32 s39, 0")
    b("L_FB:")
    b("s_and_b32 s36, s39, 3")
    b("s_lshl_b32 s36, s36, 12")
    b("s_lshr_b32 s37, s39, 2")
    b("s_lshl_b32 s37, s37, 15")
    b("s_add_u32 s36, s36, s37")
    b("s_add_u32 s36, s36, s38")
    b(f"buffer_load_dwordx4 {ar(aK, 4)}, v{vL16}, {WS}, s36 offen sc1")
    b(f"buffer_load_dwordx4 {ar(aK+4, 4)}, v{vL16}, {WS}, s36 offen offset:1024 sc1")
    b("s_waitcnt vmcnt(0)")
    for q in range(2): b(mf32(vr(S[q], 16), ar(aK, 4), vr(QA[q], 4), 0))
    for q in range(2): b(mf32(vr(S[q], 16), ar(aK+4, 4), vr(QA[q]+4, 4), vr(S[q], 16)))
    b("s_nop 11")
    for q in range(2):
        for i in range(0, 16, 2): b(f"v_max3_f32 v{19+q}, v{19+q}, v{S[q]+i}, v{S[q]+i+1}")
    b("s_add_u32 s39, s39, 1")
    b("s_cmp_lt_u32 s39, 64")
    b("s_cbranch_scc1 L_FB")
    neg_max(b)
    for s in sel_init(23, 24): b(s)
    b(f"s_lshl_b32 s36, s{sT}, 15")
    b(f"s_add_u32 s{sKVg}, s{sKVp}, s36")
    b(f"s_addc_u32 s{sKVg+1}, s{sKVp+1}, 0")
    b(f"s_add_u32 s36, s{sOrow}, {OB_OFF}")
    b(f"s_add_u32 s{sOg}, s54, s36")
    b(f"s_addc_u32 s{sOg+1}, s55, 0")
    b("v_add_u32 v0, -16384, v0")
    b("s_barrier")
    for g in range(2):
        for k_, s in enumerate(kv_dma(0, g, "")):
            b(s[0] if isinstance(s, tuple) else s)
            if k_ == 0: b("s_nop 0")
    b("s_waitcnt vmcnt(0)")
    b("s_barrier")
    b("s_branch L_ATT0")
    a.tail.append(b.text())

def fW4(G, nt, n=4, d=0):
    fs = G % 3
    return vr(32 + fs*16 + nt*4 + d, n) if fs < 2 else ar(nt*4 + d, n)
def p4_lds(g):
    return g*32768 if g < 4 else [131072, 0, 32768, 65536][g - 4]
def p4_reads(G):
    out = []
    base = p4_lds(G // 8)
    for nt in range(4):
        off = base % 65536 + (G % 8)*4096
        out.append(f"ds_read_b64_tr_b16 {fW4(G, nt, 2)}, v{vWo_r[nt]} offset:{off}")
        out.append(f"ds_read_b64_tr_b16 {fW4(G, nt, 2, 2)}, v{vWo_r[nt]} offset:{off+1024}")
    return out
def woa_dma(g, i):
    pos = (g - 4)*8 + i
    return [[f"s_add_u32 s39, s{sWooff}, {pos*65536}", "s_and_b32 s39, s39, 0x1fffff", f"s_add_u32 m0, s{sWv}, {p4_lds(g) + i*4096}"],
            [(f"buffer_load_dwordx4 v{vWo_g}, s[{sWoA}:{sWoA+3}], s39 offen lds", f"wo{g}")]]
def oa_load(i):
    out = [(f"global_load_dwordx4 {oreg(i)}, v{vL16b if (i & 4) else vL16}, s[{sOg}:{sOg+1}] offset:{(i % 4)*1024} sc1", f"oa{i}")]
    return out
def oa_next():
    return [f"s_add_u32 s{sOoff}, s{sOoff}, 8192", f"s_and_b32 s{sOoff}, s{sOoff}, 0xffff",
            f"s_add_u32 s{sOg}, s{sKVg}, s{sOoff}\ns_addc_u32 s{sOg+1}, s{sKVg+1}, 0"]

def phase4(a):
    o = a.opts
    flag_at = o.get("oaflag_gap", 40)
    poll_at = o.get("oapoll_gap", 84)
    chk_at = o.get("oachk_gap", 96)
    side = {}
    def put(k, l): side.setdefault(k, []).extend(l)
    F = list(a.fin)
    k = 0
    while F:
        n_ = 6 if len(F) > 5*(23 - k) - 5 else 5
        put(k, F[:n_]); F = F[n_:]; k += 1
    assert k <= 23, k
    put(37, [f"s_add_u32 s38, s{sOrow}, {OA_OFF}", f"s_add_u32 s{sKVg}, s54, s38\ns_addc_u32 s{sKVg+1}, s55, 0"])
    put(38, [f"s_add_u32 s{sOg}, s{sKVg}, s{sOoff}\ns_addc_u32 s{sOg+1}, s{sKVg+1}, 0"])
    pre = [f"s_lshl_b32 s38, s{sSeq}, 7",
           f"s_lshl_b32 s47, s{sHead}, 2", "s_add_u32 s38, s38, s47", f"s_add_u32 s35, s38, {F_OA}", f"s_add_u32 s47, s29, {F_OA}",
           f"s_lshl_b32 s36, s{sT4}, 9", f"s_lshl_b32 s37, s{sW}, 7", "s_add_u32 s36, s36, s37", f"s_add_u32 s36, s36, {G_OFF}",
           f"v_and_b32 v24, 60, v16",
           (f"buffer_load_dword v{vG2[0]}, v24, {WS}, s36 offen sc1", "gl"), (f"buffer_load_dword v{vG2[1]}, v24, {WS}, s36 offen offset:64 sc1", "gl")]
    put(24, ["ds_read_b128 v[20:23], v22"])
    for i, x in enumerate(pre): put(25 + i//2, [x])
    put(32, ["v_or_b32 v20, v20, v21", "v_or3_b32 v20, v20, v22, v23"])
    put(33, ["v_readfirstlane_b32 s38, v20"])
    put(35, ["s_cmp_lg_u32 s38, 0\ns_cbranch_scc1 L_FALLBACK"])
    assert flag_at > 35
    put(flag_at, [a.wait(["oa"])]); put(flag_at + 1, flag_store(35, 20, "fOA"))
    put(poll_at, [(f"buffer_load_dword v21, v16, {WS}, s47 offen sc1", "pOA")])
    put(130, [f"v_sub_f32 v{vOM[0]}, 1.0, v{vG2[0]}", f"v_sub_f32 v{vOM[1]}, 1.0, v{vG2[1]}"])
    put(131, [f"v_and_b32 v19, 15, v{vLANE}", f"v_lshrrev_b32 v20, 4, v{vLANE}"])
    put(132, ["v_lshlrev_b32 v20, 4, v20", "v_lshl_add_u32 v19, v19, 11, v20"])
    if o.get("ldsout", 1):
        side[131] = []; side[132] = []
        put(200, [f"s_mul_i32 s38, s{sW}, 4608", f"v_and_b32 v20, 15, v{vLANE}"]); put(201, ["s_add_u32 s38, s38, 131072", "v_mul_u32_u24 v20, 144, v20"])
        put(202, [f"v_lshrrev_b32 v21, 4, v{vLANE}", "v_lshl_add_u32 v20, v21, 3, v20"]); put(203, ["v_add_u32 v20, s38, v20", f"v_lshrrev_b32 v22, 3, v{vLANE}"])
        put(204, [f"v_and_b32 v19, 7, v{vLANE}", "v_lshlrev_b32 v19, 4, v19"]); put(205, ["v_mul_u32_u24 v21, 144, v22", "v_add3_u32 v21, v21, v19, s38"])
        put(206, ["v_lshl_add_u32 v19, v22, 11, v19", "v_add_u32 v22, 16384, v19"])
    elif o.get("r128", 0):
        put(133, [f"v_and_b32 v20, 8, v{vLANE}", f"v_mul_u32_u24 v20, {2048 - 8}, v20"])
        put(152, ["v_sub_u32 v19, v19, v20", "v_add_u32 v20, 16384, v19"])
    for i in range(32): put(134 + i//2, [f"v_mul_f32 v{ACC4[0][i//16] + i%16}, v{ACC4[0][i//16] + i%16}, v{vOM[i//16]}"])
    put(248, [f"s_lshl_b32 s36, s{sT4}, 18", f"s_lshl_b32 s37, s{sW}, 16"]); put(249, ["s_add_u32 s36, s36, s37", f"s_lshl_b32 s37, s{sC4}, 7"])
    put(250, ["s_add_u32 s36, s36, s37"]); put(251, ["s_add_u32 s37, s36, 32768"])
    a("s_waitcnt lgkmcnt(0)")
    lat = o.get("p4lat", 20)
    jobs = [] if o.get("wbtail", 1) else [[26, 32*2 + 23 - lat, "wb", i] for i in range(24, 32)]
    for g in range(4, 8):
        e = {4: 0, 5: 26, 6: 57, 7: 89}[g]
        jobs += [[{4: 57, 5: 57, 6: 89, 7: 121}[g] if i == 7 else e, 32*(g - 1) + 23 - lat, "wa", (g, i)] for i in range(8)]
    jobs += [[max(chk_at + 1, 2*i + 2), 128 + 4*(i//2) - lat, "oa", i] for i in range(64)]
    gap = o.get("p4gap", 2.0)
    t = float(o.get('wb_at', 19))
    quiet = range(poll_at - o.get("p4quiet", 4), poll_at + 1)
    while jobs:
        k = int(t)
        av = [j for j in jobs if j[0] <= k]
        if not av or k in quiet:
            t = k + 1; continue
        j = min(av, key=lambda j: j[1])
        jobs.remove(j)
        if j[2] == "wb":
            d = wob_dma(j[3], "wo3"); put(k - 1, d[0] + d[1]); put(k, d[2])
        elif j[2] == "wa":
            d = woa_dma(*j[3]); put(k - 1, d[0]); put(k, d[1])
        else:
            put(k, oa_load(j[3]))
            if j[3] % 8 == 7 and j[3] < 63: put(k + 1, oa_next())
        if k > j[1] + 8: print("p4 late", j, k)
        t += gap
    ds = []
    def lg(tags):
        k_ = max([i for i, t_ in enumerate(ds) if t_ in tags], default=-1)
        return min(len(ds) - 1 - k_, 15)
    for G in range(64):
        br = G // 32
        rd = p4_reads(G + 2) if G + 2 < 64 else []
        mv = []
        if G + 3 < 64:
            dlt = (p4_lds((G + 3)//8)//65536 - p4_lds((G + 2)//8)//65536)*65536
            if dlt: mv = [f"v_add_u32 v{vWo_r[nt]}, {dlt}, v{vWo_r[nt]}" for nt in range(4)]
        order = [(nt, mt) for nt in range(4) for mt in range(2)]
        if G == 62: break
        for j in range(8):
            idx = 4*G + j//2
            nt, mt = order[j]
            d = vr(ACC4[br][mt] + nt*4, 4)
            a(mf16(d, fW4(G, nt), oreg((G % 32)*2 + mt), 0 if G % 32 == 0 else d))
            sd = side.get(idx, [])
            if j % 2 == 0:
                for s in [x for x in sd if isinstance(x, str) and x.startswith("ds_read")]:
                    a(s); ds.append("xr")
                sd = [x for x in sd if not (isinstance(x, str) and x.startswith("ds_read"))]
                now, side[idx] = sd[:len(sd)//2], sd[len(sd)//2:]
            else:
                now = side.pop(idx, [])
            if rd:
                a(rd[j]); ds.append(G + 2)
                if mv and j % 2 == 1: a(mv[j//2])
            for s in now:
                a.emit(s)
                if isinstance(s, str) and s.startswith("ds_write"): ds.append("xw")
            if j % 2 == 1:
                if idx == flag_at + 1: a.stamp("fOA")
                if idx == chk_at:
                    poll_check(a, "L_POA", 21, 16, 47, "pOA")
                    a.stamp("pOA")
        if G == 63: break
        w = ""
        need = []
        if G == 61: continue
        if G + 1 >= 32: need.append(f"oa{((G + 1) % 32)*2 + 1}")
        bar = G % 8 == 5 and G // 8 < 7
        if bar and f"wo{G//8 + 1}" in a.vm: need.append(f"wo{G//8 + 1}")
        if need: w += f" vmcnt({a.vmn(need)})"
        if G + 1 >= 2: w += f" lgkmcnt({lg([G + 1, 'xw'])})"
        if w: a("s_waitcnt" + w)
        if bar: a("s_barrier")
        if G == 31: a.stamp("p4B")
    def epi(mt):
        B_, A_ = ACC4[0][mt], ACC4[1][mt]
        fl = ['', 'sc1', 'nt', 'sc0 sc1', 'sc1 nt'][o.get('outflag', 1)]
        l = [f"v_fma_f32 v{B_+i}, v{A_+i}, v{vG2[mt]}, v{B_+i}" for i in range(16)] + packl(B_)
        if o.get("ldsout", 1):
            return l + [f"ds_write_b64 v20, {vr(B_+2*nt, 2)} offset:{mt*16*144 + 32*nt}" for nt in range(4)]
        l += ["s_nop 0"]
        l += [f"v_permlane32_swap_b32 v{B_+x}, v{B_+y}" for x, y in ((0, 2), (1, 3), (4, 6), (5, 7))]
        l += [f"v_permlane16_swap_b32 v{B_+x}, v{B_+y}" for x, y in ((0, 2), (1, 3), (4, 6), (5, 7))]
        if o.get("r128", 0):
            l += [f"v_mov_b32 v{B_+8+i}, v{B_+i}" for i in range(4)]
            l += [f"v_mov_b32_dpp v{B_+i}, v{B_+4+i} row_ror:8 row_mask:0xf bank_mask:0xc" for i in range(4)]
            l += [f"v_mov_b32_dpp v{B_+4+i}, v{B_+8+i} row_ror:8 row_mask:0xf bank_mask:0x3" for i in range(4)]
            l += [(f"buffer_store_dwordx4 {vr(B_+4*k, 4)}, v{19+k}, s[{sOutD}:{sOutD+3}], s{36+mt} offen {fl}", "out") for k in range(2)]
            return l
        l += [(f"buffer_store_dwordx4 {vr(B_+4*k, 4)}, v19, s[{sOutD}:{sOutD+3}], s{36+mt} offen offset:{64*k} {fl}", "out") for k in range(2)]
        return l
    rest = [x for k_ in sorted(side) for x in side[k_]]
    a(f"s_waitcnt vmcnt({a.vmn(['oa63'])}) lgkmcnt(0)")
    for G in (62, 63):
        for nt in range(4):
            d = vr(ACC4[1][0] + nt*4, 4)
            a(mf16(d, fW4(G, nt), oreg((G % 32)*2), d))
            if rest: a.emit(rest.pop(0))
    assert not rest
    e0 = epi(0)
    for k_, (G, nt) in enumerate([(G, nt) for G in (62, 63) for nt in range(4)]):
        d = vr(ACC4[1][1] + nt*4, 4)
        a(mf16(d, fW4(G, nt), oreg((G % 32)*2 + 1), d))
        if k_ >= 2:
            a(e0.pop(0)); a(e0.pop(0))
        else:
            a("s_nop 1")
    a.stamp("p4A")
    if not o.get("ldsout", 1):
        for x in e0 + epi(1): a.emit(x)
        return
    for x in e0: a.emit(x)
    e1_ = epi(1)
    fl = ['', 'sc1', 'nt', 'sc0 sc1', 'sc1 nt'][o.get('outflag', 1)]
    T = ACC4[1][0]
    def rds(mt): return [f"ds_read_b128 {vr(T + 8*mt + 4*k, 4)}, v21 offset:{(16*mt + 8*k)*144}" for k in range(2)]
    def sts(mt): return [(f"buffer_store_dwordx4 {vr(T + 8*mt + 4*k, 4)}, v{19 if k == 0 else 22}, s[{sOutD}:{sOutD+3}], s{36+mt} offen {fl}", "out") for k in range(2)]
    for x in rds(0): a(x)
    for x in e1_[:24]: a(x)
    a("s_waitcnt lgkmcnt(0)")
    for x in e1_[24:] + rds(1): a(x)
    for x in sts(0): a.emit(x)
    a("s_waitcnt lgkmcnt(0)")
    for x in sts(1): a.emit(x)

def gen(opts):
    a = G(opts); a.tail = []
    setup(a); gemm1(a); e1(a); attention(a); phase4(a)
    if opts.get("diag") is not None:
        a.stamp("end")
        a("s_nop 1")
        a(f"v_readlane_b32 s36, v{vSTAMP}, {32 + opts['diag']}")
        a("s_nop 3")
        a("s_add_u32 s36, s36, 10000")
        if opts.get("diagwg") is not None:
            a(f"s_cmp_lg_u32 s2, {opts['diagwg']}")
            a("s_cbranch_scc1 L_END")
        a("L_DIAG:")
        a("s_memrealtime s[38:39]")
        a("s_waitcnt lgkmcnt(0)")
        a("s_sub_u32 s38, s38, s36")
        a("s_cmp_lt_i32 s38, 0")
        a("s_cbranch_scc1 L_DIAG")
    elif opts.get("dbgstamp"):
        a.stamp("end")
        sel = ["karg", "first", "g7", "g15", "g23", "g31", "loc1", "pKV", "c1", "c9", "attend", "pOA", "p4B", "p4A", "end"]
        a(f"s_cmp_lg_u32 s2, {opts['dbgstamp']-1}")
        a("s_cbranch_scc1 L_DBGX")
        a(f"s_cmp_lg_u32 s{sW}, 0")
        a("s_cbranch_scc1 L_DBGX")
        a(f"v_readlane_b32 s36, v{vSTAMP}, 32")
        for i, nm in enumerate(sel):
            a(f"v_readlane_b32 s37, v{vSTAMP}, {32 + a.names.index(nm)}")
            a("s_nop 3")
            a("s_sub_u32 s37, s37, s36")
            a("v_mov_b32 v2, s37")
            a("v_mov_b32 v3, 0")
            a(f"global_store_dword v3, v2, s[{sPDbg}:{sPDbg+1}] offset:{4*(i+1)}")
        a("L_DBGX:")
    elif opts.get("stamp"):
        a.stamp("end")
        a("s_lshl_b32 s36, s2, 2")
        a(f"s_add_u32 s36, s36, s{sW}")
        a("s_lshl_b32 s36, s36, 8")
        a(f"s_add_u32 s36, s36, {STAMP_OFF}")
        a(f"v_lshlrev_b32 v2, 2, v{vLANE}")
        a(f"buffer_store_dword v{vSTAMP}, v2, {WS}, s36 offen")
    a("s_endpgm")
    for t in a.tail: a(t)
    head = f"""; gated mix of full MHA and dilated sliding-window attention: one fused kernel, 256 co-resident workgroups
; @launch grid=(256,1,1) block=(256,1,1) lds=163840
.amdgcn_target "amdgcn-amd-amdhsa--gfx950"
.text
.globl {KNAME}
.p2align 8
.type {KNAME},@function
{KNAME}:
"""
    tail = f"""L_END:
    s_endpgm
.section .rodata,"a"
.p2align 6
.amdhsa_kernel {KNAME}
  .amdhsa_next_free_vgpr 512
  .amdhsa_next_free_sgpr 102
  .amdhsa_accum_offset 256
  .amdhsa_group_segment_fixed_size 0
  .amdhsa_kernarg_size 80
  .amdhsa_user_sgpr_count 2
  .amdhsa_user_sgpr_kernarg_segment_ptr 1
  .amdhsa_system_sgpr_workgroup_id_x 1
.end_amdhsa_kernel
"""
    gen.names = a.names
    return head + a.text() + tail

if __name__ == "__main__":
    import hazard
    opts = {}
    for kv in sys.argv[2:]:
        k, v = kv.split("="); opts[k] = int(v)
    t = gen(opts)
    open(sys.argv[1], "w").write(t)
    print(len(hazard.check(t)), "hazards", gen.names)
```

```python
import sys, struct, math
from asmlib import *

KNAME = "gated_mix__softmax_full_mha__sliding_local_dilated__prompt_kernel"
def f2u(x): return struct.unpack("<I", struct.pack("<f", x))[0]
KV_OFF   = 0
OA_OFF   = 8 << 20
OB_OFF   = 12 << 20
HALO_OFF = 16 << 20
G_OFF    = 20 << 20
FLAG_OFF = 21 << 20
F_KV, F_H, F_OB, F_OA = FLAG_OFF, FLAG_OFF + 4096, FLAG_OFF + 8192, FLAG_OFF + 12288
STAMP_OFF = 0x8000000
OOB = 0x80000000
CSCALE = f2u(math.log2(math.e) / math.sqrt(32.0))
NEGBIG = f2u(-1e30)
X_SLOT = 16384; W_BASE = 49152; W_SLOT = 24576
KV_LDS = [98304, 131072]
XCH = 163840 - 16
sX, sWA, sWB, sWS = 4, 8, 12, 16
sW, sHP, sT, sRH, sHH = 20, 21, 22, 23, 24
sWoff, sXoff = 25, 26
sXw, sWv = 30, 34
sPF, sPFstr = 44, 46
sNONCE, sCS = 60, 61
sSTAMPI = 68
sPWoA, sPWoB, sPG, sPOut, sPDbg = 70, 72, 74, 76, 78
sKVsrc, sKVbase, sKVt, sKVdst = 80, 81, 82, 27
sPASS, sOst, sSpin = 83, 86, 87
sT4, sC4, sOoff, sWooff, sObase = 88, 89, 90, 91, 92
sHalo, sSeq, sO, sOrow, sHead = 93, 94, 95, 96, 97
sWoA, sWoB, sOutD = 4, 8, 12
sCode = 40
pX, pWA, pWB = 48, 50, 52
vLANE = 1
vXr = [2, 3]; vWr = [[4, 5], [10, 11]]; vWg = [12, 13, 14]; vXg = [15, 16, 17, 18]
vT = [19, 20, 21, 22, 23, 24, 25, 26]
vPF, vPFd, vL16, vSTAMP, vF0 = 27, 28, 29, 30, 31
vMc = 32
ACC0 = 64
def acc(blk, rt): return ACC0 + (blk*2 + rt)*16
QA = [64, 80]; KA = [96, 112]; VA = [128, 144]; QB = [160, 176]; KB = [192, 208]; VB = [224, 240]
NM = [128, 144]; S = [176, 240]; P = [72, 88]
vKV = [6, 7]
vWo_g = 2; vWo_r = [3, 4, 10, 11]; vG2 = [12, 13]; vOM = [14, 8]
vGate, vGrow = 14, 8
HK = 200; HV = 232
def fX(s, rt): return s*32 + rt*4
def fW(s, blk): return s*32 + 8 + blk*4
aK, aV = 0, [8, 16]
aO = [32, 48]; aL = [64, 68]; aONE = 112
aGATE = 80
aX = [0, 16]; aW = [32, 56]; vKS, vKL = 56, 57
aSEL = 72; vIDX = 9
OV = list(range(96, 128, 4)) + list(range(160, 176, 4)) + list(range(192, 240, 4))
def oreg(i): return ar(76 + 4*i, 4) if i < 45 else vr(OV[i - 45], 4)
ACC4 = [[128, 144], [64, 80]]
pKA = [96, 112]; pVA = [104, 120]; pQB = [160, 168]; pKB = [192, 208]; pVB = [224, 216]

def mf32(d, A, B, C): return f"v_mfma_f32_32x32x16_bf16 {d}, {A}, {B}, {C}"
def mf16(d, A, B, C): return f"v_mfma_f32_16x16x32_bf16 {d}, {A}, {B}, {C}"
WS = f"s[{sWS}:{sWS+3}]"

class G(Asm):
    def __init__(self, opts):
        super().__init__()
        self.opts = opts
        self.vm = []
        self.nstamp = 0
        self.names = []
    def emit(self, x):
        if callable(x): x = x()
        if x is None: return
        if isinstance(x, tuple):
            self(x[0]); self.vm.append(x[1])
        else:
            assert not (x.lstrip().startswith(("buffer_", "global_"))), x
            self(x)
    def vmn(self, tags):
        idx = [i for i, t in enumerate(self.vm) if t in tags]
        assert idx, tags
        n = len(self.vm) - 1 - max(idx)
        return min(n, 63)
    def wait(self, tags, lgkm=False):
        return lambda: f"s_waitcnt vmcnt({self.vmn(tags)})" + (" lgkmcnt(0)" if lgkm else "")
    def stamp(self, name):
        if not self.opts.get("stamp"): return
        if self.opts["stamp"] == 2 and name not in ("start", "g31", "c1", "attend", "end", "gP", "c4"): return
        self.names.append(name)
        a = self
        a("s_memtime s[66:67]")
        a("s_memrealtime s[64:65]")
        a("s_waitcnt lgkmcnt(0)")
        a(f"v_writelane_b32 v{vSTAMP}, s66, {self.nstamp}")
        a(f"v_writelane_b32 v{vSTAMP}, s64, {self.nstamp + 32}")
        self.nstamp += 1
        assert self.nstamp <= 32
    def inter(self, mains, sides):
        for i, m in enumerate(mains):
            if m is not None: self.emit(m)
            for s in sides.get(i, []): self.emit(s)

def srd(a, s, lo, hi, nbytes):
    a(f"s_mov_b32 s{s}, s{lo}")
    a(f"s_and_b32 s{s+1}, s{hi}, 0xffff")
    a(f"s_mov_b32 s{s+2}, {nbytes}")
    a(f"s_mov_b32 s{s+3}, 0x20000")

def pf_round(a):
    return [(f"global_load_dword v{vPFd}, v{vPF}, s[{sPF}:{sPF+1}]", "pf"),
            f"v_add_u32 v{vPF}, s{sPFstr}, v{vPF}"]

class P1:
    def __init__(self, a):
        self.a = a; self.wnext = [0]*6; self.xnext = [0]*4
    def dma(self, piece):
        kind, j, p = piece
        if kind == "W":
            assert self.wnext[p] == j and (p < 3 or self.wnext[p - 3] == j + 1) and (p >= 3 or self.wnext[p + 3] == j)
            self.wnext[p] += 1
            s = pWA if p < 3 else pWB
            return ([f"s_add_u32 m0, s{sWv}, {W_BASE + (j % 4)*W_SLOT + p*4096}"],
                    (f"global_load_lds_dwordx4 v{vWg[p % 3]}, s[{s}:{s+1}] {['', 'sc1', 'sc0', 'sc0 sc1'][self.a.opts.get('dmafl', 0)]}", f"W{j}"),
                    [f"v_add_u32 v{vWg[p % 3]}, 196608, v{vWg[p % 3]}"] if p >= 3 else [])
        assert self.xnext[p] == j
        self.xnext[p] += 1
        return ([f"s_add_u32 m0, s{sXw}, {(j % 3)*X_SLOT + p*1024}"],
                (f"global_load_lds_dwordx4 v{vXg[p]}, s[{pX}:{pX+1}] {['', 'sc1', 'sc0', 'sc0 sc1'][self.a.opts.get('dmafl', 0)]}", f"X{j}"),
                [f"v_add_u32 v{vXg[p]}, 128, v{vXg[p]}"])

def x_reads(xs, u):
    return [f"ds_read_b128 {ar(aX[xs] + mt*4, 4)}, v{vXr[u & 1]} offset:{((u >> 1) % 3)*X_SLOT + mt*2048}" for mt in range(4)]
def w_reads(ws_, u, blks):
    out = []
    sl = u % 4
    for i, blk in enumerate(blks):
        for nt in range(2):
            off = (sl % 2)*W_SLOT + blk*4096
            r = aW[ws_] + (i*2 + nt)*4
            out.append(f"ds_read_b64_tr_b16 {ar(r, 2)}, v{vWr[sl//2][nt]} offset:{off}")
            out.append(f"ds_read_b64_tr_b16 {ar(r + 2, 2)}, v{vWr[sl//2][nt]} offset:{off+512}")
    return out
def g1_mfmas(xs, ws_, blks, mts=(0, 1, 2, 3), mt_outer=False):
    out = {}
    for i, blk in enumerate(blks):
        for nt in range(2):
            for mt in mts:
                w, x = ar(aW[ws_] + (i*2 + nt)*4, 4), ar(aX[xs] + mt*4, 4)
                if blk % 3 == 2:
                    d = vr(acc(blk, mt >> 1) + ((mt & 1)*2 + nt)*4, 4); out[(i, nt, mt)] = mf16(d, x, w, d)
                else:
                    d = vr(acc(blk, mt >> 1) + (nt*2 + (mt & 1))*4, 4); out[(i, nt, mt)] = mf16(d, w, x, d)
    return out

def setup(a):
    o = a.opts
    a("L_START:")
    a("s_cmp_ge_u32 s2, 256")
    a("s_cbranch_scc1 L_END")
    if o.get("xorid"): a(f"s_xor_b32 s2, s2, {o['xorid']}")
    if o.get("mulid"): a(f"s_mul_i32 s2, s2, {o['mulid']}\ns_and_b32 s2, s2, 255")
    a.stamp("start")
    a("s_load_dwordx4 s[48:51], s[0:1], 0")
    a("s_load_dwordx2 s[52:53], s[0:1], 32")
    a("s_load_dwordx2 s[54:55], s[0:1], 72")
    a(f"s_load_dwordx2 s[{sPWoA}:{sPWoA+1}], s[0:1], 16")
    a(f"s_load_dwordx4 s[{sPWoB}:{sPWoB+3}], s[0:1], 40")
    a(f"s_load_dwordx4 s[{sPOut}:{sPOut+3}], s[0:1], 56")
    if o.get("cpf0", 1):
        n = o.get('codelines', 20)
        a("s_getpc_b64 s[56:57]")
        a("L_PC0:")
        a("s_lshr_b32 s35, s2, 3")
        a(f"s_mul_i32 s35, s35, {n}")
        a(f"v_min_u32 v2, {n-1}, v0")
        a("v_add_u32 v2, s35, v2")
        a("v_lshlrev_b32 v2, 7, v2")
        a("v_min_u32 v2, L_END - L_PC0, v2")
        a.emit((f"global_load_dword v{vPFd}, v2, s[56:57]", "cpf"))
    a(f"v_lshrrev_b32 v{vT[0]}, 6, v0")
    a(f"v_and_b32 v{vLANE}, 63, v0")
    a("s_and_b32 s37, s2, 3")
    a(f"v_readfirstlane_b32 s{sW}, v{vT[0]}")
    a("s_bfe_u32 s39, s2, 0x10002")
    a("s_lshr_b32 s35, s2, 3")
    a("s_and_b32 s38, s35, 3")
    a(f"s_lshl2_add_u32 s{sHP}, s37, s38")
    a("s_lshr_b32 s38, s35, 2")
    a(f"s_lshl3_add_u32 s{sT}, s39, s38")
    a(f"s_and_b32 s{sRH}, s{sW}, 1")
    r, c, t0, t1 = vT[0], vT[1], vT[2], vT[3]
    a("s_lshl_b32 s38, s37, 5")
    a("s_add_u32 s38, s38, s35")
    a("s_lshl_b32 s38, s38, 14")
    a("s_lshl_b32 s47, s39, 21")
    a("s_add_u32 s38, s38, s47")
    a("s_lshl_b32 s39, s39, 5")
    a("s_add_u32 s39, s39, s35")
    a("s_mul_i32 s39, s39, 6144")
    a("s_lshl_b32 s47, s37, 9")
    a("s_add_u32 s39, s39, s47")
    a(f"s_mov_b32 s{sPFstr}, {64*6144}")
    a(f"s_cmp_eq_u32 s{sW}, 0")
    a("s_cselect_b32 s39, s38, s39")
    a(f"s_cselect_b32 s{sPFstr}, 128, s{sPFstr}")
    a("s_cselect_b32 s38, 7, 11")
    a("s_cselect_b32 s47, 0, 2")
    a("s_cselect_b32 s36, 0, 3")
    a(f"s_cmp_eq_u32 s{sW}, 3")
    a(f"s_cselect_b32 s{sPFstr}, 0, s{sPFstr}")
    a("s_cselect_b32 s38, 0, s38")
    a(f"v_min_u32 v{t0}, s38, v{vLANE}")
    a(f"v_and_b32 v{t1}, s36, v{t0}")
    a(f"v_lshrrev_b32 v{t0}, s47, v{t0}")
    a(f"v_lshlrev_b32 v{t1}, 7, v{t1}")
    a(f"v_lshl_add_u32 v{t0}, v{t0}, 11, v{t1}")
    a(f"v_add_u32 v{vPF}, s39, v{t0}")
    a(f"v_lshrrev_b32 v{r}, 3, v{vLANE}")
    a(f"v_and_b32 v{c}, 7, v{vLANE}")
    a(f"v_lshrrev_b32 v{t0}, 1, v{r}")
    a(f"v_xor_b32 v{t0}, v{t0}, v{c}")
    a(f"v_lshlrev_b32 v{t1}, 11, v{r}")
    a(f"v_lshl_add_u32 v{t0}, v{t0}, 4, v{t1}")
    a(f"s_lshl2_add_u32 s36, s{sT}, s{sW}")
    a("s_lshl_b32 s36, s36, 16")
    a(f"v_add_u32 v{vXg[0]}, s36, v{t0}")
    a(f"v_xor_b32 v{vXg[1]}, 64, v{vXg[0]}")
    a(f"v_add_u32 v{vXg[1]}, {8*2048}, v{vXg[1]}")
    a(f"v_add_u32 v{vXg[2]}, {16*2048}, v{vXg[0]}")
    a(f"v_add_u32 v{vXg[3]}, {16*2048}, v{vXg[1]}")
    a(f"s_lshl_b32 s{sXw}, s{sW}, 12")
    a("s_waitcnt lgkmcnt(0)")
    a.stamp("karg")
    a(f"s_cmp_eq_u32 s{sW}, 0")
    a(f"s_cselect_b64 s[{sPF}:{sPF+1}], s[{pX}:{pX+1}], s[{pWA}:{pWA+1}]")
    a(f"s_cmp_eq_u32 s{sW}, 2")
    a(f"s_cselect_b64 s[{sPF}:{sPF+1}], s[{pWB}:{pWB+1}], s[{sPF}:{sPF+1}]")
    for i in range(o.get("pf0", 2)):
        for s in pf_round(a): a.emit(s)
    a.wsetup = [f"v_and_b32 v{t0}, 2, v{r}", f"s_lshl_b32 s36, s{sRH}, 2", f"v_xor_b32 v{t0}, v{t0}, v{c}", f"v_xor_b32 v{t0}, s36, v{t0}",
                f"v_mul_u32_u24 v{t1}, 6144, v{r}", f"v_lshl_add_u32 v{t0}, v{t0}, 4, v{t1}", f"s_mul_i32 s36, s{sW}, {8*6144}",
                f"s_lshl_b32 s37, s{sHP}, 7", "s_add_u32 s36, s36, s37", f"v_add_u32 v{vWg[0]}, s36, v{t0}",
                f"v_add_u32 v{vWg[1]}, 2048, v{vWg[0]}", f"v_add_u32 v{vWg[2]}, 4096, v{vWg[0]}", f"s_lshl_b32 s{sWv}, s{sW}, 10",
                f"s_lshr_b32 s{sHH}, s{sW}, 1"]

def fillers_prologue(a):
    L = []
    f = L.append
    f("s_mov_b32 s16, s54"); f("s_and_b32 s17, s55, 0xffff"); f("s_mov_b32 s18, 0x10000000"); f("s_mov_b32 s19, 0x20000")
    f(f"s_mov_b32 s{sCode}, s56"); f(f"s_and_b32 s{sCode+1}, s57, 0xffff"); f(f"s_mov_b32 s{sCode+2}, L_END - L_PC0"); f(f"s_mov_b32 s{sCode+3}, 0x20000")
    f(f"s_mov_b32 s{sX}, s{pX}"); f(f"s_and_b32 s{sX+1}, s{pX+1}, 0xffff"); f(f"s_mov_b32 s{sX+2}, {2048*1024*2}"); f(f"s_mov_b32 s{sX+3}, 0x20000")
    n = a.opts.get('codelines', 20)
    f(f"s_mul_i32 s47, s35, {n}"); f(f"v_min_u32 v{vT[7]}, {n-1}, v{vLANE}"); f(f"v_add_u32 v{vT[7]}, s47, v{vT[7]}"); f(f"v_lshlrev_b32 v{vT[7]}, 7, v{vT[7]}")
    m, g_, t0, t1, row = vT[0], vT[1], vT[2], vT[3], vT[4]
    f(f"v_and_b32 v{m}, 15, v{vLANE}")
    f(f"v_lshrrev_b32 v{g_}, 4, v{vLANE}")
    f(f"v_lshrrev_b32 v{t0}, 1, v{m}")
    f(f"v_xor_b32 v{t0}, v{t0}, v{g_}")
    f(f"v_lshlrev_b32 v{t0}, 4, v{t0}")
    f(f"v_lshl_add_u32 v{t0}, v{m}, 7, v{t0}")
    f(f"s_lshl_b32 s36, s{sRH}, 13")
    f(f"v_add_u32 v{vXr[0]}, s36, v{t0}")
    f(f"v_xor_b32 v{vXr[1]}, 64, v{vXr[0]}")
    f(f"v_lshrrev_b32 v{t0}, 2, v{m}")
    f(f"v_lshl_add_u32 v{row}, v{g_}, 3, v{t0}")
    f(f"v_lshrrev_b32 v{t0}, 3, v{m}")
    f(f"v_and_b32 v{t1}, 1, v{g_}")
    f(f"v_lshl_or_b32 v{t0}, v{t1}, 1, v{t0}")
    f(f"s_lshl_b32 s36, s{sHH}, 1")
    f(f"v_xor_b32 v{t0}, s36, v{t0}")
    f(f"v_lshlrev_b32 v{t0}, 5, v{t0}")
    f(f"v_lshl_add_u32 v{t0}, v{row}, 7, v{t0}")
    f(f"v_and_b32 v{t1}, 3, v{m}")
    f(f"v_lshl_add_u32 v{t0}, v{t1}, 3, v{t0}")
    f(f"v_add_u32 v{vWr[0][0]}, {W_BASE}, v{t0}")
    f(f"v_xor_b32 v{vWr[0][1]}, 32, v{vWr[0][0]}")
    f(f"v_add_u32 v{vWr[1][0]}, {2*W_SLOT}, v{vWr[0][0]}")
    f(f"v_add_u32 v{vWr[1][1]}, {2*W_SLOT}, v{vWr[0][1]}")
    for r in range(ACC0, 256):
        f(f"v_mov_b32 v{r}, 0")
    return L

def fillers_late(a):
    L = []
    f = L.append
    q, b, t = vT[0], vT[1], vT[2]
    f(f"v_lshlrev_b32 v{vL16}, 4, v{vLANE}")
    f(f"v_and_b32 v{q}, 31, v{vLANE}")
    f(f"v_lshrrev_b32 v{b}, 5, v{vLANE}")
    f(f"v_lshlrev_b32 v{b}, 2, v{b}")
    f(f"v_sub_u32 v{b}, v{q}, v{b}")
    f(f"v_add_u32 v{b}, 18, v{b}")
    f("v_mov_b32 v58, 0x5555"); f("v_mov_b32 v59, 0")
    f(f"v_lshlrev_b64 v[58:59], v{b}, v[58:59]")
    f("v_not_b32 v58, v58"); f("v_not_b32 v59, v59")
    f(f"s_mov_b32 s36, {NEGBIG}")
    for i in range(24):
        r, src = (i, 59) if i < 16 else (i - 8, 58)
        f(f"v_bfe_i32 v{vMc + i}, v{src}, {8*(r >> 2) + (r & 3)}, 1")
        f(f"v_and_b32 v{vMc + i}, s36, v{vMc + i}")
    f(f"v_lshrrev_b32 v{q}, 2, v{vLANE}")
    f(f"v_lshrrev_b32 v{t}, 4, v{vLANE}")
    f(f"v_xor_b32 v{q}, v{q}, v{t}")
    f(f"v_and_b32 v{q}, 1, v{q}")
    f(f"v_add_u32 v{q}, -1, v{q}")
    f(f"v_and_b32 v{q}, 0x3f803f80, v{q}")
    for i in range(4):
        f(f"v_accvgpr_write_b32 a{aONE+i}, v{q}")
    f(f"v_lshrrev_b32 v{q}, 1, v{vLANE}"); f(f"v_xor_b32 v{q}, v{q}, v{vLANE}"); f(f"v_and_b32 v{q}, 4, v{q}")
    f(f"v_lshl_or_b32 v{q}, v{q}, 1, v{q}"); f(f"v_xor_b32 v{q}, v{q}, v{vLANE}"); f(f"v_lshlrev_b32 v{vKS}, 4, v{q}")
    f(f"v_min_u32 v{vF0}, 1, v{vLANE}")
    f(f"v_lshlrev_b32 v{vF0}, 31, v{vF0}")
    f(f"s_mov_b32 s{sCS}, {CSCALE}"); f(f"s_mov_b32 s62, {CSCALE}"); f(f"s_mov_b32 s63, {CSCALE}")
    f(f"s_lshl_b32 s36, s{sHP}, 19")
    f(f"s_lshl_b32 s37, s{sW}, 13")
    f(f"s_lshl_b32 s38, s{sHH}, 14")
    f(f"s_lshl_b32 s39, s{sRH}, 13")
    f(f"s_add_u32 s{sKVdst}, s38, s39")
    f(f"s_add_u32 s{sKVbase}, s36, s{sKVdst}")
    f(f"s_lshl_b32 s{sKVt}, s{sT}, 15")
    f(f"s_add_u32 s{sKVsrc}, s{sKVbase}, s{sKVt}")
    f(f"s_and_b32 s{sKVt}, s{sT}, 7"); f(f"s_and_b32 s{sKVb}, s{sT}, 8")
    f(f"s_add_u32 s36, s38, {KV_LDS[0]}")
    f(f"v_add_u32 v{vKV[0]}, s36, v{vL16}")
    f(f"v_add_u32 v{vKV[1]}, 32768, v{vKV[0]}")
    f(f"s_lshl_b32 s{sHead}, s{sHP}, 1")
    f(f"s_add_u32 s{sHead}, s{sHead}, s{sHH}")
    f(f"s_lshl_b32 s{sSeq}, s{sT}, 1")
    f(f"s_add_u32 s{sSeq}, s{sSeq}, s{sRH}")
    f(f"s_lshl_b32 s37, s{sSeq}, 6")
    f(f"s_add_u32 s37, s37, s{sHead}")
    f(f"s_lshl_b32 s{sOst}, s37, 11")
    f(f"s_lshl_b32 s38, s{sHead}, 5")
    f(f"s_add_u32 s38, s38, s{sSeq}")
    f(f"s_lshl_b32 s28, s38, 2")
    f(f"s_lshl_b32 s38, s38, 12")
    f(f"s_add_u32 s{sHalo}, s38, {HALO_OFF}")
    f(f"s_mov_b32 s{sPASS}, 0")
    f(f"s_add_u32 s{sKVp}, s54, s{sKVbase}\ns_addc_u32 s{sKVp+1}, s55, 0")
    f("s_lshl_b32 s36, s2, 2"); f(f"s_add_u32 s36, s36, s{sW}"); f("s_lshl_b32 s36, s36, 11")
    f(f"v_and_b32 v24, 15, v{vLANE}"); f("v_lshlrev_b32 v24, 7, v24"); f("v_add_u32 v60, s36, v24")
    f("s_lshr_b32 s36, s2, 3"); f("s_lshl_b32 s36, s36, 2"); f(f"s_add_u32 s36, s36, s{sW}"); f("s_lshl_b32 s36, s36, 14")
    f("v_add_u32 v0, s36, v24")
    f(f"s_lshl_b32 s36, s{sSeq}, 6")
    f(f"s_lshl_b32 s37, s{sHead}, 1")
    f("s_add_u32 s36, s36, s37")
    f(f"v_lshrrev_b32 v9, 5, v{vLANE}")
    f(f"v_add_u32 v{vGrow}, s36, v9")
    f(f"v_and_b32 v25, 31, v{vLANE}")
    f("v_lshlrev_b32 v25, 4, v25")
    f(f"v_lshl_add_u32 v9, v{vGrow}, 11, v25")
    f(f"s_mov_b32 s56, s{sPG}"); f(f"s_and_b32 s57, s{sPG+1}, 0xffff"); f("s_mov_b32 s58, 2048"); f("s_mov_b32 s59, 0x20000")
    f(f"s_lshl_b32 s38, s{sHP}, 2"); f(f"s_add_u32 s38, s38, s{sW}"); f("s_lshl_b32 s38, s38, 6")
    f(f"s_add_u32 s31, s38, {F_KV}"); f(f"s_lshl_b32 s38, s{sT}, 2"); f("s_add_u32 s32, s31, s38")
    f(f"s_add_u32 s33, s28, {F_H - 4}"); f(f"s_cmp_eq_u32 s{sSeq}, 0\ns_cselect_b32 s38, 4, 0"); f("s_add_u32 s33, s33, s38")
    return L

def gemm1(a):
    o = a.opts
    p1 = P1(a)
    W = lambda j, ps: [("W", j, p) for p in ps]
    X = lambda v, ps: [("X", v, p) for p in ps]
    pro = X(0, range(4)) + W(0, range(6)) + W(1, range(6))
    sched = {(0,0): X(1, range(4)) + W(2, [0,1]), (0,1): W(2, [2,3,4,5]) + W(3, [0,1]),
             (1,0): W(3, [2,3,4,5]) + W(4, [0,1]), (1,1): X(2, range(4)) + W(4, [2,3]),
             (2,0): W(4, [4,5]) + W(5, [0,1,2,3]), (2,1): W(5, [4,5]) + X(3, range(4)),
             (3,0): W(6, range(6))}
    for u in range(3, 28):
        v, p0 = ((u + 5)//2, 0) if u & 1 else ((u + 4)//2, 2)
        sched[(u, 1)] = W(u + 4, [0,1,2]) + (X(v, [p0]) if v < 16 else [])
        sched[(u + 1, 0)] = W(u + 4, [3,4,5]) + (X(v, [p0 + 1]) if v < 16 else [])
    if o.get("w1late", 0):
        pro = X(0, range(4)) + W(0, range(6))
        sched.update({(0,0): W(1, range(6)), (0,1): X(1, range(4)) + W(2, [0,1]), (1,0): W(2, [2,3,4,5]) + W(3, [0,1]),
                      (1,1): W(3, [2,3,4,5]) + X(2, [0,1]), (2,0): X(2, [2,3]) + W(4, [0,1,2,3]), (2,1): W(4, [4,5]) + W(5, [0,1,2,3]),
                      (3,0): W(5, [4,5]) + X(3, range(4)), (3,1): W(6, range(6)), (4,0): W(7, range(6)),
                      (4,1): W(8, [0,1,2]) + X(4, [0,1,2]), (5,0): W(8, [3,4,5]) + X(4, [3])})
    U0 = o.get("u0", 28)
    if U0 == 28:
        sched[(27, 1)] = W(31, range(6)); del sched[(28, 0)]
    for (u, hf), ps in sched.items():
        done = u - 1 if hf == 0 else u
        for k, j, p in ps:
            if k == "W": assert j < 4 or done >= j - 4, (u, hf, k, j)
            else: assert j < 3 or done >= 2*(j - 3) + 1, (u, hf, k, j)
    npf0 = o.get("pf0", 2)
    pfs = {}
    r = npf0
    for u in range(0, 32):
        while r < 16 and u >= max(0, 2*r - o.get("pfd", 5)) and pfs.get(u, 0) < 1:
            pfs[u] = pfs.get(u, 0) + 1; r += 1
    fil = fillers_prologue(a)
    late = fillers_late(a)
    if o.get("roll", 0): fil += late; late = []
    ws_ = a.wsetup
    chunks = [ws_[0:4], ws_[4:8], ws_[8:11], ws_[11:14]]
    per = (len(fil) + len(pro) - 5)//(len(pro) - 4)
    chunks += [fil[i*per:(i+1)*per] for i in range(len(pro) - 4)]
    for pc, chunk in zip(pro, chunks):
        pre, d, post = p1.dma(pc)
        for s in pre: a(s)
        a(chunk[0] if chunk else "s_nop 0")
        a.emit(d)
        for s in post + chunk[1:]: a(s)
    a(f"s_or_b32 s36, s2, s{sW}")
    a("s_cmp_lg_u32 s36, 0")
    a("s_cbranch_scc1 L_NONONCE")
    a("s_memrealtime s[36:37]")
    a("v_mov_b32 v20, 0")
    a("s_waitcnt lgkmcnt(0)")
    a("s_or_b32 s36, s36, 1")
    a("v_mov_b32 v19, s36")
    a(f"global_store_dword v20, v19, s[{sPDbg}:{sPDbg+1}] sc1")
    a("L_NONONCE:")
    a.stamp("issued")
    a.emit(a.wait(["X0", "W0"]))
    a("s_barrier")
    a.stamp("first")
    for s in x_reads(0, 0) + w_reads(0, 0, (0, 1, 2)): a(s)
    a("s_waitcnt lgkmcnt(0)")
    def need(u): return [f"W{u}"] + ([f"X{u//2}"] if u % 2 == 0 else [])
    def seq(M, keys=None): return [M[k] for k in (keys or sorted(M))]
    roll = o.get("roll", 0)
    if roll:
        assert U0 == 28 and not late
        raise Exception("rolled loop needs bounds-checked prefetch")
        assert all(pfs.get(u, 0) == pfs.get(u + 12, 0) for u in range(4, 16)), pfs
    def half(u, hf):
        if hf == 0: reads = w_reads(1, u, (3, 4, 5))
        else: reads = x_reads((u + 1) & 1, u + 1) + w_reads(0, u + 1, (0, 1, 2) if u + 1 < U0 else (1, 2))
        sides = {}
        ps = sched.get((u, hf), [])
        lay = o.get("glay", 1)
        if lay == 0 or len(ps) > 4:
            for g, rd in enumerate(reads): sides.setdefault(g, []).append(rd)
            D = ([[13, 16, 19, 22], [12, 14, 16, 18, 20, 22]] if hf == 0 else [[17, 19, 21, 23], [13, 15, 17, 19, 21, 23]])[len(ps) > 4]
            if (u, hf) == (0, 0) and o.get("w1late", 0): D = [1, 3, 5, 7, 9, 11]
            for g, pc in zip(D, ps):
                pre, d, post = p1.dma(pc)
                sides.setdefault(g - 1, []).extend(pre)
                sides.setdefault(g, []).insert(0, d)
                sides[g].extend(post)
        else:
            D = {1: [2, 8, 14, 20], 2: [4, 10, 16, 22], 3: [3, 9, 15, 21], 4: [5, 11, 17, 23]}[lay]
            free = [g for g in range(24) if g not in D[:len(ps)]]
            for g, rd in zip(free, reads): sides.setdefault(g, []).append(rd)
            for g, pc in zip(D, ps):
                pre, d, post = p1.dma(pc)
                sides.setdefault(g - 1, []).extend(pre)
                sides.setdefault(g, []).insert(0, d)
                sides.setdefault(min(g + 1, 23), []).extend(post)
        if hf == 0 and pfs.get(u):
            sides.setdefault(23, []).extend(pf_round(a))
        if u >= 4 and late:
            for g in range(24):
                cur = sides.get(g, [])
                if any(isinstance(x, tuple) or x.startswith("ds_") for x in cur): continue
                room = o.get("lateper", 2) - (1 if cur else 0)
                while late and room > 0:
                    x = late.pop(0); sides.setdefault(g, []).append(x); room -= len(x.split("\n"))
        if roll and (u, hf) in ((15, 0), (27, 0)):
            sides.setdefault(14, []).append("s_sub_u32 s35, s35, 1")
        a.inter(seq(g1_mfmas(u & 1, hf, (0, 1, 2) if hf == 0 else (3, 4, 5))), sides)
        if roll and (u, hf) in ((15, 0), (27, 0)):
            a("s_cmp_lg_u32 s35, 0")
        if hf == 0:
            a.emit(a.wait(need(u + 1), lgkm=True))
            a("s_barrier")
        elif u + 1 < U0:
            a("s_waitcnt lgkmcnt(0)")
        if hf == 1 and u % 8 == 7 and not roll: a.stamp(f"g{u}")
    halves = [(u, hf) for u in range(U0) for hf in range(2)]
    if not roll:
        for h in halves: half(*h)
    else:
        for h in halves[:7]: half(*h)
        a("s_mov_b32 s35, 2")
        n0 = len(a.lines)
        for h in halves[7:31]: half(*h)
        p1_ = a.lines[n0:]; del a.lines[n0:]
        for h in halves[31:55]: half(*h)
        p2_ = a.lines[n0:]; del a.lines[n0:]
        assert len(p1_) == len(p2_)
        if o.get("galign"): a(f".p2align {o['galign']}")
        a("L_G1:")
        import re
        for x, y in zip(p1_, p2_):
            if x != y:
                mx, my = re.fullmatch(r"\s*s_waitcnt vmcnt\((\d+)\) lgkmcnt\(0\)", x), re.fullmatch(r"\s*s_waitcnt vmcnt\((\d+)\) lgkmcnt\(0\)", y)
                assert mx and my, (x, y)
                x = f"s_waitcnt vmcnt({min(int(mx.group(1)), int(my.group(1)))}) lgkmcnt(0)"
            a(x)
        a("s_cbranch_scc1 L_G1")
        half(27, 1)
    misc = []
    for j in range(8):
        misc.append((f"buffer_load_dwordx4 {ar(aGATE+4*j, 4)}, v9, s[{sX}:{sX+3}], 0 offen offset:{512*j}" if j < 4 else
                     f"buffer_load_dwordx4 {ar(aGATE+4*j, 4)}, v25, s[56:59], 0 offen offset:{512*(j-4)}", "gate"))
    misc = [(f"global_load_dword v21, v19, s[{sPDbg}:{sPDbg+1}] sc1", "nonce"),
            (f"buffer_load_dword v{vPFd}, v{vT[7]}, s[{sCode}:{sCode+3}], 0 offen", "cpf")] + misc
    if o.get("wom", 1): misc.insert(o.get("wompos", 10), (f"global_load_dword v{vPFd}, v60, s[{sPWoB}:{sPWoB+1}]", "wopf"))
    if o.get("wom", 1) > 1: misc.append((f"global_load_dword v{vPFd}, v60, s[{sPWoA}:{sPWoA+1}]", "wopf"))
    xs, ws_ = U0 & 1, 0
    units = [(u, b) for u in range(U0, 31) for b in ((0, 3), (4, 5))] + [(31, (4, 5)), (31, (3, 0))]
    bfirst = o.get("bfirst", 1)
    if bfirst: units = [(u, (4, 5)) for u in range(U0, 32)] + [(u, (3, 0)) for u in range(U0, 32)]
    for u in range(U0, 32):
        if u < 31:
            a.emit(a.wait(need(u + 1), lgkm=True)); a("s_barrier")
        else:
            a("s_waitcnt lgkmcnt(0)")
        reads = x_reads(1 - xs, u + 1) + w_reads(1 - ws_, u + 1, (1, 2)) if u < 31 else x_reads(1 - xs, U0) + w_reads(1 - ws_, *units[0])
        sides = {}
        for i, rd in enumerate(reads): sides.setdefault(i, []).append(rd)
        if u == U0:
            sides.setdefault(0, []).append("v_mov_b32 v19, 0")
            sides.setdefault(1, []).append(f"s_add_u32 s25, s{sKVsrc}, 4096"); sides.setdefault(2, []).append(f"s_mov_b32 s26, s{sKVsrc}")
        for g in ((12, 13, 15) if U0 == 28 else (12, 13, 14, 15)):
            if misc: sides.setdefault(g, []).append(misc.pop(0))
        M = g1_mfmas(xs, ws_, (1, 2))
        a.inter(seq(M, [(i, nt, mt) for rt in range(2) for i in range(2) for nt in range(2) for mt in (2*rt, 2*rt + 1)]), sides)
        xs ^= 1; ws_ ^= 1
    assert not misc
    a.stamp("gP")
    e1_lists(a)
    kvw = pk16(KA[0], pKA[0]) + a.kv.pop(0) + pk16(VA[0], pVA[0]) + pk16(KA[1], pKA[1]) + pk16(VA[1], pVA[1])
    st_units = {28: [1, 2, 3, 4, 5, 6, 7], 29: [1, 2, 3, 4, 5]}[U0]
    for n, (u, blks) in enumerate(units):
        last = n == len(units) - 1
        a("s_waitcnt lgkmcnt(0)")
        if last: a("s_barrier")
        reads = []
        newx = False
        if not last:
            un, bn = units[n + 1]
            newx = un != u
            reads = (x_reads(1 - xs, un) if newx else []) + w_reads(1 - ws_, un, bn)
        sides = {}
        for i, rd in enumerate(reads): sides.setdefault(i, []).append(rd)
        M = g1_mfmas(xs, ws_, blks)
        keys = None
        if bfirst and n == len(units)//2:
            kvw += pk16(KB[1], pKB[1]) + pk16(VB[1], pVB[1], True) + pk16(KB[0], pKB[0]) + pk16(VB[0], pVB[0], True)
        if n >= len(units) - 2 or (bfirst and n == len(units)//2 - 1):
            keys = [(i, nt, mt) for rt in (1, 0) for i in range(2) for nt in range(2) for mt in (2*rt, 2*rt + 1)]
            if last: keys = [(i, nt, mt) for i in range(2) for rt in (1, 0) for nt in range(2) for mt in (2*rt, 2*rt + 1)]
        if last:
            e1_head(a, sides, kvw if bfirst else None); kvw = []
        else:
            for g in range(4 if n == 0 else 0, 16):
                budget = 1 if g < len(reads) else 2
                if n in st_units and g == 15: budget = 0
                while kvw and budget > 0:
                    cost = 2 if (isinstance(kvw[0], tuple) or "permlane" in kvw[0]) else 1
                    if cost > budget and o.get("rstrict", 1): break
                    sides.setdefault(g, []).append(kvw.pop(0))
                    budget -= cost
        if n in st_units:
            st_ = a.kv.pop(0)
            lo = int(st_[0][0].split("v[")[1].split(":")[0])
            assert not any(isinstance(x, str) and any(f"v{lo+i}," in x.split(None, 1)[1].split(", v")[0] + "," or x.endswith(f" v{lo+i}") and "permlane" in x for i in range(4)) for x in kvw), (n, lo)
            sides.setdefault(1 if last else 15, []).extend(st_)
        a.inter(seq(M, keys), sides)
        ws_ ^= 1
        if newx: xs ^= 1
    assert not kvw
    a.stamp("g31")
    assert not late

def packl(base, out=None):
    out = base if out is None else out
    return [f"v_cvt_pk_bf16_f32 v{out+j}, v{base+2*j}, v{base+2*j+1}" for j in range(8)]
def pk16(base, out=None, vb=False):
    out = base if out is None else out
    l = packl(base, out) + [f"v_permlane16_swap_b32 v{out+i}, v{out+i+2}" for i in (0, 1, 4, 5)]
    if vb: l += [f"v_permlane32_swap_b32 v{out+i}, v{out+i+2}" for i in (0, 1, 4, 5)]
    return l
def pko(base, out=None):
    out = base if out is None else out
    return packl(base, out) + ["s_nop 0"] + [f"v_permlane16_swap_b32 v{out+j}, v{out+4+j}" for j in range(4)]
def pack(a, base, out=None):
    for s in packl(base, out): a(s)
class L(list):
    def __call__(self, s): self.append(s)
    def emit(self, s): self.append(s)
def weave(a, work, extra, first, every):
    nxt = first
    for i, w in enumerate(work):
        while extra and i >= nxt:
            for s in extra.pop(0): a.emit(s)
            nxt += every
        a.emit(w)

def padfill(a, fill, n):
    k = 0
    for f in fill:
        a.emit(f); k += len(f.split("\n")) if isinstance(f, str) else 1
    if k < n: a(f"s_nop {n - k - 1}")

def local_tile(a, Q, Kc, Vc, Kp, Vp1, SC, SP, O, PC, PP, tmp, off, tag, fill1=(), fill2=()):
    m, t = tmp, tmp + 1
    a(mf32(vr(SC, 16), vr(Kc, 4), vr(Q, 4), vr(vMc, 16)))
    a(mf32(vr(SC, 16), vr(Kc+4, 4), vr(Q+4, 4), vr(SC, 16)))
    a(mf32(vr(SP, 16), vr(Kp, 4), vr(Q, 4), vr(vMc + 8, 16)))
    a(mf32(vr(SP, 16), vr(Kp+4, 4), vr(Q+4, 4), vr(SP, 16)))
    padfill(a, fill1, 10)
    vals = [SC + i for i in range(16)] + [SP + 8 + i for i in range(8)]
    a(f"v_max3_f32 v{m}, v{vals[0]}, v{vals[1]}, v{vals[2]}")
    for i in range(3, 23, 2):
        a(f"v_max3_f32 v{m}, v{m}, v{vals[i]}, v{vals[i+1]}")
    a(f"v_max_f32 v{m}, v{m}, v{vals[23]}")
    a(f"v_mov_b32 v{t}, v{m}")
    a("s_nop 1")
    a(f"v_permlane32_swap_b32 v{m}, v{t}")
    a(f"v_max_f32 v{m}, v{m}, v{t}")
    a(f"v_mul_f32 v{m}, s{sCS}, v{m}")
    for v in vals:
        a(f"v_fma_f32 v{v}, v{v}, s{sCS}, -v{m}")
    L = SP
    for i in range(10): a(f"v_exp_f32 v{vals[i]}, v{vals[i]}")
    for j in range(4): a(f"v_cvt_pk_bf16_f32 v{PC+j}, v{SC+2*j}, v{SC+2*j+1}")
    for i in range(10, 13): a(f"v_exp_f32 v{vals[i]}, v{vals[i]}")
    a(mf32(vr(O, 16), vr(Vc, 4), vr(PC, 4), 0))
    for i in range(13, 18): a(f"v_exp_f32 v{vals[i]}, v{vals[i]}")
    a(mf16(vr(L, 4), ar(aONE, 4), vr(PC, 4), 0))
    for j in range(4, 8): a(f"v_cvt_pk_bf16_f32 v{PC+j}, v{SC+2*j}, v{SC+2*j+1}")
    for i in range(18, 20): a(f"v_exp_f32 v{vals[i]}, v{vals[i]}")
    a(mf32(vr(O, 16), vr(Vc+4, 4), vr(PC+4, 4), vr(O, 16)))
    for i in range(20, 24): a(f"v_exp_f32 v{vals[i]}, v{vals[i]}")
    a(mf16(vr(L, 4), ar(aONE, 4), vr(PC+4, 4), vr(L, 4)))
    for j in range(4): a(f"v_cvt_pk_bf16_f32 v{PP+j}, v{SP+8+2*j}, v{SP+9+2*j}")
    a("s_nop 1")
    a(mf16(vr(L, 4), ar(aONE, 4), vr(PP, 4), vr(L, 4)))
    a(mf32(vr(O, 16), vr(Vp1, 4), vr(PP, 4), vr(O, 16)))
    padfill(a, fill2, 7)
    a(f"v_rcp_f32 v{m}, v{L}")
    a(f"s_add_u32 s35, s{sOst}, {OB_OFF + off}")
    a("s_nop 2")
    for i in range(16):
        a(f"v_mul_f32 v{O+i}, v{O+i}, v{m}")
    return [(f"buffer_store_dwordx4 {{0}}, v{vL16}, {WS}, s35 offen sc1", tag),
            (f"buffer_store_dwordx4 {{0}}, v{vL16}, {WS}, s35 offen offset:1024 sc1", tag)]

def flag_store(sreg, vtmp, tag):
    return [f"v_mov_b32 v{vtmp}, s{sNONCE}", (f"buffer_store_dword v{vtmp}, v{vF0}, {WS}, s{sreg} offen sc1", tag)]

def poll_check(a, name, vdst, vaddr, sreg, tag, mask=-1):
    a.emit(a.wait([tag]))
    a(f"v_cmp_ne_u32 vcc, s{sNONCE}, v{vdst}")
    a(f"s_and_b32 s{sSpin}, vcc_lo, {mask}")
    a(f"s_cbranch_scc1 {name}_S")
    a(f"{name}_R:")
    a.tail.append(f"""{name}_S:
    s_mov_b32 s{sSpin}, 0
{name}_L:
    buffer_load_dword v{vdst}, v{vaddr}, {WS}, s{sreg} offen sc1
    s_add_u32 s{sSpin}, s{sSpin}, 1
    s_waitcnt vmcnt(0)
    v_cmp_ne_u32 vcc, s{sNONCE}, v{vdst}
    s_cmp_lt_u32 s{sSpin}, 0x40000
    s_cbranch_scc0 {name}_R
    s_nop 2
    s_and_b32 vcc_hi, vcc_lo, {mask}
    s_cbranch_scc1 {name}_L
    s_branch {name}_R""")

def e1_lists(a):
    a.halo = [[(f"buffer_store_dwordx4 {vr(pKB[1], 4)}, v{vL16}, {WS}, s{sHalo} offen sc1", "halo")],
              [(f"buffer_store_dwordx4 {vr(pKB[1]+4, 4)}, v{vL16}, {WS}, s{sHalo} offen offset:1024 sc1", "halo")],
              [(f"buffer_store_dwordx4 {vr(pVB[1]+4, 4)}, v{vL16}, {WS}, s{sHalo} offen offset:2048 sc1", "halo")]]
    a.kv = []; a.dsw = []
    for rt in range(2):
        for (blk, f0) in ((pKA[rt], 0), (pVA[rt], 2)):
            for f in range(2):
                off = (f0 + f)*1024
                a.kv.append([(f"buffer_store_dwordx4 {vr(blk+4*f, 4)}, v{vL16 if f0 else vKS}, {WS}, s{26 if rt == 0 else 25} offen offset:{off} sc1", "kv")])
                a.dsw.append([f"ds_write_b128 v{22 if f0 else vKL}, {vr(blk+4*f, 4)} offset:{rt*4096 + off}"])

def e1_head(a, sides, left):
    w = [f"s_add_u32 s36, s{sKVdst}, {KV_LDS[0]}", f"v_add_u32 v22, s36, v{vL16}", f"v_add_u32 v{vKL}, s36, v{vKS}", f"v_add_u32 v{vL16b}, 4096, v{vL16}"]
    if left is None: w += pk16(KB[1], pKB[1]) + pk16(VB[1], pVB[1], True) + pk16(KB[0], pKB[0]) + pk16(VB[0], pVB[0], True)
    else: w += left + sel_init(23, 24)[:5] + sel_init(23, 24)[13:]
    a.selrest = sel_init(23, 24) if left is None else sel_init(23, 24)[5:13]
    for g in range(16):
        budget = 2
        if g % 2 == 1 and g > 1:
            sides.setdefault(g, []).extend(a.dsw.pop(0)); budget = 0
        while w and budget > 0:
            x = w.pop(0)
            sides.setdefault(g, []).append(x)
            budget -= 2 if "permlane" in x else (0 if x.startswith("s_") else 1)
    a.e1rest = w

def e1(a):
    o = a.opts
    pend = a.kv + a.halo
    a.emit(a.wait(["nonce"]))
    a(f"v_readfirstlane_b32 s{sNONCE}, v21")
    w = a.e1rest + pk16(QB[1], 240) + a.selrest + pk16(QB[0], pQB[0])
    weave(a, w, a.dsw, 2, 8)
    a(f"s_cmp_eq_u32 s{sNONCE}, 0")
    a("s_cbranch_scc1 L_NONCE_S")
    a("L_NONCE_R:")
    a.tail.append(f"""L_NONCE_S:
    s_mov_b32 s{sSpin}, 0
L_NONCE_L:
    global_load_dword v21, v19, s[{sPDbg}:{sPDbg+1}] sc1
    s_add_u32 s{sSpin}, s{sSpin}, 1
    s_waitcnt vmcnt(0)
    v_readfirstlane_b32 s{sNONCE}, v21
    s_cmp_lt_u32 s{sSpin}, 0x40000
    s_cbranch_scc0 L_NONCE_R
    s_nop 2
    s_cmp_eq_u32 s{sNONCE}, 0
    s_cbranch_scc1 L_NONCE_L
    s_branch L_NONCE_R""")
    for s in pend.pop(0): a.emit(s)
    a.stamp("e1pack")
    qa = []
    for q in QA:
        qa += [f"v_pk_mul_f32 {vr(q+2*j, 2)}, {vr(q+2*j, 2)}, s[62:63]" for j in range(8)] + pk16(q)
    lt = L()
    st = local_tile(lt, 240, pKB[1], pVB[1], pKB[0], pVB[0]+4, 128, 144, 176, 168, 248, 252, 65536, "ob1", fill1=qa[:26], fill2=qa[26:])
    lt += pko(176, 56)
    a.ob1 = [(st[0][0].format("v[56:59]"), "ob1"), (st[1][0].format("v[60:63]"), "ob1")]
    weave(a, lt, pend, o.get("st_a", 40), o.get("st_b", 50))
    for g in pend:
        for s in g: a.emit(s)
    a.stamp("loc1")
    a.emit(a.wait(["kv"], lgkm=True))
    for s in flag_store(32, 20, "fKV"): a.emit(s)
    a("s_barrier")
    a.stamp("fKV")

sKVp, sKVg, sOg, sPFW = 84, 98, 100, 52
vL16b = 5
def kv_dma(slot, group, tag):
    out = [f"s_add_u32 m0, s{sKVdst}, {KV_LDS[slot] + group*4096}"]
    for p in range(4):
        out.append((f"global_load_lds_dwordx4 v{vL16b if group else vL16}, s[{sKVg}:{sKVg+1}] offset:{p*1024} sc1", tag))
    return out
sKVb, sKVd = 3, 34
def kv_advance(c):
    if c <= 7:
        return [f"s_cmp_le_u32 s{sKVt}, {c-1}", f"s_addc_u32 s36, s{sKVb}, {c-1}", "s_lshl_b32 s36, s36, 15",
                f"s_add_u32 s{sKVg}, s{sKVp}, s36", f"s_addc_u32 s{sKVg+1}, s{sKVp+1}, 0"]
    return [f"s_add_u32 s36, s{sKVb}, {c}", "s_and_b32 s36, s36, 15", "s_lshl_b32 s36, s36, 15",
            f"s_add_u32 s{sKVg}, s{sKVp}, s36", f"s_addc_u32 s{sKVg+1}, s{sKVp+1}, 0"]

def sel_init(t0, t1):
    return [f"v_lshrrev_b32 v{t0}, 1, v{vLANE}", f"v_and_b32 v{t0}, 3, v{t0}", f"v_min_u32 v{t1}, 1, v{t0}", f"v_add_u32 v{t1}, -1, v{t1}",
            f"v_and_b32 v{t1}, 0x3f803f80, v{t1}", f"v_accvgpr_write_b32 a{aSEL}, v{t1}", f"v_accvgpr_write_b32 a{aSEL+1}, v{t1}",
            f"v_xor_b32 v{t0}, 2, v{t0}", f"v_min_u32 v{t1}, 1, v{t0}", f"v_add_u32 v{t1}, -1, v{t1}",
            f"v_and_b32 v{t1}, 0x3f803f80, v{t1}", f"v_accvgpr_write_b32 a{aSEL+2}, v{t1}", f"v_accvgpr_write_b32 a{aSEL+3}, v{t1}",
            f"v_and_b32 v{vIDX}, 1, v{vLANE}", f"v_mul_u32_u24 v{vIDX}, 0xaaaa, v{vIDX}", f"v_add_u32 v{vIDX}, 0x4444, v{vIDX}"]
def smf(q): return f"v_smfmac_f32_16x16x64_bf16 {ar(aL[q], 4)}, {ar(aSEL, 4)}, {vr(P[q], 8)}, v{vIDX}"

def H(a, q, vpar, qk=True, pv=True, pv_first=False, slots=None):
    slots = slots or {}
    o = 1 - q
    e = [f"v_exp_f32 v{S[q]+i}, v{S[q]+i}" for i in range(16)]
    c = [f"v_cvt_pk_bf16_f32 v{P[q]+j}, v{S[q]+2*j}, v{S[q]+2*j+1}" for j in range(8)]
    So, Oo = vr(S[o], 16), ar(aO[o], 16)
    M = [mf32(So, ar(aK, 4), vr(QA[o], 4), vr(NM[o], 16)) if qk else None,
         mf32(So, ar(aK+4, 4), vr(QA[o]+4, 4), So) if qk else None,
         mf32(Oo, ar(aV[vpar], 4), vr(P[o], 4), 0 if pv_first else Oo) if pv else None,
         mf32(Oo, ar(aV[vpar]+4, 4), vr(P[o]+4, 4), Oo) if pv else None,
         smf(o) if pv else None, None]
    V = [[e[0], e[1], e[2]], [e[3], c[0], c[1], e[4]], [e[5], e[6], e[7]], [c[2], c[3], e[8], e[9], e[10], e[11], c[4], c[5]],
         [], [e[12], e[13], e[14], e[15], c[6], c[7]]]
    if not pv: V[3] = ["s_nop 0"] + V[3]
    for i in range(6):
        if M[i]: a(M[i])
        for s in slots.get(i, []): a.emit(s)
        for s in V[i]: a(s)

def rdK(slot, off): return [f"ds_read_b128 {ar(aK, 4)}, v{vKV[slot]} offset:{off}", f"ds_read_b128 {ar(aK+4, 4)}, v{vKV[slot]} offset:{off+1024}"]
def rdV(par, slot, off): return [f"ds_read_b128 {ar(aV[par], 4)}, v{vKV[slot]} offset:{off+2048}", f"ds_read_b128 {ar(aV[par]+4, 4)}, v{vKV[slot]} offset:{off+3072}"]

FREE_A = [0, 3, 4]; FREE_B = [2, 3, 4, 5]
TORD = [0, 2, 1, 3]
def tile(a, n, side=None, end_b=None):
    sa = {}; sb = {}
    if n < 63:
        m = n + 1
        k = rdK((m >> 2) & 1, TORD[m & 3]*4096); v = rdV(m & 1, (m >> 2) & 1, TORD[m & 3]*4096)
        sa[1] = [k[0]]; sa[2] = [k[1]]; sa[5] = ["s_waitcnt lgkmcnt(0)"]
        sb[0] = [v[0]]; sb[1] = [v[1]]
    if side is not None:
        for g in FREE_A:
            if side: sa.setdefault(g, []).extend(side.pop(0))
        for g in (FREE_B if end_b is None else FREE_B[:-1]):
            if side: sb.setdefault(g, []).extend(side.pop(0))
        if sb.get(4) and sb.get(5) and isinstance(sb[4][-1], str) and " m0," in sb[4][-1] and isinstance(sb[5][0], tuple):
            if not sb.get(3): sb[3] = sb.pop(4)
            elif len(sb[3]) == 1 and isinstance(sb[3][0], str) and " m0," not in sb[3][0] and not sb[3][0].startswith(("s_cmp", "s_addc", "s_add_u32 s9", "s_add_u32 s10")):
                sb[3], sb[4] = sb[4], sb[3]
            else: sb[4] = sb[4] + ["s_nop 0"]
    if end_b: sb.setdefault(5, []).extend(end_b)
    H(a, 0, (n - 1) & 1, pv=(n != 0), pv_first=(n == 1), slots=sa)
    H(a, 1, n & 1, qk=(n < 63), pv_first=(n == 0), slots=sb)

def neg_max(a):
    for q in range(2): a(f"v_mov_b32 v{21+q}, v{19+q}")
    a("s_nop 0")
    for q in range(2): a(f"v_permlane32_swap_b32 v{19+q}, v{21+q}")
    for q in range(2): a(f"v_max_f32 v{19+q}, v{19+q}, v{21+q}")
    for q in range(2):
        for i in range(16): a(f"v_sub_f32 v{NM[q]+i}, 0, v{19+q}")

def gate_compute(a):
    z, t = 23, 24
    for i in range(16):
        a(f"v_accvgpr_read_b32 v{96+(i%4)}, a{aGATE+i}")
        a(f"v_accvgpr_read_b32 v{100+(i%4)}, a{aGATE+16+i}")
        a(f"v_dot2_f32_bf16 v{z}, v{96+(i%4)}, v{100+(i%4)}, {0 if i == 0 else 'v%d' % z}")
    a("s_nop 2")
    for sh in (8, 4, 2, 1):
        a(f"v_add_f32_dpp v{z}, v{z}, v{z} row_ror:{sh} row_mask:0xf bank_mask:0xf")
        a("s_nop 1")
    a(f"v_mov_b32 v{t}, v{z}")
    a("s_nop 1")
    a(f"v_permlane16_swap_b32 v{z}, v{t}")
    a(f"v_add_f32 v{z}, v{z}, v{t}")
    a(f"v_mul_f32 v{z}, {f2u(-math.log2(math.e))}, v{z}")
    a(f"v_exp_f32 v{z}, v{z}")
    a(f"v_and_b32 v{t}, 31, v{vLANE}")
    a(f"v_add_f32 v{z}, 1.0, v{z}")
    a(f"v_rcp_f32 v{z}, v{z}")
    a(f"v_min_u32 v{t}, 1, v{t}")
    a(f"v_lshlrev_b32 v{t}, 31, v{t}")
    a(f"v_lshl_or_b32 v{t}, v{vGrow}, 2, v{t}")
    a(f"s_mov_b32 s36, {G_OFF}")
    a.emit((f"buffer_store_dword v{z}, v{t}, {WS}, s36 offen sc1", "g"))

def p4_setup(a):
    srd(a, sWoA, sPWoA, sPWoA+1, 1024*1024*2)
    srd(a, sWoB, sPWoB, sPWoB+1, 1024*1024*2)
    srd(a, sOutD, sPOut, sPOut+1, 2048*1024*2)
    a("s_and_b32 s36, s2, 7")
    a("s_lshr_b32 s37, s2, 3")
    a(f"s_and_b32 s{sC4}, s37, 15")
    a("s_lshr_b32 s37, s37, 4")
    a("s_lshl_b32 s36, s36, 1")
    a(f"s_add_u32 s{sT4}, s36, s37")
    r, c, t0, t1 = 200, 201, 202, 203
    a(f"v_lshrrev_b32 v{r}, 3, v{vLANE}")
    a(f"v_and_b32 v{c}, 7, v{vLANE}")
    a(f"v_and_b32 v{t0}, 2, v{r}")
    a(f"s_lshl_b32 s36, s{sHH}, 2")
    a(f"v_xor_b32 v{t0}, v{t0}, v{c}")
    a(f"v_xor_b32 v{t0}, s36, v{t0}")
    a(f"v_lshlrev_b32 v{t0}, 4, v{t0}")
    a(f"v_lshl_add_u32 v{t0}, v{r}, 11, v{t0}")
    a(f"s_lshl_b32 s36, s{sW}, 14")
    a(f"s_lshl_b32 s37, s{sC4}, 7")
    a("s_add_u32 s36, s36, s37")
    a(f"v_add_u32 v{vWo_g}, s36, v{t0}")
    a(f"v_and_b32 v{r}, 15, v{vLANE}")
    a(f"v_lshrrev_b32 v{t0}, 2, v{r}")
    a(f"v_lshrrev_b32 v{t1}, 5, v{vLANE}")
    a(f"v_lshl_add_u32 v{c}, v{t1}, 2, v{t0}")
    a(f"v_and_b32 v{t1}, 16, v{vLANE}")
    a(f"v_add_u32 v{c}, v{c}, v{t1}")
    a(f"v_lshlrev_b32 v{t1}, 2, v{t1}")
    a(f"v_and_b32 v{t0}, 8, v{r}")
    a(f"v_lshl_add_u32 v{t0}, v{t0}, 2, v{t1}")
    a(f"v_lshl_add_u32 v{t0}, v{c}, 7, v{t0}")
    a(f"v_and_b32 v{t1}, 3, v{r}")
    a(f"v_lshl_add_u32 v{vWo_r[0]}, v{t1}, 3, v{t0}")
    for nt in range(1, 4):
        a(f"v_xor_b32 v{vWo_r[nt]}, {32*nt}, v{vWo_r[0]}")
    a(f"s_lshl_b32 s36, s{sT4}, 2")
    a(f"s_add_u32 s36, s36, s{sW}")
    a(f"s_lshl_b32 s{sOrow}, s36, 16")
    a(f"s_lshr_b32 s36, s36, 1")
    a(f"s_lshl_b32 s29, s36, 7")
    a(f"s_lshr_b32 s36, s{sC4}, 1")
    a(f"s_lshl_b32 s{sOoff}, s36, 13")
    a(f"s_lshl_b32 s{sWooff}, s36, 18")
    a(f"v_and_b32 v16, 31, v{vLANE}")
    a("v_lshlrev_b32 v16, 2, v16")
    a(f"v_and_b32 v17, 15, v{vLANE}")
    a(f"v_cmp_le_u32 vcc, s{sKVt}, v17")
    a(f"v_add_u32 v17, s{sKVb}, v17")
    a("s_nop 0")
    a("v_addc_co_u32 v17, vcc, 0, v17, vcc")
    a("v_and_b32 v17, 15, v17")
    a("v_lshlrev_b32 v17, 2, v17")
    a("s_lshl_b32 s36, s2, 2")
    a(f"s_add_u32 s36, s36, s{sW}")
    a("s_lshl_b32 s36, s36, 11")
    a(f"v_and_b32 v25, 7, v{vLANE}")
    a("v_lshlrev_b32 v25, 7, v25")
    a("v_add_u32 v25, s36, v25")
    a("s_lshr_b32 s36, s2, 3")
    a("s_lshl_b32 s36, s36, 2")
    a(f"s_add_u32 s36, s36, s{sW}")
    a("s_lshl_b32 s36, s36, 12")
    a(f"s_add_u32 s36, s36, {24*65536}")
    a(f"v_and_b32 v15, 15, v{vLANE}")
    a("v_lshlrev_b32 v15, 7, v15")
    a("v_add_u32 v15, s36, v15")
    a(f"s_add_u32 s36, s{sOrow}, {OB_OFF}")
    a(f"s_add_u32 s{sOg}, s54, s36")
    a(f"s_addc_u32 s{sOg+1}, s55, 0")

def wob_dma(i, tag):
    return [[f"s_mov_b32 s39, {i*65536}"], [f"s_add_u32 m0, s{sWv}, {i*4096}"],
            [(f"buffer_load_dwordx4 v{vWo_g}, s[{sWoB}:{sWoB+3}], s39 offen lds", tag)]]

def attention(a):
    o = a.opts
    a("L_ATT0:")
    for s in rdK(0, 0) + rdV(0, 0, 0): a(s)
    for s in kv_advance(1): a(s)
    for q in range(2):
        for i in range(4): a(f"v_accvgpr_write_b32 a{aL[q]+i}, 0")
    a(f"s_cmp_lg_u32 s{sPASS}, 0")
    a("s_cbranch_scc1 L_ATT1")
    ps = L(); p4_setup(ps)
    ps_s = [x for x in ps if x.startswith("s_") and "s4," not in x.split()[1] and not any(x.split()[1].startswith(f"s{i},") for i in (4, 5, 6, 7))]
    ps_x = []
    rest = [x for x in ps if x not in ps_x]
    n1 = 22
    for s in rest[:n1]: a(s)
    a("s_waitcnt lgkmcnt(0)")
    for q in range(2): a(mf32(vr(S[q], 16), ar(aK, 4), vr(QA[q], 4), 0))
    for q in range(2): a(mf32(vr(S[q], 16), ar(aK+4, 4), vr(QA[q]+4, 4), vr(S[q], 16)))
    padfill(a, rest[n1:n1+26], 11)
    for q in range(2):
        s, m = S[q], 19 + q
        a(f"v_max3_f32 v{m}, v{s}, v{s+1}, v{s+2}")
        for i in range(3, 15, 2): a(f"v_max3_f32 v{m}, v{m}, v{s+i}, v{s+i+1}")
        a(f"v_max_f32 v{m}, v{m}, v{s+15}")
    for q in range(2): a(f"v_mov_b32 v{21+q}, v{19+q}")
    a("s_nop 0")
    for q in range(2): a(f"v_permlane32_swap_b32 v{19+q}, v{21+q}")
    for q in range(2): a(f"v_max_f32 v{19+q}, v{19+q}, v{21+q}")
    for i in range(16): a(f"v_sub_f32 v{NM[0]+i}, 0, v19")
    for s in rest[n1+26:n1+28]: a(s)
    a(mf32(vr(S[0], 16), ar(aK, 4), vr(QA[0], 4), vr(NM[0], 16)))
    a(mf32(vr(S[0], 16), ar(aK+4, 4), vr(QA[0]+4, 4), vr(S[0], 16)))
    for i in range(16): a(f"v_sub_f32 v{NM[1]+i}, 0, v20")
    for s in rest[n1+28:]: a(s)
    a("v_mov_b32 v18, 0")
    a(f"s_add_u32 s30, s28, {F_H}")
    if o.get("fh_slot", 10) < 0:
        a.emit(a.wait(["halo"]))
        for s in flag_store(30, 20, "fH"): a.emit(s)
    a("s_branch L_ATT2")
    a("L_ATT1:")
    a("s_waitcnt lgkmcnt(0)")
    a(mf32(vr(S[0], 16), ar(aK, 4), vr(QA[0], 4), vr(NM[0], 16)))
    a(mf32(vr(S[0], 16), ar(aK+4, 4), vr(QA[0]+4, 4), vr(S[0], 16)))
    a("s_nop 11")
    a("L_ATT2:")
    a.stamp("att0")
    pk = [(f"buffer_load_dword v21, v17, {WS}, s31 offen sc1", "pKV")]
    ks = o.get("pk_slot", 0)
    sl = [[] for _ in range(14)]; sl[ks] = pk
    if o.get("fh_slot", 10) >= 0: sl[o.get("fh_slot", 10)] = [a.wait(["halo"])] + flag_store(30, 20, "fH")
    tile(a, 0, sl[0:7]); tile(a, 1, sl[7:14])
    a.stamp("t01")
    d0, d1, adv = kv_dma(1, 0, "c1a"), kv_dma(1, 1, "c1b"), kv_advance(2)
    a(d0[0])
    poll_check(a, "L_PKV", 21, 17, 31, "pKV", mask=1)
    a.stamp("pKV")
    a.emit(d0[1]); a.emit(d0[2])
    tile(a, 2, [[d0[3]], [d0[4]], [(f"buffer_load_dword v21, v17, {WS}, s31 offen sc1", "pKV2")], [d1[0]], [d1[1], d1[2]], [d1[3]], [d1[4]]])
    for s in adv: a(s)
    a.stamp("t2")
    a(f"s_cmp_lg_u32 s{sPASS}, 0")
    a("s_cbranch_scc1 L_A4")
    gate_compute(a)
    a("s_branch L_A5")
    a("L_A4:")
    a("s_waitcnt vmcnt(0)")
    a("L_A5:")
    a.emit(a.wait(["c1a"], lgkm=True))
    a("s_barrier")
    a.pkv2 = True
    a.stamp("c1")
    wob = [i for i in range(24)]
    obl = [i for i in range(64)]
    if o.get('noside'): wob = wob[:1]; obl = obl[:1]
    ob_start = o.get("ob_start", 6)
    obase = False
    for c in range(15):
        V = []; A = []
        side = []
        if c + 2 <= 15:
            d0, d1 = kv_dma(c % 2, 0, f"c{c+2}"), kv_dma(c % 2, 1, f"c{c+2}")
            kvs = [[x] for x in d0] + [[x] for x in d1] + ([[x] for x in kv_advance(c + 3)] if c + 3 <= 15 else [])
        else:
            kvs = []
        oth = []
        if c == 0:
            oth += [[(f"buffer_load_dword v21, v17, {WS}, s31 offen sc1", "pKV3")], [], [], [(f"buffer_load_dword v22, v18, {WS}, s33 offen sc1", "pH")]]
        if c == 3:
            oth += [[f"s_lshl_b32 s38, s{sSeq}, 7"], [f"s_lshl_b32 s39, s{sHead}, 2"], ["s_add_u32 s38, s38, s39"],
                    [f"s_add_u32 s35, s38, {F_OB}"], flag_store(35, 20, "fOB")]
        if c == ob_start - 2:
            oth += [[f"s_add_u32 s47, s29, {F_OB}"], [(f"buffer_load_dword v21, v16, {WS}, s47 offen sc1", "pOB")]]
        if c == o.get("cpf2", 11) or (o.get("cpfn") and c % o["cpfn"] == 2):
            oth += [[(f"buffer_load_dword v{vPFd}, v{vT[7]}, s[{sCode}:{sCode+3}], 0 offen", "cpf")]]
        nslots = 4*7 - 1 - (c == 0)
        if c >= ob_start:
            for _ in range(min(len(obl), o.get("ob_per", 8))):
                i = obl.pop(0)
                oth.append([(f"global_load_dwordx4 {oreg(i)}, v{vL16b if (i & 4) else vL16}, s[{sOg}:{sOg+1}] offset:{(i % 4)*1024} sc1", "obl")])
                if i % 8 == 7:
                    oth += [[f"s_add_u32 s{sOg}, s{sOg}, 8192"], [f"s_addc_u32 s{sOg+1}, s{sOg+1}, 0"]]
        wa0, wa1 = o.get("wam0", 1), o.get("wam1", 3)
        if c in (wa0, wa1):
            oth.insert(0, [(f"global_load_dword v{vPFd}, v25, s[{sPWoA}:{sPWoA+1}] offset:{1024*(c == wa1)}", "wopf")])
        wl = o.get("wol2", 6)
        if wl <= c < wl + 8:
            oth.append([(f"global_load_dword v{vPFd}, v0, s[{sPWoA}:{sPWoA+1}] offset:{((c - wl) & 1)*2048}", "wopf")] + (["v_add_u32 v0, 4096, v0"] if (c - wl) & 1 else []))
        wb0 = 11 if o.get("wbtail", 1) else 13
        if c in (wb0, wb0 + 1) and o.get("wbl2", 0):
            oth.append([(f"global_load_dword v{vPFd}, v15, s[{sPWoB}:{sPWoB+1}] offset:{(c - wb0)*2048}", "wopf")])
        if c == 14 and o.get("wbtail", 1): wob += list(range(24, 32))
        while wob and (len(kvs) + len(oth) + 3 <= nslots or c == 14):
            i_ = wob.pop(0)
            oth += wob_dma(i_, f"wo{i_//8}")
        side = kvs + oth
        while len(side) > nslots:
            for k in range(len(side) - 1):
                if all(isinstance(x, str) and x.startswith("s_") and "m0" not in x for x in side[k]):
                    side[k+1] = side[k] + side[k+1]; side.pop(k); break
            else:
                raise Exception("slots")
        n = len(side)
        nv = sum(isinstance(x, tuple) for g in side for x in g)
        if n < nslots and nv >= o.get("spread", 1):
            sp = [[] for _ in range(nslots)]
            for k, g in enumerate(side): sp[k*nslots//n] = g
            side = sp
        if c == 0:
            poll_check(a, "L_PKV2", 21, 17, 31, "pKV2", mask=2)
        if c == 1:
            poll_check(a, "L_PKV3", 21, 17, 31, "pKV3", mask=0xffff)
            poll_check(a, "L_PH", 22, 18, 33, "pH")
            a(f"s_sub_u32 s38, s{sHalo}, 4096")
            a(f"s_cmp_eq_u32 s{sSeq}, 0")
            a(f"s_cselect_b32 s38, {OOB}, s38")
            a.emit((f"buffer_load_dwordx4 {vr(HK, 4)}, v{vL16}, {WS}, s38 offen sc1", "hl"))
            a.emit((f"buffer_load_dwordx4 {vr(HK+4, 4)}, v{vL16}, {WS}, s38 offen offset:1024 sc1", "hl"))
            a.emit((f"buffer_load_dwordx4 {vr(HV, 4)}, v{vL16}, {WS}, s38 offen offset:2048 sc1", "hl"))
        if c == 2:
            a(f"s_cmp_lg_u32 s{sPASS}, 0")
            a("s_cbranch_scc1 L_LOC0X")
            a(f"s_cmp_eq_u32 s{sSeq}, 0")
            a("s_cbranch_scc0 L_MASKOK")
            for i in range(8): a(f"v_mov_b32 v{vMc+16+i}, {NEGBIG}")
            a("L_MASKOK:")
            for s in a.ob1: a.emit(s)
            st = local_tile(a, pQB[0], pKB[0], pVB[0], HK, HV, 96, 112, 208, 168, 236, 23, 0, "ob0")
            for x in pko(208): a(x)
            a.emit((st[0][0].format("v[208:211]"), "ob0")); a.emit((st[1][0].format("v[212:215]"), "ob0"))
            a("L_LOC0X:")
            a.stamp("loc0")
        if c == ob_start - 1:
            poll_check(a, "L_POB", 21, 16, 47, "pOB")
        tile(a, 4*c + 3, side)
        tile(a, 4*c + 4, side, end_b=[a.wait(["c1b"]), "s_barrier"] if c == 0 else None)
        tile(a, 4*c + 5, side)
        tile(a, 4*c + 6, side, end_b=[a.wait([f"c{c+2}"], lgkm=True) if c + 2 <= 15 else a.wait(["wo0", "obl"], lgkm=True), "s_barrier"])
        assert not side
        if c in (4, 9): a.stamp(f"c{c}")
        if c == 7:
            for _ in range(o.get("idle_att", 0)): a("s_nop 15")
    assert not wob and not obl, (wob, obl)
    r0 = p4_reads(0) + p4_reads(1)
    tile(a, 63, [r0[0:2], r0[2:4], r0[4:6], r0[6:8], r0[8:10], r0[10:13], r0[13:16]])
    a(f"s_add_u32 s36, s{sOst}, {OA_OFF}")
    a(f"s_add_u32 s37, s{sOst}, {OA_OFF + 65536}")
    a(mf32(ar(aO[1], 16), ar(aV[1], 4), vr(P[1], 4), ar(aO[1], 16)))
    a(smf(1))
    a(mf32(ar(aO[1], 16), ar(aV[1]+4, 4), vr(P[1]+4, 4), ar(aO[1], 16)))
    a.stamp("attend")
    F = L()
    F(f"v_accvgpr_read_b32 v19, a{aL[0]}")
    F(f"v_accvgpr_read_b32 v21, a{aL[0]+1}")
    for i in range(16): F(f"v_accvgpr_read_b32 v{S[0]+i}, a{aO[0]+i}")
    F("v_add_f32 v19, v19, v21")
    F(f"v_accvgpr_read_b32 v20, a{aL[1]}")
    F("v_rcp_f32 v23, v19")
    F(f"v_accvgpr_read_b32 v21, a{aL[1]+1}")
    F("v_add_f32 v20, v20, v21")
    for i in range(16): F(f"v_mul_f32 v{S[0]+i}, v{S[0]+i}, v23")
    F += pko(S[0])
    F("v_rcp_f32 v24, v20")
    F((f"buffer_store_dwordx4 {vr(S[0], 4)}, v{vL16}, {WS}, s36 offen sc1", "oa"))
    F((f"buffer_store_dwordx4 {vr(S[0]+4, 4)}, v{vL16}, {WS}, s36 offen offset:1024 sc1", "oa"))
    for i in range(16): F(f"v_accvgpr_read_b32 v{S[1]+i}, a{aO[1]+i}")
    for i in range(16): F(f"v_mul_f32 v{S[1]+i}, v{S[1]+i}, v24")
    F += pko(S[1])
    F(f"s_mov_b32 s36, {f2u(2.0**64)}")
    F((f"buffer_store_dwordx4 {vr(S[1], 4)}, v{vL16}, {WS}, s37 offen sc1", "oa"))
    F((f"buffer_store_dwordx4 {vr(S[1]+4, 4)}, v{vL16}, {WS}, s37 offen offset:1024 sc1", "oa"))
    F("v_mov_b32 v21, 0")
    for q in range(2):
        for j in range(8): F(f"v_dot2_f32_bf16 v{19+q}, v{S[q]+j}, v21, v{19+q}")
    F("s_nop 2")
    F("v_cmp_nge_f32 s[64:65], s36, v19" if not o.get("stamp") else "v_cmp_nge_f32 s[56:57], s36, v19")
    F("v_cmp_nge_f32 vcc, s36, v20")
    F(f"s_lshl_b32 s37, s{sW}, 2")
    F(f"s_add_u32 s37, s37, {XCH}")
    F("v_mov_b32 v22, s37")
    F("s_nop 1")
    F("s_or_b64 vcc, vcc, s[64:65]" if not o.get("stamp") else "s_or_b64 vcc, vcc, s[56:57]")
    if o.get("force_fallback"): F("s_mov_b64 vcc, -1")
    F(f"s_cmp_lg_u64 vcc, 0\ns_cselect_b32 s36, 1, 0\ns_andn2_b32 s36, s36, s{sPASS}")
    F("v_mov_b32 v21, s36")
    F("ds_write_b32 v22, v21")
    F(f"v_mov_b32 v22, {XCH}")
    a.fin = F
    b = Asm()
    b("L_FALLBACK:")
    b(f"s_mov_b32 s{sPASS}, 1")
    b(f"s_mov_b32 s25, {OOB}")
    b(f"s_mov_b32 s26, {OOB}")
    b(f"v_mov_b32 v19, {NEGBIG}")
    b(f"v_mov_b32 v20, {NEGBIG}")
    b(f"s_lshl_b32 s38, s{sHP}, 19")
    b(f"s_lshl_b32 s39, s{sHH}, 14")
    b("s_add_u32 s38, s38, s39")
    b("s_mov_b32 s39, 0")
    b("L_FB:")
    b("s_and_b32 s36, s39, 3")
    b("s_lshl_b32 s36, s36, 12")
    b("s_lshr_b32 s37, s39, 2")
    b("s_lshl_b32 s37, s37, 15")
    b("s_add_u32 s36, s36, s37")
    b("s_add_u32 s36, s36, s38")
    b(f"buffer_load_dwordx4 {ar(aK, 4)}, v{vL16}, {WS}, s36 offen sc1")
    b(f"buffer_load_dwordx4 {ar(aK+4, 4)}, v{vL16}, {WS}, s36 offen offset:1024 sc1")
    b("s_waitcnt vmcnt(0)")
    for q in range(2): b(mf32(vr(S[q], 16), ar(aK, 4), vr(QA[q], 4), 0))
    for q in range(2): b(mf32(vr(S[q], 16), ar(aK+4, 4), vr(QA[q]+4, 4), vr(S[q], 16)))
    b("s_nop 11")
    for q in range(2):
        for i in range(0, 16, 2): b(f"v_max3_f32 v{19+q}, v{19+q}, v{S[q]+i}, v{S[q]+i+1}")
    b("s_add_u32 s39, s39, 1")
    b("s_cmp_lt_u32 s39, 64")
    b("s_cbranch_scc1 L_FB")
    neg_max(b)
    for s in sel_init(23, 24): b(s)
    b(f"s_lshl_b32 s36, s{sT}, 15")
    b(f"s_add_u32 s{sKVg}, s{sKVp}, s36")
    b(f"s_addc_u32 s{sKVg+1}, s{sKVp+1}, 0")
    b(f"s_add_u32 s36, s{sOrow}, {OB_OFF}")
    b(f"s_add_u32 s{sOg}, s54, s36")
    b(f"s_addc_u32 s{sOg+1}, s55, 0")
    b("v_add_u32 v0, -16384, v0")
    b("s_barrier")
    for g in range(2):
        for k_, s in enumerate(kv_dma(0, g, "")):
            b(s[0] if isinstance(s, tuple) else s)
            if k_ == 0: b("s_nop 0")
    b("s_waitcnt vmcnt(0)")
    b("s_barrier")
    b("s_branch L_ATT0")
    a.tail.append(b.text())

def fW4(G, nt, n=4, d=0):
    fs = G % 3
    return vr(32 + fs*16 + nt*4 + d, n) if fs < 2 else ar(nt*4 + d, n)
def p4_lds(g):
    return g*32768 if g < 4 else [131072, 0, 32768, 65536][g - 4]
def p4_reads(G):
    out = []
    base = p4_lds(G // 8)
    for nt in range(4):
        off = base % 65536 + (G % 8)*4096
        out.append(f"ds_read_b64_tr_b16 {fW4(G, nt, 2)}, v{vWo_r[nt]} offset:{off}")
        out.append(f"ds_read_b64_tr_b16 {fW4(G, nt, 2, 2)}, v{vWo_r[nt]} offset:{off+1024}")
    return out
def woa_dma(g, i):
    pos = (g - 4)*8 + i
    return [[f"s_add_u32 s39, s{sWooff}, {pos*65536}", "s_and_b32 s39, s39, 0x1fffff", f"s_add_u32 m0, s{sWv}, {p4_lds(g) + i*4096}"],
            [(f"buffer_load_dwordx4 v{vWo_g}, s[{sWoA}:{sWoA+3}], s39 offen lds", f"wo{g}")]]
def oa_load(i):
    out = [(f"global_load_dwordx4 {oreg(i)}, v{vL16b if (i & 4) else vL16}, s[{sOg}:{sOg+1}] offset:{(i % 4)*1024} sc1", f"oa{i}")]
    return out
def oa_next():
    return [f"s_add_u32 s{sOoff}, s{sOoff}, 8192", f"s_and_b32 s{sOoff}, s{sOoff}, 0xffff",
            f"s_add_u32 s{sOg}, s{sKVg}, s{sOoff}\ns_addc_u32 s{sOg+1}, s{sKVg+1}, 0"]

def phase4(a):
    o = a.opts
    flag_at = o.get("oaflag_gap", 40)
    poll_at = o.get("oapoll_gap", 84)
    chk_at = o.get("oachk_gap", 96)
    side = {}
    def put(k, l): side.setdefault(k, []).extend(l)
    F = list(a.fin)
    if o.get("finfirst", 0):
        n_ = max(i for i, x in enumerate(F) if isinstance(x, tuple)) + 1
        for x in F[:n_]: a.emit(x)
        F = F[n_:]
    k = 0
    while F:
        n_ = 2 if o.get("finfirst", 0) else (6 if len(F) > 5*(23 - k) - 5 else 5)
        put(k, F[:n_]); F = F[n_:]; k += 1
    assert k <= 23, k
    put(37, [f"s_add_u32 s38, s{sOrow}, {OA_OFF}", f"s_add_u32 s{sKVg}, s54, s38\ns_addc_u32 s{sKVg+1}, s55, 0"])
    put(38, [f"s_add_u32 s{sOg}, s{sKVg}, s{sOoff}\ns_addc_u32 s{sOg+1}, s{sKVg+1}, 0"])
    pre = [f"s_lshl_b32 s38, s{sSeq}, 7",
           f"s_lshl_b32 s47, s{sHead}, 2", "s_add_u32 s38, s38, s47", f"s_add_u32 s35, s38, {F_OA}", f"s_add_u32 s47, s29, {F_OA}",
           f"s_lshl_b32 s36, s{sT4}, 9", f"s_lshl_b32 s37, s{sW}, 7", "s_add_u32 s36, s36, s37", f"s_add_u32 s36, s36, {G_OFF}",
           f"v_and_b32 v24, 60, v16",
           (f"buffer_load_dword v{vG2[0]}, v24, {WS}, s36 offen sc1", "gl"), (f"buffer_load_dword v{vG2[1]}, v24, {WS}, s36 offen offset:64 sc1", "gl")]
    put(24, ["ds_read_b128 v[20:23], v22"])
    for i, x in enumerate(pre): put(25 + i//2, [x])
    put(32, ["v_or_b32 v20, v20, v21", "v_or3_b32 v20, v20, v22, v23"])
    put(33, ["v_readfirstlane_b32 s38, v20"])
    put(35, ["s_cmp_lg_u32 s38, 0\ns_cbranch_scc1 L_FALLBACK"])
    assert flag_at > 35
    put(flag_at, [a.wait(["oa"])]); put(flag_at + 1, flag_store(35, 20, "fOA"))
    put(poll_at, [(f"buffer_load_dword v21, v16, {WS}, s47 offen sc1", "pOA")])
    put(130, [f"v_sub_f32 v{vOM[0]}, 1.0, v{vG2[0]}", f"v_sub_f32 v{vOM[1]}, 1.0, v{vG2[1]}"])
    put(131, [f"v_and_b32 v19, 15, v{vLANE}", f"v_lshrrev_b32 v20, 4, v{vLANE}"])
    put(132, ["v_lshlrev_b32 v20, 4, v20", "v_lshl_add_u32 v19, v19, 11, v20"])
    if o.get("ldsout", 1):
        side[131] = []; side[132] = []
        put(200, [f"s_mul_i32 s38, s{sW}, 4608", f"v_and_b32 v20, 15, v{vLANE}"]); put(201, ["s_add_u32 s38, s38, 131072", "v_mul_u32_u24 v20, 144, v20"])
        put(202, [f"v_lshrrev_b32 v21, 4, v{vLANE}", "v_lshl_add_u32 v20, v21, 3, v20"]); put(203, ["v_add_u32 v20, s38, v20", f"v_lshrrev_b32 v22, 3, v{vLANE}"])
        put(204, [f"v_and_b32 v19, 7, v{vLANE}", "v_lshlrev_b32 v19, 4, v19"]); put(205, ["v_mul_u32_u24 v21, 144, v22", "v_add3_u32 v21, v21, v19, s38"])
        put(206, ["v_lshl_add_u32 v19, v22, 11, v19", "v_add_u32 v22, 16384, v19"])
    elif o.get("r128", 0):
        put(133, [f"v_and_b32 v20, 8, v{vLANE}", f"v_mul_u32_u24 v20, {2048 - 8}, v20"])
        put(152, ["v_sub_u32 v19, v19, v20", "v_add_u32 v20, 16384, v19"])
    for i in range(32): put(134 + i//2, [f"v_mul_f32 v{ACC4[0][i//16] + i%16}, v{ACC4[0][i//16] + i%16}, v{vOM[i//16]}"])
    put(248, [f"s_lshl_b32 s36, s{sT4}, 18", f"s_lshl_b32 s37, s{sW}, 16"]); put(249, ["s_add_u32 s36, s36, s37", f"s_lshl_b32 s37, s{sC4}, 7"])
    put(250, ["s_add_u32 s36, s36, s37"]); put(251, ["s_add_u32 s37, s36, 32768"])
    a("s_waitcnt lgkmcnt(0)")
    lat = o.get("p4lat", 20)
    jobs = [] if o.get("wbtail", 1) else [[26, 32*2 + 23 - lat, "wb", i] for i in range(24, 32)]
    for g in range(4, 8):
        e = {4: 0, 5: 26, 6: 57, 7: 89}[g]
        jobs += [[{4: 57, 5: 57, 6: 89, 7: 121}[g] if i == 7 else e, 32*(g - 1) + 23 - lat, "wa", (g, i)] for i in range(8)]
    jobs += [[max(chk_at + 1, 2*i + 2), 128 + 4*(i//2) - lat, "oa", i] for i in range(64)]
    gap = o.get("p4gap", 2.0)
    t = float(o.get('wb_at', 19))
    quiet = range(poll_at - o.get("p4quiet", 4), poll_at + 1)
    while jobs:
        k = int(t)
        av = [j for j in jobs if j[0] <= k]
        if not av or k in quiet:
            t = k + 1; continue
        j = min(av, key=lambda j: j[1])
        jobs.remove(j)
        if j[2] == "wb":
            d = wob_dma(j[3], "wo3"); put(k - 1, d[0] + d[1]); put(k, d[2])
        elif j[2] == "wa":
            d = woa_dma(*j[3]); put(k - 1, d[0]); put(k, d[1])
        else:
            put(k, oa_load(j[3]))
            if j[3] % 8 == 7 and j[3] < 63: put(k + 1, oa_next())
        if k > j[1] + 8: print("p4 late", j, k)
        t += gap
    ds = []
    def lg(tags):
        k_ = max([i for i, t_ in enumerate(ds) if t_ in tags], default=-1)
        return min(len(ds) - 1 - k_, 15)
    for G in range(64):
        br = G // 32
        rd = p4_reads(G + 2) if G + 2 < 64 else []
        mv = []
        if G + 3 < 64:
            dlt = (p4_lds((G + 3)//8)//65536 - p4_lds((G + 2)//8)//65536)*65536
            if dlt: mv = [f"v_add_u32 v{vWo_r[nt]}, {dlt}, v{vWo_r[nt]}" for nt in range(4)]
        order = [(nt, mt) for nt in range(4) for mt in range(2)]
        if G == 62: break
        for j in range(8):
            idx = 4*G + j//2
            nt, mt = order[j]
            d = vr(ACC4[br][mt] + nt*4, 4)
            a(mf16(d, fW4(G, nt), oreg((G % 32)*2 + mt), 0 if G % 32 == 0 else d))
            sd = side.get(idx, [])
            if j % 2 == 0:
                for s in [x for x in sd if isinstance(x, str) and x.startswith("ds_read")]:
                    a(s); ds.append("xr")
                sd = [x for x in sd if not (isinstance(x, str) and x.startswith("ds_read"))]
                now, side[idx] = sd[:len(sd)//2], sd[len(sd)//2:]
            else:
                now = side.pop(idx, [])
            if rd:
                a(rd[j]); ds.append(G + 2)
                if mv and j % 2 == 1: a(mv[j//2])
            for s in now:
                a.emit(s)
                if isinstance(s, str) and s.startswith("ds_write"): ds.append("xw")
            if j % 2 == 1:
                if idx == flag_at + 1: a.stamp("fOA")
                if idx == chk_at:
                    poll_check(a, "L_POA", 21, 16, 47, "pOA")
                    a.stamp("pOA")
        if G == 63: break
        w = ""
        need = []
        if G == 61: continue
        if G + 1 >= 32: need.append(f"oa{((G + 1) % 32)*2 + 1}")
        bar = G % 8 == 5 and G // 8 < 7
        if bar and f"wo{G//8 + 1}" in a.vm: need.append(f"wo{G//8 + 1}")
        if need: w += f" vmcnt({a.vmn(need)})"
        if G + 1 >= 2: w += f" lgkmcnt({lg([G + 1, 'xw'])})"
        if w: a("s_waitcnt" + w)
        if bar: a("s_barrier")
        if G == 31: a.stamp("p4B")
    def epi(mt):
        B_, A_ = ACC4[0][mt], ACC4[1][mt]
        fl = ['', 'sc1', 'nt', 'sc0 sc1', 'sc1 nt'][o.get('outflag', 1)]
        l = [f"v_fma_f32 v{B_+i}, v{A_+i}, v{vG2[mt]}, v{B_+i}" for i in range(16)] + packl(B_)
        if o.get("ldsout", 1):
            return l + [f"ds_write_b64 v20, {vr(B_+2*nt, 2)} offset:{mt*16*144 + 32*nt}" for nt in range(4)]
        l += ["s_nop 0"]
        l += [f"v_permlane32_swap_b32 v{B_+x}, v{B_+y}" for x, y in ((0, 2), (1, 3), (4, 6), (5, 7))]
        l += [f"v_permlane16_swap_b32 v{B_+x}, v{B_+y}" for x, y in ((0, 2), (1, 3), (4, 6), (5, 7))]
        if o.get("r128", 0):
            l += [f"v_mov_b32 v{B_+8+i}, v{B_+i}" for i in range(4)]
            l += [f"v_mov_b32_dpp v{B_+i}, v{B_+4+i} row_ror:8 row_mask:0xf bank_mask:0xc" for i in range(4)]
            l += [f"v_mov_b32_dpp v{B_+4+i}, v{B_+8+i} row_ror:8 row_mask:0xf bank_mask:0x3" for i in range(4)]
            l += [(f"buffer_store_dwordx4 {vr(B_+4*k, 4)}, v{19+k}, s[{sOutD}:{sOutD+3}], s{36+mt} offen {fl}", "out") for k in range(2)]
            return l
        l += [(f"buffer_store_dwordx4 {vr(B_+4*k, 4)}, v19, s[{sOutD}:{sOutD+3}], s{36+mt} offen offset:{64*k} {fl}", "out") for k in range(2)]
        return l
    rest = [x for k_ in sorted(side) for x in side[k_]]
    a(f"s_waitcnt vmcnt({a.vmn(['oa63'])}) lgkmcnt(0)")
    for G in (62, 63):
        for nt in range(4):
            d = vr(ACC4[1][0] + nt*4, 4)
            a(mf16(d, fW4(G, nt), oreg((G % 32)*2), d))
            if rest: a.emit(rest.pop(0))
    assert not rest
    e0 = epi(0)
    for k_, (G, nt) in enumerate([(G, nt) for G in (62, 63) for nt in range(4)]):
        d = vr(ACC4[1][1] + nt*4, 4)
        a(mf16(d, fW4(G, nt), oreg((G % 32)*2 + 1), d))
        if k_ >= 2:
            a(e0.pop(0)); a(e0.pop(0))
        else:
            a("s_nop 1")
    a.stamp("p4A")
    if not o.get("ldsout", 1):
        for x in e0 + epi(1): a.emit(x)
        return
    for x in e0: a.emit(x)
    e1_ = epi(1)
    fl = ['', 'sc1', 'nt', 'sc0 sc1', 'sc1 nt'][o.get('outflag', 1)]
    T = ACC4[1][0]
    def rds(mt): return [f"ds_read_b128 {vr(T + 8*mt + 4*k, 4)}, v21 offset:{(16*mt + 8*k)*144}" for k in range(2)]
    def sts(mt): return [(f"buffer_store_dwordx4 {vr(T + 8*mt + 4*k, 4)}, v{19 if k == 0 else 22}, s[{sOutD}:{sOutD+3}], s{36+mt} offen {fl}", "out") for k in range(2)]
    for x in rds(0): a(x)
    for x in e1_[:24]: a(x)
    a("s_waitcnt lgkmcnt(0)")
    for x in e1_[24:] + rds(1): a(x)
    for x in sts(0): a.emit(x)
    a("s_waitcnt lgkmcnt(0)")
    for x in sts(1): a.emit(x)

def gen(opts):
    a = G(opts); a.tail = []
    setup(a); gemm1(a); e1(a); attention(a); phase4(a)
    if opts.get("diag") is not None:
        a.stamp("end")
        a("s_nop 1")
        a(f"v_readlane_b32 s36, v{vSTAMP}, {32 + opts['diag']}")
        a("s_nop 3")
        a("s_add_u32 s36, s36, 10000")
        if opts.get("diagwg") is not None:
            a(f"s_cmp_lg_u32 s2, {opts['diagwg']}")
            a("s_cbranch_scc1 L_END")
        a("L_DIAG:")
        a("s_memrealtime s[38:39]")
        a("s_waitcnt lgkmcnt(0)")
        a("s_sub_u32 s38, s38, s36")
        a("s_cmp_lt_i32 s38, 0")
        a("s_cbranch_scc1 L_DIAG")
    elif opts.get("dbgstamp"):
        a.stamp("end")
        sel = ["karg", "first", "g7", "g15", "g23", "g31", "loc1", "pKV", "c1", "c9", "attend", "pOA", "p4B", "p4A", "end"]
        a(f"s_cmp_lg_u32 s2, {opts['dbgstamp']-1}")
        a("s_cbranch_scc1 L_DBGX")
        a(f"s_cmp_lg_u32 s{sW}, 0")
        a("s_cbranch_scc1 L_DBGX")
        a(f"v_readlane_b32 s36, v{vSTAMP}, 32")
        for i, nm in enumerate(sel):
            a(f"v_readlane_b32 s37, v{vSTAMP}, {32 + a.names.index(nm)}")
            a("s_nop 3")
            a("s_sub_u32 s37, s37, s36")
            a("v_mov_b32 v2, s37")
            a("v_mov_b32 v3, 0")
            a(f"global_store_dword v3, v2, s[{sPDbg}:{sPDbg+1}] offset:{4*(i+1)}")
        a("L_DBGX:")
    elif opts.get("stamp"):
        a.stamp("end")
        a("s_lshl_b32 s36, s2, 2")
        a(f"s_add_u32 s36, s36, s{sW}")
        a("s_lshl_b32 s36, s36, 8")
        a(f"s_add_u32 s36, s36, {STAMP_OFF}")
        a(f"v_lshlrev_b32 v2, 2, v{vLANE}")
        a(f"buffer_store_dword v{vSTAMP}, v2, {WS}, s36 offen")
    a("s_endpgm")
    for t in a.tail: a(t)
    head = f"""; gated mix of full MHA and dilated sliding-window attention: one fused kernel, 256 co-resident workgroups
; @launch grid=(256,1,1) block=(256,1,1) lds=163840
.amdgcn_target "amdgcn-amd-amdhsa--gfx950"
.text
.globl {KNAME}
.p2align 8
.type {KNAME},@function
{KNAME}:
"""
    tail = f"""L_END:
    s_endpgm
.section .rodata,"a"
.p2align 6
.amdhsa_kernel {KNAME}
  .amdhsa_next_free_vgpr 512
  .amdhsa_next_free_sgpr 102
  .amdhsa_accum_offset 256
  .amdhsa_group_segment_fixed_size 0
  .amdhsa_kernarg_size 80
  .amdhsa_user_sgpr_count 2
  .amdhsa_user_sgpr_kernarg_segment_ptr 1
  .amdhsa_system_sgpr_workgroup_id_x 1
.end_amdhsa_kernel
"""
    gen.names = a.names
    return head + a.text() + tail

if __name__ == "__main__":
    import hazard
    opts = {}
    for kv in sys.argv[2:]:
        k, v = kv.split("="); opts[k] = int(v)
    t = gen(opts)
    open(sys.argv[1], "w").write(t)
    print(len(hazard.check(t)), "hazards", gen.names)
```

```python
import sys, struct, math
from asmlib import *

KNAME = "gated_mix__softmax_full_mha__sliding_local_dilated__prompt_kernel"
def f2u(x): return struct.unpack("<I", struct.pack("<f", x))[0]
KV_OFF   = 0
OA_OFF   = 8 << 20
OB_OFF   = 12 << 20
HALO_OFF = 16 << 20
G_OFF    = 20 << 20
FLAG_OFF = 21 << 20
F_KV, F_H, F_OB, F_OA = FLAG_OFF, FLAG_OFF + 4096, FLAG_OFF + 8192, FLAG_OFF + 12288
STAMP_OFF = 0x8000000
OOB = 0x80000000
CSCALE = f2u(math.log2(math.e) / math.sqrt(32.0))
NEGBIG = f2u(-1e30)
X_SLOT = 16384; W_BASE = 49152; W_SLOT = 24576
KV_LDS = [98304, 131072]
XCH = 163840 - 16
sX, sWA, sWB, sWS = 4, 8, 12, 16
sW, sHP, sT, sRH, sHH = 20, 21, 22, 23, 24
sWoff, sXoff = 25, 26
sXw, sWv = 30, 34
sPF, sPFstr = 44, 46
sNONCE, sCS = 60, 61
sSTAMPI = 68
sPWoA, sPWoB, sPG, sPOut, sPDbg = 70, 72, 74, 76, 78
sKVsrc, sKVbase, sKVt, sKVdst = 80, 81, 82, 27
sPASS, sOst, sSpin = 83, 86, 87
sT4, sC4, sOoff, sWooff, sObase = 88, 89, 90, 91, 92
sHalo, sSeq, sO, sOrow, sHead = 93, 94, 95, 96, 97
sWoA, sWoB, sOutD = 4, 8, 12
sCode = 40
pX, pWA, pWB = 48, 50, 52
vLANE = 1
vXr = [2, 3]; vWr = [[4, 5], [10, 11]]; vWg = [12, 13, 14]; vXg = [15, 16, 17, 18]
vT = [19, 20, 21, 22, 23, 24, 25, 26]
vPF, vPFd, vL16, vSTAMP, vF0 = 27, 28, 29, 30, 31
vMc = 32
ACC0 = 64
def acc(blk, rt): return ACC0 + (blk*2 + rt)*16
QA = [64, 80]; KA = [96, 112]; VA = [128, 144]; QB = [160, 176]; KB = [192, 208]; VB = [224, 240]
NM = [128, 144]; S = [176, 240]; P = [72, 88]
vKV = [6, 7]
vWo_g = 2; vWo_r = [3, 4, 10, 11]; vG2 = [12, 13]; vOM = [14, 8]
vGate, vGrow = 14, 8
HK = 200; HV = 232
def fX(s, rt): return s*32 + rt*4
def fW(s, blk): return s*32 + 8 + blk*4
aK, aV = 0, [8, 16]
aO = [32, 48]; aL = [64, 68]; aONE = 112
aGATE = 80
aX = [0, 16]; aW = [32, 56]; vKS, vKL = 56, 57
aSEL = 72; vIDX = 9
OV = list(range(96, 128, 4)) + list(range(160, 176, 4)) + list(range(192, 240, 4))
def oreg(i): return ar(76 + 4*i, 4) if i < 45 else vr(OV[i - 45], 4)
ACC4 = [[128, 144], [64, 80]]
pKA = [96, 112]; pVA = [104, 120]; pQB = [160, 168]; pKB = [192, 208]; pVB = [224, 216]

def mf32(d, A, B, C): return f"v_mfma_f32_32x32x16_bf16 {d}, {A}, {B}, {C}"
def mf16(d, A, B, C): return f"v_mfma_f32_16x16x32_bf16 {d}, {A}, {B}, {C}"
WS = f"s[{sWS}:{sWS+3}]"

class G(Asm):
    def __init__(self, opts):
        super().__init__()
        self.opts = opts
        self.vm = []
        self.nstamp = 0
        self.names = []
    def emit(self, x):
        if callable(x): x = x()
        if x is None: return
        if isinstance(x, tuple):
            self(x[0]); self.vm.append(x[1])
        else:
            assert not (x.lstrip().startswith(("buffer_", "global_"))), x
            self(x)
    def vmn(self, tags):
        idx = [i for i, t in enumerate(self.vm) if t in tags]
        assert idx, tags
        n = len(self.vm) - 1 - max(idx)
        return min(n, 63)
    def wait(self, tags, lgkm=False):
        return lambda: f"s_waitcnt vmcnt({self.vmn(tags)})" + (" lgkmcnt(0)" if lgkm else "")
    def stamp(self, name):
        if not self.opts.get("stamp"): return
        if self.opts["stamp"] == 2 and name not in ("start", "g31", "c1", "attend", "end", "gP", "c4"): return
        self.names.append(name)
        a = self
        a("s_memtime s[66:67]")
        a("s_memrealtime s[64:65]")
        a("s_waitcnt lgkmcnt(0)")
        a(f"v_writelane_b32 v{vSTAMP}, s66, {self.nstamp}")
        a(f"v_writelane_b32 v{vSTAMP}, s64, {self.nstamp + 32}")
        self.nstamp += 1
        assert self.nstamp <= 32
    def inter(self, mains, sides):
        for i, m in enumerate(mains):
            if m is not None: self.emit(m)
            for s in sides.get(i, []): self.emit(s)

def srd(a, s, lo, hi, nbytes):
    a(f"s_mov_b32 s{s}, s{lo}")
    a(f"s_and_b32 s{s+1}, s{hi}, 0xffff")
    a(f"s_mov_b32 s{s+2}, {nbytes}")
    a(f"s_mov_b32 s{s+3}, 0x20000")

def pf_round(a):
    return [(f"global_load_dword v{vPFd}, v{vPF}, s[{sPF}:{sPF+1}]", "pf"),
            f"v_add_u32 v{vPF}, s{sPFstr}, v{vPF}"]

class P1:
    def __init__(self, a):
        self.a = a; self.wnext = [0]*6; self.xnext = [0]*4
    def dma(self, piece):
        kind, j, p = piece
        if kind == "W":
            assert self.wnext[p] == j and (p < 3 or self.wnext[p - 3] == j + 1) and (p >= 3 or self.wnext[p + 3] == j)
            self.wnext[p] += 1
            s = pWA if p < 3 else pWB
            return ([f"s_add_u32 m0, s{sWv}, {W_BASE + (j % 4)*W_SLOT + p*4096}"],
                    (f"global_load_lds_dwordx4 v{vWg[p % 3]}, s[{s}:{s+1}] {['', 'sc1', 'sc0', 'sc0 sc1'][self.a.opts.get('dmafl', 0)]}", f"W{j}"),
                    [f"v_add_u32 v{vWg[p % 3]}, 196608, v{vWg[p % 3]}"] if p >= 3 else [])
        assert self.xnext[p] == j
        self.xnext[p] += 1
        return ([f"s_add_u32 m0, s{sXw}, {(j % 3)*X_SLOT + p*1024}"],
                (f"global_load_lds_dwordx4 v{vXg[p]}, s[{pX}:{pX+1}] {['', 'sc1', 'sc0', 'sc0 sc1'][self.a.opts.get('dmafl', 0)]}", f"X{j}"),
                [f"v_add_u32 v{vXg[p]}, 128, v{vXg[p]}"])

def x_reads(xs, u):
    return [f"ds_read_b128 {ar(aX[xs] + mt*4, 4)}, v{vXr[u & 1]} offset:{((u >> 1) % 3)*X_SLOT + mt*2048}" for mt in range(4)]
def w_reads(ws_, u, blks):
    out = []
    sl = u % 4
    for i, blk in enumerate(blks):
        for nt in range(2):
            off = (sl % 2)*W_SLOT + blk*4096
            r = aW[ws_] + (i*2 + nt)*4
            out.append(f"ds_read_b64_tr_b16 {ar(r, 2)}, v{vWr[sl//2][nt]} offset:{off}")
            out.append(f"ds_read_b64_tr_b16 {ar(r + 2, 2)}, v{vWr[sl//2][nt]} offset:{off+512}")
    return out
def g1_mfmas(xs, ws_, blks, mts=(0, 1, 2, 3), mt_outer=False):
    out = {}
    for i, blk in enumerate(blks):
        for nt in range(2):
            for mt in mts:
                w, x = ar(aW[ws_] + (i*2 + nt)*4, 4), ar(aX[xs] + mt*4, 4)
                if blk % 3 == 2:
                    d = vr(acc(blk, mt >> 1) + ((mt & 1)*2 + nt)*4, 4); out[(i, nt, mt)] = mf16(d, x, w, d)
                else:
                    d = vr(acc(blk, mt >> 1) + (nt*2 + (mt & 1))*4, 4); out[(i, nt, mt)] = mf16(d, w, x, d)
    return out

def setup(a):
    o = a.opts
    a("L_START:")
    a("s_cmp_ge_u32 s2, 256")
    a("s_cbranch_scc1 L_END")
    if o.get("xorid"): a(f"s_xor_b32 s2, s2, {o['xorid']}")
    if o.get("mulid"): a(f"s_mul_i32 s2, s2, {o['mulid']}\ns_and_b32 s2, s2, 255")
    a.stamp("start")
    a("s_load_dwordx4 s[48:51], s[0:1], 0")
    a("s_load_dwordx2 s[52:53], s[0:1], 32")
    a("s_load_dwordx2 s[54:55], s[0:1], 72")
    a(f"s_load_dwordx2 s[{sPWoA}:{sPWoA+1}], s[0:1], 16")
    a(f"s_load_dwordx4 s[{sPWoB}:{sPWoB+3}], s[0:1], 40")
    a(f"s_load_dwordx4 s[{sPOut}:{sPOut+3}], s[0:1], 56")
    if o.get("cpf0", 1):
        n = o.get('codelines', 20)
        a("s_getpc_b64 s[56:57]")
        a("L_PC0:")
        a("s_lshr_b32 s35, s2, 3")
        a(f"s_mul_i32 s35, s35, {n}")
        a(f"v_min_u32 v2, {n-1}, v0")
        a("v_add_u32 v2, s35, v2")
        a("v_lshlrev_b32 v2, 7, v2")
        a("v_min_u32 v2, L_END - L_PC0, v2")
        a.emit((f"global_load_dword v{vPFd}, v2, s[56:57]", "cpf"))
    a(f"v_lshrrev_b32 v{vT[0]}, 6, v0")
    a(f"v_and_b32 v{vLANE}, 63, v0")
    a("s_and_b32 s37, s2, 3")
    a(f"v_readfirstlane_b32 s{sW}, v{vT[0]}")
    a("s_bfe_u32 s39, s2, 0x10002")
    a("s_lshr_b32 s35, s2, 3")
    a("s_and_b32 s38, s35, 3")
    a(f"s_lshl2_add_u32 s{sHP}, s37, s38")
    a("s_lshr_b32 s38, s35, 2")
    a(f"s_lshl3_add_u32 s{sT}, s39, s38")
    a(f"s_and_b32 s{sRH}, s{sW}, 1")
    r, c, t0, t1 = vT[0], vT[1], vT[2], vT[3]
    a("s_lshl_b32 s38, s37, 5")
    a("s_add_u32 s38, s38, s35")
    a("s_lshl_b32 s38, s38, 14")
    a("s_lshl_b32 s47, s39, 21")
    a("s_add_u32 s38, s38, s47")
    a("s_lshl_b32 s39, s39, 5")
    a("s_add_u32 s39, s39, s35")
    a("s_mul_i32 s39, s39, 6144")
    a("s_lshl_b32 s47, s37, 9")
    a("s_add_u32 s39, s39, s47")
    a(f"s_mov_b32 s{sPFstr}, {64*6144}")
    a(f"s_cmp_eq_u32 s{sW}, 0")
    a("s_cselect_b32 s39, s38, s39")
    a(f"s_cselect_b32 s{sPFstr}, 128, s{sPFstr}")
    a("s_cselect_b32 s38, 7, 11")
    a("s_cselect_b32 s47, 0, 2")
    a("s_cselect_b32 s36, 0, 3")
    a(f"s_cmp_eq_u32 s{sW}, 3")
    a(f"s_cselect_b32 s{sPFstr}, 0, s{sPFstr}")
    a("s_cselect_b32 s38, 0, s38")
    a(f"v_min_u32 v{t0}, s38, v{vLANE}")
    a(f"v_and_b32 v{t1}, s36, v{t0}")
    a(f"v_lshrrev_b32 v{t0}, s47, v{t0}")
    a(f"v_lshlrev_b32 v{t1}, 7, v{t1}")
    a(f"v_lshl_add_u32 v{t0}, v{t0}, 11, v{t1}")
    a(f"v_add_u32 v{vPF}, s39, v{t0}")
    a(f"v_lshrrev_b32 v{r}, 3, v{vLANE}")
    a(f"v_and_b32 v{c}, 7, v{vLANE}")
    a(f"v_lshrrev_b32 v{t0}, 1, v{r}")
    a(f"v_xor_b32 v{t0}, v{t0}, v{c}")
    a(f"v_lshlrev_b32 v{t1}, 11, v{r}")
    a(f"v_lshl_add_u32 v{t0}, v{t0}, 4, v{t1}")
    a(f"s_lshl2_add_u32 s36, s{sT}, s{sW}")
    a("s_lshl_b32 s36, s36, 16")
    a(f"v_add_u32 v{vXg[0]}, s36, v{t0}")
    a(f"v_xor_b32 v{vXg[1]}, 64, v{vXg[0]}")
    a(f"v_add_u32 v{vXg[1]}, {8*2048}, v{vXg[1]}")
    a(f"v_add_u32 v{vXg[2]}, {16*2048}, v{vXg[0]}")
    a(f"v_add_u32 v{vXg[3]}, {16*2048}, v{vXg[1]}")
    a(f"s_lshl_b32 s{sXw}, s{sW}, 12")
    a("s_waitcnt lgkmcnt(0)")
    a.stamp("karg")
    a(f"s_cmp_eq_u32 s{sW}, 0")
    a(f"s_cselect_b64 s[{sPF}:{sPF+1}], s[{pX}:{pX+1}], s[{pWA}:{pWA+1}]")
    a(f"s_cmp_eq_u32 s{sW}, 2")
    a(f"s_cselect_b64 s[{sPF}:{sPF+1}], s[{pWB}:{pWB+1}], s[{sPF}:{sPF+1}]")
    for i in range(o.get("pf0", 2)):
        for s in pf_round(a): a.emit(s)
    a.wsetup = [f"v_and_b32 v{t0}, 2, v{r}", f"s_lshl_b32 s36, s{sRH}, 2", f"v_xor_b32 v{t0}, v{t0}, v{c}", f"v_xor_b32 v{t0}, s36, v{t0}",
                f"v_mul_u32_u24 v{t1}, 6144, v{r}", f"v_lshl_add_u32 v{t0}, v{t0}, 4, v{t1}", f"s_mul_i32 s36, s{sW}, {8*6144}",
                f"s_lshl_b32 s37, s{sHP}, 7", "s_add_u32 s36, s36, s37", f"v_add_u32 v{vWg[0]}, s36, v{t0}",
                f"v_add_u32 v{vWg[1]}, 2048, v{vWg[0]}", f"v_add_u32 v{vWg[2]}, 4096, v{vWg[0]}", f"s_lshl_b32 s{sWv}, s{sW}, 10",
                f"s_lshr_b32 s{sHH}, s{sW}, 1"]

def fillers_prologue(a):
    L = []
    f = L.append
    f("s_mov_b32 s16, s54"); f("s_and_b32 s17, s55, 0xffff"); f("s_mov_b32 s18, 0x10000000"); f("s_mov_b32 s19, 0x20000")
    f(f"s_mov_b32 s{sCode}, s56"); f(f"s_and_b32 s{sCode+1}, s57, 0xffff"); f(f"s_mov_b32 s{sCode+2}, L_END - L_PC0"); f(f"s_mov_b32 s{sCode+3}, 0x20000")
    f(f"s_mov_b32 s{sX}, s{pX}"); f(f"s_and_b32 s{sX+1}, s{pX+1}, 0xffff"); f(f"s_mov_b32 s{sX+2}, {2048*1024*2}"); f(f"s_mov_b32 s{sX+3}, 0x20000")
    n = a.opts.get('codelines', 20)
    f(f"s_mul_i32 s47, s35, {n}"); f(f"v_min_u32 v{vT[7]}, {n-1}, v{vLANE}"); f(f"v_add_u32 v{vT[7]}, s47, v{vT[7]}"); f(f"v_lshlrev_b32 v{vT[7]}, 7, v{vT[7]}")
    m, g_, t0, t1, row = vT[0], vT[1], vT[2], vT[3], vT[4]
    f(f"v_and_b32 v{m}, 15, v{vLANE}")
    f(f"v_lshrrev_b32 v{g_}, 4, v{vLANE}")
    f(f"v_lshrrev_b32 v{t0}, 1, v{m}")
    f(f"v_xor_b32 v{t0}, v{t0}, v{g_}")
    f(f"v_lshlrev_b32 v{t0}, 4, v{t0}")
    f(f"v_lshl_add_u32 v{t0}, v{m}, 7, v{t0}")
    f(f"s_lshl_b32 s36, s{sRH}, 13")
    f(f"v_add_u32 v{vXr[0]}, s36, v{t0}")
    f(f"v_xor_b32 v{vXr[1]}, 64, v{vXr[0]}")
    f(f"v_lshrrev_b32 v{t0}, 2, v{m}")
    f(f"v_lshl_add_u32 v{row}, v{g_}, 3, v{t0}")
    f(f"v_lshrrev_b32 v{t0}, 3, v{m}")
    f(f"v_and_b32 v{t1}, 1, v{g_}")
    f(f"v_lshl_or_b32 v{t0}, v{t1}, 1, v{t0}")
    f(f"s_lshl_b32 s36, s{sHH}, 1")
    f(f"v_xor_b32 v{t0}, s36, v{t0}")
    f(f"v_lshlrev_b32 v{t0}, 5, v{t0}")
    f(f"v_lshl_add_u32 v{t0}, v{row}, 7, v{t0}")
    f(f"v_and_b32 v{t1}, 3, v{m}")
    f(f"v_lshl_add_u32 v{t0}, v{t1}, 3, v{t0}")
    f(f"v_add_u32 v{vWr[0][0]}, {W_BASE}, v{t0}")
    f(f"v_xor_b32 v{vWr[0][1]}, 32, v{vWr[0][0]}")
    f(f"v_add_u32 v{vWr[1][0]}, {2*W_SLOT}, v{vWr[0][0]}")
    f(f"v_add_u32 v{vWr[1][1]}, {2*W_SLOT}, v{vWr[0][1]}")
    for r in range(ACC0, 256):
        f(f"v_mov_b32 v{r}, 0")
    return L

def fillers_late(a):
    L = []
    f = L.append
    q, b, t = vT[0], vT[1], vT[2]
    f(f"v_lshlrev_b32 v{vL16}, 4, v{vLANE}")
    f(f"v_and_b32 v{q}, 31, v{vLANE}")
    f(f"v_lshrrev_b32 v{b}, 5, v{vLANE}")
    f(f"v_lshlrev_b32 v{b}, 2, v{b}")
    f(f"v_sub_u32 v{b}, v{q}, v{b}")
    f(f"v_add_u32 v{b}, 18, v{b}")
    f("v_mov_b32 v58, 0x5555"); f("v_mov_b32 v59, 0")
    f(f"v_lshlrev_b64 v[58:59], v{b}, v[58:59]")
    f("v_not_b32 v58, v58"); f("v_not_b32 v59, v59")
    f(f"s_mov_b32 s36, {NEGBIG}")
    for i in range(24):
        r, src = (i, 59) if i < 16 else (i - 8, 58)
        f(f"v_bfe_i32 v{vMc + i}, v{src}, {8*(r >> 2) + (r & 3)}, 1")
        f(f"v_and_b32 v{vMc + i}, s36, v{vMc + i}")
    f(f"v_lshrrev_b32 v{q}, 2, v{vLANE}")
    f(f"v_lshrrev_b32 v{t}, 4, v{vLANE}")
    f(f"v_xor_b32 v{q}, v{q}, v{t}")
    f(f"v_and_b32 v{q}, 1, v{q}")
    f(f"v_add_u32 v{q}, -1, v{q}")
    f(f"v_and_b32 v{q}, 0x3f803f80, v{q}")
    for i in range(4):
        f(f"v_accvgpr_write_b32 a{aONE+i}, v{q}")
    f(f"v_lshrrev_b32 v{q}, 1, v{vLANE}"); f(f"v_xor_b32 v{q}, v{q}, v{vLANE}"); f(f"v_and_b32 v{q}, 4, v{q}")
    f(f"v_lshl_or_b32 v{q}, v{q}, 1, v{q}"); f(f"v_xor_b32 v{q}, v{q}, v{vLANE}"); f(f"v_lshlrev_b32 v{vKS}, 4, v{q}")
    f(f"v_min_u32 v{vF0}, 1, v{vLANE}")
    f(f"v_lshlrev_b32 v{vF0}, 31, v{vF0}")
    f(f"s_mov_b32 s{sCS}, {CSCALE}"); f(f"s_mov_b32 s62, {CSCALE}"); f(f"s_mov_b32 s63, {CSCALE}")
    f(f"s_lshl_b32 s36, s{sHP}, 19")
    f(f"s_lshl_b32 s37, s{sW}, 13")
    f(f"s_lshl_b32 s38, s{sHH}, 14")
    f(f"s_lshl_b32 s39, s{sRH}, 13")
    f(f"s_add_u32 s{sKVdst}, s38, s39")
    f(f"s_add_u32 s{sKVbase}, s36, s{sKVdst}")
    f(f"s_lshl_b32 s{sKVt}, s{sT}, 15")
    f(f"s_add_u32 s{sKVsrc}, s{sKVbase}, s{sKVt}")
    f(f"s_and_b32 s{sKVt}, s{sT}, 7"); f(f"s_and_b32 s{sKVb}, s{sT}, 8")
    f(f"s_add_u32 s36, s38, {KV_LDS[0]}")
    f(f"v_add_u32 v{vKV[0]}, s36, v{vL16}")
    f(f"v_add_u32 v{vKV[1]}, 32768, v{vKV[0]}")
    f(f"s_lshl_b32 s{sHead}, s{sHP}, 1")
    f(f"s_add_u32 s{sHead}, s{sHead}, s{sHH}")
    f(f"s_lshl_b32 s{sSeq}, s{sT}, 1")
    f(f"s_add_u32 s{sSeq}, s{sSeq}, s{sRH}")
    f(f"s_lshl_b32 s37, s{sSeq}, 6")
    f(f"s_add_u32 s37, s37, s{sHead}")
    f(f"s_lshl_b32 s{sOst}, s37, 11")
    f(f"s_lshl_b32 s38, s{sHead}, 5")
    f(f"s_add_u32 s38, s38, s{sSeq}")
    f(f"s_lshl_b32 s28, s38, 2")
    f(f"s_lshl_b32 s38, s38, 12")
    f(f"s_add_u32 s{sHalo}, s38, {HALO_OFF}")
    f(f"s_mov_b32 s{sPASS}, 0")
    f(f"s_add_u32 s{sKVp}, s54, s{sKVbase}\ns_addc_u32 s{sKVp+1}, s55, 0")
    f("s_lshl_b32 s36, s2, 2"); f(f"s_add_u32 s36, s36, s{sW}"); f("s_lshl_b32 s36, s36, 11")
    f(f"v_and_b32 v24, 15, v{vLANE}"); f("v_lshlrev_b32 v24, 7, v24"); f("v_add_u32 v60, s36, v24")
    f("s_lshr_b32 s36, s2, 3"); f("s_lshl_b32 s36, s36, 2"); f(f"s_add_u32 s36, s36, s{sW}"); f("s_lshl_b32 s36, s36, 14")
    f("v_add_u32 v0, s36, v24")
    f(f"s_lshl_b32 s36, s{sSeq}, 6")
    f(f"s_lshl_b32 s37, s{sHead}, 1")
    f("s_add_u32 s36, s36, s37")
    f(f"v_lshrrev_b32 v9, 5, v{vLANE}")
    f(f"v_add_u32 v{vGrow}, s36, v9")
    f(f"v_and_b32 v25, 31, v{vLANE}")
    f("v_lshlrev_b32 v25, 4, v25")
    f(f"v_lshl_add_u32 v9, v{vGrow}, 11, v25")
    f(f"s_mov_b32 s56, s{sPG}"); f(f"s_and_b32 s57, s{sPG+1}, 0xffff"); f("s_mov_b32 s58, 2048"); f("s_mov_b32 s59, 0x20000")
    f(f"s_lshl_b32 s38, s{sHP}, 2"); f(f"s_add_u32 s38, s38, s{sW}"); f("s_lshl_b32 s38, s38, 6")
    f(f"s_add_u32 s31, s38, {F_KV}"); f(f"s_lshl_b32 s38, s{sT}, 2"); f("s_add_u32 s32, s31, s38")
    f(f"s_add_u32 s33, s28, {F_H - 4}"); f(f"s_cmp_eq_u32 s{sSeq}, 0\ns_cselect_b32 s38, 4, 0"); f("s_add_u32 s33, s33, s38")
    return L

def gemm1(a):
    o = a.opts
    p1 = P1(a)
    W = lambda j, ps: [("W", j, p) for p in ps]
    X = lambda v, ps: [("X", v, p) for p in ps]
    pro = X(0, range(4)) + W(0, range(6)) + W(1, range(6))
    sched = {(0,0): X(1, range(4)) + W(2, [0,1]), (0,1): W(2, [2,3,4,5]) + W(3, [0,1]),
             (1,0): W(3, [2,3,4,5]) + W(4, [0,1]), (1,1): X(2, range(4)) + W(4, [2,3]),
             (2,0): W(4, [4,5]) + W(5, [0,1,2,3]), (2,1): W(5, [4,5]) + X(3, range(4)),
             (3,0): W(6, range(6))}
    for u in range(3, 28):
        v, p0 = ((u + 5)//2, 0) if u & 1 else ((u + 4)//2, 2)
        sched[(u, 1)] = W(u + 4, [0,1,2]) + (X(v, [p0]) if v < 16 else [])
        sched[(u + 1, 0)] = W(u + 4, [3,4,5]) + (X(v, [p0 + 1]) if v < 16 else [])
    if o.get("w1late", 0):
        pro = X(0, range(4)) + W(0, range(6))
        sched.update({(0,0): W(1, range(6)), (0,1): X(1, range(4)) + W(2, [0,1]), (1,0): W(2, [2,3,4,5]) + W(3, [0,1]),
                      (1,1): W(3, [2,3,4,5]) + X(2, [0,1]), (2,0): X(2, [2,3]) + W(4, [0,1,2,3]), (2,1): W(4, [4,5]) + W(5, [0,1,2,3]),
                      (3,0): W(5, [4,5]) + X(3, range(4)), (3,1): W(6, range(6)), (4,0): W(7, range(6)),
                      (4,1): W(8, [0,1,2]) + X(4, [0,1,2]), (5,0): W(8, [3,4,5]) + X(4, [3])})
    U0 = o.get("u0", 28)
    if U0 == 28:
        sched[(27, 1)] = W(31, range(6)); del sched[(28, 0)]
    for (u, hf), ps in sched.items():
        done = u - 1 if hf == 0 else u
        for k, j, p in ps:
            if k == "W": assert j < 4 or done >= j - 4, (u, hf, k, j)
            else: assert j < 3 or done >= 2*(j - 3) + 1, (u, hf, k, j)
    npf0 = o.get("pf0", 2)
    pfs = {}
    r = npf0
    for u in range(0, 32):
        while r < 16 and u >= max(0, 2*r - o.get("pfd", 5)) and pfs.get(u, 0) < 1:
            pfs[u] = pfs.get(u, 0) + 1; r += 1
    fil = fillers_prologue(a)
    late = fillers_late(a)
    post_issue = []
    if o.get("latepro", 0) == 1: fil += late; late = []
    if o.get("latepro", 0) == 2: post_issue = late; late = []
    if o.get("latepro", 0) == 3: post_issue = fil[42:] + late; fil = fil[:42]; late = []
    ws_ = a.wsetup
    chunks = [ws_[0:4], ws_[4:8], ws_[8:11], ws_[11:14]]
    per = (len(fil) + len(pro) - 5)//(len(pro) - 4)
    chunks += [fil[i*per:(i+1)*per] for i in range(len(pro) - 4)]
    for pc, chunk in zip(pro, chunks):
        pre, d, post = p1.dma(pc)
        for s in pre: a(s)
        a(chunk[0] if chunk else "s_nop 0")
        a.emit(d)
        for s in post + chunk[1:]: a(s)
    for s in post_issue: a(s)
    a(f"s_or_b32 s36, s2, s{sW}")
    a("s_cmp_lg_u32 s36, 0")
    a("s_cbranch_scc1 L_NONONCE")
    a("s_memrealtime s[36:37]")
    a("v_mov_b32 v20, 0")
    a("s_waitcnt lgkmcnt(0)")
    a("s_or_b32 s36, s36, 1")
    a("v_mov_b32 v19, s36")
    a(f"global_store_dword v20, v19, s[{sPDbg}:{sPDbg+1}] sc1")
    a("L_NONONCE:")
    a.stamp("issued")
    a.emit(a.wait(["X0", "W0"]))
    a("s_barrier")
    a.stamp("first")
    for s in x_reads(0, 0) + w_reads(0, 0, (0, 1, 2)): a(s)
    a("s_waitcnt lgkmcnt(0)")
    def need(u): return [f"W{u}"] + ([f"X{u//2}"] if u % 2 == 0 else [])
    def seq(M, keys=None): return [M[k] for k in (keys or sorted(M))]
    roll = o.get("roll", 0)
    if roll:
        assert U0 == 28 and not late
        raise Exception("rolled loop needs bounds-checked prefetch")
        assert all(pfs.get(u, 0) == pfs.get(u + 12, 0) for u in range(4, 16)), pfs
    def half(u, hf):
        if hf == 0: reads = w_reads(1, u, (3, 4, 5))
        else: reads = x_reads((u + 1) & 1, u + 1) + w_reads(0, u + 1, (0, 1, 2) if u + 1 < U0 else (1, 2))
        sides = {}
        ps = sched.get((u, hf), [])
        lay = o.get("glay", 1)
        if lay == 0 or len(ps) > 4:
            for g, rd in enumerate(reads): sides.setdefault(g, []).append(rd)
            D = ([[13, 16, 19, 22], [12, 14, 16, 18, 20, 22]] if hf == 0 else [[17, 19, 21, 23], [13, 15, 17, 19, 21, 23]])[len(ps) > 4]
            if (u, hf) == (0, 0) and o.get("w1late", 0): D = [1, 3, 5, 7, 9, 11]
            for g, pc in zip(D, ps):
                pre, d, post = p1.dma(pc)
                sides.setdefault(g - 1, []).extend(pre)
                sides.setdefault(g, []).insert(0, d)
                sides[g].extend(post)
        else:
            D = {1: [2, 8, 14, 20], 2: [4, 10, 16, 22], 3: [3, 9, 15, 21], 4: [5, 11, 17, 23]}[lay]
            free = [g for g in range(24) if g not in D[:len(ps)]]
            for g, rd in zip(free, reads): sides.setdefault(g, []).append(rd)
            for g, pc in zip(D, ps):
                pre, d, post = p1.dma(pc)
                sides.setdefault(g - 1, []).extend(pre)
                sides.setdefault(g, []).insert(0, d)
                sides.setdefault(min(g + 1, 23), []).extend(post)
        if hf == 0 and pfs.get(u):
            sides.setdefault(23, []).extend(pf_round(a))
        if u >= 4 and late:
            for g in range(24):
                cur = sides.get(g, [])
                if any(isinstance(x, tuple) or x.startswith("ds_") for x in cur): continue
                room = o.get("lateper", 2) - (1 if cur else 0)
                while late and room > 0:
                    x = late.pop(0); sides.setdefault(g, []).append(x); room -= len(x.split("\n"))
        if roll and (u, hf) in ((15, 0), (27, 0)):
            sides.setdefault(14, []).append("s_sub_u32 s35, s35, 1")
        a.inter(seq(g1_mfmas(u & 1, hf, (0, 1, 2) if hf == 0 else (3, 4, 5))), sides)
        if roll and (u, hf) in ((15, 0), (27, 0)):
            a("s_cmp_lg_u32 s35, 0")
        if hf == 0:
            a.emit(a.wait(need(u + 1), lgkm=True))
            a("s_barrier")
        elif u + 1 < U0:
            a("s_waitcnt lgkmcnt(0)")
        if hf == 1 and u % 8 == 7 and not roll: a.stamp(f"g{u}")
    halves = [(u, hf) for u in range(U0) for hf in range(2)]
    if not roll:
        for h in halves: half(*h)
    else:
        for h in halves[:7]: half(*h)
        a("s_mov_b32 s35, 2")
        n0 = len(a.lines)
        for h in halves[7:31]: half(*h)
        p1_ = a.lines[n0:]; del a.lines[n0:]
        for h in halves[31:55]: half(*h)
        p2_ = a.lines[n0:]; del a.lines[n0:]
        assert len(p1_) == len(p2_)
        if o.get("galign"): a(f".p2align {o['galign']}")
        a("L_G1:")
        import re
        for x, y in zip(p1_, p2_):
            if x != y:
                mx, my = re.fullmatch(r"\s*s_waitcnt vmcnt\((\d+)\) lgkmcnt\(0\)", x), re.fullmatch(r"\s*s_waitcnt vmcnt\((\d+)\) lgkmcnt\(0\)", y)
                assert mx and my, (x, y)
                x = f"s_waitcnt vmcnt({min(int(mx.group(1)), int(my.group(1)))}) lgkmcnt(0)"
            a(x)
        a("s_cbranch_scc1 L_G1")
        half(27, 1)
    misc = []
    for j in range(8):
        misc.append((f"buffer_load_dwordx4 {ar(aGATE+4*j, 4)}, v9, s[{sX}:{sX+3}], 0 offen offset:{512*j}" if j < 4 else
                     f"buffer_load_dwordx4 {ar(aGATE+4*j, 4)}, v25, s[56:59], 0 offen offset:{512*(j-4)}", "gate"))
    misc = [(f"global_load_dword v21, v19, s[{sPDbg}:{sPDbg+1}] sc1", "nonce"),
            (f"buffer_load_dword v{vPFd}, v{vT[7]}, s[{sCode}:{sCode+3}], 0 offen", "cpf")] + misc
    if o.get("wom", 1): misc.insert(o.get("wompos", 10), (f"global_load_dword v{vPFd}, v60, s[{sPWoB}:{sPWoB+1}]", "wopf"))
    if o.get("wom", 1) > 1: misc.append((f"global_load_dword v{vPFd}, v60, s[{sPWoA}:{sPWoA+1}]", "wopf"))
    xs, ws_ = U0 & 1, 0
    units = [(u, b) for u in range(U0, 31) for b in ((0, 3), (4, 5))] + [(31, (4, 5)), (31, (3, 0))]
    bfirst = o.get("bfirst", 1)
    if bfirst: units = [(u, (4, 5)) for u in range(U0, 32)] + [(u, (3, 0)) for u in range(U0, 32)]
    for u in range(U0, 32):
        if u < 31:
            a.emit(a.wait(need(u + 1), lgkm=True)); a("s_barrier")
        else:
            a("s_waitcnt lgkmcnt(0)")
        reads = x_reads(1 - xs, u + 1) + w_reads(1 - ws_, u + 1, (1, 2)) if u < 31 else x_reads(1 - xs, U0) + w_reads(1 - ws_, *units[0])
        sides = {}
        for i, rd in enumerate(reads): sides.setdefault(i, []).append(rd)
        if u == U0:
            sides.setdefault(0, []).append("v_mov_b32 v19, 0")
            sides.setdefault(1, []).append(f"s_add_u32 s25, s{sKVsrc}, 4096"); sides.setdefault(2, []).append(f"s_mov_b32 s26, s{sKVsrc}")
        for g in ((12, 13, 15) if U0 == 28 else (12, 13, 14, 15)):
            if misc: sides.setdefault(g, []).append(misc.pop(0))
        M = g1_mfmas(xs, ws_, (1, 2))
        a.inter(seq(M, [(i, nt, mt) for rt in range(2) for i in range(2) for nt in range(2) for mt in (2*rt, 2*rt + 1)]), sides)
        xs ^= 1; ws_ ^= 1
    assert not misc
    a.stamp("gP")
    e1_lists(a)
    kvw = pk16(KA[0], pKA[0]) + a.kv.pop(0) + pk16(VA[0], pVA[0]) + pk16(KA[1], pKA[1]) + pk16(VA[1], pVA[1])
    st_units = {28: [1, 2, 3, 4, 5, 6, 7], 29: [1, 2, 3, 4, 5]}[U0]
    for n, (u, blks) in enumerate(units):
        last = n == len(units) - 1
        a("s_waitcnt lgkmcnt(0)")
        if last: a("s_barrier")
        reads = []
        newx = False
        if not last:
            un, bn = units[n + 1]
            newx = un != u
            reads = (x_reads(1 - xs, un) if newx else []) + w_reads(1 - ws_, un, bn)
        sides = {}
        for i, rd in enumerate(reads): sides.setdefault(i, []).append(rd)
        M = g1_mfmas(xs, ws_, blks)
        keys = None
        if bfirst and n == len(units)//2:
            kvw += pk16(KB[1], pKB[1]) + pk16(VB[1], pVB[1], True) + pk16(KB[0], pKB[0]) + pk16(VB[0], pVB[0], True)
        if n >= len(units) - 2 or (bfirst and n == len(units)//2 - 1):
            keys = [(i, nt, mt) for rt in (1, 0) for i in range(2) for nt in range(2) for mt in (2*rt, 2*rt + 1)]
            if last: keys = [(i, nt, mt) for i in range(2) for rt in (1, 0) for nt in range(2) for mt in (2*rt, 2*rt + 1)]
        if last:
            e1_head(a, sides, kvw if bfirst else None); kvw = []
        else:
            for g in range(4 if n == 0 else 0, 16):
                budget = 1 if g < len(reads) else 2
                if n in st_units and g == 15: budget = 0
                while kvw and budget > 0:
                    cost = 2 if (isinstance(kvw[0], tuple) or "permlane" in kvw[0]) else 1
                    if cost > budget and o.get("rstrict", 1): break
                    sides.setdefault(g, []).append(kvw.pop(0))
                    budget -= cost
        if n in st_units:
            st_ = a.kv.pop(0)
            lo = int(st_[0][0].split("v[")[1].split(":")[0])
            assert not any(isinstance(x, str) and any(f"v{lo+i}," in x.split(None, 1)[1].split(", v")[0] + "," or x.endswith(f" v{lo+i}") and "permlane" in x for i in range(4)) for x in kvw), (n, lo)
            sides.setdefault(1 if last else 15, []).extend(st_)
        a.inter(seq(M, keys), sides)
        ws_ ^= 1
        if newx: xs ^= 1
    assert not kvw
    a.stamp("g31")
    assert not late

def packl(base, out=None):
    out = base if out is None else out
    return [f"v_cvt_pk_bf16_f32 v{out+j}, v{base+2*j}, v{base+2*j+1}" for j in range(8)]
def pk16(base, out=None, vb=False):
    out = base if out is None else out
    l = packl(base, out) + [f"v_permlane16_swap_b32 v{out+i}, v{out+i+2}" for i in (0, 1, 4, 5)]
    if vb: l += [f"v_permlane32_swap_b32 v{out+i}, v{out+i+2}" for i in (0, 1, 4, 5)]
    return l
def pko(base, out=None):
    out = base if out is None else out
    return packl(base, out) + ["s_nop 0"] + [f"v_permlane16_swap_b32 v{out+j}, v{out+4+j}" for j in range(4)]
def pack(a, base, out=None):
    for s in packl(base, out): a(s)
class L(list):
    def __call__(self, s): self.append(s)
    def emit(self, s): self.append(s)
def weave(a, work, extra, first, every):
    nxt = first
    for i, w in enumerate(work):
        while extra and i >= nxt:
            for s in extra.pop(0): a.emit(s)
            nxt += every
        a.emit(w)

def padfill(a, fill, n):
    k = 0
    for f in fill:
        a.emit(f); k += len(f.split("\n")) if isinstance(f, str) else 1
    if k < n: a(f"s_nop {n - k - 1}")

def local_tile(a, Q, Kc, Vc, Kp, Vp1, SC, SP, O, PC, PP, tmp, off, tag, fill1=(), fill2=()):
    m, t = tmp, tmp + 1
    a(mf32(vr(SC, 16), vr(Kc, 4), vr(Q, 4), vr(vMc, 16)))
    a(mf32(vr(SC, 16), vr(Kc+4, 4), vr(Q+4, 4), vr(SC, 16)))
    a(mf32(vr(SP, 16), vr(Kp, 4), vr(Q, 4), vr(vMc + 8, 16)))
    a(mf32(vr(SP, 16), vr(Kp+4, 4), vr(Q+4, 4), vr(SP, 16)))
    padfill(a, fill1, 10)
    vals = [SC + i for i in range(16)] + [SP + 8 + i for i in range(8)]
    a(f"v_max3_f32 v{m}, v{vals[0]}, v{vals[1]}, v{vals[2]}")
    for i in range(3, 23, 2):
        a(f"v_max3_f32 v{m}, v{m}, v{vals[i]}, v{vals[i+1]}")
    a(f"v_max_f32 v{m}, v{m}, v{vals[23]}")
    a(f"v_mov_b32 v{t}, v{m}")
    a("s_nop 1")
    a(f"v_permlane32_swap_b32 v{m}, v{t}")
    a(f"v_max_f32 v{m}, v{m}, v{t}")
    a(f"v_mul_f32 v{m}, s{sCS}, v{m}")
    for v in vals:
        a(f"v_fma_f32 v{v}, v{v}, s{sCS}, -v{m}")
    L = SP
    for i in range(10): a(f"v_exp_f32 v{vals[i]}, v{vals[i]}")
    for j in range(4): a(f"v_cvt_pk_bf16_f32 v{PC+j}, v{SC+2*j}, v{SC+2*j+1}")
    for i in range(10, 13): a(f"v_exp_f32 v{vals[i]}, v{vals[i]}")
    a(mf32(vr(O, 16), vr(Vc, 4), vr(PC, 4), 0))
    for i in range(13, 18): a(f"v_exp_f32 v{vals[i]}, v{vals[i]}")
    a(mf16(vr(L, 4), ar(aONE, 4), vr(PC, 4), 0))
    for j in range(4, 8): a(f"v_cvt_pk_bf16_f32 v{PC+j}, v{SC+2*j}, v{SC+2*j+1}")
    for i in range(18, 20): a(f"v_exp_f32 v{vals[i]}, v{vals[i]}")
    a(mf32(vr(O, 16), vr(Vc+4, 4), vr(PC+4, 4), vr(O, 16)))
    for i in range(20, 24): a(f"v_exp_f32 v{vals[i]}, v{vals[i]}")
    a(mf16(vr(L, 4), ar(aONE, 4), vr(PC+4, 4), vr(L, 4)))
    for j in range(4): a(f"v_cvt_pk_bf16_f32 v{PP+j}, v{SP+8+2*j}, v{SP+9+2*j}")
    a("s_nop 1")
    a(mf16(vr(L, 4), ar(aONE, 4), vr(PP, 4), vr(L, 4)))
    a(mf32(vr(O, 16), vr(Vp1, 4), vr(PP, 4), vr(O, 16)))
    padfill(a, fill2, 7)
    a(f"v_rcp_f32 v{m}, v{L}")
    a(f"s_add_u32 s35, s{sOst}, {OB_OFF + off}")
    a("s_nop 2")
    for i in range(16):
        a(f"v_mul_f32 v{O+i}, v{O+i}, v{m}")
    return [(f"buffer_store_dwordx4 {{0}}, v{vL16}, {WS}, s35 offen sc1", tag),
            (f"buffer_store_dwordx4 {{0}}, v{vL16}, {WS}, s35 offen offset:1024 sc1", tag)]

def flag_store(sreg, vtmp, tag):
    return [f"v_mov_b32 v{vtmp}, s{sNONCE}", (f"buffer_store_dword v{vtmp}, v{vF0}, {WS}, s{sreg} offen sc1", tag)]

def poll_check(a, name, vdst, vaddr, sreg, tag, mask=-1):
    a.emit(a.wait([tag]))
    a(f"v_cmp_ne_u32 vcc, s{sNONCE}, v{vdst}")
    a(f"s_and_b32 s{sSpin}, vcc_lo, {mask}")
    a(f"s_cbranch_scc1 {name}_S")
    a(f"{name}_R:")
    a.tail.append(f"""{name}_S:
    s_mov_b32 s{sSpin}, 0
{name}_L:
    buffer_load_dword v{vdst}, v{vaddr}, {WS}, s{sreg} offen sc1
    s_add_u32 s{sSpin}, s{sSpin}, 1
    s_waitcnt vmcnt(0)
    v_cmp_ne_u32 vcc, s{sNONCE}, v{vdst}
    s_cmp_lt_u32 s{sSpin}, 0x40000
    s_cbranch_scc0 {name}_R
    s_nop 2
    s_and_b32 vcc_hi, vcc_lo, {mask}
    s_cbranch_scc1 {name}_L
    s_branch {name}_R""")

def e1_lists(a):
    a.halo = [[(f"buffer_store_dwordx4 {vr(pKB[1], 4)}, v{vL16}, {WS}, s{sHalo} offen sc1", "halo")],
              [(f"buffer_store_dwordx4 {vr(pKB[1]+4, 4)}, v{vL16}, {WS}, s{sHalo} offen offset:1024 sc1", "halo")],
              [(f"buffer_store_dwordx4 {vr(pVB[1]+4, 4)}, v{vL16}, {WS}, s{sHalo} offen offset:2048 sc1", "halo")]]
    a.kv = []; a.dsw = []
    for rt in range(2):
        for (blk, f0) in ((pKA[rt], 0), (pVA[rt], 2)):
            for f in range(2):
                off = (f0 + f)*1024
                a.kv.append([(f"buffer_store_dwordx4 {vr(blk+4*f, 4)}, v{vL16 if f0 else vKS}, {WS}, s{26 if rt == 0 else 25} offen offset:{off} sc1", "kv")])
                a.dsw.append([f"ds_write_b128 v{22 if f0 else vKL}, {vr(blk+4*f, 4)} offset:{rt*4096 + off}"])

def e1_head(a, sides, left):
    w = [f"s_add_u32 s36, s{sKVdst}, {KV_LDS[0]}", f"v_add_u32 v22, s36, v{vL16}", f"v_add_u32 v{vKL}, s36, v{vKS}", f"v_add_u32 v{vL16b}, 4096, v{vL16}"]
    if left is None: w += pk16(KB[1], pKB[1]) + pk16(VB[1], pVB[1], True) + pk16(KB[0], pKB[0]) + pk16(VB[0], pVB[0], True)
    else: w += left + sel_init(23, 24)[:5] + sel_init(23, 24)[13:]
    a.selrest = sel_init(23, 24) if left is None else sel_init(23, 24)[5:13]
    for g in range(16):
        budget = 2
        if g % 2 == 1 and g > 1:
            sides.setdefault(g, []).extend(a.dsw.pop(0)); budget = 0
        while w and budget > 0:
            x = w.pop(0)
            sides.setdefault(g, []).append(x)
            budget -= 2 if "permlane" in x else (0 if x.startswith("s_") else 1)
    a.e1rest = w

def e1(a):
    o = a.opts
    pend = a.kv + a.halo
    a.emit(a.wait(["nonce"]))
    a(f"v_readfirstlane_b32 s{sNONCE}, v21")
    w = a.e1rest + pk16(QB[1], 240) + a.selrest + pk16(QB[0], pQB[0])
    weave(a, w, a.dsw, 2, 8)
    a(f"s_cmp_eq_u32 s{sNONCE}, 0")
    a("s_cbranch_scc1 L_NONCE_S")
    a("L_NONCE_R:")
    a.tail.append(f"""L_NONCE_S:
    s_mov_b32 s{sSpin}, 0
L_NONCE_L:
    global_load_dword v21, v19, s[{sPDbg}:{sPDbg+1}] sc1
    s_add_u32 s{sSpin}, s{sSpin}, 1
    s_waitcnt vmcnt(0)
    v_readfirstlane_b32 s{sNONCE}, v21
    s_cmp_lt_u32 s{sSpin}, 0x40000
    s_cbranch_scc0 L_NONCE_R
    s_nop 2
    s_cmp_eq_u32 s{sNONCE}, 0
    s_cbranch_scc1 L_NONCE_L
    s_branch L_NONCE_R""")
    for s in pend.pop(0): a.emit(s)
    a.stamp("e1pack")
    qa = []
    for q in QA:
        qa += [f"v_pk_mul_f32 {vr(q+2*j, 2)}, {vr(q+2*j, 2)}, s[62:63]" for j in range(8)] + pk16(q)
    lt = L()
    st = local_tile(lt, 240, pKB[1], pVB[1], pKB[0], pVB[0]+4, 128, 144, 176, 168, 248, 252, 65536, "ob1", fill1=qa[:26], fill2=qa[26:])
    lt += pko(176, 56)
    a.ob1 = [(st[0][0].format("v[56:59]"), "ob1"), (st[1][0].format("v[60:63]"), "ob1")]
    weave(a, lt, pend, o.get("st_a", 40), o.get("st_b", 50))
    for g in pend:
        for s in g: a.emit(s)
    a.stamp("loc1")
    a.emit(a.wait(["kv"], lgkm=True))
    for s in flag_store(32, 20, "fKV"): a.emit(s)
    a("s_barrier")
    a.stamp("fKV")

sKVp, sKVg, sOg, sPFW = 84, 98, 100, 52
vL16b = 5
def kv_dma(slot, group, tag):
    out = [f"s_add_u32 m0, s{sKVdst}, {KV_LDS[slot] + group*4096}"]
    for p in range(4):
        out.append((f"global_load_lds_dwordx4 v{vL16b if group else vL16}, s[{sKVg}:{sKVg+1}] offset:{p*1024} sc1", tag))
    return out
sKVb, sKVd = 3, 34
def kv_advance(c):
    if c <= 7:
        return [f"s_cmp_le_u32 s{sKVt}, {c-1}", f"s_addc_u32 s36, s{sKVb}, {c-1}", "s_lshl_b32 s36, s36, 15",
                f"s_add_u32 s{sKVg}, s{sKVp}, s36", f"s_addc_u32 s{sKVg+1}, s{sKVp+1}, 0"]
    return [f"s_add_u32 s36, s{sKVb}, {c}", "s_and_b32 s36, s36, 15", "s_lshl_b32 s36, s36, 15",
            f"s_add_u32 s{sKVg}, s{sKVp}, s36", f"s_addc_u32 s{sKVg+1}, s{sKVp+1}, 0"]

def sel_init(t0, t1):
    return [f"v_lshrrev_b32 v{t0}, 1, v{vLANE}", f"v_and_b32 v{t0}, 3, v{t0}", f"v_min_u32 v{t1}, 1, v{t0}", f"v_add_u32 v{t1}, -1, v{t1}",
            f"v_and_b32 v{t1}, 0x3f803f80, v{t1}", f"v_accvgpr_write_b32 a{aSEL}, v{t1}", f"v_accvgpr_write_b32 a{aSEL+1}, v{t1}",
            f"v_xor_b32 v{t0}, 2, v{t0}", f"v_min_u32 v{t1}, 1, v{t0}", f"v_add_u32 v{t1}, -1, v{t1}",
            f"v_and_b32 v{t1}, 0x3f803f80, v{t1}", f"v_accvgpr_write_b32 a{aSEL+2}, v{t1}", f"v_accvgpr_write_b32 a{aSEL+3}, v{t1}",
            f"v_and_b32 v{vIDX}, 1, v{vLANE}", f"v_mul_u32_u24 v{vIDX}, 0xaaaa, v{vIDX}", f"v_add_u32 v{vIDX}, 0x4444, v{vIDX}"]
def smf(q): return f"v_smfmac_f32_16x16x64_bf16 {ar(aL[q], 4)}, {ar(aSEL, 4)}, {vr(P[q], 8)}, v{vIDX}"

def H(a, q, vpar, qk=True, pv=True, pv_first=False, slots=None):
    slots = slots or {}
    o = 1 - q
    e = [f"v_exp_f32 v{S[q]+i}, v{S[q]+i}" for i in range(16)]
    c = [f"v_cvt_pk_bf16_f32 v{P[q]+j}, v{S[q]+2*j}, v{S[q]+2*j+1}" for j in range(8)]
    So, Oo = vr(S[o], 16), ar(aO[o], 16)
    M = [mf32(So, ar(aK, 4), vr(QA[o], 4), vr(NM[o], 16)) if qk else None,
         mf32(So, ar(aK+4, 4), vr(QA[o]+4, 4), So) if qk else None,
         mf32(Oo, ar(aV[vpar], 4), vr(P[o], 4), 0 if pv_first else Oo) if pv else None,
         mf32(Oo, ar(aV[vpar]+4, 4), vr(P[o]+4, 4), Oo) if pv else None,
         smf(o) if pv else None, None]
    V = [[e[0], e[1], e[2]], [e[3], c[0], c[1], e[4]], [e[5], e[6], e[7]], [c[2], c[3], e[8], e[9], e[10], e[11], c[4], c[5]],
         [], [e[12], e[13], e[14], e[15], c[6], c[7]]]
    if not pv: V[3] = ["s_nop 0"] + V[3]
    for i in range(6):
        if M[i]: a(M[i])
        for s in slots.get(i, []): a.emit(s)
        for s in V[i]: a(s)

def rdK(slot, off): return [f"ds_read_b128 {ar(aK, 4)}, v{vKV[slot]} offset:{off}", f"ds_read_b128 {ar(aK+4, 4)}, v{vKV[slot]} offset:{off+1024}"]
def rdV(par, slot, off): return [f"ds_read_b128 {ar(aV[par], 4)}, v{vKV[slot]} offset:{off+2048}", f"ds_read_b128 {ar(aV[par]+4, 4)}, v{vKV[slot]} offset:{off+3072}"]

FREE_A = [0, 3, 4]; FREE_B = [2, 3, 4, 5]
TORD = [0, 2, 1, 3]
def tile(a, n, side=None, end_b=None):
    sa = {}; sb = {}
    if n < 63:
        m = n + 1
        k = rdK((m >> 2) & 1, TORD[m & 3]*4096); v = rdV(m & 1, (m >> 2) & 1, TORD[m & 3]*4096)
        sa[1] = [k[0]]; sa[2] = [k[1]]; sa[5] = ["s_waitcnt lgkmcnt(0)"]
        sb[0] = [v[0]]; sb[1] = [v[1]]
    if side is not None:
        for g in FREE_A:
            if side: sa.setdefault(g, []).extend(side.pop(0))
        for g in (FREE_B if end_b is None else FREE_B[:-1]):
            if side: sb.setdefault(g, []).extend(side.pop(0))
        if sb.get(4) and sb.get(5) and isinstance(sb[4][-1], str) and " m0," in sb[4][-1] and isinstance(sb[5][0], tuple):
            if not sb.get(3): sb[3] = sb.pop(4)
            elif len(sb[3]) == 1 and isinstance(sb[3][0], str) and " m0," not in sb[3][0] and not sb[3][0].startswith(("s_cmp", "s_addc", "s_add_u32 s9", "s_add_u32 s10")):
                sb[3], sb[4] = sb[4], sb[3]
            else: sb[4] = sb[4] + ["s_nop 0"]
    if end_b: sb.setdefault(5, []).extend(end_b)
    H(a, 0, (n - 1) & 1, pv=(n != 0), pv_first=(n == 1), slots=sa)
    H(a, 1, n & 1, qk=(n < 63), pv_first=(n == 0), slots=sb)

def neg_max(a):
    for q in range(2): a(f"v_mov_b32 v{21+q}, v{19+q}")
    a("s_nop 0")
    for q in range(2): a(f"v_permlane32_swap_b32 v{19+q}, v{21+q}")
    for q in range(2): a(f"v_max_f32 v{19+q}, v{19+q}, v{21+q}")
    for q in range(2):
        for i in range(16): a(f"v_sub_f32 v{NM[q]+i}, 0, v{19+q}")

def gate_compute(a):
    z, t = 23, 24
    for i in range(16):
        a(f"v_accvgpr_read_b32 v{96+(i%4)}, a{aGATE+i}")
        a(f"v_accvgpr_read_b32 v{100+(i%4)}, a{aGATE+16+i}")
        a(f"v_dot2_f32_bf16 v{z}, v{96+(i%4)}, v{100+(i%4)}, {0 if i == 0 else 'v%d' % z}")
    a("s_nop 2")
    for sh in (8, 4, 2, 1):
        a(f"v_add_f32_dpp v{z}, v{z}, v{z} row_ror:{sh} row_mask:0xf bank_mask:0xf")
        a("s_nop 1")
    a(f"v_mov_b32 v{t}, v{z}")
    a("s_nop 1")
    a(f"v_permlane16_swap_b32 v{z}, v{t}")
    a(f"v_add_f32 v{z}, v{z}, v{t}")
    a(f"v_mul_f32 v{z}, {f2u(-math.log2(math.e))}, v{z}")
    a(f"v_exp_f32 v{z}, v{z}")
    a(f"v_and_b32 v{t}, 31, v{vLANE}")
    a(f"v_add_f32 v{z}, 1.0, v{z}")
    a(f"v_rcp_f32 v{z}, v{z}")
    a(f"v_min_u32 v{t}, 1, v{t}")
    a(f"v_lshlrev_b32 v{t}, 31, v{t}")
    a(f"v_lshl_or_b32 v{t}, v{vGrow}, 2, v{t}")
    a(f"s_mov_b32 s36, {G_OFF}")
    a.emit((f"buffer_store_dword v{z}, v{t}, {WS}, s36 offen sc1", "g"))

def p4_setup(a):
    srd(a, sWoA, sPWoA, sPWoA+1, 1024*1024*2)
    srd(a, sWoB, sPWoB, sPWoB+1, 1024*1024*2)
    srd(a, sOutD, sPOut, sPOut+1, 2048*1024*2)
    a("s_and_b32 s36, s2, 7")
    a("s_lshr_b32 s37, s2, 3")
    a(f"s_and_b32 s{sC4}, s37, 15")
    a("s_lshr_b32 s37, s37, 4")
    a("s_lshl_b32 s36, s36, 1")
    a(f"s_add_u32 s{sT4}, s36, s37")
    r, c, t0, t1 = 200, 201, 202, 203
    a(f"v_lshrrev_b32 v{r}, 3, v{vLANE}")
    a(f"v_and_b32 v{c}, 7, v{vLANE}")
    a(f"v_and_b32 v{t0}, 2, v{r}")
    a(f"s_lshl_b32 s36, s{sHH}, 2")
    a(f"v_xor_b32 v{t0}, v{t0}, v{c}")
    a(f"v_xor_b32 v{t0}, s36, v{t0}")
    a(f"v_lshlrev_b32 v{t0}, 4, v{t0}")
    a(f"v_lshl_add_u32 v{t0}, v{r}, 11, v{t0}")
    a(f"s_lshl_b32 s36, s{sW}, 14")
    a(f"s_lshl_b32 s37, s{sC4}, 7")
    a("s_add_u32 s36, s36, s37")
    a(f"v_add_u32 v{vWo_g}, s36, v{t0}")
    a(f"v_and_b32 v{r}, 15, v{vLANE}")
    a(f"v_lshrrev_b32 v{t0}, 2, v{r}")
    a(f"v_lshrrev_b32 v{t1}, 5, v{vLANE}")
    a(f"v_lshl_add_u32 v{c}, v{t1}, 2, v{t0}")
    a(f"v_and_b32 v{t1}, 16, v{vLANE}")
    a(f"v_add_u32 v{c}, v{c}, v{t1}")
    a(f"v_lshlrev_b32 v{t1}, 2, v{t1}")
    a(f"v_and_b32 v{t0}, 8, v{r}")
    a(f"v_lshl_add_u32 v{t0}, v{t0}, 2, v{t1}")
    a(f"v_lshl_add_u32 v{t0}, v{c}, 7, v{t0}")
    a(f"v_and_b32 v{t1}, 3, v{r}")
    a(f"v_lshl_add_u32 v{vWo_r[0]}, v{t1}, 3, v{t0}")
    for nt in range(1, 4):
        a(f"v_xor_b32 v{vWo_r[nt]}, {32*nt}, v{vWo_r[0]}")
    a(f"s_lshl_b32 s36, s{sT4}, 2")
    a(f"s_add_u32 s36, s36, s{sW}")
    a(f"s_lshl_b32 s{sOrow}, s36, 16")
    a(f"s_lshr_b32 s36, s36, 1")
    a(f"s_lshl_b32 s29, s36, 7")
    a(f"s_lshr_b32 s36, s{sC4}, 1")
    a(f"s_lshl_b32 s{sOoff}, s36, 13")
    a(f"s_lshl_b32 s{sWooff}, s36, 18")
    a(f"v_and_b32 v16, 31, v{vLANE}")
    a("v_lshlrev_b32 v16, 2, v16")
    a(f"v_and_b32 v17, 15, v{vLANE}")
    a(f"v_cmp_le_u32 vcc, s{sKVt}, v17")
    a(f"v_add_u32 v17, s{sKVb}, v17")
    a("s_nop 0")
    a("v_addc_co_u32 v17, vcc, 0, v17, vcc")
    a("v_and_b32 v17, 15, v17")
    a("v_lshlrev_b32 v17, 2, v17")
    a("s_lshl_b32 s36, s2, 2")
    a(f"s_add_u32 s36, s36, s{sW}")
    a("s_lshl_b32 s36, s36, 11")
    a(f"v_and_b32 v25, 7, v{vLANE}")
    a("v_lshlrev_b32 v25, 7, v25")
    a("v_add_u32 v25, s36, v25")
    a("s_lshr_b32 s36, s2, 3")
    a("s_lshl_b32 s36, s36, 2")
    a(f"s_add_u32 s36, s36, s{sW}")
    a("s_lshl_b32 s36, s36, 12")
    a(f"s_add_u32 s36, s36, {24*65536}")
    a(f"v_and_b32 v15, 15, v{vLANE}")
    a("v_lshlrev_b32 v15, 7, v15")
    a("v_add_u32 v15, s36, v15")
    a(f"s_add_u32 s36, s{sOrow}, {OB_OFF}")
    a(f"s_add_u32 s{sOg}, s54, s36")
    a(f"s_addc_u32 s{sOg+1}, s55, 0")

def wob_dma(i, tag):
    return [[f"s_mov_b32 s39, {i*65536}"], [f"s_add_u32 m0, s{sWv}, {i*4096}"],
            [(f"buffer_load_dwordx4 v{vWo_g}, s[{sWoB}:{sWoB+3}], s39 offen lds", tag)]]

def attention(a):
    o = a.opts
    a("L_ATT0:")
    for s in rdK(0, 0) + rdV(0, 0, 0): a(s)
    for s in kv_advance(1): a(s)
    for q in range(2):
        for i in range(4): a(f"v_accvgpr_write_b32 a{aL[q]+i}, 0")
    a(f"s_cmp_lg_u32 s{sPASS}, 0")
    a("s_cbranch_scc1 L_ATT1")
    ps = L(); p4_setup(ps)
    ps_s = [x for x in ps if x.startswith("s_") and "s4," not in x.split()[1] and not any(x.split()[1].startswith(f"s{i},") for i in (4, 5, 6, 7))]
    ps_x = []
    rest = [x for x in ps if x not in ps_x]
    n1 = 22
    for s in rest[:n1]: a(s)
    a("s_waitcnt lgkmcnt(0)")
    for q in range(2): a(mf32(vr(S[q], 16), ar(aK, 4), vr(QA[q], 4), 0))
    for q in range(2): a(mf32(vr(S[q], 16), ar(aK+4, 4), vr(QA[q]+4, 4), vr(S[q], 16)))
    padfill(a, rest[n1:n1+26], 11)
    for q in range(2):
        s, m = S[q], 19 + q
        a(f"v_max3_f32 v{m}, v{s}, v{s+1}, v{s+2}")
        for i in range(3, 15, 2): a(f"v_max3_f32 v{m}, v{m}, v{s+i}, v{s+i+1}")
        a(f"v_max_f32 v{m}, v{m}, v{s+15}")
    for q in range(2): a(f"v_mov_b32 v{21+q}, v{19+q}")
    a("s_nop 0")
    for q in range(2): a(f"v_permlane32_swap_b32 v{19+q}, v{21+q}")
    for q in range(2): a(f"v_max_f32 v{19+q}, v{19+q}, v{21+q}")
    for i in range(16): a(f"v_sub_f32 v{NM[0]+i}, 0, v19")
    for s in rest[n1+26:n1+28]: a(s)
    a(mf32(vr(S[0], 16), ar(aK, 4), vr(QA[0], 4), vr(NM[0], 16)))
    a(mf32(vr(S[0], 16), ar(aK+4, 4), vr(QA[0]+4, 4), vr(S[0], 16)))
    for i in range(16): a(f"v_sub_f32 v{NM[1]+i}, 0, v20")
    for s in rest[n1+28:]: a(s)
    a("v_mov_b32 v18, 0")
    a(f"s_add_u32 s30, s28, {F_H}")
    if o.get("fh_slot", 10) < 0:
        a.emit(a.wait(["halo"]))
        for s in flag_store(30, 20, "fH"): a.emit(s)
    a("s_branch L_ATT2")
    a("L_ATT1:")
    a("s_waitcnt lgkmcnt(0)")
    a(mf32(vr(S[0], 16), ar(aK, 4), vr(QA[0], 4), vr(NM[0], 16)))
    a(mf32(vr(S[0], 16), ar(aK+4, 4), vr(QA[0]+4, 4), vr(S[0], 16)))
    a("s_nop 11")
    a("L_ATT2:")
    a.stamp("att0")
    pk = [(f"buffer_load_dword v21, v17, {WS}, s31 offen sc1", "pKV")]
    ks = o.get("pk_slot", 0)
    sl = [[] for _ in range(14)]; sl[ks] = pk
    if o.get("fh_slot", 10) >= 0: sl[o.get("fh_slot", 10)] = [a.wait(["halo"])] + flag_store(30, 20, "fH")
    tile(a, 0, sl[0:7]); tile(a, 1, sl[7:14])
    a.stamp("t01")
    d0, d1, adv = kv_dma(1, 0, "c1a"), kv_dma(1, 1, "c1b"), kv_advance(2)
    a(d0[0])
    poll_check(a, "L_PKV", 21, 17, 31, "pKV", mask=1)
    a.stamp("pKV")
    a.emit(d0[1]); a.emit(d0[2])
    tile(a, 2, [[d0[3]], [d0[4]], [(f"buffer_load_dword v21, v17, {WS}, s31 offen sc1", "pKV2")], [d1[0]], [d1[1], d1[2]], [d1[3]], [d1[4]]])
    for s in adv: a(s)
    a.stamp("t2")
    a(f"s_cmp_lg_u32 s{sPASS}, 0")
    a("s_cbranch_scc1 L_A4")
    gate_compute(a)
    a("s_branch L_A5")
    a("L_A4:")
    a("s_waitcnt vmcnt(0)")
    a("L_A5:")
    a.emit(a.wait(["c1a"], lgkm=True))
    a("s_barrier")
    a.pkv2 = True
    a.stamp("c1")
    wob = [i for i in range(24)]
    obl = [i for i in range(64)]
    if o.get('noside'): wob = wob[:1]; obl = obl[:1]
    ob_start = o.get("ob_start", 6)
    obase = False
    for c in range(15):
        V = []; A = []
        side = []
        if c + 2 <= 15:
            d0, d1 = kv_dma(c % 2, 0, f"c{c+2}"), kv_dma(c % 2, 1, f"c{c+2}")
            kvs = [[x] for x in d0] + [[x] for x in d1] + ([[x] for x in kv_advance(c + 3)] if c + 3 <= 15 else [])
        else:
            kvs = []
        oth = []
        if c == 0:
            oth += [[(f"buffer_load_dword v21, v17, {WS}, s31 offen sc1", "pKV3")], [], [], [(f"buffer_load_dword v22, v18, {WS}, s33 offen sc1", "pH")]]
        if c == 3:
            oth += [[f"s_lshl_b32 s38, s{sSeq}, 7"], [f"s_lshl_b32 s39, s{sHead}, 2"], ["s_add_u32 s38, s38, s39"],
                    [f"s_add_u32 s35, s38, {F_OB}"], flag_store(35, 20, "fOB")]
        if c == ob_start - 2:
            oth += [[f"s_add_u32 s47, s29, {F_OB}"], [(f"buffer_load_dword v21, v16, {WS}, s47 offen sc1", "pOB")]]
        if c == o.get("cpf2", 11) or (o.get("cpfn") and c % o["cpfn"] == 2):
            oth += [[(f"buffer_load_dword v{vPFd}, v{vT[7]}, s[{sCode}:{sCode+3}], 0 offen", "cpf")]]
        nslots = 4*7 - 1 - (c == 0)
        if c >= ob_start:
            for _ in range(min(len(obl), o.get("ob_per", 8))):
                i = obl.pop(0)
                oth.append([(f"global_load_dwordx4 {oreg(i)}, v{vL16b if (i & 4) else vL16}, s[{sOg}:{sOg+1}] offset:{(i % 4)*1024} sc1", "obl")])
                if i % 8 == 7:
                    oth += [[f"s_add_u32 s{sOg}, s{sOg}, 8192"], [f"s_addc_u32 s{sOg+1}, s{sOg+1}, 0"]]
        wa0, wa1 = o.get("wam0", 1), o.get("wam1", 3)
        if c in (wa0, wa1):
            oth.insert(0, [(f"global_load_dword v{vPFd}, v25, s[{sPWoA}:{sPWoA+1}] offset:{1024*(c == wa1)}", "wopf")])
        wl = o.get("wol2", 6)
        if wl <= c < wl + 8:
            oth.append([(f"global_load_dword v{vPFd}, v0, s[{sPWoA}:{sPWoA+1}] offset:{((c - wl) & 1)*2048}", "wopf")] + (["v_add_u32 v0, 4096, v0"] if (c - wl) & 1 else []))
        wb0 = 11 if o.get("wbtail", 1) else 13
        if c in (wb0, wb0 + 1) and o.get("wbl2", 0):
            oth.append([(f"global_load_dword v{vPFd}, v15, s[{sPWoB}:{sPWoB+1}] offset:{(c - wb0)*2048}", "wopf")])
        if c == 14 and o.get("wbtail", 1): wob += list(range(24, 32))
        while wob and (len(kvs) + len(oth) + 3 <= nslots or c == 14):
            i_ = wob.pop(0)
            oth += wob_dma(i_, f"wo{i_//8}")
        side = kvs + oth
        while len(side) > nslots:
            for k in range(len(side) - 1):
                if all(isinstance(x, str) and x.startswith("s_") and "m0" not in x for x in side[k]):
                    side[k+1] = side[k] + side[k+1]; side.pop(k); break
            else:
                raise Exception("slots")
        n = len(side)
        nv = sum(isinstance(x, tuple) for g in side for x in g)
        if n < nslots and nv >= o.get("spread", 1):
            sp = [[] for _ in range(nslots)]
            for k, g in enumerate(side): sp[k*nslots//n] = g
            side = sp
        if c == 0:
            poll_check(a, "L_PKV2", 21, 17, 31, "pKV2", mask=2)
        if c == 1:
            poll_check(a, "L_PKV3", 21, 17, 31, "pKV3", mask=0xffff)
            poll_check(a, "L_PH", 22, 18, 33, "pH")
            a(f"s_sub_u32 s38, s{sHalo}, 4096")
            a(f"s_cmp_eq_u32 s{sSeq}, 0")
            a(f"s_cselect_b32 s38, {OOB}, s38")
            a.emit((f"buffer_load_dwordx4 {vr(HK, 4)}, v{vL16}, {WS}, s38 offen sc1", "hl"))
            a.emit((f"buffer_load_dwordx4 {vr(HK+4, 4)}, v{vL16}, {WS}, s38 offen offset:1024 sc1", "hl"))
            a.emit((f"buffer_load_dwordx4 {vr(HV, 4)}, v{vL16}, {WS}, s38 offen offset:2048 sc1", "hl"))
        if c == 2:
            a(f"s_cmp_lg_u32 s{sPASS}, 0")
            a("s_cbranch_scc1 L_LOC0X")
            a(f"s_cmp_eq_u32 s{sSeq}, 0")
            a("s_cbranch_scc0 L_MASKOK")
            for i in range(8): a(f"v_mov_b32 v{vMc+16+i}, {NEGBIG}")
            a("L_MASKOK:")
            for s in a.ob1: a.emit(s)
            st = local_tile(a, pQB[0], pKB[0], pVB[0], HK, HV, 96, 112, 208, 168, 236, 23, 0, "ob0")
            for x in pko(208): a(x)
            a.emit((st[0][0].format("v[208:211]"), "ob0")); a.emit((st[1][0].format("v[212:215]"), "ob0"))
            a("L_LOC0X:")
            a.stamp("loc0")
        if c == ob_start - 1:
            poll_check(a, "L_POB", 21, 16, 47, "pOB")
        tile(a, 4*c + 3, side)
        tile(a, 4*c + 4, side, end_b=[a.wait(["c1b"]), "s_barrier"] if c == 0 else None)
        tile(a, 4*c + 5, side)
        tile(a, 4*c + 6, side, end_b=[a.wait([f"c{c+2}"], lgkm=True) if c + 2 <= 15 else a.wait(["wo0", "obl"], lgkm=True), "s_barrier"])
        assert not side
        if c in (4, 9): a.stamp(f"c{c}")
        if c == 7:
            for _ in range(o.get("idle_att", 0)): a("s_nop 15")
    assert not wob and not obl, (wob, obl)
    r0 = p4_reads(0) + p4_reads(1)
    tile(a, 63, [r0[0:2], r0[2:4], r0[4:6], r0[6:8], r0[8:10], r0[10:13], r0[13:16]])
    a(f"s_add_u32 s36, s{sOst}, {OA_OFF}")
    a(f"s_add_u32 s37, s{sOst}, {OA_OFF + 65536}")
    a(mf32(ar(aO[1], 16), ar(aV[1], 4), vr(P[1], 4), ar(aO[1], 16)))
    a(smf(1))
    a(mf32(ar(aO[1], 16), ar(aV[1]+4, 4), vr(P[1]+4, 4), ar(aO[1], 16)))
    a.stamp("attend")
    F = L()
    F(f"v_accvgpr_read_b32 v19, a{aL[0]}")
    F(f"v_accvgpr_read_b32 v21, a{aL[0]+1}")
    for i in range(16): F(f"v_accvgpr_read_b32 v{S[0]+i}, a{aO[0]+i}")
    F("v_add_f32 v19, v19, v21")
    F(f"v_accvgpr_read_b32 v20, a{aL[1]}")
    F("v_rcp_f32 v23, v19")
    F(f"v_accvgpr_read_b32 v21, a{aL[1]+1}")
    F("v_add_f32 v20, v20, v21")
    for i in range(16): F(f"v_mul_f32 v{S[0]+i}, v{S[0]+i}, v23")
    F += pko(S[0])
    F("v_rcp_f32 v24, v20")
    F((f"buffer_store_dwordx4 {vr(S[0], 4)}, v{vL16}, {WS}, s36 offen sc1", "oa"))
    F((f"buffer_store_dwordx4 {vr(S[0]+4, 4)}, v{vL16}, {WS}, s36 offen offset:1024 sc1", "oa"))
    for i in range(16): F(f"v_accvgpr_read_b32 v{S[1]+i}, a{aO[1]+i}")
    for i in range(16): F(f"v_mul_f32 v{S[1]+i}, v{S[1]+i}, v24")
    F += pko(S[1])
    F(f"s_mov_b32 s36, {f2u(2.0**64)}")
    F((f"buffer_store_dwordx4 {vr(S[1], 4)}, v{vL16}, {WS}, s37 offen sc1", "oa"))
    F((f"buffer_store_dwordx4 {vr(S[1]+4, 4)}, v{vL16}, {WS}, s37 offen offset:1024 sc1", "oa"))
    F("v_mov_b32 v21, 0")
    for q in range(2):
        for j in range(8): F(f"v_dot2_f32_bf16 v{19+q}, v{S[q]+j}, v21, v{19+q}")
    F("s_nop 2")
    F("v_cmp_nge_f32 s[64:65], s36, v19" if not o.get("stamp") else "v_cmp_nge_f32 s[56:57], s36, v19")
    F("v_cmp_nge_f32 vcc, s36, v20")
    F(f"s_lshl_b32 s37, s{sW}, 2")
    F(f"s_add_u32 s37, s37, {XCH}")
    F("v_mov_b32 v22, s37")
    F("s_nop 1")
    F("s_or_b64 vcc, vcc, s[64:65]" if not o.get("stamp") else "s_or_b64 vcc, vcc, s[56:57]")
    if o.get("force_fallback"): F("s_mov_b64 vcc, -1")
    F(f"s_cmp_lg_u64 vcc, 0\ns_cselect_b32 s36, 1, 0\ns_andn2_b32 s36, s36, s{sPASS}")
    F("v_mov_b32 v21, s36")
    F("ds_write_b32 v22, v21")
    F(f"v_mov_b32 v22, {XCH}")
    a.fin = F
    b = Asm()
    b("L_FALLBACK:")
    b(f"s_mov_b32 s{sPASS}, 1")
    b(f"s_mov_b32 s25, {OOB}")
    b(f"s_mov_b32 s26, {OOB}")
    b(f"v_mov_b32 v19, {NEGBIG}")
    b(f"v_mov_b32 v20, {NEGBIG}")
    b(f"s_lshl_b32 s38, s{sHP}, 19")
    b(f"s_lshl_b32 s39, s{sHH}, 14")
    b("s_add_u32 s38, s38, s39")
    b("s_mov_b32 s39, 0")
    b("L_FB:")
    b("s_and_b32 s36, s39, 3")
    b("s_lshl_b32 s36, s36, 12")
    b("s_lshr_b32 s37, s39, 2")
    b("s_lshl_b32 s37, s37, 15")
    b("s_add_u32 s36, s36, s37")
    b("s_add_u32 s36, s36, s38")
    b(f"buffer_load_dwordx4 {ar(aK, 4)}, v{vL16}, {WS}, s36 offen sc1")
    b(f"buffer_load_dwordx4 {ar(aK+4, 4)}, v{vL16}, {WS}, s36 offen offset:1024 sc1")
    b("s_waitcnt vmcnt(0)")
    for q in range(2): b(mf32(vr(S[q], 16), ar(aK, 4), vr(QA[q], 4), 0))
    for q in range(2): b(mf32(vr(S[q], 16), ar(aK+4, 4), vr(QA[q]+4, 4), vr(S[q], 16)))
    b("s_nop 11")
    for q in range(2):
        for i in range(0, 16, 2): b(f"v_max3_f32 v{19+q}, v{19+q}, v{S[q]+i}, v{S[q]+i+1}")
    b("s_add_u32 s39, s39, 1")
    b("s_cmp_lt_u32 s39, 64")
    b("s_cbranch_scc1 L_FB")
    neg_max(b)
    for s in sel_init(23, 24): b(s)
    b(f"s_lshl_b32 s36, s{sT}, 15")
    b(f"s_add_u32 s{sKVg}, s{sKVp}, s36")
    b(f"s_addc_u32 s{sKVg+1}, s{sKVp+1}, 0")
    b(f"s_add_u32 s36, s{sOrow}, {OB_OFF}")
    b(f"s_add_u32 s{sOg}, s54, s36")
    b(f"s_addc_u32 s{sOg+1}, s55, 0")
    b("v_add_u32 v0, -16384, v0")
    b("s_barrier")
    for g in range(2):
        for k_, s in enumerate(kv_dma(0, g, "")):
            b(s[0] if isinstance(s, tuple) else s)
            if k_ == 0: b("s_nop 0")
    b("s_waitcnt vmcnt(0)")
    b("s_barrier")
    b("s_branch L_ATT0")
    a.tail.append(b.text())

def fW4(G, nt, n=4, d=0):
    fs = G % 3
    return vr(32 + fs*16 + nt*4 + d, n) if fs < 2 else ar(nt*4 + d, n)
def p4_lds(g):
    return g*32768 if g < 4 else [131072, 0, 32768, 65536][g - 4]
def p4_reads(G):
    out = []
    base = p4_lds(G // 8)
    for nt in range(4):
        off = base % 65536 + (G % 8)*4096
        out.append(f"ds_read_b64_tr_b16 {fW4(G, nt, 2)}, v{vWo_r[nt]} offset:{off}")
        out.append(f"ds_read_b64_tr_b16 {fW4(G, nt, 2, 2)}, v{vWo_r[nt]} offset:{off+1024}")
    return out
def woa_dma(g, i):
    pos = (g - 4)*8 + i
    return [[f"s_add_u32 s39, s{sWooff}, {pos*65536}", "s_and_b32 s39, s39, 0x1fffff", f"s_add_u32 m0, s{sWv}, {p4_lds(g) + i*4096}"],
            [(f"buffer_load_dwordx4 v{vWo_g}, s[{sWoA}:{sWoA+3}], s39 offen lds", f"wo{g}")]]
def oa_load(i):
    out = [(f"global_load_dwordx4 {oreg(i)}, v{vL16b if (i & 4) else vL16}, s[{sOg}:{sOg+1}] offset:{(i % 4)*1024} sc1", f"oa{i}")]
    return out
def oa_next():
    return [f"s_add_u32 s{sOoff}, s{sOoff}, 8192", f"s_and_b32 s{sOoff}, s{sOoff}, 0xffff",
            f"s_add_u32 s{sOg}, s{sKVg}, s{sOoff}\ns_addc_u32 s{sOg+1}, s{sKVg+1}, 0"]

def phase4(a):
    o = a.opts
    flag_at = o.get("oaflag_gap", 40)
    poll_at = o.get("oapoll_gap", 84)
    chk_at = o.get("oachk_gap", 96)
    side = {}
    def put(k, l): side.setdefault(k, []).extend(l)
    F = list(a.fin)
    if o.get("finfirst", 0):
        n_ = max(i for i, x in enumerate(F) if isinstance(x, tuple)) + 1
        for x in F[:n_]: a.emit(x)
        F = F[n_:]
    k = 0
    while F:
        n_ = 2 if o.get("finfirst", 0) else (6 if len(F) > 5*(23 - k) - 5 else 5)
        put(k, F[:n_]); F = F[n_:]; k += 1
    assert k <= 23, k
    put(37, [f"s_add_u32 s38, s{sOrow}, {OA_OFF}", f"s_add_u32 s{sKVg}, s54, s38\ns_addc_u32 s{sKVg+1}, s55, 0"])
    put(38, [f"s_add_u32 s{sOg}, s{sKVg}, s{sOoff}\ns_addc_u32 s{sOg+1}, s{sKVg+1}, 0"])
    pre = [f"s_lshl_b32 s38, s{sSeq}, 7",
           f"s_lshl_b32 s47, s{sHead}, 2", "s_add_u32 s38, s38, s47", f"s_add_u32 s35, s38, {F_OA}", f"s_add_u32 s47, s29, {F_OA}",
           f"s_lshl_b32 s36, s{sT4}, 9", f"s_lshl_b32 s37, s{sW}, 7", "s_add_u32 s36, s36, s37", f"s_add_u32 s36, s36, {G_OFF}",
           f"v_and_b32 v24, 60, v16",
           (f"buffer_load_dword v{vG2[0]}, v24, {WS}, s36 offen sc1", "gl"), (f"buffer_load_dword v{vG2[1]}, v24, {WS}, s36 offen offset:64 sc1", "gl")]
    put(24, ["ds_read_b128 v[20:23], v22"])
    for i, x in enumerate(pre): put(25 + i//2, [x])
    put(32, ["v_or_b32 v20, v20, v21", "v_or3_b32 v20, v20, v22, v23"])
    put(33, ["v_readfirstlane_b32 s38, v20"])
    put(35, ["s_cmp_lg_u32 s38, 0\ns_cbranch_scc1 L_FALLBACK"])
    assert flag_at > 35
    put(flag_at, [a.wait(["oa"])]); put(flag_at + 1, flag_store(35, 20, "fOA"))
    put(poll_at, [(f"buffer_load_dword v21, v16, {WS}, s47 offen sc1", "pOA")])
    put(130, [f"v_sub_f32 v{vOM[0]}, 1.0, v{vG2[0]}", f"v_sub_f32 v{vOM[1]}, 1.0, v{vG2[1]}"])
    put(131, [f"v_and_b32 v19, 15, v{vLANE}", f"v_lshrrev_b32 v20, 4, v{vLANE}"])
    put(132, ["v_lshlrev_b32 v20, 4, v20", "v_lshl_add_u32 v19, v19, 11, v20"])
    if o.get("ldsout", 1):
        side[131] = []; side[132] = []
        put(200, [f"s_mul_i32 s38, s{sW}, 4608", f"v_and_b32 v20, 15, v{vLANE}"]); put(201, ["s_add_u32 s38, s38, 131072", "v_mul_u32_u24 v20, 144, v20"])
        put(202, [f"v_lshrrev_b32 v21, 4, v{vLANE}", "v_lshl_add_u32 v20, v21, 3, v20"]); put(203, ["v_add_u32 v20, s38, v20", f"v_lshrrev_b32 v22, 3, v{vLANE}"])
        put(204, [f"v_and_b32 v19, 7, v{vLANE}", "v_lshlrev_b32 v19, 4, v19"]); put(205, ["v_mul_u32_u24 v21, 144, v22", "v_add3_u32 v21, v21, v19, s38"])
        put(206, ["v_lshl_add_u32 v19, v22, 11, v19", "v_add_u32 v22, 16384, v19"])
    elif o.get("r128", 0):
        put(133, [f"v_and_b32 v20, 8, v{vLANE}", f"v_mul_u32_u24 v20, {2048 - 8}, v20"])
        put(152, ["v_sub_u32 v19, v19, v20", "v_add_u32 v20, 16384, v19"])
    for i in range(32): put(134 + i//2, [f"v_mul_f32 v{ACC4[0][i//16] + i%16}, v{ACC4[0][i//16] + i%16}, v{vOM[i//16]}"])
    put(248, [f"s_lshl_b32 s36, s{sT4}, 18", f"s_lshl_b32 s37, s{sW}, 16"]); put(249, ["s_add_u32 s36, s36, s37", f"s_lshl_b32 s37, s{sC4}, 7"])
    put(250, ["s_add_u32 s36, s36, s37"]); put(251, ["s_add_u32 s37, s36, 32768"])
    a("s_waitcnt lgkmcnt(0)")
    lat = o.get("p4lat", 20)
    jobs = [] if o.get("wbtail", 1) else [[26, 32*2 + 23 - lat, "wb", i] for i in range(24, 32)]
    for g in range(4, 8):
        e = {4: 0, 5: 26, 6: 57, 7: 89}[g]
        jobs += [[{4: 57, 5: 57, 6: 89, 7: 121}[g] if i == 7 else e, 32*(g - 1) + 23 - lat, "wa", (g, i)] for i in range(8)]
    jobs += [[max(chk_at + 1, 2*i + 2), 128 + 4*(i//2) - lat, "oa", i] for i in range(64)]
    gap = o.get("p4gap", 2.0)
    t = float(o.get('wb_at', 19))
    quiet = range(poll_at - o.get("p4quiet", 4), poll_at + 1)
    while jobs:
        k = int(t)
        av = [j for j in jobs if j[0] <= k]
        if not av or k in quiet:
            t = k + 1; continue
        j = min(av, key=lambda j: j[1])
        jobs.remove(j)
        if j[2] == "wb":
            d = wob_dma(j[3], "wo3"); put(k - 1, d[0] + d[1]); put(k, d[2])
        elif j[2] == "wa":
            d = woa_dma(*j[3]); put(k - 1, d[0]); put(k, d[1])
        else:
            put(k, oa_load(j[3]))
            if j[3] % 8 == 7 and j[3] < 63: put(k + 1, oa_next())
        if k > j[1] + 8: print("p4 late", j, k)
        t += gap
    ds = []
    def lg(tags):
        k_ = max([i for i, t_ in enumerate(ds) if t_ in tags], default=-1)
        return min(len(ds) - 1 - k_, 15)
    for G in range(64):
        br = G // 32
        rd = p4_reads(G + 2) if G + 2 < 64 else []
        mv = []
        if G + 3 < 64:
            dlt = (p4_lds((G + 3)//8)//65536 - p4_lds((G + 2)//8)//65536)*65536
            if dlt: mv = [f"v_add_u32 v{vWo_r[nt]}, {dlt}, v{vWo_r[nt]}" for nt in range(4)]
        order = [(nt, mt) for nt in range(4) for mt in range(2)]
        if G == 62: break
        for j in range(8):
            idx = 4*G + j//2
            nt, mt = order[j]
            d = vr(ACC4[br][mt] + nt*4, 4)
            a(mf16(d, fW4(G, nt), oreg((G % 32)*2 + mt), 0 if G % 32 == 0 else d))
            sd = side.get(idx, [])
            if j % 2 == 0:
                for s in [x for x in sd if isinstance(x, str) and x.startswith("ds_read")]:
                    a(s); ds.append("xr")
                sd = [x for x in sd if not (isinstance(x, str) and x.startswith("ds_read"))]
                now, side[idx] = sd[:len(sd)//2], sd[len(sd)//2:]
            else:
                now = side.pop(idx, [])
            if rd:
                a(rd[j]); ds.append(G + 2)
                if mv and j % 2 == 1: a(mv[j//2])
            for s in now:
                a.emit(s)
                if isinstance(s, str) and s.startswith("ds_write"): ds.append("xw")
            if j % 2 == 1:
                if idx == flag_at + 1: a.stamp("fOA")
                if idx == chk_at:
                    poll_check(a, "L_POA", 21, 16, 47, "pOA")
                    a.stamp("pOA")
        if G == 63: break
        w = ""
        need = []
        if G == 61: continue
        if G + 1 >= 32: need.append(f"oa{((G + 1) % 32)*2 + 1}")
        bar = G % 8 == 5 and G // 8 < 7
        if bar and f"wo{G//8 + 1}" in a.vm: need.append(f"wo{G//8 + 1}")
        if need: w += f" vmcnt({a.vmn(need)})"
        if G + 1 >= 2: w += f" lgkmcnt({lg([G + 1, 'xw'])})"
        if w: a("s_waitcnt" + w)
        if bar: a("s_barrier")
        if G == 31: a.stamp("p4B")
    def epi(mt):
        B_, A_ = ACC4[0][mt], ACC4[1][mt]
        fl = ['', 'sc1', 'nt', 'sc0 sc1', 'sc1 nt'][o.get('outflag', 1)]
        l = [f"v_fma_f32 v{B_+i}, v{A_+i}, v{vG2[mt]}, v{B_+i}" for i in range(16)] + packl(B_)
        if o.get("ldsout", 1):
            return l + [f"ds_write_b64 v20, {vr(B_+2*nt, 2)} offset:{mt*16*144 + 32*nt}" for nt in range(4)]
        l += ["s_nop 0"]
        l += [f"v_permlane32_swap_b32 v{B_+x}, v{B_+y}" for x, y in ((0, 2), (1, 3), (4, 6), (5, 7))]
        l += [f"v_permlane16_swap_b32 v{B_+x}, v{B_+y}" for x, y in ((0, 2), (1, 3), (4, 6), (5, 7))]
        if o.get("r128", 0):
            l += [f"v_mov_b32 v{B_+8+i}, v{B_+i}" for i in range(4)]
            l += [f"v_mov_b32_dpp v{B_+i}, v{B_+4+i} row_ror:8 row_mask:0xf bank_mask:0xc" for i in range(4)]
            l += [f"v_mov_b32_dpp v{B_+4+i}, v{B_+8+i} row_ror:8 row_mask:0xf bank_mask:0x3" for i in range(4)]
            l += [(f"buffer_store_dwordx4 {vr(B_+4*k, 4)}, v{19+k}, s[{sOutD}:{sOutD+3}], s{36+mt} offen {fl}", "out") for k in range(2)]
            return l
        l += [(f"buffer_store_dwordx4 {vr(B_+4*k, 4)}, v19, s[{sOutD}:{sOutD+3}], s{36+mt} offen offset:{64*k} {fl}", "out") for k in range(2)]
        return l
    rest = [x for k_ in sorted(side) for x in side[k_]]
    a(f"s_waitcnt vmcnt({a.vmn(['oa63'])}) lgkmcnt(0)")
    for G in (62, 63):
        for nt in range(4):
            d = vr(ACC4[1][0] + nt*4, 4)
            a(mf16(d, fW4(G, nt), oreg((G % 32)*2), d))
            if rest: a.emit(rest.pop(0))
    assert not rest
    e0 = epi(0)
    for k_, (G, nt) in enumerate([(G, nt) for G in (62, 63) for nt in range(4)]):
        d = vr(ACC4[1][1] + nt*4, 4)
        a(mf16(d, fW4(G, nt), oreg((G % 32)*2 + 1), d))
        if k_ >= 2:
            a(e0.pop(0)); a(e0.pop(0))
        else:
            a("s_nop 1")
    a.stamp("p4A")
    if not o.get("ldsout", 1):
        for x in e0 + epi(1): a.emit(x)
        return
    for x in e0: a.emit(x)
    e1_ = epi(1)
    fl = ['', 'sc1', 'nt', 'sc0 sc1', 'sc1 nt'][o.get('outflag', 1)]
    T = ACC4[1][0]
    def rds(mt): return [f"ds_read_b128 {vr(T + 8*mt + 4*k, 4)}, v21 offset:{(16*mt + 8*k)*144}" for k in range(2)]
    def sts(mt): return [(f"buffer_store_dwordx4 {vr(T + 8*mt + 4*k, 4)}, v{19 if k == 0 else 22}, s[{sOutD}:{sOutD+3}], s{36+mt} offen {fl}", "out") for k in range(2)]
    for x in rds(0): a(x)
    for x in e1_[:24]: a(x)
    a("s_waitcnt lgkmcnt(0)")
    for x in e1_[24:] + rds(1): a(x)
    for x in sts(0): a.emit(x)
    a("s_waitcnt lgkmcnt(0)")
    for x in sts(1): a.emit(x)

def gen(opts):
    a = G(opts); a.tail = []
    setup(a); gemm1(a); e1(a); attention(a); phase4(a)
    if opts.get("diag") is not None:
        a.stamp("end")
        a("s_nop 1")
        a(f"v_readlane_b32 s36, v{vSTAMP}, {32 + opts['diag']}")
        a("s_nop 3")
        a("s_add_u32 s36, s36, 10000")
        if opts.get("diagwg") is not None:
            a(f"s_cmp_lg_u32 s2, {opts['diagwg']}")
            a("s_cbranch_scc1 L_END")
        a("L_DIAG:")
        a("s_memrealtime s[38:39]")
        a("s_waitcnt lgkmcnt(0)")
        a("s_sub_u32 s38, s38, s36")
        a("s_cmp_lt_i32 s38, 0")
        a("s_cbranch_scc1 L_DIAG")
    elif opts.get("dbgstamp"):
        a.stamp("end")
        sel = ["karg", "first", "g7", "g15", "g23", "g31", "loc1", "pKV", "c1", "c9", "attend", "pOA", "p4B", "p4A", "end"]
        a(f"s_cmp_lg_u32 s2, {opts['dbgstamp']-1}")
        a("s_cbranch_scc1 L_DBGX")
        a(f"s_cmp_lg_u32 s{sW}, 0")
        a("s_cbranch_scc1 L_DBGX")
        a(f"v_readlane_b32 s36, v{vSTAMP}, 32")
        for i, nm in enumerate(sel):
            a(f"v_readlane_b32 s37, v{vSTAMP}, {32 + a.names.index(nm)}")
            a("s_nop 3")
            a("s_sub_u32 s37, s37, s36")
            a("v_mov_b32 v2, s37")
            a("v_mov_b32 v3, 0")
            a(f"global_store_dword v3, v2, s[{sPDbg}:{sPDbg+1}] offset:{4*(i+1)}")
        a("L_DBGX:")
    elif opts.get("stamp"):
        a.stamp("end")
        a("s_lshl_b32 s36, s2, 2")
        a(f"s_add_u32 s36, s36, s{sW}")
        a("s_lshl_b32 s36, s36, 8")
        a(f"s_add_u32 s36, s36, {STAMP_OFF}")
        a(f"v_lshlrev_b32 v2, 2, v{vLANE}")
        a(f"buffer_store_dword v{vSTAMP}, v2, {WS}, s36 offen")
    a("s_endpgm")
    for t in a.tail: a(t)
    head = f"""; gated mix of full MHA and dilated sliding-window attention: one fused kernel, 256 co-resident workgroups
; @launch grid=(256,1,1) block=(256,1,1) lds=163840
.amdgcn_target "amdgcn-amd-amdhsa--gfx950"
.text
.globl {KNAME}
.p2align 8
.type {KNAME},@function
{KNAME}:
"""
    tail = f"""L_END:
    s_endpgm
.section .rodata,"a"
.p2align 6
.amdhsa_kernel {KNAME}
  .amdhsa_next_free_vgpr 512
  .amdhsa_next_free_sgpr 102
  .amdhsa_accum_offset 256
  .amdhsa_group_segment_fixed_size 0
  .amdhsa_kernarg_size 80
  .amdhsa_user_sgpr_count 2
  .amdhsa_user_sgpr_kernarg_segment_ptr 1
  .amdhsa_system_sgpr_workgroup_id_x 1
.end_amdhsa_kernel
"""
    gen.names = a.names
    return head + a.text() + tail

if __name__ == "__main__":
    import hazard
    opts = {}
    for kv in sys.argv[2:]:
        k, v = kv.split("="); opts[k] = int(v)
    t = gen(opts)
    open(sys.argv[1], "w").write(t)
    print(len(hazard.check(t)), "hazards", gen.names)
```

```python
import sys, struct, math
from asmlib import *

KNAME = "gated_mix__softmax_full_mha__sliding_local_dilated__prompt_kernel"
def f2u(x): return struct.unpack("<I", struct.pack("<f", x))[0]
KV_OFF   = 0
OA_OFF   = 8 << 20
OB_OFF   = 12 << 20
HALO_OFF = 16 << 20
G_OFF    = 20 << 20
FLAG_OFF = 21 << 20
F_KV, F_H, F_OB, F_OA = FLAG_OFF, FLAG_OFF + 4096, FLAG_OFF + 8192, FLAG_OFF + 12288
STAMP_OFF = 0x8000000
OOB = 0x80000000
CSCALE = f2u(math.log2(math.e) / math.sqrt(32.0))
NEGBIG = f2u(-1e30)
X_SLOT = 16384; W_BASE = 49152; W_SLOT = 24576
KV_LDS = [98304, 131072]
XCH = 163840 - 16
sX, sWA, sWB, sWS = 4, 8, 12, 16
sW, sHP, sT, sRH, sHH = 20, 21, 22, 23, 24
sWoff, sXoff = 25, 26
sXw, sWv = 30, 34
sPF, sPFstr = 44, 46
sNONCE, sCS = 60, 61
sSTAMPI = 68
sPWoA, sPWoB, sPG, sPOut, sPDbg = 70, 72, 74, 76, 78
sKVsrc, sKVbase, sKVt, sKVdst = 80, 81, 82, 27
sPASS, sOst, sSpin = 83, 86, 87
sT4, sC4, sOoff, sWooff, sObase = 88, 89, 90, 91, 92
sHalo, sSeq, sO, sOrow, sHead = 93, 94, 95, 96, 97
sWoA, sWoB, sOutD = 4, 8, 12
sCode = 40
pX, pWA, pWB = 48, 50, 52
vLANE = 1
vXr = [2, 3]; vWr = [[4, 5], [10, 11]]; vWg = [12, 13, 14]; vXg = [15, 16, 17, 18]
vT = [19, 20, 21, 22, 23, 24, 25, 26]
vPF, vPFd, vL16, vSTAMP, vF0 = 27, 28, 29, 30, 31
vMc = 32
ACC0 = 64
def acc(blk, rt): return ACC0 + (blk*2 + rt)*16
QA = [64, 80]; KA = [96, 112]; VA = [128, 144]; QB = [160, 176]; KB = [192, 208]; VB = [224, 240]
NM = [128, 144]; S = [176, 240]; P = [72, 88]
vKV = [6, 7]
vWo_g = 2; vWo_r = [3, 4, 10, 11]; vG2 = [12, 13]; vOM = [14, 8]
vGate, vGrow = 14, 8
HK = 200; HV = 232
def fX(s, rt): return s*32 + rt*4
def fW(s, blk): return s*32 + 8 + blk*4
aK, aV = 0, [8, 16]
aO = [32, 48]; aL = [64, 68]; aONE = 112
aGATE = 80
aX = [0, 16]; aW = [32, 56]; vKS, vKL = 56, 57
aSEL = 72; vIDX = 9
OV = list(range(96, 128, 4)) + list(range(160, 176, 4)) + list(range(192, 240, 4))
def oreg(i): return ar(76 + 4*i, 4) if i < 45 else vr(OV[i - 45], 4)
ACC4 = [[128, 144], [64, 80]]
pKA = [96, 112]; pVA = [104, 120]; pQB = [160, 168]; pKB = [192, 208]; pVB = [224, 216]

def mf32(d, A, B, C): return f"v_mfma_f32_32x32x16_bf16 {d}, {A}, {B}, {C}"
def mf16(d, A, B, C): return f"v_mfma_f32_16x16x32_bf16 {d}, {A}, {B}, {C}"
WS = f"s[{sWS}:{sWS+3}]"

class G(Asm):
    def __init__(self, opts):
        super().__init__()
        self.opts = opts
        self.vm = []
        self.nstamp = 0
        self.names = []
    def emit(self, x):
        if callable(x): x = x()
        if x is None: return
        if isinstance(x, tuple):
            self(x[0]); self.vm.append(x[1])
        else:
            assert not (x.lstrip().startswith(("buffer_", "global_"))), x
            self(x)
    def vmn(self, tags):
        idx = [i for i, t in enumerate(self.vm) if t in tags]
        assert idx, tags
        n = len(self.vm) - 1 - max(idx)
        return min(n, 63)
    def wait(self, tags, lgkm=False):
        return lambda: f"s_waitcnt vmcnt({self.vmn(tags)})" + (" lgkmcnt(0)" if lgkm else "")
    def stamp(self, name):
        if not self.opts.get("stamp"): return
        if self.opts["stamp"] == 2 and name not in ("start", "g31", "c1", "attend", "end", "gP", "c4"): return
        self.names.append(name)
        a = self
        a("s_memtime s[66:67]")
        a("s_memrealtime s[64:65]")
        a("s_waitcnt lgkmcnt(0)")
        a(f"v_writelane_b32 v{vSTAMP}, s66, {self.nstamp}")
        a(f"v_writelane_b32 v{vSTAMP}, s64, {self.nstamp + 32}")
        self.nstamp += 1
        assert self.nstamp <= 32
    def inter(self, mains, sides):
        for i, m in enumerate(mains):
            if m is not None: self.emit(m)
            for s in sides.get(i, []): self.emit(s)

def srd(a, s, lo, hi, nbytes):
    a(f"s_mov_b32 s{s}, s{lo}")
    a(f"s_and_b32 s{s+1}, s{hi}, 0xffff")
    a(f"s_mov_b32 s{s+2}, {nbytes}")
    a(f"s_mov_b32 s{s+3}, 0x20000")

def pf_round(a):
    return [(f"global_load_dword v{vPFd}, v{vPF}, s[{sPF}:{sPF+1}]", "pf"),
            f"v_add_u32 v{vPF}, s{sPFstr}, v{vPF}"]

class P1:
    def __init__(self, a):
        self.a = a; self.wnext = [0]*6; self.xnext = [0]*4
    def dma(self, piece):
        kind, j, p = piece
        if kind == "W":
            assert self.wnext[p] == j and (p < 3 or self.wnext[p - 3] == j + 1) and (p >= 3 or self.wnext[p + 3] == j)
            self.wnext[p] += 1
            s = pWA if p < 3 else pWB
            return ([f"s_add_u32 m0, s{sWv}, {W_BASE + (j % 4)*W_SLOT + p*4096}"],
                    (f"global_load_lds_dwordx4 v{vWg[p % 3]}, s[{s}:{s+1}] {['', 'sc1', 'sc0', 'sc0 sc1'][self.a.opts.get('dmafl', 0)]}", f"W{j}"),
                    [f"v_add_u32 v{vWg[p % 3]}, 196608, v{vWg[p % 3]}"] if p >= 3 else [])
        assert self.xnext[p] == j
        self.xnext[p] += 1
        return ([f"s_add_u32 m0, s{sXw}, {(j % 3)*X_SLOT + p*1024}"],
                (f"global_load_lds_dwordx4 v{vXg[p]}, s[{pX}:{pX+1}] {['', 'sc1', 'sc0', 'sc0 sc1'][self.a.opts.get('dmafl', 0)]}", f"X{j}"),
                [f"v_add_u32 v{vXg[p]}, 128, v{vXg[p]}"])

def x_reads(xs, u):
    return [f"ds_read_b128 {ar(aX[xs] + mt*4, 4)}, v{vXr[u & 1]} offset:{((u >> 1) % 3)*X_SLOT + mt*2048}" for mt in range(4)]
def w_reads(ws_, u, blks):
    out = []
    sl = u % 4
    for i, blk in enumerate(blks):
        for nt in range(2):
            off = (sl % 2)*W_SLOT + blk*4096
            r = aW[ws_] + (i*2 + nt)*4
            out.append(f"ds_read_b64_tr_b16 {ar(r, 2)}, v{vWr[sl//2][nt]} offset:{off}")
            out.append(f"ds_read_b64_tr_b16 {ar(r + 2, 2)}, v{vWr[sl//2][nt]} offset:{off+512}")
    return out
def g1_mfmas(xs, ws_, blks, mts=(0, 1, 2, 3), first=False):
    out = {}
    for i, blk in enumerate(blks):
        for nt in range(2):
            for mt in mts:
                w, x = ar(aW[ws_] + (i*2 + nt)*4, 4), ar(aX[xs] + mt*4, 4)
                if blk % 3 == 2:
                    d = vr(acc(blk, mt >> 1) + ((mt & 1)*2 + nt)*4, 4); out[(i, nt, mt)] = mf16(d, x, w, 0 if first else d)
                else:
                    d = vr(acc(blk, mt >> 1) + (nt*2 + (mt & 1))*4, 4); out[(i, nt, mt)] = mf16(d, w, x, 0 if first else d)
    return out

def setup(a):
    o = a.opts
    a("L_START:")
    a("s_cmp_ge_u32 s2, 256")
    a("s_cbranch_scc1 L_END")
    if o.get("xorid"): a(f"s_xor_b32 s2, s2, {o['xorid']}")
    if o.get("mulid"): a(f"s_mul_i32 s2, s2, {o['mulid']}\ns_and_b32 s2, s2, 255")
    a.stamp("start")
    a("s_load_dwordx4 s[48:51], s[0:1], 0")
    a("s_load_dwordx2 s[52:53], s[0:1], 32")
    a("s_load_dwordx2 s[54:55], s[0:1], 72")
    a(f"s_load_dwordx2 s[{sPWoA}:{sPWoA+1}], s[0:1], 16")
    a(f"s_load_dwordx4 s[{sPWoB}:{sPWoB+3}], s[0:1], 40")
    a(f"s_load_dwordx4 s[{sPOut}:{sPOut+3}], s[0:1], 56")
    if o.get("cpf0", 1):
        n = o.get('codelines', 20)
        a("s_getpc_b64 s[56:57]")
        a("L_PC0:")
        a("s_lshr_b32 s35, s2, 3")
        a(f"s_mul_i32 s35, s35, {n}")
        a(f"v_min_u32 v2, {n-1}, v0")
        a("v_add_u32 v2, s35, v2")
        a("v_lshlrev_b32 v2, 7, v2")
        a("v_min_u32 v2, L_END - L_PC0, v2")
        a.emit((f"global_load_dword v{vPFd}, v2, s[56:57]", "cpf"))
    a(f"v_lshrrev_b32 v{vT[0]}, 6, v0")
    a(f"v_and_b32 v{vLANE}, 63, v0")
    a("s_and_b32 s37, s2, 3")
    a(f"v_readfirstlane_b32 s{sW}, v{vT[0]}")
    a("s_bfe_u32 s39, s2, 0x10002")
    a("s_lshr_b32 s35, s2, 3")
    a("s_and_b32 s38, s35, 3")
    a(f"s_lshl2_add_u32 s{sHP}, s37, s38")
    a("s_lshr_b32 s38, s35, 2")
    a(f"s_lshl3_add_u32 s{sT}, s39, s38")
    a(f"s_and_b32 s{sRH}, s{sW}, 1")
    r, c, t0, t1 = vT[0], vT[1], vT[2], vT[3]
    a("s_lshl_b32 s38, s37, 5")
    a("s_add_u32 s38, s38, s35")
    a("s_lshl_b32 s38, s38, 14")
    a("s_lshl_b32 s47, s39, 21")
    a("s_add_u32 s38, s38, s47")
    a("s_lshl_b32 s39, s39, 5")
    a("s_add_u32 s39, s39, s35")
    a("s_mul_i32 s39, s39, 6144")
    a("s_lshl_b32 s47, s37, 9")
    a("s_add_u32 s39, s39, s47")
    a(f"s_mov_b32 s{sPFstr}, {64*6144}")
    a(f"s_cmp_eq_u32 s{sW}, 0")
    a("s_cselect_b32 s39, s38, s39")
    a(f"s_cselect_b32 s{sPFstr}, 128, s{sPFstr}")
    a("s_cselect_b32 s38, 7, 11")
    a("s_cselect_b32 s47, 0, 2")
    a("s_cselect_b32 s36, 0, 3")
    a(f"s_cmp_eq_u32 s{sW}, 3")
    a(f"s_cselect_b32 s{sPFstr}, 0, s{sPFstr}")
    a("s_cselect_b32 s38, 0, s38")
    a(f"v_min_u32 v{t0}, s38, v{vLANE}")
    a(f"v_and_b32 v{t1}, s36, v{t0}")
    a(f"v_lshrrev_b32 v{t0}, s47, v{t0}")
    a(f"v_lshlrev_b32 v{t1}, 7, v{t1}")
    a(f"v_lshl_add_u32 v{t0}, v{t0}, 11, v{t1}")
    a(f"v_add_u32 v{vPF}, s39, v{t0}")
    a(f"v_lshrrev_b32 v{r}, 3, v{vLANE}")
    a(f"v_and_b32 v{c}, 7, v{vLANE}")
    a(f"v_lshrrev_b32 v{t0}, 1, v{r}")
    a(f"v_xor_b32 v{t0}, v{t0}, v{c}")
    a(f"v_lshlrev_b32 v{t1}, 11, v{r}")
    a(f"v_lshl_add_u32 v{t0}, v{t0}, 4, v{t1}")
    a(f"s_lshl2_add_u32 s36, s{sT}, s{sW}")
    a("s_lshl_b32 s36, s36, 16")
    a(f"v_add_u32 v{vXg[0]}, s36, v{t0}")
    a(f"v_xor_b32 v{vXg[1]}, 64, v{vXg[0]}")
    a(f"v_add_u32 v{vXg[1]}, {8*2048}, v{vXg[1]}")
    a(f"v_add_u32 v{vXg[2]}, {16*2048}, v{vXg[0]}")
    a(f"v_add_u32 v{vXg[3]}, {16*2048}, v{vXg[1]}")
    a(f"s_lshl_b32 s{sXw}, s{sW}, 12")
    a("s_waitcnt lgkmcnt(0)")
    a.stamp("karg")
    a(f"s_cmp_eq_u32 s{sW}, 0")
    a(f"s_cselect_b64 s[{sPF}:{sPF+1}], s[{pX}:{pX+1}], s[{pWA}:{pWA+1}]")
    a(f"s_cmp_eq_u32 s{sW}, 2")
    a(f"s_cselect_b64 s[{sPF}:{sPF+1}], s[{pWB}:{pWB+1}], s[{sPF}:{sPF+1}]")
    for i in range(o.get("pf0", 2)):
        for s in pf_round(a): a.emit(s)
    a.wsetup = [f"v_and_b32 v{t0}, 2, v{r}", f"s_lshl_b32 s36, s{sRH}, 2", f"v_xor_b32 v{t0}, v{t0}, v{c}", f"v_xor_b32 v{t0}, s36, v{t0}",
                f"v_mul_u32_u24 v{t1}, 6144, v{r}", f"v_lshl_add_u32 v{t0}, v{t0}, 4, v{t1}", f"s_mul_i32 s36, s{sW}, {8*6144}",
                f"s_lshl_b32 s37, s{sHP}, 7", "s_add_u32 s36, s36, s37", f"v_add_u32 v{vWg[0]}, s36, v{t0}",
                f"v_add_u32 v{vWg[1]}, 2048, v{vWg[0]}", f"v_add_u32 v{vWg[2]}, 4096, v{vWg[0]}", f"s_lshl_b32 s{sWv}, s{sW}, 10",
                f"s_lshr_b32 s{sHH}, s{sW}, 1"]

def fillers_prologue(a):
    L = []
    f = L.append
    f("s_mov_b32 s16, s54"); f("s_and_b32 s17, s55, 0xffff"); f("s_mov_b32 s18, 0x10000000"); f("s_mov_b32 s19, 0x20000")
    f(f"s_mov_b32 s{sCode}, s56"); f(f"s_and_b32 s{sCode+1}, s57, 0xffff"); f(f"s_mov_b32 s{sCode+2}, L_END - L_PC0"); f(f"s_mov_b32 s{sCode+3}, 0x20000")
    f(f"s_mov_b32 s{sX}, s{pX}"); f(f"s_and_b32 s{sX+1}, s{pX+1}, 0xffff"); f(f"s_mov_b32 s{sX+2}, {2048*1024*2}"); f(f"s_mov_b32 s{sX+3}, 0x20000")
    n = a.opts.get('codelines', 20)
    f(f"s_mul_i32 s47, s35, {n}"); f(f"v_min_u32 v{vT[7]}, {n-1}, v{vLANE}"); f(f"v_add_u32 v{vT[7]}, s47, v{vT[7]}"); f(f"v_lshlrev_b32 v{vT[7]}, 7, v{vT[7]}")
    m, g_, t0, t1, row = vT[0], vT[1], vT[2], vT[3], vT[4]
    f(f"v_and_b32 v{m}, 15, v{vLANE}")
    f(f"v_lshrrev_b32 v{g_}, 4, v{vLANE}")
    f(f"v_lshrrev_b32 v{t0}, 1, v{m}")
    f(f"v_xor_b32 v{t0}, v{t0}, v{g_}")
    f(f"v_lshlrev_b32 v{t0}, 4, v{t0}")
    f(f"v_lshl_add_u32 v{t0}, v{m}, 7, v{t0}")
    f(f"s_lshl_b32 s36, s{sRH}, 13")
    f(f"v_add_u32 v{vXr[0]}, s36, v{t0}")
    f(f"v_xor_b32 v{vXr[1]}, 64, v{vXr[0]}")
    f(f"v_lshrrev_b32 v{t0}, 2, v{m}")
    f(f"v_lshl_add_u32 v{row}, v{g_}, 3, v{t0}")
    f(f"v_lshrrev_b32 v{t0}, 3, v{m}")
    f(f"v_and_b32 v{t1}, 1, v{g_}")
    f(f"v_lshl_or_b32 v{t0}, v{t1}, 1, v{t0}")
    f(f"s_lshl_b32 s36, s{sHH}, 1")
    f(f"v_xor_b32 v{t0}, s36, v{t0}")
    f(f"v_lshlrev_b32 v{t0}, 5, v{t0}")
    f(f"v_lshl_add_u32 v{t0}, v{row}, 7, v{t0}")
    f(f"v_and_b32 v{t1}, 3, v{m}")
    f(f"v_lshl_add_u32 v{t0}, v{t1}, 3, v{t0}")
    f(f"v_add_u32 v{vWr[0][0]}, {W_BASE}, v{t0}")
    f(f"v_xor_b32 v{vWr[0][1]}, 32, v{vWr[0][0]}")
    f(f"v_add_u32 v{vWr[1][0]}, {2*W_SLOT}, v{vWr[0][0]}")
    f(f"v_add_u32 v{vWr[1][1]}, {2*W_SLOT}, v{vWr[0][1]}")
    if a.opts.get("zinit"):
        for r in range(ACC0, 256):
            f(f"v_mov_b32 v{r}, 0")
    return L

def fillers_late(a):
    L = []
    f = L.append
    q, b, t = vT[0], vT[1], vT[2]
    f(f"v_lshlrev_b32 v{vL16}, 4, v{vLANE}")
    f(f"v_and_b32 v{q}, 31, v{vLANE}")
    f(f"v_lshrrev_b32 v{b}, 5, v{vLANE}")
    f(f"v_lshlrev_b32 v{b}, 2, v{b}")
    f(f"v_sub_u32 v{b}, v{q}, v{b}")
    f(f"v_add_u32 v{b}, 18, v{b}")
    f("v_mov_b32 v58, 0x5555"); f("v_mov_b32 v59, 0")
    f(f"v_lshlrev_b64 v[58:59], v{b}, v[58:59]")
    f("v_not_b32 v58, v58"); f("v_not_b32 v59, v59")
    f(f"s_mov_b32 s36, {NEGBIG}")
    for i in range(24):
        r, src = (i, 59) if i < 16 else (i - 8, 58)
        f(f"v_bfe_i32 v{vMc + i}, v{src}, {8*(r >> 2) + (r & 3)}, 1")
        f(f"v_and_b32 v{vMc + i}, s36, v{vMc + i}")
    f(f"v_lshrrev_b32 v{q}, 2, v{vLANE}")
    f(f"v_lshrrev_b32 v{t}, 4, v{vLANE}")
    f(f"v_xor_b32 v{q}, v{q}, v{t}")
    f(f"v_and_b32 v{q}, 1, v{q}")
    f(f"v_add_u32 v{q}, -1, v{q}")
    f(f"v_and_b32 v{q}, 0x3f803f80, v{q}")
    for i in range(4):
        f(f"v_accvgpr_write_b32 a{aONE+i}, v{q}")
    f(f"v_lshrrev_b32 v{q}, 1, v{vLANE}"); f(f"v_xor_b32 v{q}, v{q}, v{vLANE}"); f(f"v_and_b32 v{q}, 4, v{q}")
    f(f"v_lshl_or_b32 v{q}, v{q}, 1, v{q}"); f(f"v_xor_b32 v{q}, v{q}, v{vLANE}"); f(f"v_lshlrev_b32 v{vKS}, 4, v{q}")
    f(f"v_min_u32 v{vF0}, 1, v{vLANE}")
    f(f"v_lshlrev_b32 v{vF0}, 31, v{vF0}")
    f(f"s_mov_b32 s{sCS}, {CSCALE}"); f(f"s_mov_b32 s62, {CSCALE}"); f(f"s_mov_b32 s63, {CSCALE}")
    f(f"s_lshl_b32 s36, s{sHP}, 19")
    f(f"s_lshl_b32 s37, s{sW}, 13")
    f(f"s_lshl_b32 s38, s{sHH}, 14")
    f(f"s_lshl_b32 s39, s{sRH}, 13")
    f(f"s_add_u32 s{sKVdst}, s38, s39")
    f(f"s_add_u32 s{sKVbase}, s36, s{sKVdst}")
    f(f"s_lshl_b32 s{sKVt}, s{sT}, 15")
    f(f"s_add_u32 s{sKVsrc}, s{sKVbase}, s{sKVt}")
    f(f"s_and_b32 s{sKVt}, s{sT}, 7"); f(f"s_and_b32 s{sKVb}, s{sT}, 8")
    f(f"s_add_u32 s36, s38, {KV_LDS[0]}")
    f(f"v_add_u32 v{vKV[0]}, s36, v{vL16}")
    f(f"v_add_u32 v{vKV[1]}, 32768, v{vKV[0]}")
    f(f"s_lshl_b32 s{sHead}, s{sHP}, 1")
    f(f"s_add_u32 s{sHead}, s{sHead}, s{sHH}")
    f(f"s_lshl_b32 s{sSeq}, s{sT}, 1")
    f(f"s_add_u32 s{sSeq}, s{sSeq}, s{sRH}")
    f(f"s_lshl_b32 s37, s{sSeq}, 6")
    f(f"s_add_u32 s37, s37, s{sHead}")
    f(f"s_lshl_b32 s{sOst}, s37, 11")
    f(f"s_lshl_b32 s38, s{sHead}, 5")
    f(f"s_add_u32 s38, s38, s{sSeq}")
    f(f"s_lshl_b32 s28, s38, 2")
    f(f"s_lshl_b32 s38, s38, 12")
    f(f"s_add_u32 s{sHalo}, s38, {HALO_OFF}")
    f(f"s_mov_b32 s{sPASS}, 0")
    f(f"s_add_u32 s{sKVp}, s54, s{sKVbase}\ns_addc_u32 s{sKVp+1}, s55, 0")
    f("s_lshl_b32 s36, s2, 2"); f(f"s_add_u32 s36, s36, s{sW}"); f("s_lshl_b32 s36, s36, 11")
    f(f"v_and_b32 v24, 15, v{vLANE}"); f("v_lshlrev_b32 v24, 7, v24"); f("v_add_u32 v60, s36, v24")
    f("s_lshr_b32 s36, s2, 3"); f("s_lshl_b32 s36, s36, 2"); f(f"s_add_u32 s36, s36, s{sW}"); f("s_lshl_b32 s36, s36, 14")
    f("v_add_u32 v0, s36, v24")
    f(f"s_lshl_b32 s36, s{sSeq}, 6")
    f(f"s_lshl_b32 s37, s{sHead}, 1")
    f("s_add_u32 s36, s36, s37")
    f(f"v_lshrrev_b32 v9, 5, v{vLANE}")
    f(f"v_add_u32 v{vGrow}, s36, v9")
    f(f"v_and_b32 v25, 31, v{vLANE}")
    f("v_lshlrev_b32 v25, 4, v25")
    f(f"v_lshl_add_u32 v9, v{vGrow}, 11, v25")
    f(f"s_mov_b32 s56, s{sPG}"); f(f"s_and_b32 s57, s{sPG+1}, 0xffff"); f("s_mov_b32 s58, 2048"); f("s_mov_b32 s59, 0x20000")
    f(f"s_lshl_b32 s38, s{sHP}, 2"); f(f"s_add_u32 s38, s38, s{sW}"); f("s_lshl_b32 s38, s38, 6")
    f(f"s_add_u32 s31, s38, {F_KV}"); f(f"s_lshl_b32 s38, s{sT}, 2"); f("s_add_u32 s32, s31, s38")
    f(f"s_add_u32 s33, s28, {F_H - 4}"); f(f"s_cmp_eq_u32 s{sSeq}, 0\ns_cselect_b32 s38, 4, 0"); f("s_add_u32 s33, s33, s38")
    return L

def gemm1(a):
    o = a.opts
    p1 = P1(a)
    W = lambda j, ps: [("W", j, p) for p in ps]
    X = lambda v, ps: [("X", v, p) for p in ps]
    pro = X(0, range(4)) + W(0, range(6)) + W(1, range(6))
    sched = {(0,0): X(1, range(4)) + W(2, [0,1]), (0,1): W(2, [2,3,4,5]) + W(3, [0,1]),
             (1,0): W(3, [2,3,4,5]) + W(4, [0,1]), (1,1): X(2, range(4)) + W(4, [2,3]),
             (2,0): W(4, [4,5]) + W(5, [0,1,2,3]), (2,1): W(5, [4,5]) + X(3, range(4)),
             (3,0): W(6, range(6))}
    for u in range(3, 28):
        v, p0 = ((u + 5)//2, 0) if u & 1 else ((u + 4)//2, 2)
        sched[(u, 1)] = W(u + 4, [0,1,2]) + (X(v, [p0]) if v < 16 else [])
        sched[(u + 1, 0)] = W(u + 4, [3,4,5]) + (X(v, [p0 + 1]) if v < 16 else [])
    if o.get("w1late", 0):
        pro = X(0, range(4)) + W(0, range(6))
        sched.update({(0,0): W(1, range(6)), (0,1): X(1, range(4)) + W(2, [0,1]), (1,0): W(2, [2,3,4,5]) + W(3, [0,1]),
                      (1,1): W(3, [2,3,4,5]) + X(2, [0,1]), (2,0): X(2, [2,3]) + W(4, [0,1,2,3]), (2,1): W(4, [4,5]) + W(5, [0,1,2,3]),
                      (3,0): W(5, [4,5]) + X(3, range(4)), (3,1): W(6, range(6)), (4,0): W(7, range(6)),
                      (4,1): W(8, [0,1,2]) + X(4, [0,1,2]), (5,0): W(8, [3,4,5]) + X(4, [3])})
    U0 = o.get("u0", 28)
    if U0 == 28:
        sched[(27, 1)] = W(31, range(6)); del sched[(28, 0)]
    for (u, hf), ps in sched.items():
        done = u - 1 if hf == 0 else u
        for k, j, p in ps:
            if k == "W": assert j < 4 or done >= j - 4, (u, hf, k, j)
            else: assert j < 3 or done >= 2*(j - 3) + 1, (u, hf, k, j)
    npf0 = o.get("pf0", 2)
    pfs = {}
    r = npf0
    for u in range(0, 32):
        while r < 16 and u >= max(0, 2*r - o.get("pfd", 5)) and pfs.get(u, 0) < 1:
            pfs[u] = pfs.get(u, 0) + 1; r += 1
    fil = fillers_prologue(a)
    late = fillers_late(a)
    post_issue = []
    if o.get("latepro", 0) == 1: fil += late; late = []
    if o.get("latepro", 0) == 2: post_issue = late; late = []
    if o.get("latepro", 0) == 3: post_issue = fil[42:] + late; fil = fil[:42]; late = []
    ws_ = a.wsetup
    chunks = [ws_[0:4], ws_[4:8], ws_[8:11], ws_[11:14]]
    per = (len(fil) + len(pro) - 5)//(len(pro) - 4)
    chunks += [fil[i*per:(i+1)*per] for i in range(len(pro) - 4)]
    for pc, chunk in zip(pro, chunks):
        pre, d, post = p1.dma(pc)
        for s in pre: a(s)
        a(chunk[0] if chunk else "s_nop 0")
        a.emit(d)
        for s in post + chunk[1:]: a(s)
    for s in post_issue: a(s)
    a(f"s_or_b32 s36, s2, s{sW}")
    a("s_cmp_lg_u32 s36, 0")
    a("s_cbranch_scc1 L_NONONCE")
    a("s_memrealtime s[36:37]")
    a("v_mov_b32 v20, 0")
    a("s_waitcnt lgkmcnt(0)")
    a("s_or_b32 s36, s36, 1")
    a("v_mov_b32 v19, s36")
    a(f"global_store_dword v20, v19, s[{sPDbg}:{sPDbg+1}] sc1")
    a("L_NONONCE:")
    a.stamp("issued")
    a.emit(a.wait(["X0", "W0"]))
    a("s_barrier")
    a.stamp("first")
    for s in x_reads(0, 0) + w_reads(0, 0, (0, 1, 2)): a(s)
    a("s_waitcnt lgkmcnt(0)")
    def need(u): return [f"W{u}"] + ([f"X{u//2}"] if u % 2 == 0 else [])
    def seq(M, keys=None): return [M[k] for k in (keys or sorted(M))]
    roll = o.get("roll", 0)
    if roll:
        assert U0 == 28 and not late
        raise Exception("rolled loop needs bounds-checked prefetch")
        assert all(pfs.get(u, 0) == pfs.get(u + 12, 0) for u in range(4, 16)), pfs
    def half(u, hf):
        if hf == 0: reads = w_reads(1, u, (3, 4, 5))
        else: reads = x_reads((u + 1) & 1, u + 1) + w_reads(0, u + 1, (0, 1, 2) if u + 1 < U0 else (1, 2))
        sides = {}
        ps = sched.get((u, hf), [])
        lay = o.get("glay", 1)
        if lay == 0 or len(ps) > 4:
            for g, rd in enumerate(reads): sides.setdefault(g, []).append(rd)
            D = ([[13, 16, 19, 22], [12, 14, 16, 18, 20, 22]] if hf == 0 else [[17, 19, 21, 23], [13, 15, 17, 19, 21, 23]])[len(ps) > 4]
            if (u, hf) == (0, 0) and o.get("w1late", 0): D = [1, 3, 5, 7, 9, 11]
            for g, pc in zip(D, ps):
                pre, d, post = p1.dma(pc)
                sides.setdefault(g - 1, []).extend(pre)
                sides.setdefault(g, []).insert(0, d)
                sides[g].extend(post)
        else:
            D = {1: [2, 8, 14, 20], 2: [4, 10, 16, 22], 3: [3, 9, 15, 21], 4: [5, 11, 17, 23]}[lay]
            free = [g for g in range(24) if g not in D[:len(ps)]]
            for g, rd in zip(free, reads): sides.setdefault(g, []).append(rd)
            for g, pc in zip(D, ps):
                pre, d, post = p1.dma(pc)
                sides.setdefault(g - 1, []).extend(pre)
                sides.setdefault(g, []).insert(0, d)
                sides.setdefault(min(g + 1, 23), []).extend(post)
        if hf == 0 and pfs.get(u):
            sides.setdefault(23, []).extend(pf_round(a))
        if u >= 4 and late:
            for g in range(24):
                cur = sides.get(g, [])
                if any(isinstance(x, tuple) or x.startswith("ds_") for x in cur): continue
                room = o.get("lateper", 2) - (1 if cur else 0)
                while late and room > 0:
                    x = late.pop(0); sides.setdefault(g, []).append(x); room -= len(x.split("\n"))
        if roll and (u, hf) in ((15, 0), (27, 0)):
            sides.setdefault(14, []).append("s_sub_u32 s35, s35, 1")
        a.inter(seq(g1_mfmas(u & 1, hf, (0, 1, 2) if hf == 0 else (3, 4, 5), first=(u == 0 and not o.get('zinit')))), sides)
        if roll and (u, hf) in ((15, 0), (27, 0)):
            a("s_cmp_lg_u32 s35, 0")
        if hf == 0:
            a.emit(a.wait(need(u + 1), lgkm=True))
            a("s_barrier")
        elif u + 1 < U0:
            a("s_waitcnt lgkmcnt(0)")
        if hf == 1 and u % 8 == 7 and not roll: a.stamp(f"g{u}")
    halves = [(u, hf) for u in range(U0) for hf in range(2)]
    if not roll:
        for h in halves: half(*h)
    else:
        for h in halves[:7]: half(*h)
        a("s_mov_b32 s35, 2")
        n0 = len(a.lines)
        for h in halves[7:31]: half(*h)
        p1_ = a.lines[n0:]; del a.lines[n0:]
        for h in halves[31:55]: half(*h)
        p2_ = a.lines[n0:]; del a.lines[n0:]
        assert len(p1_) == len(p2_)
        if o.get("galign"): a(f".p2align {o['galign']}")
        a("L_G1:")
        import re
        for x, y in zip(p1_, p2_):
            if x != y:
                mx, my = re.fullmatch(r"\s*s_waitcnt vmcnt\((\d+)\) lgkmcnt\(0\)", x), re.fullmatch(r"\s*s_waitcnt vmcnt\((\d+)\) lgkmcnt\(0\)", y)
                assert mx and my, (x, y)
                x = f"s_waitcnt vmcnt({min(int(mx.group(1)), int(my.group(1)))}) lgkmcnt(0)"
            a(x)
        a("s_cbranch_scc1 L_G1")
        half(27, 1)
    misc = []
    for j in range(8):
        misc.append((f"buffer_load_dwordx4 {ar(aGATE+4*j, 4)}, v9, s[{sX}:{sX+3}], 0 offen offset:{512*j}" if j < 4 else
                     f"buffer_load_dwordx4 {ar(aGATE+4*j, 4)}, v25, s[56:59], 0 offen offset:{512*(j-4)}", "gate"))
    misc = [(f"global_load_dword v21, v19, s[{sPDbg}:{sPDbg+1}] sc1", "nonce"),
            (f"buffer_load_dword v{vPFd}, v{vT[7]}, s[{sCode}:{sCode+3}], 0 offen", "cpf")] + misc
    if o.get("wom", 1): misc.insert(o.get("wompos", 10), (f"global_load_dword v{vPFd}, v60, s[{sPWoB}:{sPWoB+1}]", "wopf"))
    if o.get("wom", 1) > 1: misc.append((f"global_load_dword v{vPFd}, v60, s[{sPWoA}:{sPWoA+1}]", "wopf"))
    xs, ws_ = U0 & 1, 0
    units = [(u, b) for u in range(U0, 31) for b in ((0, 3), (4, 5))] + [(31, (4, 5)), (31, (3, 0))]
    bfirst = o.get("bfirst", 1)
    if bfirst: units = [(u, (4, 5)) for u in range(U0, 32)] + [(u, (3, 0)) for u in range(U0, 32)]
    for u in range(U0, 32):
        if u < 31:
            a.emit(a.wait(need(u + 1), lgkm=True)); a("s_barrier")
        else:
            a("s_waitcnt lgkmcnt(0)")
        reads = x_reads(1 - xs, u + 1) + w_reads(1 - ws_, u + 1, (1, 2)) if u < 31 else x_reads(1 - xs, U0) + w_reads(1 - ws_, *units[0])
        sides = {}
        for i, rd in enumerate(reads): sides.setdefault(i, []).append(rd)
        if u == U0:
            sides.setdefault(0, []).append("v_mov_b32 v19, 0")
            sides.setdefault(1, []).append(f"s_add_u32 s25, s{sKVsrc}, 4096"); sides.setdefault(2, []).append(f"s_mov_b32 s26, s{sKVsrc}")
        for g in ((12, 13, 15) if U0 == 28 else (12, 13, 14, 15)):
            if misc: sides.setdefault(g, []).append(misc.pop(0))
        M = g1_mfmas(xs, ws_, (1, 2))
        a.inter(seq(M, [(i, nt, mt) for rt in range(2) for i in range(2) for nt in range(2) for mt in (2*rt, 2*rt + 1)]), sides)
        xs ^= 1; ws_ ^= 1
    assert not misc
    a.stamp("gP")
    e1_lists(a)
    kvw = pk16(KA[0], pKA[0]) + a.kv.pop(0) + pk16(VA[0], pVA[0]) + pk16(KA[1], pKA[1]) + pk16(VA[1], pVA[1])
    st_units = {28: [1, 2, 3, 4, 5, 6, 7], 29: [1, 2, 3, 4, 5]}[U0]
    for n, (u, blks) in enumerate(units):
        last = n == len(units) - 1
        a("s_waitcnt lgkmcnt(0)")
        if last: a("s_barrier")
        reads = []
        newx = False
        if not last:
            un, bn = units[n + 1]
            newx = un != u
            reads = (x_reads(1 - xs, un) if newx else []) + w_reads(1 - ws_, un, bn)
        sides = {}
        for i, rd in enumerate(reads): sides.setdefault(i, []).append(rd)
        M = g1_mfmas(xs, ws_, blks)
        keys = None
        if bfirst and n == len(units)//2:
            kvw += pk16(KB[1], pKB[1]) + pk16(VB[1], pVB[1], True) + pk16(KB[0], pKB[0]) + pk16(VB[0], pVB[0], True)
        if n >= len(units) - 2 or (bfirst and n == len(units)//2 - 1):
            keys = [(i, nt, mt) for rt in (1, 0) for i in range(2) for nt in range(2) for mt in (2*rt, 2*rt + 1)]
            if last: keys = [(i, nt, mt) for i in range(2) for rt in (1, 0) for nt in range(2) for mt in (2*rt, 2*rt + 1)]
        if last:
            e1_head(a, sides, kvw if bfirst else None); kvw = []
        else:
            for g in range(4 if n == 0 else 0, 16):
                budget = 1 if g < len(reads) else 2
                if n in st_units and g == 15: budget = 0
                while kvw and budget > 0:
                    cost = 2 if (isinstance(kvw[0], tuple) or "permlane" in kvw[0]) else 1
                    if cost > budget and o.get("rstrict", 1): break
                    sides.setdefault(g, []).append(kvw.pop(0))
                    budget -= cost
        if n in st_units:
            st_ = a.kv.pop(0)
            lo = int(st_[0][0].split("v[")[1].split(":")[0])
            assert not any(isinstance(x, str) and any(f"v{lo+i}," in x.split(None, 1)[1].split(", v")[0] + "," or x.endswith(f" v{lo+i}") and "permlane" in x for i in range(4)) for x in kvw), (n, lo)
            sides.setdefault(1 if last else 15, []).extend(st_)
        a.inter(seq(M, keys), sides)
        ws_ ^= 1
        if newx: xs ^= 1
    assert not kvw
    a.stamp("g31")
    assert not late

def packl(base, out=None):
    out = base if out is None else out
    return [f"v_cvt_pk_bf16_f32 v{out+j}, v{base+2*j}, v{base+2*j+1}" for j in range(8)]
def pk16(base, out=None, vb=False):
    out = base if out is None else out
    l = packl(base, out) + [f"v_permlane16_swap_b32 v{out+i}, v{out+i+2}" for i in (0, 1, 4, 5)]
    if vb: l += [f"v_permlane32_swap_b32 v{out+i}, v{out+i+2}" for i in (0, 1, 4, 5)]
    return l
def pko(base, out=None):
    out = base if out is None else out
    return packl(base, out) + ["s_nop 0"] + [f"v_permlane16_swap_b32 v{out+j}, v{out+4+j}" for j in range(4)]
def pack(a, base, out=None):
    for s in packl(base, out): a(s)
class L(list):
    def __call__(self, s): self.append(s)
    def emit(self, s): self.append(s)
def weave(a, work, extra, first, every):
    nxt = first
    for i, w in enumerate(work):
        while extra and i >= nxt:
            for s in extra.pop(0): a.emit(s)
            nxt += every
        a.emit(w)

def padfill(a, fill, n):
    k = 0
    for f in fill:
        a.emit(f); k += len(f.split("\n")) if isinstance(f, str) else 1
    if k < n: a(f"s_nop {n - k - 1}")

def local_tile(a, Q, Kc, Vc, Kp, Vp1, SC, SP, O, PC, PP, tmp, off, tag, fill1=(), fill2=()):
    m, t = tmp, tmp + 1
    a(mf32(vr(SC, 16), vr(Kc, 4), vr(Q, 4), vr(vMc, 16)))
    a(mf32(vr(SC, 16), vr(Kc+4, 4), vr(Q+4, 4), vr(SC, 16)))
    a(mf32(vr(SP, 16), vr(Kp, 4), vr(Q, 4), vr(vMc + 8, 16)))
    a(mf32(vr(SP, 16), vr(Kp+4, 4), vr(Q+4, 4), vr(SP, 16)))
    padfill(a, fill1, 10)
    vals = [SC + i for i in range(16)] + [SP + 8 + i for i in range(8)]
    a(f"v_max3_f32 v{m}, v{vals[0]}, v{vals[1]}, v{vals[2]}")
    for i in range(3, 23, 2):
        a(f"v_max3_f32 v{m}, v{m}, v{vals[i]}, v{vals[i+1]}")
    a(f"v_max_f32 v{m}, v{m}, v{vals[23]}")
    a(f"v_mov_b32 v{t}, v{m}")
    a("s_nop 1")
    a(f"v_permlane32_swap_b32 v{m}, v{t}")
    a(f"v_max_f32 v{m}, v{m}, v{t}")
    a(f"v_mul_f32 v{m}, s{sCS}, v{m}")
    for v in vals:
        a(f"v_fma_f32 v{v}, v{v}, s{sCS}, -v{m}")
    L = SP
    for i in range(10): a(f"v_exp_f32 v{vals[i]}, v{vals[i]}")
    for j in range(4): a(f"v_cvt_pk_bf16_f32 v{PC+j}, v{SC+2*j}, v{SC+2*j+1}")
    for i in range(10, 13): a(f"v_exp_f32 v{vals[i]}, v{vals[i]}")
    a(mf32(vr(O, 16), vr(Vc, 4), vr(PC, 4), 0))
    for i in range(13, 18): a(f"v_exp_f32 v{vals[i]}, v{vals[i]}")
    a(mf16(vr(L, 4), ar(aONE, 4), vr(PC, 4), 0))
    for j in range(4, 8): a(f"v_cvt_pk_bf16_f32 v{PC+j}, v{SC+2*j}, v{SC+2*j+1}")
    for i in range(18, 20): a(f"v_exp_f32 v{vals[i]}, v{vals[i]}")
    a(mf32(vr(O, 16), vr(Vc+4, 4), vr(PC+4, 4), vr(O, 16)))
    for i in range(20, 24): a(f"v_exp_f32 v{vals[i]}, v{vals[i]}")
    a(mf16(vr(L, 4), ar(aONE, 4), vr(PC+4, 4), vr(L, 4)))
    for j in range(4): a(f"v_cvt_pk_bf16_f32 v{PP+j}, v{SP+8+2*j}, v{SP+9+2*j}")
    a("s_nop 1")
    a(mf16(vr(L, 4), ar(aONE, 4), vr(PP, 4), vr(L, 4)))
    a(mf32(vr(O, 16), vr(Vp1, 4), vr(PP, 4), vr(O, 16)))
    padfill(a, fill2, 7)
    a(f"v_rcp_f32 v{m}, v{L}")
    a(f"s_add_u32 s35, s{sOst}, {OB_OFF + off}")
    a("s_nop 2")
    for i in range(16):
        a(f"v_mul_f32 v{O+i}, v{O+i}, v{m}")
    return [(f"buffer_store_dwordx4 {{0}}, v{vL16}, {WS}, s35 offen sc1", tag),
            (f"buffer_store_dwordx4 {{0}}, v{vL16}, {WS}, s35 offen offset:1024 sc1", tag)]

def flag_store(sreg, vtmp, tag):
    return [f"v_mov_b32 v{vtmp}, s{sNONCE}", (f"buffer_store_dword v{vtmp}, v{vF0}, {WS}, s{sreg} offen sc1", tag)]

def poll_check(a, name, vdst, vaddr, sreg, tag, mask=-1):
    a.emit(a.wait([tag]))
    a(f"v_cmp_ne_u32 vcc, s{sNONCE}, v{vdst}")
    a(f"s_and_b32 s{sSpin}, vcc_lo, {mask}")
    a(f"s_cbranch_scc1 {name}_S")
    a(f"{name}_R:")
    a.tail.append(f"""{name}_S:
    s_mov_b32 s{sSpin}, 0
{name}_L:
    buffer_load_dword v{vdst}, v{vaddr}, {WS}, s{sreg} offen sc1
    s_add_u32 s{sSpin}, s{sSpin}, 1
    s_waitcnt vmcnt(0)
    v_cmp_ne_u32 vcc, s{sNONCE}, v{vdst}
    s_cmp_lt_u32 s{sSpin}, 0x40000
    s_cbranch_scc0 {name}_R
    s_nop 2
    s_and_b32 vcc_hi, vcc_lo, {mask}
    s_cbranch_scc1 {name}_L
    s_branch {name}_R""")

def e1_lists(a):
    a.halo = [[(f"buffer_store_dwordx4 {vr(pKB[1], 4)}, v{vL16}, {WS}, s{sHalo} offen sc1", "halo")],
              [(f"buffer_store_dwordx4 {vr(pKB[1]+4, 4)}, v{vL16}, {WS}, s{sHalo} offen offset:1024 sc1", "halo")],
              [(f"buffer_store_dwordx4 {vr(pVB[1]+4, 4)}, v{vL16}, {WS}, s{sHalo} offen offset:2048 sc1", "halo")]]
    a.kv = []; a.dsw = []
    for rt in range(2):
        for (blk, f0) in ((pKA[rt], 0), (pVA[rt], 2)):
            for f in range(2):
                off = (f0 + f)*1024
                a.kv.append([(f"buffer_store_dwordx4 {vr(blk+4*f, 4)}, v{vL16 if f0 else vKS}, {WS}, s{26 if rt == 0 else 25} offen offset:{off} sc1", "kv")])
                a.dsw.append([f"ds_write_b128 v{22 if f0 else vKL}, {vr(blk+4*f, 4)} offset:{rt*4096 + off}"])

def e1_head(a, sides, left):
    w = [f"s_add_u32 s36, s{sKVdst}, {KV_LDS[0]}", f"v_add_u32 v22, s36, v{vL16}", f"v_add_u32 v{vKL}, s36, v{vKS}", f"v_add_u32 v{vL16b}, 4096, v{vL16}"]
    if left is None: w += pk16(KB[1], pKB[1]) + pk16(VB[1], pVB[1], True) + pk16(KB[0], pKB[0]) + pk16(VB[0], pVB[0], True)
    else: w += left + sel_init(23, 24)[:5] + sel_init(23, 24)[13:]
    a.selrest = sel_init(23, 24) if left is None else sel_init(23, 24)[5:13]
    for g in range(16):
        budget = 2
        if g % 2 == 1 and g > 1:
            sides.setdefault(g, []).extend(a.dsw.pop(0)); budget = 0
        while w and budget > 0:
            x = w.pop(0)
            sides.setdefault(g, []).append(x)
            budget -= 2 if "permlane" in x else (0 if x.startswith("s_") else 1)
    a.e1rest = w

def e1(a):
    o = a.opts
    pend = a.kv + a.halo
    a.emit(a.wait(["nonce"]))
    a(f"v_readfirstlane_b32 s{sNONCE}, v21")
    w = a.e1rest + pk16(QB[1], 240) + a.selrest + pk16(QB[0], pQB[0])
    weave(a, w, a.dsw, 2, 8)
    a(f"s_cmp_eq_u32 s{sNONCE}, 0")
    a("s_cbranch_scc1 L_NONCE_S")
    a("L_NONCE_R:")
    a.tail.append(f"""L_NONCE_S:
    s_mov_b32 s{sSpin}, 0
L_NONCE_L:
    global_load_dword v21, v19, s[{sPDbg}:{sPDbg+1}] sc1
    s_add_u32 s{sSpin}, s{sSpin}, 1
    s_waitcnt vmcnt(0)
    v_readfirstlane_b32 s{sNONCE}, v21
    s_cmp_lt_u32 s{sSpin}, 0x40000
    s_cbranch_scc0 L_NONCE_R
    s_nop 2
    s_cmp_eq_u32 s{sNONCE}, 0
    s_cbranch_scc1 L_NONCE_L
    s_branch L_NONCE_R""")
    for s in pend.pop(0): a.emit(s)
    a.stamp("e1pack")
    qa = []
    for q in QA:
        qa += [f"v_pk_mul_f32 {vr(q+2*j, 2)}, {vr(q+2*j, 2)}, s[62:63]" for j in range(8)] + pk16(q)
    lt = L()
    st = local_tile(lt, 240, pKB[1], pVB[1], pKB[0], pVB[0]+4, 128, 144, 176, 168, 248, 252, 65536, "ob1", fill1=qa[:26], fill2=qa[26:])
    lt += pko(176, 56)
    a.ob1 = [(st[0][0].format("v[56:59]"), "ob1"), (st[1][0].format("v[60:63]"), "ob1")]
    weave(a, lt, pend, o.get("st_a", 40), o.get("st_b", 50))
    for g in pend:
        for s in g: a.emit(s)
    a.stamp("loc1")
    a.emit(a.wait(["kv"], lgkm=True))
    for s in flag_store(32, 20, "fKV"): a.emit(s)
    a("s_barrier")
    a.stamp("fKV")

sKVp, sKVg, sOg, sPFW = 84, 98, 100, 52
vL16b = 5
def kv_dma(slot, group, tag):
    out = [f"s_add_u32 m0, s{sKVdst}, {KV_LDS[slot] + group*4096}"]
    for p in range(4):
        out.append((f"global_load_lds_dwordx4 v{vL16b if group else vL16}, s[{sKVg}:{sKVg+1}] offset:{p*1024} sc1", tag))
    return out
sKVb, sKVd = 3, 34
def kv_advance(c):
    if c <= 7:
        return [f"s_cmp_le_u32 s{sKVt}, {c-1}", f"s_addc_u32 s36, s{sKVb}, {c-1}", "s_lshl_b32 s36, s36, 15",
                f"s_add_u32 s{sKVg}, s{sKVp}, s36", f"s_addc_u32 s{sKVg+1}, s{sKVp+1}, 0"]
    return [f"s_add_u32 s36, s{sKVb}, {c}", "s_and_b32 s36, s36, 15", "s_lshl_b32 s36, s36, 15",
            f"s_add_u32 s{sKVg}, s{sKVp}, s36", f"s_addc_u32 s{sKVg+1}, s{sKVp+1}, 0"]

def sel_init(t0, t1):
    return [f"v_lshrrev_b32 v{t0}, 1, v{vLANE}", f"v_and_b32 v{t0}, 3, v{t0}", f"v_min_u32 v{t1}, 1, v{t0}", f"v_add_u32 v{t1}, -1, v{t1}",
            f"v_and_b32 v{t1}, 0x3f803f80, v{t1}", f"v_accvgpr_write_b32 a{aSEL}, v{t1}", f"v_accvgpr_write_b32 a{aSEL+1}, v{t1}",
            f"v_xor_b32 v{t0}, 2, v{t0}", f"v_min_u32 v{t1}, 1, v{t0}", f"v_add_u32 v{t1}, -1, v{t1}",
            f"v_and_b32 v{t1}, 0x3f803f80, v{t1}", f"v_accvgpr_write_b32 a{aSEL+2}, v{t1}", f"v_accvgpr_write_b32 a{aSEL+3}, v{t1}",
            f"v_and_b32 v{vIDX}, 1, v{vLANE}", f"v_mul_u32_u24 v{vIDX}, 0xaaaa, v{vIDX}", f"v_add_u32 v{vIDX}, 0x4444, v{vIDX}"]
def smf(q): return f"v_smfmac_f32_16x16x64_bf16 {ar(aL[q], 4)}, {ar(aSEL, 4)}, {vr(P[q], 8)}, v{vIDX}"

def H(a, q, vpar, qk=True, pv=True, pv_first=False, slots=None):
    slots = slots or {}
    o = 1 - q
    e = [f"v_exp_f32 v{S[q]+i}, v{S[q]+i}" for i in range(16)]
    c = [f"v_cvt_pk_bf16_f32 v{P[q]+j}, v{S[q]+2*j}, v{S[q]+2*j+1}" for j in range(8)]
    So, Oo = vr(S[o], 16), ar(aO[o], 16)
    M = [mf32(So, ar(aK, 4), vr(QA[o], 4), vr(NM[o], 16)) if qk else None,
         mf32(So, ar(aK+4, 4), vr(QA[o]+4, 4), So) if qk else None,
         mf32(Oo, ar(aV[vpar], 4), vr(P[o], 4), 0 if pv_first else Oo) if pv else None,
         mf32(Oo, ar(aV[vpar]+4, 4), vr(P[o]+4, 4), Oo) if pv else None,
         smf(o) if pv else None, None]
    V = [[e[0], e[1], e[2]], [e[3], c[0], c[1], e[4]], [e[5], e[6], e[7]], [c[2], c[3], e[8], e[9], e[10], e[11], c[4], c[5]],
         [], [e[12], e[13], e[14], e[15], c[6], c[7]]]
    if not pv: V[3] = ["s_nop 0"] + V[3]
    for i in range(6):
        if M[i]: a(M[i])
        for s in slots.get(i, []): a.emit(s)
        for s in V[i]: a(s)

def rdK(slot, off): return [f"ds_read_b128 {ar(aK, 4)}, v{vKV[slot]} offset:{off}", f"ds_read_b128 {ar(aK+4, 4)}, v{vKV[slot]} offset:{off+1024}"]
def rdV(par, slot, off): return [f"ds_read_b128 {ar(aV[par], 4)}, v{vKV[slot]} offset:{off+2048}", f"ds_read_b128 {ar(aV[par]+4, 4)}, v{vKV[slot]} offset:{off+3072}"]

FREE_A = [0, 3, 4]; FREE_B = [2, 3, 4, 5]
TORD = [0, 2, 1, 3]
def tile(a, n, side=None, end_b=None):
    sa = {}; sb = {}
    if n < 63:
        m = n + 1
        k = rdK((m >> 2) & 1, TORD[m & 3]*4096); v = rdV(m & 1, (m >> 2) & 1, TORD[m & 3]*4096)
        sa[1] = [k[0]]; sa[2] = [k[1]]; sa[5] = ["s_waitcnt lgkmcnt(0)"]
        sb[0] = [v[0]]; sb[1] = [v[1]]
    if side is not None:
        for g in FREE_A:
            if side: sa.setdefault(g, []).extend(side.pop(0))
        for g in (FREE_B if end_b is None else FREE_B[:-1]):
            if side: sb.setdefault(g, []).extend(side.pop(0))
        if sb.get(4) and sb.get(5) and isinstance(sb[4][-1], str) and " m0," in sb[4][-1] and isinstance(sb[5][0], tuple):
            if not sb.get(3): sb[3] = sb.pop(4)
            elif len(sb[3]) == 1 and isinstance(sb[3][0], str) and " m0," not in sb[3][0] and not sb[3][0].startswith(("s_cmp", "s_addc", "s_add_u32 s9", "s_add_u32 s10")):
                sb[3], sb[4] = sb[4], sb[3]
            else: sb[4] = sb[4] + ["s_nop 0"]
    if end_b: sb.setdefault(5, []).extend(end_b)
    H(a, 0, (n - 1) & 1, pv=(n != 0), pv_first=(n == 1), slots=sa)
    H(a, 1, n & 1, qk=(n < 63), pv_first=(n == 0), slots=sb)

def neg_max(a):
    for q in range(2): a(f"v_mov_b32 v{21+q}, v{19+q}")
    a("s_nop 0")
    for q in range(2): a(f"v_permlane32_swap_b32 v{19+q}, v{21+q}")
    for q in range(2): a(f"v_max_f32 v{19+q}, v{19+q}, v{21+q}")
    for q in range(2):
        for i in range(16): a(f"v_sub_f32 v{NM[q]+i}, 0, v{19+q}")

def gate_compute(a):
    z, t = 23, 24
    for i in range(16):
        a(f"v_accvgpr_read_b32 v{96+(i%4)}, a{aGATE+i}")
        a(f"v_accvgpr_read_b32 v{100+(i%4)}, a{aGATE+16+i}")
        a(f"v_dot2_f32_bf16 v{z}, v{96+(i%4)}, v{100+(i%4)}, {0 if i == 0 else 'v%d' % z}")
    a("s_nop 2")
    for sh in (8, 4, 2, 1):
        a(f"v_add_f32_dpp v{z}, v{z}, v{z} row_ror:{sh} row_mask:0xf bank_mask:0xf")
        a("s_nop 1")
    a(f"v_mov_b32 v{t}, v{z}")
    a("s_nop 1")
    a(f"v_permlane16_swap_b32 v{z}, v{t}")
    a(f"v_add_f32 v{z}, v{z}, v{t}")
    a(f"v_mul_f32 v{z}, {f2u(-math.log2(math.e))}, v{z}")
    a(f"v_exp_f32 v{z}, v{z}")
    a(f"v_and_b32 v{t}, 31, v{vLANE}")
    a(f"v_add_f32 v{z}, 1.0, v{z}")
    a(f"v_rcp_f32 v{z}, v{z}")
    a(f"v_min_u32 v{t}, 1, v{t}")
    a(f"v_lshlrev_b32 v{t}, 31, v{t}")
    a(f"v_lshl_or_b32 v{t}, v{vGrow}, 2, v{t}")
    a(f"s_mov_b32 s36, {G_OFF}")
    a.emit((f"buffer_store_dword v{z}, v{t}, {WS}, s36 offen sc1", "g"))

def p4_setup(a):
    srd(a, sWoA, sPWoA, sPWoA+1, 1024*1024*2)
    srd(a, sWoB, sPWoB, sPWoB+1, 1024*1024*2)
    srd(a, sOutD, sPOut, sPOut+1, 2048*1024*2)
    a("s_and_b32 s36, s2, 7")
    a("s_lshr_b32 s37, s2, 3")
    a(f"s_and_b32 s{sC4}, s37, 15")
    a("s_lshr_b32 s37, s37, 4")
    a("s_lshl_b32 s36, s36, 1")
    a(f"s_add_u32 s{sT4}, s36, s37")
    r, c, t0, t1 = 200, 201, 202, 203
    a(f"v_lshrrev_b32 v{r}, 3, v{vLANE}")
    a(f"v_and_b32 v{c}, 7, v{vLANE}")
    a(f"v_and_b32 v{t0}, 2, v{r}")
    a(f"s_lshl_b32 s36, s{sHH}, 2")
    a(f"v_xor_b32 v{t0}, v{t0}, v{c}")
    a(f"v_xor_b32 v{t0}, s36, v{t0}")
    a(f"v_lshlrev_b32 v{t0}, 4, v{t0}")
    a(f"v_lshl_add_u32 v{t0}, v{r}, 11, v{t0}")
    a(f"s_lshl_b32 s36, s{sW}, 14")
    a(f"s_lshl_b32 s37, s{sC4}, 7")
    a("s_add_u32 s36, s36, s37")
    a(f"v_add_u32 v{vWo_g}, s36, v{t0}")
    a(f"v_and_b32 v{r}, 15, v{vLANE}")
    a(f"v_lshrrev_b32 v{t0}, 2, v{r}")
    a(f"v_lshrrev_b32 v{t1}, 5, v{vLANE}")
    a(f"v_lshl_add_u32 v{c}, v{t1}, 2, v{t0}")
    a(f"v_and_b32 v{t1}, 16, v{vLANE}")
    a(f"v_add_u32 v{c}, v{c}, v{t1}")
    a(f"v_lshlrev_b32 v{t1}, 2, v{t1}")
    a(f"v_and_b32 v{t0}, 8, v{r}")
    a(f"v_lshl_add_u32 v{t0}, v{t0}, 2, v{t1}")
    a(f"v_lshl_add_u32 v{t0}, v{c}, 7, v{t0}")
    a(f"v_and_b32 v{t1}, 3, v{r}")
    a(f"v_lshl_add_u32 v{vWo_r[0]}, v{t1}, 3, v{t0}")
    for nt in range(1, 4):
        a(f"v_xor_b32 v{vWo_r[nt]}, {32*nt}, v{vWo_r[0]}")
    a(f"s_lshl_b32 s36, s{sT4}, 2")
    a(f"s_add_u32 s36, s36, s{sW}")
    a(f"s_lshl_b32 s{sOrow}, s36, 16")
    a(f"s_lshr_b32 s36, s36, 1")
    a(f"s_lshl_b32 s29, s36, 7")
    a(f"s_lshr_b32 s36, s{sC4}, 1")
    a(f"s_lshl_b32 s{sOoff}, s36, 13")
    a(f"s_lshl_b32 s{sWooff}, s36, 18")
    a(f"v_and_b32 v16, 31, v{vLANE}")
    a("v_lshlrev_b32 v16, 2, v16")
    a(f"v_and_b32 v17, 15, v{vLANE}")
    a(f"v_cmp_le_u32 vcc, s{sKVt}, v17")
    a(f"v_add_u32 v17, s{sKVb}, v17")
    a("s_nop 0")
    a("v_addc_co_u32 v17, vcc, 0, v17, vcc")
    a("v_and_b32 v17, 15, v17")
    a("v_lshlrev_b32 v17, 2, v17")
    a("s_lshl_b32 s36, s2, 2")
    a(f"s_add_u32 s36, s36, s{sW}")
    a("s_lshl_b32 s36, s36, 11")
    a(f"v_and_b32 v25, 7, v{vLANE}")
    a("v_lshlrev_b32 v25, 7, v25")
    a("v_add_u32 v25, s36, v25")
    a("s_lshr_b32 s36, s2, 3")
    a("s_lshl_b32 s36, s36, 2")
    a(f"s_add_u32 s36, s36, s{sW}")
    a("s_lshl_b32 s36, s36, 12")
    a(f"s_add_u32 s36, s36, {24*65536}")
    a(f"v_and_b32 v15, 15, v{vLANE}")
    a("v_lshlrev_b32 v15, 7, v15")
    a("v_add_u32 v15, s36, v15")
    a(f"s_add_u32 s36, s{sOrow}, {OB_OFF}")
    a(f"s_add_u32 s{sOg}, s54, s36")
    a(f"s_addc_u32 s{sOg+1}, s55, 0")

def wob_dma(i, tag):
    return [[f"s_mov_b32 s39, {i*65536}"], [f"s_add_u32 m0, s{sWv}, {i*4096}"],
            [(f"buffer_load_dwordx4 v{vWo_g}, s[{sWoB}:{sWoB+3}], s39 offen lds", tag)]]

def attention(a):
    o = a.opts
    a("L_ATT0:")
    for s in rdK(0, 0) + rdV(0, 0, 0): a(s)
    for s in kv_advance(1): a(s)
    for q in range(2):
        for i in range(4): a(f"v_accvgpr_write_b32 a{aL[q]+i}, 0")
    a(f"s_cmp_lg_u32 s{sPASS}, 0")
    a("s_cbranch_scc1 L_ATT1")
    ps = L(); p4_setup(ps)
    ps_s = [x for x in ps if x.startswith("s_") and "s4," not in x.split()[1] and not any(x.split()[1].startswith(f"s{i},") for i in (4, 5, 6, 7))]
    ps_x = []
    rest = [x for x in ps if x not in ps_x]
    n1 = 22
    for s in rest[:n1]: a(s)
    a("s_waitcnt lgkmcnt(0)")
    for q in range(2): a(mf32(vr(S[q], 16), ar(aK, 4), vr(QA[q], 4), 0))
    for q in range(2): a(mf32(vr(S[q], 16), ar(aK+4, 4), vr(QA[q]+4, 4), vr(S[q], 16)))
    padfill(a, rest[n1:n1+26], 11)
    for q in range(2):
        s, m = S[q], 19 + q
        a(f"v_max3_f32 v{m}, v{s}, v{s+1}, v{s+2}")
        for i in range(3, 15, 2): a(f"v_max3_f32 v{m}, v{m}, v{s+i}, v{s+i+1}")
        a(f"v_max_f32 v{m}, v{m}, v{s+15}")
    for q in range(2): a(f"v_mov_b32 v{21+q}, v{19+q}")
    a("s_nop 0")
    for q in range(2): a(f"v_permlane32_swap_b32 v{19+q}, v{21+q}")
    for q in range(2): a(f"v_max_f32 v{19+q}, v{19+q}, v{21+q}")
    for i in range(16): a(f"v_sub_f32 v{NM[0]+i}, 0, v19")
    for s in rest[n1+26:n1+28]: a(s)
    a(mf32(vr(S[0], 16), ar(aK, 4), vr(QA[0], 4), vr(NM[0], 16)))
    a(mf32(vr(S[0], 16), ar(aK+4, 4), vr(QA[0]+4, 4), vr(S[0], 16)))
    for i in range(16): a(f"v_sub_f32 v{NM[1]+i}, 0, v20")
    for s in rest[n1+28:]: a(s)
    a("v_mov_b32 v18, 0")
    a(f"s_add_u32 s30, s28, {F_H}")
    if o.get("fh_slot", 10) < 0:
        a.emit(a.wait(["halo"]))
        for s in flag_store(30, 20, "fH"): a.emit(s)
    a("s_branch L_ATT2")
    a("L_ATT1:")
    a("s_waitcnt lgkmcnt(0)")
    a(mf32(vr(S[0], 16), ar(aK, 4), vr(QA[0], 4), vr(NM[0], 16)))
    a(mf32(vr(S[0], 16), ar(aK+4, 4), vr(QA[0]+4, 4), vr(S[0], 16)))
    a("s_nop 11")
    a("L_ATT2:")
    a.stamp("att0")
    pk = [(f"buffer_load_dword v21, v17, {WS}, s31 offen sc1", "pKV")]
    ks = o.get("pk_slot", 0)
    sl = [[] for _ in range(14)]; sl[ks] = pk
    if o.get("fh_slot", 10) >= 0: sl[o.get("fh_slot", 10)] = [a.wait(["halo"])] + flag_store(30, 20, "fH")
    tile(a, 0, sl[0:7]); tile(a, 1, sl[7:14])
    a.stamp("t01")
    d0, d1, adv = kv_dma(1, 0, "c1a"), kv_dma(1, 1, "c1b"), kv_advance(2)
    a(d0[0])
    poll_check(a, "L_PKV", 21, 17, 31, "pKV", mask=1)
    a.stamp("pKV")
    a.emit(d0[1]); a.emit(d0[2])
    tile(a, 2, [[d0[3]], [d0[4]], [(f"buffer_load_dword v21, v17, {WS}, s31 offen sc1", "pKV2")], [d1[0]], [d1[1], d1[2]], [d1[3]], [d1[4]]])
    for s in adv: a(s)
    a.stamp("t2")
    a(f"s_cmp_lg_u32 s{sPASS}, 0")
    a("s_cbranch_scc1 L_A4")
    gate_compute(a)
    a("s_branch L_A5")
    a("L_A4:")
    a("s_waitcnt vmcnt(0)")
    a("L_A5:")
    a.emit(a.wait(["c1a"], lgkm=True))
    a("s_barrier")
    a.pkv2 = True
    a.stamp("c1")
    wob = [i for i in range(24)]
    obl = [i for i in range(64)]
    if o.get('noside'): wob = wob[:1]; obl = obl[:1]
    ob_start = o.get("ob_start", 6)
    obase = False
    for c in range(15):
        V = []; A = []
        side = []
        if c + 2 <= 15:
            d0, d1 = kv_dma(c % 2, 0, f"c{c+2}"), kv_dma(c % 2, 1, f"c{c+2}")
            kvs = [[x] for x in d0] + [[x] for x in d1] + ([[x] for x in kv_advance(c + 3)] if c + 3 <= 15 else [])
        else:
            kvs = []
        oth = []
        if c == 0:
            oth += [[(f"buffer_load_dword v21, v17, {WS}, s31 offen sc1", "pKV3")], [], [], [(f"buffer_load_dword v22, v18, {WS}, s33 offen sc1", "pH")]]
        if c == 3:
            oth += [[f"s_lshl_b32 s38, s{sSeq}, 7"], [f"s_lshl_b32 s39, s{sHead}, 2"], ["s_add_u32 s38, s38, s39"],
                    [f"s_add_u32 s35, s38, {F_OB}"], flag_store(35, 20, "fOB")]
        if c == ob_start - 2:
            oth += [[f"s_add_u32 s47, s29, {F_OB}"], [(f"buffer_load_dword v21, v16, {WS}, s47 offen sc1", "pOB")]]
        if c == o.get("cpf2", 11) or (o.get("cpfn") and c % o["cpfn"] == 2):
            oth += [[(f"buffer_load_dword v{vPFd}, v{vT[7]}, s[{sCode}:{sCode+3}], 0 offen", "cpf")]]
        nslots = 4*7 - 1 - (c == 0)
        if c >= ob_start:
            for _ in range(min(len(obl), o.get("ob_per", 8))):
                i = obl.pop(0)
                oth.append([(f"global_load_dwordx4 {oreg(i)}, v{vL16b if (i & 4) else vL16}, s[{sOg}:{sOg+1}] offset:{(i % 4)*1024} sc1", "obl")])
                if i % 8 == 7:
                    oth += [[f"s_add_u32 s{sOg}, s{sOg}, 8192"], [f"s_addc_u32 s{sOg+1}, s{sOg+1}, 0"]]
        wa0, wa1 = o.get("wam0", 1), o.get("wam1", 3)
        if c in (wa0, wa1):
            oth.insert(0, [(f"global_load_dword v{vPFd}, v25, s[{sPWoA}:{sPWoA+1}] offset:{1024*(c == wa1)}", "wopf")])
        wl = o.get("wol2", 6)
        if wl <= c < wl + 8:
            oth.append([(f"global_load_dword v{vPFd}, v0, s[{sPWoA}:{sPWoA+1}] offset:{((c - wl) & 1)*2048}", "wopf")] + (["v_add_u32 v0, 4096, v0"] if (c - wl) & 1 else []))
        wb0 = 11 if o.get("wbtail", 1) else 13
        if c in (wb0, wb0 + 1) and o.get("wbl2", 0):
            oth.append([(f"global_load_dword v{vPFd}, v15, s[{sPWoB}:{sPWoB+1}] offset:{(c - wb0)*2048}", "wopf")])
        if c == 14 and o.get("wbtail", 1): wob += list(range(24, 32))
        while wob and (len(kvs) + len(oth) + 3 <= nslots or c == 14):
            i_ = wob.pop(0)
            oth += wob_dma(i_, f"wo{i_//8}")
        side = kvs + oth
        while len(side) > nslots:
            for k in range(len(side) - 1):
                if all(isinstance(x, str) and x.startswith("s_") and "m0" not in x for x in side[k]):
                    side[k+1] = side[k] + side[k+1]; side.pop(k); break
            else:
                raise Exception("slots")
        n = len(side)
        nv = sum(isinstance(x, tuple) for g in side for x in g)
        if n < nslots and nv >= o.get("spread", 1):
            sp = [[] for _ in range(nslots)]
            for k, g in enumerate(side): sp[k*nslots//n] = g
            side = sp
        if c == 0:
            poll_check(a, "L_PKV2", 21, 17, 31, "pKV2", mask=2)
        if c == 1:
            poll_check(a, "L_PKV3", 21, 17, 31, "pKV3", mask=0xffff)
            poll_check(a, "L_PH", 22, 18, 33, "pH")
            a(f"s_sub_u32 s38, s{sHalo}, 4096")
            a(f"s_cmp_eq_u32 s{sSeq}, 0")
            a(f"s_cselect_b32 s38, {OOB}, s38")
            a.emit((f"buffer_load_dwordx4 {vr(HK, 4)}, v{vL16}, {WS}, s38 offen sc1", "hl"))
            a.emit((f"buffer_load_dwordx4 {vr(HK+4, 4)}, v{vL16}, {WS}, s38 offen offset:1024 sc1", "hl"))
            a.emit((f"buffer_load_dwordx4 {vr(HV, 4)}, v{vL16}, {WS}, s38 offen offset:2048 sc1", "hl"))
        if c == 2:
            a(f"s_cmp_lg_u32 s{sPASS}, 0")
            a("s_cbranch_scc1 L_LOC0X")
            a(f"s_cmp_eq_u32 s{sSeq}, 0")
            a("s_cbranch_scc0 L_MASKOK")
            for i in range(8): a(f"v_mov_b32 v{vMc+16+i}, {NEGBIG}")
            a("L_MASKOK:")
            for s in a.ob1: a.emit(s)
            st = local_tile(a, pQB[0], pKB[0], pVB[0], HK, HV, 96, 112, 208, 168, 236, 23, 0, "ob0")
            for x in pko(208): a(x)
            a.emit((st[0][0].format("v[208:211]"), "ob0")); a.emit((st[1][0].format("v[212:215]"), "ob0"))
            a("L_LOC0X:")
            a.stamp("loc0")
        if c == ob_start - 1:
            poll_check(a, "L_POB", 21, 16, 47, "pOB")
        tile(a, 4*c + 3, side)
        tile(a, 4*c + 4, side, end_b=[a.wait(["c1b"]), "s_barrier"] if c == 0 else None)
        tile(a, 4*c + 5, side)
        tile(a, 4*c + 6, side, end_b=[a.wait([f"c{c+2}"], lgkm=True) if c + 2 <= 15 else a.wait(["wo0", "obl"], lgkm=True), "s_barrier"])
        assert not side
        if c in (4, 9): a.stamp(f"c{c}")
        if c == 7:
            for _ in range(o.get("idle_att", 0)): a("s_nop 15")
    assert not wob and not obl, (wob, obl)
    r0 = p4_reads(0) + p4_reads(1)
    tile(a, 63, [r0[0:2], r0[2:4], r0[4:6], r0[6:8], r0[8:10], r0[10:13], r0[13:16]])
    a(f"s_add_u32 s36, s{sOst}, {OA_OFF}")
    a(f"s_add_u32 s37, s{sOst}, {OA_OFF + 65536}")
    a(mf32(ar(aO[1], 16), ar(aV[1], 4), vr(P[1], 4), ar(aO[1], 16)))
    a(smf(1))
    a(mf32(ar(aO[1], 16), ar(aV[1]+4, 4), vr(P[1]+4, 4), ar(aO[1], 16)))
    a.stamp("attend")
    F = L()
    F(f"v_accvgpr_read_b32 v19, a{aL[0]}")
    F(f"v_accvgpr_read_b32 v21, a{aL[0]+1}")
    for i in range(16): F(f"v_accvgpr_read_b32 v{S[0]+i}, a{aO[0]+i}")
    F("v_add_f32 v19, v19, v21")
    F(f"v_accvgpr_read_b32 v20, a{aL[1]}")
    F("v_rcp_f32 v23, v19")
    F(f"v_accvgpr_read_b32 v21, a{aL[1]+1}")
    F("v_add_f32 v20, v20, v21")
    for i in range(16): F(f"v_mul_f32 v{S[0]+i}, v{S[0]+i}, v23")
    F += pko(S[0])
    F("v_rcp_f32 v24, v20")
    F((f"buffer_store_dwordx4 {vr(S[0], 4)}, v{vL16}, {WS}, s36 offen sc1", "oa"))
    F((f"buffer_store_dwordx4 {vr(S[0]+4, 4)}, v{vL16}, {WS}, s36 offen offset:1024 sc1", "oa"))
    for i in range(16): F(f"v_accvgpr_read_b32 v{S[1]+i}, a{aO[1]+i}")
    for i in range(16): F(f"v_mul_f32 v{S[1]+i}, v{S[1]+i}, v24")
    F += pko(S[1])
    F(f"s_mov_b32 s36, {f2u(2.0**64)}")
    F((f"buffer_store_dwordx4 {vr(S[1], 4)}, v{vL16}, {WS}, s37 offen sc1", "oa"))
    F((f"buffer_store_dwordx4 {vr(S[1]+4, 4)}, v{vL16}, {WS}, s37 offen offset:1024 sc1", "oa"))
    F("v_mov_b32 v21, 0")
    for q in range(2):
        for j in range(8): F(f"v_dot2_f32_bf16 v{19+q}, v{S[q]+j}, v21, v{19+q}")
    F("s_nop 2")
    F("v_cmp_nge_f32 s[64:65], s36, v19" if not o.get("stamp") else "v_cmp_nge_f32 s[56:57], s36, v19")
    F("v_cmp_nge_f32 vcc, s36, v20")
    F(f"s_lshl_b32 s37, s{sW}, 2")
    F(f"s_add_u32 s37, s37, {XCH}")
    F("v_mov_b32 v22, s37")
    F("s_nop 1")
    F("s_or_b64 vcc, vcc, s[64:65]" if not o.get("stamp") else "s_or_b64 vcc, vcc, s[56:57]")
    if o.get("force_fallback"): F("s_mov_b64 vcc, -1")
    F(f"s_cmp_lg_u64 vcc, 0\ns_cselect_b32 s36, 1, 0\ns_andn2_b32 s36, s36, s{sPASS}")
    F("v_mov_b32 v21, s36")
    F("ds_write_b32 v22, v21")
    F(f"v_mov_b32 v22, {XCH}")
    a.fin = F
    b = Asm()
    b("L_FALLBACK:")
    b(f"s_mov_b32 s{sPASS}, 1")
    b(f"s_mov_b32 s25, {OOB}")
    b(f"s_mov_b32 s26, {OOB}")
    b(f"v_mov_b32 v19, {NEGBIG}")
    b(f"v_mov_b32 v20, {NEGBIG}")
    b(f"s_lshl_b32 s38, s{sHP}, 19")
    b(f"s_lshl_b32 s39, s{sHH}, 14")
    b("s_add_u32 s38, s38, s39")
    b("s_mov_b32 s39, 0")
    b("L_FB:")
    b("s_and_b32 s36, s39, 3")
    b("s_lshl_b32 s36, s36, 12")
    b("s_lshr_b32 s37, s39, 2")
    b("s_lshl_b32 s37, s37, 15")
    b("s_add_u32 s36, s36, s37")
    b("s_add_u32 s36, s36, s38")
    b(f"buffer_load_dwordx4 {ar(aK, 4)}, v{vL16}, {WS}, s36 offen sc1")
    b(f"buffer_load_dwordx4 {ar(aK+4, 4)}, v{vL16}, {WS}, s36 offen offset:1024 sc1")
    b("s_waitcnt vmcnt(0)")
    for q in range(2): b(mf32(vr(S[q], 16), ar(aK, 4), vr(QA[q], 4), 0))
    for q in range(2): b(mf32(vr(S[q], 16), ar(aK+4, 4), vr(QA[q]+4, 4), vr(S[q], 16)))
    b("s_nop 11")
    for q in range(2):
        for i in range(0, 16, 2): b(f"v_max3_f32 v{19+q}, v{19+q}, v{S[q]+i}, v{S[q]+i+1}")
    b("s_add_u32 s39, s39, 1")
    b("s_cmp_lt_u32 s39, 64")
    b("s_cbranch_scc1 L_FB")
    neg_max(b)
    for s in sel_init(23, 24): b(s)
    b(f"s_lshl_b32 s36, s{sT}, 15")
    b(f"s_add_u32 s{sKVg}, s{sKVp}, s36")
    b(f"s_addc_u32 s{sKVg+1}, s{sKVp+1}, 0")
    b(f"s_add_u32 s36, s{sOrow}, {OB_OFF}")
    b(f"s_add_u32 s{sOg}, s54, s36")
    b(f"s_addc_u32 s{sOg+1}, s55, 0")
    b("v_add_u32 v0, -16384, v0")
    b("s_barrier")
    for g in range(2):
        for k_, s in enumerate(kv_dma(0, g, "")):
            b(s[0] if isinstance(s, tuple) else s)
            if k_ == 0: b("s_nop 0")
    b("s_waitcnt vmcnt(0)")
    b("s_barrier")
    b("s_branch L_ATT0")
    a.tail.append(b.text())

def fW4(G, nt, n=4, d=0):
    fs = G % 3
    return vr(32 + fs*16 + nt*4 + d, n) if fs < 2 else ar(nt*4 + d, n)
def p4_lds(g):
    return g*32768 if g < 4 else [131072, 0, 32768, 65536][g - 4]
def p4_reads(G):
    out = []
    base = p4_lds(G // 8)
    for nt in range(4):
        off = base % 65536 + (G % 8)*4096
        out.append(f"ds_read_b64_tr_b16 {fW4(G, nt, 2)}, v{vWo_r[nt]} offset:{off}")
        out.append(f"ds_read_b64_tr_b16 {fW4(G, nt, 2, 2)}, v{vWo_r[nt]} offset:{off+1024}")
    return out
def woa_dma(g, i):
    pos = (g - 4)*8 + i
    return [[f"s_add_u32 s39, s{sWooff}, {pos*65536}", "s_and_b32 s39, s39, 0x1fffff", f"s_add_u32 m0, s{sWv}, {p4_lds(g) + i*4096}"],
            [(f"buffer_load_dwordx4 v{vWo_g}, s[{sWoA}:{sWoA+3}], s39 offen lds", f"wo{g}")]]
def oa_load(i):
    out = [(f"global_load_dwordx4 {oreg(i)}, v{vL16b if (i & 4) else vL16}, s[{sOg}:{sOg+1}] offset:{(i % 4)*1024} sc1", f"oa{i}")]
    return out
def oa_next():
    return [f"s_add_u32 s{sOoff}, s{sOoff}, 8192", f"s_and_b32 s{sOoff}, s{sOoff}, 0xffff",
            f"s_add_u32 s{sOg}, s{sKVg}, s{sOoff}\ns_addc_u32 s{sOg+1}, s{sKVg+1}, 0"]

def phase4(a):
    o = a.opts
    flag_at = o.get("oaflag_gap", 40)
    poll_at = o.get("oapoll_gap", 84)
    chk_at = o.get("oachk_gap", 96)
    side = {}
    def put(k, l): side.setdefault(k, []).extend(l)
    F = list(a.fin)
    if o.get("finfirst", 0):
        n_ = max(i for i, x in enumerate(F) if isinstance(x, tuple)) + 1
        for x in F[:n_]: a.emit(x)
        F = F[n_:]
    k = 0
    while F:
        n_ = 2 if o.get("finfirst", 0) else (6 if len(F) > 5*(23 - k) - 5 else 5)
        put(k, F[:n_]); F = F[n_:]; k += 1
    assert k <= 23, k
    put(37, [f"s_add_u32 s38, s{sOrow}, {OA_OFF}", f"s_add_u32 s{sKVg}, s54, s38\ns_addc_u32 s{sKVg+1}, s55, 0"])
    put(38, [f"s_add_u32 s{sOg}, s{sKVg}, s{sOoff}\ns_addc_u32 s{sOg+1}, s{sKVg+1}, 0"])
    pre = [f"s_lshl_b32 s38, s{sSeq}, 7",
           f"s_lshl_b32 s47, s{sHead}, 2", "s_add_u32 s38, s38, s47", f"s_add_u32 s35, s38, {F_OA}", f"s_add_u32 s47, s29, {F_OA}",
           f"s_lshl_b32 s36, s{sT4}, 9", f"s_lshl_b32 s37, s{sW}, 7", "s_add_u32 s36, s36, s37", f"s_add_u32 s36, s36, {G_OFF}",
           f"v_and_b32 v24, 60, v16",
           (f"buffer_load_dword v{vG2[0]}, v24, {WS}, s36 offen sc1", "gl"), (f"buffer_load_dword v{vG2[1]}, v24, {WS}, s36 offen offset:64 sc1", "gl")]
    put(24, ["ds_read_b128 v[20:23], v22"])
    for i, x in enumerate(pre): put(25 + i//2, [x])
    put(32, ["v_or_b32 v20, v20, v21", "v_or3_b32 v20, v20, v22, v23"])
    put(33, ["v_readfirstlane_b32 s38, v20"])
    put(35, ["s_cmp_lg_u32 s38, 0\ns_cbranch_scc1 L_FALLBACK"])
    assert flag_at > 35
    put(flag_at, [a.wait(["oa"])]); put(flag_at + 1, flag_store(35, 20, "fOA"))
    put(poll_at, [(f"buffer_load_dword v21, v16, {WS}, s47 offen sc1", "pOA")])
    put(130, [f"v_sub_f32 v{vOM[0]}, 1.0, v{vG2[0]}", f"v_sub_f32 v{vOM[1]}, 1.0, v{vG2[1]}"])
    put(131, [f"v_and_b32 v19, 15, v{vLANE}", f"v_lshrrev_b32 v20, 4, v{vLANE}"])
    put(132, ["v_lshlrev_b32 v20, 4, v20", "v_lshl_add_u32 v19, v19, 11, v20"])
    if o.get("ldsout", 1):
        side[131] = []; side[132] = []
        put(200, [f"s_mul_i32 s38, s{sW}, 4608", f"v_and_b32 v20, 15, v{vLANE}"]); put(201, ["s_add_u32 s38, s38, 131072", "v_mul_u32_u24 v20, 144, v20"])
        put(202, [f"v_lshrrev_b32 v21, 4, v{vLANE}", "v_lshl_add_u32 v20, v21, 3, v20"]); put(203, ["v_add_u32 v20, s38, v20", f"v_lshrrev_b32 v22, 3, v{vLANE}"])
        put(204, [f"v_and_b32 v19, 7, v{vLANE}", "v_lshlrev_b32 v19, 4, v19"]); put(205, ["v_mul_u32_u24 v21, 144, v22", "v_add3_u32 v21, v21, v19, s38"])
        put(206, ["v_lshl_add_u32 v19, v22, 11, v19", "v_add_u32 v22, 16384, v19"])
    elif o.get("r128", 0):
        put(133, [f"v_and_b32 v20, 8, v{vLANE}", f"v_mul_u32_u24 v20, {2048 - 8}, v20"])
        put(152, ["v_sub_u32 v19, v19, v20", "v_add_u32 v20, 16384, v19"])
    for i in range(32): put(134 + i//2, [f"v_mul_f32 v{ACC4[0][i//16] + i%16}, v{ACC4[0][i//16] + i%16}, v{vOM[i//16]}"])
    put(248, [f"s_lshl_b32 s36, s{sT4}, 18", f"s_lshl_b32 s37, s{sW}, 16"]); put(249, ["s_add_u32 s36, s36, s37", f"s_lshl_b32 s37, s{sC4}, 7"])
    put(250, ["s_add_u32 s36, s36, s37"]); put(251, ["s_add_u32 s37, s36, 32768"])
    a("s_waitcnt lgkmcnt(0)")
    lat = o.get("p4lat", 20)
    jobs = [] if o.get("wbtail", 1) else [[26, 32*2 + 23 - lat, "wb", i] for i in range(24, 32)]
    for g in range(4, 8):
        e = {4: 0, 5: 26, 6: 57, 7: 89}[g]
        jobs += [[{4: 57, 5: 57, 6: 89, 7: 121}[g] if i == 7 else e, 32*(g - 1) + 23 - lat, "wa", (g, i)] for i in range(8)]
    jobs += [[max(chk_at + 1, 2*i + 2), 128 + 4*(i//2) - lat, "oa", i] for i in range(64)]
    gap = o.get("p4gap", 2.0)
    t = float(o.get('wb_at', 19))
    quiet = range(poll_at - o.get("p4quiet", 4), poll_at + 1)
    while jobs:
        k = int(t)
        av = [j for j in jobs if j[0] <= k]
        if not av or k in quiet:
            t = k + 1; continue
        j = min(av, key=lambda j: j[1])
        jobs.remove(j)
        if j[2] == "wb":
            d = wob_dma(j[3], "wo3"); put(k - 1, d[0] + d[1]); put(k, d[2])
        elif j[2] == "wa":
            d = woa_dma(*j[3]); put(k - 1, d[0]); put(k, d[1])
        else:
            put(k, oa_load(j[3]))
            if j[3] % 8 == 7 and j[3] < 63: put(k + 1, oa_next())
        if k > j[1] + 8: print("p4 late", j, k)
        t += gap
    ds = []
    def lg(tags):
        k_ = max([i for i, t_ in enumerate(ds) if t_ in tags], default=-1)
        return min(len(ds) - 1 - k_, 15)
    for G in range(64):
        br = G // 32
        rd = p4_reads(G + 2) if G + 2 < 64 else []
        mv = []
        if G + 3 < 64:
            dlt = (p4_lds((G + 3)//8)//65536 - p4_lds((G + 2)//8)//65536)*65536
            if dlt: mv = [f"v_add_u32 v{vWo_r[nt]}, {dlt}, v{vWo_r[nt]}" for nt in range(4)]
        order = [(nt, mt) for nt in range(4) for mt in range(2)]
        if G == 62: break
        for j in range(8):
            idx = 4*G + j//2
            nt, mt = order[j]
            d = vr(ACC4[br][mt] + nt*4, 4)
            a(mf16(d, fW4(G, nt), oreg((G % 32)*2 + mt), 0 if G % 32 == 0 else d))
            sd = side.get(idx, [])
            if j % 2 == 0:
                for s in [x for x in sd if isinstance(x, str) and x.startswith("ds_read")]:
                    a(s); ds.append("xr")
                sd = [x for x in sd if not (isinstance(x, str) and x.startswith("ds_read"))]
                now, side[idx] = sd[:len(sd)//2], sd[len(sd)//2:]
            else:
                now = side.pop(idx, [])
            if rd:
                a(rd[j]); ds.append(G + 2)
                if mv and j % 2 == 1: a(mv[j//2])
            for s in now:
                a.emit(s)
                if isinstance(s, str) and s.startswith("ds_write"): ds.append("xw")
            if j % 2 == 1:
                if idx == flag_at + 1: a.stamp("fOA")
                if idx == chk_at:
                    poll_check(a, "L_POA", 21, 16, 47, "pOA")
                    a.stamp("pOA")
        if G == 63: break
        w = ""
        need = []
        if G == 61: continue
        if G + 1 >= 32: need.append(f"oa{((G + 1) % 32)*2 + 1}")
        bar = G % 8 == 5 and G // 8 < 7
        if bar and f"wo{G//8 + 1}" in a.vm: need.append(f"wo{G//8 + 1}")
        if need: w += f" vmcnt({a.vmn(need)})"
        if G + 1 >= 2: w += f" lgkmcnt({lg([G + 1, 'xw'])})"
        if w: a("s_waitcnt" + w)
        if bar: a("s_barrier")
        if G == 31: a.stamp("p4B")
    def epi(mt):
        B_, A_ = ACC4[0][mt], ACC4[1][mt]
        fl = ['', 'sc1', 'nt', 'sc0 sc1', 'sc1 nt'][o.get('outflag', 1)]
        l = [f"v_fma_f32 v{B_+i}, v{A_+i}, v{vG2[mt]}, v{B_+i}" for i in range(16)] + packl(B_)
        if o.get("ldsout", 1):
            return l + [f"ds_write_b64 v20, {vr(B_+2*nt, 2)} offset:{mt*16*144 + 32*nt}" for nt in range(4)]
        l += ["s_nop 0"]
        l += [f"v_permlane32_swap_b32 v{B_+x}, v{B_+y}" for x, y in ((0, 2), (1, 3), (4, 6), (5, 7))]
        l += [f"v_permlane16_swap_b32 v{B_+x}, v{B_+y}" for x, y in ((0, 2), (1, 3), (4, 6), (5, 7))]
        if o.get("r128", 0):
            l += [f"v_mov_b32 v{B_+8+i}, v{B_+i}" for i in range(4)]
            l += [f"v_mov_b32_dpp v{B_+i}, v{B_+4+i} row_ror:8 row_mask:0xf bank_mask:0xc" for i in range(4)]
            l += [f"v_mov_b32_dpp v{B_+4+i}, v{B_+8+i} row_ror:8 row_mask:0xf bank_mask:0x3" for i in range(4)]
            l += [(f"buffer_store_dwordx4 {vr(B_+4*k, 4)}, v{19+k}, s[{sOutD}:{sOutD+3}], s{36+mt} offen {fl}", "out") for k in range(2)]
            return l
        l += [(f"buffer_store_dwordx4 {vr(B_+4*k, 4)}, v19, s[{sOutD}:{sOutD+3}], s{36+mt} offen offset:{64*k} {fl}", "out") for k in range(2)]
        return l
    rest = [x for k_ in sorted(side) for x in side[k_]]
    a(f"s_waitcnt vmcnt({a.vmn(['oa63'])}) lgkmcnt(0)")
    for G in (62, 63):
        for nt in range(4):
            d = vr(ACC4[1][0] + nt*4, 4)
            a(mf16(d, fW4(G, nt), oreg((G % 32)*2), d))
            if rest: a.emit(rest.pop(0))
    assert not rest
    e0 = epi(0)
    for k_, (G, nt) in enumerate([(G, nt) for G in (62, 63) for nt in range(4)]):
        d = vr(ACC4[1][1] + nt*4, 4)
        a(mf16(d, fW4(G, nt), oreg((G % 32)*2 + 1), d))
        if k_ >= 2:
            a(e0.pop(0)); a(e0.pop(0))
        else:
            a("s_nop 1")
    a.stamp("p4A")
    if not o.get("ldsout", 1):
        for x in e0 + epi(1): a.emit(x)
        return
    for x in e0: a.emit(x)
    e1_ = epi(1)
    fl = ['', 'sc1', 'nt', 'sc0 sc1', 'sc1 nt'][o.get('outflag', 1)]
    T = ACC4[1][0]
    def rds(mt): return [f"ds_read_b128 {vr(T + 8*mt + 4*k, 4)}, v21 offset:{(16*mt + 8*k)*144}" for k in range(2)]
    def sts(mt): return [(f"buffer_store_dwordx4 {vr(T + 8*mt + 4*k, 4)}, v{19 if k == 0 else 22}, s[{sOutD}:{sOutD+3}], s{36+mt} offen {fl}", "out") for k in range(2)]
    for x in rds(0): a(x)
    for x in e1_[:24]: a(x)
    a("s_waitcnt lgkmcnt(0)")
    for x in e1_[24:] + rds(1): a(x)
    for x in sts(0): a.emit(x)
    a("s_waitcnt lgkmcnt(0)")
    for x in sts(1): a.emit(x)

def gen(opts):
    a = G(opts); a.tail = []
    setup(a); gemm1(a); e1(a); attention(a); phase4(a)
    if opts.get("diag") is not None:
        a.stamp("end")
        a("s_nop 1")
        a(f"v_readlane_b32 s36, v{vSTAMP}, {32 + opts['diag']}")
        a("s_nop 3")
        a("s_add_u32 s36, s36, 10000")
        if opts.get("diagwg") is not None:
            a(f"s_cmp_lg_u32 s2, {opts['diagwg']}")
            a("s_cbranch_scc1 L_END")
        a("L_DIAG:")
        a("s_memrealtime s[38:39]")
        a("s_waitcnt lgkmcnt(0)")
        a("s_sub_u32 s38, s38, s36")
        a("s_cmp_lt_i32 s38, 0")
        a("s_cbranch_scc1 L_DIAG")
    elif opts.get("dbgstamp"):
        a.stamp("end")
        sel = ["karg", "first", "g7", "g15", "g23", "g31", "loc1", "pKV", "c1", "c9", "attend", "pOA", "p4B", "p4A", "end"]
        a(f"s_cmp_lg_u32 s2, {opts['dbgstamp']-1}")
        a("s_cbranch_scc1 L_DBGX")
        a(f"s_cmp_lg_u32 s{sW}, 0")
        a("s_cbranch_scc1 L_DBGX")
        a(f"v_readlane_b32 s36, v{vSTAMP}, 32")
        for i, nm in enumerate(sel):
            a(f"v_readlane_b32 s37, v{vSTAMP}, {32 + a.names.index(nm)}")
            a("s_nop 3")
            a("s_sub_u32 s37, s37, s36")
            a("v_mov_b32 v2, s37")
            a("v_mov_b32 v3, 0")
            a(f"global_store_dword v3, v2, s[{sPDbg}:{sPDbg+1}] offset:{4*(i+1)}")
        a("L_DBGX:")
    elif opts.get("stamp"):
        a.stamp("end")
        a("s_lshl_b32 s36, s2, 2")
        a(f"s_add_u32 s36, s36, s{sW}")
        a("s_lshl_b32 s36, s36, 8")
        a(f"s_add_u32 s36, s36, {STAMP_OFF}")
        a(f"v_lshlrev_b32 v2, 2, v{vLANE}")
        a(f"buffer_store_dword v{vSTAMP}, v2, {WS}, s36 offen")
    a("s_endpgm")
    for t in a.tail: a(t)
    head = f"""; gated mix of full MHA and dilated sliding-window attention: one fused kernel, 256 co-resident workgroups
; @launch grid=(256,1,1) block=(256,1,1) lds=163840
.amdgcn_target "amdgcn-amd-amdhsa--gfx950"
.text
.globl {KNAME}
.p2align 8
.type {KNAME},@function
{KNAME}:
"""
    tail = f"""L_END:
    s_endpgm
.section .rodata,"a"
.p2align 6
.amdhsa_kernel {KNAME}
  .amdhsa_next_free_vgpr 512
  .amdhsa_next_free_sgpr 102
  .amdhsa_accum_offset 256
  .amdhsa_group_segment_fixed_size 0
  .amdhsa_kernarg_size 80
  .amdhsa_user_sgpr_count 2
  .amdhsa_user_sgpr_kernarg_segment_ptr 1
  .amdhsa_system_sgpr_workgroup_id_x 1
.end_amdhsa_kernel
"""
    gen.names = a.names
    return head + a.text() + tail

if __name__ == "__main__":
    import hazard
    opts = {}
    for kv in sys.argv[2:]:
        k, v = kv.split("="); opts[k] = int(v)
    t = gen(opts)
    open(sys.argv[1], "w").write(t)
    print(len(hazard.check(t)), "hazards", gen.names)
```

```python
import sys, struct, math
from asmlib import *

KNAME = "gated_mix__softmax_full_mha__sliding_local_dilated__prompt_kernel"
def f2u(x): return struct.unpack("<I", struct.pack("<f", x))[0]
KV_OFF   = 0
OA_OFF   = 8 << 20
OB_OFF   = 12 << 20
HALO_OFF = 16 << 20
G_OFF    = 20 << 20
FLAG_OFF = 21 << 20
F_KV, F_H, F_OB, F_OA = FLAG_OFF, FLAG_OFF + 4096, FLAG_OFF + 8192, FLAG_OFF + 12288
STAMP_OFF = 0x8000000
OOB = 0x80000000
CSCALE = f2u(math.log2(math.e) / math.sqrt(32.0))
NEGBIG = f2u(-1e30)
X_SLOT = 16384; W_BASE = 49152; W_SLOT = 24576
KV_LDS = [98304, 131072]
XCH = 163840 - 16
sX, sWA, sWB, sWS = 4, 8, 12, 16
sW, sHP, sT, sRH, sHH = 20, 21, 22, 23, 24
sWoff, sXoff = 25, 26
sXw, sWv = 30, 34
sPF, sPFstr = 44, 46
sNONCE, sCS = 60, 61
sSTAMPI = 68
sPWoA, sPWoB, sPG, sPOut, sPDbg = 70, 72, 74, 76, 78
sKVsrc, sKVbase, sKVt, sKVdst = 80, 81, 82, 27
sPASS, sOst, sSpin = 83, 86, 87
sT4, sC4, sOoff, sWooff, sObase = 88, 89, 90, 91, 92
sHalo, sSeq, sO, sOrow, sHead = 93, 94, 95, 96, 97
sWoA, sWoB, sOutD = 4, 8, 12
sCode = 40
pX, pWA, pWB = 48, 50, 52
vLANE = 1
vXr = [2, 3]; vWr = [[4, 5], [10, 11]]; vWg = [12, 13, 14]; vXg = [15, 16, 17, 18]
vT = [19, 20, 21, 22, 23, 24, 25, 26]
vPF, vPFd, vL16, vSTAMP, vF0 = 27, 28, 29, 30, 31
vMc = 32
ACC0 = 64
def acc(blk, rt): return ACC0 + (blk*2 + rt)*16
QA = [64, 80]; KA = [96, 112]; VA = [128, 144]; QB = [160, 176]; KB = [192, 208]; VB = [224, 240]
NM = [128, 144]; S = [176, 240]; P = [72, 88]
vKV = [6, 7]
vWo_g = 2; vWo_r = [3, 4, 10, 11]; vG2 = [12, 13]; vOM = [14, 8]
vGate, vGrow = 14, 8
HK = 200; HV = 232
def fX(s, rt): return s*32 + rt*4
def fW(s, blk): return s*32 + 8 + blk*4
aK, aV = 0, [8, 16]
aO = [32, 48]; aL = [64, 68]; aONE = 112
aGATE = 80
aX = [0, 16]; aW = [32, 56]; vKS, vKL = 56, 57
aSEL = 72; vIDX = 9
OV = list(range(96, 128, 4)) + list(range(160, 176, 4)) + list(range(192, 240, 4))
def oreg(i): return ar(76 + 4*i, 4) if i < 45 else vr(OV[i - 45], 4)
ACC4 = [[128, 144], [64, 80]]
pKA = [96, 112]; pVA = [104, 120]; pQB = [160, 168]; pKB = [192, 208]; pVB = [224, 216]

def mf32(d, A, B, C): return f"v_mfma_f32_32x32x16_bf16 {d}, {A}, {B}, {C}"
def mf16(d, A, B, C): return f"v_mfma_f32_16x16x32_bf16 {d}, {A}, {B}, {C}"
WS = f"s[{sWS}:{sWS+3}]"

class G(Asm):
    def __init__(self, opts):
        super().__init__()
        self.opts = opts
        self.vm = []
        self.nstamp = 0
        self.names = []
    def emit(self, x):
        if callable(x): x = x()
        if x is None: return
        if isinstance(x, tuple):
            self(x[0]); self.vm.append(x[1])
        else:
            assert not (x.lstrip().startswith(("buffer_", "global_"))), x
            self(x)
    def vmn(self, tags):
        idx = [i for i, t in enumerate(self.vm) if t in tags]
        assert idx, tags
        n = len(self.vm) - 1 - max(idx)
        return min(n, 63)
    def wait(self, tags, lgkm=False):
        return lambda: f"s_waitcnt vmcnt({self.vmn(tags)})" + (" lgkmcnt(0)" if lgkm else "")
    def stamp(self, name):
        j = self.opts.get("jitter")
        if j and name in ("first", "gP", "g31", "loc1", "fKV", "att0", "t01", "c1", "loc0", "c4", "c9", "attend", "fOA", "p4B"):
            self.nj = getattr(self, "nj", 0) + 1
            self(f"s_cselect_b32 s65, 1, 0\ns_lshl2_add_u32 s64, s2, s{sW}\ns_mul_i32 s64, s64, {(self.nj*40503 + j*9973) | 1}\ns_lshr_b32 s64, s64, 7\ns_and_b32 s64, s64, {[7, 3, 15][j % 3]}")
            self(f"s_cmp_lg_u32 s64, 0\ns_cbranch_scc1 L_J{self.nj}\ns_sleep {40 + 25*(self.nj % 4)}\ns_sleep 60\nL_J{self.nj}:\ns_cmp_lg_u32 s65, 0")
        if not self.opts.get("stamp"): return
        if self.opts["stamp"] == 2 and name not in ("start", "g31", "c1", "attend", "end", "gP", "c4"): return
        self.names.append(name)
        a = self
        a("s_memtime s[66:67]")
        a("s_memrealtime s[64:65]")
        a("s_waitcnt lgkmcnt(0)")
        a(f"v_writelane_b32 v{vSTAMP}, s66, {self.nstamp}")
        a(f"v_writelane_b32 v{vSTAMP}, s64, {self.nstamp + 32}")
        self.nstamp += 1
        assert self.nstamp <= 32
    def inter(self, mains, sides):
        for i, m in enumerate(mains):
            if m is not None: self.emit(m)
            for s in sides.get(i, []): self.emit(s)

def srd(a, s, lo, hi, nbytes):
    a(f"s_mov_b32 s{s}, s{lo}")
    a(f"s_and_b32 s{s+1}, s{hi}, 0xffff")
    a(f"s_mov_b32 s{s+2}, {nbytes}")
    a(f"s_mov_b32 s{s+3}, 0x20000")

def pf_round(a):
    return [(f"global_load_dword v{vPFd}, v{vPF}, s[{sPF}:{sPF+1}]", "pf"),
            f"v_add_u32 v{vPF}, s{sPFstr}, v{vPF}"]

class P1:
    def __init__(self, a):
        self.a = a; self.wnext = [0]*6; self.xnext = [0]*4
    def dma(self, piece):
        kind, j, p = piece
        if kind == "W":
            assert self.wnext[p] == j and (p < 3 or self.wnext[p - 3] == j + 1) and (p >= 3 or self.wnext[p + 3] == j)
            self.wnext[p] += 1
            s = pWA if p < 3 else pWB
            return ([f"s_add_u32 m0, s{sWv}, {W_BASE + (j % 4)*W_SLOT + p*4096}"],
                    (f"global_load_lds_dwordx4 v{vWg[p % 3]}, s[{s}:{s+1}] {['', 'sc1', 'sc0', 'sc0 sc1'][self.a.opts.get('dmafl', 0)]}", f"W{j}"),
                    [f"v_add_u32 v{vWg[p % 3]}, 196608, v{vWg[p % 3]}"] if p >= 3 else [])
        assert self.xnext[p] == j
        self.xnext[p] += 1
        return ([f"s_add_u32 m0, s{sXw}, {(j % 3)*X_SLOT + p*1024}"],
                (f"global_load_lds_dwordx4 v{vXg[p]}, s[{pX}:{pX+1}] {['', 'sc1', 'sc0', 'sc0 sc1'][self.a.opts.get('dmafl', 0)]}", f"X{j}"),
                [f"v_add_u32 v{vXg[p]}, 128, v{vXg[p]}"])

def x_reads(xs, u):
    return [f"ds_read_b128 {ar(aX[xs] + mt*4, 4)}, v{vXr[u & 1]} offset:{((u >> 1) % 3)*X_SLOT + mt*2048}" for mt in range(4)]
def w_reads(ws_, u, blks):
    out = []
    sl = u % 4
    for i, blk in enumerate(blks):
        for nt in range(2):
            off = (sl % 2)*W_SLOT + blk*4096
            r = aW[ws_] + (i*2 + nt)*4
            out.append(f"ds_read_b64_tr_b16 {ar(r, 2)}, v{vWr[sl//2][nt]} offset:{off}")
            out.append(f"ds_read_b64_tr_b16 {ar(r + 2, 2)}, v{vWr[sl//2][nt]} offset:{off+512}")
    return out
def g1_mfmas(xs, ws_, blks, mts=(0, 1, 2, 3), first=False):
    out = {}
    for i, blk in enumerate(blks):
        for nt in range(2):
            for mt in mts:
                w, x = ar(aW[ws_] + (i*2 + nt)*4, 4), ar(aX[xs] + mt*4, 4)
                if blk % 3 == 2:
                    d = vr(acc(blk, mt >> 1) + ((mt & 1)*2 + nt)*4, 4); out[(i, nt, mt)] = mf16(d, x, w, 0 if first else d)
                else:
                    d = vr(acc(blk, mt >> 1) + (nt*2 + (mt & 1))*4, 4); out[(i, nt, mt)] = mf16(d, w, x, 0 if first else d)
    return out

def setup(a):
    o = a.opts
    a("L_START:")
    a("s_cmp_ge_u32 s2, 256")
    a("s_cbranch_scc1 L_END")
    if o.get("xorid"): a(f"s_xor_b32 s2, s2, {o['xorid']}")
    if o.get("mulid"): a(f"s_mul_i32 s2, s2, {o['mulid']}\ns_and_b32 s2, s2, 255")
    a.stamp("start")
    a("s_load_dwordx4 s[48:51], s[0:1], 0")
    a("s_load_dwordx2 s[52:53], s[0:1], 32")
    a("s_load_dwordx2 s[54:55], s[0:1], 72")
    a(f"s_load_dwordx2 s[{sPWoA}:{sPWoA+1}], s[0:1], 16")
    a(f"s_load_dwordx4 s[{sPWoB}:{sPWoB+3}], s[0:1], 40")
    a(f"s_load_dwordx4 s[{sPOut}:{sPOut+3}], s[0:1], 56")
    if o.get("cpf0", 1):
        n = o.get('codelines', 20)
        a("s_getpc_b64 s[56:57]")
        a("L_PC0:")
        a("s_lshr_b32 s35, s2, 3")
        a(f"s_mul_i32 s35, s35, {n}")
        a(f"v_min_u32 v2, {n-1}, v0")
        a("v_add_u32 v2, s35, v2")
        a("v_lshlrev_b32 v2, 7, v2")
        a("v_min_u32 v2, L_END - L_PC0, v2")
        a.emit((f"global_load_dword v{vPFd}, v2, s[56:57]", "cpf"))
    a(f"v_lshrrev_b32 v{vT[0]}, 6, v0")
    a(f"v_and_b32 v{vLANE}, 63, v0")
    a("s_and_b32 s37, s2, 3")
    a(f"v_readfirstlane_b32 s{sW}, v{vT[0]}")
    a("s_bfe_u32 s39, s2, 0x10002")
    a("s_lshr_b32 s35, s2, 3")
    a("s_and_b32 s38, s35, 3")
    a(f"s_lshl2_add_u32 s{sHP}, s37, s38")
    a("s_lshr_b32 s38, s35, 2")
    a(f"s_lshl3_add_u32 s{sT}, s39, s38")
    a(f"s_and_b32 s{sRH}, s{sW}, 1")
    r, c, t0, t1 = vT[0], vT[1], vT[2], vT[3]
    a("s_lshl_b32 s38, s37, 5")
    a("s_add_u32 s38, s38, s35")
    a("s_lshl_b32 s38, s38, 14")
    a("s_lshl_b32 s47, s39, 21")
    a("s_add_u32 s38, s38, s47")
    a("s_lshl_b32 s39, s39, 5")
    a("s_add_u32 s39, s39, s35")
    a("s_mul_i32 s39, s39, 6144")
    a("s_lshl_b32 s47, s37, 9")
    a("s_add_u32 s39, s39, s47")
    a(f"s_mov_b32 s{sPFstr}, {64*6144}")
    a(f"s_cmp_eq_u32 s{sW}, 0")
    a("s_cselect_b32 s39, s38, s39")
    a(f"s_cselect_b32 s{sPFstr}, 128, s{sPFstr}")
    a("s_cselect_b32 s38, 7, 11")
    a("s_cselect_b32 s47, 0, 2")
    a("s_cselect_b32 s36, 0, 3")
    a(f"s_cmp_eq_u32 s{sW}, 3")
    a(f"s_cselect_b32 s{sPFstr}, 0, s{sPFstr}")
    a("s_cselect_b32 s38, 0, s38")
    a(f"v_min_u32 v{t0}, s38, v{vLANE}")
    a(f"v_and_b32 v{t1}, s36, v{t0}")
    a(f"v_lshrrev_b32 v{t0}, s47, v{t0}")
    a(f"v_lshlrev_b32 v{t1}, 7, v{t1}")
    a(f"v_lshl_add_u32 v{t0}, v{t0}, 11, v{t1}")
    a(f"v_add_u32 v{vPF}, s39, v{t0}")
    a(f"v_lshrrev_b32 v{r}, 3, v{vLANE}")
    a(f"v_and_b32 v{c}, 7, v{vLANE}")
    a(f"v_lshrrev_b32 v{t0}, 1, v{r}")
    a(f"v_xor_b32 v{t0}, v{t0}, v{c}")
    a(f"v_lshlrev_b32 v{t1}, 11, v{r}")
    a(f"v_lshl_add_u32 v{t0}, v{t0}, 4, v{t1}")
    a(f"s_lshl2_add_u32 s36, s{sT}, s{sW}")
    a("s_lshl_b32 s36, s36, 16")
    a(f"v_add_u32 v{vXg[0]}, s36, v{t0}")
    a(f"v_xor_b32 v{vXg[1]}, 64, v{vXg[0]}")
    a(f"v_add_u32 v{vXg[1]}, {8*2048}, v{vXg[1]}")
    a(f"v_add_u32 v{vXg[2]}, {16*2048}, v{vXg[0]}")
    a(f"v_add_u32 v{vXg[3]}, {16*2048}, v{vXg[1]}")
    a(f"s_lshl_b32 s{sXw}, s{sW}, 12")
    a("s_waitcnt lgkmcnt(0)")
    a.stamp("karg")
    a(f"s_cmp_eq_u32 s{sW}, 0")
    a(f"s_cselect_b64 s[{sPF}:{sPF+1}], s[{pX}:{pX+1}], s[{pWA}:{pWA+1}]")
    a(f"s_cmp_eq_u32 s{sW}, 2")
    a(f"s_cselect_b64 s[{sPF}:{sPF+1}], s[{pWB}:{pWB+1}], s[{sPF}:{sPF+1}]")
    for i in range(o.get("pf0", 2)):
        for s in pf_round(a): a.emit(s)
    a.wsetup = [f"v_and_b32 v{t0}, 2, v{r}", f"s_lshl_b32 s36, s{sRH}, 2", f"v_xor_b32 v{t0}, v{t0}, v{c}", f"v_xor_b32 v{t0}, s36, v{t0}",
                f"v_mul_u32_u24 v{t1}, 6144, v{r}", f"v_lshl_add_u32 v{t0}, v{t0}, 4, v{t1}", f"s_mul_i32 s36, s{sW}, {8*6144}",
                f"s_lshl_b32 s37, s{sHP}, 7", "s_add_u32 s36, s36, s37", f"v_add_u32 v{vWg[0]}, s36, v{t0}",
                f"v_add_u32 v{vWg[1]}, 2048, v{vWg[0]}", f"v_add_u32 v{vWg[2]}, 4096, v{vWg[0]}", f"s_lshl_b32 s{sWv}, s{sW}, 10",
                f"s_lshr_b32 s{sHH}, s{sW}, 1"]

def fillers_prologue(a):
    L = []
    f = L.append
    f("s_mov_b32 s16, s54"); f("s_and_b32 s17, s55, 0xffff"); f("s_mov_b32 s18, 0x10000000"); f("s_mov_b32 s19, 0x20000")
    f(f"s_mov_b32 s{sCode}, s56"); f(f"s_and_b32 s{sCode+1}, s57, 0xffff"); f(f"s_mov_b32 s{sCode+2}, L_END - L_PC0"); f(f"s_mov_b32 s{sCode+3}, 0x20000")
    f(f"s_mov_b32 s{sX}, s{pX}"); f(f"s_and_b32 s{sX+1}, s{pX+1}, 0xffff"); f(f"s_mov_b32 s{sX+2}, {2048*1024*2}"); f(f"s_mov_b32 s{sX+3}, 0x20000")
    n = a.opts.get('codelines', 20)
    f(f"s_mul_i32 s47, s35, {n}"); f(f"v_min_u32 v{vT[7]}, {n-1}, v{vLANE}"); f(f"v_add_u32 v{vT[7]}, s47, v{vT[7]}"); f(f"v_lshlrev_b32 v{vT[7]}, 7, v{vT[7]}")
    m, g_, t0, t1, row = vT[0], vT[1], vT[2], vT[3], vT[4]
    f(f"v_and_b32 v{m}, 15, v{vLANE}")
    f(f"v_lshrrev_b32 v{g_}, 4, v{vLANE}")
    f(f"v_lshrrev_b32 v{t0}, 1, v{m}")
    f(f"v_xor_b32 v{t0}, v{t0}, v{g_}")
    f(f"v_lshlrev_b32 v{t0}, 4, v{t0}")
    f(f"v_lshl_add_u32 v{t0}, v{m}, 7, v{t0}")
    f(f"s_lshl_b32 s36, s{sRH}, 13")
    f(f"v_add_u32 v{vXr[0]}, s36, v{t0}")
    f(f"v_xor_b32 v{vXr[1]}, 64, v{vXr[0]}")
    f(f"v_lshrrev_b32 v{t0}, 2, v{m}")
    f(f"v_lshl_add_u32 v{row}, v{g_}, 3, v{t0}")
    f(f"v_lshrrev_b32 v{t0}, 3, v{m}")
    f(f"v_and_b32 v{t1}, 1, v{g_}")
    f(f"v_lshl_or_b32 v{t0}, v{t1}, 1, v{t0}")
    f(f"s_lshl_b32 s36, s{sHH}, 1")
    f(f"v_xor_b32 v{t0}, s36, v{t0}")
    f(f"v_lshlrev_b32 v{t0}, 5, v{t0}")
    f(f"v_lshl_add_u32 v{t0}, v{row}, 7, v{t0}")
    f(f"v_and_b32 v{t1}, 3, v{m}")
    f(f"v_lshl_add_u32 v{t0}, v{t1}, 3, v{t0}")
    f(f"v_add_u32 v{vWr[0][0]}, {W_BASE}, v{t0}")
    f(f"v_xor_b32 v{vWr[0][1]}, 32, v{vWr[0][0]}")
    f(f"v_add_u32 v{vWr[1][0]}, {2*W_SLOT}, v{vWr[0][0]}")
    f(f"v_add_u32 v{vWr[1][1]}, {2*W_SLOT}, v{vWr[0][1]}")
    if a.opts.get("zinit"):
        for r in range(ACC0, 256):
            f(f"v_mov_b32 v{r}, 0")
    return L

def fillers_late(a):
    L = []
    f = L.append
    q, b, t = vT[0], vT[1], vT[2]
    f(f"v_lshlrev_b32 v{vL16}, 4, v{vLANE}")
    f(f"v_and_b32 v{q}, 31, v{vLANE}")
    f(f"v_lshrrev_b32 v{b}, 5, v{vLANE}")
    f(f"v_lshlrev_b32 v{b}, 2, v{b}")
    f(f"v_sub_u32 v{b}, v{q}, v{b}")
    f(f"v_add_u32 v{b}, 18, v{b}")
    f("v_mov_b32 v58, 0x5555"); f("v_mov_b32 v59, 0")
    f(f"v_lshlrev_b64 v[58:59], v{b}, v[58:59]")
    f("v_not_b32 v58, v58"); f("v_not_b32 v59, v59")
    f(f"s_mov_b32 s36, {NEGBIG}")
    for i in range(24):
        r, src = (i, 59) if i < 16 else (i - 8, 58)
        f(f"v_bfe_i32 v{vMc + i}, v{src}, {8*(r >> 2) + (r & 3)}, 1")
        f(f"v_and_b32 v{vMc + i}, s36, v{vMc + i}")
    f(f"v_lshrrev_b32 v{q}, 2, v{vLANE}")
    f(f"v_lshrrev_b32 v{t}, 4, v{vLANE}")
    f(f"v_xor_b32 v{q}, v{q}, v{t}")
    f(f"v_and_b32 v{q}, 1, v{q}")
    f(f"v_add_u32 v{q}, -1, v{q}")
    f(f"v_and_b32 v{q}, 0x3f803f80, v{q}")
    for i in range(4):
        f(f"v_accvgpr_write_b32 a{aONE+i}, v{q}")
    f(f"v_lshrrev_b32 v{q}, 1, v{vLANE}"); f(f"v_xor_b32 v{q}, v{q}, v{vLANE}"); f(f"v_and_b32 v{q}, 4, v{q}")
    f(f"v_lshl_or_b32 v{q}, v{q}, 1, v{q}"); f(f"v_xor_b32 v{q}, v{q}, v{vLANE}"); f(f"v_lshlrev_b32 v{vKS}, 4, v{q}")
    f(f"v_min_u32 v{vF0}, 1, v{vLANE}")
    f(f"v_lshlrev_b32 v{vF0}, 31, v{vF0}")
    f(f"s_mov_b32 s{sCS}, {CSCALE}"); f(f"s_mov_b32 s62, {CSCALE}"); f(f"s_mov_b32 s63, {CSCALE}")
    f(f"s_lshl_b32 s36, s{sHP}, 19")
    f(f"s_lshl_b32 s37, s{sW}, 13")
    f(f"s_lshl_b32 s38, s{sHH}, 14")
    f(f"s_lshl_b32 s39, s{sRH}, 13")
    f(f"s_add_u32 s{sKVdst}, s38, s39")
    f(f"s_add_u32 s{sKVbase}, s36, s{sKVdst}")
    f(f"s_lshl_b32 s{sKVt}, s{sT}, 15")
    f(f"s_add_u32 s{sKVsrc}, s{sKVbase}, s{sKVt}")
    f(f"s_and_b32 s{sKVt}, s{sT}, 7"); f(f"s_and_b32 s{sKVb}, s{sT}, 8")
    f(f"s_add_u32 s36, s38, {KV_LDS[0]}")
    f(f"v_add_u32 v{vKV[0]}, s36, v{vL16}")
    f(f"v_add_u32 v{vKV[1]}, 32768, v{vKV[0]}")
    f(f"s_lshl_b32 s{sHead}, s{sHP}, 1")
    f(f"s_add_u32 s{sHead}, s{sHead}, s{sHH}")
    f(f"s_lshl_b32 s{sSeq}, s{sT}, 1")
    f(f"s_add_u32 s{sSeq}, s{sSeq}, s{sRH}")
    f(f"s_lshl_b32 s37, s{sSeq}, 6")
    f(f"s_add_u32 s37, s37, s{sHead}")
    f(f"s_lshl_b32 s{sOst}, s37, 11")
    f(f"s_lshl_b32 s38, s{sHead}, 5")
    f(f"s_add_u32 s38, s38, s{sSeq}")
    f(f"s_lshl_b32 s28, s38, 2")
    f(f"s_lshl_b32 s38, s38, 12")
    f(f"s_add_u32 s{sHalo}, s38, {HALO_OFF}")
    f(f"s_mov_b32 s{sPASS}, 0")
    f(f"s_add_u32 s{sKVp}, s54, s{sKVbase}\ns_addc_u32 s{sKVp+1}, s55, 0")
    f("s_lshl_b32 s36, s2, 2"); f(f"s_add_u32 s36, s36, s{sW}"); f("s_lshl_b32 s36, s36, 11")
    f(f"v_and_b32 v24, 15, v{vLANE}"); f("v_lshlrev_b32 v24, 7, v24"); f("v_add_u32 v60, s36, v24")
    f("s_lshr_b32 s36, s2, 3"); f("s_lshl_b32 s36, s36, 2"); f(f"s_add_u32 s36, s36, s{sW}"); f("s_lshl_b32 s36, s36, 14")
    f("v_add_u32 v0, s36, v24")
    f(f"s_lshl_b32 s36, s{sSeq}, 6")
    f(f"s_lshl_b32 s37, s{sHead}, 1")
    f("s_add_u32 s36, s36, s37")
    f(f"v_lshrrev_b32 v9, 5, v{vLANE}")
    f(f"v_add_u32 v{vGrow}, s36, v9")
    f(f"v_and_b32 v25, 31, v{vLANE}")
    f("v_lshlrev_b32 v25, 4, v25")
    f(f"v_lshl_add_u32 v9, v{vGrow}, 11, v25")
    f(f"s_mov_b32 s56, s{sPG}"); f(f"s_and_b32 s57, s{sPG+1}, 0xffff"); f("s_mov_b32 s58, 2048"); f("s_mov_b32 s59, 0x20000")
    f(f"s_lshl_b32 s38, s{sHP}, 2"); f(f"s_add_u32 s38, s38, s{sW}"); f("s_lshl_b32 s38, s38, 6")
    f(f"s_add_u32 s31, s38, {F_KV}"); f(f"s_lshl_b32 s38, s{sT}, 2"); f("s_add_u32 s32, s31, s38")
    f(f"s_add_u32 s33, s28, {F_H - 4}"); f(f"s_cmp_eq_u32 s{sSeq}, 0\ns_cselect_b32 s38, 4, 0"); f("s_add_u32 s33, s33, s38")
    return L

def gemm1(a):
    o = a.opts
    p1 = P1(a)
    W = lambda j, ps: [("W", j, p) for p in ps]
    X = lambda v, ps: [("X", v, p) for p in ps]
    pro = X(0, range(4)) + W(0, range(6)) + W(1, range(6))
    sched = {(0,0): X(1, range(4)) + W(2, [0,1]), (0,1): W(2, [2,3,4,5]) + W(3, [0,1]),
             (1,0): W(3, [2,3,4,5]) + W(4, [0,1]), (1,1): X(2, range(4)) + W(4, [2,3]),
             (2,0): W(4, [4,5]) + W(5, [0,1,2,3]), (2,1): W(5, [4,5]) + X(3, range(4)),
             (3,0): W(6, range(6))}
    for u in range(3, 28):
        v, p0 = ((u + 5)//2, 0) if u & 1 else ((u + 4)//2, 2)
        sched[(u, 1)] = W(u + 4, [0,1,2]) + (X(v, [p0]) if v < 16 else [])
        sched[(u + 1, 0)] = W(u + 4, [3,4,5]) + (X(v, [p0 + 1]) if v < 16 else [])
    if o.get("w1late", 0):
        pro = X(0, range(4)) + W(0, range(6))
        sched.update({(0,0): W(1, range(6)), (0,1): X(1, range(4)) + W(2, [0,1]), (1,0): W(2, [2,3,4,5]) + W(3, [0,1]),
                      (1,1): W(3, [2,3,4,5]) + X(2, [0,1]), (2,0): X(2, [2,3]) + W(4, [0,1,2,3]), (2,1): W(4, [4,5]) + W(5, [0,1,2,3]),
                      (3,0): W(5, [4,5]) + X(3, range(4)), (3,1): W(6, range(6)), (4,0): W(7, range(6)),
                      (4,1): W(8, [0,1,2]) + X(4, [0,1,2]), (5,0): W(8, [3,4,5]) + X(4, [3])})
    U0 = o.get("u0", 28)
    if U0 == 28:
        sched[(27, 1)] = W(31, range(6)); del sched[(28, 0)]
    for (u, hf), ps in sched.items():
        done = u - 1 if hf == 0 else u
        for k, j, p in ps:
            if k == "W": assert j < 4 or done >= j - 4, (u, hf, k, j)
            else: assert j < 3 or done >= 2*(j - 3) + 1, (u, hf, k, j)
    npf0 = o.get("pf0", 2)
    pfs = {}
    r = npf0
    for u in range(0, 32):
        while r < 16 and u >= max(0, 2*r - o.get("pfd", 5)) and pfs.get(u, 0) < 1:
            pfs[u] = pfs.get(u, 0) + 1; r += 1
    fil = fillers_prologue(a)
    late = fillers_late(a)
    post_issue = []
    if o.get("latepro", 1) == 1: fil += late; late = []
    if o.get("latepro", 1) == 2: post_issue = late; late = []
    if o.get("latepro", 1) == 3: post_issue = fil[42:] + late; fil = fil[:42]; late = []
    ws_ = a.wsetup
    chunks = [ws_[0:4], ws_[4:8], ws_[8:11], ws_[11:14]]
    per = (len(fil) + len(pro) - 5)//(len(pro) - 4)
    chunks += [fil[i*per:(i+1)*per] for i in range(len(pro) - 4)]
    for pc, chunk in zip(pro, chunks):
        pre, d, post = p1.dma(pc)
        for s in pre: a(s)
        a(chunk[0] if chunk else "s_nop 0")
        a.emit(d)
        for s in post + chunk[1:]: a(s)
    for s in post_issue: a(s)
    a(f"s_or_b32 s36, s2, s{sW}")
    a("s_cmp_lg_u32 s36, 0")
    a("s_cbranch_scc1 L_NONONCE")
    a("s_memrealtime s[36:37]")
    a("v_mov_b32 v20, 0")
    a("s_waitcnt lgkmcnt(0)")
    a("s_or_b32 s36, s36, 1")
    a("v_mov_b32 v19, s36")
    a(f"global_store_dword v20, v19, s[{sPDbg}:{sPDbg+1}] sc1")
    a("L_NONONCE:")
    a.stamp("issued")
    a.emit(a.wait(["X0", "W0"]))
    a("s_barrier")
    a.stamp("first")
    for s in x_reads(0, 0) + w_reads(0, 0, (0, 1, 2)): a(s)
    a("s_waitcnt lgkmcnt(0)")
    def need(u): return [f"W{u}"] + ([f"X{u//2}"] if u % 2 == 0 else [])
    def seq(M, keys=None): return [M[k] for k in (keys or sorted(M))]
    roll = o.get("roll", 0)
    if roll:
        assert U0 == 28 and not late
        raise Exception("rolled loop needs bounds-checked prefetch")
        assert all(pfs.get(u, 0) == pfs.get(u + 12, 0) for u in range(4, 16)), pfs
    def half(u, hf):
        if hf == 0: reads = w_reads(1, u, (3, 4, 5))
        else: reads = x_reads((u + 1) & 1, u + 1) + w_reads(0, u + 1, (0, 1, 2) if u + 1 < U0 else (1, 2))
        sides = {}
        ps = sched.get((u, hf), [])
        lay = o.get("glay", 1)
        if lay == 0 or len(ps) > 4:
            for g, rd in enumerate(reads): sides.setdefault(g, []).append(rd)
            D = ([[13, 16, 19, 22], [12, 14, 16, 18, 20, 22]] if hf == 0 else [[17, 19, 21, 23], [13, 15, 17, 19, 21, 23]])[len(ps) > 4]
            if (u, hf) == (0, 0) and o.get("w1late", 0): D = [1, 3, 5, 7, 9, 11]
            for g, pc in zip(D, ps):
                pre, d, post = p1.dma(pc)
                sides.setdefault(g - 1, []).extend(pre)
                sides.setdefault(g, []).insert(0, d)
                sides[g].extend(post)
        else:
            D = {1: [2, 8, 14, 20], 2: [4, 10, 16, 22], 3: [3, 9, 15, 21], 4: [5, 11, 17, 23]}[lay]
            free = [g for g in range(24) if g not in D[:len(ps)]]
            for g, rd in zip(free, reads): sides.setdefault(g, []).append(rd)
            for g, pc in zip(D, ps):
                pre, d, post = p1.dma(pc)
                sides.setdefault(g - 1, []).extend(pre)
                sides.setdefault(g, []).insert(0, d)
                sides.setdefault(min(g + 1, 23), []).extend(post)
        if hf == 0 and pfs.get(u):
            sides.setdefault(23, []).extend(pf_round(a))
        if u >= 4 and late:
            for g in range(24):
                cur = sides.get(g, [])
                if any(isinstance(x, tuple) or x.startswith("ds_") for x in cur): continue
                room = o.get("lateper", 2) - (1 if cur else 0)
                while late and room > 0:
                    x = late.pop(0); sides.setdefault(g, []).append(x); room -= len(x.split("\n"))
        if roll and (u, hf) in ((15, 0), (27, 0)):
            sides.setdefault(14, []).append("s_sub_u32 s35, s35, 1")
        a.inter(seq(g1_mfmas(u & 1, hf, (0, 1, 2) if hf == 0 else (3, 4, 5), first=(u == 0 and not o.get('zinit')))), sides)
        if roll and (u, hf) in ((15, 0), (27, 0)):
            a("s_cmp_lg_u32 s35, 0")
        if hf == 0:
            a.emit(a.wait(need(u + 1), lgkm=True))
            a("s_barrier")
        elif u + 1 < U0:
            a("s_waitcnt lgkmcnt(0)")
        if hf == 1 and u % 8 == 7 and not roll: a.stamp(f"g{u}")
    halves = [(u, hf) for u in range(U0) for hf in range(2)]
    if not roll:
        for h in halves: half(*h)
    else:
        for h in halves[:7]: half(*h)
        a("s_mov_b32 s35, 2")
        n0 = len(a.lines)
        for h in halves[7:31]: half(*h)
        p1_ = a.lines[n0:]; del a.lines[n0:]
        for h in halves[31:55]: half(*h)
        p2_ = a.lines[n0:]; del a.lines[n0:]
        assert len(p1_) == len(p2_)
        if o.get("galign"): a(f".p2align {o['galign']}")
        a("L_G1:")
        import re
        for x, y in zip(p1_, p2_):
            if x != y:
                mx, my = re.fullmatch(r"\s*s_waitcnt vmcnt\((\d+)\) lgkmcnt\(0\)", x), re.fullmatch(r"\s*s_waitcnt vmcnt\((\d+)\) lgkmcnt\(0\)", y)
                assert mx and my, (x, y)
                x = f"s_waitcnt vmcnt({min(int(mx.group(1)), int(my.group(1)))}) lgkmcnt(0)"
            a(x)
        a("s_cbranch_scc1 L_G1")
        half(27, 1)
    misc = []
    for j in range(8):
        misc.append((f"buffer_load_dwordx4 {ar(aGATE+4*j, 4)}, v9, s[{sX}:{sX+3}], 0 offen offset:{512*j}" if j < 4 else
                     f"buffer_load_dwordx4 {ar(aGATE+4*j, 4)}, v25, s[56:59], 0 offen offset:{512*(j-4)}", "gate"))
    misc = [(f"global_load_dword v21, v19, s[{sPDbg}:{sPDbg+1}] sc1", "nonce"),
            (f"buffer_load_dword v{vPFd}, v{vT[7]}, s[{sCode}:{sCode+3}], 0 offen", "cpf")] + misc
    if o.get("wom", 1): misc.insert(o.get("wompos", 10), (f"global_load_dword v{vPFd}, v60, s[{sPWoB}:{sPWoB+1}]", "wopf"))
    if o.get("wom", 1) > 1: misc.append((f"global_load_dword v{vPFd}, v60, s[{sPWoA}:{sPWoA+1}]", "wopf"))
    xs, ws_ = U0 & 1, 0
    units = [(u, b) for u in range(U0, 31) for b in ((0, 3), (4, 5))] + [(31, (4, 5)), (31, (3, 0))]
    bfirst = o.get("bfirst", 1)
    if bfirst: units = [(u, (4, 5)) for u in range(U0, 32)] + [(u, (3, 0)) for u in range(U0, 32)]
    for u in range(U0, 32):
        if u < 31:
            a.emit(a.wait(need(u + 1), lgkm=True)); a("s_barrier")
        else:
            a("s_waitcnt lgkmcnt(0)")
        reads = x_reads(1 - xs, u + 1) + w_reads(1 - ws_, u + 1, (1, 2)) if u < 31 else x_reads(1 - xs, U0) + w_reads(1 - ws_, *units[0])
        sides = {}
        for i, rd in enumerate(reads): sides.setdefault(i, []).append(rd)
        if u == U0:
            sides.setdefault(0, []).append("v_mov_b32 v19, 0")
            sides.setdefault(1, []).append(f"s_add_u32 s25, s{sKVsrc}, 4096"); sides.setdefault(2, []).append(f"s_mov_b32 s26, s{sKVsrc}")
        for g in ((12, 13, 15) if U0 == 28 else (12, 13, 14, 15)):
            if misc: sides.setdefault(g, []).append(misc.pop(0))
        M = g1_mfmas(xs, ws_, (1, 2))
        a.inter(seq(M, [(i, nt, mt) for rt in range(2) for i in range(2) for nt in range(2) for mt in (2*rt, 2*rt + 1)]), sides)
        xs ^= 1; ws_ ^= 1
    assert not misc
    a.stamp("gP")
    e1_lists(a)
    kvw = pk16(KA[0], pKA[0]) + a.kv.pop(0) + pk16(VA[0], pVA[0]) + pk16(KA[1], pKA[1]) + pk16(VA[1], pVA[1])
    st_units = {28: [1, 2, 3, 4, 5, 6, 7], 29: [1, 2, 3, 4, 5]}[U0]
    for n, (u, blks) in enumerate(units):
        last = n == len(units) - 1
        a("s_waitcnt lgkmcnt(0)")
        if last: a("s_barrier")
        reads = []
        newx = False
        if not last:
            un, bn = units[n + 1]
            newx = un != u
            reads = (x_reads(1 - xs, un) if newx else []) + w_reads(1 - ws_, un, bn)
        sides = {}
        for i, rd in enumerate(reads): sides.setdefault(i, []).append(rd)
        M = g1_mfmas(xs, ws_, blks)
        keys = None
        if bfirst and n == len(units)//2:
            kvw += pk16(KB[1], pKB[1]) + pk16(VB[1], pVB[1], True) + pk16(KB[0], pKB[0]) + pk16(VB[0], pVB[0], True)
        if n >= len(units) - 2 or (bfirst and n == len(units)//2 - 1):
            keys = [(i, nt, mt) for rt in (1, 0) for i in range(2) for nt in range(2) for mt in (2*rt, 2*rt + 1)]
            if last: keys = [(i, nt, mt) for i in range(2) for rt in (1, 0) for nt in range(2) for mt in (2*rt, 2*rt + 1)]
        if last:
            e1_head(a, sides, kvw if bfirst else None); kvw = []
        else:
            for g in range(4 if n == 0 else 0, 16):
                budget = 1 if g < len(reads) else 2
                if n in st_units and g == 15: budget = 0
                while kvw and budget > 0:
                    cost = 2 if (isinstance(kvw[0], tuple) or "permlane" in kvw[0]) else 1
                    if cost > budget and o.get("rstrict", 1): break
                    sides.setdefault(g, []).append(kvw.pop(0))
                    budget -= cost
        if n in st_units:
            st_ = a.kv.pop(0)
            lo = int(st_[0][0].split("v[")[1].split(":")[0])
            assert not any(isinstance(x, str) and any(f"v{lo+i}," in x.split(None, 1)[1].split(", v")[0] + "," or x.endswith(f" v{lo+i}") and "permlane" in x for i in range(4)) for x in kvw), (n, lo)
            sides.setdefault(1 if last else 15, []).extend(st_)
        a.inter(seq(M, keys), sides)
        ws_ ^= 1
        if newx: xs ^= 1
    assert not kvw
    a.stamp("g31")
    assert not late

def packl(base, out=None):
    out = base if out is None else out
    return [f"v_cvt_pk_bf16_f32 v{out+j}, v{base+2*j}, v{base+2*j+1}" for j in range(8)]
def pk16(base, out=None, vb=False):
    out = base if out is None else out
    l = packl(base, out) + [f"v_permlane16_swap_b32 v{out+i}, v{out+i+2}" for i in (0, 1, 4, 5)]
    if vb: l += [f"v_permlane32_swap_b32 v{out+i}, v{out+i+2}" for i in (0, 1, 4, 5)]
    return l
def pko(base, out=None):
    out = base if out is None else out
    return packl(base, out) + ["s_nop 0"] + [f"v_permlane16_swap_b32 v{out+j}, v{out+4+j}" for j in range(4)]
def pack(a, base, out=None):
    for s in packl(base, out): a(s)
class L(list):
    def __call__(self, s): self.append(s)
    def emit(self, s): self.append(s)
def weave(a, work, extra, first, every):
    nxt = first
    for i, w in enumerate(work):
        while extra and i >= nxt:
            for s in extra.pop(0): a.emit(s)
            nxt += every
        a.emit(w)

def padfill(a, fill, n):
    k = 0
    for f in fill:
        a.emit(f); k += len(f.split("\n")) if isinstance(f, str) else 1
    if k < n: a(f"s_nop {n - k - 1}")

def local_tile(a, Q, Kc, Vc, Kp, Vp1, SC, SP, O, PC, PP, tmp, off, tag, fill1=(), fill2=()):
    m, t = tmp, tmp + 1
    a(mf32(vr(SC, 16), vr(Kc, 4), vr(Q, 4), vr(vMc, 16)))
    a(mf32(vr(SC, 16), vr(Kc+4, 4), vr(Q+4, 4), vr(SC, 16)))
    a(mf32(vr(SP, 16), vr(Kp, 4), vr(Q, 4), vr(vMc + 8, 16)))
    a(mf32(vr(SP, 16), vr(Kp+4, 4), vr(Q+4, 4), vr(SP, 16)))
    padfill(a, fill1, 10)
    vals = [SC + i for i in range(16)] + [SP + 8 + i for i in range(8)]
    a(f"v_max3_f32 v{m}, v{vals[0]}, v{vals[1]}, v{vals[2]}")
    for i in range(3, 23, 2):
        a(f"v_max3_f32 v{m}, v{m}, v{vals[i]}, v{vals[i+1]}")
    a(f"v_max_f32 v{m}, v{m}, v{vals[23]}")
    a(f"v_mov_b32 v{t}, v{m}")
    a("s_nop 1")
    a(f"v_permlane32_swap_b32 v{m}, v{t}")
    a(f"v_max_f32 v{m}, v{m}, v{t}")
    a(f"v_mul_f32 v{m}, s{sCS}, v{m}")
    for v in vals:
        a(f"v_fma_f32 v{v}, v{v}, s{sCS}, -v{m}")
    L = SP
    for i in range(10): a(f"v_exp_f32 v{vals[i]}, v{vals[i]}")
    for j in range(4): a(f"v_cvt_pk_bf16_f32 v{PC+j}, v{SC+2*j}, v{SC+2*j+1}")
    for i in range(10, 13): a(f"v_exp_f32 v{vals[i]}, v{vals[i]}")
    a(mf32(vr(O, 16), vr(Vc, 4), vr(PC, 4), 0))
    for i in range(13, 18): a(f"v_exp_f32 v{vals[i]}, v{vals[i]}")
    a(mf16(vr(L, 4), ar(aONE, 4), vr(PC, 4), 0))
    for j in range(4, 8): a(f"v_cvt_pk_bf16_f32 v{PC+j}, v{SC+2*j}, v{SC+2*j+1}")
    for i in range(18, 20): a(f"v_exp_f32 v{vals[i]}, v{vals[i]}")
    a(mf32(vr(O, 16), vr(Vc+4, 4), vr(PC+4, 4), vr(O, 16)))
    for i in range(20, 24): a(f"v_exp_f32 v{vals[i]}, v{vals[i]}")
    a(mf16(vr(L, 4), ar(aONE, 4), vr(PC+4, 4), vr(L, 4)))
    for j in range(4): a(f"v_cvt_pk_bf16_f32 v{PP+j}, v{SP+8+2*j}, v{SP+9+2*j}")
    a("s_nop 1")
    a(mf16(vr(L, 4), ar(aONE, 4), vr(PP, 4), vr(L, 4)))
    a(mf32(vr(O, 16), vr(Vp1, 4), vr(PP, 4), vr(O, 16)))
    padfill(a, fill2, 7)
    a(f"v_rcp_f32 v{m}, v{L}")
    a(f"s_add_u32 s35, s{sOst}, {OB_OFF + off}")
    a("s_nop 2")
    for i in range(16):
        a(f"v_mul_f32 v{O+i}, v{O+i}, v{m}")
    return [(f"buffer_store_dwordx4 {{0}}, v{vL16}, {WS}, s35 offen sc1", tag),
            (f"buffer_store_dwordx4 {{0}}, v{vL16}, {WS}, s35 offen offset:1024 sc1", tag)]

def flag_store(sreg, vtmp, tag):
    return [f"v_mov_b32 v{vtmp}, s{sNONCE}", (f"buffer_store_dword v{vtmp}, v{vF0}, {WS}, s{sreg} offen sc1", tag)]

def poll_check(a, name, vdst, vaddr, sreg, tag, mask=-1):
    a.emit(a.wait([tag]))
    a(f"v_cmp_ne_u32 vcc, s{sNONCE}, v{vdst}")
    a(f"s_and_b32 s{sSpin}, vcc_lo, {mask}")
    a(f"s_cbranch_scc1 {name}_S")
    a(f"{name}_R:")
    a.tail.append(f"""{name}_S:
    s_mov_b32 s{sSpin}, 0
{name}_L:
    buffer_load_dword v{vdst}, v{vaddr}, {WS}, s{sreg} offen sc1
    s_add_u32 s{sSpin}, s{sSpin}, 1
    s_waitcnt vmcnt(0)
    v_cmp_ne_u32 vcc, s{sNONCE}, v{vdst}
    s_cmp_lt_u32 s{sSpin}, 0x40000
    s_cbranch_scc0 {name}_R
    s_nop 2
    s_and_b32 vcc_hi, vcc_lo, {mask}
    s_cbranch_scc1 {name}_L
    s_branch {name}_R""")

def e1_lists(a):
    a.halo = [[(f"buffer_store_dwordx4 {vr(pKB[1], 4)}, v{vL16}, {WS}, s{sHalo} offen sc1", "halo")],
              [(f"buffer_store_dwordx4 {vr(pKB[1]+4, 4)}, v{vL16}, {WS}, s{sHalo} offen offset:1024 sc1", "halo")],
              [(f"buffer_store_dwordx4 {vr(pVB[1]+4, 4)}, v{vL16}, {WS}, s{sHalo} offen offset:2048 sc1", "halo")]]
    a.kv = []; a.dsw = []
    for rt in range(2):
        for (blk, f0) in ((pKA[rt], 0), (pVA[rt], 2)):
            for f in range(2):
                off = (f0 + f)*1024
                a.kv.append([(f"buffer_store_dwordx4 {vr(blk+4*f, 4)}, v{vL16 if f0 else vKS}, {WS}, s{26 if rt == 0 else 25} offen offset:{off} sc1", "kv")])
                a.dsw.append([f"ds_write_b128 v{22 if f0 else vKL}, {vr(blk+4*f, 4)} offset:{rt*4096 + off}"])

def e1_head(a, sides, left):
    w = [f"s_add_u32 s36, s{sKVdst}, {KV_LDS[0]}", f"v_add_u32 v22, s36, v{vL16}", f"v_add_u32 v{vKL}, s36, v{vKS}", f"v_add_u32 v{vL16b}, 4096, v{vL16}"]
    if left is None: w += pk16(KB[1], pKB[1]) + pk16(VB[1], pVB[1], True) + pk16(KB[0], pKB[0]) + pk16(VB[0], pVB[0], True)
    else: w += left + sel_init(23, 24)[:5] + sel_init(23, 24)[13:]
    a.selrest = sel_init(23, 24) if left is None else sel_init(23, 24)[5:13]
    for g in range(16):
        budget = 2
        if g % 2 == 1 and g > 1:
            sides.setdefault(g, []).extend(a.dsw.pop(0)); budget = 0
        while w and budget > 0:
            x = w.pop(0)
            sides.setdefault(g, []).append(x)
            budget -= 2 if "permlane" in x else (0 if x.startswith("s_") else 1)
    a.e1rest = w

def e1(a):
    o = a.opts
    pend = a.kv + a.halo
    a.emit(a.wait(["nonce"]))
    a(f"v_readfirstlane_b32 s{sNONCE}, v21")
    w = a.e1rest + pk16(QB[1], 240) + a.selrest + pk16(QB[0], pQB[0])
    weave(a, w, a.dsw, 2, 8)
    a(f"s_cmp_eq_u32 s{sNONCE}, 0")
    a("s_cbranch_scc1 L_NONCE_S")
    a("L_NONCE_R:")
    a.tail.append(f"""L_NONCE_S:
    s_mov_b32 s{sSpin}, 0
L_NONCE_L:
    global_load_dword v21, v19, s[{sPDbg}:{sPDbg+1}] sc1
    s_add_u32 s{sSpin}, s{sSpin}, 1
    s_waitcnt vmcnt(0)
    v_readfirstlane_b32 s{sNONCE}, v21
    s_cmp_lt_u32 s{sSpin}, 0x40000
    s_cbranch_scc0 L_NONCE_R
    s_nop 2
    s_cmp_eq_u32 s{sNONCE}, 0
    s_cbranch_scc1 L_NONCE_L
    s_branch L_NONCE_R""")
    for s in pend.pop(0): a.emit(s)
    a.stamp("e1pack")
    qa = []
    for q in QA:
        qa += [f"v_pk_mul_f32 {vr(q+2*j, 2)}, {vr(q+2*j, 2)}, s[62:63]" for j in range(8)] + pk16(q)
    lt = L()
    st = local_tile(lt, 240, pKB[1], pVB[1], pKB[0], pVB[0]+4, 128, 144, 176, 168, 248, 252, 65536, "ob1", fill1=qa[:26], fill2=qa[26:])
    lt += pko(176, 56)
    a.ob1 = [(st[0][0].format("v[56:59]"), "ob1"), (st[1][0].format("v[60:63]"), "ob1")]
    weave(a, lt, pend, o.get("st_a", 40), o.get("st_b", 50))
    for g in pend:
        for s in g: a.emit(s)
    a.stamp("loc1")
    a.emit(a.wait(["kv"], lgkm=True))
    for s in flag_store(32, 20, "fKV"): a.emit(s)
    a("s_barrier")
    a.stamp("fKV")

sKVp, sKVg, sOg, sPFW = 84, 98, 100, 52
vL16b = 5
def kv_dma(slot, group, tag):
    out = [f"s_add_u32 m0, s{sKVdst}, {KV_LDS[slot] + group*4096}"]
    for p in range(4):
        out.append((f"global_load_lds_dwordx4 v{vL16b if group else vL16}, s[{sKVg}:{sKVg+1}] offset:{p*1024} sc1", tag))
    return out
sKVb, sKVd = 3, 34
def kv_advance(c):
    if c <= 7:
        return [f"s_cmp_le_u32 s{sKVt}, {c-1}", f"s_addc_u32 s36, s{sKVb}, {c-1}", "s_lshl_b32 s36, s36, 15",
                f"s_add_u32 s{sKVg}, s{sKVp}, s36", f"s_addc_u32 s{sKVg+1}, s{sKVp+1}, 0"]
    return [f"s_add_u32 s36, s{sKVb}, {c}", "s_and_b32 s36, s36, 15", "s_lshl_b32 s36, s36, 15",
            f"s_add_u32 s{sKVg}, s{sKVp}, s36", f"s_addc_u32 s{sKVg+1}, s{sKVp+1}, 0"]

def sel_init(t0, t1):
    return [f"v_lshrrev_b32 v{t0}, 1, v{vLANE}", f"v_and_b32 v{t0}, 3, v{t0}", f"v_min_u32 v{t1}, 1, v{t0}", f"v_add_u32 v{t1}, -1, v{t1}",
            f"v_and_b32 v{t1}, 0x3f803f80, v{t1}", f"v_accvgpr_write_b32 a{aSEL}, v{t1}", f"v_accvgpr_write_b32 a{aSEL+1}, v{t1}",
            f"v_xor_b32 v{t0}, 2, v{t0}", f"v_min_u32 v{t1}, 1, v{t0}", f"v_add_u32 v{t1}, -1, v{t1}",
            f"v_and_b32 v{t1}, 0x3f803f80, v{t1}", f"v_accvgpr_write_b32 a{aSEL+2}, v{t1}", f"v_accvgpr_write_b32 a{aSEL+3}, v{t1}",
            f"v_and_b32 v{vIDX}, 1, v{vLANE}", f"v_mul_u32_u24 v{vIDX}, 0xaaaa, v{vIDX}", f"v_add_u32 v{vIDX}, 0x4444, v{vIDX}"]
def smf(q): return f"v_smfmac_f32_16x16x64_bf16 {ar(aL[q], 4)}, {ar(aSEL, 4)}, {vr(P[q], 8)}, v{vIDX}"

def H(a, q, vpar, qk=True, pv=True, pv_first=False, slots=None):
    slots = slots or {}
    o = 1 - q
    e = [f"v_exp_f32 v{S[q]+i}, v{S[q]+i}" for i in range(16)]
    c = [f"v_cvt_pk_bf16_f32 v{P[q]+j}, v{S[q]+2*j}, v{S[q]+2*j+1}" for j in range(8)]
    So, Oo = vr(S[o], 16), ar(aO[o], 16)
    M = [mf32(So, ar(aK, 4), vr(QA[o], 4), vr(NM[o], 16)) if qk else None,
         mf32(So, ar(aK+4, 4), vr(QA[o]+4, 4), So) if qk else None,
         mf32(Oo, ar(aV[vpar], 4), vr(P[o], 4), 0 if pv_first else Oo) if pv else None,
         mf32(Oo, ar(aV[vpar]+4, 4), vr(P[o]+4, 4), Oo) if pv else None,
         smf(o) if pv else None, None]
    V = [[e[0], e[1], e[2]], [e[3], c[0], c[1], e[4]], [e[5], e[6], e[7]], [c[2], c[3], e[8], e[9], e[10], e[11], c[4], c[5]],
         [], [e[12], e[13], e[14], e[15], c[6], c[7]]]
    if not pv: V[3] = ["s_nop 0"] + V[3]
    for i in range(6):
        if M[i]: a(M[i])
        for s in slots.get(i, []): a.emit(s)
        for s in V[i]: a(s)

def rdK(slot, off): return [f"ds_read_b128 {ar(aK, 4)}, v{vKV[slot]} offset:{off}", f"ds_read_b128 {ar(aK+4, 4)}, v{vKV[slot]} offset:{off+1024}"]
def rdV(par, slot, off): return [f"ds_read_b128 {ar(aV[par], 4)}, v{vKV[slot]} offset:{off+2048}", f"ds_read_b128 {ar(aV[par]+4, 4)}, v{vKV[slot]} offset:{off+3072}"]

FREE_A = [0, 3, 4]; FREE_B = [2, 3, 4, 5]
TORD = [0, 2, 1, 3]
def tile(a, n, side=None, end_b=None):
    sa = {}; sb = {}
    if n < 63:
        m = n + 1
        k = rdK((m >> 2) & 1, TORD[m & 3]*4096); v = rdV(m & 1, (m >> 2) & 1, TORD[m & 3]*4096)
        sa[1] = [k[0]]; sa[2] = [k[1]]; sa[5] = ["s_waitcnt lgkmcnt(0)"]
        sb[0] = [v[0]]; sb[1] = [v[1]]
    if side is not None:
        for g in FREE_A:
            if side: sa.setdefault(g, []).extend(side.pop(0))
        for g in (FREE_B if end_b is None else FREE_B[:-1]):
            if side: sb.setdefault(g, []).extend(side.pop(0))
        if sb.get(4) and sb.get(5) and isinstance(sb[4][-1], str) and " m0," in sb[4][-1] and isinstance(sb[5][0], tuple):
            if not sb.get(3): sb[3] = sb.pop(4)
            elif len(sb[3]) == 1 and isinstance(sb[3][0], str) and " m0," not in sb[3][0] and not sb[3][0].startswith(("s_cmp", "s_addc", "s_add_u32 s9", "s_add_u32 s10")):
                sb[3], sb[4] = sb[4], sb[3]
            else: sb[4] = sb[4] + ["s_nop 0"]
    if end_b: sb.setdefault(5, []).extend(end_b)
    H(a, 0, (n - 1) & 1, pv=(n != 0), pv_first=(n == 1), slots=sa)
    H(a, 1, n & 1, qk=(n < 63), pv_first=(n == 0), slots=sb)

def neg_max(a):
    for q in range(2): a(f"v_mov_b32 v{21+q}, v{19+q}")
    a("s_nop 0")
    for q in range(2): a(f"v_permlane32_swap_b32 v{19+q}, v{21+q}")
    for q in range(2): a(f"v_max_f32 v{19+q}, v{19+q}, v{21+q}")
    for q in range(2):
        for i in range(16): a(f"v_sub_f32 v{NM[q]+i}, 0, v{19+q}")

def gate_compute(a):
    z, t = 23, 24
    for i in range(16):
        a(f"v_accvgpr_read_b32 v{96+(i%4)}, a{aGATE+i}")
        a(f"v_accvgpr_read_b32 v{100+(i%4)}, a{aGATE+16+i}")
        a(f"v_dot2_f32_bf16 v{z}, v{96+(i%4)}, v{100+(i%4)}, {0 if i == 0 else 'v%d' % z}")
    a("s_nop 2")
    for sh in (8, 4, 2, 1):
        a(f"v_add_f32_dpp v{z}, v{z}, v{z} row_ror:{sh} row_mask:0xf bank_mask:0xf")
        a("s_nop 1")
    a(f"v_mov_b32 v{t}, v{z}")
    a("s_nop 1")
    a(f"v_permlane16_swap_b32 v{z}, v{t}")
    a(f"v_add_f32 v{z}, v{z}, v{t}")
    a(f"v_mul_f32 v{z}, {f2u(-math.log2(math.e))}, v{z}")
    a(f"v_exp_f32 v{z}, v{z}")
    a(f"v_and_b32 v{t}, 31, v{vLANE}")
    a(f"v_add_f32 v{z}, 1.0, v{z}")
    a(f"v_rcp_f32 v{z}, v{z}")
    a(f"v_min_u32 v{t}, 1, v{t}")
    a(f"v_lshlrev_b32 v{t}, 31, v{t}")
    a(f"v_lshl_or_b32 v{t}, v{vGrow}, 2, v{t}")
    a(f"s_mov_b32 s36, {G_OFF}")
    a.emit((f"buffer_store_dword v{z}, v{t}, {WS}, s36 offen sc1", "g"))

def p4_setup(a):
    srd(a, sWoA, sPWoA, sPWoA+1, 1024*1024*2)
    srd(a, sWoB, sPWoB, sPWoB+1, 1024*1024*2)
    srd(a, sOutD, sPOut, sPOut+1, 2048*1024*2)
    a("s_and_b32 s36, s2, 7")
    a("s_lshr_b32 s37, s2, 3")
    a(f"s_and_b32 s{sC4}, s37, 15")
    a("s_lshr_b32 s37, s37, 4")
    a("s_lshl_b32 s36, s36, 1")
    a(f"s_add_u32 s{sT4}, s36, s37")
    r, c, t0, t1 = 200, 201, 202, 203
    a(f"v_lshrrev_b32 v{r}, 3, v{vLANE}")
    a(f"v_and_b32 v{c}, 7, v{vLANE}")
    a(f"v_and_b32 v{t0}, 2, v{r}")
    a(f"s_lshl_b32 s36, s{sHH}, 2")
    a(f"v_xor_b32 v{t0}, v{t0}, v{c}")
    a(f"v_xor_b32 v{t0}, s36, v{t0}")
    a(f"v_lshlrev_b32 v{t0}, 4, v{t0}")
    a(f"v_lshl_add_u32 v{t0}, v{r}, 11, v{t0}")
    a(f"s_lshl_b32 s36, s{sW}, 14")
    a(f"s_lshl_b32 s37, s{sC4}, 7")
    a("s_add_u32 s36, s36, s37")
    a(f"v_add_u32 v{vWo_g}, s36, v{t0}")
    a(f"v_and_b32 v{r}, 15, v{vLANE}")
    a(f"v_lshrrev_b32 v{t0}, 2, v{r}")
    a(f"v_lshrrev_b32 v{t1}, 5, v{vLANE}")
    a(f"v_lshl_add_u32 v{c}, v{t1}, 2, v{t0}")
    a(f"v_and_b32 v{t1}, 16, v{vLANE}")
    a(f"v_add_u32 v{c}, v{c}, v{t1}")
    a(f"v_lshlrev_b32 v{t1}, 2, v{t1}")
    a(f"v_and_b32 v{t0}, 8, v{r}")
    a(f"v_lshl_add_u32 v{t0}, v{t0}, 2, v{t1}")
    a(f"v_lshl_add_u32 v{t0}, v{c}, 7, v{t0}")
    a(f"v_and_b32 v{t1}, 3, v{r}")
    a(f"v_lshl_add_u32 v{vWo_r[0]}, v{t1}, 3, v{t0}")
    for nt in range(1, 4):
        a(f"v_xor_b32 v{vWo_r[nt]}, {32*nt}, v{vWo_r[0]}")
    a(f"s_lshl_b32 s36, s{sT4}, 2")
    a(f"s_add_u32 s36, s36, s{sW}")
    a(f"s_lshl_b32 s{sOrow}, s36, 16")
    a(f"s_lshr_b32 s36, s36, 1")
    a(f"s_lshl_b32 s29, s36, 7")
    a(f"s_lshr_b32 s36, s{sC4}, 1")
    a(f"s_lshl_b32 s{sOoff}, s36, 13")
    a(f"s_lshl_b32 s{sWooff}, s36, 18")
    a(f"v_and_b32 v16, 31, v{vLANE}")
    a("v_lshlrev_b32 v16, 2, v16")
    a(f"v_and_b32 v17, 15, v{vLANE}")
    a(f"v_cmp_le_u32 vcc, s{sKVt}, v17")
    a(f"v_add_u32 v17, s{sKVb}, v17")
    a("s_nop 0")
    a("v_addc_co_u32 v17, vcc, 0, v17, vcc")
    a("v_and_b32 v17, 15, v17")
    a("v_lshlrev_b32 v17, 2, v17")
    a("s_lshl_b32 s36, s2, 2")
    a(f"s_add_u32 s36, s36, s{sW}")
    a("s_lshl_b32 s36, s36, 11")
    a(f"v_and_b32 v25, 7, v{vLANE}")
    a("v_lshlrev_b32 v25, 7, v25")
    a("v_add_u32 v25, s36, v25")
    a("s_lshr_b32 s36, s2, 3")
    a("s_lshl_b32 s36, s36, 2")
    a(f"s_add_u32 s36, s36, s{sW}")
    a("s_lshl_b32 s36, s36, 12")
    a(f"s_add_u32 s36, s36, {24*65536}")
    a(f"v_and_b32 v15, 15, v{vLANE}")
    a("v_lshlrev_b32 v15, 7, v15")
    a("v_add_u32 v15, s36, v15")
    a(f"s_add_u32 s36, s{sOrow}, {OB_OFF}")
    a(f"s_add_u32 s{sOg}, s54, s36")
    a(f"s_addc_u32 s{sOg+1}, s55, 0")

def wob_dma(i, tag):
    return [[f"s_mov_b32 s39, {i*65536}"], [f"s_add_u32 m0, s{sWv}, {i*4096}"],
            [(f"buffer_load_dwordx4 v{vWo_g}, s[{sWoB}:{sWoB+3}], s39 offen lds", tag)]]

def attention(a):
    o = a.opts
    a("L_ATT0:")
    for s in rdK(0, 0) + rdV(0, 0, 0): a(s)
    for s in kv_advance(1): a(s)
    for q in range(2):
        for i in range(4): a(f"v_accvgpr_write_b32 a{aL[q]+i}, 0")
    a(f"s_cmp_lg_u32 s{sPASS}, 0")
    a("s_cbranch_scc1 L_ATT1")
    ps = L(); p4_setup(ps)
    ps_s = [x for x in ps if x.startswith("s_") and "s4," not in x.split()[1] and not any(x.split()[1].startswith(f"s{i},") for i in (4, 5, 6, 7))]
    ps_x = []
    rest = [x for x in ps if x not in ps_x]
    n1 = 22
    for s in rest[:n1]: a(s)
    a("s_waitcnt lgkmcnt(0)")
    for q in range(2): a(mf32(vr(S[q], 16), ar(aK, 4), vr(QA[q], 4), 0))
    for q in range(2): a(mf32(vr(S[q], 16), ar(aK+4, 4), vr(QA[q]+4, 4), vr(S[q], 16)))
    padfill(a, rest[n1:n1+26], 11)
    for q in range(2):
        s, m = S[q], 19 + q
        a(f"v_max3_f32 v{m}, v{s}, v{s+1}, v{s+2}")
        for i in range(3, 15, 2): a(f"v_max3_f32 v{m}, v{m}, v{s+i}, v{s+i+1}")
        a(f"v_max_f32 v{m}, v{m}, v{s+15}")
    for q in range(2): a(f"v_mov_b32 v{21+q}, v{19+q}")
    a("s_nop 0")
    for q in range(2): a(f"v_permlane32_swap_b32 v{19+q}, v{21+q}")
    for q in range(2): a(f"v_max_f32 v{19+q}, v{19+q}, v{21+q}")
    for i in range(16): a(f"v_sub_f32 v{NM[0]+i}, 0, v19")
    for s in rest[n1+26:n1+28]: a(s)
    a(mf32(vr(S[0], 16), ar(aK, 4), vr(QA[0], 4), vr(NM[0], 16)))
    a(mf32(vr(S[0], 16), ar(aK+4, 4), vr(QA[0]+4, 4), vr(S[0], 16)))
    for i in range(16): a(f"v_sub_f32 v{NM[1]+i}, 0, v20")
    for s in rest[n1+28:]: a(s)
    a("v_mov_b32 v18, 0")
    a(f"s_add_u32 s30, s28, {F_H}")
    if o.get("fh_slot", 10) < 0:
        a.emit(a.wait(["halo"]))
        for s in flag_store(30, 20, "fH"): a.emit(s)
    a("s_branch L_ATT2")
    a("L_ATT1:")
    a("s_waitcnt lgkmcnt(0)")
    a(mf32(vr(S[0], 16), ar(aK, 4), vr(QA[0], 4), vr(NM[0], 16)))
    a(mf32(vr(S[0], 16), ar(aK+4, 4), vr(QA[0]+4, 4), vr(S[0], 16)))
    a("s_nop 11")
    a("L_ATT2:")
    a.stamp("att0")
    pk = [(f"buffer_load_dword v21, v17, {WS}, s31 offen sc1", "pKV")]
    ks = o.get("pk_slot", 0)
    sl = [[] for _ in range(14)]; sl[ks] = pk
    if o.get("fh_slot", 10) >= 0: sl[o.get("fh_slot", 10)] = [a.wait(["halo"])] + flag_store(30, 20, "fH")
    tile(a, 0, sl[0:7]); tile(a, 1, sl[7:14])
    a.stamp("t01")
    d0, d1, adv = kv_dma(1, 0, "c1a"), kv_dma(1, 1, "c1b"), kv_advance(2)
    a(d0[0])
    poll_check(a, "L_PKV", 21, 17, 31, "pKV", mask=1)
    a.stamp("pKV")
    a.emit(d0[1]); a.emit(d0[2])
    tile(a, 2, [[d0[3]], [d0[4]], [(f"buffer_load_dword v21, v17, {WS}, s31 offen sc1", "pKV2")], [d1[0]], [d1[1], d1[2]], [d1[3]], [d1[4]]])
    for s in adv: a(s)
    a.stamp("t2")
    a(f"s_cmp_lg_u32 s{sPASS}, 0")
    a("s_cbranch_scc1 L_A4")
    gate_compute(a)
    a("s_branch L_A5")
    a("L_A4:")
    a("s_waitcnt vmcnt(0)")
    a("L_A5:")
    a.emit(a.wait(["c1a"], lgkm=True))
    a("s_barrier")
    a.pkv2 = True
    a.stamp("c1")
    wob = [i for i in range(24)]
    obl = [i for i in range(64)]
    if o.get('noside', 0) & 1: wob = wob[:1]
    if o.get('noside', 0) & 2: obl = obl[:1]
    ob_start = o.get("ob_start", 6)
    obase = False
    for c in range(15):
        V = []; A = []
        side = []
        if c + 2 <= 15:
            d0, d1 = kv_dma(c % 2, 0, f"c{c+2}"), kv_dma(c % 2, 1, f"c{c+2}")
            kvs = [[x] for x in d0] + [[x] for x in d1] + ([[x] for x in kv_advance(c + 3)] if c + 3 <= 15 else [])
        else:
            kvs = []
        oth = []
        if c == 0:
            oth += [[(f"buffer_load_dword v21, v17, {WS}, s31 offen sc1", "pKV3")], [], [], [(f"buffer_load_dword v22, v18, {WS}, s33 offen sc1", "pH")]]
        if c == 3:
            oth += [[f"s_lshl_b32 s38, s{sSeq}, 7"], [f"s_lshl_b32 s39, s{sHead}, 2"], ["s_add_u32 s38, s38, s39"],
                    [f"s_add_u32 s35, s38, {F_OB}"], flag_store(35, 20, "fOB")]
        if c == ob_start - 2:
            oth += [[f"s_add_u32 s47, s29, {F_OB}"], [(f"buffer_load_dword v21, v16, {WS}, s47 offen sc1", "pOB")]]
        if c == o.get("cpf2", 11) or (o.get("cpfn") and c % o["cpfn"] == 2):
            oth += [[(f"buffer_load_dword v{vPFd}, v{vT[7]}, s[{sCode}:{sCode+3}], 0 offen", "cpf")]]
        nslots = 4*7 - 1 - (c == 0)
        if c >= ob_start:
            for _ in range(min(len(obl), o.get("ob_per", 8))):
                i = obl.pop(0)
                oth.append([(f"global_load_dwordx4 {oreg(i)}, v{vL16b if (i & 4) else vL16}, s[{sOg}:{sOg+1}] offset:{(i % 4)*1024} sc1", "obl")])
                if i % 8 == 7:
                    oth += [[f"s_add_u32 s{sOg}, s{sOg}, 8192"], [f"s_addc_u32 s{sOg+1}, s{sOg+1}, 0"]]
        wa0, wa1 = o.get("wam0", 1), o.get("wam1", 3)
        if c in (wa0, wa1):
            oth.insert(0, [(f"global_load_dword v{vPFd}, v25, s[{sPWoA}:{sPWoA+1}] offset:{1024*(c == wa1)}", "wopf")])
        wl = o.get("wol2", 6)
        if wl <= c < wl + 8:
            oth.append([(f"global_load_dword v{vPFd}, v0, s[{sPWoA}:{sPWoA+1}] offset:{((c - wl) & 1)*2048}", "wopf")] + (["v_add_u32 v0, 4096, v0"] if (c - wl) & 1 else []))
        wb0 = 11 if o.get("wbtail", 1) else 13
        if c in (wb0, wb0 + 1) and o.get("wbl2", 0):
            oth.append([(f"global_load_dword v{vPFd}, v15, s[{sPWoB}:{sPWoB+1}] offset:{(c - wb0)*2048}", "wopf")])
        if c == 14 and o.get("wbtail", 1): wob += list(range(24, 32))[:1 if o.get('noside', 0) & 1 else 8]
        while wob and (len(kvs) + len(oth) + 3 <= nslots or c == 14):
            i_ = wob.pop(0)
            oth += wob_dma(i_, f"wo{i_//8}")
        if o.get('noside', 0) & 4 and c >= 4: kvs = [g for g in kvs if not isinstance(g[0], tuple)] + [[kvs[1][0]]] if kvs else []
        if o.get('noside', 0) & 8 and c >= 4: kvs = [g for g in kvs if isinstance(g[0], tuple) or "m0" in g[0]]
        side = kvs + oth
        while len(side) > nslots:
            for k in range(len(side) - 1):
                if all(isinstance(x, str) and x.startswith("s_") and "m0" not in x for x in side[k]):
                    side[k+1] = side[k] + side[k+1]; side.pop(k); break
            else:
                raise Exception("slots")
        n = len(side)
        nv = sum(isinstance(x, tuple) for g in side for x in g)
        if n < nslots and nv >= o.get("spread", 1):
            sp = [[] for _ in range(nslots)]
            for k, g in enumerate(side): sp[k*nslots//n] = g
            side = sp
        if c == 0:
            poll_check(a, "L_PKV2", 21, 17, 31, "pKV2", mask=2)
        if c == 1:
            poll_check(a, "L_PKV3", 21, 17, 31, "pKV3", mask=0xffff)
            poll_check(a, "L_PH", 22, 18, 33, "pH")
            a(f"s_sub_u32 s38, s{sHalo}, 4096")
            a(f"s_cmp_eq_u32 s{sSeq}, 0")
            a(f"s_cselect_b32 s38, {OOB}, s38")
            a.emit((f"buffer_load_dwordx4 {vr(HK, 4)}, v{vL16}, {WS}, s38 offen sc1", "hl"))
            a.emit((f"buffer_load_dwordx4 {vr(HK+4, 4)}, v{vL16}, {WS}, s38 offen offset:1024 sc1", "hl"))
            a.emit((f"buffer_load_dwordx4 {vr(HV, 4)}, v{vL16}, {WS}, s38 offen offset:2048 sc1", "hl"))
        if c == 2:
            a(f"s_cmp_lg_u32 s{sPASS}, 0")
            a("s_cbranch_scc1 L_LOC0X")
            a(f"s_cmp_eq_u32 s{sSeq}, 0")
            a("s_cbranch_scc0 L_MASKOK")
            for i in range(8): a(f"v_mov_b32 v{vMc+16+i}, {NEGBIG}")
            a("L_MASKOK:")
            for s in a.ob1: a.emit(s)
            st = local_tile(a, pQB[0], pKB[0], pVB[0], HK, HV, 96, 112, 208, 168, 236, 23, 0, "ob0")
            for x in pko(208): a(x)
            a.emit((st[0][0].format("v[208:211]"), "ob0")); a.emit((st[1][0].format("v[212:215]"), "ob0"))
            a("L_LOC0X:")
            a.stamp("loc0")
        if c == ob_start - 1:
            poll_check(a, "L_POB", 21, 16, 47, "pOB")
        tile(a, 4*c + 3, side)
        tile(a, 4*c + 4, side, end_b=[a.wait(["c1b"]), "s_barrier"] if c == 0 else None)
        tile(a, 4*c + 5, side)
        tile(a, 4*c + 6, side, end_b=[a.wait([f"c{c+2}"], lgkm=True) if c + 2 <= 15 else a.wait(["wo0", "obl"], lgkm=True), "s_barrier"])
        assert not side
        if c in (4, 9): a.stamp(f"c{c}")
        if c == 7:
            for _ in range(o.get("idle_att", 0)): a("s_nop 15")
    assert not wob and not obl, (wob, obl)
    r0 = p4_reads(0) + p4_reads(1)
    tile(a, 63, [r0[0:2], r0[2:4], r0[4:6], r0[6:8], r0[8:10], r0[10:13], r0[13:16]])
    a(f"s_add_u32 s36, s{sOst}, {OA_OFF}")
    a(f"s_add_u32 s37, s{sOst}, {OA_OFF + 65536}")
    a(mf32(ar(aO[1], 16), ar(aV[1], 4), vr(P[1], 4), ar(aO[1], 16)))
    a(smf(1))
    a(mf32(ar(aO[1], 16), ar(aV[1]+4, 4), vr(P[1]+4, 4), ar(aO[1], 16)))
    a.stamp("attend")
    F = L()
    F(f"v_accvgpr_read_b32 v19, a{aL[0]}")
    F(f"v_accvgpr_read_b32 v21, a{aL[0]+1}")
    for i in range(16): F(f"v_accvgpr_read_b32 v{S[0]+i}, a{aO[0]+i}")
    F("v_add_f32 v19, v19, v21")
    F(f"v_accvgpr_read_b32 v20, a{aL[1]}")
    F("v_rcp_f32 v23, v19")
    F(f"v_accvgpr_read_b32 v21, a{aL[1]+1}")
    F("v_add_f32 v20, v20, v21")
    for i in range(16): F(f"v_mul_f32 v{S[0]+i}, v{S[0]+i}, v23")
    F += pko(S[0])
    F("v_rcp_f32 v24, v20")
    F((f"buffer_store_dwordx4 {vr(S[0], 4)}, v{vL16}, {WS}, s36 offen sc1", "oa"))
    F((f"buffer_store_dwordx4 {vr(S[0]+4, 4)}, v{vL16}, {WS}, s36 offen offset:1024 sc1", "oa"))
    for i in range(16): F(f"v_accvgpr_read_b32 v{S[1]+i}, a{aO[1]+i}")
    for i in range(16): F(f"v_mul_f32 v{S[1]+i}, v{S[1]+i}, v24")
    F += pko(S[1])
    F(f"s_mov_b32 s36, {f2u(2.0**64)}")
    F((f"buffer_store_dwordx4 {vr(S[1], 4)}, v{vL16}, {WS}, s37 offen sc1", "oa"))
    F((f"buffer_store_dwordx4 {vr(S[1]+4, 4)}, v{vL16}, {WS}, s37 offen offset:1024 sc1", "oa"))
    F("v_mov_b32 v21, 0")
    for q in range(2):
        for j in range(8): F(f"v_dot2_f32_bf16 v{19+q}, v{S[q]+j}, v21, v{19+q}")
    F("s_nop 2")
    F("v_cmp_nge_f32 s[56:57], s36, v19")
    F("v_cmp_nge_f32 vcc, s36, v20")
    F(f"s_lshl_b32 s37, s{sW}, 2")
    F(f"s_add_u32 s37, s37, {XCH}")
    F("v_mov_b32 v22, s37")
    F("s_nop 1")
    F("s_or_b64 vcc, vcc, s[56:57]")
    if o.get("force_fallback"): F("s_mov_b64 vcc, -1")
    F(f"s_cmp_lg_u64 vcc, 0\ns_cselect_b32 s36, 1, 0\ns_andn2_b32 s36, s36, s{sPASS}")
    F("v_mov_b32 v21, s36")
    F("ds_write_b32 v22, v21")
    F(f"v_mov_b32 v22, {XCH}")
    a.fin = F
    b = Asm()
    b("L_FALLBACK:")
    b(f"s_mov_b32 s{sPASS}, 1")
    b(f"s_mov_b32 s25, {OOB}")
    b(f"s_mov_b32 s26, {OOB}")
    b(f"v_mov_b32 v19, {NEGBIG}")
    b(f"v_mov_b32 v20, {NEGBIG}")
    b(f"s_lshl_b32 s38, s{sHP}, 19")
    b(f"s_lshl_b32 s39, s{sHH}, 14")
    b("s_add_u32 s38, s38, s39")
    b("s_mov_b32 s39, 0")
    b("L_FB:")
    b("s_and_b32 s36, s39, 3")
    b("s_lshl_b32 s36, s36, 12")
    b("s_lshr_b32 s37, s39, 2")
    b("s_lshl_b32 s37, s37, 15")
    b("s_add_u32 s36, s36, s37")
    b("s_add_u32 s36, s36, s38")
    b(f"buffer_load_dwordx4 {ar(aK, 4)}, v{vL16}, {WS}, s36 offen sc1")
    b(f"buffer_load_dwordx4 {ar(aK+4, 4)}, v{vL16}, {WS}, s36 offen offset:1024 sc1")
    b("s_waitcnt vmcnt(0)")
    for q in range(2): b(mf32(vr(S[q], 16), ar(aK, 4), vr(QA[q], 4), 0))
    for q in range(2): b(mf32(vr(S[q], 16), ar(aK+4, 4), vr(QA[q]+4, 4), vr(S[q], 16)))
    b("s_nop 11")
    for q in range(2):
        for i in range(0, 16, 2): b(f"v_max3_f32 v{19+q}, v{19+q}, v{S[q]+i}, v{S[q]+i+1}")
    b("s_add_u32 s39, s39, 1")
    b("s_cmp_lt_u32 s39, 64")
    b("s_cbranch_scc1 L_FB")
    neg_max(b)
    for s in sel_init(23, 24): b(s)
    b(f"s_lshl_b32 s36, s{sT}, 15")
    b(f"s_add_u32 s{sKVg}, s{sKVp}, s36")
    b(f"s_addc_u32 s{sKVg+1}, s{sKVp+1}, 0")
    b(f"s_add_u32 s36, s{sOrow}, {OB_OFF}")
    b(f"s_add_u32 s{sOg}, s54, s36")
    b(f"s_addc_u32 s{sOg+1}, s55, 0")
    b("v_add_u32 v0, -16384, v0")
    b("s_barrier")
    for g in range(2):
        for k_, s in enumerate(kv_dma(0, g, "")):
            b(s[0] if isinstance(s, tuple) else s)
            if k_ == 0: b("s_nop 0")
    b("s_waitcnt vmcnt(0)")
    b("s_barrier")
    b("s_branch L_ATT0")
    a.tail.append(b.text())

def fW4(G, nt, n=4, d=0):
    fs = G % 3
    return vr(32 + fs*16 + nt*4 + d, n) if fs < 2 else ar(nt*4 + d, n)
def p4_lds(g):
    return g*32768 if g < 4 else [131072, 0, 32768, 65536][g - 4]
def p4_reads(G):
    out = []
    base = p4_lds(G // 8)
    for nt in range(4):
        off = base % 65536 + (G % 8)*4096
        out.append(f"ds_read_b64_tr_b16 {fW4(G, nt, 2)}, v{vWo_r[nt]} offset:{off}")
        out.append(f"ds_read_b64_tr_b16 {fW4(G, nt, 2, 2)}, v{vWo_r[nt]} offset:{off+1024}")
    return out
def woa_dma(g, i):
    pos = (g - 4)*8 + i
    return [[f"s_add_u32 s39, s{sWooff}, {pos*65536}", "s_and_b32 s39, s39, 0x1fffff", f"s_add_u32 m0, s{sWv}, {p4_lds(g) + i*4096}"],
            [(f"buffer_load_dwordx4 v{vWo_g}, s[{sWoA}:{sWoA+3}], s39 offen lds", f"wo{g}")]]
def oa_load(i):
    out = [(f"global_load_dwordx4 {oreg(i)}, v{vL16b if (i & 4) else vL16}, s[{sOg}:{sOg+1}] offset:{(i % 4)*1024} sc1", f"oa{i}")]
    return out
def oa_next():
    return [f"s_add_u32 s{sOoff}, s{sOoff}, 8192", f"s_and_b32 s{sOoff}, s{sOoff}, 0xffff",
            f"s_add_u32 s{sOg}, s{sKVg}, s{sOoff}\ns_addc_u32 s{sOg+1}, s{sKVg+1}, 0"]

def phase4(a):
    o = a.opts
    flag_at = o.get("oaflag_gap", 40)
    poll_at = o.get("oapoll_gap", 84)
    chk_at = o.get("oachk_gap", 96)
    side = {}
    def put(k, l): side.setdefault(k, []).extend(l)
    F = list(a.fin)
    if o.get("finfirst", 0):
        n_ = max(i for i, x in enumerate(F) if isinstance(x, tuple)) + 1
        for x in F[:n_]: a.emit(x)
        F = F[n_:]
    k = 0
    while F:
        n_ = 2 if o.get("finfirst", 0) else (6 if len(F) > 5*(23 - k) - 5 else 5)
        put(k, F[:n_]); F = F[n_:]; k += 1
    assert k <= 23, k
    put(37, [f"s_add_u32 s38, s{sOrow}, {OA_OFF}", f"s_add_u32 s{sKVg}, s54, s38\ns_addc_u32 s{sKVg+1}, s55, 0"])
    put(38, [f"s_add_u32 s{sOg}, s{sKVg}, s{sOoff}\ns_addc_u32 s{sOg+1}, s{sKVg+1}, 0"])
    pre = [f"s_lshl_b32 s38, s{sSeq}, 7",
           f"s_lshl_b32 s47, s{sHead}, 2", "s_add_u32 s38, s38, s47", f"s_add_u32 s35, s38, {F_OA}", f"s_add_u32 s47, s29, {F_OA}",
           f"s_lshl_b32 s36, s{sT4}, 9", f"s_lshl_b32 s37, s{sW}, 7", "s_add_u32 s36, s36, s37", f"s_add_u32 s36, s36, {G_OFF}",
           f"v_and_b32 v24, 60, v16",
           (f"buffer_load_dword v{vG2[0]}, v24, {WS}, s36 offen sc1", "gl"), (f"buffer_load_dword v{vG2[1]}, v24, {WS}, s36 offen offset:64 sc1", "gl")]
    put(24, ["ds_read_b128 v[20:23], v22"])
    for i, x in enumerate(pre): put(25 + i//2, [x])
    put(32, ["v_or_b32 v20, v20, v21", "v_or3_b32 v20, v20, v22, v23"])
    put(33, ["v_readfirstlane_b32 s38, v20"])
    put(35, ["s_cmp_lg_u32 s38, 0\ns_cbranch_scc1 L_FALLBACK"])
    assert flag_at > 35
    put(flag_at, [a.wait(["oa"])]); put(flag_at + 1, flag_store(35, 20, "fOA"))
    put(poll_at, [(f"buffer_load_dword v21, v16, {WS}, s47 offen sc1", "pOA")])
    put(130, [f"v_sub_f32 v{vOM[0]}, 1.0, v{vG2[0]}", f"v_sub_f32 v{vOM[1]}, 1.0, v{vG2[1]}"])
    put(131, [f"v_and_b32 v19, 15, v{vLANE}", f"v_lshrrev_b32 v20, 4, v{vLANE}"])
    put(132, ["v_lshlrev_b32 v20, 4, v20", "v_lshl_add_u32 v19, v19, 11, v20"])
    if o.get("ldsout", 1):
        side[131] = []; side[132] = []
        put(200, [f"s_mul_i32 s38, s{sW}, 4608", f"v_and_b32 v20, 15, v{vLANE}"]); put(201, ["s_add_u32 s38, s38, 131072", "v_mul_u32_u24 v20, 144, v20"])
        put(202, [f"v_lshrrev_b32 v21, 4, v{vLANE}", "v_lshl_add_u32 v20, v21, 3, v20"]); put(203, ["v_add_u32 v20, s38, v20", f"v_lshrrev_b32 v22, 3, v{vLANE}"])
        put(204, [f"v_and_b32 v19, 7, v{vLANE}", "v_lshlrev_b32 v19, 4, v19"]); put(205, ["v_mul_u32_u24 v21, 144, v22", "v_add3_u32 v21, v21, v19, s38"])
        put(206, ["v_lshl_add_u32 v19, v22, 11, v19", "v_add_u32 v22, 16384, v19"])
    elif o.get("r128", 0):
        put(133, [f"v_and_b32 v20, 8, v{vLANE}", f"v_mul_u32_u24 v20, {2048 - 8}, v20"])
        put(152, ["v_sub_u32 v19, v19, v20", "v_add_u32 v20, 16384, v19"])
    for i in range(32): put(134 + i//2, [f"v_mul_f32 v{ACC4[0][i//16] + i%16}, v{ACC4[0][i//16] + i%16}, v{vOM[i//16]}"])
    put(248, [f"s_lshl_b32 s36, s{sT4}, 18", f"s_lshl_b32 s37, s{sW}, 16"]); put(249, ["s_add_u32 s36, s36, s37", f"s_lshl_b32 s37, s{sC4}, 7"])
    put(250, ["s_add_u32 s36, s36, s37"]); put(251, ["s_add_u32 s37, s36, 32768"])
    a("s_waitcnt lgkmcnt(0)")
    lat = o.get("p4lat", 20)
    jobs = [] if o.get("wbtail", 1) else [[26, 32*2 + 23 - lat, "wb", i] for i in range(24, 32)]
    for g in range(4, 8):
        e = {4: 0, 5: 26, 6: 57, 7: 89}[g]
        jobs += [[{4: 57, 5: 57, 6: 89, 7: 121}[g] if i == 7 else e, 32*(g - 1) + 23 - lat, "wa", (g, i)] for i in range(8)]
    jobs += [[max(chk_at + 1, 2*i + 2), 128 + 4*(i//2) - lat, "oa", i] for i in range(64)]
    gap = o.get("p4gap", 2.0)
    t = float(o.get('wb_at', 19))
    quiet = range(poll_at - o.get("p4quiet", 4), poll_at + 1)
    while jobs:
        k = int(t)
        av = [j for j in jobs if j[0] <= k]
        if not av or k in quiet:
            t = k + 1; continue
        j = min(av, key=lambda j: j[1])
        jobs.remove(j)
        if j[2] == "wb":
            d = wob_dma(j[3], "wo3"); put(k - 1, d[0] + d[1]); put(k, d[2])
        elif j[2] == "wa":
            d = woa_dma(*j[3]); put(k - 1, d[0]); put(k, d[1])
        else:
            put(k, oa_load(j[3]))
            if j[3] % 8 == 7 and j[3] < 63: put(k + 1, oa_next())
        if k > j[1] + 8: print("p4 late", j, k)
        t += gap
    ds = []
    def lg(tags):
        k_ = max([i for i, t_ in enumerate(ds) if t_ in tags], default=-1)
        return min(len(ds) - 1 - k_, 15)
    for G in range(64):
        br = G // 32
        rd = p4_reads(G + 2) if G + 2 < 64 else []
        mv = []
        if G + 3 < 64:
            dlt = (p4_lds((G + 3)//8)//65536 - p4_lds((G + 2)//8)//65536)*65536
            if dlt: mv = [f"v_add_u32 v{vWo_r[nt]}, {dlt}, v{vWo_r[nt]}" for nt in range(4)]
        order = [(nt, mt) for nt in range(4) for mt in range(2)]
        if G == 62: break
        for j in range(8):
            idx = 4*G + j//2
            nt, mt = order[j]
            d = vr(ACC4[br][mt] + nt*4, 4)
            a(mf16(d, fW4(G, nt), oreg((G % 32)*2 + mt), 0 if G % 32 == 0 else d))
            sd = side.get(idx, [])
            if j % 2 == 0:
                for s in [x for x in sd if isinstance(x, str) and x.startswith("ds_read")]:
                    a(s); ds.append("xr")
                sd = [x for x in sd if not (isinstance(x, str) and x.startswith("ds_read"))]
                now, side[idx] = sd[:len(sd)//2], sd[len(sd)//2:]
            else:
                now = side.pop(idx, [])
            if rd:
                a(rd[j]); ds.append(G + 2)
                if mv and j % 2 == 1: a(mv[j//2])
            for s in now:
                a.emit(s)
                if isinstance(s, str) and s.startswith("ds_write"): ds.append("xw")
            if j % 2 == 1:
                if idx == flag_at + 1: a.stamp("fOA")
                if idx == chk_at:
                    poll_check(a, "L_POA", 21, 16, 47, "pOA")
                    a.stamp("pOA")
        if G == 63: break
        w = ""
        need = []
        if G == 61: continue
        if G + 1 >= 32: need.append(f"oa{((G + 1) % 32)*2 + 1}")
        bar = G % 8 == 5 and G // 8 < 7
        if bar and f"wo{G//8 + 1}" in a.vm: need.append(f"wo{G//8 + 1}")
        if need: w += f" vmcnt({a.vmn(need)})"
        if G + 1 >= 2: w += f" lgkmcnt({lg([G + 1, 'xw'])})"
        if w: a("s_waitcnt" + w)
        if bar: a("s_barrier")
        if G == 31: a.stamp("p4B")
    def epi(mt):
        B_, A_ = ACC4[0][mt], ACC4[1][mt]
        fl = ['', 'sc1', 'nt', 'sc0 sc1', 'sc1 nt'][o.get('outflag', 1)]
        l = [f"v_fma_f32 v{B_+i}, v{A_+i}, v{vG2[mt]}, v{B_+i}" for i in range(16)] + packl(B_)
        if o.get("ldsout", 1):
            return l + [f"ds_write_b64 v20, {vr(B_+2*nt, 2)} offset:{mt*16*144 + 32*nt}" for nt in range(4)]
        l += ["s_nop 0"]
        l += [f"v_permlane32_swap_b32 v{B_+x}, v{B_+y}" for x, y in ((0, 2), (1, 3), (4, 6), (5, 7))]
        l += [f"v_permlane16_swap_b32 v{B_+x}, v{B_+y}" for x, y in ((0, 2), (1, 3), (4, 6), (5, 7))]
        if o.get("r128", 0):
            l += [f"v_mov_b32 v{B_+8+i}, v{B_+i}" for i in range(4)]
            l += [f"v_mov_b32_dpp v{B_+i}, v{B_+4+i} row_ror:8 row_mask:0xf bank_mask:0xc" for i in range(4)]
            l += [f"v_mov_b32_dpp v{B_+4+i}, v{B_+8+i} row_ror:8 row_mask:0xf bank_mask:0x3" for i in range(4)]
            l += [(f"buffer_store_dwordx4 {vr(B_+4*k, 4)}, v{19+k}, s[{sOutD}:{sOutD+3}], s{36+mt} offen {fl}", "out") for k in range(2)]
            return l
        l += [(f"buffer_store_dwordx4 {vr(B_+4*k, 4)}, v19, s[{sOutD}:{sOutD+3}], s{36+mt} offen offset:{64*k} {fl}", "out") for k in range(2)]
        return l
    rest = [x for k_ in sorted(side) for x in side[k_]]
    a(f"s_waitcnt vmcnt({a.vmn(['oa63'])}) lgkmcnt(0)")
    for G in (62, 63):
        for nt in range(4):
            d = vr(ACC4[1][0] + nt*4, 4)
            a(mf16(d, fW4(G, nt), oreg((G % 32)*2), d))
            if rest: a.emit(rest.pop(0))
    assert not rest
    e0 = epi(0)
    for k_, (G, nt) in enumerate([(G, nt) for G in (62, 63) for nt in range(4)]):
        d = vr(ACC4[1][1] + nt*4, 4)
        a(mf16(d, fW4(G, nt), oreg((G % 32)*2 + 1), d))
        if k_ >= 2:
            a(e0.pop(0)); a(e0.pop(0))
        else:
            a("s_nop 1")
    a.stamp("p4A")
    if not o.get("ldsout", 1):
        for x in e0 + epi(1): a.emit(x)
        return
    for x in e0: a.emit(x)
    e1_ = epi(1)
    fl = ['', 'sc1', 'nt', 'sc0 sc1', 'sc1 nt'][o.get('outflag', 1)]
    T = ACC4[1][0]
    def rds(mt): return [f"ds_read_b128 {vr(T + 8*mt + 4*k, 4)}, v21 offset:{(16*mt + 8*k)*144}" for k in range(2)]
    def sts(mt): return [(f"buffer_store_dwordx4 {vr(T + 8*mt + 4*k, 4)}, v{19 if k == 0 else 22}, s[{sOutD}:{sOutD+3}], s{36+mt} offen {fl}", "out") for k in range(2)]
    for x in rds(0): a(x)
    for x in e1_[:24]: a(x)
    a("s_waitcnt lgkmcnt(0)")
    for x in e1_[24:] + rds(1): a(x)
    for x in sts(0): a.emit(x)
    a("s_waitcnt lgkmcnt(0)")
    for x in sts(1): a.emit(x)

def gen(opts):
    a = G(opts); a.tail = []
    setup(a); gemm1(a); e1(a); attention(a); phase4(a)
    if opts.get("diag") is not None:
        a.stamp("end")
        a("s_nop 1")
        a(f"v_readlane_b32 s36, v{vSTAMP}, {32 + opts['diag']}")
        a("s_nop 3")
        a("s_add_u32 s36, s36, 10000")
        if opts.get("diagwg") is not None:
            a(f"s_cmp_lg_u32 s2, {opts['diagwg']}")
            a("s_cbranch_scc1 L_END")
        a("L_DIAG:")
        a("s_memrealtime s[38:39]")
        a("s_waitcnt lgkmcnt(0)")
        a("s_sub_u32 s38, s38, s36")
        a("s_cmp_lt_i32 s38, 0")
        a("s_cbranch_scc1 L_DIAG")
    elif opts.get("dbgstamp"):
        a.stamp("end")
        sel = ["karg", "first", "g7", "g15", "g23", "g31", "loc1", "pKV", "c1", "c9", "attend", "pOA", "p4B", "p4A", "end"]
        a(f"s_cmp_lg_u32 s2, {opts['dbgstamp']-1}")
        a("s_cbranch_scc1 L_DBGX")
        a(f"s_cmp_lg_u32 s{sW}, 0")
        a("s_cbranch_scc1 L_DBGX")
        a(f"v_readlane_b32 s36, v{vSTAMP}, 32")
        for i, nm in enumerate(sel):
            a(f"v_readlane_b32 s37, v{vSTAMP}, {32 + a.names.index(nm)}")
            a("s_nop 3")
            a("s_sub_u32 s37, s37, s36")
            a("v_mov_b32 v2, s37")
            a("v_mov_b32 v3, 0")
            a(f"global_store_dword v3, v2, s[{sPDbg}:{sPDbg+1}] offset:{4*(i+1)}")
        a("L_DBGX:")
    elif opts.get("stamp"):
        a.stamp("end")
        a("s_lshl_b32 s36, s2, 2")
        a(f"s_add_u32 s36, s36, s{sW}")
        a("s_lshl_b32 s36, s36, 8")
        a(f"s_add_u32 s36, s36, {STAMP_OFF}")
        a(f"v_lshlrev_b32 v2, 2, v{vLANE}")
        a(f"buffer_store_dword v{vSTAMP}, v2, {WS}, s36 offen")
    a("s_endpgm")
    for t in a.tail: a(t)
    head = f"""; out = g*(MHA(x) Wo_A) + (1-g)*(dilated-window attention(x) Wo_B), one fused kernel, 256 co-resident workgroups (1 per CU).
; kernarg: A_x 0, A_wqkv 8, A_wo 16, B_x 24 (unused by the reference), B_wqkv 32, B_wo 40, gate_w 48, out 56, debug 64, ws 72
; workgroup (head pair hp, 128-row tile t), wave (row half, head):
;   1. q,k,v of both branches (LDS-DMA rings, 16x16x32 MFMA); K_A/V_A finish first and are published to ws (sc1) with flags
;   2. window attention (true max), full attention over all 16 K/V chunks: exp2(s - m), m = row max of the first key tile;
;      a run-time check (row sum <= 2^64, finite outputs) reruns the workgroup with the true row max otherwise
; hand-offs: data (sc1) -> s_waitcnt -> flag word = launch nonce (published through d_debug[0]); consumers poll, then load sc1
; @launch grid=(256,1,1) block=(256,1,1) lds=163840
.amdgcn_target "amdgcn-amd-amdhsa--gfx950"
.text
.globl {KNAME}
.p2align 8
.type {KNAME},@function
{KNAME}:
"""
    tail = f"""L_END:
    s_endpgm
.section .rodata,"a"
.p2align 6
.amdhsa_kernel {KNAME}
  .amdhsa_next_free_vgpr 512
  .amdhsa_next_free_sgpr 102
  .amdhsa_accum_offset 256
  .amdhsa_group_segment_fixed_size 0
  .amdhsa_kernarg_size 80
  .amdhsa_user_sgpr_count 2
  .amdhsa_user_sgpr_kernarg_segment_ptr 1
  .amdhsa_system_sgpr_workgroup_id_x 1
.end_amdhsa_kernel
"""
    gen.names = a.names
    return head + a.text() + tail

if __name__ == "__main__":
    import hazard
    opts = {}
    for kv in sys.argv[2:]:
        k, v = kv.split("="); opts[k] = int(v)
    t = gen(opts)
    open(sys.argv[1], "w").write(t)
    print(len(hazard.check(t)), "hazards", gen.names)
```

```python
import sys, struct, math
from asmlib import *

KNAME = "gated_mix__softmax_full_mha__sliding_local_dilated__prompt_kernel"
def f2u(x): return struct.unpack("<I", struct.pack("<f", x))[0]
KV_OFF   = 0
OA_OFF   = 8 << 20
OB_OFF   = 12 << 20
HALO_OFF = 16 << 20
G_OFF    = 20 << 20
FLAG_OFF = 21 << 20
F_KV, F_H, F_OB, F_OA = FLAG_OFF, FLAG_OFF + 4096, FLAG_OFF + 8192, FLAG_OFF + 12288
STAMP_OFF = 0x8000000
OOB = 0x80000000
CSCALE = f2u(math.log2(math.e) / math.sqrt(32.0))
NEGBIG = f2u(-1e30)
X_SLOT = 16384; W_BASE = 49152; W_SLOT = 24576
KV_LDS = [98304, 131072]
XCH = 163840 - 16
sX, sWA, sWB, sWS = 4, 8, 12, 16
sW, sHP, sT, sRH, sHH = 20, 21, 22, 23, 24
sWoff, sXoff = 25, 26
sXw, sWv = 30, 34
sPF, sPFstr = 44, 46
sNONCE, sCS = 60, 61
sSTAMPI = 68
sPWoA, sPWoB, sPG, sPOut, sPDbg = 70, 72, 74, 76, 78
sKVsrc, sKVbase, sKVt, sKVdst = 80, 81, 82, 27
sPASS, sOst, sSpin = 83, 86, 87
sT4, sC4, sOoff, sWooff, sObase = 88, 89, 90, 91, 92
sHalo, sSeq, sO, sOrow, sHead = 93, 94, 95, 96, 97
sWoA, sWoB, sOutD = 4, 8, 12
sCode = 40
pX, pWA, pWB = 48, 50, 52
vLANE = 1
vXr = [2, 3]; vWr = [[4, 5], [10, 11]]; vWg = [12, 13, 14]; vXg = [15, 16, 17, 18]
vT = [19, 20, 21, 22, 23, 24, 25, 26]
vPF, vPFd, vL16, vSTAMP, vF0 = 27, 28, 29, 30, 31
vMc = 32
ACC0 = 64
def acc(blk, rt): return ACC0 + (blk*2 + rt)*16
QA = [64, 80]; KA = [96, 112]; VA = [128, 144]; QB = [160, 176]; KB = [192, 208]; VB = [224, 240]
NM = [128, 144]; S = [176, 240]; P = [72, 88]
vKV = [6, 7]
vWo_g = 2; vWo_r = [3, 4, 10, 11]; vG2 = [12, 13]; vOM = [14, 8]
vGate, vGrow = 14, 8
HK = 200; HV = 232
def fX(s, rt): return s*32 + rt*4
def fW(s, blk): return s*32 + 8 + blk*4
aK, aV = 0, [8, 16]
aO = [32, 48]; aL = [64, 68]; aONE = 112
aGATE = 80
aX = [0, 16]; aW = [32, 56]; vKS, vKL = 56, 57
aSEL = 72; vIDX = 9
OV = list(range(96, 128, 4)) + list(range(160, 176, 4)) + list(range(192, 240, 4))
def oreg(i): return ar(76 + 4*i, 4) if i < 45 else vr(OV[i - 45], 4)
ACC4 = [[128, 144], [64, 80]]
pKA = [96, 112]; pVA = [104, 120]; pQB = [160, 168]; pKB = [192, 208]; pVB = [224, 216]

def mf32(d, A, B, C): return f"v_mfma_f32_32x32x16_bf16 {d}, {A}, {B}, {C}"
def mf16(d, A, B, C): return f"v_mfma_f32_16x16x32_bf16 {d}, {A}, {B}, {C}"
WS = f"s[{sWS}:{sWS+3}]"

class G(Asm):
    def __init__(self, opts):
        super().__init__()
        self.opts = opts
        self.vm = []
        self.nstamp = 0
        self.names = []
    def emit(self, x):
        if callable(x): x = x()
        if x is None: return
        if isinstance(x, tuple):
            self(x[0]); self.vm.append(x[1])
        else:
            assert not (x.lstrip().startswith(("buffer_", "global_"))), x
            self(x)
    def vmn(self, tags):
        idx = [i for i, t in enumerate(self.vm) if t in tags]
        assert idx, tags
        n = len(self.vm) - 1 - max(idx)
        return min(n, 63)
    def wait(self, tags, lgkm=False):
        return lambda: f"s_waitcnt vmcnt({self.vmn(tags)})" + (" lgkmcnt(0)" if lgkm else "")
    def stamp(self, name):
        j = self.opts.get("jitter")
        if j and name in ("first", "gP", "g31", "loc1", "fKV", "att0", "t01", "c1", "loc0", "c4", "c9", "attend", "fOA", "p4B"):
            self.nj = getattr(self, "nj", 0) + 1
            self(f"s_cselect_b32 s65, 1, 0\ns_lshl2_add_u32 s64, s2, s{sW}\ns_mul_i32 s64, s64, {(self.nj*40503 + j*9973) | 1}\ns_lshr_b32 s64, s64, 7\ns_and_b32 s64, s64, {[7, 3, 15][j % 3]}")
            self(f"s_cmp_lg_u32 s64, 0\ns_cbranch_scc1 L_J{self.nj}\ns_sleep {40 + 25*(self.nj % 4)}\ns_sleep 60\nL_J{self.nj}:\ns_cmp_lg_u32 s65, 0")
        if not self.opts.get("stamp"): return
        if self.opts["stamp"] == 2 and name not in ("start", "g31", "c1", "attend", "end", "gP", "c4"): return
        self.names.append(name)
        a = self
        a("s_memtime s[66:67]")
        a("s_memrealtime s[64:65]")
        a("s_waitcnt lgkmcnt(0)")
        a(f"v_writelane_b32 v{vSTAMP}, s66, {self.nstamp}")
        a(f"v_writelane_b32 v{vSTAMP}, s64, {self.nstamp + 32}")
        self.nstamp += 1
        assert self.nstamp <= 32
    def inter(self, mains, sides):
        for i, m in enumerate(mains):
            if m is not None: self.emit(m)
            for s in sides.get(i, []): self.emit(s)

def srd(a, s, lo, hi, nbytes):
    a(f"s_mov_b32 s{s}, s{lo}")
    a(f"s_and_b32 s{s+1}, s{hi}, 0xffff")
    a(f"s_mov_b32 s{s+2}, {nbytes}")
    a(f"s_mov_b32 s{s+3}, 0x20000")

def pf_round(a):
    return [(f"global_load_dword v{vPFd}, v{vPF}, s[{sPF}:{sPF+1}]", "pf"),
            f"v_add_u32 v{vPF}, s{sPFstr}, v{vPF}"]

class P1:
    def __init__(self, a):
        self.a = a; self.wnext = [0]*6; self.xnext = [0]*4
    def dma(self, piece):
        kind, j, p = piece
        if kind == "W":
            assert self.wnext[p] == j and (p < 3 or self.wnext[p - 3] == j + 1) and (p >= 3 or self.wnext[p + 3] == j)
            self.wnext[p] += 1
            s = pWA if p < 3 else pWB
            return ([f"s_add_u32 m0, s{sWv}, {W_BASE + (j % 4)*W_SLOT + p*4096}"],
                    (f"global_load_lds_dwordx4 v{vWg[p % 3]}, s[{s}:{s+1}] {['', 'sc1', 'sc0', 'sc0 sc1'][self.a.opts.get('dmafl', 0)]}", f"W{j}"),
                    [f"v_add_u32 v{vWg[p % 3]}, 196608, v{vWg[p % 3]}"] if p >= 3 else [])
        assert self.xnext[p] == j
        self.xnext[p] += 1
        return ([f"s_add_u32 m0, s{sXw}, {(j % 3)*X_SLOT + p*1024}"],
                (f"global_load_lds_dwordx4 v{vXg[p]}, s[{pX}:{pX+1}] {['', 'sc1', 'sc0', 'sc0 sc1'][self.a.opts.get('dmafl', 0)]}", f"X{j}"),
                [f"v_add_u32 v{vXg[p]}, 128, v{vXg[p]}"])

def x_reads(xs, u):
    return [f"ds_read_b128 {ar(aX[xs] + mt*4, 4)}, v{vXr[u & 1]} offset:{((u >> 1) % 3)*X_SLOT + mt*2048}" for mt in range(4)]
def w_reads(ws_, u, blks):
    out = []
    sl = u % 4
    for i, blk in enumerate(blks):
        for nt in range(2):
            off = (sl % 2)*W_SLOT + blk*4096
            r = aW[ws_] + (i*2 + nt)*4
            out.append(f"ds_read_b64_tr_b16 {ar(r, 2)}, v{vWr[sl//2][nt]} offset:{off}")
            out.append(f"ds_read_b64_tr_b16 {ar(r + 2, 2)}, v{vWr[sl//2][nt]} offset:{off+512}")
    return out
def g1_mfmas(xs, ws_, blks, mts=(0, 1, 2, 3), first=False):
    out = {}
    for i, blk in enumerate(blks):
        for nt in range(2):
            for mt in mts:
                w, x = ar(aW[ws_] + (i*2 + nt)*4, 4), ar(aX[xs] + mt*4, 4)
                if blk % 3 == 2:
                    d = vr(acc(blk, mt >> 1) + ((mt & 1)*2 + nt)*4, 4); out[(i, nt, mt)] = mf16(d, x, w, 0 if first else d)
                else:
                    d = vr(acc(blk, mt >> 1) + (nt*2 + (mt & 1))*4, 4); out[(i, nt, mt)] = mf16(d, w, x, 0 if first else d)
    return out

def setup(a):
    o = a.opts
    a("L_START:")
    a("s_cmp_ge_u32 s2, 256")
    a("s_cbranch_scc1 L_END")
    if o.get("xorid"): a(f"s_xor_b32 s2, s2, {o['xorid']}")
    if o.get("mulid"): a(f"s_mul_i32 s2, s2, {o['mulid']}\ns_and_b32 s2, s2, 255")
    a.stamp("start")
    a("s_load_dwordx4 s[48:51], s[0:1], 0")
    a("s_load_dwordx2 s[52:53], s[0:1], 32")
    a("s_load_dwordx2 s[54:55], s[0:1], 72")
    a(f"s_load_dwordx2 s[{sPWoA}:{sPWoA+1}], s[0:1], 16")
    a(f"s_load_dwordx4 s[{sPWoB}:{sPWoB+3}], s[0:1], 40")
    a(f"s_load_dwordx4 s[{sPOut}:{sPOut+3}], s[0:1], 56")
    if o.get("cpf0", 1):
        n = o.get('codelines', 20)
        a("s_getpc_b64 s[56:57]")
        a("L_PC0:")
        a("s_lshr_b32 s35, s2, 3")
        a(f"s_mul_i32 s35, s35, {n}")
        a(f"v_min_u32 v2, {n-1}, v0")
        a("v_add_u32 v2, s35, v2")
        a("v_lshlrev_b32 v2, 7, v2")
        a("v_min_u32 v2, L_END - L_PC0, v2")
        a.emit((f"global_load_dword v{vPFd}, v2, s[56:57]", "cpf"))
    a(f"v_lshrrev_b32 v{vT[0]}, 6, v0")
    a(f"v_and_b32 v{vLANE}, 63, v0")
    a("s_and_b32 s37, s2, 3")
    a(f"v_readfirstlane_b32 s{sW}, v{vT[0]}")
    a("s_bfe_u32 s39, s2, 0x10002")
    a("s_lshr_b32 s35, s2, 3")
    a("s_and_b32 s38, s35, 3")
    a(f"s_lshl2_add_u32 s{sHP}, s37, s38")
    a("s_lshr_b32 s38, s35, 2")
    a(f"s_lshl3_add_u32 s{sT}, s39, s38")
    a(f"s_and_b32 s{sRH}, s{sW}, 1")
    r, c, t0, t1 = vT[0], vT[1], vT[2], vT[3]
    a("s_lshl_b32 s38, s37, 5")
    a("s_add_u32 s38, s38, s35")
    a("s_lshl_b32 s38, s38, 14")
    a("s_lshl_b32 s47, s39, 21")
    a("s_add_u32 s38, s38, s47")
    a("s_lshl_b32 s39, s39, 5")
    a("s_add_u32 s39, s39, s35")
    a("s_mul_i32 s39, s39, 6144")
    a("s_lshl_b32 s47, s37, 9")
    a("s_add_u32 s39, s39, s47")
    a(f"s_mov_b32 s{sPFstr}, {64*6144}")
    a(f"s_cmp_eq_u32 s{sW}, 0")
    a("s_cselect_b32 s39, s38, s39")
    a(f"s_cselect_b32 s{sPFstr}, 128, s{sPFstr}")
    a("s_cselect_b32 s38, 7, 11")
    a("s_cselect_b32 s47, 0, 2")
    a("s_cselect_b32 s36, 0, 3")
    a(f"s_cmp_eq_u32 s{sW}, 3")
    a(f"s_cselect_b32 s{sPFstr}, 0, s{sPFstr}")
    a("s_cselect_b32 s38, 0, s38")
    a(f"v_min_u32 v{t0}, s38, v{vLANE}")
    a(f"v_and_b32 v{t1}, s36, v{t0}")
    a(f"v_lshrrev_b32 v{t0}, s47, v{t0}")
    a(f"v_lshlrev_b32 v{t1}, 7, v{t1}")
    a(f"v_lshl_add_u32 v{t0}, v{t0}, 11, v{t1}")
    a(f"v_add_u32 v{vPF}, s39, v{t0}")
    a(f"v_lshrrev_b32 v{r}, 3, v{vLANE}")
    a(f"v_and_b32 v{c}, 7, v{vLANE}")
    a(f"v_lshrrev_b32 v{t0}, 1, v{r}")
    a(f"v_xor_b32 v{t0}, v{t0}, v{c}")
    a(f"v_lshlrev_b32 v{t1}, 11, v{r}")
    a(f"v_lshl_add_u32 v{t0}, v{t0}, 4, v{t1}")
    a(f"s_lshl2_add_u32 s36, s{sT}, s{sW}")
    a("s_lshl_b32 s36, s36, 16")
    a(f"v_add_u32 v{vXg[0]}, s36, v{t0}")
    a(f"v_xor_b32 v{vXg[1]}, 64, v{vXg[0]}")
    a(f"v_add_u32 v{vXg[1]}, {8*2048}, v{vXg[1]}")
    a(f"v_add_u32 v{vXg[2]}, {16*2048}, v{vXg[0]}")
    a(f"v_add_u32 v{vXg[3]}, {16*2048}, v{vXg[1]}")
    a(f"s_lshl_b32 s{sXw}, s{sW}, 12")
    a("s_waitcnt lgkmcnt(0)")
    a.stamp("karg")
    a(f"s_cmp_eq_u32 s{sW}, 0")
    a(f"s_cselect_b64 s[{sPF}:{sPF+1}], s[{pX}:{pX+1}], s[{pWA}:{pWA+1}]")
    a(f"s_cmp_eq_u32 s{sW}, 2")
    a(f"s_cselect_b64 s[{sPF}:{sPF+1}], s[{pWB}:{pWB+1}], s[{sPF}:{sPF+1}]")
    for i in range(o.get("pf0", 2)):
        for s in pf_round(a): a.emit(s)
    a.wsetup = [f"v_and_b32 v{t0}, 2, v{r}", f"s_lshl_b32 s36, s{sRH}, 2", f"v_xor_b32 v{t0}, v{t0}, v{c}", f"v_xor_b32 v{t0}, s36, v{t0}",
                f"v_mul_u32_u24 v{t1}, 6144, v{r}", f"v_lshl_add_u32 v{t0}, v{t0}, 4, v{t1}", f"s_mul_i32 s36, s{sW}, {8*6144}",
                f"s_lshl_b32 s37, s{sHP}, 7", "s_add_u32 s36, s36, s37", f"v_add_u32 v{vWg[0]}, s36, v{t0}",
                f"v_add_u32 v{vWg[1]}, 2048, v{vWg[0]}", f"v_add_u32 v{vWg[2]}, 4096, v{vWg[0]}", f"s_lshl_b32 s{sWv}, s{sW}, 10",
                f"s_lshr_b32 s{sHH}, s{sW}, 1"]

def fillers_prologue(a):
    L = []
    f = L.append
    f("s_mov_b32 s16, s54"); f("s_and_b32 s17, s55, 0xffff"); f("s_mov_b32 s18, 0x10000000"); f("s_mov_b32 s19, 0x20000")
    f(f"s_mov_b32 s{sCode}, s56"); f(f"s_and_b32 s{sCode+1}, s57, 0xffff"); f(f"s_mov_b32 s{sCode+2}, L_END - L_PC0"); f(f"s_mov_b32 s{sCode+3}, 0x20000")
    f(f"s_mov_b32 s{sX}, s{pX}"); f(f"s_and_b32 s{sX+1}, s{pX+1}, 0xffff"); f(f"s_mov_b32 s{sX+2}, {2048*1024*2}"); f(f"s_mov_b32 s{sX+3}, 0x20000")
    n = a.opts.get('codelines', 20)
    f(f"s_mul_i32 s47, s35, {n}"); f(f"v_min_u32 v{vT[7]}, {n-1}, v{vLANE}"); f(f"v_add_u32 v{vT[7]}, s47, v{vT[7]}"); f(f"v_lshlrev_b32 v{vT[7]}, 7, v{vT[7]}")
    m, g_, t0, t1, row = vT[0], vT[1], vT[2], vT[3], vT[4]
    f(f"v_and_b32 v{m}, 15, v{vLANE}")
    f(f"v_lshrrev_b32 v{g_}, 4, v{vLANE}")
    f(f"v_lshrrev_b32 v{t0}, 1, v{m}")
    f(f"v_xor_b32 v{t0}, v{t0}, v{g_}")
    f(f"v_lshlrev_b32 v{t0}, 4, v{t0}")
    f(f"v_lshl_add_u32 v{t0}, v{m}, 7, v{t0}")
    f(f"s_lshl_b32 s36, s{sRH}, 13")
    f(f"v_add_u32 v{vXr[0]}, s36, v{t0}")
    f(f"v_xor_b32 v{vXr[1]}, 64, v{vXr[0]}")
    f(f"v_lshrrev_b32 v{t0}, 2, v{m}")
    f(f"v_lshl_add_u32 v{row}, v{g_}, 3, v{t0}")
    f(f"v_lshrrev_b32 v{t0}, 3, v{m}")
    f(f"v_and_b32 v{t1}, 1, v{g_}")
    f(f"v_lshl_or_b32 v{t0}, v{t1}, 1, v{t0}")
    f(f"s_lshl_b32 s36, s{sHH}, 1")
    f(f"v_xor_b32 v{t0}, s36, v{t0}")
    f(f"v_lshlrev_b32 v{t0}, 5, v{t0}")
    f(f"v_lshl_add_u32 v{t0}, v{row}, 7, v{t0}")
    f(f"v_and_b32 v{t1}, 3, v{m}")
    f(f"v_lshl_add_u32 v{t0}, v{t1}, 3, v{t0}")
    f(f"v_add_u32 v{vWr[0][0]}, {W_BASE}, v{t0}")
    f(f"v_xor_b32 v{vWr[0][1]}, 32, v{vWr[0][0]}")
    f(f"v_add_u32 v{vWr[1][0]}, {2*W_SLOT}, v{vWr[0][0]}")
    f(f"v_add_u32 v{vWr[1][1]}, {2*W_SLOT}, v{vWr[0][1]}")
    if a.opts.get("zinit"):
        for r in range(ACC0, 256):
            f(f"v_mov_b32 v{r}, 0")
    return L

def fillers_late(a):
    L = []
    f = L.append
    q, b, t = vT[0], vT[1], vT[2]
    f(f"v_lshlrev_b32 v{vL16}, 4, v{vLANE}")
    f(f"v_and_b32 v{q}, 31, v{vLANE}")
    f(f"v_lshrrev_b32 v{b}, 5, v{vLANE}")
    f(f"v_lshlrev_b32 v{b}, 2, v{b}")
    f(f"v_sub_u32 v{b}, v{q}, v{b}")
    f(f"v_add_u32 v{b}, 18, v{b}")
    f("v_mov_b32 v58, 0x5555"); f("v_mov_b32 v59, 0")
    f(f"v_lshlrev_b64 v[58:59], v{b}, v[58:59]")
    f("v_not_b32 v58, v58"); f("v_not_b32 v59, v59")
    f(f"s_mov_b32 s36, {NEGBIG}")
    for i in range(24):
        r, src = (i, 59) if i < 16 else (i - 8, 58)
        f(f"v_bfe_i32 v{vMc + i}, v{src}, {8*(r >> 2) + (r & 3)}, 1")
        f(f"v_and_b32 v{vMc + i}, s36, v{vMc + i}")
    f(f"v_lshrrev_b32 v{q}, 2, v{vLANE}")
    f(f"v_lshrrev_b32 v{t}, 4, v{vLANE}")
    f(f"v_xor_b32 v{q}, v{q}, v{t}")
    f(f"v_and_b32 v{q}, 1, v{q}")
    f(f"v_add_u32 v{q}, -1, v{q}")
    f(f"v_and_b32 v{q}, 0x3f803f80, v{q}")
    for i in range(4):
        f(f"v_accvgpr_write_b32 a{aONE+i}, v{q}")
    f(f"v_lshrrev_b32 v{q}, 1, v{vLANE}"); f(f"v_xor_b32 v{q}, v{q}, v{vLANE}"); f(f"v_and_b32 v{q}, 4, v{q}")
    f(f"v_lshl_or_b32 v{q}, v{q}, 1, v{q}"); f(f"v_xor_b32 v{q}, v{q}, v{vLANE}"); f(f"v_lshlrev_b32 v{vKS}, 4, v{q}")
    f(f"v_min_u32 v{vF0}, 1, v{vLANE}")
    f(f"v_lshlrev_b32 v{vF0}, 31, v{vF0}")
    f(f"s_mov_b32 s{sCS}, {CSCALE}"); f(f"s_mov_b32 s62, {CSCALE}"); f(f"s_mov_b32 s63, {CSCALE}")
    f(f"s_lshl_b32 s36, s{sHP}, 19")
    f(f"s_lshl_b32 s37, s{sW}, 13")
    f(f"s_lshl_b32 s38, s{sHH}, 14")
    f(f"s_lshl_b32 s39, s{sRH}, 13")
    f(f"s_add_u32 s{sKVdst}, s38, s39")
    f(f"s_add_u32 s{sKVbase}, s36, s{sKVdst}")
    f(f"s_lshl_b32 s{sKVt}, s{sT}, 15")
    f(f"s_add_u32 s{sKVsrc}, s{sKVbase}, s{sKVt}")
    f(f"s_and_b32 s{sKVt}, s{sT}, 7"); f(f"s_and_b32 s{sKVb}, s{sT}, 8")
    f(f"s_add_u32 s36, s38, {KV_LDS[0]}")
    f(f"v_add_u32 v{vKV[0]}, s36, v{vL16}")
    f(f"v_add_u32 v{vKV[1]}, 32768, v{vKV[0]}")
    f(f"s_lshl_b32 s{sHead}, s{sHP}, 1")
    f(f"s_add_u32 s{sHead}, s{sHead}, s{sHH}")
    f(f"s_lshl_b32 s{sSeq}, s{sT}, 1")
    f(f"s_add_u32 s{sSeq}, s{sSeq}, s{sRH}")
    f(f"s_lshl_b32 s37, s{sSeq}, 6")
    f(f"s_add_u32 s37, s37, s{sHead}")
    f(f"s_lshl_b32 s{sOst}, s37, 11")
    f(f"s_lshl_b32 s38, s{sHead}, 5")
    f(f"s_add_u32 s38, s38, s{sSeq}")
    f(f"s_lshl_b32 s28, s38, 2")
    f(f"s_lshl_b32 s38, s38, 12")
    f(f"s_add_u32 s{sHalo}, s38, {HALO_OFF}")
    f(f"s_mov_b32 s{sPASS}, 0")
    f(f"s_add_u32 s{sKVp}, s54, s{sKVbase}\ns_addc_u32 s{sKVp+1}, s55, 0")
    f("s_lshl_b32 s36, s2, 2"); f(f"s_add_u32 s36, s36, s{sW}"); f("s_lshl_b32 s36, s36, 11")
    f(f"v_and_b32 v24, 15, v{vLANE}"); f("v_lshlrev_b32 v24, 7, v24"); f("v_add_u32 v60, s36, v24")
    f("s_lshr_b32 s36, s2, 3"); f("s_mul_i32 s37, s36, 11"); f(f"v_min_u32 v61, 10, v{vLANE}"); f("v_add_u32 v61, s37, v61"); f("v_lshlrev_b32 v61, 16, v61")
    f("s_lshl_b32 s37, s36, 1"); f(f"v_min_u32 v62, 1, v{vLANE}"); f("v_add_u32 v62, s37, v62"); f("v_lshlrev_b32 v62, 16, v62")
    f("s_lshr_b32 s36, s2, 3"); f("s_lshl_b32 s36, s36, 2"); f(f"s_add_u32 s36, s36, s{sW}"); f("s_lshl_b32 s36, s36, 14")
    f("v_add_u32 v0, s36, v24")
    f(f"s_lshl_b32 s36, s{sSeq}, 6")
    f(f"s_lshl_b32 s37, s{sHead}, 1")
    f("s_add_u32 s36, s36, s37")
    f(f"v_lshrrev_b32 v9, 5, v{vLANE}")
    f(f"v_add_u32 v{vGrow}, s36, v9")
    f(f"v_and_b32 v25, 31, v{vLANE}")
    f("v_lshlrev_b32 v25, 4, v25")
    f(f"v_lshl_add_u32 v9, v{vGrow}, 11, v25")
    f(f"s_mov_b32 s56, s{sPG}"); f(f"s_and_b32 s57, s{sPG+1}, 0xffff"); f("s_mov_b32 s58, 2048"); f("s_mov_b32 s59, 0x20000")
    f(f"s_lshl_b32 s38, s{sHP}, 2"); f(f"s_add_u32 s38, s38, s{sW}"); f("s_lshl_b32 s38, s38, 6")
    f(f"s_add_u32 s31, s38, {F_KV}"); f(f"s_lshl_b32 s38, s{sT}, 2"); f("s_add_u32 s32, s31, s38")
    f(f"s_add_u32 s33, s28, {F_H - 4}"); f(f"s_cmp_eq_u32 s{sSeq}, 0\ns_cselect_b32 s38, 4, 0"); f("s_add_u32 s33, s33, s38")
    return L

def gemm1(a):
    o = a.opts
    p1 = P1(a)
    W = lambda j, ps: [("W", j, p) for p in ps]
    X = lambda v, ps: [("X", v, p) for p in ps]
    pro = X(0, range(4)) + W(0, range(6)) + W(1, range(6))
    sched = {(0,0): X(1, range(4)) + W(2, [0,1]), (0,1): W(2, [2,3,4,5]) + W(3, [0,1]),
             (1,0): W(3, [2,3,4,5]) + W(4, [0,1]), (1,1): X(2, range(4)) + W(4, [2,3]),
             (2,0): W(4, [4,5]) + W(5, [0,1,2,3]), (2,1): W(5, [4,5]) + X(3, range(4)),
             (3,0): W(6, range(6))}
    for u in range(3, 28):
        v, p0 = ((u + 5)//2, 0) if u & 1 else ((u + 4)//2, 2)
        sched[(u, 1)] = W(u + 4, [0,1,2]) + (X(v, [p0]) if v < 16 else [])
        sched[(u + 1, 0)] = W(u + 4, [3,4,5]) + (X(v, [p0 + 1]) if v < 16 else [])
    if o.get("w1late", 0):
        pro = X(0, range(4)) + W(0, range(6))
        sched.update({(0,0): W(1, range(6)), (0,1): X(1, range(4)) + W(2, [0,1]), (1,0): W(2, [2,3,4,5]) + W(3, [0,1]),
                      (1,1): W(3, [2,3,4,5]) + X(2, [0,1]), (2,0): X(2, [2,3]) + W(4, [0,1,2,3]), (2,1): W(4, [4,5]) + W(5, [0,1,2,3]),
                      (3,0): W(5, [4,5]) + X(3, range(4)), (3,1): W(6, range(6)), (4,0): W(7, range(6)),
                      (4,1): W(8, [0,1,2]) + X(4, [0,1,2]), (5,0): W(8, [3,4,5]) + X(4, [3])})
    U0 = o.get("u0", 28)
    if U0 == 28:
        sched[(27, 1)] = W(31, range(6)); del sched[(28, 0)]
    for (u, hf), ps in sched.items():
        done = u - 1 if hf == 0 else u
        for k, j, p in ps:
            if k == "W": assert j < 4 or done >= j - 4, (u, hf, k, j)
            else: assert j < 3 or done >= 2*(j - 3) + 1, (u, hf, k, j)
    npf0 = o.get("pf0", 2)
    pfs = {}
    r = npf0
    for u in range(0, 32):
        while r < 16 and u >= max(0, 2*r - o.get("pfd", 5)) and pfs.get(u, 0) < 1:
            pfs[u] = pfs.get(u, 0) + 1; r += 1
    fil = fillers_prologue(a)
    late = fillers_late(a)
    post_issue = []
    if o.get("latepro", 1) == 1: fil += late; late = []
    if o.get("latepro", 1) == 2: post_issue = late; late = []
    if o.get("latepro", 1) == 3: post_issue = fil[42:] + late; fil = fil[:42]; late = []
    ws_ = a.wsetup
    chunks = [ws_[0:4], ws_[4:8], ws_[8:11], ws_[11:14]]
    per = (len(fil) + len(pro) - 5)//(len(pro) - 4)
    chunks += [fil[i*per:(i+1)*per] for i in range(len(pro) - 4)]
    for pc, chunk in zip(pro, chunks):
        pre, d, post = p1.dma(pc)
        for s in pre: a(s)
        a(chunk[0] if chunk else "s_nop 0")
        a.emit(d)
        for s in post + chunk[1:]: a(s)
    for s in post_issue: a(s)
    a(f"s_or_b32 s36, s2, s{sW}")
    a("s_cmp_lg_u32 s36, 0")
    a("s_cbranch_scc1 L_NONONCE")
    a("s_memrealtime s[36:37]")
    a("v_mov_b32 v20, 0")
    a("s_waitcnt lgkmcnt(0)")
    a("s_or_b32 s36, s36, 1")
    a("v_mov_b32 v19, s36")
    a(f"global_store_dword v20, v19, s[{sPDbg}:{sPDbg+1}] sc1")
    a("L_NONONCE:")
    a.stamp("issued")
    a.emit(a.wait(["X0", "W0"]))
    a("s_barrier")
    a.stamp("first")
    for s in x_reads(0, 0) + w_reads(0, 0, (0, 1, 2)): a(s)
    a("s_waitcnt lgkmcnt(0)")
    def need(u): return [f"W{u}"] + ([f"X{u//2}"] if u % 2 == 0 else [])
    def seq(M, keys=None): return [M[k] for k in (keys or sorted(M))]
    roll = o.get("roll", 0)
    if roll:
        assert U0 == 28 and not late
        raise Exception("rolled loop needs bounds-checked prefetch")
        assert all(pfs.get(u, 0) == pfs.get(u + 12, 0) for u in range(4, 16)), pfs
    def half(u, hf):
        if hf == 0: reads = w_reads(1, u, (3, 4, 5))
        else: reads = x_reads((u + 1) & 1, u + 1) + w_reads(0, u + 1, (0, 1, 2) if u + 1 < U0 else (1, 2))
        sides = {}
        ps = sched.get((u, hf), [])
        lay = o.get("glay", 1)
        if lay == 0 or len(ps) > 4:
            for g, rd in enumerate(reads): sides.setdefault(g, []).append(rd)
            D = ([[13, 16, 19, 22], [12, 14, 16, 18, 20, 22]] if hf == 0 else [[17, 19, 21, 23], [13, 15, 17, 19, 21, 23]])[len(ps) > 4]
            if (u, hf) == (0, 0) and o.get("w1late", 0): D = [1, 3, 5, 7, 9, 11]
            for g, pc in zip(D, ps):
                pre, d, post = p1.dma(pc)
                sides.setdefault(g - 1, []).extend(pre)
                sides.setdefault(g, []).insert(0, d)
                sides[g].extend(post)
        else:
            D = {1: [2, 8, 14, 20], 2: [4, 10, 16, 22], 3: [3, 9, 15, 21], 4: [5, 11, 17, 23]}[lay]
            free = [g for g in range(24) if g not in D[:len(ps)]]
            for g, rd in zip(free, reads): sides.setdefault(g, []).append(rd)
            for g, pc in zip(D, ps):
                pre, d, post = p1.dma(pc)
                sides.setdefault(g - 1, []).extend(pre)
                sides.setdefault(g, []).insert(0, d)
                sides.setdefault(min(g + 1, 23), []).extend(post)
        if o.get("tlb", 0) >= 2 and (u, hf) == (o.get("tlbstep", 20), 0):
            sides.setdefault(23, []).append((f"global_load_dword v{vPFd}, v61, s[54:55]", "tlb"))
        if o.get("tlb", 0) >= 1 and (u, hf) == (o.get("tlbstep", 20) + 2, 0):
            sides.setdefault(23, []).append((f"global_load_dword v{vPFd}, v62, s[{sPOut}:{sPOut+1}]", "tlb"))
        if hf == 0 and pfs.get(u):
            sides.setdefault(23, []).extend(pf_round(a))
        if u >= 4 and late:
            for g in range(24):
                cur = sides.get(g, [])
                if any(isinstance(x, tuple) or x.startswith("ds_") for x in cur): continue
                room = o.get("lateper", 2) - (1 if cur else 0)
                while late and room > 0:
                    x = late.pop(0); sides.setdefault(g, []).append(x); room -= len(x.split("\n"))
        if roll and (u, hf) in ((15, 0), (27, 0)):
            sides.setdefault(14, []).append("s_sub_u32 s35, s35, 1")
        a.inter(seq(g1_mfmas(u & 1, hf, (0, 1, 2) if hf == 0 else (3, 4, 5), first=(u == 0 and not o.get('zinit')))), sides)
        if roll and (u, hf) in ((15, 0), (27, 0)):
            a("s_cmp_lg_u32 s35, 0")
        if hf == 0:
            a.emit(a.wait(need(u + 1), lgkm=True))
            a("s_barrier")
        elif u + 1 < U0:
            a("s_waitcnt lgkmcnt(0)")
        if hf == 1 and u % 8 == 7 and not roll: a.stamp(f"g{u}")
    halves = [(u, hf) for u in range(U0) for hf in range(2)]
    if not roll:
        for h in halves: half(*h)
    else:
        for h in halves[:7]: half(*h)
        a("s_mov_b32 s35, 2")
        n0 = len(a.lines)
        for h in halves[7:31]: half(*h)
        p1_ = a.lines[n0:]; del a.lines[n0:]
        for h in halves[31:55]: half(*h)
        p2_ = a.lines[n0:]; del a.lines[n0:]
        assert len(p1_) == len(p2_)
        if o.get("galign"): a(f".p2align {o['galign']}")
        a("L_G1:")
        import re
        for x, y in zip(p1_, p2_):
            if x != y:
                mx, my = re.fullmatch(r"\s*s_waitcnt vmcnt\((\d+)\) lgkmcnt\(0\)", x), re.fullmatch(r"\s*s_waitcnt vmcnt\((\d+)\) lgkmcnt\(0\)", y)
                assert mx and my, (x, y)
                x = f"s_waitcnt vmcnt({min(int(mx.group(1)), int(my.group(1)))}) lgkmcnt(0)"
            a(x)
        a("s_cbranch_scc1 L_G1")
        half(27, 1)
    misc = []
    for j in range(8):
        misc.append((f"buffer_load_dwordx4 {ar(aGATE+4*j, 4)}, v9, s[{sX}:{sX+3}], 0 offen offset:{512*j}" if j < 4 else
                     f"buffer_load_dwordx4 {ar(aGATE+4*j, 4)}, v25, s[56:59], 0 offen offset:{512*(j-4)}", "gate"))
    misc = [(f"global_load_dword v21, v19, s[{sPDbg}:{sPDbg+1}] sc1", "nonce"),
            (f"buffer_load_dword v{vPFd}, v{vT[7]}, s[{sCode}:{sCode+3}], 0 offen", "cpf")] + misc
    if o.get("wom", 1): misc.insert(o.get("wompos", 10), (f"global_load_dword v{vPFd}, v60, s[{sPWoB}:{sPWoB+1}]", "wopf"))
    if o.get("wom", 1) > 1: misc.append((f"global_load_dword v{vPFd}, v60, s[{sPWoA}:{sPWoA+1}]", "wopf"))
    if o.get("tlb", 0) == 1:
        misc[-0:] = misc[-0:] + [(f"global_load_dword v{vPFd}, v61, s[54:55]", "tlb")]
    xs, ws_ = U0 & 1, 0
    units = [(u, b) for u in range(U0, 31) for b in ((0, 3), (4, 5))] + [(31, (4, 5)), (31, (3, 0))]
    bfirst = o.get("bfirst", 1)
    if bfirst: units = [(u, (4, 5)) for u in range(U0, 32)] + [(u, (3, 0)) for u in range(U0, 32)]
    for u in range(U0, 32):
        if u < 31:
            a.emit(a.wait(need(u + 1), lgkm=True)); a("s_barrier")
        else:
            a("s_waitcnt lgkmcnt(0)")
        reads = x_reads(1 - xs, u + 1) + w_reads(1 - ws_, u + 1, (1, 2)) if u < 31 else x_reads(1 - xs, U0) + w_reads(1 - ws_, *units[0])
        sides = {}
        for i, rd in enumerate(reads): sides.setdefault(i, []).append(rd)
        if u == U0:
            sides.setdefault(0, []).append("v_mov_b32 v19, 0")
            sides.setdefault(1, []).append(f"s_add_u32 s25, s{sKVsrc}, 4096"); sides.setdefault(2, []).append(f"s_mov_b32 s26, s{sKVsrc}")
        for g in ((12, 13, 15) if U0 == 28 else (12, 13, 14, 15)):
            if misc: sides.setdefault(g, []).append(misc.pop(0))
        M = g1_mfmas(xs, ws_, (1, 2))
        a.inter(seq(M, [(i, nt, mt) for rt in range(2) for i in range(2) for nt in range(2) for mt in (2*rt, 2*rt + 1)]), sides)
        xs ^= 1; ws_ ^= 1
    assert not misc
    a.stamp("gP")
    e1_lists(a)
    kvw = pk16(KA[0], pKA[0]) + a.kv.pop(0) + pk16(VA[0], pVA[0]) + pk16(KA[1], pKA[1]) + pk16(VA[1], pVA[1])
    st_units = {28: [1, 2, 3, 4, 5, 6, 7], 29: [1, 2, 3, 4, 5]}[U0]
    for n, (u, blks) in enumerate(units):
        last = n == len(units) - 1
        a("s_waitcnt lgkmcnt(0)")
        if last: a("s_barrier")
        reads = []
        newx = False
        if not last:
            un, bn = units[n + 1]
            newx = un != u
            reads = (x_reads(1 - xs, un) if newx else []) + w_reads(1 - ws_, un, bn)
        sides = {}
        for i, rd in enumerate(reads): sides.setdefault(i, []).append(rd)
        M = g1_mfmas(xs, ws_, blks)
        keys = None
        if bfirst and n == len(units)//2:
            kvw += pk16(KB[1], pKB[1]) + pk16(VB[1], pVB[1], True) + pk16(KB[0], pKB[0]) + pk16(VB[0], pVB[0], True)
        if n >= len(units) - 2 or (bfirst and n == len(units)//2 - 1):
            keys = [(i, nt, mt) for rt in (1, 0) for i in range(2) for nt in range(2) for mt in (2*rt, 2*rt + 1)]
            if last: keys = [(i, nt, mt) for i in range(2) for rt in (1, 0) for nt in range(2) for mt in (2*rt, 2*rt + 1)]
        if last:
            e1_head(a, sides, kvw if bfirst else None); kvw = []
        else:
            for g in range(4 if n == 0 else 0, 16):
                budget = 1 if g < len(reads) else 2
                if n in st_units and g == 15: budget = 0
                while kvw and budget > 0:
                    cost = 2 if (isinstance(kvw[0], tuple) or "permlane" in kvw[0]) else 1
                    if cost > budget and o.get("rstrict", 1): break
                    sides.setdefault(g, []).append(kvw.pop(0))
                    budget -= cost
        if n in st_units:
            st_ = a.kv.pop(0)
            lo = int(st_[0][0].split("v[")[1].split(":")[0])
            assert not any(isinstance(x, str) and any(f"v{lo+i}," in x.split(None, 1)[1].split(", v")[0] + "," or x.endswith(f" v{lo+i}") and "permlane" in x for i in range(4)) for x in kvw), (n, lo)
            sides.setdefault(1 if last else 15, []).extend(st_)
        a.inter(seq(M, keys), sides)
        ws_ ^= 1
        if newx: xs ^= 1
    assert not kvw
    a.stamp("g31")
    assert not late

def packl(base, out=None):
    out = base if out is None else out
    return [f"v_cvt_pk_bf16_f32 v{out+j}, v{base+2*j}, v{base+2*j+1}" for j in range(8)]
def pk16(base, out=None, vb=False):
    out = base if out is None else out
    l = packl(base, out) + [f"v_permlane16_swap_b32 v{out+i}, v{out+i+2}" for i in (0, 1, 4, 5)]
    if vb: l += [f"v_permlane32_swap_b32 v{out+i}, v{out+i+2}" for i in (0, 1, 4, 5)]
    return l
def pko(base, out=None):
    out = base if out is None else out
    return packl(base, out) + ["s_nop 0"] + [f"v_permlane16_swap_b32 v{out+j}, v{out+4+j}" for j in range(4)]
def pack(a, base, out=None):
    for s in packl(base, out): a(s)
class L(list):
    def __call__(self, s): self.append(s)
    def emit(self, s): self.append(s)
def weave(a, work, extra, first, every):
    nxt = first
    for i, w in enumerate(work):
        while extra and i >= nxt:
            for s in extra.pop(0): a.emit(s)
            nxt += every
        a.emit(w)

def padfill(a, fill, n):
    k = 0
    for f in fill:
        a.emit(f); k += len(f.split("\n")) if isinstance(f, str) else 1
    if k < n: a(f"s_nop {n - k - 1}")

def local_tile(a, Q, Kc, Vc, Kp, Vp1, SC, SP, O, PC, PP, tmp, off, tag, fill1=(), fill2=()):
    m, t = tmp, tmp + 1
    a(mf32(vr(SC, 16), vr(Kc, 4), vr(Q, 4), vr(vMc, 16)))
    a(mf32(vr(SC, 16), vr(Kc+4, 4), vr(Q+4, 4), vr(SC, 16)))
    a(mf32(vr(SP, 16), vr(Kp, 4), vr(Q, 4), vr(vMc + 8, 16)))
    a(mf32(vr(SP, 16), vr(Kp+4, 4), vr(Q+4, 4), vr(SP, 16)))
    padfill(a, fill1, 10)
    vals = [SC + i for i in range(16)] + [SP + 8 + i for i in range(8)]
    a(f"v_max3_f32 v{m}, v{vals[0]}, v{vals[1]}, v{vals[2]}")
    for i in range(3, 23, 2):
        a(f"v_max3_f32 v{m}, v{m}, v{vals[i]}, v{vals[i+1]}")
    a(f"v_max_f32 v{m}, v{m}, v{vals[23]}")
    a(f"v_mov_b32 v{t}, v{m}")
    a("s_nop 1")
    a(f"v_permlane32_swap_b32 v{m}, v{t}")
    a(f"v_max_f32 v{m}, v{m}, v{t}")
    a(f"v_mul_f32 v{m}, s{sCS}, v{m}")
    for v in vals:
        a(f"v_fma_f32 v{v}, v{v}, s{sCS}, -v{m}")
    L = SP
    for i in range(10): a(f"v_exp_f32 v{vals[i]}, v{vals[i]}")
    for j in range(4): a(f"v_cvt_pk_bf16_f32 v{PC+j}, v{SC+2*j}, v{SC+2*j+1}")
    for i in range(10, 13): a(f"v_exp_f32 v{vals[i]}, v{vals[i]}")
    a(mf32(vr(O, 16), vr(Vc, 4), vr(PC, 4), 0))
    for i in range(13, 18): a(f"v_exp_f32 v{vals[i]}, v{vals[i]}")
    a(mf16(vr(L, 4), ar(aONE, 4), vr(PC, 4), 0))
    for j in range(4, 8): a(f"v_cvt_pk_bf16_f32 v{PC+j}, v{SC+2*j}, v{SC+2*j+1}")
    for i in range(18, 20): a(f"v_exp_f32 v{vals[i]}, v{vals[i]}")
    a(mf32(vr(O, 16), vr(Vc+4, 4), vr(PC+4, 4), vr(O, 16)))
    for i in range(20, 24): a(f"v_exp_f32 v{vals[i]}, v{vals[i]}")
    a(mf16(vr(L, 4), ar(aONE, 4), vr(PC+4, 4), vr(L, 4)))
    for j in range(4): a(f"v_cvt_pk_bf16_f32 v{PP+j}, v{SP+8+2*j}, v{SP+9+2*j}")
    a("s_nop 1")
    a(mf16(vr(L, 4), ar(aONE, 4), vr(PP, 4), vr(L, 4)))
    a(mf32(vr(O, 16), vr(Vp1, 4), vr(PP, 4), vr(O, 16)))
    padfill(a, fill2, 7)
    a(f"v_rcp_f32 v{m}, v{L}")
    a(f"s_add_u32 s35, s{sOst}, {OB_OFF + off}")
    a("s_nop 2")
    for i in range(16):
        a(f"v_mul_f32 v{O+i}, v{O+i}, v{m}")
    return [(f"buffer_store_dwordx4 {{0}}, v{vL16}, {WS}, s35 offen sc1", tag),
            (f"buffer_store_dwordx4 {{0}}, v{vL16}, {WS}, s35 offen offset:1024 sc1", tag)]

def flag_store(sreg, vtmp, tag):
    return [f"v_mov_b32 v{vtmp}, s{sNONCE}", (f"buffer_store_dword v{vtmp}, v{vF0}, {WS}, s{sreg} offen sc1", tag)]

def poll_check(a, name, vdst, vaddr, sreg, tag, mask=-1):
    a.emit(a.wait([tag]))
    a(f"v_cmp_ne_u32 vcc, s{sNONCE}, v{vdst}")
    a(f"s_and_b32 s{sSpin}, vcc_lo, {mask}")
    a(f"s_cbranch_scc1 {name}_S")
    a(f"{name}_R:")
    a.tail.append(f"""{name}_S:
    s_mov_b32 s{sSpin}, 0
{name}_L:
    buffer_load_dword v{vdst}, v{vaddr}, {WS}, s{sreg} offen sc1
    s_add_u32 s{sSpin}, s{sSpin}, 1
    s_waitcnt vmcnt(0)
    v_cmp_ne_u32 vcc, s{sNONCE}, v{vdst}
    s_cmp_lt_u32 s{sSpin}, 0x40000
    s_cbranch_scc0 {name}_R
    s_nop 2
    s_and_b32 vcc_hi, vcc_lo, {mask}
    s_cbranch_scc1 {name}_L
    s_branch {name}_R""")

def e1_lists(a):
    a.halo = [[(f"buffer_store_dwordx4 {vr(pKB[1], 4)}, v{vL16}, {WS}, s{sHalo} offen sc1", "halo")],
              [(f"buffer_store_dwordx4 {vr(pKB[1]+4, 4)}, v{vL16}, {WS}, s{sHalo} offen offset:1024 sc1", "halo")],
              [(f"buffer_store_dwordx4 {vr(pVB[1]+4, 4)}, v{vL16}, {WS}, s{sHalo} offen offset:2048 sc1", "halo")]]
    a.kv = []; a.dsw = []
    for rt in range(2):
        for (blk, f0) in ((pKA[rt], 0), (pVA[rt], 2)):
            for f in range(2):
                off = (f0 + f)*1024
                a.kv.append([(f"buffer_store_dwordx4 {vr(blk+4*f, 4)}, v{vL16 if f0 else vKS}, {WS}, s{26 if rt == 0 else 25} offen offset:{off} sc1", "kv")])
                a.dsw.append([f"ds_write_b128 v{22 if f0 else vKL}, {vr(blk+4*f, 4)} offset:{rt*4096 + off}"])

def e1_head(a, sides, left):
    w = [f"s_add_u32 s36, s{sKVdst}, {KV_LDS[0]}", f"v_add_u32 v22, s36, v{vL16}", f"v_add_u32 v{vKL}, s36, v{vKS}", f"v_add_u32 v{vL16b}, 4096, v{vL16}"]
    if left is None: w += pk16(KB[1], pKB[1]) + pk16(VB[1], pVB[1], True) + pk16(KB[0], pKB[0]) + pk16(VB[0], pVB[0], True)
    else: w += left + sel_init(23, 24)[:5] + sel_init(23, 24)[13:]
    a.selrest = sel_init(23, 24) if left is None else sel_init(23, 24)[5:13]
    for g in range(16):
        budget = 2
        if g % 2 == 1 and g > 1:
            sides.setdefault(g, []).extend(a.dsw.pop(0)); budget = 0
        while w and budget > 0:
            x = w.pop(0)
            sides.setdefault(g, []).append(x)
            budget -= 2 if "permlane" in x else (0 if x.startswith("s_") else 1)
    a.e1rest = w

def e1(a):
    o = a.opts
    pend = a.kv + a.halo
    a.emit(a.wait(["nonce"]))
    a(f"v_readfirstlane_b32 s{sNONCE}, v21")
    w = a.e1rest + pk16(QB[1], 240) + a.selrest + pk16(QB[0], pQB[0])
    weave(a, w, a.dsw, 2, 8)
    a(f"s_cmp_eq_u32 s{sNONCE}, 0")
    a("s_cbranch_scc1 L_NONCE_S")
    a("L_NONCE_R:")
    a.tail.append(f"""L_NONCE_S:
    s_mov_b32 s{sSpin}, 0
L_NONCE_L:
    global_load_dword v21, v19, s[{sPDbg}:{sPDbg+1}] sc1
    s_add_u32 s{sSpin}, s{sSpin}, 1
    s_waitcnt vmcnt(0)
    v_readfirstlane_b32 s{sNONCE}, v21
    s_cmp_lt_u32 s{sSpin}, 0x40000
    s_cbranch_scc0 L_NONCE_R
    s_nop 2
    s_cmp_eq_u32 s{sNONCE}, 0
    s_cbranch_scc1 L_NONCE_L
    s_branch L_NONCE_R""")
    for s in pend.pop(0): a.emit(s)
    a.stamp("e1pack")
    qa = []
    for q in QA:
        qa += [f"v_pk_mul_f32 {vr(q+2*j, 2)}, {vr(q+2*j, 2)}, s[62:63]" for j in range(8)] + pk16(q)
    lt = L()
    st = local_tile(lt, 240, pKB[1], pVB[1], pKB[0], pVB[0]+4, 128, 144, 176, 168, 248, 252, 65536, "ob1", fill1=qa[:26], fill2=qa[26:])
    lt += pko(176, 56)
    a.ob1 = [(st[0][0].format("v[56:59]"), "ob1"), (st[1][0].format("v[60:63]"), "ob1")]
    weave(a, lt, pend, o.get("st_a", 40), o.get("st_b", 50))
    for g in pend:
        for s in g: a.emit(s)
    a.stamp("loc1")
    a.emit(a.wait(["kv"], lgkm=True))
    for s in flag_store(32, 20, "fKV"): a.emit(s)
    a("s_barrier")
    a.stamp("fKV")

sKVp, sKVg, sOg, sPFW = 84, 98, 100, 52
vL16b = 5
def kv_dma(slot, group, tag):
    out = [f"s_add_u32 m0, s{sKVdst}, {KV_LDS[slot] + group*4096}"]
    for p in range(4):
        out.append((f"global_load_lds_dwordx4 v{vL16b if group else vL16}, s[{sKVg}:{sKVg+1}] offset:{p*1024} sc1", tag))
    return out
sKVb, sKVd = 3, 34
def kv_advance(c):
    if c <= 7:
        return [f"s_cmp_le_u32 s{sKVt}, {c-1}", f"s_addc_u32 s36, s{sKVb}, {c-1}", "s_lshl_b32 s36, s36, 15",
                f"s_add_u32 s{sKVg}, s{sKVp}, s36", f"s_addc_u32 s{sKVg+1}, s{sKVp+1}, 0"]
    return [f"s_add_u32 s36, s{sKVb}, {c}", "s_and_b32 s36, s36, 15", "s_lshl_b32 s36, s36, 15",
            f"s_add_u32 s{sKVg}, s{sKVp}, s36", f"s_addc_u32 s{sKVg+1}, s{sKVp+1}, 0"]

def sel_init(t0, t1):
    return [f"v_lshrrev_b32 v{t0}, 1, v{vLANE}", f"v_and_b32 v{t0}, 3, v{t0}", f"v_min_u32 v{t1}, 1, v{t0}", f"v_add_u32 v{t1}, -1, v{t1}",
            f"v_and_b32 v{t1}, 0x3f803f80, v{t1}", f"v_accvgpr_write_b32 a{aSEL}, v{t1}", f"v_accvgpr_write_b32 a{aSEL+1}, v{t1}",
            f"v_xor_b32 v{t0}, 2, v{t0}", f"v_min_u32 v{t1}, 1, v{t0}", f"v_add_u32 v{t1}, -1, v{t1}",
            f"v_and_b32 v{t1}, 0x3f803f80, v{t1}", f"v_accvgpr_write_b32 a{aSEL+2}, v{t1}", f"v_accvgpr_write_b32 a{aSEL+3}, v{t1}",
            f"v_and_b32 v{vIDX}, 1, v{vLANE}", f"v_mul_u32_u24 v{vIDX}, 0xaaaa, v{vIDX}", f"v_add_u32 v{vIDX}, 0x4444, v{vIDX}"]
def smf(q): return f"v_smfmac_f32_16x16x64_bf16 {ar(aL[q], 4)}, {ar(aSEL, 4)}, {vr(P[q], 8)}, v{vIDX}"

def H(a, q, vpar, qk=True, pv=True, pv_first=False, slots=None):
    slots = slots or {}
    o = 1 - q
    e = [f"v_exp_f32 v{S[q]+i}, v{S[q]+i}" for i in range(16)]
    c = [f"v_cvt_pk_bf16_f32 v{P[q]+j}, v{S[q]+2*j}, v{S[q]+2*j+1}" for j in range(8)]
    So, Oo = vr(S[o], 16), ar(aO[o], 16)
    M = [mf32(So, ar(aK, 4), vr(QA[o], 4), vr(NM[o], 16)) if qk else None,
         mf32(So, ar(aK+4, 4), vr(QA[o]+4, 4), So) if qk else None,
         mf32(Oo, ar(aV[vpar], 4), vr(P[o], 4), 0 if pv_first else Oo) if pv else None,
         mf32(Oo, ar(aV[vpar]+4, 4), vr(P[o]+4, 4), Oo) if pv else None,
         smf(o) if pv else None, None]
    V = [[e[0], e[1], e[2]], [e[3], c[0], c[1], e[4]], [e[5], e[6], e[7]], [c[2], c[3], e[8], e[9], e[10], e[11], c[4], c[5]],
         [], [e[12], e[13], e[14], e[15], c[6], c[7]]]
    if not pv: V[3] = ["s_nop 0"] + V[3]
    for i in range(6):
        if M[i]: a(M[i])
        for s in slots.get(i, []): a.emit(s)
        for s in V[i]: a(s)

def rdK(slot, off): return [f"ds_read_b128 {ar(aK, 4)}, v{vKV[slot]} offset:{off}", f"ds_read_b128 {ar(aK+4, 4)}, v{vKV[slot]} offset:{off+1024}"]
def rdV(par, slot, off): return [f"ds_read_b128 {ar(aV[par], 4)}, v{vKV[slot]} offset:{off+2048}", f"ds_read_b128 {ar(aV[par]+4, 4)}, v{vKV[slot]} offset:{off+3072}"]

FREE_A = [0, 3, 4]; FREE_B = [2, 3, 4, 5]
TORD = [0, 2, 1, 3]
def tile(a, n, side=None, end_b=None):
    sa = {}; sb = {}
    if n < 63:
        m = n + 1
        k = rdK((m >> 2) & 1, TORD[m & 3]*4096); v = rdV(m & 1, (m >> 2) & 1, TORD[m & 3]*4096)
        sa[1] = [k[0]]; sa[2] = [k[1]]; sa[5] = ["s_waitcnt lgkmcnt(0)"]
        sb[0] = [v[0]]; sb[1] = [v[1]]
    if side is not None:
        for g in FREE_A:
            if side: sa.setdefault(g, []).extend(side.pop(0))
        for g in (FREE_B if end_b is None else FREE_B[:-1]):
            if side: sb.setdefault(g, []).extend(side.pop(0))
        if sb.get(4) and sb.get(5) and isinstance(sb[4][-1], str) and " m0," in sb[4][-1] and isinstance(sb[5][0], tuple):
            if not sb.get(3): sb[3] = sb.pop(4)
            elif len(sb[3]) == 1 and isinstance(sb[3][0], str) and " m0," not in sb[3][0] and not sb[3][0].startswith(("s_cmp", "s_addc", "s_add_u32 s9", "s_add_u32 s10")):
                sb[3], sb[4] = sb[4], sb[3]
            else: sb[4] = sb[4] + ["s_nop 0"]
    if end_b: sb.setdefault(5, []).extend(end_b)
    H(a, 0, (n - 1) & 1, pv=(n != 0), pv_first=(n == 1), slots=sa)
    H(a, 1, n & 1, qk=(n < 63), pv_first=(n == 0), slots=sb)

def neg_max(a):
    for q in range(2): a(f"v_mov_b32 v{21+q}, v{19+q}")
    a("s_nop 0")
    for q in range(2): a(f"v_permlane32_swap_b32 v{19+q}, v{21+q}")
    for q in range(2): a(f"v_max_f32 v{19+q}, v{19+q}, v{21+q}")
    for q in range(2):
        for i in range(16): a(f"v_sub_f32 v{NM[q]+i}, 0, v{19+q}")

def gate_compute(a):
    z, t = 23, 24
    for i in range(16):
        a(f"v_accvgpr_read_b32 v{96+(i%4)}, a{aGATE+i}")
        a(f"v_accvgpr_read_b32 v{100+(i%4)}, a{aGATE+16+i}")
        a(f"v_dot2_f32_bf16 v{z}, v{96+(i%4)}, v{100+(i%4)}, {0 if i == 0 else 'v%d' % z}")
    a("s_nop 2")
    for sh in (8, 4, 2, 1):
        a(f"v_add_f32_dpp v{z}, v{z}, v{z} row_ror:{sh} row_mask:0xf bank_mask:0xf")
        a("s_nop 1")
    a(f"v_mov_b32 v{t}, v{z}")
    a("s_nop 1")
    a(f"v_permlane16_swap_b32 v{z}, v{t}")
    a(f"v_add_f32 v{z}, v{z}, v{t}")
    a(f"v_mul_f32 v{z}, {f2u(-math.log2(math.e))}, v{z}")
    a(f"v_exp_f32 v{z}, v{z}")
    a(f"v_and_b32 v{t}, 31, v{vLANE}")
    a(f"v_add_f32 v{z}, 1.0, v{z}")
    a(f"v_rcp_f32 v{z}, v{z}")
    a(f"v_min_u32 v{t}, 1, v{t}")
    a(f"v_lshlrev_b32 v{t}, 31, v{t}")
    a(f"v_lshl_or_b32 v{t}, v{vGrow}, 2, v{t}")
    a(f"s_mov_b32 s36, {G_OFF}")
    a.emit((f"buffer_store_dword v{z}, v{t}, {WS}, s36 offen sc1", "g"))

def p4_setup(a):
    srd(a, sWoA, sPWoA, sPWoA+1, 1024*1024*2)
    srd(a, sWoB, sPWoB, sPWoB+1, 1024*1024*2)
    srd(a, sOutD, sPOut, sPOut+1, 2048*1024*2)
    a("s_and_b32 s36, s2, 7")
    a("s_lshr_b32 s37, s2, 3")
    a(f"s_and_b32 s{sC4}, s37, 15")
    a("s_lshr_b32 s37, s37, 4")
    a("s_lshl_b32 s36, s36, 1")
    a(f"s_add_u32 s{sT4}, s36, s37")
    r, c, t0, t1 = 200, 201, 202, 203
    a(f"v_lshrrev_b32 v{r}, 3, v{vLANE}")
    a(f"v_and_b32 v{c}, 7, v{vLANE}")
    a(f"v_and_b32 v{t0}, 2, v{r}")
    a(f"s_lshl_b32 s36, s{sHH}, 2")
    a(f"v_xor_b32 v{t0}, v{t0}, v{c}")
    a(f"v_xor_b32 v{t0}, s36, v{t0}")
    a(f"v_lshlrev_b32 v{t0}, 4, v{t0}")
    a(f"v_lshl_add_u32 v{t0}, v{r}, 11, v{t0}")
    a(f"s_lshl_b32 s36, s{sW}, 14")
    a(f"s_lshl_b32 s37, s{sC4}, 7")
    a("s_add_u32 s36, s36, s37")
    a(f"v_add_u32 v{vWo_g}, s36, v{t0}")
    a(f"v_and_b32 v{r}, 15, v{vLANE}")
    a(f"v_lshrrev_b32 v{t0}, 2, v{r}")
    a(f"v_lshrrev_b32 v{t1}, 5, v{vLANE}")
    a(f"v_lshl_add_u32 v{c}, v{t1}, 2, v{t0}")
    a(f"v_and_b32 v{t1}, 16, v{vLANE}")
    a(f"v_add_u32 v{c}, v{c}, v{t1}")
    a(f"v_lshlrev_b32 v{t1}, 2, v{t1}")
    a(f"v_and_b32 v{t0}, 8, v{r}")
    a(f"v_lshl_add_u32 v{t0}, v{t0}, 2, v{t1}")
    a(f"v_lshl_add_u32 v{t0}, v{c}, 7, v{t0}")
    a(f"v_and_b32 v{t1}, 3, v{r}")
    a(f"v_lshl_add_u32 v{vWo_r[0]}, v{t1}, 3, v{t0}")
    for nt in range(1, 4):
        a(f"v_xor_b32 v{vWo_r[nt]}, {32*nt}, v{vWo_r[0]}")
    a(f"s_lshl_b32 s36, s{sT4}, 2")
    a(f"s_add_u32 s36, s36, s{sW}")
    a(f"s_lshl_b32 s{sOrow}, s36, 16")
    a(f"s_lshr_b32 s36, s36, 1")
    a(f"s_lshl_b32 s29, s36, 7")
    a(f"s_lshr_b32 s36, s{sC4}, 1")
    a(f"s_lshl_b32 s{sOoff}, s36, 13")
    a(f"s_lshl_b32 s{sWooff}, s36, 18")
    a(f"v_and_b32 v16, 31, v{vLANE}")
    a("v_lshlrev_b32 v16, 2, v16")
    a(f"v_and_b32 v17, 15, v{vLANE}")
    a(f"v_cmp_le_u32 vcc, s{sKVt}, v17")
    a(f"v_add_u32 v17, s{sKVb}, v17")
    a("s_nop 0")
    a("v_addc_co_u32 v17, vcc, 0, v17, vcc")
    a("v_and_b32 v17, 15, v17")
    a("v_lshlrev_b32 v17, 2, v17")
    a("s_lshl_b32 s36, s2, 2")
    a(f"s_add_u32 s36, s36, s{sW}")
    a("s_lshl_b32 s36, s36, 11")
    a(f"v_and_b32 v25, 7, v{vLANE}")
    a("v_lshlrev_b32 v25, 7, v25")
    a("v_add_u32 v25, s36, v25")
    a("s_lshr_b32 s36, s2, 3")
    a("s_lshl_b32 s36, s36, 2")
    a(f"s_add_u32 s36, s36, s{sW}")
    a("s_lshl_b32 s36, s36, 12")
    a(f"s_add_u32 s36, s36, {24*65536}")
    a(f"v_and_b32 v15, 15, v{vLANE}")
    a("v_lshlrev_b32 v15, 7, v15")
    a("v_add_u32 v15, s36, v15")
    a(f"s_add_u32 s36, s{sOrow}, {OB_OFF}")
    a(f"s_add_u32 s{sOg}, s54, s36")
    a(f"s_addc_u32 s{sOg+1}, s55, 0")

def wob_dma(i, tag):
    return [[f"s_mov_b32 s39, {i*65536}"], [f"s_add_u32 m0, s{sWv}, {i*4096}"],
            [(f"buffer_load_dwordx4 v{vWo_g}, s[{sWoB}:{sWoB+3}], s39 offen lds", tag)]]

def attention(a):
    o = a.opts
    a("L_ATT0:")
    for s in rdK(0, 0) + rdV(0, 0, 0): a(s)
    for s in kv_advance(1): a(s)
    for q in range(2):
        for i in range(4): a(f"v_accvgpr_write_b32 a{aL[q]+i}, 0")
    a(f"s_cmp_lg_u32 s{sPASS}, 0")
    a("s_cbranch_scc1 L_ATT1")
    ps = L(); p4_setup(ps)
    ps_s = [x for x in ps if x.startswith("s_") and "s4," not in x.split()[1] and not any(x.split()[1].startswith(f"s{i},") for i in (4, 5, 6, 7))]
    ps_x = []
    rest = [x for x in ps if x not in ps_x]
    n1 = 22
    for s in rest[:n1]: a(s)
    a("s_waitcnt lgkmcnt(0)")
    for q in range(2): a(mf32(vr(S[q], 16), ar(aK, 4), vr(QA[q], 4), 0))
    for q in range(2): a(mf32(vr(S[q], 16), ar(aK+4, 4), vr(QA[q]+4, 4), vr(S[q], 16)))
    padfill(a, rest[n1:n1+26], 11)
    for q in range(2):
        s, m = S[q], 19 + q
        a(f"v_max3_f32 v{m}, v{s}, v{s+1}, v{s+2}")
        for i in range(3, 15, 2): a(f"v_max3_f32 v{m}, v{m}, v{s+i}, v{s+i+1}")
        a(f"v_max_f32 v{m}, v{m}, v{s+15}")
    for q in range(2): a(f"v_mov_b32 v{21+q}, v{19+q}")
    a("s_nop 0")
    for q in range(2): a(f"v_permlane32_swap_b32 v{19+q}, v{21+q}")
    for q in range(2): a(f"v_max_f32 v{19+q}, v{19+q}, v{21+q}")
    for i in range(16): a(f"v_sub_f32 v{NM[0]+i}, 0, v19")
    for s in rest[n1+26:n1+28]: a(s)
    a(mf32(vr(S[0], 16), ar(aK, 4), vr(QA[0], 4), vr(NM[0], 16)))
    a(mf32(vr(S[0], 16), ar(aK+4, 4), vr(QA[0]+4, 4), vr(S[0], 16)))
    for i in range(16): a(f"v_sub_f32 v{NM[1]+i}, 0, v20")
    for s in rest[n1+28:]: a(s)
    a("v_mov_b32 v18, 0")
    a(f"s_add_u32 s30, s28, {F_H}")
    if o.get("fh_slot", 10) < 0:
        a.emit(a.wait(["halo"]))
        for s in flag_store(30, 20, "fH"): a.emit(s)
    a("s_branch L_ATT2")
    a("L_ATT1:")
    a("s_waitcnt lgkmcnt(0)")
    a(mf32(vr(S[0], 16), ar(aK, 4), vr(QA[0], 4), vr(NM[0], 16)))
    a(mf32(vr(S[0], 16), ar(aK+4, 4), vr(QA[0]+4, 4), vr(S[0], 16)))
    a("s_nop 11")
    a("L_ATT2:")
    a.stamp("att0")
    pk = [(f"buffer_load_dword v21, v17, {WS}, s31 offen sc1", "pKV")]
    ks = o.get("pk_slot", 0)
    sl = [[] for _ in range(14)]; sl[ks] = pk
    if o.get("fh_slot", 10) >= 0: sl[o.get("fh_slot", 10)] = [a.wait(["halo"])] + flag_store(30, 20, "fH")
    tile(a, 0, sl[0:7]); tile(a, 1, sl[7:14])
    a.stamp("t01")
    d0, d1, adv = kv_dma(1, 0, "c1a"), kv_dma(1, 1, "c1b"), kv_advance(2)
    a(d0[0])
    poll_check(a, "L_PKV", 21, 17, 31, "pKV", mask=1)
    a.stamp("pKV")
    a.emit(d0[1]); a.emit(d0[2])
    tile(a, 2, [[d0[3]], [d0[4]], [(f"buffer_load_dword v21, v17, {WS}, s31 offen sc1", "pKV2")], [d1[0]], [d1[1], d1[2]], [d1[3]], [d1[4]]])
    for s in adv: a(s)
    a.stamp("t2")
    a(f"s_cmp_lg_u32 s{sPASS}, 0")
    a("s_cbranch_scc1 L_A4")
    gate_compute(a)
    a("s_branch L_A5")
    a("L_A4:")
    a("s_waitcnt vmcnt(0)")
    a("L_A5:")
    a.emit(a.wait(["c1a"], lgkm=True))
    a("s_barrier")
    a.pkv2 = True
    a.stamp("c1")
    wob = [i for i in range(24)]
    obl = [i for i in range(64)]
    if o.get('noside', 0) & 1: wob = wob[:1]
    if o.get('noside', 0) & 2: obl = obl[:1]
    ob_start = o.get("ob_start", 6)
    obase = False
    for c in range(15):
        V = []; A = []
        side = []
        if c + 2 <= 15:
            d0, d1 = kv_dma(c % 2, 0, f"c{c+2}"), kv_dma(c % 2, 1, f"c{c+2}")
            kvs = [[x] for x in d0] + [[x] for x in d1] + ([[x] for x in kv_advance(c + 3)] if c + 3 <= 15 else [])
        else:
            kvs = []
        oth = []
        if c == 0:
            oth += [[(f"buffer_load_dword v21, v17, {WS}, s31 offen sc1", "pKV3")], [], [], [(f"buffer_load_dword v22, v18, {WS}, s33 offen sc1", "pH")]]
        if c == 3:
            oth += [[f"s_lshl_b32 s38, s{sSeq}, 7"], [f"s_lshl_b32 s39, s{sHead}, 2"], ["s_add_u32 s38, s38, s39"],
                    [f"s_add_u32 s35, s38, {F_OB}"], flag_store(35, 20, "fOB")]
        if c == ob_start - 2:
            oth += [[f"s_add_u32 s47, s29, {F_OB}"], [(f"buffer_load_dword v21, v16, {WS}, s47 offen sc1", "pOB")]]
        if c == o.get("cpf2", 11) or (o.get("cpfn") and c % o["cpfn"] == 2):
            oth += [[(f"buffer_load_dword v{vPFd}, v{vT[7]}, s[{sCode}:{sCode+3}], 0 offen", "cpf")]]
        nslots = 4*7 - 1 - (c == 0)
        if c >= ob_start:
            for _ in range(min(len(obl), o.get("ob_per", 8))):
                i = obl.pop(0)
                oth.append([(f"global_load_dwordx4 {oreg(i)}, v{vL16b if (i & 4) else vL16}, s[{sOg}:{sOg+1}] offset:{(i % 4)*1024} sc1", "obl")])
                if i % 8 == 7:
                    oth += [[f"s_add_u32 s{sOg}, s{sOg}, 8192"], [f"s_addc_u32 s{sOg+1}, s{sOg+1}, 0"]]
        wa0, wa1 = o.get("wam0", 1), o.get("wam1", 3)
        if c in (wa0, wa1):
            oth.insert(0, [(f"global_load_dword v{vPFd}, v25, s[{sPWoA}:{sPWoA+1}] offset:{1024*(c == wa1)}", "wopf")])
        wl = o.get("wol2", 6)
        if wl <= c < wl + 8:
            oth.append([(f"global_load_dword v{vPFd}, v0, s[{sPWoA}:{sPWoA+1}] offset:{((c - wl) & 1)*2048}", "wopf")] + (["v_add_u32 v0, 4096, v0"] if (c - wl) & 1 else []))
        wb0 = 11 if o.get("wbtail", 1) else 13
        if c in (wb0, wb0 + 1) and o.get("wbl2", 0):
            oth.append([(f"global_load_dword v{vPFd}, v15, s[{sPWoB}:{sPWoB+1}] offset:{(c - wb0)*2048}", "wopf")])
        if c == 14 and o.get("wbtail", 1): wob += list(range(24, 32))[:1 if o.get('noside', 0) & 1 else 8]
        while wob and (len(kvs) + len(oth) + 3 <= nslots or c == 14):
            i_ = wob.pop(0)
            oth += wob_dma(i_, f"wo{i_//8}")
        if o.get('noside', 0) & 4 and c >= 4: kvs = [g for g in kvs if not isinstance(g[0], tuple)] + [[kvs[1][0]]] if kvs else []
        if o.get('noside', 0) & 8 and c >= 4: kvs = [g for g in kvs if isinstance(g[0], tuple) or "m0" in g[0]]
        side = kvs + oth
        while len(side) > nslots:
            for k in range(len(side) - 1):
                if all(isinstance(x, str) and x.startswith("s_") and "m0" not in x for x in side[k]):
                    side[k+1] = side[k] + side[k+1]; side.pop(k); break
            else:
                raise Exception("slots")
        n = len(side)
        nv = sum(isinstance(x, tuple) for g in side for x in g)
        if n < nslots and nv >= o.get("spread", 1):
            sp = [[] for _ in range(nslots)]
            for k, g in enumerate(side): sp[k*nslots//n] = g
            side = sp
        if c == 0:
            poll_check(a, "L_PKV2", 21, 17, 31, "pKV2", mask=2)
        if c == 1:
            poll_check(a, "L_PKV3", 21, 17, 31, "pKV3", mask=0xffff)
            poll_check(a, "L_PH", 22, 18, 33, "pH")
            a(f"s_sub_u32 s38, s{sHalo}, 4096")
            a(f"s_cmp_eq_u32 s{sSeq}, 0")
            a(f"s_cselect_b32 s38, {OOB}, s38")
            a.emit((f"buffer_load_dwordx4 {vr(HK, 4)}, v{vL16}, {WS}, s38 offen sc1", "hl"))
            a.emit((f"buffer_load_dwordx4 {vr(HK+4, 4)}, v{vL16}, {WS}, s38 offen offset:1024 sc1", "hl"))
            a.emit((f"buffer_load_dwordx4 {vr(HV, 4)}, v{vL16}, {WS}, s38 offen offset:2048 sc1", "hl"))
        if c == 2:
            a(f"s_cmp_lg_u32 s{sPASS}, 0")
            a("s_cbranch_scc1 L_LOC0X")
            a(f"s_cmp_eq_u32 s{sSeq}, 0")
            a("s_cbranch_scc0 L_MASKOK")
            for i in range(8): a(f"v_mov_b32 v{vMc+16+i}, {NEGBIG}")
            a("L_MASKOK:")
            for s in a.ob1: a.emit(s)
            st = local_tile(a, pQB[0], pKB[0], pVB[0], HK, HV, 96, 112, 208, 168, 236, 23, 0, "ob0")
            for x in pko(208): a(x)
            a.emit((st[0][0].format("v[208:211]"), "ob0")); a.emit((st[1][0].format("v[212:215]"), "ob0"))
            a("L_LOC0X:")
            a.stamp("loc0")
        if c == ob_start - 1:
            poll_check(a, "L_POB", 21, 16, 47, "pOB")
        tile(a, 4*c + 3, side)
        tile(a, 4*c + 4, side, end_b=[a.wait(["c1b"]), "s_barrier"] if c == 0 else None)
        tile(a, 4*c + 5, side)
        tile(a, 4*c + 6, side, end_b=[a.wait([f"c{c+2}"], lgkm=True) if c + 2 <= 15 else a.wait(["wo0", "obl"], lgkm=True), "s_barrier"])
        assert not side
        if c in (4, 9): a.stamp(f"c{c}")
        if c == 7:
            for _ in range(o.get("idle_att", 0)): a("s_nop 15")
    assert not wob and not obl, (wob, obl)
    r0 = p4_reads(0) + p4_reads(1)
    tile(a, 63, [r0[0:2], r0[2:4], r0[4:6], r0[6:8], r0[8:10], r0[10:13], r0[13:16]])
    a(f"s_add_u32 s36, s{sOst}, {OA_OFF}")
    a(f"s_add_u32 s37, s{sOst}, {OA_OFF + 65536}")
    a(mf32(ar(aO[1], 16), ar(aV[1], 4), vr(P[1], 4), ar(aO[1], 16)))
    a(smf(1))
    a(mf32(ar(aO[1], 16), ar(aV[1]+4, 4), vr(P[1]+4, 4), ar(aO[1], 16)))
    a.stamp("attend")
    F = L()
    F(f"v_accvgpr_read_b32 v19, a{aL[0]}")
    F(f"v_accvgpr_read_b32 v21, a{aL[0]+1}")
    for i in range(16): F(f"v_accvgpr_read_b32 v{S[0]+i}, a{aO[0]+i}")
    F("v_add_f32 v19, v19, v21")
    F(f"v_accvgpr_read_b32 v20, a{aL[1]}")
    F("v_rcp_f32 v23, v19")
    F(f"v_accvgpr_read_b32 v21, a{aL[1]+1}")
    F("v_add_f32 v20, v20, v21")
    for i in range(16): F(f"v_mul_f32 v{S[0]+i}, v{S[0]+i}, v23")
    F += pko(S[0])
    F("v_rcp_f32 v24, v20")
    F((f"buffer_store_dwordx4 {vr(S[0], 4)}, v{vL16}, {WS}, s36 offen sc1", "oa"))
    F((f"buffer_store_dwordx4 {vr(S[0]+4, 4)}, v{vL16}, {WS}, s36 offen offset:1024 sc1", "oa"))
    for i in range(16): F(f"v_accvgpr_read_b32 v{S[1]+i}, a{aO[1]+i}")
    for i in range(16): F(f"v_mul_f32 v{S[1]+i}, v{S[1]+i}, v24")
    F += pko(S[1])
    F(f"s_mov_b32 s36, {f2u(2.0**64)}")
    F((f"buffer_store_dwordx4 {vr(S[1], 4)}, v{vL16}, {WS}, s37 offen sc1", "oa"))
    F((f"buffer_store_dwordx4 {vr(S[1]+4, 4)}, v{vL16}, {WS}, s37 offen offset:1024 sc1", "oa"))
    F("v_mov_b32 v21, 0")
    for q in range(2):
        for j in range(8): F(f"v_dot2_f32_bf16 v{19+q}, v{S[q]+j}, v21, v{19+q}")
    F("s_nop 2")
    F("v_cmp_nge_f32 s[56:57], s36, v19")
    F("v_cmp_nge_f32 vcc, s36, v20")
    F(f"s_lshl_b32 s37, s{sW}, 2")
    F(f"s_add_u32 s37, s37, {XCH}")
    F("v_mov_b32 v22, s37")
    F("s_nop 1")
    F("s_or_b64 vcc, vcc, s[56:57]")
    if o.get("force_fallback"): F("s_mov_b64 vcc, -1")
    F(f"s_cmp_lg_u64 vcc, 0\ns_cselect_b32 s36, 1, 0\ns_andn2_b32 s36, s36, s{sPASS}")
    F("v_mov_b32 v21, s36")
    F("ds_write_b32 v22, v21")
    F(f"v_mov_b32 v22, {XCH}")
    a.fin = F
    b = Asm()
    b("L_FALLBACK:")
    b(f"s_mov_b32 s{sPASS}, 1")
    b(f"s_mov_b32 s25, {OOB}")
    b(f"s_mov_b32 s26, {OOB}")
    b(f"v_mov_b32 v19, {NEGBIG}")
    b(f"v_mov_b32 v20, {NEGBIG}")
    b(f"s_lshl_b32 s38, s{sHP}, 19")
    b(f"s_lshl_b32 s39, s{sHH}, 14")
    b("s_add_u32 s38, s38, s39")
    b("s_mov_b32 s39, 0")
    b("L_FB:")
    b("s_and_b32 s36, s39, 3")
    b("s_lshl_b32 s36, s36, 12")
    b("s_lshr_b32 s37, s39, 2")
    b("s_lshl_b32 s37, s37, 15")
    b("s_add_u32 s36, s36, s37")
    b("s_add_u32 s36, s36, s38")
    b(f"buffer_load_dwordx4 {ar(aK, 4)}, v{vL16}, {WS}, s36 offen sc1")
    b(f"buffer_load_dwordx4 {ar(aK+4, 4)}, v{vL16}, {WS}, s36 offen offset:1024 sc1")
    b("s_waitcnt vmcnt(0)")
    for q in range(2): b(mf32(vr(S[q], 16), ar(aK, 4), vr(QA[q], 4), 0))
    for q in range(2): b(mf32(vr(S[q], 16), ar(aK+4, 4), vr(QA[q]+4, 4), vr(S[q], 16)))
    b("s_nop 11")
    for q in range(2):
        for i in range(0, 16, 2): b(f"v_max3_f32 v{19+q}, v{19+q}, v{S[q]+i}, v{S[q]+i+1}")
    b("s_add_u32 s39, s39, 1")
    b("s_cmp_lt_u32 s39, 64")
    b("s_cbranch_scc1 L_FB")
    neg_max(b)
    for s in sel_init(23, 24): b(s)
    b(f"s_lshl_b32 s36, s{sT}, 15")
    b(f"s_add_u32 s{sKVg}, s{sKVp}, s36")
    b(f"s_addc_u32 s{sKVg+1}, s{sKVp+1}, 0")
    b(f"s_add_u32 s36, s{sOrow}, {OB_OFF}")
    b(f"s_add_u32 s{sOg}, s54, s36")
    b(f"s_addc_u32 s{sOg+1}, s55, 0")
    b("v_add_u32 v0, -16384, v0")
    b("s_barrier")
    for g in range(2):
        for k_, s in enumerate(kv_dma(0, g, "")):
            b(s[0] if isinstance(s, tuple) else s)
            if k_ == 0: b("s_nop 0")
    b("s_waitcnt vmcnt(0)")
    b("s_barrier")
    b("s_branch L_ATT0")
    a.tail.append(b.text())

def fW4(G, nt, n=4, d=0):
    fs = G % 3
    return vr(32 + fs*16 + nt*4 + d, n) if fs < 2 else ar(nt*4 + d, n)
def p4_lds(g):
    return g*32768 if g < 4 else [131072, 0, 32768, 65536][g - 4]
def p4_reads(G):
    out = []
    base = p4_lds(G // 8)
    for nt in range(4):
        off = base % 65536 + (G % 8)*4096
        out.append(f"ds_read_b64_tr_b16 {fW4(G, nt, 2)}, v{vWo_r[nt]} offset:{off}")
        out.append(f"ds_read_b64_tr_b16 {fW4(G, nt, 2, 2)}, v{vWo_r[nt]} offset:{off+1024}")
    return out
def woa_dma(g, i):
    pos = (g - 4)*8 + i
    return [[f"s_add_u32 s39, s{sWooff}, {pos*65536}", "s_and_b32 s39, s39, 0x1fffff", f"s_add_u32 m0, s{sWv}, {p4_lds(g) + i*4096}"],
            [(f"buffer_load_dwordx4 v{vWo_g}, s[{sWoA}:{sWoA+3}], s39 offen lds", f"wo{g}")]]
def oa_load(i):
    out = [(f"global_load_dwordx4 {oreg(i)}, v{vL16b if (i & 4) else vL16}, s[{sOg}:{sOg+1}] offset:{(i % 4)*1024} sc1", f"oa{i}")]
    return out
def oa_next():
    return [f"s_add_u32 s{sOoff}, s{sOoff}, 8192", f"s_and_b32 s{sOoff}, s{sOoff}, 0xffff",
            f"s_add_u32 s{sOg}, s{sKVg}, s{sOoff}\ns_addc_u32 s{sOg+1}, s{sKVg+1}, 0"]

def phase4(a):
    o = a.opts
    flag_at = o.get("oaflag_gap", 40)
    poll_at = o.get("oapoll_gap", 84)
    chk_at = o.get("oachk_gap", 96)
    side = {}
    def put(k, l): side.setdefault(k, []).extend(l)
    F = list(a.fin)
    if o.get("finfirst", 0):
        n_ = max(i for i, x in enumerate(F) if isinstance(x, tuple)) + 1
        for x in F[:n_]: a.emit(x)
        F = F[n_:]
    k = 0
    while F:
        n_ = 2 if o.get("finfirst", 0) else (6 if len(F) > 5*(23 - k) - 5 else 5)
        put(k, F[:n_]); F = F[n_:]; k += 1
    assert k <= 23, k
    put(37, [f"s_add_u32 s38, s{sOrow}, {OA_OFF}", f"s_add_u32 s{sKVg}, s54, s38\ns_addc_u32 s{sKVg+1}, s55, 0"])
    put(38, [f"s_add_u32 s{sOg}, s{sKVg}, s{sOoff}\ns_addc_u32 s{sOg+1}, s{sKVg+1}, 0"])
    pre = [f"s_lshl_b32 s38, s{sSeq}, 7",
           f"s_lshl_b32 s47, s{sHead}, 2", "s_add_u32 s38, s38, s47", f"s_add_u32 s35, s38, {F_OA}", f"s_add_u32 s47, s29, {F_OA}",
           f"s_lshl_b32 s36, s{sT4}, 9", f"s_lshl_b32 s37, s{sW}, 7", "s_add_u32 s36, s36, s37", f"s_add_u32 s36, s36, {G_OFF}",
           f"v_and_b32 v24, 60, v16",
           (f"buffer_load_dword v{vG2[0]}, v24, {WS}, s36 offen sc1", "gl"), (f"buffer_load_dword v{vG2[1]}, v24, {WS}, s36 offen offset:64 sc1", "gl")]
    put(24, ["ds_read_b128 v[20:23], v22"])
    for i, x in enumerate(pre): put(25 + i//2, [x])
    put(32, ["v_or_b32 v20, v20, v21", "v_or3_b32 v20, v20, v22, v23"])
    put(33, ["v_readfirstlane_b32 s38, v20"])
    put(35, ["s_cmp_lg_u32 s38, 0\ns_cbranch_scc1 L_FALLBACK"])
    assert flag_at > 35
    put(flag_at, [a.wait(["oa"])]); put(flag_at + 1, flag_store(35, 20, "fOA"))
    put(poll_at, [(f"buffer_load_dword v21, v16, {WS}, s47 offen sc1", "pOA")])
    put(130, [f"v_sub_f32 v{vOM[0]}, 1.0, v{vG2[0]}", f"v_sub_f32 v{vOM[1]}, 1.0, v{vG2[1]}"])
    put(131, [f"v_and_b32 v19, 15, v{vLANE}", f"v_lshrrev_b32 v20, 4, v{vLANE}"])
    put(132, ["v_lshlrev_b32 v20, 4, v20", "v_lshl_add_u32 v19, v19, 11, v20"])
    if o.get("ldsout", 1):
        side[131] = []; side[132] = []
        put(200, [f"s_mul_i32 s38, s{sW}, 4608", f"v_and_b32 v20, 15, v{vLANE}"]); put(201, ["s_add_u32 s38, s38, 131072", "v_mul_u32_u24 v20, 144, v20"])
        put(202, [f"v_lshrrev_b32 v21, 4, v{vLANE}", "v_lshl_add_u32 v20, v21, 3, v20"]); put(203, ["v_add_u32 v20, s38, v20", f"v_lshrrev_b32 v22, 3, v{vLANE}"])
        put(204, [f"v_and_b32 v19, 7, v{vLANE}", "v_lshlrev_b32 v19, 4, v19"]); put(205, ["v_mul_u32_u24 v21, 144, v22", "v_add3_u32 v21, v21, v19, s38"])
        put(206, ["v_lshl_add_u32 v19, v22, 11, v19", "v_add_u32 v22, 16384, v19"])
    elif o.get("r128", 0):
        put(133, [f"v_and_b32 v20, 8, v{vLANE}", f"v_mul_u32_u24 v20, {2048 - 8}, v20"])
        put(152, ["v_sub_u32 v19, v19, v20", "v_add_u32 v20, 16384, v19"])
    for i in range(32): put(134 + i//2, [f"v_mul_f32 v{ACC4[0][i//16] + i%16}, v{ACC4[0][i//16] + i%16}, v{vOM[i//16]}"])
    put(248, [f"s_lshl_b32 s36, s{sT4}, 18", f"s_lshl_b32 s37, s{sW}, 16"]); put(249, ["s_add_u32 s36, s36, s37", f"s_lshl_b32 s37, s{sC4}, 7"])
    put(250, ["s_add_u32 s36, s36, s37"]); put(251, ["s_add_u32 s37, s36, 32768"])
    a("s_waitcnt lgkmcnt(0)")
    lat = o.get("p4lat", 20)
    jobs = [] if o.get("wbtail", 1) else [[26, 32*2 + 23 - lat, "wb", i] for i in range(24, 32)]
    for g in range(4, 8):
        e = {4: 0, 5: 26, 6: 57, 7: 89}[g]
        jobs += [[{4: 57, 5: 57, 6: 89, 7: 121}[g] if i == 7 else e, 32*(g - 1) + 23 - lat, "wa", (g, i)] for i in range(8)]
    jobs += [[max(chk_at + 1, 2*i + 2), 128 + 4*(i//2) - lat, "oa", i] for i in range(64)]
    gap = o.get("p4gap", 2.0)
    t = float(o.get('wb_at', 19))
    quiet = range(poll_at - o.get("p4quiet", 4), poll_at + 1)
    while jobs:
        k = int(t)
        av = [j for j in jobs if j[0] <= k]
        if not av or k in quiet:
            t = k + 1; continue
        j = min(av, key=lambda j: j[1])
        jobs.remove(j)
        if j[2] == "wb":
            d = wob_dma(j[3], "wo3"); put(k - 1, d[0] + d[1]); put(k, d[2])
        elif j[2] == "wa":
            d = woa_dma(*j[3]); put(k - 1, d[0]); put(k, d[1])
        else:
            put(k, oa_load(j[3]))
            if j[3] % 8 == 7 and j[3] < 63: put(k + 1, oa_next())
        if k > j[1] + 8: print("p4 late", j, k)
        t += gap
    ds = []
    def lg(tags):
        k_ = max([i for i, t_ in enumerate(ds) if t_ in tags], default=-1)
        return min(len(ds) - 1 - k_, 15)
    for G in range(64):
        br = G // 32
        rd = p4_reads(G + 2) if G + 2 < 64 else []
        mv = []
        if G + 3 < 64:
            dlt = (p4_lds((G + 3)//8)//65536 - p4_lds((G + 2)//8)//65536)*65536
            if dlt: mv = [f"v_add_u32 v{vWo_r[nt]}, {dlt}, v{vWo_r[nt]}" for nt in range(4)]
        order = [(nt, mt) for nt in range(4) for mt in range(2)]
        if G == 62: break
        for j in range(8):
            idx = 4*G + j//2
            nt, mt = order[j]
            d = vr(ACC4[br][mt] + nt*4, 4)
            a(mf16(d, fW4(G, nt), oreg((G % 32)*2 + mt), 0 if G % 32 == 0 else d))
            sd = side.get(idx, [])
            if j % 2 == 0:
                for s in [x for x in sd if isinstance(x, str) and x.startswith("ds_read")]:
                    a(s); ds.append("xr")
                sd = [x for x in sd if not (isinstance(x, str) and x.startswith("ds_read"))]
                now, side[idx] = sd[:len(sd)//2], sd[len(sd)//2:]
            else:
                now = side.pop(idx, [])
            if rd:
                a(rd[j]); ds.append(G + 2)
                if mv and j % 2 == 1: a(mv[j//2])
            for s in now:
                a.emit(s)
                if isinstance(s, str) and s.startswith("ds_write"): ds.append("xw")
            if j % 2 == 1:
                if idx == flag_at + 1: a.stamp("fOA")
                if idx == chk_at:
                    poll_check(a, "L_POA", 21, 16, 47, "pOA")
                    a.stamp("pOA")
        if G == 63: break
        w = ""
        need = []
        if G == 61: continue
        if G + 1 >= 32: need.append(f"oa{((G + 1) % 32)*2 + 1}")
        bar = G % 8 == 5 and G // 8 < 7
        if bar and f"wo{G//8 + 1}" in a.vm: need.append(f"wo{G//8 + 1}")
        if need: w += f" vmcnt({a.vmn(need)})"
        if G + 1 >= 2: w += f" lgkmcnt({lg([G + 1, 'xw'])})"
        if w: a("s_waitcnt" + w)
        if bar: a("s_barrier")
        if G == 31: a.stamp("p4B")
    def epi(mt):
        B_, A_ = ACC4[0][mt], ACC4[1][mt]
        fl = ['', 'sc1', 'nt', 'sc0 sc1', 'sc1 nt'][o.get('outflag', 1)]
        l = [f"v_fma_f32 v{B_+i}, v{A_+i}, v{vG2[mt]}, v{B_+i}" for i in range(16)] + packl(B_)
        if o.get("ldsout", 1):
            return l + [f"ds_write_b64 v20, {vr(B_+2*nt, 2)} offset:{mt*16*144 + 32*nt}" for nt in range(4)]
        l += ["s_nop 0"]
        l += [f"v_permlane32_swap_b32 v{B_+x}, v{B_+y}" for x, y in ((0, 2), (1, 3), (4, 6), (5, 7))]
        l += [f"v_permlane16_swap_b32 v{B_+x}, v{B_+y}" for x, y in ((0, 2), (1, 3), (4, 6), (5, 7))]
        if o.get("r128", 0):
            l += [f"v_mov_b32 v{B_+8+i}, v{B_+i}" for i in range(4)]
            l += [f"v_mov_b32_dpp v{B_+i}, v{B_+4+i} row_ror:8 row_mask:0xf bank_mask:0xc" for i in range(4)]
            l += [f"v_mov_b32_dpp v{B_+4+i}, v{B_+8+i} row_ror:8 row_mask:0xf bank_mask:0x3" for i in range(4)]
            l += [(f"buffer_store_dwordx4 {vr(B_+4*k, 4)}, v{19+k}, s[{sOutD}:{sOutD+3}], s{36+mt} offen {fl}", "out") for k in range(2)]
            return l
        l += [(f"buffer_store_dwordx4 {vr(B_+4*k, 4)}, v19, s[{sOutD}:{sOutD+3}], s{36+mt} offen offset:{64*k} {fl}", "out") for k in range(2)]
        return l
    rest = [x for k_ in sorted(side) for x in side[k_]]
    a(f"s_waitcnt vmcnt({a.vmn(['oa63'])}) lgkmcnt(0)")
    for G in (62, 63):
        for nt in range(4):
            d = vr(ACC4[1][0] + nt*4, 4)
            a(mf16(d, fW4(G, nt), oreg((G % 32)*2), d))
            if rest: a.emit(rest.pop(0))
    assert not rest
    e0 = epi(0)
    for k_, (G, nt) in enumerate([(G, nt) for G in (62, 63) for nt in range(4)]):
        d = vr(ACC4[1][1] + nt*4, 4)
        a(mf16(d, fW4(G, nt), oreg((G % 32)*2 + 1), d))
        if k_ >= 2:
            a(e0.pop(0)); a(e0.pop(0))
        else:
            a("s_nop 1")
    a.stamp("p4A")
    if not o.get("ldsout", 1):
        for x in e0 + epi(1): a.emit(x)
        return
    for x in e0: a.emit(x)
    e1_ = epi(1)
    fl = ['', 'sc1', 'nt', 'sc0 sc1', 'sc1 nt'][o.get('outflag', 1)]
    T = ACC4[1][0]
    def rds(mt): return [f"ds_read_b128 {vr(T + 8*mt + 4*k, 4)}, v21 offset:{(16*mt + 8*k)*144}" for k in range(2)]
    def sts(mt): return [(f"buffer_store_dwordx4 {vr(T + 8*mt + 4*k, 4)}, v{19 if k == 0 else 22}, s[{sOutD}:{sOutD+3}], s{36+mt} offen {fl}", "out") for k in range(2)]
    for x in rds(0): a(x)
    for x in e1_[:24]: a(x)
    a("s_waitcnt lgkmcnt(0)")
    for x in e1_[24:] + rds(1): a(x)
    for x in sts(0): a.emit(x)
    a("s_waitcnt lgkmcnt(0)")
    for x in sts(1): a.emit(x)

def gen(opts):
    a = G(opts); a.tail = []
    setup(a); gemm1(a); e1(a); attention(a); phase4(a)
    if opts.get("diag") is not None:
        a.stamp("end")
        a("s_nop 1")
        a(f"v_readlane_b32 s36, v{vSTAMP}, {32 + opts['diag']}")
        a("s_nop 3")
        a("s_add_u32 s36, s36, 10000")
        if opts.get("diagwg") is not None:
            a(f"s_cmp_lg_u32 s2, {opts['diagwg']}")
            a("s_cbranch_scc1 L_END")
        a("L_DIAG:")
        a("s_memrealtime s[38:39]")
        a("s_waitcnt lgkmcnt(0)")
        a("s_sub_u32 s38, s38, s36")
        a("s_cmp_lt_i32 s38, 0")
        a("s_cbranch_scc1 L_DIAG")
    elif opts.get("dbgstamp"):
        a.stamp("end")
        sel = ["karg", "first", "g7", "g15", "g23", "g31", "loc1", "pKV", "c1", "c9", "attend", "pOA", "p4B", "p4A", "end"]
        a(f"s_cmp_lg_u32 s2, {opts['dbgstamp']-1}")
        a("s_cbranch_scc1 L_DBGX")
        a(f"s_cmp_lg_u32 s{sW}, 0")
        a("s_cbranch_scc1 L_DBGX")
        a(f"v_readlane_b32 s36, v{vSTAMP}, 32")
        for i, nm in enumerate(sel):
            a(f"v_readlane_b32 s37, v{vSTAMP}, {32 + a.names.index(nm)}")
            a("s_nop 3")
            a("s_sub_u32 s37, s37, s36")
            a("v_mov_b32 v2, s37")
            a("v_mov_b32 v3, 0")
            a(f"global_store_dword v3, v2, s[{sPDbg}:{sPDbg+1}] offset:{4*(i+1)}")
        a("L_DBGX:")
    elif opts.get("stamp"):
        a.stamp("end")
        a("s_lshl_b32 s36, s2, 2")
        a(f"s_add_u32 s36, s36, s{sW}")
        a("s_lshl_b32 s36, s36, 8")
        a(f"s_add_u32 s36, s36, {STAMP_OFF}")
        a(f"v_lshlrev_b32 v2, 2, v{vLANE}")
        a(f"buffer_store_dword v{vSTAMP}, v2, {WS}, s36 offen")
    a("s_endpgm")
    for t in a.tail: a(t)
    head = f"""; out = g*(MHA(x) Wo_A) + (1-g)*(dilated-window attention(x) Wo_B), one fused kernel, 256 co-resident workgroups (1 per CU).
; kernarg: A_x 0, A_wqkv 8, A_wo 16, B_x 24 (unused by the reference), B_wqkv 32, B_wo 40, gate_w 48, out 56, debug 64, ws 72
; workgroup (head pair hp, 128-row tile t), wave (row half, head):
;   1. q,k,v of both branches (LDS-DMA rings, 16x16x32 MFMA); K_A/V_A finish first and are published to ws (sc1) with flags
;   2. window attention (true max), full attention over all 16 K/V chunks: exp2(s - m), m = row max of the first key tile;
;      a run-time check (row sum <= 2^64, finite outputs) reruns the workgroup with the true row max otherwise
; hand-offs: data (sc1) -> s_waitcnt -> flag word = launch nonce (published through d_debug[0]); consumers poll, then load sc1
; @launch grid=(256,1,1) block=(256,1,1) lds=163840
.amdgcn_target "amdgcn-amd-amdhsa--gfx950"
.text
.globl {KNAME}
.p2align 8
.type {KNAME},@function
{KNAME}:
"""
    tail = f"""L_END:
    s_endpgm
.section .rodata,"a"
.p2align 6
.amdhsa_kernel {KNAME}
  .amdhsa_next_free_vgpr 512
  .amdhsa_next_free_sgpr 102
  .amdhsa_accum_offset 256
  .amdhsa_group_segment_fixed_size 0
  .amdhsa_kernarg_size 80
  .amdhsa_user_sgpr_count 2
  .amdhsa_user_sgpr_kernarg_segment_ptr 1
  .amdhsa_system_sgpr_workgroup_id_x 1
.end_amdhsa_kernel
"""
    gen.names = a.names
    return head + a.text() + tail

if __name__ == "__main__":
    import hazard
    opts = {}
    for kv in sys.argv[2:]:
        k, v = kv.split("="); opts[k] = int(v)
    t = gen(opts)
    open(sys.argv[1], "w").write(t)
    print(len(hazard.check(t)), "hazards", gen.names)
```

```python
import sys, struct, math
from asmlib import *

KNAME = "gated_mix__softmax_full_mha__sliding_local_dilated__prompt_kernel"
def f2u(x): return struct.unpack("<I", struct.pack("<f", x))[0]
KV_OFF   = 0
OA_OFF   = 8 << 20
OB_OFF   = 12 << 20
HALO_OFF = 16 << 20
G_OFF    = 20 << 20
FLAG_OFF = 21 << 20
F_KV, F_H, F_OB, F_OA = FLAG_OFF, FLAG_OFF + 4096, FLAG_OFF + 8192, FLAG_OFF + 12288
STAMP_OFF = 0x8000000
OOB = 0x80000000
CSCALE = f2u(math.log2(math.e) / math.sqrt(32.0))
NEGBIG = f2u(-1e30)
X_SLOT = 16384; W_BASE = 49152; W_SLOT = 24576
KV_LDS = [98304, 131072]
XCH = 163840 - 16
sX, sWA, sWB, sWS = 4, 8, 12, 16
sW, sHP, sT, sRH, sHH = 20, 21, 22, 23, 24
sWoff, sXoff = 25, 26
sXw, sWv = 30, 34
sPF, sPFstr = 44, 46
sNONCE, sCS = 60, 61
sSTAMPI = 68
sPWoA, sPWoB, sPG, sPOut, sPDbg = 70, 72, 74, 76, 78
sKVsrc, sKVbase, sKVt, sKVdst = 80, 81, 82, 27
sPASS, sOst, sSpin = 83, 86, 87
sT4, sC4, sOoff, sWooff, sObase = 88, 89, 90, 91, 92
sHalo, sSeq, sO, sOrow, sHead = 93, 94, 95, 96, 97
sWoA, sWoB, sOutD = 4, 8, 12
sCode = 40
pX, pWA, pWB = 48, 50, 52
vLANE = 1
vXr = [2, 3]; vWr = [[4, 5], [10, 11]]; vWg = [12, 13, 14]; vXg = [15, 16, 17, 18]
vT = [19, 20, 21, 22, 23, 24, 25, 26]
vPF, vPFd, vL16, vSTAMP, vF0 = 27, 28, 29, 30, 31
vMc = 32
ACC0 = 64
def acc(blk, rt): return ACC0 + (blk*2 + rt)*16
QA = [64, 80]; KA = [96, 112]; VA = [128, 144]; QB = [160, 176]; KB = [192, 208]; VB = [224, 240]
NM = [128, 144]; S = [176, 240]; P = [72, 88]
vKV = [6, 7]
vWo_g = 2; vWo_r = [3, 4, 10, 11]; vG2 = [12, 13]; vOM = [14, 8]
vGate, vGrow = 14, 8
HK = 200; HV = 232
def fX(s, rt): return s*32 + rt*4
def fW(s, blk): return s*32 + 8 + blk*4
aK, aV = 0, [8, 16]
aO = [32, 48]; aL = [64, 68]; aONE = 112
aGATE = 80
aX = [0, 16]; aW = [32, 56]; vKS, vKL = 56, 57
aSEL = 72; vIDX = 9
OV = list(range(96, 128, 4)) + list(range(160, 176, 4)) + list(range(192, 240, 4))
def oreg(i): return ar(76 + 4*i, 4) if i < 45 else vr(OV[i - 45], 4)
ACC4 = [[128, 144], [64, 80]]
pKA = [96, 112]; pVA = [104, 120]; pQB = [160, 168]; pKB = [192, 208]; pVB = [224, 216]

def mf32(d, A, B, C): return f"v_mfma_f32_32x32x16_bf16 {d}, {A}, {B}, {C}"
def mf16(d, A, B, C): return f"v_mfma_f32_16x16x32_bf16 {d}, {A}, {B}, {C}"
WS = f"s[{sWS}:{sWS+3}]"

class G(Asm):
    def __init__(self, opts):
        super().__init__()
        self.opts = opts
        self.vm = []
        self.nstamp = 0
        self.names = []
    def emit(self, x):
        if callable(x): x = x()
        if x is None: return
        if isinstance(x, tuple):
            self(x[0]); self.vm.append(x[1])
        else:
            assert not (x.lstrip().startswith(("buffer_", "global_"))), x
            self(x)
    def vmn(self, tags):
        idx = [i for i, t in enumerate(self.vm) if t in tags]
        assert idx, tags
        n = len(self.vm) - 1 - max(idx)
        return min(n, 63)
    def wait(self, tags, lgkm=False):
        return lambda: f"s_waitcnt vmcnt({self.vmn(tags)})" + (" lgkmcnt(0)" if lgkm else "")
    def stamp(self, name):
        j = self.opts.get("jitter")
        if j and name in ("first", "gP", "g31", "loc1", "fKV", "att0", "t01", "c1", "loc0", "c4", "c9", "attend", "fOA", "p4B"):
            self.nj = getattr(self, "nj", 0) + 1
            self(f"s_cselect_b32 s65, 1, 0\ns_lshl2_add_u32 s64, s2, s{sW}\ns_mul_i32 s64, s64, {(self.nj*40503 + j*9973) | 1}\ns_lshr_b32 s64, s64, 7\ns_and_b32 s64, s64, {[7, 3, 15][j % 3]}")
            self(f"s_cmp_lg_u32 s64, 0\ns_cbranch_scc1 L_J{self.nj}\ns_sleep {40 + 25*(self.nj % 4)}\ns_sleep 60\nL_J{self.nj}:\ns_cmp_lg_u32 s65, 0")
        if not self.opts.get("stamp"): return
        if self.opts["stamp"] == 2 and name not in ("start", "g31", "c1", "attend", "end", "gP", "c4"): return
        self.names.append(name)
        a = self
        a("s_memtime s[66:67]")
        a("s_memrealtime s[64:65]")
        a("s_waitcnt lgkmcnt(0)")
        a(f"v_writelane_b32 v{vSTAMP}, s66, {self.nstamp}")
        a(f"v_writelane_b32 v{vSTAMP}, s64, {self.nstamp + 32}")
        self.nstamp += 1
        assert self.nstamp <= 32
    def inter(self, mains, sides):
        for i, m in enumerate(mains):
            if m is not None: self.emit(m)
            for s in sides.get(i, []): self.emit(s)

def srd(a, s, lo, hi, nbytes):
    a(f"s_mov_b32 s{s}, s{lo}")
    a(f"s_and_b32 s{s+1}, s{hi}, 0xffff")
    a(f"s_mov_b32 s{s+2}, {nbytes}")
    a(f"s_mov_b32 s{s+3}, 0x20000")

def pf_round(a):
    return [(f"global_load_dword v{vPFd}, v{vPF}, s[{sPF}:{sPF+1}]", "pf"),
            f"v_add_u32 v{vPF}, s{sPFstr}, v{vPF}"]

class P1:
    def __init__(self, a):
        self.a = a; self.wnext = [0]*6; self.xnext = [0]*4
    def dma(self, piece):
        kind, j, p = piece
        if kind == "W":
            assert self.wnext[p] == j and (p < 3 or self.wnext[p - 3] == j + 1) and (p >= 3 or self.wnext[p + 3] == j)
            self.wnext[p] += 1
            s = pWA if p < 3 else pWB
            return ([f"s_add_u32 m0, s{sWv}, {W_BASE + (j % 4)*W_SLOT + p*4096}"],
                    (f"global_load_lds_dwordx4 v{vWg[p % 3]}, s[{s}:{s+1}] {['', 'sc1', 'sc0', 'sc0 sc1'][self.a.opts.get('dmafl', 0)]}", f"W{j}"),
                    [f"v_add_u32 v{vWg[p % 3]}, 196608, v{vWg[p % 3]}"] if p >= 3 else [])
        assert self.xnext[p] == j
        self.xnext[p] += 1
        return ([f"s_add_u32 m0, s{sXw}, {(j % 3)*X_SLOT + p*1024}"],
                (f"global_load_lds_dwordx4 v{vXg[p]}, s[{pX}:{pX+1}] {['', 'sc1', 'sc0', 'sc0 sc1'][self.a.opts.get('dmafl', 0)]}", f"X{j}"),
                [f"v_add_u32 v{vXg[p]}, 128, v{vXg[p]}"])

def x_reads(xs, u):
    return [f"ds_read_b128 {ar(aX[xs] + mt*4, 4)}, v{vXr[u & 1]} offset:{((u >> 1) % 3)*X_SLOT + mt*2048}" for mt in range(4)]
def w_reads(ws_, u, blks):
    out = []
    sl = u % 4
    for i, blk in enumerate(blks):
        for nt in range(2):
            off = (sl % 2)*W_SLOT + blk*4096
            r = aW[ws_] + (i*2 + nt)*4
            out.append(f"ds_read_b64_tr_b16 {ar(r, 2)}, v{vWr[sl//2][nt]} offset:{off}")
            out.append(f"ds_read_b64_tr_b16 {ar(r + 2, 2)}, v{vWr[sl//2][nt]} offset:{off+512}")
    return out
def g1_mfmas(xs, ws_, blks, mts=(0, 1, 2, 3), first=False):
    out = {}
    for i, blk in enumerate(blks):
        for nt in range(2):
            for mt in mts:
                w, x = ar(aW[ws_] + (i*2 + nt)*4, 4), ar(aX[xs] + mt*4, 4)
                if blk % 3 == 2:
                    d = vr(acc(blk, mt >> 1) + ((mt & 1)*2 + nt)*4, 4); out[(i, nt, mt)] = mf16(d, x, w, 0 if first else d)
                else:
                    d = vr(acc(blk, mt >> 1) + (nt*2 + (mt & 1))*4, 4); out[(i, nt, mt)] = mf16(d, w, x, 0 if first else d)
    return out

def setup(a):
    o = a.opts
    a("L_START:")
    a("s_cmp_ge_u32 s2, 256")
    a("s_cbranch_scc1 L_END")
    if o.get("xorid"): a(f"s_xor_b32 s2, s2, {o['xorid']}")
    if o.get("mulid"): a(f"s_mul_i32 s2, s2, {o['mulid']}\ns_and_b32 s2, s2, 255")
    a.stamp("start")
    a("s_load_dwordx4 s[48:51], s[0:1], 0")
    a("s_load_dwordx2 s[52:53], s[0:1], 32")
    a("s_load_dwordx2 s[54:55], s[0:1], 72")
    a(f"s_load_dwordx2 s[{sPWoA}:{sPWoA+1}], s[0:1], 16")
    a(f"s_load_dwordx4 s[{sPWoB}:{sPWoB+3}], s[0:1], 40")
    a(f"s_load_dwordx4 s[{sPOut}:{sPOut+3}], s[0:1], 56")
    if o.get("cpf0", 1):
        n = o.get('codelines', 20)
        a("s_getpc_b64 s[56:57]")
        a("L_PC0:")
        a("s_lshr_b32 s35, s2, 3")
        a(f"s_mul_i32 s35, s35, {n}")
        a(f"v_min_u32 v2, {n-1}, v0")
        a("v_add_u32 v2, s35, v2")
        a("v_lshlrev_b32 v2, 7, v2")
        a("v_min_u32 v2, L_END - L_PC0, v2")
        a.emit((f"global_load_dword v{vPFd}, v2, s[56:57]", "cpf"))
    a(f"v_lshrrev_b32 v{vT[0]}, 6, v0")
    a(f"v_and_b32 v{vLANE}, 63, v0")
    a("s_and_b32 s37, s2, 3")
    a(f"v_readfirstlane_b32 s{sW}, v{vT[0]}")
    a("s_bfe_u32 s39, s2, 0x10002")
    a("s_lshr_b32 s35, s2, 3")
    a("s_and_b32 s38, s35, 3")
    a(f"s_lshl2_add_u32 s{sHP}, s37, s38")
    a("s_lshr_b32 s38, s35, 2")
    a(f"s_lshl3_add_u32 s{sT}, s39, s38")
    a(f"s_and_b32 s{sRH}, s{sW}, 1")
    r, c, t0, t1 = vT[0], vT[1], vT[2], vT[3]
    a("s_lshl_b32 s38, s37, 5")
    a("s_add_u32 s38, s38, s35")
    a("s_lshl_b32 s38, s38, 14")
    a("s_lshl_b32 s47, s39, 21")
    a("s_add_u32 s38, s38, s47")
    a("s_lshl_b32 s39, s39, 5")
    a("s_add_u32 s39, s39, s35")
    a("s_mul_i32 s39, s39, 6144")
    a("s_lshl_b32 s47, s37, 9")
    a("s_add_u32 s39, s39, s47")
    a(f"s_mov_b32 s{sPFstr}, {64*6144}")
    a(f"s_cmp_eq_u32 s{sW}, 0")
    a("s_cselect_b32 s39, s38, s39")
    a(f"s_cselect_b32 s{sPFstr}, 128, s{sPFstr}")
    a("s_cselect_b32 s38, 7, 11")
    a("s_cselect_b32 s47, 0, 2")
    a("s_cselect_b32 s36, 0, 3")
    a(f"s_cmp_eq_u32 s{sW}, 3")
    a(f"s_cselect_b32 s{sPFstr}, 0, s{sPFstr}")
    a("s_cselect_b32 s38, 0, s38")
    a(f"v_min_u32 v{t0}, s38, v{vLANE}")
    a(f"v_and_b32 v{t1}, s36, v{t0}")
    a(f"v_lshrrev_b32 v{t0}, s47, v{t0}")
    a(f"v_lshlrev_b32 v{t1}, 7, v{t1}")
    a(f"v_lshl_add_u32 v{t0}, v{t0}, 11, v{t1}")
    a(f"v_add_u32 v{vPF}, s39, v{t0}")
    a(f"v_lshrrev_b32 v{r}, 3, v{vLANE}")
    a(f"v_and_b32 v{c}, 7, v{vLANE}")
    a(f"v_lshrrev_b32 v{t0}, 1, v{r}")
    a(f"v_xor_b32 v{t0}, v{t0}, v{c}")
    a(f"v_lshlrev_b32 v{t1}, 11, v{r}")
    a(f"v_lshl_add_u32 v{t0}, v{t0}, 4, v{t1}")
    a(f"s_lshl2_add_u32 s36, s{sT}, s{sW}")
    a("s_lshl_b32 s36, s36, 16")
    a(f"v_add_u32 v{vXg[0]}, s36, v{t0}")
    a(f"v_xor_b32 v{vXg[1]}, 64, v{vXg[0]}")
    a(f"v_add_u32 v{vXg[1]}, {8*2048}, v{vXg[1]}")
    a(f"v_add_u32 v{vXg[2]}, {16*2048}, v{vXg[0]}")
    a(f"v_add_u32 v{vXg[3]}, {16*2048}, v{vXg[1]}")
    a(f"s_lshl_b32 s{sXw}, s{sW}, 12")
    a("s_waitcnt lgkmcnt(0)")
    a.stamp("karg")
    a(f"s_cmp_eq_u32 s{sW}, 0")
    a(f"s_cselect_b64 s[{sPF}:{sPF+1}], s[{pX}:{pX+1}], s[{pWA}:{pWA+1}]")
    a(f"s_cmp_eq_u32 s{sW}, 2")
    a(f"s_cselect_b64 s[{sPF}:{sPF+1}], s[{pWB}:{pWB+1}], s[{sPF}:{sPF+1}]")
    for i in range(o.get("pf0", 2)):
        for s in pf_round(a): a.emit(s)
    a.wsetup = [f"v_and_b32 v{t0}, 2, v{r}", f"s_lshl_b32 s36, s{sRH}, 2", f"v_xor_b32 v{t0}, v{t0}, v{c}", f"v_xor_b32 v{t0}, s36, v{t0}",
                f"v_mul_u32_u24 v{t1}, 6144, v{r}", f"v_lshl_add_u32 v{t0}, v{t0}, 4, v{t1}", f"s_mul_i32 s36, s{sW}, {8*6144}",
                f"s_lshl_b32 s37, s{sHP}, 7", "s_add_u32 s36, s36, s37", f"v_add_u32 v{vWg[0]}, s36, v{t0}",
                f"v_add_u32 v{vWg[1]}, 2048, v{vWg[0]}", f"v_add_u32 v{vWg[2]}, 4096, v{vWg[0]}", f"s_lshl_b32 s{sWv}, s{sW}, 10",
                f"s_lshr_b32 s{sHH}, s{sW}, 1"]

def fillers_prologue(a):
    L = []
    f = L.append
    f("s_mov_b32 s16, s54"); f("s_and_b32 s17, s55, 0xffff"); f("s_mov_b32 s18, 0x10000000"); f("s_mov_b32 s19, 0x20000")
    f(f"s_mov_b32 s{sCode}, s56"); f(f"s_and_b32 s{sCode+1}, s57, 0xffff"); f(f"s_mov_b32 s{sCode+2}, L_END - L_PC0"); f(f"s_mov_b32 s{sCode+3}, 0x20000")
    f(f"s_mov_b32 s{sX}, s{pX}"); f(f"s_and_b32 s{sX+1}, s{pX+1}, 0xffff"); f(f"s_mov_b32 s{sX+2}, {2048*1024*2}"); f(f"s_mov_b32 s{sX+3}, 0x20000")
    n = a.opts.get('codelines', 20)
    f(f"s_mul_i32 s47, s35, {n}"); f(f"v_min_u32 v{vT[7]}, {n-1}, v{vLANE}"); f(f"v_add_u32 v{vT[7]}, s47, v{vT[7]}"); f(f"v_lshlrev_b32 v{vT[7]}, 7, v{vT[7]}")
    m, g_, t0, t1, row = vT[0], vT[1], vT[2], vT[3], vT[4]
    f(f"v_and_b32 v{m}, 15, v{vLANE}")
    f(f"v_lshrrev_b32 v{g_}, 4, v{vLANE}")
    f(f"v_lshrrev_b32 v{t0}, 1, v{m}")
    f(f"v_xor_b32 v{t0}, v{t0}, v{g_}")
    f(f"v_lshlrev_b32 v{t0}, 4, v{t0}")
    f(f"v_lshl_add_u32 v{t0}, v{m}, 7, v{t0}")
    f(f"s_lshl_b32 s36, s{sRH}, 13")
    f(f"v_add_u32 v{vXr[0]}, s36, v{t0}")
    f(f"v_xor_b32 v{vXr[1]}, 64, v{vXr[0]}")
    f(f"v_lshrrev_b32 v{t0}, 2, v{m}")
    f(f"v_lshl_add_u32 v{row}, v{g_}, 3, v{t0}")
    f(f"v_lshrrev_b32 v{t0}, 3, v{m}")
    f(f"v_and_b32 v{t1}, 1, v{g_}")
    f(f"v_lshl_or_b32 v{t0}, v{t1}, 1, v{t0}")
    f(f"s_lshl_b32 s36, s{sHH}, 1")
    f(f"v_xor_b32 v{t0}, s36, v{t0}")
    f(f"v_lshlrev_b32 v{t0}, 5, v{t0}")
    f(f"v_lshl_add_u32 v{t0}, v{row}, 7, v{t0}")
    f(f"v_and_b32 v{t1}, 3, v{m}")
    f(f"v_lshl_add_u32 v{t0}, v{t1}, 3, v{t0}")
    f(f"v_add_u32 v{vWr[0][0]}, {W_BASE}, v{t0}")
    f(f"v_xor_b32 v{vWr[0][1]}, 32, v{vWr[0][0]}")
    f(f"v_add_u32 v{vWr[1][0]}, {2*W_SLOT}, v{vWr[0][0]}")
    f(f"v_add_u32 v{vWr[1][1]}, {2*W_SLOT}, v{vWr[0][1]}")
    if a.opts.get("zinit"):
        for r in range(ACC0, 256):
            f(f"v_mov_b32 v{r}, 0")
    return L

def fillers_late(a):
    L = []
    f = L.append
    q, b, t = vT[0], vT[1], vT[2]
    f(f"v_lshlrev_b32 v{vL16}, 4, v{vLANE}")
    f(f"v_and_b32 v{q}, 31, v{vLANE}")
    f(f"v_lshrrev_b32 v{b}, 5, v{vLANE}")
    f(f"v_lshlrev_b32 v{b}, 2, v{b}")
    f(f"v_sub_u32 v{b}, v{q}, v{b}")
    f(f"v_add_u32 v{b}, 18, v{b}")
    f("v_mov_b32 v58, 0x5555"); f("v_mov_b32 v59, 0")
    f(f"v_lshlrev_b64 v[58:59], v{b}, v[58:59]")
    f("v_not_b32 v58, v58"); f("v_not_b32 v59, v59")
    f(f"s_mov_b32 s36, {NEGBIG}")
    for i in range(24):
        r, src = (i, 59) if i < 16 else (i - 8, 58)
        f(f"v_bfe_i32 v{vMc + i}, v{src}, {8*(r >> 2) + (r & 3)}, 1")
        f(f"v_and_b32 v{vMc + i}, s36, v{vMc + i}")
    f(f"v_lshrrev_b32 v{q}, 2, v{vLANE}")
    f(f"v_lshrrev_b32 v{t}, 4, v{vLANE}")
    f(f"v_xor_b32 v{q}, v{q}, v{t}")
    f(f"v_and_b32 v{q}, 1, v{q}")
    f(f"v_add_u32 v{q}, -1, v{q}")
    f(f"v_and_b32 v{q}, 0x3f803f80, v{q}")
    for i in range(4):
        f(f"v_accvgpr_write_b32 a{aONE+i}, v{q}")
    f(f"v_lshrrev_b32 v{q}, 1, v{vLANE}"); f(f"v_xor_b32 v{q}, v{q}, v{vLANE}"); f(f"v_and_b32 v{q}, 4, v{q}")
    f(f"v_lshl_or_b32 v{q}, v{q}, 1, v{q}"); f(f"v_xor_b32 v{q}, v{q}, v{vLANE}"); f(f"v_lshlrev_b32 v{vKS}, 4, v{q}")
    f(f"v_min_u32 v{vF0}, 1, v{vLANE}")
    f(f"v_lshlrev_b32 v{vF0}, 31, v{vF0}")
    f(f"s_mov_b32 s{sCS}, {CSCALE}"); f(f"s_mov_b32 s62, {CSCALE}"); f(f"s_mov_b32 s63, {CSCALE}")
    f(f"s_lshl_b32 s36, s{sHP}, 19")
    f(f"s_lshl_b32 s37, s{sW}, 13")
    f(f"s_lshl_b32 s38, s{sHH}, 14")
    f(f"s_lshl_b32 s39, s{sRH}, 13")
    f(f"s_add_u32 s{sKVdst}, s38, s39")
    f(f"s_add_u32 s{sKVbase}, s36, s{sKVdst}")
    f(f"s_lshl_b32 s{sKVt}, s{sT}, 15")
    f(f"s_add_u32 s{sKVsrc}, s{sKVbase}, s{sKVt}")
    f(f"s_and_b32 s{sKVt}, s{sT}, 7"); f(f"s_and_b32 s{sKVb}, s{sT}, 8")
    f(f"s_add_u32 s36, s38, {KV_LDS[0]}")
    f(f"v_add_u32 v{vKV[0]}, s36, v{vL16}")
    f(f"v_add_u32 v{vKV[1]}, 32768, v{vKV[0]}")
    f(f"s_lshl_b32 s{sHead}, s{sHP}, 1")
    f(f"s_add_u32 s{sHead}, s{sHead}, s{sHH}")
    f(f"s_lshl_b32 s{sSeq}, s{sT}, 1")
    f(f"s_add_u32 s{sSeq}, s{sSeq}, s{sRH}")
    f(f"s_lshl_b32 s37, s{sSeq}, 6")
    f(f"s_add_u32 s37, s37, s{sHead}")
    f(f"s_lshl_b32 s{sOst}, s37, 11")
    f(f"s_lshl_b32 s38, s{sHead}, 5")
    f(f"s_add_u32 s38, s38, s{sSeq}")
    f(f"s_lshl_b32 s28, s38, 2")
    f(f"s_lshl_b32 s38, s38, 12")
    f(f"s_add_u32 s{sHalo}, s38, {HALO_OFF}")
    f(f"s_mov_b32 s{sPASS}, 0")
    f(f"s_add_u32 s{sKVp}, s54, s{sKVbase}\ns_addc_u32 s{sKVp+1}, s55, 0")
    f("s_lshl_b32 s36, s2, 2"); f(f"s_add_u32 s36, s36, s{sW}"); f("s_lshl_b32 s36, s36, 11")
    f(f"v_and_b32 v24, 15, v{vLANE}"); f("v_lshlrev_b32 v24, 7, v24"); f("v_add_u32 v60, s36, v24")
    if a.opts.get("tlb"):
        f("s_lshr_b32 s36, s2, 3"); f("s_mul_i32 s37, s36, 11"); f(f"v_min_u32 v61, 10, v{vLANE}"); f("v_add_u32 v61, s37, v61"); f("v_lshlrev_b32 v61, 16, v61")
        f("s_lshl_b32 s37, s36, 1"); f(f"v_min_u32 v62, 1, v{vLANE}"); f("v_add_u32 v62, s37, v62"); f("v_lshlrev_b32 v62, 16, v62")
    f("s_lshr_b32 s36, s2, 3"); f("s_lshl_b32 s36, s36, 2"); f(f"s_add_u32 s36, s36, s{sW}"); f("s_lshl_b32 s36, s36, 14")
    f("v_add_u32 v0, s36, v24")
    f(f"s_lshl_b32 s36, s{sSeq}, 6")
    f(f"s_lshl_b32 s37, s{sHead}, 1")
    f("s_add_u32 s36, s36, s37")
    f(f"v_lshrrev_b32 v9, 5, v{vLANE}")
    f(f"v_add_u32 v{vGrow}, s36, v9")
    f(f"v_and_b32 v25, 31, v{vLANE}")
    f("v_lshlrev_b32 v25, 4, v25")
    f(f"v_lshl_add_u32 v9, v{vGrow}, 11, v25")
    f(f"s_mov_b32 s56, s{sPG}"); f(f"s_and_b32 s57, s{sPG+1}, 0xffff"); f("s_mov_b32 s58, 2048"); f("s_mov_b32 s59, 0x20000")
    f(f"s_lshl_b32 s38, s{sHP}, 2"); f(f"s_add_u32 s38, s38, s{sW}"); f("s_lshl_b32 s38, s38, 6")
    f(f"s_add_u32 s31, s38, {F_KV}"); f(f"s_lshl_b32 s38, s{sT}, 2"); f("s_add_u32 s32, s31, s38")
    f(f"s_add_u32 s33, s28, {F_H - 4}"); f(f"s_cmp_eq_u32 s{sSeq}, 0\ns_cselect_b32 s38, 4, 0"); f("s_add_u32 s33, s33, s38")
    return L

def gemm1(a):
    o = a.opts
    p1 = P1(a)
    W = lambda j, ps: [("W", j, p) for p in ps]
    X = lambda v, ps: [("X", v, p) for p in ps]
    pro = X(0, range(4)) + W(0, range(6)) + W(1, range(6))
    sched = {(0,0): X(1, range(4)) + W(2, [0,1]), (0,1): W(2, [2,3,4,5]) + W(3, [0,1]),
             (1,0): W(3, [2,3,4,5]) + W(4, [0,1]), (1,1): X(2, range(4)) + W(4, [2,3]),
             (2,0): W(4, [4,5]) + W(5, [0,1,2,3]), (2,1): W(5, [4,5]) + X(3, range(4)),
             (3,0): W(6, range(6))}
    for u in range(3, 28):
        v, p0 = ((u + 5)//2, 0) if u & 1 else ((u + 4)//2, 2)
        sched[(u, 1)] = W(u + 4, [0,1,2]) + (X(v, [p0]) if v < 16 else [])
        sched[(u + 1, 0)] = W(u + 4, [3,4,5]) + (X(v, [p0 + 1]) if v < 16 else [])
    if o.get("w1late", 0):
        pro = X(0, range(4)) + W(0, range(6))
        sched.update({(0,0): W(1, range(6)), (0,1): X(1, range(4)) + W(2, [0,1]), (1,0): W(2, [2,3,4,5]) + W(3, [0,1]),
                      (1,1): W(3, [2,3,4,5]) + X(2, [0,1]), (2,0): X(2, [2,3]) + W(4, [0,1,2,3]), (2,1): W(4, [4,5]) + W(5, [0,1,2,3]),
                      (3,0): W(5, [4,5]) + X(3, range(4)), (3,1): W(6, range(6)), (4,0): W(7, range(6)),
                      (4,1): W(8, [0,1,2]) + X(4, [0,1,2]), (5,0): W(8, [3,4,5]) + X(4, [3])})
    U0 = o.get("u0", 28)
    if U0 == 28:
        sched[(27, 1)] = W(31, range(6)); del sched[(28, 0)]
    for (u, hf), ps in sched.items():
        done = u - 1 if hf == 0 else u
        for k, j, p in ps:
            if k == "W": assert j < 4 or done >= j - 4, (u, hf, k, j)
            else: assert j < 3 or done >= 2*(j - 3) + 1, (u, hf, k, j)
    npf0 = o.get("pf0", 2)
    pfs = {}
    r = npf0
    for u in range(0, 32):
        while r < 16 and u >= max(0, 2*r - o.get("pfd", 5)) and pfs.get(u, 0) < 1:
            pfs[u] = pfs.get(u, 0) + 1; r += 1
    fil = fillers_prologue(a)
    late = fillers_late(a)
    if o.get("p4early", 1):
        assert o.get("latepro", 1) in (1, 2) and not o.get("zinit")
        late += p4_split()[0]
    post_issue = []
    if o.get("latepro", 1) == 1: fil += late; late = []
    if o.get("latepro", 1) == 2: post_issue = late; late = []
    if o.get("latepro", 1) == 3: post_issue = fil[42:] + late; fil = fil[:42]; late = []
    ws_ = a.wsetup
    chunks = [ws_[0:4], ws_[4:8], ws_[8:11], ws_[11:14]]
    per = (len(fil) + len(pro) - 5)//(len(pro) - 4)
    chunks += [fil[i*per:(i+1)*per] for i in range(len(pro) - 4)]
    for pc, chunk in zip(pro, chunks):
        pre, d, post = p1.dma(pc)
        for s in pre: a(s)
        a(chunk[0] if chunk else "s_nop 0")
        a.emit(d)
        for s in post + chunk[1:]: a(s)
    for s in post_issue: a(s)
    a(f"s_or_b32 s36, s2, s{sW}")
    a("s_cmp_lg_u32 s36, 0")
    a("s_cbranch_scc1 L_NONONCE")
    a("s_memrealtime s[36:37]")
    a("v_mov_b32 v20, 0")
    a("s_waitcnt lgkmcnt(0)")
    a("s_or_b32 s36, s36, 1")
    a("v_mov_b32 v19, s36")
    a(f"global_store_dword v20, v19, s[{sPDbg}:{sPDbg+1}] sc1")
    a("L_NONONCE:")
    a.stamp("issued")
    a.emit(a.wait(["X0", "W0"]))
    a("s_barrier")
    a.stamp("first")
    for s in x_reads(0, 0) + w_reads(0, 0, (0, 1, 2)): a(s)
    a("s_waitcnt lgkmcnt(0)")
    def need(u): return [f"W{u}"] + ([f"X{u//2}"] if u % 2 == 0 else [])
    def seq(M, keys=None): return [M[k] for k in (keys or sorted(M))]
    pend = [0]
    def late_wait(sides, g):
        if pend[0]:
            n = sum(isinstance(x, str) and x.startswith("ds_") for k in sides if k <= g for x in sides[k])
            sides.setdefault(g, []).append(f"s_waitcnt lgkmcnt({n})")
            pend[0] = 0
    def soft_wait(nreads, need_):
        if o.get("soft", 1) and nreads > need_:
            pend[0] = nreads - need_
            a(f"s_waitcnt lgkmcnt({pend[0]})")
        else:
            a("s_waitcnt lgkmcnt(0)")
    roll = o.get("roll", 0)
    if roll:
        assert U0 == 28 and not late
        raise Exception("rolled loop needs bounds-checked prefetch")
        assert all(pfs.get(u, 0) == pfs.get(u + 12, 0) for u in range(4, 16)), pfs
    def half(u, hf):
        if hf == 0: reads = w_reads(1, u, (3, 4, 5))
        else: reads = x_reads((u + 1) & 1, u + 1) + w_reads(0, u + 1, (0, 1, 2) if u + 1 < U0 else (1, 2))
        sides = {}
        ps = sched.get((u, hf), [])
        lay = o.get("glay", 1)
        if lay == 0 or len(ps) > 4:
            for g, rd in enumerate(reads): sides.setdefault(g, []).append(rd)
            D = ([[13, 16, 19, 22], [12, 14, 16, 18, 20, 22]] if hf == 0 else [[17, 19, 21, 23], [13, 15, 17, 19, 21, 23]])[len(ps) > 4]
            if (u, hf) == (0, 0) and o.get("w1late", 0): D = [1, 3, 5, 7, 9, 11]
            for g, pc in zip(D, ps):
                pre, d, post = p1.dma(pc)
                sides.setdefault(g - 1, []).extend(pre)
                sides.setdefault(g, []).insert(0, d)
                sides[g].extend(post)
        else:
            D = {1: [2, 8, 14, 20], 2: [4, 10, 16, 22], 3: [3, 9, 15, 21], 4: [5, 11, 17, 23]}[lay]
            free = [g for g in range(24) if g not in D[:len(ps)]]
            for g, rd in zip(free, reads): sides.setdefault(g, []).append(rd)
            for g, pc in zip(D, ps):
                pre, d, post = p1.dma(pc)
                sides.setdefault(g - 1, []).extend(pre)
                sides.setdefault(g, []).insert(0, d)
                sides.setdefault(min(g + 1, 23), []).extend(post)
        if o.get("tlb", 0) >= 2 and (u, hf) == (o.get("tlbstep", 20), 0):
            sides.setdefault(23, []).append((f"global_load_dword v{vPFd}, v61, s[54:55]", "tlb"))
        if o.get("tlb", 0) >= 1 and (u, hf) == (o.get("tlbstep", 20) + 2, 0):
            sides.setdefault(23, []).append((f"global_load_dword v{vPFd}, v62, s[{sPOut}:{sPOut+1}]", "tlb"))
        if hf == 0 and pfs.get(u):
            sides.setdefault(23, []).extend(pf_round(a))
        if u >= 4 and late:
            for g in range(24):
                cur = sides.get(g, [])
                if any(isinstance(x, tuple) or x.startswith("ds_") for x in cur): continue
                room = o.get("lateper", 2) - (1 if cur else 0)
                while late and room > 0:
                    x = late.pop(0); sides.setdefault(g, []).append(x); room -= len(x.split("\n"))
        if roll and (u, hf) in ((15, 0), (27, 0)):
            sides.setdefault(14, []).append("s_sub_u32 s35, s35, 1")
        late_wait(sides, 7)
        a.inter(seq(g1_mfmas(u & 1, hf, (0, 1, 2) if hf == 0 else (3, 4, 5), first=(u == 0 and not o.get('zinit')))), sides)
        if roll and (u, hf) in ((15, 0), (27, 0)):
            a("s_cmp_lg_u32 s35, 0")
        if hf == 0:
            a.emit(a.wait(need(u + 1), lgkm=True))
            a("s_barrier")
        elif u + 1 < U0:
            soft_wait(16, 8)
        if hf == 1 and u % 8 == 7 and not roll: a.stamp(f"g{u}")
    halves = [(u, hf) for u in range(U0) for hf in range(2)]
    if not roll:
        for h in halves: half(*h)
    else:
        for h in halves[:7]: half(*h)
        a("s_mov_b32 s35, 2")
        n0 = len(a.lines)
        for h in halves[7:31]: half(*h)
        p1_ = a.lines[n0:]; del a.lines[n0:]
        for h in halves[31:55]: half(*h)
        p2_ = a.lines[n0:]; del a.lines[n0:]
        assert len(p1_) == len(p2_)
        if o.get("galign"): a(f".p2align {o['galign']}")
        a("L_G1:")
        import re
        for x, y in zip(p1_, p2_):
            if x != y:
                mx, my = re.fullmatch(r"\s*s_waitcnt vmcnt\((\d+)\) lgkmcnt\(0\)", x), re.fullmatch(r"\s*s_waitcnt vmcnt\((\d+)\) lgkmcnt\(0\)", y)
                assert mx and my, (x, y)
                x = f"s_waitcnt vmcnt({min(int(mx.group(1)), int(my.group(1)))}) lgkmcnt(0)"
            a(x)
        a("s_cbranch_scc1 L_G1")
        half(27, 1)
    misc = []
    for j in range(8):
        misc.append((f"buffer_load_dwordx4 {ar(aGATE+4*j, 4)}, v9, s[{sX}:{sX+3}], 0 offen offset:{512*j}" if j < 4 else
                     f"buffer_load_dwordx4 {ar(aGATE+4*j, 4)}, v25, s[56:59], 0 offen offset:{512*(j-4)}", "gate"))
    misc = [(f"global_load_dword v21, v19, s[{sPDbg}:{sPDbg+1}] sc1", "nonce"),
            (f"buffer_load_dword v{vPFd}, v{vT[7]}, s[{sCode}:{sCode+3}], 0 offen", "cpf")] + misc
    if o.get("wom", 1): misc.insert(o.get("wompos", 10), (f"global_load_dword v{vPFd}, v60, s[{sPWoB}:{sPWoB+1}]", "wopf"))
    if o.get("wom", 1) > 1: misc.append((f"global_load_dword v{vPFd}, v60, s[{sPWoA}:{sPWoA+1}]", "wopf"))
    if o.get("tlb", 0) == 1:
        misc[-0:] = misc[-0:] + [(f"global_load_dword v{vPFd}, v61, s[54:55]", "tlb")]
    xs, ws_ = U0 & 1, 0
    units = [(u, b) for u in range(U0, 31) for b in ((0, 3), (4, 5))] + [(31, (4, 5)), (31, (3, 0))]
    bfirst = o.get("bfirst", 1)
    if bfirst: units = [(u, (4, 5)) for u in range(U0, 32)] + [(u, (3, 0)) for u in range(U0, 32)]
    for u in range(U0, 32):
        if u < 31:
            a.emit(a.wait(need(u + 1), lgkm=True)); a("s_barrier")
        else:
            a("s_waitcnt lgkmcnt(0)")
        reads = x_reads(1 - xs, u + 1) + w_reads(1 - ws_, u + 1, (1, 2)) if u < 31 else x_reads(1 - xs, U0) + w_reads(1 - ws_, *units[0])
        sides = {}
        for i, rd in enumerate(reads): sides.setdefault(i, []).append(rd)
        if u == U0:
            sides.setdefault(0, []).append("v_mov_b32 v19, 0")
            sides.setdefault(1, []).append(f"s_add_u32 s25, s{sKVsrc}, 4096"); sides.setdefault(2, []).append(f"s_mov_b32 s26, s{sKVsrc}")
        for g in ((12, 13, 15) if U0 == 28 else (12, 13, 14, 15)):
            if misc: sides.setdefault(g, []).append(misc.pop(0))
        M = g1_mfmas(xs, ws_, (1, 2))
        a.inter(seq(M, [(i, nt, mt) for rt in range(2) for i in range(2) for nt in range(2) for mt in (2*rt, 2*rt + 1)]), sides)
        xs ^= 1; ws_ ^= 1
    assert not misc
    a.stamp("gP")
    e1_lists(a)
    kvw = pk16(KA[0], pKA[0]) + a.kv.pop(0) + pk16(VA[0], pVA[0]) + pk16(KA[1], pKA[1]) + pk16(VA[1], pVA[1])
    st_units = {28: [1, 2, 3, 4, 5, 6, 7], 29: [1, 2, 3, 4, 5]}[U0]
    greedy = o.get("rgreedy", 1) and bfirst
    if greedy:
        a.kv.insert(0, [kvw[12]])
        blocks = [(KA[0], pKA[0], 0, 4), (VA[0], pVA[0], 0, 4), (KA[1], pKA[1], 0, 4), (VA[1], pVA[1], 0, 4),
                  (KB[1], pKB[1], 0, 64 + 2), (VB[1], pVB[1], 1, 64 + 2), (KB[0], pKB[0], 0, 64 + 5), (VB[0], pVB[0], 1, 64 + 5)]
        cv = [(b, x) for b, (src, dst, vb, t0) in enumerate(blocks) for x in packl(src, dst)]
        sw = [(b, x) for b, (src, dst, vb, t0) in enumerate(blocks) for x in pk16(src, dst, vb)[8:]]
        cdone = {}; sdone = {}; last_st = [-99]; nst = [0]
        def fill(T, room, free):
            out = []
            if (free or o.get("stany", 1)) and a.kv and nst[0] < 8:
                b = nst[0] // 2
                gap_ = o.get("stgap0", 6) if nst[0] < 4 else o.get("stgap", 20)
                if sdone.get(b, 999) < T and T - last_st[0] >= gap_:
                    last_st[0] = T; nst[0] += 1
                    return a.kv.pop(0)
            can_sw = sw and cdone.get(sw[0][0], 999) < T
            can_cv = cv and blocks[cv[0][0]][3] <= T
            if can_sw and (free or not can_cv):
                b, x = sw.pop(0)
                if not sw or sw[0][0] != b: sdone[b] = T
                return [x]
            while can_cv and room > 0:
                b, x = cv.pop(0); out.append(x); room -= 1
                if not cv or cv[0][0] != b: cdone[b] = T
                can_cv = cv and blocks[cv[0][0]][3] <= T
            return out
    for n, (u, blks) in enumerate(units):
        last = n == len(units) - 1
        special = n >= len(units) - 2 or (bfirst and n == len(units)//2 - 1)
        if last or special or not bfirst: a("s_waitcnt lgkmcnt(0)")
        else: soft_wait(12, 8)
        if last: a("s_barrier")
        reads = []
        newx = False
        if not last:
            un, bn = units[n + 1]
            newx = un != u
            reads = (x_reads(1 - xs, un) if newx else []) + w_reads(1 - ws_, un, bn)
        sides = {}
        for i, rd in enumerate(reads): sides.setdefault(i, []).append(rd)
        M = g1_mfmas(xs, ws_, blks)
        keys = None
        if bfirst and n == len(units)//2 and not greedy:
            kvw += pk16(KB[1], pKB[1]) + pk16(VB[1], pVB[1], True) + pk16(KB[0], pKB[0]) + pk16(VB[0], pVB[0], True)
        if n >= len(units) - 2 or (bfirst and n == len(units)//2 - 1):
            keys = [(i, nt, mt) for rt in (1, 0) for i in range(2) for nt in range(2) for mt in (2*rt, 2*rt + 1)]
            if last: keys = [(i, nt, mt) for i in range(2) for rt in (1, 0) for nt in range(2) for mt in (2*rt, 2*rt + 1)]
        if greedy and not last:
            for g in range(16):
                sides.setdefault(g, []).extend(fill(16*n + g, 1 if g < len(reads) else 2, g >= len(reads)))
        elif greedy:
            left = []
            for b in range(8):
                left += [x for bb, x in cv if bb == b] + [x for bb, x in sw if bb == b]
            assert all(bb >= 4 for bb, x in cv + sw)
            e1_head(a, sides, left); kvw = []
        elif last:
            e1_head(a, sides, kvw if bfirst else None); kvw = []
        else:
            for g in range(4 if n == 0 else 0, 16):
                budget = 1 if g < len(reads) else 2
                if n in st_units and g == 15: budget = 0
                while kvw and budget > 0:
                    cost = 2 if (isinstance(kvw[0], tuple) or "permlane" in kvw[0]) else 1
                    if cost > budget and o.get("rstrict", 1): break
                    sides.setdefault(g, []).append(kvw.pop(0))
                    budget -= cost
        if n in st_units and not greedy:
            st_ = a.kv.pop(0)
            lo = int(st_[0][0].split("v[")[1].split(":")[0])
            assert not any(isinstance(x, str) and any(f"v{lo+i}," in x.split(None, 1)[1].split(", v")[0] + "," or x.endswith(f" v{lo+i}") and "permlane" in x for i in range(4)) for x in kvw), (n, lo)
            sides.setdefault(1 if last else 15, []).extend(st_)
        late_wait(sides, 7)
        a.inter(seq(M, keys), sides)
        ws_ ^= 1
        if newx: xs ^= 1
    assert not kvw
    a.stamp("g31")
    assert not late

def packl(base, out=None):
    out = base if out is None else out
    return [f"v_cvt_pk_bf16_f32 v{out+j}, v{base+2*j}, v{base+2*j+1}" for j in range(8)]
def pk16(base, out=None, vb=False):
    out = base if out is None else out
    l = packl(base, out) + [f"v_permlane16_swap_b32 v{out+i}, v{out+i+2}" for i in (0, 1, 4, 5)]
    if vb: l += [f"v_permlane32_swap_b32 v{out+i}, v{out+i+2}" for i in (0, 1, 4, 5)]
    return l
def pko(base, out=None):
    out = base if out is None else out
    return packl(base, out) + ["s_nop 0"] + [f"v_permlane16_swap_b32 v{out+j}, v{out+4+j}" for j in range(4)]
def pack(a, base, out=None):
    for s in packl(base, out): a(s)
class L(list):
    def __call__(self, s): self.append(s)
    def emit(self, s): self.append(s)
def weave(a, work, extra, first, every):
    nxt = first
    for i, w in enumerate(work):
        while extra and i >= nxt:
            for s in extra.pop(0): a.emit(s)
            nxt += every
        a.emit(w)

def padfill(a, fill, n):
    k = 0
    for f in fill:
        a.emit(f); k += len(f.split("\n")) if isinstance(f, str) else 1
    if k < n: a(f"s_nop {n - k - 1}")

def local_tile(a, Q, Kc, Vc, Kp, Vp1, SC, SP, O, PC, PP, tmp, off, tag, fill1=(), fill2=()):
    m, t = tmp, tmp + 1
    a(mf32(vr(SC, 16), vr(Kc, 4), vr(Q, 4), vr(vMc, 16)))
    a(mf32(vr(SC, 16), vr(Kc+4, 4), vr(Q+4, 4), vr(SC, 16)))
    a(mf32(vr(SP, 16), vr(Kp, 4), vr(Q, 4), vr(vMc + 8, 16)))
    a(mf32(vr(SP, 16), vr(Kp+4, 4), vr(Q+4, 4), vr(SP, 16)))
    padfill(a, fill1, 10)
    vals = [SC + i for i in range(16)] + [SP + 8 + i for i in range(8)]
    a(f"v_max3_f32 v{m}, v{vals[0]}, v{vals[1]}, v{vals[2]}")
    for i in range(3, 23, 2):
        a(f"v_max3_f32 v{m}, v{m}, v{vals[i]}, v{vals[i+1]}")
    a(f"v_max_f32 v{m}, v{m}, v{vals[23]}")
    a(f"v_mov_b32 v{t}, v{m}")
    a("s_nop 1")
    a(f"v_permlane32_swap_b32 v{m}, v{t}")
    a(f"v_max_f32 v{m}, v{m}, v{t}")
    a(f"v_mul_f32 v{m}, s{sCS}, v{m}")
    for v in vals:
        a(f"v_fma_f32 v{v}, v{v}, s{sCS}, -v{m}")
    L = SP
    for i in range(10): a(f"v_exp_f32 v{vals[i]}, v{vals[i]}")
    for j in range(4): a(f"v_cvt_pk_bf16_f32 v{PC+j}, v{SC+2*j}, v{SC+2*j+1}")
    for i in range(10, 13): a(f"v_exp_f32 v{vals[i]}, v{vals[i]}")
    a(mf32(vr(O, 16), vr(Vc, 4), vr(PC, 4), 0))
    for i in range(13, 18): a(f"v_exp_f32 v{vals[i]}, v{vals[i]}")
    a(mf16(vr(L, 4), ar(aONE, 4), vr(PC, 4), 0))
    for j in range(4, 8): a(f"v_cvt_pk_bf16_f32 v{PC+j}, v{SC+2*j}, v{SC+2*j+1}")
    for i in range(18, 20): a(f"v_exp_f32 v{vals[i]}, v{vals[i]}")
    a(mf32(vr(O, 16), vr(Vc+4, 4), vr(PC+4, 4), vr(O, 16)))
    for i in range(20, 24): a(f"v_exp_f32 v{vals[i]}, v{vals[i]}")
    a(mf16(vr(L, 4), ar(aONE, 4), vr(PC+4, 4), vr(L, 4)))
    for j in range(4): a(f"v_cvt_pk_bf16_f32 v{PP+j}, v{SP+8+2*j}, v{SP+9+2*j}")
    a("s_nop 1")
    a(mf16(vr(L, 4), ar(aONE, 4), vr(PP, 4), vr(L, 4)))
    a(mf32(vr(O, 16), vr(Vp1, 4), vr(PP, 4), vr(O, 16)))
    padfill(a, fill2, 7)
    a(f"v_rcp_f32 v{m}, v{L}")
    a(f"s_add_u32 s35, s{sOst}, {OB_OFF + off}")
    a("s_nop 2")
    for i in range(16):
        a(f"v_mul_f32 v{O+i}, v{O+i}, v{m}")
    return [(f"buffer_store_dwordx4 {{0}}, v{vL16}, {WS}, s35 offen sc1", tag),
            (f"buffer_store_dwordx4 {{0}}, v{vL16}, {WS}, s35 offen offset:1024 sc1", tag)]

def flag_store(sreg, vtmp, tag):
    return [f"v_mov_b32 v{vtmp}, s{sNONCE}", (f"buffer_store_dword v{vtmp}, v{vF0}, {WS}, s{sreg} offen sc1", tag)]

def poll_check(a, name, vdst, vaddr, sreg, tag, mask=-1):
    a.emit(a.wait([tag]))
    a(f"v_cmp_ne_u32 vcc, s{sNONCE}, v{vdst}")
    a(f"s_and_b32 s{sSpin}, vcc_lo, {mask}")
    a(f"s_cbranch_scc1 {name}_S")
    a(f"{name}_R:")
    a.tail.append(f"""{name}_S:
    s_mov_b32 s{sSpin}, 0
{name}_L:
    buffer_load_dword v{vdst}, v{vaddr}, {WS}, s{sreg} offen sc1
    s_add_u32 s{sSpin}, s{sSpin}, 1
    s_waitcnt vmcnt(0)
    v_cmp_ne_u32 vcc, s{sNONCE}, v{vdst}
    s_cmp_lt_u32 s{sSpin}, 0x40000
    s_cbranch_scc0 {name}_R
    s_nop 2
    s_and_b32 vcc_hi, vcc_lo, {mask}
    s_cbranch_scc1 {name}_L
    s_branch {name}_R""")

def e1_lists(a):
    a.halo = [[(f"buffer_store_dwordx4 {vr(pKB[1], 4)}, v{vL16}, {WS}, s{sHalo} offen sc1", "halo")],
              [(f"buffer_store_dwordx4 {vr(pKB[1]+4, 4)}, v{vL16}, {WS}, s{sHalo} offen offset:1024 sc1", "halo")],
              [(f"buffer_store_dwordx4 {vr(pVB[1]+4, 4)}, v{vL16}, {WS}, s{sHalo} offen offset:2048 sc1", "halo")]]
    a.kv = []; a.dsw = []
    for rt in range(2):
        for (blk, f0) in ((pKA[rt], 0), (pVA[rt], 2)):
            for f in range(2):
                off = (f0 + f)*1024
                a.kv.append([(f"buffer_store_dwordx4 {vr(blk+4*f, 4)}, v{vL16 if f0 else vKS}, {WS}, s{26 if rt == 0 else 25} offen offset:{off} sc1", "kv")])
                a.dsw.append([f"ds_write_b128 v{22 if f0 else vKL}, {vr(blk+4*f, 4)} offset:{rt*4096 + off}"])

def e1_head(a, sides, left):
    w = [f"s_add_u32 s36, s{sKVdst}, {KV_LDS[0]}", f"v_add_u32 v22, s36, v{vL16}", f"v_add_u32 v{vKL}, s36, v{vKS}", f"v_add_u32 v{vL16b}, 4096, v{vL16}"]
    if left is None: w += pk16(KB[1], pKB[1]) + pk16(VB[1], pVB[1], True) + pk16(KB[0], pKB[0]) + pk16(VB[0], pVB[0], True)
    else: w += left + sel_init(23, 24)[:5] + sel_init(23, 24)[13:]
    a.selrest = sel_init(23, 24) if left is None else sel_init(23, 24)[5:13]
    for g in range(16):
        budget = 2
        if g % 2 == 1 and g > 1:
            sides.setdefault(g, []).extend(a.dsw.pop(0)); budget = 0
        while w and budget > 0:
            x = w.pop(0)
            sides.setdefault(g, []).append(x)
            budget -= 2 if "permlane" in x else (0 if x.startswith("s_") else 1)
    a.e1rest = w

def e1(a):
    o = a.opts
    pend = a.kv + a.halo
    a.emit(a.wait(["nonce"]))
    a(f"v_readfirstlane_b32 s{sNONCE}, v21")
    w = a.e1rest + pk16(QB[1], 240) + a.selrest + pk16(QB[0], pQB[0])
    weave(a, w, a.dsw, 2, 8)
    a(f"s_cmp_eq_u32 s{sNONCE}, 0")
    a("s_cbranch_scc1 L_NONCE_S")
    a("L_NONCE_R:")
    a.tail.append(f"""L_NONCE_S:
    s_mov_b32 s{sSpin}, 0
L_NONCE_L:
    global_load_dword v21, v19, s[{sPDbg}:{sPDbg+1}] sc1
    s_add_u32 s{sSpin}, s{sSpin}, 1
    s_waitcnt vmcnt(0)
    v_readfirstlane_b32 s{sNONCE}, v21
    s_cmp_lt_u32 s{sSpin}, 0x40000
    s_cbranch_scc0 L_NONCE_R
    s_nop 2
    s_cmp_eq_u32 s{sNONCE}, 0
    s_cbranch_scc1 L_NONCE_L
    s_branch L_NONCE_R""")
    for s in pend.pop(0): a.emit(s)
    a.stamp("e1pack")
    qa = []
    for q in QA:
        qa += [f"v_pk_mul_f32 {vr(q+2*j, 2)}, {vr(q+2*j, 2)}, s[62:63]" for j in range(8)] + pk16(q)
    lt = L()
    st = local_tile(lt, 240, pKB[1], pVB[1], pKB[0], pVB[0]+4, 128, 144, 176, 168, 248, 252, 65536, "ob1", fill1=qa[:26], fill2=qa[26:])
    lt += pko(176, 56)
    a.ob1 = [(st[0][0].format("v[56:59]"), "ob1"), (st[1][0].format("v[60:63]"), "ob1")]
    weave(a, lt, pend, o.get("st_a", 40), o.get("st_b", 50))
    for g in pend:
        for s in g: a.emit(s)
    a.stamp("loc1")
    a.emit(a.wait(["kv"], lgkm=True))
    for s in flag_store(32, 20, "fKV"): a.emit(s)
    a("s_barrier")
    a.stamp("fKV")

sKVp, sKVg, sOg, sPFW = 84, 98, 100, 52
vL16b = 5
def kv_dma(slot, group, tag):
    out = [f"s_add_u32 m0, s{sKVdst}, {KV_LDS[slot] + group*4096}"]
    for p in range(4):
        out.append((f"global_load_lds_dwordx4 v{vL16b if group else vL16}, s[{sKVg}:{sKVg+1}] offset:{p*1024} sc1", tag))
    return out
sKVb, sKVd = 3, 34
def kv_advance(c):
    if c <= 7:
        return [f"s_cmp_le_u32 s{sKVt}, {c-1}", f"s_addc_u32 s36, s{sKVb}, {c-1}", "s_lshl_b32 s36, s36, 15",
                f"s_add_u32 s{sKVg}, s{sKVp}, s36", f"s_addc_u32 s{sKVg+1}, s{sKVp+1}, 0"]
    return [f"s_add_u32 s36, s{sKVb}, {c}", "s_and_b32 s36, s36, 15", "s_lshl_b32 s36, s36, 15",
            f"s_add_u32 s{sKVg}, s{sKVp}, s36", f"s_addc_u32 s{sKVg+1}, s{sKVp+1}, 0"]

def sel_init(t0, t1):
    return [f"v_lshrrev_b32 v{t0}, 1, v{vLANE}", f"v_and_b32 v{t0}, 3, v{t0}", f"v_min_u32 v{t1}, 1, v{t0}", f"v_add_u32 v{t1}, -1, v{t1}",
            f"v_and_b32 v{t1}, 0x3f803f80, v{t1}", f"v_accvgpr_write_b32 a{aSEL}, v{t1}", f"v_accvgpr_write_b32 a{aSEL+1}, v{t1}",
            f"v_xor_b32 v{t0}, 2, v{t0}", f"v_min_u32 v{t1}, 1, v{t0}", f"v_add_u32 v{t1}, -1, v{t1}",
            f"v_and_b32 v{t1}, 0x3f803f80, v{t1}", f"v_accvgpr_write_b32 a{aSEL+2}, v{t1}", f"v_accvgpr_write_b32 a{aSEL+3}, v{t1}",
            f"v_and_b32 v{vIDX}, 1, v{vLANE}", f"v_mul_u32_u24 v{vIDX}, 0xaaaa, v{vIDX}", f"v_add_u32 v{vIDX}, 0x4444, v{vIDX}"]
def smf(q): return f"v_smfmac_f32_16x16x64_bf16 {ar(aL[q], 4)}, {ar(aSEL, 4)}, {vr(P[q], 8)}, v{vIDX}"

def H(a, q, vpar, qk=True, pv=True, pv_first=False, slots=None):
    slots = slots or {}
    o = 1 - q
    e = [f"v_exp_f32 v{S[q]+i}, v{S[q]+i}" for i in range(16)]
    c = [f"v_cvt_pk_bf16_f32 v{P[q]+j}, v{S[q]+2*j}, v{S[q]+2*j+1}" for j in range(8)]
    So, Oo = vr(S[o], 16), ar(aO[o], 16)
    M = [mf32(So, ar(aK, 4), vr(QA[o], 4), vr(NM[o], 16)) if qk else None,
         mf32(So, ar(aK+4, 4), vr(QA[o]+4, 4), So) if qk else None,
         mf32(Oo, ar(aV[vpar], 4), vr(P[o], 4), 0 if pv_first else Oo) if pv else None,
         mf32(Oo, ar(aV[vpar]+4, 4), vr(P[o]+4, 4), Oo) if pv else None,
         smf(o) if pv else None, None]
    V = [[e[0], e[1], e[2]], [e[3], c[0], c[1], e[4]], [e[5], e[6], e[7]], [c[2], c[3], e[8], e[9], e[10], e[11], c[4], c[5]],
         [], [e[12], e[13], e[14], e[15], c[6], c[7]]]
    if not pv: V[3] = ["s_nop 0"] + V[3]
    for i in range(6):
        if M[i]: a(M[i])
        for s in slots.get(i, []): a.emit(s)
        for s in V[i]: a(s)

def rdK(slot, off): return [f"ds_read_b128 {ar(aK, 4)}, v{vKV[slot]} offset:{off}", f"ds_read_b128 {ar(aK+4, 4)}, v{vKV[slot]} offset:{off+1024}"]
def rdV(par, slot, off): return [f"ds_read_b128 {ar(aV[par], 4)}, v{vKV[slot]} offset:{off+2048}", f"ds_read_b128 {ar(aV[par]+4, 4)}, v{vKV[slot]} offset:{off+3072}"]

FREE_A = [0, 3, 4]; FREE_B = [2, 3, 4, 5]
TORD = [0, 2, 1, 3]
def tile(a, n, side=None, end_b=None):
    sa = {}; sb = {}
    if n < 63:
        m = n + 1
        k = rdK((m >> 2) & 1, TORD[m & 3]*4096); v = rdV(m & 1, (m >> 2) & 1, TORD[m & 3]*4096)
        sa[1] = [k[0]]; sa[2] = [k[1]]; sa[5] = ["s_waitcnt lgkmcnt(0)"]
        sb[0] = [v[0]]; sb[1] = [v[1]]
    if side is not None:
        for g in FREE_A:
            if side: sa.setdefault(g, []).extend(side.pop(0))
        for g in (FREE_B if end_b is None else FREE_B[:-1]):
            if side: sb.setdefault(g, []).extend(side.pop(0))
        if sb.get(4) and sb.get(5) and isinstance(sb[4][-1], str) and " m0," in sb[4][-1] and isinstance(sb[5][0], tuple):
            if not sb.get(3): sb[3] = sb.pop(4)
            elif len(sb[3]) == 1 and isinstance(sb[3][0], str) and " m0," not in sb[3][0] and not sb[3][0].startswith(("s_cmp", "s_addc", "s_add_u32 s9", "s_add_u32 s10")):
                sb[3], sb[4] = sb[4], sb[3]
            else: sb[4] = sb[4] + ["s_nop 0"]
    if end_b: sb.setdefault(5, []).extend(end_b)
    H(a, 0, (n - 1) & 1, pv=(n != 0), pv_first=(n == 1), slots=sa)
    H(a, 1, n & 1, qk=(n < 63), pv_first=(n == 0), slots=sb)

def neg_max(a):
    for q in range(2): a(f"v_mov_b32 v{21+q}, v{19+q}")
    a("s_nop 0")
    for q in range(2): a(f"v_permlane32_swap_b32 v{19+q}, v{21+q}")
    for q in range(2): a(f"v_max_f32 v{19+q}, v{19+q}, v{21+q}")
    for q in range(2):
        for i in range(16): a(f"v_sub_f32 v{NM[q]+i}, 0, v{19+q}")

def gate_compute(a):
    z, t = 23, 24
    for i in range(16):
        a(f"v_accvgpr_read_b32 v{96+(i%4)}, a{aGATE+i}")
        a(f"v_accvgpr_read_b32 v{100+(i%4)}, a{aGATE+16+i}")
        a(f"v_dot2_f32_bf16 v{z}, v{96+(i%4)}, v{100+(i%4)}, {0 if i == 0 else 'v%d' % z}")
    a("s_nop 2")
    for sh in (8, 4, 2, 1):
        a(f"v_add_f32_dpp v{z}, v{z}, v{z} row_ror:{sh} row_mask:0xf bank_mask:0xf")
        a("s_nop 1")
    a(f"v_mov_b32 v{t}, v{z}")
    a("s_nop 1")
    a(f"v_permlane16_swap_b32 v{z}, v{t}")
    a(f"v_add_f32 v{z}, v{z}, v{t}")
    a(f"v_mul_f32 v{z}, {f2u(-math.log2(math.e))}, v{z}")
    a(f"v_exp_f32 v{z}, v{z}")
    a(f"v_and_b32 v{t}, 31, v{vLANE}")
    a(f"v_add_f32 v{z}, 1.0, v{z}")
    a(f"v_rcp_f32 v{z}, v{z}")
    a(f"v_min_u32 v{t}, 1, v{t}")
    a(f"v_lshlrev_b32 v{t}, 31, v{t}")
    a(f"v_lshl_or_b32 v{t}, v{vGrow}, 2, v{t}")
    a(f"s_mov_b32 s36, {G_OFF}")
    a.emit((f"buffer_store_dword v{z}, v{t}, {WS}, s36 offen sc1", "g"))

def p4_setup(a):
    srd(a, sWoA, sPWoA, sPWoA+1, 1024*1024*2)
    srd(a, sWoB, sPWoB, sPWoB+1, 1024*1024*2)
    srd(a, sOutD, sPOut, sPOut+1, 2048*1024*2)
    a("s_and_b32 s36, s2, 7")
    a("s_lshr_b32 s37, s2, 3")
    a(f"s_and_b32 s{sC4}, s37, 15")
    a("s_lshr_b32 s37, s37, 4")
    a("s_lshl_b32 s36, s36, 1")
    a(f"s_add_u32 s{sT4}, s36, s37")
    r, c, t0, t1 = 200, 201, 202, 203
    a(f"v_lshrrev_b32 v{r}, 3, v{vLANE}")
    a(f"v_and_b32 v{c}, 7, v{vLANE}")
    a(f"v_and_b32 v{t0}, 2, v{r}")
    a(f"s_lshl_b32 s36, s{sHH}, 2")
    a(f"v_xor_b32 v{t0}, v{t0}, v{c}")
    a(f"v_xor_b32 v{t0}, s36, v{t0}")
    a(f"v_lshlrev_b32 v{t0}, 4, v{t0}")
    a(f"v_lshl_add_u32 v{t0}, v{r}, 11, v{t0}")
    a(f"s_lshl_b32 s36, s{sW}, 14")
    a(f"s_lshl_b32 s37, s{sC4}, 7")
    a("s_add_u32 s36, s36, s37")
    a(f"v_add_u32 v{vWo_g}, s36, v{t0}")
    a(f"v_and_b32 v{r}, 15, v{vLANE}")
    a(f"v_lshrrev_b32 v{t0}, 2, v{r}")
    a(f"v_lshrrev_b32 v{t1}, 5, v{vLANE}")
    a(f"v_lshl_add_u32 v{c}, v{t1}, 2, v{t0}")
    a(f"v_and_b32 v{t1}, 16, v{vLANE}")
    a(f"v_add_u32 v{c}, v{c}, v{t1}")
    a(f"v_lshlrev_b32 v{t1}, 2, v{t1}")
    a(f"v_and_b32 v{t0}, 8, v{r}")
    a(f"v_lshl_add_u32 v{t0}, v{t0}, 2, v{t1}")
    a(f"v_lshl_add_u32 v{t0}, v{c}, 7, v{t0}")
    a(f"v_and_b32 v{t1}, 3, v{r}")
    a(f"v_lshl_add_u32 v{vWo_r[0]}, v{t1}, 3, v{t0}")
    for nt in range(1, 4):
        a(f"v_xor_b32 v{vWo_r[nt]}, {32*nt}, v{vWo_r[0]}")
    a(f"s_lshl_b32 s36, s{sT4}, 2")
    a(f"s_add_u32 s36, s36, s{sW}")
    a(f"s_lshl_b32 s{sOrow}, s36, 16")
    a(f"s_lshr_b32 s36, s36, 1")
    a(f"s_lshl_b32 s29, s36, 7")
    a(f"s_lshr_b32 s36, s{sC4}, 1")
    a(f"s_lshl_b32 s{sOoff}, s36, 13")
    a(f"s_lshl_b32 s{sWooff}, s36, 18")
    a(f"v_and_b32 v16, 31, v{vLANE}")
    a("v_lshlrev_b32 v16, 2, v16")
    a(f"v_and_b32 v17, 15, v{vLANE}")
    a(f"v_cmp_le_u32 vcc, s{sKVt}, v17")
    a(f"v_add_u32 v17, s{sKVb}, v17")
    a("s_nop 0")
    a("v_addc_co_u32 v17, vcc, 0, v17, vcc")
    a("v_and_b32 v17, 15, v17")
    a("v_lshlrev_b32 v17, 2, v17")
    a("s_lshl_b32 s36, s2, 2")
    a(f"s_add_u32 s36, s36, s{sW}")
    a("s_lshl_b32 s36, s36, 11")
    a(f"v_and_b32 v25, 7, v{vLANE}")
    a("v_lshlrev_b32 v25, 7, v25")
    a("v_add_u32 v25, s36, v25")
    a(f"s_add_u32 s36, s{sOrow}, {OB_OFF}")
    a(f"s_add_u32 s{sOg}, s54, s36")
    a(f"s_addc_u32 s{sOg+1}, s55, 0")

aPARK = 116
def p4_split():
    ps = L(); p4_setup(ps)
    regs = [vWo_g] + vWo_r + [16, 17, 25]
    tmp = {r: 64 + i for i, r in enumerate(regs)}
    tmp.update({200: 80, 201: 81, 202: 82, 203: 83})
    import re
    early = []
    late = [x for x in ps if any(x.split()[1].startswith(f"s{i},") for i in range(sWoA, sWoA + 4))]
    for x in ps:
        if x in late: continue
        early.append(re.sub(r"\bv(\d+)\b", lambda m: f"v{tmp.get(int(m.group(1)), int(m.group(1)))}", x))
    out = []
    for x in early:
        if x.startswith(("s_addc", "v_addc")) or (out and out[-1].split("\n")[-1].startswith(("v_cmp", "s_nop"))) or (x.startswith("s_nop")):
            out[-1] += "\n" + x
        else: out.append(x)
    out += [f"v_accvgpr_write_b32 a{aPARK+i}, v{tmp[r]}" for i, r in enumerate(regs)]
    late += [f"v_accvgpr_read_b32 v{r}, a{aPARK+i}" for i, r in enumerate(regs)]
    return out, late

def wob_dma(i, tag):
    return [[f"s_mov_b32 s39, {i*65536}"], [f"s_add_u32 m0, s{sWv}, {i*4096}"],
            [(f"buffer_load_dwordx4 v{vWo_g}, s[{sWoB}:{sWoB+3}], s39 offen lds", tag)]]

def attention(a):
    o = a.opts
    a("L_ATT0:")
    for s in rdK(0, 0) + rdV(0, 0, 0): a(s)
    for s in kv_advance(1): a(s)
    for q in range(2):
        for i in range(4): a(f"v_accvgpr_write_b32 a{aL[q]+i}, 0")
    a(f"s_cmp_lg_u32 s{sPASS}, 0")
    a("s_cbranch_scc1 L_ATT1")
    if o.get("p4early", 1):
        rest = L(p4_split()[1]); gate_compute(rest)
    else:
        rest = L(); p4_setup(rest)
    n1 = 22
    for s in rest[:n1]: a.emit(s)
    a("s_waitcnt lgkmcnt(0)")
    for q in range(2): a(mf32(vr(S[q], 16), ar(aK, 4), vr(QA[q], 4), 0))
    for q in range(2): a(mf32(vr(S[q], 16), ar(aK+4, 4), vr(QA[q]+4, 4), vr(S[q], 16)))
    padfill(a, rest[n1:n1+26], 11)
    for q in range(2):
        s, m = S[q], 19 + q
        a(f"v_max3_f32 v{m}, v{s}, v{s+1}, v{s+2}")
        for i in range(3, 15, 2): a(f"v_max3_f32 v{m}, v{m}, v{s+i}, v{s+i+1}")
        a(f"v_max_f32 v{m}, v{m}, v{s+15}")
    for q in range(2): a(f"v_mov_b32 v{21+q}, v{19+q}")
    a("s_nop 0")
    for q in range(2): a(f"v_permlane32_swap_b32 v{19+q}, v{21+q}")
    for q in range(2): a(f"v_max_f32 v{19+q}, v{19+q}, v{21+q}")
    for i in range(16): a(f"v_sub_f32 v{NM[0]+i}, 0, v19")
    for s in rest[n1+26:n1+28]: a.emit(s)
    a(mf32(vr(S[0], 16), ar(aK, 4), vr(QA[0], 4), vr(NM[0], 16)))
    a(mf32(vr(S[0], 16), ar(aK+4, 4), vr(QA[0]+4, 4), vr(S[0], 16)))
    for i in range(16): a(f"v_sub_f32 v{NM[1]+i}, 0, v20")
    for s in rest[n1+28:]: a.emit(s)
    a("v_mov_b32 v18, 0")
    a(f"s_add_u32 s30, s28, {F_H}")
    if o.get("fh_slot", 10) < 0:
        a.emit(a.wait(["halo"]))
        for s in flag_store(30, 20, "fH"): a.emit(s)
    a("s_branch L_ATT2")
    a("L_ATT1:")
    a("s_waitcnt lgkmcnt(0)")
    a(mf32(vr(S[0], 16), ar(aK, 4), vr(QA[0], 4), vr(NM[0], 16)))
    a(mf32(vr(S[0], 16), ar(aK+4, 4), vr(QA[0]+4, 4), vr(S[0], 16)))
    a("s_nop 11")
    a("L_ATT2:")
    a.stamp("att0")
    pk = [(f"buffer_load_dword v21, v17, {WS}, s31 offen sc1", "pKV")]
    ks = o.get("pk_slot", 0)
    sl = [[] for _ in range(14)]; sl[ks] = pk
    if o.get("fh_slot", 10) >= 0: sl[o.get("fh_slot", 10)] = [a.wait(["halo"])] + flag_store(30, 20, "fH")
    d0, d1, adv = kv_dma(1, 0, "c1a"), kv_dma(1, 1, "c1b"), kv_advance(2)
    c1s = [[d0[3]], [d0[4]], [(f"buffer_load_dword v21, v17, {WS}, s31 offen sc1", "pKV2")], [d1[0]], [d1[1], d1[2]], [d1[3]], [d1[4]]]
    def c1go():
        a.stamp("t01")
        a(d0[0])
        poll_check(a, "L_PKV", 21, 17, 31, "pKV", mask=1)
        a.stamp("pKV")
        a.emit(d0[1]); a.emit(d0[2])
    if o.get("c1early", 1):
        assert ks < 7
        fh = sl[o.get("fh_slot", 10)]
        tile(a, 0, sl[0:7]); c1go(); tile(a, 1, c1s); tile(a, 2, [[], [], [], fh])
    else:
        tile(a, 0, sl[0:7]); tile(a, 1, sl[7:14]); c1go(); tile(a, 2, c1s)
    for s in adv: a(s)
    a.stamp("t2")
    a(f"s_cmp_lg_u32 s{sPASS}, 0")
    a("s_cbranch_scc1 L_A4")
    if not o.get("p4early", 1): gate_compute(a)
    a("s_branch L_A5")
    a("L_A4:")
    a("s_waitcnt vmcnt(0)")
    a("L_A5:")
    a.emit(a.wait(["c1a"], lgkm=True))
    a("s_barrier")
    a.pkv2 = True
    a.stamp("c1")
    wob = [i for i in range(24)]
    obl = [i for i in range(64)]
    if o.get('noside', 0) & 1: wob = wob[:1]
    if o.get('noside', 0) & 2: obl = obl[:1]
    ob_start = o.get("ob_start", 6)
    obase = False
    for c in range(15):
        V = []; A = []
        side = []
        if c + 2 <= 15:
            d0, d1 = kv_dma(c % 2, 0, f"c{c+2}"), kv_dma(c % 2, 1, f"c{c+2}")
            kvs = [[x] for x in d0] + [[x] for x in d1] + ([[x] for x in kv_advance(c + 3)] if c + 3 <= 15 else [])
        else:
            kvs = []
        oth = []
        if c == 0:
            oth += [[(f"buffer_load_dword v21, v17, {WS}, s31 offen sc1", "pKV3")], [], [], [(f"buffer_load_dword v22, v18, {WS}, s33 offen sc1", "pH")]]
        if c == 3:
            oth += [[f"s_lshl_b32 s38, s{sSeq}, 7"], [f"s_lshl_b32 s39, s{sHead}, 2"], ["s_add_u32 s38, s38, s39"],
                    [f"s_add_u32 s35, s38, {F_OB}"], flag_store(35, 20, "fOB")]
        if c == ob_start - 2:
            oth += [[f"s_add_u32 s47, s29, {F_OB}"], [(f"buffer_load_dword v21, v16, {WS}, s47 offen sc1", "pOB")]]
        if c == o.get("cpf2", 11) or (o.get("cpfn") and c % o["cpfn"] == 2):
            oth += [[(f"buffer_load_dword v{vPFd}, v{vT[7]}, s[{sCode}:{sCode+3}], 0 offen", "cpf")]]
        nslots = 4*7 - 1 - (c == 0)
        if c >= ob_start:
            for _ in range(min(len(obl), o.get("ob_per", 8))):
                i = obl.pop(0)
                oth.append([(f"global_load_dwordx4 {oreg(i)}, v{vL16b if (i & 4) else vL16}, s[{sOg}:{sOg+1}] offset:{(i % 4)*1024} sc1", "obl")])
                if i % 8 == 7:
                    oth += [[f"s_add_u32 s{sOg}, s{sOg}, 8192"], [f"s_addc_u32 s{sOg+1}, s{sOg+1}, 0"]]
        wa0, wa1 = o.get("wam0", 1), o.get("wam1", 3)
        if c in (wa0, wa1):
            oth.insert(0, [(f"global_load_dword v{vPFd}, v25, s[{sPWoA}:{sPWoA+1}] offset:{1024*(c == wa1)}", "wopf")])
        wl = o.get("wol2", 6)
        if wl <= c < wl + 8:
            oth.append([(f"global_load_dword v{vPFd}, v0, s[{sPWoA}:{sPWoA+1}] offset:{((c - wl) & 1)*2048}", "wopf")] + (["v_add_u32 v0, 4096, v0"] if (c - wl) & 1 else []))
        wb0 = 11 if o.get("wbtail", 1) else 13
        if c in (wb0, wb0 + 1) and o.get("wbl2", 0):
            oth.append([(f"global_load_dword v{vPFd}, v15, s[{sPWoB}:{sPWoB+1}] offset:{(c - wb0)*2048}", "wopf")])
        if c == 14 and o.get("wbtail", 1): wob += list(range(24, 32))[:1 if o.get('noside', 0) & 1 else 8]
        while wob and (len(kvs) + len(oth) + 3 <= nslots or c == 14):
            i_ = wob.pop(0)
            oth += wob_dma(i_, f"wo{i_//8}")
        if o.get('noside', 0) & 4 and c >= 4: kvs = [g for g in kvs if not isinstance(g[0], tuple)] + [[kvs[1][0]]] if kvs else []
        if o.get('noside', 0) & 8 and c >= 4: kvs = [g for g in kvs if isinstance(g[0], tuple) or "m0" in g[0]]
        side = kvs + oth
        while len(side) > nslots:
            for k in range(len(side) - 1):
                if all(isinstance(x, str) and x.startswith("s_") and "m0" not in x for x in side[k]):
                    side[k+1] = side[k] + side[k+1]; side.pop(k); break
            else:
                raise Exception("slots")
        n = len(side)
        nv = sum(isinstance(x, tuple) for g in side for x in g)
        if n < nslots and nv >= o.get("spread", 1):
            sp = [[] for _ in range(nslots)]
            for k, g in enumerate(side): sp[k*nslots//n] = g
            side = sp
        if c == 0:
            poll_check(a, "L_PKV2", 21, 17, 31, "pKV2", mask=2)
        if c == 1:
            poll_check(a, "L_PKV3", 21, 17, 31, "pKV3", mask=0xffff)
            poll_check(a, "L_PH", 22, 18, 33, "pH")
            a(f"s_sub_u32 s38, s{sHalo}, 4096")
            a(f"s_cmp_eq_u32 s{sSeq}, 0")
            a(f"s_cselect_b32 s38, {OOB}, s38")
            a.emit((f"buffer_load_dwordx4 {vr(HK, 4)}, v{vL16}, {WS}, s38 offen sc1", "hl"))
            a.emit((f"buffer_load_dwordx4 {vr(HK+4, 4)}, v{vL16}, {WS}, s38 offen offset:1024 sc1", "hl"))
            a.emit((f"buffer_load_dwordx4 {vr(HV, 4)}, v{vL16}, {WS}, s38 offen offset:2048 sc1", "hl"))
        if c == 2:
            a(f"s_cmp_lg_u32 s{sPASS}, 0")
            a("s_cbranch_scc1 L_LOC0X")
            a(f"s_cmp_eq_u32 s{sSeq}, 0")
            a("s_cbranch_scc0 L_MASKOK")
            for i in range(8): a(f"v_mov_b32 v{vMc+16+i}, {NEGBIG}")
            a("L_MASKOK:")
            for s in a.ob1: a.emit(s)
            st = local_tile(a, pQB[0], pKB[0], pVB[0], HK, HV, 96, 112, 208, 168, 236, 23, 0, "ob0")
            for x in pko(208): a(x)
            a.emit((st[0][0].format("v[208:211]"), "ob0")); a.emit((st[1][0].format("v[212:215]"), "ob0"))
            a("L_LOC0X:")
            a.stamp("loc0")
        if c == ob_start - 1:
            poll_check(a, "L_POB", 21, 16, 47, "pOB")
        tile(a, 4*c + 3, side)
        tile(a, 4*c + 4, side, end_b=[a.wait(["c1b"]), "s_barrier"] if c == 0 else None)
        tile(a, 4*c + 5, side)
        tile(a, 4*c + 6, side, end_b=[a.wait([f"c{c+2}"], lgkm=True) if c + 2 <= 15 else a.wait(["wo0", "obl"], lgkm=True), "s_barrier"])
        assert not side
        if c in (4, 9): a.stamp(f"c{c}")
        if c == 7:
            for _ in range(o.get("idle_att", 0)): a("s_nop 15")
    assert not wob and not obl, (wob, obl)
    r0 = p4_reads(0) + p4_reads(1)
    tile(a, 63, [r0[0:2], r0[2:4], r0[4:6], r0[6:8], r0[8:10], r0[10:13], r0[13:16]])
    a(f"s_add_u32 s36, s{sOst}, {OA_OFF}")
    a(f"s_add_u32 s37, s{sOst}, {OA_OFF + 65536}")
    a(mf32(ar(aO[1], 16), ar(aV[1], 4), vr(P[1], 4), ar(aO[1], 16)))
    a(smf(1))
    a(mf32(ar(aO[1], 16), ar(aV[1]+4, 4), vr(P[1]+4, 4), ar(aO[1], 16)))
    a.stamp("attend")
    F = L()
    F(f"v_accvgpr_read_b32 v19, a{aL[0]}")
    F(f"v_accvgpr_read_b32 v21, a{aL[0]+1}")
    for i in range(16): F(f"v_accvgpr_read_b32 v{S[0]+i}, a{aO[0]+i}")
    F("v_add_f32 v19, v19, v21")
    F(f"v_accvgpr_read_b32 v20, a{aL[1]}")
    F("v_rcp_f32 v23, v19")
    F(f"v_accvgpr_read_b32 v21, a{aL[1]+1}")
    F("v_add_f32 v20, v20, v21")
    for i in range(16): F(f"v_mul_f32 v{S[0]+i}, v{S[0]+i}, v23")
    F += pko(S[0])
    F("v_rcp_f32 v24, v20")
    F((f"buffer_store_dwordx4 {vr(S[0], 4)}, v{vL16}, {WS}, s36 offen sc1", "oa"))
    F((f"buffer_store_dwordx4 {vr(S[0]+4, 4)}, v{vL16}, {WS}, s36 offen offset:1024 sc1", "oa"))
    for i in range(16): F(f"v_accvgpr_read_b32 v{S[1]+i}, a{aO[1]+i}")
    for i in range(16): F(f"v_mul_f32 v{S[1]+i}, v{S[1]+i}, v24")
    F += pko(S[1])
    F(f"s_mov_b32 s36, {f2u(2.0**64)}")
    F((f"buffer_store_dwordx4 {vr(S[1], 4)}, v{vL16}, {WS}, s37 offen sc1", "oa"))
    F((f"buffer_store_dwordx4 {vr(S[1]+4, 4)}, v{vL16}, {WS}, s37 offen offset:1024 sc1", "oa"))
    F("v_mov_b32 v21, 0")
    for q in range(2):
        for j in range(8): F(f"v_dot2_f32_bf16 v{19+q}, v{S[q]+j}, v21, v{19+q}")
    F("s_nop 2")
    F("v_cmp_nge_f32 s[56:57], s36, v19")
    F("v_cmp_nge_f32 vcc, s36, v20")
    F(f"s_lshl_b32 s37, s{sW}, 2")
    F(f"s_add_u32 s37, s37, {XCH}")
    F("v_mov_b32 v22, s37")
    F("s_nop 1")
    F("s_or_b64 vcc, vcc, s[56:57]")
    if o.get("force_fallback"): F("s_mov_b64 vcc, -1")
    F(f"s_cmp_lg_u64 vcc, 0\ns_cselect_b32 s36, 1, 0\ns_andn2_b32 s36, s36, s{sPASS}")
    F("v_mov_b32 v21, s36")
    F("ds_write_b32 v22, v21")
    F(f"v_mov_b32 v22, {XCH}")
    a.fin = F
    b = Asm()
    b("L_FALLBACK:")
    b(f"s_mov_b32 s{sPASS}, 1")
    b(f"v_mov_b32 v19, {NEGBIG}")
    b(f"v_mov_b32 v20, {NEGBIG}")
    b(f"s_lshl_b32 s38, s{sHP}, 19")
    b(f"s_lshl_b32 s39, s{sHH}, 14")
    b("s_add_u32 s38, s38, s39")
    b("s_mov_b32 s39, 0")
    b("L_FB:")
    b("s_and_b32 s36, s39, 3")
    b("s_lshl_b32 s36, s36, 12")
    b("s_lshr_b32 s37, s39, 2")
    b("s_lshl_b32 s37, s37, 15")
    b("s_add_u32 s36, s36, s37")
    b("s_add_u32 s36, s36, s38")
    b(f"buffer_load_dwordx4 {ar(aK, 4)}, v{vL16}, {WS}, s36 offen sc1")
    b(f"buffer_load_dwordx4 {ar(aK+4, 4)}, v{vL16}, {WS}, s36 offen offset:1024 sc1")
    b("s_waitcnt vmcnt(0)")
    for q in range(2): b(mf32(vr(S[q], 16), ar(aK, 4), vr(QA[q], 4), 0))
    for q in range(2): b(mf32(vr(S[q], 16), ar(aK+4, 4), vr(QA[q]+4, 4), vr(S[q], 16)))
    b("s_nop 11")
    for q in range(2):
        for i in range(0, 16, 2): b(f"v_max3_f32 v{19+q}, v{19+q}, v{S[q]+i}, v{S[q]+i+1}")
    b("s_add_u32 s39, s39, 1")
    b("s_cmp_lt_u32 s39, 64")
    b("s_cbranch_scc1 L_FB")
    neg_max(b)
    for s in sel_init(23, 24): b(s)
    b(f"s_lshl_b32 s36, s{sT}, 15")
    b(f"s_add_u32 s{sKVg}, s{sKVp}, s36")
    b(f"s_addc_u32 s{sKVg+1}, s{sKVp+1}, 0")
    b(f"s_add_u32 s36, s{sOrow}, {OB_OFF}")
    b(f"s_add_u32 s{sOg}, s54, s36")
    b(f"s_addc_u32 s{sOg+1}, s55, 0")
    b("v_add_u32 v0, -16384, v0")
    b("s_barrier")
    for g in range(2):
        for k_, s in enumerate(kv_dma(0, g, "")):
            b(s[0] if isinstance(s, tuple) else s)
            if k_ == 0: b("s_nop 0")
    b("s_waitcnt vmcnt(0)")
    b("s_barrier")
    b("s_branch L_ATT0")
    a.tail.append(b.text())

def fW4(G, nt, n=4, d=0):
    fs = G % 3
    return vr(32 + fs*16 + nt*4 + d, n) if fs < 2 else ar(nt*4 + d, n)
def p4_lds(g):
    return g*32768 if g < 4 else [131072, 0, 32768, 65536][g - 4]
def p4_reads(G):
    out = []
    base = p4_lds(G // 8)
    for nt in range(4):
        off = base % 65536 + (G % 8)*4096
        out.append(f"ds_read_b64_tr_b16 {fW4(G, nt, 2)}, v{vWo_r[nt]} offset:{off}")
        out.append(f"ds_read_b64_tr_b16 {fW4(G, nt, 2, 2)}, v{vWo_r[nt]} offset:{off+1024}")
    return out
def woa_dma(g, i):
    pos = (g - 4)*8 + i
    return [[f"s_add_u32 s39, s{sWooff}, {pos*65536}", "s_and_b32 s39, s39, 0x1fffff", f"s_add_u32 m0, s{sWv}, {p4_lds(g) + i*4096}"],
            [(f"buffer_load_dwordx4 v{vWo_g}, s[{sWoA}:{sWoA+3}], s39 offen lds", f"wo{g}")]]
def oa_load(i):
    out = [(f"global_load_dwordx4 {oreg(i)}, v{vL16b if (i & 4) else vL16}, s[{sOg}:{sOg+1}] offset:{(i % 4)*1024} sc1", f"oa{i}")]
    return out
def oa_next():
    return [f"s_add_u32 s{sOoff}, s{sOoff}, 8192", f"s_and_b32 s{sOoff}, s{sOoff}, 0xffff",
            f"s_add_u32 s{sOg}, s{sKVg}, s{sOoff}\ns_addc_u32 s{sOg+1}, s{sKVg+1}, 0"]

def phase4(a):
    o = a.opts
    flag_at = o.get("oaflag_gap", 40)
    poll_at = o.get("oapoll_gap", 84)
    chk_at = o.get("oachk_gap", 96)
    side = {}
    def put(k, l): side.setdefault(k, []).extend(l)
    F = list(a.fin)
    if o.get("finfirst", 0):
        n_ = max(i for i, x in enumerate(F) if isinstance(x, tuple)) + 1
        for x in F[:n_]: a.emit(x)
        F = F[n_:]
    k = 0
    while F:
        n_ = 2 if o.get("finfirst", 0) else (6 if len(F) > 5*(23 - k) - 5 else 5)
        put(k, F[:n_]); F = F[n_:]; k += 1
    assert k <= 23, k
    put(37, [f"s_add_u32 s38, s{sOrow}, {OA_OFF}", f"s_add_u32 s{sKVg}, s54, s38\ns_addc_u32 s{sKVg+1}, s55, 0"])
    put(38, [f"s_add_u32 s{sOg}, s{sKVg}, s{sOoff}\ns_addc_u32 s{sOg+1}, s{sKVg+1}, 0"])
    pre = [f"s_lshl_b32 s38, s{sSeq}, 7",
           f"s_lshl_b32 s47, s{sHead}, 2", "s_add_u32 s38, s38, s47", f"s_add_u32 s35, s38, {F_OA}", f"s_add_u32 s47, s29, {F_OA}",
           f"s_lshl_b32 s36, s{sT4}, 9", f"s_lshl_b32 s37, s{sW}, 7", "s_add_u32 s36, s36, s37", f"s_add_u32 s36, s36, {G_OFF}",
           f"v_and_b32 v24, 60, v16",
           (f"buffer_load_dword v{vG2[0]}, v24, {WS}, s36 offen sc1", "gl"), (f"buffer_load_dword v{vG2[1]}, v24, {WS}, s36 offen offset:64 sc1", "gl")]
    put(24, ["ds_read_b128 v[20:23], v22"])
    for i, x in enumerate(pre): put(25 + i//2, [x])
    put(32, ["v_or_b32 v20, v20, v21", "v_or3_b32 v20, v20, v22, v23"])
    put(33, ["v_readfirstlane_b32 s38, v20"])
    put(35, ["s_cmp_lg_u32 s38, 0\ns_cbranch_scc1 L_FALLBACK"])
    assert flag_at > 35
    put(flag_at, [a.wait(["oa"])]); put(flag_at + 1, flag_store(35, 20, "fOA"))
    put(poll_at, [(f"buffer_load_dword v21, v16, {WS}, s47 offen sc1", "pOA")])
    put(130, [f"v_sub_f32 v{vOM[0]}, 1.0, v{vG2[0]}", f"v_sub_f32 v{vOM[1]}, 1.0, v{vG2[1]}"])
    put(131, [f"v_and_b32 v19, 15, v{vLANE}", f"v_lshrrev_b32 v20, 4, v{vLANE}"])
    put(132, ["v_lshlrev_b32 v20, 4, v20", "v_lshl_add_u32 v19, v19, 11, v20"])
    if o.get("ldsout", 1):
        side[131] = []; side[132] = []
        put(200, [f"s_mul_i32 s38, s{sW}, 4608", f"v_and_b32 v20, 15, v{vLANE}"]); put(201, ["s_add_u32 s38, s38, 131072", "v_mul_u32_u24 v20, 144, v20"])
        put(202, [f"v_lshrrev_b32 v21, 4, v{vLANE}", "v_lshl_add_u32 v20, v21, 3, v20"]); put(203, ["v_add_u32 v20, s38, v20", f"v_lshrrev_b32 v22, 3, v{vLANE}"])
        put(204, [f"v_and_b32 v19, 7, v{vLANE}", "v_lshlrev_b32 v19, 4, v19"]); put(205, ["v_mul_u32_u24 v21, 144, v22", "v_add3_u32 v21, v21, v19, s38"])
        put(206, ["v_lshl_add_u32 v19, v22, 11, v19", "v_add_u32 v22, 16384, v19"])
    elif o.get("r128", 0):
        put(133, [f"v_and_b32 v20, 8, v{vLANE}", f"v_mul_u32_u24 v20, {2048 - 8}, v20"])
        put(152, ["v_sub_u32 v19, v19, v20", "v_add_u32 v20, 16384, v19"])
    for i in range(32): put(134 + i//2, [f"v_mul_f32 v{ACC4[0][i//16] + i%16}, v{ACC4[0][i//16] + i%16}, v{vOM[i//16]}"])
    put(248, [f"s_lshl_b32 s36, s{sT4}, 18", f"s_lshl_b32 s37, s{sW}, 16"]); put(249, ["s_add_u32 s36, s36, s37", f"s_lshl_b32 s37, s{sC4}, 7"])
    put(250, ["s_add_u32 s36, s36, s37"]); put(251, ["s_add_u32 s37, s36, 32768"])
    a("s_waitcnt lgkmcnt(0)")
    lat = o.get("p4lat", 20)
    jobs = [] if o.get("wbtail", 1) else [[26, 32*2 + 23 - lat, "wb", i] for i in range(24, 32)]
    for g in range(4, 8):
        e = {4: 0, 5: 26, 6: 57, 7: 89}[g]
        jobs += [[{4: 57, 5: 57, 6: 89, 7: 121}[g] if i == 7 else e, 32*(g - 1) + 23 - lat, "wa", (g, i)] for i in range(8)]
    jobs += [[max(chk_at + 1, 2*i + 2), 128 + 4*(i//2) - lat, "oa", i] for i in range(64)]
    gap = o.get("p4gap", 2.0)
    t = float(o.get('wb_at', 19))
    quiet = range(poll_at - o.get("p4quiet", 4), poll_at + 1)
    while jobs:
        k = int(t)
        av = [j for j in jobs if j[0] <= k]
        if not av or k in quiet:
            t = k + 1; continue
        j = min(av, key=lambda j: j[1])
        jobs.remove(j)
        if j[2] == "wb":
            d = wob_dma(j[3], "wo3"); put(k - 1, d[0] + d[1]); put(k, d[2])
        elif j[2] == "wa":
            d = woa_dma(*j[3]); put(k - 1, d[0]); put(k, d[1])
        else:
            put(k, oa_load(j[3]))
            if j[3] % 8 == 7 and j[3] < 63: put(k + 1, oa_next())
        if k > j[1] + 8: print("p4 late", j, k)
        t += gap
    ds = []
    def lg(tags):
        k_ = max([i for i, t_ in enumerate(ds) if t_ in tags], default=-1)
        return min(len(ds) - 1 - k_, 15)
    for G in range(64):
        br = G // 32
        rd = p4_reads(G + 2) if G + 2 < 64 else []
        mv = []
        if G + 3 < 64:
            dlt = (p4_lds((G + 3)//8)//65536 - p4_lds((G + 2)//8)//65536)*65536
            if dlt: mv = [f"v_add_u32 v{vWo_r[nt]}, {dlt}, v{vWo_r[nt]}" for nt in range(4)]
        order = [(nt, mt) for nt in range(4) for mt in range(2)]
        if G == 62: break
        for j in range(8):
            idx = 4*G + j//2
            nt, mt = order[j]
            d = vr(ACC4[br][mt] + nt*4, 4)
            a(mf16(d, fW4(G, nt), oreg((G % 32)*2 + mt), 0 if G % 32 == 0 else d))
            sd = side.get(idx, [])
            if j % 2 == 0:
                for s in [x for x in sd if isinstance(x, str) and x.startswith("ds_read")]:
                    a(s); ds.append("xr")
                sd = [x for x in sd if not (isinstance(x, str) and x.startswith("ds_read"))]
                now, side[idx] = sd[:len(sd)//2], sd[len(sd)//2:]
            else:
                now = side.pop(idx, [])
            if rd:
                a(rd[j]); ds.append(G + 2)
                if mv and j % 2 == 1: a(mv[j//2])
            for s in now:
                a.emit(s)
                if isinstance(s, str) and s.startswith("ds_write"): ds.append("xw")
            if j % 2 == 1:
                if idx == flag_at + 1: a.stamp("fOA")
                if idx == chk_at:
                    poll_check(a, "L_POA", 21, 16, 47, "pOA")
                    a.stamp("pOA")
        if G == 63: break
        w = ""
        need = []
        if G == 61: continue
        if G + 1 >= 32: need.append(f"oa{((G + 1) % 32)*2 + 1}")
        bar = G % 8 == 5 and G // 8 < 7
        if bar and f"wo{G//8 + 1}" in a.vm: need.append(f"wo{G//8 + 1}")
        if need: w += f" vmcnt({a.vmn(need)})"
        if G + 1 >= 2: w += f" lgkmcnt({lg([G + 1, 'xw'])})"
        if w: a("s_waitcnt" + w)
        if bar: a("s_barrier")
        if G == 31: a.stamp("p4B")
    def epi(mt):
        B_, A_ = ACC4[0][mt], ACC4[1][mt]
        fl = ['', 'sc1', 'nt', 'sc0 sc1', 'sc1 nt'][o.get('outflag', 1)]
        l = [f"v_fma_f32 v{B_+i}, v{A_+i}, v{vG2[mt]}, v{B_+i}" for i in range(16)] + packl(B_)
        if o.get("ldsout", 1):
            return l + [f"ds_write_b64 v20, {vr(B_+2*nt, 2)} offset:{mt*16*144 + 32*nt}" for nt in range(4)]
        l += ["s_nop 0"]
        l += [f"v_permlane32_swap_b32 v{B_+x}, v{B_+y}" for x, y in ((0, 2), (1, 3), (4, 6), (5, 7))]
        l += [f"v_permlane16_swap_b32 v{B_+x}, v{B_+y}" for x, y in ((0, 2), (1, 3), (4, 6), (5, 7))]
        if o.get("r128", 0):
            l += [f"v_mov_b32 v{B_+8+i}, v{B_+i}" for i in range(4)]
            l += [f"v_mov_b32_dpp v{B_+i}, v{B_+4+i} row_ror:8 row_mask:0xf bank_mask:0xc" for i in range(4)]
            l += [f"v_mov_b32_dpp v{B_+4+i}, v{B_+8+i} row_ror:8 row_mask:0xf bank_mask:0x3" for i in range(4)]
            l += [(f"buffer_store_dwordx4 {vr(B_+4*k, 4)}, v{19+k}, s[{sOutD}:{sOutD+3}], s{36+mt} offen {fl}", "out") for k in range(2)]
            return l
        l += [(f"buffer_store_dwordx4 {vr(B_+4*k, 4)}, v19, s[{sOutD}:{sOutD+3}], s{36+mt} offen offset:{64*k} {fl}", "out") for k in range(2)]
        return l
    rest = [x for k_ in sorted(side) for x in side[k_]]
    a(f"s_waitcnt vmcnt({a.vmn(['oa63'])}) lgkmcnt(0)")
    for G in (62, 63):
        for nt in range(4):
            d = vr(ACC4[1][0] + nt*4, 4)
            a(mf16(d, fW4(G, nt), oreg((G % 32)*2), d))
            if rest: a.emit(rest.pop(0))
    assert not rest
    e0 = epi(0)
    for k_, (G, nt) in enumerate([(G, nt) for G in (62, 63) for nt in range(4)]):
        d = vr(ACC4[1][1] + nt*4, 4)
        a(mf16(d, fW4(G, nt), oreg((G % 32)*2 + 1), d))
        if k_ >= 2:
            a(e0.pop(0)); a(e0.pop(0))
        else:
            a("s_nop 1")
    a.stamp("p4A")
    if not o.get("ldsout", 1):
        for x in e0 + epi(1): a.emit(x)
        return
    for x in e0: a.emit(x)
    e1_ = epi(1)
    fl = ['', 'sc1', 'nt', 'sc0 sc1', 'sc1 nt'][o.get('outflag', 1)]
    T = ACC4[1][0]
    def rds(mt): return [f"ds_read_b128 {vr(T + 8*mt + 4*k, 4)}, v21 offset:{(16*mt + 8*k)*144}" for k in range(2)]
    def sts(mt): return [(f"buffer_store_dwordx4 {vr(T + 8*mt + 4*k, 4)}, v{19 if k == 0 else 22}, s[{sOutD}:{sOutD+3}], s{36+mt} offen {fl}", "out") for k in range(2)]
    for x in rds(0): a(x)
    for x in e1_[:24]: a(x)
    a("s_waitcnt lgkmcnt(0)")
    for x in e1_[24:] + rds(1): a(x)
    for x in sts(0): a.emit(x)
    a("s_waitcnt lgkmcnt(0)")
    for x in sts(1): a.emit(x)

def gen(opts):
    a = G(opts); a.tail = []
    setup(a); gemm1(a); e1(a); attention(a); phase4(a)
    if opts.get("diag") is not None:
        a.stamp("end")
        a("s_nop 1")
        a(f"v_readlane_b32 s36, v{vSTAMP}, {32 + opts['diag']}")
        a("s_nop 3")
        a("s_add_u32 s36, s36, 10000")
        if opts.get("diagwg") is not None:
            a(f"s_cmp_lg_u32 s2, {opts['diagwg']}")
            a("s_cbranch_scc1 L_END")
        a("L_DIAG:")
        a("s_memrealtime s[38:39]")
        a("s_waitcnt lgkmcnt(0)")
        a("s_sub_u32 s38, s38, s36")
        a("s_cmp_lt_i32 s38, 0")
        a("s_cbranch_scc1 L_DIAG")
    elif opts.get("dbgstamp"):
        a.stamp("end")
        sel = ["karg", "first", "g7", "g15", "g23", "g31", "loc1", "pKV", "c1", "c9", "attend", "pOA", "p4B", "p4A", "end"]
        a(f"s_cmp_lg_u32 s2, {opts['dbgstamp']-1}")
        a("s_cbranch_scc1 L_DBGX")
        a(f"s_cmp_lg_u32 s{sW}, 0")
        a("s_cbranch_scc1 L_DBGX")
        a(f"v_readlane_b32 s36, v{vSTAMP}, 32")
        for i, nm in enumerate(sel):
            a(f"v_readlane_b32 s37, v{vSTAMP}, {32 + a.names.index(nm)}")
            a("s_nop 3")
            a("s_sub_u32 s37, s37, s36")
            a("v_mov_b32 v2, s37")
            a("v_mov_b32 v3, 0")
            a(f"global_store_dword v3, v2, s[{sPDbg}:{sPDbg+1}] offset:{4*(i+1)}")
        a("L_DBGX:")
    elif opts.get("stamp"):
        a.stamp("end")
        a("s_lshl_b32 s36, s2, 2")
        a(f"s_add_u32 s36, s36, s{sW}")
        a("s_lshl_b32 s36, s36, 8")
        a(f"s_add_u32 s36, s36, {STAMP_OFF}")
        a(f"v_lshlrev_b32 v2, 2, v{vLANE}")
        a(f"buffer_store_dword v{vSTAMP}, v2, {WS}, s36 offen")
    a("s_endpgm")
    for t in a.tail: a(t)
    head = f"""; out = g*(MHA(x) Wo_A) + (1-g)*(dilated-window attention(x) Wo_B), one fused kernel, 256 co-resident workgroups (1 per CU).
; kernarg: A_x 0, A_wqkv 8, A_wo 16, B_x 24 (unused by the reference), B_wqkv 32, B_wo 40, gate_w 48, out 56, debug 64, ws 72
; workgroup (head pair hp, 128-row tile t), wave (row half, head):
;   1. q,k,v of both branches (LDS-DMA rings, 16x16x32 MFMA); K_A/V_A finish first and are published to ws (sc1) with flags
;   2. window attention (true max), full attention over all 16 K/V chunks: exp2(s - m), m = row max of the first key tile;
;      a run-time check (row sum <= 2^64, finite outputs) reruns the workgroup with the true row max otherwise
; hand-offs: data (sc1) -> s_waitcnt -> flag word = launch nonce (published through d_debug[0]); consumers poll, then load sc1
; @launch grid=(256,1,1) block=(256,1,1) lds=163840
.amdgcn_target "amdgcn-amd-amdhsa--gfx950"
.text
.globl {KNAME}
.p2align 8
.type {KNAME},@function
{KNAME}:
"""
    tail = f"""L_END:
    s_endpgm
.section .rodata,"a"
.p2align 6
.amdhsa_kernel {KNAME}
  .amdhsa_next_free_vgpr 512
  .amdhsa_next_free_sgpr 102
  .amdhsa_accum_offset 256
  .amdhsa_group_segment_fixed_size 0
  .amdhsa_kernarg_size 80
  .amdhsa_user_sgpr_count 2
  .amdhsa_user_sgpr_kernarg_segment_ptr 1
  .amdhsa_system_sgpr_workgroup_id_x 1
.end_amdhsa_kernel
"""
    gen.names = a.names
    return head + a.text() + tail

if __name__ == "__main__":
    import hazard
    opts = {}
    for kv in sys.argv[2:]:
        k, v = kv.split("="); opts[k] = int(v)
    t = gen(opts)
    open(sys.argv[1], "w").write(t)
    print(len(hazard.check(t)), "hazards", gen.names)
```

```python
import sys, struct, math
from asmlib import *

KNAME = "gated_mix__softmax_full_mha__sliding_local_dilated__prompt_kernel"
def f2u(x): return struct.unpack("<I", struct.pack("<f", x))[0]
KV_OFF   = 0
OA_OFF   = 8 << 20
OB_OFF   = 12 << 20
HALO_OFF = 16 << 20
G_OFF    = 20 << 20
FLAG_OFF = 21 << 20
F_KV, F_H, F_OB, F_OA = FLAG_OFF, FLAG_OFF + 4096, FLAG_OFF + 8192, FLAG_OFF + 12288
STAMP_OFF = 0x8000000
OOB = 0x80000000
CSCALE = f2u(math.log2(math.e) / math.sqrt(32.0))
NEGBIG = f2u(-1e30)
X_SLOT = 16384; W_BASE = 49152; W_SLOT = 24576
KV_LDS = [98304, 131072]
XCH = 163840 - 16
sX, sWA, sWB, sWS = 4, 8, 12, 16
sW, sHP, sT, sRH, sHH = 20, 21, 22, 23, 24
sWoff, sXoff = 25, 26
sXw, sWv = 30, 34
sPF, sPFstr = 44, 46
sNONCE, sCS = 60, 61
sSTAMPI = 68
sPWoA, sPWoB, sPG, sPOut, sPDbg = 70, 72, 74, 76, 78
sKVsrc, sKVbase, sKVt, sKVdst = 80, 81, 82, 27
sPASS, sOst, sSpin = 83, 86, 87
sT4, sC4, sOoff, sWooff, sObase = 88, 89, 90, 91, 92
sHalo, sSeq, sO, sOrow, sHead = 93, 94, 95, 96, 97
sWoA, sWoB, sOutD = 4, 8, 12
sCode = 40
pX, pWA, pWB = 48, 50, 52
vLANE = 1
vXr = [2, 3]; vWr = [[4, 5], [10, 11]]; vWg = [12, 13, 14]; vXg = [15, 16, 17, 18]
vT = [19, 20, 21, 22, 23, 24, 25, 26]
vPF, vPFd, vL16, vSTAMP, vF0 = 27, 28, 29, 30, 31
vMc = 32
ACC0 = 64
def acc(blk, rt): return ACC0 + (blk*2 + rt)*16
QA = [64, 80]; KA = [96, 112]; VA = [128, 144]; QB = [160, 176]; KB = [192, 208]; VB = [224, 240]
NM = [128, 144]; S = [176, 240]; P = [72, 88]
vKV = [6, 7]
vWo_g = 2; vWo_r = [3, 4, 10, 11]; vG2 = [12, 13]; vOM = [14, 8]
vGate, vGrow = 14, 8
bQ = [160, 164, 168, 172]; bK = [208, 192, 196, 200, 204]; bV = [212, 224]
vWo_gA = 15
def fX(s, rt): return s*32 + rt*4
def fW(s, blk): return s*32 + 8 + blk*4
aK, aV = 0, [8, 16]
aO = [32, 48]; aL = [64, 68]; aONE = 112
aGATE = 80
aX = [0, 16]; aW = [32, 56]; vKS, vKL = 56, 57
aSEL = 72; vIDX = 9
OV = list(range(96, 128, 4)) + list(range(160, 176, 4)) + list(range(192, 240, 4))
def oreg(i): return ar(76 + 4*i, 4) if i < 45 else vr(OV[i - 45], 4)
ACC4 = [[128, 144], [64, 80]]
pKA = [96, 112]; pVA = [104, 120]; pQB = [160, 168]; pKB = [192, 208]; pVB = [224, 216]

def mf32(d, A, B, C): return f"v_mfma_f32_32x32x16_bf16 {d}, {A}, {B}, {C}"
def mf16(d, A, B, C): return f"v_mfma_f32_16x16x32_bf16 {d}, {A}, {B}, {C}"
WS = f"s[{sWS}:{sWS+3}]"

class G(Asm):
    def __init__(self, opts):
        super().__init__()
        self.opts = opts
        self.vm = []
        self.nstamp = 0
        self.names = []
    def emit(self, x):
        if callable(x): x = x()
        if x is None: return
        if isinstance(x, tuple):
            self(x[0]); self.vm.append(x[1])
        else:
            assert not (x.lstrip().startswith(("buffer_", "global_"))), x
            self(x)
    def vmn(self, tags):
        idx = [i for i, t in enumerate(self.vm) if t in tags]
        assert idx, tags
        n = len(self.vm) - 1 - max(idx)
        return min(n, 63)
    def wait(self, tags, lgkm=False):
        return lambda: f"s_waitcnt vmcnt({self.vmn(tags)})" + (" lgkmcnt(0)" if lgkm else "")
    def stamp(self, name):
        j = self.opts.get("jitter")
        if j and name in ("first", "gP", "g31", "loc1", "fKV", "att0", "t01", "c1", "loc0", "c4", "c9", "attend", "fOA", "p4B"):
            self.nj = getattr(self, "nj", 0) + 1
            self(f"s_cselect_b32 s65, 1, 0\ns_lshl2_add_u32 s64, s2, s{sW}\ns_mul_i32 s64, s64, {(self.nj*40503 + j*9973) | 1}\ns_lshr_b32 s64, s64, 7\ns_and_b32 s64, s64, {[7, 3, 15][j % 3]}")
            self(f"s_cmp_lg_u32 s64, 0\ns_cbranch_scc1 L_J{self.nj}\ns_sleep {40 + 25*(self.nj % 4)}\ns_sleep 60\nL_J{self.nj}:\ns_cmp_lg_u32 s65, 0")
        if not self.opts.get("stamp"): return
        if self.opts["stamp"] == 2 and name not in ("start", "g31", "c1", "attend", "end", "gP", "c4"): return
        self.names.append(name)
        a = self
        a("s_memtime s[66:67]")
        a("s_memrealtime s[64:65]")
        a("s_waitcnt lgkmcnt(0)")
        a(f"v_writelane_b32 v{vSTAMP}, s66, {self.nstamp}")
        a(f"v_writelane_b32 v{vSTAMP}, s64, {self.nstamp + 32}")
        self.nstamp += 1
        assert self.nstamp <= 32
    def inter(self, mains, sides):
        for i, m in enumerate(mains):
            if m is not None: self.emit(m)
            for s in sides.get(i, []): self.emit(s)

def srd(a, s, lo, hi, nbytes):
    a(f"s_mov_b32 s{s}, s{lo}")
    a(f"s_and_b32 s{s+1}, s{hi}, 0xffff")
    a(f"s_mov_b32 s{s+2}, {nbytes}")
    a(f"s_mov_b32 s{s+3}, 0x20000")

def pf_round(a):
    return [(f"global_load_dword v{vPFd}, v{vPF}, s[{sPF}:{sPF+1}]", "pf"),
            f"v_add_u32 v{vPF}, s{sPFstr}, v{vPF}"]

class P1:
    def __init__(self, a):
        self.a = a; self.wnext = [0]*6; self.xnext = [0]*4
    def dma(self, piece):
        kind, j, p = piece
        if kind == "W":
            assert self.wnext[p] == j and (p < 3 or self.wnext[p - 3] == j + 1) and (p >= 3 or self.wnext[p + 3] == j)
            self.wnext[p] += 1
            s = pWA if p < 3 else pWB
            return ([f"s_add_u32 m0, s{sWv}, {W_BASE + (j % 4)*W_SLOT + p*4096}"],
                    (f"global_load_lds_dwordx4 v{vWg[p % 3]}, s[{s}:{s+1}] {['', 'sc1', 'sc0', 'sc0 sc1'][self.a.opts.get('dmafl', 0)]}", f"W{j}"),
                    [f"v_add_u32 v{vWg[p % 3]}, 196608, v{vWg[p % 3]}"] if p >= 3 else [])
        assert self.xnext[p] == j
        self.xnext[p] += 1
        return ([f"s_add_u32 m0, s{sXw}, {(j % 3)*X_SLOT + p*1024}"],
                (f"global_load_lds_dwordx4 v{vXg[p]}, s[{pX}:{pX+1}] {['', 'sc1', 'sc0', 'sc0 sc1'][self.a.opts.get('dmafl', 0)]}", f"X{j}"),
                [f"v_add_u32 v{vXg[p]}, 128, v{vXg[p]}"])

def x_reads(xs, u):
    return [f"ds_read_b128 {ar(aX[xs] + mt*4, 4)}, v{vXr[u & 1]} offset:{((u >> 1) % 3)*X_SLOT + mt*2048}" for mt in range(4)]
def w_reads(ws_, u, blks):
    out = []
    sl = u % 4
    for i, blk in enumerate(blks):
        for nt in range(2):
            off = (sl % 2)*W_SLOT + blk*4096
            r = aW[ws_] + (i*2 + nt)*4
            out.append(f"ds_read_b64_tr_b16 {ar(r, 2)}, v{vWr[sl//2][nt]} offset:{off}")
            out.append(f"ds_read_b64_tr_b16 {ar(r + 2, 2)}, v{vWr[sl//2][nt]} offset:{off+512}")
    return out
def g1_mfmas(xs, ws_, blks, mts=(0, 1, 2, 3), first=False):
    out = {}
    for i, blk in enumerate(blks):
        for nt in range(2):
            for mt in mts:
                w, x = ar(aW[ws_] + (i*2 + nt)*4, 4), ar(aX[xs] + mt*4, 4)
                t_ = ((mt & 1)*2 + nt) if blk in (2, 3, 4) else (nt*2 + (mt & 1))
                d = vr(acc(blk, mt >> 1) + t_*4, 4)
                out[(i, nt, mt)] = mf16(d, x, w, 0 if first else d) if blk % 3 == 2 else mf16(d, w, x, 0 if first else d)
    return out

def setup(a):
    o = a.opts
    a("L_START:")
    a("s_cmp_ge_u32 s2, 256")
    a("s_cbranch_scc1 L_END")
    if o.get("xorid"): a(f"s_xor_b32 s2, s2, {o['xorid']}")
    if o.get("mulid"): a(f"s_mul_i32 s2, s2, {o['mulid']}\ns_and_b32 s2, s2, 255")
    a.stamp("start")
    a("s_load_dwordx4 s[48:51], s[0:1], 0")
    a("s_load_dwordx2 s[52:53], s[0:1], 32")
    a("s_load_dwordx2 s[54:55], s[0:1], 72")
    a(f"s_load_dwordx2 s[{sPWoA}:{sPWoA+1}], s[0:1], 16")
    a(f"s_load_dwordx4 s[{sPWoB}:{sPWoB+3}], s[0:1], 40")
    a(f"s_load_dwordx4 s[{sPOut}:{sPOut+3}], s[0:1], 56")
    if o.get("cpf0", 1):
        n = o.get('codelines', 20)
        a("s_getpc_b64 s[56:57]")
        a("L_PC0:")
        a("s_lshr_b32 s35, s2, 3")
        a(f"s_mul_i32 s35, s35, {n}")
        a(f"v_min_u32 v2, {n-1}, v0")
        a("v_add_u32 v2, s35, v2")
        a("v_lshlrev_b32 v2, 7, v2")
        a("v_min_u32 v2, L_END - L_PC0, v2")
        a.emit((f"global_load_dword v{vPFd}, v2, s[56:57]", "cpf"))
    a(f"v_lshrrev_b32 v{vT[0]}, 6, v0")
    a(f"v_and_b32 v{vLANE}, 63, v0")
    a("s_and_b32 s37, s2, 3")
    a(f"v_readfirstlane_b32 s{sW}, v{vT[0]}")
    a("s_bfe_u32 s39, s2, 0x10002")
    a("s_lshr_b32 s35, s2, 3")
    a("s_and_b32 s38, s35, 3")
    a(f"s_lshl2_add_u32 s{sHP}, s37, s38")
    a("s_lshr_b32 s38, s35, 2")
    a(f"s_lshl3_add_u32 s{sT}, s39, s38")
    a(f"s_and_b32 s{sRH}, s{sW}, 1")
    r, c, t0, t1 = vT[0], vT[1], vT[2], vT[3]
    a("s_lshl_b32 s38, s37, 5")
    a("s_add_u32 s38, s38, s35")
    a("s_lshl_b32 s38, s38, 14")
    a("s_lshl_b32 s47, s39, 21")
    a("s_add_u32 s38, s38, s47")
    a("s_lshl_b32 s39, s39, 5")
    a("s_add_u32 s39, s39, s35")
    a("s_mul_i32 s39, s39, 6144")
    a("s_lshl_b32 s47, s37, 9")
    a("s_add_u32 s39, s39, s47")
    a(f"s_mov_b32 s{sPFstr}, {64*6144}")
    a(f"s_cmp_eq_u32 s{sW}, 0")
    a("s_cselect_b32 s39, s38, s39")
    a(f"s_cselect_b32 s{sPFstr}, 128, s{sPFstr}")
    a("s_cselect_b32 s38, 7, 11")
    a("s_cselect_b32 s47, 0, 2")
    a("s_cselect_b32 s36, 0, 3")
    a(f"s_cmp_eq_u32 s{sW}, 3")
    a(f"s_cselect_b32 s{sPFstr}, 0, s{sPFstr}")
    a("s_cselect_b32 s38, 0, s38")
    a(f"v_min_u32 v{t0}, s38, v{vLANE}")
    a(f"v_and_b32 v{t1}, s36, v{t0}")
    a(f"v_lshrrev_b32 v{t0}, s47, v{t0}")
    a(f"v_lshlrev_b32 v{t1}, 7, v{t1}")
    a(f"v_lshl_add_u32 v{t0}, v{t0}, 11, v{t1}")
    a(f"v_add_u32 v{vPF}, s39, v{t0}")
    a(f"v_lshrrev_b32 v{r}, 3, v{vLANE}")
    a(f"v_and_b32 v{c}, 7, v{vLANE}")
    a(f"v_lshrrev_b32 v{t0}, 1, v{r}")
    a(f"v_xor_b32 v{t0}, v{t0}, v{c}")
    a(f"v_lshlrev_b32 v{t1}, 11, v{r}")
    a(f"v_lshl_add_u32 v{t0}, v{t0}, 4, v{t1}")
    a(f"s_lshl2_add_u32 s36, s{sT}, s{sW}")
    a("s_lshl_b32 s36, s36, 16")
    a(f"v_add_u32 v{vXg[0]}, s36, v{t0}")
    a(f"v_xor_b32 v{vXg[1]}, 64, v{vXg[0]}")
    a(f"v_add_u32 v{vXg[1]}, {8*2048}, v{vXg[1]}")
    a(f"v_add_u32 v{vXg[2]}, {16*2048}, v{vXg[0]}")
    a(f"v_add_u32 v{vXg[3]}, {16*2048}, v{vXg[1]}")
    a(f"s_lshl_b32 s{sXw}, s{sW}, 12")
    a("s_waitcnt lgkmcnt(0)")
    a.stamp("karg")
    a(f"s_cmp_eq_u32 s{sW}, 0")
    a(f"s_cselect_b64 s[{sPF}:{sPF+1}], s[{pX}:{pX+1}], s[{pWA}:{pWA+1}]")
    a(f"s_cmp_eq_u32 s{sW}, 2")
    a(f"s_cselect_b64 s[{sPF}:{sPF+1}], s[{pWB}:{pWB+1}], s[{sPF}:{sPF+1}]")
    for i in range(o.get("pf0", 2)):
        for s in pf_round(a): a.emit(s)
    a.wsetup = [f"v_and_b32 v{t0}, 2, v{r}", f"s_lshl_b32 s36, s{sRH}, 2", f"v_xor_b32 v{t0}, v{t0}, v{c}", f"v_xor_b32 v{t0}, s36, v{t0}",
                f"v_mul_u32_u24 v{t1}, 6144, v{r}", f"v_lshl_add_u32 v{t0}, v{t0}, 4, v{t1}", f"s_mul_i32 s36, s{sW}, {8*6144}",
                f"s_lshl_b32 s37, s{sHP}, 7", "s_add_u32 s36, s36, s37", f"v_add_u32 v{vWg[0]}, s36, v{t0}",
                f"v_add_u32 v{vWg[1]}, 2048, v{vWg[0]}", f"v_add_u32 v{vWg[2]}, 4096, v{vWg[0]}", f"s_lshl_b32 s{sWv}, s{sW}, 10",
                f"s_lshr_b32 s{sHH}, s{sW}, 1"]

def fillers_prologue(a):
    L = []
    f = L.append
    f("s_mov_b32 s16, s54"); f("s_and_b32 s17, s55, 0xffff"); f("s_mov_b32 s18, 0x10000000"); f("s_mov_b32 s19, 0x20000")
    f(f"s_mov_b32 s{sCode}, s56"); f(f"s_and_b32 s{sCode+1}, s57, 0xffff"); f(f"s_mov_b32 s{sCode+2}, L_END - L_PC0"); f(f"s_mov_b32 s{sCode+3}, 0x20000")
    f(f"s_mov_b32 s{sX}, s{pX}"); f(f"s_and_b32 s{sX+1}, s{pX+1}, 0xffff"); f(f"s_mov_b32 s{sX+2}, {2048*1024*2}"); f(f"s_mov_b32 s{sX+3}, 0x20000")
    n = a.opts.get('codelines', 20)
    f(f"s_mul_i32 s47, s35, {n}"); f(f"v_min_u32 v{vT[7]}, {n-1}, v{vLANE}"); f(f"v_add_u32 v{vT[7]}, s47, v{vT[7]}"); f(f"v_lshlrev_b32 v{vT[7]}, 7, v{vT[7]}")
    m, g_, t0, t1, row = vT[0], vT[1], vT[2], vT[3], vT[4]
    f(f"v_and_b32 v{m}, 15, v{vLANE}")
    f(f"v_lshrrev_b32 v{g_}, 4, v{vLANE}")
    f(f"v_lshrrev_b32 v{t0}, 1, v{m}")
    f(f"v_xor_b32 v{t0}, v{t0}, v{g_}")
    f(f"v_lshlrev_b32 v{t0}, 4, v{t0}")
    f(f"v_lshl_add_u32 v{t0}, v{m}, 7, v{t0}")
    f(f"s_lshl_b32 s36, s{sRH}, 13")
    f(f"v_add_u32 v{vXr[0]}, s36, v{t0}")
    f(f"v_xor_b32 v{vXr[1]}, 64, v{vXr[0]}")
    f(f"v_lshrrev_b32 v{t0}, 2, v{m}")
    f(f"v_lshl_add_u32 v{row}, v{g_}, 3, v{t0}")
    f(f"v_lshrrev_b32 v{t0}, 3, v{m}")
    f(f"v_and_b32 v{t1}, 1, v{g_}")
    f(f"v_lshl_or_b32 v{t0}, v{t1}, 1, v{t0}")
    f(f"s_lshl_b32 s36, s{sHH}, 1")
    f(f"v_xor_b32 v{t0}, s36, v{t0}")
    f(f"v_lshlrev_b32 v{t0}, 5, v{t0}")
    f(f"v_lshl_add_u32 v{t0}, v{row}, 7, v{t0}")
    f(f"v_and_b32 v{t1}, 3, v{m}")
    f(f"v_lshl_add_u32 v{t0}, v{t1}, 3, v{t0}")
    f(f"v_add_u32 v{vWr[0][0]}, {W_BASE}, v{t0}")
    f(f"v_xor_b32 v{vWr[0][1]}, 32, v{vWr[0][0]}")
    f(f"v_add_u32 v{vWr[1][0]}, {2*W_SLOT}, v{vWr[0][0]}")
    f(f"v_add_u32 v{vWr[1][1]}, {2*W_SLOT}, v{vWr[0][1]}")
    if a.opts.get("zinit"):
        for r in range(ACC0, 256):
            f(f"v_mov_b32 v{r}, 0")
    return L

def fillers_late(a):
    L = []
    f = L.append
    q, b, t = vT[0], vT[1], vT[2]
    f(f"v_lshlrev_b32 v{vL16}, 4, v{vLANE}")
    f(f"v_and_b32 v{q}, 15, v{vLANE}")
    f(f"v_add_u32 v{q}, 2, v{q}")
    f(f"v_mov_b32 v{t}, 0x5555")
    f(f"v_lshlrev_b32 v{q}, v{q}, v{t}")
    f(f"v_lshrrev_b32 v{b}, 4, v{vLANE}")
    f(f"v_lshlrev_b32 v{b}, 2, v{b}")
    f(f"v_lshrrev_b32 v{q}, v{b}, v{q}")
    f(f"v_not_b32 v{q}, v{q}")
    f(f"s_mov_b32 s36, {NEGBIG}")
    for i in range(8):
        f(f"v_bfe_i32 v{vMc + i}, v{q}, {i if i < 4 else 12 + i}, 1")
        f(f"v_and_b32 v{vMc + i}, s36, v{vMc + i}")
    f(f"v_mov_b32 v{q}, 0x3f803f80")
    for i in range(4):
        f(f"v_accvgpr_write_b32 a{aONE+i}, v{q}")
    f(f"v_lshrrev_b32 v{q}, 1, v{vLANE}"); f(f"v_xor_b32 v{q}, v{q}, v{vLANE}"); f(f"v_and_b32 v{q}, 4, v{q}")
    f(f"v_lshl_or_b32 v{q}, v{q}, 1, v{q}"); f(f"v_xor_b32 v{q}, v{q}, v{vLANE}"); f(f"v_lshlrev_b32 v{vKS}, 4, v{q}")
    f(f"v_min_u32 v{vF0}, 1, v{vLANE}")
    f(f"v_lshlrev_b32 v{vF0}, 31, v{vF0}")
    f(f"s_mov_b32 s{sCS}, {CSCALE}"); f(f"s_mov_b32 s62, {CSCALE}"); f(f"s_mov_b32 s63, {CSCALE}")
    f(f"s_lshl_b32 s36, s{sHP}, 19")
    f(f"s_lshl_b32 s37, s{sW}, 13")
    f(f"s_lshl_b32 s38, s{sHH}, 14")
    f(f"s_lshl_b32 s39, s{sRH}, 13")
    f(f"s_add_u32 s{sKVdst}, s38, s39")
    f(f"s_add_u32 s{sKVbase}, s36, s{sKVdst}")
    f(f"s_lshl_b32 s{sKVt}, s{sT}, 15")
    f(f"s_add_u32 s{sKVsrc}, s{sKVbase}, s{sKVt}")
    f(f"s_and_b32 s{sKVt}, s{sT}, 7"); f(f"s_and_b32 s{sKVb}, s{sT}, 8")
    f(f"s_add_u32 s36, s38, {KV_LDS[0]}")
    f(f"v_add_u32 v{vKV[0]}, s36, v{vL16}")
    f(f"v_add_u32 v{vKV[1]}, 32768, v{vKV[0]}")
    f(f"s_lshl_b32 s{sHead}, s{sHP}, 1")
    f(f"s_add_u32 s{sHead}, s{sHead}, s{sHH}")
    f(f"s_lshl_b32 s{sSeq}, s{sT}, 1")
    f(f"s_add_u32 s{sSeq}, s{sSeq}, s{sRH}")
    f(f"s_lshl_b32 s37, s{sSeq}, 6")
    f(f"s_add_u32 s37, s37, s{sHead}")
    f(f"s_lshl_b32 s{sOst}, s37, 11")
    f(f"s_lshl_b32 s38, s{sHead}, 5")
    f(f"s_add_u32 s38, s38, s{sSeq}")
    f(f"s_lshl_b32 s28, s38, 2")
    f(f"s_lshl_b32 s38, s38, 12")
    f(f"s_add_u32 s{sHalo}, s38, {HALO_OFF}")
    f(f"s_mov_b32 s{sPASS}, 0")
    f(f"s_add_u32 s{sKVp}, s54, s{sKVbase}\ns_addc_u32 s{sKVp+1}, s55, 0")
    f("s_lshl_b32 s36, s2, 2"); f(f"s_add_u32 s36, s36, s{sW}"); f("s_lshl_b32 s36, s36, 11")
    f(f"v_and_b32 v24, 15, v{vLANE}"); f("v_lshlrev_b32 v24, 7, v24"); f("v_add_u32 v60, s36, v24")
    if a.opts.get("tlb"):
        f("s_lshr_b32 s36, s2, 3"); f("s_mul_i32 s37, s36, 11"); f(f"v_min_u32 v61, 10, v{vLANE}"); f("v_add_u32 v61, s37, v61"); f("v_lshlrev_b32 v61, 16, v61")
        f("s_lshl_b32 s37, s36, 1"); f(f"v_min_u32 v62, 1, v{vLANE}"); f("v_add_u32 v62, s37, v62"); f("v_lshlrev_b32 v62, 16, v62")
    f("s_lshr_b32 s36, s2, 3"); f("s_lshl_b32 s36, s36, 2"); f(f"s_add_u32 s36, s36, s{sW}"); f("s_lshl_b32 s36, s36, 14")
    f("v_add_u32 v0, s36, v24")
    f(f"s_lshl_b32 s36, s{sSeq}, 6")
    f(f"s_lshl_b32 s37, s{sHead}, 1")
    f("s_add_u32 s36, s36, s37")
    f(f"v_lshrrev_b32 v9, 5, v{vLANE}")
    f(f"v_add_u32 v{vGrow}, s36, v9")
    f(f"v_and_b32 v25, 31, v{vLANE}")
    f("v_lshlrev_b32 v25, 4, v25")
    f(f"v_lshl_add_u32 v9, v{vGrow}, 11, v25")
    f(f"s_mov_b32 s56, s{sPG}"); f(f"s_and_b32 s57, s{sPG+1}, 0xffff"); f("s_mov_b32 s58, 2048"); f("s_mov_b32 s59, 0x20000")
    f(f"s_lshl_b32 s38, s{sHP}, 2"); f(f"s_add_u32 s38, s38, s{sW}"); f("s_lshl_b32 s38, s38, 6")
    f(f"s_add_u32 s31, s38, {F_KV}"); f(f"s_lshl_b32 s38, s{sT}, 2"); f("s_add_u32 s32, s31, s38")
    f(f"s_add_u32 s33, s28, {F_H - 4}"); f(f"s_cmp_eq_u32 s{sSeq}, 0\ns_cselect_b32 s38, 4, 0"); f("s_add_u32 s33, s33, s38")
    return L

def gemm1(a):
    o = a.opts
    p1 = P1(a)
    W = lambda j, ps: [("W", j, p) for p in ps]
    X = lambda v, ps: [("X", v, p) for p in ps]
    pro = X(0, range(4)) + W(0, range(6)) + W(1, range(6))
    sched = {(0,0): X(1, range(4)) + W(2, [0,1]), (0,1): W(2, [2,3,4,5]) + W(3, [0,1]),
             (1,0): W(3, [2,3,4,5]) + W(4, [0,1]), (1,1): X(2, range(4)) + W(4, [2,3]),
             (2,0): W(4, [4,5]) + W(5, [0,1,2,3]), (2,1): W(5, [4,5]) + X(3, range(4)),
             (3,0): W(6, range(6))}
    for u in range(3, 28):
        v, p0 = ((u + 5)//2, 0) if u & 1 else ((u + 4)//2, 2)
        sched[(u, 1)] = W(u + 4, [0,1,2]) + (X(v, [p0]) if v < 16 else [])
        sched[(u + 1, 0)] = W(u + 4, [3,4,5]) + (X(v, [p0 + 1]) if v < 16 else [])
    if o.get("w1late", 0):
        pro = X(0, range(4)) + W(0, range(6))
        sched.update({(0,0): W(1, range(6)), (0,1): X(1, range(4)) + W(2, [0,1]), (1,0): W(2, [2,3,4,5]) + W(3, [0,1]),
                      (1,1): W(3, [2,3,4,5]) + X(2, [0,1]), (2,0): X(2, [2,3]) + W(4, [0,1,2,3]), (2,1): W(4, [4,5]) + W(5, [0,1,2,3]),
                      (3,0): W(5, [4,5]) + X(3, range(4)), (3,1): W(6, range(6)), (4,0): W(7, range(6)),
                      (4,1): W(8, [0,1,2]) + X(4, [0,1,2]), (5,0): W(8, [3,4,5]) + X(4, [3])})
    U0 = o.get("u0", 28)
    if U0 == 28:
        sched[(27, 1)] = W(31, range(6)); del sched[(28, 0)]
    for (u, hf), ps in sched.items():
        done = u - 1 if hf == 0 else u
        for k, j, p in ps:
            if k == "W": assert j < 4 or done >= j - 4, (u, hf, k, j)
            else: assert j < 3 or done >= 2*(j - 3) + 1, (u, hf, k, j)
    npf0 = o.get("pf0", 2)
    pfs = {}
    r = npf0
    for u in range(0, 32):
        while r < 16 and u >= max(0, 2*r - o.get("pfd", 5)) and pfs.get(u, 0) < 1:
            pfs[u] = pfs.get(u, 0) + 1; r += 1
    fil = fillers_prologue(a)
    late = fillers_late(a)
    if o.get("p4early", 1):
        assert o.get("latepro", 1) in (1, 2) and not o.get("zinit")
        late += p4_split()[0]
    post_issue = []
    if o.get("latepro", 1) == 1: fil += late; late = []
    if o.get("latepro", 1) == 2: post_issue = late; late = []
    if o.get("latepro", 1) == 3: post_issue = fil[42:] + late; fil = fil[:42]; late = []
    ws_ = a.wsetup
    chunks = [ws_[0:4], ws_[4:8], ws_[8:11], ws_[11:14]]
    per = (len(fil) + len(pro) - 5)//(len(pro) - 4)
    chunks += [fil[i*per:(i+1)*per] for i in range(len(pro) - 4)]
    for pc, chunk in zip(pro, chunks):
        pre, d, post = p1.dma(pc)
        for s in pre: a(s)
        a(chunk[0] if chunk else "s_nop 0")
        a.emit(d)
        for s in post + chunk[1:]: a(s)
    for s in post_issue: a(s)
    a(f"s_or_b32 s36, s2, s{sW}")
    a("s_cmp_lg_u32 s36, 0")
    a("s_cbranch_scc1 L_NONONCE")
    a("s_memrealtime s[36:37]")
    a("v_mov_b32 v20, 0")
    a("s_waitcnt lgkmcnt(0)")
    a("s_or_b32 s36, s36, 1")
    a("v_mov_b32 v19, s36")
    a(f"global_store_dword v20, v19, s[{sPDbg}:{sPDbg+1}] sc1")
    a("L_NONONCE:")
    a.stamp("issued")
    a.emit(a.wait(["X0", "W0"]))
    a("s_barrier")
    a.stamp("first")
    for s in x_reads(0, 0) + w_reads(0, 0, (0, 1, 2)): a(s)
    a("s_waitcnt lgkmcnt(0)")
    def need(u): return [f"W{u}"] + ([f"X{u//2}"] if u % 2 == 0 else [])
    def seq(M, keys=None): return [M[k] for k in (keys or sorted(M))]
    pend = [0]
    def late_wait(sides, g):
        if pend[0]:
            n = sum(isinstance(x, str) and x.startswith("ds_") for k in sides if k <= g for x in sides[k])
            sides.setdefault(g, []).append(f"s_waitcnt lgkmcnt({n})")
            pend[0] = 0
    def soft_wait(nreads, need_):
        if o.get("soft", 1) and nreads > need_:
            pend[0] = nreads - need_
            a(f"s_waitcnt lgkmcnt({pend[0]})")
        else:
            a("s_waitcnt lgkmcnt(0)")
    roll = o.get("roll", 0)
    if roll:
        assert U0 == 28 and not late
        raise Exception("rolled loop needs bounds-checked prefetch")
        assert all(pfs.get(u, 0) == pfs.get(u + 12, 0) for u in range(4, 16)), pfs
    def half(u, hf):
        if hf == 0: reads = w_reads(1, u, (3, 4, 5))
        else: reads = x_reads((u + 1) & 1, u + 1) + w_reads(0, u + 1, (0, 1, 2) if u + 1 < U0 else (1, 2))
        sides = {}
        ps = sched.get((u, hf), [])
        lay = o.get("glay", 1)
        if lay == 0 or len(ps) > 4:
            for g, rd in enumerate(reads): sides.setdefault(g, []).append(rd)
            D = ([[13, 16, 19, 22], [12, 14, 16, 18, 20, 22]] if hf == 0 else [[17, 19, 21, 23], [13, 15, 17, 19, 21, 23]])[len(ps) > 4]
            if (u, hf) == (0, 0) and o.get("w1late", 0): D = [1, 3, 5, 7, 9, 11]
            for g, pc in zip(D, ps):
                pre, d, post = p1.dma(pc)
                sides.setdefault(g - 1, []).extend(pre)
                sides.setdefault(g, []).insert(0, d)
                sides[g].extend(post)
        else:
            D = {1: [2, 8, 14, 20], 2: [4, 10, 16, 22], 3: [3, 9, 15, 21], 4: [5, 11, 17, 23]}[lay]
            free = [g for g in range(24) if g not in D[:len(ps)]]
            for g, rd in zip(free, reads): sides.setdefault(g, []).append(rd)
            for g, pc in zip(D, ps):
                pre, d, post = p1.dma(pc)
                sides.setdefault(g - 1, []).extend(pre)
                sides.setdefault(g, []).insert(0, d)
                sides.setdefault(min(g + 1, 23), []).extend(post)
        if o.get("tlb", 0) >= 2 and (u, hf) == (o.get("tlbstep", 20), 0):
            sides.setdefault(23, []).append((f"global_load_dword v{vPFd}, v61, s[54:55]", "tlb"))
        if o.get("tlb", 0) >= 1 and (u, hf) == (o.get("tlbstep", 20) + 2, 0):
            sides.setdefault(23, []).append((f"global_load_dword v{vPFd}, v62, s[{sPOut}:{sPOut+1}]", "tlb"))
        if hf == 0 and pfs.get(u):
            sides.setdefault(23, []).extend(pf_round(a))
        if u >= 4 and late:
            for g in range(24):
                cur = sides.get(g, [])
                if any(isinstance(x, tuple) or x.startswith("ds_") for x in cur): continue
                room = o.get("lateper", 2) - (1 if cur else 0)
                while late and room > 0:
                    x = late.pop(0); sides.setdefault(g, []).append(x); room -= len(x.split("\n"))
        if roll and (u, hf) in ((15, 0), (27, 0)):
            sides.setdefault(14, []).append("s_sub_u32 s35, s35, 1")
        late_wait(sides, 7)
        a.inter(seq(g1_mfmas(u & 1, hf, (0, 1, 2) if hf == 0 else (3, 4, 5), first=(u == 0 and not o.get('zinit')))), sides)
        if roll and (u, hf) in ((15, 0), (27, 0)):
            a("s_cmp_lg_u32 s35, 0")
        if hf == 0:
            a.emit(a.wait(need(u + 1), lgkm=True))
            a("s_barrier")
        elif u + 1 < U0:
            soft_wait(16, 8)
        if hf == 1 and u % 8 == 7 and not roll: a.stamp(f"g{u}")
    halves = [(u, hf) for u in range(U0) for hf in range(2)]
    if not roll:
        for h in halves: half(*h)
    else:
        for h in halves[:7]: half(*h)
        a("s_mov_b32 s35, 2")
        n0 = len(a.lines)
        for h in halves[7:31]: half(*h)
        p1_ = a.lines[n0:]; del a.lines[n0:]
        for h in halves[31:55]: half(*h)
        p2_ = a.lines[n0:]; del a.lines[n0:]
        assert len(p1_) == len(p2_)
        if o.get("galign"): a(f".p2align {o['galign']}")
        a("L_G1:")
        import re
        for x, y in zip(p1_, p2_):
            if x != y:
                mx, my = re.fullmatch(r"\s*s_waitcnt vmcnt\((\d+)\) lgkmcnt\(0\)", x), re.fullmatch(r"\s*s_waitcnt vmcnt\((\d+)\) lgkmcnt\(0\)", y)
                assert mx and my, (x, y)
                x = f"s_waitcnt vmcnt({min(int(mx.group(1)), int(my.group(1)))}) lgkmcnt(0)"
            a(x)
        a("s_cbranch_scc1 L_G1")
        half(27, 1)
    misc = []
    for j in range(8):
        misc.append((f"buffer_load_dwordx4 {ar(aGATE+4*j, 4)}, v9, s[{sX}:{sX+3}], 0 offen offset:{512*j}" if j < 4 else
                     f"buffer_load_dwordx4 {ar(aGATE+4*j, 4)}, v25, s[56:59], 0 offen offset:{512*(j-4)}", "gate"))
    misc = [(f"global_load_dword v21, v19, s[{sPDbg}:{sPDbg+1}] sc1", "nonce"),
            (f"buffer_load_dword v{vPFd}, v{vT[7]}, s[{sCode}:{sCode+3}], 0 offen", "cpf")] + misc
    if o.get("wom", 1): misc.insert(o.get("wompos", 10), (f"global_load_dword v{vPFd}, v60, s[{sPWoB}:{sPWoB+1}]", "wopf"))
    if o.get("wom", 1) > 1: misc.append((f"global_load_dword v{vPFd}, v60, s[{sPWoA}:{sPWoA+1}]", "wopf"))
    if o.get("tlb", 0) == 1:
        misc[-0:] = misc[-0:] + [(f"global_load_dword v{vPFd}, v61, s[54:55]", "tlb")]
    xs, ws_ = U0 & 1, 0
    units = [(u, b) for u in range(U0, 31) for b in ((0, 3), (4, 5))] + [(31, (4, 5)), (31, (3, 0))]
    bfirst = o.get("bfirst", 1)
    if bfirst: units = [(u, (4, 5)) for u in range(U0, 32)] + [(u, (3, 0)) for u in range(U0, 32)]
    for u in range(U0, 32):
        if u < 31:
            a.emit(a.wait(need(u + 1), lgkm=True)); a("s_barrier")
        else:
            a("s_waitcnt lgkmcnt(0)")
        reads = x_reads(1 - xs, u + 1) + w_reads(1 - ws_, u + 1, (1, 2)) if u < 31 else x_reads(1 - xs, U0) + w_reads(1 - ws_, *units[0])
        sides = {}
        for i, rd in enumerate(reads): sides.setdefault(i, []).append(rd)
        if u == U0:
            sides.setdefault(0, []).append("v_mov_b32 v19, 0")
            sides.setdefault(1, []).append(f"s_add_u32 s25, s{sKVsrc}, 4096"); sides.setdefault(2, []).append(f"s_mov_b32 s26, s{sKVsrc}")
        for g in ((12, 13, 15) if U0 == 28 else (12, 13, 14, 15)):
            if misc: sides.setdefault(g, []).append(misc.pop(0))
        M = g1_mfmas(xs, ws_, (1, 2))
        a.inter(seq(M, [(i, nt, mt) for rt in range(2) for i in range(2) for nt in range(2) for mt in (2*rt, 2*rt + 1)]), sides)
        xs ^= 1; ws_ ^= 1
    assert not misc
    a.stamp("gP")
    e1_lists(a)
    kvw = pk16(KA[0], pKA[0]) + a.kv.pop(0) + pk16(VA[0], pVA[0]) + pk16(KA[1], pKA[1]) + pk16(VA[1], pVA[1])
    st_units = {28: [1, 2, 3, 4, 5, 6, 7], 29: [1, 2, 3, 4, 5]}[U0]
    greedy = True; assert bfirst
    if greedy:
        a.kv.insert(0, [kvw[12]])
        half = lambda src, dst: [f"v_cvt_pk_bf16_f32 v{dst+j}, v{src+2*j}, v{src+2*j+1}" for j in range(4)]
        blocks = [(KA[0], pKA[0], 0, 4), (VA[0], pVA[0], 0, 4), (KA[1], pKA[1], 0, 4), (VA[1], pVA[1], 0, 4), (0, 0, 0, 64 + 5)]
        cv = [(b, x) for b, (src, dst, vb, t0) in enumerate(blocks[:4]) for x in packl(src, dst)]
        cv += [(4, x) for x in packl(KB[0], bK[1]) + packl(KB[1], bK[3]) + half(VB[0], bV[0] + 2) + half(VB[0] + 8, bV[1] + 2)
               + half(VB[1], bV[0] + 6) + half(VB[1] + 8, bV[1] + 6) + [f"v_mov_b32 v{bV[0]+10+j}, v{bV[1]+8+j}" for j in range(2)]]
        sw = [(b, x) for b, (src, dst, vb, t0) in enumerate(blocks[:4]) for x in pk16(src, dst, vb)[8:]]
        cdone = {}; sdone = {}; last_st = [-99]; nst = [0]
        def fill(T, room, free):
            out = []
            if (free or o.get("stany", 1)) and a.kv and nst[0] < 8:
                b = nst[0] // 2
                gap_ = o.get("stgap0", 6) if nst[0] < 4 else o.get("stgap", 20)
                if sdone.get(b, 999) < T and T - last_st[0] >= gap_:
                    last_st[0] = T; nst[0] += 1
                    return a.kv.pop(0)
            can_sw = sw and cdone.get(sw[0][0], 999) < T
            can_cv = cv and blocks[cv[0][0]][3] <= T
            if can_sw and (free or not can_cv):
                b, x = sw.pop(0)
                if not sw or sw[0][0] != b: sdone[b] = T
                return [x]
            while can_cv and room > 0:
                b, x = cv.pop(0); out.append(x); room -= 1
                if not cv or cv[0][0] != b: cdone[b] = T
                can_cv = cv and blocks[cv[0][0]][3] <= T
            return out
    for n, (u, blks) in enumerate(units):
        last = n == len(units) - 1
        special = n >= len(units) - 2 or (bfirst and n == len(units)//2 - 1)
        if last or special or not bfirst: a("s_waitcnt lgkmcnt(0)")
        else: soft_wait(12, 8)
        if last: a("s_barrier")
        reads = []
        newx = False
        if not last:
            un, bn = units[n + 1]
            newx = un != u
            reads = (x_reads(1 - xs, un) if newx else []) + w_reads(1 - ws_, un, bn)
        sides = {}
        for i, rd in enumerate(reads): sides.setdefault(i, []).append(rd)
        M = g1_mfmas(xs, ws_, blks)
        keys = None
        if bfirst and n == len(units)//2 and not greedy:
            kvw += pk16(KB[1], pKB[1]) + pk16(VB[1], pVB[1], True) + pk16(KB[0], pKB[0]) + pk16(VB[0], pVB[0], True)
        if n >= len(units) - 2 or (bfirst and n == len(units)//2 - 1):
            keys = [(i, nt, mt) for rt in (1, 0) for i in range(2) for nt in range(2) for mt in (2*rt, 2*rt + 1)]
            if last: keys = [(i, nt, mt) for i in range(2) for rt in (0, 1) for nt in range(2) for mt in (2*rt, 2*rt + 1)]
        if greedy and not last:
            for g in range(16):
                sides.setdefault(g, []).extend(fill(16*n + g, 1 if g < len(reads) else 2, g >= len(reads)))
        elif greedy:
            left = []
            for b in range(8):
                left += [x for bb, x in cv if bb == b] + [x for bb, x in sw if bb == b]
            assert all(bb >= 4 for bb, x in cv + sw)
            e1_head(a, sides, left); kvw = []
        elif last:
            e1_head(a, sides, kvw if bfirst else None); kvw = []
        else:
            for g in range(4 if n == 0 else 0, 16):
                budget = 1 if g < len(reads) else 2
                if n in st_units and g == 15: budget = 0
                while kvw and budget > 0:
                    cost = 2 if (isinstance(kvw[0], tuple) or "permlane" in kvw[0]) else 1
                    if cost > budget and o.get("rstrict", 1): break
                    sides.setdefault(g, []).append(kvw.pop(0))
                    budget -= cost
        if n in st_units and not greedy:
            st_ = a.kv.pop(0)
            lo = int(st_[0][0].split("v[")[1].split(":")[0])
            assert not any(isinstance(x, str) and any(f"v{lo+i}," in x.split(None, 1)[1].split(", v")[0] + "," or x.endswith(f" v{lo+i}") and "permlane" in x for i in range(4)) for x in kvw), (n, lo)
            sides.setdefault(1 if last else 15, []).extend(st_)
        late_wait(sides, 7)
        a.inter(seq(M, keys), sides)
        ws_ ^= 1
        if newx: xs ^= 1
    assert not kvw
    a.stamp("g31")
    assert not late

def packl(base, out=None):
    out = base if out is None else out
    return [f"v_cvt_pk_bf16_f32 v{out+j}, v{base+2*j}, v{base+2*j+1}" for j in range(8)]
def pk16(base, out=None, vb=False):
    out = base if out is None else out
    l = packl(base, out) + [f"v_permlane16_swap_b32 v{out+i}, v{out+i+2}" for i in (0, 1, 4, 5)]
    if vb: l += [f"v_permlane32_swap_b32 v{out+i}, v{out+i+2}" for i in (0, 1, 4, 5)]
    return l
def pko(base, out=None):
    out = base if out is None else out
    return packl(base, out) + ["s_nop 0"] + [f"v_permlane16_swap_b32 v{out+j}, v{out+4+j}" for j in range(4)]
def pack(a, base, out=None):
    for s in packl(base, out): a(s)
class L(list):
    def __call__(self, s): self.append(s)
    def emit(self, s): self.append(s)
def weave(a, work, extra, first, every):
    nxt = first
    for i, w in enumerate(work):
        while extra and i >= nxt:
            for s in extra.pop(0): a.emit(s)
            nxt += every
        a.emit(w)

def padfill(a, fill, n):
    k = 0
    for f in fill:
        a.emit(f); k += len(f.split("\n")) if isinstance(f, str) else 1
    if k < n: a(f"s_nop {n - k - 1}")

def local16(a, tiles, fill1=(), fill2=()):
    def rr(lists):
        for k in range(max(len(l) for l in lists)):
            for l in lists:
                if k < len(l): a(l[k])
    n = len(tiles)
    pad2 = ["s_nop 1"] if n == 1 else (["s_nop 0"] if n == 2 else [])
    rr([[mf16(vr(S_, 4), vr(bK[j], 4), vr(bQ[j], 4), vr(vMc, 4)), mf16(vr(S_+4, 4), vr(bK[j+1], 4), vr(bQ[j], 4), vr(vMc+4, 4))] for j, S_, L_, O_, m in tiles])
    padfill(a, fill1, 8)
    st = []
    for j, S_, L_, O_, m in tiles:
        t = m + 1
        l = [f"v_max3_f32 v{m}, v{S_}, v{S_+1}, v{S_+2}", f"v_max3_f32 v{m}, v{m}, v{S_+3}, v{S_+4}", f"v_max3_f32 v{m}, v{m}, v{S_+5}, v{S_+6}",
             f"v_max_f32 v{m}, v{m}, v{S_+7}", f"v_mov_b32 v{t}, v{m}"] + pad2 + [f"v_permlane16_swap_b32 v{m}, v{t}", f"v_max_f32 v{m}, v{m}, v{t}",
             f"v_mov_b32 v{t}, v{m}"] + pad2 + [f"v_permlane32_swap_b32 v{m}, v{t}", f"v_max_f32 v{m}, v{m}, v{t}", f"v_mul_f32 v{m}, s{sCS}, v{m}"]
        l += [f"v_fma_f32 v{S_+i}, v{S_+i}, s{sCS}, -v{m}" for i in range(8)]
        l += [f"v_exp_f32 v{S_+i}, v{S_+i}" for i in range(8)]
        l += [f"v_cvt_pk_bf16_f32 v{S_+i}, v{S_+2*i}, v{S_+2*i+1}" for i in range(4)] + pad2
        l += [mf16(vr(L_, 4), ar(aONE, 4), vr(S_, 4), 0), mf16(vr(O_, 4), vr(bV[0] + 2*j, 4), vr(S_, 4), 0), mf16(vr(O_+4, 4), vr(bV[1] + 2*j, 4), vr(S_, 4), 0)]
        st.append(l)
    rr(st)
    padfill(a, fill2, 8 if n == 1 else 6)
    rr([[f"v_rcp_f32 v{m}, v{L_}"] + (["s_nop 1"] if n == 1 else []) + [f"v_mul_f32 v{O_+i}, v{O_+i}, v{m}" for i in range(8)]
        + [f"v_cvt_pk_bf16_f32 v{O_+i}, v{O_+2*i}, v{O_+2*i+1}" for i in range(4)] for j, S_, L_, O_, m in tiles])
def ob_store(j, O_):
    return (f"buffer_store_dwordx4 {vr(O_, 4)}, v{vL16}, {WS}, s{35 if j < 2 else 38} offen offset:{(j & 1)*1024} sc1", "ob")

def flag_store(sreg, vtmp, tag):
    return [f"v_mov_b32 v{vtmp}, s{sNONCE}", (f"buffer_store_dword v{vtmp}, v{vF0}, {WS}, s{sreg} offen sc1", tag)]

def poll_check(a, name, vdst, vaddr, sreg, tag, mask=-1):
    a.emit(a.wait([tag]))
    a(f"v_cmp_ne_u32 vcc, s{sNONCE}, v{vdst}")
    a(f"s_and_b32 s{sSpin}, vcc_lo, {mask}")
    a(f"s_cbranch_scc1 {name}_S")
    a(f"{name}_R:")
    a.tail.append(f"""{name}_S:
    s_mov_b32 s{sSpin}, 0
{name}_L:
    buffer_load_dword v{vdst}, v{vaddr}, {WS}, s{sreg} offen sc1
    s_add_u32 s{sSpin}, s{sSpin}, 1
    s_waitcnt vmcnt(0)
    v_cmp_ne_u32 vcc, s{sNONCE}, v{vdst}
    s_cmp_lt_u32 s{sSpin}, 0x40000
    s_cbranch_scc0 {name}_R
    s_nop 2
    s_and_b32 vcc_hi, vcc_lo, {mask}
    s_cbranch_scc1 {name}_L
    s_branch {name}_R""")

def e1_lists(a):
    a.halo = [[(f"buffer_store_dwordx4 {vr(bK[4], 4)}, v{vL16}, {WS}, s{sHalo} offen sc1", "halo")],
              [(f"buffer_store_dwordx4 {vr(bV[0]+8, 4)}, v{vL16}, {WS}, s{sHalo} offen offset:1024 sc1", "halo")]]
    a.kv = []; a.dsw = []
    for rt in range(2):
        for (blk, f0) in ((pKA[rt], 0), (pVA[rt], 2)):
            for f in range(2):
                off = (f0 + f)*1024
                a.kv.append([(f"buffer_store_dwordx4 {vr(blk+4*f, 4)}, v{vL16 if f0 else vKS}, {WS}, s{26 if rt == 0 else 25} offen offset:{off} sc1", "kv")])
                a.dsw.append([f"ds_write_b128 v{22 if f0 else vKL}, {vr(blk+4*f, 4)} offset:{rt*4096 + off}"])

def e1_head(a, sides, left):
    w = [f"s_add_u32 s36, s{sKVdst}, {KV_LDS[0]}", f"v_add_u32 v22, s36, v{vL16}", f"v_add_u32 v{vKL}, s36, v{vKS}", f"v_add_u32 v{vL16b}, 4096, v{vL16}"]
    w += left + sel_init(23, 24)[:5] + sel_init(23, 24)[13:]
    a.selrest = sel_init(23, 24) if left is None else sel_init(23, 24)[5:13]
    for g in range(16):
        budget = 2
        if g % 2 == 1 and g > 1:
            sides.setdefault(g, []).extend(a.dsw.pop(0)); budget = 0
        while w and budget > 0:
            x = w.pop(0)
            sides.setdefault(g, []).append(x)
            budget -= 2 if "permlane" in x else (0 if x.startswith("s_") else 1)
    a.e1rest = w

def e1(a):
    o = a.opts
    pend = a.kv + a.halo
    a.emit(a.wait(["nonce"]))
    a(f"v_readfirstlane_b32 s{sNONCE}, v21")
    w = a.e1rest + a.selrest + packl(QB[0], bQ[0]) + packl(QB[1], bQ[2])
    weave(a, w, a.dsw, 2, 8)
    a(f"s_cmp_eq_u32 s{sNONCE}, 0")
    a("s_cbranch_scc1 L_NONCE_S")
    a("L_NONCE_R:")
    a.tail.append(f"""L_NONCE_S:
    s_mov_b32 s{sSpin}, 0
L_NONCE_L:
    global_load_dword v21, v19, s[{sPDbg}:{sPDbg+1}] sc1
    s_add_u32 s{sSpin}, s{sSpin}, 1
    s_waitcnt vmcnt(0)
    v_readfirstlane_b32 s{sNONCE}, v21
    s_cmp_lt_u32 s{sSpin}, 0x40000
    s_cbranch_scc0 L_NONCE_R
    s_nop 2
    s_cmp_eq_u32 s{sNONCE}, 0
    s_cbranch_scc1 L_NONCE_L
    s_branch L_NONCE_R""")
    for s in pend.pop(0): a.emit(s)
    a.stamp("e1pack")
    qa = []
    for q in QA:
        qa += [f"v_pk_mul_f32 {vr(q+2*j, 2)}, {vr(q+2*j, 2)}, s[62:63]" for j in range(8)] + pk16(q)
    lt = L()
    local16(lt, [(1, 128, 152, 40, 180), (2, 136, 156, 48, 182), (3, 144, 176, 56, 184)], fill1=qa[:20], fill2=qa[20:])
    weave(a, lt, pend, o.get("st_a", 40), o.get("st_b", 50))
    for g in pend:
        for s in g: a.emit(s)
    a.stamp("loc1")
    a.emit(a.wait(["kv"], lgkm=True))
    for s in flag_store(32, 20, "fKV"): a.emit(s)
    a("s_barrier")
    a.stamp("fKV")

sKVp, sKVg, sOg, sPFW = 84, 98, 100, 52
vL16b = 5
def kv_dma(slot, group, tag):
    out = [f"s_add_u32 m0, s{sKVdst}, {KV_LDS[slot] + group*4096}"]
    for p in range(4):
        out.append((f"global_load_lds_dwordx4 v{vL16b if group else vL16}, s[{sKVg}:{sKVg+1}] offset:{p*1024} sc1", tag))
    return out
sKVb, sKVd = 3, 34
def kv_advance(c):
    if c <= 7:
        return [f"s_cmp_le_u32 s{sKVt}, {c-1}", f"s_addc_u32 s36, s{sKVb}, {c-1}", "s_lshl_b32 s36, s36, 15",
                f"s_add_u32 s{sKVg}, s{sKVp}, s36", f"s_addc_u32 s{sKVg+1}, s{sKVp+1}, 0"]
    return [f"s_add_u32 s36, s{sKVb}, {c}", "s_and_b32 s36, s36, 15", "s_lshl_b32 s36, s36, 15",
            f"s_add_u32 s{sKVg}, s{sKVp}, s36", f"s_addc_u32 s{sKVg+1}, s{sKVp+1}, 0"]

def sel_init(t0, t1):
    return [f"v_lshrrev_b32 v{t0}, 1, v{vLANE}", f"v_and_b32 v{t0}, 3, v{t0}", f"v_min_u32 v{t1}, 1, v{t0}", f"v_add_u32 v{t1}, -1, v{t1}",
            f"v_and_b32 v{t1}, 0x3f803f80, v{t1}", f"v_accvgpr_write_b32 a{aSEL}, v{t1}", f"v_accvgpr_write_b32 a{aSEL+1}, v{t1}",
            f"v_xor_b32 v{t0}, 2, v{t0}", f"v_min_u32 v{t1}, 1, v{t0}", f"v_add_u32 v{t1}, -1, v{t1}",
            f"v_and_b32 v{t1}, 0x3f803f80, v{t1}", f"v_accvgpr_write_b32 a{aSEL+2}, v{t1}", f"v_accvgpr_write_b32 a{aSEL+3}, v{t1}",
            f"v_and_b32 v{vIDX}, 1, v{vLANE}", f"v_mul_u32_u24 v{vIDX}, 0xaaaa, v{vIDX}", f"v_add_u32 v{vIDX}, 0x4444, v{vIDX}"]
def smf(q): return f"v_smfmac_f32_16x16x64_bf16 {ar(aL[q], 4)}, {ar(aSEL, 4)}, {vr(P[q], 8)}, v{vIDX}"

def H(a, q, vpar, qk=True, pv=True, pv_first=False, slots=None):
    slots = slots or {}
    o = 1 - q
    e = [f"v_exp_f32 v{S[q]+i}, v{S[q]+i}" for i in range(16)]
    c = [f"v_cvt_pk_bf16_f32 v{P[q]+j}, v{S[q]+2*j}, v{S[q]+2*j+1}" for j in range(8)]
    So, Oo = vr(S[o], 16), ar(aO[o], 16)
    M = [mf32(So, ar(aK, 4), vr(QA[o], 4), vr(NM[o], 16)) if qk else None,
         mf32(So, ar(aK+4, 4), vr(QA[o]+4, 4), So) if qk else None,
         mf32(Oo, ar(aV[vpar], 4), vr(P[o], 4), 0 if pv_first else Oo) if pv else None,
         mf32(Oo, ar(aV[vpar]+4, 4), vr(P[o]+4, 4), Oo) if pv else None,
         smf(o) if pv else None, None]
    V = [[e[0], e[1], e[2]], [e[3], c[0], c[1], e[4]], [e[5], e[6], e[7]], [c[2], c[3], e[8], e[9], e[10], e[11], c[4], c[5]],
         [], [e[12], e[13], e[14], e[15], c[6], c[7]]]
    if not pv: V[3] = ["s_nop 0"] + V[3]
    for i in range(6):
        if M[i]: a(M[i])
        for s in slots.get(i, []): a.emit(s)
        for s in V[i]: a(s)

def rdK(slot, off): return [f"ds_read_b128 {ar(aK, 4)}, v{vKV[slot]} offset:{off}", f"ds_read_b128 {ar(aK+4, 4)}, v{vKV[slot]} offset:{off+1024}"]
def rdV(par, slot, off): return [f"ds_read_b128 {ar(aV[par], 4)}, v{vKV[slot]} offset:{off+2048}", f"ds_read_b128 {ar(aV[par]+4, 4)}, v{vKV[slot]} offset:{off+3072}"]

FREE_A = [0, 3, 4]; FREE_B = [2, 3, 4, 5]
TORD = [0, 2, 1, 3]
def tile(a, n, side=None, end_b=None):
    sa = {}; sb = {}
    if n < 63:
        m = n + 1
        k = rdK((m >> 2) & 1, TORD[m & 3]*4096); v = rdV(m & 1, (m >> 2) & 1, TORD[m & 3]*4096)
        sa[1] = [k[0]]; sa[2] = [k[1]]; sa[5] = ["s_waitcnt lgkmcnt(0)"]
        sb[0] = [v[0]]; sb[1] = [v[1]]
    if side is not None:
        for g in FREE_A:
            if side: sa.setdefault(g, []).extend(side.pop(0))
        for g in (FREE_B if end_b is None else FREE_B[:-1]):
            if side: sb.setdefault(g, []).extend(side.pop(0))
        if sb.get(4) and sb.get(5) and isinstance(sb[4][-1], str) and " m0," in sb[4][-1] and isinstance(sb[5][0], tuple):
            if not sb.get(3): sb[3] = sb.pop(4)
            elif len(sb[3]) == 1 and isinstance(sb[3][0], str) and " m0," not in sb[3][0] and not sb[3][0].startswith(("s_cmp", "s_addc", "s_add_u32 s9", "s_add_u32 s10")):
                sb[3], sb[4] = sb[4], sb[3]
            else: sb[4] = sb[4] + ["s_nop 0"]
    if end_b: sb.setdefault(5, []).extend(end_b)
    H(a, 0, (n - 1) & 1, pv=(n != 0), pv_first=(n == 1), slots=sa)
    H(a, 1, n & 1, qk=(n < 63), pv_first=(n == 0), slots=sb)

def neg_max(a):
    for q in range(2): a(f"v_mov_b32 v{21+q}, v{19+q}")
    a("s_nop 0")
    for q in range(2): a(f"v_permlane32_swap_b32 v{19+q}, v{21+q}")
    for q in range(2): a(f"v_max_f32 v{19+q}, v{19+q}, v{21+q}")
    for q in range(2):
        for i in range(16): a(f"v_sub_f32 v{NM[q]+i}, 0, v{19+q}")

def gate_compute(a):
    z, t = 23, 24
    for i in range(16):
        a(f"v_accvgpr_read_b32 v{96+(i%4)}, a{aGATE+i}")
        a(f"v_accvgpr_read_b32 v{100+(i%4)}, a{aGATE+16+i}")
        a(f"v_dot2_f32_bf16 v{z}, v{96+(i%4)}, v{100+(i%4)}, {0 if i == 0 else 'v%d' % z}")
    a("s_nop 2")
    for sh in (8, 4, 2, 1):
        a(f"v_add_f32_dpp v{z}, v{z}, v{z} row_ror:{sh} row_mask:0xf bank_mask:0xf")
        a("s_nop 1")
    a(f"v_mov_b32 v{t}, v{z}")
    a("s_nop 1")
    a(f"v_permlane16_swap_b32 v{z}, v{t}")
    a(f"v_add_f32 v{z}, v{z}, v{t}")
    a(f"v_mul_f32 v{z}, {f2u(-math.log2(math.e))}, v{z}")
    a(f"v_exp_f32 v{z}, v{z}")
    a(f"v_and_b32 v{t}, 31, v{vLANE}")
    a(f"v_add_f32 v{z}, 1.0, v{z}")
    a(f"v_rcp_f32 v{z}, v{z}")
    a(f"v_min_u32 v{t}, 1, v{t}")
    a(f"v_lshlrev_b32 v{t}, 31, v{t}")
    a(f"v_lshl_or_b32 v{t}, v{vGrow}, 2, v{t}")
    a(f"s_mov_b32 s36, {G_OFF}")
    a.emit((f"buffer_store_dword v{z}, v{t}, {WS}, s36 offen sc1", "g"))

def p4_setup(a):
    srd(a, sWoA, sPWoA, sPWoA+1, 1024*1024*2)
    srd(a, sWoB, sPWoB, sPWoB+1, 1024*1024*2)
    srd(a, sOutD, sPOut, sPOut+1, 2048*1024*2)
    a("s_and_b32 s36, s2, 7")
    a("s_lshr_b32 s37, s2, 3")
    a(f"s_and_b32 s{sC4}, s37, 15")
    a("s_lshr_b32 s37, s37, 4")
    a("s_lshl_b32 s36, s36, 1")
    a(f"s_add_u32 s{sT4}, s36, s37")
    r, c, t0, t1 = 200, 201, 202, 203
    a(f"v_lshrrev_b32 v{r}, 3, v{vLANE}")
    a(f"v_and_b32 v{c}, 7, v{vLANE}")
    a(f"s_lshl_b32 s36, s{sW}, 14")
    a(f"s_lshl_b32 s37, s{sC4}, 7")
    a("s_add_u32 s37, s36, s37")
    a(f"v_lshlrev_b32 v{t1}, 11, v{r}")
    a(f"v_add_u32 v{t1}, s37, v{t1}")
    a(f"v_and_b32 v{t0}, 6, v{r}")
    a(f"v_xor_b32 v{t0}, v{t0}, v{c}")
    a(f"v_lshl_add_u32 v{vWo_g}, v{t0}, 4, v{t1}")
    a(f"v_and_b32 v{t0}, 2, v{r}")
    a(f"s_lshl_b32 s36, s{sHH}, 2")
    a(f"v_xor_b32 v{t0}, v{t0}, v{c}")
    a(f"v_xor_b32 v{t0}, s36, v{t0}")
    a(f"v_lshl_add_u32 v{vWo_gA}, v{t0}, 4, v{t1}")
    a(f"v_lshrrev_b32 v{c}, 2, v{vLANE}")
    a(f"v_and_b32 v{t0}, 6, v{c}")
    a(f"v_lshlrev_b32 v{t0}, 4, v{t0}")
    a(f"v_lshl_add_u32 v{t0}, v{c}, 7, v{t0}")
    a(f"v_and_b32 v{t1}, 3, v{vLANE}")
    a(f"v_lshl_add_u32 v{vWo_r[0]}, v{t1}, 3, v{t0}")
    for nt in range(1, 4):
        a(f"v_xor_b32 v{vWo_r[nt]}, {32*nt}, v{vWo_r[0]}")
    a(f"s_lshl_b32 s36, s{sT4}, 2")
    a(f"s_add_u32 s36, s36, s{sW}")
    a(f"s_lshl_b32 s{sOrow}, s36, 16")
    a(f"s_lshr_b32 s36, s36, 1")
    a(f"s_lshl_b32 s29, s36, 7")
    a(f"s_lshr_b32 s36, s{sC4}, 1")
    a(f"s_lshl_b32 s{sOoff}, s36, 13")
    a(f"s_lshl_b32 s{sWooff}, s36, 18")
    a(f"v_and_b32 v16, 31, v{vLANE}")
    a("v_lshlrev_b32 v16, 2, v16")
    a(f"v_and_b32 v17, 15, v{vLANE}")
    a(f"v_cmp_le_u32 vcc, s{sKVt}, v17")
    a(f"v_add_u32 v17, s{sKVb}, v17")
    a("s_nop 0")
    a("v_addc_co_u32 v17, vcc, 0, v17, vcc")
    a("v_and_b32 v17, 15, v17")
    a("v_lshlrev_b32 v17, 2, v17")
    a("s_lshl_b32 s36, s2, 2")
    a(f"s_add_u32 s36, s36, s{sW}")
    a("s_lshl_b32 s36, s36, 11")
    a(f"v_and_b32 v25, 7, v{vLANE}")
    a("v_lshlrev_b32 v25, 7, v25")
    a("v_add_u32 v25, s36, v25")
    a(f"s_add_u32 s36, s{sOrow}, {OB_OFF}")
    a(f"s_add_u32 s{sOg}, s54, s36")
    a(f"s_addc_u32 s{sOg+1}, s55, 0")

aPARK = 116
def p4_split():
    ps = L(); p4_setup(ps)
    regs = [vWo_g, vWo_gA] + vWo_r + [16, 17, 25]
    tmp = {r: 64 + i for i, r in enumerate(regs)}
    tmp.update({200: 80, 201: 81, 202: 82, 203: 83})
    import re
    early = []
    late = [x for x in ps if any(x.split()[1].startswith(f"s{i},") for i in range(sWoA, sWoA + 4))]
    for x in ps:
        if x in late: continue
        early.append(re.sub(r"\bv(\d+)\b", lambda m: f"v{tmp.get(int(m.group(1)), int(m.group(1)))}", x))
    out = []
    for x in early:
        if x.startswith(("s_addc", "v_addc")) or (out and out[-1].split("\n")[-1].startswith(("v_cmp", "s_nop"))) or (x.startswith("s_nop")):
            out[-1] += "\n" + x
        else: out.append(x)
    out += [f"v_accvgpr_write_b32 a{aPARK+i}, v{tmp[r]}" for i, r in enumerate(regs)]
    late += [f"v_accvgpr_read_b32 v{r}, a{aPARK+i}" for i, r in enumerate(regs)]
    return out, late

def wob_dma(i, tag):
    return [[f"s_mov_b32 s39, {i*65536}"], [f"s_add_u32 m0, s{sWv}, {i*4096}"],
            [(f"buffer_load_dwordx4 v{vWo_g}, s[{sWoB}:{sWoB+3}], s39 offen lds", tag)]]

def attention(a):
    o = a.opts
    a("L_ATT0:")
    for s in rdK(0, 0) + rdV(0, 0, 0): a(s)
    for s in kv_advance(1): a(s)
    for q in range(2):
        for i in range(4): a(f"v_accvgpr_write_b32 a{aL[q]+i}, 0")
    a(f"s_cmp_lg_u32 s{sPASS}, 0")
    a("s_cbranch_scc1 L_ATT1")
    if o.get("p4early", 1):
        rest = L(p4_split()[1]); gate_compute(rest)
    else:
        rest = L(); p4_setup(rest)
    n1 = 22
    for s in rest[:n1]: a.emit(s)
    a("s_waitcnt lgkmcnt(0)")
    for q in range(2): a(mf32(vr(S[q], 16), ar(aK, 4), vr(QA[q], 4), 0))
    for q in range(2): a(mf32(vr(S[q], 16), ar(aK+4, 4), vr(QA[q]+4, 4), vr(S[q], 16)))
    padfill(a, rest[n1:n1+26], 11)
    for q in range(2):
        s, m = S[q], 19 + q
        a(f"v_max3_f32 v{m}, v{s}, v{s+1}, v{s+2}")
        for i in range(3, 15, 2): a(f"v_max3_f32 v{m}, v{m}, v{s+i}, v{s+i+1}")
        a(f"v_max_f32 v{m}, v{m}, v{s+15}")
    for q in range(2): a(f"v_mov_b32 v{21+q}, v{19+q}")
    a("s_nop 0")
    for q in range(2): a(f"v_permlane32_swap_b32 v{19+q}, v{21+q}")
    for q in range(2): a(f"v_max_f32 v{19+q}, v{19+q}, v{21+q}")
    for i in range(16): a(f"v_sub_f32 v{NM[0]+i}, 0, v19")
    for s in rest[n1+26:n1+28]: a.emit(s)
    a(mf32(vr(S[0], 16), ar(aK, 4), vr(QA[0], 4), vr(NM[0], 16)))
    a(mf32(vr(S[0], 16), ar(aK+4, 4), vr(QA[0]+4, 4), vr(S[0], 16)))
    for i in range(16): a(f"v_sub_f32 v{NM[1]+i}, 0, v20")
    for s in rest[n1+28:]: a.emit(s)
    a("v_mov_b32 v18, 0")
    a(f"s_add_u32 s30, s28, {F_H}")
    if o.get("fh_slot", 10) < 0:
        a.emit(a.wait(["halo"]))
        for s in flag_store(30, 20, "fH"): a.emit(s)
    a("s_branch L_ATT2")
    a("L_ATT1:")
    a("s_waitcnt lgkmcnt(0)")
    a(mf32(vr(S[0], 16), ar(aK, 4), vr(QA[0], 4), vr(NM[0], 16)))
    a(mf32(vr(S[0], 16), ar(aK+4, 4), vr(QA[0]+4, 4), vr(S[0], 16)))
    a("s_nop 11")
    a("L_ATT2:")
    a.stamp("att0")
    pk = [(f"buffer_load_dword v21, v17, {WS}, s31 offen sc1", "pKV")]
    ks = o.get("pk_slot", 0)
    sl = [[] for _ in range(14)]; sl[ks] = pk
    if o.get("fh_slot", 10) >= 0: sl[o.get("fh_slot", 10)] = [a.wait(["halo"])] + flag_store(30, 20, "fH")
    d0, d1, adv = kv_dma(1, 0, "c1a"), kv_dma(1, 1, "c1b"), kv_advance(2)
    c1s = [[d0[3]], [d0[4]], [(f"buffer_load_dword v21, v17, {WS}, s31 offen sc1", "pKV2")], [d1[0]], [d1[1], d1[2]], [d1[3]], [d1[4]]]
    def c1go():
        a.stamp("t01")
        a(d0[0])
        poll_check(a, "L_PKV", 21, 17, 31, "pKV", mask=1)
        a.stamp("pKV")
        a.emit(d0[1]); a.emit(d0[2])
    if o.get("c1early", 1):
        assert ks < 7
        fh = sl[o.get("fh_slot", 10)]
        tile(a, 0, sl[0:7]); c1go(); tile(a, 1, c1s); tile(a, 2, [[], [], [], fh])
    else:
        tile(a, 0, sl[0:7]); tile(a, 1, sl[7:14]); c1go(); tile(a, 2, c1s)
    for s in adv: a(s)
    a.stamp("t2")
    a(f"s_cmp_lg_u32 s{sPASS}, 0")
    a("s_cbranch_scc1 L_A4")
    if not o.get("p4early", 1): gate_compute(a)
    a("s_branch L_A5")
    a("L_A4:")
    a("s_waitcnt vmcnt(0)")
    a("L_A5:")
    a.emit(a.wait(["c1a"], lgkm=True))
    a("s_barrier")
    a.pkv2 = True
    a.stamp("c1")
    wob = [i for i in range(24)]
    obl = [i for i in range(64)]
    if o.get('noside', 0) & 1: wob = wob[:1]
    if o.get('noside', 0) & 2: obl = obl[:1]
    ob_start = o.get("ob_start", 6)
    obase = False
    for c in range(15):
        V = []; A = []
        side = []
        if c + 2 <= 15:
            d0, d1 = kv_dma(c % 2, 0, f"c{c+2}"), kv_dma(c % 2, 1, f"c{c+2}")
            kvs = [[x] for x in d0] + [[x] for x in d1] + ([[x] for x in kv_advance(c + 3)] if c + 3 <= 15 else [])
        else:
            kvs = []
        oth = []
        if c == 0:
            oth += [[(f"buffer_load_dword v21, v17, {WS}, s31 offen sc1", "pKV3")], [], [], [(f"buffer_load_dword v22, v18, {WS}, s33 offen sc1", "pH")]]
        if c == 3:
            oth += [[f"s_lshl_b32 s38, s{sSeq}, 7"], [f"s_lshl_b32 s39, s{sHead}, 2"], ["s_add_u32 s38, s38, s39"],
                    [f"s_add_u32 s35, s38, {F_OB}"], flag_store(35, 20, "fOB")]
        if c == ob_start - 2:
            oth += [[f"s_add_u32 s47, s29, {F_OB}"], [(f"buffer_load_dword v21, v16, {WS}, s47 offen sc1", "pOB")]]
        if c == o.get("cpf2", 11) or (o.get("cpfn") and c % o["cpfn"] == 2):
            oth += [[(f"buffer_load_dword v{vPFd}, v{vT[7]}, s[{sCode}:{sCode+3}], 0 offen", "cpf")]]
        nslots = 4*7 - 1 - (c == 0)
        if c >= ob_start:
            for _ in range(min(len(obl), o.get("ob_per", 8))):
                i = obl.pop(0)
                oth.append([(f"global_load_dwordx4 {oreg(i)}, v{vL16b if (i & 4) else vL16}, s[{sOg}:{sOg+1}] offset:{(i % 4)*1024} sc1", "obl")])
                if i % 8 == 7:
                    oth += [[f"s_add_u32 s{sOg}, s{sOg}, 8192"], [f"s_addc_u32 s{sOg+1}, s{sOg+1}, 0"]]
        wa0, wa1 = o.get("wam0", 1), o.get("wam1", 3)
        if c in (wa0, wa1):
            oth.insert(0, [(f"global_load_dword v{vPFd}, v25, s[{sPWoA}:{sPWoA+1}] offset:{1024*(c == wa1)}", "wopf")])
        wl = o.get("wol2", 6)
        if wl <= c < wl + 8:
            oth.append([(f"global_load_dword v{vPFd}, v0, s[{sPWoA}:{sPWoA+1}] offset:{((c - wl) & 1)*2048}", "wopf")] + (["v_add_u32 v0, 4096, v0"] if (c - wl) & 1 else []))
        wb0 = 11 if o.get("wbtail", 1) else 13
        if c in (wb0, wb0 + 1) and o.get("wbl2", 0):
            oth.append([(f"global_load_dword v{vPFd}, v15, s[{sPWoB}:{sPWoB+1}] offset:{(c - wb0)*2048}", "wopf")])
        if c == 14 and o.get("wbtail", 1): wob += list(range(24, 32))[:1 if o.get('noside', 0) & 1 else 8]
        while wob and (len(kvs) + len(oth) + 3 <= nslots or c == 14):
            i_ = wob.pop(0)
            oth += wob_dma(i_, f"wo{i_//8}")
        if o.get('noside', 0) & 4 and c >= 4: kvs = [g for g in kvs if not isinstance(g[0], tuple)] + [[kvs[1][0]]] if kvs else []
        if o.get('noside', 0) & 8 and c >= 4: kvs = [g for g in kvs if isinstance(g[0], tuple) or "m0" in g[0]]
        side = kvs + oth
        while len(side) > nslots:
            for k in range(len(side) - 1):
                if all(isinstance(x, str) and x.startswith("s_") and "m0" not in x for x in side[k]):
                    side[k+1] = side[k] + side[k+1]; side.pop(k); break
            else:
                raise Exception("slots")
        n = len(side)
        nv = sum(isinstance(x, tuple) for g in side for x in g)
        if n < nslots and nv >= o.get("spread", 1):
            sp = [[] for _ in range(nslots)]
            for k, g in enumerate(side): sp[k*nslots//n] = g
            side = sp
        if c == 0:
            poll_check(a, "L_PKV2", 21, 17, 31, "pKV2", mask=2)
        if c == 1:
            poll_check(a, "L_PKV3", 21, 17, 31, "pKV3", mask=0xffff)
            poll_check(a, "L_PH", 22, 18, 33, "pH")
            a(f"s_sub_u32 s38, s{sHalo}, 4096")
            a(f"s_cmp_eq_u32 s{sSeq}, 0")
            a(f"s_cselect_b32 s38, {OOB}, s38")
            a.emit((f"buffer_load_dwordx4 {vr(bK[0], 4)}, v{vL16}, {WS}, s38 offen sc1", "hl"))
            a.emit((f"buffer_load_dwordx2 {vr(bV[0], 2)}, v{vL16}, {WS}, s38 offen offset:1024 sc1", "hl"))
            a.emit((f"buffer_load_dwordx2 {vr(bV[1], 2)}, v{vL16}, {WS}, s38 offen offset:1032 sc1", "hl"))
        if c == 2:
            a(f"s_cmp_lg_u32 s{sPASS}, 0")
            a("s_cbranch_scc1 L_LOC0X")
            a(f"s_cmp_eq_u32 s{sSeq}, 0")
            a("s_cbranch_scc0 L_MASKOK")
            for i in range(4): a(f"v_mov_b32 v{vMc+i}, {NEGBIG}")
            a("L_MASKOK:")
            a(f"s_add_u32 s35, s{sOst}, {OB_OFF}")
            a(f"s_add_u32 s38, s{sOst}, {OB_OFF + 65536}")
            local16(a, [(0, 96, 104, 108, 23)], fill1=[ob_store(1, 40), ob_store(2, 48)], fill2=[ob_store(3, 56)])
            a.emit(ob_store(0, 108))
            a("L_LOC0X:")
            a.stamp("loc0")
        if c == ob_start - 1:
            poll_check(a, "L_POB", 21, 16, 47, "pOB")
        tile(a, 4*c + 3, side)
        tile(a, 4*c + 4, side, end_b=[a.wait(["c1b"]), "s_barrier"] if c == 0 else None)
        tile(a, 4*c + 5, side)
        tile(a, 4*c + 6, side, end_b=[a.wait([f"c{c+2}"], lgkm=True) if c + 2 <= 15 else a.wait(["wo0", "obl"], lgkm=True), "s_barrier"])
        assert not side
        if c in (4, 9): a.stamp(f"c{c}")
        if c == 7:
            for _ in range(o.get("idle_att", 0)): a("s_nop 15")
    assert not wob and not obl, (wob, obl)
    r0 = p4_reads(0) + p4_reads(1)
    tile(a, 63, [r0[0:2], r0[2:4], r0[4:6], r0[6:8], r0[8:10], r0[10:13], r0[13:16]])
    a(f"s_add_u32 s36, s{sOst}, {OA_OFF}")
    a(f"s_add_u32 s37, s{sOst}, {OA_OFF + 65536}")
    a(mf32(ar(aO[1], 16), ar(aV[1], 4), vr(P[1], 4), ar(aO[1], 16)))
    a(smf(1))
    a(mf32(ar(aO[1], 16), ar(aV[1]+4, 4), vr(P[1]+4, 4), ar(aO[1], 16)))
    a.stamp("attend")
    F = L()
    F(f"v_accvgpr_read_b32 v19, a{aL[0]}")
    F(f"v_accvgpr_read_b32 v21, a{aL[0]+1}")
    for i in range(16): F(f"v_accvgpr_read_b32 v{S[0]+i}, a{aO[0]+i}")
    F("v_add_f32 v19, v19, v21")
    F(f"v_accvgpr_read_b32 v20, a{aL[1]}")
    F("v_rcp_f32 v23, v19")
    F(f"v_accvgpr_read_b32 v21, a{aL[1]+1}")
    F("v_add_f32 v20, v20, v21")
    for i in range(16): F(f"v_mul_f32 v{S[0]+i}, v{S[0]+i}, v23")
    F += pko(S[0])
    F("v_rcp_f32 v24, v20")
    F((f"buffer_store_dwordx4 {vr(S[0], 4)}, v{vL16}, {WS}, s36 offen sc1", "oa"))
    F((f"buffer_store_dwordx4 {vr(S[0]+4, 4)}, v{vL16}, {WS}, s36 offen offset:1024 sc1", "oa"))
    for i in range(16): F(f"v_accvgpr_read_b32 v{S[1]+i}, a{aO[1]+i}")
    for i in range(16): F(f"v_mul_f32 v{S[1]+i}, v{S[1]+i}, v24")
    F += pko(S[1])
    F(f"s_mov_b32 s36, {f2u(2.0**64)}")
    F((f"buffer_store_dwordx4 {vr(S[1], 4)}, v{vL16}, {WS}, s37 offen sc1", "oa"))
    F((f"buffer_store_dwordx4 {vr(S[1]+4, 4)}, v{vL16}, {WS}, s37 offen offset:1024 sc1", "oa"))
    F("v_mov_b32 v21, 0")
    for q in range(2):
        for j in range(8): F(f"v_dot2_f32_bf16 v{19+q}, v{S[q]+j}, v21, v{19+q}")
    F("s_nop 2")
    F("v_cmp_nge_f32 s[56:57], s36, v19")
    F("v_cmp_nge_f32 vcc, s36, v20")
    F(f"s_lshl_b32 s37, s{sW}, 2")
    F(f"s_add_u32 s37, s37, {XCH}")
    F("v_mov_b32 v22, s37")
    F("s_nop 1")
    F("s_or_b64 vcc, vcc, s[56:57]")
    if o.get("force_fallback"): F("s_mov_b64 vcc, -1")
    F(f"s_cmp_lg_u64 vcc, 0\ns_cselect_b32 s36, 1, 0\ns_andn2_b32 s36, s36, s{sPASS}")
    F("v_mov_b32 v21, s36")
    F("ds_write_b32 v22, v21")
    F(f"v_mov_b32 v22, {XCH}")
    a.fin = F
    b = Asm()
    b("L_FALLBACK:")
    b(f"s_mov_b32 s{sPASS}, 1")
    b("s_waitcnt lgkmcnt(0)")
    b("v_mov_b32 v19, 0xff800000")
    b("v_mov_b32 v20, 0xff800000")
    b(f"s_lshl_b32 s38, s{sHP}, 19")
    b(f"s_lshl_b32 s39, s{sHH}, 14")
    b("s_add_u32 s38, s38, s39")
    b("s_mov_b32 s39, 0")
    b("L_FB:")
    b("s_and_b32 s36, s39, 3")
    b("s_lshl_b32 s36, s36, 12")
    b("s_lshr_b32 s37, s39, 2")
    b("s_lshl_b32 s37, s37, 15")
    b("s_add_u32 s36, s36, s37")
    b("s_add_u32 s36, s36, s38")
    b(f"buffer_load_dwordx4 {ar(aK, 4)}, v{vL16}, {WS}, s36 offen sc1")
    b(f"buffer_load_dwordx4 {ar(aK+4, 4)}, v{vL16}, {WS}, s36 offen offset:1024 sc1")
    b("s_waitcnt vmcnt(0)")
    for q in range(2): b(mf32(vr(S[q], 16), ar(aK, 4), vr(QA[q], 4), 0))
    for q in range(2): b(mf32(vr(S[q], 16), ar(aK+4, 4), vr(QA[q]+4, 4), vr(S[q], 16)))
    b("s_nop 11")
    for q in range(2):
        for i in range(0, 16, 2): b(f"v_max3_f32 v{19+q}, v{19+q}, v{S[q]+i}, v{S[q]+i+1}")
    b("s_add_u32 s39, s39, 1")
    b("s_cmp_lt_u32 s39, 64")
    b("s_cbranch_scc1 L_FB")
    neg_max(b)
    for s in sel_init(23, 24): b(s)
    b(f"s_lshl_b32 s36, s{sT}, 15")
    b(f"s_add_u32 s{sKVg}, s{sKVp}, s36")
    b(f"s_addc_u32 s{sKVg+1}, s{sKVp+1}, 0")
    b(f"s_add_u32 s36, s{sOrow}, {OB_OFF}")
    b(f"s_add_u32 s{sOg}, s54, s36")
    b(f"s_addc_u32 s{sOg+1}, s55, 0")
    b("v_add_u32 v0, -16384, v0")
    b("s_barrier")
    for g in range(2):
        for k_, s in enumerate(kv_dma(0, g, "")):
            b(s[0] if isinstance(s, tuple) else s)
            if k_ == 0: b("s_nop 0")
    b("s_waitcnt vmcnt(0)")
    b("s_barrier")
    b("s_branch L_ATT0")
    a.tail.append(b.text())

def fW4(G, nt, n=4, d=0):
    fs = G % 3
    return vr(32 + fs*16 + nt*4 + d, n) if fs < 2 else ar(nt*4 + d, n)
def p4_lds(g):
    return g*32768 if g < 4 else [131072, 0, 32768, 65536][g - 4]
def p4_reads(G):
    out = []
    base = p4_lds(G // 8)
    for nt in range(4):
        off = base % 65536 + (G % 8)*4096
        out.append(f"ds_read_b64_tr_b16 {fW4(G, nt, 2)}, v{vWo_r[nt]} offset:{off}")
        out.append(f"ds_read_b64_tr_b16 {fW4(G, nt, 2, 2)}, v{vWo_r[nt]} offset:{off + (2048 if G < 32 else 1024)}")
    return out
def woa_dma(g, i):
    pos = (g - 4)*8 + i
    return [[f"s_add_u32 s39, s{sWooff}, {pos*65536}", "s_and_b32 s39, s39, 0x1fffff", f"s_add_u32 m0, s{sWv}, {p4_lds(g) + i*4096}"],
            [(f"buffer_load_dwordx4 v{vWo_gA}, s[{sWoA}:{sWoA+3}], s39 offen lds", f"wo{g}")]]
def oa_load(i):
    out = [(f"global_load_dwordx4 {oreg(i)}, v{vL16b if (i & 4) else vL16}, s[{sOg}:{sOg+1}] offset:{(i % 4)*1024} sc1", f"oa{i}")]
    return out
def oa_next():
    return [f"s_add_u32 s{sOoff}, s{sOoff}, 8192", f"s_and_b32 s{sOoff}, s{sOoff}, 0xffff",
            f"s_add_u32 s{sOg}, s{sKVg}, s{sOoff}\ns_addc_u32 s{sOg+1}, s{sKVg+1}, 0"]

def phase4(a):
    o = a.opts
    flag_at = o.get("oaflag_gap", 40)
    poll_at = o.get("oapoll_gap", 84)
    chk_at = o.get("oachk_gap", 96)
    side = {}
    def put(k, l): side.setdefault(k, []).extend(l)
    F = list(a.fin)
    if o.get("finfirst", 0):
        n_ = max(i for i, x in enumerate(F) if isinstance(x, tuple)) + 1
        for x in F[:n_]: a.emit(x)
        F = F[n_:]
    k = 0
    while F:
        n_ = 2 if o.get("finfirst", 0) else (6 if len(F) > 5*(23 - k) - 5 else 5)
        put(k, F[:n_]); F = F[n_:]; k += 1
    assert k <= 23, k
    put(37, [f"s_add_u32 s38, s{sOrow}, {OA_OFF}", f"s_add_u32 s{sKVg}, s54, s38\ns_addc_u32 s{sKVg+1}, s55, 0"])
    put(38, [f"s_add_u32 s{sOg}, s{sKVg}, s{sOoff}\ns_addc_u32 s{sOg+1}, s{sKVg+1}, 0"])
    pre = [f"s_lshl_b32 s38, s{sSeq}, 7",
           f"s_lshl_b32 s47, s{sHead}, 2", "s_add_u32 s38, s38, s47", f"s_add_u32 s35, s38, {F_OA}", f"s_add_u32 s47, s29, {F_OA}",
           f"s_lshl_b32 s36, s{sT4}, 9", f"s_lshl_b32 s37, s{sW}, 7", "s_add_u32 s36, s36, s37", f"s_add_u32 s36, s36, {G_OFF}",
           f"v_and_b32 v24, 60, v16",
           (f"buffer_load_dword v{vG2[0]}, v24, {WS}, s36 offen sc1", "gl"), (f"buffer_load_dword v{vG2[1]}, v24, {WS}, s36 offen offset:64 sc1", "gl")]
    put(24, ["ds_read_b128 v[20:23], v22"])
    for i, x in enumerate(pre): put(25 + i//2, [x])
    put(32, ["v_or_b32 v20, v20, v21", "v_or3_b32 v20, v20, v22, v23"])
    put(33, ["v_readfirstlane_b32 s38, v20"])
    put(35, ["s_cmp_lg_u32 s38, 0\ns_cbranch_scc1 L_FALLBACK"])
    assert flag_at > 35
    put(flag_at, [a.wait(["oa"])]); put(flag_at + 1, flag_store(35, 20, "fOA"))
    put(poll_at, [(f"buffer_load_dword v21, v16, {WS}, s47 offen sc1", "pOA")])
    for k_, x in enumerate([f"v_bfe_u32 v22, v{vLANE}, 2, 2", f"v_lshrrev_b32 v23, 5, v{vLANE}", "v_lshl_add_u32 v22, v23, 2, v22", f"v_and_b32 v23, 16, v{vLANE}",
                            "v_add_u32 v22, v22, v23", "v_lshlrev_b32 v22, 7, v22", "v_lshl_add_u32 v22, v23, 2, v22", f"v_and_b32 v23, 8, v{vLANE}",
                            "v_lshl_add_u32 v22, v23, 2, v22", f"v_and_b32 v23, 3, v{vLANE}", "v_lshl_add_u32 v22, v23, 3, v22", "v_add_u32 v22, 131072, v22"]):
        put(100 + k_, [x])
    put(130, [f"v_sub_f32 v{vOM[0]}, 1.0, v{vG2[0]}", f"v_sub_f32 v{vOM[1]}, 1.0, v{vG2[1]}"])
    put(131, [f"v_and_b32 v19, 15, v{vLANE}", f"v_lshrrev_b32 v20, 4, v{vLANE}"])
    put(132, ["v_lshlrev_b32 v20, 4, v20", "v_lshl_add_u32 v19, v19, 11, v20"])
    if o.get("ldsout", 1):
        side[131] = []; side[132] = []
        put(200, [f"s_mul_i32 s38, s{sW}, 4608", f"v_and_b32 v20, 15, v{vLANE}"]); put(201, ["s_add_u32 s38, s38, 131072", "v_mul_u32_u24 v20, 144, v20"])
        put(202, [f"v_lshrrev_b32 v21, 4, v{vLANE}", "v_lshl_add_u32 v20, v21, 3, v20"]); put(203, ["v_add_u32 v20, s38, v20", f"v_lshrrev_b32 v22, 3, v{vLANE}"])
        put(204, [f"v_and_b32 v19, 7, v{vLANE}", "v_lshlrev_b32 v19, 4, v19"]); put(205, ["v_mul_u32_u24 v21, 144, v22", "v_add3_u32 v21, v21, v19, s38"])
        put(206, ["v_lshl_add_u32 v19, v22, 11, v19", "v_add_u32 v22, 16384, v19"])
    elif o.get("r128", 0):
        put(133, [f"v_and_b32 v20, 8, v{vLANE}", f"v_mul_u32_u24 v20, {2048 - 8}, v20"])
        put(152, ["v_sub_u32 v19, v19, v20", "v_add_u32 v20, 16384, v19"])
    for i in range(32): put(134 + i//2, [f"v_mul_f32 v{ACC4[0][i//16] + i%16}, v{ACC4[0][i//16] + i%16}, v{vOM[i//16]}"])
    put(248, [f"s_lshl_b32 s36, s{sT4}, 18", f"s_lshl_b32 s37, s{sW}, 16"]); put(249, ["s_add_u32 s36, s36, s37", f"s_lshl_b32 s37, s{sC4}, 7"])
    put(250, ["s_add_u32 s36, s36, s37"]); put(251, ["s_add_u32 s37, s36, 32768"])
    a("s_waitcnt lgkmcnt(0)")
    lat = o.get("p4lat", 20)
    jobs = [] if o.get("wbtail", 1) else [[26, 32*2 + 23 - lat, "wb", i] for i in range(24, 32)]
    for g in range(4, 8):
        e = {4: 0, 5: 26, 6: 57, 7: 89}[g]
        jobs += [[{4: 57, 5: 57, 6: 89, 7: 121}[g] if i == 7 else e, 32*(g - 1) + 23 - lat, "wa", (g, i)] for i in range(8)]
    jobs += [[max(chk_at + 1, 2*i + 2), 128 + 4*(i//2) - lat, "oa", i] for i in range(64)]
    gap = o.get("p4gap100", 200)/100
    t = float(o.get('wb_at', 19))
    quiet = range(poll_at - o.get("p4quiet", 4), poll_at + 1)
    while jobs:
        k = int(t)
        av = [j for j in jobs if j[0] <= k]
        if not av or k in quiet:
            t = k + 1; continue
        j = min(av, key=lambda j: j[1])
        jobs.remove(j)
        if j[2] == "wb":
            d = wob_dma(j[3], "wo3"); put(k - 1, d[0] + d[1]); put(k, d[2])
        elif j[2] == "wa":
            d = woa_dma(*j[3]); put(k - 1, d[0]); put(k, d[1])
        else:
            put(k, oa_load(j[3]))
            if j[3] % 8 == 7 and j[3] < 63: put(k + 1, oa_next())
        if k > j[1] + 8: print("p4 late", j, k)
        t += gap
    ds = []
    def lg(tags):
        k_ = max([i for i, t_ in enumerate(ds) if t_ in tags], default=-1)
        return min(len(ds) - 1 - k_, 15)
    for G in range(64):
        br = G // 32
        rd = p4_reads(G + 2) if G + 2 < 64 else []
        mv = []
        if G + 3 < 64:
            dlt = (p4_lds((G + 3)//8)//65536 - p4_lds((G + 2)//8)//65536)*65536
            if dlt: mv = [f"v_add_u32 v{vWo_r[nt]}, {dlt}, v{vWo_r[nt]}" for nt in range(4)]
            if G + 3 == 32: mv = [f"v_xor_b32 v{vWo_r[nt]}, {32*nt}, v22" for nt in range(4)]
        order = [(nt, mt) for nt in range(4) for mt in range(2)]
        if G == 62: break
        for j in range(8):
            idx = 4*G + j//2
            nt, mt = order[j]
            d = vr(ACC4[br][mt] + nt*4, 4)
            a(mf16(d, fW4(G, nt), oreg((G % 32)*2 + mt), 0 if G % 32 == 0 else d))
            sd = side.get(idx, [])
            if j % 2 == 0:
                for s in [x for x in sd if isinstance(x, str) and x.startswith("ds_read")]:
                    a(s); ds.append("xr")
                sd = [x for x in sd if not (isinstance(x, str) and x.startswith("ds_read"))]
                now, side[idx] = sd[:len(sd)//2], sd[len(sd)//2:]
            else:
                now = side.pop(idx, [])
            if rd:
                a(rd[j]); ds.append(G + 2)
                if mv and j % 2 == 1: a(mv[j//2])
            for s in now:
                a.emit(s)
                if isinstance(s, str) and s.startswith("ds_write"): ds.append("xw")
            if j % 2 == 1:
                if idx == flag_at + 1: a.stamp("fOA")
                if idx == chk_at:
                    poll_check(a, "L_POA", 21, 16, 47, "pOA")
                    a.stamp("pOA")
        if G == 63: break
        w = ""
        need = []
        if G == 61: continue
        if G + 1 >= 32: need.append(f"oa{((G + 1) % 32)*2 + 1}")
        bar = G % 8 == 5 and G // 8 < 7
        if bar and f"wo{G//8 + 1}" in a.vm: need.append(f"wo{G//8 + 1}")
        if need: w += f" vmcnt({a.vmn(need)})"
        if G + 1 >= 2: w += f" lgkmcnt({lg([G + 1, 'xw'])})"
        if w: a("s_waitcnt" + w)
        if bar: a("s_barrier")
        if G == 31: a.stamp("p4B")
    def epi(mt):
        B_, A_ = ACC4[0][mt], ACC4[1][mt]
        fl = ['', 'sc1', 'nt', 'sc0 sc1', 'sc1 nt'][o.get('outflag', 1)]
        l = [f"v_fma_f32 v{B_+i}, v{A_+i}, v{vG2[mt]}, v{B_+i}" for i in range(16)] + packl(B_)
        if o.get("ldsout", 1):
            return l + [f"ds_write_b64 v20, {vr(B_+2*nt, 2)} offset:{mt*16*144 + 32*nt}" for nt in range(4)]
        l += ["s_nop 0"]
        l += [f"v_permlane32_swap_b32 v{B_+x}, v{B_+y}" for x, y in ((0, 2), (1, 3), (4, 6), (5, 7))]
        l += [f"v_permlane16_swap_b32 v{B_+x}, v{B_+y}" for x, y in ((0, 2), (1, 3), (4, 6), (5, 7))]
        if o.get("r128", 0):
            l += [f"v_mov_b32 v{B_+8+i}, v{B_+i}" for i in range(4)]
            l += [f"v_mov_b32_dpp v{B_+i}, v{B_+4+i} row_ror:8 row_mask:0xf bank_mask:0xc" for i in range(4)]
            l += [f"v_mov_b32_dpp v{B_+4+i}, v{B_+8+i} row_ror:8 row_mask:0xf bank_mask:0x3" for i in range(4)]
            l += [(f"buffer_store_dwordx4 {vr(B_+4*k, 4)}, v{19+k}, s[{sOutD}:{sOutD+3}], s{36+mt} offen {fl}", "out") for k in range(2)]
            return l
        l += [(f"buffer_store_dwordx4 {vr(B_+4*k, 4)}, v19, s[{sOutD}:{sOutD+3}], s{36+mt} offen offset:{64*k} {fl}", "out") for k in range(2)]
        return l
    rest = [x for k_ in sorted(side) for x in side[k_]]
    a(f"s_waitcnt vmcnt({a.vmn(['oa63'])}) lgkmcnt(0)")
    for G in (62, 63):
        for nt in range(4):
            d = vr(ACC4[1][0] + nt*4, 4)
            a(mf16(d, fW4(G, nt), oreg((G % 32)*2), d))
            if rest: a.emit(rest.pop(0))
    assert not rest
    e0 = epi(0)
    for k_, (G, nt) in enumerate([(G, nt) for G in (62, 63) for nt in range(4)]):
        d = vr(ACC4[1][1] + nt*4, 4)
        a(mf16(d, fW4(G, nt), oreg((G % 32)*2 + 1), d))
        if k_ >= 2:
            a(e0.pop(0)); a(e0.pop(0))
        else:
            a("s_nop 1")
    a.stamp("p4A")
    if not o.get("ldsout", 1):
        for x in e0 + epi(1): a.emit(x)
        return
    for x in e0: a.emit(x)
    e1_ = epi(1)
    fl = ['', 'sc1', 'nt', 'sc0 sc1', 'sc1 nt'][o.get('outflag', 1)]
    T = ACC4[1][0]
    def rds(mt): return [f"ds_read_b128 {vr(T + 8*mt + 4*k, 4)}, v21 offset:{(16*mt + 8*k)*144}" for k in range(2)]
    def sts(mt): return [(f"buffer_store_dwordx4 {vr(T + 8*mt + 4*k, 4)}, v{19 if k == 0 else 22}, s[{sOutD}:{sOutD+3}], s{36+mt} offen {fl}", "out") for k in range(2)]
    for x in rds(0): a(x)
    for x in e1_[:24]: a(x)
    a("s_waitcnt lgkmcnt(0)")
    for x in e1_[24:] + rds(1): a(x)
    for x in sts(0): a.emit(x)
    a("s_waitcnt lgkmcnt(0)")
    for x in sts(1): a.emit(x)

def gen(opts):
    a = G(opts); a.tail = []
    setup(a); gemm1(a); e1(a); attention(a); phase4(a)
    if opts.get("diag") is not None:
        a.stamp("end")
        a("s_nop 1")
        a(f"v_readlane_b32 s36, v{vSTAMP}, {32 + opts['diag']}")
        a("s_nop 3")
        a("s_add_u32 s36, s36, 10000")
        if opts.get("diagwg") is not None:
            a(f"s_cmp_lg_u32 s2, {opts['diagwg']}")
            a("s_cbranch_scc1 L_END")
        a("L_DIAG:")
        a("s_memrealtime s[38:39]")
        a("s_waitcnt lgkmcnt(0)")
        a("s_sub_u32 s38, s38, s36")
        a("s_cmp_lt_i32 s38, 0")
        a("s_cbranch_scc1 L_DIAG")
    elif opts.get("dbgstamp"):
        a.stamp("end")
        sel = ["karg", "first", "g7", "g15", "g23", "g31", "loc1", "pKV", "c1", "c9", "attend", "pOA", "p4B", "p4A", "end"]
        a(f"s_cmp_lg_u32 s2, {opts['dbgstamp']-1}")
        a("s_cbranch_scc1 L_DBGX")
        a(f"s_cmp_lg_u32 s{sW}, 0")
        a("s_cbranch_scc1 L_DBGX")
        a(f"v_readlane_b32 s36, v{vSTAMP}, 32")
        for i, nm in enumerate(sel):
            a(f"v_readlane_b32 s37, v{vSTAMP}, {32 + a.names.index(nm)}")
            a("s_nop 3")
            a("s_sub_u32 s37, s37, s36")
            a("v_mov_b32 v2, s37")
            a("v_mov_b32 v3, 0")
            a(f"global_store_dword v3, v2, s[{sPDbg}:{sPDbg+1}] offset:{4*(i+1)}")
        a("L_DBGX:")
    elif opts.get("stamp"):
        a.stamp("end")
        a("s_lshl_b32 s36, s2, 2")
        a(f"s_add_u32 s36, s36, s{sW}")
        a("s_lshl_b32 s36, s36, 8")
        a(f"s_add_u32 s36, s36, {STAMP_OFF}")
        a(f"v_lshlrev_b32 v2, 2, v{vLANE}")
        a(f"buffer_store_dword v{vSTAMP}, v2, {WS}, s36 offen")
    a("s_endpgm")
    for t in a.tail: a(t)
    head = f"""; out = g*(MHA(x) Wo_A) + (1-g)*(dilated-window attention(x) Wo_B), one fused kernel, 256 co-resident workgroups (1 per CU).
; kernarg: A_x 0, A_wqkv 8, A_wo 16, B_x 24 (unused by the reference), B_wqkv 32, B_wo 40, gate_w 48, out 56, debug 64, ws 72
; workgroup (head pair hp, 128-row tile t), wave (row half, head):
;   1. q,k,v of both branches (LDS-DMA rings, 16x16x32 MFMA); K_A/V_A finish first and are published to ws (sc1) with flags
;   2. window attention (true max), full attention over all 16 K/V chunks: exp2(s - m), m = row max of the first key tile;
;      a run-time check (row sum <= 2^64, finite outputs) reruns the workgroup with the true row max otherwise
; hand-offs: data (sc1) -> s_waitcnt -> flag word = launch nonce (published through d_debug[0]); consumers poll, then load sc1
; @launch grid=(256,1,1) block=(256,1,1) lds=163840
.amdgcn_target "amdgcn-amd-amdhsa--gfx950"
.text
.globl {KNAME}
.p2align 8
.type {KNAME},@function
{KNAME}:
"""
    tail = f"""L_END:
    s_endpgm
.section .rodata,"a"
.p2align 6
.amdhsa_kernel {KNAME}
  .amdhsa_next_free_vgpr 512
  .amdhsa_next_free_sgpr 102
  .amdhsa_accum_offset 256
  .amdhsa_group_segment_fixed_size 0
  .amdhsa_kernarg_size 80
  .amdhsa_user_sgpr_count 2
  .amdhsa_user_sgpr_kernarg_segment_ptr 1
  .amdhsa_system_sgpr_workgroup_id_x 1
.end_amdhsa_kernel
"""
    gen.names = a.names
    return head + a.text() + tail

if __name__ == "__main__":
    import hazard
    opts = {}
    for kv in sys.argv[2:]:
        k, v = kv.split("="); opts[k] = int(v)
    t = gen(opts)
    open(sys.argv[1], "w").write(t)
    print(len(hazard.check(t)), "hazards", gen.names)
```

```python
import sys, struct, math
from asmlib import *

KNAME = "gated_mix__softmax_full_mha__sliding_local_dilated__prompt_kernel"
def f2u(x): return struct.unpack("<I", struct.pack("<f", x))[0]
KV_OFF   = 0
OA_OFF   = 8 << 20
OB_OFF   = 12 << 20
HALO_OFF = 16 << 20
G_OFF    = 20 << 20
FLAG_OFF = 21 << 20
F_KV, F_H, F_OB, F_OA = FLAG_OFF, FLAG_OFF + 4096, FLAG_OFF + 8192, FLAG_OFF + 12288
STAMP_OFF = 0x8000000
OOB = 0x80000000
CSCALE = f2u(math.log2(math.e) / math.sqrt(32.0))
NEGBIG = f2u(-1e30)
X_SLOT = 16384; W_BASE = 49152; W_SLOT = 24576
KV_LDS = [98304, 131072]
XCH = 163840 - 16
sX, sWA, sWB, sWS = 4, 8, 12, 16
sW, sHP, sT, sRH, sHH = 20, 21, 22, 23, 24
sWoff, sXoff = 25, 26
sXw, sWv = 30, 34
sPF, sPFstr = 44, 46
sNONCE, sCS = 60, 61
sSTAMPI = 68
sPWoA, sPWoB, sPG, sPOut, sPDbg = 70, 72, 74, 76, 78
sKVsrc, sKVbase, sKVt, sKVdst = 80, 81, 82, 27
sPASS, sOst, sSpin = 83, 86, 87
sT4, sC4, sOoff, sWooff, sObase = 88, 89, 90, 91, 92
sHalo, sSeq, sO, sOrow, sHead = 93, 94, 95, 96, 97
sWoA, sWoB, sOutD = 4, 8, 12
sCode = 40
pX, pWA, pWB = 48, 50, 52
vLANE = 1
vXr = [2, 3]; vWr = [[4, 5], [10, 11]]; vWg = [12, 13, 14]; vXg = [15, 16, 17, 18]
vT = [19, 20, 21, 22, 23, 24, 25, 26]
vPF, vPFd, vL16, vSTAMP, vF0 = 27, 28, 29, 30, 31
vMc = 32
ACC0 = 64
def acc(blk, rt): return ACC0 + (blk*2 + rt)*16
QA = [64, 80]; KA = [96, 112]; VA = [128, 144]; QB = [160, 176]; KB = [192, 208]; VB = [224, 240]
NM = [128, 144]; S = [176, 240]; P = [72, 88]
vKV = [6, 7]
vWo_g = 2; vWo_r = [3, 4, 10, 11]; vG2 = [12, 13]; vOM = [14, 8]
vGate, vGrow = 14, 8
bQ = [160, 164, 168, 172]; bK = [208, 192, 196, 200, 204]; bV = [212, 224]
vWo_gA = 15
def fX(s, rt): return s*32 + rt*4
def fW(s, blk): return s*32 + 8 + blk*4
aK, aV = 0, [8, 16]
aO = [32, 48]; aL = [64, 68]; aONE = 112
aGATE = 80
aX = [0, 16]; aW = [32, 56]; vKS, vKL = 56, 57
aSEL = 72; vIDX = 9
OV = list(range(96, 128, 4)) + list(range(160, 176, 4)) + list(range(192, 240, 4))
def oreg(i): return ar(76 + 4*i, 4) if i < 45 else vr(OV[i - 45], 4)
ACC4 = [[128, 144], [64, 80]]
pKA = [96, 112]; pVA = [104, 120]; pQB = [160, 168]; pKB = [192, 208]; pVB = [224, 216]

def mf32(d, A, B, C): return f"v_mfma_f32_32x32x16_bf16 {d}, {A}, {B}, {C}"
def mf16(d, A, B, C): return f"v_mfma_f32_16x16x32_bf16 {d}, {A}, {B}, {C}"
WS = f"s[{sWS}:{sWS+3}]"

class G(Asm):
    def __init__(self, opts):
        super().__init__()
        self.opts = opts
        self.vm = []
        self.nstamp = 0
        self.names = []
    def emit(self, x):
        if callable(x): x = x()
        if x is None: return
        if isinstance(x, tuple):
            self(x[0]); self.vm.append(x[1])
        else:
            assert not (x.lstrip().startswith(("buffer_", "global_"))), x
            self(x)
    def vmn(self, tags):
        idx = [i for i, t in enumerate(self.vm) if t in tags]
        assert idx, tags
        n = len(self.vm) - 1 - max(idx)
        return min(n, 63)
    def wait(self, tags, lgkm=False):
        return lambda: f"s_waitcnt vmcnt({self.vmn(tags)})" + (" lgkmcnt(0)" if lgkm else "")
    def stamp(self, name):
        j = self.opts.get("jitter")
        if j and name in ("first", "gP", "g31", "loc1", "fKV", "att0", "t01", "c1", "loc0", "c4", "c9", "attend", "fOA", "p4B"):
            self.nj = getattr(self, "nj", 0) + 1
            self(f"s_cselect_b32 s65, 1, 0\ns_lshl2_add_u32 s64, s2, s{sW}\ns_mul_i32 s64, s64, {(self.nj*40503 + j*9973) | 1}\ns_lshr_b32 s64, s64, 7\ns_and_b32 s64, s64, {[7, 3, 15][j % 3]}")
            self(f"s_cmp_lg_u32 s64, 0\ns_cbranch_scc1 L_J{self.nj}\ns_sleep {40 + 25*(self.nj % 4)}\ns_sleep 60\nL_J{self.nj}:\ns_cmp_lg_u32 s65, 0")
        if not self.opts.get("stamp"): return
        if self.opts["stamp"] == 2 and name not in ("start", "g31", "c1", "attend", "end", "gP", "c4"): return
        self.names.append(name)
        a = self
        a("s_memtime s[66:67]")
        a("s_memrealtime s[64:65]")
        a("s_waitcnt lgkmcnt(0)")
        a(f"v_writelane_b32 v{vSTAMP}, s66, {self.nstamp}")
        a(f"v_writelane_b32 v{vSTAMP}, s64, {self.nstamp + 32}")
        self.nstamp += 1
        assert self.nstamp <= 32
    def inter(self, mains, sides):
        for i, m in enumerate(mains):
            if m is not None: self.emit(m)
            for s in sides.get(i, []): self.emit(s)

def srd(a, s, lo, hi, nbytes):
    a(f"s_mov_b32 s{s}, s{lo}")
    a(f"s_and_b32 s{s+1}, s{hi}, 0xffff")
    a(f"s_mov_b32 s{s+2}, {nbytes}")
    a(f"s_mov_b32 s{s+3}, 0x20000")

def pf_round(a):
    return [(f"global_load_dword v{vPFd}, v{vPF}, s[{sPF}:{sPF+1}]", "pf"),
            f"v_add_u32 v{vPF}, s{sPFstr}, v{vPF}"]

class P1:
    def __init__(self, a):
        self.a = a; self.wnext = [0]*6; self.xnext = [0]*4
    def dma(self, piece):
        kind, j, p = piece
        if kind == "W":
            assert self.wnext[p] == j and (p < 3 or self.wnext[p - 3] == j + 1) and (p >= 3 or self.wnext[p + 3] == j)
            self.wnext[p] += 1
            s = pWA if p < 3 else pWB
            return ([f"s_add_u32 m0, s{sWv}, {W_BASE + (j % 4)*W_SLOT + p*4096}"],
                    (f"global_load_lds_dwordx4 v{vWg[p % 3]}, s[{s}:{s+1}] {['', 'sc1', 'sc0', 'sc0 sc1'][self.a.opts.get('dmafl', 0)]}", f"W{j}"),
                    [f"v_add_u32 v{vWg[p % 3]}, 196608, v{vWg[p % 3]}"] if p >= 3 else [])
        assert self.xnext[p] == j
        self.xnext[p] += 1
        return ([f"s_add_u32 m0, s{sXw}, {(j % 3)*X_SLOT + p*1024}"],
                (f"global_load_lds_dwordx4 v{vXg[p]}, s[{pX}:{pX+1}] {['', 'sc1', 'sc0', 'sc0 sc1'][self.a.opts.get('dmafl', 0)]}", f"X{j}"),
                [f"v_add_u32 v{vXg[p]}, 128, v{vXg[p]}"])

def x_reads(xs, u):
    return [f"ds_read_b128 {ar(aX[xs] + mt*4, 4)}, v{vXr[u & 1]} offset:{((u >> 1) % 3)*X_SLOT + mt*2048}" for mt in range(4)]
def w_reads(ws_, u, blks):
    out = []
    sl = u % 4
    for i, blk in enumerate(blks):
        for nt in range(2):
            off = (sl % 2)*W_SLOT + blk*4096
            r = aW[ws_] + (i*2 + nt)*4
            out.append(f"ds_read_b64_tr_b16 {ar(r, 2)}, v{vWr[sl//2][nt]} offset:{off}")
            out.append(f"ds_read_b64_tr_b16 {ar(r + 2, 2)}, v{vWr[sl//2][nt]} offset:{off+512}")
    return out
def g1_mfmas(xs, ws_, blks, mts=(0, 1, 2, 3), first=False):
    out = {}
    for i, blk in enumerate(blks):
        for nt in range(2):
            for mt in mts:
                w, x = ar(aW[ws_] + (i*2 + nt)*4, 4), ar(aX[xs] + mt*4, 4)
                t_ = ((mt & 1)*2 + nt) if blk in (2, 3, 4) else (nt*2 + (mt & 1))
                d = vr(acc(blk, mt >> 1) + t_*4, 4)
                out[(i, nt, mt)] = mf16(d, x, w, 0 if first else d) if blk % 3 == 2 else mf16(d, w, x, 0 if first else d)
    return out

def setup(a):
    o = a.opts
    a("L_START:")
    a("s_cmp_ge_u32 s2, 256")
    a("s_cbranch_scc1 L_END")
    if o.get("xorid"): a(f"s_xor_b32 s2, s2, {o['xorid']}")
    if o.get("mulid"): a(f"s_mul_i32 s2, s2, {o['mulid']}\ns_and_b32 s2, s2, 255")
    a.stamp("start")
    a("s_load_dwordx4 s[48:51], s[0:1], 0")
    a("s_load_dwordx2 s[52:53], s[0:1], 32")
    a("s_load_dwordx2 s[54:55], s[0:1], 72")
    a(f"s_load_dwordx2 s[{sPWoA}:{sPWoA+1}], s[0:1], 16")
    a(f"s_load_dwordx4 s[{sPWoB}:{sPWoB+3}], s[0:1], 40")
    a(f"s_load_dwordx4 s[{sPOut}:{sPOut+3}], s[0:1], 56")
    if o.get("cpf0", 1):
        n = o.get('codelines', 20)
        a("s_getpc_b64 s[56:57]")
        a("L_PC0:")
        a("s_lshr_b32 s35, s2, 3")
        a(f"s_mul_i32 s35, s35, {n}")
        a(f"v_min_u32 v2, {n-1}, v0")
        a("v_add_u32 v2, s35, v2")
        a("v_lshlrev_b32 v2, 7, v2")
        a("v_min_u32 v2, L_END - L_PC0, v2")
        a.emit((f"global_load_dword v{vPFd}, v2, s[56:57]", "cpf"))
    a(f"v_lshrrev_b32 v{vT[0]}, 6, v0")
    a(f"v_and_b32 v{vLANE}, 63, v0")
    a("s_and_b32 s37, s2, 3")
    a(f"v_readfirstlane_b32 s{sW}, v{vT[0]}")
    a("s_bfe_u32 s39, s2, 0x10002")
    a("s_lshr_b32 s35, s2, 3")
    a("s_and_b32 s38, s35, 3")
    a(f"s_lshl2_add_u32 s{sHP}, s37, s38")
    a("s_lshr_b32 s38, s35, 2")
    a(f"s_lshl3_add_u32 s{sT}, s39, s38")
    a(f"s_and_b32 s{sRH}, s{sW}, 1")
    r, c, t0, t1 = vT[0], vT[1], vT[2], vT[3]
    a("s_lshl_b32 s38, s37, 5")
    a("s_add_u32 s38, s38, s35")
    a("s_lshl_b32 s38, s38, 14")
    a("s_lshl_b32 s47, s39, 21")
    a("s_add_u32 s38, s38, s47")
    a("s_lshl_b32 s39, s39, 5")
    a("s_add_u32 s39, s39, s35")
    a("s_mul_i32 s39, s39, 6144")
    a("s_lshl_b32 s47, s37, 9")
    a("s_add_u32 s39, s39, s47")
    a(f"s_mov_b32 s{sPFstr}, {64*6144}")
    a(f"s_cmp_eq_u32 s{sW}, 0")
    a("s_cselect_b32 s39, s38, s39")
    a(f"s_cselect_b32 s{sPFstr}, 128, s{sPFstr}")
    a("s_cselect_b32 s38, 7, 11")
    a("s_cselect_b32 s47, 0, 2")
    a("s_cselect_b32 s36, 0, 3")
    a(f"s_cmp_eq_u32 s{sW}, 3")
    a(f"s_cselect_b32 s{sPFstr}, 0, s{sPFstr}")
    a("s_cselect_b32 s38, 0, s38")
    a(f"v_min_u32 v{t0}, s38, v{vLANE}")
    a(f"v_and_b32 v{t1}, s36, v{t0}")
    a(f"v_lshrrev_b32 v{t0}, s47, v{t0}")
    a(f"v_lshlrev_b32 v{t1}, 7, v{t1}")
    a(f"v_lshl_add_u32 v{t0}, v{t0}, 11, v{t1}")
    a(f"v_add_u32 v{vPF}, s39, v{t0}")
    a(f"v_lshrrev_b32 v{r}, 3, v{vLANE}")
    a(f"v_and_b32 v{c}, 7, v{vLANE}")
    a(f"v_lshrrev_b32 v{t0}, 1, v{r}")
    a(f"v_xor_b32 v{t0}, v{t0}, v{c}")
    a(f"v_lshlrev_b32 v{t1}, 11, v{r}")
    a(f"v_lshl_add_u32 v{t0}, v{t0}, 4, v{t1}")
    a(f"s_lshl2_add_u32 s36, s{sT}, s{sW}")
    a("s_lshl_b32 s36, s36, 16")
    a(f"v_add_u32 v{vXg[0]}, s36, v{t0}")
    a(f"v_xor_b32 v{vXg[1]}, 64, v{vXg[0]}")
    a(f"v_add_u32 v{vXg[1]}, {8*2048}, v{vXg[1]}")
    a(f"v_add_u32 v{vXg[2]}, {16*2048}, v{vXg[0]}")
    a(f"v_add_u32 v{vXg[3]}, {16*2048}, v{vXg[1]}")
    a(f"s_lshl_b32 s{sXw}, s{sW}, 12")
    a("s_waitcnt lgkmcnt(0)")
    a.stamp("karg")
    a(f"s_cmp_eq_u32 s{sW}, 0")
    a(f"s_cselect_b64 s[{sPF}:{sPF+1}], s[{pX}:{pX+1}], s[{pWA}:{pWA+1}]")
    a(f"s_cmp_eq_u32 s{sW}, 2")
    a(f"s_cselect_b64 s[{sPF}:{sPF+1}], s[{pWB}:{pWB+1}], s[{sPF}:{sPF+1}]")
    for i in range(o.get("pf0", 2)):
        for s in pf_round(a): a.emit(s)
    a.wsetup = [f"v_and_b32 v{t0}, 2, v{r}", f"s_lshl_b32 s36, s{sRH}, 2", f"v_xor_b32 v{t0}, v{t0}, v{c}", f"v_xor_b32 v{t0}, s36, v{t0}",
                f"v_mul_u32_u24 v{t1}, 6144, v{r}", f"v_lshl_add_u32 v{t0}, v{t0}, 4, v{t1}", f"s_mul_i32 s36, s{sW}, {8*6144}",
                f"s_lshl_b32 s37, s{sHP}, 7", "s_add_u32 s36, s36, s37", f"v_add_u32 v{vWg[0]}, s36, v{t0}",
                f"v_add_u32 v{vWg[1]}, 2048, v{vWg[0]}", f"v_add_u32 v{vWg[2]}, 4096, v{vWg[0]}", f"s_lshl_b32 s{sWv}, s{sW}, 10",
                f"s_lshr_b32 s{sHH}, s{sW}, 1"]

def fillers_prologue(a):
    L = []
    f = L.append
    f("s_mov_b32 s16, s54"); f("s_and_b32 s17, s55, 0xffff"); f("s_mov_b32 s18, 0x10000000"); f("s_mov_b32 s19, 0x20000")
    f(f"s_mov_b32 s{sCode}, s56"); f(f"s_and_b32 s{sCode+1}, s57, 0xffff"); f(f"s_mov_b32 s{sCode+2}, L_END - L_PC0"); f(f"s_mov_b32 s{sCode+3}, 0x20000")
    f(f"s_mov_b32 s{sX}, s{pX}"); f(f"s_and_b32 s{sX+1}, s{pX+1}, 0xffff"); f(f"s_mov_b32 s{sX+2}, {2048*1024*2}"); f(f"s_mov_b32 s{sX+3}, 0x20000")
    n = a.opts.get('codelines', 20)
    f(f"s_mul_i32 s47, s35, {n}"); f(f"v_min_u32 v{vT[7]}, {n-1}, v{vLANE}"); f(f"v_add_u32 v{vT[7]}, s47, v{vT[7]}"); f(f"v_lshlrev_b32 v{vT[7]}, 7, v{vT[7]}")
    m, g_, t0, t1, row = vT[0], vT[1], vT[2], vT[3], vT[4]
    f(f"v_and_b32 v{m}, 15, v{vLANE}")
    f(f"v_lshrrev_b32 v{g_}, 4, v{vLANE}")
    f(f"v_lshrrev_b32 v{t0}, 1, v{m}")
    f(f"v_xor_b32 v{t0}, v{t0}, v{g_}")
    f(f"v_lshlrev_b32 v{t0}, 4, v{t0}")
    f(f"v_lshl_add_u32 v{t0}, v{m}, 7, v{t0}")
    f(f"s_lshl_b32 s36, s{sRH}, 13")
    f(f"v_add_u32 v{vXr[0]}, s36, v{t0}")
    f(f"v_xor_b32 v{vXr[1]}, 64, v{vXr[0]}")
    f(f"v_lshrrev_b32 v{t0}, 2, v{m}")
    f(f"v_lshl_add_u32 v{row}, v{g_}, 3, v{t0}")
    f(f"v_lshrrev_b32 v{t0}, 3, v{m}")
    f(f"v_and_b32 v{t1}, 1, v{g_}")
    f(f"v_lshl_or_b32 v{t0}, v{t1}, 1, v{t0}")
    f(f"s_lshl_b32 s36, s{sHH}, 1")
    f(f"v_xor_b32 v{t0}, s36, v{t0}")
    f(f"v_lshlrev_b32 v{t0}, 5, v{t0}")
    f(f"v_lshl_add_u32 v{t0}, v{row}, 7, v{t0}")
    f(f"v_and_b32 v{t1}, 3, v{m}")
    f(f"v_lshl_add_u32 v{t0}, v{t1}, 3, v{t0}")
    f(f"v_add_u32 v{vWr[0][0]}, {W_BASE}, v{t0}")
    f(f"v_xor_b32 v{vWr[0][1]}, 32, v{vWr[0][0]}")
    f(f"v_add_u32 v{vWr[1][0]}, {2*W_SLOT}, v{vWr[0][0]}")
    f(f"v_add_u32 v{vWr[1][1]}, {2*W_SLOT}, v{vWr[0][1]}")
    if a.opts.get("zinit"):
        for r in range(ACC0, 256):
            f(f"v_mov_b32 v{r}, 0")
    return L

def fillers_late(a):
    L = []
    f = L.append
    q, b, t = vT[0], vT[1], vT[2]
    f(f"v_lshlrev_b32 v{vL16}, 4, v{vLANE}")
    f(f"v_and_b32 v{q}, 15, v{vLANE}")
    f(f"v_add_u32 v{q}, 2, v{q}")
    f(f"v_mov_b32 v{t}, 0x5555")
    f(f"v_lshlrev_b32 v{q}, v{q}, v{t}")
    f(f"v_lshrrev_b32 v{b}, 4, v{vLANE}")
    f(f"v_lshlrev_b32 v{b}, 2, v{b}")
    f(f"v_lshrrev_b32 v{q}, v{b}, v{q}")
    f(f"v_not_b32 v{q}, v{q}")
    f(f"s_mov_b32 s36, {NEGBIG}")
    for i in range(8):
        f(f"v_bfe_i32 v{vMc + i}, v{q}, {i if i < 4 else 12 + i}, 1")
        f(f"v_and_b32 v{vMc + i}, s36, v{vMc + i}")
    f(f"v_mov_b32 v{q}, 0x3f803f80")
    for i in range(4):
        f(f"v_accvgpr_write_b32 a{aONE+i}, v{q}")
    f(f"v_lshrrev_b32 v{q}, 1, v{vLANE}"); f(f"v_xor_b32 v{q}, v{q}, v{vLANE}"); f(f"v_and_b32 v{q}, 4, v{q}")
    f(f"v_lshl_or_b32 v{q}, v{q}, 1, v{q}"); f(f"v_xor_b32 v{q}, v{q}, v{vLANE}"); f(f"v_lshlrev_b32 v{vKS}, 4, v{q}")
    f(f"v_min_u32 v{vF0}, 1, v{vLANE}")
    f(f"v_lshlrev_b32 v{vF0}, 31, v{vF0}")
    f(f"s_mov_b32 s{sCS}, {CSCALE}"); f(f"s_mov_b32 s62, {CSCALE}"); f(f"s_mov_b32 s63, {CSCALE}")
    f(f"s_lshl_b32 s36, s{sHP}, 19")
    f(f"s_lshl_b32 s37, s{sW}, 13")
    f(f"s_lshl_b32 s38, s{sHH}, 14")
    f(f"s_lshl_b32 s39, s{sRH}, 13")
    f(f"s_add_u32 s{sKVdst}, s38, s39")
    f(f"s_add_u32 s{sKVbase}, s36, s{sKVdst}")
    f(f"s_lshl_b32 s{sKVt}, s{sT}, 15")
    f(f"s_add_u32 s{sKVsrc}, s{sKVbase}, s{sKVt}")
    f(f"s_and_b32 s{sKVt}, s{sT}, 7"); f(f"s_and_b32 s{sKVb}, s{sT}, 8")
    f(f"s_add_u32 s36, s38, {KV_LDS[0]}")
    f(f"v_add_u32 v{vKV[0]}, s36, v{vL16}")
    f(f"v_add_u32 v{vKV[1]}, 32768, v{vKV[0]}")
    f(f"s_lshl_b32 s{sHead}, s{sHP}, 1")
    f(f"s_add_u32 s{sHead}, s{sHead}, s{sHH}")
    f(f"s_lshl_b32 s{sSeq}, s{sT}, 1")
    f(f"s_add_u32 s{sSeq}, s{sSeq}, s{sRH}")
    f(f"s_lshl_b32 s37, s{sSeq}, 6")
    f(f"s_add_u32 s37, s37, s{sHead}")
    f(f"s_lshl_b32 s{sOst}, s37, 11")
    f(f"s_lshl_b32 s38, s{sHead}, 5")
    f(f"s_add_u32 s38, s38, s{sSeq}")
    f(f"s_lshl_b32 s28, s38, 2")
    f(f"s_lshl_b32 s38, s38, 12")
    f(f"s_add_u32 s{sHalo}, s38, {HALO_OFF}")
    f(f"s_mov_b32 s{sPASS}, 0")
    f(f"s_add_u32 s{sKVp}, s54, s{sKVbase}\ns_addc_u32 s{sKVp+1}, s55, 0")
    f("s_lshl_b32 s36, s2, 2"); f(f"s_add_u32 s36, s36, s{sW}"); f("s_lshl_b32 s36, s36, 11")
    f(f"v_and_b32 v24, 15, v{vLANE}"); f("v_lshlrev_b32 v24, 7, v24"); f("v_add_u32 v60, s36, v24")
    if a.opts.get("tlb"):
        f("s_lshr_b32 s36, s2, 3"); f("s_mul_i32 s37, s36, 11"); f(f"v_min_u32 v61, 10, v{vLANE}"); f("v_add_u32 v61, s37, v61"); f("v_lshlrev_b32 v61, 16, v61")
        f("s_lshl_b32 s37, s36, 1"); f(f"v_min_u32 v62, 1, v{vLANE}"); f("v_add_u32 v62, s37, v62"); f("v_lshlrev_b32 v62, 16, v62")
    f("s_lshr_b32 s36, s2, 3"); f("s_lshl_b32 s36, s36, 2"); f(f"s_add_u32 s36, s36, s{sW}"); f("s_lshl_b32 s36, s36, 14")
    f("v_add_u32 v0, s36, v24")
    f(f"s_lshl_b32 s36, s{sSeq}, 6")
    f(f"s_lshl_b32 s37, s{sHead}, 1")
    f("s_add_u32 s36, s36, s37")
    f(f"v_lshrrev_b32 v9, 5, v{vLANE}")
    f(f"v_add_u32 v{vGrow}, s36, v9")
    f(f"v_and_b32 v25, 31, v{vLANE}")
    f("v_lshlrev_b32 v25, 4, v25")
    f(f"v_lshl_add_u32 v9, v{vGrow}, 11, v25")
    f(f"s_mov_b32 s56, s{sPG}"); f(f"s_and_b32 s57, s{sPG+1}, 0xffff"); f("s_mov_b32 s58, 2048"); f("s_mov_b32 s59, 0x20000")
    f(f"s_lshl_b32 s38, s{sHP}, 2"); f(f"s_add_u32 s38, s38, s{sW}"); f("s_lshl_b32 s38, s38, 6")
    f(f"s_add_u32 s31, s38, {F_KV}"); f(f"s_lshl_b32 s38, s{sT}, 2"); f("s_add_u32 s32, s31, s38")
    f(f"s_add_u32 s33, s28, {F_H - 4}"); f(f"s_cmp_eq_u32 s{sSeq}, 0\ns_cselect_b32 s38, 4, 0"); f("s_add_u32 s33, s33, s38")
    return L

def gemm1(a):
    o = a.opts
    p1 = P1(a)
    W = lambda j, ps: [("W", j, p) for p in ps]
    X = lambda v, ps: [("X", v, p) for p in ps]
    pro = X(0, range(4)) + W(0, range(6)) + W(1, range(6))
    sched = {(0,0): X(1, range(4)) + W(2, [0,1]), (0,1): W(2, [2,3,4,5]) + W(3, [0,1]),
             (1,0): W(3, [2,3,4,5]) + W(4, [0,1]), (1,1): X(2, range(4)) + W(4, [2,3]),
             (2,0): W(4, [4,5]) + W(5, [0,1,2,3]), (2,1): W(5, [4,5]) + X(3, range(4)),
             (3,0): W(6, range(6))}
    for u in range(3, 28):
        v, p0 = ((u + 5)//2, 0) if u & 1 else ((u + 4)//2, 2)
        sched[(u, 1)] = W(u + 4, [0,1,2]) + (X(v, [p0]) if v < 16 else [])
        sched[(u + 1, 0)] = W(u + 4, [3,4,5]) + (X(v, [p0 + 1]) if v < 16 else [])
    if o.get("w1late", 0):
        pro = X(0, range(4)) + W(0, range(6))
        sched.update({(0,0): W(1, range(6)), (0,1): X(1, range(4)) + W(2, [0,1]), (1,0): W(2, [2,3,4,5]) + W(3, [0,1]),
                      (1,1): W(3, [2,3,4,5]) + X(2, [0,1]), (2,0): X(2, [2,3]) + W(4, [0,1,2,3]), (2,1): W(4, [4,5]) + W(5, [0,1,2,3]),
                      (3,0): W(5, [4,5]) + X(3, range(4)), (3,1): W(6, range(6)), (4,0): W(7, range(6)),
                      (4,1): W(8, [0,1,2]) + X(4, [0,1,2]), (5,0): W(8, [3,4,5]) + X(4, [3])})
    U0 = o.get("u0", 28)
    if U0 == 28:
        sched[(27, 1)] = W(31, range(6)); del sched[(28, 0)]
    for (u, hf), ps in sched.items():
        done = u - 1 if hf == 0 else u
        for k, j, p in ps:
            if k == "W": assert j < 4 or done >= j - 4, (u, hf, k, j)
            else: assert j < 3 or done >= 2*(j - 3) + 1, (u, hf, k, j)
    npf0 = o.get("pf0", 2)
    pfs = {}
    r = npf0
    for u in range(0, 32):
        while r < 16 and u >= max(0, 2*r - o.get("pfd", 5)) and pfs.get(u, 0) < 1:
            pfs[u] = pfs.get(u, 0) + 1; r += 1
    fil = fillers_prologue(a)
    late = fillers_late(a)
    if o.get("p4early", 1):
        assert o.get("latepro", 1) in (1, 2) and not o.get("zinit")
        late += p4_split()[0]
        si = sel_init(64, 65)
        late += si[0:5] + ["v_accvgpr_write_b32 a125, v65"] + si[7:11] + ["v_accvgpr_write_b32 a126, v65"]
        late += [x.replace(f"v{vIDX},", "v65,").replace(f", v{vIDX}", ", v65") for x in si[13:]] + ["v_accvgpr_write_b32 a127, v65"]
    post_issue = []
    if o.get("latepro", 1) == 1: fil += late; late = []
    if o.get("latepro", 1) == 2: post_issue = late; late = []
    if o.get("latepro", 1) == 3: post_issue = fil[42:] + late; fil = fil[:42]; late = []
    ws_ = a.wsetup
    chunks = [ws_[0:4], ws_[4:8], ws_[8:11], ws_[11:14]]
    per = (len(fil) + len(pro) - 5)//(len(pro) - 4)
    chunks += [fil[i*per:(i+1)*per] for i in range(len(pro) - 4)]
    for pc, chunk in zip(pro, chunks):
        pre, d, post = p1.dma(pc)
        for s in pre: a(s)
        a(chunk[0] if chunk else "s_nop 0")
        a.emit(d)
        for s in post + chunk[1:]: a(s)
    for s in post_issue: a(s)
    a(f"s_or_b32 s36, s2, s{sW}")
    a("s_cmp_lg_u32 s36, 0")
    a("s_cbranch_scc1 L_NONONCE")
    a("s_memrealtime s[36:37]")
    a("v_mov_b32 v20, 0")
    a("s_waitcnt lgkmcnt(0)")
    a("s_or_b32 s36, s36, 1")
    a("v_mov_b32 v19, s36")
    a(f"global_store_dword v20, v19, s[{sPDbg}:{sPDbg+1}] sc1")
    a("L_NONONCE:")
    a.stamp("issued")
    a.emit(a.wait(["X0", "W0"]))
    a("s_barrier")
    a.stamp("first")
    for s in x_reads(0, 0) + w_reads(0, 0, (0, 1, 2)): a(s)
    a("s_waitcnt lgkmcnt(0)")
    def need(u): return [f"W{u}"] + ([f"X{u//2}"] if u % 2 == 0 else [])
    def seq(M, keys=None): return [M[k] for k in (keys or sorted(M))]
    pend = [0]
    def late_wait(sides, g):
        if pend[0]:
            n = sum(isinstance(x, str) and x.startswith("ds_") for k in sides if k <= g for x in sides[k])
            sides.setdefault(g, []).append(f"s_waitcnt lgkmcnt({n})")
            pend[0] = 0
    def soft_wait(nreads, need_):
        if o.get("soft", 1) and nreads > need_:
            pend[0] = nreads - need_
            a(f"s_waitcnt lgkmcnt({pend[0]})")
        else:
            a("s_waitcnt lgkmcnt(0)")
    roll = o.get("roll", 0)
    if roll:
        assert U0 == 28 and not late
        raise Exception("rolled loop needs bounds-checked prefetch")
        assert all(pfs.get(u, 0) == pfs.get(u + 12, 0) for u in range(4, 16)), pfs
    def half(u, hf):
        if hf == 0: reads = w_reads(1, u, (3, 4, 5))
        else: reads = x_reads((u + 1) & 1, u + 1) + w_reads(0, u + 1, (0, 1, 2) if u + 1 < U0 else (1, 2))
        sides = {}
        ps = sched.get((u, hf), [])
        lay = o.get("glay", 1)
        if lay == 0 or len(ps) > 4:
            for g, rd in enumerate(reads): sides.setdefault(g, []).append(rd)
            D = ([[13, 16, 19, 22], [12, 14, 16, 18, 20, 22]] if hf == 0 else [[17, 19, 21, 23], [13, 15, 17, 19, 21, 23]])[len(ps) > 4]
            if (u, hf) == (0, 0) and o.get("w1late", 0): D = [1, 3, 5, 7, 9, 11]
            for g, pc in zip(D, ps):
                pre, d, post = p1.dma(pc)
                sides.setdefault(g - 1, []).extend(pre)
                sides.setdefault(g, []).insert(0, d)
                sides[g].extend(post)
        else:
            D = {1: [2, 8, 14, 20], 2: [4, 10, 16, 22], 3: [3, 9, 15, 21], 4: [5, 11, 17, 23]}[lay]
            free = [g for g in range(24) if g not in D[:len(ps)]]
            for g, rd in zip(free, reads): sides.setdefault(g, []).append(rd)
            for g, pc in zip(D, ps):
                pre, d, post = p1.dma(pc)
                sides.setdefault(g - 1, []).extend(pre)
                sides.setdefault(g, []).insert(0, d)
                sides.setdefault(min(g + 1, 23), []).extend(post)
        if o.get("tlb", 0) >= 2 and (u, hf) == (o.get("tlbstep", 20), 0):
            sides.setdefault(23, []).append((f"global_load_dword v{vPFd}, v61, s[54:55]", "tlb"))
        if o.get("tlb", 0) >= 1 and (u, hf) == (o.get("tlbstep", 20) + 2, 0):
            sides.setdefault(23, []).append((f"global_load_dword v{vPFd}, v62, s[{sPOut}:{sPOut+1}]", "tlb"))
        if hf == 0 and pfs.get(u):
            sides.setdefault(23, []).extend(pf_round(a))
        if u >= 4 and late:
            for g in range(24):
                cur = sides.get(g, [])
                if any(isinstance(x, tuple) or x.startswith("ds_") for x in cur): continue
                room = o.get("lateper", 2) - (1 if cur else 0)
                while late and room > 0:
                    x = late.pop(0); sides.setdefault(g, []).append(x); room -= len(x.split("\n"))
        if roll and (u, hf) in ((15, 0), (27, 0)):
            sides.setdefault(14, []).append("s_sub_u32 s35, s35, 1")
        late_wait(sides, 7)
        a.inter(seq(g1_mfmas(u & 1, hf, (0, 1, 2) if hf == 0 else (3, 4, 5), first=(u == 0 and not o.get('zinit')))), sides)
        if roll and (u, hf) in ((15, 0), (27, 0)):
            a("s_cmp_lg_u32 s35, 0")
        if hf == 0:
            a.emit(a.wait(need(u + 1), lgkm=True))
            a("s_barrier")
        elif u + 1 < U0:
            soft_wait(16, 8)
        if hf == 1 and u % 8 == 7 and not roll: a.stamp(f"g{u}")
    halves = [(u, hf) for u in range(U0) for hf in range(2)]
    if not roll:
        for h in halves: half(*h)
    else:
        for h in halves[:7]: half(*h)
        a("s_mov_b32 s35, 2")
        n0 = len(a.lines)
        for h in halves[7:31]: half(*h)
        p1_ = a.lines[n0:]; del a.lines[n0:]
        for h in halves[31:55]: half(*h)
        p2_ = a.lines[n0:]; del a.lines[n0:]
        assert len(p1_) == len(p2_)
        if o.get("galign"): a(f".p2align {o['galign']}")
        a("L_G1:")
        import re
        for x, y in zip(p1_, p2_):
            if x != y:
                mx, my = re.fullmatch(r"\s*s_waitcnt vmcnt\((\d+)\) lgkmcnt\(0\)", x), re.fullmatch(r"\s*s_waitcnt vmcnt\((\d+)\) lgkmcnt\(0\)", y)
                assert mx and my, (x, y)
                x = f"s_waitcnt vmcnt({min(int(mx.group(1)), int(my.group(1)))}) lgkmcnt(0)"
            a(x)
        a("s_cbranch_scc1 L_G1")
        half(27, 1)
    misc = []
    for j in range(8):
        misc.append((f"buffer_load_dwordx4 {ar(aGATE+4*j, 4)}, v9, s[{sX}:{sX+3}], 0 offen offset:{512*j}" if j < 4 else
                     f"buffer_load_dwordx4 {ar(aGATE+4*j, 4)}, v25, s[56:59], 0 offen offset:{512*(j-4)}", "gate"))
    misc = [(f"global_load_dword v21, v19, s[{sPDbg}:{sPDbg+1}] sc1", "nonce"),
            (f"buffer_load_dword v{vPFd}, v{vT[7]}, s[{sCode}:{sCode+3}], 0 offen", "cpf")] + misc
    if o.get("wom", 1): misc.insert(o.get("wompos", 10), (f"global_load_dword v{vPFd}, v60, s[{sPWoB}:{sPWoB+1}]", "wopf"))
    if o.get("wom", 1) > 1: misc.append((f"global_load_dword v{vPFd}, v60, s[{sPWoA}:{sPWoA+1}]", "wopf"))
    if o.get("tlb", 0) == 1:
        misc[-0:] = misc[-0:] + [(f"global_load_dword v{vPFd}, v61, s[54:55]", "tlb")]
    xs, ws_ = U0 & 1, 0
    units = [(u, b) for u in range(U0, 31) for b in ((0, 3), (4, 5))] + [(31, (4, 5)), (31, (3, 0))]
    bfirst = o.get("bfirst", 1)
    if bfirst: units = [(u, (4, 5)) for u in range(U0, 32)] + [(u, (3, 0)) for u in range(U0, 32)]
    for u in range(U0, 32):
        if u < 31:
            a.emit(a.wait(need(u + 1), lgkm=True)); a("s_barrier")
        else:
            a("s_waitcnt lgkmcnt(0)")
        reads = x_reads(1 - xs, u + 1) + w_reads(1 - ws_, u + 1, (1, 2)) if u < 31 else x_reads(1 - xs, U0) + w_reads(1 - ws_, *units[0])
        sides = {}
        for i, rd in enumerate(reads): sides.setdefault(i, []).append(rd)
        if u == U0:
            sides.setdefault(0, []).append("v_mov_b32 v19, 0")
            sides.setdefault(1, []).append(f"s_add_u32 s25, s{sKVsrc}, 4096"); sides.setdefault(2, []).append(f"s_mov_b32 s26, s{sKVsrc}")
        for g in ((12, 13, 15) if U0 == 28 else (12, 13, 14, 15)):
            if misc: sides.setdefault(g, []).append(misc.pop(0))
        M = g1_mfmas(xs, ws_, (1, 2))
        a.inter(seq(M, [(i, nt, mt) for rt in range(2) for i in range(2) for nt in range(2) for mt in (2*rt, 2*rt + 1)]), sides)
        xs ^= 1; ws_ ^= 1
    assert not misc
    a.stamp("gP")
    e1_lists(a)
    kvw = pk16(KA[0], pKA[0]) + a.kv.pop(0) + pk16(VA[0], pVA[0]) + pk16(KA[1], pKA[1]) + pk16(VA[1], pVA[1])
    st_units = {28: [1, 2, 3, 4, 5, 6, 7], 29: [1, 2, 3, 4, 5]}[U0]
    greedy = True; assert bfirst
    if greedy:
        a.kv.insert(0, [kvw[12]])
        half = lambda src, dst: [f"v_cvt_pk_bf16_f32 v{dst+j}, v{src+2*j}, v{src+2*j+1}" for j in range(4)]
        blocks = [(KA[0], pKA[0], 0, 4), (VA[0], pVA[0], 0, 4), (KA[1], pKA[1], 0, 4), (VA[1], pVA[1], 0, 4), (0, 0, 0, 64 + 5)]
        cv = [(b, x) for b, (src, dst, vb, t0) in enumerate(blocks[:4]) for x in packl(src, dst)]
        cv += [(4, x) for x in packl(KB[0], bK[1]) + packl(KB[1], bK[3]) + half(VB[0], bV[0] + 2) + half(VB[0] + 8, bV[1] + 2)
               + half(VB[1], bV[0] + 6) + half(VB[1] + 8, bV[1] + 6) + [f"v_mov_b32 v{bV[0]+10+j}, v{bV[1]+8+j}" for j in range(2)]]
        if o.get("gateR", 0):
            gc = L(); gate_compute(gc, 27, 24, 40)
            a.gate_tail = gc[49:]; gc = gc[:48]
            blocks.append((0, 0, 0, o.get("gateT", 44)))
            nb = sum(1 for b, x in cv if b < 4)
            g1 = [(5, a.wait(["gate"]))] + [(5, x) for x in gc[:o.get("gateN", 24)]]
            cv = cv[:nb] + g1 + cv[nb:] + [(5, x.replace("s36", "s47") if isinstance(x, str) else (x[0].replace("s36", "s47"), x[1])) for x in gc[o.get("gateN", 24):]]
        sw = [(b, x) for b, (src, dst, vb, t0) in enumerate(blocks[:4]) for x in pk16(src, dst, vb)[8:]]
        cdone = {}; sdone = {}; last_st = [-99]; nst = [0]
        def fill(T, room, free):
            out = []
            if (free or o.get("stany", 1)) and a.kv and nst[0] < 8:
                b = nst[0] // 2
                gap_ = o.get("stgap0", 6) if nst[0] < 4 else o.get("stgap", 20)
                if sdone.get(b, 999) < T and T - last_st[0] >= gap_:
                    last_st[0] = T; nst[0] += 1
                    return a.kv.pop(0)
            can_sw = sw and cdone.get(sw[0][0], 999) < T
            can_cv = cv and blocks[cv[0][0]][3] <= T
            if can_sw and (free or not can_cv):
                b, x = sw.pop(0)
                if not sw or sw[0][0] != b: sdone[b] = T
                return [x]
            while can_cv and room > 0:
                b, x = cv.pop(0); out.append(x); room -= 1
                if not cv or cv[0][0] != b: cdone[b] = T
                can_cv = cv and blocks[cv[0][0]][3] <= T
            return out
    for n, (u, blks) in enumerate(units):
        last = n == len(units) - 1
        special = n >= len(units) - 2 or (bfirst and n == len(units)//2 - 1)
        if last or special or not bfirst: a("s_waitcnt lgkmcnt(0)")
        else: soft_wait(12, 8)
        if last: a("s_barrier")
        reads = []
        newx = False
        if not last:
            un, bn = units[n + 1]
            newx = un != u
            reads = (x_reads(1 - xs, un) if newx else []) + w_reads(1 - ws_, un, bn)
        sides = {}
        for i, rd in enumerate(reads): sides.setdefault(i, []).append(rd)
        M = g1_mfmas(xs, ws_, blks)
        keys = None
        if bfirst and n == len(units)//2 and not greedy:
            kvw += pk16(KB[1], pKB[1]) + pk16(VB[1], pVB[1], True) + pk16(KB[0], pKB[0]) + pk16(VB[0], pVB[0], True)
        if n >= len(units) - 2 or (bfirst and n == len(units)//2 - 1):
            keys = [(i, nt, mt) for rt in (1, 0) for i in range(2) for nt in range(2) for mt in (2*rt, 2*rt + 1)]
            if last: keys = [(i, nt, mt) for i in range(2) for rt in (0, 1) for nt in range(2) for mt in (2*rt, 2*rt + 1)]
        if greedy and not last:
            for g in range(16):
                sides.setdefault(g, []).extend(fill(16*n + g, 1 if g < len(reads) else 2, g >= len(reads)))
        elif greedy:
            left = []
            left = [x for bb, x in cv + sw]
            assert all(bb >= 4 for bb, x in cv + sw)
            e1_head(a, sides, left); kvw = []
        elif last:
            e1_head(a, sides, kvw if bfirst else None); kvw = []
        else:
            for g in range(4 if n == 0 else 0, 16):
                budget = 1 if g < len(reads) else 2
                if n in st_units and g == 15: budget = 0
                while kvw and budget > 0:
                    cost = 2 if (isinstance(kvw[0], tuple) or "permlane" in kvw[0]) else 1
                    if cost > budget and o.get("rstrict", 1): break
                    sides.setdefault(g, []).append(kvw.pop(0))
                    budget -= cost
        if n in st_units and not greedy:
            st_ = a.kv.pop(0)
            lo = int(st_[0][0].split("v[")[1].split(":")[0])
            assert not any(isinstance(x, str) and any(f"v{lo+i}," in x.split(None, 1)[1].split(", v")[0] + "," or x.endswith(f" v{lo+i}") and "permlane" in x for i in range(4)) for x in kvw), (n, lo)
            sides.setdefault(1 if last else 15, []).extend(st_)
        late_wait(sides, 7)
        a.inter(seq(M, keys), sides)
        ws_ ^= 1
        if newx: xs ^= 1
    assert not kvw
    a.stamp("g31")
    assert not late

def packl(base, out=None):
    out = base if out is None else out
    return [f"v_cvt_pk_bf16_f32 v{out+j}, v{base+2*j}, v{base+2*j+1}" for j in range(8)]
def pk16(base, out=None, vb=False):
    out = base if out is None else out
    l = packl(base, out) + [f"v_permlane16_swap_b32 v{out+i}, v{out+i+2}" for i in (0, 1, 4, 5)]
    if vb: l += [f"v_permlane32_swap_b32 v{out+i}, v{out+i+2}" for i in (0, 1, 4, 5)]
    return l
def pko(base, out=None):
    out = base if out is None else out
    return packl(base, out) + ["s_nop 0"] + [f"v_permlane16_swap_b32 v{out+j}, v{out+4+j}" for j in range(4)]
def pack(a, base, out=None):
    for s in packl(base, out): a(s)
class L(list):
    def __call__(self, s): self.append(s)
    def emit(self, s): self.append(s)
def weave(a, work, extra, first, every):
    nxt = first
    for i, w in enumerate(work):
        while extra and i >= nxt:
            for s in extra.pop(0): a.emit(s)
            nxt += every
        a.emit(w)

def padfill(a, fill, n):
    k = 0
    for f in fill:
        a.emit(f); k += len(f.split("\n")) if isinstance(f, str) else 1
    if k < n: a(f"s_nop {n - k - 1}")

def local16(a, tiles, fill1=(), fill2=()):
    def rr(lists):
        for k in range(max(len(l) for l in lists)):
            for l in lists:
                if k < len(l): a(l[k])
    n = len(tiles)
    pad2 = ["s_nop 1"] if n == 1 else (["s_nop 0"] if n == 2 else [])
    rr([[mf16(vr(S_, 4), vr(bK[j], 4), vr(bQ[j], 4), vr(vMc, 4)), mf16(vr(S_+4, 4), vr(bK[j+1], 4), vr(bQ[j], 4), vr(vMc+4, 4))] for j, S_, L_, O_, m in tiles])
    padfill(a, fill1, 8)
    st = []
    for j, S_, L_, O_, m in tiles:
        t = m + 1
        l = [f"v_max3_f32 v{m}, v{S_}, v{S_+1}, v{S_+2}", f"v_max3_f32 v{m}, v{m}, v{S_+3}, v{S_+4}", f"v_max3_f32 v{m}, v{m}, v{S_+5}, v{S_+6}",
             f"v_max_f32 v{m}, v{m}, v{S_+7}", f"v_mov_b32 v{t}, v{m}"] + pad2 + [f"v_permlane16_swap_b32 v{m}, v{t}", f"v_max_f32 v{m}, v{m}, v{t}",
             f"v_mov_b32 v{t}, v{m}"] + pad2 + [f"v_permlane32_swap_b32 v{m}, v{t}", f"v_max_f32 v{m}, v{m}, v{t}", f"v_mul_f32 v{m}, s{sCS}, v{m}"]
        l += [f"v_fma_f32 v{S_+i}, v{S_+i}, s{sCS}, -v{m}" for i in range(8)]
        l += [f"v_exp_f32 v{S_+i}, v{S_+i}" for i in range(8)]
        l += [f"v_cvt_pk_bf16_f32 v{S_+i}, v{S_+2*i}, v{S_+2*i+1}" for i in range(4)] + pad2
        l += [mf16(vr(L_, 4), ar(aONE, 4), vr(S_, 4), 0), mf16(vr(O_, 4), vr(bV[0] + 2*j, 4), vr(S_, 4), 0), mf16(vr(O_+4, 4), vr(bV[1] + 2*j, 4), vr(S_, 4), 0)]
        st.append(l)
    rr(st)
    padfill(a, fill2, 8 if n == 1 else 6)
    rr([[f"v_rcp_f32 v{m}, v{L_}"] + (["s_nop 1"] if n == 1 else []) + [f"v_mul_f32 v{O_+i}, v{O_+i}, v{m}" for i in range(8)]
        + [f"v_cvt_pk_bf16_f32 v{O_+i}, v{O_+2*i}, v{O_+2*i+1}" for i in range(4)] for j, S_, L_, O_, m in tiles])
def ob_store(j, O_):
    return (f"buffer_store_dwordx4 {vr(O_, 4)}, v{vL16}, {WS}, s{35 if j < 2 else 38} offen offset:{(j & 1)*1024} sc1", "ob")

def flag_store(sreg, vtmp, tag):
    return [f"v_mov_b32 v{vtmp}, s{sNONCE}", (f"buffer_store_dword v{vtmp}, v{vF0}, {WS}, s{sreg} offen sc1", tag)]

def poll_check(a, name, vdst, vaddr, sreg, tag, mask=-1):
    a.emit(a.wait([tag]))
    a(f"v_cmp_ne_u32 vcc, s{sNONCE}, v{vdst}")
    a(f"s_and_b32 s{sSpin}, vcc_lo, {mask}")
    a(f"s_cbranch_scc1 {name}_S")
    a(f"{name}_R:")
    a.tail.append(f"""{name}_S:
    s_mov_b32 s{sSpin}, 0
{name}_L:
    buffer_load_dword v{vdst}, v{vaddr}, {WS}, s{sreg} offen sc1
    s_add_u32 s{sSpin}, s{sSpin}, 1
    s_waitcnt vmcnt(0)
    v_cmp_ne_u32 vcc, s{sNONCE}, v{vdst}
    s_cmp_lt_u32 s{sSpin}, 0x40000
    s_cbranch_scc0 {name}_R
    s_nop 2
    s_and_b32 vcc_hi, vcc_lo, {mask}
    s_cbranch_scc1 {name}_L
    s_branch {name}_R""")

def e1_lists(a):
    a.halo = [[(f"buffer_store_dwordx4 {vr(bK[4], 4)}, v{vL16}, {WS}, s{sHalo} offen sc1", "halo")],
              [(f"buffer_store_dwordx4 {vr(bV[0]+8, 4)}, v{vL16}, {WS}, s{sHalo} offen offset:1024 sc1", "halo")]]
    a.kv = []; a.dsw = []
    for rt in range(2):
        for (blk, f0) in ((pKA[rt], 0), (pVA[rt], 2)):
            for f in range(2):
                off = (f0 + f)*1024
                a.kv.append([(f"buffer_store_dwordx4 {vr(blk+4*f, 4)}, v{vL16 if f0 else vKS}, {WS}, s{26 if rt == 0 else 25} offen offset:{off} sc1", "kv")])
                a.dsw.append([f"ds_write_b128 v{22 if f0 else vKL}, {vr(blk+4*f, 4)} offset:{rt*4096 + off}"])

def e1_head(a, sides, left):
    w = [f"s_add_u32 s36, s{sKVdst}, {KV_LDS[0]}", f"v_add_u32 v22, s36, v{vL16}", f"v_add_u32 v{vKL}, s36, v{vKS}", f"v_add_u32 v{vL16b}, 4096, v{vL16}"]
    w += left + [f"v_accvgpr_read_b32 v{vIDX}, a127"]
    a.selrest = [f"v_accvgpr_mov_b32 a{aSEL+i}, a{125 + i//2}" for i in range(4)]
    for g in range(16):
        budget = 2
        if g % 2 == 1 and g > 1:
            sides.setdefault(g, []).extend(a.dsw.pop(0)); budget = 0
        while w and budget > 0:
            x = w.pop(0)
            sides.setdefault(g, []).append(x)
            budget -= 2 if (not isinstance(x, str) or "permlane" in x) else (0 if x.startswith("s_") else 1)
    a.e1rest = w

def e1(a):
    o = a.opts
    pend = a.kv + a.halo
    a.emit(a.wait(["nonce"]))
    a(f"v_readfirstlane_b32 s{sNONCE}, v21")
    w = a.e1rest + a.selrest + packl(QB[0], bQ[0]) + packl(QB[1], bQ[2])
    weave(a, w, a.dsw, 2, 8)
    a(f"s_cmp_eq_u32 s{sNONCE}, 0")
    a("s_cbranch_scc1 L_NONCE_S")
    a("L_NONCE_R:")
    a.tail.append(f"""L_NONCE_S:
    s_mov_b32 s{sSpin}, 0
L_NONCE_L:
    global_load_dword v21, v19, s[{sPDbg}:{sPDbg+1}] sc1
    s_add_u32 s{sSpin}, s{sSpin}, 1
    s_waitcnt vmcnt(0)
    v_readfirstlane_b32 s{sNONCE}, v21
    s_cmp_lt_u32 s{sSpin}, 0x40000
    s_cbranch_scc0 L_NONCE_R
    s_nop 2
    s_cmp_eq_u32 s{sNONCE}, 0
    s_cbranch_scc1 L_NONCE_L
    s_branch L_NONCE_R""")
    for s in pend.pop(0): a.emit(s)
    a.stamp("e1pack")
    qa = []
    for q in QA:
        qa += [f"v_pk_mul_f32 {vr(q+2*j, 2)}, {vr(q+2*j, 2)}, s[62:63]" for j in range(8)] + pk16(q)
    lt = L()
    local16(lt, [(1, 128, 152, 40, 180), (2, 136, 156, 48, 182), (3, 144, 176, 56, 184)], fill1=qa[:20], fill2=qa[20:])
    weave(a, lt, pend, o.get("st_a", 40), o.get("st_b", 50))
    for g in pend:
        for s in g: a.emit(s)
    a.stamp("loc1")
    a.emit(a.wait(["kv"], lgkm=True))
    for s in flag_store(32, 20, "fKV"): a.emit(s)
    a("s_barrier")
    a.stamp("fKV")

sKVp, sKVg, sOg, sPFW = 84, 98, 100, 52
vL16b = 5
def kv_dma(slot, group, tag):
    out = [f"s_add_u32 m0, s{sKVdst}, {KV_LDS[slot] + group*4096}"]
    for p in range(4):
        out.append((f"global_load_lds_dwordx4 v{vL16b if group else vL16}, s[{sKVg}:{sKVg+1}] offset:{p*1024} sc1", tag))
    return out
sKVb, sKVd = 3, 34
def kv_advance(c):
    if c <= 7:
        return [f"s_cmp_le_u32 s{sKVt}, {c-1}", f"s_addc_u32 s36, s{sKVb}, {c-1}", "s_lshl_b32 s36, s36, 15",
                f"s_add_u32 s{sKVg}, s{sKVp}, s36", f"s_addc_u32 s{sKVg+1}, s{sKVp+1}, 0"]
    return [f"s_add_u32 s36, s{sKVb}, {c}", "s_and_b32 s36, s36, 15", "s_lshl_b32 s36, s36, 15",
            f"s_add_u32 s{sKVg}, s{sKVp}, s36", f"s_addc_u32 s{sKVg+1}, s{sKVp+1}, 0"]

def sel_init(t0, t1):
    return [f"v_lshrrev_b32 v{t0}, 1, v{vLANE}", f"v_and_b32 v{t0}, 3, v{t0}", f"v_min_u32 v{t1}, 1, v{t0}", f"v_add_u32 v{t1}, -1, v{t1}",
            f"v_and_b32 v{t1}, 0x3f803f80, v{t1}", f"v_accvgpr_write_b32 a{aSEL}, v{t1}", f"v_accvgpr_write_b32 a{aSEL+1}, v{t1}",
            f"v_xor_b32 v{t0}, 2, v{t0}", f"v_min_u32 v{t1}, 1, v{t0}", f"v_add_u32 v{t1}, -1, v{t1}",
            f"v_and_b32 v{t1}, 0x3f803f80, v{t1}", f"v_accvgpr_write_b32 a{aSEL+2}, v{t1}", f"v_accvgpr_write_b32 a{aSEL+3}, v{t1}",
            f"v_and_b32 v{vIDX}, 1, v{vLANE}", f"v_mul_u32_u24 v{vIDX}, 0xaaaa, v{vIDX}", f"v_add_u32 v{vIDX}, 0x4444, v{vIDX}"]
def smf(q): return f"v_smfmac_f32_16x16x64_bf16 {ar(aL[q], 4)}, {ar(aSEL, 4)}, {vr(P[q], 8)}, v{vIDX}"

def H(a, q, vpar, qk=True, pv=True, pv_first=False, slots=None):
    slots = slots or {}
    o = 1 - q
    e = [f"v_exp_f32 v{S[q]+i}, v{S[q]+i}" for i in range(16)]
    c = [f"v_cvt_pk_bf16_f32 v{P[q]+j}, v{S[q]+2*j}, v{S[q]+2*j+1}" for j in range(8)]
    So, Oo = vr(S[o], 16), ar(aO[o], 16)
    M = [mf32(So, ar(aK, 4), vr(QA[o], 4), vr(NM[o], 16)) if qk else None,
         mf32(So, ar(aK+4, 4), vr(QA[o]+4, 4), So) if qk else None,
         mf32(Oo, ar(aV[vpar], 4), vr(P[o], 4), 0 if pv_first else Oo) if pv else None,
         mf32(Oo, ar(aV[vpar]+4, 4), vr(P[o]+4, 4), Oo) if pv else None,
         smf(o) if pv else None, None]
    V = [[e[0], e[1], e[2]], [e[3], c[0], c[1], e[4]], [e[5], e[6], e[7]], [c[2], c[3], e[8], e[9], e[10], e[11], c[4], c[5]],
         [], [e[12], e[13], e[14], e[15], c[6], c[7]]]
    if not pv: V[3] = ["s_nop 0"] + V[3]
    for i in range(6):
        if M[i]: a(M[i])
        for s in slots.get(i, []): a.emit(s)
        for s in V[i]: a(s)

def rdK(slot, off): return [f"ds_read_b128 {ar(aK, 4)}, v{vKV[slot]} offset:{off}", f"ds_read_b128 {ar(aK+4, 4)}, v{vKV[slot]} offset:{off+1024}"]
def rdV(par, slot, off): return [f"ds_read_b128 {ar(aV[par], 4)}, v{vKV[slot]} offset:{off+2048}", f"ds_read_b128 {ar(aV[par]+4, 4)}, v{vKV[slot]} offset:{off+3072}"]

FREE_A = [0, 3, 4]; FREE_B = [2, 3, 4, 5]
TORD = [0, 2, 1, 3]
def tile(a, n, side=None, end_b=None):
    sa = {}; sb = {}
    if n < 63:
        m = n + 1
        k = rdK((m >> 2) & 1, TORD[m & 3]*4096); v = rdV(m & 1, (m >> 2) & 1, TORD[m & 3]*4096)
        sa[1] = [k[0]]; sa[2] = [k[1]]; sa[5] = ["s_waitcnt lgkmcnt(0)"]
        sb[0] = [v[0]]; sb[1] = [v[1]]
    if side is not None:
        for g in FREE_A:
            if side: sa.setdefault(g, []).extend(side.pop(0))
        for g in (FREE_B if end_b is None else FREE_B[:-1]):
            if side: sb.setdefault(g, []).extend(side.pop(0))
        if sb.get(4) and sb.get(5) and isinstance(sb[4][-1], str) and " m0," in sb[4][-1] and isinstance(sb[5][0], tuple):
            if not sb.get(3): sb[3] = sb.pop(4)
            elif len(sb[3]) == 1 and isinstance(sb[3][0], str) and " m0," not in sb[3][0] and not sb[3][0].startswith(("s_cmp", "s_addc", "s_add_u32 s9", "s_add_u32 s10")):
                sb[3], sb[4] = sb[4], sb[3]
            else: sb[4] = sb[4] + ["s_nop 0"]
    if end_b: sb.setdefault(5, []).extend(end_b)
    H(a, 0, (n - 1) & 1, pv=(n != 0), pv_first=(n == 1), slots=sa)
    H(a, 1, n & 1, qk=(n < 63), pv_first=(n == 0), slots=sb)

def neg_max(a):
    for q in range(2): a(f"v_mov_b32 v{21+q}, v{19+q}")
    a("s_nop 0")
    for q in range(2): a(f"v_permlane32_swap_b32 v{19+q}, v{21+q}")
    for q in range(2): a(f"v_max_f32 v{19+q}, v{19+q}, v{21+q}")
    for q in range(2):
        for i in range(16): a(f"v_sub_f32 v{NM[q]+i}, 0, v{19+q}")

def gate_compute(a, z=23, t=24, tb=96):
    for i in range(16):
        a(f"v_accvgpr_read_b32 v{tb+(i%4)}, a{aGATE+i}")
        a(f"v_accvgpr_read_b32 v{tb+4+(i%4)}, a{aGATE+16+i}")
        a(f"v_dot2_f32_bf16 v{z}, v{tb+(i%4)}, v{tb+4+(i%4)}, {0 if i == 0 else 'v%d' % z}")
    a("s_nop 2")
    for sh in (8, 4, 2, 1):
        a(f"v_add_f32_dpp v{z}, v{z}, v{z} row_ror:{sh} row_mask:0xf bank_mask:0xf")
        a("s_nop 1")
    a(f"v_mov_b32 v{t}, v{z}")
    a("s_nop 1")
    a(f"v_permlane16_swap_b32 v{z}, v{t}")
    a(f"v_add_f32 v{z}, v{z}, v{t}")
    a(f"v_mul_f32 v{z}, {f2u(-math.log2(math.e))}, v{z}")
    a(f"v_exp_f32 v{z}, v{z}")
    a(f"v_and_b32 v{t}, 31, v{vLANE}")
    a(f"v_add_f32 v{z}, 1.0, v{z}")
    a(f"v_rcp_f32 v{z}, v{z}")
    a(f"v_min_u32 v{t}, 1, v{t}")
    a(f"v_lshlrev_b32 v{t}, 31, v{t}")
    a(f"v_lshl_or_b32 v{t}, v{vGrow}, 2, v{t}")
    a(f"s_mov_b32 s36, {G_OFF}")
    a.emit((f"buffer_store_dword v{z}, v{t}, {WS}, s36 offen sc1", "g"))

def p4_setup(a):
    srd(a, sWoA, sPWoA, sPWoA+1, 1024*1024*2)
    srd(a, sWoB, sPWoB, sPWoB+1, 1024*1024*2)
    srd(a, sOutD, sPOut, sPOut+1, 2048*1024*2)
    a("s_and_b32 s36, s2, 7")
    a("s_lshr_b32 s37, s2, 3")
    a(f"s_and_b32 s{sC4}, s37, 15")
    a("s_lshr_b32 s37, s37, 4")
    a("s_lshl_b32 s36, s36, 1")
    a(f"s_add_u32 s{sT4}, s36, s37")
    r, c, t0, t1 = 200, 201, 202, 203
    a(f"v_lshrrev_b32 v{r}, 3, v{vLANE}")
    a(f"v_and_b32 v{c}, 7, v{vLANE}")
    a(f"s_lshl_b32 s36, s{sW}, 14")
    a(f"s_lshl_b32 s37, s{sC4}, 7")
    a("s_add_u32 s37, s36, s37")
    a(f"v_lshlrev_b32 v{t1}, 11, v{r}")
    a(f"v_add_u32 v{t1}, s37, v{t1}")
    a(f"v_and_b32 v{t0}, 6, v{r}")
    a(f"v_xor_b32 v{t0}, v{t0}, v{c}")
    a(f"v_lshl_add_u32 v{vWo_g}, v{t0}, 4, v{t1}")
    a(f"v_and_b32 v{t0}, 2, v{r}")
    a(f"s_lshl_b32 s36, s{sHH}, 2")
    a(f"v_xor_b32 v{t0}, v{t0}, v{c}")
    a(f"v_xor_b32 v{t0}, s36, v{t0}")
    a(f"v_lshl_add_u32 v{vWo_gA}, v{t0}, 4, v{t1}")
    a(f"v_lshrrev_b32 v{c}, 2, v{vLANE}")
    a(f"v_and_b32 v{t0}, 6, v{c}")
    a(f"v_lshlrev_b32 v{t0}, 4, v{t0}")
    a(f"v_lshl_add_u32 v{t0}, v{c}, 7, v{t0}")
    a(f"v_and_b32 v{t1}, 3, v{vLANE}")
    a(f"v_lshl_add_u32 v{vWo_r[0]}, v{t1}, 3, v{t0}")
    for nt in range(1, 4):
        a(f"v_xor_b32 v{vWo_r[nt]}, {32*nt}, v{vWo_r[0]}")
    a(f"s_lshl_b32 s36, s{sT4}, 2")
    a(f"s_add_u32 s36, s36, s{sW}")
    a(f"s_lshl_b32 s{sOrow}, s36, 16")
    a(f"s_lshr_b32 s36, s36, 1")
    a(f"s_lshl_b32 s29, s36, 7")
    a(f"s_lshr_b32 s36, s{sC4}, 1")
    a(f"s_lshl_b32 s{sOoff}, s36, 13")
    a(f"s_lshl_b32 s{sWooff}, s36, 18")
    a(f"v_and_b32 v16, 31, v{vLANE}")
    a("v_lshlrev_b32 v16, 2, v16")
    a(f"v_and_b32 v17, 15, v{vLANE}")
    a(f"v_cmp_le_u32 vcc, s{sKVt}, v17")
    a(f"v_add_u32 v17, s{sKVb}, v17")
    a("s_nop 0")
    a("v_addc_co_u32 v17, vcc, 0, v17, vcc")
    a("v_and_b32 v17, 15, v17")
    a("v_lshlrev_b32 v17, 2, v17")
    a("s_lshl_b32 s36, s2, 2")
    a(f"s_add_u32 s36, s36, s{sW}")
    a("s_lshl_b32 s36, s36, 11")
    a(f"v_and_b32 v25, 7, v{vLANE}")
    a("v_lshlrev_b32 v25, 7, v25")
    a("v_add_u32 v25, s36, v25")
    a(f"s_add_u32 s36, s{sOrow}, {OB_OFF}")
    a(f"s_add_u32 s{sOg}, s54, s36")
    a(f"s_addc_u32 s{sOg+1}, s55, 0")

aPARK = 116
def p4_split():
    ps = L(); p4_setup(ps)
    regs = [vWo_g, vWo_gA] + vWo_r + [16, 17, 25]
    tmp = {r: 64 + i for i, r in enumerate(regs)}
    tmp.update({200: 80, 201: 81, 202: 82, 203: 83})
    import re
    early = []
    late = [x for x in ps if any(x.split()[1].startswith(f"s{i},") for i in range(sWoA, sWoA + 4))]
    for x in ps:
        if x in late: continue
        early.append(re.sub(r"\bv(\d+)\b", lambda m: f"v{tmp.get(int(m.group(1)), int(m.group(1)))}", x))
    out = []
    for x in early:
        if x.startswith(("s_addc", "v_addc")) or (out and out[-1].split("\n")[-1].startswith(("v_cmp", "s_nop"))) or (x.startswith("s_nop")):
            out[-1] += "\n" + x
        else: out.append(x)
    out += [f"v_accvgpr_write_b32 a{aPARK+i}, v{tmp[r]}" for i, r in enumerate(regs)]
    late += [f"v_accvgpr_read_b32 v{r}, a{aPARK+i}" for i, r in enumerate(regs)]
    return out, late

def wob_dma(i, tag):
    return [[f"s_mov_b32 s39, {i*65536}"], [f"s_add_u32 m0, s{sWv}, {i*4096}"],
            [(f"buffer_load_dwordx4 v{vWo_g}, s[{sWoB}:{sWoB+3}], s39 offen lds", tag)]]

def attention(a):
    o = a.opts
    a("L_ATT0:")
    for s in rdK(0, 0) + rdV(0, 0, 0): a(s)
    for s in kv_advance(1): a(s)
    for q in range(2):
        for i in range(2): a(f"v_accvgpr_write_b32 a{aL[q]+i}, 0")
    a(f"s_cmp_lg_u32 s{sPASS}, 0")
    a("s_cbranch_scc1 L_ATT1")
    if o.get("p4early", 1):
        rest = L(p4_split()[1])
        if not o.get("gateR", 0): gate_compute(rest)
        else: rest += a.gate_tail
    else:
        rest = L(); p4_setup(rest)
    n1 = 4 if o.get("gateR", 0) else 22
    for s in rest[:n1]: a.emit(s)
    a("s_waitcnt lgkmcnt(0)")
    for q in range(2): a(mf32(vr(S[q], 16), ar(aK, 4), vr(QA[q], 4), 0))
    for q in range(2): a(mf32(vr(S[q], 16), ar(aK+4, 4), vr(QA[q]+4, 4), vr(S[q], 16)))
    padfill(a, rest[n1:n1+26], 11)
    for q in range(2):
        s, m = S[q], 19 + q
        a(f"v_max3_f32 v{m}, v{s}, v{s+1}, v{s+2}")
        for i in range(3, 15, 2): a(f"v_max3_f32 v{m}, v{m}, v{s+i}, v{s+i+1}")
        a(f"v_max_f32 v{m}, v{m}, v{s+15}")
    for q in range(2): a(f"v_mov_b32 v{21+q}, v{19+q}")
    a("s_nop 0")
    for q in range(2): a(f"v_permlane32_swap_b32 v{19+q}, v{21+q}")
    for q in range(2): a(f"v_max_f32 v{19+q}, v{19+q}, v{21+q}")
    for i in range(16): a(f"v_sub_f32 v{NM[0]+i}, 0, v19")
    padfill(a, rest[n1+26:n1+28], 2)
    a(mf32(vr(S[0], 16), ar(aK, 4), vr(QA[0], 4), vr(NM[0], 16)))
    a(mf32(vr(S[0], 16), ar(aK+4, 4), vr(QA[0]+4, 4), vr(S[0], 16)))
    for i in range(16): a(f"v_sub_f32 v{NM[1]+i}, 0, v20")
    for s in rest[n1+28:]: a.emit(s)
    a("v_mov_b32 v18, 0")
    a(f"s_add_u32 s30, s28, {F_H}")
    if o.get("fh_slot", 10) < 0:
        a.emit(a.wait(["halo"]))
        for s in flag_store(30, 20, "fH"): a.emit(s)
    a("s_branch L_ATT2")
    a("L_ATT1:")
    a("s_waitcnt lgkmcnt(0)")
    a(mf32(vr(S[0], 16), ar(aK, 4), vr(QA[0], 4), vr(NM[0], 16)))
    a(mf32(vr(S[0], 16), ar(aK+4, 4), vr(QA[0]+4, 4), vr(S[0], 16)))
    a("s_nop 11")
    a("L_ATT2:")
    a.stamp("att0")
    pk = [(f"buffer_load_dword v21, v17, {WS}, s31 offen sc1", "pKV")]
    ks = o.get("pk_slot", 0)
    sl = [[] for _ in range(14)]; sl[ks] = pk
    if o.get("fh_slot", 10) >= 0: sl[o.get("fh_slot", 10)] = [a.wait(["halo"])] + flag_store(30, 20, "fH")
    d0, d1, adv = kv_dma(1, 0, "c1a"), kv_dma(1, 1, "c1b"), kv_advance(2)
    c1s = [[d0[3]], [d0[4]], [(f"buffer_load_dword v21, v17, {WS}, s31 offen sc1", "pKV2")], [d1[0]], [d1[1], d1[2]], [d1[3]], [d1[4]]]
    def c1go():
        a.stamp("t01")
        a(d0[0])
        poll_check(a, "L_PKV", 21, 17, 31, "pKV", mask=1)
        a.stamp("pKV")
        a.emit(d0[1]); a.emit(d0[2])
    if o.get("c1early", 1):
        assert ks < 7
        fh = sl[o.get("fh_slot", 10)]
        tile(a, 0, sl[0:7]); c1go(); tile(a, 1, c1s); tile(a, 2, [[], [], [], fh])
    else:
        tile(a, 0, sl[0:7]); tile(a, 1, sl[7:14]); c1go(); tile(a, 2, c1s)
    for s in adv: a(s)
    a.stamp("t2")
    a(f"s_cmp_lg_u32 s{sPASS}, 0")
    a("s_cbranch_scc1 L_A4")
    if not o.get("p4early", 1): gate_compute(a)
    a("s_branch L_A5")
    a("L_A4:")
    a("s_waitcnt vmcnt(0)")
    a("L_A5:")
    a.emit(a.wait(["c1a"], lgkm=True))
    a("s_barrier")
    a.pkv2 = True
    a.stamp("c1")
    wob = [i for i in range(24)]
    obl = [i for i in range(64)]
    if o.get('noside', 0) & 1: wob = wob[:1]
    if o.get('noside', 0) & 2: obl = obl[:1]
    ob_start = o.get("ob_start", 6)
    obase = False
    for c in range(15):
        V = []; A = []
        side = []
        if c + 2 <= 15:
            d0, d1 = kv_dma(c % 2, 0, f"c{c+2}"), kv_dma(c % 2, 1, f"c{c+2}")
            kvs = [[x] for x in d0] + [[x] for x in d1] + ([[x] for x in kv_advance(c + 3)] if c + 3 <= 15 else [])
        else:
            kvs = []
        oth = []
        if c == 0:
            oth += [[(f"buffer_load_dword v21, v17, {WS}, s31 offen sc1", "pKV3")], [], [], [(f"buffer_load_dword v22, v18, {WS}, s33 offen sc1", "pH")]]
        if c == 3:
            oth += [[f"s_lshl_b32 s38, s{sSeq}, 7"], [f"s_lshl_b32 s39, s{sHead}, 2"], ["s_add_u32 s38, s38, s39"],
                    [f"s_add_u32 s35, s38, {F_OB}"], flag_store(35, 20, "fOB")]
        if c == ob_start - 2:
            oth += [[f"s_add_u32 s47, s29, {F_OB}"], [(f"buffer_load_dword v21, v16, {WS}, s47 offen sc1", "pOB")]]
        if c == o.get("cpf2", 11) or (o.get("cpfn") and c % o["cpfn"] == 2):
            oth += [[(f"buffer_load_dword v{vPFd}, v{vT[7]}, s[{sCode}:{sCode+3}], 0 offen", "cpf")]]
        nslots = 4*7 - 1 - (c == 0)
        if c >= ob_start:
            for _ in range(min(len(obl), o.get("ob_per", 8))):
                i = obl.pop(0)
                oth.append([(f"global_load_dwordx4 {oreg(i)}, v{vL16b if (i & 4) else vL16}, s[{sOg}:{sOg+1}] offset:{(i % 4)*1024} sc1", "obl")])
                if i % 8 == 7:
                    oth += [[f"s_add_u32 s{sOg}, s{sOg}, 8192"], [f"s_addc_u32 s{sOg+1}, s{sOg+1}, 0"]]
        wa0, wa1 = o.get("wam0", 1), o.get("wam1", 3)
        if c in (wa0, wa1):
            oth.insert(0, [(f"global_load_dword v{vPFd}, v25, s[{sPWoA}:{sPWoA+1}] offset:{1024*(c == wa1)}", "wopf")])
        wl = o.get("wol2", 6)
        if wl <= c < wl + 8:
            oth.append([(f"global_load_dword v{vPFd}, v0, s[{sPWoA}:{sPWoA+1}] offset:{((c - wl) & 1)*2048}", "wopf")] + (["v_add_u32 v0, 4096, v0"] if (c - wl) & 1 else []))
        wb0 = 11 if o.get("wbtail", 1) else 13
        if c in (wb0, wb0 + 1) and o.get("wbl2", 0):
            oth.append([(f"global_load_dword v{vPFd}, v15, s[{sPWoB}:{sPWoB+1}] offset:{(c - wb0)*2048}", "wopf")])
        if c == 14 and o.get("wbtail", 1): wob += list(range(24, 32))[:1 if o.get('noside', 0) & 1 else 8]
        while wob and (len(kvs) + len(oth) + 3 <= nslots or c == 14):
            i_ = wob.pop(0)
            oth += wob_dma(i_, f"wo{i_//8}")
        if o.get('noside', 0) & 4 and c >= 4: kvs = [g for g in kvs if not isinstance(g[0], tuple)] + [[kvs[1][0]]] if kvs else []
        if o.get('noside', 0) & 8 and c >= 4: kvs = [g for g in kvs if isinstance(g[0], tuple) or "m0" in g[0]]
        side = kvs + oth
        while len(side) > nslots:
            for k in range(len(side) - 1):
                if all(isinstance(x, str) and x.startswith("s_") and "m0" not in x for x in side[k]):
                    side[k+1] = side[k] + side[k+1]; side.pop(k); break
            else:
                raise Exception("slots")
        n = len(side)
        nv = sum(isinstance(x, tuple) for g in side for x in g)
        if n < nslots and nv >= o.get("spread", 1):
            sp = [[] for _ in range(nslots)]
            for k, g in enumerate(side): sp[k*nslots//n] = g
            side = sp
        if c == 0:
            poll_check(a, "L_PKV2", 21, 17, 31, "pKV2", mask=2)
        if c == 1:
            poll_check(a, "L_PKV3", 21, 17, 31, "pKV3", mask=0xffff)
            poll_check(a, "L_PH", 22, 18, 33, "pH")
            a(f"s_sub_u32 s38, s{sHalo}, 4096")
            a(f"s_cmp_eq_u32 s{sSeq}, 0")
            a(f"s_cselect_b32 s38, {OOB}, s38")
            a.emit((f"buffer_load_dwordx4 {vr(bK[0], 4)}, v{vL16}, {WS}, s38 offen sc1", "hl"))
            a.emit((f"buffer_load_dwordx2 {vr(bV[0], 2)}, v{vL16}, {WS}, s38 offen offset:1024 sc1", "hl"))
            a.emit((f"buffer_load_dwordx2 {vr(bV[1], 2)}, v{vL16}, {WS}, s38 offen offset:1032 sc1", "hl"))
        if c == 2:
            a(f"s_cmp_lg_u32 s{sPASS}, 0")
            a("s_cbranch_scc1 L_LOC0X")
            a(f"s_cmp_eq_u32 s{sSeq}, 0")
            a("s_cbranch_scc0 L_MASKOK")
            for i in range(4): a(f"v_mov_b32 v{vMc+i}, {NEGBIG}")
            a("L_MASKOK:")
            a(f"s_add_u32 s35, s{sOst}, {OB_OFF}")
            a(f"s_add_u32 s38, s{sOst}, {OB_OFF + 65536}")
            local16(a, [(0, 96, 104, 108, 23)], fill1=[ob_store(1, 40), ob_store(2, 48)], fill2=[ob_store(3, 56)])
            a.emit(ob_store(0, 108))
            a("L_LOC0X:")
            a.stamp("loc0")
        if c == ob_start - 1:
            poll_check(a, "L_POB", 21, 16, 47, "pOB")
        tile(a, 4*c + 3, side)
        tile(a, 4*c + 4, side, end_b=[a.wait(["c1b"]), "s_barrier"] if c == 0 else None)
        tile(a, 4*c + 5, side)
        tile(a, 4*c + 6, side, end_b=[a.wait([f"c{c+2}"], lgkm=True) if c + 2 <= 15 else a.wait(["wo0", "obl"], lgkm=True), "s_barrier"])
        assert not side
        if c in (4, 9): a.stamp(f"c{c}")
        if c == 7:
            for _ in range(o.get("idle_att", 0)): a("s_nop 15")
    assert not wob and not obl, (wob, obl)
    r0 = p4_reads(0) + p4_reads(1)
    tile(a, 63, [r0[0:2], r0[2:4], r0[4:6], r0[6:8], r0[8:10], r0[10:13], r0[13:16]])
    a(f"s_add_u32 s36, s{sOst}, {OA_OFF}")
    a(f"s_add_u32 s37, s{sOst}, {OA_OFF + 65536}")
    a(mf32(ar(aO[1], 16), ar(aV[1], 4), vr(P[1], 4), ar(aO[1], 16)))
    a(smf(1))
    a(mf32(ar(aO[1], 16), ar(aV[1]+4, 4), vr(P[1]+4, 4), ar(aO[1], 16)))
    a.stamp("attend")
    F = L()
    F(f"v_accvgpr_read_b32 v19, a{aL[0]}")
    F(f"v_accvgpr_read_b32 v21, a{aL[0]+1}")
    for i in range(16): F(f"v_accvgpr_read_b32 v{S[0]+i}, a{aO[0]+i}")
    F("v_add_f32 v19, v19, v21")
    F(f"v_accvgpr_read_b32 v20, a{aL[1]}")
    F("v_rcp_f32 v23, v19")
    F(f"v_accvgpr_read_b32 v21, a{aL[1]+1}")
    F("v_add_f32 v20, v20, v21")
    for i in range(16): F(f"v_mul_f32 v{S[0]+i}, v{S[0]+i}, v23")
    F += pko(S[0])
    F("v_rcp_f32 v24, v20")
    F((f"buffer_store_dwordx4 {vr(S[0], 4)}, v{vL16}, {WS}, s36 offen sc1", "oa"))
    F((f"buffer_store_dwordx4 {vr(S[0]+4, 4)}, v{vL16}, {WS}, s36 offen offset:1024 sc1", "oa"))
    for i in range(16): F(f"v_accvgpr_read_b32 v{S[1]+i}, a{aO[1]+i}")
    for i in range(16): F(f"v_mul_f32 v{S[1]+i}, v{S[1]+i}, v24")
    F += pko(S[1])
    F(f"s_mov_b32 s36, {f2u(2.0**64)}")
    F((f"buffer_store_dwordx4 {vr(S[1], 4)}, v{vL16}, {WS}, s37 offen sc1", "oa"))
    F((f"buffer_store_dwordx4 {vr(S[1]+4, 4)}, v{vL16}, {WS}, s37 offen offset:1024 sc1", "oa"))
    F("v_mov_b32 v21, 0")
    for q in range(2):
        for j in range(8): F(f"v_dot2_f32_bf16 v{19+q}, v{S[q]+j}, v21, v{19+q}")
    F("s_nop 2")
    F("v_cmp_nge_f32 s[56:57], s36, v19")
    F("v_cmp_nge_f32 vcc, s36, v20")
    F(f"s_lshl_b32 s37, s{sW}, 2")
    F(f"s_add_u32 s37, s37, {XCH}")
    F("v_mov_b32 v22, s37")
    F("s_nop 1")
    F("s_or_b64 vcc, vcc, s[56:57]")
    if o.get("force_fallback"): F("s_mov_b64 vcc, -1")
    F(f"s_cmp_lg_u64 vcc, 0\ns_cselect_b32 s36, 1, 0\ns_andn2_b32 s36, s36, s{sPASS}")
    F("v_mov_b32 v21, s36")
    F("ds_write_b32 v22, v21")
    F(f"v_mov_b32 v22, {XCH}")
    a.fin = F
    b = Asm()
    b("L_FALLBACK:")
    b(f"s_mov_b32 s{sPASS}, 1")
    b("s_waitcnt lgkmcnt(0)")
    b("v_mov_b32 v19, 0xff800000")
    b("v_mov_b32 v20, 0xff800000")
    b(f"s_lshl_b32 s38, s{sHP}, 19")
    b(f"s_lshl_b32 s39, s{sHH}, 14")
    b("s_add_u32 s38, s38, s39")
    b("s_mov_b32 s39, 0")
    b("L_FB:")
    b("s_and_b32 s36, s39, 3")
    b("s_lshl_b32 s36, s36, 12")
    b("s_lshr_b32 s37, s39, 2")
    b("s_lshl_b32 s37, s37, 15")
    b("s_add_u32 s36, s36, s37")
    b("s_add_u32 s36, s36, s38")
    b(f"buffer_load_dwordx4 {ar(aK, 4)}, v{vL16}, {WS}, s36 offen sc1")
    b(f"buffer_load_dwordx4 {ar(aK+4, 4)}, v{vL16}, {WS}, s36 offen offset:1024 sc1")
    b("s_waitcnt vmcnt(0)")
    for q in range(2): b(mf32(vr(S[q], 16), ar(aK, 4), vr(QA[q], 4), 0))
    for q in range(2): b(mf32(vr(S[q], 16), ar(aK+4, 4), vr(QA[q]+4, 4), vr(S[q], 16)))
    b("s_nop 11")
    for q in range(2):
        for i in range(0, 16, 2): b(f"v_max3_f32 v{19+q}, v{19+q}, v{S[q]+i}, v{S[q]+i+1}")
    b("s_add_u32 s39, s39, 1")
    b("s_cmp_lt_u32 s39, 64")
    b("s_cbranch_scc1 L_FB")
    neg_max(b)
    for s in sel_init(23, 24): b(s)
    b(f"s_lshl_b32 s36, s{sT}, 15")
    b(f"s_add_u32 s{sKVg}, s{sKVp}, s36")
    b(f"s_addc_u32 s{sKVg+1}, s{sKVp+1}, 0")
    b(f"s_add_u32 s36, s{sOrow}, {OB_OFF}")
    b(f"s_add_u32 s{sOg}, s54, s36")
    b(f"s_addc_u32 s{sOg+1}, s55, 0")
    b("v_add_u32 v0, -16384, v0")
    b("s_barrier")
    for g in range(2):
        for k_, s in enumerate(kv_dma(0, g, "")):
            b(s[0] if isinstance(s, tuple) else s)
            if k_ == 0: b("s_nop 0")
    b("s_waitcnt vmcnt(0)")
    b("s_barrier")
    b("s_branch L_ATT0")
    a.tail.append(b.text())

def fW4(G, nt, n=4, d=0):
    fs = G % 3
    return vr(32 + fs*16 + nt*4 + d, n) if fs < 2 else ar(nt*4 + d, n)
def p4_lds(g):
    return g*32768 if g < 4 else [131072, 0, 32768, 65536][g - 4]
def p4_reads(G):
    out = []
    base = p4_lds(G // 8)
    for nt in range(4):
        off = base % 65536 + (G % 8)*4096
        out.append(f"ds_read_b64_tr_b16 {fW4(G, nt, 2)}, v{vWo_r[nt]} offset:{off}")
        out.append(f"ds_read_b64_tr_b16 {fW4(G, nt, 2, 2)}, v{vWo_r[nt]} offset:{off + (2048 if G < 32 else 1024)}")
    return out
def woa_dma(g, i):
    pos = (g - 4)*8 + i
    return [[f"s_add_u32 s39, s{sWooff}, {pos*65536}", "s_and_b32 s39, s39, 0x1fffff", f"s_add_u32 m0, s{sWv}, {p4_lds(g) + i*4096}"],
            [(f"buffer_load_dwordx4 v{vWo_gA}, s[{sWoA}:{sWoA+3}], s39 offen lds", f"wo{g}")]]
def oa_load(i):
    out = [(f"global_load_dwordx4 {oreg(i)}, v{vL16b if (i & 4) else vL16}, s[{sOg}:{sOg+1}] offset:{(i % 4)*1024} sc1", f"oa{i}")]
    return out
def oa_next():
    return [f"s_add_u32 s{sOoff}, s{sOoff}, 8192", f"s_and_b32 s{sOoff}, s{sOoff}, 0xffff",
            f"s_add_u32 s{sOg}, s{sKVg}, s{sOoff}\ns_addc_u32 s{sOg+1}, s{sKVg+1}, 0"]

def phase4(a):
    o = a.opts
    flag_at = o.get("oaflag_gap", 40)
    poll_at = o.get("oapoll_gap", 84)
    chk_at = o.get("oachk_gap", 96)
    side = {}
    def put(k, l): side.setdefault(k, []).extend(l)
    F = list(a.fin)
    if o.get("finfirst", 0):
        n_ = max(i for i, x in enumerate(F) if isinstance(x, tuple)) + 1
        for x in F[:n_]: a.emit(x)
        F = F[n_:]
    k = 0
    while F:
        n_ = 2 if o.get("finfirst", 0) else (6 if len(F) > 5*(23 - k) - 5 else 5)
        put(k, F[:n_]); F = F[n_:]; k += 1
    assert k <= 23, k
    put(37, [f"s_add_u32 s38, s{sOrow}, {OA_OFF}", f"s_add_u32 s{sKVg}, s54, s38\ns_addc_u32 s{sKVg+1}, s55, 0"])
    put(38, [f"s_add_u32 s{sOg}, s{sKVg}, s{sOoff}\ns_addc_u32 s{sOg+1}, s{sKVg+1}, 0"])
    pre = [f"s_lshl_b32 s38, s{sSeq}, 7",
           f"s_lshl_b32 s47, s{sHead}, 2", "s_add_u32 s38, s38, s47", f"s_add_u32 s35, s38, {F_OA}", f"s_add_u32 s47, s29, {F_OA}",
           f"s_lshl_b32 s36, s{sT4}, 9", f"s_lshl_b32 s37, s{sW}, 7", "s_add_u32 s36, s36, s37", f"s_add_u32 s36, s36, {G_OFF}",
           f"v_and_b32 v24, 60, v16",
           (f"buffer_load_dword v{vG2[0]}, v24, {WS}, s36 offen sc1", "gl"), (f"buffer_load_dword v{vG2[1]}, v24, {WS}, s36 offen offset:64 sc1", "gl")]
    put(24, ["ds_read_b128 v[20:23], v22"])
    for i, x in enumerate(pre): put(25 + i//2, [x])
    put(32, ["v_or_b32 v20, v20, v21", "v_or3_b32 v20, v20, v22, v23"])
    put(33, ["v_readfirstlane_b32 s38, v20"])
    put(35, ["s_cmp_lg_u32 s38, 0\ns_cbranch_scc1 L_FALLBACK"])
    assert flag_at > 35
    put(flag_at, [a.wait(["oa"])]); put(flag_at + 1, flag_store(35, 20, "fOA"))
    put(poll_at, [(f"buffer_load_dword v21, v16, {WS}, s47 offen sc1", "pOA")])
    for k_, x in enumerate([f"v_bfe_u32 v22, v{vLANE}, 2, 2", f"v_lshrrev_b32 v23, 5, v{vLANE}", "v_lshl_add_u32 v22, v23, 2, v22", f"v_and_b32 v23, 16, v{vLANE}",
                            "v_add_u32 v22, v22, v23", "v_lshlrev_b32 v22, 7, v22", "v_lshl_add_u32 v22, v23, 2, v22", f"v_and_b32 v23, 8, v{vLANE}",
                            "v_lshl_add_u32 v22, v23, 2, v22", f"v_and_b32 v23, 3, v{vLANE}", "v_lshl_add_u32 v22, v23, 3, v22", "v_add_u32 v22, 131072, v22"]):
        put(100 + k_, [x])
    put(130, [f"v_sub_f32 v{vOM[0]}, 1.0, v{vG2[0]}", f"v_sub_f32 v{vOM[1]}, 1.0, v{vG2[1]}"])
    put(131, [f"v_and_b32 v19, 15, v{vLANE}", f"v_lshrrev_b32 v20, 4, v{vLANE}"])
    put(132, ["v_lshlrev_b32 v20, 4, v20", "v_lshl_add_u32 v19, v19, 11, v20"])
    if o.get("ldsout", 1):
        side[131] = []; side[132] = []
        put(200, [f"s_mul_i32 s38, s{sW}, 4608", f"v_and_b32 v20, 15, v{vLANE}"]); put(201, ["s_add_u32 s38, s38, 131072", "v_mul_u32_u24 v20, 144, v20"])
        put(202, [f"v_lshrrev_b32 v21, 4, v{vLANE}", "v_lshl_add_u32 v20, v21, 3, v20"]); put(203, ["v_add_u32 v20, s38, v20", f"v_lshrrev_b32 v22, 3, v{vLANE}"])
        put(204, [f"v_and_b32 v19, 7, v{vLANE}", "v_lshlrev_b32 v19, 4, v19"]); put(205, ["v_mul_u32_u24 v21, 144, v22", "v_add3_u32 v21, v21, v19, s38"])
        put(206, ["v_lshl_add_u32 v19, v22, 11, v19", "v_add_u32 v22, 16384, v19"])
    elif o.get("r128", 0):
        put(133, [f"v_and_b32 v20, 8, v{vLANE}", f"v_mul_u32_u24 v20, {2048 - 8}, v20"])
        put(152, ["v_sub_u32 v19, v19, v20", "v_add_u32 v20, 16384, v19"])
    for i in range(32): put(134 + i//2, [f"v_mul_f32 v{ACC4[0][i//16] + i%16}, v{ACC4[0][i//16] + i%16}, v{vOM[i//16]}"])
    put(248, [f"s_lshl_b32 s36, s{sT4}, 18", f"s_lshl_b32 s37, s{sW}, 16"]); put(249, ["s_add_u32 s36, s36, s37", f"s_lshl_b32 s37, s{sC4}, 7"])
    put(250, ["s_add_u32 s36, s36, s37"]); put(251, ["s_add_u32 s37, s36, 32768"])
    a("s_waitcnt lgkmcnt(0)")
    lat = o.get("p4lat", 20)
    jobs = [] if o.get("wbtail", 1) else [[26, 32*2 + 23 - lat, "wb", i] for i in range(24, 32)]
    for g in range(4, 8):
        e = {4: 0, 5: 26, 6: 57, 7: 89}[g]
        jobs += [[{4: 57, 5: 57, 6: 89, 7: 121}[g] if i == 7 else e, 32*(g - 1) + 23 - lat, "wa", (g, i)] for i in range(8)]
    jobs += [[max(chk_at + 1, 2*i + 2), 128 + 4*(i//2) - lat, "oa", i] for i in range(64)]
    gap = o.get("p4gap100", 200)/100
    t = float(o.get('wb_at', 19))
    quiet = range(poll_at - o.get("p4quiet", 4), poll_at + 1)
    while jobs:
        k = int(t)
        av = [j for j in jobs if j[0] <= k]
        if not av or k in quiet:
            t = k + 1; continue
        j = min(av, key=lambda j: j[1])
        jobs.remove(j)
        if j[2] == "wb":
            d = wob_dma(j[3], "wo3"); put(k - 1, d[0] + d[1]); put(k, d[2])
        elif j[2] == "wa":
            d = woa_dma(*j[3]); put(k - 1, d[0]); put(k, d[1])
        else:
            put(k, oa_load(j[3]))
            if j[3] % 8 == 7 and j[3] < 63: put(k + 1, oa_next())
        if k > j[1] + 8: print("p4 late", j, k)
        t += gap
    ds = []
    def lg(tags):
        k_ = max([i for i, t_ in enumerate(ds) if t_ in tags], default=-1)
        return min(len(ds) - 1 - k_, 15)
    for G in range(64):
        br = G // 32
        rd = p4_reads(G + 2) if G + 2 < 64 else []
        mv = []
        if G + 3 < 64:
            dlt = (p4_lds((G + 3)//8)//65536 - p4_lds((G + 2)//8)//65536)*65536
            if dlt: mv = [f"v_add_u32 v{vWo_r[nt]}, {dlt}, v{vWo_r[nt]}" for nt in range(4)]
            if G + 3 == 32: mv = [f"v_xor_b32 v{vWo_r[nt]}, {32*nt}, v22" for nt in range(4)]
        order = [(nt, mt) for nt in range(4) for mt in range(2)]
        if G == 62: break
        for j in range(8):
            idx = 4*G + j//2
            nt, mt = order[j]
            d = vr(ACC4[br][mt] + nt*4, 4)
            a(mf16(d, fW4(G, nt), oreg((G % 32)*2 + mt), 0 if G % 32 == 0 else d))
            sd = side.get(idx, [])
            if j % 2 == 0:
                for s in [x for x in sd if isinstance(x, str) and x.startswith("ds_read")]:
                    a(s); ds.append("xr")
                sd = [x for x in sd if not (isinstance(x, str) and x.startswith("ds_read"))]
                now, side[idx] = sd[:len(sd)//2], sd[len(sd)//2:]
            else:
                now = side.pop(idx, [])
            if rd:
                a(rd[j]); ds.append(G + 2)
                if mv and j % 2 == 1: a(mv[j//2])
            for s in now:
                a.emit(s)
                if isinstance(s, str) and s.startswith("ds_write"): ds.append("xw")
            if j % 2 == 1:
                if idx == flag_at + 1: a.stamp("fOA")
                if idx == chk_at:
                    poll_check(a, "L_POA", 21, 16, 47, "pOA")
                    a.stamp("pOA")
        if G == 63: break
        w = ""
        need = []
        if G == 61: continue
        if G + 1 >= 32: need.append(f"oa{((G + 1) % 32)*2 + 1}")
        bar = G % 8 == 5 and G // 8 < 7
        if bar and f"wo{G//8 + 1}" in a.vm: need.append(f"wo{G//8 + 1}")
        if need: w += f" vmcnt({a.vmn(need)})"
        if G + 1 >= 2: w += f" lgkmcnt({lg([G + 1, 'xw'])})"
        if w: a("s_waitcnt" + w)
        if bar: a("s_barrier")
        if G == 31: a.stamp("p4B")
    def epi(mt):
        B_, A_ = ACC4[0][mt], ACC4[1][mt]
        fl = ['', 'sc1', 'nt', 'sc0 sc1', 'sc1 nt'][o.get('outflag', 1)]
        l = [f"v_fma_f32 v{B_+i}, v{A_+i}, v{vG2[mt]}, v{B_+i}" for i in range(16)] + packl(B_)
        if o.get("ldsout", 1):
            return l + [f"ds_write_b64 v20, {vr(B_+2*nt, 2)} offset:{mt*16*144 + 32*nt}" for nt in range(4)]
        l += ["s_nop 0"]
        l += [f"v_permlane32_swap_b32 v{B_+x}, v{B_+y}" for x, y in ((0, 2), (1, 3), (4, 6), (5, 7))]
        l += [f"v_permlane16_swap_b32 v{B_+x}, v{B_+y}" for x, y in ((0, 2), (1, 3), (4, 6), (5, 7))]
        if o.get("r128", 0):
            l += [f"v_mov_b32 v{B_+8+i}, v{B_+i}" for i in range(4)]
            l += [f"v_mov_b32_dpp v{B_+i}, v{B_+4+i} row_ror:8 row_mask:0xf bank_mask:0xc" for i in range(4)]
            l += [f"v_mov_b32_dpp v{B_+4+i}, v{B_+8+i} row_ror:8 row_mask:0xf bank_mask:0x3" for i in range(4)]
            l += [(f"buffer_store_dwordx4 {vr(B_+4*k, 4)}, v{19+k}, s[{sOutD}:{sOutD+3}], s{36+mt} offen {fl}", "out") for k in range(2)]
            return l
        l += [(f"buffer_store_dwordx4 {vr(B_+4*k, 4)}, v19, s[{sOutD}:{sOutD+3}], s{36+mt} offen offset:{64*k} {fl}", "out") for k in range(2)]
        return l
    rest = [x for k_ in sorted(side) for x in side[k_]]
    a(f"s_waitcnt vmcnt({a.vmn(['oa63'])}) lgkmcnt(0)")
    for G in (62, 63):
        for nt in range(4):
            d = vr(ACC4[1][0] + nt*4, 4)
            a(mf16(d, fW4(G, nt), oreg((G % 32)*2), d))
            if rest: a.emit(rest.pop(0))
    assert not rest
    e0 = epi(0)
    for k_, (G, nt) in enumerate([(G, nt) for G in (62, 63) for nt in range(4)]):
        d = vr(ACC4[1][1] + nt*4, 4)
        a(mf16(d, fW4(G, nt), oreg((G % 32)*2 + 1), d))
        if k_ >= 2:
            a(e0.pop(0)); a(e0.pop(0))
        else:
            a("s_nop 1")
    a.stamp("p4A")
    if not o.get("ldsout", 1):
        for x in e0 + epi(1): a.emit(x)
        return
    for x in e0: a.emit(x)
    e1_ = epi(1)
    fl = ['', 'sc1', 'nt', 'sc0 sc1', 'sc1 nt'][o.get('outflag', 1)]
    T = ACC4[1][0]
    def rds(mt): return [f"ds_read_b128 {vr(T + 8*mt + 4*k, 4)}, v21 offset:{(16*mt + 8*k)*144}" for k in range(2)]
    def sts(mt): return [(f"buffer_store_dwordx4 {vr(T + 8*mt + 4*k, 4)}, v{19 if k == 0 else 22}, s[{sOutD}:{sOutD+3}], s{36+mt} offen {fl}", "out") for k in range(2)]
    for x in rds(0): a(x)
    for x in e1_[:24]: a(x)
    a("s_waitcnt lgkmcnt(0)")
    for x in e1_[24:] + rds(1): a(x)
    for x in sts(0): a.emit(x)
    a("s_waitcnt lgkmcnt(0)")
    for x in sts(1): a.emit(x)

def gen(opts):
    a = G(opts); a.tail = []
    setup(a); gemm1(a); e1(a); attention(a); phase4(a)
    if opts.get("diag") is not None:
        a.stamp("end")
        a("s_nop 1")
        a(f"v_readlane_b32 s36, v{vSTAMP}, {32 + opts['diag']}")
        a("s_nop 3")
        a("s_add_u32 s36, s36, 10000")
        if opts.get("diagwg") is not None:
            a(f"s_cmp_lg_u32 s2, {opts['diagwg']}")
            a("s_cbranch_scc1 L_END")
        a("L_DIAG:")
        a("s_memrealtime s[38:39]")
        a("s_waitcnt lgkmcnt(0)")
        a("s_sub_u32 s38, s38, s36")
        a("s_cmp_lt_i32 s38, 0")
        a("s_cbranch_scc1 L_DIAG")
    elif opts.get("dbgstamp"):
        a.stamp("end")
        sel = ["karg", "first", "g7", "g15", "g23", "g31", "loc1", "pKV", "c1", "c9", "attend", "pOA", "p4B", "p4A", "end"]
        a(f"s_cmp_lg_u32 s2, {opts['dbgstamp']-1}")
        a("s_cbranch_scc1 L_DBGX")
        a(f"s_cmp_lg_u32 s{sW}, 0")
        a("s_cbranch_scc1 L_DBGX")
        a(f"v_readlane_b32 s36, v{vSTAMP}, 32")
        for i, nm in enumerate(sel):
            a(f"v_readlane_b32 s37, v{vSTAMP}, {32 + a.names.index(nm)}")
            a("s_nop 3")
            a("s_sub_u32 s37, s37, s36")
            a("v_mov_b32 v2, s37")
            a("v_mov_b32 v3, 0")
            a(f"global_store_dword v3, v2, s[{sPDbg}:{sPDbg+1}] offset:{4*(i+1)}")
        a("L_DBGX:")
    elif opts.get("stamp"):
        a.stamp("end")
        a("s_lshl_b32 s36, s2, 2")
        a(f"s_add_u32 s36, s36, s{sW}")
        a("s_lshl_b32 s36, s36, 8")
        a(f"s_add_u32 s36, s36, {STAMP_OFF}")
        a(f"v_lshlrev_b32 v2, 2, v{vLANE}")
        a(f"buffer_store_dword v{vSTAMP}, v2, {WS}, s36 offen")
    a("s_endpgm")
    for t in a.tail: a(t)
    head = f"""; out = g*(MHA(x) Wo_A) + (1-g)*(dilated-window attention(x) Wo_B), one fused kernel, 256 co-resident workgroups (1 per CU).
; kernarg: A_x 0, A_wqkv 8, A_wo 16, B_x 24 (unused by the reference), B_wqkv 32, B_wo 40, gate_w 48, out 56, debug 64, ws 72
; workgroup (head pair hp, 128-row tile t), wave (row half, head):
;   1. q,k,v of both branches (LDS-DMA rings, 16x16x32 MFMA); K_A/V_A finish first and are published to ws (sc1) with flags
;   2. window attention (true max), full attention over all 16 K/V chunks: exp2(s - m), m = row max of the first key tile;
;      a run-time check (row sum <= 2^64, finite outputs) reruns the workgroup with the true row max otherwise
; hand-offs: data (sc1) -> s_waitcnt -> flag word = launch nonce (published through d_debug[0]); consumers poll, then load sc1
; @launch grid=(256,1,1) block=(256,1,1) lds=163840
.amdgcn_target "amdgcn-amd-amdhsa--gfx950"
.text
.globl {KNAME}
.p2align 8
.type {KNAME},@function
{KNAME}:
"""
    tail = f"""L_END:
    s_endpgm
.section .rodata,"a"
.p2align 6
.amdhsa_kernel {KNAME}
  .amdhsa_next_free_vgpr 512
  .amdhsa_next_free_sgpr 102
  .amdhsa_accum_offset 256
  .amdhsa_group_segment_fixed_size 0
  .amdhsa_kernarg_size 80
  .amdhsa_user_sgpr_count 2
  .amdhsa_user_sgpr_kernarg_segment_ptr 1
  .amdhsa_system_sgpr_workgroup_id_x 1
.end_amdhsa_kernel
"""
    gen.names = a.names
    return head + a.text() + tail

if __name__ == "__main__":
    import hazard
    opts = {}
    for kv in sys.argv[2:]:
        k, v = kv.split("="); opts[k] = int(v)
    t = gen(opts)
    open(sys.argv[1], "w").write(t)
    print(len(hazard.check(t)), "hazards", gen.names)
```
